```python
import torch

def _softmax(x, axis=-1):
    return torch.softmax(x, dim=axis)

def _gelu(x):
    return torch.nn.functional.gelu(x, approximate='tanh')

def _silu(x):
    return torch.nn.functional.silu(x)

def _sigmoid(x):
    return torch.sigmoid(x)

def _layernorm(x, axis=-1, eps=1e-05):
    m = x.mean(dim=axis, keepdim=True)
    v = x.var(dim=axis, keepdim=True, unbiased=False)
    return (x - m) / torch.sqrt(v + eps)

def _scatter_add(tgt, idx, src, axis=0):
    return tgt.clone().index_add_(axis, idx, src)

def _segment_sum(src, seg, n):
    out = torch.zeros((n,) + src.shape[1:], dtype=src.dtype)
    return out.index_add_(0, seg, src)

def _pad(x, pw):
    flat = tuple((v for pair in reversed(pw) for v in pair))
    return torch.nn.functional.pad(x, flat)
kernel_name = 'adaLN_cond__mha_block__dense_activation_relu__prompt'

def setup_inputs():

    _w = lambda a: (lambda t: t.to(torch.bfloat16) if t.is_floating_point() else t)(torch.as_tensor(a))

    def _A_setup():
        B, S, D, H = (1, 2048, 1024, 32)
        return {'x': _w((lambda *s: torch.randn(*s, dtype=torch.bfloat16) * 0.05)(B, S, D)), 'wqkv': _w((lambda *s: torch.randn(*s, dtype=torch.bfloat16) * 0.05)(D, 3 * D)), 'wo': _w((lambda *s: torch.randn(*s, dtype=torch.bfloat16) * 0.05)(D, D))}
    _A_in = _A_setup()

    def _B_setup():
        B, S, D, Dff = (1, 2048, 1024, 3584)
        return {'x': _w((lambda *s: torch.randn(*s, dtype=torch.bfloat16) * 0.05)(B, S, D)), 'w1': _w((lambda *s: torch.randn(*s, dtype=torch.bfloat16) * 0.05)(D, Dff)), 'w2': _w((lambda *s: torch.randn(*s, dtype=torch.bfloat16) * 0.05)(Dff, D))}
    _B_in = _B_setup()
    return {'A_x': _A_in['x'], 'A_wqkv': _A_in['wqkv'], 'A_wo': _A_in['wo'], 'B_x': _B_in['x'], 'B_w1': _B_in['w1'], 'B_w2': _B_in['w2'], 'c': _w((lambda *s: torch.randn(*s, dtype=torch.bfloat16) * 0.2)(1, 1024) * 8.0), 'w_mod': _w((lambda *s: torch.randn(*s, dtype=torch.bfloat16) * 0.2)(1024, 6 * 1024) * 1024 ** (-0.5) * 8.0)}

def reference(A_x, A_wqkv, A_wo, B_x, B_w1, B_w2, c, w_mod):

    def _A_ref(x, wqkv, wo):
        B, S, D = x.shape
        H = 32
        Dh = D // H
        qkv = (lambda x, *d: x.permute(*d))((x @ wqkv).reshape(B, S, 3, H, Dh), 2, 0, 3, 1, 4)
        q, k, v = (qkv[0], qkv[1], qkv[2])
        scores = torch.einsum('bhqd,bhkd->bhqk', q, k) * Dh ** (-0.5)
        p = _softmax(scores, axis=-1)
        o = torch.einsum('bhqk,bhkd->bhqd', p, v)
        return (lambda x, *d: x.permute(*d))(o, 0, 2, 1, 3).reshape(B, S, D) @ wo

    def _B_ref(x, w1, w2):
        h = torch.einsum('bsd,df->bsf', x, w1)
        zero = torch.zeros_like(h)
        h = torch.maximum(h, zero)
        return torch.einsum('bsf,fd->bsd', h, w2)
    x = A_x
    mod = (_silu(c) @ w_mod).reshape(c.shape[0], 6, 1, -1)
    sa, ca, ga, sb, cb, gb = (mod[:, 0].clone(), mod[:, 1].clone(), mod[:, 2].clone(), mod[:, 3].clone(), mod[:, 4].clone(), mod[:, 5].clone())
    h = _layernorm(x, axis=-1) * (1 + ca) + sa
    x = x + ga * _A_ref(h, A_wqkv, A_wo)
    h = _layernorm(x, axis=-1) * (1 + cb) + sb
    x = x + gb * _B_ref(h, B_w1, B_w2)
    return x
```

```python
import re

def v(i, n=1): return f"v{i}" if n == 1 else f"v[{i}:{i+n-1}]"
def s(i, n=1): return f"s{i}" if n == 1 else f"s[{i}:{i+n-1}]"

_reg_re = re.compile(r"(?<![\w.])(-?)(abs\()?([vsa])(\d+|\[(\d+):(\d+)\])")

def regs_of(tok):
    out = set()
    tok = tok.strip()
    if tok in ("vcc", "vcc_lo", "vcc_hi"): return {("s", "vcc")}
    if tok in ("exec", "exec_lo", "exec_hi"): return {("s", "exec")}
    if tok == "m0": return {("s", "m0")}
    for m in re.finditer(r"(?<![\w.])([vsa])(?:(\d+)|\[(\d+):(\d+)\])", tok):
        k = m.group(1)
        if m.group(2) is not None: out.add((k, int(m.group(2))))
        else:
            for i in range(int(m.group(3)), int(m.group(4)) + 1): out.add((k, i))
    return out

TRANS = ("v_exp_f32", "v_log_f32", "v_rcp_f32", "v_rsq_f32", "v_sqrt_f32", "v_sin_f32", "v_cos_f32", "v_rcp_iflag_f32")

class Ins:
    __slots__ = ("text", "op", "defs", "uses", "kind", "passes", "srcC", "label", "target", "ws", "isstore_wide", "storedata", "lds_dma", "sgpr_uses", "dpp", "cond")
    def __init__(self, text):
        self.text = text
        self.label = None; self.target = None; self.op = None
        self.defs = set(); self.uses = set(); self.kind = "other"; self.passes = 0; self.srcC = set()
        self.ws = 1; self.isstore_wide = False; self.storedata = set(); self.lds_dma = False; self.dpp = False; self.cond = False
        t = text.split(";")[0].strip()
        if not t or t.startswith("."):
            self.kind = "none"; self.ws = 0; return
        if t.endswith(":"):
            self.kind = "label"; self.label = t[:-1]; self.ws = 0; return
        parts = t.split(None, 1)
        op = parts[0]; self.op = op
        rest = parts[1] if len(parts) > 1 else ""
        ops = [o.strip() for o in re.split(r",(?![^\[]*\])", rest)] if rest else []
        mods = ""
        if ops:
            last = ops[-1].split()
            if len(last) > 1 and not op.startswith("s_waitcnt"):
                ops[-1] = last[0]; mods = " ".join(last[1:])
        R = regs_of
        if op == "s_nop":
            self.kind = "nop"; self.ws = int(ops[0], 0) + 1; return
        if op.startswith("s_cbranch") or op == "s_branch":
            self.kind = "branch"; self.target = ops[0]; self.cond = op != "s_branch"; return
        if op == "s_endpgm":
            self.kind = "end"; return
        if op.startswith("v_mfma") or op.startswith("v_smfmac"):
            self.kind = "mfma"
            self.defs = R(ops[0]); A = R(ops[1]); B = R(ops[2])
            C = R(ops[3]) if op.startswith("v_mfma") else R(ops[0])
            self.srcC = C
            self.uses = A | B | C | (R(ops[3]) if op.startswith("v_smfmac") else set())
            if "32x32x16" in op or "32x32x32" in op: self.passes = 8
            elif "16x16x32" in op or "16x16x64" in op: self.passes = 8 if op.startswith("v_smfmac") and False else 4
            elif "4x4x4" in op: self.passes = 2
            else: raise ValueError("unknown mfma passes " + op)
            if op.startswith("v_smfmac"): self.passes = 8
            return
        if op.startswith("v_"):
            self.kind = "valu"
            if op in TRANS or op.rstrip("_e32").rstrip("_e64") in TRANS: self.kind = "trans"
            self.dpp = "dpp" in op or "row_" in mods or "quad_perm" in mods
            if op.startswith("v_cmp"):
                self.defs = R(ops[0]); self.uses = set().union(*[R(o) for o in ops[1:]])
                if op.startswith("v_cmpx"): self.defs |= {("s", "exec")}
            elif op.startswith("v_permlane") and "swap" in op:
                self.defs = R(ops[0]) | R(ops[1]); self.uses = R(ops[0]) | R(ops[1]); self.kind = "permlane"
            elif op.startswith("v_swap"):
                self.defs = R(ops[0]) | R(ops[1]); self.uses = R(ops[0]) | R(ops[1])
            elif op.startswith("v_readfirstlane") or op.startswith("v_readlane"):
                self.defs = R(ops[0]); self.uses = set().union(*[R(o) for o in ops[1:]]); self.kind = "readlane"
            elif op in ("v_add_co_u32", "v_sub_co_u32", "v_subrev_co_u32", "v_addc_co_u32", "v_subb_co_u32", "v_div_scale_f32", "v_mad_u64_u32"):
                self.defs = R(ops[0]) | R(ops[1]); self.uses = set().union(*[R(o) for o in ops[2:]])
            else:
                self.defs = R(ops[0]); self.uses = set().union(*[R(o) for o in ops[1:]]) if len(ops) > 1 else set()
                if op.startswith("v_fmac") or op.startswith("v_dot2c") or op.startswith("v_writelane") or op.startswith("v_pk_fmac") or self.dpp or "sdwa" in op:
                    self.uses |= R(ops[0])
                if op.startswith("v_cndmask") and len(ops) == 3: self.uses |= {("s", "vcc")}
                if op.startswith("v_div_fmas"): self.uses |= {("s", "vcc")}
            return
        if op.startswith("buffer_") or op.startswith("global_"):
            self.kind = "vmem"
            allr = set().union(*[R(o) for o in ops]) if ops else set()
            if op.startswith("buffer_inv") or op.startswith("buffer_wbl2"):
                return
            lds = " lds" in (" " + mods) or "load_lds" in op
            self.lds_dma = lds
            if lds:
                self.uses = allr | {("s", "m0")}
            elif "load" in op:
                self.defs = R(ops[0]); self.uses = set().union(*[R(o) for o in ops[1:]])
            elif "store" in op or "atomic" in op:
                self.uses = allr
                data = R(ops[0]) if op.startswith("buffer_") else R(ops[1])
                self.storedata = data
                self.isstore_wide = len(data) >= 3
                if "atomic" in op and " sc0" in (" " + mods): self.defs = data if op.startswith("buffer_") else R(ops[0])
            return
        if op.startswith("ds_"):
            self.kind = "ds"
            if "read" in op or "bpermute" in op or "permute" in op or "swizzle" in op:
                self.defs = R(ops[0]); self.uses = set().union(*[R(o) for o in ops[1:]])
            else:
                self.uses = set().union(*[R(o) for o in ops])
            return
        if op.startswith("s_"):
            self.kind = "salu"
            if op.startswith("s_load") or op.startswith("s_buffer_load"):
                self.kind = "smem"; self.defs = R(ops[0]); self.uses = set().union(*[R(o) for o in ops[1:]]); return
            if op in ("s_waitcnt", "s_barrier", "s_sleep", "s_setprio", "s_sethalt"):
                return
            if op.startswith("s_cmp") or op.startswith("s_bitcmp"):
                self.uses = set().union(*[R(o) for o in ops]); return
            if op == "s_getpc_b64":
                self.defs = R(ops[0]); return
            if op in ("s_memtime", "s_memrealtime"):
                self.kind = "smem"; self.defs = R(ops[0]); return
            if ops:
                self.defs = R(ops[0]); self.uses = set().union(*[R(o) for o in ops[1:]]) if len(ops) > 1 else set()
                if "saveexec" in op: self.defs |= {("s", "exec")}; self.uses |= {("s", "exec")}
                if op in ("s_addk_i32", "s_mulk_i32"): self.uses |= R(ops[0])
            return
        raise ValueError("cannot parse: " + text)

def _isv(r): return r[0] in ("v", "a")

def need(prod, cons):
    n = 0
    pk, ck = prod.kind, cons.kind
    pv = {r for r in prod.defs if _isv(r)}
    ps = {r for r in prod.defs if not _isv(r)}
    valu_p = pk in ("valu", "trans", "permlane", "readlane")
    valu_c = ck in ("valu", "trans", "permlane", "readlane")
    if valu_p:
        if ck == "mfma" and pv & cons.uses: n = max(n, 2)
        if ck == "permlane" and pv & cons.uses: n = max(n, 2)
        if ck == "readlane" and pv & cons.uses: n = max(n, 1)
        if cons.dpp and pv & cons.uses: n = max(n, 2)
        if pk == "trans" and valu_c and pv & cons.uses: n = max(n, 1)
        if ps:
            if ck == "vmem" and ps & cons.uses: n = max(n, 5)
            if valu_c and ps & cons.uses: n = max(n, 4 if ck == "readlane" else 2)
            if ck == "mfma" and ("s", "exec") in ps: n = max(n, 4)
            if ("s", "exec") in ps and valu_c: n = max(n, 5 if cons.dpp else 4 if ck in ("readlane", "permlane") else 0)
            if ck in ("salu", "smem", "branch") and (ps & cons.uses or (ck == "branch" and ("s", "vcc") in ps)): n = max(n, 1)
    if pk == "mfma":
        p = prod.passes
        full = {2: 5, 4: 8, 8: 12, 16: 20}[p]
        if ck == "mfma":
            ab = cons.uses - cons.srcC
            if pv & ab: n = max(n, full)
            if pv & cons.srcC:
                if pv == cons.srcC and prod.passes == cons.passes: n = max(n, 2 if p == 2 else 0)
                else: n = max(n, {2: 4, 4: 6, 8: 10, 16: 18}[p])
            elif pv & cons.defs:
                n = max(n, full)
        elif valu_c or ck in ("vmem", "ds"):
            if pv & (cons.uses | cons.defs): n = max(n, full)
        if valu_c and (prod.srcC & cons.defs): n = max(n, {2: 1, 4: 3, 8: 7, 16: 15}[p])
    if pk == "salu" and ("s", "m0") in ps and ck == "vmem" and cons.lds_dma: n = max(n, 1)
    if pk == "vmem" and prod.isstore_wide and (prod.storedata & cons.defs):
        n = max(n, 2 if valu_c else 1)
    return n

MAXWS = 21

def pad_hazards(lines):
    ins = [Ins(l) for l in lines]
    labels = {x.label: x for x in ins if x.kind == "label"}
    preds = {id(x): [] for x in ins}
    for i, x in enumerate(ins):
        nxt = ins[i + 1] if i + 1 < len(ins) else None
        if x.kind == "branch":
            if x.target in labels: preds[id(labels[x.target])].append(x)
            else: raise ValueError("unknown branch target " + x.target)
            if x.cond and nxt is not None: preds[id(nxt)].append(x)
        elif x.kind == "end": pass
        elif nxt is not None: preds[id(nxt)].append(x)
    out = []
    total = 0
    for c in ins:
        if c.kind not in ("none", "label", "nop", "end"):
            worst = 0
            stack = [(p, 0) for p in preds[id(c)]]
            seen = {}
            while stack:
                p, d = stack.pop()
                if seen.get(id(p), 99) <= d: continue
                seen[id(p)] = d
                if p.kind not in ("none", "label", "nop"):
                    r = need(p, c)
                    if r > d: worst = max(worst, r - d)
                nd = d + p.ws
                if nd < MAXWS:
                    for q in preds[id(p)]: stack.append((q, nd))
            if worst > 0:
                total += worst
                k = worst
                prev = preds[id(c)]
                while k > 0:
                    t = min(k, 16)
                    n = Ins(f"  s_nop {t-1}")
                    preds[id(n)] = prev
                    prev = [n]
                    out.append(n); k -= t
                preds[id(c)] = prev
        out.append(c)
    return [x.text for x in out], total

class Asm:
    def __init__(self):
        self.lines = []
    def e(self, t):
        for l in t.split("\n"):
            if l.strip(): self.lines.append(l if l.strip().endswith(":") else "  " + l.strip())
    def label(self, n): self.lines.append(n + ":")
```

```python
import sys
from asmlib import *

NAME = "adaLN_cond__mha_block__dense_activation_relu__prompt"
S, D, DFF, H = 2048, 1024, 3584, 32
KA_X, KA_WQKV, KA_WO, KA_BX, KA_W1, KA_W2, KA_C, KA_WMOD, KA_OUT, KA_DBG, KA_WS = [8 * i for i in range(11)]
WS_MODP = 0x0
WS_MODF = 0x20000
WS_H    = 0x100000
WS_QKV  = 0x500000
WS_O    = 0x1100000
WS_X1   = 0x1500000
WS_F1   = 0x1900000
WS_XG   = 0x2800000
WS_STAT = 0x2c00000
WS_UB   = 0x2d00000
WS_STAMP = 0x3000000
DIAG = False
PF = ()
STFLAG = ''

LOG2E = 1.4426950408889634
import struct
def f32(x): return "0x%08x" % struct.unpack("<I", struct.pack("<f", x))[0]

class Kern:
    def __init__(self, name, grid, block, lds, nv, ns=96):
        self.name = name; self.grid = grid; self.block = block; self.lds = lds; self.nv = nv; self.ns = ns
        self.a = Asm(); self.e = self.a.e
        self.e(".p2align 8\n" + name + ":")
    def lab(self, n): return f"{self.name}_{n}"
    def exit_extra(self):
        self.e(f"s_cmp_ge_u32 s2, {self.grid}\ns_cbranch_scc1 {self.lab('end')}")
        self.stamp(0)
    def stamp(self, i):
        if DIAG == "clk":
            if i == 1: self.e("s_memtime s[82:83]\ns_memrealtime s[80:81]")
            if i == 2: self.e("s_memtime s[84:85]\ns_memrealtime s[86:87]")
        elif DIAG: self.e(f"s_memrealtime s[{80+2*i}:{81+2*i}]")
    def stamp_flush(self, idx, vtmp):
        if not DIAG: return
        e = self.e
        e("s_waitcnt vmcnt(0)")
        self.stamp(3)
        e(f"s_load_dwordx2 s[90:91], s[0:1], {KA_WS}")
        e("s_waitcnt lgkmcnt(0)")
        e(f"s_add_u32 s90, s90, {WS_STAMP + idx * 512 * 16:#x}\ns_addc_u32 s91, s91, 0")
        e(f"s_mov_b32 s92, s90\ns_mov_b32 s93, s91\ns_mov_b32 s94, {512*16}\ns_mov_b32 s95, 0x20000")
        if DIAG == "hw":
            e("s_getreg_b32 s82, hwreg(HW_REG_HW_ID)\ns_getreg_b32 s84, hwreg(HW_REG_XCC_ID)")
        for i in range(4): e(f"v_mov_b32 v{vtmp+i}, s{80+2*i}")
        e(f"s_lshl_b32 s90, s2, 4\nv_mov_b32 v{vtmp+4}, s90")
        e(f"v_cmp_eq_u32 vcc, 0, v0\ns_and_saveexec_b64 s[90:91], vcc\ns_cbranch_execz {self.lab('nostamp')}")
        e(f"buffer_store_dwordx4 {v(vtmp,4)}, v{vtmp+4}, s[92:95], 0 offen")
        e(f"{self.lab('nostamp')}:")
    def finish(self):
        self.e(f"{self.lab('end')}:\ns_endpgm")
    def ptr(self, sreg, karg):
        self.e(f"s_load_dwordx2 {s(sreg,2)}, s[0:1], {karg}")
    def srd(self, sd, sbase, off, nbytes):
        e = self.e
        if off:
            e(f"s_add_u32 s{sd}, s{sbase}, {off:#x}\ns_addc_u32 s{sd+1}, s{sbase+1}, 0")
        else:
            e(f"s_mov_b32 s{sd}, s{sbase}\ns_mov_b32 s{sd+1}, s{sbase+1}")
        e(f"s_mov_b32 s{sd+2}, {nbytes:#x}\ns_mov_b32 s{sd+3}, 0x20000")
    def desc(self):
        nv = (self.nv + 7) // 8 * 8
        return f""".amdhsa_kernel {self.name}
  .amdhsa_next_free_vgpr {nv}
  .amdhsa_next_free_sgpr {self.ns}
  .amdhsa_accum_offset {nv}
  .amdhsa_group_segment_fixed_size 0
  .amdhsa_kernarg_size 88
  .amdhsa_user_sgpr_count 2
  .amdhsa_user_sgpr_kernarg_segment_ptr 1
  .amdhsa_system_sgpr_workgroup_id_x 1
.end_amdhsa_kernel"""

def prefetch(k, karg, nbytes, widx, nwaves, sp, srd, vlane, vt, vd, off=0):
    e = k.e
    per = -(-nbytes // (nwaves * 8192))
    e(f"s_load_dwordx2 {s(sp,2)}, s[0:1], {karg}")
    e(f"s_mul_i32 s{srd+2}, s{widx}, {per*8192}")
    e(f"v_lshlrev_b32 v{vt}, 7, v{vlane}\nv_add_u32 v{vt}, s{srd+2}, v{vt}")
    e("s_waitcnt lgkmcnt(0)")
    k.srd(srd, sp, off, nbytes)
    for i in range(per):
        if i: e(f"v_add_u32 v{vt}, 8192, v{vt}")
        e(f"buffer_load_dword v{vd}, v{vt}, {s(srd,4)}, 0 offen")

def wave_sum(e, vals, tmp, bits):
    for b in bits:
        for r in vals:
            if b < 4:
                e(f"v_add_f32_dpp v{r}, v{r}, v{r} row_ror:{1<<b} row_mask:0xf bank_mask:0xf")
            else:
                e(f"v_mov_b32 v{tmp}, v{r}")
                e(f"v_permlane{16 if b == 4 else 32}_swap_b32 v{tmp}, v{r}")
                e(f"v_add_f32 v{r}, v{r}, v{tmp}")

def round_bf16(e, r):
    e(f"v_cvt_pk_bf16_f32 v{r}, v{r}, v{r}\nv_lshlrev_b32 v{r}, 16, v{r}")

def k_mod():
    k = Kern("mod_kernel", 384, 256, 1024, 64); e = k.e
    k.exit_extra()
    e("s_load_dwordx4 s[4:7], s[0:1], %d" % KA_C)
    k.ptr(8, KA_WS)
    e("s_and_b32 s24, s2, 3\ns_lshr_b32 s25, s2, 2")
    e("v_lshrrev_b32 v1, 3, v0\nv_and_b32 v2, 7, v0")
    e("s_lshl_b32 s26, s24, 8\nv_add_u32 v3, s26, v1")
    e("v_lshlrev_b32 v4, 1, v3")
    e("v_mul_u32_u24 v5, 12288, v3\nv_lshlrev_b32 v6, 4, v2\nv_add_u32 v5, v5, v6")
    e("s_lshl_b32 s27, s25, 7\nv_add_u32 v5, s27, v5")
    e("s_waitcnt lgkmcnt(0)")
    k.srd(12, 4, 0, 2048); k.srd(16, 6, 0, 1024 * 6144 * 2); k.srd(20, 8, WS_MODP, 4 * 6144 * 4)
    for i in range(8): e(f"buffer_load_ushort v{8+i}, v4, s[12:15], 0 offen offset:{i*64}")
    for i in range(8):
        e(f"s_mov_b32 s{32+i}, {i*32*12288}")
    for i in range(8):
        e(f"buffer_load_dwordx4 {v(16+4*i,4)}, v5, s[16:19], s{32+i} offen")
    npf = 0
    if "pf0" in PF:
        e("v_lshrrev_b32 v60, 6, v0\nv_and_b32 v61, 63, v0\nv_readfirstlane_b32 s40, v60\ns_lshl_b32 s41, s2, 2\ns_add_u32 s40, s40, s41")
        prefetch(k, KA_X, S * D * 2, 40, 1536, 42, 44, 61, 62, 63); prefetch(k, KA_WQKV, D * 3 * D * 2, 40, 1536, 42, 48, 61, 62, 63)
        npf = 2
    for j in range(8): e(f"v_mov_b32 v{48+j}, 0")
    e(f"s_waitcnt vmcnt({8+npf})")
    k.stamp(1)
    for i in range(8):
        x = 8 + i
        e(f"v_lshlrev_b32 v{x}, 16, v{x}")
        e(f"v_mul_f32 v56, {f32(-LOG2E)}, v{x}\nv_exp_f32 v56, v56\nv_add_f32 v56, 1.0, v56\nv_rcp_f32 v56, v56\nv_mul_f32 v{x}, v{x}, v56")
        round_bf16(e, x)
    for i in range(8):
        e(f"s_waitcnt vmcnt({7-i+npf})")
        for j in range(4):
            w = 16 + 4 * i + j
            e(f"v_lshlrev_b32 v56, 16, v{w}\nv_and_b32 v57, 0xffff0000, v{w}")
            e(f"v_fmac_f32 v{48+2*j}, v{8+i}, v56\nv_fmac_f32 v{49+2*j}, v{8+i}, v57")
    k.stamp(2)
    wave_sum(e, list(range(48, 56)), 56, [3, 4, 5])
    e("v_lshrrev_b32 v9, 6, v0\nv_lshlrev_b32 v9, 8, v9\nv_lshlrev_b32 v10, 5, v2\nv_add_u32 v9, v9, v10")
    e("v_and_b32 v10, 63, v0\nv_cmp_gt_u32 vcc, 8, v10\ns_and_saveexec_b64 s[28:29], vcc")
    e("ds_write_b128 v9, v[48:51]\nds_write_b128 v9, v[52:55] offset:16")
    e("s_mov_b64 exec, s[28:29]")
    e("s_waitcnt lgkmcnt(0)\ns_barrier")
    e("v_cmp_gt_u32 vcc, 64, v0\ns_and_saveexec_b64 s[28:29], vcc")
    e(f"s_cbranch_execz {k.lab('end')}")
    e("v_lshlrev_b32 v9, 2, v0")
    for w in range(4): e(f"ds_read_b32 v{12+w}, v9 offset:{w*256}")
    e("s_waitcnt lgkmcnt(0)")
    e("v_add_f32 v12, v12, v13\nv_add_f32 v14, v14, v15\nv_add_f32 v12, v12, v14")
    e("s_mul_i32 s26, s24, 24576\ns_lshl_b32 s27, s25, 8\ns_add_u32 s26, s26, s27")
    e("buffer_store_dword v12, v9, s[20:23], s26 offen")
    k.stamp_flush(0, 56)
    k.finish()
    return k

def k_h(first):
    k = Kern("h1_kernel" if first else "h2_kernel", 256, 256, 8192, 128); e = k.e
    k.exit_extra()
    k.ptr(8, KA_WS)
    if first: k.ptr(4, KA_X)
    e("v_and_b32 v1, 63, v0\nv_lshrrev_b32 v2, 6, v0")
    e("s_lshl_b32 s24, s2, 3")
    e("v_lshlrev_b32 v3, 1, v2\nv_add_u32 v3, s24, v3")
    e("v_lshlrev_b32 v3, 11, v3\nv_lshlrev_b32 v4, 4, v1\nv_add_u32 v3, v3, v4")
    e("s_waitcnt lgkmcnt(0)")
    if first: k.srd(12, 4, 0, S * D * 2)
    else: k.srd(12, 8, WS_X1, S * D * 2)
    k.srd(16, 8, WS_H, S * D * 2)
    for r in range(2):
        for hf in range(2):
            e(f"buffer_load_dwordx4 {v(8+8*r+4*hf,4)}, v3, s[12:15], 0 offen offset:{r*2048+hf*1024}")
    if first:
        k.srd(20, 8, WS_MODP, 4 * 6144 * 4)
        k.srd(28, 8, WS_MODF, 6144 * 4)
        e("v_lshlrev_b32 v5, 5, v0")
        for p in range(4):
            e(f"s_mov_b32 s26, {p*24576}")
            e(f"buffer_load_dwordx4 {v(64+8*p,4)}, v5, s[20:23], s26 offen")
            e(f"buffer_load_dwordx4 {v(68+8*p,4)}, v5, s[20:23], s26 offen offset:16")
        e("s_lshl_b32 s25, s2, 10\nv_lshlrev_b32 v6, 2, v0\nv_add_u32 v6, s25, v6")
        for p in range(4):
            e(f"s_mov_b32 s26, {p*24576}")
            e(f"buffer_load_dword v{96+p}, v6, s[20:23], s26 offen")
        e("s_waitcnt vmcnt(4)")
        for j in range(8):
            e(f"v_add_f32 v{64+j}, v{64+j}, v{72+j}\nv_add_f32 v{80+j}, v{80+j}, v{88+j}\nv_add_f32 v{64+j}, v{64+j}, v{80+j}")
            round_bf16(e, 64 + j)
        e("v_cmp_le_u32 vcc, 128, v0")
        for j in range(8):
            e(f"v_add_f32 v72, 1.0, v{64+j}")
            round_bf16(e, 72)
            e(f"v_cndmask_b32 v{64+j}, v{64+j}, v72, vcc")
        e("ds_write_b128 v5, v[64:67]\nds_write_b128 v5, v[68:71] offset:16")
        e("s_waitcnt vmcnt(0)")
        e("v_add_f32 v96, v96, v97\nv_add_f32 v98, v98, v99\nv_add_f32 v96, v96, v98")
        round_bf16(e, 96)
        e(f"s_cmp_ge_u32 s2, 24\ns_cbranch_scc1 {k.lab('nofin')}")
        e("buffer_store_dword v96, v6, s[28:31], 0 offen")
        e(f"{k.lab('nofin')}:")
        e("s_waitcnt lgkmcnt(0)\ns_barrier")
        e("v_lshlrev_b32 v5, 5, v1")
        for hf in range(2):
            for q in range(2):
                e(f"ds_read_b128 {v(32+8*hf+4*q,4)}, v5 offset:{hf*2048+q*16}")
                e(f"ds_read_b128 {v(48+8*hf+4*q,4)}, v5 offset:{4096+hf*2048+q*16}")
        e("s_waitcnt lgkmcnt(0)")
    else:
        k.srd(20, 8, WS_MODF, 6144 * 4)
        e("v_lshlrev_b32 v5, 5, v1")
        e(f"s_mov_b32 s26, {3072*4}\ns_mov_b32 s27, {4096*4}")
        for hf in range(2):
            for q in range(2):
                e(f"buffer_load_dwordx4 {v(32+8*hf+4*q,4)}, v5, s[20:23], s26 offen offset:{hf*2048+q*16}")
                e(f"buffer_load_dwordx4 {v(48+8*hf+4*q,4)}, v5, s[20:23], s27 offen offset:{hf*2048+q*16}")
        e("s_waitcnt vmcnt(0)")
        for j in range(16):
            e(f"v_add_f32 v{48+j}, 1.0, v{48+j}")
            round_bf16(e, 48 + j)
    k.stamp(1); k.stamp(2)
    for r in range(2):
        X = 64
        for j in range(8):
            src = 8 + 8 * r + j
            e(f"v_lshlrev_b32 v{X+2*j}, 16, v{src}\nv_and_b32 v{X+2*j+1}, 0xffff0000, v{src}")
        e(f"v_add_f32 v80, v{X}, v{X+1}")
        for j in range(2, 16): e(f"v_add_f32 v80, v80, v{X+j}")
        wave_sum(e, [80], 81, [0, 1, 2, 3, 4, 5])
        e(f"v_mul_f32 v80, {f32(1/1024)}, v80")
        for j in range(16): e(f"v_sub_f32 v{X+j}, v{X+j}, v80")
        e(f"v_mul_f32 v82, v{X}, v{X}")
        for j in range(1, 16): e(f"v_fmac_f32 v82, v{X+j}, v{X+j}")
        wave_sum(e, [82], 81, [0, 1, 2, 3, 4, 5])
        e(f"v_mov_b32 v83, {f32(1e-5)}\nv_fmac_f32 v83, {f32(1/1024)}, v82\nv_rsq_f32 v83, v83")
        for j in range(16):
            e(f"v_mul_f32 v{X+j}, v{X+j}, v83\nv_fma_f32 v{X+j}, v{X+j}, v{48+j}, v{32+j}")
        for j in range(8): e(f"v_cvt_pk_bf16_f32 v{84+j}, v{X+2*j}, v{X+2*j+1}")
        e(f"buffer_store_dwordx4 v[84:87], v3, s[16:19], 0 offen offset:{r*2048}")
        e(f"buffer_store_dwordx4 v[88:91], v3, s[16:19], 0 offen offset:{r*2048+1024}")
        e("s_nop 1")
    k.stamp_flush(1 if first else 5, 96)
    k.finish()
    return k

def interleave(mf, other, first=1.0):
    out = []
    oi = 0
    for i, m in enumerate(mf):
        out.append(m)
        if oi < len(other):
            out.append(other[oi]); oi += 1
    out += other[oi:]
    return out

def k_gemm(name, K, lda, ldb, BN, srcA, sizeA, srcB, sizeB, epi, xr, xc, NS, kidx=0, exp=(), pf=()):
    BM, BK = 128, 64
    nA = BM * BK * 2 // 1024; nB = BN * BK * 2 // 1024
    nAw, nBw = nA // 4, nB // 4
    nld = nAw + nBw
    SB = (nA + nB) * 1024
    nk = K // BK
    if "x8" in exp: nk *= 8
    TM, TN = 64, BN // 2
    mt, nt = TM // 16, TN // 16
    pitch = BN * 2; cpr = BN // 8
    hbits = {4: 2, 6: 1, 2: 1, 0: 3}[(pitch // 32) % 8]
    ACC = 8; NACC = 4 * mt * nt
    FA = ACC + NACC; NF = 4 * (mt + nt); FB = FA + NF
    AX = FB + NF; AW = AX + 2; EP = AW + nt
    nv = EP + {"qkv": 8, "relu": 8, "wo": 40, "ffn2": 40, "wo2": 104, "ffn1": 8}[epi]
    XL = SB * NS
    ldsx = {"ffn1": 128 * 8 + 224 * 8}.get(epi, 0)
    perm = epi == "qkv" and "perm" in exp
    assert nv <= 256, nv
    k = Kern(name, 256, 512, SB * NS + ldsx, nv); e = k.e
    L = k.lab
    k.exit_extra()
    def getptr(sreg, src):
        k.ptr(sreg, KA_WS if src[0] == "ws" else src[1])
    getptr(28, srcA); getptr(30, srcB); k.ptr(32, KA_WS)
    if epi in ("wo", "wo2"): k.ptr(34, KA_X)
    if epi == "ffn2": k.ptr(34, KA_OUT)
    e("v_lshrrev_b32 v1, 6, v0\nv_and_b32 v2, 63, v0")
    e("v_readfirstlane_b32 s24, v1")
    nxc = 16 // xc
    e(f"s_and_b32 s36, s2, 7\ns_lshr_b32 s37, s2, 3")
    e(f"s_and_b32 s38, s36, {nxc-1}\ns_lshr_b32 s39, s36, {nxc.bit_length()-1}")
    e(f"s_and_b32 s40, s37, {xc-1}\ns_lshr_b32 s41, s37, {xc.bit_length()-1}")
    e(f"s_mul_i32 s38, s38, {xc}\ns_add_u32 s26, s38, s40")
    e(f"s_mul_i32 s39, s39, {xr}\ns_add_u32 s25, s39, s41")
    e("s_waitcnt lgkmcnt(0)")
    k.srd(4, 28, srcA[1] if srcA[0] == "ws" else 0, sizeA)
    k.srd(8, 30, srcB[1] if srcB[0] == "ws" else 0, sizeB)
    e(f"s_cmp_ge_u32 s24, 4\ns_cbranch_scc1 {L('loader')}")
    e("s_lshr_b32 s42, s24, 1\ns_and_b32 s43, s24, 1")
    e("v_and_b32 v3, 15, v2\nv_lshrrev_b32 v4, 4, v2")
    tok0 = 44
    e(f"s_lshl_b32 s44, s25, 7\ns_lshl_b32 s45, s42, 6\ns_add_u32 s44, s44, s45")
    e(f"s_mul_i32 s46, s26, {BN}\ns_mul_i32 s45, s43, {TN}\ns_add_u32 s46, s46, s45")
    if epi == "qkv":
        k.srd(12, 32, WS_QKV, 96 * S * 64)
    elif epi in ("relu", "ffn1"):
        k.srd(12, 32, WS_F1, S * DFF * 2)
    elif epi in ("wo", "wo2"):
        k.srd(12, 32, WS_X1, S * D * 2); k.srd(16, 34, 0, S * D * 2); k.srd(20, 32, WS_MODF, 6144 * 4)
    elif epi == "ffn2":
        k.srd(12, 34, 0, S * D * 2); k.srd(16, 32, WS_X1, S * D * 2); k.srd(20, 32, WS_MODF, 6144 * 4)
    if epi in ("wo", "wo2", "ffn2"):
        e(f"v_add_u32 v5, s44, v3\nv_lshlrev_b32 v5, 11, v5\nv_lshlrev_b32 v6, 3, v4\nv_add_u32 v5, v5, v6")
        e(f"s_lshl_b32 s47, s46, 1\nv_add_u32 v5, s47, v5")
        for j in range(mt):
            e(f"s_mov_b32 s48, {j*16*2048}")
            for i in range(nt):
                e(f"buffer_load_dwordx2 {v(EP+2*(j*nt+i),2)}, v5, s[16:19], s48 offen offset:{i*32}")
        gate = (5 if epi == "ffn2" else 2) * 1024
        e(f"v_lshlrev_b32 v6, 4, v4\ns_lshl_b32 s47, s46, 2\ns_add_u32 s47, s47, {gate*4}")
        for i in range(nt):
            e(f"buffer_load_dwordx4 {v(EP+2*mt*nt+4*i,4)}, v6, s[20:23], s47 offen offset:{i*64}")
        if epi == "wo2":
            GG = EP + 2 * mt * nt + 4 * nt
            e(f"s_lshl_b32 s47, s46, 2\ns_add_u32 s47, s47, {4096*4}")
            for i in range(nt):
                e(f"buffer_load_dwordx4 {v(GG+4*i,4)}, v6, s[20:23], s47 offen offset:{i*64}")
            W1R = GG + 4 * nt
            k.ptr(36, KA_W1)
            e("s_lshl_b32 s57, s2, 2\ns_add_u32 s57, s57, s24")
            e(f"s_mul_hi_u32 s58, s57, {(2**32 + 55)//56}\ns_mul_i32 s59, s58, 56\ns_sub_u32 s59, s57, s59")
            e("v_lshrrev_b32 v5, 3, v2\nv_and_b32 v6, 7, v2")
            e(f"s_lshl_b32 s60, s58, 6\nv_add_u32 v5, s60, v5")
            e(f"v_mul_u32_u24 v7, {DFF*2}, v5\nv_lshlrev_b32 v6, 4, v6\nv_add_u32 v7, v7, v6\ns_lshl_b32 s60, s59, 7\nv_add_u32 v7, s60, v7")
            e("s_waitcnt lgkmcnt(0)")
            k.srd(60, 36, 0, D * DFF * 2)
            for i in range(8):
                e(f"s_mov_b32 s64, {i*8*DFF*2}")
                e(f"buffer_load_dwordx4 {v(W1R+4*i,4)}, v7, s[60:63], s64 offen")
            e("v_lshlrev_b32 v5, 2, v5")
            e(f"s_mov_b32 s64, {4096*4}\ns_mov_b32 s65, {3072*4}")
            for i in range(8):
                e(f"buffer_load_dword v{W1R+32+i}, v5, s[20:23], s64 offen offset:{i*32}")
                e(f"buffer_load_dword v{W1R+40+i}, v5, s[20:23], s65 offen offset:{i*32}")
    if pf:
        e("s_lshl_b32 s56, s2, 2\ns_add_u32 s56, s56, s24")
        for n_, (karg, nbytes) in enumerate(pf):
            prefetch(k, karg, nbytes, 56, 1024, 58, 60 + 4 * n_, 2, 6, 1)
    e(f"v_lshrrev_b32 v5, 1, v3\nv_xor_b32 v5, v5, v4\nv_and_b32 v5, 7, v5")
    e(f"v_lshlrev_b32 v5, 4, v5\ns_lshl_b32 s47, s42, 6\nv_add_u32 v6, s47, v3\nv_lshlrev_b32 v6, 7, v6")
    e(f"v_add_u32 v{AX}, v5, v6\nv_xor_b32 v{AX+1}, 64, v{AX}")
    e("v_lshrrev_b32 v5, 2, v3\nv_and_b32 v6, 3, v2")
    e("v_lshlrev_b32 v7, 3, v4\nv_add_u32 v7, v7, v5")
    e(f"v_mul_u32_u24 v7, {pitch}, v7\nv_lshlrev_b32 v6, 3, v6\nv_add_u32 v7, v7, v6\nv_add_u32 v7, {nA*1024}, v7")
    if hbits == 2:
        e("v_lshrrev_b32 v5, 1, v5\nv_and_b32 v6, 1, v4\nv_lshlrev_b32 v6, 1, v6\nv_or_b32 v5, v5, v6")
    elif hbits == 1:
        e("v_and_b32 v5, 1, v4")
    else:
        e("v_and_b32 v6, 1, v4\nv_lshlrev_b32 v6, 2, v6\nv_or_b32 v5, v5, v6")
    e(f"s_mul_i32 s47, s43, {nt}")
    for i in range(nt):
        e(f"s_add_u32 s48, s47, {i}\nv_xor_b32 v6, s48, v5\nv_lshlrev_b32 v6, 5, v6\nv_add_u32 v{AW+i}, v7, v6")
    for r in range(NACC): e(f"v_mov_b32 v{ACC+r}, 0")
    def reads(ss, F):
        if "noread" in exp: return []
        l = []
        xs = [f"ds_read_b128 {v(F+4*j,4)}, v{AX+ss} offset:{j*2048}" for j in range(mt)]
        ws = []
        for i in range(nt):
            for hh in range(2):
                ws.append(f"ds_read_b64_tr_b16 {v(F+4*mt+4*i+2*hh,2)}, v{AW+i} offset:{(ss*32+hh*4)*pitch}")
        return [xs[0]] + ws[:2] + xs[1:] + ws[2:]
    def mfmas(F):
        if "nomfma" in exp: return []
        return [f"v_mfma_f32_16x16x32_bf16 {v(ACC+4*(j*nt+i),4)}, {v(F+4*mt+4*i,4)}, {v(F+4*j,4)}, {v(ACC+4*(j*nt+i),4)}"
                for j in range(mt) for i in range(nt)]
    e(f"s_mov_b32 s49, 0\ns_mov_b32 s54, {SB}\ns_mov_b32 s55, {-(NS-1)*SB & 0xffffffff:#x}")
    e("s_barrier")
    k.stamp(1)
    for l in reads(0, FA): e(l)
    e(f"s_mov_b32 s50, {nk-1}")
    def advance():
        e(f"s_add_u32 s49, s49, 1\ns_cmp_eq_u32 s49, {NS}\ns_cselect_b32 s51, s55, s54\ns_cselect_b32 s49, 0, s49")
        for r in [AX, AX + 1] + [AW + i for i in range(nt)]:
            e(f"v_add_u32 v{r}, s51, v{r}")
    e(f"{L('cloop')}:")
    e("s_waitcnt lgkmcnt(0)")
    for l in interleave(mfmas(FA), reads(1, FB)): e(l)
    advance()
    e("s_waitcnt lgkmcnt(0)\ns_barrier")
    for l in interleave(mfmas(FB), reads(0, FA)): e(l)
    e(f"s_sub_u32 s50, s50, 1\ns_cmp_lg_u32 s50, 0\ns_cbranch_scc1 {L('cloop')}")
    e("s_waitcnt lgkmcnt(0)")
    for l in interleave(mfmas(FA), reads(1, FB)): e(l)
    e("s_waitcnt lgkmcnt(0)")
    for l in mfmas(FB): e(l)
    k.stamp(2)
    T = FA
    def acc(i, j): return ACC + 4 * (j * nt + i)
    def pack_pair(ta, tb, dst, pre=None):
        e(f"v_cvt_pk_bf16_f32 v{dst}, v{ta}, v{ta+1}\nv_cvt_pk_bf16_f32 v{dst+1}, v{ta+2}, v{ta+3}")
        e(f"v_cvt_pk_bf16_f32 v{dst+2}, v{tb}, v{tb+1}\nv_cvt_pk_bf16_f32 v{dst+3}, v{tb+2}, v{tb+3}")
        e(f"v_permlane16_swap_b32 v{dst}, v{dst+2}\nv_permlane16_swap_b32 v{dst+1}, v{dst+3}")
    e("v_and_b32 v5, 1, v4\nv_lshlrev_b32 v5, 5, v5\nv_lshrrev_b32 v6, 1, v4\nv_lshlrev_b32 v6, 4, v6\nv_add_u32 v5, v5, v6")
    if epi == "qkv":
        e("v_lshlrev_b32 v6, 6, v3\nv_add_u32 v5, v5, v6")
        for p in range(nt // 2):
            if perm:
                e(f"s_mul_i32 s52, s43, 96\ns_add_u32 s52, s52, {32*p}\ns_cmp_lt_u32 s52, 64\ns_cselect_b32 s53, {f32(LOG2E * 32 ** -0.5)}, 1.0")
                e("s_lshr_b32 s54, s52, 6\ns_lshl_b32 s54, s54, 5\ns_bfe_u32 s52, s52, 0x10005\ns_add_u32 s52, s52, s54\ns_lshl_b32 s54, s26, 1\ns_add_u32 s52, s52, s54")
                e("s_lshl_b32 s52, s52, 17\ns_lshl_b32 s54, s44, 6\ns_add_u32 s52, s52, s54")
            else:
                e(f"s_add_u32 s52, s46, {32*p}\ns_cmp_lt_u32 s52, 1024\ns_cselect_b32 s53, {f32(LOG2E * 32 ** -0.5)}, 1.0")
                e(f"s_lshl_b32 s52, s52, 12\ns_lshl_b32 s54, s44, 6\ns_add_u32 s52, s52, s54")
            for j in range(mt):
                ta, tb = acc(2 * p, j), acc(2 * p + 1, j)
                for r in range(4):
                    e(f"v_mul_f32 v{ta+r}, s53, v{ta+r}\nv_mul_f32 v{tb+r}, s53, v{tb+r}")
                d = T + 4 * ((p * mt + j) % 8)
                pack_pair(ta, tb, d)
                e(f"buffer_store_dwordx4 {v(d,4)}, v5, s[12:15], s52 offen offset:{j*1024}{STFLAG}")
    elif epi in ("relu", "ffn1"):
        if epi == "ffn1":
            e("s_barrier")
            ST = FA; UB = FA + 8
            e(f"s_lshl_b32 s47, s42, 6\nv_add_u32 v6, s47, v3\nv_lshlrev_b32 v6, 3, v6\nv_add_u32 v6, {XL}, v6")
            for j in range(mt): e(f"ds_read_b64 {v(ST+2*j,2)}, v6 offset:{j*128}")
            e(f"s_mul_i32 s47, s43, {TN*8}\ns_add_u32 s47, s47, {XL+1024}\nv_lshlrev_b32 v7, 5, v4\nv_add_u32 v7, s47, v7")
            for i in range(nt):
                e(f"ds_read_b128 {v(UB+8*(i%2),4)}, v7 offset:{i*128}\nds_read_b128 {v(UB+8*(i%2)+4,4)}, v7 offset:{i*128+16}")
                e("s_waitcnt lgkmcnt(0)")
                u = UB + 8 * (i % 2)
                for j in range(mt):
                    for r in range(4):
                        a_ = acc(i, j) + r
                        e(f"v_fma_f32 v{UB+16}, -v{ST+2*j}, v{u+2*r}, v{u+2*r+1}\nv_fma_f32 v{a_}, v{a_}, v{ST+2*j+1}, v{UB+16}\nv_max_f32 v{a_}, 0, v{a_}")
            T = FA + 32
        else:
            for r in range(NACC): e(f"v_max_f32 v{ACC+r}, 0, v{ACC+r}")
        ld2 = DFF * 2
        e(f"v_add_u32 v6, s44, v3\nv_mul_u32_u24 v6, {ld2}, v6\ns_lshl_b32 s47, s46, 1\nv_add_u32 v6, s47, v6")
        e("v_add_u32 v5, v5, v6")
        n = 0
        for j in range(mt):
            e(f"s_mov_b32 s48, {j*16*ld2}")
            for p in range(nt // 2):
                d = T + 4 * (n % 8); n += 1
                pack_pair(acc(2 * p, j), acc(2 * p + 1, j), d)
                e(f"buffer_store_dwordx4 {v(d,4)}, v5, s[12:15], s48 offen offset:{p*64}{STFLAG}")
        if nt % 2:
            e(f"v_and_b32 v7, 1, v4\nv_mul_u32_u24 v7, {16*ld2}, v7\nv_add_u32 v6, v6, v7")
            e(f"v_lshrrev_b32 v7, 1, v4\nv_lshlrev_b32 v7, 4, v7\nv_add_u32 v6, v6, v7")
            for j in range(0, mt, 2):
                d = T + 4 * (n % 8); n += 1
                pack_pair(acc(nt - 1, j), acc(nt - 1, j + 1), d)
                e(f"s_mov_b32 s48, {j*16*ld2}")
                e(f"buffer_store_dwordx4 {v(d,4)}, v6, s[12:15], s48 offen offset:{(nt-1)*32}{STFLAG}")
    else:
        e("s_waitcnt vmcnt(0)")
        G = EP + 2 * mt * nt
        for j in range(mt):
            for i in range(nt):
                a0 = acc(i, j); x0 = EP + 2 * (j * nt + i)
                for q in range(2):
                    e(f"v_lshlrev_b32 v6, 16, v{x0+q}\nv_and_b32 v7, 0xffff0000, v{x0+q}")
                    e(f"v_fma_f32 v{a0+2*q}, v{a0+2*q}, v{G+4*i+2*q}, v6\nv_fma_f32 v{a0+2*q+1}, v{a0+2*q+1}, v{G+4*i+2*q+1}, v7")
        e(f"v_add_u32 v6, s44, v3\nv_lshlrev_b32 v6, 11, v6\ns_lshl_b32 s47, s46, 1\nv_add_u32 v6, s47, v6\nv_add_u32 v5, v5, v6")
        n = 0
        if epi == "wo2":
            GG = G + 4 * nt
            k.srd(16, 32, WS_XG, S * D * 2); k.srd(64, 32, WS_STAT, 32 * S * 8)
            for r in range(4 * nt):
                e(f"v_add_f32 v{GG+r}, 1.0, v{GG+r}"); round_bf16(e, GG + r)
            e(f"s_lshl_b32 s49, s26, 1\ns_add_u32 s49, s49, s43\ns_lshl_b32 s49, s49, 14\ns_lshl_b32 s50, s44, 3\ns_add_u32 s49, s49, s50")
            e("v_lshlrev_b32 v1, 3, v3")
        for j in range(mt):
            e(f"s_mov_b32 s48, {j*16*2048}")
            for p in range(nt // 2):
                d = T + 4 * (n % 8); n += 1
                if epi != "wo2":
                    pack_pair(acc(2 * p, j), acc(2 * p + 1, j), d)
                    e(f"buffer_store_dwordx4 {v(d,4)}, v5, s[12:15], s48 offen offset:{p*64}{STFLAG}")
                    continue
                ta, tb = acc(2 * p, j), acc(2 * p + 1, j)
                d2 = T + 32 + 4 * (j % 2); SM = T + 40 + 2 * (j % 2)
                e(f"v_cvt_pk_bf16_f32 v{d}, v{ta}, v{ta+1}\nv_cvt_pk_bf16_f32 v{d+1}, v{ta+2}, v{ta+3}")
                e(f"v_cvt_pk_bf16_f32 v{d+2}, v{tb}, v{tb+1}\nv_cvt_pk_bf16_f32 v{d+3}, v{tb+2}, v{tb+3}")
                for q, base in enumerate((ta, ta + 2, tb, tb + 2)):
                    e(f"v_lshlrev_b32 v{base}, 16, v{d+q}\nv_and_b32 v{base+1}, 0xffff0000, v{d+q}")
                vals = [ta + r for r in range(4)] + [tb + r for r in range(4)]
                e(f"v_add_f32 v{SM}, v{vals[0]}, v{vals[1]}\nv_mul_f32 v{SM+1}, v{vals[0]}, v{vals[0]}")
                for x_ in vals[2:]: e(f"v_add_f32 v{SM}, v{SM}, v{x_}")
                for x_ in vals[1:]: e(f"v_fmac_f32 v{SM+1}, v{x_}, v{x_}")
                for r in range(4):
                    e(f"v_mul_f32 v{ta+r}, v{ta+r}, v{GG+8*p+r}\nv_mul_f32 v{tb+r}, v{tb+r}, v{GG+8*p+4+r}")
                e(f"v_cvt_pk_bf16_f32 v{d2}, v{ta}, v{ta+1}\nv_cvt_pk_bf16_f32 v{d2+1}, v{ta+2}, v{ta+3}")
                e(f"v_cvt_pk_bf16_f32 v{d2+2}, v{tb}, v{tb+1}\nv_cvt_pk_bf16_f32 v{d2+3}, v{tb+2}, v{tb+3}")
                e(f"v_permlane16_swap_b32 v{d}, v{d+2}\nv_permlane16_swap_b32 v{d+1}, v{d+3}")
                e(f"v_permlane16_swap_b32 v{d2}, v{d2+2}\nv_permlane16_swap_b32 v{d2+1}, v{d2+3}")
                e(f"buffer_store_dwordx4 {v(d,4)}, v5, s[12:15], s48 offen offset:{p*64}{STFLAG}")
                e(f"buffer_store_dwordx4 {v(d2,4)}, v5, s[16:19], s48 offen offset:{p*64}{STFLAG}")
                wave_sum(e, [SM, SM + 1], 6, [4, 5])
                e(f"s_mov_b64 exec, 0xffff\nbuffer_store_dwordx2 {v(SM,2)}, v1, s[64:67], s49 offen offset:{j*128}{STFLAG}\ns_mov_b64 exec, -1")
        if epi == "wo2":
            W1R = GG + 4 * nt
            e(f"s_cmp_ge_u32 s57, 896\ns_cbranch_scc1 {L('noub')}")
            UA = ACC
            for r in range(16): e(f"v_mov_b32 v{UA+r}, 0")
            for i in range(8):
                g_ = W1R + 32 + i; s_ = W1R + 40 + i
                e(f"v_add_f32 v{g_}, 1.0, v{g_}"); round_bf16(e, g_)
                for q in range(4):
                    w_ = W1R + 4 * i + q
                    e(f"v_lshlrev_b32 v6, 16, v{w_}\nv_and_b32 v7, 0xffff0000, v{w_}")
                    e(f"v_fmac_f32 v{UA+2*q}, v{g_}, v6\nv_fmac_f32 v{UA+2*q+1}, v{g_}, v7\nv_fmac_f32 v{UA+8+2*q}, v{s_}, v6\nv_fmac_f32 v{UA+8+2*q+1}, v{s_}, v7")
            wave_sum(e, list(range(UA, UA + 16)), 6, [3, 4, 5])
            k.srd(16, 32, WS_UB, 16 * 2 * DFF * 4)
            e(f"s_mul_i32 s49, s58, {2*DFF*4}\ns_lshl_b32 s50, s59, 8\ns_add_u32 s49, s49, s50\ns_add_u32 s50, s49, {DFF*4}")
            e("v_lshlrev_b32 v6, 5, v2\ns_mov_b64 exec, 0xff")
            e(f"buffer_store_dwordx4 {v(UA,4)}, v6, s[16:19], s49 offen{STFLAG}\nbuffer_store_dwordx4 {v(UA+4,4)}, v6, s[16:19], s49 offen offset:16{STFLAG}")
            e(f"buffer_store_dwordx4 {v(UA+8,4)}, v6, s[16:19], s50 offen{STFLAG}\nbuffer_store_dwordx4 {v(UA+12,4)}, v6, s[16:19], s50 offen offset:16{STFLAG}")
            e("s_mov_b64 exec, -1")
            e(f"{L('noub')}:")
    k.stamp_flush(kidx, FA)
    e("s_endpgm")
    e(f"{L('loader')}:")
    e("s_sub_u32 s42, s24, 4")
    LA = 8
    lda2, ldb2 = lda * 2, ldb * 2
    e(f"s_lshl_b32 s43, s25, 7\ns_mul_i32 s44, s42, {nAw*8}\ns_add_u32 s43, s43, s44")
    e(f"v_lshrrev_b32 v3, 3, v2\nv_add_u32 v3, s43, v3\ns_mov_b32 s45, {lda2}\nv_mul_lo_u32 v3, s45, v3")
    e("v_and_b32 v4, 7, v2\nv_lshrrev_b32 v5, 4, v2")
    for i in range(nAw):
        e(f"v_xor_b32 v6, {(i&1)*4}, v5\nv_xor_b32 v6, v6, v4\nv_lshlrev_b32 v6, 4, v6\nv_add_u32 v6, v6, v3")
        e(f"v_add_u32 v{LA+i}, {i*8*lda2}, v6")
    assert nAw % 2 == 0
    magic = (65536 + cpr - 1) // cpr
    assert all((p * magic) >> 16 == p // cpr for p in range(nBw * 64))
    e(f"s_mul_i32 s43, s42, {16*ldb2}\ns_mul_i32 s44, s26, {128 if perm else BN*2}\ns_add_u32 s43, s43, s44")
    assert nBw * 64 == 16 * cpr
    for i in range(nBw):
        e(f"v_add_u32 v3, {i*64}, v2\nv_mul_u32_u24 v4, {magic}, v3\nv_lshrrev_b32 v4, 16, v4")
        e(f"v_mul_u32_u24 v5, {cpr}, v4\nv_sub_u32 v3, v3, v5")
        if hbits == 2:
            e("v_and_b32 v5, 2, v4\nv_lshrrev_b32 v6, 1, v4\nv_and_b32 v6, 4, v6\nv_or_b32 v5, v5, v6")
        elif hbits == 1:
            e("v_lshrrev_b32 v5, 2, v4\nv_and_b32 v5, 2, v5")
        else:
            e("v_and_b32 v5, 3, v4\nv_lshrrev_b32 v6, 1, v4\nv_and_b32 v6, 4, v6\nv_or_b32 v5, v5, v6\nv_lshlrev_b32 v5, 1, v5")
        e("v_xor_b32 v3, v3, v5")
        if perm:
            e("v_lshrrev_b32 v5, 3, v3\nv_and_b32 v3, 7, v3\nv_lshlrev_b32 v5, 7, v5\nv_add_u32 v3, v3, v5")
        e(f"v_lshlrev_b32 v3, 4, v3\ns_mov_b32 s45, {ldb2}\nv_mul_lo_u32 v4, s45, v4\nv_add_u32 v3, v3, v4")
        e(f"v_add_u32 v{LA+nAw+i}, s43, v3")
    e(f"s_mul_i32 s46, s42, {nAw*1024}")
    e(f"s_mul_i32 s47, s42, {nBw*1024}\ns_add_u32 s47, s47, {nA*1024}")
    e("s_mov_b32 s48, 0\ns_mov_b32 s49, 0\ns_mov_b32 s50, 0")
    def issue():
        e("s_add_u32 s51, s50, s46\ns_add_u32 s52, s50, s47")
        for i in range(nAw):
            if "nodma" in exp: break
            e(f"s_add_u32 m0, s51, {i*1024}")
            e(f"buffer_load_dwordx4 v{LA+i}, s[4:7], s48 offen lds")
        for i in range(nBw):
            if "nodma" in exp: break
            e(f"s_add_u32 m0, s52, {i*1024}")
            e(f"buffer_load_dwordx4 v{LA+nAw+i}, s[8:11], s49 offen lds")
        if "noadv" not in exp:
            e(f"s_add_u32 s48, s48, {BK*2}\ns_add_u32 s49, s49, {BK*ldb2}")
            if "x8" in exp:
                e(f"s_cmp_eq_u32 s48, {K*2}\ns_cselect_b32 s48, 0, s48\ns_cselect_b32 s49, 0, s49")
        e(f"s_add_u32 s50, s50, {SB}\ns_cmp_eq_u32 s50, {SB*NS}\ns_cselect_b32 s50, 0, s50")
    for st in range(NS - 1): issue()
    e(f"s_mov_b32 s53, {nk-(NS-1)}")
    e(f"{L('lloop')}:")
    e(f"s_waitcnt vmcnt({nld*(NS-2)})\ns_barrier")
    issue()
    e(f"s_sub_u32 s53, s53, 1\ns_cmp_lg_u32 s53, 0\ns_cbranch_scc1 {L('lloop')}")
    nx = 0
    if epi == "ffn1":
        nx = 32
        k.srd(56, 32, WS_STAT, 32 * S * 8); k.srd(60, 32, WS_UB, 16 * 2 * DFF * 4)
        e(f"s_cmp_ge_u32 s42, 2\ns_cbranch_scc1 {L('ubld')}")
        e(f"s_lshl_b32 s43, s42, 6\nv_add_u32 v3, s43, v2\ns_lshl_b32 s44, s25, 7\nv_add_u32 v4, s44, v3\nv_lshlrev_b32 v4, 3, v4")
        for sl in range(32):
            e(f"s_mov_b32 s45, {sl*S*8}\nbuffer_load_dwordx2 {v(32+2*sl,2)}, v4, s[56:59], s45 offen")
        e(f"s_branch {L('ldd')}")
        e(f"{L('ubld')}:")
        e(f"s_sub_u32 s43, s42, 2\ns_lshl_b32 s43, s43, 6\nv_add_u32 v3, s43, v2")
        e(f"s_mul_i32 s44, s26, {BN*4}\nv_lshlrev_b32 v4, 3, v3\nv_add_u32 v4, s44, v4")
        for kg in range(16):
            for w_ in range(2):
                e(f"s_mov_b32 s45, {(kg*2+w_)*DFF*4}\nbuffer_load_dwordx2 {v(32+4*kg+2*w_,2)}, v4, s[60:63], s45 offen")
        e(f"{L('ldd')}:")
    for t in range(NS - 1):
        e(f"s_waitcnt vmcnt({nld*(NS-2-t)+nx})\ns_barrier")
    if epi == "ffn1":
        e("s_waitcnt vmcnt(0)")
        e(f"s_cmp_ge_u32 s42, 2\ns_cbranch_scc1 {L('ubred')}")
        for sl in range(1, 32): e(f"v_add_f32 v32, v32, v{32+2*sl}\nv_add_f32 v33, v33, v{33+2*sl}")
        e(f"v_mul_f32 v32, {f32(1/1024)}, v32\nv_mul_f32 v33, {f32(1/1024)}, v33")
        e(f"v_fma_f32 v33, -v32, v32, v33\nv_max_f32 v33, 0, v33\nv_add_f32 v33, {f32(1e-5)}, v33\nv_rsq_f32 v33, v33")
        e("v_mul_f32 v32, v32, v33")
        e(f"v_lshlrev_b32 v4, 3, v3\nv_add_u32 v4, {XL}, v4\nds_write_b64 v4, v[32:33]")
        e(f"s_branch {L('redd')}")
        e(f"{L('ubred')}:")
        for kg in range(1, 16):
            for q in range(4): e(f"v_add_f32 v{32+q}, v{32+q}, v{32+4*kg+q}")
        e("v_swap_b32 v33, v34")
        e(f"v_lshlrev_b32 v4, 4, v3\nv_add_u32 v4, {XL+1024}, v4\nv_cmp_gt_u32 vcc, 112, v3\ns_and_saveexec_b64 s[44:45], vcc")
        e(f"ds_write_b128 v4, v[32:35]\ns_mov_b64 exec, s[44:45]")
        e(f"{L('redd')}:")
        e("s_waitcnt lgkmcnt(0)\ns_barrier")
    k.finish()
    return k

def attn_seq(m, p, E, C, kr, vr, exp):
    seq = ["s_waitcnt lgkmcnt(4)", m[0], E[0], E[1], E[2], E[3],
           m[1], kr[0], E[4], kr[1], E[5], C[0], C[1], E[6],
           "s_waitcnt lgkmcnt(2)", p[0], E[7], C[2], E[8], E[9], C[3],
           p[1], E[10], E[11],
           p[2], vr[0], C[4], vr[1], C[5], E[12], vr[2], E[13], vr[3], E[14],
           p[3], E[15], C[6], C[7]]
    if "seqB" in exp:
        seq = ["s_waitcnt lgkmcnt(4)", m[0], E[0], E[1], E[2], E[3],
           m[1], kr[0], kr[1], E[4], E[5], C[0], C[1], E[6],
           "s_waitcnt lgkmcnt(2)", p[0], E[7], C[2], E[8], E[9], C[3],
           p[1], E[10], E[11],
           p[2], vr[0], vr[1], vr[2], vr[3], C[4], C[5], E[12], E[13], E[14],
           p[3], E[15], C[6], C[7]]
    if "seqC" in exp:
        seq = ["s_waitcnt lgkmcnt(4)", m[0], E[0], E[1], E[2],
           m[1], kr[0], kr[1], E[3], E[4], E[5],
           "s_waitcnt lgkmcnt(2)", p[0], C[0], C[1], E[6], E[7], C[2],
           p[1], E[8], E[9], C[3],
           p[2], vr[0], vr[1], vr[2], vr[3], E[10], E[11], E[12], C[4],
           p[3], E[13], C[5], E[14], E[15], C[6], C[7]]
    if "noread" in exp: seq = [x for x in seq if not x.startswith("ds_read")]
    if "nowait" in exp: seq = [x for x in seq if not x.startswith("s_waitcnt")]
    if "nosum" in exp: seq = [x for x in seq if "16x16x32" not in x]
    if "noexp" in exp: seq = [x for x in seq if not x.startswith("v_exp")]
    return seq

def k_attn(name='attn_kernel', exp=()):
    NSL = 4; KPS = 128; SBK = KPS * 64
    SB = 2 * SBK
    FLAG = NSL * SB
    k = Kern(name, 256, 512, NSL * SB + 64, 128); e = k.e
    L = k.lab
    k.exit_extra()
    k.ptr(28, KA_WS)
    e("v_lshrrev_b32 v1, 6, v0\nv_and_b32 v2, 63, v0\nv_readfirstlane_b32 s24, v1")
    e("s_and_b32 s36, s2, 7\ns_lshr_b32 s37, s2, 3\ns_lshl_b32 s36, s36, 2\ns_lshr_b32 s38, s37, 3\ns_add_u32 s25, s36, s38")
    e("s_and_b32 s26, s37, 7")
    e("s_waitcnt lgkmcnt(0)")
    e("s_lshl_b32 s30, s25, 17")
    e(f"s_add_u32 s32, s28, {WS_QKV:#x}\ns_addc_u32 s33, s29, 0\ns_add_u32 s32, s32, s30\ns_addc_u32 s33, s33, 0")
    k.srd(4, 32, 0, S * 64); k.srd(8, 32, 32 * S * 64, S * 64); k.srd(12, 32, 64 * S * 64, S * 64)
    k.srd(16, 28, WS_O, S * D * 2)
    Q = 4; KF = 12; VF = 20; SA = 32; SBr = 48; NEG = 64; O = 80; LS = 96; SEL = 100; P = 104; PB = 112; T = 125
    AK0, AK1, AV, DK, DV = 120, 121, 122, 123, 124
    e("v_and_b32 v3, 31, v2\nv_lshrrev_b32 v28, 5, v2")
    e("s_lshl_b32 s39, s26, 8\ns_lshl_b32 s40, s24, 5\ns_add_u32 s39, s39, s40")
    e("v_add_u32 v29, s39, v3\nv_lshlrev_b32 v29, 6, v29\nv_lshlrev_b32 v30, 4, v28\nv_add_u32 v29, v29, v30")
    e(f"buffer_load_dwordx4 {v(Q,4)}, v29, s[4:7], 0 offen\nbuffer_load_dwordx4 {v(Q+4,4)}, v29, s[4:7], 0 offen offset:32")
    e("v_lshrrev_b32 v29, 2, v2\ns_lshl_b32 s40, s24, 4\nv_add_u32 v29, s40, v29\nv_lshlrev_b32 v29, 6, v29")
    e("v_and_b32 v30, 3, v2\nv_lshrrev_b32 v31, 4, v2\nv_xor_b32 v30, v30, v31\nv_lshlrev_b32 v30, 4, v30")
    e(f"v_add_u32 v{DK}, v29, v30")
    e(f"v_lshlrev_b32 v{DV}, 4, v0")
    e("s_lshl_b32 s41, s24, 10")
    e("v_lshrrev_b32 v29, 2, v3\nv_and_b32 v29, 3, v29\nv_xor_b32 v29, v29, v28\nv_lshlrev_b32 v29, 4, v29")
    e(f"v_lshlrev_b32 v30, 6, v3\nv_add_u32 v{AK0}, v29, v30\nv_xor_b32 v{AK1}, 32, v{AK0}")
    e("v_and_b32 v29, 15, v2\nv_lshrrev_b32 v29, 2, v29\nv_lshlrev_b32 v30, 2, v28\nv_add_u32 v29, v29, v30\nv_lshlrev_b32 v29, 6, v29")
    e("v_lshrrev_b32 v30, 4, v2\nv_and_b32 v30, 1, v30\nv_lshlrev_b32 v30, 5, v30\nv_add_u32 v29, v29, v30")
    e(f"v_and_b32 v30, 3, v2\nv_lshlrev_b32 v30, 3, v30\nv_add_u32 v{AV}, v29, v30")
    e("v_lshrrev_b32 v29, 4, v2\nv_lshrrev_b32 v30, 2, v2\nv_xor_b32 v29, v29, v30\nv_and_b32 v29, 1, v29")
    e("v_cmp_eq_u32 vcc, 0, v29\nv_mov_b32 v30, 0x3f803f80")
    e(f"v_cndmask_b32 v{SEL}, 0, v30, vcc")
    for r in range(1, 4): e(f"v_mov_b32 v{SEL+r}, v{SEL}")
    e(f"v_mov_b32 v29, {FLAG}\nv_mov_b32 v30, 0\nds_write_b32 v29, v30")
    def dma(stage_sreg):
        e(f"s_add_u32 m0, {stage_sreg}, s41")
        e(f"buffer_load_dwordx4 v{DK}, s[8:11], s42 offen lds")
        e(f"s_add_u32 m0, m0, {SBK}")
        e(f"buffer_load_dwordx4 v{DV}, s[12:15], s42 offen lds")
        e(f"s_add_u32 s42, s42, {SBK}")
    def kread(slot, t):
        return [f"ds_read_b128 {v(KF,4)}, v{AK0} offset:{slot*SB+t*2048}", f"ds_read_b128 {v(KF+4,4)}, v{AK1} offset:{slot*SB+t*2048}"]
    def vread(slot, t):
        return [f"ds_read_b64_tr_b16 {v(VF+4*m+2*hh,2)}, v{AV} offset:{slot*SB+SBK+t*2048+(16*m+8*hh)*64}" for m in range(2) for hh in range(2)]
    def qk(dst, c):
        return [f"v_mfma_f32_32x32x16_bf16 {v(dst,16)}, {v(KF,4)}, {v(Q,4)}, {c}",
                f"v_mfma_f32_32x32x16_bf16 {v(dst,16)}, {v(KF+4,4)}, {v(Q+4,4)}, {v(dst,16)}"]
    def pv(P=P):
        return [f"v_mfma_f32_32x32x16_bf16 {v(O,16)}, {v(VF,4)}, {v(P,4)}, {v(O,16)}",
                f"v_mfma_f32_16x16x32_bf16 {v(LS,4)}, {v(SEL,4)}, {v(P,4)}, {v(LS,4)}",
                f"v_mfma_f32_32x32x16_bf16 {v(O,16)}, {v(VF+4,4)}, {v(P+4,4)}, {v(O,16)}",
                f"v_mfma_f32_16x16x32_bf16 {v(LS,4)}, {v(SEL,4)}, {v(P+4,4)}, {v(LS,4)}"]
    def start_stream():
        e("s_mov_b32 s42, 0")
        for st in range(NSL - 1):
            e(f"s_mov_b32 s43, {st*SB}")
            dma("s43")
    def lane_max16(src, dst, tmp):
        e(f"v_max3_f32 v{dst}, v{src}, v{src+1}, v{src+2}")
        for r in range(3, 15, 2): e(f"v_max3_f32 v{dst}, v{dst}, v{src+r}, v{src+r+1}")
        e(f"v_max_f32 v{dst}, v{dst}, v{src+15}")
        e(f"v_mov_b32 v{tmp}, v{dst}\nv_permlane32_swap_b32 v{tmp}, v{dst}\nv_max_f32 v{dst}, v{dst}, v{tmp}")
    def zero_acc():
        for r in range(16): e(f"v_mov_b32 v{O+r}, 0")
        for r in range(4): e(f"v_mov_b32 v{LS+r}, 0")
    NST = S // KPS
    start_stream()
    zero_acc()
    e(f"s_waitcnt vmcnt({2*(NSL-2)})\ns_barrier")
    k.stamp(1)
    for l in kread(0, 0): e(l)
    e("s_waitcnt lgkmcnt(0)")
    for l in qk(SA, "0"): e(l)
    lane_max16(SA, T, T + 1)
    e(f"v_add_f32 v{T}, {f32(40.0)}, v{T}")
    for r in range(16): e(f"v_sub_f32 v{NEG+r}, 0, v{T}")
    for l in qk(SA, v(NEG, 16)): e(l)
    for l in kread(0, 1): e(l)
    for r in range(8): e(f"v_mov_b32 v{VF+r}, 0\nv_mov_b32 v{PB+r}, 0")
    e("s_waitcnt lgkmcnt(0)")
    e(f"s_mov_b32 s44, {NST // NSL}")
    e(f"{L('floop')}:")
    cur, nxt = SA, SBr
    pc, pp = P, PB
    for slot in range(NSL):
        for t in range(4):
            if t == 2 and "nobar" not in exp:
                e(f"s_cmp_ge_u32 s42, {S*64}\ns_cbranch_scc1 {L(f'nodma{slot}')}")
                e(f"s_waitcnt vmcnt({2*(NSL-3)})\ns_barrier")
                e(f"s_mov_b32 s43, {((slot + NSL - 1) % NSL) * SB}")
                dma("s43")
                e(f"s_branch {L(f'cont{slot}')}")
                e(f"{L(f'nodma{slot}')}:")
                e("s_waitcnt vmcnt(0)\ns_barrier")
                e(f"{L(f'cont{slot}')}:")
            kr = kread((slot + (t + 2) // 4) % NSL, (t + 2) % 4)
            vr = vread(slot, t)
            E = [f"v_exp_f32 v{cur+r}, v{cur+r}" for r in range(16)]
            C = [f"v_cvt_pk_bf16_f32 v{pc+r}, v{cur+2*r}, v{cur+2*r+1}" for r in range(8)]
            m = qk(nxt, v(NEG, 16)); p = pv(pp)
            seq = attn_seq(m, p, E, C, kr, vr, exp)
            for l in seq: e(l)
            cur, nxt = nxt, cur
            pc, pp = pp, pc
    e(f"s_sub_u32 s44, s44, 1\ns_cmp_lg_u32 s44, 0\ns_cbranch_scc1 {L('floop')}")
    e("s_waitcnt lgkmcnt(0)")
    for l in pv(pp): e(l)
    def finish_and_check(check):
        e(f"v_rcp_f32 v{T}, v{LS}")
        for r in range(16): e(f"v_mul_f32 v{O+r}, v{O+r}, v{T}")
        if check:
            e(f"v_mov_b32 v{T+1}, {f32(2.0**120)}")
            e(f"v_cmp_nlt_f32 vcc, v{LS}, v{T+1}")
            e("s_mov_b64 s[46:47], vcc")
            e(f"v_mov_b32 v{T+2}, 0x7f800000")
            for r in range(16):
                e(f"v_cmp_nlt_f32 vcc, abs(v{O+r}), v{T+2}\ns_or_b64 s[46:47], s[46:47], vcc")
            e(f"s_cmp_eq_u64 s[46:47], 0\ns_cbranch_scc1 {L('okwave')}")
            e(f"v_mov_b32 v{T+1}, {FLAG}\nv_mov_b32 v{T+2}, 1\nds_write_b32 v{T+1}, v{T+2}")
            e(f"{L('okwave')}:")
            e("s_waitcnt lgkmcnt(0)\ns_barrier")
            e(f"v_mov_b32 v{T+1}, {FLAG}\nds_read_b32 v{T+2}, v{T+1}\ns_waitcnt lgkmcnt(0)\nv_readfirstlane_b32 s46, v{T+2}")
            e(f"s_cmp_lg_u32 s46, 0\ns_cbranch_scc1 {L('safe')}")
    k.stamp(2)
    finish_and_check(True)
    e(f"{L('store')}:")
    for r in range(8): e(f"v_cvt_pk_bf16_f32 v{P+r}, v{O+2*r}, v{O+2*r+1}")
    for b in (0, 4):
        e(f"v_permlane32_swap_b32 v{P+b}, v{P+b+2}\nv_permlane32_swap_b32 v{P+b+1}, v{P+b+3}")
    e(f"v_add_u32 v29, s39, v3\nv_lshlrev_b32 v29, 11, v29\nv_lshlrev_b32 v30, 4, v28\nv_add_u32 v29, v29, v30")
    e("s_lshl_b32 s40, s25, 6")
    e(f"buffer_store_dwordx4 {v(P,4)}, v29, s[16:19], s40 offen\nbuffer_store_dwordx4 {v(P+4,4)}, v29, s[16:19], s40 offen offset:32")
    k.stamp_flush(3, SA)
    e("s_endpgm")
    e(f"{L('safe')}:")
    e("s_waitcnt vmcnt(0)\ns_barrier")
    M = PB; AL = PB + 1
    zero_acc()
    e(f"v_mov_b32 v{M}, {f32(-3.0e38)}")
    e("s_mov_b32 s42, 0")
    e(f"s_mov_b32 s44, {NST}")
    e(f"{L('sloop')}:")
    e("s_barrier")
    e("s_mov_b32 s43, 0")
    dma("s43")
    e("s_waitcnt vmcnt(0)\ns_barrier")
    for t in range(4):
        for l in kread(0, t) + vread(0, t): e(l)
        e("s_waitcnt lgkmcnt(0)")
        for l in qk(SA, "0"): e(l)
        lane_max16(SA, T, T + 1)
        e(f"v_max_f32 v{T}, v{T}, v{M}\nv_sub_f32 v{AL}, v{M}, v{T}\nv_exp_f32 v{AL}, v{AL}\nv_mov_b32 v{M}, v{T}")
        for r in range(16): e(f"v_sub_f32 v{SA+r}, v{SA+r}, v{M}\nv_exp_f32 v{SA+r}, v{SA+r}")
        for r in range(16): e(f"v_mul_f32 v{O+r}, v{O+r}, v{AL}")
        for r in range(4): e(f"v_mul_f32 v{LS+r}, v{LS+r}, v{AL}")
        for r in range(8): e(f"v_cvt_pk_bf16_f32 v{P+r}, v{SA+2*r}, v{SA+2*r+1}")
        for l in pv(): e(l)
    e(f"s_sub_u32 s44, s44, 1\ns_cmp_lg_u32 s44, 0\ns_cbranch_scc1 {L('sloop')}")
    finish_and_check(False)
    e(f"s_branch {L('store')}")
    k.finish()
    return k


def k_attn2(name="attn_kernel", exp=(), pf=()):
    NSL = 3; KPS = 128; SBK = KPS * 64
    HB = 2 * SBK
    SB = 2 * HB
    FLAG = NSL * SB
    k = Kern(name, 256, 512, NSL * SB + 64, 248); e = k.e
    L = k.lab
    k.exit_extra()
    k.ptr(28, KA_WS)
    e("v_lshrrev_b32 v1, 6, v0\nv_and_b32 v2, 63, v0\nv_readfirstlane_b32 s24, v1")
    e("s_and_b32 s36, s2, 7\ns_lshr_b32 s37, s2, 3\ns_lshl_b32 s36, s36, 2\ns_lshr_b32 s38, s37, 3\ns_add_u32 s25, s36, s38")
    e("s_and_b32 s26, s37, 7")
    e("s_and_b32 s34, s24, 3\ns_lshr_b32 s35, s24, 2")
    e("s_waitcnt lgkmcnt(0)")
    e("s_lshl_b32 s30, s25, 17")
    e(f"s_add_u32 s32, s28, {WS_QKV:#x}\ns_addc_u32 s33, s29, 0\ns_add_u32 s32, s32, s30\ns_addc_u32 s33, s33, 0")
    k.srd(4, 32, 0, S * 64); k.srd(8, 32, 32 * S * 64, S * 64); k.srd(12, 32, 64 * S * 64, S * 64)
    k.srd(16, 28, WS_O, S * D * 2)
    Q = 4; KF = 20; VF = 28
    NEG = 36; O = 68; LS = 100; SEL = 108
    SS = [[112, 128], [144, 160]]
    PP = [[176, 184], [192, 200]]
    AK0, AK1, AV, AN0, AN1, DK, DV = 208, 209, 210, 211, 212, 213, 214
    HH, QL = 215, 216
    T = 217
    PFD = 226
    e(f"v_and_b32 v{QL}, 31, v2\nv_lshrrev_b32 v{HH}, 5, v2")
    e("s_lshl_b32 s39, s26, 8\ns_lshl_b32 s40, s34, 6\ns_add_u32 s39, s39, s40")
    e(f"v_add_u32 v{T}, s39, v{QL}\nv_lshlrev_b32 v{T}, 6, v{T}\nv_lshlrev_b32 v{T+1}, 4, v{HH}\nv_add_u32 v{T}, v{T}, v{T+1}")
    for qb in range(2):
        e(f"buffer_load_dwordx4 {v(Q+8*qb,4)}, v{T}, s[4:7], 0 offen offset:{qb*2048}")
        e(f"buffer_load_dwordx4 {v(Q+8*qb+4,4)}, v{T}, s[4:7], 0 offen offset:{qb*2048+32}")
    e(f"v_lshrrev_b32 v{T}, 2, v2\ns_lshl_b32 s40, s34, 5\nv_add_u32 v{T}, s40, v{T}\nv_lshlrev_b32 v{T}, 6, v{T}")
    e(f"v_and_b32 v{T+1}, 3, v2\nv_lshrrev_b32 v{T+2}, 4, v2\nv_xor_b32 v{T+1}, v{T+1}, v{T+2}\nv_lshlrev_b32 v{T+1}, 4, v{T+1}")
    e(f"v_add_u32 v{DK}, v{T}, v{T+1}")
    e(f"v_lshlrev_b32 v{DV}, 4, v2\ns_lshl_b32 s40, s34, 11\nv_add_u32 v{DV}, s40, v{DV}")
    e(f"s_lshl_b32 s41, s34, 11\ns_mul_i32 s40, s35, {HB}\ns_add_u32 s41, s41, s40")
    e(f"s_mul_i32 s45, s35, {S*32}")
    e(f"v_lshrrev_b32 v{T}, 2, v{QL}\nv_and_b32 v{T}, 3, v{T}\nv_xor_b32 v{T}, v{T}, v{HH}\nv_lshlrev_b32 v{T}, 4, v{T}")
    e(f"v_lshlrev_b32 v{T+1}, 6, v{QL}\nv_add_u32 v{T+3}, v{T}, v{T+1}")
    e(f"s_mul_i32 s40, s35, {HB}")
    e(f"v_add_u32 v{AK0}, s40, v{T+3}\nv_xor_b32 v{AK1}, 32, v{AK0}")
    e(f"v_and_b32 v{T}, 15, v2\nv_lshrrev_b32 v{T}, 2, v{T}\nv_lshlrev_b32 v{T+1}, 2, v{HH}\nv_add_u32 v{T}, v{T}, v{T+1}\nv_lshlrev_b32 v{T}, 6, v{T}")
    e(f"v_lshrrev_b32 v{T+1}, 4, v2\nv_and_b32 v{T+1}, 1, v{T+1}\nv_lshlrev_b32 v{T+1}, 5, v{T+1}\nv_add_u32 v{T}, v{T}, v{T+1}")
    e(f"v_and_b32 v{T+1}, 3, v2\nv_lshlrev_b32 v{T+1}, 3, v{T+1}\nv_add_u32 v{T}, v{T}, v{T+1}\nv_add_u32 v{T}, {SBK}, v{T}\nv_add_u32 v{AV}, s40, v{T}")
    e(f"v_lshrrev_b32 v{T}, 4, v2\nv_lshrrev_b32 v{T+1}, 2, v2\nv_xor_b32 v{T}, v{T}, v{T+1}\nv_and_b32 v{T}, 1, v{T}")
    e(f"v_cmp_eq_u32 vcc, 0, v{T}\nv_mov_b32 v{T+1}, 0x3f803f80")
    e(f"v_cndmask_b32 v{SEL}, 0, v{T+1}, vcc")
    for r in range(1, 4): e(f"v_mov_b32 v{SEL+r}, v{SEL}")
    e(f"v_mov_b32 v{T}, {FLAG}\nv_mov_b32 v{T+1}, 0\nds_write_b32 v{T}, v{T+1}")
    def dma(slot_sreg):
        e(f"s_add_u32 s43, {slot_sreg}, s41\ns_add_u32 s46, s42, s45")
        e(f"s_mov_b32 m0, s43\nbuffer_load_dwordx4 v{DK}, s[8:11], s46 offen lds")
        e(f"s_add_u32 m0, s43, {SBK}\nbuffer_load_dwordx4 v{DV}, s[12:15], s46 offen lds")
        e(f"s_add_u32 s46, s46, 1024\ns_add_u32 m0, s43, 1024\nbuffer_load_dwordx4 v{DK}, s[8:11], s46 offen lds")
        e(f"s_add_u32 m0, s43, {SBK+1024}\nbuffer_load_dwordx4 v{DV}, s[12:15], s46 offen lds")
        e(f"s_add_u32 s42, s42, {SBK}")
    def kread(a0, a1, t):
        return [f"ds_read_b128 {v(KF,4)}, v{a0} offset:{t*2048}", f"ds_read_b128 {v(KF+4,4)}, v{a1} offset:{t*2048}"]
    def vread(t):
        return [f"ds_read_b64_tr_b16 {v(VF+4*m+2*hh,2)}, v{AV} offset:{t*2048+(16*m+8*hh)*64}" for m in range(2) for hh in range(2)]
    def qk(qb, dst, c):
        return [f"v_mfma_f32_32x32x16_bf16 {v(dst,16)}, {v(KF,4)}, {v(Q+8*qb,4)}, {c}",
                f"v_mfma_f32_32x32x16_bf16 {v(dst,16)}, {v(KF+4,4)}, {v(Q+8*qb+4,4)}, {v(dst,16)}"]
    def pv(qb, P):
        o, l = O + 16 * qb, LS + 4 * qb
        return [f"v_mfma_f32_32x32x16_bf16 {v(o,16)}, {v(VF,4)}, {v(P,4)}, {v(o,16)}",
                f"v_mfma_f32_16x16x32_bf16 {v(l,4)}, {v(SEL,4)}, {v(P,4)}, {v(l,4)}",
                f"v_mfma_f32_32x32x16_bf16 {v(o,16)}, {v(VF+4,4)}, {v(P+4,4)}, {v(o,16)}",
                f"v_mfma_f32_16x16x32_bf16 {v(l,4)}, {v(SEL,4)}, {v(P+4,4)}, {v(l,4)}"]
    def lane_max16(src, dst, tmp):
        e(f"v_max3_f32 v{dst}, v{src}, v{src+1}, v{src+2}")
        for r in range(3, 15, 2): e(f"v_max3_f32 v{dst}, v{dst}, v{src+r}, v{src+r+1}")
        e(f"v_max_f32 v{dst}, v{dst}, v{src+15}")
        e(f"v_mov_b32 v{tmp}, v{dst}\nv_permlane32_swap_b32 v{tmp}, v{dst}\nv_max_f32 v{dst}, v{dst}, v{tmp}")
    def zero_acc():
        for r in range(32): e(f"v_mov_b32 v{O+r}, 0")
        for r in range(8): e(f"v_mov_b32 v{LS+r}, 0")
    NST = S // 2 // KPS
    HALF = S * 32
    e("s_mov_b32 s42, 0")
    for st in range(NSL - 1):
        e(f"s_mov_b32 s44, {st*SB}")
        dma("s44")
    zero_acc()
    for r in range(8): e(f"v_mov_b32 v{VF+r}, 0")
    for qb in range(2):
        for r in range(8): e(f"v_mov_b32 v{PP[1][qb]+r}, 0")
    e(f"s_waitcnt vmcnt({4*(NSL-2)})\ns_barrier")
    k.stamp(1)
    e(f"v_xor_b32 v{T+4}, 32, v{T+3}")
    for l in kread(T + 3, T + 4, 0): e(l)
    e("s_waitcnt lgkmcnt(0)")
    for qb in range(2):
        for l in qk(qb, SS[1][qb], "0"): e(l)
    for l in kread(AK0, AK1, 0): e(l)
    for qb in range(2):
        lane_max16(SS[1][qb], T, T + 1)
        e(f"v_add_f32 v{T}, {f32(40.0)}, v{T}")
        for r in range(16): e(f"v_sub_f32 v{NEG+16*qb+r}, 0, v{T}")
    e("s_waitcnt lgkmcnt(0)")
    for qb in range(2):
        for l in qk(qb, SS[0][qb], v(NEG + 16 * qb, 16)): e(l)
    for l in kread(AK0, AK1, 1): e(l)
    e(f"v_add_u32 v{AN0}, {SB}, v{AK0}\nv_add_u32 v{AN1}, {SB}, v{AK1}")
    e(f"s_mov_b32 s47, 1\ns_mov_b32 s48, {SB}\ns_mov_b32 s49, {-(NSL-1)*SB & 0xffffffff:#x}")
    e(f"s_mov_b32 s50, {(NSL-1)*SB}")
    e("s_waitcnt lgkmcnt(0)")
    e(f"s_mov_b32 s44, {NST}")
    e(f"{L('floop')}:")
    for t in range(4):
        par = t & 1
        if t == 2:
            e(f"s_cmp_ge_u32 s42, {HALF}\ns_cbranch_scc1 {L('nodma')}")
            e(f"s_waitcnt vmcnt({4*(NSL-3)})\ns_barrier")
            dma("s50")
            e(f"s_add_u32 s50, s50, {SB}\ns_cmp_eq_u32 s50, {NSL*SB}\ns_cselect_b32 s50, 0, s50")
            e(f"s_branch {L('cont')}")
            e(f"{L('nodma')}:")
            if pf:
                e(f"s_cmp_lg_u32 s44, {pf_stage(NST)}\ns_cbranch_scc1 {L('nopf')}")
                e("s_waitcnt vmcnt(0)")
                attn_prefetch(k, pf, PFD, T)
                e(f"{L('nopf')}:")
                e(f"s_waitcnt vmcnt({len(pf)})\ns_barrier")
            else:
                e("s_waitcnt vmcnt(0)\ns_barrier")
            e(f"{L('cont')}:")
        kr = kread(AN0, AN1, (t + 2) % 4) if t >= 2 else kread(AK0, AK1, t + 2)
        vr = vread(t)
        m = []; p = []; E = []; C = []
        for qb in range(2):
            cur = SS[par][qb]; nxt = SS[1 - par][qb]; pc = PP[par][qb]; pp = PP[1 - par][qb]
            m.append(qk(qb, nxt, v(NEG + 16 * qb, 16))); p.append(pv(qb, pp))
            E.append([f"v_exp_f32 v{cur+r}, v{cur+r}" for r in range(16)])
            C.append([f"v_cvt_pk_bf16_f32 v{pc+r}, v{cur+2*r}, v{cur+2*r+1}" for r in range(8)])
        E0, E1 = E; C0, C1 = C
        seq = ["s_waitcnt lgkmcnt(4)",
               m[0][0], E0[0], E0[1], E0[2], E0[3],
               m[1][0], E0[4], E0[5], C0[0], C0[1], E0[6],
               m[0][1], E0[7], C0[2], E0[8], E0[9], C0[3],
               m[1][1], kr[0], kr[1], E0[10], E0[11], E0[12], E0[13], "s_waitcnt lgkmcnt(2)",
               p[0][0], C0[4], C0[5], E0[14], E0[15], C0[6], C0[7],
               p[0][1], E1[0], E1[1],
               p[1][0], E1[2], E1[3], C1[0], C1[1], E1[4],
               p[1][1], E1[5], E1[6],
               p[0][2], E1[7], C1[2], E1[8], E1[9], C1[3],
               p[0][3], E1[10], E1[11],
               p[1][2], vr[0], vr[1], vr[2], vr[3], E1[12], E1[13], C1[4], C1[5], E1[14],
               p[1][3], E1[15], C1[6], C1[7]]
        for l in seq: e(l)
        if t == 3:
            e(f"v_sub_u32 v{T}, v{AN0}, v{AK0}\nv_add_u32 v{AV}, v{AV}, v{T}\nv_mov_b32 v{AK0}, v{AN0}\nv_mov_b32 v{AK1}, v{AN1}")
            e(f"s_add_u32 s47, s47, 1\ns_cmp_eq_u32 s47, {NSL}\ns_cselect_b32 s51, s49, s48\ns_cselect_b32 s47, 0, s47")
            e(f"v_add_u32 v{AN0}, s51, v{AN0}\nv_add_u32 v{AN1}, s51, v{AN1}")
    e(f"s_sub_u32 s44, s44, 1\ns_cmp_lg_u32 s44, 0\ns_cbranch_scc1 {L('floop')}")
    e("s_waitcnt lgkmcnt(0)")
    for qb in range(2):
        for l in pv(qb, PP[1][qb]): e(l)
    k.stamp(2)
    XB = 0
    def merge(safe, M=None):
        e("s_barrier")
        e(f"s_cmp_eq_u32 s35, 0\ns_cbranch_scc1 {L('keep0' + safe)}")
        for r in range(16): e(f"v_swap_b32 v{O+r}, v{O+16+r}")
        e(f"v_swap_b32 v{LS}, v{LS+4}")
        if M is not None: e(f"v_swap_b32 v{M}, v{M+1}")
        e(f"{L('keep0' + safe)}:")
        e(f"s_mul_i32 s52, s24, {5*1024+256}\nv_lshlrev_b32 v{T}, 4, v2\nv_add_u32 v{T}, s52, v{T}")
        for g in range(4): e(f"ds_write_b128 v{T}, {v(O+16+4*g,4)} offset:{g*1024}")
        e(f"v_lshlrev_b32 v{T+1}, 2, v2\nv_add_u32 v{T+1}, s52, v{T+1}")
        e(f"ds_write_b32 v{T+1}, v{LS+4} offset:4096")
        if M is not None: e(f"ds_write_b32 v{T+1}, v{M+1} offset:{4096+256}")
        e("s_waitcnt lgkmcnt(0)\ns_barrier")
        e(f"s_xor_b32 s52, s24, 4\ns_mul_i32 s52, s52, {5*1024+256}\nv_lshlrev_b32 v{T}, 4, v2\nv_add_u32 v{T}, s52, v{T}")
        for g in range(4): e(f"ds_read_b128 {v(O+16+4*g,4)}, v{T} offset:{g*1024}")
        e(f"v_lshlrev_b32 v{T+1}, 2, v2\nv_add_u32 v{T+1}, s52, v{T+1}")
        e(f"ds_read_b32 v{LS+4}, v{T+1} offset:4096")
        if M is not None: e(f"ds_read_b32 v{M+1}, v{T+1} offset:{4096+256}")
        e("s_waitcnt lgkmcnt(0)")
        if M is None:
            for r in range(16): e(f"v_add_f32 v{O+r}, v{O+r}, v{O+16+r}")
            e(f"v_add_f32 v{LS}, v{LS}, v{LS+4}")
        else:
            e(f"v_max_f32 v{T}, v{M}, v{M+1}\nv_sub_f32 v{T+1}, v{M}, v{T}\nv_sub_f32 v{T+2}, v{M+1}, v{T}\nv_exp_f32 v{T+1}, v{T+1}\nv_exp_f32 v{T+2}, v{T+2}")
            for r in range(16): e(f"v_mul_f32 v{O+r}, v{O+r}, v{T+1}\nv_fmac_f32 v{O+r}, v{O+16+r}, v{T+2}")
            e(f"v_mul_f32 v{LS}, v{LS}, v{T+1}\nv_fmac_f32 v{LS}, v{LS+4}, v{T+2}")
        e(f"v_rcp_f32 v{T}, v{LS}")
        for r in range(16): e(f"v_mul_f32 v{O+r}, v{O+r}, v{T}")
    merge("f")
    e(f"v_mov_b32 v{T+1}, {f32(2.0**120)}")
    e(f"v_cmp_nlt_f32 vcc, v{LS}, v{T+1}")
    e("s_mov_b64 s[46:47], vcc")
    e(f"v_mov_b32 v{T+2}, 0x7f800000")
    for r in range(16):
        e(f"v_cmp_nlt_f32 vcc, abs(v{O+r}), v{T+2}\ns_or_b64 s[46:47], s[46:47], vcc")
    e(f"s_cmp_eq_u64 s[46:47], 0\ns_cbranch_scc1 {L('okwave')}")
    e(f"v_mov_b32 v{T+1}, {FLAG}\nv_mov_b32 v{T+2}, 1\nds_write_b32 v{T+1}, v{T+2}")
    e(f"{L('okwave')}:")
    e("s_waitcnt lgkmcnt(0)\ns_barrier")
    e(f"v_mov_b32 v{T+1}, {FLAG}\nds_read_b32 v{T+2}, v{T+1}\ns_waitcnt lgkmcnt(0)\nv_readfirstlane_b32 s46, v{T+2}")
    e(f"s_cmp_lg_u32 s46, 0\ns_cbranch_scc1 {L('safe')}")
    e(f"{L('store')}:")
    P = PP[0][0]
    for r in range(8): e(f"v_cvt_pk_bf16_f32 v{P+r}, v{O+2*r}, v{O+2*r+1}")
    for b in (0, 4):
        e(f"v_permlane32_swap_b32 v{P+b}, v{P+b+2}\nv_permlane32_swap_b32 v{P+b+1}, v{P+b+3}")
    e(f"s_lshl_b32 s40, s35, 5\ns_add_u32 s40, s40, s39")
    e(f"v_add_u32 v{T}, s40, v{QL}\nv_lshlrev_b32 v{T}, 11, v{T}\nv_lshlrev_b32 v{T+1}, 4, v{HH}\nv_add_u32 v{T}, v{T}, v{T+1}")
    e("s_lshl_b32 s40, s25, 6")
    e(f"buffer_store_dwordx4 {v(P,4)}, v{T}, s[16:19], s40 offen\nbuffer_store_dwordx4 {v(P+4,4)}, v{T}, s[16:19], s40 offen offset:32")
    k.stamp_flush(3, SS[0][0])
    e("s_endpgm")
    e(f"{L('safe')}:")
    e("s_waitcnt vmcnt(0)\ns_barrier")
    M = NEG; AL = NEG + 2
    SA = SS[0][0]; P0 = PP[0][0]
    zero_acc()
    e(f"v_mov_b32 v{M}, {f32(-3.0e38)}\nv_mov_b32 v{M+1}, {f32(-3.0e38)}")
    e(f"s_mul_i32 s40, s35, {HB}")
    e(f"v_lshrrev_b32 v{T}, 2, v{QL}\nv_and_b32 v{T}, 3, v{T}\nv_xor_b32 v{T}, v{T}, v{HH}\nv_lshlrev_b32 v{T}, 4, v{T}")
    e(f"v_lshlrev_b32 v{T+1}, 6, v{QL}\nv_add_u32 v{T}, v{T}, v{T+1}\nv_add_u32 v{AK0}, s40, v{T}\nv_xor_b32 v{AK1}, 32, v{AK0}")
    e(f"v_and_b32 v{T}, 15, v2\nv_lshrrev_b32 v{T}, 2, v{T}\nv_lshlrev_b32 v{T+1}, 2, v{HH}\nv_add_u32 v{T}, v{T}, v{T+1}\nv_lshlrev_b32 v{T}, 6, v{T}")
    e(f"v_lshrrev_b32 v{T+1}, 4, v2\nv_and_b32 v{T+1}, 1, v{T+1}\nv_lshlrev_b32 v{T+1}, 5, v{T+1}\nv_add_u32 v{T}, v{T}, v{T+1}")
    e(f"v_and_b32 v{T+1}, 3, v2\nv_lshlrev_b32 v{T+1}, 3, v{T+1}\nv_add_u32 v{T}, v{T}, v{T+1}\nv_add_u32 v{T}, {SBK}, v{T}\nv_add_u32 v{AV}, s40, v{T}")
    e("s_mov_b32 s42, 0")
    e(f"s_mov_b32 s44, {NST}")
    e(f"{L('sloop')}:")
    e("s_barrier")
    e("s_mov_b32 s53, 0")
    dma("s53")
    e("s_waitcnt vmcnt(0)\ns_barrier")
    for t in range(4):
        for l in kread(AK0, AK1, t) + vread(t): e(l)
        e("s_waitcnt lgkmcnt(0)")
        for qb in range(2):
            for l in qk(qb, SA, "0"): e(l)
            lane_max16(SA, T, T + 1)
            e(f"v_max_f32 v{T}, v{T}, v{M+qb}\nv_sub_f32 v{AL}, v{M+qb}, v{T}\nv_exp_f32 v{AL}, v{AL}\nv_mov_b32 v{M+qb}, v{T}")
            for r in range(16): e(f"v_sub_f32 v{SA+r}, v{SA+r}, v{T}\nv_exp_f32 v{SA+r}, v{SA+r}")
            for r in range(16): e(f"v_mul_f32 v{O+16*qb+r}, v{O+16*qb+r}, v{AL}")
            for r in range(4): e(f"v_mul_f32 v{LS+4*qb+r}, v{LS+4*qb+r}, v{AL}")
            for r in range(8): e(f"v_cvt_pk_bf16_f32 v{P0+r}, v{SA+2*r}, v{SA+2*r+1}")
            for l in pv(qb, P0): e(l)
    e(f"s_sub_u32 s44, s44, 1\ns_cmp_lg_u32 s44, 0\ns_cbranch_scc1 {L('sloop')}")
    merge("s", M)
    e(f"s_branch {L('store')}")
    k.finish()
    return k

def pf_stage(NST): return 2

def attn_prefetch(k, pf, vd, vt):
    e = k.e
    e("s_lshl_b32 s56, s2, 3\ns_add_u32 s56, s56, s24")
    for n_, (karg, nbytes) in enumerate(pf):
        assert nbytes <= 2048 * 8192
        prefetch(k, karg, nbytes, 56, 2048, 58, 60 + 4 * n_, 2, vt, vd)

def k_summary(kernels, probe=None):
    n = len(kernels)
    k = Kern("summary_kernel", 1, 64, 0, 64); e = k.e
    k.e("s_cmp_ge_u32 s2, 1\ns_cbranch_scc1 summary_kernel_end")
    k.ptr(8, KA_WS); k.ptr(10, KA_DBG)
    e("s_waitcnt lgkmcnt(0)")
    k.srd(12, 8, WS_STAMP, 16 * 512 * 16)
    k.srd(20, 10, 0, 256)
    e(f"s_sub_u32 s10, s10, {512*n}\ns_subb_u32 s11, s11, 0")
    k.srd(16, 10, 0, 256)
    e("v_lshlrev_b32 v1, 4, v0")
    def red(r, op):
        for b in range(4): e(f"{op}_dpp v{r}, v{r}, v{r} row_ror:{1<<b} row_mask:0xf bank_mask:0xf")
        for w in (16, 32):
            e(f"v_mov_b32 v40, v{r}\nv_permlane{w}_swap_b32 v40, v{r}\n{op} v{r}, v{r}, v40")
    for i, (idx, grid) in enumerate(kernels):
        e(f"v_mov_b32 v10, -1\nv_mov_b32 v11, 0")
        for c in range(0, grid, 64):
            e(f"s_mov_b32 s24, {idx*512*16 + c*16}")
            e(f"buffer_load_dwordx4 v[4:7], v1, s[12:15], s24 offen\ns_waitcnt vmcnt(0)")
            e("v_min_u32 v10, v10, v4\nv_max_u32 v11, v11, v7")
        red(10, "v_min_u32"); red(11, "v_max_u32")
        if i == 0: e("v_mov_b32 v12, v10")
        e("v_sub_u32 v10, v10, v12\nv_sub_u32 v11, v11, v12")
        e(f"v_mov_b32 v13, {i*8}")
        e("v_mov_b32 v14, v10\nv_mov_b32 v15, v11")
        e("buffer_store_dwordx2 v[14:15], v13, s[16:19], 0 offen")
        e("buffer_store_dwordx2 v[14:15], v13, s[20:23], 0 offen")
        e("s_nop 1")
        e(f"v_readfirstlane_b32 s{40+2*i}, v10\nv_readfirstlane_b32 s{41+2*i}, v11")
    if probe is not None:
        kind, j, mult = probe
        if kind == "dur": e(f"s_sub_u32 s30, s{41+2*j}, s{40+2*j}")
        elif kind == "gap": e(f"s_sub_u32 s30, s{40+2*j}, s{41+2*(j-1)}")
        elif kind == "zero": e("s_mov_b32 s30, 0")
        if kind == "abs":
            e(f"s_mov_b32 s30, {mult}\nv_readfirstlane_b32 s32, v12")
        else:
            e(f"s_mul_i32 s30, s30, {mult}")
            e("s_min_u32 s30, s30, 100000")
            e("s_memrealtime s[32:33]\ns_waitcnt lgkmcnt(0)")
        e("summary_spin:\ns_memrealtime s[34:35]\ns_waitcnt lgkmcnt(0)\ns_sub_u32 s36, s34, s32\ns_cmp_lt_u32 s36, s30\ns_cbranch_scc1 summary_spin")
    k.finish()
    return k

def build_all():
    pfa = [(KA_WO, D * D * 2), (KA_W1, D * DFF * 2), (KA_W2, D * DFF * 2)]
    attn = k_attn2(pf=pfa if 'pf3' in PF else ()) if 'attn2' in PF else k_attn()
    if "xg" in PF:
        return [k_mod(), k_h(True),
          k_gemm("qkv_kernel", 1024, 1024, 3072, 192, ("ws", WS_H), S * D * 2, ("arg", KA_WQKV), D * 3 * D * 2, "qkv", 8, 4, 3, 2, ("perm",) if "perm" in PF else ()),
          attn,
          k_gemm("wo_kernel", 1024, 1024, 1024, 64, ("ws", WS_O), S * D * 2, ("arg", KA_WO), D * D * 2, "wo2", 4, 8, 4, 4),
          k_gemm("ffn1_kernel", 1024, 1024, DFF, 224, ("ws", WS_XG), S * D * 2, ("arg", KA_W1), D * DFF * 2, "ffn1", 8, 4, 3, 6),
          k_gemm("ffn2_kernel", DFF, DFF, 1024, 64, ("ws", WS_F1), S * DFF * 2, ("arg", KA_W2), DFF * D * 2, "ffn2", 4, 8, 4, 7)]
    ks = [k_mod(), k_h(True),
          k_gemm("qkv_kernel", 1024, 1024, 3072, 192, ("ws", WS_H), S * D * 2, ("arg", KA_WQKV), D * 3 * D * 2, "qkv", 8, 4, 3, 2, (), [(KA_WO, D * D * 2), (KA_W1, D * DFF * 2)] if "pf2" in PF else ()),
          attn,
          k_gemm("wo_kernel", 1024, 1024, 1024, 64, ("ws", WS_O), S * D * 2, ("arg", KA_WO), D * D * 2, "wo", 4, 8, 4, 4, (), [(KA_W2, D * DFF * 2)] if "pf4" in PF else ()),
          k_h(False),
          k_gemm("ffn1_kernel", 1024, 1024, DFF, 224, ("ws", WS_H), S * D * 2, ("arg", KA_W1), D * DFF * 2, "relu", 8, 4, 3, 6),
          k_gemm("ffn2_kernel", DFF, DFF, 1024, 64, ("ws", WS_F1), S * DFF * 2, ("arg", KA_W2), DFF * D * 2, "ffn2", 4, 8, 4, 7)]
    return ks

def emit(ks, ref_header):
    out = [ref_header]
    for k in ks: out.append(f"; @launch kernel={k.name} grid=({k.grid},1,1) block=({k.block},1,1) lds={k.lds}")
    out.append('.amdgcn_target "amdgcn-amd-amdhsa--gfx950"\n.text')
    seen = set()
    for k in ks:
        if k.name in seen: continue
        seen.add(k.name)
        lines, n = pad_hazards(k.a.lines)
        out.append(f".globl {k.name}\n.type {k.name},@function")
        out += lines
    out.append('.section .rodata,"a"')
    seen = set()
    for k in ks:
        if k.name in seen: continue
        seen.add(k.name)
        out.append(".p2align 6\n" + k.desc())
    return "\n".join(out) + "\n"

def header():
    ref = open("cdna_kernels/" + NAME + ".s.ref").read().split("\n")
    hdr = []
    for l in ref:
        if not l.startswith(";"): break
        if "@launch" in l or l.startswith("; Override") or l.startswith("; grid="): continue
        hdr.append(l)
    return "\n".join(hdr)

if __name__ == "__main__":
    if "--diag" in sys.argv: DIAG = True; sys.argv.remove("--diag")
    for a_ in list(sys.argv):
        if a_.startswith("--pf="): PF = tuple(a_[5:].split(",")); sys.argv.remove(a_)
    for a_ in list(sys.argv):
        if a_.startswith("--st="): STFLAG = " " + a_[5:].replace("+", " "); sys.argv.remove(a_)
    if "--clk" in sys.argv: DIAG = "clk"; sys.argv.remove("--clk")
    if "--hw" in sys.argv: DIAG = "hw"; sys.argv.remove("--hw")
    ref = open("cdna_kernels/" + NAME + ".s.ref").read().split("\n")
    hdr = []
    for l in ref:
        if not l.startswith(";"): break
        if "@launch" in l or l.startswith("; Override") or l.startswith("; grid="): continue
        hdr.append(l)
    ks = build_all()
    if "--sum" in sys.argv:
        sys.argv.remove("--sum")
        order = {"mod_kernel": 0, "h1_kernel": 1, "qkv_kernel": 2, "attn_kernel": 3, "wo_kernel": 4, "h2_kernel": 5, "ffn1_kernel": 6, "ffn2_kernel": 7}
        probe = None
        for a_ in list(sys.argv):
            if a_.startswith("--probe="):
                p_ = a_[8:].split(","); probe = (p_[0], int(p_[1]), int(p_[2])); sys.argv.remove(a_)
        ks.append(k_summary([(order[k.name], k.grid) for k in ks], probe))
    txt = emit(ks, "\n".join(hdr))
    out = sys.argv[1] if len(sys.argv) > 1 else "cdna_kernels/" + NAME + ".s"
    open(out, "w").write(txt)
    print("wrote", out, len(txt), "bytes")
```

```python
import sys
from asmlib import *
import gen
from gen import (NAME, S, D, DFF, H, KA_X, KA_WQKV, KA_WO, KA_BX, KA_W1, KA_W2, KA_C, KA_WMOD, KA_OUT, KA_DBG, KA_WS,
                 WS_MODP, WS_MODF, WS_H, WS_QKV, WS_O, WS_X1, WS_F1, WS_XG, WS_STAT, WS_UB, WS_STAMP, LOG2E, f32, Kern,
                 wave_sum, round_bf16, interleave, header, emit)

WS_CNT = 0x2f00000
C_QKV, C_ATT, C_WO, C_UB, C_F1 = 0, 16, 24, 40, 56
NCNT = 72
OPT = set()
DIAG = False
SC = " sc1"
P_WS, P_X, P_WQKV, P_W1, P_W2, P_WO, P_OUT = 66, 68, 70, 72, 74, 76, 78
CNT = 28
CTL = 138240
L_SIG = {"qkv": CTL, "att": CTL + 4, "wo": CTL + 8, "ub": CTL + 12, "f1": CTL + 16}
L_DEP = {"wo": CTL + 32, "f1": CTL + 36, "f2": CTL + 40}
L_STAMP = CTL + 64
LDS_TOTAL = CTL + 256
SPIN_MAX = 400000

class PK(Kern):
    def st(self, i):
        if not DIAG: return
        e = self.e; n = self.lab(f"st{i}")
        e(f"s_cmp_lg_u32 s24, 0\ns_cbranch_scc1 {n}\ns_memrealtime s[98:99]\ns_waitcnt lgkmcnt(0)\nv_mov_b32 v254, s98\nv_mov_b32 v255, {L_STAMP+4*i}\nds_write_b32 v255, v254\ns_waitcnt lgkmcnt(0)\n{n}:")
    def poll(self, tag, cnt_sreg, target):
        e = self.e; L = self.lab
        e(f"s_lshl_b32 s32, s{cnt_sreg}, 8\nv_mov_b32 v6, s32\ns_mov_b32 s33, 0")
        e(f"{L('poll'+tag)}:")
        e(f"buffer_load_dword v7, v6, {s(CNT,4)}, 0 offen sc1\ns_waitcnt vmcnt(0)\nv_readfirstlane_b32 s34, v7")
        e(f"s_cmp_ge_u32 s34, {target}\ns_cbranch_scc1 {L('pollx'+tag)}")
        e(f"s_add_u32 s33, s33, 1\ns_cmp_ge_u32 s33, {SPIN_MAX}\ns_cbranch_scc1 {L('pollx'+tag)}")
        e(f"s_sleep 1\ns_branch {L('poll'+tag)}")
        e(f"{L('pollx'+tag)}:")
    def dep_wait_loaders(self, tag, cnt_sreg, target, first_wave_cond):
        e = self.e; L = self.lab
        e(f"s_cmp_lg_u32 s24, 4\ns_cbranch_scc1 {L('dw'+tag)}")
        self.poll(tag, cnt_sreg, target)
        e(f"v_mov_b32 v6, {L_DEP[tag]}\nv_mov_b32 v7, 1\nds_write_b32 v6, v7\ns_waitcnt lgkmcnt(0)\ns_branch {L('dwx'+tag)}")
        e(f"{L('dw'+tag)}:")
        e(f"v_mov_b32 v6, {L_DEP[tag]}\ns_mov_b32 s33, 0")
        e(f"{L('dwl'+tag)}:")
        e(f"ds_read_b32 v7, v6\ns_waitcnt lgkmcnt(0)\nv_readfirstlane_b32 s34, v7")
        e(f"s_cmp_lg_u32 s34, 0\ns_cbranch_scc1 {L('dwx'+tag)}")
        e(f"s_add_u32 s33, s33, 1\ns_cmp_ge_u32 s33, {SPIN_MAX*4}\ns_cbranch_scc1 {L('dwx'+tag)}")
        e(f"s_sleep 1\ns_branch {L('dwl'+tag)}")
        e(f"{L('dwx'+tag)}:")
    def signal(self, tag, nwaves, cnt_sreg):
        e = self.e; L = self.lab
        e("s_waitcnt vmcnt(0)")
        e(f"v_mov_b32 v6, {L_SIG[tag]}\nv_mov_b32 v7, 1\ns_mov_b64 exec, 1")
        e("ds_add_rtn_u32 v7, v6, v7\ns_waitcnt lgkmcnt(0)\nv_readfirstlane_b32 s32, v7")
        e(f"s_cmp_lg_u32 s32, {nwaves-1}\ns_cbranch_scc1 {L('sig'+tag)}")
        e(f"s_lshl_b32 s33, s{cnt_sreg}, 8\nv_mov_b32 v6, s33\nv_mov_b32 v7, 1")
        e(f"buffer_atomic_add v7, v6, {s(CNT,4)}, 0 offen sc1")
        e(f"{L('sig'+tag)}:\ns_mov_b64 exec, -1")

def tile_map(e, xr, xc):
    nxc = 16 // xc
    e(f"s_and_b32 s36, s2, 7\ns_lshr_b32 s37, s2, 3")
    e(f"s_and_b32 s38, s36, {nxc-1}\ns_lshr_b32 s39, s36, {nxc.bit_length()-1}")
    e(f"s_and_b32 s40, s37, {xc-1}\ns_lshr_b32 s41, s37, {xc.bit_length()-1}")
    e(f"s_mul_i32 s38, s38, {xc}\ns_add_u32 s26, s38, s40")
    e(f"s_mul_i32 s39, s39, {xr}\ns_add_u32 s25, s39, s41")

def gemm_phase(k, tag, K, lda, ldb, BN, srcA, sizeA, pB, sizeB, epi, xr, xc, NS, nxt_c, nxt_l, dep=None, stamps=(None, None)):
    e = k.e
    L = lambda n: k.lab(tag + "_" + n)
    BM, BK = 128, 64
    nA = BM * BK * 2 // 1024; nB = BN * BK * 2 // 1024
    nAw, nBw = nA // 4, nB // 4
    nld = nAw + nBw
    SB = (nA + nB) * 1024
    nk = K // BK
    TM, TN = 64, BN // 2
    mt, nt = TM // 16, TN // 16
    pitch = BN * 2; cpr = BN // 8
    hbits = {4: 2, 6: 1, 2: 1, 0: 3}[(pitch // 32) % 8]
    ACC = 8; NACC = 4 * mt * nt
    FA = ACC + NACC; NF = 4 * (mt + nt); FB = FA + NF
    AX = FB + NF; AW = AX + 2; EP = AW + nt
    XL = 135168
    assert SB * NS <= XL
    perm = epi == "qkv"
    asc = SC if dep else ""
    e(f"{L('c')}:")
    tile_map(e, xr, xc)
    e("s_lshr_b32 s42, s24, 1\ns_and_b32 s43, s24, 1")
    e("v_and_b32 v3, 15, v2\nv_lshrrev_b32 v4, 4, v2")
    e(f"s_lshl_b32 s44, s25, 7\ns_lshl_b32 s45, s42, 6\ns_add_u32 s44, s44, s45")
    e(f"s_mul_i32 s46, s26, {BN}\ns_mul_i32 s45, s43, {TN}\ns_add_u32 s46, s46, s45")
    k.srd(20, P_WS, WS_MODF, 6144 * 4)
    if epi == "qkv": k.srd(12, P_WS, WS_QKV, 96 * S * 64)
    elif epi == "ffn1": k.srd(12, P_WS, WS_F1, S * DFF * 2)
    elif epi == "wo": k.srd(12, P_WS, WS_X1, S * D * 2); k.srd(16, P_X, 0, S * D * 2)
    elif epi == "ffn2": k.srd(12, P_OUT, 0, S * D * 2); k.srd(16, P_WS, WS_X1, S * D * 2)
    G = EP + 2 * mt * nt; GG = G + 4 * nt; W1R = GG + 4 * nt
    if epi in ("wo", "ffn2"):
        rsc = SC if epi == "ffn2" else ""
        e(f"v_add_u32 v5, s44, v3\nv_lshlrev_b32 v5, 11, v5\nv_lshlrev_b32 v6, 3, v4\nv_add_u32 v5, v5, v6")
        e(f"s_lshl_b32 s47, s46, 1\nv_add_u32 v5, s47, v5")
        for j in range(mt):
            e(f"s_mov_b32 s48, {j*16*2048}")
            for i in range(nt):
                e(f"buffer_load_dwordx2 {v(EP+2*(j*nt+i),2)}, v5, s[16:19], s48 offen offset:{i*32}{rsc}")
        gate = (5 if epi == "ffn2" else 2) * 1024
        e(f"v_lshlrev_b32 v6, 4, v4\ns_lshl_b32 s47, s46, 2\ns_add_u32 s47, s47, {gate*4}")
        for i in range(nt):
            e(f"buffer_load_dwordx4 {v(G+4*i,4)}, v6, s[20:23], s47 offen offset:{i*64}")
        if epi == "wo":
            e(f"s_lshl_b32 s47, s46, 2\ns_add_u32 s47, s47, {4096*4}")
            for i in range(nt):
                e(f"buffer_load_dwordx4 {v(GG+4*i,4)}, v6, s[20:23], s47 offen offset:{i*64}")
            e("s_lshr_b32 s58, s2, 4\ns_and_b32 s59, s2, 15")
            e(f"v_mul_u32_u24 v5, {(65536+27)//28}, v2\nv_lshrrev_b32 v5, 16, v5\nv_mul_u32_u24 v6, 28, v5\nv_sub_u32 v6, v2, v6")
            e("s_lshl_b32 s60, s58, 6\ns_lshl_b32 s61, s24, 4\ns_add_u32 s60, s60, s61\nv_add_u32 v5, s60, v5")
            e(f"v_mul_u32_u24 v7, {DFF*2}, v5\nv_lshlrev_b32 v6, 4, v6\nv_add_u32 v7, v7, v6\ns_mul_i32 s60, s59, 448\nv_add_u32 v7, s60, v7")
            k.srd(60, P_W1, 0, D * DFF * 2)
            e("v_cmp_gt_u32 vcc, 56, v2\ns_and_saveexec_b64 s[34:35], vcc")
            for i in range(8):
                e(f"s_mov_b32 s64, {i*2*DFF*2}")
                e(f"buffer_load_dwordx4 {v(W1R+4*i,4)}, v7, s[60:63], s64 offen")
            e("v_lshlrev_b32 v5, 2, v5")
            e(f"s_mov_b32 s64, {4096*4}\ns_mov_b32 s65, {3072*4}")
            for i in range(8):
                e(f"buffer_load_dword v{W1R+32+i}, v5, s[20:23], s64 offen offset:{i*8}")
                e(f"buffer_load_dword v{W1R+40+i}, v5, s[20:23], s65 offen offset:{i*8}")
            e("s_mov_b64 exec, s[34:35]")
    e(f"v_lshrrev_b32 v5, 1, v3\nv_xor_b32 v5, v5, v4\nv_and_b32 v5, 7, v5")
    e(f"v_lshlrev_b32 v5, 4, v5\ns_lshl_b32 s47, s42, 6\nv_add_u32 v6, s47, v3\nv_lshlrev_b32 v6, 7, v6")
    e(f"v_add_u32 v{AX}, v5, v6\nv_xor_b32 v{AX+1}, 64, v{AX}")
    e("v_lshrrev_b32 v5, 2, v3\nv_and_b32 v6, 3, v2")
    e("v_lshlrev_b32 v7, 3, v4\nv_add_u32 v7, v7, v5")
    e(f"v_mul_u32_u24 v7, {pitch}, v7\nv_lshlrev_b32 v6, 3, v6\nv_add_u32 v7, v7, v6\nv_add_u32 v7, {nA*1024}, v7")
    if hbits == 2: e("v_lshrrev_b32 v5, 1, v5\nv_and_b32 v6, 1, v4\nv_lshlrev_b32 v6, 1, v6\nv_or_b32 v5, v5, v6")
    elif hbits == 1: e("v_and_b32 v5, 1, v4")
    else: e("v_and_b32 v6, 1, v4\nv_lshlrev_b32 v6, 2, v6\nv_or_b32 v5, v5, v6")
    e(f"s_mul_i32 s47, s43, {nt}")
    for i in range(nt):
        e(f"s_add_u32 s48, s47, {i}\nv_xor_b32 v6, s48, v5\nv_lshlrev_b32 v6, 5, v6\nv_add_u32 v{AW+i}, v7, v6")
    for r in range(NACC): e(f"v_mov_b32 v{ACC+r}, 0")
    def reads(ss, F):
        xs = [f"ds_read_b128 {v(F+4*j,4)}, v{AX+ss} offset:{j*2048}" for j in range(mt)]
        ws = []
        for i in range(nt):
            for hh in range(2):
                ws.append(f"ds_read_b64_tr_b16 {v(F+4*mt+4*i+2*hh,2)}, v{AW+i} offset:{(ss*32+hh*4)*pitch}")
        return [xs[0]] + ws[:2] + xs[1:] + ws[2:]
    def mfmas(F):
        return [f"v_mfma_f32_16x16x32_bf16 {v(ACC+4*(j*nt+i),4)}, {v(F+4*mt+4*i,4)}, {v(F+4*j,4)}, {v(ACC+4*(j*nt+i),4)}"
                for j in range(mt) for i in range(nt)]
    def mix(mf, rd, extra=()):
        rd = list(rd)
        if len(rd) * 2 <= len(mf) + 4 and len(mf) >= 16:
            return interleave(mf, rd + list(extra))
        out = []; oi = 0; ex = list(extra)
        for m_ in mf:
            out.append(m_)
            for _ in range(2):
                if oi < len(rd): out.append(rd[oi]); oi += 1
            if oi >= len(rd) and ex: out.append(ex.pop(0))
        out += rd[oi:] + ex
        return out
    e(f"s_mov_b32 s49, 0\ns_mov_b32 s54, {SB}\ns_mov_b32 s55, {-(NS-1)*SB & 0xffffffff:#x}")
    e("s_barrier")
    if stamps[0] is not None: k.st(stamps[0])
    for l in reads(0, FA): e(l)
    e(f"s_mov_b32 s50, {nk-1}")
    adv_s = f"s_add_u32 s49, s49, 1\ns_cmp_eq_u32 s49, {NS}\ns_cselect_b32 s51, s55, s54\ns_cselect_b32 s49, 0, s49"
    adv_v = [f"v_add_u32 v{r}, s51, v{r}" for r in [AX, AX + 1] + [AW + i for i in range(nt)]]
    e(f"{L('cloop')}:")
    e(adv_s)
    e("s_waitcnt lgkmcnt(0)")
    seq = interleave(mfmas(FA), reads(1, FB)) if "oldmix" in OPT else mix(mfmas(FA), reads(1, FB))
    last_rd = max(i for i, x in enumerate(seq) if x.startswith("ds_read"))
    tail = [x for x in seq[last_rd + 1:]]
    seq = seq[:last_rd + 1]
    av = list(adv_v)
    for x in tail:
        seq.append(x)
        if av: seq.append(av.pop(0))
    seq += av
    for l in seq: e(l)
    e("s_waitcnt lgkmcnt(0)\ns_barrier")
    for l in (interleave(mfmas(FB), reads(0, FA)) if "oldmix" in OPT else mix(mfmas(FB), reads(0, FA))): e(l)
    e(f"s_sub_u32 s50, s50, 1\ns_cmp_lg_u32 s50, 0\ns_cbranch_scc1 {L('cloop')}")
    e("s_waitcnt lgkmcnt(0)")
    for l in mix(mfmas(FA), reads(1, FB)): e(l)
    e("s_waitcnt lgkmcnt(0)")
    if epi != "qkv": e("s_barrier")
    for l in mfmas(FB): e(l)
    if stamps[1] is not None: k.st(stamps[1])
    T = FA
    def acc(i, j): return ACC + 4 * (j * nt + i)
    def pack_pair(ta, tb, dst):
        e(f"v_cvt_pk_bf16_f32 v{dst}, v{ta}, v{ta+1}\nv_cvt_pk_bf16_f32 v{dst+1}, v{ta+2}, v{ta+3}")
        e(f"v_cvt_pk_bf16_f32 v{dst+2}, v{tb}, v{tb+1}\nv_cvt_pk_bf16_f32 v{dst+3}, v{tb+2}, v{tb+3}")
        e(f"v_permlane16_swap_b32 v{dst}, v{dst+2}\nv_permlane16_swap_b32 v{dst+1}, v{dst+3}")
    e("v_and_b32 v5, 1, v4\nv_lshlrev_b32 v5, 5, v5\nv_lshrrev_b32 v6, 1, v4\nv_lshlrev_b32 v6, 4, v6\nv_add_u32 v5, v5, v6")
    if epi == "qkv":
        e("v_lshlrev_b32 v6, 6, v3\nv_add_u32 v5, v5, v6")
        n = 0
        for p in range(nt // 2):
            e(f"s_mul_i32 s52, s43, 96\ns_add_u32 s52, s52, {32*p}\ns_cmp_lt_u32 s52, 64\ns_cselect_b32 s53, {f32(LOG2E * 32 ** -0.5)}, 1.0")
            e("s_lshr_b32 s54, s52, 6\ns_lshl_b32 s54, s54, 5\ns_bfe_u32 s52, s52, 0x10005\ns_add_u32 s52, s52, s54\ns_lshl_b32 s54, s26, 1\ns_add_u32 s52, s52, s54")
            e("s_lshl_b32 s52, s52, 17\ns_lshl_b32 s54, s44, 6\ns_add_u32 s52, s52, s54")
            for j in range(mt):
                ta, tb = acc(2 * p, j), acc(2 * p + 1, j)
                for r in range(4):
                    e(f"v_mul_f32 v{ta+r}, s53, v{ta+r}\nv_mul_f32 v{tb+r}, s53, v{tb+r}")
                d = T + 4 * (n % 8); n += 1
                pack_pair(ta, tb, d)
                e(f"buffer_store_dwordx4 {v(d,4)}, v5, s[12:15], s52 offen offset:{j*1024}{SC}")
        e(f"s_add_u32 s35, s26, {C_QKV}")
        k.signal("qkv", 4, 35)
    elif epi == "ffn1":
        ST = FA; UB = FA + 8; TMP = FA + 64; T = FA + 68
        e(f"s_lshl_b32 s47, s42, 6\nv_add_u32 v6, s47, v3\nv_lshlrev_b32 v6, 3, v6\nv_add_u32 v6, {XL}, v6")
        for j in range(mt): e(f"ds_read_b64 {v(ST+2*j,2)}, v6 offset:{j*128}")
        e(f"s_mul_i32 s47, s43, {TN*8}\ns_add_u32 s47, s47, {XL+1024}\nv_lshlrev_b32 v7, 5, v4\nv_add_u32 v7, s47, v7")
        for i in range(nt):
            e(f"ds_read_b128 {v(UB+8*i,4)}, v7 offset:{i*128}\nds_read_b128 {v(UB+8*i+4,4)}, v7 offset:{i*128+16}")
        ld2 = DFF * 2
        e(f"v_add_u32 v6, s44, v3\nv_mul_u32_u24 v6, {ld2}, v6\ns_lshl_b32 s47, s46, 1\nv_add_u32 v6, s47, v6")
        e("v_add_u32 v5, v5, v6")
        e(f"v_and_b32 v7, 1, v4\nv_mul_u32_u24 v7, {16*ld2}, v7\nv_add_u32 v6, v6, v7")
        e(f"v_lshrrev_b32 v7, 1, v4\nv_lshlrev_b32 v7, 4, v7\nv_add_u32 v6, v6, v7")
        e("s_waitcnt lgkmcnt(0)")
        def ln(i, j):
            u = UB + 8 * i
            for r in range(4):
                a_ = acc(i, j) + r; t_ = TMP + r
                e(f"v_fma_f32 v{t_}, -v{ST+2*j}, v{u+2*r}, v{u+2*r+1}")
            for r in range(4):
                a_ = acc(i, j) + r; t_ = TMP + r
                e(f"v_fma_f32 v{a_}, v{a_}, v{ST+2*j+1}, v{t_}")
            for r in range(4):
                a_ = acc(i, j) + r
                e(f"v_max_f32 v{a_}, 0, v{a_}")
        n = 0
        for j in range(mt):
            e(f"s_mov_b32 s48, {j*16*ld2}")
            for p in range(nt // 2):
                ln(2 * p, j); ln(2 * p + 1, j)
                d = T + 4 * (n % 4); n += 1
                pack_pair(acc(2 * p, j), acc(2 * p + 1, j), d)
                e(f"buffer_store_dwordx4 {v(d,4)}, v5, s[12:15], s48 offen offset:{p*64}{SC}")
            ln(nt - 1, j)
            if j % 2 == 1:
                d = T + 4 * (n % 4); n += 1
                pack_pair(acc(nt - 1, j - 1), acc(nt - 1, j), d)
                e(f"s_mov_b32 s53, {(j-1)*16*ld2}")
                e(f"buffer_store_dwordx4 {v(d,4)}, v6, s[12:15], s53 offen offset:{(nt-1)*32}{SC}")
        e(f"s_add_u32 s35, s25, {C_F1}")
        k.signal("f1", 4, 35)
    else:
        e("s_waitcnt vmcnt(0)")
        for j in range(mt):
            for i in range(nt):
                a0 = acc(i, j); x0 = EP + 2 * (j * nt + i)
                for q in range(2):
                    e(f"v_lshlrev_b32 v6, 16, v{x0+q}\nv_and_b32 v7, 0xffff0000, v{x0+q}")
                    e(f"v_fma_f32 v{a0+2*q}, v{a0+2*q}, v{G+4*i+2*q}, v6\nv_fma_f32 v{a0+2*q+1}, v{a0+2*q+1}, v{G+4*i+2*q+1}, v7")
        e(f"v_add_u32 v6, s44, v3\nv_lshlrev_b32 v6, 11, v6\ns_lshl_b32 s47, s46, 1\nv_add_u32 v6, s47, v6\nv_add_u32 v5, v5, v6")
        n = 0
        if epi == "wo":
            k.srd(16, P_WS, WS_XG, S * D * 2); k.srd(60, P_WS, WS_STAT, 32 * S * 8)
            for r in range(4 * nt):
                e(f"v_add_f32 v{GG+r}, 1.0, v{GG+r}"); round_bf16(e, GG + r)
            e(f"s_lshl_b32 s49, s26, 1\ns_add_u32 s49, s49, s43\ns_lshl_b32 s49, s49, 14\ns_lshl_b32 s50, s44, 3\ns_add_u32 s49, s49, s50")
            e("v_lshlrev_b32 v1, 3, v3")
        for j in range(mt):
            e(f"s_mov_b32 s48, {j*16*2048}")
            for p in range(nt // 2):
                d = T + 4 * (n % 8); n += 1
                if epi == "ffn2":
                    pack_pair(acc(2 * p, j), acc(2 * p + 1, j), d)
                    e(f"buffer_store_dwordx4 {v(d,4)}, v5, s[12:15], s48 offen offset:{p*64}")
                    continue
                ta, tb = acc(2 * p, j), acc(2 * p + 1, j)
                d2 = T + 32 + 4 * (j % 2); SM = T + 40 + 2 * (j % 2)
                e(f"v_cvt_pk_bf16_f32 v{d}, v{ta}, v{ta+1}\nv_cvt_pk_bf16_f32 v{d+1}, v{ta+2}, v{ta+3}")
                e(f"v_cvt_pk_bf16_f32 v{d+2}, v{tb}, v{tb+1}\nv_cvt_pk_bf16_f32 v{d+3}, v{tb+2}, v{tb+3}")
                for q, base in enumerate((ta, ta + 2, tb, tb + 2)):
                    e(f"v_lshlrev_b32 v{base}, 16, v{d+q}\nv_and_b32 v{base+1}, 0xffff0000, v{d+q}")
                vals = [ta + r for r in range(4)] + [tb + r for r in range(4)]
                e(f"v_add_f32 v{SM}, v{vals[0]}, v{vals[1]}\nv_mul_f32 v{SM+1}, v{vals[0]}, v{vals[0]}")
                for x_ in vals[2:]: e(f"v_add_f32 v{SM}, v{SM}, v{x_}")
                for x_ in vals[1:]: e(f"v_fmac_f32 v{SM+1}, v{x_}, v{x_}")
                for r in range(4):
                    e(f"v_mul_f32 v{ta+r}, v{ta+r}, v{GG+8*p+r}\nv_mul_f32 v{tb+r}, v{tb+r}, v{GG+8*p+4+r}")
                e(f"v_cvt_pk_bf16_f32 v{d2}, v{ta}, v{ta+1}\nv_cvt_pk_bf16_f32 v{d2+1}, v{ta+2}, v{ta+3}")
                e(f"v_cvt_pk_bf16_f32 v{d2+2}, v{tb}, v{tb+1}\nv_cvt_pk_bf16_f32 v{d2+3}, v{tb+2}, v{tb+3}")
                e(f"v_permlane16_swap_b32 v{d}, v{d+2}\nv_permlane16_swap_b32 v{d+1}, v{d+3}")
                e(f"v_permlane16_swap_b32 v{d2}, v{d2+2}\nv_permlane16_swap_b32 v{d2+1}, v{d2+3}")
                e(f"buffer_store_dwordx4 {v(d2,4)}, v5, s[16:19], s48 offen offset:{p*64}{SC}")
                e(f"buffer_store_dwordx4 {v(d,4)}, v5, s[12:15], s48 offen offset:{p*64}{SC}")
                wave_sum(e, [SM, SM + 1], 6, [4, 5])
                e(f"s_mov_b64 exec, 0xffff\nbuffer_store_dwordx2 {v(SM,2)}, v1, s[60:63], s49 offen offset:{j*128}{SC}\ns_mov_b64 exec, -1")
        if epi == "wo":
            e(f"s_add_u32 s35, s25, {C_WO}")
            k.signal("wo", 4, 35)
            UA = ACC
            for r in range(16): e(f"v_mov_b32 v{UA+r}, 0")
            for i in range(8):
                g_ = W1R + 32 + i; s_ = W1R + 40 + i
                e(f"v_add_f32 v{g_}, 1.0, v{g_}"); round_bf16(e, g_)
                for q in range(4):
                    w_ = W1R + 4 * i + q
                    e(f"v_lshlrev_b32 v6, 16, v{w_}\nv_and_b32 v7, 0xffff0000, v{w_}")
                    e(f"v_fmac_f32 v{UA+2*q}, v{g_}, v6\nv_fmac_f32 v{UA+2*q+1}, v{g_}, v7\nv_fmac_f32 v{UA+8+2*q}, v{s_}, v6\nv_fmac_f32 v{UA+8+2*q+1}, v{s_}, v7")
            UL = 139264
            e(f"v_mul_u32_u24 v5, {(65536+27)//28}, v2\nv_lshrrev_b32 v5, 16, v5\nv_mul_u32_u24 v6, 28, v5\nv_sub_u32 v6, v2, v6")
            e(f"s_lshl_b32 s32, s24, 1\nv_add_u32 v5, s32, v5\nv_mul_u32_u24 v5, 1792, v5\nv_lshlrev_b32 v6, 5, v6\nv_add_u32 v5, v5, v6\nv_add_u32 v5, {UL}, v5")
            e("v_cmp_gt_u32 vcc, 56, v2\ns_and_saveexec_b64 s[34:35], vcc")
            e(f"ds_write_b128 v5, {v(UA,4)}\nds_write_b128 v5, {v(UA+4,4)} offset:16\nds_write_b128 v5, {v(UA+8,4)} offset:896\nds_write_b128 v5, {v(UA+12,4)} offset:912")
            e("s_mov_b64 exec, s[34:35]\ns_waitcnt lgkmcnt(0)")
            e(f"v_mov_b32 v6, {L_SIG['ub']}\nv_mov_b32 v7, 1\ns_mov_b64 exec, 1")
            e("ds_add_rtn_u32 v7, v6, v7\ns_waitcnt lgkmcnt(0)\nv_readfirstlane_b32 s32, v7\ns_mov_b64 exec, -1")
            e(f"s_cmp_lg_u32 s32, 3\ns_cbranch_scc1 {L('ubx')}")
            e(f"v_lshlrev_b32 v5, 2, v2\nv_add_u32 v5, {UL}, v5")
            for m_ in range(7):
                for rr in range(8): e(f"ds_read_b32 v{UA+rr}, v5 offset:{rr*1792+m_*256}")
                e("s_waitcnt lgkmcnt(0)")
                for rr in range(1, 8): e(f"v_add_f32 v{UA}, v{UA}, v{UA+rr}")
                e(f"v_mov_b32 v{UA+16+m_}, v{UA}")
            k.srd(16, P_WS, WS_UB, 16 * 2 * DFF * 4)
            e(f"s_mul_i32 s49, s58, {2*DFF*4}\ns_mul_i32 s50, s59, 896\ns_add_u32 s49, s49, s50")
            for m_ in range(7):
                e(f"v_add_u32 v5, {64*m_}, v2\nv_cmp_le_u32 vcc, 224, v5\nv_mov_b32 v6, {DFF*4 - 896}\nv_cndmask_b32 v6, 0, v6, vcc\nv_lshl_add_u32 v5, v5, 2, v6")
                e(f"buffer_store_dword v{UA+16+m_}, v5, s[16:19], s49 offen{SC}")
            e("s_waitcnt vmcnt(0)")
            e(f"s_add_u32 s33, s59, {C_UB}\ns_lshl_b32 s33, s33, 8\nv_mov_b32 v6, s33\nv_mov_b32 v7, 1\ns_mov_b64 exec, 1")
            e(f"buffer_atomic_add v7, v6, {s(CNT,4)}, 0 offen sc1\ns_mov_b64 exec, -1")
            e(f"{L('ubx')}:")
    e(f"s_branch {nxt_c}")
    e(f"{L('l')}:")
    tile_map(e, xr, xc)
    k.srd(4, P_WS, srcA, sizeA); k.srd(8, pB, 0, sizeB)
    e("s_sub_u32 s42, s24, 4")
    LA = 8
    lda2, ldb2 = lda * 2, ldb * 2
    e(f"s_lshl_b32 s43, s25, 7\ns_mul_i32 s44, s42, {nAw*8}\ns_add_u32 s43, s43, s44")
    e(f"v_lshrrev_b32 v3, 3, v2\nv_add_u32 v3, s43, v3\ns_mov_b32 s45, {lda2}\nv_mul_lo_u32 v3, s45, v3")
    e("v_and_b32 v4, 7, v2\nv_lshrrev_b32 v5, 4, v2")
    for i in range(nAw):
        e(f"v_xor_b32 v6, {(i&1)*4}, v5\nv_xor_b32 v6, v6, v4\nv_lshlrev_b32 v6, 4, v6\nv_add_u32 v6, v6, v3")
        e(f"v_add_u32 v{LA+i}, {i*8*lda2}, v6")
    magic = (65536 + cpr - 1) // cpr
    assert all((p * magic) >> 16 == p // cpr for p in range(nBw * 64)) and nBw * 64 == 16 * cpr
    e(f"s_mul_i32 s43, s42, {16*ldb2}\ns_mul_i32 s44, s26, {128 if perm else BN*2}\ns_add_u32 s43, s43, s44")
    for i in range(nBw):
        e(f"v_add_u32 v3, {i*64}, v2\nv_mul_u32_u24 v4, {magic}, v3\nv_lshrrev_b32 v4, 16, v4")
        e(f"v_mul_u32_u24 v5, {cpr}, v4\nv_sub_u32 v3, v3, v5")
        if hbits == 2: e("v_and_b32 v5, 2, v4\nv_lshrrev_b32 v6, 1, v4\nv_and_b32 v6, 4, v6\nv_or_b32 v5, v5, v6")
        elif hbits == 1: e("v_lshrrev_b32 v5, 2, v4\nv_and_b32 v5, 2, v5")
        else: e("v_and_b32 v5, 3, v4\nv_lshrrev_b32 v6, 1, v4\nv_and_b32 v6, 4, v6\nv_or_b32 v5, v5, v6\nv_lshlrev_b32 v5, 1, v5")
        e("v_xor_b32 v3, v3, v5")
        if perm: e("v_lshrrev_b32 v5, 3, v3\nv_and_b32 v3, 7, v3\nv_lshlrev_b32 v5, 7, v5\nv_add_u32 v3, v3, v5")
        e(f"v_lshlrev_b32 v3, 4, v3\ns_mov_b32 s45, {ldb2}\nv_mul_lo_u32 v4, s45, v4\nv_add_u32 v3, v3, v4")
        e(f"v_add_u32 v{LA+nAw+i}, s43, v3")
    e(f"s_mul_i32 s46, s42, {nAw*1024}")
    e(f"s_mul_i32 s47, s42, {nBw*1024}\ns_add_u32 s47, s47, {nA*1024}")
    def issue_x(lds_s, off_s):
        for i in range(nAw):
            e(f"s_add_u32 m0, {lds_s}, {i*1024}")
            e(f"buffer_load_dwordx4 v{LA+i}, s[4:7], {off_s} offen{asc} lds")
    def issue_w(lds_s, off_s):
        for i in range(nBw):
            e(f"s_add_u32 m0, {lds_s}, {i*1024}")
            e(f"buffer_load_dwordx4 v{LA+nAw+i}, s[8:11], {off_s} offen lds")
    for st in range(NS - 1):
        e(f"s_add_u32 s52, s47, {st*SB}\ns_mov_b32 s49, {st*BK*ldb2}")
        issue_w("s52", "s49")
    if dep:
        base, target, kind = dep
        e(f"s_lshr_b32 s35, s25, 1\ns_add_u32 s35, s35, {base}" if kind == "rb2" else f"s_add_u32 s35, s25, {base}")
        k.dep_wait_loaders(tag, 35, target, None)
    for st in range(NS - 1):
        e(f"s_add_u32 s51, s46, {st*SB}\ns_mov_b32 s48, {st*BK*2}")
        issue_x("s51", "s48")
    e(f"s_mov_b32 s48, {(NS-1)*BK*2}\ns_mov_b32 s49, {(NS-1)*BK*ldb2}\ns_mov_b32 s50, {(NS-1)*SB}")
    def issue():
        e("s_add_u32 s51, s50, s46\ns_add_u32 s52, s50, s47")
        issue_x("s51", "s48"); issue_w("s52", "s49")
        e(f"s_add_u32 s48, s48, {BK*2}\ns_add_u32 s49, s49, {BK*ldb2}")
        e(f"s_add_u32 s50, s50, {SB}\ns_cmp_eq_u32 s50, {SB*NS}\ns_cselect_b32 s50, 0, s50")
    e(f"s_waitcnt vmcnt({nAw*(NS-2)})\ns_barrier")
    issue()
    e(f"s_waitcnt vmcnt({nAw*(NS-3) + nld})\ns_barrier" if NS >= 3 else "")
    issue()
    for t in range(2, NS - 1):
        e(f"s_waitcnt vmcnt({nAw*(NS-2-t) + nld*t})\ns_barrier")
        issue()
    done = max(2, NS - 1)
    e(f"s_mov_b32 s53, {nk-(NS-1)-done}")
    e(f"{L('lloop')}:")
    e(f"s_waitcnt vmcnt({nld*(NS-2)})\ns_barrier")
    issue()
    e(f"s_sub_u32 s53, s53, 1\ns_cmp_lg_u32 s53, 0\ns_cbranch_scc1 {L('lloop')}")
    nx = 0
    for t in range(NS - 1):
        e(f"s_waitcnt vmcnt({nld*(NS-2-t)+nx})\ns_barrier")
        if epi == "ffn1" and t == 0:
            nx = 32
            k.srd(56, P_WS, WS_STAT, 32 * S * 8); k.srd(60, P_WS, WS_UB, 16 * 2 * DFF * 4)
            e(f"s_cmp_ge_u32 s42, 2\ns_cbranch_scc1 {L('ubld')}")
            e(f"s_lshl_b32 s43, s42, 6\nv_add_u32 v3, s43, v2\ns_lshl_b32 s44, s25, 7\nv_add_u32 v4, s44, v3\nv_lshlrev_b32 v4, 3, v4")
            for sl in range(32):
                e(f"s_mov_b32 s45, {sl*S*8}\nbuffer_load_dwordx2 {v(32+2*sl,2)}, v4, s[56:59], s45 offen{SC}")
            e(f"s_branch {L('ldd')}")
            e(f"{L('ubld')}:")
            e(f"s_add_u32 s35, s26, {C_UB}")
            k.poll(tag + "u", 35, 16)
            e(f"s_sub_u32 s43, s42, 2\ns_lshl_b32 s43, s43, 6\nv_add_u32 v3, s43, v2")
            e(f"s_mul_i32 s44, s26, {BN*4}\nv_lshlrev_b32 v4, 3, v3\nv_add_u32 v4, s44, v4")
            for kg in range(16):
                for w_ in range(2):
                    e(f"s_mov_b32 s45, {(kg*2+w_)*DFF*4}\nbuffer_load_dwordx2 {v(32+4*kg+2*w_,2)}, v4, s[60:63], s45 offen{SC}")
            e(f"{L('ldd')}:")
    if epi == "ffn1":
        e("s_waitcnt vmcnt(0)")
        e(f"s_cmp_ge_u32 s42, 2\ns_cbranch_scc1 {L('ubred')}")
        for sl in range(1, 32): e(f"v_add_f32 v32, v32, v{32+2*sl}\nv_add_f32 v33, v33, v{33+2*sl}")
        e(f"v_mul_f32 v32, {f32(1/1024)}, v32\nv_mul_f32 v33, {f32(1/1024)}, v33")
        e(f"v_fma_f32 v33, -v32, v32, v33\nv_max_f32 v33, 0, v33\nv_add_f32 v33, {f32(1e-5)}, v33\nv_rsq_f32 v33, v33")
        e("v_mul_f32 v32, v32, v33")
        e(f"v_lshlrev_b32 v4, 3, v3\nv_add_u32 v4, {XL}, v4\nds_write_b64 v4, v[32:33]")
        e(f"s_branch {L('redd')}")
        e(f"{L('ubred')}:")
        for kg in range(1, 16):
            for q in range(4): e(f"v_add_f32 v{32+q}, v{32+q}, v{32+4*kg+q}")
        e("v_swap_b32 v33, v34")
        e(f"v_lshlrev_b32 v4, 4, v3\nv_add_u32 v4, {XL+1024}, v4\nv_cmp_gt_u32 vcc, 112, v3\ns_and_saveexec_b64 s[44:45], vcc")
        e(f"ds_write_b128 v4, v[32:35]\ns_mov_b64 exec, s[44:45]")
        e(f"{L('redd')}:")
        e("s_waitcnt lgkmcnt(0)")
    if epi != "qkv": e("s_barrier")
    e(f"s_branch {nxt_l}")

def attn_phase(k, nxt_c, nxt_l, pf):
    e = k.e
    L = lambda n: k.lab("att_" + n)
    NSL = 3; KPS = 128; SBK = KPS * 64
    HB = 2 * SBK; SB = 2 * HB
    FLAG = NSL * SB
    e(f"{L('c')}:\n{L('l')}:")
    e("s_and_b32 s36, s2, 7\ns_lshr_b32 s37, s2, 3\ns_lshl_b32 s36, s36, 2\ns_lshr_b32 s38, s37, 3\ns_add_u32 s25, s36, s38")
    e("s_and_b32 s26, s37, 7")
    e("s_and_b32 s34, s24, 3\ns_lshr_b32 s27, s24, 2")
    e("s_mov_b32 s57, s34")
    e("s_lshl_b32 s40, s25, 17")
    e(f"s_add_u32 s32, s{P_WS}, {WS_QKV:#x}\ns_addc_u32 s33, s{P_WS+1}, 0\ns_add_u32 s32, s32, s40\ns_addc_u32 s33, s33, 0")
    k.srd(4, 32, 0, S * 64); k.srd(8, 32, 32 * S * 64, S * 64); k.srd(12, 32, 64 * S * 64, S * 64)
    k.srd(16, P_WS, WS_O, S * D * 2)
    QG, KH = 57, 27
    Q = 4 + 4; KF = 24; VF = 32
    NEG = 40; O = 72; LS = 104; SEL = 112
    SS = [[116, 132], [148, 164]]
    PP = [[180, 188], [196, 204]]
    AK0, AK1, AV, AN0, AN1, DK, DV = 212, 213, 214, 215, 216, 217, 218
    HH, QL = 219, 220
    T = 221
    PFD = 230
    e(f"v_and_b32 v{QL}, 31, v2\nv_lshrrev_b32 v{HH}, 5, v2")
    e(f"s_lshl_b32 s39, s26, 8\ns_lshl_b32 s40, s{QG}, 6\ns_add_u32 s39, s39, s40")
    e(f"v_lshrrev_b32 v{T}, 2, v2\ns_lshl_b32 s40, s{QG}, 5\nv_add_u32 v{T}, s40, v{T}\nv_lshlrev_b32 v{T}, 6, v{T}")
    e(f"v_and_b32 v{T+1}, 3, v2\nv_lshrrev_b32 v{T+2}, 4, v2\nv_xor_b32 v{T+1}, v{T+1}, v{T+2}\nv_lshlrev_b32 v{T+1}, 4, v{T+1}")
    e(f"v_add_u32 v{DK}, v{T}, v{T+1}")
    e(f"v_lshlrev_b32 v{DV}, 4, v2\ns_lshl_b32 s40, s{QG}, 11\nv_add_u32 v{DV}, s40, v{DV}")
    e(f"s_lshl_b32 s41, s{QG}, 11\ns_mul_i32 s40, s{KH}, {HB}\ns_add_u32 s41, s41, s40")
    e(f"s_mul_i32 s45, s{KH}, {S*32}")
    def addr_setup():
        e(f"s_mul_i32 s40, s{KH}, {HB}")
        e(f"v_lshrrev_b32 v{T}, 2, v{QL}\nv_and_b32 v{T}, 3, v{T}\nv_xor_b32 v{T}, v{T}, v{HH}\nv_lshlrev_b32 v{T}, 4, v{T}")
        e(f"v_lshlrev_b32 v{T+1}, 6, v{QL}\nv_add_u32 v{T+3}, v{T}, v{T+1}")
        e(f"v_add_u32 v{AK0}, s40, v{T+3}\nv_xor_b32 v{AK1}, 32, v{AK0}")
        e(f"v_and_b32 v{T}, 15, v2\nv_lshrrev_b32 v{T}, 2, v{T}\nv_lshlrev_b32 v{T+1}, 2, v{HH}\nv_add_u32 v{T}, v{T}, v{T+1}\nv_lshlrev_b32 v{T}, 6, v{T}")
        e(f"v_lshrrev_b32 v{T+1}, 4, v2\nv_and_b32 v{T+1}, 1, v{T+1}\nv_lshlrev_b32 v{T+1}, 5, v{T+1}\nv_add_u32 v{T}, v{T}, v{T+1}")
        e(f"v_and_b32 v{T+1}, 3, v2\nv_lshlrev_b32 v{T+1}, 3, v{T+1}\nv_add_u32 v{T}, v{T}, v{T+1}\nv_add_u32 v{T}, {SBK}, v{T}\nv_add_u32 v{AV}, s40, v{T}")
    addr_setup()
    e(f"v_lshrrev_b32 v{T}, 4, v2\nv_lshrrev_b32 v{T+1}, 2, v2\nv_xor_b32 v{T}, v{T}, v{T+1}\nv_and_b32 v{T}, 1, v{T}")
    e(f"v_cmp_eq_u32 vcc, 0, v{T}\nv_mov_b32 v{T+1}, 0x3f803f80")
    e(f"v_cndmask_b32 v{SEL}, 0, v{T+1}, vcc")
    for r in range(1, 4): e(f"v_mov_b32 v{SEL+r}, v{SEL}")
    def zero_acc():
        for r in range(32): e(f"v_mov_b32 v{O+r}, 0")
        for r in range(8): e(f"v_mov_b32 v{LS+r}, 0")
    zero_acc()
    for r in range(8): e(f"v_mov_b32 v{VF+r}, 0")
    for qb in range(2):
        for r in range(8): e(f"v_mov_b32 v{PP[1][qb]+r}, 0")
    e(f"s_cmp_lg_u32 s24, 4\ns_cbranch_scc1 {L('nodep')}")
    e(f"s_lshr_b32 s35, s25, 1\ns_add_u32 s35, s35, {C_QKV}")
    k.poll("att", 35, 16)
    e(f"{L('nodep')}:")
    e("s_barrier")
    k.st(3)
    e(f"v_mov_b32 v{T}, {FLAG}\nv_mov_b32 v{T+1}, 0\nds_write_b32 v{T}, v{T+1}")
    e(f"v_add_u32 v{T}, s39, v{QL}\nv_lshlrev_b32 v{T}, 6, v{T}\nv_lshlrev_b32 v{T+1}, 4, v{HH}\nv_add_u32 v{T}, v{T}, v{T+1}")
    for qb in range(2):
        e(f"buffer_load_dwordx4 {v(Q+8*qb,4)}, v{T}, s[4:7], 0 offen offset:{qb*2048}{SC}")
        e(f"buffer_load_dwordx4 {v(Q+8*qb+4,4)}, v{T}, s[4:7], 0 offen offset:{qb*2048+32}{SC}")
    def dma(slot_sreg):
        e(f"s_add_u32 s43, {slot_sreg}, s41\ns_add_u32 s46, s42, s45")
        e(f"s_mov_b32 m0, s43\nbuffer_load_dwordx4 v{DK}, s[8:11], s46 offen{SC} lds")
        e(f"s_add_u32 m0, s43, {SBK}\nbuffer_load_dwordx4 v{DV}, s[12:15], s46 offen{SC} lds")
        e(f"s_add_u32 s46, s46, 1024\ns_add_u32 m0, s43, 1024\nbuffer_load_dwordx4 v{DK}, s[8:11], s46 offen{SC} lds")
        e(f"s_add_u32 m0, s43, {SBK+1024}\nbuffer_load_dwordx4 v{DV}, s[12:15], s46 offen{SC} lds")
        e(f"s_add_u32 s42, s42, {SBK}")
    def kread(a0, a1, t):
        return [f"ds_read_b128 {v(KF,4)}, v{a0} offset:{t*2048}", f"ds_read_b128 {v(KF+4,4)}, v{a1} offset:{t*2048}"]
    def vread(t):
        return [f"ds_read_b64_tr_b16 {v(VF+4*m+2*hh,2)}, v{AV} offset:{t*2048+(16*m+8*hh)*64}" for m in range(2) for hh in range(2)]
    def qk(qb, dst, c):
        return [f"v_mfma_f32_32x32x16_bf16 {v(dst,16)}, {v(KF,4)}, {v(Q+8*qb,4)}, {c}",
                f"v_mfma_f32_32x32x16_bf16 {v(dst,16)}, {v(KF+4,4)}, {v(Q+8*qb+4,4)}, {v(dst,16)}"]
    def pv(qb, P):
        o, l = O + 16 * qb, LS + 4 * qb
        return [f"v_mfma_f32_32x32x16_bf16 {v(o,16)}, {v(VF,4)}, {v(P,4)}, {v(o,16)}",
                f"v_mfma_f32_16x16x32_bf16 {v(l,4)}, {v(SEL,4)}, {v(P,4)}, {v(l,4)}",
                f"v_mfma_f32_32x32x16_bf16 {v(o,16)}, {v(VF+4,4)}, {v(P+4,4)}, {v(o,16)}",
                f"v_mfma_f32_16x16x32_bf16 {v(l,4)}, {v(SEL,4)}, {v(P+4,4)}, {v(l,4)}"]
    def lane_max16(src, dst, tmp):
        e(f"v_max3_f32 v{dst}, v{src}, v{src+1}, v{src+2}")
        for r in range(3, 15, 2): e(f"v_max3_f32 v{dst}, v{dst}, v{src+r}, v{src+r+1}")
        e(f"v_max_f32 v{dst}, v{dst}, v{src+15}")
        e(f"v_mov_b32 v{tmp}, v{dst}\nv_permlane32_swap_b32 v{tmp}, v{dst}\nv_max_f32 v{dst}, v{dst}, v{tmp}")
    NST = S // 2 // KPS
    HALF = S * 32
    e("s_mov_b32 s42, 0")
    for st in range(NSL - 1):
        e(f"s_mov_b32 s44, {st*SB}")
        dma("s44")
    e(f"s_waitcnt vmcnt({4*(NSL-2)})\ns_barrier")
    e(f"v_xor_b32 v{T+4}, 32, v{T+3}")
    for l in kread(T + 3, T + 4, 0): e(l)
    e("s_waitcnt lgkmcnt(0)")
    for qb in range(2):
        for l in qk(qb, SS[1][qb], "0"): e(l)
    for l in kread(AK0, AK1, 0): e(l)
    for qb in range(2):
        lane_max16(SS[1][qb], T, T + 1)
        e(f"v_add_f32 v{T}, {f32(40.0)}, v{T}")
        for r in range(16): e(f"v_sub_f32 v{NEG+16*qb+r}, 0, v{T}")
    e("s_waitcnt lgkmcnt(0)")
    for qb in range(2):
        for l in qk(qb, SS[0][qb], v(NEG + 16 * qb, 16)): e(l)
    for l in kread(AK0, AK1, 1): e(l)
    e(f"v_add_u32 v{AN0}, {SB}, v{AK0}\nv_add_u32 v{AN1}, {SB}, v{AK1}")
    e(f"s_mov_b32 s47, 1\ns_mov_b32 s48, {SB}\ns_mov_b32 s49, {-(NSL-1)*SB & 0xffffffff:#x}")
    e(f"s_mov_b32 s50, {(NSL-1)*SB}")
    e("s_waitcnt lgkmcnt(0)")
    e(f"s_mov_b32 s44, {NST}")
    e(f"{L('floop')}:")
    for t in range(4):
        par = t & 1
        if t == 2:
            e(f"s_cmp_ge_u32 s42, {HALF}\ns_cbranch_scc1 {L('nodma')}")
            e(f"s_waitcnt vmcnt({4*(NSL-3)})\ns_barrier")
            dma("s50")
            e(f"s_add_u32 s50, s50, {SB}\ns_cmp_eq_u32 s50, {NSL*SB}\ns_cselect_b32 s50, 0, s50")
            e(f"s_branch {L('cont')}")
            e(f"{L('nodma')}:")
            if pf:
                e(f"s_cmp_lg_u32 s44, 2\ns_cbranch_scc1 {L('nopf')}")
                e("s_waitcnt vmcnt(0)")
                e("s_lshl_b32 s56, s2, 3\ns_add_u32 s56, s56, s24")
                for n_, (pp_, nbytes) in enumerate(pf):
                    k.srd(60, pp_, 0, nbytes)
                    e(f"s_lshl_b32 s52, s56, 13\nv_lshlrev_b32 v{T}, 7, v2\nv_add_u32 v{T}, s52, v{T}")
                    e(f"buffer_load_dword v{PFD}, v{T}, s[60:63], 0 offen")
                e(f"{L('nopf')}:")
                e(f"s_waitcnt vmcnt({len(pf)})\ns_barrier")
            else:
                e("s_waitcnt vmcnt(0)\ns_barrier")
            e(f"{L('cont')}:")
        kr = kread(AN0, AN1, (t + 2) % 4) if t >= 2 else kread(AK0, AK1, t + 2)
        vr = vread(t)
        m = []; p = []; E = []; C = []
        for qb in range(2):
            cur = SS[par][qb]; nxt = SS[1 - par][qb]; pc = PP[par][qb]; pp = PP[1 - par][qb]
            m.append(qk(qb, nxt, v(NEG + 16 * qb, 16))); p.append(pv(qb, pp))
            E.append([f"v_exp_f32 v{cur+r}, v{cur+r}" for r in range(16)])
            C.append([f"v_cvt_pk_bf16_f32 v{pc+r}, v{cur+2*r}, v{cur+2*r+1}" for r in range(8)])
        E0, E1 = E; C0, C1 = C
        seq = ["s_waitcnt lgkmcnt(4)",
               m[0][0], E0[0], E0[1], E0[2], E0[3],
               m[1][0], E0[4], E0[5], C0[0], C0[1], E0[6],
               m[0][1], E0[7], C0[2], E0[8], E0[9], C0[3],
               m[1][1], kr[0], kr[1], E0[10], E0[11], E0[12], E0[13], "s_waitcnt lgkmcnt(2)",
               p[0][0], C0[4], C0[5], E0[14], E0[15], C0[6], C0[7],
               p[0][1], E1[0], E1[1],
               p[1][0], E1[2], E1[3], C1[0], C1[1], E1[4],
               p[1][1], E1[5], E1[6],
               p[0][2], E1[7], C1[2], E1[8], E1[9], C1[3],
               p[0][3], E1[10], E1[11],
               p[1][2], vr[0], vr[1], vr[2], vr[3], E1[12], E1[13], C1[4], C1[5], E1[14],
               p[1][3], E1[15], C1[6], C1[7]]
        for l in seq: e(l)
        if t == 3:
            e(f"v_sub_u32 v{T}, v{AN0}, v{AK0}\nv_add_u32 v{AV}, v{AV}, v{T}\nv_mov_b32 v{AK0}, v{AN0}\nv_mov_b32 v{AK1}, v{AN1}")
            e(f"s_add_u32 s47, s47, 1\ns_cmp_eq_u32 s47, {NSL}\ns_cselect_b32 s51, s49, s48\ns_cselect_b32 s47, 0, s47")
            e(f"v_add_u32 v{AN0}, s51, v{AN0}\nv_add_u32 v{AN1}, s51, v{AN1}")
    e(f"s_sub_u32 s44, s44, 1\ns_cmp_lg_u32 s44, 0\ns_cbranch_scc1 {L('floop')}")
    e("s_waitcnt lgkmcnt(0)")
    for qb in range(2):
        for l in pv(qb, PP[1][qb]): e(l)
    k.st(4)
    def merge(safe, M=None):
        e("s_barrier")
        e(f"s_cmp_eq_u32 s{KH}, 0\ns_cbranch_scc1 {L('keep0' + safe)}")
        for r in range(16): e(f"v_swap_b32 v{O+r}, v{O+16+r}")
        e(f"v_swap_b32 v{LS}, v{LS+4}")
        if M is not None: e(f"v_swap_b32 v{M}, v{M+1}")
        e(f"{L('keep0' + safe)}:")
        e(f"s_mul_i32 s52, s24, {5*1024+256}\nv_lshlrev_b32 v{T}, 4, v2\nv_add_u32 v{T}, s52, v{T}")
        for g in range(4): e(f"ds_write_b128 v{T}, {v(O+16+4*g,4)} offset:{g*1024}")
        e(f"v_lshlrev_b32 v{T+1}, 2, v2\nv_add_u32 v{T+1}, s52, v{T+1}")
        e(f"ds_write_b32 v{T+1}, v{LS+4} offset:4096")
        if M is not None: e(f"ds_write_b32 v{T+1}, v{M+1} offset:{4096+256}")
        e("s_waitcnt lgkmcnt(0)\ns_barrier")
        e(f"s_xor_b32 s52, s24, 4\ns_mul_i32 s52, s52, {5*1024+256}\nv_lshlrev_b32 v{T}, 4, v2\nv_add_u32 v{T}, s52, v{T}")
        for g in range(4): e(f"ds_read_b128 {v(O+16+4*g,4)}, v{T} offset:{g*1024}")
        e(f"v_lshlrev_b32 v{T+1}, 2, v2\nv_add_u32 v{T+1}, s52, v{T+1}")
        e(f"ds_read_b32 v{LS+4}, v{T+1} offset:4096")
        if M is not None: e(f"ds_read_b32 v{M+1}, v{T+1} offset:{4096+256}")
        e("s_waitcnt lgkmcnt(0)")
        if M is None:
            for r in range(16): e(f"v_add_f32 v{O+r}, v{O+r}, v{O+16+r}")
            e(f"v_add_f32 v{LS}, v{LS}, v{LS+4}")
        else:
            e(f"v_max_f32 v{T}, v{M}, v{M+1}\nv_sub_f32 v{T+1}, v{M}, v{T}\nv_sub_f32 v{T+2}, v{M+1}, v{T}\nv_exp_f32 v{T+1}, v{T+1}\nv_exp_f32 v{T+2}, v{T+2}")
            for r in range(16): e(f"v_mul_f32 v{O+r}, v{O+r}, v{T+1}\nv_fmac_f32 v{O+r}, v{O+16+r}, v{T+2}")
            e(f"v_mul_f32 v{LS}, v{LS}, v{T+1}\nv_fmac_f32 v{LS}, v{LS+4}, v{T+2}")
        e(f"v_rcp_f32 v{T}, v{LS}")
        for r in range(16): e(f"v_mul_f32 v{O+r}, v{O+r}, v{T}")
    merge("f")
    e(f"v_mov_b32 v{T+1}, {f32(2.0**120)}")
    e(f"v_cmp_nlt_f32 vcc, v{LS}, v{T+1}")
    e("s_mov_b64 s[46:47], vcc")
    e(f"v_add_f32 v{T+2}, abs(v{O}), abs(v{O+1})")
    for r in range(2, 16): e(f"v_add_f32 v{T+2}, v{T+2}, abs(v{O+r})")
    e(f"v_mov_b32 v{T+1}, 0x7f800000\nv_cmp_nlt_f32 vcc, v{T+2}, v{T+1}\ns_or_b64 s[46:47], s[46:47], vcc")
    e(f"s_cmp_eq_u64 s[46:47], 0\ns_cbranch_scc1 {L('okwave')}")
    e(f"v_mov_b32 v{T+1}, {FLAG}\nv_mov_b32 v{T+2}, 1\nds_write_b32 v{T+1}, v{T+2}")
    e(f"{L('okwave')}:")
    e("s_waitcnt lgkmcnt(0)\ns_barrier")
    e(f"v_mov_b32 v{T+1}, {FLAG}\nds_read_b32 v{T+2}, v{T+1}\ns_waitcnt lgkmcnt(0)\nv_readfirstlane_b32 s46, v{T+2}")
    e(f"s_cmp_lg_u32 s46, 0\ns_cbranch_scc1 {L('safe')}")
    e(f"{L('store')}:")
    P = PP[0][0]
    for r in range(8): e(f"v_cvt_pk_bf16_f32 v{P+r}, v{O+2*r}, v{O+2*r+1}")
    for b in (0, 4):
        e(f"v_permlane32_swap_b32 v{P+b}, v{P+b+2}\nv_permlane32_swap_b32 v{P+b+1}, v{P+b+3}")
    e(f"s_lshl_b32 s40, s{KH}, 5\ns_add_u32 s40, s40, s39")
    e(f"v_add_u32 v{T}, s40, v{QL}\nv_lshlrev_b32 v{T}, 11, v{T}\nv_lshlrev_b32 v{T+1}, 4, v{HH}\nv_add_u32 v{T}, v{T}, v{T+1}")
    e("s_lshl_b32 s40, s25, 6")
    e(f"buffer_store_dwordx4 {v(P,4)}, v{T}, s[16:19], s40 offen{SC}\nbuffer_store_dwordx4 {v(P+4,4)}, v{T}, s[16:19], s40 offen offset:32{SC}")
    e(f"s_add_u32 s35, s26, {C_ATT}")
    k.signal("att", 8, 35)
    e(f"s_cmp_ge_u32 s24, 4\ns_cbranch_scc1 {nxt_l}\ns_branch {nxt_c}")
    e(f"{L('safe')}:")
    e("s_waitcnt vmcnt(0)\ns_barrier")
    M = NEG; AL = NEG + 2
    SA = SS[0][0]; P0 = PP[0][0]
    zero_acc()
    e(f"v_mov_b32 v{M}, {f32(-3.0e38)}\nv_mov_b32 v{M+1}, {f32(-3.0e38)}")
    addr_setup()
    e("s_mov_b32 s42, 0")
    e(f"s_mov_b32 s44, {NST}")
    e(f"{L('sloop')}:")
    e("s_barrier")
    e("s_mov_b32 s53, 0")
    dma("s53")
    e("s_waitcnt vmcnt(0)\ns_barrier")
    for t in range(4):
        for l in kread(AK0, AK1, t) + vread(t): e(l)
        e("s_waitcnt lgkmcnt(0)")
        for qb in range(2):
            for l in qk(qb, SA, "0"): e(l)
            lane_max16(SA, T, T + 1)
            e(f"v_max_f32 v{T}, v{T}, v{M+qb}\nv_sub_f32 v{AL}, v{M+qb}, v{T}\nv_exp_f32 v{AL}, v{AL}\nv_mov_b32 v{M+qb}, v{T}")
            for r in range(16): e(f"v_sub_f32 v{SA+r}, v{SA+r}, v{T}\nv_exp_f32 v{SA+r}, v{SA+r}")
            for r in range(16): e(f"v_mul_f32 v{O+16*qb+r}, v{O+16*qb+r}, v{AL}")
            for r in range(4): e(f"v_mul_f32 v{LS+4*qb+r}, v{LS+4*qb+r}, v{AL}")
            for r in range(8): e(f"v_cvt_pk_bf16_f32 v{P0+r}, v{SA+2*r}, v{SA+2*r+1}")
            for l in pv(qb, P0): e(l)
    e(f"s_sub_u32 s44, s44, 1\ns_cmp_lg_u32 s44, 0\ns_cbranch_scc1 {L('sloop')}")
    merge("s", M)
    e("s_barrier")
    e(f"s_branch {L('store')}")

def k_main():
    k = PK("main_kernel", 256, 512, LDS_TOTAL + 16384, 256, 100); e = k.e
    L = k.lab
    e(f"s_cmp_ge_u32 s2, 256\ns_cbranch_scc1 {L('end')}")
    e(f"s_load_dwordx4 s[68:71], s[0:1], {KA_X}\ns_load_dwordx4 s[72:75], s[0:1], {KA_W1}\ns_load_dwordx2 s[76:77], s[0:1], {KA_WO}")
    e(f"s_load_dwordx2 s[78:79], s[0:1], {KA_OUT}\ns_load_dwordx2 s[66:67], s[0:1], {KA_WS}")
    e("v_lshrrev_b32 v1, 6, v0\nv_and_b32 v2, 63, v0\nv_readfirstlane_b32 s24, v1")
    e(f"s_cmp_lg_u32 s24, 0\ns_cbranch_scc1 {L('noinit')}")
    e(f"v_lshlrev_b32 v3, 2, v2\nv_add_u32 v3, {CTL}, v3\nv_mov_b32 v4, 0\nds_write_b32 v3, v4\ns_waitcnt lgkmcnt(0)")
    e(f"{L('noinit')}:")
    e("s_waitcnt lgkmcnt(0)")
    k.srd(CNT, P_WS, WS_CNT, NCNT * 256)
    k.st(0)
    e(f"s_cmp_ge_u32 s24, 4\ns_cbranch_scc1 {L('qkv_l')}")
    gemm_phase(k, "qkv", 1024, 1024, 3072, 192, WS_H, S * D * 2, P_WQKV, D * 3 * D * 2, "qkv", 8, 4, 3, L("att_c"), L("att_l"), None, (1, 2))
    pf = [(P_WO, D * D * 2), (P_W1, D * DFF * 2), (P_W2, D * DFF * 2)] if "nopf" not in OPT else []
    attn_phase(k, L("wo_c"), L("wo_l"), pf)
    gemm_phase(k, "wo", 1024, 1024, 1024, 64, WS_O, S * D * 2, P_WO, D * D * 2, "wo", 4, 8, 4, L("f1_c"), L("f1_l"), (C_ATT, 32, "rb2"), (5, 6))
    gemm_phase(k, "f1", 1024, 1024, DFF, 224, WS_XG, S * D * 2, P_W1, D * DFF * 2, "ffn1", 8, 4, 3, L("f2_c"), L("f2_l"), (C_WO, 16, "rb"), (7, 8))
    gemm_phase(k, "f2", DFF, DFF, 1024, 64, WS_F1, S * DFF * 2, P_W2, DFF * D * 2, "ffn2", 4, 8, 4, L("fin"), L("end"), (C_F1, 16, "rb"), (9, 10))
    e(f"{L('fin')}:")
    if DIAG:
        e("s_waitcnt vmcnt(0)")
        k.st(11)
        e(f"s_cmp_lg_u32 s24, 0\ns_cbranch_scc1 {L('end')}")
        k.srd(12, P_WS, WS_STAMP + 8 * 512 * 16, 256 * 64)
        e(f"v_lshlrev_b32 v3, 2, v2\nv_add_u32 v4, {L_STAMP}, v3\nds_read_b32 v5, v4\ns_lshl_b32 s32, s2, 6\nv_add_u32 v3, s32, v3\ns_waitcnt lgkmcnt(0)")
        e("s_mov_b64 exec, 0xffff\nbuffer_store_dword v5, v3, s[12:15], 0 offen")
    k.finish()
    return k

def k_mod2():
    k = gen.k_mod()
    lines = k.a.lines
    i = next(n for n, l in enumerate(lines) if "buffer_load_ushort" in l)
    ins = Asm()
    ins.e(f"s_cmp_lg_u32 s2, 0\ns_cbranch_scc1 mod_kernel_nozero")
    ins.e(f"s_add_u32 s44, s8, {WS_CNT:#x}\ns_addc_u32 s45, s9, 0\ns_mov_b32 s46, {NCNT*256}\ns_mov_b32 s47, 0x20000")
    ins.e("v_lshlrev_b32 v58, 8, v0\nv_mov_b32 v59, 0\nbuffer_store_dword v59, v58, s[44:47], 0 offen")
    ins.e("s_waitcnt vmcnt(0)")
    ins.e("mod_kernel_nozero:")
    k.a.lines = lines[:i] + ins.lines + lines[i:]
    return k

def build():
    return [k_mod2(), gen.k_h(True), k_main()]

if __name__ == "__main__":
    for a_ in list(sys.argv):
        if a_.startswith("--opt="): OPT = set(a_[6:].split(",")); sys.argv.remove(a_)
    if "--diag" in sys.argv: DIAG = True; gen.DIAG = True; sys.argv.remove("--diag")
    txt = emit(build(), header())
    out = sys.argv[1]
    open(out, "w").write(txt)
    print("wrote", out, len(txt), "bytes")
```

```python
import sys
from asmlib import *
import gen
from gen import (NAME, S, D, DFF, H, KA_X, KA_WQKV, KA_WO, KA_BX, KA_W1, KA_W2, KA_C, KA_WMOD, KA_OUT, KA_DBG, KA_WS,
                 WS_MODP, WS_MODF, WS_H, WS_QKV, WS_O, WS_X1, WS_F1, WS_XG, WS_STAT, WS_UB, WS_STAMP, LOG2E, f32, Kern,
                 wave_sum, round_bf16, interleave, header, emit)

WS_CNT = 0x2f00000
C_QKV, C_ATT, C_WO, C_UB, C_F1 = 0, 16, 24, 40, 56
NCNT = 72
OPT = set()
DIAG = False
SC = " sc1"
P_WS, P_X, P_WQKV, P_W1, P_W2, P_WO, P_OUT = 66, 68, 70, 72, 74, 76, 78
CNT = 28
CTL = 138240
L_SIG = {"qkv": CTL, "att": CTL + 4, "wo": CTL + 8, "ub": CTL + 12, "f1": CTL + 16}
L_DEP = {"wo": CTL + 32, "f1": CTL + 36, "f2": CTL + 40}
L_STAMP = CTL + 64
LDS_TOTAL = CTL + 256
SPIN_MAX = 400000
SLEEP = 2

class PK(Kern):
    def st(self, i, wave=0):
        if not DIAG: return
        e = self.e; n = self.lab(f"st{i}")
        e(f"s_cmp_lg_u32 s24, {wave}\ns_cbranch_scc1 {n}\ns_memrealtime s[98:99]\ns_waitcnt lgkmcnt(0)\nv_mov_b32 v254, s98\nv_mov_b32 v255, {L_STAMP+4*i}\nds_write_b32 v255, v254\ns_waitcnt lgkmcnt(0)\n{n}:")
    def poll(self, tag, cnt_sreg, target, lanes=1):
        e = self.e; L = self.lab
        if cnt_sreg is not None: e(f"s_lshl_b32 s32, s{cnt_sreg}, 8\nv_mov_b32 v6, s32")
        e(f"s_mov_b32 s33, 0\ns_mov_b64 exec, {(1 << lanes) - 1}")
        e(f"{L('poll'+tag)}:")
        e(f"buffer_load_dword v7, v6, {s(CNT,4)}, 0 offen offset:{0 if 'direct' in OPT else 128} sc1\ns_waitcnt vmcnt(0)")
        e(f"v_cmp_gt_u32 vcc, {target}, v7\ns_cmp_eq_u64 vcc, 0\ns_cbranch_scc1 {L('pollx'+tag)}")
        e(f"s_add_u32 s33, s33, 1\ns_cmp_ge_u32 s33, {SPIN_MAX}\ns_cbranch_scc1 {L('pollx'+tag)}")
        e(f"s_sleep {SLEEP}\ns_branch {L('poll'+tag)}")
        e(f"{L('pollx'+tag)}:\ns_mov_b64 exec, -1")
    def dep_wait_loaders(self, tag, cnt_sreg, target, first_wave_cond):
        e = self.e; L = self.lab
        e(f"s_cmp_lg_u32 s24, 4\ns_cbranch_scc1 {L('dw'+tag)}")
        self.poll(tag, cnt_sreg, target)
        e(f"v_mov_b32 v6, {L_DEP[tag]}\nv_mov_b32 v7, 1\nds_write_b32 v6, v7\ns_waitcnt lgkmcnt(0)\ns_branch {L('dwx'+tag)}")
        e(f"{L('dw'+tag)}:")
        e(f"v_mov_b32 v6, {L_DEP[tag]}\ns_mov_b32 s33, 0")
        e(f"{L('dwl'+tag)}:")
        e(f"ds_read_b32 v7, v6\ns_waitcnt lgkmcnt(0)\nv_readfirstlane_b32 s34, v7")
        e(f"s_cmp_lg_u32 s34, 0\ns_cbranch_scc1 {L('dwx'+tag)}")
        e(f"s_add_u32 s33, s33, 1\ns_cmp_ge_u32 s33, {SPIN_MAX*4}\ns_cbranch_scc1 {L('dwx'+tag)}")
        e(f"s_sleep 1\ns_branch {L('dwl'+tag)}")
        e(f"{L('dwx'+tag)}:")
    def arrive(self, tag, cnt_sreg, target):
        e = self.e; L = self.lab
        e(f"s_lshl_b32 s33, s{cnt_sreg}, 8\nv_mov_b32 v6, s33\nv_mov_b32 v7, 1")
        if "direct" in OPT:
            e(f"buffer_atomic_add v7, v6, {s(CNT,4)}, 0 offen sc1")
            return
        e(f"buffer_atomic_add v7, v6, {s(CNT,4)}, 0 offen sc0 sc1\ns_waitcnt vmcnt(0)\nv_readfirstlane_b32 s33, v7")
        e(f"s_cmp_lg_u32 s33, {target-1}\ns_cbranch_scc1 {L('arr'+tag)}")
        e(f"v_mov_b32 v7, {target}\nbuffer_store_dword v7, v6, {s(CNT,4)}, 0 offen offset:128 sc1")
        e(f"{L('arr'+tag)}:")
    def signal(self, tag, nwaves, cnt_sreg, target):
        e = self.e; L = self.lab
        e("s_waitcnt vmcnt(0)")
        e(f"v_mov_b32 v6, {L_SIG[tag]}\nv_mov_b32 v7, 1\ns_mov_b64 exec, 1")
        e("ds_add_rtn_u32 v7, v6, v7\ns_waitcnt lgkmcnt(0)\nv_readfirstlane_b32 s32, v7")
        e(f"s_cmp_lg_u32 s32, {nwaves-1}\ns_cbranch_scc1 {L('sig'+tag)}")
        self.arrive(tag, cnt_sreg, target)
        e(f"{L('sig'+tag)}:\ns_mov_b64 exec, -1")

def tile_map(e, xr, xc):
    nxc = 16 // xc
    e(f"s_and_b32 s36, s2, 7\ns_lshr_b32 s37, s2, 3")
    e(f"s_and_b32 s38, s36, {nxc-1}\ns_lshr_b32 s39, s36, {nxc.bit_length()-1}")
    e(f"s_and_b32 s40, s37, {xc-1}\ns_lshr_b32 s41, s37, {xc.bit_length()-1}")
    e(f"s_mul_i32 s38, s38, {xc}\ns_add_u32 s26, s38, s40")
    e(f"s_mul_i32 s39, s39, {xr}\ns_add_u32 s25, s39, s41")

def gemm_phase(k, tag, K, lda, ldb, BN, srcA, sizeA, pB, sizeB, epi, xr, xc, NS, nxt_c, nxt_l, dep=None, stamps=(None, None)):
    e = k.e
    L = lambda n: k.lab(tag + "_" + n)
    BM, BK = 128, 64
    nA = BM * BK * 2 // 1024; nB = BN * BK * 2 // 1024
    nAw, nBw = nA // 4, nB // 4
    nld = nAw + nBw
    SB = (nA + nB) * 1024
    nk = K // BK
    TM, TN = 64, BN // 2
    mt, nt = TM // 16, TN // 16
    pitch = BN * 2; cpr = BN // 8
    hbits = {4: 2, 6: 1, 2: 1, 0: 3}[(pitch // 32) % 8]
    ACC = 8; NACC = 4 * mt * nt
    FA = ACC + NACC; NF = 4 * (mt + nt); FB = FA + NF
    AX = FB + NF; AW = AX + 2; EP = AW + nt
    XL = 135168
    assert SB * NS <= XL
    perm = epi == "qkv" and "perm" in OPT
    asc = SC if dep else ""
    e(f"{L('c')}:")
    tile_map(e, xr, xc)
    e("s_lshr_b32 s42, s24, 1\ns_and_b32 s43, s24, 1")
    e("v_and_b32 v3, 15, v2\nv_lshrrev_b32 v4, 4, v2")
    e(f"s_lshl_b32 s44, s25, 7\ns_lshl_b32 s45, s42, 6\ns_add_u32 s44, s44, s45")
    e(f"s_mul_i32 s46, s26, {BN}\ns_mul_i32 s45, s43, {TN}\ns_add_u32 s46, s46, s45")
    k.srd(20, P_WS, WS_MODF, 6144 * 4)
    if epi == "qkv": k.srd(12, P_WS, WS_QKV, 96 * S * 64)
    elif epi == "ffn1": k.srd(12, P_WS, WS_F1, S * DFF * 2)
    elif epi == "wo": k.srd(12, P_WS, WS_X1, S * D * 2); k.srd(16, P_X, 0, S * D * 2)
    elif epi == "ffn2": k.srd(12, P_OUT, 0, S * D * 2); k.srd(16, P_WS, WS_X1, S * D * 2)
    G = EP + 2 * mt * nt; GG = G + 4 * nt; W1R = GG + 4 * nt
    if epi in ("wo", "ffn2"):
        rsc = SC if epi == "ffn2" else ""
        e(f"v_add_u32 v5, s44, v3\nv_lshlrev_b32 v5, 11, v5\nv_lshlrev_b32 v6, 3, v4\nv_add_u32 v5, v5, v6")
        e(f"s_lshl_b32 s47, s46, 1\nv_add_u32 v5, s47, v5")
        for j in range(mt):
            e(f"s_mov_b32 s48, {j*16*2048}")
            for i in range(nt):
                e(f"buffer_load_dwordx2 {v(EP+2*(j*nt+i),2)}, v5, s[16:19], s48 offen offset:{i*32}{rsc}")
        gate = (5 if epi == "ffn2" else 2) * 1024
        e(f"v_lshlrev_b32 v6, 4, v4\ns_lshl_b32 s47, s46, 2\ns_add_u32 s47, s47, {gate*4}")
        for i in range(nt):
            e(f"buffer_load_dwordx4 {v(G+4*i,4)}, v6, s[20:23], s47 offen offset:{i*64}")
        if epi == "wo":
            e(f"s_lshl_b32 s47, s46, 2\ns_add_u32 s47, s47, {4096*4}")
            for i in range(nt):
                e(f"buffer_load_dwordx4 {v(GG+4*i,4)}, v6, s[20:23], s47 offen offset:{i*64}")
            e("s_lshr_b32 s58, s2, 4\ns_and_b32 s59, s2, 15")
            e(f"v_mul_u32_u24 v5, {(65536+27)//28}, v2\nv_lshrrev_b32 v5, 16, v5\nv_mul_u32_u24 v6, 28, v5\nv_sub_u32 v6, v2, v6")
            e("s_lshl_b32 s60, s58, 6\ns_lshl_b32 s61, s24, 4\ns_add_u32 s60, s60, s61\nv_add_u32 v5, s60, v5")
            e(f"v_mul_u32_u24 v7, {DFF*2}, v5\nv_lshlrev_b32 v6, 4, v6\nv_add_u32 v7, v7, v6\ns_mul_i32 s60, s59, 448\nv_add_u32 v7, s60, v7")
            k.srd(60, P_W1, 0, D * DFF * 2)
            e("v_cmp_gt_u32 vcc, 56, v2\ns_and_saveexec_b64 s[34:35], vcc")
            for i in range(8):
                e(f"s_mov_b32 s64, {i*2*DFF*2}")
                e(f"buffer_load_dwordx4 {v(W1R+4*i,4)}, v7, s[60:63], s64 offen")
            e("v_lshlrev_b32 v5, 2, v5")
            e(f"s_mov_b32 s64, {4096*4}\ns_mov_b32 s65, {3072*4}")
            for i in range(8):
                e(f"buffer_load_dword v{W1R+32+i}, v5, s[20:23], s64 offen offset:{i*8}")
                e(f"buffer_load_dword v{W1R+40+i}, v5, s[20:23], s65 offen offset:{i*8}")
            e("s_mov_b64 exec, s[34:35]")
    e(f"v_lshrrev_b32 v5, 1, v3\nv_xor_b32 v5, v5, v4\nv_and_b32 v5, 7, v5")
    e(f"v_lshlrev_b32 v5, 4, v5\ns_lshl_b32 s47, s42, 6\nv_add_u32 v6, s47, v3\nv_lshlrev_b32 v6, 7, v6")
    e(f"v_add_u32 v{AX}, v5, v6\nv_xor_b32 v{AX+1}, 64, v{AX}")
    e("v_lshrrev_b32 v5, 2, v3\nv_and_b32 v6, 3, v2")
    e("v_lshlrev_b32 v7, 3, v4\nv_add_u32 v7, v7, v5")
    e(f"v_mul_u32_u24 v7, {pitch}, v7\nv_lshlrev_b32 v6, 3, v6\nv_add_u32 v7, v7, v6\nv_add_u32 v7, {nA*1024}, v7")
    if hbits == 2: e("v_lshrrev_b32 v5, 1, v5\nv_and_b32 v6, 1, v4\nv_lshlrev_b32 v6, 1, v6\nv_or_b32 v5, v5, v6")
    elif hbits == 1: e("v_and_b32 v5, 1, v4")
    else: e("v_and_b32 v6, 1, v4\nv_lshlrev_b32 v6, 2, v6\nv_or_b32 v5, v5, v6")
    e(f"s_mul_i32 s47, s43, {nt}")
    for i in range(nt):
        e(f"s_add_u32 s48, s47, {i}\nv_xor_b32 v6, s48, v5\nv_lshlrev_b32 v6, 5, v6\nv_add_u32 v{AW+i}, v7, v6")
    for r in range(NACC): e(f"v_mov_b32 v{ACC+r}, 0")
    def reads(ss, F):
        xs = [f"ds_read_b128 {v(F+4*j,4)}, v{AX+ss} offset:{j*2048}" for j in range(mt)]
        ws = []
        for i in range(nt):
            for hh in range(2):
                ws.append(f"ds_read_b64_tr_b16 {v(F+4*mt+4*i+2*hh,2)}, v{AW+i} offset:{(ss*32+hh*4)*pitch}")
        return [xs[0]] + ws[:2] + xs[1:] + ws[2:]
    def mfmas(F):
        return [f"v_mfma_f32_16x16x32_bf16 {v(ACC+4*(j*nt+i),4)}, {v(F+4*mt+4*i,4)}, {v(F+4*j,4)}, {v(ACC+4*(j*nt+i),4)}"
                for j in range(mt) for i in range(nt)]
    def mix(mf, rd, extra=()):
        rd = list(rd)
        if len(rd) * 2 <= len(mf) + 4 and len(mf) >= 16:
            return interleave(mf, rd + list(extra))
        out = []; oi = 0; ex = list(extra)
        for m_ in mf:
            out.append(m_)
            for _ in range(2):
                if oi < len(rd): out.append(rd[oi]); oi += 1
            if oi >= len(rd) and ex: out.append(ex.pop(0))
        out += rd[oi:] + ex
        return out
    e(f"s_mov_b32 s49, 0\ns_mov_b32 s54, {SB}\ns_mov_b32 s55, {-(NS-1)*SB & 0xffffffff:#x}")
    e("s_barrier")
    if stamps[0] is not None: k.st(stamps[0])
    for l in reads(0, FA): e(l)
    e(f"s_mov_b32 s50, {nk-1}")
    adv_s = f"s_add_u32 s49, s49, 1\ns_cmp_eq_u32 s49, {NS}\ns_cselect_b32 s51, s55, s54\ns_cselect_b32 s49, 0, s49"
    adv_v = [f"v_add_u32 v{r}, s51, v{r}" for r in [AX, AX + 1] + [AW + i for i in range(nt)]]
    e(f"{L('cloop')}:")
    e(adv_s)
    e("s_waitcnt lgkmcnt(0)")
    seq = interleave(mfmas(FA), reads(1, FB)) if "oldmix" in OPT else mix(mfmas(FA), reads(1, FB))
    last_rd = max(i for i, x in enumerate(seq) if x.startswith("ds_read"))
    tail = [x for x in seq[last_rd + 1:]]
    seq = seq[:last_rd + 1]
    av = list(adv_v)
    for x in tail:
        seq.append(x)
        if av: seq.append(av.pop(0))
    seq += av
    for l in seq: e(l)
    e("s_waitcnt lgkmcnt(0)\ns_barrier")
    for l in (interleave(mfmas(FB), reads(0, FA)) if "oldmix" in OPT else mix(mfmas(FB), reads(0, FA))): e(l)
    e(f"s_sub_u32 s50, s50, 1\ns_cmp_lg_u32 s50, 0\ns_cbranch_scc1 {L('cloop')}")
    e("s_waitcnt lgkmcnt(0)")
    for l in mix(mfmas(FA), reads(1, FB)): e(l)
    e("s_waitcnt lgkmcnt(0)")
    if epi != "qkv": e("s_barrier")
    for l in mfmas(FB): e(l)
    if stamps[1] is not None: k.st(stamps[1])
    T = FA
    def acc(i, j): return ACC + 4 * (j * nt + i)
    def pack_pair(ta, tb, dst):
        e(f"v_cvt_pk_bf16_f32 v{dst}, v{ta}, v{ta+1}\nv_cvt_pk_bf16_f32 v{dst+1}, v{ta+2}, v{ta+3}")
        e(f"v_cvt_pk_bf16_f32 v{dst+2}, v{tb}, v{tb+1}\nv_cvt_pk_bf16_f32 v{dst+3}, v{tb+2}, v{tb+3}")
        e(f"v_permlane16_swap_b32 v{dst}, v{dst+2}\nv_permlane16_swap_b32 v{dst+1}, v{dst+3}")
    e("v_and_b32 v5, 1, v4\nv_lshlrev_b32 v5, 5, v5\nv_lshrrev_b32 v6, 1, v4\nv_lshlrev_b32 v6, 4, v6\nv_add_u32 v5, v5, v6")
    if epi == "qkv":
        e("v_lshlrev_b32 v6, 6, v3\nv_add_u32 v5, v5, v6")
        n = 0
        for p in range(nt // 2):
            if perm:
                e(f"s_mul_i32 s52, s43, 96\ns_add_u32 s52, s52, {32*p}\ns_cmp_lt_u32 s52, 64\ns_cselect_b32 s53, {f32(LOG2E * 32 ** -0.5)}, 1.0")
                e("s_lshr_b32 s54, s52, 6\ns_lshl_b32 s54, s54, 5\ns_bfe_u32 s52, s52, 0x10005\ns_add_u32 s52, s52, s54\ns_lshl_b32 s54, s26, 1\ns_add_u32 s52, s52, s54")
                e("s_lshl_b32 s52, s52, 17\ns_lshl_b32 s54, s44, 6\ns_add_u32 s52, s52, s54")
            else:
                e(f"s_add_u32 s52, s46, {32*p}\ns_cmp_lt_u32 s52, 1024\ns_cselect_b32 s53, {f32(LOG2E * 32 ** -0.5)}, 1.0")
                e(f"s_lshl_b32 s52, s52, 12\ns_lshl_b32 s54, s44, 6\ns_add_u32 s52, s52, s54")
            for j in range(mt):
                ta, tb = acc(2 * p, j), acc(2 * p + 1, j)
                for r in range(4):
                    e(f"v_mul_f32 v{ta+r}, s53, v{ta+r}\nv_mul_f32 v{tb+r}, s53, v{tb+r}")
                d = T + 4 * (n % 8); n += 1
                pack_pair(ta, tb, d)
                e(f"buffer_store_dwordx4 {v(d,4)}, v5, s[12:15], s52 offen offset:{j*1024}{SC}")
        e(f"s_add_u32 s35, s26, {C_QKV}")
        k.signal("qkv", 4, 35, 16)
    elif epi == "ffn1":
        ST = FA; UB = FA + 8; TMP = FA + 64; T = FA + 68
        e(f"s_lshl_b32 s47, s42, 6\nv_add_u32 v6, s47, v3\nv_lshlrev_b32 v6, 3, v6\nv_add_u32 v6, {XL}, v6")
        for j in range(mt): e(f"ds_read_b64 {v(ST+2*j,2)}, v6 offset:{j*128}")
        e(f"s_mul_i32 s47, s43, {TN*8}\ns_add_u32 s47, s47, {XL+1024}\nv_lshlrev_b32 v7, 5, v4\nv_add_u32 v7, s47, v7")
        for i in range(nt):
            e(f"ds_read_b128 {v(UB+8*i,4)}, v7 offset:{i*128}\nds_read_b128 {v(UB+8*i+4,4)}, v7 offset:{i*128+16}")
        ld2 = DFF * 2
        e(f"v_add_u32 v6, s44, v3\nv_mul_u32_u24 v6, {ld2}, v6\ns_lshl_b32 s47, s46, 1\nv_add_u32 v6, s47, v6")
        e("v_add_u32 v5, v5, v6")
        e(f"v_and_b32 v7, 1, v4\nv_mul_u32_u24 v7, {16*ld2}, v7\nv_add_u32 v6, v6, v7")
        e(f"v_lshrrev_b32 v7, 1, v4\nv_lshlrev_b32 v7, 4, v7\nv_add_u32 v6, v6, v7")
        e("s_waitcnt lgkmcnt(0)")
        def ln(i, j):
            u = UB + 8 * i
            for r in range(4):
                a_ = acc(i, j) + r; t_ = TMP + r
                e(f"v_fma_f32 v{t_}, -v{ST+2*j}, v{u+2*r}, v{u+2*r+1}")
            for r in range(4):
                a_ = acc(i, j) + r; t_ = TMP + r
                e(f"v_fma_f32 v{a_}, v{a_}, v{ST+2*j+1}, v{t_}")
            for r in range(4):
                a_ = acc(i, j) + r
                e(f"v_max_f32 v{a_}, 0, v{a_}")
        n = 0
        for j in range(mt):
            e(f"s_mov_b32 s48, {j*16*ld2}")
            for p in range(nt // 2):
                ln(2 * p, j); ln(2 * p + 1, j)
                d = T + 4 * (n % 4); n += 1
                pack_pair(acc(2 * p, j), acc(2 * p + 1, j), d)
                e(f"buffer_store_dwordx4 {v(d,4)}, v5, s[12:15], s48 offen offset:{p*64}{SC}")
            ln(nt - 1, j)
            if j % 2 == 1:
                d = T + 4 * (n % 4); n += 1
                pack_pair(acc(nt - 1, j - 1), acc(nt - 1, j), d)
                e(f"s_mov_b32 s53, {(j-1)*16*ld2}")
                e(f"buffer_store_dwordx4 {v(d,4)}, v6, s[12:15], s53 offen offset:{(nt-1)*32}{SC}")
        if "stf1" in OPT: k.st(12)
        e(f"s_add_u32 s35, s25, {C_F1}")
        k.signal("f1", 4, 35, 16)
        if "stf1" in OPT: k.st(13)
    else:
        e("s_waitcnt vmcnt(0)")
        for j in range(mt):
            for i in range(nt):
                a0 = acc(i, j); x0 = EP + 2 * (j * nt + i)
                for q in range(2):
                    e(f"v_lshlrev_b32 v6, 16, v{x0+q}\nv_and_b32 v7, 0xffff0000, v{x0+q}")
                    e(f"v_fma_f32 v{a0+2*q}, v{a0+2*q}, v{G+4*i+2*q}, v6\nv_fma_f32 v{a0+2*q+1}, v{a0+2*q+1}, v{G+4*i+2*q+1}, v7")
        e(f"v_add_u32 v6, s44, v3\nv_lshlrev_b32 v6, 11, v6\ns_lshl_b32 s47, s46, 1\nv_add_u32 v6, s47, v6\nv_add_u32 v5, v5, v6")
        n = 0
        if epi == "wo":
            k.srd(16, P_WS, WS_XG, S * D * 2); k.srd(60, P_WS, WS_STAT, 32 * S * 8)
            for r in range(4 * nt):
                e(f"v_add_f32 v{GG+r}, 1.0, v{GG+r}"); round_bf16(e, GG + r)
            e(f"s_lshl_b32 s49, s26, 1\ns_add_u32 s49, s49, s43\ns_lshl_b32 s49, s49, 14\ns_lshl_b32 s50, s44, 3\ns_add_u32 s49, s49, s50")
            e("v_lshlrev_b32 v1, 3, v3")
        for j in range(mt):
            e(f"s_mov_b32 s48, {j*16*2048}")
            for p in range(nt // 2):
                d = T + 4 * (n % 8); n += 1
                if epi == "ffn2":
                    pack_pair(acc(2 * p, j), acc(2 * p + 1, j), d)
                    e(f"buffer_store_dwordx4 {v(d,4)}, v5, s[12:15], s48 offen offset:{p*64}")
                    continue
                ta, tb = acc(2 * p, j), acc(2 * p + 1, j)
                d2 = T + 32 + 4 * (j % 2); SM = T + 40 + 2 * (j % 2)
                e(f"v_cvt_pk_bf16_f32 v{d}, v{ta}, v{ta+1}\nv_cvt_pk_bf16_f32 v{d+1}, v{ta+2}, v{ta+3}")
                e(f"v_cvt_pk_bf16_f32 v{d+2}, v{tb}, v{tb+1}\nv_cvt_pk_bf16_f32 v{d+3}, v{tb+2}, v{tb+3}")
                for q, base in enumerate((ta, ta + 2, tb, tb + 2)):
                    e(f"v_lshlrev_b32 v{base}, 16, v{d+q}\nv_and_b32 v{base+1}, 0xffff0000, v{d+q}")
                vals = [ta + r for r in range(4)] + [tb + r for r in range(4)]
                e(f"v_add_f32 v{SM}, v{vals[0]}, v{vals[1]}\nv_mul_f32 v{SM+1}, v{vals[0]}, v{vals[0]}")
                for x_ in vals[2:]: e(f"v_add_f32 v{SM}, v{SM}, v{x_}")
                for x_ in vals[1:]: e(f"v_fmac_f32 v{SM+1}, v{x_}, v{x_}")
                for r in range(4):
                    e(f"v_mul_f32 v{ta+r}, v{ta+r}, v{GG+8*p+r}\nv_mul_f32 v{tb+r}, v{tb+r}, v{GG+8*p+4+r}")
                e(f"v_cvt_pk_bf16_f32 v{d2}, v{ta}, v{ta+1}\nv_cvt_pk_bf16_f32 v{d2+1}, v{ta+2}, v{ta+3}")
                e(f"v_cvt_pk_bf16_f32 v{d2+2}, v{tb}, v{tb+1}\nv_cvt_pk_bf16_f32 v{d2+3}, v{tb+2}, v{tb+3}")
                e(f"v_permlane16_swap_b32 v{d}, v{d+2}\nv_permlane16_swap_b32 v{d+1}, v{d+3}")
                e(f"v_permlane16_swap_b32 v{d2}, v{d2+2}\nv_permlane16_swap_b32 v{d2+1}, v{d2+3}")
                e(f"buffer_store_dwordx4 {v(d2,4)}, v5, s[16:19], s48 offen offset:{p*64}{SC}")
                e(f"buffer_store_dwordx4 {v(d,4)}, v5, s[12:15], s48 offen offset:{p*64}{SC}")
                wave_sum(e, [SM, SM + 1], 6, [4, 5])
                e(f"s_mov_b64 exec, 0xffff\nbuffer_store_dwordx2 {v(SM,2)}, v1, s[60:63], s49 offen offset:{j*128}{SC}\ns_mov_b64 exec, -1")
        if epi == "wo":
            if "stwo" in OPT: k.st(12)
            e(f"s_add_u32 s35, s25, {C_WO}")
            k.signal("wo", 4, 35, 16)
            if "stwo" in OPT: k.st(13)
            UA = ACC
            for r in range(16): e(f"v_mov_b32 v{UA+r}, 0")
            for i in range(8):
                g_ = W1R + 32 + i; s_ = W1R + 40 + i
                e(f"v_add_f32 v{g_}, 1.0, v{g_}"); round_bf16(e, g_)
                for q in range(4):
                    w_ = W1R + 4 * i + q
                    e(f"v_lshlrev_b32 v6, 16, v{w_}\nv_and_b32 v7, 0xffff0000, v{w_}")
                    e(f"v_fmac_f32 v{UA+2*q}, v{g_}, v6\nv_fmac_f32 v{UA+2*q+1}, v{g_}, v7\nv_fmac_f32 v{UA+8+2*q}, v{s_}, v6\nv_fmac_f32 v{UA+8+2*q+1}, v{s_}, v7")
            UL = 139264
            e(f"v_mul_u32_u24 v5, {(65536+27)//28}, v2\nv_lshrrev_b32 v5, 16, v5\nv_mul_u32_u24 v6, 28, v5\nv_sub_u32 v6, v2, v6")
            e(f"s_lshl_b32 s32, s24, 1\nv_add_u32 v5, s32, v5\nv_mul_u32_u24 v5, 1792, v5\nv_lshlrev_b32 v6, 5, v6\nv_add_u32 v5, v5, v6\nv_add_u32 v5, {UL}, v5")
            e("v_cmp_gt_u32 vcc, 56, v2\ns_and_saveexec_b64 s[34:35], vcc")
            e(f"ds_write_b128 v5, {v(UA,4)}\nds_write_b128 v5, {v(UA+4,4)} offset:16\nds_write_b128 v5, {v(UA+8,4)} offset:896\nds_write_b128 v5, {v(UA+12,4)} offset:912")
            e("s_mov_b64 exec, s[34:35]\ns_waitcnt lgkmcnt(0)")
            e(f"v_mov_b32 v6, {L_SIG['ub']}\nv_mov_b32 v7, 1\ns_mov_b64 exec, 1")
            e("ds_add_rtn_u32 v7, v6, v7\ns_waitcnt lgkmcnt(0)\nv_readfirstlane_b32 s32, v7\ns_mov_b64 exec, -1")
            e(f"s_cmp_lg_u32 s32, 3\ns_cbranch_scc1 {L('ubx')}")
            e(f"v_lshlrev_b32 v5, 2, v2\nv_add_u32 v5, {UL}, v5")
            for m_ in range(7):
                for rr in range(8): e(f"ds_read_b32 v{UA+rr}, v5 offset:{rr*1792+m_*256}")
                e("s_waitcnt lgkmcnt(0)")
                for rr in range(1, 8): e(f"v_add_f32 v{UA}, v{UA}, v{UA+rr}")
                e(f"v_mov_b32 v{UA+16+m_}, v{UA}")
            k.srd(16, P_WS, WS_UB, 16 * 2 * DFF * 4)
            e(f"s_mul_i32 s49, s58, {2*DFF*4}\ns_mul_i32 s50, s59, 896\ns_add_u32 s49, s49, s50")
            for m_ in range(7):
                e(f"v_add_u32 v5, {64*m_}, v2\nv_cmp_le_u32 vcc, 224, v5\nv_mov_b32 v6, {DFF*4 - 896}\nv_cndmask_b32 v6, 0, v6, vcc\nv_lshl_add_u32 v5, v5, 2, v6")
                e(f"buffer_store_dword v{UA+16+m_}, v5, s[16:19], s49 offen{SC}")
            e("s_waitcnt vmcnt(0)")
            e(f"s_add_u32 s35, s59, {C_UB}\ns_mov_b64 exec, 1")
            k.arrive("ub", 35, 16)
            e("s_mov_b64 exec, -1")
            e(f"{L('ubx')}:")
    e(f"s_branch {nxt_c}")
    e(f"{L('l')}:")
    tile_map(e, xr, xc)
    k.srd(4, P_WS, srcA, sizeA); k.srd(8, pB, 0, sizeB)
    e("s_sub_u32 s42, s24, 4")
    LA = 8
    lda2, ldb2 = lda * 2, ldb * 2
    e(f"s_lshl_b32 s43, s25, 7\ns_mul_i32 s44, s42, {nAw*8}\ns_add_u32 s43, s43, s44")
    e(f"v_lshrrev_b32 v3, 3, v2\nv_add_u32 v3, s43, v3\ns_mov_b32 s45, {lda2}\nv_mul_lo_u32 v3, s45, v3")
    e("v_and_b32 v4, 7, v2\nv_lshrrev_b32 v5, 4, v2")
    for i in range(nAw):
        e(f"v_xor_b32 v6, {(i&1)*4}, v5\nv_xor_b32 v6, v6, v4\nv_lshlrev_b32 v6, 4, v6\nv_add_u32 v6, v6, v3")
        e(f"v_add_u32 v{LA+i}, {i*8*lda2}, v6")
    magic = (65536 + cpr - 1) // cpr
    assert all((p * magic) >> 16 == p // cpr for p in range(nBw * 64)) and nBw * 64 == 16 * cpr
    e(f"s_mul_i32 s43, s42, {16*ldb2}\ns_mul_i32 s44, s26, {128 if perm else BN*2}\ns_add_u32 s43, s43, s44")
    for i in range(nBw):
        e(f"v_add_u32 v3, {i*64}, v2\nv_mul_u32_u24 v4, {magic}, v3\nv_lshrrev_b32 v4, 16, v4")
        e(f"v_mul_u32_u24 v5, {cpr}, v4\nv_sub_u32 v3, v3, v5")
        if hbits == 2: e("v_and_b32 v5, 2, v4\nv_lshrrev_b32 v6, 1, v4\nv_and_b32 v6, 4, v6\nv_or_b32 v5, v5, v6")
        elif hbits == 1: e("v_lshrrev_b32 v5, 2, v4\nv_and_b32 v5, 2, v5")
        else: e("v_and_b32 v5, 3, v4\nv_lshrrev_b32 v6, 1, v4\nv_and_b32 v6, 4, v6\nv_or_b32 v5, v5, v6\nv_lshlrev_b32 v5, 1, v5")
        e("v_xor_b32 v3, v3, v5")
        if perm: e("v_lshrrev_b32 v5, 3, v3\nv_and_b32 v3, 7, v3\nv_lshlrev_b32 v5, 7, v5\nv_add_u32 v3, v3, v5")
        e(f"v_lshlrev_b32 v3, 4, v3\ns_mov_b32 s45, {ldb2}\nv_mul_lo_u32 v4, s45, v4\nv_add_u32 v3, v3, v4")
        e(f"v_add_u32 v{LA+nAw+i}, s43, v3")
    e(f"s_mul_i32 s46, s42, {nAw*1024}")
    e(f"s_mul_i32 s47, s42, {nBw*1024}\ns_add_u32 s47, s47, {nA*1024}")
    def issue_x(lds_s, off_s):
        for i in range(nAw):
            e(f"s_add_u32 m0, {lds_s}, {i*1024}")
            e(f"buffer_load_dwordx4 v{LA+i}, s[4:7], {off_s} offen{asc} lds")
    def issue_w(lds_s, off_s):
        for i in range(nBw):
            e(f"s_add_u32 m0, {lds_s}, {i*1024}")
            e(f"buffer_load_dwordx4 v{LA+nAw+i}, s[8:11], {off_s} offen lds")
    def w_prologue():
        for st in range(NS - 1):
            e(f"s_add_u32 s52, s47, {st*SB}\ns_mov_b32 s49, {st*BK*ldb2}")
            issue_w("s52", "s49")
    if dep:
        base, target, kind = dep
        e(f"s_lshr_b32 s35, s25, 1\ns_add_u32 s35, s35, {base}" if kind == "rb2" else f"s_add_u32 s35, s25, {base}")
        if "wfirst" in OPT:
            w_prologue()
            k.dep_wait_loaders(tag, 35, target, None)
        else:
            e(f"s_cmp_eq_u32 s24, 4\ns_cbranch_scc1 {L('w4a')}")
            w_prologue()
            e(f"{L('w4a')}:")
            k.dep_wait_loaders(tag, 35, target, None)
            e(f"s_cmp_lg_u32 s24, 4\ns_cbranch_scc1 {L('w4b')}")
            w_prologue()
            e(f"{L('w4b')}:")
        if tag == "f1" and "stwo" in OPT: k.st(14, 4)
        if tag == "wo" and "statt" in OPT: k.st(15, 4)
        if tag == "f2" and "stf1" in OPT: k.st(14, 4)
    else:
        w_prologue()
    for st in range(NS - 1):
        e(f"s_add_u32 s51, s46, {st*SB}\ns_mov_b32 s48, {st*BK*2}")
        issue_x("s51", "s48")
    e(f"s_mov_b32 s48, {(NS-1)*BK*2}\ns_mov_b32 s49, {(NS-1)*BK*ldb2}\ns_mov_b32 s50, {(NS-1)*SB}")
    def issue():
        e("s_add_u32 s51, s50, s46\ns_add_u32 s52, s50, s47")
        issue_x("s51", "s48"); issue_w("s52", "s49")
        e(f"s_add_u32 s48, s48, {BK*2}\ns_add_u32 s49, s49, {BK*ldb2}")
        e(f"s_add_u32 s50, s50, {SB}\ns_cmp_eq_u32 s50, {SB*NS}\ns_cselect_b32 s50, 0, s50")
    e(f"s_waitcnt vmcnt({nAw*(NS-2)})\ns_barrier")
    issue()
    e(f"s_waitcnt vmcnt({nAw*(NS-3) + nld})\ns_barrier" if NS >= 3 else "")
    issue()
    for t in range(2, NS - 1):
        e(f"s_waitcnt vmcnt({nAw*(NS-2-t) + nld*t})\ns_barrier")
        issue()
    done = max(2, NS - 1)
    e(f"s_mov_b32 s53, {nk-(NS-1)-done}")
    e(f"{L('lloop')}:")
    e(f"s_waitcnt vmcnt({nld*(NS-2)})\ns_barrier")
    issue()
    e(f"s_sub_u32 s53, s53, 1\ns_cmp_lg_u32 s53, 0\ns_cbranch_scc1 {L('lloop')}")
    nx = 0
    for t in range(NS - 1):
        e(f"s_waitcnt vmcnt({nld*(NS-2-t)+nx})\ns_barrier")
        if epi == "ffn1" and t == 0:
            nx = 32
            k.srd(56, P_WS, WS_STAT, 32 * S * 8); k.srd(60, P_WS, WS_UB, 16 * 2 * DFF * 4)
            e(f"s_cmp_ge_u32 s42, 2\ns_cbranch_scc1 {L('ubld')}")
            e(f"s_lshl_b32 s43, s42, 6\nv_add_u32 v3, s43, v2\ns_lshl_b32 s44, s25, 7\nv_add_u32 v4, s44, v3\nv_lshlrev_b32 v4, 3, v4")
            for sl in range(32):
                e(f"s_mov_b32 s45, {sl*S*8}\nbuffer_load_dwordx2 {v(32+2*sl,2)}, v4, s[56:59], s45 offen{SC}")
            e(f"s_branch {L('ldd')}")
            e(f"{L('ubld')}:")
            e(f"s_add_u32 s35, s26, {C_UB}")
            k.poll(tag + "u", 35, 16)
            e(f"s_sub_u32 s43, s42, 2\ns_lshl_b32 s43, s43, 6\nv_add_u32 v3, s43, v2")
            e(f"s_mul_i32 s44, s26, {BN*4}\nv_lshlrev_b32 v4, 3, v3\nv_add_u32 v4, s44, v4")
            for kg in range(16):
                for w_ in range(2):
                    e(f"s_mov_b32 s45, {(kg*2+w_)*DFF*4}\nbuffer_load_dwordx2 {v(32+4*kg+2*w_,2)}, v4, s[60:63], s45 offen{SC}")
            e(f"{L('ldd')}:")
    if epi == "ffn1":
        e("s_waitcnt vmcnt(0)")
        e(f"s_cmp_ge_u32 s42, 2\ns_cbranch_scc1 {L('ubred')}")
        for sl in range(1, 32): e(f"v_add_f32 v32, v32, v{32+2*sl}\nv_add_f32 v33, v33, v{33+2*sl}")
        e(f"v_mul_f32 v32, {f32(1/1024)}, v32\nv_mul_f32 v33, {f32(1/1024)}, v33")
        e(f"v_fma_f32 v33, -v32, v32, v33\nv_max_f32 v33, 0, v33\nv_add_f32 v33, {f32(1e-5)}, v33\nv_rsq_f32 v33, v33")
        e("v_mul_f32 v32, v32, v33")
        e(f"v_lshlrev_b32 v4, 3, v3\nv_add_u32 v4, {XL}, v4\nds_write_b64 v4, v[32:33]")
        e(f"s_branch {L('redd')}")
        e(f"{L('ubred')}:")
        for kg in range(1, 16):
            for q in range(4): e(f"v_add_f32 v{32+q}, v{32+q}, v{32+4*kg+q}")
        e("v_swap_b32 v33, v34")
        e(f"v_lshlrev_b32 v4, 4, v3\nv_add_u32 v4, {XL+1024}, v4\nv_cmp_gt_u32 vcc, 112, v3\ns_and_saveexec_b64 s[44:45], vcc")
        e(f"ds_write_b128 v4, v[32:35]\ns_mov_b64 exec, s[44:45]")
        e(f"{L('redd')}:")
        e("s_waitcnt lgkmcnt(0)")
    if epi != "qkv": e("s_barrier")
    e(f"s_branch {nxt_l}")

def attn_phase(k, nxt_c, nxt_l, pf):
    e = k.e
    L = lambda n: k.lab("att_" + n)
    NSL = 3; KPS = 128; SBK = KPS * 64
    HB = 2 * SBK; SB = 2 * HB
    FLAG = NSL * SB
    e(f"{L('c')}:\n{L('l')}:")
    e("s_and_b32 s36, s2, 7\ns_lshr_b32 s37, s2, 3\ns_lshl_b32 s36, s36, 2\ns_lshr_b32 s38, s37, 3\ns_add_u32 s25, s36, s38")
    e("s_and_b32 s26, s37, 7")
    e("s_and_b32 s34, s24, 3\ns_lshr_b32 s27, s24, 2")
    e("s_mov_b32 s57, s34")
    e("s_lshl_b32 s40, s25, 17")
    e(f"s_add_u32 s32, s{P_WS}, {WS_QKV:#x}\ns_addc_u32 s33, s{P_WS+1}, 0\ns_add_u32 s32, s32, s40\ns_addc_u32 s33, s33, 0")
    k.srd(4, 32, 0, S * 64); k.srd(8, 32, 32 * S * 64, S * 64); k.srd(12, 32, 64 * S * 64, S * 64)
    k.srd(16, P_WS, WS_O, S * D * 2)
    QG, KH = 57, 27
    Q = 4 + 4; KF = 24; VF = 32
    NEG = 40; O = 72; LS = 104; SEL = 112
    SS = [[116, 132], [148, 164]]
    PP = [[180, 188], [196, 204]]
    AK0, AK1, AV, AN0, AN1, DK, DV = 212, 213, 214, 215, 216, 217, 218
    HH, QL = 219, 220
    T = 221
    PFD = 230
    e(f"v_and_b32 v{QL}, 31, v2\nv_lshrrev_b32 v{HH}, 5, v2")
    e(f"s_lshl_b32 s39, s26, 8\ns_lshl_b32 s40, s{QG}, 6\ns_add_u32 s39, s39, s40")
    e(f"v_lshrrev_b32 v{T}, 2, v2\ns_lshl_b32 s40, s{QG}, 5\nv_add_u32 v{T}, s40, v{T}\nv_lshlrev_b32 v{T}, 6, v{T}")
    e(f"v_and_b32 v{T+1}, 3, v2\nv_lshrrev_b32 v{T+2}, 4, v2\nv_xor_b32 v{T+1}, v{T+1}, v{T+2}\nv_lshlrev_b32 v{T+1}, 4, v{T+1}")
    e(f"v_add_u32 v{DK}, v{T}, v{T+1}")
    e(f"v_lshlrev_b32 v{DV}, 4, v2\ns_lshl_b32 s40, s{QG}, 11\nv_add_u32 v{DV}, s40, v{DV}")
    e(f"s_lshl_b32 s41, s{QG}, 11\ns_mul_i32 s40, s{KH}, {HB}\ns_add_u32 s41, s41, s40")
    e(f"s_mul_i32 s45, s{KH}, {S*32}")
    def addr_setup():
        e(f"s_mul_i32 s40, s{KH}, {HB}")
        e(f"v_lshrrev_b32 v{T}, 2, v{QL}\nv_and_b32 v{T}, 3, v{T}\nv_xor_b32 v{T}, v{T}, v{HH}\nv_lshlrev_b32 v{T}, 4, v{T}")
        e(f"v_lshlrev_b32 v{T+1}, 6, v{QL}\nv_add_u32 v{T+3}, v{T}, v{T+1}")
        e(f"v_add_u32 v{AK0}, s40, v{T+3}\nv_xor_b32 v{AK1}, 32, v{AK0}")
        e(f"v_and_b32 v{T}, 15, v2\nv_lshrrev_b32 v{T}, 2, v{T}\nv_lshlrev_b32 v{T+1}, 2, v{HH}\nv_add_u32 v{T}, v{T}, v{T+1}\nv_lshlrev_b32 v{T}, 6, v{T}")
        e(f"v_lshrrev_b32 v{T+1}, 4, v2\nv_and_b32 v{T+1}, 1, v{T+1}\nv_lshlrev_b32 v{T+1}, 5, v{T+1}\nv_add_u32 v{T}, v{T}, v{T+1}")
        e(f"v_and_b32 v{T+1}, 3, v2\nv_lshlrev_b32 v{T+1}, 3, v{T+1}\nv_add_u32 v{T}, v{T}, v{T+1}\nv_add_u32 v{T}, {SBK}, v{T}\nv_add_u32 v{AV}, s40, v{T}")
    addr_setup()
    e(f"v_lshrrev_b32 v{T}, 4, v2\nv_lshrrev_b32 v{T+1}, 2, v2\nv_xor_b32 v{T}, v{T}, v{T+1}\nv_and_b32 v{T}, 1, v{T}")
    e(f"v_cmp_eq_u32 vcc, 0, v{T}\nv_mov_b32 v{T+1}, 0x3f803f80")
    e(f"v_cndmask_b32 v{SEL}, 0, v{T+1}, vcc")
    for r in range(1, 4): e(f"v_mov_b32 v{SEL+r}, v{SEL}")
    def zero_acc():
        for r in range(32): e(f"v_mov_b32 v{O+r}, 0")
        for r in range(8): e(f"v_mov_b32 v{LS+r}, 0")
    zero_acc()
    for r in range(8): e(f"v_mov_b32 v{VF+r}, 0")
    for qb in range(2):
        for r in range(8): e(f"v_mov_b32 v{PP[1][qb]+r}, 0")
    e(f"s_cmp_lg_u32 s24, 4\ns_cbranch_scc1 {L('nodep')}")
    if "perm" in OPT:
        e(f"s_lshr_b32 s35, s25, 1\ns_add_u32 s35, s35, {C_QKV}")
        k.poll("att", 35, 16)
    else:
        e(f"v_lshlrev_b32 v6, 10, v2\ns_lshl_b32 s35, s25, 5\nv_add_u32 v6, s35, v6\nv_mul_u32_u24 v6, {(65536 + 191) // 192}, v6\nv_lshrrev_b32 v6, 16, v6")
        e(f"v_add_u32 v6, {C_QKV}, v6\nv_lshlrev_b32 v6, 8, v6")
        assert all((((32 * h + 1024 * w) * ((65536 + 191) // 192)) >> 16) == (32 * h + 1024 * w) // 192 for h in range(32) for w in range(3))
        k.poll("att", None, 16, lanes=3)
    e(f"{L('nodep')}:")
    e("s_barrier")
    k.st(3)
    e(f"v_mov_b32 v{T}, {FLAG}\nv_mov_b32 v{T+1}, 0\nds_write_b32 v{T}, v{T+1}")
    e(f"v_add_u32 v{T}, s39, v{QL}\nv_lshlrev_b32 v{T}, 6, v{T}\nv_lshlrev_b32 v{T+1}, 4, v{HH}\nv_add_u32 v{T}, v{T}, v{T+1}")
    for qb in range(2):
        e(f"buffer_load_dwordx4 {v(Q+8*qb,4)}, v{T}, s[4:7], 0 offen offset:{qb*2048}{SC}")
        e(f"buffer_load_dwordx4 {v(Q+8*qb+4,4)}, v{T}, s[4:7], 0 offen offset:{qb*2048+32}{SC}")
    def dma(slot_sreg):
        e(f"s_add_u32 s43, {slot_sreg}, s41\ns_add_u32 s46, s42, s45")
        e(f"s_mov_b32 m0, s43\nbuffer_load_dwordx4 v{DK}, s[8:11], s46 offen{SC} lds")
        e(f"s_add_u32 m0, s43, {SBK}\nbuffer_load_dwordx4 v{DV}, s[12:15], s46 offen{SC} lds")
        e(f"s_add_u32 s46, s46, 1024\ns_add_u32 m0, s43, 1024\nbuffer_load_dwordx4 v{DK}, s[8:11], s46 offen{SC} lds")
        e(f"s_add_u32 m0, s43, {SBK+1024}\nbuffer_load_dwordx4 v{DV}, s[12:15], s46 offen{SC} lds")
        e(f"s_add_u32 s42, s42, {SBK}")
    def kread(a0, a1, t):
        return [f"ds_read_b128 {v(KF,4)}, v{a0} offset:{t*2048}", f"ds_read_b128 {v(KF+4,4)}, v{a1} offset:{t*2048}"]
    def vread(t):
        return [f"ds_read_b64_tr_b16 {v(VF+4*m+2*hh,2)}, v{AV} offset:{t*2048+(16*m+8*hh)*64}" for m in range(2) for hh in range(2)]
    def qk(qb, dst, c):
        return [f"v_mfma_f32_32x32x16_bf16 {v(dst,16)}, {v(KF,4)}, {v(Q+8*qb,4)}, {c}",
                f"v_mfma_f32_32x32x16_bf16 {v(dst,16)}, {v(KF+4,4)}, {v(Q+8*qb+4,4)}, {v(dst,16)}"]
    def pv(qb, P):
        o, l = O + 16 * qb, LS + 4 * qb
        return [f"v_mfma_f32_32x32x16_bf16 {v(o,16)}, {v(VF,4)}, {v(P,4)}, {v(o,16)}",
                f"v_mfma_f32_16x16x32_bf16 {v(l,4)}, {v(SEL,4)}, {v(P,4)}, {v(l,4)}",
                f"v_mfma_f32_32x32x16_bf16 {v(o,16)}, {v(VF+4,4)}, {v(P+4,4)}, {v(o,16)}",
                f"v_mfma_f32_16x16x32_bf16 {v(l,4)}, {v(SEL,4)}, {v(P+4,4)}, {v(l,4)}"]
    def lane_max16(src, dst, tmp):
        e(f"v_max3_f32 v{dst}, v{src}, v{src+1}, v{src+2}")
        for r in range(3, 15, 2): e(f"v_max3_f32 v{dst}, v{dst}, v{src+r}, v{src+r+1}")
        e(f"v_max_f32 v{dst}, v{dst}, v{src+15}")
        e(f"v_mov_b32 v{tmp}, v{dst}\nv_permlane32_swap_b32 v{tmp}, v{dst}\nv_max_f32 v{dst}, v{dst}, v{tmp}")
    NST = S // 2 // KPS
    HALF = S * 32
    e("s_mov_b32 s42, 0")
    for st in range(NSL - 1):
        e(f"s_mov_b32 s44, {st*SB}")
        dma("s44")
    e(f"s_waitcnt vmcnt({4*(NSL-2)})\ns_barrier")
    e(f"v_xor_b32 v{T+4}, 32, v{T+3}")
    for l in kread(T + 3, T + 4, 0): e(l)
    e("s_waitcnt lgkmcnt(0)")
    for qb in range(2):
        for l in qk(qb, SS[1][qb], "0"): e(l)
    for l in kread(AK0, AK1, 0): e(l)
    for qb in range(2):
        lane_max16(SS[1][qb], T, T + 1)
        e(f"v_add_f32 v{T}, {f32(40.0)}, v{T}")
        for r in range(16): e(f"v_sub_f32 v{NEG+16*qb+r}, 0, v{T}")
    e("s_waitcnt lgkmcnt(0)")
    for qb in range(2):
        for l in qk(qb, SS[0][qb], v(NEG + 16 * qb, 16)): e(l)
    for l in kread(AK0, AK1, 1): e(l)
    e(f"v_add_u32 v{AN0}, {SB}, v{AK0}\nv_add_u32 v{AN1}, {SB}, v{AK1}")
    e(f"s_mov_b32 s47, 1\ns_mov_b32 s48, {SB}\ns_mov_b32 s49, {-(NSL-1)*SB & 0xffffffff:#x}")
    e(f"s_mov_b32 s50, {(NSL-1)*SB}")
    e("s_waitcnt lgkmcnt(0)")
    e(f"s_mov_b32 s44, {NST}")
    e(f"{L('floop')}:")
    for t in range(4):
        par = t & 1
        if t == 2:
            e(f"s_cmp_ge_u32 s42, {HALF}\ns_cbranch_scc1 {L('nodma')}")
            e(f"s_waitcnt vmcnt({4*(NSL-3)})\ns_barrier")
            dma("s50")
            e(f"s_add_u32 s50, s50, {SB}\ns_cmp_eq_u32 s50, {NSL*SB}\ns_cselect_b32 s50, 0, s50")
            e(f"s_branch {L('cont')}")
            e(f"{L('nodma')}:")
            if pf:
                e(f"s_cmp_lg_u32 s44, 2\ns_cbranch_scc1 {L('nopf')}")
                e("s_waitcnt vmcnt(0)")
                e("s_lshl_b32 s56, s2, 3\ns_add_u32 s56, s56, s24")
                for n_, (pp_, nbytes) in enumerate(pf):
                    k.srd(60, pp_, 0, nbytes)
                    e(f"s_lshl_b32 s52, s56, 13\nv_lshlrev_b32 v{T}, 7, v2\nv_add_u32 v{T}, s52, v{T}")
                    e(f"buffer_load_dword v{PFD}, v{T}, s[60:63], 0 offen")
                e(f"{L('nopf')}:")
                e(f"s_waitcnt vmcnt({len(pf)})\ns_barrier")
            else:
                e("s_waitcnt vmcnt(0)\ns_barrier")
            e(f"{L('cont')}:")
        kr = kread(AN0, AN1, (t + 2) % 4) if t >= 2 else kread(AK0, AK1, t + 2)
        vr = vread(t)
        m = []; p = []; E = []; C = []
        for qb in range(2):
            cur = SS[par][qb]; nxt = SS[1 - par][qb]; pc = PP[par][qb]; pp = PP[1 - par][qb]
            m.append(qk(qb, nxt, v(NEG + 16 * qb, 16))); p.append(pv(qb, pp))
            E.append([f"v_exp_f32 v{cur+r}, v{cur+r}" for r in range(16)])
            C.append([f"v_cvt_pk_bf16_f32 v{pc+r}, v{cur+2*r}, v{cur+2*r+1}" for r in range(8)])
        E0, E1 = E; C0, C1 = C
        seq = ["s_waitcnt lgkmcnt(4)",
               m[0][0], E0[0], E0[1], E0[2], E0[3],
               m[1][0], E0[4], E0[5], C0[0], C0[1], E0[6],
               m[0][1], E0[7], C0[2], E0[8], E0[9], C0[3],
               m[1][1], kr[0], kr[1], E0[10], E0[11], E0[12], E0[13], "s_waitcnt lgkmcnt(2)",
               p[0][0], C0[4], C0[5], E0[14], E0[15], C0[6], C0[7],
               p[0][1], E1[0], E1[1],
               p[1][0], E1[2], E1[3], C1[0], C1[1], E1[4],
               p[1][1], E1[5], E1[6],
               p[0][2], E1[7], C1[2], E1[8], E1[9], C1[3],
               p[0][3], E1[10], E1[11],
               p[1][2], vr[0], vr[1], vr[2], vr[3], E1[12], E1[13], C1[4], C1[5], E1[14],
               p[1][3], E1[15], C1[6], C1[7]]
        for l in seq: e(l)
        if t == 3:
            e(f"v_sub_u32 v{T}, v{AN0}, v{AK0}\nv_add_u32 v{AV}, v{AV}, v{T}\nv_mov_b32 v{AK0}, v{AN0}\nv_mov_b32 v{AK1}, v{AN1}")
            e(f"s_add_u32 s47, s47, 1\ns_cmp_eq_u32 s47, {NSL}\ns_cselect_b32 s51, s49, s48\ns_cselect_b32 s47, 0, s47")
            e(f"v_add_u32 v{AN0}, s51, v{AN0}\nv_add_u32 v{AN1}, s51, v{AN1}")
    e(f"s_sub_u32 s44, s44, 1\ns_cmp_lg_u32 s44, 0\ns_cbranch_scc1 {L('floop')}")
    e("s_waitcnt lgkmcnt(0)")
    for qb in range(2):
        for l in pv(qb, PP[1][qb]): e(l)
    k.st(4)
    def merge(safe, M=None):
        e("s_barrier")
        e(f"s_cmp_eq_u32 s{KH}, 0\ns_cbranch_scc1 {L('keep0' + safe)}")
        for r in range(16): e(f"v_swap_b32 v{O+r}, v{O+16+r}")
        e(f"v_swap_b32 v{LS}, v{LS+4}")
        if M is not None: e(f"v_swap_b32 v{M}, v{M+1}")
        e(f"{L('keep0' + safe)}:")
        e(f"s_mul_i32 s52, s24, {5*1024+256}\nv_lshlrev_b32 v{T}, 4, v2\nv_add_u32 v{T}, s52, v{T}")
        for g in range(4): e(f"ds_write_b128 v{T}, {v(O+16+4*g,4)} offset:{g*1024}")
        e(f"v_lshlrev_b32 v{T+1}, 2, v2\nv_add_u32 v{T+1}, s52, v{T+1}")
        e(f"ds_write_b32 v{T+1}, v{LS+4} offset:4096")
        if M is not None: e(f"ds_write_b32 v{T+1}, v{M+1} offset:{4096+256}")
        e("s_waitcnt lgkmcnt(0)\ns_barrier")
        e(f"s_xor_b32 s52, s24, 4\ns_mul_i32 s52, s52, {5*1024+256}\nv_lshlrev_b32 v{T}, 4, v2\nv_add_u32 v{T}, s52, v{T}")
        for g in range(4): e(f"ds_read_b128 {v(O+16+4*g,4)}, v{T} offset:{g*1024}")
        e(f"v_lshlrev_b32 v{T+1}, 2, v2\nv_add_u32 v{T+1}, s52, v{T+1}")
        e(f"ds_read_b32 v{LS+4}, v{T+1} offset:4096")
        if M is not None: e(f"ds_read_b32 v{M+1}, v{T+1} offset:{4096+256}")
        e("s_waitcnt lgkmcnt(0)")
        if M is None:
            for r in range(16): e(f"v_add_f32 v{O+r}, v{O+r}, v{O+16+r}")
            e(f"v_add_f32 v{LS}, v{LS}, v{LS+4}")
        else:
            e(f"v_max_f32 v{T}, v{M}, v{M+1}\nv_sub_f32 v{T+1}, v{M}, v{T}\nv_sub_f32 v{T+2}, v{M+1}, v{T}\nv_exp_f32 v{T+1}, v{T+1}\nv_exp_f32 v{T+2}, v{T+2}")
            for r in range(16): e(f"v_mul_f32 v{O+r}, v{O+r}, v{T+1}\nv_fmac_f32 v{O+r}, v{O+16+r}, v{T+2}")
            e(f"v_mul_f32 v{LS}, v{LS}, v{T+1}\nv_fmac_f32 v{LS}, v{LS+4}, v{T+2}")
        e(f"v_rcp_f32 v{T}, v{LS}")
        for r in range(16): e(f"v_mul_f32 v{O+r}, v{O+r}, v{T}")
    merge("f")
    e(f"v_mov_b32 v{T+1}, {f32(2.0**120)}")
    e(f"v_cmp_nlt_f32 vcc, v{LS}, v{T+1}")
    e("s_mov_b64 s[46:47], vcc")
    e(f"v_add_f32 v{T+2}, abs(v{O}), abs(v{O+1})")
    for r in range(2, 16): e(f"v_add_f32 v{T+2}, v{T+2}, abs(v{O+r})")
    e(f"v_mov_b32 v{T+1}, 0x7f800000\nv_cmp_nlt_f32 vcc, v{T+2}, v{T+1}\ns_or_b64 s[46:47], s[46:47], vcc")
    e(f"s_cmp_eq_u64 s[46:47], 0\ns_cbranch_scc1 {L('okwave')}")
    e(f"v_mov_b32 v{T+1}, {FLAG}\nv_mov_b32 v{T+2}, 1\nds_write_b32 v{T+1}, v{T+2}")
    e(f"{L('okwave')}:")
    e("s_waitcnt lgkmcnt(0)\ns_barrier")
    e(f"v_mov_b32 v{T+1}, {FLAG}\nds_read_b32 v{T+2}, v{T+1}\ns_waitcnt lgkmcnt(0)\nv_readfirstlane_b32 s46, v{T+2}")
    e(f"s_cmp_lg_u32 s46, 0\ns_cbranch_scc1 {L('safe')}")
    e(f"{L('store')}:")
    if "statt" in OPT: k.st(12)
    P = PP[0][0]
    for r in range(8): e(f"v_cvt_pk_bf16_f32 v{P+r}, v{O+2*r}, v{O+2*r+1}")
    for b in (0, 4):
        e(f"v_permlane32_swap_b32 v{P+b}, v{P+b+2}\nv_permlane32_swap_b32 v{P+b+1}, v{P+b+3}")
    for r in range(4): e(f"v_permlane16_swap_b32 v{P+r}, v{P+4+r}")
    e(f"s_lshl_b32 s40, s{KH}, 5\ns_add_u32 s40, s40, s39")
    e(f"v_and_b32 v{T}, 15, v2\nv_add_u32 v{T}, s40, v{T}\nv_lshlrev_b32 v{T}, 11, v{T}")
    e(f"v_lshrrev_b32 v{T+1}, 4, v2\nv_and_b32 v{T+2}, 1, v{T+1}\nv_lshlrev_b32 v{T+2}, 5, v{T+2}\nv_lshrrev_b32 v{T+1}, 1, v{T+1}\nv_lshlrev_b32 v{T+1}, 4, v{T+1}")
    e(f"v_add_u32 v{T}, v{T}, v{T+1}\nv_add_u32 v{T}, v{T}, v{T+2}")
    e(f"s_lshl_b32 s40, s25, 6\ns_add_u32 s41, s40, {16*2048}")
    e(f"buffer_store_dwordx4 {v(P,4)}, v{T}, s[16:19], s40 offen{SC}\nbuffer_store_dwordx4 {v(P+4,4)}, v{T}, s[16:19], s41 offen{SC}")
    if "statt" in OPT: k.st(13)
    e(f"s_add_u32 s35, s26, {C_ATT}")
    k.signal("att", 8, 35, 32)
    if "statt" in OPT: k.st(14, 7)
    e(f"s_cmp_ge_u32 s24, 4\ns_cbranch_scc1 {nxt_l}\ns_branch {nxt_c}")
    e(f"{L('safe')}:")
    e("s_waitcnt vmcnt(0)\ns_barrier")
    M = NEG; AL = NEG + 2
    SA = SS[0][0]; P0 = PP[0][0]
    zero_acc()
    e(f"v_mov_b32 v{M}, {f32(-3.0e38)}\nv_mov_b32 v{M+1}, {f32(-3.0e38)}")
    addr_setup()
    e("s_mov_b32 s42, 0")
    e(f"s_mov_b32 s44, {NST}")
    e(f"{L('sloop')}:")
    e("s_barrier")
    e("s_mov_b32 s53, 0")
    dma("s53")
    e("s_waitcnt vmcnt(0)\ns_barrier")
    for t in range(4):
        for l in kread(AK0, AK1, t) + vread(t): e(l)
        e("s_waitcnt lgkmcnt(0)")
        for qb in range(2):
            for l in qk(qb, SA, "0"): e(l)
            lane_max16(SA, T, T + 1)
            e(f"v_max_f32 v{T}, v{T}, v{M+qb}\nv_sub_f32 v{AL}, v{M+qb}, v{T}\nv_exp_f32 v{AL}, v{AL}\nv_mov_b32 v{M+qb}, v{T}")
            for r in range(16): e(f"v_sub_f32 v{SA+r}, v{SA+r}, v{T}\nv_exp_f32 v{SA+r}, v{SA+r}")
            for r in range(16): e(f"v_mul_f32 v{O+16*qb+r}, v{O+16*qb+r}, v{AL}")
            for r in range(4): e(f"v_mul_f32 v{LS+4*qb+r}, v{LS+4*qb+r}, v{AL}")
            for r in range(8): e(f"v_cvt_pk_bf16_f32 v{P0+r}, v{SA+2*r}, v{SA+2*r+1}")
            for l in pv(qb, P0): e(l)
    e(f"s_sub_u32 s44, s44, 1\ns_cmp_lg_u32 s44, 0\ns_cbranch_scc1 {L('sloop')}")
    merge("s", M)
    e("s_barrier")
    e(f"s_branch {L('store')}")

def k_main():
    k = PK("main_kernel", 256, 512, LDS_TOTAL + 16384, 256, 100); e = k.e
    L = k.lab
    e(f"s_cmp_ge_u32 s2, 256\ns_cbranch_scc1 {L('end')}")
    e(f"s_load_dwordx4 s[68:71], s[0:1], {KA_X}\ns_load_dwordx4 s[72:75], s[0:1], {KA_W1}\ns_load_dwordx2 s[76:77], s[0:1], {KA_WO}")
    e(f"s_load_dwordx2 s[78:79], s[0:1], {KA_OUT}\ns_load_dwordx2 s[66:67], s[0:1], {KA_WS}")
    e("v_lshrrev_b32 v1, 6, v0\nv_and_b32 v2, 63, v0\nv_readfirstlane_b32 s24, v1")
    e(f"s_cmp_lg_u32 s24, 0\ns_cbranch_scc1 {L('noinit')}")
    e(f"v_lshlrev_b32 v3, 2, v2\nv_add_u32 v3, {CTL}, v3\nv_mov_b32 v4, 0\nds_write_b32 v3, v4\ns_waitcnt lgkmcnt(0)")
    e(f"{L('noinit')}:")
    e("s_waitcnt lgkmcnt(0)")
    k.srd(CNT, P_WS, WS_CNT, NCNT * 256)
    k.st(0)
    e(f"s_cmp_ge_u32 s24, 4\ns_cbranch_scc1 {L('qkv_l')}")
    gemm_phase(k, "qkv", 1024, 1024, 3072, 192, WS_H, S * D * 2, P_WQKV, D * 3 * D * 2, "qkv", 8, 4, 3, L("att_c"), L("att_l"), None, (1, 2))
    pf = [(P_WO, D * D * 2), (P_W1, D * DFF * 2), (P_W2, D * DFF * 2)] if "nopf" not in OPT else []
    attn_phase(k, L("wo_c"), L("wo_l"), pf)
    gemm_phase(k, "wo", 1024, 1024, 1024, 64, WS_O, S * D * 2, P_WO, D * D * 2, "wo", 4, 8, 4, L("f1_c"), L("f1_l"), (C_ATT, 32, "rb2"), (5, 6))
    gemm_phase(k, "f1", 1024, 1024, DFF, 224, WS_XG, S * D * 2, P_W1, D * DFF * 2, "ffn1", 8, 4, 3, L("f2_c"), L("f2_l"), (C_WO, 16, "rb"), (7, 8))
    gemm_phase(k, "f2", DFF, DFF, 1024, 64, WS_F1, S * DFF * 2, P_W2, DFF * D * 2, "ffn2", 4, 8, 4, L("fin"), L("end"), (C_F1, 16, "rb"), (9, 10))
    e(f"{L('fin')}:")
    if DIAG:
        e("s_waitcnt vmcnt(0)")
        k.st(11)
        e(f"s_cmp_lg_u32 s24, 0\ns_cbranch_scc1 {L('end')}")
        k.srd(12, P_WS, WS_STAMP + 8 * 512 * 16, 256 * 64)
        e(f"v_lshlrev_b32 v3, 2, v2\nv_add_u32 v4, {L_STAMP}, v3\nds_read_b32 v5, v4\ns_lshl_b32 s32, s2, 6\nv_add_u32 v3, s32, v3\ns_waitcnt lgkmcnt(0)")
        e("s_mov_b64 exec, 0xffff\nbuffer_store_dword v5, v3, s[12:15], 0 offen")
    k.finish()
    return k

def k_mod2():
    k = gen.k_mod()
    lines = k.a.lines
    i = next(n for n, l in enumerate(lines) if "buffer_load_ushort" in l)
    ins = Asm()
    ins.e(f"s_cmp_lg_u32 s2, 0\ns_cbranch_scc1 mod_kernel_nozero")
    ins.e(f"s_add_u32 s44, s8, {WS_CNT:#x}\ns_addc_u32 s45, s9, 0\ns_mov_b32 s46, {NCNT*256}\ns_mov_b32 s47, 0x20000")
    ins.e("v_lshlrev_b32 v58, 7, v0\nv_mov_b32 v59, 0\nbuffer_store_dword v59, v58, s[44:47], 0 offen")
    ins.e("s_waitcnt vmcnt(0)")
    ins.e("mod_kernel_nozero:")
    k.a.lines = lines[:i] + ins.lines + lines[i:]
    return k

def build():
    return [k_mod2(), gen.k_h(True), k_main()]

if __name__ == "__main__":
    for a_ in list(sys.argv):
        if a_.startswith("--opt="): OPT = set(a_[6:].split(",")); sys.argv.remove(a_)
        if a_.startswith("--sleep="): SLEEP = int(a_[8:]); sys.argv.remove(a_)
    if "--diag" in sys.argv: DIAG = True; gen.DIAG = True; sys.argv.remove("--diag")
    txt = emit(build(), header())
    out = sys.argv[1]
    open(out, "w").write(txt)
    print("wrote", out, len(txt), "bytes")
```

```python
import sys
from asmlib import *
import gen
from gen import (NAME, S, D, DFF, H, KA_X, KA_WQKV, KA_WO, KA_BX, KA_W1, KA_W2, KA_C, KA_WMOD, KA_OUT, KA_DBG, KA_WS,
                 WS_MODP, WS_MODF, WS_H, WS_QKV, WS_O, WS_X1, WS_F1, WS_XG, WS_STAT, WS_UB, WS_STAMP, LOG2E, f32, Kern,
                 wave_sum, round_bf16, interleave, header, emit)

WS_CNT = 0x2f00000
C_QKV, C_ATT, C_WO, C_UB, C_F1, C_H = 0, 16, 24, 40, 56, 72
NCNT = 88
FL_BASE = NCNT * 256 + 1536
FL_BASE = (FL_BASE + 255) // 256 * 256
FL = {"qkv": FL_BASE, "att": FL_BASE + 256 * 128, "wo": FL_BASE + 256 * 128 + 256 * 256, "f1": FL_BASE + 256 * 256 + 2 * 256 * 128, "f2": FL_BASE + 256 * 256 + 3 * 256 * 128}
CNT_BYTES = FL_BASE + 256 * 256 + 4 * 256 * 128
OPT = set()
DIAG = False
SC = " sc1"
SCS = " sc1"
P_WS, P_X, P_WQKV, P_W1, P_W2, P_WO, P_OUT = 66, 68, 70, 72, 74, 76, 78
CNT = 28
CTL = 138240
L_SIG = {"qkv": CTL, "att": CTL + 4, "wo": CTL + 8, "ub": CTL + 12, "f1": CTL + 16, "h": CTL + 20}
L_DEP = {"wo": CTL + 32, "f1": CTL + 36, "f2": CTL + 40, "qkv": CTL + 44}
L_STAMP = CTL + 64
LDS_TOTAL = CTL + 256
SPIN_MAX = 400000
SLEEP = 2
PFSTAGE = 7

def exec_mask(n):
    if n < 32: return f"s_mov_b64 exec, {(1 << n) - 1:#x}"
    return f"s_mov_b32 exec_lo, -1\ns_mov_b32 exec_hi, {(1 << (n - 32)) - 1:#x}"

class PK(Kern):
    def st(self, i, wave=0):
        if not DIAG: return
        e = self.e; n = self.lab(f"st{i}")
        e(f"s_cmp_lg_u32 s24, {wave}\ns_cbranch_scc1 {n}\ns_memrealtime s[98:99]\ns_waitcnt lgkmcnt(0)\nv_mov_b32 v254, s98\nv_mov_b32 v255, {L_STAMP+4*i}\nds_write_b32 v255, v254\ns_waitcnt lgkmcnt(0)\n{n}:")
    def code_touch(self, tag, frm, to, part_sreg, nparts, per):
        if "nocode" in OPT: return 0
        e = self.e; here = self.lab("pc" + tag)
        e(f"s_getpc_b64 s[90:91]\n{here}:\ns_add_u32 s90, s90, {frm}-{here}\ns_addc_u32 s91, s91, 0")
        e(f"s_mul_i32 s92, s{part_sreg}, {per*8192}\nv_lshlrev_b32 v252, 7, v2\nv_add_u32 v252, s92, v252")
        for i in range(per):
            if i: e("v_add_u32 v252, 8192, v252")
            e(f"v_min_u32 v251, {to}-{frm}-4, v252\nglobal_load_dword v253, v251, s[90:91]")
        return per
    def poll(self, tag, cnt_sreg, target, lanes=1):
        e = self.e; L = self.lab
        if cnt_sreg is not None: e(f"s_lshl_b32 s32, s{cnt_sreg}, 8\nv_mov_b32 v6, s32")
        e(f"s_mov_b32 s33, 0\ns_mov_b64 exec, {(1 << lanes) - 1}")
        e(f"{L('poll'+tag)}:")
        e(f"buffer_load_dword v7, v6, {s(CNT,4)}, 0 offen offset:{0 if 'direct' in OPT else 128} sc1\ns_waitcnt vmcnt(0)")
        e(f"v_cmp_gt_u32 vcc, {target}, v7\ns_cmp_eq_u64 vcc, 0\ns_cbranch_scc1 {L('pollx'+tag)}")
        e(f"s_add_u32 s33, s33, 1\ns_cmp_ge_u32 s33, {SPIN_MAX}\ns_cbranch_scc1 {L('pollx'+tag)}")
        e(f"s_sleep {SLEEP}\ns_branch {L('poll'+tag)}")
        e(f"{L('pollx'+tag)}:\ns_mov_b64 exec, -1")
    def dep_wait_loaders(self, tag, cnt_sreg, target, first_wave_cond):
        e = self.e; L = self.lab
        e(f"s_cmp_lg_u32 s24, 4\ns_cbranch_scc1 {L('dw'+tag)}")
        if "noflags" in OPT: self.poll(tag, cnt_sreg, target)
        else:
            e(f"s_lshl_b32 s34, s25, 4\ns_add_u32 s34, s34, s26\ns_lshl_b32 s34, s34, 7\ns_add_u32 s34, s34, {FL[tag]}")
            self.wait_flags(tag, target, 34)
        e(f"v_mov_b32 v6, {L_DEP[tag]}\nv_mov_b32 v7, 1\nds_write_b32 v6, v7\ns_waitcnt lgkmcnt(0)\ns_branch {L('dwx'+tag)}")
        e(f"{L('dw'+tag)}:")
        e(f"v_mov_b32 v6, {L_DEP[tag]}\ns_mov_b32 s33, 0")
        e(f"{L('dwl'+tag)}:")
        e(f"ds_read_b32 v7, v6\ns_waitcnt lgkmcnt(0)\nv_readfirstlane_b32 s34, v7")
        e(f"s_cmp_lg_u32 s34, 0\ns_cbranch_scc1 {L('dwx'+tag)}")
        e(f"s_add_u32 s33, s33, 1\ns_cmp_ge_u32 s33, {SPIN_MAX*4}\ns_cbranch_scc1 {L('dwx'+tag)}")
        e(f"s_sleep 1\ns_branch {L('dwl'+tag)}")
        e(f"{L('dwx'+tag)}:")
    def arrive(self, tag, cnt_sreg, target):
        e = self.e; L = self.lab
        e(f"s_lshl_b32 s33, s{cnt_sreg}, 8\nv_mov_b32 v6, s33\nv_mov_b32 v7, 1")
        if "direct" in OPT:
            e(f"buffer_atomic_add v7, v6, {s(CNT,4)}, 0 offen sc1")
            return
        e(f"buffer_atomic_add v7, v6, {s(CNT,4)}, 0 offen sc0 sc1\ns_waitcnt vmcnt(0)\nv_readfirstlane_b32 s33, v7")
        e(f"s_cmp_lg_u32 s33, {target-1}\ns_cbranch_scc1 {L('arr'+tag)}")
        e(f"v_mov_b32 v7, {target}\nbuffer_store_dword v7, v6, {s(CNT,4)}, 0 offen offset:128 sc1")
        e(f"{L('arr'+tag)}:")
    def signal(self, tag, nwaves, cnt_sreg, target, flags=None):
        e = self.e; L = self.lab
        e("s_waitcnt vmcnt(0)")
        e(f"v_mov_b32 v6, {L_SIG[tag]}\nv_mov_b32 v7, 1\ns_mov_b64 exec, 1")
        e("ds_add_rtn_u32 v7, v6, v7\ns_waitcnt lgkmcnt(0)\nv_readfirstlane_b32 s32, v7\ns_mov_b64 exec, -1")
        e(f"s_cmp_lg_u32 s32, {nwaves-1}\ns_cbranch_scc1 {L('sig'+tag)}")
        if flags is not None and "noflags" not in OPT:
            n, offs = flags
            offs()
            e("v_mov_b32 v7, 1\n" + exec_mask(n))
            e(f"buffer_store_dword v7, v6, {s(CNT,4)}, 0 offen sc1")
        else:
            e("s_mov_b64 exec, 1")
            self.arrive(tag, cnt_sreg, target)
        e(f"{L('sig'+tag)}:\ns_mov_b64 exec, -1")
    def wait_flags(self, tag, n, base_sreg):
        e = self.e; L = self.lab
        e(f"v_lshlrev_b32 v6, 2, v2\nv_add_u32 v6, s{base_sreg}, v6\ns_mov_b32 s33, 0")
        e(exec_mask(n))
        e(f"{L('poll'+tag)}:")
        e(f"buffer_load_dword v7, v6, {s(CNT,4)}, 0 offen sc1\ns_waitcnt vmcnt(0)")
        e(f"v_cmp_ne_u32 vcc, 1, v7\ns_cmp_eq_u64 vcc, 0\ns_cbranch_scc1 {L('pollx'+tag)}")
        e(f"s_add_u32 s33, s33, 1\ns_cmp_ge_u32 s33, {SPIN_MAX}\ns_cbranch_scc1 {L('pollx'+tag)}")
        e(f"s_sleep {SLEEP}\ns_branch {L('poll'+tag)}")
        e(f"{L('pollx'+tag)}:\ns_mov_b64 exec, -1")

def tile_map(e, xr, xc):
    nxc = 16 // xc
    e(f"s_and_b32 s36, s2, 7\ns_lshr_b32 s37, s2, 3")
    e(f"s_and_b32 s38, s36, {nxc-1}\ns_lshr_b32 s39, s36, {nxc.bit_length()-1}")
    e(f"s_and_b32 s40, s37, {xc-1}\ns_lshr_b32 s41, s37, {xc.bit_length()-1}")
    e(f"s_mul_i32 s38, s38, {xc}\ns_add_u32 s26, s38, s40")
    e(f"s_mul_i32 s39, s39, {xr}\ns_add_u32 s25, s39, s41")

def gemm_phase(k, tag, K, lda, ldb, BN, srcA, sizeA, pB, sizeB, epi, xr, xc, NS, nxt_c, nxt_l, dep=None, stamps=(None, None), hbar=False):
    e = k.e
    L = lambda n: k.lab(tag + "_" + n)
    BM, BK = 128, 64
    nA = BM * BK * 2 // 1024; nB = BN * BK * 2 // 1024
    nAw, nBw = nA // 4, nB // 4
    nld = nAw + nBw
    SB = (nA + nB) * 1024
    nk = K // BK
    TM, TN = 64, BN // 2
    mt, nt = TM // 16, TN // 16
    pitch = BN * 2; cpr = BN // 8
    hbits = {4: 2, 6: 1, 2: 1, 0: 3}[(pitch // 32) % 8]
    ACC = 8; NACC = 4 * mt * nt
    FA = ACC + NACC; NF = 4 * (mt + nt); FB = FA + NF
    AX = FB + NF; AW = AX + 2; EP = AW + nt
    XL = 135168
    assert SB * NS <= XL
    perm = epi == "qkv" and "perm" in OPT
    asc = SC if dep else ""
    e(f"{L('c')}:")
    tile_map(e, xr, xc)
    e("s_lshr_b32 s42, s24, 1\ns_and_b32 s43, s24, 1")
    e("v_and_b32 v3, 15, v2\nv_lshrrev_b32 v4, 4, v2")
    e(f"s_lshl_b32 s44, s25, 7\ns_lshl_b32 s45, s42, 6\ns_add_u32 s44, s44, s45")
    e(f"s_mul_i32 s46, s26, {BN}\ns_mul_i32 s45, s43, {TN}\ns_add_u32 s46, s46, s45")
    k.srd(20, P_WS, WS_MODF, 6144 * 4)
    if epi == "qkv": k.srd(12, P_WS, WS_QKV, 96 * S * 64)
    elif epi == "ffn1": k.srd(12, P_WS, WS_F1, S * DFF * 2)
    elif epi == "wo": k.srd(12, P_WS, WS_X1, S * D * 2); k.srd(16, P_X, 0, S * D * 2)
    elif epi == "ffn2": k.srd(12, P_OUT, 0, S * D * 2); k.srd(16, P_WS, WS_X1, S * D * 2)
    G = EP + 2 * mt * nt; GG = G + 4 * nt; W1R = GG + 4 * nt
    if epi in ("wo", "ffn2"):
        rsc = SC if epi == "ffn2" else ""
        e(f"v_add_u32 v5, s44, v3\nv_lshlrev_b32 v5, 11, v5\nv_lshlrev_b32 v6, 3, v4\nv_add_u32 v5, v5, v6")
        e(f"s_lshl_b32 s47, s46, 1\nv_add_u32 v5, s47, v5")
        for j in range(mt):
            e(f"s_mov_b32 s48, {j*16*2048}")
            for i in range(nt):
                e(f"buffer_load_dwordx2 {v(EP+2*(j*nt+i),2)}, v5, s[16:19], s48 offen offset:{i*32}{rsc}")
        gate = (5 if epi == "ffn2" else 2) * 1024
        e(f"v_lshlrev_b32 v6, 4, v4\ns_lshl_b32 s47, s46, 2\ns_add_u32 s47, s47, {gate*4}")
        for i in range(nt):
            e(f"buffer_load_dwordx4 {v(G+4*i,4)}, v6, s[20:23], s47 offen offset:{i*64}{SC}")
        if epi == "wo":
            e(f"s_lshl_b32 s47, s46, 2\ns_add_u32 s47, s47, {4096*4}")
            for i in range(nt):
                e(f"buffer_load_dwordx4 {v(GG+4*i,4)}, v6, s[20:23], s47 offen offset:{i*64}{SC}")
            e("s_lshr_b32 s58, s2, 4\ns_and_b32 s59, s2, 15")
            e(f"v_mul_u32_u24 v5, {(65536+27)//28}, v2\nv_lshrrev_b32 v5, 16, v5\nv_mul_u32_u24 v6, 28, v5\nv_sub_u32 v6, v2, v6")
            e("s_lshl_b32 s60, s58, 6\ns_lshl_b32 s61, s24, 4\ns_add_u32 s60, s60, s61\nv_add_u32 v5, s60, v5")
            e(f"v_mul_u32_u24 v7, {DFF*2}, v5\nv_lshlrev_b32 v6, 4, v6\nv_add_u32 v7, v7, v6\ns_mul_i32 s60, s59, 448\nv_add_u32 v7, s60, v7")
            k.srd(60, P_W1, 0, D * DFF * 2)
            e("v_cmp_gt_u32 vcc, 56, v2\ns_and_saveexec_b64 s[34:35], vcc")
            for i in range(8):
                e(f"s_mov_b32 s64, {i*2*DFF*2}")
                e(f"buffer_load_dwordx4 {v(W1R+4*i,4)}, v7, s[60:63], s64 offen")
            e("v_lshlrev_b32 v5, 2, v5")
            e(f"s_mov_b32 s64, {4096*4}\ns_mov_b32 s65, {3072*4}")
            for i in range(8):
                e(f"buffer_load_dword v{W1R+32+i}, v5, s[20:23], s64 offen offset:{i*8}{SC}")
                e(f"buffer_load_dword v{W1R+40+i}, v5, s[20:23], s65 offen offset:{i*8}{SC}")
            e("s_mov_b64 exec, s[34:35]")
    e(f"v_lshrrev_b32 v5, 1, v3\nv_xor_b32 v5, v5, v4\nv_and_b32 v5, 7, v5")
    e(f"v_lshlrev_b32 v5, 4, v5\ns_lshl_b32 s47, s42, 6\nv_add_u32 v6, s47, v3\nv_lshlrev_b32 v6, 7, v6")
    e(f"v_add_u32 v{AX}, v5, v6\nv_xor_b32 v{AX+1}, 64, v{AX}")
    e("v_lshrrev_b32 v5, 2, v3\nv_and_b32 v6, 3, v2")
    e("v_lshlrev_b32 v7, 3, v4\nv_add_u32 v7, v7, v5")
    e(f"v_mul_u32_u24 v7, {pitch}, v7\nv_lshlrev_b32 v6, 3, v6\nv_add_u32 v7, v7, v6\nv_add_u32 v7, {nA*1024}, v7")
    if hbits == 2: e("v_lshrrev_b32 v5, 1, v5\nv_and_b32 v6, 1, v4\nv_lshlrev_b32 v6, 1, v6\nv_or_b32 v5, v5, v6")
    elif hbits == 1: e("v_and_b32 v5, 1, v4")
    else: e("v_and_b32 v6, 1, v4\nv_lshlrev_b32 v6, 2, v6\nv_or_b32 v5, v5, v6")
    e(f"s_mul_i32 s47, s43, {nt}")
    for i in range(nt):
        e(f"s_add_u32 s48, s47, {i}\nv_xor_b32 v6, s48, v5\nv_lshlrev_b32 v6, 5, v6\nv_add_u32 v{AW+i}, v7, v6")
    for r in range(NACC): e(f"v_mov_b32 v{ACC+r}, 0")
    def reads(ss, F):
        xs = [f"ds_read_b128 {v(F+4*j,4)}, v{AX+ss} offset:{j*2048}" for j in range(mt)]
        ws = []
        for i in range(nt):
            for hh in range(2):
                ws.append(f"ds_read_b64_tr_b16 {v(F+4*mt+4*i+2*hh,2)}, v{AW+i} offset:{(ss*32+hh*4)*pitch}")
        return [xs[0]] + ws[:2] + xs[1:] + ws[2:]
    def mfmas(F):
        return [f"v_mfma_f32_16x16x32_bf16 {v(ACC+4*(j*nt+i),4)}, {v(F+4*mt+4*i,4)}, {v(F+4*j,4)}, {v(ACC+4*(j*nt+i),4)}"
                for j in range(mt) for i in range(nt)]
    def mix(mf, rd, extra=()):
        rd = list(rd)
        if len(rd) * 2 <= len(mf) + 4 and len(mf) >= 16:
            return interleave(mf, rd + list(extra))
        out = []; oi = 0; ex = list(extra)
        for m_ in mf:
            out.append(m_)
            for _ in range(2):
                if oi < len(rd): out.append(rd[oi]); oi += 1
            if oi >= len(rd) and ex: out.append(ex.pop(0))
        out += rd[oi:] + ex
        return out
    if epi == "wo": k.code_touch("w", k.lab("f1_c"), k.lab("f2_c"), 24, 4, 1)
    if epi == "ffn1": k.code_touch("f", k.lab("f1_cloop"), k.lab("end"), 24, 4, 1)
    e(f"s_mov_b32 s49, 0\ns_mov_b32 s54, {SB}\ns_mov_b32 s55, {-(NS-1)*SB & 0xffffffff:#x}")
    e("s_barrier")
    if stamps[0] is not None: k.st(stamps[0])
    for l in reads(0, FA): e(l)
    e(f"s_mov_b32 s50, {nk-1}")
    adv_s = f"s_add_u32 s49, s49, 1\ns_cmp_eq_u32 s49, {NS}\ns_cselect_b32 s51, s55, s54\ns_cselect_b32 s49, 0, s49"
    adv_v = [f"v_add_u32 v{r}, s51, v{r}" for r in [AX, AX + 1] + [AW + i for i in range(nt)]]
    e(f"{L('cloop')}:")
    e(adv_s)
    e("s_waitcnt lgkmcnt(0)")
    seq = interleave(mfmas(FA), reads(1, FB)) if "oldmix" in OPT else mix(mfmas(FA), reads(1, FB))
    last_rd = max(i for i, x in enumerate(seq) if x.startswith("ds_read"))
    tail = [x for x in seq[last_rd + 1:]]
    seq = seq[:last_rd + 1]
    av = list(adv_v)
    for x in tail:
        seq.append(x)
        if av: seq.append(av.pop(0))
    seq += av
    for l in seq: e(l)
    e("s_waitcnt lgkmcnt(0)\ns_barrier")
    for l in (interleave(mfmas(FB), reads(0, FA)) if "oldmix" in OPT else mix(mfmas(FB), reads(0, FA))): e(l)
    e(f"s_sub_u32 s50, s50, 1\ns_cmp_lg_u32 s50, 0\ns_cbranch_scc1 {L('cloop')}")
    e("s_waitcnt lgkmcnt(0)")
    for l in mix(mfmas(FA), reads(1, FB)): e(l)
    e("s_waitcnt lgkmcnt(0)")
    if epi != "qkv": e("s_barrier")
    for l in mfmas(FB): e(l)
    if stamps[1] is not None: k.st(stamps[1])
    T = FA
    def acc(i, j): return ACC + 4 * (j * nt + i)
    def pack_pair(ta, tb, dst):
        e(f"v_cvt_pk_bf16_f32 v{dst}, v{ta}, v{ta+1}\nv_cvt_pk_bf16_f32 v{dst+1}, v{ta+2}, v{ta+3}")
        e(f"v_cvt_pk_bf16_f32 v{dst+2}, v{tb}, v{tb+1}\nv_cvt_pk_bf16_f32 v{dst+3}, v{tb+2}, v{tb+3}")
        e(f"v_permlane16_swap_b32 v{dst}, v{dst+2}\nv_permlane16_swap_b32 v{dst+1}, v{dst+3}")
    e("v_and_b32 v5, 1, v4\nv_lshlrev_b32 v5, 5, v5\nv_lshrrev_b32 v6, 1, v4\nv_lshlrev_b32 v6, 4, v6\nv_add_u32 v5, v5, v6")
    if epi == "qkv":
        e("v_lshlrev_b32 v6, 6, v3\nv_add_u32 v5, v5, v6")
        n = 0
        for p in range(nt // 2):
            if perm:
                e(f"s_mul_i32 s52, s43, 96\ns_add_u32 s52, s52, {32*p}\ns_cmp_lt_u32 s52, 64\ns_cselect_b32 s53, {f32(LOG2E * 32 ** -0.5)}, 1.0")
                e("s_lshr_b32 s54, s52, 6\ns_lshl_b32 s54, s54, 5\ns_bfe_u32 s52, s52, 0x10005\ns_add_u32 s52, s52, s54\ns_lshl_b32 s54, s26, 1\ns_add_u32 s52, s52, s54")
                e("s_lshl_b32 s52, s52, 17\ns_lshl_b32 s54, s44, 6\ns_add_u32 s52, s52, s54")
            else:
                e(f"s_add_u32 s52, s46, {32*p}\ns_cmp_lt_u32 s52, 1024\ns_cselect_b32 s53, {f32(LOG2E * 32 ** -0.5)}, 1.0")
                e(f"s_lshl_b32 s52, s52, 12\ns_lshl_b32 s54, s44, 6\ns_add_u32 s52, s52, s54")
            for j in range(mt):
                ta, tb = acc(2 * p, j), acc(2 * p + 1, j)
                for r in range(4):
                    e(f"v_mul_f32 v{ta+r}, s53, v{ta+r}\nv_mul_f32 v{tb+r}, s53, v{tb+r}")
                d = T + 4 * (n % 8); n += 1
                pack_pair(ta, tb, d)
                e(f"buffer_store_dwordx4 {v(d,4)}, v5, s[12:15], s52 offen offset:{j*1024}{SCS}")
        e(f"s_add_u32 s35, s26, {C_QKV}")
        k.signal("qkv", 4, 35, 16, (48, lambda: e(f"s_mul_i32 s33, s26, 6\nv_lshrrev_b32 v6, 3, v2\nv_add_u32 v6, s33, v6\nv_lshrrev_b32 v7, 5, v6\nv_and_b32 v6, 31, v6\nv_lshlrev_b32 v6, 11, v6"
                                                        f"\nv_lshlrev_b32 v7, 6, v7\nv_add_u32 v6, v6, v7\nv_and_b32 v7, 7, v2\nv_lshlrev_b32 v7, 8, v7\nv_add_u32 v6, v6, v7"
                                                        f"\ns_lshl_b32 s33, s25, 2\ns_add_u32 s33, s33, {FL['att']}\nv_add_u32 v6, s33, v6")))
    elif epi == "ffn1":
        ST = FA; UB = FA + 8; TMP = FA + 64; T = FA + 68
        e(f"s_lshl_b32 s47, s42, 6\nv_add_u32 v6, s47, v3\nv_lshlrev_b32 v6, 3, v6\nv_add_u32 v6, {XL}, v6")
        for j in range(mt): e(f"ds_read_b64 {v(ST+2*j,2)}, v6 offset:{j*128}")
        e(f"s_mul_i32 s47, s43, {TN*8}\ns_add_u32 s47, s47, {XL+1024}\nv_lshlrev_b32 v7, 5, v4\nv_add_u32 v7, s47, v7")
        for i in range(nt):
            e(f"ds_read_b128 {v(UB+8*i,4)}, v7 offset:{i*128}\nds_read_b128 {v(UB+8*i+4,4)}, v7 offset:{i*128+16}")
        ld2 = DFF * 2
        e(f"v_add_u32 v6, s44, v3\nv_mul_u32_u24 v6, {ld2}, v6\ns_lshl_b32 s47, s46, 1\nv_add_u32 v6, s47, v6")
        e("v_add_u32 v5, v5, v6")
        e(f"v_and_b32 v7, 1, v4\nv_mul_u32_u24 v7, {16*ld2}, v7\nv_add_u32 v6, v6, v7")
        e(f"v_lshrrev_b32 v7, 1, v4\nv_lshlrev_b32 v7, 4, v7\nv_add_u32 v6, v6, v7")
        e("s_waitcnt lgkmcnt(0)")
        def ln(i, j):
            u = UB + 8 * i
            for r in range(4):
                a_ = acc(i, j) + r; t_ = TMP + r
                e(f"v_fma_f32 v{t_}, -v{ST+2*j}, v{u+2*r}, v{u+2*r+1}")
            for r in range(4):
                a_ = acc(i, j) + r; t_ = TMP + r
                e(f"v_fma_f32 v{a_}, v{a_}, v{ST+2*j+1}, v{t_}")
            for r in range(4):
                a_ = acc(i, j) + r
                e(f"v_max_f32 v{a_}, 0, v{a_}")
        n = 0
        for j in range(mt):
            e(f"s_mov_b32 s48, {j*16*ld2}")
            for p in range(nt // 2):
                ln(2 * p, j); ln(2 * p + 1, j)
                d = T + 4 * (n % 4); n += 1
                pack_pair(acc(2 * p, j), acc(2 * p + 1, j), d)
                e(f"buffer_store_dwordx4 {v(d,4)}, v5, s[12:15], s48 offen offset:{p*64}{SCS}")
            ln(nt - 1, j)
            if j % 2 == 1:
                d = T + 4 * (n % 4); n += 1
                pack_pair(acc(nt - 1, j - 1), acc(nt - 1, j), d)
                e(f"s_mov_b32 s53, {(j-1)*16*ld2}")
                e(f"buffer_store_dwordx4 {v(d,4)}, v6, s[12:15], s53 offen offset:{(nt-1)*32}{SCS}")
        if "stf1" in OPT: k.st(12)
        e(f"s_add_u32 s35, s25, {C_F1}")
        k.signal("f1", 4, 35, 16, (16, lambda: e(f"s_lshl_b32 s33, s25, 11\ns_lshl_b32 s34, s26, 2\ns_add_u32 s33, s33, s34\ns_add_u32 s33, s33, {FL['f2']}\nv_lshlrev_b32 v6, 7, v2\nv_add_u32 v6, s33, v6")))
        if "stf1" in OPT: k.st(13)
    else:
        e("s_waitcnt vmcnt(0)")
        for j in range(mt):
            for i in range(nt):
                a0 = acc(i, j); x0 = EP + 2 * (j * nt + i)
                for q in range(2):
                    e(f"v_lshlrev_b32 v6, 16, v{x0+q}\nv_and_b32 v7, 0xffff0000, v{x0+q}")
                    e(f"v_fma_f32 v{a0+2*q}, v{a0+2*q}, v{G+4*i+2*q}, v6\nv_fma_f32 v{a0+2*q+1}, v{a0+2*q+1}, v{G+4*i+2*q+1}, v7")
        e(f"v_add_u32 v6, s44, v3\nv_lshlrev_b32 v6, 11, v6\ns_lshl_b32 s47, s46, 1\nv_add_u32 v6, s47, v6\nv_add_u32 v5, v5, v6")
        n = 0
        if epi == "wo":
            k.srd(16, P_WS, WS_XG, S * D * 2); k.srd(60, P_WS, WS_STAT, 32 * S * 8)
            for r in range(4 * nt):
                e(f"v_add_f32 v{GG+r}, 1.0, v{GG+r}"); round_bf16(e, GG + r)
            e(f"s_lshl_b32 s49, s26, 1\ns_add_u32 s49, s49, s43\ns_lshl_b32 s49, s49, 14\ns_lshl_b32 s50, s44, 3\ns_add_u32 s49, s49, s50")
            e("v_lshlrev_b32 v1, 3, v3")
        for j in range(mt):
            e(f"s_mov_b32 s48, {j*16*2048}")
            for p in range(nt // 2):
                d = T + 4 * (n % 8); n += 1
                if epi == "ffn2":
                    pack_pair(acc(2 * p, j), acc(2 * p + 1, j), d)
                    e(f"buffer_store_dwordx4 {v(d,4)}, v5, s[12:15], s48 offen offset:{p*64}")
                    continue
                ta, tb = acc(2 * p, j), acc(2 * p + 1, j)
                d2 = T + 32 + 4 * (j % 2); SM = T + 40 + 2 * (j % 2)
                e(f"v_cvt_pk_bf16_f32 v{d}, v{ta}, v{ta+1}\nv_cvt_pk_bf16_f32 v{d+1}, v{ta+2}, v{ta+3}")
                e(f"v_cvt_pk_bf16_f32 v{d+2}, v{tb}, v{tb+1}\nv_cvt_pk_bf16_f32 v{d+3}, v{tb+2}, v{tb+3}")
                for q, base in enumerate((ta, ta + 2, tb, tb + 2)):
                    e(f"v_lshlrev_b32 v{base}, 16, v{d+q}\nv_and_b32 v{base+1}, 0xffff0000, v{d+q}")
                vals = [ta + r for r in range(4)] + [tb + r for r in range(4)]
                e(f"v_add_f32 v{SM}, v{vals[0]}, v{vals[1]}\nv_mul_f32 v{SM+1}, v{vals[0]}, v{vals[0]}")
                for x_ in vals[2:]: e(f"v_add_f32 v{SM}, v{SM}, v{x_}")
                for x_ in vals[1:]: e(f"v_fmac_f32 v{SM+1}, v{x_}, v{x_}")
                for r in range(4):
                    e(f"v_mul_f32 v{ta+r}, v{ta+r}, v{GG+8*p+r}\nv_mul_f32 v{tb+r}, v{tb+r}, v{GG+8*p+4+r}")
                e(f"v_cvt_pk_bf16_f32 v{d2}, v{ta}, v{ta+1}\nv_cvt_pk_bf16_f32 v{d2+1}, v{ta+2}, v{ta+3}")
                e(f"v_cvt_pk_bf16_f32 v{d2+2}, v{tb}, v{tb+1}\nv_cvt_pk_bf16_f32 v{d2+3}, v{tb+2}, v{tb+3}")
                e(f"v_permlane16_swap_b32 v{d}, v{d+2}\nv_permlane16_swap_b32 v{d+1}, v{d+3}")
                e(f"v_permlane16_swap_b32 v{d2}, v{d2+2}\nv_permlane16_swap_b32 v{d2+1}, v{d2+3}")
                e(f"buffer_store_dwordx4 {v(d2,4)}, v5, s[16:19], s48 offen offset:{p*64}{SCS}")
                e(f"buffer_store_dwordx4 {v(d,4)}, v5, s[12:15], s48 offen offset:{p*64}{SCS}")
                wave_sum(e, [SM, SM + 1], 6, [4, 5])
                e(f"s_mov_b64 exec, 0xffff\nbuffer_store_dwordx2 {v(SM,2)}, v1, s[60:63], s49 offen offset:{j*128}{SCS}\ns_mov_b64 exec, -1")
        if epi == "wo":
            if "stwo" in OPT: k.st(12)
            e(f"s_add_u32 s35, s25, {C_WO}")
            k.signal("wo", 4, 35, 16, (16, lambda: e(f"s_lshl_b32 s33, s25, 11\ns_lshl_b32 s34, s26, 2\ns_add_u32 s33, s33, s34\ns_add_u32 s33, s33, {FL['f1']}\nv_lshlrev_b32 v6, 7, v2\nv_add_u32 v6, s33, v6")))
            if "stwo" in OPT: k.st(13)
            UA = ACC
            for r in range(16): e(f"v_mov_b32 v{UA+r}, 0")
            for i in range(8):
                g_ = W1R + 32 + i; s_ = W1R + 40 + i
                e(f"v_add_f32 v{g_}, 1.0, v{g_}"); round_bf16(e, g_)
                for q in range(4):
                    w_ = W1R + 4 * i + q
                    e(f"v_lshlrev_b32 v6, 16, v{w_}\nv_and_b32 v7, 0xffff0000, v{w_}")
                    e(f"v_fmac_f32 v{UA+2*q}, v{g_}, v6\nv_fmac_f32 v{UA+2*q+1}, v{g_}, v7\nv_fmac_f32 v{UA+8+2*q}, v{s_}, v6\nv_fmac_f32 v{UA+8+2*q+1}, v{s_}, v7")
            UL = 139264
            e(f"v_mul_u32_u24 v5, {(65536+27)//28}, v2\nv_lshrrev_b32 v5, 16, v5\nv_mul_u32_u24 v6, 28, v5\nv_sub_u32 v6, v2, v6")
            e(f"s_lshl_b32 s32, s24, 1\nv_add_u32 v5, s32, v5\nv_mul_u32_u24 v5, 1792, v5\nv_lshlrev_b32 v6, 5, v6\nv_add_u32 v5, v5, v6\nv_add_u32 v5, {UL}, v5")
            e("v_cmp_gt_u32 vcc, 56, v2\ns_and_saveexec_b64 s[34:35], vcc")
            e(f"ds_write_b128 v5, {v(UA,4)}\nds_write_b128 v5, {v(UA+4,4)} offset:16\nds_write_b128 v5, {v(UA+8,4)} offset:896\nds_write_b128 v5, {v(UA+12,4)} offset:912")
            e("s_mov_b64 exec, s[34:35]\ns_waitcnt lgkmcnt(0)")
            e(f"v_mov_b32 v6, {L_SIG['ub']}\nv_mov_b32 v7, 1\ns_mov_b64 exec, 1")
            e("ds_add_rtn_u32 v7, v6, v7\ns_waitcnt lgkmcnt(0)\nv_readfirstlane_b32 s32, v7\ns_mov_b64 exec, -1")
            e(f"s_cmp_lg_u32 s32, 3\ns_cbranch_scc1 {L('ubx')}")
            e(f"v_lshlrev_b32 v5, 2, v2\nv_add_u32 v5, {UL}, v5")
            for m_ in range(7):
                for rr in range(8): e(f"ds_read_b32 v{UA+rr}, v5 offset:{rr*1792+m_*256}")
                e("s_waitcnt lgkmcnt(0)")
                for rr in range(1, 8): e(f"v_add_f32 v{UA}, v{UA}, v{UA+rr}")
                e(f"v_mov_b32 v{UA+16+m_}, v{UA}")
            k.srd(16, P_WS, WS_UB, 16 * 2 * DFF * 4)
            e(f"s_mul_i32 s49, s58, {2*DFF*4}\ns_mul_i32 s50, s59, 896\ns_add_u32 s49, s49, s50")
            for m_ in range(7):
                e(f"v_add_u32 v5, {64*m_}, v2\nv_cmp_le_u32 vcc, 224, v5\nv_mov_b32 v6, {DFF*4 - 896}\nv_cndmask_b32 v6, 0, v6, vcc\nv_lshl_add_u32 v5, v5, 2, v6")
                e(f"buffer_store_dword v{UA+16+m_}, v5, s[16:19], s49 offen{SCS}")
            e("s_waitcnt vmcnt(0)")
            e(f"s_add_u32 s35, s59, {C_UB}\ns_mov_b64 exec, 1")
            k.arrive("ub", 35, 16)
            e("s_mov_b64 exec, -1")
            e(f"{L('ubx')}:")
    e(f"s_branch {nxt_c}")
    e(f"{L('l')}:")
    tile_map(e, xr, xc)
    k.srd(4, P_WS, srcA, sizeA); k.srd(8, pB, 0, sizeB)
    e("s_sub_u32 s42, s24, 4")
    LA = 8
    lda2, ldb2 = lda * 2, ldb * 2
    e(f"s_lshl_b32 s43, s25, 7\ns_mul_i32 s44, s42, {nAw*8}\ns_add_u32 s43, s43, s44")
    e(f"v_lshrrev_b32 v3, 3, v2\nv_add_u32 v3, s43, v3\ns_mov_b32 s45, {lda2}\nv_mul_lo_u32 v3, s45, v3")
    e("v_and_b32 v4, 7, v2\nv_lshrrev_b32 v5, 4, v2")
    for i in range(nAw):
        e(f"v_xor_b32 v6, {(i&1)*4}, v5\nv_xor_b32 v6, v6, v4\nv_lshlrev_b32 v6, 4, v6\nv_add_u32 v6, v6, v3")
        e(f"v_add_u32 v{LA+i}, {i*8*lda2}, v6")
    magic = (65536 + cpr - 1) // cpr
    assert all((p * magic) >> 16 == p // cpr for p in range(nBw * 64)) and nBw * 64 == 16 * cpr
    e(f"s_mul_i32 s43, s42, {16*ldb2}\ns_mul_i32 s44, s26, {128 if perm else BN*2}\ns_add_u32 s43, s43, s44")
    for i in range(nBw):
        e(f"v_add_u32 v3, {i*64}, v2\nv_mul_u32_u24 v4, {magic}, v3\nv_lshrrev_b32 v4, 16, v4")
        e(f"v_mul_u32_u24 v5, {cpr}, v4\nv_sub_u32 v3, v3, v5")
        if hbits == 2: e("v_and_b32 v5, 2, v4\nv_lshrrev_b32 v6, 1, v4\nv_and_b32 v6, 4, v6\nv_or_b32 v5, v5, v6")
        elif hbits == 1: e("v_lshrrev_b32 v5, 2, v4\nv_and_b32 v5, 2, v5")
        else: e("v_and_b32 v5, 3, v4\nv_lshrrev_b32 v6, 1, v4\nv_and_b32 v6, 4, v6\nv_or_b32 v5, v5, v6\nv_lshlrev_b32 v5, 1, v5")
        e("v_xor_b32 v3, v3, v5")
        if perm: e("v_lshrrev_b32 v5, 3, v3\nv_and_b32 v3, 7, v3\nv_lshlrev_b32 v5, 7, v5\nv_add_u32 v3, v3, v5")
        e(f"v_lshlrev_b32 v3, 4, v3\ns_mov_b32 s45, {ldb2}\nv_mul_lo_u32 v4, s45, v4\nv_add_u32 v3, v3, v4")
        e(f"v_add_u32 v{LA+nAw+i}, s43, v3")
    e(f"s_mul_i32 s46, s42, {nAw*1024}")
    e(f"s_mul_i32 s47, s42, {nBw*1024}\ns_add_u32 s47, s47, {nA*1024}")
    def issue_x(lds_s, off_s):
        for i in range(nAw):
            e(f"s_add_u32 m0, {lds_s}, {i*1024}")
            e(f"buffer_load_dwordx4 v{LA+i}, s[4:7], {off_s} offen{asc} lds")
    def issue_w(lds_s, off_s):
        for i in range(nBw):
            e(f"s_add_u32 m0, {lds_s}, {i*1024}")
            e(f"buffer_load_dwordx4 v{LA+nAw+i}, s[8:11], {off_s} offen lds")
    def w_prologue():
        for st in range(NS - 1):
            e(f"s_add_u32 s52, s47, {st*SB}\ns_mov_b32 s49, {st*BK*ldb2}")
            issue_w("s52", "s49")
    if dep:
        base, target, kind = dep
        e(f"s_lshr_b32 s35, s25, 1\ns_add_u32 s35, s35, {base}" if kind == "rb2" else f"s_add_u32 s35, s25, {base}")
        if "wfirst" in OPT:
            w_prologue()
            k.dep_wait_loaders(tag, 35, target, None)
        else:
            e(f"s_cmp_eq_u32 s24, 4\ns_cbranch_scc1 {L('w4a')}")
            w_prologue()
            e(f"{L('w4a')}:")
            if hbar: e("s_barrier")
            k.dep_wait_loaders(tag, 35, target, None)
            e(f"s_cmp_lg_u32 s24, 4\ns_cbranch_scc1 {L('w4b')}")
            w_prologue()
            e(f"{L('w4b')}:")
        if tag == "f1" and "stwo" in OPT: k.st(14, 4)
        if tag == "wo" and "statt" in OPT: k.st(15, 4)
        if tag == "f2" and "stf1" in OPT: k.st(14, 4)
    else:
        w_prologue()
    for st in range(NS - 1):
        e(f"s_add_u32 s51, s46, {st*SB}\ns_mov_b32 s48, {st*BK*2}")
        issue_x("s51", "s48")
    e(f"s_mov_b32 s48, {(NS-1)*BK*2}\ns_mov_b32 s49, {(NS-1)*BK*ldb2}\ns_mov_b32 s50, {(NS-1)*SB}")
    def issue():
        e("s_add_u32 s51, s50, s46\ns_add_u32 s52, s50, s47")
        issue_x("s51", "s48"); issue_w("s52", "s49")
        e(f"s_add_u32 s48, s48, {BK*2}\ns_add_u32 s49, s49, {BK*ldb2}")
        e(f"s_add_u32 s50, s50, {SB}\ns_cmp_eq_u32 s50, {SB*NS}\ns_cselect_b32 s50, 0, s50")
    e(f"s_waitcnt vmcnt({nAw*(NS-2)})\ns_barrier")
    issue()
    e(f"s_waitcnt vmcnt({nAw*(NS-3) + nld})\ns_barrier" if NS >= 3 else "")
    issue()
    for t in range(2, NS - 1):
        e(f"s_waitcnt vmcnt({nAw*(NS-2-t) + nld*t})\ns_barrier")
        issue()
    done = max(2, NS - 1)
    e(f"s_mov_b32 s53, {nk-(NS-1)-done}")
    e(f"{L('lloop')}:")
    e(f"s_waitcnt vmcnt({nld*(NS-2)})\ns_barrier")
    issue()
    e(f"s_sub_u32 s53, s53, 1\ns_cmp_lg_u32 s53, 0\ns_cbranch_scc1 {L('lloop')}")
    nx = 0
    for t in range(NS - 1):
        e(f"s_waitcnt vmcnt({nld*(NS-2-t)+nx})\ns_barrier")
        if epi == "ffn1" and t == 0:
            nx = 32
            k.srd(56, P_WS, WS_STAT, 32 * S * 8); k.srd(60, P_WS, WS_UB, 16 * 2 * DFF * 4)
            e(f"s_cmp_ge_u32 s42, 2\ns_cbranch_scc1 {L('ubld')}")
            e(f"s_lshl_b32 s43, s42, 6\nv_add_u32 v3, s43, v2\ns_lshl_b32 s44, s25, 7\nv_add_u32 v4, s44, v3\nv_lshlrev_b32 v4, 3, v4")
            for sl in range(32):
                e(f"s_mov_b32 s45, {sl*S*8}\nbuffer_load_dwordx2 {v(32+2*sl,2)}, v4, s[56:59], s45 offen{SC}")
            e(f"s_branch {L('ldd')}")
            e(f"{L('ubld')}:")
            e(f"s_add_u32 s35, s26, {C_UB}")
            k.poll(tag + "u", 35, 16)
            e(f"s_sub_u32 s43, s42, 2\ns_lshl_b32 s43, s43, 6\nv_add_u32 v3, s43, v2")
            e(f"s_mul_i32 s44, s26, {BN*4}\nv_lshlrev_b32 v4, 3, v3\nv_add_u32 v4, s44, v4")
            for kg in range(16):
                for w_ in range(2):
                    e(f"s_mov_b32 s45, {(kg*2+w_)*DFF*4}\nbuffer_load_dwordx2 {v(32+4*kg+2*w_,2)}, v4, s[60:63], s45 offen{SC}")
            e(f"{L('ldd')}:")
    if epi == "ffn1":
        e("s_waitcnt vmcnt(0)")
        e(f"s_cmp_ge_u32 s42, 2\ns_cbranch_scc1 {L('ubred')}")
        for sl in range(1, 32): e(f"v_add_f32 v32, v32, v{32+2*sl}\nv_add_f32 v33, v33, v{33+2*sl}")
        e(f"v_mul_f32 v32, {f32(1/1024)}, v32\nv_mul_f32 v33, {f32(1/1024)}, v33")
        e(f"v_fma_f32 v33, -v32, v32, v33\nv_max_f32 v33, 0, v33\nv_add_f32 v33, {f32(1e-5)}, v33\nv_rsq_f32 v33, v33")
        e("v_mul_f32 v32, v32, v33")
        e(f"v_lshlrev_b32 v4, 3, v3\nv_add_u32 v4, {XL}, v4\nds_write_b64 v4, v[32:33]")
        e(f"s_branch {L('redd')}")
        e(f"{L('ubred')}:")
        for kg in range(1, 16):
            for q in range(4): e(f"v_add_f32 v{32+q}, v{32+q}, v{32+4*kg+q}")
        e("v_swap_b32 v33, v34")
        e(f"v_lshlrev_b32 v4, 4, v3\nv_add_u32 v4, {XL+1024}, v4\nv_cmp_gt_u32 vcc, 112, v3\ns_and_saveexec_b64 s[44:45], vcc")
        e(f"ds_write_b128 v4, v[32:35]\ns_mov_b64 exec, s[44:45]")
        e(f"{L('redd')}:")
        e("s_waitcnt lgkmcnt(0)")
    if epi != "qkv": e("s_barrier")
    e(f"s_branch {nxt_l}")

def attn_phase(k, nxt_c, nxt_l, pf):
    e = k.e
    L = lambda n: k.lab("att_" + n)
    NSL = 3; KPS = 128; SBK = KPS * 64
    HB = 2 * SBK; SB = 2 * HB
    FLAG = NSL * SB
    e(f"{L('c')}:\n{L('l')}:")
    e("s_and_b32 s36, s2, 7\ns_lshr_b32 s37, s2, 3\ns_lshl_b32 s36, s36, 2\ns_lshr_b32 s38, s37, 3\ns_add_u32 s25, s36, s38")
    e("s_and_b32 s26, s37, 7")
    e("s_and_b32 s34, s24, 3\ns_lshr_b32 s27, s24, 2")
    e("s_mov_b32 s57, s34")
    e("s_lshl_b32 s40, s25, 17")
    e(f"s_add_u32 s32, s{P_WS}, {WS_QKV:#x}\ns_addc_u32 s33, s{P_WS+1}, 0\ns_add_u32 s32, s32, s40\ns_addc_u32 s33, s33, 0")
    k.srd(4, 32, 0, S * 64); k.srd(8, 32, 32 * S * 64, S * 64); k.srd(12, 32, 64 * S * 64, S * 64)
    k.srd(16, P_WS, WS_O, S * D * 2)
    QG, KH = 57, 27
    Q = 4 + 4; KF = 24; VF = 32
    NEG = 40; O = 72; LS = 104; SEL = 112
    SS = [[116, 132], [148, 164]]
    PP = [[180, 188], [196, 204]]
    AK0, AK1, AV, AN0, AN1, DK, DV = 212, 213, 214, 215, 216, 217, 218
    HH, QL = 219, 220
    T = 221
    PFD = 230
    e(f"v_and_b32 v{QL}, 31, v2\nv_lshrrev_b32 v{HH}, 5, v2")
    e(f"s_lshl_b32 s39, s26, 8\ns_lshl_b32 s40, s{QG}, 6\ns_add_u32 s39, s39, s40")
    e(f"v_lshrrev_b32 v{T}, 2, v2\ns_lshl_b32 s40, s{QG}, 5\nv_add_u32 v{T}, s40, v{T}\nv_lshlrev_b32 v{T}, 6, v{T}")
    e(f"v_and_b32 v{T+1}, 3, v2\nv_lshrrev_b32 v{T+2}, 4, v2\nv_xor_b32 v{T+1}, v{T+1}, v{T+2}\nv_lshlrev_b32 v{T+1}, 4, v{T+1}")
    e(f"v_add_u32 v{DK}, v{T}, v{T+1}")
    e(f"v_lshlrev_b32 v{DV}, 4, v2\ns_lshl_b32 s40, s{QG}, 11\nv_add_u32 v{DV}, s40, v{DV}")
    e(f"s_lshl_b32 s41, s{QG}, 11\ns_mul_i32 s40, s{KH}, {HB}\ns_add_u32 s41, s41, s40")
    e(f"s_mul_i32 s45, s{KH}, {S*32}")
    def addr_setup():
        e(f"s_mul_i32 s40, s{KH}, {HB}")
        e(f"v_lshrrev_b32 v{T}, 2, v{QL}\nv_and_b32 v{T}, 3, v{T}\nv_xor_b32 v{T}, v{T}, v{HH}\nv_lshlrev_b32 v{T}, 4, v{T}")
        e(f"v_lshlrev_b32 v{T+1}, 6, v{QL}\nv_add_u32 v{T+3}, v{T}, v{T+1}")
        e(f"v_add_u32 v{AK0}, s40, v{T+3}\nv_xor_b32 v{AK1}, 32, v{AK0}")
        e(f"v_and_b32 v{T}, 15, v2\nv_lshrrev_b32 v{T}, 2, v{T}\nv_lshlrev_b32 v{T+1}, 2, v{HH}\nv_add_u32 v{T}, v{T}, v{T+1}\nv_lshlrev_b32 v{T}, 6, v{T}")
        e(f"v_lshrrev_b32 v{T+1}, 4, v2\nv_and_b32 v{T+1}, 1, v{T+1}\nv_lshlrev_b32 v{T+1}, 5, v{T+1}\nv_add_u32 v{T}, v{T}, v{T+1}")
        e(f"v_and_b32 v{T+1}, 3, v2\nv_lshlrev_b32 v{T+1}, 3, v{T+1}\nv_add_u32 v{T}, v{T}, v{T+1}\nv_add_u32 v{T}, {SBK}, v{T}\nv_add_u32 v{AV}, s40, v{T}")
    addr_setup()
    e(f"v_lshrrev_b32 v{T}, 4, v2\nv_lshrrev_b32 v{T+1}, 2, v2\nv_xor_b32 v{T}, v{T}, v{T+1}\nv_and_b32 v{T}, 1, v{T}")
    e(f"v_cmp_eq_u32 vcc, 0, v{T}\nv_mov_b32 v{T+1}, 0x3f803f80")
    e(f"v_cndmask_b32 v{SEL}, 0, v{T+1}, vcc")
    for r in range(1, 4): e(f"v_mov_b32 v{SEL+r}, v{SEL}")
    def zero_acc():
        for r in range(32): e(f"v_mov_b32 v{O+r}, 0")
        for r in range(8): e(f"v_mov_b32 v{LS+r}, 0")
    zero_acc()
    for r in range(8): e(f"v_mov_b32 v{VF+r}, 0")
    for qb in range(2):
        for r in range(8): e(f"v_mov_b32 v{PP[1][qb]+r}, 0")
    e(f"s_cmp_lg_u32 s24, 4\ns_cbranch_scc1 {L('nodep')}")
    if "noflags" in OPT:
        e(f"v_lshlrev_b32 v6, 10, v2\ns_lshl_b32 s35, s25, 5\nv_add_u32 v6, s35, v6\nv_mul_u32_u24 v6, {(65536 + 191) // 192}, v6\nv_lshrrev_b32 v6, 16, v6")
        e(f"v_add_u32 v6, {C_QKV}, v6\nv_lshlrev_b32 v6, 8, v6")
        k.poll("att", None, 16, lanes=3)
    else:
        e(f"s_lshl_b32 s35, s25, 3\ns_add_u32 s35, s35, s26\ns_lshl_b32 s35, s35, 8\ns_add_u32 s35, s35, {FL['att']}")
        k.wait_flags("att", 48, 35)
    e(f"{L('nodep')}:")
    e("s_barrier")
    k.st(3)
    e(f"v_mov_b32 v{T}, {FLAG}\nv_mov_b32 v{T+1}, 0\nds_write_b32 v{T}, v{T+1}")
    e(f"v_add_u32 v{T}, s39, v{QL}\nv_lshlrev_b32 v{T}, 6, v{T}\nv_lshlrev_b32 v{T+1}, 4, v{HH}\nv_add_u32 v{T}, v{T}, v{T+1}")
    for qb in range(2):
        e(f"buffer_load_dwordx4 {v(Q+8*qb,4)}, v{T}, s[4:7], 0 offen offset:{qb*2048}{SC}")
        e(f"buffer_load_dwordx4 {v(Q+8*qb+4,4)}, v{T}, s[4:7], 0 offen offset:{qb*2048+32}{SC}")
    def dma(slot_sreg):
        e(f"s_add_u32 s43, {slot_sreg}, s41\ns_add_u32 s46, s42, s45")
        e(f"s_mov_b32 m0, s43\nbuffer_load_dwordx4 v{DK}, s[8:11], s46 offen{SC} lds")
        e(f"s_add_u32 m0, s43, {SBK}\nbuffer_load_dwordx4 v{DV}, s[12:15], s46 offen{SC} lds")
        e(f"s_add_u32 s46, s46, 1024\ns_add_u32 m0, s43, 1024\nbuffer_load_dwordx4 v{DK}, s[8:11], s46 offen{SC} lds")
        e(f"s_add_u32 m0, s43, {SBK+1024}\nbuffer_load_dwordx4 v{DV}, s[12:15], s46 offen{SC} lds")
        e(f"s_add_u32 s42, s42, {SBK}")
    def kread(a0, a1, t):
        return [f"ds_read_b128 {v(KF,4)}, v{a0} offset:{t*2048}", f"ds_read_b128 {v(KF+4,4)}, v{a1} offset:{t*2048}"]
    def vread(t):
        return [f"ds_read_b64_tr_b16 {v(VF+4*m+2*hh,2)}, v{AV} offset:{t*2048+(16*m+8*hh)*64}" for m in range(2) for hh in range(2)]
    def qk(qb, dst, c):
        return [f"v_mfma_f32_32x32x16_bf16 {v(dst,16)}, {v(KF,4)}, {v(Q+8*qb,4)}, {c}",
                f"v_mfma_f32_32x32x16_bf16 {v(dst,16)}, {v(KF+4,4)}, {v(Q+8*qb+4,4)}, {v(dst,16)}"]
    def pv(qb, P):
        o, l = O + 16 * qb, LS + 4 * qb
        return [f"v_mfma_f32_32x32x16_bf16 {v(o,16)}, {v(VF,4)}, {v(P,4)}, {v(o,16)}",
                f"v_mfma_f32_16x16x32_bf16 {v(l,4)}, {v(SEL,4)}, {v(P,4)}, {v(l,4)}",
                f"v_mfma_f32_32x32x16_bf16 {v(o,16)}, {v(VF+4,4)}, {v(P+4,4)}, {v(o,16)}",
                f"v_mfma_f32_16x16x32_bf16 {v(l,4)}, {v(SEL,4)}, {v(P+4,4)}, {v(l,4)}"]
    def lane_max16(src, dst, tmp):
        e(f"v_max3_f32 v{dst}, v{src}, v{src+1}, v{src+2}")
        for r in range(3, 15, 2): e(f"v_max3_f32 v{dst}, v{dst}, v{src+r}, v{src+r+1}")
        e(f"v_max_f32 v{dst}, v{dst}, v{src+15}")
        e(f"v_mov_b32 v{tmp}, v{dst}\nv_permlane32_swap_b32 v{tmp}, v{dst}\nv_max_f32 v{dst}, v{dst}, v{tmp}")
    NST = S // 2 // KPS
    HALF = S * 32
    e("s_mov_b32 s42, 0")
    for st in range(NSL - 1):
        e(f"s_mov_b32 s44, {st*SB}")
        dma("s44")
    e(f"s_waitcnt vmcnt({4*(NSL-2)})\ns_barrier")
    e(f"v_xor_b32 v{T+4}, 32, v{T+3}")
    for l in kread(T + 3, T + 4, 0): e(l)
    e("s_waitcnt lgkmcnt(0)")
    for qb in range(2):
        for l in qk(qb, SS[1][qb], "0"): e(l)
    for l in kread(AK0, AK1, 0): e(l)
    for qb in range(2):
        lane_max16(SS[1][qb], T, T + 1)
        e(f"v_add_f32 v{T}, {f32(40.0)}, v{T}")
        for r in range(16): e(f"v_sub_f32 v{NEG+16*qb+r}, 0, v{T}")
    e("s_waitcnt lgkmcnt(0)")
    for qb in range(2):
        for l in qk(qb, SS[0][qb], v(NEG + 16 * qb, 16)): e(l)
    for l in kread(AK0, AK1, 1): e(l)
    e(f"v_add_u32 v{AN0}, {SB}, v{AK0}\nv_add_u32 v{AN1}, {SB}, v{AK1}")
    e(f"s_mov_b32 s47, 1\ns_mov_b32 s48, {SB}\ns_mov_b32 s49, {-(NSL-1)*SB & 0xffffffff:#x}")
    e(f"s_mov_b32 s50, {(NSL-1)*SB}")
    e("s_waitcnt lgkmcnt(0)")
    e(f"s_mov_b32 s44, {NST}")
    e(f"{L('floop')}:")
    for t in range(4):
        par = t & 1
        if t == 2:
            e(f"s_cmp_ge_u32 s42, {HALF}\ns_cbranch_scc1 {L('nodma')}")
            e(f"s_waitcnt vmcnt({4*(NSL-3)})\ns_barrier")
            dma("s50")
            e(f"s_add_u32 s50, s50, {SB}\ns_cmp_eq_u32 s50, {NSL*SB}\ns_cselect_b32 s50, 0, s50")
            if pf:
                e(f"s_cmp_lg_u32 s44, {PFSTAGE}\ns_cbranch_scc1 {L('cont')}")
                e("s_lshl_b32 s56, s2, 3\ns_add_u32 s56, s56, s24")
                e(f"s_mov_b32 s60, s{P_WO}\ns_mov_b32 s61, s{P_WO+1}\ns_mov_b32 s62, {D*D*2}\ns_mov_b32 s63, 0x20000\ns_mov_b32 s52, s56")
                e(f"s_cmp_lt_u32 s56, 256\ns_cbranch_scc1 {L('pfgo')}")
                e(f"s_mov_b32 s60, s{P_W1}\ns_mov_b32 s61, s{P_W1+1}\ns_mov_b32 s62, {D*DFF*2}\ns_mov_b32 s63, 0x20000\ns_sub_u32 s52, s56, 256")
                e(f"s_cmp_lt_u32 s56, 1152\ns_cbranch_scc1 {L('pfgo')}")
                e(f"s_mov_b32 s60, s{P_W2}\ns_mov_b32 s61, s{P_W2+1}\ns_mov_b32 s62, {D*DFF*2}\ns_mov_b32 s63, 0x20000\ns_sub_u32 s52, s56, 1152")
                e(f"{L('pfgo')}:")
                e(f"s_lshl_b32 s52, s52, 13\nv_lshlrev_b32 v{T}, 7, v2\nbuffer_load_dword v{PFD}, v{T}, s[60:63], s52 offen")
                k.code_touch("a", k.lab("att_cont"), k.lab("f1_l"), 24, 8, 1)
            e(f"s_branch {L('cont')}")
            e(f"{L('nodma')}:")
            e("s_waitcnt vmcnt(0)\ns_barrier")
            e(f"{L('cont')}:")
        kr = kread(AN0, AN1, (t + 2) % 4) if t >= 2 else kread(AK0, AK1, t + 2)
        vr = vread(t)
        m = []; p = []; E = []; C = []
        for qb in range(2):
            cur = SS[par][qb]; nxt = SS[1 - par][qb]; pc = PP[par][qb]; pp = PP[1 - par][qb]
            m.append(qk(qb, nxt, v(NEG + 16 * qb, 16))); p.append(pv(qb, pp))
            E.append([f"v_exp_f32 v{cur+r}, v{cur+r}" for r in range(16)])
            C.append([f"v_cvt_pk_bf16_f32 v{pc+r}, v{cur+2*r}, v{cur+2*r+1}" for r in range(8)])
        E0, E1 = E; C0, C1 = C
        seq = ["s_waitcnt lgkmcnt(4)",
               m[0][0], E0[0], E0[1], E0[2], E0[3],
               m[1][0], E0[4], E0[5], C0[0], C0[1], E0[6],
               m[0][1], E0[7], C0[2], E0[8], E0[9], C0[3],
               m[1][1], kr[0], kr[1], E0[10], E0[11], E0[12], E0[13], "s_waitcnt lgkmcnt(2)",
               p[0][0], C0[4], C0[5], E0[14], E0[15], C0[6], C0[7],
               p[0][1], E1[0], E1[1],
               p[1][0], E1[2], E1[3], C1[0], C1[1], E1[4],
               p[1][1], E1[5], E1[6],
               p[0][2], E1[7], C1[2], E1[8], E1[9], C1[3],
               p[0][3], E1[10], E1[11],
               p[1][2], vr[0], vr[1], vr[2], vr[3], E1[12], E1[13], C1[4], C1[5], E1[14],
               p[1][3], E1[15], C1[6], C1[7]]
        for l in seq: e(l)
        if t == 3:
            e(f"v_sub_u32 v{T}, v{AN0}, v{AK0}\nv_add_u32 v{AV}, v{AV}, v{T}\nv_mov_b32 v{AK0}, v{AN0}\nv_mov_b32 v{AK1}, v{AN1}")
            e(f"s_add_u32 s47, s47, 1\ns_cmp_eq_u32 s47, {NSL}\ns_cselect_b32 s51, s49, s48\ns_cselect_b32 s47, 0, s47")
            e(f"v_add_u32 v{AN0}, s51, v{AN0}\nv_add_u32 v{AN1}, s51, v{AN1}")
    e(f"s_sub_u32 s44, s44, 1\ns_cmp_lg_u32 s44, 0\ns_cbranch_scc1 {L('floop')}")
    e("s_waitcnt lgkmcnt(0)")
    for qb in range(2):
        for l in pv(qb, PP[1][qb]): e(l)
    k.st(4)
    def merge(safe, M=None):
        e("s_barrier")
        e(f"s_cmp_eq_u32 s{KH}, 0\ns_cbranch_scc1 {L('keep0' + safe)}")
        for r in range(16): e(f"v_swap_b32 v{O+r}, v{O+16+r}")
        e(f"v_swap_b32 v{LS}, v{LS+4}")
        if M is not None: e(f"v_swap_b32 v{M}, v{M+1}")
        e(f"{L('keep0' + safe)}:")
        e(f"s_mul_i32 s52, s24, {5*1024+256}\nv_lshlrev_b32 v{T}, 4, v2\nv_add_u32 v{T}, s52, v{T}")
        for g in range(4): e(f"ds_write_b128 v{T}, {v(O+16+4*g,4)} offset:{g*1024}")
        e(f"v_lshlrev_b32 v{T+1}, 2, v2\nv_add_u32 v{T+1}, s52, v{T+1}")
        e(f"ds_write_b32 v{T+1}, v{LS+4} offset:4096")
        if M is not None: e(f"ds_write_b32 v{T+1}, v{M+1} offset:{4096+256}")
        e("s_waitcnt lgkmcnt(0)\ns_barrier")
        e(f"s_xor_b32 s52, s24, 4\ns_mul_i32 s52, s52, {5*1024+256}\nv_lshlrev_b32 v{T}, 4, v2\nv_add_u32 v{T}, s52, v{T}")
        for g in range(4): e(f"ds_read_b128 {v(O+16+4*g,4)}, v{T} offset:{g*1024}")
        e(f"v_lshlrev_b32 v{T+1}, 2, v2\nv_add_u32 v{T+1}, s52, v{T+1}")
        e(f"ds_read_b32 v{LS+4}, v{T+1} offset:4096")
        if M is not None: e(f"ds_read_b32 v{M+1}, v{T+1} offset:{4096+256}")
        e("s_waitcnt lgkmcnt(0)")
        if M is None:
            for r in range(16): e(f"v_add_f32 v{O+r}, v{O+r}, v{O+16+r}")
            e(f"v_add_f32 v{LS}, v{LS}, v{LS+4}")
        else:
            e(f"v_max_f32 v{T}, v{M}, v{M+1}\nv_sub_f32 v{T+1}, v{M}, v{T}\nv_sub_f32 v{T+2}, v{M+1}, v{T}\nv_exp_f32 v{T+1}, v{T+1}\nv_exp_f32 v{T+2}, v{T+2}")
            for r in range(16): e(f"v_mul_f32 v{O+r}, v{O+r}, v{T+1}\nv_fmac_f32 v{O+r}, v{O+16+r}, v{T+2}")
            e(f"v_mul_f32 v{LS}, v{LS}, v{T+1}\nv_fmac_f32 v{LS}, v{LS+4}, v{T+2}")
        e(f"v_rcp_f32 v{T}, v{LS}")
        for r in range(16): e(f"v_mul_f32 v{O+r}, v{O+r}, v{T}")
    merge("f")
    e(f"v_mov_b32 v{T+1}, {f32(2.0**120)}")
    e(f"v_cmp_nlt_f32 vcc, v{LS}, v{T+1}")
    e("s_mov_b64 s[46:47], vcc")
    e(f"v_add_f32 v{T+2}, abs(v{O}), abs(v{O+1})")
    for r in range(2, 16): e(f"v_add_f32 v{T+2}, v{T+2}, abs(v{O+r})")
    e(f"v_mov_b32 v{T+1}, 0x7f800000\nv_cmp_nlt_f32 vcc, v{T+2}, v{T+1}\ns_or_b64 s[46:47], s[46:47], vcc")
    e(f"s_cmp_eq_u64 s[46:47], 0\ns_cbranch_scc1 {L('okwave')}")
    e(f"v_mov_b32 v{T+1}, {FLAG}\nv_mov_b32 v{T+2}, 1\nds_write_b32 v{T+1}, v{T+2}")
    e(f"{L('okwave')}:")
    e("s_waitcnt lgkmcnt(0)\ns_barrier")
    e(f"v_mov_b32 v{T+1}, {FLAG}\nds_read_b32 v{T+2}, v{T+1}\ns_waitcnt lgkmcnt(0)\nv_readfirstlane_b32 s46, v{T+2}")
    e(f"s_cmp_lg_u32 s46, 0\ns_cbranch_scc1 {L('safe')}")
    e(f"{L('store')}:")
    if "statt" in OPT: k.st(12)
    P = PP[0][0]
    for r in range(8): e(f"v_cvt_pk_bf16_f32 v{P+r}, v{O+2*r}, v{O+2*r+1}")
    for b in (0, 4):
        e(f"v_permlane32_swap_b32 v{P+b}, v{P+b+2}\nv_permlane32_swap_b32 v{P+b+1}, v{P+b+3}")
    for r in range(4): e(f"v_permlane16_swap_b32 v{P+r}, v{P+4+r}")
    e(f"s_lshl_b32 s40, s{KH}, 5\ns_add_u32 s40, s40, s39")
    e(f"v_and_b32 v{T}, 15, v2\nv_add_u32 v{T}, s40, v{T}\nv_lshlrev_b32 v{T}, 11, v{T}")
    e(f"v_lshrrev_b32 v{T+1}, 4, v2\nv_and_b32 v{T+2}, 1, v{T+1}\nv_lshlrev_b32 v{T+2}, 5, v{T+2}\nv_lshrrev_b32 v{T+1}, 1, v{T+1}\nv_lshlrev_b32 v{T+1}, 4, v{T+1}")
    e(f"v_add_u32 v{T}, v{T}, v{T+1}\nv_add_u32 v{T}, v{T}, v{T+2}")
    e(f"s_lshl_b32 s40, s25, 6\ns_add_u32 s41, s40, {16*2048}")
    e(f"buffer_store_dwordx4 {v(P,4)}, v{T}, s[16:19], s40 offen{SCS}\nbuffer_store_dwordx4 {v(P+4,4)}, v{T}, s[16:19], s41 offen{SCS}")
    if "statt" in OPT: k.st(13)
    e(f"s_add_u32 s35, s26, {C_ATT}")
    k.signal("att", 8, 35, 32, (32, lambda: e(f"s_lshl_b32 s33, s26, 12\ns_lshl_b32 s34, s25, 2\ns_add_u32 s33, s33, s34\ns_add_u32 s33, s33, {FL['wo']}\nv_lshlrev_b32 v6, 7, v2\nv_add_u32 v6, s33, v6")))
    if "statt" in OPT: k.st(14, 7)
    e(f"s_cmp_ge_u32 s24, 4\ns_cbranch_scc1 {nxt_l}\ns_branch {nxt_c}")
    e(f"{L('safe')}:")
    e("s_waitcnt vmcnt(0)\ns_barrier")
    M = NEG; AL = NEG + 2
    SA = SS[0][0]; P0 = PP[0][0]
    zero_acc()
    e(f"v_mov_b32 v{M}, {f32(-3.0e38)}\nv_mov_b32 v{M+1}, {f32(-3.0e38)}")
    addr_setup()
    e("s_mov_b32 s42, 0")
    e(f"s_mov_b32 s44, {NST}")
    e(f"{L('sloop')}:")
    e("s_barrier")
    e("s_mov_b32 s53, 0")
    dma("s53")
    e("s_waitcnt vmcnt(0)\ns_barrier")
    for t in range(4):
        for l in kread(AK0, AK1, t) + vread(t): e(l)
        e("s_waitcnt lgkmcnt(0)")
        for qb in range(2):
            for l in qk(qb, SA, "0"): e(l)
            lane_max16(SA, T, T + 1)
            e(f"v_max_f32 v{T}, v{T}, v{M+qb}\nv_sub_f32 v{AL}, v{M+qb}, v{T}\nv_exp_f32 v{AL}, v{AL}\nv_mov_b32 v{M+qb}, v{T}")
            for r in range(16): e(f"v_sub_f32 v{SA+r}, v{SA+r}, v{T}\nv_exp_f32 v{SA+r}, v{SA+r}")
            for r in range(16): e(f"v_mul_f32 v{O+16*qb+r}, v{O+16*qb+r}, v{AL}")
            for r in range(4): e(f"v_mul_f32 v{LS+4*qb+r}, v{LS+4*qb+r}, v{AL}")
            for r in range(8): e(f"v_cvt_pk_bf16_f32 v{P0+r}, v{SA+2*r}, v{SA+2*r+1}")
            for l in pv(qb, P0): e(l)
    e(f"s_sub_u32 s44, s44, 1\ns_cmp_lg_u32 s44, 0\ns_cbranch_scc1 {L('sloop')}")
    merge("s", M)
    e("s_barrier")
    e(f"s_branch {L('store')}")


def h_phase(k):
    e = k.e; L = lambda n: k.lab("h_" + n)
    HL = 125952
    e("s_lshl_b32 s36, s2, 3\ns_lshl_b32 s37, s24, 1\ns_add_u32 s36, s36, s37")
    e("s_lshl_b32 s36, s36, 11\nv_lshlrev_b32 v3, 4, v2\nv_add_u32 v3, s36, v3")
    k.srd(12, P_X, 0, S * D * 2); k.srd(16, P_WS, WS_H, S * D * 2)
    k.srd(20, P_WS, WS_MODP, 4 * 6144 * 4); k.srd(56, P_WS, WS_MODF, 6144 * 4)
    e("v_lshlrev_b32 v5, 5, v0")
    for p in range(4):
        e(f"s_mov_b32 s37, {p*24576}")
        e(f"buffer_load_dwordx4 {v(64+8*p,4)}, v5, s[20:23], s37 offen\nbuffer_load_dwordx4 {v(68+8*p,4)}, v5, s[20:23], s37 offen offset:16")
    for r in range(2):
        for hf in range(2):
            e(f"buffer_load_dwordx4 {v(8+8*r+4*hf,4)}, v3, s[12:15], 0 offen offset:{r*2048+hf*1024}")
    e("s_lshl_b32 s38, s2, 10\nv_lshlrev_b32 v6, 2, v0\nv_add_u32 v4, s38, v6")
    for p in range(4):
        e(f"s_mov_b32 s37, {p*24576}\nbuffer_load_dword v{96+p}, v4, s[20:23], s37 offen")
    nt_ = k.code_touch("h", k.lab("qkv_c"), k.lab("wo_c"), 24, 4, 1)
    e(f"s_waitcnt vmcnt({8+nt_})")
    for j in range(8):
        e(f"v_add_f32 v{64+j}, v{64+j}, v{72+j}\nv_add_f32 v{80+j}, v{80+j}, v{88+j}\nv_add_f32 v{64+j}, v{64+j}, v{80+j}")
        round_bf16(e, 64 + j)
    e("v_cmp_le_u32 vcc, 128, v0")
    for j in range(8):
        e(f"v_add_f32 v72, 1.0, v{64+j}")
        round_bf16(e, 72)
        e(f"v_cndmask_b32 v{64+j}, v{64+j}, v72, vcc")
    e(f"v_add_u32 v5, {HL}, v5\nds_write_b128 v5, v[64:67]\nds_write_b128 v5, v[68:71] offset:16")
    e("s_waitcnt lgkmcnt(0)\ns_barrier")
    e(f"v_lshlrev_b32 v5, 5, v2\nv_add_u32 v5, {HL}, v5")
    for hf in range(2):
        for q in range(2):
            e(f"ds_read_b128 {v(32+8*hf+4*q,4)}, v5 offset:{hf*2048+q*16}")
            e(f"ds_read_b128 {v(48+8*hf+4*q,4)}, v5 offset:{4096+hf*2048+q*16}")
    e(f"s_waitcnt vmcnt({4+nt_})")
    X = 64
    for r in range(2):
        for j in range(8):
            src = 8 + 8 * r + j
            e(f"v_lshlrev_b32 v{X+16*r+2*j}, 16, v{src}\nv_and_b32 v{X+16*r+2*j+1}, 0xffff0000, v{src}")
    for r in range(2): e(f"v_add_f32 v{104+r}, v{X+16*r}, v{X+16*r+1}")
    for j in range(2, 16):
        for r in range(2): e(f"v_add_f32 v{104+r}, v{104+r}, v{X+16*r+j}")
    wave_sum(e, [104, 105], 106, [0, 1, 2, 3, 4, 5])
    for r in range(2): e(f"v_mul_f32 v{104+r}, {f32(1/1024)}, v{104+r}")
    for j in range(16):
        for r in range(2): e(f"v_sub_f32 v{X+16*r+j}, v{X+16*r+j}, v{104+r}")
    for r in range(2): e(f"v_mul_f32 v{107+r}, v{X+16*r}, v{X+16*r}")
    for j in range(1, 16):
        for r in range(2): e(f"v_fmac_f32 v{107+r}, v{X+16*r+j}, v{X+16*r+j}")
    wave_sum(e, [107, 108], 106, [0, 1, 2, 3, 4, 5])
    for r in range(2):
        e(f"v_mov_b32 v{109+r}, {f32(1e-5)}\nv_fmac_f32 v{109+r}, {f32(1/1024)}, v{107+r}\nv_rsq_f32 v{109+r}, v{109+r}")
    e("s_waitcnt lgkmcnt(0)")
    for r in range(2):
        for j in range(16):
            e(f"v_mul_f32 v{X+16*r+j}, v{X+16*r+j}, v{109+r}\nv_fma_f32 v{X+16*r+j}, v{X+16*r+j}, v{48+j}, v{32+j}")
        for j in range(8): e(f"v_cvt_pk_bf16_f32 v{112+8*r+j}, v{X+16*r+2*j}, v{X+16*r+2*j+1}")
        e(f"buffer_store_dwordx4 {v(112+8*r,4)}, v3, s[16:19], 0 offen offset:{r*2048}{SCS}")
        e(f"buffer_store_dwordx4 {v(116+8*r,4)}, v3, s[16:19], 0 offen offset:{r*2048+1024}{SCS}")
    e("s_waitcnt vmcnt(4)")
    e("v_add_f32 v96, v96, v97\nv_add_f32 v98, v98, v99\nv_add_f32 v96, v96, v98")
    round_bf16(e, 96)
    e(f"s_cmp_ge_u32 s2, 24\ns_cbranch_scc1 {L('nofin')}")
    e(f"buffer_store_dword v96, v4, s[56:59], 0 offen{SCS}")
    e(f"{L('nofin')}:")
    e(f"s_lshr_b32 s35, s2, 4\ns_add_u32 s35, s35, {C_H}")
    def offs():
        e(f"s_lshr_b32 s33, s2, 4\ns_lshl_b32 s33, s33, 11\ns_and_b32 s34, s2, 15\ns_lshl_b32 s34, s34, 2\ns_add_u32 s33, s33, s34\ns_add_u32 s33, s33, {FL['qkv']}")
        e("v_lshlrev_b32 v6, 7, v2\nv_add_u32 v6, s33, v6")
    k.signal("h", 4, 35, 16, (16, offs))

def k_main():
    k = PK("main_kernel", 256, 512, LDS_TOTAL + 16384, 256, 100); e = k.e
    L = k.lab
    e(f"s_cmp_ge_u32 s2, 256\ns_cbranch_scc1 {L('end')}")
    e(f"s_load_dwordx4 s[68:71], s[0:1], {KA_X}\ns_load_dwordx4 s[72:75], s[0:1], {KA_W1}\ns_load_dwordx2 s[76:77], s[0:1], {KA_WO}")
    e(f"s_load_dwordx2 s[78:79], s[0:1], {KA_OUT}\ns_load_dwordx2 s[66:67], s[0:1], {KA_WS}")
    e("v_lshrrev_b32 v1, 6, v0\nv_and_b32 v2, 63, v0\nv_readfirstlane_b32 s24, v1")
    e(f"s_cmp_lg_u32 s24, 0\ns_cbranch_scc1 {L('noinit')}")
    e(f"v_lshlrev_b32 v3, 2, v2\nv_add_u32 v3, {CTL}, v3\nv_mov_b32 v4, 0\nds_write_b32 v3, v4\ns_waitcnt lgkmcnt(0)")
    e(f"{L('noinit')}:")
    e("s_waitcnt lgkmcnt(0)")
    k.srd(CNT, P_WS, WS_CNT, CNT_BYTES)
    k.st(0)
    e(f"s_cmp_ge_u32 s24, 4\ns_cbranch_scc1 {L('qkv_l')}")
    hin = "hsep" not in OPT
    if hin: h_phase(k)
    gemm_phase(k, "qkv", 1024, 1024, 3072, 192, WS_H, S * D * 2, P_WQKV, D * 3 * D * 2, "qkv", 8, 4, 3, L("att_c"), L("att_l"), (C_H, 16, "rb") if hin else None, (1, 2), hbar=hin)
    pf = [(P_WO, D * D * 2), (P_W1, D * DFF * 2), (P_W2, D * DFF * 2)] if "nopf" not in OPT else []
    attn_phase(k, L("wo_c"), L("wo_l"), pf)
    gemm_phase(k, "wo", 1024, 1024, 1024, 64, WS_O, S * D * 2, P_WO, D * D * 2, "wo", 4, 8, 4, L("f1_c"), L("f1_l"), (C_ATT, 32, "rb2"), (5, 6))
    gemm_phase(k, "f1", 1024, 1024, DFF, 224, WS_XG, S * D * 2, P_W1, D * DFF * 2, "ffn1", 8, 4, 3, L("f2_c"), L("f2_l"), (C_WO, 16, "rb"), (7, 8))
    gemm_phase(k, "f2", DFF, DFF, 1024, 64, WS_F1, S * DFF * 2, P_W2, DFF * D * 2, "ffn2", 4, 8, 4, L("fin"), L("end"), (C_F1, 16, "rb"), (9, 10))
    e(f"{L('fin')}:")
    if DIAG:
        e("s_waitcnt vmcnt(0)")
        k.st(11)
        e(f"s_cmp_lg_u32 s24, 0\ns_cbranch_scc1 {L('end')}")
        k.srd(12, P_WS, WS_STAMP + 8 * 512 * 16, 256 * 64)
        e(f"v_lshlrev_b32 v3, 2, v2\nv_add_u32 v4, {L_STAMP}, v3\nds_read_b32 v5, v4\ns_lshl_b32 s32, s2, 6\nv_add_u32 v3, s32, v3\ns_waitcnt lgkmcnt(0)")
        e("s_mov_b64 exec, 0xffff\nbuffer_store_dword v5, v3, s[12:15], 0 offen")
    k.finish()
    return k

def k_mod2():
    k = gen.k_mod()
    lines = k.a.lines
    i = next(n for n, l in enumerate(lines) if "buffer_load_ushort" in l)
    ins = Asm()
    ins.e(f"s_cmp_ge_u32 s2, {-(-CNT_BYTES // 4096)}\ns_cbranch_scc1 mod_kernel_nozero")
    ins.e(f"s_add_u32 s44, s8, {WS_CNT:#x}\ns_addc_u32 s45, s9, 0\ns_mov_b32 s46, {CNT_BYTES}\ns_mov_b32 s47, 0x20000")
    ins.e("s_lshl_b32 s48, s2, 12\nv_lshlrev_b32 v58, 4, v0\nv_mov_b32 v60, 0\nv_mov_b32 v61, 0\nv_mov_b32 v62, 0\nv_mov_b32 v63, 0\nbuffer_store_dwordx4 v[60:63], v58, s[44:47], s48 offen")
    ins.e("mod_kernel_nozero:")
    k.a.lines = lines[:i] + ins.lines + lines[i:]
    return k

def build():
    if "hsep" in OPT: return [k_mod2(), gen.k_h(True), k_main()]
    return [k_mod2(), k_main()]

if __name__ == "__main__":
    for a_ in list(sys.argv):
        if a_.startswith("--opt="): OPT = set(a_[6:].split(",")); sys.argv.remove(a_)
        if a_.startswith("--pfstage="): PFSTAGE = int(a_[10:]); sys.argv.remove(a_)
        if a_.startswith("--scs="): SCS = " " + a_[6:].replace("+", " "); sys.argv.remove(a_)
        if a_.startswith("--sleep="): SLEEP = int(a_[8:]); sys.argv.remove(a_)
    if "--diag" in sys.argv: DIAG = True; gen.DIAG = True; sys.argv.remove("--diag")
    txt = emit(build(), header())
    out = sys.argv[1]
    open(out, "w").write(txt)
    print("wrote", out, len(txt), "bytes")
```

```python
import sys
from asmlib import *
import gen
from gen import (NAME, S, D, DFF, H, KA_X, KA_WQKV, KA_WO, KA_BX, KA_W1, KA_W2, KA_C, KA_WMOD, KA_OUT, KA_DBG, KA_WS,
                 WS_MODP, WS_MODF, WS_H, WS_QKV, WS_O, WS_X1, WS_F1, WS_XG, WS_STAT, WS_UB, WS_STAMP, LOG2E, f32, Kern,
                 wave_sum, round_bf16, interleave, header, emit)

WS_CNT = 0x2f00000
C_QKV, C_ATT, C_WO, C_UB, C_F1, C_H = 0, 16, 24, 40, 56, 72
NCNT = 88
FL_BASE = NCNT * 256 + 1536
FL_BASE = (FL_BASE + 255) // 256 * 256
FL = {"qkv": FL_BASE, "att": FL_BASE + 256 * 128, "wo": FL_BASE + 256 * 128 + 256 * 256, "f1": FL_BASE + 256 * 256 + 2 * 256 * 128, "f2": FL_BASE + 256 * 256 + 3 * 256 * 128}
CNT_BYTES = FL_BASE + 256 * 256 + 4 * 256 * 128
OPT = set()
DIAG = False
SC = " sc1"
SCS = " sc1"
P_WS, P_X, P_WQKV, P_W1, P_W2, P_WO, P_OUT = 66, 68, 70, 72, 74, 76, 78
CNT = 28
CTL = 138240
L_SIG = {"qkv": CTL, "att": CTL + 4, "wo": CTL + 8, "ub": CTL + 12, "f1": CTL + 16, "h": CTL + 20}
L_DEP = {"wo": CTL + 32, "f1": CTL + 36, "f2": CTL + 40, "qkv": CTL + 44}
L_STAMP = CTL + 64
LDS_TOTAL = CTL + 256
SPIN_MAX = 400000
SLEEP = 2
PFSTAGE = 7

def exec_mask(n):
    if n < 32: return f"s_mov_b64 exec, {(1 << n) - 1:#x}"
    return f"s_mov_b32 exec_lo, -1\ns_mov_b32 exec_hi, {(1 << (n - 32)) - 1:#x}"

class PK(Kern):
    def st(self, i, wave=0):
        if not DIAG: return
        e = self.e; n = self.lab(f"st{i}")
        e(f"s_cmp_lg_u32 s24, {wave}\ns_cbranch_scc1 {n}\ns_memrealtime s[98:99]\ns_waitcnt lgkmcnt(0)\nv_mov_b32 v254, s98\nv_mov_b32 v255, {L_STAMP+4*i}\nds_write_b32 v255, v254\ns_waitcnt lgkmcnt(0)\n{n}:")
    def code_touch(self, tag, frm, to, part_sreg, nparts, per):
        if "nocode" in OPT: return 0
        e = self.e; here = self.lab("pc" + tag)
        e(f"s_getpc_b64 s[90:91]\n{here}:\ns_add_u32 s90, s90, {frm}-{here}\ns_addc_u32 s91, s91, 0")
        e(f"s_mul_i32 s92, s{part_sreg}, {per*8192}\nv_lshlrev_b32 v252, 7, v2\nv_add_u32 v252, s92, v252")
        for i in range(per):
            if i: e("v_add_u32 v252, 8192, v252")
            e(f"v_min_u32 v251, {to}-{frm}-4, v252\nglobal_load_dword v253, v251, s[90:91]")
        return per
    def poll(self, tag, cnt_sreg, target, lanes=1):
        e = self.e; L = self.lab
        if cnt_sreg is not None: e(f"s_lshl_b32 s32, s{cnt_sreg}, 8\nv_mov_b32 v6, s32")
        e(f"s_mov_b32 s33, 0\ns_mov_b64 exec, {(1 << lanes) - 1}")
        e(f"{L('poll'+tag)}:")
        e(f"buffer_load_dword v7, v6, {s(CNT,4)}, 0 offen offset:{0 if 'direct' in OPT else 128} sc1\ns_waitcnt vmcnt(0)")
        e(f"v_cmp_gt_u32 vcc, {target}, v7\ns_cmp_eq_u64 vcc, 0\ns_cbranch_scc1 {L('pollx'+tag)}")
        e(f"s_add_u32 s33, s33, 1\ns_cmp_ge_u32 s33, {SPIN_MAX}\ns_cbranch_scc1 {L('pollx'+tag)}")
        e(f"s_sleep {SLEEP}\ns_branch {L('poll'+tag)}")
        e(f"{L('pollx'+tag)}:\ns_mov_b64 exec, -1")
    def dep_wait_loaders(self, tag, cnt_sreg, target, first_wave_cond):
        e = self.e; L = self.lab
        e(f"s_cmp_lg_u32 s24, 4\ns_cbranch_scc1 {L('dw'+tag)}")
        if "noflags" in OPT: self.poll(tag, cnt_sreg, target)
        else:
            e(f"s_lshl_b32 s34, s25, 4\ns_add_u32 s34, s34, s26\ns_lshl_b32 s34, s34, 7\ns_add_u32 s34, s34, {FL[tag]}")
            self.wait_flags(tag, target, 34)
        e(f"v_mov_b32 v6, {L_DEP[tag]}\nv_mov_b32 v7, 1\nds_write_b32 v6, v7\ns_waitcnt lgkmcnt(0)\ns_branch {L('dwx'+tag)}")
        e(f"{L('dw'+tag)}:")
        e(f"v_mov_b32 v6, {L_DEP[tag]}\ns_mov_b32 s33, 0")
        e(f"{L('dwl'+tag)}:")
        e(f"ds_read_b32 v7, v6\ns_waitcnt lgkmcnt(0)\nv_readfirstlane_b32 s34, v7")
        e(f"s_cmp_lg_u32 s34, 0\ns_cbranch_scc1 {L('dwx'+tag)}")
        e(f"s_add_u32 s33, s33, 1\ns_cmp_ge_u32 s33, {SPIN_MAX*4}\ns_cbranch_scc1 {L('dwx'+tag)}")
        e(f"s_sleep 1\ns_branch {L('dwl'+tag)}")
        e(f"{L('dwx'+tag)}:")
    def arrive(self, tag, cnt_sreg, target):
        e = self.e; L = self.lab
        e(f"s_lshl_b32 s33, s{cnt_sreg}, 8\nv_mov_b32 v6, s33\nv_mov_b32 v7, 1")
        if "direct" in OPT:
            e(f"buffer_atomic_add v7, v6, {s(CNT,4)}, 0 offen sc1")
            return
        e(f"buffer_atomic_add v7, v6, {s(CNT,4)}, 0 offen sc0 sc1\ns_waitcnt vmcnt(0)\nv_readfirstlane_b32 s33, v7")
        e(f"s_cmp_lg_u32 s33, {target-1}\ns_cbranch_scc1 {L('arr'+tag)}")
        e(f"v_mov_b32 v7, {target}\nbuffer_store_dword v7, v6, {s(CNT,4)}, 0 offen offset:128 sc1")
        e(f"{L('arr'+tag)}:")
    def signal(self, tag, nwaves, cnt_sreg, target, flags=None):
        e = self.e; L = self.lab
        e("s_waitcnt vmcnt(0)")
        e(f"v_mov_b32 v6, {L_SIG[tag]}\nv_mov_b32 v7, 1\ns_mov_b64 exec, 1")
        e("ds_add_rtn_u32 v7, v6, v7\ns_waitcnt lgkmcnt(0)\nv_readfirstlane_b32 s32, v7\ns_mov_b64 exec, -1")
        e(f"s_cmp_lg_u32 s32, {nwaves-1}\ns_cbranch_scc1 {L('sig'+tag)}")
        if flags is not None and "noflags" not in OPT:
            n, offs = flags
            offs()
            e("v_mov_b32 v7, 1\n" + exec_mask(n))
            e(f"buffer_store_dword v7, v6, {s(CNT,4)}, 0 offen sc1")
        else:
            e("s_mov_b64 exec, 1")
            self.arrive(tag, cnt_sreg, target)
        e(f"{L('sig'+tag)}:\ns_mov_b64 exec, -1")
    def wait_flags(self, tag, n, base_sreg):
        e = self.e; L = self.lab
        e(f"v_lshlrev_b32 v6, 2, v2\nv_add_u32 v6, s{base_sreg}, v6\ns_mov_b32 s33, 0")
        e(exec_mask(n))
        e(f"{L('poll'+tag)}:")
        e(f"buffer_load_dword v7, v6, {s(CNT,4)}, 0 offen sc1\ns_waitcnt vmcnt(0)")
        e(f"v_cmp_ne_u32 vcc, 1, v7\ns_cmp_eq_u64 vcc, 0\ns_cbranch_scc1 {L('pollx'+tag)}")
        e(f"s_add_u32 s33, s33, 1\ns_cmp_ge_u32 s33, {SPIN_MAX}\ns_cbranch_scc1 {L('pollx'+tag)}")
        e(f"s_sleep {SLEEP}\ns_branch {L('poll'+tag)}")
        e(f"{L('pollx'+tag)}:\ns_mov_b64 exec, -1")

def tile_map(e, xr, xc):
    nxc = 16 // xc
    e(f"s_and_b32 s36, s2, 7\ns_lshr_b32 s37, s2, 3")
    e(f"s_and_b32 s38, s36, {nxc-1}\ns_lshr_b32 s39, s36, {nxc.bit_length()-1}")
    e(f"s_and_b32 s40, s37, {xc-1}\ns_lshr_b32 s41, s37, {xc.bit_length()-1}")
    e(f"s_mul_i32 s38, s38, {xc}\ns_add_u32 s26, s38, s40")
    e(f"s_mul_i32 s39, s39, {xr}\ns_add_u32 s25, s39, s41")

def gemm_phase(k, tag, K, lda, ldb, BN, srcA, sizeA, pB, sizeB, epi, xr, xc, NS, nxt_c, nxt_l, dep=None, stamps=(None, None), hbar=False):
    e = k.e
    L = lambda n: k.lab(tag + "_" + n)
    BM, BK = 128, 64
    nA = BM * BK * 2 // 1024; nB = BN * BK * 2 // 1024
    nAw, nBw = nA // 4, nB // 4
    nld = nAw + nBw
    SB = (nA + nB) * 1024
    nk = K // BK
    TM, TN = 64, BN // 2
    mt, nt = TM // 16, TN // 16
    pitch = BN * 2; cpr = BN // 8
    hbits = {4: 2, 6: 1, 2: 1, 0: 3}[(pitch // 32) % 8]
    ACC = 8; NACC = 4 * mt * nt
    FA = ACC + NACC; NF = 4 * (mt + nt); FB = FA + NF
    AX = FB + NF; AW = AX + 2; EP = AW + nt
    XL = 135168
    assert SB * NS <= XL
    perm = epi == "qkv" and "perm" in OPT
    asc = SC if dep else ""
    e(f"{L('c')}:")
    tile_map(e, xr, xc)
    e("s_lshr_b32 s42, s24, 1\ns_and_b32 s43, s24, 1")
    e("v_and_b32 v3, 15, v2\nv_lshrrev_b32 v4, 4, v2")
    e(f"s_lshl_b32 s44, s25, 7\ns_lshl_b32 s45, s42, 6\ns_add_u32 s44, s44, s45")
    e(f"s_mul_i32 s46, s26, {BN}\ns_mul_i32 s45, s43, {TN}\ns_add_u32 s46, s46, s45")
    k.srd(20, P_WS, WS_MODF, 6144 * 4)
    if epi == "qkv": k.srd(12, P_WS, WS_QKV, 96 * S * 64)
    elif epi == "ffn1": k.srd(12, P_WS, WS_F1, S * DFF * 2)
    elif epi == "wo": k.srd(12, P_WS, WS_X1, S * D * 2); k.srd(16, P_X, 0, S * D * 2)
    elif epi == "ffn2": k.srd(12, P_OUT, 0, S * D * 2); k.srd(16, P_WS, WS_X1, S * D * 2)
    G = EP + 2 * mt * nt; GG = G + 4 * nt; W1R = GG + 4 * nt
    if epi in ("wo", "ffn2"):
        if epi == "wo":
            e(f"v_add_u32 v5, s44, v3\nv_lshlrev_b32 v5, 11, v5\nv_lshlrev_b32 v6, 3, v4\nv_add_u32 v5, v5, v6")
            e(f"s_lshl_b32 s47, s46, 1\nv_add_u32 v5, s47, v5")
            for j in range(mt):
                e(f"s_mov_b32 s48, {j*16*2048}")
                for i in range(nt):
                    e(f"buffer_load_dwordx2 {v(EP+2*(j*nt+i),2)}, v5, s[16:19], s48 offen offset:{i*32}")
        else:
            e("s_lshl_b32 s47, s25, 4\ns_add_u32 s47, s47, s26\ns_lshl_b32 s47, s47, 2\ns_add_u32 s47, s47, s24\ns_lshl_b32 s47, s47, 12\nv_lshlrev_b32 v5, 4, v2")
            for j in range(mt):
                e(f"buffer_load_dwordx4 {v(EP+4*j,4)}, v5, s[16:19], s47 offen offset:{j*1024}{SC}")
        gate = (5 if epi == "ffn2" else 2) * 1024
        e(f"v_lshlrev_b32 v6, 4, v4\ns_lshl_b32 s47, s46, 2\ns_add_u32 s47, s47, {gate*4}")
        for i in range(nt):
            e(f"buffer_load_dwordx4 {v(G+4*i,4)}, v6, s[20:23], s47 offen offset:{i*64}{SC}")
        if epi == "wo":
            e(f"s_lshl_b32 s47, s46, 2\ns_add_u32 s47, s47, {4096*4}")
            for i in range(nt):
                e(f"buffer_load_dwordx4 {v(GG+4*i,4)}, v6, s[20:23], s47 offen offset:{i*64}{SC}")
            e("s_lshr_b32 s58, s2, 4\ns_and_b32 s59, s2, 15")
            e(f"v_mul_u32_u24 v5, {(65536+27)//28}, v2\nv_lshrrev_b32 v5, 16, v5\nv_mul_u32_u24 v6, 28, v5\nv_sub_u32 v6, v2, v6")
            e("s_lshl_b32 s60, s58, 6\ns_lshl_b32 s61, s24, 4\ns_add_u32 s60, s60, s61\nv_add_u32 v5, s60, v5")
            e(f"v_mul_u32_u24 v7, {DFF*2}, v5\nv_lshlrev_b32 v6, 4, v6\nv_add_u32 v7, v7, v6\ns_mul_i32 s60, s59, 448\nv_add_u32 v7, s60, v7")
            k.srd(60, P_W1, 0, D * DFF * 2)
            e("v_cmp_gt_u32 vcc, 56, v2\ns_and_saveexec_b64 s[34:35], vcc")
            for i in range(8):
                e(f"s_mov_b32 s64, {i*2*DFF*2}")
                e(f"buffer_load_dwordx4 {v(W1R+4*i,4)}, v7, s[60:63], s64 offen")
            e("v_lshlrev_b32 v5, 2, v5")
            e(f"s_mov_b32 s64, {4096*4}\ns_mov_b32 s65, {3072*4}")
            for i in range(8):
                e(f"buffer_load_dword v{W1R+32+i}, v5, s[20:23], s64 offen offset:{i*8}{SC}")
                e(f"buffer_load_dword v{W1R+40+i}, v5, s[20:23], s65 offen offset:{i*8}{SC}")
            e("s_mov_b64 exec, s[34:35]")
    e(f"v_lshrrev_b32 v5, 1, v3\nv_xor_b32 v5, v5, v4\nv_and_b32 v5, 7, v5")
    e(f"v_lshlrev_b32 v5, 4, v5\ns_lshl_b32 s47, s42, 6\nv_add_u32 v6, s47, v3\nv_lshlrev_b32 v6, 7, v6")
    e(f"v_add_u32 v{AX}, v5, v6\nv_xor_b32 v{AX+1}, 64, v{AX}")
    e("v_lshrrev_b32 v5, 2, v3\nv_and_b32 v6, 3, v2")
    e("v_lshlrev_b32 v7, 3, v4\nv_add_u32 v7, v7, v5")
    e(f"v_mul_u32_u24 v7, {pitch}, v7\nv_lshlrev_b32 v6, 3, v6\nv_add_u32 v7, v7, v6\nv_add_u32 v7, {nA*1024}, v7")
    if hbits == 2: e("v_lshrrev_b32 v5, 1, v5\nv_and_b32 v6, 1, v4\nv_lshlrev_b32 v6, 1, v6\nv_or_b32 v5, v5, v6")
    elif hbits == 1: e("v_and_b32 v5, 1, v4")
    else: e("v_and_b32 v6, 1, v4\nv_lshlrev_b32 v6, 2, v6\nv_or_b32 v5, v5, v6")
    e(f"s_mul_i32 s47, s43, {nt}")
    for i in range(nt):
        e(f"s_add_u32 s48, s47, {i}\nv_xor_b32 v6, s48, v5\nv_lshlrev_b32 v6, 5, v6\nv_add_u32 v{AW+i}, v7, v6")
    for r in range(NACC): e(f"v_mov_b32 v{ACC+r}, 0")
    def reads(ss, F):
        xs = [f"ds_read_b128 {v(F+4*j,4)}, v{AX+ss} offset:{j*2048}" for j in range(mt)]
        ws = []
        for i in range(nt):
            for hh in range(2):
                ws.append(f"ds_read_b64_tr_b16 {v(F+4*mt+4*i+2*hh,2)}, v{AW+i} offset:{(ss*32+hh*4)*pitch}")
        return [xs[0]] + ws[:2] + xs[1:] + ws[2:]
    def mfmas(F):
        return [f"v_mfma_f32_16x16x32_bf16 {v(ACC+4*(j*nt+i),4)}, {v(F+4*mt+4*i,4)}, {v(F+4*j,4)}, {v(ACC+4*(j*nt+i),4)}"
                for j in range(mt) for i in range(nt)]
    def mix(mf, rd, extra=()):
        rd = list(rd)
        if len(rd) * 2 <= len(mf) + 4 and len(mf) >= 16:
            return interleave(mf, rd + list(extra))
        out = []; oi = 0; ex = list(extra)
        for m_ in mf:
            out.append(m_)
            for _ in range(2):
                if oi < len(rd): out.append(rd[oi]); oi += 1
            if oi >= len(rd) and ex: out.append(ex.pop(0))
        out += rd[oi:] + ex
        return out
    if epi == "wo": k.code_touch("w", k.lab("f1_c"), k.lab("f2_c"), 24, 4, 1)
    if epi == "ffn1": k.code_touch("f", k.lab("f1_cloop"), k.lab("end"), 24, 4, 1)
    e(f"s_mov_b32 s49, 0\ns_mov_b32 s54, {SB}\ns_mov_b32 s55, {-(NS-1)*SB & 0xffffffff:#x}")
    e("s_barrier")
    if stamps[0] is not None: k.st(stamps[0])
    for l in reads(0, FA): e(l)
    e(f"s_mov_b32 s50, {nk-1}")
    adv_s = f"s_add_u32 s49, s49, 1\ns_cmp_eq_u32 s49, {NS}\ns_cselect_b32 s51, s55, s54\ns_cselect_b32 s49, 0, s49"
    adv_v = [f"v_add_u32 v{r}, s51, v{r}" for r in [AX, AX + 1] + [AW + i for i in range(nt)]]
    e(f"{L('cloop')}:")
    e(adv_s)
    e("s_waitcnt lgkmcnt(0)")
    seq = interleave(mfmas(FA), reads(1, FB)) if "oldmix" in OPT else mix(mfmas(FA), reads(1, FB))
    last_rd = max(i for i, x in enumerate(seq) if x.startswith("ds_read"))
    tail = [x for x in seq[last_rd + 1:]]
    seq = seq[:last_rd + 1]
    av = list(adv_v)
    for x in tail:
        seq.append(x)
        if av: seq.append(av.pop(0))
    seq += av
    for l in seq: e(l)
    e("s_waitcnt lgkmcnt(0)\ns_barrier")
    for l in (interleave(mfmas(FB), reads(0, FA)) if "oldmix" in OPT else mix(mfmas(FB), reads(0, FA))): e(l)
    e(f"s_sub_u32 s50, s50, 1\ns_cmp_lg_u32 s50, 0\ns_cbranch_scc1 {L('cloop')}")
    e("s_waitcnt lgkmcnt(0)")
    for l in mix(mfmas(FA), reads(1, FB)): e(l)
    e("s_waitcnt lgkmcnt(0)")
    if epi != "qkv": e("s_barrier")
    for l in mfmas(FB): e(l)
    if stamps[1] is not None: k.st(stamps[1])
    T = FA
    def acc(i, j): return ACC + 4 * (j * nt + i)
    def pack_pair(ta, tb, dst):
        e(f"v_cvt_pk_bf16_f32 v{dst}, v{ta}, v{ta+1}\nv_cvt_pk_bf16_f32 v{dst+1}, v{ta+2}, v{ta+3}")
        e(f"v_cvt_pk_bf16_f32 v{dst+2}, v{tb}, v{tb+1}\nv_cvt_pk_bf16_f32 v{dst+3}, v{tb+2}, v{tb+3}")
        e(f"v_permlane16_swap_b32 v{dst}, v{dst+2}\nv_permlane16_swap_b32 v{dst+1}, v{dst+3}")
    e("v_and_b32 v5, 1, v4\nv_lshlrev_b32 v5, 5, v5\nv_lshrrev_b32 v6, 1, v4\nv_lshlrev_b32 v6, 4, v6\nv_add_u32 v5, v5, v6")
    if epi == "qkv":
        e("v_lshlrev_b32 v6, 6, v3\nv_add_u32 v5, v5, v6")
        n = 0
        for p in range(nt // 2):
            if perm:
                e(f"s_mul_i32 s52, s43, 96\ns_add_u32 s52, s52, {32*p}\ns_cmp_lt_u32 s52, 64\ns_cselect_b32 s53, {f32(LOG2E * 32 ** -0.5)}, 1.0")
                e("s_lshr_b32 s54, s52, 6\ns_lshl_b32 s54, s54, 5\ns_bfe_u32 s52, s52, 0x10005\ns_add_u32 s52, s52, s54\ns_lshl_b32 s54, s26, 1\ns_add_u32 s52, s52, s54")
                e("s_lshl_b32 s52, s52, 17\ns_lshl_b32 s54, s44, 6\ns_add_u32 s52, s52, s54")
            else:
                e(f"s_add_u32 s52, s46, {32*p}\ns_cmp_lt_u32 s52, 1024\ns_cselect_b32 s53, {f32(LOG2E * 32 ** -0.5)}, 1.0")
                e(f"s_lshl_b32 s52, s52, 12\ns_lshl_b32 s54, s44, 6\ns_add_u32 s52, s52, s54")
            for j in range(mt):
                ta, tb = acc(2 * p, j), acc(2 * p + 1, j)
                for r in range(4):
                    e(f"v_mul_f32 v{ta+r}, s53, v{ta+r}\nv_mul_f32 v{tb+r}, s53, v{tb+r}")
                d = T + 4 * (n % 8); n += 1
                pack_pair(ta, tb, d)
                e(f"buffer_store_dwordx4 {v(d,4)}, v5, s[12:15], s52 offen offset:{j*1024}{SCS}")
        e(f"s_add_u32 s35, s26, {C_QKV}")
        k.signal("qkv", 4, 35, 16, (48, lambda: e(f"s_mul_i32 s33, s26, 6\nv_lshrrev_b32 v6, 3, v2\nv_add_u32 v6, s33, v6\nv_lshrrev_b32 v7, 5, v6\nv_and_b32 v6, 31, v6\nv_lshlrev_b32 v6, 11, v6"
                                                        f"\nv_lshlrev_b32 v7, 6, v7\nv_add_u32 v6, v6, v7\nv_and_b32 v7, 7, v2\nv_lshlrev_b32 v7, 8, v7\nv_add_u32 v6, v6, v7"
                                                        f"\ns_lshl_b32 s33, s25, 2\ns_add_u32 s33, s33, {FL['att']}\nv_add_u32 v6, s33, v6")))
    elif epi == "ffn1":
        ST = FA; UU = FA + 8; BB = FA + 36; TMP = FA + 64; T = FA + 72
        e(f"s_lshl_b32 s47, s42, 6\nv_add_u32 v6, s47, v3\nv_lshlrev_b32 v6, 3, v6\nv_add_u32 v6, {XL}, v6")
        for j in range(mt): e(f"ds_read_b64 {v(ST+2*j,2)}, v6 offset:{j*128}")
        e(f"s_mul_i32 s47, s43, {TN*4}\ns_add_u32 s47, s47, {XL+1024}\nv_lshlrev_b32 v7, 4, v4\nv_add_u32 v7, s47, v7")
        for i in range(nt):
            e(f"ds_read_b128 {v(UU+4*i,4)}, v7 offset:{i*64}\nds_read_b128 {v(BB+4*i,4)}, v7 offset:{896+i*64}")
        e("s_lshl_b32 s47, s42, 6\nv_add_u32 v6, s47, v3\nv_lshlrev_b32 v6, 6, v6\nv_lshrrev_b32 v7, 1, v4\nv_lshlrev_b32 v7, 4, v7\nv_add_u32 v6, v6, v7")
        e("v_and_b32 v7, 1, v4\nv_lshlrev_b32 v5, 5, v7\nv_add_u32 v5, v5, v6")
        e("v_lshlrev_b32 v7, 10, v7\nv_add_u32 v6, v6, v7\ns_lshl_b32 s47, s43, 5\nv_add_u32 v6, s47, v6")
        e(f"s_mul_i32 s48, s25, 112\ns_mul_i32 s47, s26, 7\ns_add_u32 s48, s48, s47\ns_lshl_b32 s48, s48, 13")
        e(f"s_add_u32 s53, s48, {3*8192}")
        e("s_waitcnt lgkmcnt(0)")
        def ln(i, j, t):
            a_ = acc(i, j)
            for h_ in range(2):
                e(f"v_pk_fma_f32 {v(t+2*h_,2)}, {v(ST+2*j,2)}, {v(UU+4*i+2*h_,2)}, {v(BB+4*i+2*h_,2)} op_sel_hi:[0,1,1] neg_lo:[1,0,0] neg_hi:[1,0,0]")
            for h_ in range(2):
                e(f"v_pk_fma_f32 {v(a_+2*h_,2)}, {v(a_+2*h_,2)}, {v(ST+2*j,2)}, {v(t+2*h_,2)} op_sel:[0,1,0]")
        cnt = [0]
        def put(ta, tb, addr, soff, off):
            d = T + 4 * (cnt[0] % 4); cnt[0] += 1
            e(f"v_cvt_pk_bf16_f32 v{d}, v{ta}, v{ta+1}\nv_cvt_pk_bf16_f32 v{d+1}, v{ta+2}, v{ta+3}")
            e(f"v_cvt_pk_bf16_f32 v{d+2}, v{tb}, v{tb+1}\nv_cvt_pk_bf16_f32 v{d+3}, v{tb+2}, v{tb+3}")
            for q in range(4): e(f"v_pk_max_i16 v{d+q}, v{d+q}, 0")
            e(f"v_permlane16_swap_b32 v{d}, v{d+2}\nv_permlane16_swap_b32 v{d+1}, v{d+3}")
            e(f"buffer_store_dwordx4 {v(d,4)}, {addr}, s[12:15], {soff} offen offset:{off}{SCS}")
        XA = 139264; XR = T + 16
        e(f"s_lshl_b32 s47, s24, 10\nv_lshlrev_b32 v7, 4, v2\nv_add_u32 v7, s47, v7\nv_add_u32 v7, {XA}, v7")
        e(f"s_cmp_eq_u32 s43, 1\ns_cbranch_scc1 {L('ep1')}")
        for wn_ in range(2):
            if wn_ == 1: e(f"{L('ep1')}:\ns_add_u32 s48, s48, {4*8192}")
            single = 6 if wn_ == 0 else 0
            pairs = [(0, 1), (2, 3), (4, 5)] if wn_ == 0 else [(1, 2), (3, 4), (5, 6)]
            mine = (0, 1) if wn_ == 0 else (2, 3); give = (2, 3) if wn_ == 0 else (0, 1)
            for jj in (0, 2):
                ln(single, jj, TMP); ln(single, jj + 1, TMP + 4)
            for j in range(4):
                a_ = acc(single, j)
                e(f"v_cvt_pk_bf16_f32 v{XR+2*j}, v{a_}, v{a_+1}\nv_cvt_pk_bf16_f32 v{XR+2*j+1}, v{a_+2}, v{a_+3}")
            for q in range(8): e(f"v_pk_max_i16 v{XR+q}, v{XR+q}, 0")
            e(f"ds_write_b128 v7, {v(XR+2*give[0],4)}\ns_waitcnt lgkmcnt(0)")
            e(f"s_lshl_b32 s47, s24, 2\ns_add_u32 s47, s47, {CTL+48}\nv_mov_b32 v{TMP}, s47\nv_mov_b32 v{TMP+1}, 1\nds_write_b32 v{TMP}, v{TMP+1}")
            for pi, (ia, ib) in enumerate(pairs):
                for j in range(mt):
                    ln(ia, j, TMP); ln(ib, j, TMP + 4)
                    put(acc(ia, j), acc(ib, j), "v5", "s48", j * 1024)
                if pi < 2: e("s_add_u32 s48, s48, 8192")
            tg = f"x{wn_}"
            e(f"s_xor_b32 s47, s24, 1\ns_lshl_b32 s47, s47, 2\ns_add_u32 s47, s47, {CTL+48}\nv_mov_b32 v{TMP}, s47\ns_mov_b32 s33, 0")
            e(f"{L('xw'+tg)}:\nds_read_b32 v{TMP+1}, v{TMP}\ns_waitcnt lgkmcnt(0)\nv_readfirstlane_b32 s34, v{TMP+1}")
            e(f"s_cmp_lg_u32 s34, 0\ns_cbranch_scc1 {L('xx'+tg)}\ns_add_u32 s33, s33, 1\ns_cmp_lt_u32 s33, {SPIN_MAX}\ns_cbranch_scc1 {L('xw'+tg)}")
            e(f"{L('xx'+tg)}:")
            e(f"v_xor_b32 v7, 1024, v7\nds_read_b128 {v(TMP,4)}, v7\ns_waitcnt lgkmcnt(0)")
            for n_, j in enumerate(mine):
                d = T + 4 * (cnt[0] % 4); cnt[0] += 1
                own = XR + 2 * j; oth = TMP + 2 * n_
                a0, b0 = (own, oth) if wn_ == 0 else (oth, own)
                e(f"v_mov_b32 v{d}, v{a0}\nv_mov_b32 v{d+1}, v{a0+1}\nv_mov_b32 v{d+2}, v{b0}\nv_mov_b32 v{d+3}, v{b0+1}")
                e(f"v_permlane16_swap_b32 v{d}, v{d+2}\nv_permlane16_swap_b32 v{d+1}, v{d+3}")
                e(f"buffer_store_dwordx4 {v(d,4)}, v5, s[12:15], s53 offen offset:{j*1024}{SCS}")
            if wn_ == 0: e(f"s_branch {L('ep2')}")
        e(f"{L('ep2')}:")
        if "stf1" in OPT: k.st(12)
        e(f"s_add_u32 s35, s25, {C_F1}")
        k.signal("f1", 4, 35, 16, (16, lambda: e(f"s_lshl_b32 s33, s25, 11\ns_lshl_b32 s34, s26, 2\ns_add_u32 s33, s33, s34\ns_add_u32 s33, s33, {FL['f2']}\nv_lshlrev_b32 v6, 7, v2\nv_add_u32 v6, s33, v6")))
        if "stf1" in OPT: k.st(13)
    else:
        e("s_waitcnt vmcnt(0)")
        XT = T + 32
        e(f"v_add_u32 v6, s44, v3\nv_lshlrev_b32 v6, 11, v6\ns_lshl_b32 s47, s46, 1\nv_add_u32 v6, s47, v6\nv_add_u32 v5, v5, v6")
        if epi == "wo":
            k.srd(16, P_WS, WS_XG, S * D * 2); k.srd(60, P_WS, WS_STAT, 32 * S * 8)
            for r in range(4 * nt):
                e(f"v_add_f32 v{GG+r}, 1.0, v{GG+r}"); round_bf16(e, GG + r)
            e(f"s_lshl_b32 s49, s26, 1\ns_add_u32 s49, s49, s43\ns_lshl_b32 s49, s49, 14\ns_lshl_b32 s50, s44, 3\ns_add_u32 s49, s49, s50")
            e("v_lshlrev_b32 v1, 3, v3\nv_and_b32 v6, 1, v4\nv_lshlrev_b32 v6, 2, v6\nv_add_u32 v1, v1, v6")
            e("s_lshl_b32 s47, s25, 4\ns_add_u32 s47, s47, s26\ns_lshl_b32 s47, s47, 2\ns_add_u32 s47, s47, s24\ns_lshl_b32 s47, s47, 12\nv_lshlrev_b32 v7, 4, v2\nv_mov_b32 v253, v7")
        for j in range(mt):
            e(f"s_mov_b32 s48, {j*16*2048}")
            d = T + 4 * (j % 2); d2 = T + 8 + 4 * (j % 2); SM = T + 16 + 4 * (j % 2)
            for i in range(nt):
                a0 = acc(i, j); x0 = EP + 2 * (j * nt + i)
                for q in range(2):
                    e(f"v_lshlrev_b32 v{XT+2*q}, 16, v{x0+q}\nv_and_b32 v{XT+2*q+1}, 0xffff0000, v{x0+q}")
                for q in range(2):
                    e(f"v_pk_fma_f32 {v(a0+2*q,2)}, {v(a0+2*q,2)}, {v(G+4*i+2*q,2)}, {v(XT+2*q,2)}")
            ta, tb = acc(0, j), acc(1, j)
            e(f"v_cvt_pk_bf16_f32 v{d}, v{ta}, v{ta+1}\nv_cvt_pk_bf16_f32 v{d+1}, v{ta+2}, v{ta+3}")
            e(f"v_cvt_pk_bf16_f32 v{d+2}, v{tb}, v{tb+1}\nv_cvt_pk_bf16_f32 v{d+3}, v{tb+2}, v{tb+3}")
            if epi == "ffn2":
                e(f"v_permlane16_swap_b32 v{d}, v{d+2}\nv_permlane16_swap_b32 v{d+1}, v{d+3}")
                e(f"buffer_store_dwordx4 {v(d,4)}, v5, s[12:15], s48 offen")
                continue
            for q in range(2):
                e(f"v_pk_mul_f32 {v(XT+2*q,2)}, {v(ta+2*q,2)}, {v(GG+2*q,2)}\nv_pk_mul_f32 {v(XT+4+2*q,2)}, {v(tb+2*q,2)}, {v(GG+4+2*q,2)}")
            for q in range(4): e(f"v_cvt_pk_bf16_f32 v{d2+q}, v{XT+2*q}, v{XT+2*q+1}")
            e(f"v_permlane16_swap_b32 v{d2}, v{d2+2}\nv_permlane16_swap_b32 v{d2+1}, v{d2+3}")
            e(f"buffer_store_dwordx4 {v(d2,4)}, v5, s[16:19], s48 offen{SCS}")
            e(f"buffer_store_dwordx4 {v(d,4)}, v253, s[12:15], s47 offen offset:{j*1024}{SCS}")
            e(f"v_pk_add_f32 {v(SM,2)}, {v(ta,2)}, {v(ta+2,2)}\nv_pk_mul_f32 {v(SM+2,2)}, {v(ta,2)}, {v(ta,2)}")
            e(f"v_pk_add_f32 {v(SM,2)}, {v(SM,2)}, {v(tb,2)}\nv_pk_fma_f32 {v(SM+2,2)}, {v(ta+2,2)}, {v(ta+2,2)}, {v(SM+2,2)}")
            e(f"v_pk_add_f32 {v(SM,2)}, {v(SM,2)}, {v(tb+2,2)}\nv_pk_fma_f32 {v(SM+2,2)}, {v(tb,2)}, {v(tb,2)}, {v(SM+2,2)}")
            e(f"v_pk_fma_f32 {v(SM+2,2)}, {v(tb+2,2)}, {v(tb+2,2)}, {v(SM+2,2)}")
            e(f"v_add_f32 v{SM}, v{SM}, v{SM+1}\nv_add_f32 v{SM+2}, v{SM+2}, v{SM+3}")
            e(f"v_permlane16_swap_b32 v{SM}, v{SM+2}\nv_add_f32 v{SM}, v{SM}, v{SM+2}\nv_mov_b32 v{SM+1}, v{SM}")
            e(f"v_permlane32_swap_b32 v{SM}, v{SM+1}\nv_add_f32 v{SM}, v{SM}, v{SM+1}")
            e(f"s_mov_b32 exec_lo, -1\ns_mov_b32 exec_hi, 0\nbuffer_store_dword v{SM}, v1, s[60:63], s49 offen offset:{j*128}{SCS}\ns_mov_b64 exec, -1")
        if epi == "wo":
            if "stwo" in OPT: k.st(12)
            e(f"s_add_u32 s35, s25, {C_WO}")
            k.signal("wo", 4, 35, 16, (16, lambda: e(f"s_lshl_b32 s33, s25, 11\ns_lshl_b32 s34, s26, 2\ns_add_u32 s33, s33, s34\ns_add_u32 s33, s33, {FL['f1']}\nv_lshlrev_b32 v6, 7, v2\nv_add_u32 v6, s33, v6")))
            if "stwo" in OPT: k.st(13)
            UA = ACC
            for r in range(16): e(f"v_mov_b32 v{UA+r}, 0")
            for i in range(8):
                g_ = W1R + 32 + i; s_ = W1R + 40 + i
                e(f"v_add_f32 v{g_}, 1.0, v{g_}"); round_bf16(e, g_)
                for q in range(4):
                    w_ = W1R + 4 * i + q
                    e(f"v_lshlrev_b32 v6, 16, v{w_}\nv_and_b32 v7, 0xffff0000, v{w_}")
                    e(f"v_fmac_f32 v{UA+2*q}, v{g_}, v6\nv_fmac_f32 v{UA+2*q+1}, v{g_}, v7\nv_fmac_f32 v{UA+8+2*q}, v{s_}, v6\nv_fmac_f32 v{UA+8+2*q+1}, v{s_}, v7")
            UL = 139264
            e(f"v_mul_u32_u24 v5, {(65536+27)//28}, v2\nv_lshrrev_b32 v5, 16, v5\nv_mul_u32_u24 v6, 28, v5\nv_sub_u32 v6, v2, v6")
            e(f"s_lshl_b32 s32, s24, 1\nv_add_u32 v5, s32, v5\nv_mul_u32_u24 v5, 1792, v5\nv_lshlrev_b32 v6, 5, v6\nv_add_u32 v5, v5, v6\nv_add_u32 v5, {UL}, v5")
            e("v_cmp_gt_u32 vcc, 56, v2\ns_and_saveexec_b64 s[34:35], vcc")
            e(f"ds_write_b128 v5, {v(UA,4)}\nds_write_b128 v5, {v(UA+4,4)} offset:16\nds_write_b128 v5, {v(UA+8,4)} offset:896\nds_write_b128 v5, {v(UA+12,4)} offset:912")
            e("s_mov_b64 exec, s[34:35]\ns_waitcnt lgkmcnt(0)")
            e(f"v_mov_b32 v6, {L_SIG['ub']}\nv_mov_b32 v7, 1\ns_mov_b64 exec, 1")
            e("ds_add_rtn_u32 v7, v6, v7\ns_waitcnt lgkmcnt(0)\nv_readfirstlane_b32 s32, v7\ns_mov_b64 exec, -1")
            e(f"s_cmp_lg_u32 s32, 3\ns_cbranch_scc1 {L('ubx')}")
            e(f"v_lshlrev_b32 v5, 2, v2\nv_add_u32 v5, {UL}, v5")
            for m_ in range(7):
                for rr in range(8): e(f"ds_read_b32 v{UA+rr}, v5 offset:{rr*1792+m_*256}")
                e("s_waitcnt lgkmcnt(0)")
                for rr in range(1, 8): e(f"v_add_f32 v{UA}, v{UA}, v{UA+rr}")
                e(f"v_mov_b32 v{UA+16+m_}, v{UA}")
            k.srd(16, P_WS, WS_UB, 16 * 2 * DFF * 4)
            e(f"s_mul_i32 s49, s58, {2*DFF*4}\ns_mul_i32 s50, s59, 896\ns_add_u32 s49, s49, s50")
            for m_ in range(7):
                e(f"v_add_u32 v5, {64*m_}, v2\nv_cmp_le_u32 vcc, 224, v5\nv_mov_b32 v6, {DFF*4 - 896}\nv_cndmask_b32 v6, 0, v6, vcc\nv_lshl_add_u32 v5, v5, 2, v6")
                e(f"buffer_store_dword v{UA+16+m_}, v5, s[16:19], s49 offen{SCS}")
            e("s_waitcnt vmcnt(0)")
            e(f"s_add_u32 s35, s59, {C_UB}\ns_mov_b64 exec, 1")
            k.arrive("ub", 35, 16)
            e("s_mov_b64 exec, -1")
            e(f"{L('ubx')}:")
    e(f"s_branch {nxt_c}")
    e(f"{L('l')}:")
    tile_map(e, xr, xc)
    k.srd(4, P_WS, srcA, sizeA); k.srd(8, pB, 0, sizeB)
    e("s_sub_u32 s42, s24, 4")
    LA = 8
    lda2, ldb2 = lda * 2, ldb * 2
    blocked = epi == "ffn2"
    if blocked:
        e(f"s_mul_i32 s43, s25, {112*8192}\ns_mul_i32 s44, s42, {nAw*8*64}\ns_add_u32 s43, s43, s44")
        e("v_lshrrev_b32 v3, 3, v2\nv_lshlrev_b32 v3, 6, v3\nv_add_u32 v3, s43, v3")
        e("v_and_b32 v4, 7, v2\nv_lshrrev_b32 v5, 4, v2")
        for i in range(nAw):
            e(f"v_xor_b32 v6, {(i&1)*4}, v5\nv_xor_b32 v6, v6, v4\nv_lshrrev_b32 v7, 2, v6\nv_lshlrev_b32 v7, 13, v7\nv_and_b32 v6, 3, v6\nv_lshlrev_b32 v6, 4, v6")
            e(f"v_add3_u32 v6, v6, v7, v3\nv_add_u32 v{LA+i}, {i*8*64}, v6")
    else:
        e(f"s_lshl_b32 s43, s25, 7\ns_mul_i32 s44, s42, {nAw*8}\ns_add_u32 s43, s43, s44")
        e(f"v_lshrrev_b32 v3, 3, v2\nv_add_u32 v3, s43, v3\ns_mov_b32 s45, {lda2}\nv_mul_lo_u32 v3, s45, v3")
        e("v_and_b32 v4, 7, v2\nv_lshrrev_b32 v5, 4, v2")
        for i in range(nAw):
            e(f"v_xor_b32 v6, {(i&1)*4}, v5\nv_xor_b32 v6, v6, v4\nv_lshlrev_b32 v6, 4, v6\nv_add_u32 v6, v6, v3")
            e(f"v_add_u32 v{LA+i}, {i*8*lda2}, v6")
    ASTEP = 16384 if blocked else BK * 2
    magic = (65536 + cpr - 1) // cpr
    assert all((p * magic) >> 16 == p // cpr for p in range(nBw * 64)) and nBw * 64 == 16 * cpr
    e(f"s_mul_i32 s43, s42, {16*ldb2}\ns_mul_i32 s44, s26, {128 if perm else BN*2}\ns_add_u32 s43, s43, s44")
    for i in range(nBw):
        e(f"v_add_u32 v3, {i*64}, v2\nv_mul_u32_u24 v4, {magic}, v3\nv_lshrrev_b32 v4, 16, v4")
        e(f"v_mul_u32_u24 v5, {cpr}, v4\nv_sub_u32 v3, v3, v5")
        if hbits == 2: e("v_and_b32 v5, 2, v4\nv_lshrrev_b32 v6, 1, v4\nv_and_b32 v6, 4, v6\nv_or_b32 v5, v5, v6")
        elif hbits == 1: e("v_lshrrev_b32 v5, 2, v4\nv_and_b32 v5, 2, v5")
        else: e("v_and_b32 v5, 3, v4\nv_lshrrev_b32 v6, 1, v4\nv_and_b32 v6, 4, v6\nv_or_b32 v5, v5, v6\nv_lshlrev_b32 v5, 1, v5")
        e("v_xor_b32 v3, v3, v5")
        if perm: e("v_lshrrev_b32 v5, 3, v3\nv_and_b32 v3, 7, v3\nv_lshlrev_b32 v5, 7, v5\nv_add_u32 v3, v3, v5")
        e(f"v_lshlrev_b32 v3, 4, v3\ns_mov_b32 s45, {ldb2}\nv_mul_lo_u32 v4, s45, v4\nv_add_u32 v3, v3, v4")
        e(f"v_add_u32 v{LA+nAw+i}, s43, v3")
    e(f"s_mul_i32 s46, s42, {nAw*1024}")
    e(f"s_mul_i32 s47, s42, {nBw*1024}\ns_add_u32 s47, s47, {nA*1024}")
    def issue_x(lds_s, off_s):
        for i in range(nAw):
            e(f"s_add_u32 m0, {lds_s}, {i*1024}")
            e(f"buffer_load_dwordx4 v{LA+i}, s[4:7], {off_s} offen{asc} lds")
    def issue_w(lds_s, off_s):
        for i in range(nBw):
            e(f"s_add_u32 m0, {lds_s}, {i*1024}")
            e(f"buffer_load_dwordx4 v{LA+nAw+i}, s[8:11], {off_s} offen lds")
    def w_prologue():
        for st in range(NS - 1):
            e(f"s_add_u32 s52, s47, {st*SB}\ns_mov_b32 s49, {st*BK*ldb2}")
            issue_w("s52", "s49")
    if dep:
        base, target, kind = dep
        e(f"s_lshr_b32 s35, s25, 1\ns_add_u32 s35, s35, {base}" if kind == "rb2" else f"s_add_u32 s35, s25, {base}")
        if "wfirst" in OPT:
            w_prologue()
            k.dep_wait_loaders(tag, 35, target, None)
        else:
            e(f"s_cmp_eq_u32 s24, 4\ns_cbranch_scc1 {L('w4a')}")
            w_prologue()
            e(f"{L('w4a')}:")
            if hbar: e("s_barrier")
            k.dep_wait_loaders(tag, 35, target, None)
            e(f"s_cmp_lg_u32 s24, 4\ns_cbranch_scc1 {L('w4b')}")
            w_prologue()
            e(f"{L('w4b')}:")
        if tag == "f1" and "stwo" in OPT: k.st(14, 4)
        if tag == "wo" and "statt" in OPT: k.st(15, 4)
        if tag == "f2" and "stf1" in OPT: k.st(14, 4)
    else:
        w_prologue()
    for st in range(NS - 1):
        e(f"s_add_u32 s51, s46, {st*SB}\ns_mov_b32 s48, {st*ASTEP}")
        issue_x("s51", "s48")
    e(f"s_mov_b32 s48, {(NS-1)*ASTEP}\ns_mov_b32 s49, {(NS-1)*BK*ldb2}\ns_mov_b32 s50, {(NS-1)*SB}")
    def issue():
        e("s_add_u32 s51, s50, s46\ns_add_u32 s52, s50, s47")
        issue_x("s51", "s48"); issue_w("s52", "s49")
        e(f"s_add_u32 s48, s48, {ASTEP}\ns_add_u32 s49, s49, {BK*ldb2}")
        e(f"s_add_u32 s50, s50, {SB}\ns_cmp_eq_u32 s50, {SB*NS}\ns_cselect_b32 s50, 0, s50")
    e(f"s_waitcnt vmcnt({nAw*(NS-2)})\ns_barrier")
    issue()
    e(f"s_waitcnt vmcnt({nAw*(NS-3) + nld})\ns_barrier" if NS >= 3 else "")
    issue()
    for t in range(2, NS - 1):
        e(f"s_waitcnt vmcnt({nAw*(NS-2-t) + nld*t})\ns_barrier")
        issue()
    done = max(2, NS - 1)
    e(f"s_mov_b32 s53, {nk-(NS-1)-done}")
    e(f"{L('lloop')}:")
    e(f"s_waitcnt vmcnt({nld*(NS-2)})\ns_barrier")
    issue()
    e(f"s_sub_u32 s53, s53, 1\ns_cmp_lg_u32 s53, 0\ns_cbranch_scc1 {L('lloop')}")
    nx = 0
    for t in range(NS - 1):
        e(f"s_waitcnt vmcnt({nld*(NS-2-t)+nx})\ns_barrier")
        if epi == "ffn1" and t == 0:
            nx = 32
            k.srd(56, P_WS, WS_STAT, 32 * S * 8); k.srd(60, P_WS, WS_UB, 16 * 2 * DFF * 4)
            e(f"s_cmp_ge_u32 s42, 2\ns_cbranch_scc1 {L('ubld')}")
            e(f"s_lshl_b32 s43, s42, 6\nv_add_u32 v3, s43, v2\ns_lshl_b32 s44, s25, 7\nv_add_u32 v4, s44, v3\nv_lshlrev_b32 v4, 3, v4")
            for sl in range(32):
                e(f"s_mov_b32 s45, {sl*S*8}\nbuffer_load_dwordx2 {v(32+2*sl,2)}, v4, s[56:59], s45 offen{SC}")
            e(f"s_branch {L('ldd')}")
            e(f"{L('ubld')}:")
            e(f"s_add_u32 s35, s26, {C_UB}")
            k.poll(tag + "u", 35, 16)
            e(f"s_sub_u32 s43, s42, 2\ns_lshl_b32 s43, s43, 6\nv_add_u32 v3, s43, v2")
            e(f"s_mul_i32 s44, s26, {BN*4}\nv_lshlrev_b32 v4, 3, v3\nv_add_u32 v4, s44, v4")
            for kg in range(16):
                for w_ in range(2):
                    e(f"s_mov_b32 s45, {(kg*2+w_)*DFF*4}\nbuffer_load_dwordx2 {v(32+4*kg+2*w_,2)}, v4, s[60:63], s45 offen{SC}")
            e(f"{L('ldd')}:")
    if epi == "ffn1":
        e("s_waitcnt vmcnt(0)")
        e(f"s_cmp_ge_u32 s42, 2\ns_cbranch_scc1 {L('ubred')}")
        for sl in range(1, 32): e(f"v_add_f32 v32, v32, v{32+2*sl}\nv_add_f32 v33, v33, v{33+2*sl}")
        e(f"v_mul_f32 v32, {f32(1/1024)}, v32\nv_mul_f32 v33, {f32(1/1024)}, v33")
        e(f"v_fma_f32 v33, -v32, v32, v33\nv_max_f32 v33, 0, v33\nv_add_f32 v33, {f32(1e-5)}, v33\nv_rsq_f32 v33, v33")
        e("v_mul_f32 v32, v32, v33")
        e(f"v_lshlrev_b32 v4, 3, v3\nv_add_u32 v4, {XL}, v4\nds_write_b64 v4, v[32:33]")
        e(f"s_branch {L('redd')}")
        e(f"{L('ubred')}:")
        for kg in range(1, 16):
            for q in range(4): e(f"v_add_f32 v{32+q}, v{32+q}, v{32+4*kg+q}")
        e(f"v_lshlrev_b32 v4, 3, v3\nv_add_u32 v4, {XL+1024}, v4\nv_cmp_gt_u32 vcc, 112, v3\ns_and_saveexec_b64 s[44:45], vcc")
        e(f"ds_write_b64 v4, v[32:33]\nds_write_b64 v4, v[34:35] offset:896\ns_mov_b64 exec, s[44:45]")
        e(f"{L('redd')}:")
        e("s_waitcnt lgkmcnt(0)")
    if epi != "qkv": e("s_barrier")
    e(f"s_branch {nxt_l}")

def attn_phase(k, nxt_c, nxt_l, pf):
    e = k.e
    L = lambda n: k.lab("att_" + n)
    NSL = 3; KPS = 128; SBK = KPS * 64
    HB = 2 * SBK; SB = 2 * HB
    FLAG = NSL * SB
    e(f"{L('c')}:\n{L('l')}:")
    e("s_and_b32 s36, s2, 7\ns_lshr_b32 s37, s2, 3\ns_lshl_b32 s36, s36, 2\ns_lshr_b32 s38, s37, 3\ns_add_u32 s25, s36, s38")
    e("s_and_b32 s26, s37, 7")
    e("s_and_b32 s34, s24, 3\ns_lshr_b32 s27, s24, 2")
    e("s_mov_b32 s57, s34")
    e("s_lshl_b32 s40, s25, 17")
    e(f"s_add_u32 s32, s{P_WS}, {WS_QKV:#x}\ns_addc_u32 s33, s{P_WS+1}, 0\ns_add_u32 s32, s32, s40\ns_addc_u32 s33, s33, 0")
    k.srd(4, 32, 0, S * 64); k.srd(8, 32, 32 * S * 64, S * 64); k.srd(12, 32, 64 * S * 64, S * 64)
    k.srd(16, P_WS, WS_O, S * D * 2)
    QG, KH = 57, 27
    Q = 4 + 4; KF = 24; VF = 32
    NEG = 40; O = 72; LS = 104; SEL = 112
    SS = [[116, 132], [148, 164]]
    PP = [[180, 188], [196, 204]]
    AK0, AK1, AV, AN0, AN1, DK, DV = 212, 213, 214, 215, 216, 217, 218
    HH, QL = 219, 220
    T = 221
    PFD = 230
    e(f"v_and_b32 v{QL}, 31, v2\nv_lshrrev_b32 v{HH}, 5, v2")
    e(f"s_lshl_b32 s39, s26, 8\ns_lshl_b32 s40, s{QG}, 6\ns_add_u32 s39, s39, s40")
    e(f"v_lshrrev_b32 v{T}, 2, v2\ns_lshl_b32 s40, s{QG}, 5\nv_add_u32 v{T}, s40, v{T}\nv_lshlrev_b32 v{T}, 6, v{T}")
    e(f"v_and_b32 v{T+1}, 3, v2\nv_lshrrev_b32 v{T+2}, 4, v2\nv_xor_b32 v{T+1}, v{T+1}, v{T+2}\nv_lshlrev_b32 v{T+1}, 4, v{T+1}")
    e(f"v_add_u32 v{DK}, v{T}, v{T+1}")
    e(f"v_lshlrev_b32 v{DV}, 4, v2\ns_lshl_b32 s40, s{QG}, 11\nv_add_u32 v{DV}, s40, v{DV}")
    e(f"s_lshl_b32 s41, s{QG}, 11\ns_mul_i32 s40, s{KH}, {HB}\ns_add_u32 s41, s41, s40")
    e(f"s_mul_i32 s45, s{KH}, {S*32}")
    def addr_setup():
        e(f"s_mul_i32 s40, s{KH}, {HB}")
        e(f"v_lshrrev_b32 v{T}, 2, v{QL}\nv_and_b32 v{T}, 3, v{T}\nv_xor_b32 v{T}, v{T}, v{HH}\nv_lshlrev_b32 v{T}, 4, v{T}")
        e(f"v_lshlrev_b32 v{T+1}, 6, v{QL}\nv_add_u32 v{T+3}, v{T}, v{T+1}")
        e(f"v_add_u32 v{AK0}, s40, v{T+3}\nv_xor_b32 v{AK1}, 32, v{AK0}")
        e(f"v_and_b32 v{T}, 15, v2\nv_lshrrev_b32 v{T}, 2, v{T}\nv_lshlrev_b32 v{T+1}, 2, v{HH}\nv_add_u32 v{T}, v{T}, v{T+1}\nv_lshlrev_b32 v{T}, 6, v{T}")
        e(f"v_lshrrev_b32 v{T+1}, 4, v2\nv_and_b32 v{T+1}, 1, v{T+1}\nv_lshlrev_b32 v{T+1}, 5, v{T+1}\nv_add_u32 v{T}, v{T}, v{T+1}")
        e(f"v_and_b32 v{T+1}, 3, v2\nv_lshlrev_b32 v{T+1}, 3, v{T+1}\nv_add_u32 v{T}, v{T}, v{T+1}\nv_add_u32 v{T}, {SBK}, v{T}\nv_add_u32 v{AV}, s40, v{T}")
    addr_setup()
    e(f"v_lshrrev_b32 v{T}, 4, v2\nv_lshrrev_b32 v{T+1}, 2, v2\nv_xor_b32 v{T}, v{T}, v{T+1}\nv_and_b32 v{T}, 1, v{T}")
    e(f"v_cmp_eq_u32 vcc, 0, v{T}\nv_mov_b32 v{T+1}, 0x3f803f80")
    e(f"v_cndmask_b32 v{SEL}, 0, v{T+1}, vcc")
    for r in range(1, 4): e(f"v_mov_b32 v{SEL+r}, v{SEL}")
    def zero_acc():
        for r in range(32): e(f"v_mov_b32 v{O+r}, 0")
        for r in range(8): e(f"v_mov_b32 v{LS+r}, 0")
    zero_acc()
    for r in range(8): e(f"v_mov_b32 v{VF+r}, 0")
    for qb in range(2):
        for r in range(8): e(f"v_mov_b32 v{PP[1][qb]+r}, 0")
    e(f"s_cmp_lg_u32 s24, 4\ns_cbranch_scc1 {L('nodep')}")
    if "noflags" in OPT:
        e(f"v_lshlrev_b32 v6, 10, v2\ns_lshl_b32 s35, s25, 5\nv_add_u32 v6, s35, v6\nv_mul_u32_u24 v6, {(65536 + 191) // 192}, v6\nv_lshrrev_b32 v6, 16, v6")
        e(f"v_add_u32 v6, {C_QKV}, v6\nv_lshlrev_b32 v6, 8, v6")
        k.poll("att", None, 16, lanes=3)
    else:
        e(f"s_lshl_b32 s35, s25, 3\ns_add_u32 s35, s35, s26\ns_lshl_b32 s35, s35, 8\ns_add_u32 s35, s35, {FL['att']}")
        k.wait_flags("att", 48, 35)
    e(f"{L('nodep')}:")
    e("s_barrier")
    k.st(3)
    e(f"v_mov_b32 v{T}, {FLAG}\nv_mov_b32 v{T+1}, 0\nds_write_b32 v{T}, v{T+1}")
    e(f"v_add_u32 v{T}, s39, v{QL}\nv_lshlrev_b32 v{T}, 6, v{T}\nv_lshlrev_b32 v{T+1}, 4, v{HH}\nv_add_u32 v{T}, v{T}, v{T+1}")
    for qb in range(2):
        e(f"buffer_load_dwordx4 {v(Q+8*qb,4)}, v{T}, s[4:7], 0 offen offset:{qb*2048}{SC}")
        e(f"buffer_load_dwordx4 {v(Q+8*qb+4,4)}, v{T}, s[4:7], 0 offen offset:{qb*2048+32}{SC}")
    def dma(slot_sreg):
        e(f"s_add_u32 s43, {slot_sreg}, s41\ns_add_u32 s46, s42, s45")
        e(f"s_mov_b32 m0, s43\nbuffer_load_dwordx4 v{DK}, s[8:11], s46 offen{SC} lds")
        e(f"s_add_u32 m0, s43, {SBK}\nbuffer_load_dwordx4 v{DV}, s[12:15], s46 offen{SC} lds")
        e(f"s_add_u32 s46, s46, 1024\ns_add_u32 m0, s43, 1024\nbuffer_load_dwordx4 v{DK}, s[8:11], s46 offen{SC} lds")
        e(f"s_add_u32 m0, s43, {SBK+1024}\nbuffer_load_dwordx4 v{DV}, s[12:15], s46 offen{SC} lds")
        e(f"s_add_u32 s42, s42, {SBK}")
    def kread(a0, a1, t):
        return [f"ds_read_b128 {v(KF,4)}, v{a0} offset:{t*2048}", f"ds_read_b128 {v(KF+4,4)}, v{a1} offset:{t*2048}"]
    def vread(t):
        return [f"ds_read_b64_tr_b16 {v(VF+4*m+2*hh,2)}, v{AV} offset:{t*2048+(16*m+8*hh)*64}" for m in range(2) for hh in range(2)]
    def qk(qb, dst, c):
        return [f"v_mfma_f32_32x32x16_bf16 {v(dst,16)}, {v(KF,4)}, {v(Q+8*qb,4)}, {c}",
                f"v_mfma_f32_32x32x16_bf16 {v(dst,16)}, {v(KF+4,4)}, {v(Q+8*qb+4,4)}, {v(dst,16)}"]
    def pv(qb, P):
        o, l = O + 16 * qb, LS + 4 * qb
        return [f"v_mfma_f32_32x32x16_bf16 {v(o,16)}, {v(VF,4)}, {v(P,4)}, {v(o,16)}",
                f"v_mfma_f32_16x16x32_bf16 {v(l,4)}, {v(SEL,4)}, {v(P,4)}, {v(l,4)}",
                f"v_mfma_f32_32x32x16_bf16 {v(o,16)}, {v(VF+4,4)}, {v(P+4,4)}, {v(o,16)}",
                f"v_mfma_f32_16x16x32_bf16 {v(l,4)}, {v(SEL,4)}, {v(P+4,4)}, {v(l,4)}"]
    def lane_max16(src, dst, tmp):
        e(f"v_max3_f32 v{dst}, v{src}, v{src+1}, v{src+2}")
        for r in range(3, 15, 2): e(f"v_max3_f32 v{dst}, v{dst}, v{src+r}, v{src+r+1}")
        e(f"v_max_f32 v{dst}, v{dst}, v{src+15}")
        e(f"v_mov_b32 v{tmp}, v{dst}\nv_permlane32_swap_b32 v{tmp}, v{dst}\nv_max_f32 v{dst}, v{dst}, v{tmp}")
    NST = S // 2 // KPS
    HALF = S * 32
    e("s_mov_b32 s42, 0")
    for st in range(NSL - 1):
        e(f"s_mov_b32 s44, {st*SB}")
        dma("s44")
    e(f"s_waitcnt vmcnt({4*(NSL-2)})\ns_barrier")
    e(f"v_xor_b32 v{T+4}, 32, v{T+3}")
    for l in kread(T + 3, T + 4, 0): e(l)
    e("s_waitcnt lgkmcnt(0)")
    for qb in range(2):
        for l in qk(qb, SS[1][qb], "0"): e(l)
    for l in kread(AK0, AK1, 0): e(l)
    for qb in range(2):
        lane_max16(SS[1][qb], T, T + 1)
        e(f"v_add_f32 v{T}, {f32(40.0)}, v{T}")
        for r in range(16): e(f"v_sub_f32 v{NEG+16*qb+r}, 0, v{T}")
    e("s_waitcnt lgkmcnt(0)")
    for qb in range(2):
        for l in qk(qb, SS[0][qb], v(NEG + 16 * qb, 16)): e(l)
    for l in kread(AK0, AK1, 1): e(l)
    e(f"v_add_u32 v{AN0}, {SB}, v{AK0}\nv_add_u32 v{AN1}, {SB}, v{AK1}")
    e(f"s_mov_b32 s47, 1\ns_mov_b32 s48, {SB}\ns_mov_b32 s49, {-(NSL-1)*SB & 0xffffffff:#x}")
    e(f"s_mov_b32 s50, {(NSL-1)*SB}")
    e("s_waitcnt lgkmcnt(0)")
    e(f"s_mov_b32 s44, {NST}")
    e(f"{L('floop')}:")
    for t in range(4):
        par = t & 1
        if t == 2:
            e(f"s_cmp_ge_u32 s42, {HALF}\ns_cbranch_scc1 {L('nodma')}")
            e(f"s_waitcnt vmcnt({4*(NSL-3)})\ns_barrier")
            dma("s50")
            e(f"s_add_u32 s50, s50, {SB}\ns_cmp_eq_u32 s50, {NSL*SB}\ns_cselect_b32 s50, 0, s50")
            if pf:
                e(f"s_cmp_lg_u32 s44, {PFSTAGE}\ns_cbranch_scc1 {L('cont')}")
                e("s_lshl_b32 s56, s2, 3\ns_add_u32 s56, s56, s24")
                e(f"s_mov_b32 s60, s{P_WO}\ns_mov_b32 s61, s{P_WO+1}\ns_mov_b32 s62, {D*D*2}\ns_mov_b32 s63, 0x20000\ns_mov_b32 s52, s56")
                e(f"s_cmp_lt_u32 s56, 256\ns_cbranch_scc1 {L('pfgo')}")
                e(f"s_mov_b32 s60, s{P_W1}\ns_mov_b32 s61, s{P_W1+1}\ns_mov_b32 s62, {D*DFF*2}\ns_mov_b32 s63, 0x20000\ns_sub_u32 s52, s56, 256")
                e(f"s_cmp_lt_u32 s56, 1152\ns_cbranch_scc1 {L('pfgo')}")
                e(f"s_mov_b32 s60, s{P_W2}\ns_mov_b32 s61, s{P_W2+1}\ns_mov_b32 s62, {D*DFF*2}\ns_mov_b32 s63, 0x20000\ns_sub_u32 s52, s56, 1152")
                e(f"{L('pfgo')}:")
                e(f"s_lshl_b32 s52, s52, 13\nv_lshlrev_b32 v{T}, 7, v2\nbuffer_load_dword v{PFD}, v{T}, s[60:63], s52 offen")
                k.code_touch("a", k.lab("att_cont"), k.lab("f1_l"), 24, 8, 1)
            e(f"s_branch {L('cont')}")
            e(f"{L('nodma')}:")
            e("s_waitcnt vmcnt(0)\ns_barrier")
            e(f"{L('cont')}:")
        kr = kread(AN0, AN1, (t + 2) % 4) if t >= 2 else kread(AK0, AK1, t + 2)
        vr = vread(t)
        m = []; p = []; E = []; C = []
        for qb in range(2):
            cur = SS[par][qb]; nxt = SS[1 - par][qb]; pc = PP[par][qb]; pp = PP[1 - par][qb]
            m.append(qk(qb, nxt, v(NEG + 16 * qb, 16))); p.append(pv(qb, pp))
            E.append([f"v_exp_f32 v{cur+r}, v{cur+r}" for r in range(16)])
            C.append([f"v_cvt_pk_bf16_f32 v{pc+r}, v{cur+2*r}, v{cur+2*r+1}" for r in range(8)])
        E0, E1 = E; C0, C1 = C
        seq = ["s_waitcnt lgkmcnt(4)",
               m[0][0], E0[0], E0[1], E0[2], E0[3],
               m[1][0], E0[4], E0[5], C0[0], C0[1], E0[6],
               m[0][1], E0[7], C0[2], E0[8], E0[9], C0[3],
               m[1][1], kr[0], kr[1], E0[10], E0[11], E0[12], E0[13], "s_waitcnt lgkmcnt(2)",
               p[0][0], C0[4], C0[5], E0[14], E0[15], C0[6], C0[7],
               p[0][1], E1[0], E1[1],
               p[1][0], E1[2], E1[3], C1[0], C1[1], E1[4],
               p[1][1], E1[5], E1[6],
               p[0][2], E1[7], C1[2], E1[8], E1[9], C1[3],
               p[0][3], E1[10], E1[11],
               p[1][2], vr[0], vr[1], vr[2], vr[3], E1[12], E1[13], C1[4], C1[5], E1[14],
               p[1][3], E1[15], C1[6], C1[7]]
        for l in seq: e(l)
        if t == 3:
            e(f"v_sub_u32 v{T}, v{AN0}, v{AK0}\nv_add_u32 v{AV}, v{AV}, v{T}\nv_mov_b32 v{AK0}, v{AN0}\nv_mov_b32 v{AK1}, v{AN1}")
            e(f"s_add_u32 s47, s47, 1\ns_cmp_eq_u32 s47, {NSL}\ns_cselect_b32 s51, s49, s48\ns_cselect_b32 s47, 0, s47")
            e(f"v_add_u32 v{AN0}, s51, v{AN0}\nv_add_u32 v{AN1}, s51, v{AN1}")
    e(f"s_sub_u32 s44, s44, 1\ns_cmp_lg_u32 s44, 0\ns_cbranch_scc1 {L('floop')}")
    e("s_waitcnt lgkmcnt(0)")
    for qb in range(2):
        for l in pv(qb, PP[1][qb]): e(l)
    k.st(4)
    def merge(safe, M=None):
        e("s_barrier")
        e(f"s_cmp_eq_u32 s{KH}, 0\ns_cbranch_scc1 {L('keep0' + safe)}")
        for r in range(16): e(f"v_swap_b32 v{O+r}, v{O+16+r}")
        e(f"v_swap_b32 v{LS}, v{LS+4}")
        if M is not None: e(f"v_swap_b32 v{M}, v{M+1}")
        e(f"{L('keep0' + safe)}:")
        e(f"s_mul_i32 s52, s24, {5*1024+256}\nv_lshlrev_b32 v{T}, 4, v2\nv_add_u32 v{T}, s52, v{T}")
        for g in range(4): e(f"ds_write_b128 v{T}, {v(O+16+4*g,4)} offset:{g*1024}")
        e(f"v_lshlrev_b32 v{T+1}, 2, v2\nv_add_u32 v{T+1}, s52, v{T+1}")
        e(f"ds_write_b32 v{T+1}, v{LS+4} offset:4096")
        if M is not None: e(f"ds_write_b32 v{T+1}, v{M+1} offset:{4096+256}")
        e("s_waitcnt lgkmcnt(0)\ns_barrier")
        e(f"s_xor_b32 s52, s24, 4\ns_mul_i32 s52, s52, {5*1024+256}\nv_lshlrev_b32 v{T}, 4, v2\nv_add_u32 v{T}, s52, v{T}")
        for g in range(4): e(f"ds_read_b128 {v(O+16+4*g,4)}, v{T} offset:{g*1024}")
        e(f"v_lshlrev_b32 v{T+1}, 2, v2\nv_add_u32 v{T+1}, s52, v{T+1}")
        e(f"ds_read_b32 v{LS+4}, v{T+1} offset:4096")
        if M is not None: e(f"ds_read_b32 v{M+1}, v{T+1} offset:{4096+256}")
        e("s_waitcnt lgkmcnt(0)")
        if M is None:
            for r in range(16): e(f"v_add_f32 v{O+r}, v{O+r}, v{O+16+r}")
            e(f"v_add_f32 v{LS}, v{LS}, v{LS+4}")
        else:
            e(f"v_max_f32 v{T}, v{M}, v{M+1}\nv_sub_f32 v{T+1}, v{M}, v{T}\nv_sub_f32 v{T+2}, v{M+1}, v{T}\nv_exp_f32 v{T+1}, v{T+1}\nv_exp_f32 v{T+2}, v{T+2}")
            for r in range(16): e(f"v_mul_f32 v{O+r}, v{O+r}, v{T+1}\nv_fmac_f32 v{O+r}, v{O+16+r}, v{T+2}")
            e(f"v_mul_f32 v{LS}, v{LS}, v{T+1}\nv_fmac_f32 v{LS}, v{LS+4}, v{T+2}")
        e(f"v_rcp_f32 v{T}, v{LS}")
        for r in range(16): e(f"v_mul_f32 v{O+r}, v{O+r}, v{T}")
    merge("f")
    e(f"v_mov_b32 v{T+1}, {f32(2.0**120)}")
    e(f"v_cmp_nlt_f32 vcc, v{LS}, v{T+1}")
    e("s_mov_b64 s[46:47], vcc")
    e(f"v_add_f32 v{T+2}, abs(v{O}), abs(v{O+1})")
    for r in range(2, 16): e(f"v_add_f32 v{T+2}, v{T+2}, abs(v{O+r})")
    e(f"v_mov_b32 v{T+1}, 0x7f800000\nv_cmp_nlt_f32 vcc, v{T+2}, v{T+1}\ns_or_b64 s[46:47], s[46:47], vcc")
    e(f"s_cmp_eq_u64 s[46:47], 0\ns_cbranch_scc1 {L('okwave')}")
    e(f"v_mov_b32 v{T+1}, {FLAG}\nv_mov_b32 v{T+2}, 1\nds_write_b32 v{T+1}, v{T+2}")
    e(f"{L('okwave')}:")
    e("s_waitcnt lgkmcnt(0)\ns_barrier")
    e(f"v_mov_b32 v{T+1}, {FLAG}\nds_read_b32 v{T+2}, v{T+1}\ns_waitcnt lgkmcnt(0)\nv_readfirstlane_b32 s46, v{T+2}")
    e(f"s_cmp_lg_u32 s46, 0\ns_cbranch_scc1 {L('safe')}")
    e(f"{L('store')}:")
    if "statt" in OPT: k.st(12)
    P = PP[0][0]
    for r in range(8): e(f"v_cvt_pk_bf16_f32 v{P+r}, v{O+2*r}, v{O+2*r+1}")
    for b in (0, 4):
        e(f"v_permlane32_swap_b32 v{P+b}, v{P+b+2}\nv_permlane32_swap_b32 v{P+b+1}, v{P+b+3}")
    for r in range(4): e(f"v_permlane16_swap_b32 v{P+r}, v{P+4+r}")
    e(f"s_lshl_b32 s40, s{KH}, 5\ns_add_u32 s40, s40, s39")
    e(f"v_and_b32 v{T}, 15, v2\nv_add_u32 v{T}, s40, v{T}\nv_lshlrev_b32 v{T}, 11, v{T}")
    e(f"v_lshrrev_b32 v{T+1}, 4, v2\nv_and_b32 v{T+2}, 1, v{T+1}\nv_lshlrev_b32 v{T+2}, 5, v{T+2}\nv_lshrrev_b32 v{T+1}, 1, v{T+1}\nv_lshlrev_b32 v{T+1}, 4, v{T+1}")
    e(f"v_add_u32 v{T}, v{T}, v{T+1}\nv_add_u32 v{T}, v{T}, v{T+2}")
    e(f"s_lshl_b32 s40, s25, 6\ns_add_u32 s41, s40, {16*2048}")
    e(f"buffer_store_dwordx4 {v(P,4)}, v{T}, s[16:19], s40 offen{SCS}\nbuffer_store_dwordx4 {v(P+4,4)}, v{T}, s[16:19], s41 offen{SCS}")
    if "statt" in OPT: k.st(13)
    e(f"s_add_u32 s35, s26, {C_ATT}")
    k.signal("att", 8, 35, 32, (32, lambda: e(f"s_lshl_b32 s33, s26, 12\ns_lshl_b32 s34, s25, 2\ns_add_u32 s33, s33, s34\ns_add_u32 s33, s33, {FL['wo']}\nv_lshlrev_b32 v6, 7, v2\nv_add_u32 v6, s33, v6")))
    if "statt" in OPT: k.st(14, 7)
    e(f"s_cmp_ge_u32 s24, 4\ns_cbranch_scc1 {nxt_l}\ns_branch {nxt_c}")
    e(f"{L('safe')}:")
    e("s_waitcnt vmcnt(0)\ns_barrier")
    M = NEG; AL = NEG + 2
    SA = SS[0][0]; P0 = PP[0][0]
    zero_acc()
    e(f"v_mov_b32 v{M}, {f32(-3.0e38)}\nv_mov_b32 v{M+1}, {f32(-3.0e38)}")
    addr_setup()
    e("s_mov_b32 s42, 0")
    e(f"s_mov_b32 s44, {NST}")
    e(f"{L('sloop')}:")
    e("s_barrier")
    e("s_mov_b32 s53, 0")
    dma("s53")
    e("s_waitcnt vmcnt(0)\ns_barrier")
    for t in range(4):
        for l in kread(AK0, AK1, t) + vread(t): e(l)
        e("s_waitcnt lgkmcnt(0)")
        for qb in range(2):
            for l in qk(qb, SA, "0"): e(l)
            lane_max16(SA, T, T + 1)
            e(f"v_max_f32 v{T}, v{T}, v{M+qb}\nv_sub_f32 v{AL}, v{M+qb}, v{T}\nv_exp_f32 v{AL}, v{AL}\nv_mov_b32 v{M+qb}, v{T}")
            for r in range(16): e(f"v_sub_f32 v{SA+r}, v{SA+r}, v{T}\nv_exp_f32 v{SA+r}, v{SA+r}")
            for r in range(16): e(f"v_mul_f32 v{O+16*qb+r}, v{O+16*qb+r}, v{AL}")
            for r in range(4): e(f"v_mul_f32 v{LS+4*qb+r}, v{LS+4*qb+r}, v{AL}")
            for r in range(8): e(f"v_cvt_pk_bf16_f32 v{P0+r}, v{SA+2*r}, v{SA+2*r+1}")
            for l in pv(qb, P0): e(l)
    e(f"s_sub_u32 s44, s44, 1\ns_cmp_lg_u32 s44, 0\ns_cbranch_scc1 {L('sloop')}")
    merge("s", M)
    e("s_barrier")
    e(f"s_branch {L('store')}")


def h_phase(k):
    e = k.e; L = lambda n: k.lab("h_" + n)
    HL = 125952
    e("s_lshl_b32 s36, s2, 3\ns_lshl_b32 s37, s24, 1\ns_add_u32 s36, s36, s37")
    e("s_lshl_b32 s36, s36, 11\nv_lshlrev_b32 v3, 4, v2\nv_add_u32 v3, s36, v3")
    k.srd(12, P_X, 0, S * D * 2); k.srd(16, P_WS, WS_H, S * D * 2)
    k.srd(20, P_WS, WS_MODP, 4 * 6144 * 4); k.srd(56, P_WS, WS_MODF, 6144 * 4)
    e("v_lshlrev_b32 v5, 5, v0")
    for p in range(4):
        e(f"s_mov_b32 s37, {p*24576}")
        e(f"buffer_load_dwordx4 {v(64+8*p,4)}, v5, s[20:23], s37 offen\nbuffer_load_dwordx4 {v(68+8*p,4)}, v5, s[20:23], s37 offen offset:16")
    for r in range(2):
        for hf in range(2):
            e(f"buffer_load_dwordx4 {v(8+8*r+4*hf,4)}, v3, s[12:15], 0 offen offset:{r*2048+hf*1024}")
    e("s_lshl_b32 s38, s2, 10\nv_lshlrev_b32 v6, 2, v0\nv_add_u32 v4, s38, v6")
    for p in range(4):
        e(f"s_mov_b32 s37, {p*24576}\nbuffer_load_dword v{96+p}, v4, s[20:23], s37 offen")
    nt_ = k.code_touch("h", k.lab("qkv_c"), k.lab("wo_c"), 24, 4, 1)
    e(f"s_waitcnt vmcnt({8+nt_})")
    for j in range(8):
        e(f"v_add_f32 v{64+j}, v{64+j}, v{72+j}\nv_add_f32 v{80+j}, v{80+j}, v{88+j}\nv_add_f32 v{64+j}, v{64+j}, v{80+j}")
        round_bf16(e, 64 + j)
    e("v_cmp_le_u32 vcc, 128, v0")
    for j in range(8):
        e(f"v_add_f32 v72, 1.0, v{64+j}")
        round_bf16(e, 72)
        e(f"v_cndmask_b32 v{64+j}, v{64+j}, v72, vcc")
    e(f"v_add_u32 v5, {HL}, v5\nds_write_b128 v5, v[64:67]\nds_write_b128 v5, v[68:71] offset:16")
    e("s_waitcnt lgkmcnt(0)\ns_barrier")
    e(f"v_lshlrev_b32 v5, 5, v2\nv_add_u32 v5, {HL}, v5")
    for hf in range(2):
        for q in range(2):
            e(f"ds_read_b128 {v(32+8*hf+4*q,4)}, v5 offset:{hf*2048+q*16}")
            e(f"ds_read_b128 {v(48+8*hf+4*q,4)}, v5 offset:{4096+hf*2048+q*16}")
    e(f"s_waitcnt vmcnt({4+nt_})")
    X = 64
    for r in range(2):
        for j in range(8):
            src = 8 + 8 * r + j
            e(f"v_lshlrev_b32 v{X+16*r+2*j}, 16, v{src}\nv_and_b32 v{X+16*r+2*j+1}, 0xffff0000, v{src}")
    for r in range(2): e(f"v_add_f32 v{104+r}, v{X+16*r}, v{X+16*r+1}")
    for j in range(2, 16):
        for r in range(2): e(f"v_add_f32 v{104+r}, v{104+r}, v{X+16*r+j}")
    wave_sum(e, [104, 105], 106, [0, 1, 2, 3, 4, 5])
    for r in range(2): e(f"v_mul_f32 v{104+r}, {f32(1/1024)}, v{104+r}")
    for j in range(16):
        for r in range(2): e(f"v_sub_f32 v{X+16*r+j}, v{X+16*r+j}, v{104+r}")
    for r in range(2): e(f"v_mul_f32 v{107+r}, v{X+16*r}, v{X+16*r}")
    for j in range(1, 16):
        for r in range(2): e(f"v_fmac_f32 v{107+r}, v{X+16*r+j}, v{X+16*r+j}")
    wave_sum(e, [107, 108], 106, [0, 1, 2, 3, 4, 5])
    for r in range(2):
        e(f"v_mov_b32 v{109+r}, {f32(1e-5)}\nv_fmac_f32 v{109+r}, {f32(1/1024)}, v{107+r}\nv_rsq_f32 v{109+r}, v{109+r}")
    e("s_waitcnt lgkmcnt(0)")
    for r in range(2):
        for j in range(16):
            e(f"v_mul_f32 v{X+16*r+j}, v{X+16*r+j}, v{109+r}\nv_fma_f32 v{X+16*r+j}, v{X+16*r+j}, v{48+j}, v{32+j}")
        for j in range(8): e(f"v_cvt_pk_bf16_f32 v{112+8*r+j}, v{X+16*r+2*j}, v{X+16*r+2*j+1}")
        e(f"buffer_store_dwordx4 {v(112+8*r,4)}, v3, s[16:19], 0 offen offset:{r*2048}{SCS}")
        e(f"buffer_store_dwordx4 {v(116+8*r,4)}, v3, s[16:19], 0 offen offset:{r*2048+1024}{SCS}")
    e("s_waitcnt vmcnt(4)")
    e("v_add_f32 v96, v96, v97\nv_add_f32 v98, v98, v99\nv_add_f32 v96, v96, v98")
    round_bf16(e, 96)
    e(f"s_cmp_ge_u32 s2, 24\ns_cbranch_scc1 {L('nofin')}")
    e(f"buffer_store_dword v96, v4, s[56:59], 0 offen{SCS}")
    e(f"{L('nofin')}:")
    e(f"s_lshr_b32 s35, s2, 4\ns_add_u32 s35, s35, {C_H}")
    def offs():
        e(f"s_lshr_b32 s33, s2, 4\ns_lshl_b32 s33, s33, 11\ns_and_b32 s34, s2, 15\ns_lshl_b32 s34, s34, 2\ns_add_u32 s33, s33, s34\ns_add_u32 s33, s33, {FL['qkv']}")
        e("v_lshlrev_b32 v6, 7, v2\nv_add_u32 v6, s33, v6")
    k.signal("h", 4, 35, 16, (16, offs))

def k_main():
    k = PK("main_kernel", 256, 512, LDS_TOTAL + 16384, 256, 100); e = k.e
    L = k.lab
    e(f"s_cmp_ge_u32 s2, 256\ns_cbranch_scc1 {L('end')}")
    e(f"s_load_dwordx4 s[68:71], s[0:1], {KA_X}\ns_load_dwordx4 s[72:75], s[0:1], {KA_W1}\ns_load_dwordx2 s[76:77], s[0:1], {KA_WO}")
    e(f"s_load_dwordx2 s[78:79], s[0:1], {KA_OUT}\ns_load_dwordx2 s[66:67], s[0:1], {KA_WS}")
    e("v_lshrrev_b32 v1, 6, v0\nv_and_b32 v2, 63, v0\nv_readfirstlane_b32 s24, v1")
    e(f"s_cmp_lg_u32 s24, 0\ns_cbranch_scc1 {L('noinit')}")
    e(f"v_lshlrev_b32 v3, 2, v2\nv_add_u32 v3, {CTL}, v3\nv_mov_b32 v4, 0\nds_write_b32 v3, v4\ns_waitcnt lgkmcnt(0)")
    e(f"{L('noinit')}:")
    e("s_waitcnt lgkmcnt(0)")
    k.srd(CNT, P_WS, WS_CNT, CNT_BYTES)
    k.st(0)
    e(f"s_cmp_ge_u32 s24, 4\ns_cbranch_scc1 {L('qkv_l')}")
    hin = "hsep" not in OPT
    if hin: h_phase(k)
    gemm_phase(k, "qkv", 1024, 1024, 3072, 192, WS_H, S * D * 2, P_WQKV, D * 3 * D * 2, "qkv", 8, 4, 3, L("att_c"), L("att_l"), (C_H, 16, "rb") if hin else None, (1, 2), hbar=hin)
    pf = [(P_WO, D * D * 2), (P_W1, D * DFF * 2), (P_W2, D * DFF * 2)] if "nopf" not in OPT else []
    attn_phase(k, L("wo_c"), L("wo_l"), pf)
    gemm_phase(k, "wo", 1024, 1024, 1024, 64, WS_O, S * D * 2, P_WO, D * D * 2, "wo", 4, 8, 4, L("f1_c"), L("f1_l"), (C_ATT, 32, "rb2"), (5, 6))
    gemm_phase(k, "f1", 1024, 1024, DFF, 224, WS_XG, S * D * 2, P_W1, D * DFF * 2, "ffn1", 8, 4, 3, L("f2_c"), L("f2_l"), (C_WO, 16, "rb"), (7, 8))
    gemm_phase(k, "f2", DFF, DFF, 1024, 64, WS_F1, S * DFF * 2, P_W2, DFF * D * 2, "ffn2", 4, 8, 4, L("fin"), L("end"), (C_F1, 16, "rb"), (9, 10))
    e(f"{L('fin')}:")
    if DIAG:
        e("s_waitcnt vmcnt(0)")
        k.st(11)
        e(f"s_cmp_lg_u32 s24, 0\ns_cbranch_scc1 {L('end')}")
        k.srd(12, P_WS, WS_STAMP + 8 * 512 * 16, 256 * 64)
        e(f"v_lshlrev_b32 v3, 2, v2\nv_add_u32 v4, {L_STAMP}, v3\nds_read_b32 v5, v4\ns_lshl_b32 s32, s2, 6\nv_add_u32 v3, s32, v3\ns_waitcnt lgkmcnt(0)")
        e("s_mov_b64 exec, 0xffff\nbuffer_store_dword v5, v3, s[12:15], 0 offen")
    k.finish()
    return k

def k_mod2():
    k = gen.k_mod()
    lines = k.a.lines
    i = next(n for n, l in enumerate(lines) if "buffer_load_ushort" in l)
    ins = Asm()
    ins.e(f"s_cmp_ge_u32 s2, {-(-CNT_BYTES // 4096)}\ns_cbranch_scc1 mod_kernel_nozero")
    ins.e(f"s_add_u32 s44, s8, {WS_CNT:#x}\ns_addc_u32 s45, s9, 0\ns_mov_b32 s46, {CNT_BYTES}\ns_mov_b32 s47, 0x20000")
    ins.e("s_lshl_b32 s48, s2, 12\nv_lshlrev_b32 v58, 4, v0\nv_mov_b32 v60, 0\nv_mov_b32 v61, 0\nv_mov_b32 v62, 0\nv_mov_b32 v63, 0\nbuffer_store_dwordx4 v[60:63], v58, s[44:47], s48 offen")
    ins.e("mod_kernel_nozero:")
    k.a.lines = lines[:i] + ins.lines + lines[i:]
    return k

def build():
    if "hsep" in OPT: return [k_mod2(), gen.k_h(True), k_main()]
    return [k_mod2(), k_main()]

if __name__ == "__main__":
    for a_ in list(sys.argv):
        if a_.startswith("--opt="): OPT = set(a_[6:].split(",")); sys.argv.remove(a_)
        if a_.startswith("--pfstage="): PFSTAGE = int(a_[10:]); sys.argv.remove(a_)
        if a_.startswith("--scs="): SCS = " " + a_[6:].replace("+", " "); sys.argv.remove(a_)
        if a_.startswith("--sleep="): SLEEP = int(a_[8:]); sys.argv.remove(a_)
    if "--diag" in sys.argv: DIAG = True; gen.DIAG = True; sys.argv.remove("--diag")
    txt = emit(build(), header())
    out = sys.argv[1]
    open(out, "w").write(txt)
    print("wrote", out, len(txt), "bytes")
```

```python
import sys
from asmlib import *
import gen
from gen import (NAME, S, D, DFF, H, KA_X, KA_WQKV, KA_WO, KA_BX, KA_W1, KA_W2, KA_C, KA_WMOD, KA_OUT, KA_DBG, KA_WS,
                 WS_MODP, WS_MODF, WS_H, WS_QKV, WS_O, WS_X1, WS_F1, WS_XG, WS_STAT, WS_UB, WS_STAMP, LOG2E, f32, Kern,
                 wave_sum, round_bf16, interleave, header, emit)

WS_CNT = 0x2f00000
C_QKV, C_ATT, C_WO, C_UB, C_F1, C_H = 0, 16, 24, 40, 56, 72
NCNT = 88
FL_BASE = NCNT * 256 + 1536
FL_BASE = (FL_BASE + 255) // 256 * 256
FL = {"qkv": FL_BASE, "att": FL_BASE + 256 * 128, "wo": FL_BASE + 256 * 128 + 256 * 256, "f1": FL_BASE + 256 * 256 + 2 * 256 * 128, "f2": FL_BASE + 256 * 256 + 3 * 256 * 128}
FL["xch"] = FL_BASE + 256 * 256 + 4 * 256 * 128
CNT_BYTES = FL["xch"] + 256 * 128
WS_XCH = 0x3800000
OPT = set()
DIAG = False
SC = " sc1"
SCS = " sc1"
P_WS, P_X, P_WQKV, P_W1, P_W2, P_WO, P_OUT = 66, 68, 70, 72, 74, 76, 78
CNT = 28
CTL = 138240
L_SIG = {"qkv": CTL, "att": CTL + 4, "wo": CTL + 8, "ub": CTL + 12, "f1": CTL + 16, "h": CTL + 20}
L_DEP = {"wo": CTL + 32, "f1": CTL + 36, "f2": CTL + 40, "qkv": CTL + 44}
L_STAMP = CTL + 64
LDS_TOTAL = CTL + 256
SPIN_MAX = 400000
SLEEP = 2
PFSTAGE = 7
L2D = 8

def exec_mask(n):
    if n < 32: return f"s_mov_b64 exec, {(1 << n) - 1:#x}"
    return f"s_mov_b32 exec_lo, -1\ns_mov_b32 exec_hi, {(1 << (n - 32)) - 1:#x}"

class PK(Kern):
    def st(self, i, wave=0):
        if not DIAG: return
        e = self.e; n = self.lab(f"st{i}")
        e(f"s_cmp_lg_u32 s24, {wave}\ns_cbranch_scc1 {n}\ns_memrealtime s[98:99]\ns_waitcnt lgkmcnt(0)\nv_mov_b32 v254, s98\nv_mov_b32 v255, {L_STAMP+4*i}\nds_write_b32 v255, v254\ns_waitcnt lgkmcnt(0)\n{n}:")
    def code_touch(self, tag, frm, to, part_sreg, nparts, per):
        if "nocode" in OPT: return 0
        e = self.e; here = self.lab("pc" + tag)
        e(f"s_getpc_b64 s[90:91]\n{here}:\ns_add_u32 s90, s90, {frm}-{here}\ns_addc_u32 s91, s91, 0")
        e(f"s_mul_i32 s92, s{part_sreg}, {per*8192}\nv_lshlrev_b32 v252, 7, v2\nv_add_u32 v252, s92, v252")
        for i in range(per):
            if i: e("v_add_u32 v252, 8192, v252")
            e(f"v_min_u32 v251, {to}-{frm}-4, v252\nglobal_load_dword v253, v251, s[90:91]")
        return per
    def poll(self, tag, cnt_sreg, target, lanes=1):
        e = self.e; L = self.lab
        if cnt_sreg is not None: e(f"s_lshl_b32 s32, s{cnt_sreg}, 8\nv_mov_b32 v6, s32")
        e(f"s_mov_b32 s33, 0\ns_mov_b64 exec, {(1 << lanes) - 1}")
        e(f"{L('poll'+tag)}:")
        e(f"buffer_load_dword v7, v6, {s(CNT,4)}, 0 offen offset:{0 if 'direct' in OPT else 128} sc1\ns_waitcnt vmcnt(0)")
        e(f"v_cmp_gt_u32 vcc, {target}, v7\ns_cmp_eq_u64 vcc, 0\ns_cbranch_scc1 {L('pollx'+tag)}")
        e(f"s_add_u32 s33, s33, 1\ns_cmp_ge_u32 s33, {SPIN_MAX}\ns_cbranch_scc1 {L('pollx'+tag)}")
        e(f"s_sleep {SLEEP}\ns_branch {L('poll'+tag)}")
        e(f"{L('pollx'+tag)}:\ns_mov_b64 exec, -1")
    def dep_wait_loaders(self, tag, cnt_sreg, target, first_wave_cond):
        e = self.e; L = self.lab
        e(f"s_cmp_lg_u32 s24, 4\ns_cbranch_scc1 {L('dw'+tag)}")
        if "noflags" in OPT: self.poll(tag, cnt_sreg, target)
        else:
            if tag == "f2" and "nos2" not in OPT:
                e(f"s_lshl_b32 s34, s25, 4\ns_lshl_b32 s33, s26, 1\ns_add_u32 s34, s34, s33\ns_add_u32 s34, s34, s27\ns_lshl_b32 s34, s34, 7\ns_add_u32 s34, s34, {FL[tag]}")
            else:
                e(f"s_lshl_b32 s34, s25, 4\ns_add_u32 s34, s34, s26\ns_lshl_b32 s34, s34, 7\ns_add_u32 s34, s34, {FL[tag]}")
            self.wait_flags(tag, target, 34)
        e(f"v_mov_b32 v6, {L_DEP[tag]}\nv_mov_b32 v7, 1\nds_write_b32 v6, v7\ns_waitcnt lgkmcnt(0)\ns_branch {L('dwx'+tag)}")
        e(f"{L('dw'+tag)}:")
        e(f"v_mov_b32 v6, {L_DEP[tag]}\ns_mov_b32 s33, 0")
        e(f"{L('dwl'+tag)}:")
        e(f"ds_read_b32 v7, v6\ns_waitcnt lgkmcnt(0)\nv_readfirstlane_b32 s34, v7")
        e(f"s_cmp_lg_u32 s34, 0\ns_cbranch_scc1 {L('dwx'+tag)}")
        e(f"s_add_u32 s33, s33, 1\ns_cmp_ge_u32 s33, {SPIN_MAX*4}\ns_cbranch_scc1 {L('dwx'+tag)}")
        e(f"s_sleep 1\ns_branch {L('dwl'+tag)}")
        e(f"{L('dwx'+tag)}:")
    def arrive(self, tag, cnt_sreg, target):
        e = self.e; L = self.lab
        e(f"s_lshl_b32 s33, s{cnt_sreg}, 8\nv_mov_b32 v6, s33\nv_mov_b32 v7, 1")
        if "direct" in OPT:
            e(f"buffer_atomic_add v7, v6, {s(CNT,4)}, 0 offen sc1")
            return
        e(f"buffer_atomic_add v7, v6, {s(CNT,4)}, 0 offen sc0 sc1\ns_waitcnt vmcnt(0)\nv_readfirstlane_b32 s33, v7")
        e(f"s_cmp_lg_u32 s33, {target-1}\ns_cbranch_scc1 {L('arr'+tag)}")
        e(f"v_mov_b32 v7, {target}\nbuffer_store_dword v7, v6, {s(CNT,4)}, 0 offen offset:128 sc1")
        e(f"{L('arr'+tag)}:")
    def signal(self, tag, nwaves, cnt_sreg, target, flags=None):
        e = self.e; L = self.lab
        e("s_waitcnt vmcnt(0)")
        e(f"v_mov_b32 v6, {L_SIG[tag]}\nv_mov_b32 v7, 1\ns_mov_b64 exec, 1")
        e("ds_add_rtn_u32 v7, v6, v7\ns_waitcnt lgkmcnt(0)\nv_readfirstlane_b32 s32, v7\ns_mov_b64 exec, -1")
        e(f"s_cmp_lg_u32 s32, {nwaves-1}\ns_cbranch_scc1 {L('sig'+tag)}")
        if flags is not None and "noflags" not in OPT:
            n, offs = flags
            offs()
            e("v_mov_b32 v7, 1\n" + exec_mask(n))
            e(f"buffer_store_dword v7, v6, {s(CNT,4)}, 0 offen sc1")
        else:
            e("s_mov_b64 exec, 1")
            self.arrive(tag, cnt_sreg, target)
        e(f"{L('sig'+tag)}:\ns_mov_b64 exec, -1")
    def wait_flags(self, tag, n, base_sreg):
        e = self.e; L = self.lab
        e(f"v_lshlrev_b32 v6, 2, v2\nv_add_u32 v6, s{base_sreg}, v6\ns_mov_b32 s33, 0")
        e(exec_mask(n))
        e(f"{L('poll'+tag)}:")
        e(f"buffer_load_dword v7, v6, {s(CNT,4)}, 0 offen sc1\ns_waitcnt vmcnt(0)")
        e(f"v_cmp_ne_u32 vcc, 1, v7\ns_cmp_eq_u64 vcc, 0\ns_cbranch_scc1 {L('pollx'+tag)}")
        e(f"s_add_u32 s33, s33, 1\ns_cmp_ge_u32 s33, {SPIN_MAX}\ns_cbranch_scc1 {L('pollx'+tag)}")
        e(f"s_sleep {SLEEP}\ns_branch {L('poll'+tag)}")
        e(f"{L('pollx'+tag)}:\ns_mov_b64 exec, -1")

def tile_map(e, xr, xc):
    nxc = 16 // xc
    e(f"s_and_b32 s36, s2, 7\ns_lshr_b32 s37, s2, 3")
    e(f"s_and_b32 s38, s36, {nxc-1}\ns_lshr_b32 s39, s36, {nxc.bit_length()-1}")
    e(f"s_and_b32 s40, s37, {xc-1}\ns_lshr_b32 s41, s37, {xc.bit_length()-1}")
    e(f"s_mul_i32 s38, s38, {xc}\ns_add_u32 s26, s38, s40")
    e(f"s_mul_i32 s39, s39, {xr}\ns_add_u32 s25, s39, s41")

def tile_map_s2(e):
    e("s_and_b32 s36, s2, 7\ns_lshr_b32 s37, s2, 3\ns_and_b32 s27, s36, 1\ns_lshr_b32 s36, s36, 1")
    e("s_and_b32 s26, s37, 7\ns_lshr_b32 s37, s37, 3\ns_lshl_b32 s36, s36, 2\ns_add_u32 s25, s36, s37")

def gemm_phase(k, tag, K, lda, ldb, BN, srcA, sizeA, pB, sizeB, epi, xr, xc, NS, nxt_c, nxt_l, dep=None, stamps=(None, None), hbar=False):
    e = k.e
    L = lambda n: k.lab(tag + "_" + n)
    BM, BK = 128, 64
    nA = BM * BK * 2 // 1024; nB = BN * BK * 2 // 1024
    nAw, nBw = nA // 4, nB // 4
    nld = nAw + nBw
    SB = (nA + nB) * 1024
    s2 = epi == "ffn2s"
    nk = K // BK // (2 if s2 else 1)
    TM, TN = 64, BN // 2
    mt, nt = TM // 16, TN // 16
    pitch = BN * 2; cpr = BN // 8
    hbits = {4: 2, 6: 1, 2: 1, 0: 3}[(pitch // 32) % 8]
    ACC = 8; NACC = 4 * mt * nt
    FA = ACC + NACC; NF = 4 * (mt + nt); FB = FA + NF
    AX = FB + NF; AW = AX + 2; EP = AW + nt
    XL = 135168
    assert SB * NS <= XL
    perm = epi == "qkv" and "perm" in OPT
    asc = SC if dep else ""
    e(f"{L('c')}:")
    if s2: tile_map_s2(e)
    else: tile_map(e, xr, xc)
    e("s_lshr_b32 s42, s24, 1\ns_and_b32 s43, s24, 1")
    e("v_and_b32 v3, 15, v2\nv_lshrrev_b32 v4, 4, v2")
    e(f"s_lshl_b32 s44, s25, 7\ns_lshl_b32 s45, s42, 6\ns_add_u32 s44, s44, s45")
    e(f"s_mul_i32 s46, s26, {BN}\ns_mul_i32 s45, s43, {TN}\ns_add_u32 s46, s46, s45")
    k.srd(20, P_WS, WS_MODF, 6144 * 4)
    if epi == "qkv": k.srd(12, P_WS, WS_QKV, 96 * S * 64)
    elif epi == "ffn1": k.srd(12, P_WS, WS_F1, S * DFF * 2)
    elif epi == "wo": k.srd(12, P_WS, WS_X1, S * D * 2); k.srd(16, P_X, 0, S * D * 2)
    elif epi in ("ffn2", "ffn2s"): k.srd(12, P_OUT, 0, S * D * 2); k.srd(16, P_WS, WS_X1, S * D * 2)
    G = EP + 2 * mt * nt; GG = G + 4 * nt; W1R = GG + 4 * nt
    if s2:
        G = EP + 16
        e("s_lshl_b32 s47, s27, 5\ns_add_u32 s46, s46, s47")
        e("s_lshl_b32 s47, s25, 4\ns_lshl_b32 s48, s26, 1\ns_add_u32 s47, s47, s48\ns_add_u32 s47, s47, s43\ns_lshl_b32 s47, s47, 2\ns_lshl_b32 s48, s42, 1\ns_add_u32 s47, s47, s48\ns_add_u32 s47, s47, s27\ns_lshl_b32 s47, s47, 12")
        e("v_lshlrev_b32 v5, 4, v2")
        for j in range(mt):
            e(f"buffer_load_dwordx4 {v(EP+4*j,4)}, v5, s[16:19], s47 offen offset:{j*1024}{SC}")
        e(f"v_lshlrev_b32 v6, 4, v4\ns_lshl_b32 s47, s46, 2\ns_add_u32 s47, s47, {5*1024*4}")
        for i in range(2):
            e(f"buffer_load_dwordx4 {v(G+4*i,4)}, v6, s[20:23], s47 offen offset:{i*64}{SC}")
    if epi in ("wo", "ffn2"):
        if epi == "wo":
            e(f"v_add_u32 v5, s44, v3\nv_lshlrev_b32 v5, 11, v5\nv_lshlrev_b32 v6, 3, v4\nv_add_u32 v5, v5, v6")
            e(f"s_lshl_b32 s47, s46, 1\nv_add_u32 v5, s47, v5")
            for j in range(mt):
                e(f"s_mov_b32 s48, {j*16*2048}")
                for i in range(nt):
                    e(f"buffer_load_dwordx2 {v(EP+2*(j*nt+i),2)}, v5, s[16:19], s48 offen offset:{i*32}")
        else:
            e("s_lshl_b32 s47, s25, 4\ns_add_u32 s47, s47, s26\ns_lshl_b32 s47, s47, 2\ns_add_u32 s47, s47, s24\ns_lshl_b32 s47, s47, 12\nv_lshlrev_b32 v5, 4, v2")
            for j in range(mt):
                e(f"buffer_load_dwordx4 {v(EP+4*j,4)}, v5, s[16:19], s47 offen offset:{j*1024}{SC}")
        gate = (5 if epi == "ffn2" else 2) * 1024
        e(f"v_lshlrev_b32 v6, 4, v4\ns_lshl_b32 s47, s46, 2\ns_add_u32 s47, s47, {gate*4}")
        for i in range(nt):
            e(f"buffer_load_dwordx4 {v(G+4*i,4)}, v6, s[20:23], s47 offen offset:{i*64}{SC}")
        if epi == "wo":
            e(f"s_lshl_b32 s47, s46, 2\ns_add_u32 s47, s47, {4096*4}")
            for i in range(nt):
                e(f"buffer_load_dwordx4 {v(GG+4*i,4)}, v6, s[20:23], s47 offen offset:{i*64}{SC}")
            e("s_lshr_b32 s58, s2, 4\ns_and_b32 s59, s2, 15")
            e(f"v_mul_u32_u24 v5, {(65536+27)//28}, v2\nv_lshrrev_b32 v5, 16, v5\nv_mul_u32_u24 v6, 28, v5\nv_sub_u32 v6, v2, v6")
            e("s_lshl_b32 s60, s58, 6\ns_lshl_b32 s61, s24, 4\ns_add_u32 s60, s60, s61\nv_add_u32 v5, s60, v5")
            e(f"v_mul_u32_u24 v7, {DFF*2}, v5\nv_lshlrev_b32 v6, 4, v6\nv_add_u32 v7, v7, v6\ns_mul_i32 s60, s59, 448\nv_add_u32 v7, s60, v7")
            k.srd(60, P_W1, 0, D * DFF * 2)
            e("v_cmp_gt_u32 vcc, 56, v2\ns_and_saveexec_b64 s[34:35], vcc")
            for i in range(8):
                e(f"s_mov_b32 s64, {i*2*DFF*2}")
                e(f"buffer_load_dwordx4 {v(W1R+4*i,4)}, v7, s[60:63], s64 offen")
            e("v_lshlrev_b32 v5, 2, v5")
            e(f"s_mov_b32 s64, {4096*4}\ns_mov_b32 s65, {3072*4}")
            for i in range(8):
                e(f"buffer_load_dword v{W1R+32+i}, v5, s[20:23], s64 offen offset:{i*8}{SC}")
                e(f"buffer_load_dword v{W1R+40+i}, v5, s[20:23], s65 offen offset:{i*8}{SC}")
            e("s_mov_b64 exec, s[34:35]")
    e(f"v_lshrrev_b32 v5, 1, v3\nv_xor_b32 v5, v5, v4\nv_and_b32 v5, 7, v5")
    e(f"v_lshlrev_b32 v5, 4, v5\ns_lshl_b32 s47, s42, 6\nv_add_u32 v6, s47, v3\nv_lshlrev_b32 v6, 7, v6")
    e(f"v_add_u32 v{AX}, v5, v6\nv_xor_b32 v{AX+1}, 64, v{AX}")
    e("v_lshrrev_b32 v5, 2, v3\nv_and_b32 v6, 3, v2")
    e("v_lshlrev_b32 v7, 3, v4\nv_add_u32 v7, v7, v5")
    e(f"v_mul_u32_u24 v7, {pitch}, v7\nv_lshlrev_b32 v6, 3, v6\nv_add_u32 v7, v7, v6\nv_add_u32 v7, {nA*1024}, v7")
    if hbits == 2: e("v_lshrrev_b32 v5, 1, v5\nv_and_b32 v6, 1, v4\nv_lshlrev_b32 v6, 1, v6\nv_or_b32 v5, v5, v6")
    elif hbits == 1: e("v_and_b32 v5, 1, v4")
    else: e("v_and_b32 v6, 1, v4\nv_lshlrev_b32 v6, 2, v6\nv_or_b32 v5, v5, v6")
    e(f"s_mul_i32 s47, s43, {nt}")
    for i in range(nt):
        e(f"s_add_u32 s48, s47, {i}\nv_xor_b32 v6, s48, v5\nv_lshlrev_b32 v6, 5, v6\nv_add_u32 v{AW+i}, v7, v6")
    for r in range(NACC): e(f"v_mov_b32 v{ACC+r}, 0")
    def reads(ss, F):
        xs = [f"ds_read_b128 {v(F+4*j,4)}, v{AX+ss} offset:{j*2048}" for j in range(mt)]
        ws = []
        for i in range(nt):
            for hh in range(2):
                ws.append(f"ds_read_b64_tr_b16 {v(F+4*mt+4*i+2*hh,2)}, v{AW+i} offset:{(ss*32+hh*4)*pitch}")
        return [xs[0]] + ws[:2] + xs[1:] + ws[2:]
    def mfmas(F):
        return [f"v_mfma_f32_16x16x32_bf16 {v(ACC+4*(j*nt+i),4)}, {v(F+4*mt+4*i,4)}, {v(F+4*j,4)}, {v(ACC+4*(j*nt+i),4)}"
                for j in range(mt) for i in range(nt)]
    def mix(mf, rd, extra=()):
        rd = list(rd)
        if len(rd) * 2 <= len(mf) + 4 and len(mf) >= 16:
            return interleave(mf, rd + list(extra))
        out = []; oi = 0; ex = list(extra)
        for m_ in mf:
            out.append(m_)
            for _ in range(2):
                if oi < len(rd): out.append(rd[oi]); oi += 1
            if oi >= len(rd) and ex: out.append(ex.pop(0))
        out += rd[oi:] + ex
        return out
    if epi == "wo": k.code_touch("w", k.lab("f1_c"), k.lab("f2_c"), 24, 4, 1)
    if epi == "ffn1": k.code_touch("f", k.lab("f1_cloop"), k.lab("end"), 24, 4, 1)
    e(f"s_mov_b32 s49, 0\ns_mov_b32 s54, {SB}\ns_mov_b32 s55, {-(NS-1)*SB & 0xffffffff:#x}")
    e("s_barrier")
    if stamps[0] is not None: k.st(stamps[0])
    for l in reads(0, FA): e(l)
    l2pf = (epi == "ffn2" and "l2pf" in OPT)
    if l2pf:
        PFD_ = L2D
        k.srd(56, P_WS, srcA, sizeA); k.srd(60, pB, 0, sizeB)
        e(f"s_cmp_eq_u32 s24, 0\ns_cselect_b32 s65, {(nk-1) & 3}, 99")
        e("s_lshr_b32 s37, s2, 3")
        e(f"s_and_b32 s40, s37, {xc-1}\ns_lshr_b32 s41, s37, {xc.bit_length()-1}")
        e("v_lshrrev_b32 v5, 4, v2\nv_and_b32 v6, 15, v2")
        e(f"v_add_u32 v5, {PFD_}, v5")
        e(f"s_lshl_b32 s47, s40, 4\nv_add_u32 v7, s47, v6\nv_lshlrev_b32 v7, 7, v7\nv_lshlrev_b32 v250, 14, v5\nv_add_u32 v250, v250, v7\ns_mul_i32 s47, s25, {112*8192}\nv_add_u32 v250, s47, v250")
        e(f"s_lshl_b32 s47, s41, 4\nv_add_u32 v7, s47, v6\nv_lshlrev_b32 v249, 6, v5\nv_add_u32 v7, v7, v249\nv_lshlrev_b32 v249, 11, v7\ns_lshl_b32 s47, s26, 7\nv_add_u32 v249, s47, v249")
    e(f"s_mov_b32 s50, {nk-1}")
    adv_s = f"s_add_u32 s49, s49, 1\ns_cmp_eq_u32 s49, {NS}\ns_cselect_b32 s51, s55, s54\ns_cselect_b32 s49, 0, s49"
    adv_v = [f"v_add_u32 v{r}, s51, v{r}" for r in [AX, AX + 1] + [AW + i for i in range(nt)]]
    e(f"{L('cloop')}:")
    if l2pf:
        e(f"s_and_b32 s47, s50, 3\ns_cmp_lg_u32 s47, s65\ns_cbranch_scc1 {L('nopf')}")
        e("buffer_load_dword v248, v250, s[56:59], 0 offen sc1\nbuffer_load_dword v248, v249, s[60:63], 0 offen")
        e(f"v_add_u32 v250, {4*16384}, v250\nv_add_u32 v249, {4*64*2048}, v249")
        e(f"{L('nopf')}:")
    e(adv_s)
    e("s_waitcnt lgkmcnt(0)")
    seq = interleave(mfmas(FA), reads(1, FB)) if "oldmix" in OPT else mix(mfmas(FA), reads(1, FB))
    last_rd = max(i for i, x in enumerate(seq) if x.startswith("ds_read"))
    tail = [x for x in seq[last_rd + 1:]]
    seq = seq[:last_rd + 1]
    av = list(adv_v)
    for x in tail:
        seq.append(x)
        if av: seq.append(av.pop(0))
    seq += av
    for l in seq: e(l)
    e("s_waitcnt lgkmcnt(0)\ns_barrier")
    for l in (interleave(mfmas(FB), reads(0, FA)) if "oldmix" in OPT else mix(mfmas(FB), reads(0, FA))): e(l)
    e(f"s_sub_u32 s50, s50, 1\ns_cmp_lg_u32 s50, 0\ns_cbranch_scc1 {L('cloop')}")
    e("s_waitcnt lgkmcnt(0)")
    for l in mix(mfmas(FA), reads(1, FB)): e(l)
    e("s_waitcnt lgkmcnt(0)")
    if epi != "qkv": e("s_barrier")
    for l in mfmas(FB): e(l)
    if stamps[1] is not None: k.st(stamps[1])
    T = FA
    def acc(i, j): return ACC + 4 * (j * nt + i)
    def pack_pair(ta, tb, dst):
        e(f"v_cvt_pk_bf16_f32 v{dst}, v{ta}, v{ta+1}\nv_cvt_pk_bf16_f32 v{dst+1}, v{ta+2}, v{ta+3}")
        e(f"v_cvt_pk_bf16_f32 v{dst+2}, v{tb}, v{tb+1}\nv_cvt_pk_bf16_f32 v{dst+3}, v{tb+2}, v{tb+3}")
        e(f"v_permlane16_swap_b32 v{dst}, v{dst+2}\nv_permlane16_swap_b32 v{dst+1}, v{dst+3}")
    e("v_and_b32 v5, 1, v4\nv_lshlrev_b32 v5, 5, v5\nv_lshrrev_b32 v6, 1, v4\nv_lshlrev_b32 v6, 4, v6\nv_add_u32 v5, v5, v6")
    if epi == "qkv":
        e("v_lshlrev_b32 v6, 6, v3\nv_add_u32 v5, v5, v6")
        n = 0
        for p in range(nt // 2):
            if perm:
                e(f"s_mul_i32 s52, s43, 96\ns_add_u32 s52, s52, {32*p}\ns_cmp_lt_u32 s52, 64\ns_cselect_b32 s53, {f32(LOG2E * 32 ** -0.5)}, 1.0")
                e("s_lshr_b32 s54, s52, 6\ns_lshl_b32 s54, s54, 5\ns_bfe_u32 s52, s52, 0x10005\ns_add_u32 s52, s52, s54\ns_lshl_b32 s54, s26, 1\ns_add_u32 s52, s52, s54")
                e("s_lshl_b32 s52, s52, 17\ns_lshl_b32 s54, s44, 6\ns_add_u32 s52, s52, s54")
            else:
                e(f"s_add_u32 s52, s46, {32*p}\ns_cmp_lt_u32 s52, 1024\ns_cselect_b32 s53, {f32(LOG2E * 32 ** -0.5)}, 1.0")
                e(f"s_lshl_b32 s52, s52, 12\ns_lshl_b32 s54, s44, 6\ns_add_u32 s52, s52, s54")
            for j in range(mt):
                ta, tb = acc(2 * p, j), acc(2 * p + 1, j)
                for r in range(4):
                    e(f"v_mul_f32 v{ta+r}, s53, v{ta+r}\nv_mul_f32 v{tb+r}, s53, v{tb+r}")
                d = T + 4 * (n % 8); n += 1
                pack_pair(ta, tb, d)
                e(f"buffer_store_dwordx4 {v(d,4)}, v5, s[12:15], s52 offen offset:{j*1024}{SCS}")
        e(f"s_add_u32 s35, s26, {C_QKV}")
        k.signal("qkv", 4, 35, 16, (48, lambda: e(f"s_mul_i32 s33, s26, 6\nv_lshrrev_b32 v6, 3, v2\nv_add_u32 v6, s33, v6\nv_lshrrev_b32 v7, 5, v6\nv_and_b32 v6, 31, v6\nv_lshlrev_b32 v6, 11, v6"
                                                        f"\nv_lshlrev_b32 v7, 6, v7\nv_add_u32 v6, v6, v7\nv_and_b32 v7, 7, v2\nv_lshlrev_b32 v7, 8, v7\nv_add_u32 v6, v6, v7"
                                                        f"\ns_lshl_b32 s33, s25, 2\ns_add_u32 s33, s33, {FL['att']}\nv_add_u32 v6, s33, v6")))
    elif epi == "ffn1":
        ST = FA; UU = FA + 8; BB = FA + 36; TMP = FA + 64; T = FA + 72
        e(f"s_lshl_b32 s47, s42, 6\nv_add_u32 v6, s47, v3\nv_lshlrev_b32 v6, 3, v6\nv_add_u32 v6, {XL}, v6")
        for j in range(mt): e(f"ds_read_b64 {v(ST+2*j,2)}, v6 offset:{j*128}")
        e(f"s_mul_i32 s47, s43, {TN*4}\ns_add_u32 s47, s47, {XL+1024}\nv_lshlrev_b32 v7, 4, v4\nv_add_u32 v7, s47, v7")
        for i in range(nt):
            e(f"ds_read_b128 {v(UU+4*i,4)}, v7 offset:{i*64}\nds_read_b128 {v(BB+4*i,4)}, v7 offset:{896+i*64}")
        e("s_lshl_b32 s47, s42, 6\nv_add_u32 v6, s47, v3\nv_lshlrev_b32 v6, 6, v6\nv_lshrrev_b32 v7, 1, v4\nv_lshlrev_b32 v7, 4, v7\nv_add_u32 v6, v6, v7")
        e("v_and_b32 v7, 1, v4\nv_lshlrev_b32 v5, 5, v7\nv_add_u32 v5, v5, v6")
        e("v_lshlrev_b32 v7, 10, v7\nv_add_u32 v6, v6, v7\ns_lshl_b32 s47, s43, 5\nv_add_u32 v6, s47, v6")
        e(f"s_mul_i32 s48, s25, 112\ns_mul_i32 s47, s26, 7\ns_add_u32 s48, s48, s47\ns_lshl_b32 s48, s48, 13")
        e(f"s_add_u32 s53, s48, {3*8192}")
        e("s_waitcnt lgkmcnt(0)")
        def ln(i, j, t):
            a_ = acc(i, j)
            for h_ in range(2):
                e(f"v_pk_fma_f32 {v(t+2*h_,2)}, {v(ST+2*j,2)}, {v(UU+4*i+2*h_,2)}, {v(BB+4*i+2*h_,2)} op_sel_hi:[0,1,1] neg_lo:[1,0,0] neg_hi:[1,0,0]")
            for h_ in range(2):
                e(f"v_pk_fma_f32 {v(a_+2*h_,2)}, {v(a_+2*h_,2)}, {v(ST+2*j,2)}, {v(t+2*h_,2)} op_sel:[0,1,0]")
        cnt = [0]
        def put(ta, tb, addr, soff, off):
            d = T + 4 * (cnt[0] % 4); cnt[0] += 1
            e(f"v_cvt_pk_bf16_f32 v{d}, v{ta}, v{ta+1}\nv_cvt_pk_bf16_f32 v{d+1}, v{ta+2}, v{ta+3}")
            e(f"v_cvt_pk_bf16_f32 v{d+2}, v{tb}, v{tb+1}\nv_cvt_pk_bf16_f32 v{d+3}, v{tb+2}, v{tb+3}")
            for q in range(4): e(f"v_pk_max_i16 v{d+q}, v{d+q}, 0")
            e(f"v_permlane16_swap_b32 v{d}, v{d+2}\nv_permlane16_swap_b32 v{d+1}, v{d+3}")
            e(f"buffer_store_dwordx4 {v(d,4)}, {addr}, s[12:15], {soff} offen offset:{off}{SCS}")
        XA = 139264; XR = T + 16
        e(f"s_lshl_b32 s47, s24, 10\nv_lshlrev_b32 v7, 4, v2\nv_add_u32 v7, s47, v7\nv_add_u32 v7, {XA}, v7")
        e(f"s_cmp_eq_u32 s43, 1\ns_cbranch_scc1 {L('ep1')}")
        for wn_ in range(2):
            if wn_ == 1: e(f"{L('ep1')}:\ns_add_u32 s48, s48, {4*8192}")
            single = 6 if wn_ == 0 else 0
            pairs = [(0, 1), (2, 3), (4, 5)] if wn_ == 0 else [(1, 2), (3, 4), (5, 6)]
            mine = (0, 1) if wn_ == 0 else (2, 3); give = (2, 3) if wn_ == 0 else (0, 1)
            for jj in (0, 2):
                ln(single, jj, TMP); ln(single, jj + 1, TMP + 4)
            for j in range(4):
                a_ = acc(single, j)
                e(f"v_cvt_pk_bf16_f32 v{XR+2*j}, v{a_}, v{a_+1}\nv_cvt_pk_bf16_f32 v{XR+2*j+1}, v{a_+2}, v{a_+3}")
            for q in range(8): e(f"v_pk_max_i16 v{XR+q}, v{XR+q}, 0")
            e(f"ds_write_b128 v7, {v(XR+2*give[0],4)}\ns_waitcnt lgkmcnt(0)")
            e(f"s_lshl_b32 s47, s24, 2\ns_add_u32 s47, s47, {CTL+48}\nv_mov_b32 v{TMP}, s47\nv_mov_b32 v{TMP+1}, 1\nds_write_b32 v{TMP}, v{TMP+1}")
            for pi, (ia, ib) in enumerate(pairs):
                for j in range(mt):
                    ln(ia, j, TMP); ln(ib, j, TMP + 4)
                    put(acc(ia, j), acc(ib, j), "v5", "s48", j * 1024)
                if pi < 2: e("s_add_u32 s48, s48, 8192")
            tg = f"x{wn_}"
            e(f"s_xor_b32 s47, s24, 1\ns_lshl_b32 s47, s47, 2\ns_add_u32 s47, s47, {CTL+48}\nv_mov_b32 v{TMP}, s47\ns_mov_b32 s33, 0")
            e(f"{L('xw'+tg)}:\nds_read_b32 v{TMP+1}, v{TMP}\ns_waitcnt lgkmcnt(0)\nv_readfirstlane_b32 s34, v{TMP+1}")
            e(f"s_cmp_lg_u32 s34, 0\ns_cbranch_scc1 {L('xx'+tg)}\ns_add_u32 s33, s33, 1\ns_cmp_lt_u32 s33, {SPIN_MAX}\ns_cbranch_scc1 {L('xw'+tg)}")
            e(f"{L('xx'+tg)}:")
            e(f"v_xor_b32 v7, 1024, v7\nds_read_b128 {v(TMP,4)}, v7\ns_waitcnt lgkmcnt(0)")
            for n_, j in enumerate(mine):
                d = T + 4 * (cnt[0] % 4); cnt[0] += 1
                own = XR + 2 * j; oth = TMP + 2 * n_
                a0, b0 = (own, oth) if wn_ == 0 else (oth, own)
                e(f"v_mov_b32 v{d}, v{a0}\nv_mov_b32 v{d+1}, v{a0+1}\nv_mov_b32 v{d+2}, v{b0}\nv_mov_b32 v{d+3}, v{b0+1}")
                e(f"v_permlane16_swap_b32 v{d}, v{d+2}\nv_permlane16_swap_b32 v{d+1}, v{d+3}")
                e(f"buffer_store_dwordx4 {v(d,4)}, v5, s[12:15], s53 offen offset:{j*1024}{SCS}")
            if wn_ == 0: e(f"s_branch {L('ep2')}")
        e(f"{L('ep2')}:")
        if "stf1" in OPT: k.st(12)
        e(f"s_add_u32 s35, s25, {C_F1}")
        k.signal("f1", 4, 35, 16, (16, lambda: e(f"s_lshl_b32 s33, s25, 11\ns_lshl_b32 s34, s26, 2\ns_add_u32 s33, s33, s34\ns_add_u32 s33, s33, {FL['f2']}\nv_lshlrev_b32 v6, 7, v2\nv_add_u32 v6, s33, v6")) if "nos2" in OPT else
                 (8, lambda: e(f"s_lshl_b32 s33, s25, 11\ns_lshr_b32 s34, s26, 3\ns_lshl_b32 s34, s34, 7\ns_add_u32 s33, s33, s34\ns_and_b32 s34, s26, 7\ns_lshl_b32 s34, s34, 2\ns_add_u32 s33, s33, s34\ns_add_u32 s33, s33, {FL['f2']}\nv_lshlrev_b32 v6, 8, v2\nv_add_u32 v6, s33, v6")))
        if "stf1" in OPT: k.st(13)
    elif s2:
        e(f"s_cmp_eq_u32 s27, 0\ns_cbranch_scc1 {L('noswap')}")
        for j in range(mt):
            for r in range(8): e(f"v_swap_b32 v{acc(0,j)+r}, v{acc(2,j)+r}")
        e(f"{L('noswap')}:")
        k.srd(56, P_WS, WS_XCH, 128 * 2 * 4 * 8192)
        e("s_lshl_b32 s47, s25, 3\ns_add_u32 s47, s47, s26\ns_lshl_b32 s47, s47, 1")
        e("s_xor_b32 s48, s27, 1\ns_add_u32 s48, s48, s47\ns_lshl_b32 s49, s48, 2\ns_add_u32 s49, s49, s24\ns_lshl_b32 s49, s49, 13")
        e("s_add_u32 s52, s47, s27\ns_lshl_b32 s53, s52, 2\ns_add_u32 s53, s53, s24\ns_lshl_b32 s53, s53, 13")
        e("v_lshlrev_b32 v7, 4, v2")
        for j in range(mt):
            if j == 2: e("s_add_u32 s49, s49, 4096")
            e(f"buffer_store_dwordx4 {v(acc(2,j),4)}, v7, s[56:59], s49 offen offset:{(j%2)*2048}{SCS}")
            e(f"buffer_store_dwordx4 {v(acc(3,j),4)}, v7, s[56:59], s49 offen offset:{(j%2)*2048+1024}{SCS}")
        e("s_waitcnt vmcnt(0)")
        e(f"s_lshl_b32 s48, s48, 7\ns_lshl_b32 s54, s24, 2\ns_add_u32 s48, s48, s54\ns_add_u32 s48, s48, {FL['xch']}\nv_mov_b32 v6, s48\nv_mov_b32 v249, 1")
        e(f"s_mov_b64 exec, 1\nbuffer_store_dword v249, v6, {s(CNT,4)}, 0 offen sc1\ns_mov_b64 exec, -1")
        e(f"s_lshl_b32 s52, s52, 7\ns_add_u32 s52, s52, s54\ns_add_u32 s52, s52, {FL['xch']}\nv_mov_b32 v6, s52\ns_mov_b32 s33, 0\ns_mov_b64 exec, 1")
        e(f"{L('xpoll')}:")
        e(f"buffer_load_dword v249, v6, {s(CNT,4)}, 0 offen sc1\ns_waitcnt vmcnt(0)\nv_readfirstlane_b32 s34, v249")
        e(f"s_cmp_eq_u32 s34, 1\ns_cbranch_scc1 {L('xdone')}\ns_add_u32 s33, s33, 1\ns_cmp_lt_u32 s33, {SPIN_MAX}\ns_cbranch_scc1 {L('xpoll')}")
        e(f"{L('xdone')}:\ns_mov_b64 exec, -1")
        for j in range(mt):
            if j == 2: e("s_add_u32 s53, s53, 4096")
            e(f"buffer_load_dwordx4 {v(acc(2,j),4)}, v7, s[56:59], s53 offen offset:{(j%2)*2048}{SC}")
            e(f"buffer_load_dwordx4 {v(acc(3,j),4)}, v7, s[56:59], s53 offen offset:{(j%2)*2048+1024}{SC}")
        XT = T + 32
        e(f"v_add_u32 v6, s44, v3\nv_lshlrev_b32 v6, 11, v6\ns_lshl_b32 s47, s46, 1\nv_add_u32 v6, s47, v6\nv_add_u32 v5, v5, v6")
        for j in range(mt):
            e(f"s_waitcnt vmcnt({2*(mt-1-j) + j})")
            for q in range(4): e(f"v_pk_add_f32 {v(acc(0,j)+2*q,2)}, {v(acc(0,j)+2*q,2)}, {v(acc(2,j)+2*q,2)}")
            e(f"s_mov_b32 s48, {j*16*2048}")
            d = T + 4 * (j % 2)
            for i in range(2):
                a0 = acc(i, j); x0 = EP + 4 * j + 2 * i
                for q in range(2):
                    e(f"v_lshlrev_b32 v{XT+2*q}, 16, v{x0+q}\nv_and_b32 v{XT+2*q+1}, 0xffff0000, v{x0+q}")
                for q in range(2):
                    e(f"v_pk_fma_f32 {v(a0+2*q,2)}, {v(a0+2*q,2)}, {v(G+4*i+2*q,2)}, {v(XT+2*q,2)}")
            pack_pair(acc(0, j), acc(1, j), d)
            e(f"buffer_store_dwordx4 {v(d,4)}, v5, s[12:15], s48 offen")
    else:
        e("s_waitcnt vmcnt(0)")
        XT = T + 32
        e(f"v_add_u32 v6, s44, v3\nv_lshlrev_b32 v6, 11, v6\ns_lshl_b32 s47, s46, 1\nv_add_u32 v6, s47, v6\nv_add_u32 v5, v5, v6")
        if epi == "wo":
            k.srd(16, P_WS, WS_XG, S * D * 2); k.srd(60, P_WS, WS_STAT, 32 * S * 8)
            for r in range(4 * nt):
                e(f"v_add_f32 v{GG+r}, 1.0, v{GG+r}"); round_bf16(e, GG + r)
            e(f"s_lshl_b32 s49, s26, 1\ns_add_u32 s49, s49, s43\ns_lshl_b32 s49, s49, 14\ns_lshl_b32 s50, s44, 3\ns_add_u32 s49, s49, s50")
            e("v_lshlrev_b32 v1, 3, v3\nv_and_b32 v6, 1, v4\nv_lshlrev_b32 v6, 2, v6\nv_add_u32 v1, v1, v6")
            e("s_lshl_b32 s47, s25, 4\ns_add_u32 s47, s47, s26\ns_lshl_b32 s47, s47, 2\ns_add_u32 s47, s47, s24\ns_lshl_b32 s47, s47, 12\nv_lshlrev_b32 v7, 4, v2\nv_mov_b32 v253, v7")
        for j in range(mt):
            e(f"s_mov_b32 s48, {j*16*2048}")
            d = T + 4 * (j % 2); d2 = T + 8 + 4 * (j % 2); SM = T + 16 + 4 * (j % 2)
            for i in range(nt):
                a0 = acc(i, j); x0 = EP + 2 * (j * nt + i)
                for q in range(2):
                    e(f"v_lshlrev_b32 v{XT+2*q}, 16, v{x0+q}\nv_and_b32 v{XT+2*q+1}, 0xffff0000, v{x0+q}")
                for q in range(2):
                    e(f"v_pk_fma_f32 {v(a0+2*q,2)}, {v(a0+2*q,2)}, {v(G+4*i+2*q,2)}, {v(XT+2*q,2)}")
            ta, tb = acc(0, j), acc(1, j)
            e(f"v_cvt_pk_bf16_f32 v{d}, v{ta}, v{ta+1}\nv_cvt_pk_bf16_f32 v{d+1}, v{ta+2}, v{ta+3}")
            e(f"v_cvt_pk_bf16_f32 v{d+2}, v{tb}, v{tb+1}\nv_cvt_pk_bf16_f32 v{d+3}, v{tb+2}, v{tb+3}")
            if epi == "ffn2":
                e(f"v_permlane16_swap_b32 v{d}, v{d+2}\nv_permlane16_swap_b32 v{d+1}, v{d+3}")
                e(f"buffer_store_dwordx4 {v(d,4)}, v5, s[12:15], s48 offen")
                continue
            for q in range(2):
                e(f"v_pk_mul_f32 {v(XT+2*q,2)}, {v(ta+2*q,2)}, {v(GG+2*q,2)}\nv_pk_mul_f32 {v(XT+4+2*q,2)}, {v(tb+2*q,2)}, {v(GG+4+2*q,2)}")
            for q in range(4): e(f"v_cvt_pk_bf16_f32 v{d2+q}, v{XT+2*q}, v{XT+2*q+1}")
            e(f"v_permlane16_swap_b32 v{d2}, v{d2+2}\nv_permlane16_swap_b32 v{d2+1}, v{d2+3}")
            e(f"buffer_store_dwordx4 {v(d2,4)}, v5, s[16:19], s48 offen{SCS}")
            e(f"buffer_store_dwordx4 {v(d,4)}, v253, s[12:15], s47 offen offset:{j*1024}{SCS}")
            e(f"v_pk_add_f32 {v(SM,2)}, {v(ta,2)}, {v(ta+2,2)}\nv_pk_mul_f32 {v(SM+2,2)}, {v(ta,2)}, {v(ta,2)}")
            e(f"v_pk_add_f32 {v(SM,2)}, {v(SM,2)}, {v(tb,2)}\nv_pk_fma_f32 {v(SM+2,2)}, {v(ta+2,2)}, {v(ta+2,2)}, {v(SM+2,2)}")
            e(f"v_pk_add_f32 {v(SM,2)}, {v(SM,2)}, {v(tb+2,2)}\nv_pk_fma_f32 {v(SM+2,2)}, {v(tb,2)}, {v(tb,2)}, {v(SM+2,2)}")
            e(f"v_pk_fma_f32 {v(SM+2,2)}, {v(tb+2,2)}, {v(tb+2,2)}, {v(SM+2,2)}")
            e(f"v_add_f32 v{SM}, v{SM}, v{SM+1}\nv_add_f32 v{SM+2}, v{SM+2}, v{SM+3}")
            e(f"v_permlane16_swap_b32 v{SM}, v{SM+2}\nv_add_f32 v{SM}, v{SM}, v{SM+2}\nv_mov_b32 v{SM+1}, v{SM}")
            e(f"v_permlane32_swap_b32 v{SM}, v{SM+1}\nv_add_f32 v{SM}, v{SM}, v{SM+1}")
            e(f"s_mov_b32 exec_lo, -1\ns_mov_b32 exec_hi, 0\nbuffer_store_dword v{SM}, v1, s[60:63], s49 offen offset:{j*128}{SCS}\ns_mov_b64 exec, -1")
        if epi == "wo":
            if "stwo" in OPT: k.st(12)
            e(f"s_add_u32 s35, s25, {C_WO}")
            k.signal("wo", 4, 35, 16, (16, lambda: e(f"s_lshl_b32 s33, s25, 11\ns_lshl_b32 s34, s26, 2\ns_add_u32 s33, s33, s34\ns_add_u32 s33, s33, {FL['f1']}\nv_lshlrev_b32 v6, 7, v2\nv_add_u32 v6, s33, v6")))
            if "stwo" in OPT: k.st(13)
            UA = ACC
            for r in range(16): e(f"v_mov_b32 v{UA+r}, 0")
            for i in range(8):
                g_ = W1R + 32 + i; s_ = W1R + 40 + i
                e(f"v_add_f32 v{g_}, 1.0, v{g_}"); round_bf16(e, g_)
                for q in range(4):
                    w_ = W1R + 4 * i + q
                    e(f"v_lshlrev_b32 v6, 16, v{w_}\nv_and_b32 v7, 0xffff0000, v{w_}")
                    e(f"v_fmac_f32 v{UA+2*q}, v{g_}, v6\nv_fmac_f32 v{UA+2*q+1}, v{g_}, v7\nv_fmac_f32 v{UA+8+2*q}, v{s_}, v6\nv_fmac_f32 v{UA+8+2*q+1}, v{s_}, v7")
            UL = 139264
            e(f"v_mul_u32_u24 v5, {(65536+27)//28}, v2\nv_lshrrev_b32 v5, 16, v5\nv_mul_u32_u24 v6, 28, v5\nv_sub_u32 v6, v2, v6")
            e(f"s_lshl_b32 s32, s24, 1\nv_add_u32 v5, s32, v5\nv_mul_u32_u24 v5, 1792, v5\nv_lshlrev_b32 v6, 5, v6\nv_add_u32 v5, v5, v6\nv_add_u32 v5, {UL}, v5")
            e("v_cmp_gt_u32 vcc, 56, v2\ns_and_saveexec_b64 s[34:35], vcc")
            e(f"ds_write_b128 v5, {v(UA,4)}\nds_write_b128 v5, {v(UA+4,4)} offset:16\nds_write_b128 v5, {v(UA+8,4)} offset:896\nds_write_b128 v5, {v(UA+12,4)} offset:912")
            e("s_mov_b64 exec, s[34:35]\ns_waitcnt lgkmcnt(0)")
            e(f"v_mov_b32 v6, {L_SIG['ub']}\nv_mov_b32 v7, 1\ns_mov_b64 exec, 1")
            e("ds_add_rtn_u32 v7, v6, v7\ns_waitcnt lgkmcnt(0)\nv_readfirstlane_b32 s32, v7\ns_mov_b64 exec, -1")
            e(f"s_cmp_lg_u32 s32, 3\ns_cbranch_scc1 {L('ubx')}")
            e(f"v_lshlrev_b32 v5, 2, v2\nv_add_u32 v5, {UL}, v5")
            for m_ in range(7):
                for rr in range(8): e(f"ds_read_b32 v{UA+rr}, v5 offset:{rr*1792+m_*256}")
                e("s_waitcnt lgkmcnt(0)")
                for rr in range(1, 8): e(f"v_add_f32 v{UA}, v{UA}, v{UA+rr}")
                e(f"v_mov_b32 v{UA+16+m_}, v{UA}")
            k.srd(16, P_WS, WS_UB, 16 * 2 * DFF * 4)
            e(f"s_mul_i32 s49, s58, {2*DFF*4}\ns_mul_i32 s50, s59, 896\ns_add_u32 s49, s49, s50")
            for m_ in range(7):
                e(f"v_add_u32 v5, {64*m_}, v2\nv_cmp_le_u32 vcc, 224, v5\nv_mov_b32 v6, {DFF*4 - 896}\nv_cndmask_b32 v6, 0, v6, vcc\nv_lshl_add_u32 v5, v5, 2, v6")
                e(f"buffer_store_dword v{UA+16+m_}, v5, s[16:19], s49 offen{SCS}")
            e("s_waitcnt vmcnt(0)")
            e(f"s_add_u32 s35, s59, {C_UB}\ns_mov_b64 exec, 1")
            k.arrive("ub", 35, 16)
            e("s_mov_b64 exec, -1")
            e(f"{L('ubx')}:")
    e(f"s_branch {nxt_c}")
    e(f"{L('l')}:")
    if s2: tile_map_s2(e)
    else: tile_map(e, xr, xc)
    k.srd(4, P_WS, srcA, sizeA); k.srd(8, pB, 0, sizeB)
    e("s_sub_u32 s42, s24, 4")
    LA = 8
    lda2, ldb2 = lda * 2, ldb * 2
    blocked = epi in ("ffn2", "ffn2s")
    if blocked:
        e(f"s_mul_i32 s43, s25, {112*8192}\ns_mul_i32 s44, s42, {nAw*8*64}\ns_add_u32 s43, s43, s44")
        e("v_lshrrev_b32 v3, 3, v2\nv_lshlrev_b32 v3, 6, v3\nv_add_u32 v3, s43, v3")
        e("v_and_b32 v4, 7, v2\nv_lshrrev_b32 v5, 4, v2")
        for i in range(nAw):
            e(f"v_xor_b32 v6, {(i&1)*4}, v5\nv_xor_b32 v6, v6, v4\nv_lshrrev_b32 v7, 2, v6\nv_lshlrev_b32 v7, 13, v7\nv_and_b32 v6, 3, v6\nv_lshlrev_b32 v6, 4, v6")
            e(f"v_add3_u32 v6, v6, v7, v3\nv_add_u32 v{LA+i}, {i*8*64}, v6")
    else:
        e(f"s_lshl_b32 s43, s25, 7\ns_mul_i32 s44, s42, {nAw*8}\ns_add_u32 s43, s43, s44")
        e(f"v_lshrrev_b32 v3, 3, v2\nv_add_u32 v3, s43, v3\ns_mov_b32 s45, {lda2}\nv_mul_lo_u32 v3, s45, v3")
        e("v_and_b32 v4, 7, v2\nv_lshrrev_b32 v5, 4, v2")
        for i in range(nAw):
            e(f"v_xor_b32 v6, {(i&1)*4}, v5\nv_xor_b32 v6, v6, v4\nv_lshlrev_b32 v6, 4, v6\nv_add_u32 v6, v6, v3")
            e(f"v_add_u32 v{LA+i}, {i*8*lda2}, v6")
    ASTEP = 16384 if blocked else BK * 2
    magic = (65536 + cpr - 1) // cpr
    assert all((p * magic) >> 16 == p // cpr for p in range(nBw * 64)) and nBw * 64 == 16 * cpr
    e(f"s_mul_i32 s43, s42, {16*ldb2}\ns_mul_i32 s44, s26, {128 if perm else BN*2}\ns_add_u32 s43, s43, s44")
    for i in range(nBw):
        e(f"v_add_u32 v3, {i*64}, v2\nv_mul_u32_u24 v4, {magic}, v3\nv_lshrrev_b32 v4, 16, v4")
        e(f"v_mul_u32_u24 v5, {cpr}, v4\nv_sub_u32 v3, v3, v5")
        if hbits == 2: e("v_and_b32 v5, 2, v4\nv_lshrrev_b32 v6, 1, v4\nv_and_b32 v6, 4, v6\nv_or_b32 v5, v5, v6")
        elif hbits == 1: e("v_lshrrev_b32 v5, 2, v4\nv_and_b32 v5, 2, v5")
        else: e("v_and_b32 v5, 3, v4\nv_lshrrev_b32 v6, 1, v4\nv_and_b32 v6, 4, v6\nv_or_b32 v5, v5, v6\nv_lshlrev_b32 v5, 1, v5")
        e("v_xor_b32 v3, v3, v5")
        if perm: e("v_lshrrev_b32 v5, 3, v3\nv_and_b32 v3, 7, v3\nv_lshlrev_b32 v5, 7, v5\nv_add_u32 v3, v3, v5")
        e(f"v_lshlrev_b32 v3, 4, v3\ns_mov_b32 s45, {ldb2}\nv_mul_lo_u32 v4, s45, v4\nv_add_u32 v3, v3, v4")
        e(f"v_add_u32 v{LA+nAw+i}, s43, v3")
    e(f"s_mul_i32 s46, s42, {nAw*1024}")
    e(f"s_mul_i32 s47, s42, {nBw*1024}\ns_add_u32 s47, s47, {nA*1024}")
    def issue_x(lds_s, off_s):
        for i in range(nAw):
            e(f"s_add_u32 m0, {lds_s}, {i*1024}")
            e(f"buffer_load_dwordx4 v{LA+i}, s[4:7], {off_s} offen{asc} lds")
    def issue_w(lds_s, off_s):
        for i in range(nBw):
            e(f"s_add_u32 m0, {lds_s}, {i*1024}")
            e(f"buffer_load_dwordx4 v{LA+nAw+i}, s[8:11], {off_s} offen lds")
    if s2: e(f"s_mul_i32 s62, s27, {nk*ASTEP}\ns_mul_i32 s63, s27, {nk*BK*ldb2}")
    else: e("s_mov_b32 s62, 0\ns_mov_b32 s63, 0")
    def w_prologue():
        for st in range(NS - 1):
            e(f"s_add_u32 s52, s47, {st*SB}\ns_add_u32 s49, s63, {st*BK*ldb2}")
            issue_w("s52", "s49")
    if dep:
        base, target, kind = dep
        e(f"s_lshr_b32 s35, s25, 1\ns_add_u32 s35, s35, {base}" if kind == "rb2" else f"s_add_u32 s35, s25, {base}")
        if "wfirst" in OPT:
            w_prologue()
            k.dep_wait_loaders(tag, 35, target, None)
        else:
            e(f"s_cmp_eq_u32 s24, 4\ns_cbranch_scc1 {L('w4a')}")
            w_prologue()
            e(f"{L('w4a')}:")
            if hbar: e("s_barrier")
            k.dep_wait_loaders(tag, 35, target, None)
            e(f"s_cmp_lg_u32 s24, 4\ns_cbranch_scc1 {L('w4b')}")
            w_prologue()
            e(f"{L('w4b')}:")
        if tag == "f1" and "stwo" in OPT: k.st(14, 4)
        if tag == "wo" and "statt" in OPT: k.st(15, 4)
        if tag == "f2" and "stf1" in OPT: k.st(14, 4)
    else:
        w_prologue()
    for st in range(NS - 1):
        e(f"s_add_u32 s51, s46, {st*SB}\ns_add_u32 s48, s62, {st*ASTEP}")
        issue_x("s51", "s48")
    e(f"s_add_u32 s48, s62, {(NS-1)*ASTEP}\ns_add_u32 s49, s63, {(NS-1)*BK*ldb2}\ns_mov_b32 s50, {(NS-1)*SB}")
    def issue():
        e("s_add_u32 s51, s50, s46\ns_add_u32 s52, s50, s47")
        issue_x("s51", "s48"); issue_w("s52", "s49")
        e(f"s_add_u32 s48, s48, {ASTEP}\ns_add_u32 s49, s49, {BK*ldb2}")
        e(f"s_add_u32 s50, s50, {SB}\ns_cmp_eq_u32 s50, {SB*NS}\ns_cselect_b32 s50, 0, s50")
    e(f"s_waitcnt vmcnt({nAw*(NS-2)})\ns_barrier")
    issue()
    e(f"s_waitcnt vmcnt({nAw*(NS-3) + nld})\ns_barrier" if NS >= 3 else "")
    issue()
    for t in range(2, NS - 1):
        e(f"s_waitcnt vmcnt({nAw*(NS-2-t) + nld*t})\ns_barrier")
        issue()
    done = max(2, NS - 1)
    e(f"s_mov_b32 s53, {nk-(NS-1)-done}")
    e(f"{L('lloop')}:")
    e(f"s_waitcnt vmcnt({nld*(NS-2)})\ns_barrier")
    issue()
    e(f"s_sub_u32 s53, s53, 1\ns_cmp_lg_u32 s53, 0\ns_cbranch_scc1 {L('lloop')}")
    nx = 0
    for t in range(NS - 1):
        e(f"s_waitcnt vmcnt({nld*(NS-2-t)+nx})\ns_barrier")
        if epi == "ffn1" and t == 0:
            nx = 32
            k.srd(56, P_WS, WS_STAT, 32 * S * 8); k.srd(60, P_WS, WS_UB, 16 * 2 * DFF * 4)
            e(f"s_cmp_ge_u32 s42, 2\ns_cbranch_scc1 {L('ubld')}")
            e(f"s_lshl_b32 s43, s42, 6\nv_add_u32 v3, s43, v2\ns_lshl_b32 s44, s25, 7\nv_add_u32 v4, s44, v3\nv_lshlrev_b32 v4, 3, v4")
            for sl in range(32):
                e(f"s_mov_b32 s45, {sl*S*8}\nbuffer_load_dwordx2 {v(32+2*sl,2)}, v4, s[56:59], s45 offen{SC}")
            e(f"s_branch {L('ldd')}")
            e(f"{L('ubld')}:")
            e(f"s_add_u32 s35, s26, {C_UB}")
            k.poll(tag + "u", 35, 16)
            e(f"s_sub_u32 s43, s42, 2\ns_lshl_b32 s43, s43, 6\nv_add_u32 v3, s43, v2")
            e(f"s_mul_i32 s44, s26, {BN*4}\nv_lshlrev_b32 v4, 3, v3\nv_add_u32 v4, s44, v4")
            for kg in range(16):
                for w_ in range(2):
                    e(f"s_mov_b32 s45, {(kg*2+w_)*DFF*4}\nbuffer_load_dwordx2 {v(32+4*kg+2*w_,2)}, v4, s[60:63], s45 offen{SC}")
            e(f"{L('ldd')}:")
    if epi == "ffn1":
        e("s_waitcnt vmcnt(0)")
        e(f"s_cmp_ge_u32 s42, 2\ns_cbranch_scc1 {L('ubred')}")
        for sl in range(1, 32): e(f"v_add_f32 v32, v32, v{32+2*sl}\nv_add_f32 v33, v33, v{33+2*sl}")
        e(f"v_mul_f32 v32, {f32(1/1024)}, v32\nv_mul_f32 v33, {f32(1/1024)}, v33")
        e(f"v_fma_f32 v33, -v32, v32, v33\nv_max_f32 v33, 0, v33\nv_add_f32 v33, {f32(1e-5)}, v33\nv_rsq_f32 v33, v33")
        e("v_mul_f32 v32, v32, v33")
        e(f"v_lshlrev_b32 v4, 3, v3\nv_add_u32 v4, {XL}, v4\nds_write_b64 v4, v[32:33]")
        e(f"s_branch {L('redd')}")
        e(f"{L('ubred')}:")
        for kg in range(1, 16):
            for q in range(4): e(f"v_add_f32 v{32+q}, v{32+q}, v{32+4*kg+q}")
        e(f"v_lshlrev_b32 v4, 3, v3\nv_add_u32 v4, {XL+1024}, v4\nv_cmp_gt_u32 vcc, 112, v3\ns_and_saveexec_b64 s[44:45], vcc")
        e(f"ds_write_b64 v4, v[32:33]\nds_write_b64 v4, v[34:35] offset:896\ns_mov_b64 exec, s[44:45]")
        e(f"{L('redd')}:")
        e("s_waitcnt lgkmcnt(0)")
    if epi != "qkv": e("s_barrier")
    e(f"s_branch {nxt_l}")

def attn_phase(k, nxt_c, nxt_l, pf):
    e = k.e
    L = lambda n: k.lab("att_" + n)
    NSL = 3; KPS = 128; SBK = KPS * 64
    HB = 2 * SBK; SB = 2 * HB
    FLAG = NSL * SB
    e(f"{L('c')}:\n{L('l')}:")
    e("s_and_b32 s36, s2, 7\ns_lshr_b32 s37, s2, 3\ns_lshl_b32 s36, s36, 2\ns_lshr_b32 s38, s37, 3\ns_add_u32 s25, s36, s38")
    e("s_and_b32 s26, s37, 7")
    e("s_and_b32 s34, s24, 3\ns_lshr_b32 s27, s24, 2")
    e("s_mov_b32 s57, s34")
    e("s_lshl_b32 s40, s25, 17")
    e(f"s_add_u32 s32, s{P_WS}, {WS_QKV:#x}\ns_addc_u32 s33, s{P_WS+1}, 0\ns_add_u32 s32, s32, s40\ns_addc_u32 s33, s33, 0")
    k.srd(4, 32, 0, S * 64); k.srd(8, 32, 32 * S * 64, S * 64); k.srd(12, 32, 64 * S * 64, S * 64)
    k.srd(16, P_WS, WS_O, S * D * 2)
    QG, KH = 57, 27
    Q = 4 + 4; KF = 24; VF = 32
    NEG = 40; O = 72; LS = 104; SEL = 112
    SS = [[116, 132], [148, 164]]
    PP = [[180, 188], [196, 204]]
    AK0, AK1, AV, AN0, AN1, DK, DV = 212, 213, 214, 215, 216, 217, 218
    HH, QL = 219, 220
    T = 221
    PFD = 230
    e(f"v_and_b32 v{QL}, 31, v2\nv_lshrrev_b32 v{HH}, 5, v2")
    e(f"s_lshl_b32 s39, s26, 8\ns_lshl_b32 s40, s{QG}, 6\ns_add_u32 s39, s39, s40")
    e(f"v_lshrrev_b32 v{T}, 2, v2\ns_lshl_b32 s40, s{QG}, 5\nv_add_u32 v{T}, s40, v{T}\nv_lshlrev_b32 v{T}, 6, v{T}")
    e(f"v_and_b32 v{T+1}, 3, v2\nv_lshrrev_b32 v{T+2}, 4, v2\nv_xor_b32 v{T+1}, v{T+1}, v{T+2}\nv_lshlrev_b32 v{T+1}, 4, v{T+1}")
    e(f"v_add_u32 v{DK}, v{T}, v{T+1}")
    e(f"v_lshlrev_b32 v{DV}, 4, v2\ns_lshl_b32 s40, s{QG}, 11\nv_add_u32 v{DV}, s40, v{DV}")
    e(f"s_lshl_b32 s41, s{QG}, 11\ns_mul_i32 s40, s{KH}, {HB}\ns_add_u32 s41, s41, s40")
    e(f"s_mul_i32 s45, s{KH}, {S*32}")
    def addr_setup():
        e(f"s_mul_i32 s40, s{KH}, {HB}")
        e(f"v_lshrrev_b32 v{T}, 2, v{QL}\nv_and_b32 v{T}, 3, v{T}\nv_xor_b32 v{T}, v{T}, v{HH}\nv_lshlrev_b32 v{T}, 4, v{T}")
        e(f"v_lshlrev_b32 v{T+1}, 6, v{QL}\nv_add_u32 v{T+3}, v{T}, v{T+1}")
        e(f"v_add_u32 v{AK0}, s40, v{T+3}\nv_xor_b32 v{AK1}, 32, v{AK0}")
        e(f"v_and_b32 v{T}, 15, v2\nv_lshrrev_b32 v{T}, 2, v{T}\nv_lshlrev_b32 v{T+1}, 2, v{HH}\nv_add_u32 v{T}, v{T}, v{T+1}\nv_lshlrev_b32 v{T}, 6, v{T}")
        e(f"v_lshrrev_b32 v{T+1}, 4, v2\nv_and_b32 v{T+1}, 1, v{T+1}\nv_lshlrev_b32 v{T+1}, 5, v{T+1}\nv_add_u32 v{T}, v{T}, v{T+1}")
        e(f"v_and_b32 v{T+1}, 3, v2\nv_lshlrev_b32 v{T+1}, 3, v{T+1}\nv_add_u32 v{T}, v{T}, v{T+1}\nv_add_u32 v{T}, {SBK}, v{T}\nv_add_u32 v{AV}, s40, v{T}")
    addr_setup()
    e(f"v_lshrrev_b32 v{T}, 4, v2\nv_lshrrev_b32 v{T+1}, 2, v2\nv_xor_b32 v{T}, v{T}, v{T+1}\nv_and_b32 v{T}, 1, v{T}")
    e(f"v_cmp_eq_u32 vcc, 0, v{T}\nv_mov_b32 v{T+1}, 0x3f803f80")
    e(f"v_cndmask_b32 v{SEL}, 0, v{T+1}, vcc")
    for r in range(1, 4): e(f"v_mov_b32 v{SEL+r}, v{SEL}")
    def zero_acc():
        for r in range(32): e(f"v_mov_b32 v{O+r}, 0")
        for r in range(8): e(f"v_mov_b32 v{LS+r}, 0")
    zero_acc()
    for r in range(8): e(f"v_mov_b32 v{VF+r}, 0")
    for qb in range(2):
        for r in range(8): e(f"v_mov_b32 v{PP[1][qb]+r}, 0")
    e(f"s_cmp_lg_u32 s24, 4\ns_cbranch_scc1 {L('nodep')}")
    if "noflags" in OPT:
        e(f"v_lshlrev_b32 v6, 10, v2\ns_lshl_b32 s35, s25, 5\nv_add_u32 v6, s35, v6\nv_mul_u32_u24 v6, {(65536 + 191) // 192}, v6\nv_lshrrev_b32 v6, 16, v6")
        e(f"v_add_u32 v6, {C_QKV}, v6\nv_lshlrev_b32 v6, 8, v6")
        k.poll("att", None, 16, lanes=3)
    else:
        e(f"s_lshl_b32 s35, s25, 3\ns_add_u32 s35, s35, s26\ns_lshl_b32 s35, s35, 8\ns_add_u32 s35, s35, {FL['att']}")
        k.wait_flags("att", 48, 35)
    e(f"{L('nodep')}:")
    e("s_barrier")
    k.st(3)
    e(f"v_mov_b32 v{T}, {FLAG}\nv_mov_b32 v{T+1}, 0\nds_write_b32 v{T}, v{T+1}")
    e(f"v_add_u32 v{T}, s39, v{QL}\nv_lshlrev_b32 v{T}, 6, v{T}\nv_lshlrev_b32 v{T+1}, 4, v{HH}\nv_add_u32 v{T}, v{T}, v{T+1}")
    for qb in range(2):
        e(f"buffer_load_dwordx4 {v(Q+8*qb,4)}, v{T}, s[4:7], 0 offen offset:{qb*2048}{SC}")
        e(f"buffer_load_dwordx4 {v(Q+8*qb+4,4)}, v{T}, s[4:7], 0 offen offset:{qb*2048+32}{SC}")
    def dma(slot_sreg):
        e(f"s_add_u32 s43, {slot_sreg}, s41\ns_add_u32 s46, s42, s45")
        e(f"s_mov_b32 m0, s43\nbuffer_load_dwordx4 v{DK}, s[8:11], s46 offen{SC} lds")
        e(f"s_add_u32 m0, s43, {SBK}\nbuffer_load_dwordx4 v{DV}, s[12:15], s46 offen{SC} lds")
        e(f"s_add_u32 s46, s46, 1024\ns_add_u32 m0, s43, 1024\nbuffer_load_dwordx4 v{DK}, s[8:11], s46 offen{SC} lds")
        e(f"s_add_u32 m0, s43, {SBK+1024}\nbuffer_load_dwordx4 v{DV}, s[12:15], s46 offen{SC} lds")
        e(f"s_add_u32 s42, s42, {SBK}")
    def kread(a0, a1, t):
        return [f"ds_read_b128 {v(KF,4)}, v{a0} offset:{t*2048}", f"ds_read_b128 {v(KF+4,4)}, v{a1} offset:{t*2048}"]
    def vread(t):
        return [f"ds_read_b64_tr_b16 {v(VF+4*m+2*hh,2)}, v{AV} offset:{t*2048+(16*m+8*hh)*64}" for m in range(2) for hh in range(2)]
    def qk(qb, dst, c):
        return [f"v_mfma_f32_32x32x16_bf16 {v(dst,16)}, {v(KF,4)}, {v(Q+8*qb,4)}, {c}",
                f"v_mfma_f32_32x32x16_bf16 {v(dst,16)}, {v(KF+4,4)}, {v(Q+8*qb+4,4)}, {v(dst,16)}"]
    def pv(qb, P):
        o, l = O + 16 * qb, LS + 4 * qb
        return [f"v_mfma_f32_32x32x16_bf16 {v(o,16)}, {v(VF,4)}, {v(P,4)}, {v(o,16)}",
                f"v_mfma_f32_16x16x32_bf16 {v(l,4)}, {v(SEL,4)}, {v(P,4)}, {v(l,4)}",
                f"v_mfma_f32_32x32x16_bf16 {v(o,16)}, {v(VF+4,4)}, {v(P+4,4)}, {v(o,16)}",
                f"v_mfma_f32_16x16x32_bf16 {v(l,4)}, {v(SEL,4)}, {v(P+4,4)}, {v(l,4)}"]
    def lane_max16(src, dst, tmp):
        e(f"v_max3_f32 v{dst}, v{src}, v{src+1}, v{src+2}")
        for r in range(3, 15, 2): e(f"v_max3_f32 v{dst}, v{dst}, v{src+r}, v{src+r+1}")
        e(f"v_max_f32 v{dst}, v{dst}, v{src+15}")
        e(f"v_mov_b32 v{tmp}, v{dst}\nv_permlane32_swap_b32 v{tmp}, v{dst}\nv_max_f32 v{dst}, v{dst}, v{tmp}")
    NST = S // 2 // KPS
    HALF = S * 32
    e("s_mov_b32 s42, 0")
    for st in range(NSL - 1):
        e(f"s_mov_b32 s44, {st*SB}")
        dma("s44")
    e(f"s_waitcnt vmcnt({4*(NSL-2)})\ns_barrier")
    e(f"v_xor_b32 v{T+4}, 32, v{T+3}")
    for l in kread(T + 3, T + 4, 0): e(l)
    e("s_waitcnt lgkmcnt(0)")
    for qb in range(2):
        for l in qk(qb, SS[1][qb], "0"): e(l)
    for l in kread(AK0, AK1, 0): e(l)
    for qb in range(2):
        lane_max16(SS[1][qb], T, T + 1)
        e(f"v_add_f32 v{T}, {f32(40.0)}, v{T}")
        for r in range(16): e(f"v_sub_f32 v{NEG+16*qb+r}, 0, v{T}")
    e("s_waitcnt lgkmcnt(0)")
    for qb in range(2):
        for l in qk(qb, SS[0][qb], v(NEG + 16 * qb, 16)): e(l)
    for l in kread(AK0, AK1, 1): e(l)
    e(f"v_add_u32 v{AN0}, {SB}, v{AK0}\nv_add_u32 v{AN1}, {SB}, v{AK1}")
    e(f"s_mov_b32 s47, 1\ns_mov_b32 s48, {SB}\ns_mov_b32 s49, {-(NSL-1)*SB & 0xffffffff:#x}")
    e(f"s_mov_b32 s50, {(NSL-1)*SB}")
    e("s_waitcnt lgkmcnt(0)")
    e(f"s_mov_b32 s44, {NST}")
    e(f"{L('floop')}:")
    for t in range(4):
        par = t & 1
        if t == 2:
            e(f"s_cmp_ge_u32 s42, {HALF}\ns_cbranch_scc1 {L('nodma')}")
            e(f"s_waitcnt vmcnt({4*(NSL-3)})\ns_barrier")
            dma("s50")
            e(f"s_add_u32 s50, s50, {SB}\ns_cmp_eq_u32 s50, {NSL*SB}\ns_cselect_b32 s50, 0, s50")
            if pf:
                e(f"s_cmp_lg_u32 s44, {PFSTAGE}\ns_cbranch_scc1 {L('cont')}")
                e("s_lshl_b32 s56, s2, 3\ns_add_u32 s56, s56, s24")
                e(f"s_mov_b32 s60, s{P_WO}\ns_mov_b32 s61, s{P_WO+1}\ns_mov_b32 s62, {D*D*2}\ns_mov_b32 s63, 0x20000\ns_mov_b32 s52, s56")
                e(f"s_cmp_lt_u32 s56, 256\ns_cbranch_scc1 {L('pfgo')}")
                e(f"s_mov_b32 s60, s{P_W1}\ns_mov_b32 s61, s{P_W1+1}\ns_mov_b32 s62, {D*DFF*2}\ns_mov_b32 s63, 0x20000\ns_sub_u32 s52, s56, 256")
                e(f"s_cmp_lt_u32 s56, 1152\ns_cbranch_scc1 {L('pfgo')}")
                e(f"s_mov_b32 s60, s{P_W2}\ns_mov_b32 s61, s{P_W2+1}\ns_mov_b32 s62, {D*DFF*2}\ns_mov_b32 s63, 0x20000\ns_sub_u32 s52, s56, 1152")
                e(f"{L('pfgo')}:")
                e(f"s_lshl_b32 s52, s52, 13\nv_lshlrev_b32 v{T}, 7, v2\nbuffer_load_dword v{PFD}, v{T}, s[60:63], s52 offen")
                k.code_touch("a", k.lab("att_cont"), k.lab("f1_l"), 24, 8, 1)
            e(f"s_branch {L('cont')}")
            e(f"{L('nodma')}:")
            e("s_waitcnt vmcnt(0)\ns_barrier")
            e(f"{L('cont')}:")
        kr = kread(AN0, AN1, (t + 2) % 4) if t >= 2 else kread(AK0, AK1, t + 2)
        vr = vread(t)
        m = []; p = []; E = []; C = []
        for qb in range(2):
            cur = SS[par][qb]; nxt = SS[1 - par][qb]; pc = PP[par][qb]; pp = PP[1 - par][qb]
            m.append(qk(qb, nxt, v(NEG + 16 * qb, 16))); p.append(pv(qb, pp))
            E.append([f"v_exp_f32 v{cur+r}, v{cur+r}" for r in range(16)])
            C.append([f"v_cvt_pk_bf16_f32 v{pc+r}, v{cur+2*r}, v{cur+2*r+1}" for r in range(8)])
        E0, E1 = E; C0, C1 = C
        seq = ["s_waitcnt lgkmcnt(4)",
               m[0][0], E0[0], E0[1], E0[2], E0[3],
               m[1][0], E0[4], E0[5], C0[0], C0[1], E0[6],
               m[0][1], E0[7], C0[2], E0[8], E0[9], C0[3],
               m[1][1], kr[0], kr[1], E0[10], E0[11], E0[12], E0[13], "s_waitcnt lgkmcnt(2)",
               p[0][0], C0[4], C0[5], E0[14], E0[15], C0[6], C0[7],
               p[0][1], E1[0], E1[1],
               p[1][0], E1[2], E1[3], C1[0], C1[1], E1[4],
               p[1][1], E1[5], E1[6],
               p[0][2], E1[7], C1[2], E1[8], E1[9], C1[3],
               p[0][3], E1[10], E1[11],
               p[1][2], vr[0], vr[1], vr[2], vr[3], E1[12], E1[13], C1[4], C1[5], E1[14],
               p[1][3], E1[15], C1[6], C1[7]]
        for l in seq: e(l)
        if t == 3:
            e(f"v_sub_u32 v{T}, v{AN0}, v{AK0}\nv_add_u32 v{AV}, v{AV}, v{T}\nv_mov_b32 v{AK0}, v{AN0}\nv_mov_b32 v{AK1}, v{AN1}")
            e(f"s_add_u32 s47, s47, 1\ns_cmp_eq_u32 s47, {NSL}\ns_cselect_b32 s51, s49, s48\ns_cselect_b32 s47, 0, s47")
            e(f"v_add_u32 v{AN0}, s51, v{AN0}\nv_add_u32 v{AN1}, s51, v{AN1}")
    e(f"s_sub_u32 s44, s44, 1\ns_cmp_lg_u32 s44, 0\ns_cbranch_scc1 {L('floop')}")
    e("s_waitcnt lgkmcnt(0)")
    for qb in range(2):
        for l in pv(qb, PP[1][qb]): e(l)
    k.st(4)
    def merge(safe, M=None):
        e("s_barrier")
        e(f"s_cmp_eq_u32 s{KH}, 0\ns_cbranch_scc1 {L('keep0' + safe)}")
        for r in range(16): e(f"v_swap_b32 v{O+r}, v{O+16+r}")
        e(f"v_swap_b32 v{LS}, v{LS+4}")
        if M is not None: e(f"v_swap_b32 v{M}, v{M+1}")
        e(f"{L('keep0' + safe)}:")
        e(f"s_mul_i32 s52, s24, {5*1024+256}\nv_lshlrev_b32 v{T}, 4, v2\nv_add_u32 v{T}, s52, v{T}")
        for g in range(4): e(f"ds_write_b128 v{T}, {v(O+16+4*g,4)} offset:{g*1024}")
        e(f"v_lshlrev_b32 v{T+1}, 2, v2\nv_add_u32 v{T+1}, s52, v{T+1}")
        e(f"ds_write_b32 v{T+1}, v{LS+4} offset:4096")
        if M is not None: e(f"ds_write_b32 v{T+1}, v{M+1} offset:{4096+256}")
        e("s_waitcnt lgkmcnt(0)\ns_barrier")
        e(f"s_xor_b32 s52, s24, 4\ns_mul_i32 s52, s52, {5*1024+256}\nv_lshlrev_b32 v{T}, 4, v2\nv_add_u32 v{T}, s52, v{T}")
        for g in range(4): e(f"ds_read_b128 {v(O+16+4*g,4)}, v{T} offset:{g*1024}")
        e(f"v_lshlrev_b32 v{T+1}, 2, v2\nv_add_u32 v{T+1}, s52, v{T+1}")
        e(f"ds_read_b32 v{LS+4}, v{T+1} offset:4096")
        if M is not None: e(f"ds_read_b32 v{M+1}, v{T+1} offset:{4096+256}")
        e("s_waitcnt lgkmcnt(0)")
        if M is None:
            for r in range(16): e(f"v_add_f32 v{O+r}, v{O+r}, v{O+16+r}")
            e(f"v_add_f32 v{LS}, v{LS}, v{LS+4}")
        else:
            e(f"v_max_f32 v{T}, v{M}, v{M+1}\nv_sub_f32 v{T+1}, v{M}, v{T}\nv_sub_f32 v{T+2}, v{M+1}, v{T}\nv_exp_f32 v{T+1}, v{T+1}\nv_exp_f32 v{T+2}, v{T+2}")
            for r in range(16): e(f"v_mul_f32 v{O+r}, v{O+r}, v{T+1}\nv_fmac_f32 v{O+r}, v{O+16+r}, v{T+2}")
            e(f"v_mul_f32 v{LS}, v{LS}, v{T+1}\nv_fmac_f32 v{LS}, v{LS+4}, v{T+2}")
        e(f"v_rcp_f32 v{T}, v{LS}")
        for r in range(16): e(f"v_mul_f32 v{O+r}, v{O+r}, v{T}")
    merge("f")
    e(f"v_mov_b32 v{T+1}, {f32(2.0**120)}")
    e(f"v_cmp_nlt_f32 vcc, v{LS}, v{T+1}")
    e("s_mov_b64 s[46:47], vcc")
    e(f"v_add_f32 v{T+2}, abs(v{O}), abs(v{O+1})")
    for r in range(2, 16): e(f"v_add_f32 v{T+2}, v{T+2}, abs(v{O+r})")
    e(f"v_mov_b32 v{T+1}, 0x7f800000\nv_cmp_nlt_f32 vcc, v{T+2}, v{T+1}\ns_or_b64 s[46:47], s[46:47], vcc")
    e(f"s_cmp_eq_u64 s[46:47], 0\ns_cbranch_scc1 {L('okwave')}")
    e(f"v_mov_b32 v{T+1}, {FLAG}\nv_mov_b32 v{T+2}, 1\nds_write_b32 v{T+1}, v{T+2}")
    e(f"{L('okwave')}:")
    e("s_waitcnt lgkmcnt(0)\ns_barrier")
    e(f"v_mov_b32 v{T+1}, {FLAG}\nds_read_b32 v{T+2}, v{T+1}\ns_waitcnt lgkmcnt(0)\nv_readfirstlane_b32 s46, v{T+2}")
    e(f"s_cmp_lg_u32 s46, 0\ns_cbranch_scc1 {L('safe')}")
    e(f"{L('store')}:")
    if "statt" in OPT: k.st(12)
    P = PP[0][0]
    for r in range(8): e(f"v_cvt_pk_bf16_f32 v{P+r}, v{O+2*r}, v{O+2*r+1}")
    for b in (0, 4):
        e(f"v_permlane32_swap_b32 v{P+b}, v{P+b+2}\nv_permlane32_swap_b32 v{P+b+1}, v{P+b+3}")
    for r in range(4): e(f"v_permlane16_swap_b32 v{P+r}, v{P+4+r}")
    e(f"s_lshl_b32 s40, s{KH}, 5\ns_add_u32 s40, s40, s39")
    e(f"v_and_b32 v{T}, 15, v2\nv_add_u32 v{T}, s40, v{T}\nv_lshlrev_b32 v{T}, 11, v{T}")
    e(f"v_lshrrev_b32 v{T+1}, 4, v2\nv_and_b32 v{T+2}, 1, v{T+1}\nv_lshlrev_b32 v{T+2}, 5, v{T+2}\nv_lshrrev_b32 v{T+1}, 1, v{T+1}\nv_lshlrev_b32 v{T+1}, 4, v{T+1}")
    e(f"v_add_u32 v{T}, v{T}, v{T+1}\nv_add_u32 v{T}, v{T}, v{T+2}")
    e(f"s_lshl_b32 s40, s25, 6\ns_add_u32 s41, s40, {16*2048}")
    e(f"buffer_store_dwordx4 {v(P,4)}, v{T}, s[16:19], s40 offen{SCS}\nbuffer_store_dwordx4 {v(P+4,4)}, v{T}, s[16:19], s41 offen{SCS}")
    if "statt" in OPT: k.st(13)
    e(f"s_add_u32 s35, s26, {C_ATT}")
    k.signal("att", 8, 35, 32, (32, lambda: e(f"s_lshl_b32 s33, s26, 12\ns_lshl_b32 s34, s25, 2\ns_add_u32 s33, s33, s34\ns_add_u32 s33, s33, {FL['wo']}\nv_lshlrev_b32 v6, 7, v2\nv_add_u32 v6, s33, v6")))
    if "statt" in OPT: k.st(14, 7)
    e(f"s_cmp_ge_u32 s24, 4\ns_cbranch_scc1 {nxt_l}\ns_branch {nxt_c}")
    e(f"{L('safe')}:")
    e("s_waitcnt vmcnt(0)\ns_barrier")
    M = NEG; AL = NEG + 2
    SA = SS[0][0]; P0 = PP[0][0]
    zero_acc()
    e(f"v_mov_b32 v{M}, {f32(-3.0e38)}\nv_mov_b32 v{M+1}, {f32(-3.0e38)}")
    addr_setup()
    e("s_mov_b32 s42, 0")
    e(f"s_mov_b32 s44, {NST}")
    e(f"{L('sloop')}:")
    e("s_barrier")
    e("s_mov_b32 s53, 0")
    dma("s53")
    e("s_waitcnt vmcnt(0)\ns_barrier")
    for t in range(4):
        for l in kread(AK0, AK1, t) + vread(t): e(l)
        e("s_waitcnt lgkmcnt(0)")
        for qb in range(2):
            for l in qk(qb, SA, "0"): e(l)
            lane_max16(SA, T, T + 1)
            e(f"v_max_f32 v{T}, v{T}, v{M+qb}\nv_sub_f32 v{AL}, v{M+qb}, v{T}\nv_exp_f32 v{AL}, v{AL}\nv_mov_b32 v{M+qb}, v{T}")
            for r in range(16): e(f"v_sub_f32 v{SA+r}, v{SA+r}, v{T}\nv_exp_f32 v{SA+r}, v{SA+r}")
            for r in range(16): e(f"v_mul_f32 v{O+16*qb+r}, v{O+16*qb+r}, v{AL}")
            for r in range(4): e(f"v_mul_f32 v{LS+4*qb+r}, v{LS+4*qb+r}, v{AL}")
            for r in range(8): e(f"v_cvt_pk_bf16_f32 v{P0+r}, v{SA+2*r}, v{SA+2*r+1}")
            for l in pv(qb, P0): e(l)
    e(f"s_sub_u32 s44, s44, 1\ns_cmp_lg_u32 s44, 0\ns_cbranch_scc1 {L('sloop')}")
    merge("s", M)
    e("s_barrier")
    e(f"s_branch {L('store')}")


def h_phase(k):
    e = k.e; L = lambda n: k.lab("h_" + n)
    HL = 125952
    e("s_lshl_b32 s36, s2, 3\ns_lshl_b32 s37, s24, 1\ns_add_u32 s36, s36, s37")
    e("s_lshl_b32 s36, s36, 11\nv_lshlrev_b32 v3, 4, v2\nv_add_u32 v3, s36, v3")
    k.srd(12, P_X, 0, S * D * 2); k.srd(16, P_WS, WS_H, S * D * 2)
    k.srd(20, P_WS, WS_MODP, 4 * 6144 * 4); k.srd(56, P_WS, WS_MODF, 6144 * 4)
    e("v_lshlrev_b32 v5, 5, v0")
    for p in range(4):
        e(f"s_mov_b32 s37, {p*24576}")
        e(f"buffer_load_dwordx4 {v(64+8*p,4)}, v5, s[20:23], s37 offen\nbuffer_load_dwordx4 {v(68+8*p,4)}, v5, s[20:23], s37 offen offset:16")
    for r in range(2):
        for hf in range(2):
            e(f"buffer_load_dwordx4 {v(8+8*r+4*hf,4)}, v3, s[12:15], 0 offen offset:{r*2048+hf*1024}")
    e("s_lshl_b32 s38, s2, 10\nv_lshlrev_b32 v6, 2, v0\nv_add_u32 v4, s38, v6")
    for p in range(4):
        e(f"s_mov_b32 s37, {p*24576}\nbuffer_load_dword v{96+p}, v4, s[20:23], s37 offen")
    nt_ = k.code_touch("h", k.lab("qkv_c"), k.lab("wo_c"), 24, 4, 1)
    e(f"s_waitcnt vmcnt({8+nt_})")
    for j in range(8):
        e(f"v_add_f32 v{64+j}, v{64+j}, v{72+j}\nv_add_f32 v{80+j}, v{80+j}, v{88+j}\nv_add_f32 v{64+j}, v{64+j}, v{80+j}")
        round_bf16(e, 64 + j)
    e("v_cmp_le_u32 vcc, 128, v0")
    for j in range(8):
        e(f"v_add_f32 v72, 1.0, v{64+j}")
        round_bf16(e, 72)
        e(f"v_cndmask_b32 v{64+j}, v{64+j}, v72, vcc")
    e(f"v_add_u32 v5, {HL}, v5\nds_write_b128 v5, v[64:67]\nds_write_b128 v5, v[68:71] offset:16")
    e("s_waitcnt lgkmcnt(0)\ns_barrier")
    e(f"v_lshlrev_b32 v5, 5, v2\nv_add_u32 v5, {HL}, v5")
    for hf in range(2):
        for q in range(2):
            e(f"ds_read_b128 {v(32+8*hf+4*q,4)}, v5 offset:{hf*2048+q*16}")
            e(f"ds_read_b128 {v(48+8*hf+4*q,4)}, v5 offset:{4096+hf*2048+q*16}")
    e(f"s_waitcnt vmcnt({4+nt_})")
    X = 64
    for r in range(2):
        for j in range(8):
            src = 8 + 8 * r + j
            e(f"v_lshlrev_b32 v{X+16*r+2*j}, 16, v{src}\nv_and_b32 v{X+16*r+2*j+1}, 0xffff0000, v{src}")
    for r in range(2): e(f"v_add_f32 v{104+r}, v{X+16*r}, v{X+16*r+1}")
    for j in range(2, 16):
        for r in range(2): e(f"v_add_f32 v{104+r}, v{104+r}, v{X+16*r+j}")
    wave_sum(e, [104, 105], 106, [0, 1, 2, 3, 4, 5])
    for r in range(2): e(f"v_mul_f32 v{104+r}, {f32(1/1024)}, v{104+r}")
    for j in range(16):
        for r in range(2): e(f"v_sub_f32 v{X+16*r+j}, v{X+16*r+j}, v{104+r}")
    for r in range(2): e(f"v_mul_f32 v{107+r}, v{X+16*r}, v{X+16*r}")
    for j in range(1, 16):
        for r in range(2): e(f"v_fmac_f32 v{107+r}, v{X+16*r+j}, v{X+16*r+j}")
    wave_sum(e, [107, 108], 106, [0, 1, 2, 3, 4, 5])
    for r in range(2):
        e(f"v_mov_b32 v{109+r}, {f32(1e-5)}\nv_fmac_f32 v{109+r}, {f32(1/1024)}, v{107+r}\nv_rsq_f32 v{109+r}, v{109+r}")
    e("s_waitcnt lgkmcnt(0)")
    for r in range(2):
        for j in range(16):
            e(f"v_mul_f32 v{X+16*r+j}, v{X+16*r+j}, v{109+r}\nv_fma_f32 v{X+16*r+j}, v{X+16*r+j}, v{48+j}, v{32+j}")
        for j in range(8): e(f"v_cvt_pk_bf16_f32 v{112+8*r+j}, v{X+16*r+2*j}, v{X+16*r+2*j+1}")
        e(f"buffer_store_dwordx4 {v(112+8*r,4)}, v3, s[16:19], 0 offen offset:{r*2048}{SCS}")
        e(f"buffer_store_dwordx4 {v(116+8*r,4)}, v3, s[16:19], 0 offen offset:{r*2048+1024}{SCS}")
    e("s_waitcnt vmcnt(4)")
    e("v_add_f32 v96, v96, v97\nv_add_f32 v98, v98, v99\nv_add_f32 v96, v96, v98")
    round_bf16(e, 96)
    e(f"s_cmp_ge_u32 s2, 24\ns_cbranch_scc1 {L('nofin')}")
    e(f"buffer_store_dword v96, v4, s[56:59], 0 offen{SCS}")
    e(f"{L('nofin')}:")
    e(f"s_lshr_b32 s35, s2, 4\ns_add_u32 s35, s35, {C_H}")
    def offs():
        e(f"s_lshr_b32 s33, s2, 4\ns_lshl_b32 s33, s33, 11\ns_and_b32 s34, s2, 15\ns_lshl_b32 s34, s34, 2\ns_add_u32 s33, s33, s34\ns_add_u32 s33, s33, {FL['qkv']}")
        e("v_lshlrev_b32 v6, 7, v2\nv_add_u32 v6, s33, v6")
    k.signal("h", 4, 35, 16, (16, offs))

def k_main():
    k = PK("main_kernel", 256, 512, LDS_TOTAL + 16384, 256, 100); e = k.e
    L = k.lab
    e(f"s_cmp_ge_u32 s2, 256\ns_cbranch_scc1 {L('end')}")
    e(f"s_load_dwordx4 s[68:71], s[0:1], {KA_X}\ns_load_dwordx4 s[72:75], s[0:1], {KA_W1}\ns_load_dwordx2 s[76:77], s[0:1], {KA_WO}")
    e(f"s_load_dwordx2 s[78:79], s[0:1], {KA_OUT}\ns_load_dwordx2 s[66:67], s[0:1], {KA_WS}")
    e("v_lshrrev_b32 v1, 6, v0\nv_and_b32 v2, 63, v0\nv_readfirstlane_b32 s24, v1")
    e(f"s_cmp_lg_u32 s24, 0\ns_cbranch_scc1 {L('noinit')}")
    e(f"v_lshlrev_b32 v3, 2, v2\nv_add_u32 v3, {CTL}, v3\nv_mov_b32 v4, 0\nds_write_b32 v3, v4\ns_waitcnt lgkmcnt(0)")
    e(f"{L('noinit')}:")
    e("s_waitcnt lgkmcnt(0)")
    k.srd(CNT, P_WS, WS_CNT, CNT_BYTES)
    k.st(0)
    e(f"s_cmp_ge_u32 s24, 4\ns_cbranch_scc1 {L('qkv_l')}")
    hin = "hsep" not in OPT
    if hin: h_phase(k)
    gemm_phase(k, "qkv", 1024, 1024, 3072, 192, WS_H, S * D * 2, P_WQKV, D * 3 * D * 2, "qkv", 8, 4, 3, L("att_c"), L("att_l"), (C_H, 16, "rb") if hin else None, (1, 2), hbar=hin)
    pf = [(P_WO, D * D * 2), (P_W1, D * DFF * 2), (P_W2, D * DFF * 2)] if "nopf" not in OPT else []
    attn_phase(k, L("wo_c"), L("wo_l"), pf)
    gemm_phase(k, "wo", 1024, 1024, 1024, 64, WS_O, S * D * 2, P_WO, D * D * 2, "wo", 4, 8, 4, L("f1_c"), L("f1_l"), (C_ATT, 32, "rb2"), (5, 6))
    gemm_phase(k, "f1", 1024, 1024, DFF, 224, WS_XG, S * D * 2, P_W1, D * DFF * 2, "ffn1", 8, 4, 3, L("f2_c"), L("f2_l"), (C_WO, 16, "rb"), (7, 8))
    if "nos2" in OPT:
        gemm_phase(k, "f2", DFF, DFF, 1024, 64, WS_F1, S * DFF * 2, P_W2, DFF * D * 2, "ffn2", 4, 8, 4, L("fin"), L("end"), (C_F1, 16, "rb"), (9, 10))
    else:
        gemm_phase(k, "f2", DFF, DFF, 1024, 128, WS_F1, S * DFF * 2, P_W2, DFF * D * 2, "ffn2s", 4, 8, 4, L("fin"), L("end"), (C_F1, 8, "rb"), (9, 10))
    e(f"{L('fin')}:")
    if DIAG:
        e("s_waitcnt vmcnt(0)")
        k.st(11)
        e(f"s_cmp_lg_u32 s24, 0\ns_cbranch_scc1 {L('end')}")
        k.srd(12, P_WS, WS_STAMP + 8 * 512 * 16, 256 * 64)
        e(f"v_lshlrev_b32 v3, 2, v2\nv_add_u32 v4, {L_STAMP}, v3\nds_read_b32 v5, v4\ns_lshl_b32 s32, s2, 6\nv_add_u32 v3, s32, v3\ns_waitcnt lgkmcnt(0)")
        e("s_mov_b64 exec, 0xffff\nbuffer_store_dword v5, v3, s[12:15], 0 offen")
    k.finish()
    return k

def k_mod2():
    k = gen.k_mod()
    lines = k.a.lines
    i = next(n for n, l in enumerate(lines) if "buffer_load_ushort" in l)
    ins = Asm()
    ins.e(f"s_cmp_ge_u32 s2, {-(-CNT_BYTES // 4096)}\ns_cbranch_scc1 mod_kernel_nozero")
    ins.e(f"s_add_u32 s44, s8, {WS_CNT:#x}\ns_addc_u32 s45, s9, 0\ns_mov_b32 s46, {CNT_BYTES}\ns_mov_b32 s47, 0x20000")
    ins.e("s_lshl_b32 s48, s2, 12\nv_lshlrev_b32 v58, 4, v0\nv_mov_b32 v60, 0\nv_mov_b32 v61, 0\nv_mov_b32 v62, 0\nv_mov_b32 v63, 0\nbuffer_store_dwordx4 v[60:63], v58, s[44:47], s48 offen")
    ins.e("mod_kernel_nozero:")
    k.a.lines = lines[:i] + ins.lines + lines[i:]
    return k

def build():
    if "hsep" in OPT: return [k_mod2(), gen.k_h(True), k_main()]
    return [k_mod2(), k_main()]

if __name__ == "__main__":
    for a_ in list(sys.argv):
        if a_.startswith("--opt="): OPT = set(a_[6:].split(",")); sys.argv.remove(a_)
        if a_.startswith("--pfstage="): PFSTAGE = int(a_[10:]); sys.argv.remove(a_)
        if a_.startswith("--scs="): SCS = " " + a_[6:].replace("+", " "); sys.argv.remove(a_)
        if a_.startswith("--l2d="): L2D = int(a_[6:]); sys.argv.remove(a_)
        if a_.startswith("--sleep="): SLEEP = int(a_[8:]); sys.argv.remove(a_)
    if "--diag" in sys.argv: DIAG = True; gen.DIAG = True; sys.argv.remove("--diag")
    txt = emit(build(), header())
    out = sys.argv[1]
    open(out, "w").write(txt)
    print("wrote", out, len(txt), "bytes")
```

```python
import sys
from asmlib import *

NAME = "adaLN_cond__mha_block__dense_activation_relu__prompt"
S, D, DFF, H = 2048, 1024, 3584, 32
KA_X, KA_WQKV, KA_WO, KA_BX, KA_W1, KA_W2, KA_C, KA_WMOD, KA_OUT, KA_DBG, KA_WS = [8 * i for i in range(11)]
WS_MODP = 0x0
WS_MODF = 0x20000
WS_H    = 0x100000
WS_QKV  = 0x500000
WS_O    = 0x1100000
WS_X1   = 0x1500000
WS_F1   = 0x1900000
WS_XG   = 0x2800000
WS_STAT = 0x2c00000
WS_UB   = 0x2d00000
WS_STAMP = 0x3000000
DIAG = False
PF = ()
STFLAG = ''

LOG2E = 1.4426950408889634
import struct
def f32(x): return "0x%08x" % struct.unpack("<I", struct.pack("<f", x))[0]

class Kern:
    def __init__(self, name, grid, block, lds, nv, ns=96):
        self.name = name; self.grid = grid; self.block = block; self.lds = lds; self.nv = nv; self.ns = ns
        self.a = Asm(); self.e = self.a.e
        self.e(".p2align 8\n" + name + ":")
    def lab(self, n): return f"{self.name}_{n}"
    def exit_extra(self):
        self.e(f"s_cmp_ge_u32 s2, {self.grid}\ns_cbranch_scc1 {self.lab('end')}")
        self.stamp(0)
    def stamp(self, i):
        if DIAG == "clk":
            if i == 1: self.e("s_memtime s[82:83]\ns_memrealtime s[80:81]")
            if i == 2: self.e("s_memtime s[84:85]\ns_memrealtime s[86:87]")
        elif DIAG: self.e(f"s_memrealtime s[{80+2*i}:{81+2*i}]")
    def stamp_flush(self, idx, vtmp):
        if not DIAG: return
        e = self.e
        e("s_waitcnt vmcnt(0)")
        self.stamp(3)
        e(f"s_load_dwordx2 s[90:91], s[0:1], {KA_WS}")
        e("s_waitcnt lgkmcnt(0)")
        e(f"s_add_u32 s90, s90, {WS_STAMP + idx * 512 * 16:#x}\ns_addc_u32 s91, s91, 0")
        e(f"s_mov_b32 s92, s90\ns_mov_b32 s93, s91\ns_mov_b32 s94, {512*16}\ns_mov_b32 s95, 0x20000")
        if DIAG == "hw":
            e("s_getreg_b32 s82, hwreg(HW_REG_HW_ID)\ns_getreg_b32 s84, hwreg(HW_REG_XCC_ID)")
        for i in range(4): e(f"v_mov_b32 v{vtmp+i}, s{80+2*i}")
        e(f"s_lshl_b32 s90, s2, 4\nv_mov_b32 v{vtmp+4}, s90")
        e(f"v_cmp_eq_u32 vcc, 0, v0\ns_and_saveexec_b64 s[90:91], vcc\ns_cbranch_execz {self.lab('nostamp')}")
        e(f"buffer_store_dwordx4 {v(vtmp,4)}, v{vtmp+4}, s[92:95], 0 offen")
        e(f"{self.lab('nostamp')}:")
    def finish(self):
        self.e(f"{self.lab('end')}:\ns_endpgm")
    def ptr(self, sreg, karg):
        self.e(f"s_load_dwordx2 {s(sreg,2)}, s[0:1], {karg}")
    def srd(self, sd, sbase, off, nbytes):
        e = self.e
        if off:
            e(f"s_add_u32 s{sd}, s{sbase}, {off:#x}\ns_addc_u32 s{sd+1}, s{sbase+1}, 0")
        else:
            e(f"s_mov_b32 s{sd}, s{sbase}\ns_mov_b32 s{sd+1}, s{sbase+1}")
        e(f"s_mov_b32 s{sd+2}, {nbytes:#x}\ns_mov_b32 s{sd+3}, 0x20000")
    def desc(self):
        nv = (self.nv + 7) // 8 * 8
        return f""".amdhsa_kernel {self.name}
  .amdhsa_next_free_vgpr {nv}
  .amdhsa_next_free_sgpr {self.ns}
  .amdhsa_accum_offset {nv}
  .amdhsa_group_segment_fixed_size 0
  .amdhsa_kernarg_size 88
  .amdhsa_user_sgpr_count 2
  .amdhsa_user_sgpr_kernarg_segment_ptr 1
  .amdhsa_system_sgpr_workgroup_id_x 1
.end_amdhsa_kernel"""

def prefetch(k, karg, nbytes, widx, nwaves, sp, srd, vlane, vt, vd, off=0):
    e = k.e
    per = -(-nbytes // (nwaves * 8192))
    e(f"s_load_dwordx2 {s(sp,2)}, s[0:1], {karg}")
    e(f"s_mul_i32 s{srd+2}, s{widx}, {per*8192}")
    e(f"v_lshlrev_b32 v{vt}, 7, v{vlane}\nv_add_u32 v{vt}, s{srd+2}, v{vt}")
    e("s_waitcnt lgkmcnt(0)")
    k.srd(srd, sp, off, nbytes)
    for i in range(per):
        if i: e(f"v_add_u32 v{vt}, 8192, v{vt}")
        e(f"buffer_load_dword v{vd}, v{vt}, {s(srd,4)}, 0 offen")

def wave_sum(e, vals, tmp, bits):
    for b in bits:
        for r in vals:
            if b < 4:
                e(f"v_add_f32_dpp v{r}, v{r}, v{r} row_ror:{1<<b} row_mask:0xf bank_mask:0xf")
            else:
                e(f"v_mov_b32 v{tmp}, v{r}")
                e(f"v_permlane{16 if b == 4 else 32}_swap_b32 v{tmp}, v{r}")
                e(f"v_add_f32 v{r}, v{r}, v{tmp}")

def round_bf16(e, r):
    e(f"v_cvt_pk_bf16_f32 v{r}, v{r}, v{r}\nv_lshlrev_b32 v{r}, 16, v{r}")

def k_mod():
    k = Kern("mod_kernel", 384, 256, 1024, 64); e = k.e
    k.exit_extra()
    e("s_load_dwordx4 s[4:7], s[0:1], %d" % KA_C)
    k.ptr(8, KA_WS)
    e("s_and_b32 s24, s2, 3\ns_lshr_b32 s25, s2, 2")
    e("v_lshrrev_b32 v1, 3, v0\nv_and_b32 v2, 7, v0")
    e("s_lshl_b32 s26, s24, 8\nv_add_u32 v3, s26, v1")
    e("v_lshlrev_b32 v4, 1, v3")
    e("v_mul_u32_u24 v5, 12288, v3\nv_lshlrev_b32 v6, 4, v2\nv_add_u32 v5, v5, v6")
    e("s_lshl_b32 s27, s25, 7\nv_add_u32 v5, s27, v5")
    e("s_waitcnt lgkmcnt(0)")
    k.srd(12, 4, 0, 2048); k.srd(16, 6, 0, 1024 * 6144 * 2); k.srd(20, 8, WS_MODP, 4 * 6144 * 4)
    for i in range(8): e(f"buffer_load_ushort v{8+i}, v4, s[12:15], 0 offen offset:{i*64}")
    for i in range(8):
        e(f"s_mov_b32 s{32+i}, {i*32*12288}")
    for i in range(8):
        e(f"buffer_load_dwordx4 {v(16+4*i,4)}, v5, s[16:19], s{32+i} offen")
    npf = 0
    if "pf0" in PF:
        e("v_lshrrev_b32 v60, 6, v0\nv_and_b32 v61, 63, v0\nv_readfirstlane_b32 s40, v60\ns_lshl_b32 s41, s2, 2\ns_add_u32 s40, s40, s41")
        prefetch(k, KA_X, S * D * 2, 40, 1536, 42, 44, 61, 62, 63); prefetch(k, KA_WQKV, D * 3 * D * 2, 40, 1536, 42, 48, 61, 62, 63)
        npf = 2
    for j in range(8): e(f"v_mov_b32 v{48+j}, 0")
    e(f"s_waitcnt vmcnt({8+npf})")
    k.stamp(1)
    for i in range(8):
        x = 8 + i
        e(f"v_lshlrev_b32 v{x}, 16, v{x}")
        e(f"v_mul_f32 v56, {f32(-LOG2E)}, v{x}\nv_exp_f32 v56, v56\nv_add_f32 v56, 1.0, v56\nv_rcp_f32 v56, v56\nv_mul_f32 v{x}, v{x}, v56")
        round_bf16(e, x)
    for i in range(8):
        e(f"s_waitcnt vmcnt({7-i+npf})")
        for j in range(4):
            w = 16 + 4 * i + j
            e(f"v_lshlrev_b32 v56, 16, v{w}\nv_and_b32 v57, 0xffff0000, v{w}")
            e(f"v_fmac_f32 v{48+2*j}, v{8+i}, v56\nv_fmac_f32 v{49+2*j}, v{8+i}, v57")
    k.stamp(2)
    wave_sum(e, list(range(48, 56)), 56, [3, 4, 5])
    e("v_lshrrev_b32 v9, 6, v0\nv_lshlrev_b32 v9, 8, v9\nv_lshlrev_b32 v10, 5, v2\nv_add_u32 v9, v9, v10")
    e("v_and_b32 v10, 63, v0\nv_cmp_gt_u32 vcc, 8, v10\ns_and_saveexec_b64 s[28:29], vcc")
    e("ds_write_b128 v9, v[48:51]\nds_write_b128 v9, v[52:55] offset:16")
    e("s_mov_b64 exec, s[28:29]")
    e("s_waitcnt lgkmcnt(0)\ns_barrier")
    e("v_cmp_gt_u32 vcc, 64, v0\ns_and_saveexec_b64 s[28:29], vcc")
    e(f"s_cbranch_execz {k.lab('end')}")
    e("v_lshlrev_b32 v9, 2, v0")
    for w in range(4): e(f"ds_read_b32 v{12+w}, v9 offset:{w*256}")
    e("s_waitcnt lgkmcnt(0)")
    e("v_add_f32 v12, v12, v13\nv_add_f32 v14, v14, v15\nv_add_f32 v12, v12, v14")
    e("s_mul_i32 s26, s24, 24576\ns_lshl_b32 s27, s25, 8\ns_add_u32 s26, s26, s27")
    e("buffer_store_dword v12, v9, s[20:23], s26 offen")
    k.stamp_flush(0, 56)
    k.finish()
    return k

def k_h(first):
    k = Kern("h1_kernel" if first else "h2_kernel", 256, 256, 8192, 128); e = k.e
    k.exit_extra()
    k.ptr(8, KA_WS)
    if first: k.ptr(4, KA_X)
    e("v_and_b32 v1, 63, v0\nv_lshrrev_b32 v2, 6, v0")
    e("s_lshl_b32 s24, s2, 3")
    e("v_lshlrev_b32 v3, 1, v2\nv_add_u32 v3, s24, v3")
    e("v_lshlrev_b32 v3, 11, v3\nv_lshlrev_b32 v4, 4, v1\nv_add_u32 v3, v3, v4")
    e("s_waitcnt lgkmcnt(0)")
    if first: k.srd(12, 4, 0, S * D * 2)
    else: k.srd(12, 8, WS_X1, S * D * 2)
    k.srd(16, 8, WS_H, S * D * 2)
    for r in range(2):
        for hf in range(2):
            e(f"buffer_load_dwordx4 {v(8+8*r+4*hf,4)}, v3, s[12:15], 0 offen offset:{r*2048+hf*1024}")
    if first:
        k.srd(20, 8, WS_MODP, 4 * 6144 * 4)
        k.srd(28, 8, WS_MODF, 6144 * 4)
        e("v_lshlrev_b32 v5, 5, v0")
        for p in range(4):
            e(f"s_mov_b32 s26, {p*24576}")
            e(f"buffer_load_dwordx4 {v(64+8*p,4)}, v5, s[20:23], s26 offen")
            e(f"buffer_load_dwordx4 {v(68+8*p,4)}, v5, s[20:23], s26 offen offset:16")
        e("s_lshl_b32 s25, s2, 10\nv_lshlrev_b32 v6, 2, v0\nv_add_u32 v6, s25, v6")
        for p in range(4):
            e(f"s_mov_b32 s26, {p*24576}")
            e(f"buffer_load_dword v{96+p}, v6, s[20:23], s26 offen")
        e("s_waitcnt vmcnt(4)")
        for j in range(8):
            e(f"v_add_f32 v{64+j}, v{64+j}, v{72+j}\nv_add_f32 v{80+j}, v{80+j}, v{88+j}\nv_add_f32 v{64+j}, v{64+j}, v{80+j}")
            round_bf16(e, 64 + j)
        e("v_cmp_le_u32 vcc, 128, v0")
        for j in range(8):
            e(f"v_add_f32 v72, 1.0, v{64+j}")
            round_bf16(e, 72)
            e(f"v_cndmask_b32 v{64+j}, v{64+j}, v72, vcc")
        e("ds_write_b128 v5, v[64:67]\nds_write_b128 v5, v[68:71] offset:16")
        e("s_waitcnt vmcnt(0)")
        e("v_add_f32 v96, v96, v97\nv_add_f32 v98, v98, v99\nv_add_f32 v96, v96, v98")
        round_bf16(e, 96)
        e(f"s_cmp_ge_u32 s2, 24\ns_cbranch_scc1 {k.lab('nofin')}")
        e("buffer_store_dword v96, v6, s[28:31], 0 offen")
        e(f"{k.lab('nofin')}:")
        e("s_waitcnt lgkmcnt(0)\ns_barrier")
        e("v_lshlrev_b32 v5, 5, v1")
        for hf in range(2):
            for q in range(2):
                e(f"ds_read_b128 {v(32+8*hf+4*q,4)}, v5 offset:{hf*2048+q*16}")
                e(f"ds_read_b128 {v(48+8*hf+4*q,4)}, v5 offset:{4096+hf*2048+q*16}")
        e("s_waitcnt lgkmcnt(0)")
    else:
        k.srd(20, 8, WS_MODF, 6144 * 4)
        e("v_lshlrev_b32 v5, 5, v1")
        e(f"s_mov_b32 s26, {3072*4}\ns_mov_b32 s27, {4096*4}")
        for hf in range(2):
            for q in range(2):
                e(f"buffer_load_dwordx4 {v(32+8*hf+4*q,4)}, v5, s[20:23], s26 offen offset:{hf*2048+q*16}")
                e(f"buffer_load_dwordx4 {v(48+8*hf+4*q,4)}, v5, s[20:23], s27 offen offset:{hf*2048+q*16}")
        e("s_waitcnt vmcnt(0)")
        for j in range(16):
            e(f"v_add_f32 v{48+j}, 1.0, v{48+j}")
            round_bf16(e, 48 + j)
    k.stamp(1); k.stamp(2)
    for r in range(2):
        X = 64
        for j in range(8):
            src = 8 + 8 * r + j
            e(f"v_lshlrev_b32 v{X+2*j}, 16, v{src}\nv_and_b32 v{X+2*j+1}, 0xffff0000, v{src}")
        e(f"v_add_f32 v80, v{X}, v{X+1}")
        for j in range(2, 16): e(f"v_add_f32 v80, v80, v{X+j}")
        wave_sum(e, [80], 81, [0, 1, 2, 3, 4, 5])
        e(f"v_mul_f32 v80, {f32(1/1024)}, v80")
        for j in range(16): e(f"v_sub_f32 v{X+j}, v{X+j}, v80")
        e(f"v_mul_f32 v82, v{X}, v{X}")
        for j in range(1, 16): e(f"v_fmac_f32 v82, v{X+j}, v{X+j}")
        wave_sum(e, [82], 81, [0, 1, 2, 3, 4, 5])
        e(f"v_mov_b32 v83, {f32(1e-5)}\nv_fmac_f32 v83, {f32(1/1024)}, v82\nv_rsq_f32 v83, v83")
        for j in range(16):
            e(f"v_mul_f32 v{X+j}, v{X+j}, v83\nv_fma_f32 v{X+j}, v{X+j}, v{48+j}, v{32+j}")
        for j in range(8): e(f"v_cvt_pk_bf16_f32 v{84+j}, v{X+2*j}, v{X+2*j+1}")
        e(f"buffer_store_dwordx4 v[84:87], v3, s[16:19], 0 offen offset:{r*2048}")
        e(f"buffer_store_dwordx4 v[88:91], v3, s[16:19], 0 offen offset:{r*2048+1024}")
        e("s_nop 1")
    k.stamp_flush(1 if first else 5, 96)
    k.finish()
    return k

def interleave(mf, other, first=1.0):
    out = []
    oi = 0
    for i, m in enumerate(mf):
        out.append(m)
        if oi < len(other):
            out.append(other[oi]); oi += 1
    out += other[oi:]
    return out

def k_gemm(name, K, lda, ldb, BN, srcA, sizeA, srcB, sizeB, epi, xr, xc, NS, kidx=0, exp=(), pf=()):
    BM, BK = 128, 64
    nA = BM * BK * 2 // 1024; nB = BN * BK * 2 // 1024
    nAw, nBw = nA // 4, nB // 4
    nld = nAw + nBw
    SB = (nA + nB) * 1024
    nk = K // BK
    if "x8" in exp: nk *= 8
    TM, TN = 64, BN // 2
    mt, nt = TM // 16, TN // 16
    pitch = BN * 2; cpr = BN // 8
    hbits = {4: 2, 6: 1, 2: 1, 0: 3}[(pitch // 32) % 8]
    ACC = 8; NACC = 4 * mt * nt
    FA = ACC + NACC; NF = 4 * (mt + nt); FB = FA + NF
    AX = FB + NF; AW = AX + 2; EP = AW + nt
    nv = EP + {"qkv": 8, "relu": 8, "wo": 40, "ffn2": 40, "wo2": 104, "ffn1": 8}[epi]
    XL = SB * NS
    ldsx = {"ffn1": 128 * 8 + 224 * 8}.get(epi, 0)
    perm = epi == "qkv" and "perm" in exp
    assert nv <= 256, nv
    k = Kern(name, 256, 512, SB * NS + ldsx, nv); e = k.e
    L = k.lab
    k.exit_extra()
    def getptr(sreg, src):
        k.ptr(sreg, KA_WS if src[0] == "ws" else src[1])
    getptr(28, srcA); getptr(30, srcB); k.ptr(32, KA_WS)
    if epi in ("wo", "wo2"): k.ptr(34, KA_X)
    if epi == "ffn2": k.ptr(34, KA_OUT)
    e("v_lshrrev_b32 v1, 6, v0\nv_and_b32 v2, 63, v0")
    e("v_readfirstlane_b32 s24, v1")
    nxc = 16 // xc
    e(f"s_and_b32 s36, s2, 7\ns_lshr_b32 s37, s2, 3")
    e(f"s_and_b32 s38, s36, {nxc-1}\ns_lshr_b32 s39, s36, {nxc.bit_length()-1}")
    e(f"s_and_b32 s40, s37, {xc-1}\ns_lshr_b32 s41, s37, {xc.bit_length()-1}")
    e(f"s_mul_i32 s38, s38, {xc}\ns_add_u32 s26, s38, s40")
    e(f"s_mul_i32 s39, s39, {xr}\ns_add_u32 s25, s39, s41")
    e("s_waitcnt lgkmcnt(0)")
    k.srd(4, 28, srcA[1] if srcA[0] == "ws" else 0, sizeA)
    k.srd(8, 30, srcB[1] if srcB[0] == "ws" else 0, sizeB)
    e(f"s_cmp_ge_u32 s24, 4\ns_cbranch_scc1 {L('loader')}")
    e("s_lshr_b32 s42, s24, 1\ns_and_b32 s43, s24, 1")
    e("v_and_b32 v3, 15, v2\nv_lshrrev_b32 v4, 4, v2")
    tok0 = 44
    e(f"s_lshl_b32 s44, s25, 7\ns_lshl_b32 s45, s42, 6\ns_add_u32 s44, s44, s45")
    e(f"s_mul_i32 s46, s26, {BN}\ns_mul_i32 s45, s43, {TN}\ns_add_u32 s46, s46, s45")
    if epi == "qkv":
        k.srd(12, 32, WS_QKV, 96 * S * 64)
    elif epi in ("relu", "ffn1"):
        k.srd(12, 32, WS_F1, S * DFF * 2)
    elif epi in ("wo", "wo2"):
        k.srd(12, 32, WS_X1, S * D * 2); k.srd(16, 34, 0, S * D * 2); k.srd(20, 32, WS_MODF, 6144 * 4)
    elif epi == "ffn2":
        k.srd(12, 34, 0, S * D * 2); k.srd(16, 32, WS_X1, S * D * 2); k.srd(20, 32, WS_MODF, 6144 * 4)
    if epi in ("wo", "wo2", "ffn2"):
        e(f"v_add_u32 v5, s44, v3\nv_lshlrev_b32 v5, 11, v5\nv_lshlrev_b32 v6, 3, v4\nv_add_u32 v5, v5, v6")
        e(f"s_lshl_b32 s47, s46, 1\nv_add_u32 v5, s47, v5")
        for j in range(mt):
            e(f"s_mov_b32 s48, {j*16*2048}")
            for i in range(nt):
                e(f"buffer_load_dwordx2 {v(EP+2*(j*nt+i),2)}, v5, s[16:19], s48 offen offset:{i*32}")
        gate = (5 if epi == "ffn2" else 2) * 1024
        e(f"v_lshlrev_b32 v6, 4, v4\ns_lshl_b32 s47, s46, 2\ns_add_u32 s47, s47, {gate*4}")
        for i in range(nt):
            e(f"buffer_load_dwordx4 {v(EP+2*mt*nt+4*i,4)}, v6, s[20:23], s47 offen offset:{i*64}")
        if epi == "wo2":
            GG = EP + 2 * mt * nt + 4 * nt
            e(f"s_lshl_b32 s47, s46, 2\ns_add_u32 s47, s47, {4096*4}")
            for i in range(nt):
                e(f"buffer_load_dwordx4 {v(GG+4*i,4)}, v6, s[20:23], s47 offen offset:{i*64}")
            W1R = GG + 4 * nt
            k.ptr(36, KA_W1)
            e("s_lshl_b32 s57, s2, 2\ns_add_u32 s57, s57, s24")
            e(f"s_mul_hi_u32 s58, s57, {(2**32 + 55)//56}\ns_mul_i32 s59, s58, 56\ns_sub_u32 s59, s57, s59")
            e("v_lshrrev_b32 v5, 3, v2\nv_and_b32 v6, 7, v2")
            e(f"s_lshl_b32 s60, s58, 6\nv_add_u32 v5, s60, v5")
            e(f"v_mul_u32_u24 v7, {DFF*2}, v5\nv_lshlrev_b32 v6, 4, v6\nv_add_u32 v7, v7, v6\ns_lshl_b32 s60, s59, 7\nv_add_u32 v7, s60, v7")
            e("s_waitcnt lgkmcnt(0)")
            k.srd(60, 36, 0, D * DFF * 2)
            for i in range(8):
                e(f"s_mov_b32 s64, {i*8*DFF*2}")
                e(f"buffer_load_dwordx4 {v(W1R+4*i,4)}, v7, s[60:63], s64 offen")
            e("v_lshlrev_b32 v5, 2, v5")
            e(f"s_mov_b32 s64, {4096*4}\ns_mov_b32 s65, {3072*4}")
            for i in range(8):
                e(f"buffer_load_dword v{W1R+32+i}, v5, s[20:23], s64 offen offset:{i*32}")
                e(f"buffer_load_dword v{W1R+40+i}, v5, s[20:23], s65 offen offset:{i*32}")
    if pf:
        e("s_lshl_b32 s56, s2, 2\ns_add_u32 s56, s56, s24")
        for n_, (karg, nbytes) in enumerate(pf):
            prefetch(k, karg, nbytes, 56, 1024, 58, 60 + 4 * n_, 2, 6, 1)
    e(f"v_lshrrev_b32 v5, 1, v3\nv_xor_b32 v5, v5, v4\nv_and_b32 v5, 7, v5")
    e(f"v_lshlrev_b32 v5, 4, v5\ns_lshl_b32 s47, s42, 6\nv_add_u32 v6, s47, v3\nv_lshlrev_b32 v6, 7, v6")
    e(f"v_add_u32 v{AX}, v5, v6\nv_xor_b32 v{AX+1}, 64, v{AX}")
    e("v_lshrrev_b32 v5, 2, v3\nv_and_b32 v6, 3, v2")
    e("v_lshlrev_b32 v7, 3, v4\nv_add_u32 v7, v7, v5")
    e(f"v_mul_u32_u24 v7, {pitch}, v7\nv_lshlrev_b32 v6, 3, v6\nv_add_u32 v7, v7, v6\nv_add_u32 v7, {nA*1024}, v7")
    if hbits == 2:
        e("v_lshrrev_b32 v5, 1, v5\nv_and_b32 v6, 1, v4\nv_lshlrev_b32 v6, 1, v6\nv_or_b32 v5, v5, v6")
    elif hbits == 1:
        e("v_and_b32 v5, 1, v4")
    else:
        e("v_and_b32 v6, 1, v4\nv_lshlrev_b32 v6, 2, v6\nv_or_b32 v5, v5, v6")
    e(f"s_mul_i32 s47, s43, {nt}")
    for i in range(nt):
        e(f"s_add_u32 s48, s47, {i}\nv_xor_b32 v6, s48, v5\nv_lshlrev_b32 v6, 5, v6\nv_add_u32 v{AW+i}, v7, v6")
    for r in range(NACC): e(f"v_mov_b32 v{ACC+r}, 0")
    def reads(ss, F):
        if "noread" in exp: return []
        l = []
        xs = [f"ds_read_b128 {v(F+4*j,4)}, v{AX+ss} offset:{j*2048}" for j in range(mt)]
        ws = []
        for i in range(nt):
            for hh in range(2):
                ws.append(f"ds_read_b64_tr_b16 {v(F+4*mt+4*i+2*hh,2)}, v{AW+i} offset:{(ss*32+hh*4)*pitch}")
        return [xs[0]] + ws[:2] + xs[1:] + ws[2:]
    def mfmas(F):
        if "nomfma" in exp: return []
        return [f"v_mfma_f32_16x16x32_bf16 {v(ACC+4*(j*nt+i),4)}, {v(F+4*mt+4*i,4)}, {v(F+4*j,4)}, {v(ACC+4*(j*nt+i),4)}"
                for j in range(mt) for i in range(nt)]
    e(f"s_mov_b32 s49, 0\ns_mov_b32 s54, {SB}\ns_mov_b32 s55, {-(NS-1)*SB & 0xffffffff:#x}")
    e("s_barrier")
    k.stamp(1)
    for l in reads(0, FA): e(l)
    e(f"s_mov_b32 s50, {nk-1}")
    def advance():
        e(f"s_add_u32 s49, s49, 1\ns_cmp_eq_u32 s49, {NS}\ns_cselect_b32 s51, s55, s54\ns_cselect_b32 s49, 0, s49")
        for r in [AX, AX + 1] + [AW + i for i in range(nt)]:
            e(f"v_add_u32 v{r}, s51, v{r}")
    e(f"{L('cloop')}:")
    e("s_waitcnt lgkmcnt(0)")
    for l in interleave(mfmas(FA), reads(1, FB)): e(l)
    advance()
    e("s_waitcnt lgkmcnt(0)\ns_barrier")
    for l in interleave(mfmas(FB), reads(0, FA)): e(l)
    e(f"s_sub_u32 s50, s50, 1\ns_cmp_lg_u32 s50, 0\ns_cbranch_scc1 {L('cloop')}")
    e("s_waitcnt lgkmcnt(0)")
    for l in interleave(mfmas(FA), reads(1, FB)): e(l)
    e("s_waitcnt lgkmcnt(0)")
    for l in mfmas(FB): e(l)
    k.stamp(2)
    T = FA
    def acc(i, j): return ACC + 4 * (j * nt + i)
    def pack_pair(ta, tb, dst, pre=None):
        e(f"v_cvt_pk_bf16_f32 v{dst}, v{ta}, v{ta+1}\nv_cvt_pk_bf16_f32 v{dst+1}, v{ta+2}, v{ta+3}")
        e(f"v_cvt_pk_bf16_f32 v{dst+2}, v{tb}, v{tb+1}\nv_cvt_pk_bf16_f32 v{dst+3}, v{tb+2}, v{tb+3}")
        e(f"v_permlane16_swap_b32 v{dst}, v{dst+2}\nv_permlane16_swap_b32 v{dst+1}, v{dst+3}")
    e("v_and_b32 v5, 1, v4\nv_lshlrev_b32 v5, 5, v5\nv_lshrrev_b32 v6, 1, v4\nv_lshlrev_b32 v6, 4, v6\nv_add_u32 v5, v5, v6")
    if epi == "qkv":
        e("v_lshlrev_b32 v6, 6, v3\nv_add_u32 v5, v5, v6")
        for p in range(nt // 2):
            if perm:
                e(f"s_mul_i32 s52, s43, 96\ns_add_u32 s52, s52, {32*p}\ns_cmp_lt_u32 s52, 64\ns_cselect_b32 s53, {f32(LOG2E * 32 ** -0.5)}, 1.0")
                e("s_lshr_b32 s54, s52, 6\ns_lshl_b32 s54, s54, 5\ns_bfe_u32 s52, s52, 0x10005\ns_add_u32 s52, s52, s54\ns_lshl_b32 s54, s26, 1\ns_add_u32 s52, s52, s54")
                e("s_lshl_b32 s52, s52, 17\ns_lshl_b32 s54, s44, 6\ns_add_u32 s52, s52, s54")
            else:
                e(f"s_add_u32 s52, s46, {32*p}\ns_cmp_lt_u32 s52, 1024\ns_cselect_b32 s53, {f32(LOG2E * 32 ** -0.5)}, 1.0")
                e(f"s_lshl_b32 s52, s52, 12\ns_lshl_b32 s54, s44, 6\ns_add_u32 s52, s52, s54")
            for j in range(mt):
                ta, tb = acc(2 * p, j), acc(2 * p + 1, j)
                for r in range(4):
                    e(f"v_mul_f32 v{ta+r}, s53, v{ta+r}\nv_mul_f32 v{tb+r}, s53, v{tb+r}")
                d = T + 4 * ((p * mt + j) % 8)
                pack_pair(ta, tb, d)
                e(f"buffer_store_dwordx4 {v(d,4)}, v5, s[12:15], s52 offen offset:{j*1024}{STFLAG}")
    elif epi in ("relu", "ffn1"):
        if epi == "ffn1":
            e("s_barrier")
            ST = FA; UB = FA + 8
            e(f"s_lshl_b32 s47, s42, 6\nv_add_u32 v6, s47, v3\nv_lshlrev_b32 v6, 3, v6\nv_add_u32 v6, {XL}, v6")
            for j in range(mt): e(f"ds_read_b64 {v(ST+2*j,2)}, v6 offset:{j*128}")
            e(f"s_mul_i32 s47, s43, {TN*8}\ns_add_u32 s47, s47, {XL+1024}\nv_lshlrev_b32 v7, 5, v4\nv_add_u32 v7, s47, v7")
            for i in range(nt):
                e(f"ds_read_b128 {v(UB+8*(i%2),4)}, v7 offset:{i*128}\nds_read_b128 {v(UB+8*(i%2)+4,4)}, v7 offset:{i*128+16}")
                e("s_waitcnt lgkmcnt(0)")
                u = UB + 8 * (i % 2)
                for j in range(mt):
                    for r in range(4):
                        a_ = acc(i, j) + r
                        e(f"v_fma_f32 v{UB+16}, -v{ST+2*j}, v{u+2*r}, v{u+2*r+1}\nv_fma_f32 v{a_}, v{a_}, v{ST+2*j+1}, v{UB+16}\nv_max_f32 v{a_}, 0, v{a_}")
            T = FA + 32
        else:
            for r in range(NACC): e(f"v_max_f32 v{ACC+r}, 0, v{ACC+r}")
        ld2 = DFF * 2
        e(f"v_add_u32 v6, s44, v3\nv_mul_u32_u24 v6, {ld2}, v6\ns_lshl_b32 s47, s46, 1\nv_add_u32 v6, s47, v6")
        e("v_add_u32 v5, v5, v6")
        n = 0
        for j in range(mt):
            e(f"s_mov_b32 s48, {j*16*ld2}")
            for p in range(nt // 2):
                d = T + 4 * (n % 8); n += 1
                pack_pair(acc(2 * p, j), acc(2 * p + 1, j), d)
                e(f"buffer_store_dwordx4 {v(d,4)}, v5, s[12:15], s48 offen offset:{p*64}{STFLAG}")
        if nt % 2:
            e(f"v_and_b32 v7, 1, v4\nv_mul_u32_u24 v7, {16*ld2}, v7\nv_add_u32 v6, v6, v7")
            e(f"v_lshrrev_b32 v7, 1, v4\nv_lshlrev_b32 v7, 4, v7\nv_add_u32 v6, v6, v7")
            for j in range(0, mt, 2):
                d = T + 4 * (n % 8); n += 1
                pack_pair(acc(nt - 1, j), acc(nt - 1, j + 1), d)
                e(f"s_mov_b32 s48, {j*16*ld2}")
                e(f"buffer_store_dwordx4 {v(d,4)}, v6, s[12:15], s48 offen offset:{(nt-1)*32}{STFLAG}")
    else:
        e("s_waitcnt vmcnt(0)")
        G = EP + 2 * mt * nt
        for j in range(mt):
            for i in range(nt):
                a0 = acc(i, j); x0 = EP + 2 * (j * nt + i)
                for q in range(2):
                    e(f"v_lshlrev_b32 v6, 16, v{x0+q}\nv_and_b32 v7, 0xffff0000, v{x0+q}")
                    e(f"v_fma_f32 v{a0+2*q}, v{a0+2*q}, v{G+4*i+2*q}, v6\nv_fma_f32 v{a0+2*q+1}, v{a0+2*q+1}, v{G+4*i+2*q+1}, v7")
        e(f"v_add_u32 v6, s44, v3\nv_lshlrev_b32 v6, 11, v6\ns_lshl_b32 s47, s46, 1\nv_add_u32 v6, s47, v6\nv_add_u32 v5, v5, v6")
        n = 0
        if epi == "wo2":
            GG = G + 4 * nt
            k.srd(16, 32, WS_XG, S * D * 2); k.srd(64, 32, WS_STAT, 32 * S * 8)
            for r in range(4 * nt):
                e(f"v_add_f32 v{GG+r}, 1.0, v{GG+r}"); round_bf16(e, GG + r)
            e(f"s_lshl_b32 s49, s26, 1\ns_add_u32 s49, s49, s43\ns_lshl_b32 s49, s49, 14\ns_lshl_b32 s50, s44, 3\ns_add_u32 s49, s49, s50")
            e("v_lshlrev_b32 v1, 3, v3")
        for j in range(mt):
            e(f"s_mov_b32 s48, {j*16*2048}")
            for p in range(nt // 2):
                d = T + 4 * (n % 8); n += 1
                if epi != "wo2":
                    pack_pair(acc(2 * p, j), acc(2 * p + 1, j), d)
                    e(f"buffer_store_dwordx4 {v(d,4)}, v5, s[12:15], s48 offen offset:{p*64}{STFLAG}")
                    continue
                ta, tb = acc(2 * p, j), acc(2 * p + 1, j)
                d2 = T + 32 + 4 * (j % 2); SM = T + 40 + 2 * (j % 2)
                e(f"v_cvt_pk_bf16_f32 v{d}, v{ta}, v{ta+1}\nv_cvt_pk_bf16_f32 v{d+1}, v{ta+2}, v{ta+3}")
                e(f"v_cvt_pk_bf16_f32 v{d+2}, v{tb}, v{tb+1}\nv_cvt_pk_bf16_f32 v{d+3}, v{tb+2}, v{tb+3}")
                for q, base in enumerate((ta, ta + 2, tb, tb + 2)):
                    e(f"v_lshlrev_b32 v{base}, 16, v{d+q}\nv_and_b32 v{base+1}, 0xffff0000, v{d+q}")
                vals = [ta + r for r in range(4)] + [tb + r for r in range(4)]
                e(f"v_add_f32 v{SM}, v{vals[0]}, v{vals[1]}\nv_mul_f32 v{SM+1}, v{vals[0]}, v{vals[0]}")
                for x_ in vals[2:]: e(f"v_add_f32 v{SM}, v{SM}, v{x_}")
                for x_ in vals[1:]: e(f"v_fmac_f32 v{SM+1}, v{x_}, v{x_}")
                for r in range(4):
                    e(f"v_mul_f32 v{ta+r}, v{ta+r}, v{GG+8*p+r}\nv_mul_f32 v{tb+r}, v{tb+r}, v{GG+8*p+4+r}")
                e(f"v_cvt_pk_bf16_f32 v{d2}, v{ta}, v{ta+1}\nv_cvt_pk_bf16_f32 v{d2+1}, v{ta+2}, v{ta+3}")
                e(f"v_cvt_pk_bf16_f32 v{d2+2}, v{tb}, v{tb+1}\nv_cvt_pk_bf16_f32 v{d2+3}, v{tb+2}, v{tb+3}")
                e(f"v_permlane16_swap_b32 v{d}, v{d+2}\nv_permlane16_swap_b32 v{d+1}, v{d+3}")
                e(f"v_permlane16_swap_b32 v{d2}, v{d2+2}\nv_permlane16_swap_b32 v{d2+1}, v{d2+3}")
                e(f"buffer_store_dwordx4 {v(d,4)}, v5, s[12:15], s48 offen offset:{p*64}{STFLAG}")
                e(f"buffer_store_dwordx4 {v(d2,4)}, v5, s[16:19], s48 offen offset:{p*64}{STFLAG}")
                wave_sum(e, [SM, SM + 1], 6, [4, 5])
                e(f"s_mov_b64 exec, 0xffff\nbuffer_store_dwordx2 {v(SM,2)}, v1, s[64:67], s49 offen offset:{j*128}{STFLAG}\ns_mov_b64 exec, -1")
        if epi == "wo2":
            W1R = GG + 4 * nt
            e(f"s_cmp_ge_u32 s57, 896\ns_cbranch_scc1 {L('noub')}")
            UA = ACC
            for r in range(16): e(f"v_mov_b32 v{UA+r}, 0")
            for i in range(8):
                g_ = W1R + 32 + i; s_ = W1R + 40 + i
                e(f"v_add_f32 v{g_}, 1.0, v{g_}"); round_bf16(e, g_)
                for q in range(4):
                    w_ = W1R + 4 * i + q
                    e(f"v_lshlrev_b32 v6, 16, v{w_}\nv_and_b32 v7, 0xffff0000, v{w_}")
                    e(f"v_fmac_f32 v{UA+2*q}, v{g_}, v6\nv_fmac_f32 v{UA+2*q+1}, v{g_}, v7\nv_fmac_f32 v{UA+8+2*q}, v{s_}, v6\nv_fmac_f32 v{UA+8+2*q+1}, v{s_}, v7")
            wave_sum(e, list(range(UA, UA + 16)), 6, [3, 4, 5])
            k.srd(16, 32, WS_UB, 16 * 2 * DFF * 4)
            e(f"s_mul_i32 s49, s58, {2*DFF*4}\ns_lshl_b32 s50, s59, 8\ns_add_u32 s49, s49, s50\ns_add_u32 s50, s49, {DFF*4}")
            e("v_lshlrev_b32 v6, 5, v2\ns_mov_b64 exec, 0xff")
            e(f"buffer_store_dwordx4 {v(UA,4)}, v6, s[16:19], s49 offen{STFLAG}\nbuffer_store_dwordx4 {v(UA+4,4)}, v6, s[16:19], s49 offen offset:16{STFLAG}")
            e(f"buffer_store_dwordx4 {v(UA+8,4)}, v6, s[16:19], s50 offen{STFLAG}\nbuffer_store_dwordx4 {v(UA+12,4)}, v6, s[16:19], s50 offen offset:16{STFLAG}")
            e("s_mov_b64 exec, -1")
            e(f"{L('noub')}:")
    k.stamp_flush(kidx, FA)
    e("s_endpgm")
    e(f"{L('loader')}:")
    e("s_sub_u32 s42, s24, 4")
    LA = 8
    lda2, ldb2 = lda * 2, ldb * 2
    e(f"s_lshl_b32 s43, s25, 7\ns_mul_i32 s44, s42, {nAw*8}\ns_add_u32 s43, s43, s44")
    e(f"v_lshrrev_b32 v3, 3, v2\nv_add_u32 v3, s43, v3\ns_mov_b32 s45, {lda2}\nv_mul_lo_u32 v3, s45, v3")
    e("v_and_b32 v4, 7, v2\nv_lshrrev_b32 v5, 4, v2")
    for i in range(nAw):
        e(f"v_xor_b32 v6, {(i&1)*4}, v5\nv_xor_b32 v6, v6, v4\nv_lshlrev_b32 v6, 4, v6\nv_add_u32 v6, v6, v3")
        e(f"v_add_u32 v{LA+i}, {i*8*lda2}, v6")
    assert nAw % 2 == 0
    magic = (65536 + cpr - 1) // cpr
    assert all((p * magic) >> 16 == p // cpr for p in range(nBw * 64))
    e(f"s_mul_i32 s43, s42, {16*ldb2}\ns_mul_i32 s44, s26, {128 if perm else BN*2}\ns_add_u32 s43, s43, s44")
    assert nBw * 64 == 16 * cpr
    for i in range(nBw):
        e(f"v_add_u32 v3, {i*64}, v2\nv_mul_u32_u24 v4, {magic}, v3\nv_lshrrev_b32 v4, 16, v4")
        e(f"v_mul_u32_u24 v5, {cpr}, v4\nv_sub_u32 v3, v3, v5")
        if hbits == 2:
            e("v_and_b32 v5, 2, v4\nv_lshrrev_b32 v6, 1, v4\nv_and_b32 v6, 4, v6\nv_or_b32 v5, v5, v6")
        elif hbits == 1:
            e("v_lshrrev_b32 v5, 2, v4\nv_and_b32 v5, 2, v5")
        else:
            e("v_and_b32 v5, 3, v4\nv_lshrrev_b32 v6, 1, v4\nv_and_b32 v6, 4, v6\nv_or_b32 v5, v5, v6\nv_lshlrev_b32 v5, 1, v5")
        e("v_xor_b32 v3, v3, v5")
        if perm:
            e("v_lshrrev_b32 v5, 3, v3\nv_and_b32 v3, 7, v3\nv_lshlrev_b32 v5, 7, v5\nv_add_u32 v3, v3, v5")
        e(f"v_lshlrev_b32 v3, 4, v3\ns_mov_b32 s45, {ldb2}\nv_mul_lo_u32 v4, s45, v4\nv_add_u32 v3, v3, v4")
        e(f"v_add_u32 v{LA+nAw+i}, s43, v3")
    e(f"s_mul_i32 s46, s42, {nAw*1024}")
    e(f"s_mul_i32 s47, s42, {nBw*1024}\ns_add_u32 s47, s47, {nA*1024}")
    e("s_mov_b32 s48, 0\ns_mov_b32 s49, 0\ns_mov_b32 s50, 0")
    def issue():
        e("s_add_u32 s51, s50, s46\ns_add_u32 s52, s50, s47")
        for i in range(nAw):
            if "nodma" in exp: break
            e(f"s_add_u32 m0, s51, {i*1024}")
            e(f"buffer_load_dwordx4 v{LA+i}, s[4:7], s48 offen lds")
        for i in range(nBw):
            if "nodma" in exp: break
            e(f"s_add_u32 m0, s52, {i*1024}")
            e(f"buffer_load_dwordx4 v{LA+nAw+i}, s[8:11], s49 offen lds")
        if "noadv" not in exp:
            e(f"s_add_u32 s48, s48, {BK*2}\ns_add_u32 s49, s49, {BK*ldb2}")
            if "x8" in exp:
                e(f"s_cmp_eq_u32 s48, {K*2}\ns_cselect_b32 s48, 0, s48\ns_cselect_b32 s49, 0, s49")
        e(f"s_add_u32 s50, s50, {SB}\ns_cmp_eq_u32 s50, {SB*NS}\ns_cselect_b32 s50, 0, s50")
    for st in range(NS - 1): issue()
    e(f"s_mov_b32 s53, {nk-(NS-1)}")
    e(f"{L('lloop')}:")
    e(f"s_waitcnt vmcnt({nld*(NS-2)})\ns_barrier")
    issue()
    e(f"s_sub_u32 s53, s53, 1\ns_cmp_lg_u32 s53, 0\ns_cbranch_scc1 {L('lloop')}")
    nx = 0
    if epi == "ffn1":
        nx = 32
        k.srd(56, 32, WS_STAT, 32 * S * 8); k.srd(60, 32, WS_UB, 16 * 2 * DFF * 4)
        e(f"s_cmp_ge_u32 s42, 2\ns_cbranch_scc1 {L('ubld')}")
        e(f"s_lshl_b32 s43, s42, 6\nv_add_u32 v3, s43, v2\ns_lshl_b32 s44, s25, 7\nv_add_u32 v4, s44, v3\nv_lshlrev_b32 v4, 3, v4")
        for sl in range(32):
            e(f"s_mov_b32 s45, {sl*S*8}\nbuffer_load_dwordx2 {v(32+2*sl,2)}, v4, s[56:59], s45 offen")
        e(f"s_branch {L('ldd')}")
        e(f"{L('ubld')}:")
        e(f"s_sub_u32 s43, s42, 2\ns_lshl_b32 s43, s43, 6\nv_add_u32 v3, s43, v2")
        e(f"s_mul_i32 s44, s26, {BN*4}\nv_lshlrev_b32 v4, 3, v3\nv_add_u32 v4, s44, v4")
        for kg in range(16):
            for w_ in range(2):
                e(f"s_mov_b32 s45, {(kg*2+w_)*DFF*4}\nbuffer_load_dwordx2 {v(32+4*kg+2*w_,2)}, v4, s[60:63], s45 offen")
        e(f"{L('ldd')}:")
    for t in range(NS - 1):
        e(f"s_waitcnt vmcnt({nld*(NS-2-t)+nx})\ns_barrier")
    if epi == "ffn1":
        e("s_waitcnt vmcnt(0)")
        e(f"s_cmp_ge_u32 s42, 2\ns_cbranch_scc1 {L('ubred')}")
        for sl in range(1, 32): e(f"v_add_f32 v32, v32, v{32+2*sl}\nv_add_f32 v33, v33, v{33+2*sl}")
        e(f"v_mul_f32 v32, {f32(1/1024)}, v32\nv_mul_f32 v33, {f32(1/1024)}, v33")
        e(f"v_fma_f32 v33, -v32, v32, v33\nv_max_f32 v33, 0, v33\nv_add_f32 v33, {f32(1e-5)}, v33\nv_rsq_f32 v33, v33")
        e("v_mul_f32 v32, v32, v33")
        e(f"v_lshlrev_b32 v4, 3, v3\nv_add_u32 v4, {XL}, v4\nds_write_b64 v4, v[32:33]")
        e(f"s_branch {L('redd')}")
        e(f"{L('ubred')}:")
        for kg in range(1, 16):
            for q in range(4): e(f"v_add_f32 v{32+q}, v{32+q}, v{32+4*kg+q}")
        e("v_swap_b32 v33, v34")
        e(f"v_lshlrev_b32 v4, 4, v3\nv_add_u32 v4, {XL+1024}, v4\nv_cmp_gt_u32 vcc, 112, v3\ns_and_saveexec_b64 s[44:45], vcc")
        e(f"ds_write_b128 v4, v[32:35]\ns_mov_b64 exec, s[44:45]")
        e(f"{L('redd')}:")
        e("s_waitcnt lgkmcnt(0)\ns_barrier")
    k.finish()
    return k

def attn_seq(m, p, E, C, kr, vr, exp):
    seq = ["s_waitcnt lgkmcnt(4)", m[0], E[0], E[1], E[2], E[3],
           m[1], kr[0], E[4], kr[1], E[5], C[0], C[1], E[6],
           "s_waitcnt lgkmcnt(2)", p[0], E[7], C[2], E[8], E[9], C[3],
           p[1], E[10], E[11],
           p[2], vr[0], C[4], vr[1], C[5], E[12], vr[2], E[13], vr[3], E[14],
           p[3], E[15], C[6], C[7]]
    if "seqB" in exp:
        seq = ["s_waitcnt lgkmcnt(4)", m[0], E[0], E[1], E[2], E[3],
           m[1], kr[0], kr[1], E[4], E[5], C[0], C[1], E[6],
           "s_waitcnt lgkmcnt(2)", p[0], E[7], C[2], E[8], E[9], C[3],
           p[1], E[10], E[11],
           p[2], vr[0], vr[1], vr[2], vr[3], C[4], C[5], E[12], E[13], E[14],
           p[3], E[15], C[6], C[7]]
    if "seqC" in exp:
        seq = ["s_waitcnt lgkmcnt(4)", m[0], E[0], E[1], E[2],
           m[1], kr[0], kr[1], E[3], E[4], E[5],
           "s_waitcnt lgkmcnt(2)", p[0], C[0], C[1], E[6], E[7], C[2],
           p[1], E[8], E[9], C[3],
           p[2], vr[0], vr[1], vr[2], vr[3], E[10], E[11], E[12], C[4],
           p[3], E[13], C[5], E[14], E[15], C[6], C[7]]
    if "noread" in exp: seq = [x for x in seq if not x.startswith("ds_read")]
    if "nowait" in exp: seq = [x for x in seq if not x.startswith("s_waitcnt")]
    if "nosum" in exp: seq = [x for x in seq if "16x16x32" not in x]
    if "noexp" in exp: seq = [x for x in seq if not x.startswith("v_exp")]
    return seq

def k_attn(name='attn_kernel', exp=()):
    NSL = 4; KPS = 128; SBK = KPS * 64
    SB = 2 * SBK
    FLAG = NSL * SB
    k = Kern(name, 256, 512, NSL * SB + 64, 128); e = k.e
    L = k.lab
    k.exit_extra()
    k.ptr(28, KA_WS)
    e("v_lshrrev_b32 v1, 6, v0\nv_and_b32 v2, 63, v0\nv_readfirstlane_b32 s24, v1")
    e("s_and_b32 s36, s2, 7\ns_lshr_b32 s37, s2, 3\ns_lshl_b32 s36, s36, 2\ns_lshr_b32 s38, s37, 3\ns_add_u32 s25, s36, s38")
    e("s_and_b32 s26, s37, 7")
    e("s_waitcnt lgkmcnt(0)")
    e("s_lshl_b32 s30, s25, 17")
    e(f"s_add_u32 s32, s28, {WS_QKV:#x}\ns_addc_u32 s33, s29, 0\ns_add_u32 s32, s32, s30\ns_addc_u32 s33, s33, 0")
    k.srd(4, 32, 0, S * 64); k.srd(8, 32, 32 * S * 64, S * 64); k.srd(12, 32, 64 * S * 64, S * 64)
    k.srd(16, 28, WS_O, S * D * 2)
    Q = 4; KF = 12; VF = 20; SA = 32; SBr = 48; NEG = 64; O = 80; LS = 96; SEL = 100; P = 104; PB = 112; T = 125
    AK0, AK1, AV, DK, DV = 120, 121, 122, 123, 124
    e("v_and_b32 v3, 31, v2\nv_lshrrev_b32 v28, 5, v2")
    e("s_lshl_b32 s39, s26, 8\ns_lshl_b32 s40, s24, 5\ns_add_u32 s39, s39, s40")
    e("v_add_u32 v29, s39, v3\nv_lshlrev_b32 v29, 6, v29\nv_lshlrev_b32 v30, 4, v28\nv_add_u32 v29, v29, v30")
    e(f"buffer_load_dwordx4 {v(Q,4)}, v29, s[4:7], 0 offen\nbuffer_load_dwordx4 {v(Q+4,4)}, v29, s[4:7], 0 offen offset:32")
    e("v_lshrrev_b32 v29, 2, v2\ns_lshl_b32 s40, s24, 4\nv_add_u32 v29, s40, v29\nv_lshlrev_b32 v29, 6, v29")
    e("v_and_b32 v30, 3, v2\nv_lshrrev_b32 v31, 4, v2\nv_xor_b32 v30, v30, v31\nv_lshlrev_b32 v30, 4, v30")
    e(f"v_add_u32 v{DK}, v29, v30")
    e(f"v_lshlrev_b32 v{DV}, 4, v0")
    e("s_lshl_b32 s41, s24, 10")
    e("v_lshrrev_b32 v29, 2, v3\nv_and_b32 v29, 3, v29\nv_xor_b32 v29, v29, v28\nv_lshlrev_b32 v29, 4, v29")
    e(f"v_lshlrev_b32 v30, 6, v3\nv_add_u32 v{AK0}, v29, v30\nv_xor_b32 v{AK1}, 32, v{AK0}")
    e("v_and_b32 v29, 15, v2\nv_lshrrev_b32 v29, 2, v29\nv_lshlrev_b32 v30, 2, v28\nv_add_u32 v29, v29, v30\nv_lshlrev_b32 v29, 6, v29")
    e("v_lshrrev_b32 v30, 4, v2\nv_and_b32 v30, 1, v30\nv_lshlrev_b32 v30, 5, v30\nv_add_u32 v29, v29, v30")
    e(f"v_and_b32 v30, 3, v2\nv_lshlrev_b32 v30, 3, v30\nv_add_u32 v{AV}, v29, v30")
    e("v_lshrrev_b32 v29, 4, v2\nv_lshrrev_b32 v30, 2, v2\nv_xor_b32 v29, v29, v30\nv_and_b32 v29, 1, v29")
    e("v_cmp_eq_u32 vcc, 0, v29\nv_mov_b32 v30, 0x3f803f80")
    e(f"v_cndmask_b32 v{SEL}, 0, v30, vcc")
    for r in range(1, 4): e(f"v_mov_b32 v{SEL+r}, v{SEL}")
    e(f"v_mov_b32 v29, {FLAG}\nv_mov_b32 v30, 0\nds_write_b32 v29, v30")
    def dma(stage_sreg):
        e(f"s_add_u32 m0, {stage_sreg}, s41")
        e(f"buffer_load_dwordx4 v{DK}, s[8:11], s42 offen lds")
        e(f"s_add_u32 m0, m0, {SBK}")
        e(f"buffer_load_dwordx4 v{DV}, s[12:15], s42 offen lds")
        e(f"s_add_u32 s42, s42, {SBK}")
    def kread(slot, t):
        return [f"ds_read_b128 {v(KF,4)}, v{AK0} offset:{slot*SB+t*2048}", f"ds_read_b128 {v(KF+4,4)}, v{AK1} offset:{slot*SB+t*2048}"]
    def vread(slot, t):
        return [f"ds_read_b64_tr_b16 {v(VF+4*m+2*hh,2)}, v{AV} offset:{slot*SB+SBK+t*2048+(16*m+8*hh)*64}" for m in range(2) for hh in range(2)]
    def qk(dst, c):
        return [f"v_mfma_f32_32x32x16_bf16 {v(dst,16)}, {v(KF,4)}, {v(Q,4)}, {c}",
                f"v_mfma_f32_32x32x16_bf16 {v(dst,16)}, {v(KF+4,4)}, {v(Q+4,4)}, {v(dst,16)}"]
    def pv(P=P):
        return [f"v_mfma_f32_32x32x16_bf16 {v(O,16)}, {v(VF,4)}, {v(P,4)}, {v(O,16)}",
                f"v_mfma_f32_16x16x32_bf16 {v(LS,4)}, {v(SEL,4)}, {v(P,4)}, {v(LS,4)}",
                f"v_mfma_f32_32x32x16_bf16 {v(O,16)}, {v(VF+4,4)}, {v(P+4,4)}, {v(O,16)}",
                f"v_mfma_f32_16x16x32_bf16 {v(LS,4)}, {v(SEL,4)}, {v(P+4,4)}, {v(LS,4)}"]
    def start_stream():
        e("s_mov_b32 s42, 0")
        for st in range(NSL - 1):
            e(f"s_mov_b32 s43, {st*SB}")
            dma("s43")
    def lane_max16(src, dst, tmp):
        e(f"v_max3_f32 v{dst}, v{src}, v{src+1}, v{src+2}")
        for r in range(3, 15, 2): e(f"v_max3_f32 v{dst}, v{dst}, v{src+r}, v{src+r+1}")
        e(f"v_max_f32 v{dst}, v{dst}, v{src+15}")
        e(f"v_mov_b32 v{tmp}, v{dst}\nv_permlane32_swap_b32 v{tmp}, v{dst}\nv_max_f32 v{dst}, v{dst}, v{tmp}")
    def zero_acc():
        for r in range(16): e(f"v_mov_b32 v{O+r}, 0")
        for r in range(4): e(f"v_mov_b32 v{LS+r}, 0")
    NST = S // KPS
    start_stream()
    zero_acc()
    e(f"s_waitcnt vmcnt({2*(NSL-2)})\ns_barrier")
    k.stamp(1)
    for l in kread(0, 0): e(l)
    e("s_waitcnt lgkmcnt(0)")
    for l in qk(SA, "0"): e(l)
    lane_max16(SA, T, T + 1)
    e(f"v_add_f32 v{T}, {f32(40.0)}, v{T}")
    for r in range(16): e(f"v_sub_f32 v{NEG+r}, 0, v{T}")
    for l in qk(SA, v(NEG, 16)): e(l)
    for l in kread(0, 1): e(l)
    for r in range(8): e(f"v_mov_b32 v{VF+r}, 0\nv_mov_b32 v{PB+r}, 0")
    e("s_waitcnt lgkmcnt(0)")
    e(f"s_mov_b32 s44, {NST // NSL}")
    e(f"{L('floop')}:")
    cur, nxt = SA, SBr
    pc, pp = P, PB
    for slot in range(NSL):
        for t in range(4):
            if t == 2 and "nobar" not in exp:
                e(f"s_cmp_ge_u32 s42, {S*64}\ns_cbranch_scc1 {L(f'nodma{slot}')}")
                e(f"s_waitcnt vmcnt({2*(NSL-3)})\ns_barrier")
                e(f"s_mov_b32 s43, {((slot + NSL - 1) % NSL) * SB}")
                dma("s43")
                e(f"s_branch {L(f'cont{slot}')}")
                e(f"{L(f'nodma{slot}')}:")
                e("s_waitcnt vmcnt(0)\ns_barrier")
                e(f"{L(f'cont{slot}')}:")
            kr = kread((slot + (t + 2) // 4) % NSL, (t + 2) % 4)
            vr = vread(slot, t)
            E = [f"v_exp_f32 v{cur+r}, v{cur+r}" for r in range(16)]
            C = [f"v_cvt_pk_bf16_f32 v{pc+r}, v{cur+2*r}, v{cur+2*r+1}" for r in range(8)]
            m = qk(nxt, v(NEG, 16)); p = pv(pp)
            seq = attn_seq(m, p, E, C, kr, vr, exp)
            for l in seq: e(l)
            cur, nxt = nxt, cur
            pc, pp = pp, pc
    e(f"s_sub_u32 s44, s44, 1\ns_cmp_lg_u32 s44, 0\ns_cbranch_scc1 {L('floop')}")
    e("s_waitcnt lgkmcnt(0)")
    for l in pv(pp): e(l)
    def finish_and_check(check):
        e(f"v_rcp_f32 v{T}, v{LS}")
        for r in range(16): e(f"v_mul_f32 v{O+r}, v{O+r}, v{T}")
        if check:
            e(f"v_mov_b32 v{T+1}, {f32(2.0**120)}")
            e(f"v_cmp_nlt_f32 vcc, v{LS}, v{T+1}")
            e("s_mov_b64 s[46:47], vcc")
            e(f"v_mov_b32 v{T+2}, 0x7f800000")
            for r in range(16):
                e(f"v_cmp_nlt_f32 vcc, abs(v{O+r}), v{T+2}\ns_or_b64 s[46:47], s[46:47], vcc")
            e(f"s_cmp_eq_u64 s[46:47], 0\ns_cbranch_scc1 {L('okwave')}")
            e(f"v_mov_b32 v{T+1}, {FLAG}\nv_mov_b32 v{T+2}, 1\nds_write_b32 v{T+1}, v{T+2}")
            e(f"{L('okwave')}:")
            e("s_waitcnt lgkmcnt(0)\ns_barrier")
            e(f"v_mov_b32 v{T+1}, {FLAG}\nds_read_b32 v{T+2}, v{T+1}\ns_waitcnt lgkmcnt(0)\nv_readfirstlane_b32 s46, v{T+2}")
            e(f"s_cmp_lg_u32 s46, 0\ns_cbranch_scc1 {L('safe')}")
    k.stamp(2)
    finish_and_check(True)
    e(f"{L('store')}:")
    for r in range(8): e(f"v_cvt_pk_bf16_f32 v{P+r}, v{O+2*r}, v{O+2*r+1}")
    for b in (0, 4):
        e(f"v_permlane32_swap_b32 v{P+b}, v{P+b+2}\nv_permlane32_swap_b32 v{P+b+1}, v{P+b+3}")
    e(f"v_add_u32 v29, s39, v3\nv_lshlrev_b32 v29, 11, v29\nv_lshlrev_b32 v30, 4, v28\nv_add_u32 v29, v29, v30")
    e("s_lshl_b32 s40, s25, 6")
    e(f"buffer_store_dwordx4 {v(P,4)}, v29, s[16:19], s40 offen\nbuffer_store_dwordx4 {v(P+4,4)}, v29, s[16:19], s40 offen offset:32")
    k.stamp_flush(3, SA)
    e("s_endpgm")
    e(f"{L('safe')}:")
    e("s_waitcnt vmcnt(0)\ns_barrier")
    M = PB; AL = PB + 1
    zero_acc()
    e(f"v_mov_b32 v{M}, {f32(-3.0e38)}")
    e("s_mov_b32 s42, 0")
    e(f"s_mov_b32 s44, {NST}")
    e(f"{L('sloop')}:")
    e("s_barrier")
    e("s_mov_b32 s43, 0")
    dma("s43")
    e("s_waitcnt vmcnt(0)\ns_barrier")
    for t in range(4):
        for l in kread(0, t) + vread(0, t): e(l)
        e("s_waitcnt lgkmcnt(0)")
        for l in qk(SA, "0"): e(l)
        lane_max16(SA, T, T + 1)
        e(f"v_max_f32 v{T}, v{T}, v{M}\nv_sub_f32 v{AL}, v{M}, v{T}\nv_exp_f32 v{AL}, v{AL}\nv_mov_b32 v{M}, v{T}")
        for r in range(16): e(f"v_sub_f32 v{SA+r}, v{SA+r}, v{M}\nv_exp_f32 v{SA+r}, v{SA+r}")
        for r in range(16): e(f"v_mul_f32 v{O+r}, v{O+r}, v{AL}")
        for r in range(4): e(f"v_mul_f32 v{LS+r}, v{LS+r}, v{AL}")
        for r in range(8): e(f"v_cvt_pk_bf16_f32 v{P+r}, v{SA+2*r}, v{SA+2*r+1}")
        for l in pv(): e(l)
    e(f"s_sub_u32 s44, s44, 1\ns_cmp_lg_u32 s44, 0\ns_cbranch_scc1 {L('sloop')}")
    finish_and_check(False)
    e(f"s_branch {L('store')}")
    k.finish()
    return k


def k_attn2(name="attn_kernel", exp=(), pf=()):
    STG_FIRST = 1 if 'stg1' in exp else 0
    NSL = 3; KPS = 128; SBK = KPS * 64
    HB = 2 * SBK
    SB = 2 * HB
    FLAG = NSL * SB
    k = Kern(name, 256, 512, NSL * SB + 64, 248); e = k.e
    L = k.lab
    k.exit_extra()
    k.ptr(28, KA_WS)
    e("v_lshrrev_b32 v1, 6, v0\nv_and_b32 v2, 63, v0\nv_readfirstlane_b32 s24, v1")
    e("s_and_b32 s36, s2, 7\ns_lshr_b32 s37, s2, 3\ns_lshl_b32 s36, s36, 2\ns_lshr_b32 s38, s37, 3\ns_add_u32 s25, s36, s38")
    e("s_and_b32 s26, s37, 7")
    e("s_and_b32 s34, s24, 3\ns_lshr_b32 s35, s24, 2")
    e("s_waitcnt lgkmcnt(0)")
    e("s_lshl_b32 s30, s25, 17")
    e(f"s_add_u32 s32, s28, {WS_QKV:#x}\ns_addc_u32 s33, s29, 0\ns_add_u32 s32, s32, s30\ns_addc_u32 s33, s33, 0")
    k.srd(4, 32, 0, S * 64); k.srd(8, 32, 32 * S * 64, S * 64); k.srd(12, 32, 64 * S * 64, S * 64)
    k.srd(16, 28, WS_O, S * D * 2)
    Q = 4; KF = 20; VF = 28
    NEG = 36; O = 68; LS = 100; SEL = 108
    SS = [[112, 128], [144, 160]]
    PP = [[176, 184], [192, 200]]
    AK0, AK1, AV, AN0, AN1, DK, DV = 208, 209, 210, 211, 212, 213, 214
    HH, QL = 215, 216
    T = 217
    PFD = 226
    e(f"v_and_b32 v{QL}, 31, v2\nv_lshrrev_b32 v{HH}, 5, v2")
    e("s_lshl_b32 s39, s26, 8\ns_lshl_b32 s40, s34, 6\ns_add_u32 s39, s39, s40")
    e(f"v_add_u32 v{T}, s39, v{QL}\nv_lshlrev_b32 v{T}, 6, v{T}\nv_lshlrev_b32 v{T+1}, 4, v{HH}\nv_add_u32 v{T}, v{T}, v{T+1}")
    for qb in range(2):
        e(f"buffer_load_dwordx4 {v(Q+8*qb,4)}, v{T}, s[4:7], 0 offen offset:{qb*2048}")
        e(f"buffer_load_dwordx4 {v(Q+8*qb+4,4)}, v{T}, s[4:7], 0 offen offset:{qb*2048+32}")
    e(f"v_lshrrev_b32 v{T}, 2, v2\ns_lshl_b32 s40, s34, 5\nv_add_u32 v{T}, s40, v{T}\nv_lshlrev_b32 v{T}, 6, v{T}")
    e(f"v_and_b32 v{T+1}, 3, v2\nv_lshrrev_b32 v{T+2}, 4, v2\nv_xor_b32 v{T+1}, v{T+1}, v{T+2}\nv_lshlrev_b32 v{T+1}, 4, v{T+1}")
    e(f"v_add_u32 v{DK}, v{T}, v{T+1}")
    e(f"v_lshlrev_b32 v{DV}, 4, v2\ns_lshl_b32 s40, s34, 11\nv_add_u32 v{DV}, s40, v{DV}")
    e(f"s_lshl_b32 s41, s34, 11\ns_mul_i32 s40, s35, {HB}\ns_add_u32 s41, s41, s40")
    e(f"s_mul_i32 s45, s35, {S*32}")
    e(f"v_lshrrev_b32 v{T}, 2, v{QL}\nv_and_b32 v{T}, 3, v{T}\nv_xor_b32 v{T}, v{T}, v{HH}\nv_lshlrev_b32 v{T}, 4, v{T}")
    e(f"v_lshlrev_b32 v{T+1}, 6, v{QL}\nv_add_u32 v{T+3}, v{T}, v{T+1}")
    e(f"s_mul_i32 s40, s35, {HB}")
    e(f"v_add_u32 v{AK0}, s40, v{T+3}\nv_xor_b32 v{AK1}, 32, v{AK0}")
    e(f"v_and_b32 v{T}, 15, v2\nv_lshrrev_b32 v{T}, 2, v{T}\nv_lshlrev_b32 v{T+1}, 2, v{HH}\nv_add_u32 v{T}, v{T}, v{T+1}\nv_lshlrev_b32 v{T}, 6, v{T}")
    e(f"v_lshrrev_b32 v{T+1}, 4, v2\nv_and_b32 v{T+1}, 1, v{T+1}\nv_lshlrev_b32 v{T+1}, 5, v{T+1}\nv_add_u32 v{T}, v{T}, v{T+1}")
    e(f"v_and_b32 v{T+1}, 3, v2\nv_lshlrev_b32 v{T+1}, 3, v{T+1}\nv_add_u32 v{T}, v{T}, v{T+1}\nv_add_u32 v{T}, {SBK}, v{T}\nv_add_u32 v{AV}, s40, v{T}")
    e(f"v_lshrrev_b32 v{T}, 4, v2\nv_lshrrev_b32 v{T+1}, 2, v2\nv_xor_b32 v{T}, v{T}, v{T+1}\nv_and_b32 v{T}, 1, v{T}")
    e(f"v_cmp_eq_u32 vcc, 0, v{T}\nv_mov_b32 v{T+1}, 0x3f803f80")
    e(f"v_cndmask_b32 v{SEL}, 0, v{T+1}, vcc")
    for r in range(1, 4): e(f"v_mov_b32 v{SEL+r}, v{SEL}")
    e(f"v_mov_b32 v{T}, {FLAG}\nv_mov_b32 v{T+1}, 0\nds_write_b32 v{T}, v{T+1}")
    def dma(slot_sreg):
        e(f"s_add_u32 s43, {slot_sreg}, s41\ns_add_u32 s46, s42, s45")
        e(f"s_mov_b32 m0, s43\nbuffer_load_dwordx4 v{DK}, s[8:11], s46 offen lds")
        e(f"s_add_u32 m0, s43, {SBK}\nbuffer_load_dwordx4 v{DV}, s[12:15], s46 offen lds")
        e(f"s_add_u32 s46, s46, 1024\ns_add_u32 m0, s43, 1024\nbuffer_load_dwordx4 v{DK}, s[8:11], s46 offen lds")
        e(f"s_add_u32 m0, s43, {SBK+1024}\nbuffer_load_dwordx4 v{DV}, s[12:15], s46 offen lds")
        e(f"s_add_u32 s42, s42, {SBK}")
    def kread(a0, a1, t):
        return [f"ds_read_b128 {v(KF,4)}, v{a0} offset:{t*2048}", f"ds_read_b128 {v(KF+4,4)}, v{a1} offset:{t*2048}"]
    def vread(t):
        return [f"ds_read_b64_tr_b16 {v(VF+4*m+2*hh,2)}, v{AV} offset:{t*2048+(16*m+8*hh)*64}" for m in range(2) for hh in range(2)]
    def qk(qb, dst, c):
        return [f"v_mfma_f32_32x32x16_bf16 {v(dst,16)}, {v(KF,4)}, {v(Q+8*qb,4)}, {c}",
                f"v_mfma_f32_32x32x16_bf16 {v(dst,16)}, {v(KF+4,4)}, {v(Q+8*qb+4,4)}, {v(dst,16)}"]
    def pv(qb, P):
        o, l = O + 16 * qb, LS + 4 * qb
        return [f"v_mfma_f32_32x32x16_bf16 {v(o,16)}, {v(VF,4)}, {v(P,4)}, {v(o,16)}",
                f"v_mfma_f32_16x16x32_bf16 {v(l,4)}, {v(SEL,4)}, {v(P,4)}, {v(l,4)}",
                f"v_mfma_f32_32x32x16_bf16 {v(o,16)}, {v(VF+4,4)}, {v(P+4,4)}, {v(o,16)}",
                f"v_mfma_f32_16x16x32_bf16 {v(l,4)}, {v(SEL,4)}, {v(P+4,4)}, {v(l,4)}"]
    def lane_max16(src, dst, tmp):
        e(f"v_max3_f32 v{dst}, v{src}, v{src+1}, v{src+2}")
        for r in range(3, 15, 2): e(f"v_max3_f32 v{dst}, v{dst}, v{src+r}, v{src+r+1}")
        e(f"v_max_f32 v{dst}, v{dst}, v{src+15}")
        e(f"v_mov_b32 v{tmp}, v{dst}\nv_permlane32_swap_b32 v{tmp}, v{dst}\nv_max_f32 v{dst}, v{dst}, v{tmp}")
    def zero_acc():
        for r in range(32): e(f"v_mov_b32 v{O+r}, 0")
        for r in range(8): e(f"v_mov_b32 v{LS+r}, 0")
    NST = S // 2 // KPS
    HALF = S * 32
    e("s_mov_b32 s42, 0")
    for st in range(NSL - 1):
        e(f"s_mov_b32 s44, {st*SB}")
        dma("s44")
    zero_acc()
    for r in range(8): e(f"v_mov_b32 v{VF+r}, 0")
    for qb in range(2):
        for r in range(8): e(f"v_mov_b32 v{PP[1][qb]+r}, 0")
    e(f"s_waitcnt vmcnt({4*(NSL-2)})\ns_barrier")
    k.stamp(1)
    e(f"v_xor_b32 v{T+4}, 32, v{T+3}")
    for l in kread(T + 3, T + 4, 0): e(l)
    e("s_waitcnt lgkmcnt(0)")
    for qb in range(2):
        for l in qk(qb, SS[1][qb], "0"): e(l)
    for l in kread(AK0, AK1, 0): e(l)
    for qb in range(2):
        lane_max16(SS[1][qb], T, T + 1)
        e(f"v_add_f32 v{T}, {f32(40.0)}, v{T}")
        for r in range(16): e(f"v_sub_f32 v{NEG+16*qb+r}, 0, v{T}")
    e("s_waitcnt lgkmcnt(0)")
    for qb in range(2):
        for l in qk(qb, SS[0][qb], v(NEG + 16 * qb, 16)): e(l)
    for l in kread(AK0, AK1, 1): e(l)
    e(f"v_add_u32 v{AN0}, {SB}, v{AK0}\nv_add_u32 v{AN1}, {SB}, v{AK1}")
    e(f"s_mov_b32 s47, 1\ns_mov_b32 s48, {SB}\ns_mov_b32 s49, {-(NSL-1)*SB & 0xffffffff:#x}")
    e(f"s_mov_b32 s50, {(NSL-1)*SB}")
    e("s_waitcnt lgkmcnt(0)")
    e(f"s_mov_b32 s44, {NST}")
    e(f"{L('floop')}:")
    for t in range(4):
        par = t & 1
        def boundary(sfx):
            o_ = []
            ee = o_.append
            ee(f"s_cmp_ge_u32 s42, {HALF}"); ee(f"s_cbranch_scc1 {L('nodma'+sfx)}")
            ee(f"s_waitcnt vmcnt({4*(NSL-3)})"); ee("s_barrier")
            save = k.a.lines; k.a.lines = []
            dma("s50")
            o_ += [x.strip() for x in k.a.lines]; k.a.lines = save
            ee(f"s_add_u32 s50, s50, {SB}"); ee(f"s_cmp_eq_u32 s50, {NSL*SB}"); ee("s_cselect_b32 s50, 0, s50")
            ee(f"s_branch {L('cont'+sfx)}")
            ee(f"{L('nodma'+sfx)}:")
            ee("s_waitcnt vmcnt(0)"); ee("s_barrier")
            ee(f"{L('cont'+sfx)}:")
            return o_
        stagger = "stagger" in exp
        if t == 2 and "nobar" not in exp:
            if stagger:
                e(f"s_cmp_eq_u32 s35, {STG_FIRST}\ns_cbranch_scc0 {L('skipA')}")
                for l in boundary("A"): e(l)
                e(f"{L('skipA')}:")
            else:
                for l in boundary(""): e(l)
        kr = kread(AN0, AN1, (t + 2) % 4) if t >= 2 else kread(AK0, AK1, t + 2)
        vr = vread(t)
        m = []; p = []; E = []; C = []
        for qb in range(2):
            cur = SS[par][qb]; nxt = SS[1 - par][qb]; pc = PP[par][qb]; pp = PP[1 - par][qb]
            m.append(qk(qb, nxt, v(NEG + 16 * qb, 16))); p.append(pv(qb, pp))
            E.append([f"v_exp_f32 v{cur+r}, v{cur+r}" for r in range(16)])
            C.append([f"v_cvt_pk_bf16_f32 v{pc+r}, v{cur+2*r}, v{cur+2*r+1}" for r in range(8)])
        E0, E1 = E; C0, C1 = C
        seq = ["s_waitcnt lgkmcnt(4)",
               m[0][0], E0[0], E0[1], E0[2], E0[3],
               m[1][0], E0[4], E0[5], C0[0], C0[1], E0[6],
               m[0][1], E0[7], C0[2], E0[8], E0[9], C0[3],
               m[1][1], kr[0], kr[1], E0[10], E0[11], E0[12], E0[13], "s_waitcnt lgkmcnt(2)",
               p[0][0], C0[4], C0[5], E0[14], E0[15], C0[6], C0[7],
               p[0][1], E1[0], E1[1],
               p[1][0], E1[2], E1[3], C1[0], C1[1], E1[4],
               p[1][1], E1[5], E1[6],
               p[0][2], E1[7], C1[2], E1[8], E1[9], C1[3],
               p[0][3], E1[10], E1[11],
               p[1][2], vr[0], vr[1], vr[2], vr[3], E1[12], E1[13], C1[4], C1[5], E1[14],
               p[1][3], E1[15], C1[6], C1[7]]
        if stagger and t == 2:
            i_ = seq.index(kr[0])
            seq = seq[:i_] + [f"s_cmp_eq_u32 s35, {STG_FIRST}", f"s_cbranch_scc1 {L('skipB')}"] + boundary("B") + [f"{L('skipB')}:"] + seq[i_:]
        if "spread" in exp and t >= 2:
            pieces = [(f"v{DK}", "s[8:11]", 0, 0), (f"v{DV}", "s[12:15]", SBK, 0), (f"v{DK}", "s[8:11]", 1024, 1024), (f"v{DV}", "s[12:15]", SBK + 1024, 1024)][(t - 2) * 2:(t - 2) * 2 + 2]
            for n_, (anchor, (va_, srd_, lo_, so_)) in enumerate(zip((m[1][0], p[1][0]), pieces)):
                lab_ = L(f"sp{t}{n_}")
                code = [f"s_cbranch_scc0 {lab_}", f"s_add_u32 m0, s43, {lo_}", f"s_add_u32 s54, s46, {so_}", f"buffer_load_dwordx4 {va_}, {srd_}, s54 offen lds", f"{lab_}:"]
                i_ = seq.index(anchor)
                seq = seq[:i_] + ["s_cmp_lg_u32 s53, 0"] + [anchor] + code + seq[i_ + 1:]
        if "altprio" in exp and t in (0, 2):
            seq = [f"s_cmp_lt_u32 s24, 4", f"s_cbranch_scc1 {L(f'ap{t}')}", f"s_setprio {1 if t == 0 else 0}", f"{L(f'ap{t}')}:"] + seq
        if "altprio2" in exp:
            seq = [f"s_cmp_lt_u32 s24, 4", f"s_cbranch_scc1 {L(f'aq{t}')}", f"s_setprio {1 - (t & 1)}", f"{L(f'aq{t}')}:"] + seq
        if "smf" in exp:
            out_ = []
            for x_ in seq:
                if "16x16x32" in x_:
                    qb_ = 0 if x_ in p[0] else 1
                    if x_ == p[qb_][1]: continue
                    pp_ = PP[1 - par][qb_]
                    out_.append(f"v_smfmac_f32_16x16x64_bf16 {v(LS+4*qb_,4)}, {v(SEL,4)}, {v(pp_,8)}, v{T+6}")
                else: out_.append(x_)
            seq = out_
        if "noread" in exp: seq = [x_ for x_ in seq if not x_.startswith("ds_read") and not x_.startswith("s_waitcnt")]
        if "seqb" in exp:
            rd_ = [x_ for x_ in seq if x_.startswith("ds_read")]
            seq = [x_ for x_ in seq if not x_.startswith("ds_read") and not x_.startswith("s_waitcnt")]
            i_ = seq.index(p[1][2])
            seq = ["s_waitcnt lgkmcnt(4)"] + seq[:seq.index(p[0][0])] + ["s_waitcnt lgkmcnt(0)"] + seq[seq.index(p[0][0]):i_ + 1] + rd_ + seq[i_ + 1:]
        for l in seq: e(l)
        if t == 3:
            e(f"v_sub_u32 v{T}, v{AN0}, v{AK0}\nv_add_u32 v{AV}, v{AV}, v{T}\nv_mov_b32 v{AK0}, v{AN0}\nv_mov_b32 v{AK1}, v{AN1}")
            e(f"s_add_u32 s47, s47, 1\ns_cmp_eq_u32 s47, {NSL}\ns_cselect_b32 s51, s49, s48\ns_cselect_b32 s47, 0, s47")
            e(f"v_add_u32 v{AN0}, s51, v{AN0}\nv_add_u32 v{AN1}, s51, v{AN1}")
    e(f"s_sub_u32 s44, s44, 1\ns_cmp_lg_u32 s44, 0\ns_cbranch_scc1 {L('floop')}")
    e("s_waitcnt lgkmcnt(0)")
    for qb in range(2):
        for l in pv(qb, PP[1][qb]): e(l)
    e("s_barrier")
    k.stamp(2)
    XB = 0
    def merge(safe, M=None):
        e("s_barrier")
        e(f"s_cmp_eq_u32 s35, 0\ns_cbranch_scc1 {L('keep0' + safe)}")
        for r in range(16): e(f"v_swap_b32 v{O+r}, v{O+16+r}")
        e(f"v_swap_b32 v{LS}, v{LS+4}")
        if M is not None: e(f"v_swap_b32 v{M}, v{M+1}")
        e(f"{L('keep0' + safe)}:")
        e(f"s_mul_i32 s52, s24, {5*1024+256}\nv_lshlrev_b32 v{T}, 4, v2\nv_add_u32 v{T}, s52, v{T}")
        for g in range(4): e(f"ds_write_b128 v{T}, {v(O+16+4*g,4)} offset:{g*1024}")
        e(f"v_lshlrev_b32 v{T+1}, 2, v2\nv_add_u32 v{T+1}, s52, v{T+1}")
        e(f"ds_write_b32 v{T+1}, v{LS+4} offset:4096")
        if M is not None: e(f"ds_write_b32 v{T+1}, v{M+1} offset:{4096+256}")
        e("s_waitcnt lgkmcnt(0)\ns_barrier")
        e(f"s_xor_b32 s52, s24, 4\ns_mul_i32 s52, s52, {5*1024+256}\nv_lshlrev_b32 v{T}, 4, v2\nv_add_u32 v{T}, s52, v{T}")
        for g in range(4): e(f"ds_read_b128 {v(O+16+4*g,4)}, v{T} offset:{g*1024}")
        e(f"v_lshlrev_b32 v{T+1}, 2, v2\nv_add_u32 v{T+1}, s52, v{T+1}")
        e(f"ds_read_b32 v{LS+4}, v{T+1} offset:4096")
        if M is not None: e(f"ds_read_b32 v{M+1}, v{T+1} offset:{4096+256}")
        e("s_waitcnt lgkmcnt(0)")
        if M is None:
            for r in range(16): e(f"v_add_f32 v{O+r}, v{O+r}, v{O+16+r}")
            e(f"v_add_f32 v{LS}, v{LS}, v{LS+4}")
        else:
            e(f"v_max_f32 v{T}, v{M}, v{M+1}\nv_sub_f32 v{T+1}, v{M}, v{T}\nv_sub_f32 v{T+2}, v{M+1}, v{T}\nv_exp_f32 v{T+1}, v{T+1}\nv_exp_f32 v{T+2}, v{T+2}")
            for r in range(16): e(f"v_mul_f32 v{O+r}, v{O+r}, v{T+1}\nv_fmac_f32 v{O+r}, v{O+16+r}, v{T+2}")
            e(f"v_mul_f32 v{LS}, v{LS}, v{T+1}\nv_fmac_f32 v{LS}, v{LS+4}, v{T+2}")
        e(f"v_rcp_f32 v{T}, v{LS}")
        for r in range(16): e(f"v_mul_f32 v{O+r}, v{O+r}, v{T}")
    merge("f")
    e(f"v_mov_b32 v{T+1}, {f32(2.0**120)}")
    e(f"v_cmp_nlt_f32 vcc, v{LS}, v{T+1}")
    e("s_mov_b64 s[46:47], vcc")
    e(f"v_mov_b32 v{T+2}, 0x7f800000")
    for r in range(16):
        e(f"v_cmp_nlt_f32 vcc, abs(v{O+r}), v{T+2}\ns_or_b64 s[46:47], s[46:47], vcc")
    e(f"s_cmp_eq_u64 s[46:47], 0\ns_cbranch_scc1 {L('okwave')}")
    e(f"v_mov_b32 v{T+1}, {FLAG}\nv_mov_b32 v{T+2}, 1\nds_write_b32 v{T+1}, v{T+2}")
    e(f"{L('okwave')}:")
    e("s_waitcnt lgkmcnt(0)\ns_barrier")
    e(f"v_mov_b32 v{T+1}, {FLAG}\nds_read_b32 v{T+2}, v{T+1}\ns_waitcnt lgkmcnt(0)\nv_readfirstlane_b32 s46, v{T+2}")
    e(f"s_cmp_lg_u32 s46, 0\ns_cbranch_scc1 {L('safe')}")
    e(f"{L('store')}:")
    P = PP[0][0]
    for r in range(8): e(f"v_cvt_pk_bf16_f32 v{P+r}, v{O+2*r}, v{O+2*r+1}")
    for b in (0, 4):
        e(f"v_permlane32_swap_b32 v{P+b}, v{P+b+2}\nv_permlane32_swap_b32 v{P+b+1}, v{P+b+3}")
    e(f"s_lshl_b32 s40, s35, 5\ns_add_u32 s40, s40, s39")
    e(f"v_add_u32 v{T}, s40, v{QL}\nv_lshlrev_b32 v{T}, 11, v{T}\nv_lshlrev_b32 v{T+1}, 4, v{HH}\nv_add_u32 v{T}, v{T}, v{T+1}")
    e("s_lshl_b32 s40, s25, 6")
    e(f"buffer_store_dwordx4 {v(P,4)}, v{T}, s[16:19], s40 offen\nbuffer_store_dwordx4 {v(P+4,4)}, v{T}, s[16:19], s40 offen offset:32")
    k.stamp_flush(3, SS[0][0])
    e("s_endpgm")
    e(f"{L('safe')}:")
    e("s_waitcnt vmcnt(0)\ns_barrier")
    M = NEG; AL = NEG + 2
    SA = SS[0][0]; P0 = PP[0][0]
    zero_acc()
    e(f"v_mov_b32 v{M}, {f32(-3.0e38)}\nv_mov_b32 v{M+1}, {f32(-3.0e38)}")
    e(f"s_mul_i32 s40, s35, {HB}")
    e(f"v_lshrrev_b32 v{T}, 2, v{QL}\nv_and_b32 v{T}, 3, v{T}\nv_xor_b32 v{T}, v{T}, v{HH}\nv_lshlrev_b32 v{T}, 4, v{T}")
    e(f"v_lshlrev_b32 v{T+1}, 6, v{QL}\nv_add_u32 v{T}, v{T}, v{T+1}\nv_add_u32 v{AK0}, s40, v{T}\nv_xor_b32 v{AK1}, 32, v{AK0}")
    e(f"v_and_b32 v{T}, 15, v2\nv_lshrrev_b32 v{T}, 2, v{T}\nv_lshlrev_b32 v{T+1}, 2, v{HH}\nv_add_u32 v{T}, v{T}, v{T+1}\nv_lshlrev_b32 v{T}, 6, v{T}")
    e(f"v_lshrrev_b32 v{T+1}, 4, v2\nv_and_b32 v{T+1}, 1, v{T+1}\nv_lshlrev_b32 v{T+1}, 5, v{T+1}\nv_add_u32 v{T}, v{T}, v{T+1}")
    e(f"v_and_b32 v{T+1}, 3, v2\nv_lshlrev_b32 v{T+1}, 3, v{T+1}\nv_add_u32 v{T}, v{T}, v{T+1}\nv_add_u32 v{T}, {SBK}, v{T}\nv_add_u32 v{AV}, s40, v{T}")
    e("s_mov_b32 s42, 0")
    e(f"s_mov_b32 s44, {NST}")
    e(f"{L('sloop')}:")
    e("s_barrier")
    e("s_mov_b32 s53, 0")
    dma("s53")
    e("s_waitcnt vmcnt(0)\ns_barrier")
    for t in range(4):
        for l in kread(AK0, AK1, t) + vread(t): e(l)
        e("s_waitcnt lgkmcnt(0)")
        for qb in range(2):
            for l in qk(qb, SA, "0"): e(l)
            lane_max16(SA, T, T + 1)
            e(f"v_max_f32 v{T}, v{T}, v{M+qb}\nv_sub_f32 v{AL}, v{M+qb}, v{T}\nv_exp_f32 v{AL}, v{AL}\nv_mov_b32 v{M+qb}, v{T}")
            for r in range(16): e(f"v_sub_f32 v{SA+r}, v{SA+r}, v{T}\nv_exp_f32 v{SA+r}, v{SA+r}")
            for r in range(16): e(f"v_mul_f32 v{O+16*qb+r}, v{O+16*qb+r}, v{AL}")
            for r in range(4): e(f"v_mul_f32 v{LS+4*qb+r}, v{LS+4*qb+r}, v{AL}")
            for r in range(8): e(f"v_cvt_pk_bf16_f32 v{P0+r}, v{SA+2*r}, v{SA+2*r+1}")
            for l in pv(qb, P0): e(l)
    e(f"s_sub_u32 s44, s44, 1\ns_cmp_lg_u32 s44, 0\ns_cbranch_scc1 {L('sloop')}")
    merge("s", M)
    e(f"s_branch {L('store')}")
    k.finish()
    return k

def pf_stage(NST): return 2

def attn_prefetch(k, pf, vd, vt):
    e = k.e
    e("s_lshl_b32 s56, s2, 3\ns_add_u32 s56, s56, s24")
    for n_, (karg, nbytes) in enumerate(pf):
        assert nbytes <= 2048 * 8192
        prefetch(k, karg, nbytes, 56, 2048, 58, 60 + 4 * n_, 2, vt, vd)

def k_summary(kernels, probe=None):
    n = len(kernels)
    k = Kern("summary_kernel", 1, 64, 0, 64); e = k.e
    k.e("s_cmp_ge_u32 s2, 1\ns_cbranch_scc1 summary_kernel_end")
    k.ptr(8, KA_WS); k.ptr(10, KA_DBG)
    e("s_waitcnt lgkmcnt(0)")
    k.srd(12, 8, WS_STAMP, 16 * 512 * 16)
    k.srd(20, 10, 0, 256)
    e(f"s_sub_u32 s10, s10, {512*n}\ns_subb_u32 s11, s11, 0")
    k.srd(16, 10, 0, 256)
    e("v_lshlrev_b32 v1, 4, v0")
    def red(r, op):
        for b in range(4): e(f"{op}_dpp v{r}, v{r}, v{r} row_ror:{1<<b} row_mask:0xf bank_mask:0xf")
        for w in (16, 32):
            e(f"v_mov_b32 v40, v{r}\nv_permlane{w}_swap_b32 v40, v{r}\n{op} v{r}, v{r}, v40")
    for i, (idx, grid) in enumerate(kernels):
        e(f"v_mov_b32 v10, -1\nv_mov_b32 v11, 0")
        for c in range(0, grid, 64):
            e(f"s_mov_b32 s24, {idx*512*16 + c*16}")
            e(f"buffer_load_dwordx4 v[4:7], v1, s[12:15], s24 offen\ns_waitcnt vmcnt(0)")
            e("v_min_u32 v10, v10, v4\nv_max_u32 v11, v11, v7")
        red(10, "v_min_u32"); red(11, "v_max_u32")
        if i == 0: e("v_mov_b32 v12, v10")
        e("v_sub_u32 v10, v10, v12\nv_sub_u32 v11, v11, v12")
        e(f"v_mov_b32 v13, {i*8}")
        e("v_mov_b32 v14, v10\nv_mov_b32 v15, v11")
        e("buffer_store_dwordx2 v[14:15], v13, s[16:19], 0 offen")
        e("buffer_store_dwordx2 v[14:15], v13, s[20:23], 0 offen")
        e("s_nop 1")
        e(f"v_readfirstlane_b32 s{40+2*i}, v10\nv_readfirstlane_b32 s{41+2*i}, v11")
    if probe is not None:
        kind, j, mult = probe
        if kind == "dur": e(f"s_sub_u32 s30, s{41+2*j}, s{40+2*j}")
        elif kind == "gap": e(f"s_sub_u32 s30, s{40+2*j}, s{41+2*(j-1)}")
        elif kind == "zero": e("s_mov_b32 s30, 0")
        if kind == "abs":
            e(f"s_mov_b32 s30, {mult}\nv_readfirstlane_b32 s32, v12")
        else:
            e(f"s_mul_i32 s30, s30, {mult}")
            e("s_min_u32 s30, s30, 100000")
            e("s_memrealtime s[32:33]\ns_waitcnt lgkmcnt(0)")
        e("summary_spin:\ns_memrealtime s[34:35]\ns_waitcnt lgkmcnt(0)\ns_sub_u32 s36, s34, s32\ns_cmp_lt_u32 s36, s30\ns_cbranch_scc1 summary_spin")
    k.finish()
    return k

def build_all():
    pfa = [(KA_WO, D * D * 2), (KA_W1, D * DFF * 2), (KA_W2, D * DFF * 2)]
    attn = k_attn2(pf=pfa if 'pf3' in PF else ()) if 'attn2' in PF else k_attn()
    if "xg" in PF:
        return [k_mod(), k_h(True),
          k_gemm("qkv_kernel", 1024, 1024, 3072, 192, ("ws", WS_H), S * D * 2, ("arg", KA_WQKV), D * 3 * D * 2, "qkv", 8, 4, 3, 2, ("perm",) if "perm" in PF else ()),
          attn,
          k_gemm("wo_kernel", 1024, 1024, 1024, 64, ("ws", WS_O), S * D * 2, ("arg", KA_WO), D * D * 2, "wo2", 4, 8, 4, 4),
          k_gemm("ffn1_kernel", 1024, 1024, DFF, 224, ("ws", WS_XG), S * D * 2, ("arg", KA_W1), D * DFF * 2, "ffn1", 8, 4, 3, 6),
          k_gemm("ffn2_kernel", DFF, DFF, 1024, 64, ("ws", WS_F1), S * DFF * 2, ("arg", KA_W2), DFF * D * 2, "ffn2", 4, 8, 4, 7)]
    ks = [k_mod(), k_h(True),
          k_gemm("qkv_kernel", 1024, 1024, 3072, 192, ("ws", WS_H), S * D * 2, ("arg", KA_WQKV), D * 3 * D * 2, "qkv", 8, 4, 3, 2, (), [(KA_WO, D * D * 2), (KA_W1, D * DFF * 2)] if "pf2" in PF else ()),
          attn,
          k_gemm("wo_kernel", 1024, 1024, 1024, 64, ("ws", WS_O), S * D * 2, ("arg", KA_WO), D * D * 2, "wo", 4, 8, 4, 4, (), [(KA_W2, D * DFF * 2)] if "pf4" in PF else ()),
          k_h(False),
          k_gemm("ffn1_kernel", 1024, 1024, DFF, 224, ("ws", WS_H), S * D * 2, ("arg", KA_W1), D * DFF * 2, "relu", 8, 4, 3, 6),
          k_gemm("ffn2_kernel", DFF, DFF, 1024, 64, ("ws", WS_F1), S * DFF * 2, ("arg", KA_W2), DFF * D * 2, "ffn2", 4, 8, 4, 7)]
    return ks

def emit(ks, ref_header):
    out = [ref_header]
    for k in ks: out.append(f"; @launch kernel={k.name} grid=({k.grid},1,1) block=({k.block},1,1) lds={k.lds}")
    out.append('.amdgcn_target "amdgcn-amd-amdhsa--gfx950"\n.text')
    seen = set()
    for k in ks:
        if k.name in seen: continue
        seen.add(k.name)
        lines, n = pad_hazards(k.a.lines)
        out.append(f".globl {k.name}\n.type {k.name},@function")
        out += lines
    out.append('.section .rodata,"a"')
    seen = set()
    for k in ks:
        if k.name in seen: continue
        seen.add(k.name)
        out.append(".p2align 6\n" + k.desc())
    return "\n".join(out) + "\n"

def header():
    ref = open("cdna_kernels/" + NAME + ".s.ref").read().split("\n")
    hdr = []
    for l in ref:
        if not l.startswith(";"): break
        if "@launch" in l or l.startswith("; Override") or l.startswith("; grid="): continue
        hdr.append(l)
    return "\n".join(hdr)

if __name__ == "__main__":
    if "--diag" in sys.argv: DIAG = True; sys.argv.remove("--diag")
    for a_ in list(sys.argv):
        if a_.startswith("--pf="): PF = tuple(a_[5:].split(",")); sys.argv.remove(a_)
    for a_ in list(sys.argv):
        if a_.startswith("--st="): STFLAG = " " + a_[5:].replace("+", " "); sys.argv.remove(a_)
    if "--clk" in sys.argv: DIAG = "clk"; sys.argv.remove("--clk")
    if "--hw" in sys.argv: DIAG = "hw"; sys.argv.remove("--hw")
    ref = open("cdna_kernels/" + NAME + ".s.ref").read().split("\n")
    hdr = []
    for l in ref:
        if not l.startswith(";"): break
        if "@launch" in l or l.startswith("; Override") or l.startswith("; grid="): continue
        hdr.append(l)
    ks = build_all()
    if "--sum" in sys.argv:
        sys.argv.remove("--sum")
        order = {"mod_kernel": 0, "h1_kernel": 1, "qkv_kernel": 2, "attn_kernel": 3, "wo_kernel": 4, "h2_kernel": 5, "ffn1_kernel": 6, "ffn2_kernel": 7}
        probe = None
        for a_ in list(sys.argv):
            if a_.startswith("--probe="):
                p_ = a_[8:].split(","); probe = (p_[0], int(p_[1]), int(p_[2])); sys.argv.remove(a_)
        ks.append(k_summary([(order[k.name], k.grid) for k in ks], probe))
    txt = emit(ks, "\n".join(hdr))
    out = sys.argv[1] if len(sys.argv) > 1 else "cdna_kernels/" + NAME + ".s"
    open(out, "w").write(txt)
    print("wrote", out, len(txt), "bytes")
```

```python
import sys
from asmlib import *
import gen
from gen import (NAME, S, D, DFF, H, KA_X, KA_WQKV, KA_WO, KA_BX, KA_W1, KA_W2, KA_C, KA_WMOD, KA_OUT, KA_DBG, KA_WS,
                 WS_MODP, WS_MODF, WS_H, WS_QKV, WS_O, WS_X1, WS_F1, WS_XG, WS_STAT, WS_UB, WS_STAMP, LOG2E, f32, Kern,
                 wave_sum, round_bf16, interleave, header, emit)

WS_CNT = 0x2f00000
C_QKV, C_ATT, C_WO, C_UB, C_F1, C_H = 0, 16, 24, 40, 56, 72
NCNT = 88
FL_BASE = NCNT * 256 + 1536
FL_BASE = (FL_BASE + 255) // 256 * 256
FL = {"qkv": FL_BASE, "att": FL_BASE + 256 * 128, "wo": FL_BASE + 256 * 128 + 256 * 256, "f1": FL_BASE + 256 * 256 + 2 * 256 * 128, "f2": FL_BASE + 256 * 256 + 3 * 256 * 128}
FL["xch"] = FL_BASE + 256 * 256 + 4 * 256 * 128
CNT_BYTES = FL["xch"] + 256 * 128
WS_XCH = 0x3800000
OPT = set()
DIAG = False
SC = " sc1"
SCS = " sc1"
P_WS, P_X, P_WQKV, P_W1, P_W2, P_WO, P_OUT = 66, 68, 70, 72, 74, 76, 78
CNT = 28
CTL = 138240
L_SIG = {"qkv": CTL, "att": CTL + 4, "wo": CTL + 8, "ub": CTL + 12, "f1": CTL + 16, "h": CTL + 20}
L_DEP = {"wo": CTL + 32, "f1": CTL + 36, "f2": CTL + 40, "qkv": CTL + 44}
L_STAMP = CTL + 64
LDS_TOTAL = CTL + 256
SPIN_MAX = 400000
SLEEP = 2
PFSTAGE = 7
L2D = 8

def exec_mask(n):
    if n < 32: return f"s_mov_b64 exec, {(1 << n) - 1:#x}"
    return f"s_mov_b32 exec_lo, -1\ns_mov_b32 exec_hi, {(1 << (n - 32)) - 1:#x}"

class PK(Kern):
    def st(self, i, wave=0):
        if not DIAG: return
        e = self.e; n = self.lab(f"st{i}")
        e(f"s_cmp_lg_u32 s24, {wave}\ns_cbranch_scc1 {n}\n{'s_memtime' if 'cyc' in OPT else 's_memrealtime'} s[98:99]\ns_waitcnt lgkmcnt(0)\nv_mov_b32 v254, s98\nv_mov_b32 v255, {L_STAMP+4*i}\nds_write_b32 v255, v254\ns_waitcnt lgkmcnt(0)\n{n}:")
    def code_touch(self, tag, frm, to, part_sreg, nparts, per):
        if "nocode" in OPT: return 0
        e = self.e; here = self.lab("pc" + tag)
        e(f"s_getpc_b64 s[90:91]\n{here}:\ns_add_u32 s90, s90, {frm}-{here}\ns_addc_u32 s91, s91, 0")
        e(f"s_mul_i32 s92, s{part_sreg}, {per*8192}\nv_lshlrev_b32 v252, 7, v2\nv_add_u32 v252, s92, v252")
        for i in range(per):
            if i: e("v_add_u32 v252, 8192, v252")
            e(f"v_min_u32 v251, {to}-{frm}-4, v252\nglobal_load_dword v253, v251, s[90:91]")
        return per
    def poll(self, tag, cnt_sreg, target, lanes=1):
        e = self.e; L = self.lab
        if cnt_sreg is not None: e(f"s_lshl_b32 s32, s{cnt_sreg}, 8\nv_mov_b32 v6, s32")
        e(f"s_mov_b32 s33, 0\ns_mov_b64 exec, {(1 << lanes) - 1}")
        e(f"{L('poll'+tag)}:")
        e(f"buffer_load_dword v7, v6, {s(CNT,4)}, 0 offen offset:{0 if 'direct' in OPT else 128} sc1\ns_waitcnt vmcnt(0)")
        e(f"v_cmp_gt_u32 vcc, {target}, v7\ns_cmp_eq_u64 vcc, 0\ns_cbranch_scc1 {L('pollx'+tag)}")
        e(f"s_add_u32 s33, s33, 1\ns_cmp_ge_u32 s33, {SPIN_MAX}\ns_cbranch_scc1 {L('pollx'+tag)}")
        e(f"s_sleep {SLEEP}\ns_branch {L('poll'+tag)}")
        e(f"{L('pollx'+tag)}:\ns_mov_b64 exec, -1")
    def dep_wait_loaders(self, tag, cnt_sreg, target, first_wave_cond):
        e = self.e; L = self.lab
        e(f"s_cmp_lg_u32 s24, 4\ns_cbranch_scc1 {L('dw'+tag)}")
        if "noflags" in OPT: self.poll(tag, cnt_sreg, target)
        else:
            if tag == "f2" and "nos2" not in OPT:
                e(f"s_lshl_b32 s34, s25, 1\ns_add_u32 s34, s34, s27\ns_lshl_b32 s34, s34, 7\ns_add_u32 s34, s34, {FL[tag]}")
            elif tag == "f2":
                e(f"s_lshl_b32 s34, s25, 4\ns_add_u32 s34, s34, s26\ns_lshl_b32 s34, s34, 7\ns_add_u32 s34, s34, {FL[tag]}")
            elif tag == "wo":
                e(f"s_lshr_b32 s34, s25, 1\ns_lshl_b32 s34, s34, 1\ns_lshr_b32 s33, s26, 3\ns_add_u32 s34, s34, s33\ns_lshl_b32 s34, s34, 7\ns_add_u32 s34, s34, {FL[tag]}")
            else:
                e(f"s_lshl_b32 s34, s25, 2\ns_lshr_b32 s33, s26, 2\ns_add_u32 s34, s34, s33\ns_lshl_b32 s34, s34, 7\ns_add_u32 s34, s34, {FL[tag]}")
            self.wait_flags(tag, target, 34)
        e(f"v_mov_b32 v6, {L_DEP[tag]}\nv_mov_b32 v7, 1\nds_write_b32 v6, v7\ns_waitcnt lgkmcnt(0)\ns_branch {L('dwx'+tag)}")
        e(f"{L('dw'+tag)}:")
        e(f"v_mov_b32 v6, {L_DEP[tag]}\ns_mov_b32 s33, 0")
        e(f"{L('dwl'+tag)}:")
        e(f"ds_read_b32 v7, v6\ns_waitcnt lgkmcnt(0)\nv_readfirstlane_b32 s34, v7")
        e(f"s_cmp_lg_u32 s34, 0\ns_cbranch_scc1 {L('dwx'+tag)}")
        e(f"s_add_u32 s33, s33, 1\ns_cmp_ge_u32 s33, {SPIN_MAX*4}\ns_cbranch_scc1 {L('dwx'+tag)}")
        e(f"s_sleep 1\ns_branch {L('dwl'+tag)}")
        e(f"{L('dwx'+tag)}:")
    def arrive(self, tag, cnt_sreg, target):
        e = self.e; L = self.lab
        e(f"s_lshl_b32 s33, s{cnt_sreg}, 8\nv_mov_b32 v6, s33\nv_mov_b32 v7, 1")
        if "direct" in OPT:
            e(f"buffer_atomic_add v7, v6, {s(CNT,4)}, 0 offen sc1")
            return
        e(f"buffer_atomic_add v7, v6, {s(CNT,4)}, 0 offen sc0 sc1\ns_waitcnt vmcnt(0)\nv_readfirstlane_b32 s33, v7")
        e(f"s_cmp_lg_u32 s33, {target-1}\ns_cbranch_scc1 {L('arr'+tag)}")
        e(f"v_mov_b32 v7, {target}\nbuffer_store_dword v7, v6, {s(CNT,4)}, 0 offen offset:128 sc1")
        e(f"{L('arr'+tag)}:")
    def signal(self, tag, nwaves, cnt_sreg, target, flags=None):
        e = self.e; L = self.lab
        e("s_waitcnt vmcnt(0)")
        e(f"v_mov_b32 v6, {L_SIG[tag]}\nv_mov_b32 v7, 1\ns_mov_b64 exec, 1")
        e("ds_add_rtn_u32 v7, v6, v7\ns_waitcnt lgkmcnt(0)\nv_readfirstlane_b32 s32, v7\ns_mov_b64 exec, -1")
        e(f"s_cmp_lg_u32 s32, {nwaves-1}\ns_cbranch_scc1 {L('sig'+tag)}")
        if flags is not None and "noflags" not in OPT:
            n, offs = flags
            offs()
            e("v_mov_b32 v7, 1\n" + exec_mask(n))
            e(f"buffer_store_dword v7, v6, {s(CNT,4)}, 0 offen sc1")
        else:
            e("s_mov_b64 exec, 1")
            self.arrive(tag, cnt_sreg, target)
        e(f"{L('sig'+tag)}:\ns_mov_b64 exec, -1")
    def wait_flags(self, tag, n, base_sreg):
        e = self.e; L = self.lab
        e(f"v_lshlrev_b32 v6, 2, v2\nv_add_u32 v6, s{base_sreg}, v6\ns_mov_b32 s33, 0")
        e(exec_mask(n))
        e(f"{L('poll'+tag)}:")
        e(f"buffer_load_dword v7, v6, {s(CNT,4)}, 0 offen sc1\ns_waitcnt vmcnt(0)")
        e(f"v_cmp_ne_u32 vcc, 1, v7\ns_cmp_eq_u64 vcc, 0\ns_cbranch_scc1 {L('pollx'+tag)}")
        e(f"s_add_u32 s33, s33, 1\ns_cmp_ge_u32 s33, {SPIN_MAX}\ns_cbranch_scc1 {L('pollx'+tag)}")
        e(f"s_sleep {SLEEP}\ns_branch {L('poll'+tag)}")
        e(f"{L('pollx'+tag)}:\ns_mov_b64 exec, -1")

def tile_map(e, xr, xc):
    nxc = 16 // xc
    e(f"s_and_b32 s36, s2, 7\ns_lshr_b32 s37, s2, 3")
    e(f"s_and_b32 s38, s36, {nxc-1}\ns_lshr_b32 s39, s36, {nxc.bit_length()-1}")
    e(f"s_and_b32 s40, s37, {xc-1}\ns_lshr_b32 s41, s37, {xc.bit_length()-1}")
    e(f"s_mul_i32 s38, s38, {xc}\ns_add_u32 s26, s38, s40")
    e(f"s_mul_i32 s39, s39, {xr}\ns_add_u32 s25, s39, s41")

def tile_map_s2(e):
    e("s_and_b32 s36, s2, 7\ns_lshr_b32 s37, s2, 3\ns_and_b32 s27, s36, 1\ns_lshr_b32 s36, s36, 1")
    e("s_and_b32 s26, s37, 7\ns_lshr_b32 s37, s37, 3\ns_lshl_b32 s36, s36, 2\ns_add_u32 s25, s36, s37")

def gemm_phase(k, tag, K, lda, ldb, BN, srcA, sizeA, pB, sizeB, epi, xr, xc, NS, nxt_c, nxt_l, dep=None, stamps=(None, None), hbar=False):
    e = k.e
    L = lambda n: k.lab(tag + "_" + n)
    BM, BK = 128, 64
    nA = BM * BK * 2 // 1024; nB = BN * BK * 2 // 1024
    nAw, nBw = nA // 4, nB // 4
    nld = nAw + nBw
    SB = (nA + nB) * 1024
    s2 = epi == "ffn2s"
    nk = K // BK // (2 if s2 else 1)
    TM, TN = 64, BN // 2
    mt, nt = TM // 16, TN // 16
    pitch = BN * 2; cpr = BN // 8
    hbits = {4: 2, 6: 1, 2: 1, 0: 3}[(pitch // 32) % 8]
    ACC = 8; NACC = 4 * mt * nt
    FA = ACC + NACC; NF = 4 * (mt + nt); FB = FA + NF
    AX = FB + NF; AW = AX + 2; EP = AW + nt
    XL = 135168
    assert SB * NS <= XL
    perm = epi == "qkv" and "perm" in OPT
    asc = SC if dep else ""
    e(f"{L('c')}:")
    if s2: tile_map_s2(e)
    else: tile_map(e, xr, xc)
    e("s_lshr_b32 s42, s24, 1\ns_and_b32 s43, s24, 1")
    e("v_and_b32 v3, 15, v2\nv_lshrrev_b32 v4, 4, v2")
    e(f"s_lshl_b32 s44, s25, 7\ns_lshl_b32 s45, s42, 6\ns_add_u32 s44, s44, s45")
    e(f"s_mul_i32 s46, s26, {BN}\ns_mul_i32 s45, s43, {TN}\ns_add_u32 s46, s46, s45")
    k.srd(20, P_WS, WS_MODF, 6144 * 4)
    if epi == "qkv": k.srd(12, P_WS, WS_QKV, 96 * S * 64)
    elif epi == "ffn1": k.srd(12, P_WS, WS_F1, S * DFF * 2)
    elif epi == "wo": k.srd(12, P_WS, WS_X1, S * D * 2); k.srd(16, P_X, 0, S * D * 2)
    elif epi in ("ffn2", "ffn2s"): k.srd(12, P_OUT, 0, S * D * 2); k.srd(16, P_WS, WS_X1, S * D * 2)
    G = EP + 2 * mt * nt; GG = G + 4 * nt; W1R = GG + 4 * nt
    if s2:
        G = EP + 16
        e("s_lshl_b32 s47, s27, 5\ns_add_u32 s46, s46, s47")
        e("s_lshl_b32 s47, s25, 4\ns_lshl_b32 s48, s26, 1\ns_add_u32 s47, s47, s48\ns_add_u32 s47, s47, s43\ns_lshl_b32 s47, s47, 2\ns_lshl_b32 s48, s42, 1\ns_add_u32 s47, s47, s48\ns_add_u32 s47, s47, s27\ns_lshl_b32 s47, s47, 12")
        e("v_lshlrev_b32 v5, 4, v2")
        for j in range(mt):
            e(f"buffer_load_dwordx4 {v(EP+4*j,4)}, v5, s[16:19], s47 offen offset:{j*1024}{SC}")
        e(f"v_lshlrev_b32 v6, 4, v4\ns_lshl_b32 s47, s46, 2\ns_add_u32 s47, s47, {5*1024*4}")
        for i in range(2):
            e(f"buffer_load_dwordx4 {v(G+4*i,4)}, v6, s[20:23], s47 offen offset:{i*64}{SC}")
    if epi in ("wo", "ffn2"):
        if epi == "wo":
            e(f"v_add_u32 v5, s44, v3\nv_lshlrev_b32 v5, 11, v5\nv_lshlrev_b32 v6, 3, v4\nv_add_u32 v5, v5, v6")
            e(f"s_lshl_b32 s47, s46, 1\nv_add_u32 v5, s47, v5")
            for j in range(mt):
                e(f"s_mov_b32 s48, {j*16*2048}")
                for i in range(nt):
                    e(f"buffer_load_dwordx2 {v(EP+2*(j*nt+i),2)}, v5, s[16:19], s48 offen offset:{i*32}")
        else:
            e("s_lshl_b32 s47, s25, 4\ns_add_u32 s47, s47, s26\ns_lshl_b32 s47, s47, 2\ns_add_u32 s47, s47, s24\ns_lshl_b32 s47, s47, 12\nv_lshlrev_b32 v5, 4, v2")
            for j in range(mt):
                e(f"buffer_load_dwordx4 {v(EP+4*j,4)}, v5, s[16:19], s47 offen offset:{j*1024}{SC}")
        gate = (5 if epi == "ffn2" else 2) * 1024
        e(f"v_lshlrev_b32 v6, 4, v4\ns_lshl_b32 s47, s46, 2\ns_add_u32 s47, s47, {gate*4}")
        for i in range(nt):
            e(f"buffer_load_dwordx4 {v(G+4*i,4)}, v6, s[20:23], s47 offen offset:{i*64}{SC}")
        if epi == "wo":
            e(f"s_lshl_b32 s47, s46, 2\ns_add_u32 s47, s47, {4096*4}")
            for i in range(nt):
                e(f"buffer_load_dwordx4 {v(GG+4*i,4)}, v6, s[20:23], s47 offen offset:{i*64}{SC}")
            e("s_lshr_b32 s58, s2, 4\ns_and_b32 s59, s2, 15")
            e(f"v_mul_u32_u24 v5, {(65536+27)//28}, v2\nv_lshrrev_b32 v5, 16, v5\nv_mul_u32_u24 v6, 28, v5\nv_sub_u32 v6, v2, v6")
            e("s_lshl_b32 s60, s58, 6\ns_lshl_b32 s61, s24, 4\ns_add_u32 s60, s60, s61\nv_add_u32 v5, s60, v5")
            e(f"v_mul_u32_u24 v7, {DFF*2}, v5\nv_lshlrev_b32 v6, 4, v6\nv_add_u32 v7, v7, v6\ns_mul_i32 s60, s59, 448\nv_add_u32 v7, s60, v7")
            k.srd(60, P_W1, 0, D * DFF * 2)
            e("v_cmp_gt_u32 vcc, 56, v2\ns_and_saveexec_b64 s[34:35], vcc")
            for i in range(8):
                e(f"s_mov_b32 s64, {i*2*DFF*2}")
                e(f"buffer_load_dwordx4 {v(W1R+4*i,4)}, v7, s[60:63], s64 offen")
            e("v_lshlrev_b32 v5, 2, v5")
            e(f"s_mov_b32 s64, {4096*4}\ns_mov_b32 s65, {3072*4}")
            for i in range(8):
                e(f"buffer_load_dword v{W1R+32+i}, v5, s[20:23], s64 offen offset:{i*8}{SC}")
                e(f"buffer_load_dword v{W1R+40+i}, v5, s[20:23], s65 offen offset:{i*8}{SC}")
            e("s_mov_b64 exec, s[34:35]")
    e(f"v_lshrrev_b32 v5, 1, v3\nv_xor_b32 v5, v5, v4\nv_and_b32 v5, 7, v5")
    e(f"v_lshlrev_b32 v5, 4, v5\ns_lshl_b32 s47, s42, 6\nv_add_u32 v6, s47, v3\nv_lshlrev_b32 v6, 7, v6")
    e(f"v_add_u32 v{AX}, v5, v6\nv_xor_b32 v{AX+1}, 64, v{AX}")
    e("v_lshrrev_b32 v5, 2, v3\nv_and_b32 v6, 3, v2")
    e("v_lshlrev_b32 v7, 3, v4\nv_add_u32 v7, v7, v5")
    e(f"v_mul_u32_u24 v7, {pitch}, v7\nv_lshlrev_b32 v6, 3, v6\nv_add_u32 v7, v7, v6\nv_add_u32 v7, {nA*1024}, v7")
    if hbits == 2: e("v_lshrrev_b32 v5, 1, v5\nv_and_b32 v6, 1, v4\nv_lshlrev_b32 v6, 1, v6\nv_or_b32 v5, v5, v6")
    elif hbits == 1: e("v_and_b32 v5, 1, v4")
    else: e("v_and_b32 v6, 1, v4\nv_lshlrev_b32 v6, 2, v6\nv_or_b32 v5, v5, v6")
    e(f"s_mul_i32 s47, s43, {nt}")
    for i in range(nt):
        e(f"s_add_u32 s48, s47, {i}\nv_xor_b32 v6, s48, v5\nv_lshlrev_b32 v6, 5, v6\nv_add_u32 v{AW+i}, v7, v6")
    for r in range(NACC): e(f"v_mov_b32 v{ACC+r}, 0")
    def reads(ss, F):
        xs = [f"ds_read_b128 {v(F+4*j,4)}, v{AX+ss} offset:{j*2048}" for j in range(mt)]
        ws = []
        for i in range(nt):
            for hh in range(2):
                ws.append(f"ds_read_b64_tr_b16 {v(F+4*mt+4*i+2*hh,2)}, v{AW+i} offset:{(ss*32+hh*4)*pitch}")
        return [xs[0]] + ws[:2] + xs[1:] + ws[2:]
    def mfmas(F):
        return [f"v_mfma_f32_16x16x32_bf16 {v(ACC+4*(j*nt+i),4)}, {v(F+4*mt+4*i,4)}, {v(F+4*j,4)}, {v(ACC+4*(j*nt+i),4)}"
                for j in range(mt) for i in range(nt)]
    def mix(mf, rd, extra=()):
        rd = list(rd)
        if len(rd) <= len(mf) - 4:
            return interleave(mf, rd + list(extra))
        out = []; oi = 0; ex = list(extra)
        for m_ in mf:
            out.append(m_)
            for _ in range(2):
                if oi < len(rd): out.append(rd[oi]); oi += 1
            if oi >= len(rd) and ex: out.append(ex.pop(0))
        out += rd[oi:] + ex
        return out
    if epi == "wo": k.code_touch("w", k.lab("f1_c"), k.lab("f2_c"), 24, 4, 1)
    if epi == "ffn1": k.code_touch("f", k.lab("f1_cloop"), k.lab("end"), 24, 4, 1)
    e(f"s_mov_b32 s49, 0\ns_mov_b32 s54, {SB}\ns_mov_b32 s55, {-(NS-1)*SB & 0xffffffff:#x}")
    e("s_barrier")
    if stamps[0] is not None: k.st(stamps[0])
    for l in reads(0, FA): e(l)
    l2pf = epi in ("qkv", "ffn1") and ("l2" + tag) in OPT
    if l2pf:
        k.srd(56, P_WS, srcA, sizeA); k.srd(60, pB, 0, sizeB)
        e(f"s_cmp_eq_u32 s24, 0\ns_cselect_b32 s65, {(nk-1) & 1}, 99")
        e("s_lshr_b32 s37, s2, 3")
        e(f"s_and_b32 s40, s37, {xc-1}\ns_lshr_b32 s41, s37, {xc.bit_length()-1}")
        e(f"v_lshrrev_b32 v5, 5, v2\nv_add_u32 v5, {L2D}, v5")
        e(f"v_and_b32 v6, 31, v2\ns_lshl_b32 s47, s40, 5\nv_add_u32 v6, s47, v6\ns_lshl_b32 s47, s25, 7\nv_add_u32 v6, s47, v6\nv_lshlrev_b32 v6, 11, v6\nv_lshlrev_b32 v7, 7, v5\nv_add_u32 v250, v6, v7")
        e(f"v_lshlrev_b32 v5, 6, v5\nv_lshrrev_b32 v6, 2, v2\nv_and_b32 v6, 7, v6\nv_add_u32 v5, v5, v6\ns_lshl_b32 s47, s41, 3\nv_add_u32 v5, s47, v5\ns_mov_b32 s47, {ldb*2}\nv_mul_lo_u32 v5, s47, v5")
        e(f"v_and_b32 v6, 3, v2\nv_lshlrev_b32 v6, 7, v6\nv_add_u32 v5, v5, v6\ns_mul_i32 s47, s26, {BN*2}\ns_and_b32 s47, s47, 0xffffff80\nv_add_u32 v249, s47, v5")
    e(f"s_mov_b32 s50, {nk-1}")
    adv_s = f"s_add_u32 s49, s49, 1\ns_cmp_eq_u32 s49, {NS}\ns_cselect_b32 s51, s55, s54\ns_cselect_b32 s49, 0, s49"
    adv_v = [f"v_add_u32 v{r}, s51, v{r}" for r in [AX, AX + 1] + [AW + i for i in range(nt)]]
    e(f"{L('cloop')}:")
    if l2pf:
        e(f"s_and_b32 s47, s50, 1\ns_cmp_lg_u32 s47, s65\ns_cbranch_scc1 {L('nopf')}")
        e(f"buffer_load_dword v248, v250, s[56:59], 0 offen{asc}\nbuffer_load_dword v248, v249, s[60:63], 0 offen")
        e(f"v_add_u32 v250, 256, v250\nv_add_u32 v249, {2*64*ldb*2}, v249")
        e(f"{L('nopf')}:")
    def sprinkle(seq, extra, start):
        out = []; n_ = 0; ex = list(extra)
        for x in seq:
            out.append(x)
            if x.startswith("v_mfma"):
                n_ += 1
                if n_ > start and ex: out.append(ex.pop(0))
        return out + ex
    tight = "loose" not in OPT
    if not tight: e(adv_s)
    e("s_waitcnt lgkmcnt(0)")
    seq = mix(mfmas(FA), reads(1, FB))
    if tight: seq = sprinkle(seq, adv_s.split("\n"), 0)
    last_rd = max(i for i, x in enumerate(seq) if x.startswith("ds_read"))
    tail = [x for x in seq[last_rd + 1:]]
    seq = seq[:last_rd + 1]
    av = list(adv_v)
    for x in tail:
        seq.append(x)
        if av and x.startswith("v_mfma"): seq.append(av.pop(0))
    seq += av
    for l in seq: e(l)
    e("s_waitcnt lgkmcnt(0)\ns_barrier")
    seqb = mix(mfmas(FB), reads(0, FA))
    if tight:
        seqb = sprinkle(seqb, ["s_sub_u32 s50, s50, 1", "s_cmp_lg_u32 s50, 0"], 1)
        for l in seqb: e(l)
        e(f"s_cbranch_scc1 {L('cloop')}")
    else:
        for l in seqb: e(l)
        e(f"s_sub_u32 s50, s50, 1\ns_cmp_lg_u32 s50, 0\ns_cbranch_scc1 {L('cloop')}")
    e("s_waitcnt lgkmcnt(0)")
    for l in mix(mfmas(FA), reads(1, FB)): e(l)
    e("s_waitcnt lgkmcnt(0)")
    if epi != "qkv": e("s_barrier")
    for l in mfmas(FB): e(l)
    if stamps[1] is not None: k.st(stamps[1])
    T = FA
    def acc(i, j): return ACC + 4 * (j * nt + i)
    def pack_pair(ta, tb, dst):
        e(f"v_cvt_pk_bf16_f32 v{dst}, v{ta}, v{ta+1}\nv_cvt_pk_bf16_f32 v{dst+1}, v{ta+2}, v{ta+3}")
        e(f"v_cvt_pk_bf16_f32 v{dst+2}, v{tb}, v{tb+1}\nv_cvt_pk_bf16_f32 v{dst+3}, v{tb+2}, v{tb+3}")
        e(f"v_permlane16_swap_b32 v{dst}, v{dst+2}\nv_permlane16_swap_b32 v{dst+1}, v{dst+3}")
    e("v_and_b32 v5, 1, v4\nv_lshlrev_b32 v5, 5, v5\nv_lshrrev_b32 v6, 1, v4\nv_lshlrev_b32 v6, 4, v6\nv_add_u32 v5, v5, v6")
    if epi == "qkv":
        e("v_lshlrev_b32 v6, 6, v3\nv_add_u32 v5, v5, v6")
        n = 0
        for p in range(nt // 2):
            if perm:
                e(f"s_mul_i32 s52, s43, 96\ns_add_u32 s52, s52, {32*p}\ns_cmp_lt_u32 s52, 64\ns_cselect_b32 s53, {f32(LOG2E * 32 ** -0.5)}, 1.0")
                e("s_lshr_b32 s54, s52, 6\ns_lshl_b32 s54, s54, 5\ns_bfe_u32 s52, s52, 0x10005\ns_add_u32 s52, s52, s54\ns_lshl_b32 s54, s26, 1\ns_add_u32 s52, s52, s54")
                e("s_lshl_b32 s52, s52, 17\ns_lshl_b32 s54, s44, 6\ns_add_u32 s52, s52, s54")
            else:
                e(f"s_add_u32 s52, s46, {32*p}\ns_cmp_lt_u32 s52, 1024\ns_cselect_b32 s53, {f32(LOG2E * 32 ** -0.5)}, 1.0")
                e(f"s_lshl_b32 s52, s52, 12\ns_lshl_b32 s54, s44, 6\ns_add_u32 s52, s52, s54")
            for j in range(mt):
                ta, tb = acc(2 * p, j), acc(2 * p + 1, j)
                for r in range(4):
                    e(f"v_mul_f32 v{ta+r}, s53, v{ta+r}\nv_mul_f32 v{tb+r}, s53, v{tb+r}")
                d = T + 4 * (n % 8); n += 1
                pack_pair(ta, tb, d)
                e(f"buffer_store_dwordx4 {v(d,4)}, v5, s[12:15], s52 offen offset:{j*1024}{SCS}")
        e(f"s_add_u32 s35, s26, {C_QKV}")
        k.signal("qkv", 4, 35, 16, (6, lambda: e(f"s_mul_i32 s33, s26, 6\nv_add_u32 v6, s33, v2\nv_lshrrev_b32 v7, 5, v6\nv_and_b32 v6, 31, v6\nv_lshlrev_b32 v6, 8, v6"
                                                        f"\nv_lshlrev_b32 v7, 6, v7\nv_add_u32 v6, v6, v7"
                                                        f"\ns_lshl_b32 s33, s25, 2\ns_add_u32 s33, s33, {FL['att']}\nv_add_u32 v6, s33, v6")))
    elif epi == "ffn1":
        ST = FA; UU = FA + 8; BB = FA + 36; TMP = FA + 64; T = FA + 72
        e(f"s_lshl_b32 s47, s42, 6\nv_add_u32 v6, s47, v3\nv_lshlrev_b32 v6, 3, v6\nv_add_u32 v6, {XL}, v6")
        for j in range(mt): e(f"ds_read_b64 {v(ST+2*j,2)}, v6 offset:{j*128}")
        e(f"s_mul_i32 s47, s43, {TN*4}\ns_add_u32 s47, s47, {XL+1024}\nv_lshlrev_b32 v7, 4, v4\nv_add_u32 v7, s47, v7")
        for i in range(nt):
            e(f"ds_read_b128 {v(UU+4*i,4)}, v7 offset:{i*64}\nds_read_b128 {v(BB+4*i,4)}, v7 offset:{896+i*64}")
        e("s_lshl_b32 s47, s42, 6\nv_add_u32 v6, s47, v3\nv_lshlrev_b32 v6, 6, v6\nv_lshrrev_b32 v7, 1, v4\nv_lshlrev_b32 v7, 4, v7\nv_add_u32 v6, v6, v7")
        e("v_and_b32 v7, 1, v4\nv_lshlrev_b32 v5, 5, v7\nv_add_u32 v5, v5, v6")
        e("v_lshlrev_b32 v7, 10, v7\nv_add_u32 v6, v6, v7\ns_lshl_b32 s47, s43, 5\nv_add_u32 v6, s47, v6")
        e(f"s_mul_i32 s48, s25, 112\ns_mul_i32 s47, s26, 7\ns_add_u32 s48, s48, s47\ns_lshl_b32 s48, s48, 13")
        e(f"s_add_u32 s53, s48, {3*8192}")
        e("s_waitcnt lgkmcnt(0)")
        def ln(i, j, t):
            a_ = acc(i, j)
            for h_ in range(2):
                e(f"v_pk_fma_f32 {v(t+2*h_,2)}, {v(ST+2*j,2)}, {v(UU+4*i+2*h_,2)}, {v(BB+4*i+2*h_,2)} op_sel_hi:[0,1,1] neg_lo:[1,0,0] neg_hi:[1,0,0]")
            for h_ in range(2):
                e(f"v_pk_fma_f32 {v(a_+2*h_,2)}, {v(a_+2*h_,2)}, {v(ST+2*j,2)}, {v(t+2*h_,2)} op_sel:[0,1,0]")
        cnt = [0]
        def put(ta, tb, addr, soff, off):
            d = T + 4 * (cnt[0] % 4); cnt[0] += 1
            e(f"v_cvt_pk_bf16_f32 v{d}, v{ta}, v{ta+1}\nv_cvt_pk_bf16_f32 v{d+1}, v{ta+2}, v{ta+3}")
            e(f"v_cvt_pk_bf16_f32 v{d+2}, v{tb}, v{tb+1}\nv_cvt_pk_bf16_f32 v{d+3}, v{tb+2}, v{tb+3}")
            for q in range(4): e(f"v_pk_max_i16 v{d+q}, v{d+q}, 0")
            e(f"v_permlane16_swap_b32 v{d}, v{d+2}\nv_permlane16_swap_b32 v{d+1}, v{d+3}")
            e(f"buffer_store_dwordx4 {v(d,4)}, {addr}, s[12:15], {soff} offen offset:{off}{SCS}")
        XA = 139264; XR = T + 16
        e(f"s_lshl_b32 s47, s24, 10\nv_lshlrev_b32 v7, 4, v2\nv_add_u32 v7, s47, v7\nv_add_u32 v7, {XA}, v7")
        e(f"s_cmp_eq_u32 s43, 1\ns_cbranch_scc1 {L('ep1')}")
        for wn_ in range(2):
            if wn_ == 1: e(f"{L('ep1')}:\ns_add_u32 s48, s48, {4*8192}")
            single = 6 if wn_ == 0 else 0
            pairs = [(0, 1), (2, 3), (4, 5)] if wn_ == 0 else [(1, 2), (3, 4), (5, 6)]
            mine = (0, 1) if wn_ == 0 else (2, 3); give = (2, 3) if wn_ == 0 else (0, 1)
            for jj in (0, 2):
                ln(single, jj, TMP); ln(single, jj + 1, TMP + 4)
            for j in range(4):
                a_ = acc(single, j)
                e(f"v_cvt_pk_bf16_f32 v{XR+2*j}, v{a_}, v{a_+1}\nv_cvt_pk_bf16_f32 v{XR+2*j+1}, v{a_+2}, v{a_+3}")
            for q in range(8): e(f"v_pk_max_i16 v{XR+q}, v{XR+q}, 0")
            e(f"ds_write_b128 v7, {v(XR+2*give[0],4)}\ns_waitcnt lgkmcnt(0)")
            e(f"s_lshl_b32 s47, s24, 2\ns_add_u32 s47, s47, {CTL+48}\nv_mov_b32 v{TMP}, s47\nv_mov_b32 v{TMP+1}, 1\nds_write_b32 v{TMP}, v{TMP+1}")
            for pi, (ia, ib) in enumerate(pairs):
                for j in range(mt):
                    ln(ia, j, TMP); ln(ib, j, TMP + 4)
                    put(acc(ia, j), acc(ib, j), "v5", "s48", j * 1024)
                if pi < 2: e("s_add_u32 s48, s48, 8192")
            tg = f"x{wn_}"
            e(f"s_xor_b32 s47, s24, 1\ns_lshl_b32 s47, s47, 2\ns_add_u32 s47, s47, {CTL+48}\nv_mov_b32 v{TMP}, s47\ns_mov_b32 s33, 0")
            e(f"{L('xw'+tg)}:\nds_read_b32 v{TMP+1}, v{TMP}\ns_waitcnt lgkmcnt(0)\nv_readfirstlane_b32 s34, v{TMP+1}")
            e(f"s_cmp_lg_u32 s34, 0\ns_cbranch_scc1 {L('xx'+tg)}\ns_add_u32 s33, s33, 1\ns_cmp_lt_u32 s33, {SPIN_MAX}\ns_cbranch_scc1 {L('xw'+tg)}")
            e(f"{L('xx'+tg)}:")
            e(f"v_xor_b32 v7, 1024, v7\nds_read_b128 {v(TMP,4)}, v7\ns_waitcnt lgkmcnt(0)")
            for n_, j in enumerate(mine):
                d = T + 4 * (cnt[0] % 4); cnt[0] += 1
                own = XR + 2 * j; oth = TMP + 2 * n_
                a0, b0 = (own, oth) if wn_ == 0 else (oth, own)
                e(f"v_mov_b32 v{d}, v{a0}\nv_mov_b32 v{d+1}, v{a0+1}\nv_mov_b32 v{d+2}, v{b0}\nv_mov_b32 v{d+3}, v{b0+1}")
                e(f"v_permlane16_swap_b32 v{d}, v{d+2}\nv_permlane16_swap_b32 v{d+1}, v{d+3}")
                e(f"buffer_store_dwordx4 {v(d,4)}, v5, s[12:15], s53 offen offset:{j*1024}{SCS}")
            if wn_ == 0: e(f"s_branch {L('ep2')}")
        e(f"{L('ep2')}:")
        if "stf1" in OPT: k.st(12)
        e(f"s_add_u32 s35, s25, {C_F1}")
        k.signal("f1", 4, 35, 16, (16, lambda: e(f"s_lshl_b32 s33, s25, 11\ns_lshl_b32 s34, s26, 2\ns_add_u32 s33, s33, s34\ns_add_u32 s33, s33, {FL['f2']}\nv_lshlrev_b32 v6, 7, v2\nv_add_u32 v6, s33, v6")) if "nos2" in OPT else
                 (1, lambda: e(f"s_lshl_b32 s33, s25, 1\ns_lshr_b32 s34, s26, 3\ns_add_u32 s33, s33, s34\ns_lshl_b32 s33, s33, 7\ns_and_b32 s34, s26, 7\ns_lshl_b32 s34, s34, 2\ns_add_u32 s33, s33, s34\ns_add_u32 s33, s33, {FL['f2']}\nv_mov_b32 v6, s33")))
        if "stf1" in OPT: k.st(13)
    elif s2:
        e(f"s_cmp_eq_u32 s27, 0\ns_cbranch_scc1 {L('noswap')}")
        for j in range(mt):
            for r in range(8): e(f"v_swap_b32 v{acc(0,j)+r}, v{acc(2,j)+r}")
        e(f"{L('noswap')}:")
        k.srd(56, P_WS, WS_XCH, 128 * 2 * 4 * 8192)
        e("s_lshl_b32 s47, s25, 3\ns_add_u32 s47, s47, s26\ns_lshl_b32 s47, s47, 1")
        e("s_xor_b32 s48, s27, 1\ns_add_u32 s48, s48, s47\ns_lshl_b32 s49, s48, 2\ns_add_u32 s49, s49, s24\ns_lshl_b32 s49, s49, 13")
        e("s_add_u32 s52, s47, s27\ns_lshl_b32 s53, s52, 2\ns_add_u32 s53, s53, s24\ns_lshl_b32 s53, s53, 13")
        e("v_lshlrev_b32 v7, 4, v2")
        for j in range(mt):
            if j == 2: e("s_add_u32 s49, s49, 4096")
            e(f"buffer_store_dwordx4 {v(acc(2,j),4)}, v7, s[56:59], s49 offen offset:{(j%2)*2048}{SCS}")
            e(f"buffer_store_dwordx4 {v(acc(3,j),4)}, v7, s[56:59], s49 offen offset:{(j%2)*2048+1024}{SCS}")
        e("s_waitcnt vmcnt(0)")
        e(f"s_lshl_b32 s48, s48, 7\ns_lshl_b32 s54, s24, 2\ns_add_u32 s48, s48, s54\ns_add_u32 s48, s48, {FL['xch']}\nv_mov_b32 v6, s48\nv_mov_b32 v249, 1")
        e(f"s_mov_b64 exec, 1\nbuffer_store_dword v249, v6, {s(CNT,4)}, 0 offen sc1\ns_mov_b64 exec, -1")
        e(f"s_lshl_b32 s52, s52, 7\ns_add_u32 s52, s52, s54\ns_add_u32 s52, s52, {FL['xch']}\nv_mov_b32 v6, s52\ns_mov_b32 s33, 0\ns_mov_b64 exec, 1")
        e(f"{L('xpoll')}:")
        e(f"buffer_load_dword v249, v6, {s(CNT,4)}, 0 offen sc1\ns_waitcnt vmcnt(0)\nv_readfirstlane_b32 s34, v249")
        e(f"s_cmp_eq_u32 s34, 1\ns_cbranch_scc1 {L('xdone')}\ns_add_u32 s33, s33, 1\ns_cmp_lt_u32 s33, {SPIN_MAX}\ns_cbranch_scc1 {L('xpoll')}")
        e(f"{L('xdone')}:\ns_mov_b64 exec, -1")
        for j in range(mt):
            if j == 2: e("s_add_u32 s53, s53, 4096")
            e(f"buffer_load_dwordx4 {v(acc(2,j),4)}, v7, s[56:59], s53 offen offset:{(j%2)*2048}{SC}")
            e(f"buffer_load_dwordx4 {v(acc(3,j),4)}, v7, s[56:59], s53 offen offset:{(j%2)*2048+1024}{SC}")
        XT = T + 32
        e(f"v_add_u32 v6, s44, v3\nv_lshlrev_b32 v6, 11, v6\ns_lshl_b32 s47, s46, 1\nv_add_u32 v6, s47, v6\nv_add_u32 v5, v5, v6")
        for j in range(mt):
            e(f"s_waitcnt vmcnt({2*(mt-1-j) + j})")
            for q in range(4): e(f"v_pk_add_f32 {v(acc(0,j)+2*q,2)}, {v(acc(0,j)+2*q,2)}, {v(acc(2,j)+2*q,2)}")
            e(f"s_mov_b32 s48, {j*16*2048}")
            d = T + 4 * (j % 2)
            for i in range(2):
                a0 = acc(i, j); x0 = EP + 4 * j + 2 * i
                for q in range(2):
                    e(f"v_lshlrev_b32 v{XT+2*q}, 16, v{x0+q}\nv_and_b32 v{XT+2*q+1}, 0xffff0000, v{x0+q}")
                for q in range(2):
                    e(f"v_pk_fma_f32 {v(a0+2*q,2)}, {v(a0+2*q,2)}, {v(G+4*i+2*q,2)}, {v(XT+2*q,2)}")
            pack_pair(acc(0, j), acc(1, j), d)
            e(f"buffer_store_dwordx4 {v(d,4)}, v5, s[12:15], s48 offen")
    else:
        e("s_waitcnt vmcnt(0)")
        XT = T + 32
        e(f"v_add_u32 v6, s44, v3\nv_lshlrev_b32 v6, 11, v6\ns_lshl_b32 s47, s46, 1\nv_add_u32 v6, s47, v6\nv_add_u32 v5, v5, v6")
        if epi == "wo":
            k.srd(16, P_WS, WS_XG, S * D * 2); k.srd(60, P_WS, WS_STAT, 32 * S * 8)
            for r in range(4 * nt):
                e(f"v_add_f32 v{GG+r}, 1.0, v{GG+r}"); round_bf16(e, GG + r)
            e(f"s_lshl_b32 s49, s26, 1\ns_add_u32 s49, s49, s43\ns_lshl_b32 s49, s49, 14\ns_lshl_b32 s50, s44, 3\ns_add_u32 s49, s49, s50")
            e("v_lshlrev_b32 v1, 3, v3\nv_and_b32 v6, 1, v4\nv_lshlrev_b32 v6, 2, v6\nv_add_u32 v1, v1, v6")
            e("s_lshl_b32 s47, s25, 4\ns_add_u32 s47, s47, s26\ns_lshl_b32 s47, s47, 2\ns_add_u32 s47, s47, s24\ns_lshl_b32 s47, s47, 12\nv_lshlrev_b32 v7, 4, v2\nv_mov_b32 v253, v7")
        for j in range(mt):
            e(f"s_mov_b32 s48, {j*16*2048}")
            d = T + 4 * (j % 2); d2 = T + 8 + 4 * (j % 2); SM = T + 16 + 4 * (j % 2)
            for i in range(nt):
                a0 = acc(i, j); x0 = EP + 2 * (j * nt + i)
                for q in range(2):
                    e(f"v_lshlrev_b32 v{XT+2*q}, 16, v{x0+q}\nv_and_b32 v{XT+2*q+1}, 0xffff0000, v{x0+q}")
                for q in range(2):
                    e(f"v_pk_fma_f32 {v(a0+2*q,2)}, {v(a0+2*q,2)}, {v(G+4*i+2*q,2)}, {v(XT+2*q,2)}")
            ta, tb = acc(0, j), acc(1, j)
            e(f"v_cvt_pk_bf16_f32 v{d}, v{ta}, v{ta+1}\nv_cvt_pk_bf16_f32 v{d+1}, v{ta+2}, v{ta+3}")
            e(f"v_cvt_pk_bf16_f32 v{d+2}, v{tb}, v{tb+1}\nv_cvt_pk_bf16_f32 v{d+3}, v{tb+2}, v{tb+3}")
            if epi == "ffn2":
                e(f"v_permlane16_swap_b32 v{d}, v{d+2}\nv_permlane16_swap_b32 v{d+1}, v{d+3}")
                e(f"buffer_store_dwordx4 {v(d,4)}, v5, s[12:15], s48 offen")
                continue
            for q in range(2):
                e(f"v_pk_mul_f32 {v(XT+2*q,2)}, {v(ta+2*q,2)}, {v(GG+2*q,2)}\nv_pk_mul_f32 {v(XT+4+2*q,2)}, {v(tb+2*q,2)}, {v(GG+4+2*q,2)}")
            for q in range(4): e(f"v_cvt_pk_bf16_f32 v{d2+q}, v{XT+2*q}, v{XT+2*q+1}")
            e(f"v_permlane16_swap_b32 v{d2}, v{d2+2}\nv_permlane16_swap_b32 v{d2+1}, v{d2+3}")
            e(f"buffer_store_dwordx4 {v(d2,4)}, v5, s[16:19], s48 offen{SCS}")
            e(f"buffer_store_dwordx4 {v(d,4)}, v253, s[12:15], s47 offen offset:{j*1024}{SCS}")
            e(f"v_pk_add_f32 {v(SM,2)}, {v(ta,2)}, {v(ta+2,2)}\nv_pk_mul_f32 {v(SM+2,2)}, {v(ta,2)}, {v(ta,2)}")
            e(f"v_pk_add_f32 {v(SM,2)}, {v(SM,2)}, {v(tb,2)}\nv_pk_fma_f32 {v(SM+2,2)}, {v(ta+2,2)}, {v(ta+2,2)}, {v(SM+2,2)}")
            e(f"v_pk_add_f32 {v(SM,2)}, {v(SM,2)}, {v(tb+2,2)}\nv_pk_fma_f32 {v(SM+2,2)}, {v(tb,2)}, {v(tb,2)}, {v(SM+2,2)}")
            e(f"v_pk_fma_f32 {v(SM+2,2)}, {v(tb+2,2)}, {v(tb+2,2)}, {v(SM+2,2)}")
            e(f"v_add_f32 v{SM}, v{SM}, v{SM+1}\nv_add_f32 v{SM+2}, v{SM+2}, v{SM+3}")
            e(f"v_permlane16_swap_b32 v{SM}, v{SM+2}\nv_add_f32 v{SM}, v{SM}, v{SM+2}\nv_mov_b32 v{SM+1}, v{SM}")
            e(f"v_permlane32_swap_b32 v{SM}, v{SM+1}\nv_add_f32 v{SM}, v{SM}, v{SM+1}")
            e(f"s_mov_b32 exec_lo, -1\ns_mov_b32 exec_hi, 0\nbuffer_store_dword v{SM}, v1, s[60:63], s49 offen offset:{j*128}{SCS}\ns_mov_b64 exec, -1")
        if epi == "wo":
            if "stwo" in OPT: k.st(12)
            e(f"s_add_u32 s35, s25, {C_WO}")
            k.signal("wo", 4, 35, 16, (4, lambda: e(f"s_lshl_b32 s33, s25, 9\ns_lshl_b32 s34, s26, 2\ns_add_u32 s33, s33, s34\ns_add_u32 s33, s33, {FL['f1']}\nv_lshlrev_b32 v6, 7, v2\nv_add_u32 v6, s33, v6")))
            if "stwo" in OPT: k.st(13)
            UA = ACC
            for r in range(16): e(f"v_mov_b32 v{UA+r}, 0")
            for i in range(8):
                g_ = W1R + 32 + i; s_ = W1R + 40 + i
                e(f"v_add_f32 v{g_}, 1.0, v{g_}"); round_bf16(e, g_)
                for q in range(4):
                    w_ = W1R + 4 * i + q
                    e(f"v_lshlrev_b32 v6, 16, v{w_}\nv_and_b32 v7, 0xffff0000, v{w_}")
                    e(f"v_fmac_f32 v{UA+2*q}, v{g_}, v6\nv_fmac_f32 v{UA+2*q+1}, v{g_}, v7\nv_fmac_f32 v{UA+8+2*q}, v{s_}, v6\nv_fmac_f32 v{UA+8+2*q+1}, v{s_}, v7")
            UL = 139264
            e(f"v_mul_u32_u24 v5, {(65536+27)//28}, v2\nv_lshrrev_b32 v5, 16, v5\nv_mul_u32_u24 v6, 28, v5\nv_sub_u32 v6, v2, v6")
            e(f"s_lshl_b32 s32, s24, 1\nv_add_u32 v5, s32, v5\nv_mul_u32_u24 v5, 1792, v5\nv_lshlrev_b32 v6, 5, v6\nv_add_u32 v5, v5, v6\nv_add_u32 v5, {UL}, v5")
            e("v_cmp_gt_u32 vcc, 56, v2\ns_and_saveexec_b64 s[34:35], vcc")
            e(f"ds_write_b128 v5, {v(UA,4)}\nds_write_b128 v5, {v(UA+4,4)} offset:16\nds_write_b128 v5, {v(UA+8,4)} offset:896\nds_write_b128 v5, {v(UA+12,4)} offset:912")
            e("s_mov_b64 exec, s[34:35]\ns_waitcnt lgkmcnt(0)")
            e(f"v_mov_b32 v6, {L_SIG['ub']}\nv_mov_b32 v7, 1\ns_mov_b64 exec, 1")
            e("ds_add_rtn_u32 v7, v6, v7\ns_waitcnt lgkmcnt(0)\nv_readfirstlane_b32 s32, v7\ns_mov_b64 exec, -1")
            e(f"s_cmp_lg_u32 s32, 3\ns_cbranch_scc1 {L('ubx')}")
            e(f"v_lshlrev_b32 v5, 2, v2\nv_add_u32 v5, {UL}, v5")
            for m_ in range(7):
                for rr in range(8): e(f"ds_read_b32 v{UA+rr}, v5 offset:{rr*1792+m_*256}")
                e("s_waitcnt lgkmcnt(0)")
                for rr in range(1, 8): e(f"v_add_f32 v{UA}, v{UA}, v{UA+rr}")
                e(f"v_mov_b32 v{UA+16+m_}, v{UA}")
            k.srd(16, P_WS, WS_UB, 16 * 2 * DFF * 4)
            e(f"s_mul_i32 s49, s58, {2*DFF*4}\ns_mul_i32 s50, s59, 896\ns_add_u32 s49, s49, s50")
            for m_ in range(7):
                e(f"v_add_u32 v5, {64*m_}, v2\nv_cmp_le_u32 vcc, 224, v5\nv_mov_b32 v6, {DFF*4 - 896}\nv_cndmask_b32 v6, 0, v6, vcc\nv_lshl_add_u32 v5, v5, 2, v6")
                e(f"buffer_store_dword v{UA+16+m_}, v5, s[16:19], s49 offen{SCS}")
            e("s_waitcnt vmcnt(0)")
            e(f"s_add_u32 s35, s59, {C_UB}\ns_mov_b64 exec, 1")
            k.arrive("ub", 35, 16)
            e("s_mov_b64 exec, -1")
            e(f"{L('ubx')}:")
    e(f"s_branch {nxt_c}")
    e(f"{L('l')}:")
    if s2: tile_map_s2(e)
    else: tile_map(e, xr, xc)
    k.srd(4, P_WS, srcA, sizeA); k.srd(8, pB, 0, sizeB)
    e("s_sub_u32 s42, s24, 4")
    LA = 8
    lda2, ldb2 = lda * 2, ldb * 2
    blocked = epi in ("ffn2", "ffn2s")
    if blocked:
        e(f"s_mul_i32 s43, s25, {112*8192}\ns_mul_i32 s44, s42, {nAw*8*64}\ns_add_u32 s43, s43, s44")
        e("v_lshrrev_b32 v3, 3, v2\nv_lshlrev_b32 v3, 6, v3\nv_add_u32 v3, s43, v3")
        e("v_and_b32 v4, 7, v2\nv_lshrrev_b32 v5, 4, v2")
        for i in range(nAw):
            e(f"v_xor_b32 v6, {(i&1)*4}, v5\nv_xor_b32 v6, v6, v4\nv_lshrrev_b32 v7, 2, v6\nv_lshlrev_b32 v7, 13, v7\nv_and_b32 v6, 3, v6\nv_lshlrev_b32 v6, 4, v6")
            e(f"v_add3_u32 v6, v6, v7, v3\nv_add_u32 v{LA+i}, {i*8*64}, v6")
    else:
        e(f"s_lshl_b32 s43, s25, 7\ns_mul_i32 s44, s42, {nAw*8}\ns_add_u32 s43, s43, s44")
        e(f"v_lshrrev_b32 v3, 3, v2\nv_add_u32 v3, s43, v3\ns_mov_b32 s45, {lda2}\nv_mul_lo_u32 v3, s45, v3")
        e("v_and_b32 v4, 7, v2\nv_lshrrev_b32 v5, 4, v2")
        for i in range(nAw):
            e(f"v_xor_b32 v6, {(i&1)*4}, v5\nv_xor_b32 v6, v6, v4\nv_lshlrev_b32 v6, 4, v6\nv_add_u32 v6, v6, v3")
            e(f"v_add_u32 v{LA+i}, {i*8*lda2}, v6")
    ASTEP = 16384 if blocked else BK * 2
    magic = (65536 + cpr - 1) // cpr
    assert all((p * magic) >> 16 == p // cpr for p in range(nBw * 64)) and nBw * 64 == 16 * cpr
    e(f"s_mul_i32 s43, s42, {16*ldb2}\ns_mul_i32 s44, s26, {128 if perm else BN*2}\ns_add_u32 s43, s43, s44")
    for i in range(nBw):
        e(f"v_add_u32 v3, {i*64}, v2\nv_mul_u32_u24 v4, {magic}, v3\nv_lshrrev_b32 v4, 16, v4")
        e(f"v_mul_u32_u24 v5, {cpr}, v4\nv_sub_u32 v3, v3, v5")
        if hbits == 2: e("v_and_b32 v5, 2, v4\nv_lshrrev_b32 v6, 1, v4\nv_and_b32 v6, 4, v6\nv_or_b32 v5, v5, v6")
        elif hbits == 1: e("v_lshrrev_b32 v5, 2, v4\nv_and_b32 v5, 2, v5")
        else: e("v_and_b32 v5, 3, v4\nv_lshrrev_b32 v6, 1, v4\nv_and_b32 v6, 4, v6\nv_or_b32 v5, v5, v6\nv_lshlrev_b32 v5, 1, v5")
        e("v_xor_b32 v3, v3, v5")
        if perm: e("v_lshrrev_b32 v5, 3, v3\nv_and_b32 v3, 7, v3\nv_lshlrev_b32 v5, 7, v5\nv_add_u32 v3, v3, v5")
        e(f"v_lshlrev_b32 v3, 4, v3\ns_mov_b32 s45, {ldb2}\nv_mul_lo_u32 v4, s45, v4\nv_add_u32 v3, v3, v4")
        e(f"v_add_u32 v{LA+nAw+i}, s43, v3")
    e(f"s_mul_i32 s46, s42, {nAw*1024}")
    e(f"s_mul_i32 s47, s42, {nBw*1024}\ns_add_u32 s47, s47, {nA*1024}")
    def issue_x(lds_s, off_s):
        for i in range(nAw):
            e(f"s_add_u32 m0, {lds_s}, {i*1024}")
            e(f"buffer_load_dwordx4 v{LA+i}, s[4:7], {off_s} offen{asc} lds")
    def issue_w(lds_s, off_s):
        for i in range(nBw):
            e(f"s_add_u32 m0, {lds_s}, {i*1024}")
            e(f"buffer_load_dwordx4 v{LA+nAw+i}, s[8:11], {off_s} offen lds")
    if s2: e(f"s_mul_i32 s62, s27, {nk*ASTEP}\ns_mul_i32 s63, s27, {nk*BK*ldb2}")
    else: e("s_mov_b32 s62, 0\ns_mov_b32 s63, 0")
    def w_prologue():
        for st in range(NS - 1):
            e(f"s_add_u32 s52, s47, {st*SB}\ns_add_u32 s49, s63, {st*BK*ldb2}")
            issue_w("s52", "s49")
    if dep:
        base, target, kind = dep
        e(f"s_lshr_b32 s35, s25, 1\ns_add_u32 s35, s35, {base}" if kind == "rb2" else f"s_add_u32 s35, s25, {base}")
        if "wfirst" in OPT:
            w_prologue()
            k.dep_wait_loaders(tag, 35, target, None)
        else:
            e(f"s_cmp_eq_u32 s24, 4\ns_cbranch_scc1 {L('w4a')}")
            w_prologue()
            e(f"{L('w4a')}:")
            if hbar and "nowq" not in OPT:
                e(f"s_cmp_eq_u32 s24, 4\ns_cbranch_scc1 {L('nowqpf')}")
                e("s_mul_i32 s43, s2, 3\ns_add_u32 s43, s43, s24\ns_sub_u32 s43, s43, 5\ns_lshl_b32 s43, s43, 13\nv_lshlrev_b32 v3, 7, v2")
                e("buffer_load_dword v253, v3, s[8:11], s43 offen")
                e(f"{L('nowqpf')}:")
            if hbar: e("s_barrier")
            k.dep_wait_loaders(tag, 35, target, None)
            e(f"s_cmp_lg_u32 s24, 4\ns_cbranch_scc1 {L('w4b')}")
            w_prologue()
            e(f"{L('w4b')}:")
        if tag == "f1" and "stwo" in OPT: k.st(14, 4)
        if tag == "wo" and "statt" in OPT: k.st(15, 4)
        if tag == "f2" and "stf1" in OPT: k.st(14, 4)
    else:
        w_prologue()
    for st in range(NS - 1):
        e(f"s_add_u32 s51, s46, {st*SB}\ns_add_u32 s48, s62, {st*ASTEP}")
        issue_x("s51", "s48")
    e(f"s_add_u32 s48, s62, {(NS-1)*ASTEP}\ns_add_u32 s49, s63, {(NS-1)*BK*ldb2}\ns_mov_b32 s50, {(NS-1)*SB}")
    def issue():
        e("s_add_u32 s51, s50, s46\ns_add_u32 s52, s50, s47")
        issue_x("s51", "s48"); issue_w("s52", "s49")
        e(f"s_add_u32 s48, s48, {ASTEP}\ns_add_u32 s49, s49, {BK*ldb2}")
        e(f"s_add_u32 s50, s50, {SB}\ns_cmp_eq_u32 s50, {SB*NS}\ns_cselect_b32 s50, 0, s50")
    e(f"s_waitcnt vmcnt({nAw*(NS-2)})\ns_barrier")
    issue()
    e(f"s_waitcnt vmcnt({nAw*(NS-3) + nld})\ns_barrier" if NS >= 3 else "")
    issue()
    for t in range(2, NS - 1):
        e(f"s_waitcnt vmcnt({nAw*(NS-2-t) + nld*t})\ns_barrier")
        issue()
    done = max(2, NS - 1)
    e(f"s_mov_b32 s53, {nk-(NS-1)-done}")
    e(f"{L('lloop')}:")
    e(f"s_waitcnt vmcnt({nld*(NS-2)})\ns_barrier")
    issue()
    e(f"s_sub_u32 s53, s53, 1\ns_cmp_lg_u32 s53, 0\ns_cbranch_scc1 {L('lloop')}")
    nx = 0
    for t in range(NS - 1):
        e(f"s_waitcnt vmcnt({nld*(NS-2-t)+nx})\ns_barrier")
        if epi == "ffn1" and t == 0:
            nx = 32
            k.srd(56, P_WS, WS_STAT, 32 * S * 8); k.srd(60, P_WS, WS_UB, 16 * 2 * DFF * 4)
            e(f"s_cmp_ge_u32 s42, 2\ns_cbranch_scc1 {L('ubld')}")
            e(f"s_lshl_b32 s43, s42, 6\nv_add_u32 v3, s43, v2\ns_lshl_b32 s44, s25, 7\nv_add_u32 v4, s44, v3\nv_lshlrev_b32 v4, 3, v4")
            for sl in range(32):
                e(f"s_mov_b32 s45, {sl*S*8}\nbuffer_load_dwordx2 {v(32+2*sl,2)}, v4, s[56:59], s45 offen{SC}")
            e(f"s_branch {L('ldd')}")
            e(f"{L('ubld')}:")
            e(f"s_add_u32 s35, s26, {C_UB}")
            k.poll(tag + "u", 35, 16)
            e(f"s_sub_u32 s43, s42, 2\ns_lshl_b32 s43, s43, 6\nv_add_u32 v3, s43, v2")
            e(f"s_mul_i32 s44, s26, {BN*4}\nv_lshlrev_b32 v4, 3, v3\nv_add_u32 v4, s44, v4")
            for kg in range(16):
                for w_ in range(2):
                    e(f"s_mov_b32 s45, {(kg*2+w_)*DFF*4}\nbuffer_load_dwordx2 {v(32+4*kg+2*w_,2)}, v4, s[60:63], s45 offen{SC}")
            e(f"{L('ldd')}:")
    if epi == "ffn1":
        e("s_waitcnt vmcnt(0)")
        e(f"s_cmp_ge_u32 s42, 2\ns_cbranch_scc1 {L('ubred')}")
        for sl in range(1, 32): e(f"v_add_f32 v32, v32, v{32+2*sl}\nv_add_f32 v33, v33, v{33+2*sl}")
        e(f"v_mul_f32 v32, {f32(1/1024)}, v32\nv_mul_f32 v33, {f32(1/1024)}, v33")
        e(f"v_fma_f32 v33, -v32, v32, v33\nv_max_f32 v33, 0, v33\nv_add_f32 v33, {f32(1e-5)}, v33\nv_rsq_f32 v33, v33")
        e("v_mul_f32 v32, v32, v33")
        e(f"v_lshlrev_b32 v4, 3, v3\nv_add_u32 v4, {XL}, v4\nds_write_b64 v4, v[32:33]")
        e(f"s_branch {L('redd')}")
        e(f"{L('ubred')}:")
        for kg in range(1, 16):
            for q in range(4): e(f"v_add_f32 v{32+q}, v{32+q}, v{32+4*kg+q}")
        e(f"v_lshlrev_b32 v4, 3, v3\nv_add_u32 v4, {XL+1024}, v4\nv_cmp_gt_u32 vcc, 112, v3\ns_and_saveexec_b64 s[44:45], vcc")
        e(f"ds_write_b64 v4, v[32:33]\nds_write_b64 v4, v[34:35] offset:896\ns_mov_b64 exec, s[44:45]")
        e(f"{L('redd')}:")
        e("s_waitcnt lgkmcnt(0)")
    if epi != "qkv": e("s_barrier")
    e(f"s_branch {nxt_l}")

def attn_phase(k, nxt_c, nxt_l, pf):
    e = k.e
    L = lambda n: k.lab("att_" + n)
    NSL = 3; KPS = 128; SBK = KPS * 64
    HB = 2 * SBK; SB = 2 * HB
    FLAG = NSL * SB
    e(f"{L('c')}:\n{L('l')}:")
    e("s_and_b32 s36, s2, 7\ns_lshr_b32 s37, s2, 3\ns_lshl_b32 s36, s36, 2\ns_lshr_b32 s38, s37, 3\ns_add_u32 s25, s36, s38")
    e("s_and_b32 s26, s37, 7")
    e("s_and_b32 s34, s24, 3\ns_lshr_b32 s27, s24, 2")
    e("s_mov_b32 s57, s34")
    e("s_lshl_b32 s40, s25, 17")
    e(f"s_add_u32 s32, s{P_WS}, {WS_QKV:#x}\ns_addc_u32 s33, s{P_WS+1}, 0\ns_add_u32 s32, s32, s40\ns_addc_u32 s33, s33, 0")
    k.srd(4, 32, 0, S * 64); k.srd(8, 32, 32 * S * 64, S * 64); k.srd(12, 32, 64 * S * 64, S * 64)
    k.srd(16, P_WS, WS_O, S * D * 2)
    QG, KH = 57, 27
    Q = 4 + 4; KF = 24; VF = 32
    NEG = 40; O = 72; LS = 104; SEL = 112
    SS = [[116, 132], [148, 164]]
    PP = [[180, 188], [196, 204]]
    AK0, AK1, AV, AN0, AN1, DK, DV = 212, 213, 214, 215, 216, 217, 218
    HH, QL = 219, 220
    T = 221
    PFD = 230
    e(f"v_and_b32 v{QL}, 31, v2\nv_lshrrev_b32 v{HH}, 5, v2")
    e(f"s_lshl_b32 s39, s26, 8\ns_lshl_b32 s40, s{QG}, 6\ns_add_u32 s39, s39, s40")
    e(f"v_lshrrev_b32 v{T}, 2, v2\ns_lshl_b32 s40, s{QG}, 5\nv_add_u32 v{T}, s40, v{T}\nv_lshlrev_b32 v{T}, 6, v{T}")
    e(f"v_and_b32 v{T+1}, 3, v2\nv_lshrrev_b32 v{T+2}, 4, v2\nv_xor_b32 v{T+1}, v{T+1}, v{T+2}\nv_lshlrev_b32 v{T+1}, 4, v{T+1}")
    e(f"v_add_u32 v{DK}, v{T}, v{T+1}")
    e(f"v_lshlrev_b32 v{DV}, 4, v2\ns_lshl_b32 s40, s{QG}, 11\nv_add_u32 v{DV}, s40, v{DV}")
    e(f"s_lshl_b32 s41, s{QG}, 11\ns_mul_i32 s40, s{KH}, {HB}\ns_add_u32 s41, s41, s40")
    e(f"s_mul_i32 s45, s{KH}, {S*32}")
    def addr_setup():
        e(f"s_mul_i32 s40, s{KH}, {HB}")
        e(f"v_lshrrev_b32 v{T}, 2, v{QL}\nv_and_b32 v{T}, 3, v{T}\nv_xor_b32 v{T}, v{T}, v{HH}\nv_lshlrev_b32 v{T}, 4, v{T}")
        e(f"v_lshlrev_b32 v{T+1}, 6, v{QL}\nv_add_u32 v{T+3}, v{T}, v{T+1}")
        e(f"v_add_u32 v{AK0}, s40, v{T+3}\nv_xor_b32 v{AK1}, 32, v{AK0}")
        e(f"v_and_b32 v{T}, 15, v2\nv_lshrrev_b32 v{T}, 2, v{T}\nv_lshlrev_b32 v{T+1}, 2, v{HH}\nv_add_u32 v{T}, v{T}, v{T+1}\nv_lshlrev_b32 v{T}, 6, v{T}")
        e(f"v_lshrrev_b32 v{T+1}, 4, v2\nv_and_b32 v{T+1}, 1, v{T+1}\nv_lshlrev_b32 v{T+1}, 5, v{T+1}\nv_add_u32 v{T}, v{T}, v{T+1}")
        e(f"v_and_b32 v{T+1}, 3, v2\nv_lshlrev_b32 v{T+1}, 3, v{T+1}\nv_add_u32 v{T}, v{T}, v{T+1}\nv_add_u32 v{T}, {SBK}, v{T}\nv_add_u32 v{AV}, s40, v{T}")
    addr_setup()
    e(f"v_lshrrev_b32 v{T}, 4, v2\nv_lshrrev_b32 v{T+1}, 2, v2\nv_xor_b32 v{T}, v{T}, v{T+1}\nv_and_b32 v{T}, 1, v{T}")
    e(f"v_cmp_eq_u32 vcc, 0, v{T}\nv_mov_b32 v{T+1}, 0x3f803f80")
    e(f"v_cndmask_b32 v{SEL}, 0, v{T+1}, vcc")
    for r in range(1, 4): e(f"v_mov_b32 v{SEL+r}, v{SEL}")
    def zero_acc():
        for r in range(32): e(f"v_mov_b32 v{O+r}, 0")
        for r in range(8): e(f"v_mov_b32 v{LS+r}, 0")
    zero_acc()
    for r in range(8): e(f"v_mov_b32 v{VF+r}, 0")
    for qb in range(2):
        for r in range(8): e(f"v_mov_b32 v{PP[1][qb]+r}, 0")
    e(f"s_cmp_lg_u32 s24, 4\ns_cbranch_scc1 {L('nodep')}")
    if "noflags" in OPT:
        e(f"v_lshlrev_b32 v6, 10, v2\ns_lshl_b32 s35, s25, 5\nv_add_u32 v6, s35, v6\nv_mul_u32_u24 v6, {(65536 + 191) // 192}, v6\nv_lshrrev_b32 v6, 16, v6")
        e(f"v_add_u32 v6, {C_QKV}, v6\nv_lshlrev_b32 v6, 8, v6")
        k.poll("att", None, 16, lanes=3)
    else:
        e(f"s_lshl_b32 s35, s25, 8\ns_add_u32 s35, s35, {FL['att']}")
        k.wait_flags("att", 48, 35)
    e(f"{L('nodep')}:")
    e("s_barrier")
    k.st(3)
    e(f"v_mov_b32 v{T}, {FLAG}\nv_mov_b32 v{T+1}, 0\nds_write_b32 v{T}, v{T+1}")
    e(f"v_add_u32 v{T}, s39, v{QL}\nv_lshlrev_b32 v{T}, 6, v{T}\nv_lshlrev_b32 v{T+1}, 4, v{HH}\nv_add_u32 v{T}, v{T}, v{T+1}")
    for qb in range(2):
        e(f"buffer_load_dwordx4 {v(Q+8*qb,4)}, v{T}, s[4:7], 0 offen offset:{qb*2048}{SC}")
        e(f"buffer_load_dwordx4 {v(Q+8*qb+4,4)}, v{T}, s[4:7], 0 offen offset:{qb*2048+32}{SC}")
    def dma(slot_sreg):
        e(f"s_add_u32 s43, {slot_sreg}, s41\ns_add_u32 s46, s42, s45")
        e(f"s_mov_b32 m0, s43\nbuffer_load_dwordx4 v{DK}, s[8:11], s46 offen{SC} lds")
        e(f"s_add_u32 m0, s43, {SBK}\nbuffer_load_dwordx4 v{DV}, s[12:15], s46 offen{SC} lds")
        e(f"s_add_u32 s46, s46, 1024\ns_add_u32 m0, s43, 1024\nbuffer_load_dwordx4 v{DK}, s[8:11], s46 offen{SC} lds")
        e(f"s_add_u32 m0, s43, {SBK+1024}\nbuffer_load_dwordx4 v{DV}, s[12:15], s46 offen{SC} lds")
        e(f"s_add_u32 s42, s42, {SBK}")
    def kread(a0, a1, t):
        return [f"ds_read_b128 {v(KF,4)}, v{a0} offset:{t*2048}", f"ds_read_b128 {v(KF+4,4)}, v{a1} offset:{t*2048}"]
    def vread(t):
        return [f"ds_read_b64_tr_b16 {v(VF+4*m+2*hh,2)}, v{AV} offset:{t*2048+(16*m+8*hh)*64}" for m in range(2) for hh in range(2)]
    def qk(qb, dst, c):
        return [f"v_mfma_f32_32x32x16_bf16 {v(dst,16)}, {v(KF,4)}, {v(Q+8*qb,4)}, {c}",
                f"v_mfma_f32_32x32x16_bf16 {v(dst,16)}, {v(KF+4,4)}, {v(Q+8*qb+4,4)}, {v(dst,16)}"]
    def pv(qb, P):
        o, l = O + 16 * qb, LS + 4 * qb
        return [f"v_mfma_f32_32x32x16_bf16 {v(o,16)}, {v(VF,4)}, {v(P,4)}, {v(o,16)}",
                f"v_mfma_f32_16x16x32_bf16 {v(l,4)}, {v(SEL,4)}, {v(P,4)}, {v(l,4)}",
                f"v_mfma_f32_32x32x16_bf16 {v(o,16)}, {v(VF+4,4)}, {v(P+4,4)}, {v(o,16)}",
                f"v_mfma_f32_16x16x32_bf16 {v(l,4)}, {v(SEL,4)}, {v(P+4,4)}, {v(l,4)}"]
    def lane_max16(src, dst, tmp):
        e(f"v_max3_f32 v{dst}, v{src}, v{src+1}, v{src+2}")
        for r in range(3, 15, 2): e(f"v_max3_f32 v{dst}, v{dst}, v{src+r}, v{src+r+1}")
        e(f"v_max_f32 v{dst}, v{dst}, v{src+15}")
        e(f"v_mov_b32 v{tmp}, v{dst}\nv_permlane32_swap_b32 v{tmp}, v{dst}\nv_max_f32 v{dst}, v{dst}, v{tmp}")
    NST = S // 2 // KPS
    HALF = S * 32
    e("s_mov_b32 s42, 0")
    for st in range(NSL - 1):
        e(f"s_mov_b32 s44, {st*SB}")
        dma("s44")
    e(f"s_waitcnt vmcnt({4*(NSL-2)})\ns_barrier")
    e(f"v_xor_b32 v{T+4}, 32, v{T+3}")
    for l in kread(T + 3, T + 4, 0): e(l)
    e("s_waitcnt lgkmcnt(0)")
    for qb in range(2):
        for l in qk(qb, SS[1][qb], "0"): e(l)
    for l in kread(AK0, AK1, 0): e(l)
    for qb in range(2):
        lane_max16(SS[1][qb], T, T + 1)
        e(f"v_add_f32 v{T}, {f32(40.0)}, v{T}")
        for r in range(16): e(f"v_sub_f32 v{NEG+16*qb+r}, 0, v{T}")
    e("s_waitcnt lgkmcnt(0)")
    for qb in range(2):
        for l in qk(qb, SS[0][qb], v(NEG + 16 * qb, 16)): e(l)
    for l in kread(AK0, AK1, 1): e(l)
    e(f"v_add_u32 v{AN0}, {SB}, v{AK0}\nv_add_u32 v{AN1}, {SB}, v{AK1}")
    e(f"s_mov_b32 s47, 1\ns_mov_b32 s48, {SB}\ns_mov_b32 s49, {-(NSL-1)*SB & 0xffffffff:#x}")
    e(f"s_mov_b32 s50, {(NSL-1)*SB}")
    e("s_waitcnt lgkmcnt(0)")
    e(f"s_mov_b32 s44, {NST}")
    if "prio1" in OPT: e(f"s_cmp_lt_u32 s24, 4\ns_cbranch_scc1 {L('noprio')}\ns_setprio 1\n{L('noprio')}:")
    if "prio0" in OPT: e(f"s_cmp_ge_u32 s24, 4\ns_cbranch_scc1 {L('noprio')}\ns_setprio 1\n{L('noprio')}:")
    e(f"{L('floop')}:")
    for t in range(4):
        par = t & 1
        if t == 2:
            e(f"s_cmp_ge_u32 s42, {HALF}\ns_cbranch_scc1 {L('nodma')}")
            e(f"s_waitcnt vmcnt({4*(NSL-3)})\ns_barrier")
            dma("s50")
            e(f"s_add_u32 s50, s50, {SB}\ns_cmp_eq_u32 s50, {NSL*SB}\ns_cselect_b32 s50, 0, s50")
            if pf:
                e(f"s_cmp_lg_u32 s44, {PFSTAGE}\ns_cbranch_scc1 {L('cont')}")
                e("s_lshl_b32 s56, s2, 3\ns_add_u32 s56, s56, s24")
                e(f"s_mov_b32 s60, s{P_WO}\ns_mov_b32 s61, s{P_WO+1}\ns_mov_b32 s62, {D*D*2}\ns_mov_b32 s63, 0x20000\ns_mov_b32 s52, s56")
                e(f"s_cmp_lt_u32 s56, 256\ns_cbranch_scc1 {L('pfgo')}")
                e(f"s_mov_b32 s60, s{P_W1}\ns_mov_b32 s61, s{P_W1+1}\ns_mov_b32 s62, {D*DFF*2}\ns_mov_b32 s63, 0x20000\ns_sub_u32 s52, s56, 256")
                e(f"s_cmp_lt_u32 s56, 1152\ns_cbranch_scc1 {L('pfgo')}")
                e(f"s_mov_b32 s60, s{P_W2}\ns_mov_b32 s61, s{P_W2+1}\ns_mov_b32 s62, {D*DFF*2}\ns_mov_b32 s63, 0x20000\ns_sub_u32 s52, s56, 1152")
                e(f"{L('pfgo')}:")
                e(f"s_lshl_b32 s52, s52, 13\nv_lshlrev_b32 v{T}, 7, v2\nbuffer_load_dword v{PFD}, v{T}, s[60:63], s52 offen")
                k.code_touch("a", k.lab("att_cont"), k.lab("f1_l"), 24, 8, 1)
            e(f"s_branch {L('cont')}")
            e(f"{L('nodma')}:")
            e("s_waitcnt vmcnt(0)\ns_barrier")
            e(f"{L('cont')}:")
        kr = kread(AN0, AN1, (t + 2) % 4) if t >= 2 else kread(AK0, AK1, t + 2)
        vr = vread(t)
        m = []; p = []; E = []; C = []
        for qb in range(2):
            cur = SS[par][qb]; nxt = SS[1 - par][qb]; pc = PP[par][qb]; pp = PP[1 - par][qb]
            m.append(qk(qb, nxt, v(NEG + 16 * qb, 16))); p.append(pv(qb, pp))
            E.append([f"v_exp_f32 v{cur+r}, v{cur+r}" for r in range(16)])
            C.append([f"v_cvt_pk_bf16_f32 v{pc+r}, v{cur+2*r}, v{cur+2*r+1}" for r in range(8)])
        E0, E1 = E; C0, C1 = C
        seq = ["s_waitcnt lgkmcnt(4)",
               m[0][0], E0[0], E0[1], E0[2], E0[3],
               m[1][0], E0[4], E0[5], C0[0], C0[1], E0[6],
               m[0][1], E0[7], C0[2], E0[8], E0[9], C0[3],
               m[1][1], kr[0], kr[1], E0[10], E0[11], E0[12], E0[13], "s_waitcnt lgkmcnt(2)",
               p[0][0], C0[4], C0[5], E0[14], E0[15], C0[6], C0[7],
               p[0][1], E1[0], E1[1],
               p[1][0], E1[2], E1[3], C1[0], C1[1], E1[4],
               p[1][1], E1[5], E1[6],
               p[0][2], E1[7], C1[2], E1[8], E1[9], C1[3],
               p[0][3], E1[10], E1[11],
               p[1][2], vr[0], vr[1], vr[2], vr[3], E1[12], E1[13], C1[4], C1[5], E1[14],
               p[1][3], E1[15], C1[6], C1[7]]
        for l in seq: e(l)
        if t == 3:
            e(f"v_sub_u32 v{T}, v{AN0}, v{AK0}\nv_add_u32 v{AV}, v{AV}, v{T}\nv_mov_b32 v{AK0}, v{AN0}\nv_mov_b32 v{AK1}, v{AN1}")
            e(f"s_add_u32 s47, s47, 1\ns_cmp_eq_u32 s47, {NSL}\ns_cselect_b32 s51, s49, s48\ns_cselect_b32 s47, 0, s47")
            e(f"v_add_u32 v{AN0}, s51, v{AN0}\nv_add_u32 v{AN1}, s51, v{AN1}")
    e(f"s_sub_u32 s44, s44, 1\ns_cmp_lg_u32 s44, 0\ns_cbranch_scc1 {L('floop')}")
    e("s_waitcnt lgkmcnt(0)")
    for qb in range(2):
        for l in pv(qb, PP[1][qb]): e(l)
    if "prio1" in OPT or "prio0" in OPT: e("s_setprio 0")
    k.st(4)
    def merge(safe, M=None):
        e("s_barrier")
        e(f"s_cmp_eq_u32 s{KH}, 0\ns_cbranch_scc1 {L('keep0' + safe)}")
        for r in range(16): e(f"v_swap_b32 v{O+r}, v{O+16+r}")
        e(f"v_swap_b32 v{LS}, v{LS+4}")
        if M is not None: e(f"v_swap_b32 v{M}, v{M+1}")
        e(f"{L('keep0' + safe)}:")
        e(f"s_mul_i32 s52, s24, {5*1024+256}\nv_lshlrev_b32 v{T}, 4, v2\nv_add_u32 v{T}, s52, v{T}")
        for g in range(4): e(f"ds_write_b128 v{T}, {v(O+16+4*g,4)} offset:{g*1024}")
        e(f"v_lshlrev_b32 v{T+1}, 2, v2\nv_add_u32 v{T+1}, s52, v{T+1}")
        e(f"ds_write_b32 v{T+1}, v{LS+4} offset:4096")
        if M is not None: e(f"ds_write_b32 v{T+1}, v{M+1} offset:{4096+256}")
        e("s_waitcnt lgkmcnt(0)\ns_barrier")
        e(f"s_xor_b32 s52, s24, 4\ns_mul_i32 s52, s52, {5*1024+256}\nv_lshlrev_b32 v{T}, 4, v2\nv_add_u32 v{T}, s52, v{T}")
        for g in range(4): e(f"ds_read_b128 {v(O+16+4*g,4)}, v{T} offset:{g*1024}")
        e(f"v_lshlrev_b32 v{T+1}, 2, v2\nv_add_u32 v{T+1}, s52, v{T+1}")
        e(f"ds_read_b32 v{LS+4}, v{T+1} offset:4096")
        if M is not None: e(f"ds_read_b32 v{M+1}, v{T+1} offset:{4096+256}")
        e("s_waitcnt lgkmcnt(0)")
        if M is None:
            for r in range(16): e(f"v_add_f32 v{O+r}, v{O+r}, v{O+16+r}")
            e(f"v_add_f32 v{LS}, v{LS}, v{LS+4}")
        else:
            e(f"v_max_f32 v{T}, v{M}, v{M+1}\nv_sub_f32 v{T+1}, v{M}, v{T}\nv_sub_f32 v{T+2}, v{M+1}, v{T}\nv_exp_f32 v{T+1}, v{T+1}\nv_exp_f32 v{T+2}, v{T+2}")
            for r in range(16): e(f"v_mul_f32 v{O+r}, v{O+r}, v{T+1}\nv_fmac_f32 v{O+r}, v{O+16+r}, v{T+2}")
            e(f"v_mul_f32 v{LS}, v{LS}, v{T+1}\nv_fmac_f32 v{LS}, v{LS+4}, v{T+2}")
        e(f"v_rcp_f32 v{T}, v{LS}")
        for r in range(16): e(f"v_mul_f32 v{O+r}, v{O+r}, v{T}")
    merge("f")
    e(f"v_mov_b32 v{T+1}, {f32(2.0**120)}")
    e(f"v_cmp_nlt_f32 vcc, v{LS}, v{T+1}")
    e("s_mov_b64 s[46:47], vcc")
    e(f"v_add_f32 v{T+2}, abs(v{O}), abs(v{O+1})")
    for r in range(2, 16): e(f"v_add_f32 v{T+2}, v{T+2}, abs(v{O+r})")
    e(f"v_mov_b32 v{T+1}, 0x7f800000\nv_cmp_nlt_f32 vcc, v{T+2}, v{T+1}\ns_or_b64 s[46:47], s[46:47], vcc")
    e(f"s_cmp_eq_u64 s[46:47], 0\ns_cbranch_scc1 {L('okwave')}")
    e(f"v_mov_b32 v{T+1}, {FLAG}\nv_mov_b32 v{T+2}, 1\nds_write_b32 v{T+1}, v{T+2}")
    e(f"{L('okwave')}:")
    e("s_waitcnt lgkmcnt(0)\ns_barrier")
    e(f"v_mov_b32 v{T+1}, {FLAG}\nds_read_b32 v{T+2}, v{T+1}\ns_waitcnt lgkmcnt(0)\nv_readfirstlane_b32 s46, v{T+2}")
    e(f"s_cmp_lg_u32 s46, 0\ns_cbranch_scc1 {L('safe')}")
    e(f"{L('store')}:")
    if "statt" in OPT: k.st(12)
    P = PP[0][0]
    for r in range(8): e(f"v_cvt_pk_bf16_f32 v{P+r}, v{O+2*r}, v{O+2*r+1}")
    for b in (0, 4):
        e(f"v_permlane32_swap_b32 v{P+b}, v{P+b+2}\nv_permlane32_swap_b32 v{P+b+1}, v{P+b+3}")
    for r in range(4): e(f"v_permlane16_swap_b32 v{P+r}, v{P+4+r}")
    e(f"s_lshl_b32 s40, s{KH}, 5\ns_add_u32 s40, s40, s39")
    e(f"v_and_b32 v{T}, 15, v2\nv_add_u32 v{T}, s40, v{T}\nv_lshlrev_b32 v{T}, 11, v{T}")
    e(f"v_lshrrev_b32 v{T+1}, 4, v2\nv_and_b32 v{T+2}, 1, v{T+1}\nv_lshlrev_b32 v{T+2}, 5, v{T+2}\nv_lshrrev_b32 v{T+1}, 1, v{T+1}\nv_lshlrev_b32 v{T+1}, 4, v{T+1}")
    e(f"v_add_u32 v{T}, v{T}, v{T+1}\nv_add_u32 v{T}, v{T}, v{T+2}")
    e(f"s_lshl_b32 s40, s25, 6\ns_add_u32 s41, s40, {16*2048}")
    e(f"buffer_store_dwordx4 {v(P,4)}, v{T}, s[16:19], s40 offen{SCS}\nbuffer_store_dwordx4 {v(P+4,4)}, v{T}, s[16:19], s41 offen{SCS}")
    if "statt" in OPT: k.st(13)
    e(f"s_add_u32 s35, s26, {C_ATT}")
    k.signal("att", 8, 35, 32, (2, lambda: e(f"s_lshl_b32 s33, s26, 8\ns_lshl_b32 s34, s25, 2\ns_add_u32 s33, s33, s34\ns_add_u32 s33, s33, {FL['wo']}\nv_lshlrev_b32 v6, 7, v2\nv_add_u32 v6, s33, v6")))
    if "statt" in OPT: k.st(14, 7)
    e(f"s_cmp_ge_u32 s24, 4\ns_cbranch_scc1 {nxt_l}\ns_branch {nxt_c}")
    e(f"{L('safe')}:")
    e("s_waitcnt vmcnt(0)\ns_barrier")
    M = NEG; AL = NEG + 2
    SA = SS[0][0]; P0 = PP[0][0]
    zero_acc()
    e(f"v_mov_b32 v{M}, {f32(-3.0e38)}\nv_mov_b32 v{M+1}, {f32(-3.0e38)}")
    addr_setup()
    e("s_mov_b32 s42, 0")
    e(f"s_mov_b32 s44, {NST}")
    e(f"{L('sloop')}:")
    e("s_barrier")
    e("s_mov_b32 s53, 0")
    dma("s53")
    e("s_waitcnt vmcnt(0)\ns_barrier")
    for t in range(4):
        for l in kread(AK0, AK1, t) + vread(t): e(l)
        e("s_waitcnt lgkmcnt(0)")
        for qb in range(2):
            for l in qk(qb, SA, "0"): e(l)
            lane_max16(SA, T, T + 1)
            e(f"v_max_f32 v{T}, v{T}, v{M+qb}\nv_sub_f32 v{AL}, v{M+qb}, v{T}\nv_exp_f32 v{AL}, v{AL}\nv_mov_b32 v{M+qb}, v{T}")
            for r in range(16): e(f"v_sub_f32 v{SA+r}, v{SA+r}, v{T}\nv_exp_f32 v{SA+r}, v{SA+r}")
            for r in range(16): e(f"v_mul_f32 v{O+16*qb+r}, v{O+16*qb+r}, v{AL}")
            for r in range(4): e(f"v_mul_f32 v{LS+4*qb+r}, v{LS+4*qb+r}, v{AL}")
            for r in range(8): e(f"v_cvt_pk_bf16_f32 v{P0+r}, v{SA+2*r}, v{SA+2*r+1}")
            for l in pv(qb, P0): e(l)
    e(f"s_sub_u32 s44, s44, 1\ns_cmp_lg_u32 s44, 0\ns_cbranch_scc1 {L('sloop')}")
    merge("s", M)
    e("s_barrier")
    e(f"s_branch {L('store')}")


def h_phase(k):
    e = k.e; L = lambda n: k.lab("h_" + n)
    HL = 125952
    e("s_lshl_b32 s36, s2, 3\ns_lshl_b32 s37, s24, 1\ns_add_u32 s36, s36, s37")
    e("s_lshl_b32 s36, s36, 11\nv_lshlrev_b32 v3, 4, v2\nv_add_u32 v3, s36, v3")
    k.srd(12, P_X, 0, S * D * 2); k.srd(16, P_WS, WS_H, S * D * 2)
    k.srd(20, P_WS, WS_MODP, 4 * 6144 * 4); k.srd(56, P_WS, WS_MODF, 6144 * 4)
    e("v_lshlrev_b32 v5, 5, v0")
    for p in range(4):
        e(f"s_mov_b32 s37, {p*24576}")
        e(f"buffer_load_dwordx4 {v(64+8*p,4)}, v5, s[20:23], s37 offen\nbuffer_load_dwordx4 {v(68+8*p,4)}, v5, s[20:23], s37 offen offset:16")
    for r in range(2):
        for hf in range(2):
            e(f"buffer_load_dwordx4 {v(8+8*r+4*hf,4)}, v3, s[12:15], 0 offen offset:{r*2048+hf*1024}")
    e("s_lshl_b32 s38, s2, 10\nv_lshlrev_b32 v6, 2, v0\nv_add_u32 v4, s38, v6")
    for p in range(4):
        e(f"s_mov_b32 s37, {p*24576}\nbuffer_load_dword v{96+p}, v4, s[20:23], s37 offen")
    nt_ = k.code_touch("h", k.lab("qkv_c"), k.lab("wo_c"), 24, 4, 1)
    e(f"s_waitcnt vmcnt({8+nt_})")
    for j in range(8):
        e(f"v_add_f32 v{64+j}, v{64+j}, v{72+j}\nv_add_f32 v{80+j}, v{80+j}, v{88+j}\nv_add_f32 v{64+j}, v{64+j}, v{80+j}")
        round_bf16(e, 64 + j)
    e("v_cmp_le_u32 vcc, 128, v0")
    for j in range(8):
        e(f"v_add_f32 v72, 1.0, v{64+j}")
        round_bf16(e, 72)
        e(f"v_cndmask_b32 v{64+j}, v{64+j}, v72, vcc")
    e(f"v_add_u32 v5, {HL}, v5\nds_write_b128 v5, v[64:67]\nds_write_b128 v5, v[68:71] offset:16")
    e("s_waitcnt lgkmcnt(0)\ns_barrier")
    e(f"v_lshlrev_b32 v5, 5, v2\nv_add_u32 v5, {HL}, v5")
    for hf in range(2):
        for q in range(2):
            e(f"ds_read_b128 {v(32+8*hf+4*q,4)}, v5 offset:{hf*2048+q*16}")
            e(f"ds_read_b128 {v(48+8*hf+4*q,4)}, v5 offset:{4096+hf*2048+q*16}")
    e(f"s_waitcnt vmcnt({4+nt_})")
    X = 64
    for r in range(2):
        for j in range(8):
            src = 8 + 8 * r + j
            e(f"v_lshlrev_b32 v{X+16*r+2*j}, 16, v{src}\nv_and_b32 v{X+16*r+2*j+1}, 0xffff0000, v{src}")
    for r in range(2): e(f"v_add_f32 v{104+r}, v{X+16*r}, v{X+16*r+1}")
    for j in range(2, 16):
        for r in range(2): e(f"v_add_f32 v{104+r}, v{104+r}, v{X+16*r+j}")
    wave_sum(e, [104, 105], 106, [0, 1, 2, 3, 4, 5])
    for r in range(2): e(f"v_mul_f32 v{104+r}, {f32(1/1024)}, v{104+r}")
    for j in range(16):
        for r in range(2): e(f"v_sub_f32 v{X+16*r+j}, v{X+16*r+j}, v{104+r}")
    for r in range(2): e(f"v_mul_f32 v{107+r}, v{X+16*r}, v{X+16*r}")
    for j in range(1, 16):
        for r in range(2): e(f"v_fmac_f32 v{107+r}, v{X+16*r+j}, v{X+16*r+j}")
    wave_sum(e, [107, 108], 106, [0, 1, 2, 3, 4, 5])
    for r in range(2):
        e(f"v_mov_b32 v{109+r}, {f32(1e-5)}\nv_fmac_f32 v{109+r}, {f32(1/1024)}, v{107+r}\nv_rsq_f32 v{109+r}, v{109+r}")
    e("s_waitcnt lgkmcnt(0)")
    for r in range(2):
        for j in range(16):
            e(f"v_mul_f32 v{X+16*r+j}, v{X+16*r+j}, v{109+r}\nv_fma_f32 v{X+16*r+j}, v{X+16*r+j}, v{48+j}, v{32+j}")
        for j in range(8): e(f"v_cvt_pk_bf16_f32 v{112+8*r+j}, v{X+16*r+2*j}, v{X+16*r+2*j+1}")
        e(f"buffer_store_dwordx4 {v(112+8*r,4)}, v3, s[16:19], 0 offen offset:{r*2048}{SCS}")
        e(f"buffer_store_dwordx4 {v(116+8*r,4)}, v3, s[16:19], 0 offen offset:{r*2048+1024}{SCS}")
    e("s_waitcnt vmcnt(4)")
    e("v_add_f32 v96, v96, v97\nv_add_f32 v98, v98, v99\nv_add_f32 v96, v96, v98")
    round_bf16(e, 96)
    e(f"s_cmp_ge_u32 s2, 24\ns_cbranch_scc1 {L('nofin')}")
    e(f"buffer_store_dword v96, v4, s[56:59], 0 offen{SCS}")
    e(f"{L('nofin')}:")
    e(f"s_lshr_b32 s35, s2, 4\ns_add_u32 s35, s35, {C_H}")
    def offs():
        e(f"s_lshr_b32 s33, s2, 4\ns_lshl_b32 s33, s33, 9\ns_and_b32 s34, s2, 15\ns_lshl_b32 s34, s34, 2\ns_add_u32 s33, s33, s34\ns_add_u32 s33, s33, {FL['qkv']}")
        e("v_lshlrev_b32 v6, 7, v2\nv_add_u32 v6, s33, v6")
    k.signal("h", 4, 35, 16, (4, offs))

def k_main():
    k = PK("main_kernel", 256, 512, LDS_TOTAL + 16384, 256, 100); e = k.e
    L = k.lab
    e(f"s_cmp_ge_u32 s2, 256\ns_cbranch_scc1 {L('end')}")
    e(f"s_load_dwordx4 s[68:71], s[0:1], {KA_X}\ns_load_dwordx4 s[72:75], s[0:1], {KA_W1}\ns_load_dwordx2 s[76:77], s[0:1], {KA_WO}")
    e(f"s_load_dwordx2 s[78:79], s[0:1], {KA_OUT}\ns_load_dwordx2 s[66:67], s[0:1], {KA_WS}")
    e("v_lshrrev_b32 v1, 6, v0\nv_and_b32 v2, 63, v0\nv_readfirstlane_b32 s24, v1")
    e(f"s_cmp_lg_u32 s24, 0\ns_cbranch_scc1 {L('noinit')}")
    e(f"v_lshlrev_b32 v3, 2, v2\nv_add_u32 v3, {CTL}, v3\nv_mov_b32 v4, 0\nds_write_b32 v3, v4\ns_waitcnt lgkmcnt(0)")
    e(f"{L('noinit')}:")
    e("s_waitcnt lgkmcnt(0)")
    k.srd(CNT, P_WS, WS_CNT, CNT_BYTES)
    k.st(0)
    e(f"s_cmp_ge_u32 s24, 4\ns_cbranch_scc1 {L('qkv_l')}")
    hin = "hsep" not in OPT
    if hin: h_phase(k)
    gemm_phase(k, "qkv", 1024, 1024, 3072, 192, WS_H, S * D * 2, P_WQKV, D * 3 * D * 2, "qkv", 8, 4, 3, L("att_c"), L("att_l"), (C_H, 16, "rb") if hin else None, (1, 2), hbar=hin)
    pf = [(P_WO, D * D * 2), (P_W1, D * DFF * 2), (P_W2, D * DFF * 2)] if "nopf" not in OPT else []
    attn_phase(k, L("wo_c"), L("wo_l"), pf)
    gemm_phase(k, "wo", 1024, 1024, 1024, 64, WS_O, S * D * 2, P_WO, D * D * 2, "wo", 4, 8, 4, L("f1_c"), L("f1_l"), (C_ATT, 32, "rb2"), (5, 6))
    gemm_phase(k, "f1", 1024, 1024, DFF, 224, WS_XG, S * D * 2, P_W1, D * DFF * 2, "ffn1", 8, 4, 3, L("f2_c"), L("f2_l"), (C_WO, 16, "rb"), (7, 8))
    if "nos2" in OPT:
        gemm_phase(k, "f2", DFF, DFF, 1024, 64, WS_F1, S * DFF * 2, P_W2, DFF * D * 2, "ffn2", 4, 8, 4, L("fin"), L("end"), (C_F1, 16, "rb"), (9, 10))
    else:
        gemm_phase(k, "f2", DFF, DFF, 1024, 128, WS_F1, S * DFF * 2, P_W2, DFF * D * 2, "ffn2s", 4, 8, 4, L("fin"), L("end"), (C_F1, 8, "rb"), (9, 10))
    e(f"{L('fin')}:")
    if DIAG:
        e("s_waitcnt vmcnt(0)")
        k.st(11)
        e(f"s_cmp_lg_u32 s24, 0\ns_cbranch_scc1 {L('end')}")
        k.srd(12, P_WS, WS_STAMP + 8 * 512 * 16, 256 * 64)
        e(f"v_lshlrev_b32 v3, 2, v2\nv_add_u32 v4, {L_STAMP}, v3\nds_read_b32 v5, v4\ns_lshl_b32 s32, s2, 6\nv_add_u32 v3, s32, v3\ns_waitcnt lgkmcnt(0)")
        e("s_mov_b64 exec, 0xffff\nbuffer_store_dword v5, v3, s[12:15], 0 offen")
    k.finish()
    return k

def k_mod2():
    k = gen.k_mod()
    lines = k.a.lines
    i = next(n for n, l in enumerate(lines) if "buffer_load_ushort" in l)
    ins = Asm()
    ins.e(f"s_cmp_ge_u32 s2, {-(-CNT_BYTES // 4096)}\ns_cbranch_scc1 mod_kernel_nozero")
    ins.e(f"s_add_u32 s44, s8, {WS_CNT:#x}\ns_addc_u32 s45, s9, 0\ns_mov_b32 s46, {CNT_BYTES}\ns_mov_b32 s47, 0x20000")
    ins.e("s_lshl_b32 s48, s2, 12\nv_lshlrev_b32 v58, 4, v0\nv_mov_b32 v60, 0\nv_mov_b32 v61, 0\nv_mov_b32 v62, 0\nv_mov_b32 v63, 0\nbuffer_store_dwordx4 v[60:63], v58, s[44:47], s48 offen")
    ins.e("mod_kernel_nozero:")
    k.a.lines = lines[:i] + ins.lines + lines[i:]
    return k

def build():
    if "hsep" in OPT: return [k_mod2(), gen.k_h(True), k_main()]
    return [k_mod2(), k_main()]

if __name__ == "__main__":
    for a_ in list(sys.argv):
        if a_.startswith("--opt="): OPT = set(a_[6:].split(",")); sys.argv.remove(a_)
        if a_.startswith("--pfstage="): PFSTAGE = int(a_[10:]); sys.argv.remove(a_)
        if a_.startswith("--scs="): SCS = " " + a_[6:].replace("+", " "); sys.argv.remove(a_)
        if a_.startswith("--l2d="): L2D = int(a_[6:]); sys.argv.remove(a_)
        if a_.startswith("--sleep="): SLEEP = int(a_[8:]); sys.argv.remove(a_)
    if "--diag" in sys.argv: DIAG = True; gen.DIAG = True; sys.argv.remove("--diag")
    txt = emit(build(), header())
    out = sys.argv[1]
    open(out, "w").write(txt)
    print("wrote", out, len(txt), "bytes")
```

```python
import sys
from asmlib import *
import gen
from gen import (NAME, S, D, DFF, H, KA_X, KA_WQKV, KA_WO, KA_BX, KA_W1, KA_W2, KA_C, KA_WMOD, KA_OUT, KA_DBG, KA_WS,
                 WS_MODP, WS_MODF, WS_H, WS_QKV, WS_O, WS_X1, WS_F1, WS_XG, WS_STAT, WS_UB, WS_STAMP, LOG2E, f32, Kern,
                 wave_sum, round_bf16, interleave, header, emit)

WS_CNT = 0x2f00000
C_QKV, C_ATT, C_WO, C_UB, C_F1, C_H = 0, 16, 24, 40, 56, 72
NCNT = 88
FL_BASE = NCNT * 256 + 1536
FL_BASE = (FL_BASE + 255) // 256 * 256
FL = {"qkv": FL_BASE, "att": FL_BASE + 256 * 128, "wo": FL_BASE + 256 * 128 + 256 * 256, "f1": FL_BASE + 256 * 256 + 2 * 256 * 128, "f2": FL_BASE + 256 * 256 + 3 * 256 * 128}
FL["xch"] = FL_BASE + 256 * 256 + 4 * 256 * 128
CNT_BYTES = FL["xch"] + 256 * 128
WS_XCH = 0x3800000
OPT = set()
DIAG = False
SC = " sc1"
SCS = " sc1"
P_WS, P_X, P_WQKV, P_W1, P_W2, P_WO, P_OUT = 66, 68, 70, 72, 74, 76, 78
CNT = 28
CTL = 138240
L_SIG = {"qkv": CTL, "att": CTL + 4, "wo": CTL + 8, "ub": CTL + 12, "f1": CTL + 16, "h": CTL + 20}
L_DEP = {"wo": CTL + 32, "f1": CTL + 36, "f2": CTL + 40, "qkv": CTL + 44}
L_STAMP = CTL + 64
LDS_TOTAL = CTL + 256
SPIN_MAX = 400000
SLEEP = 2
PFSTAGE = 7
L2D = 8

def exec_mask(n):
    if n < 32: return f"s_mov_b64 exec, {(1 << n) - 1:#x}"
    return f"s_mov_b32 exec_lo, -1\ns_mov_b32 exec_hi, {(1 << (n - 32)) - 1:#x}"

class PK(Kern):
    def st(self, i, wave=0):
        if not DIAG: return
        e = self.e; n = self.lab(f"st{i}")
        e(f"s_cmp_lg_u32 s24, {wave}\ns_cbranch_scc1 {n}\n{'s_memtime' if 'cyc' in OPT else 's_memrealtime'} s[98:99]\ns_waitcnt lgkmcnt(0)\nv_mov_b32 v254, s98\nv_mov_b32 v255, {L_STAMP+4*i}\nds_write_b32 v255, v254\ns_waitcnt lgkmcnt(0)\n{n}:")
    def code_touch(self, tag, frm, to, part_sreg, nparts, per):
        if "nocode" in OPT: return 0
        e = self.e; here = self.lab("pc" + tag)
        e(f"s_getpc_b64 s[90:91]\n{here}:\ns_add_u32 s90, s90, {frm}-{here}\ns_addc_u32 s91, s91, 0")
        e(f"s_mul_i32 s92, s{part_sreg}, {per*8192}\nv_lshlrev_b32 v252, 7, v2\nv_add_u32 v252, s92, v252")
        for i in range(per):
            if i: e("v_add_u32 v252, 8192, v252")
            e(f"v_min_u32 v251, {to}-{frm}-4, v252\nglobal_load_dword v253, v251, s[90:91]")
        return per
    def poll(self, tag, cnt_sreg, target, lanes=1):
        e = self.e; L = self.lab
        if cnt_sreg is not None: e(f"s_lshl_b32 s32, s{cnt_sreg}, 8\nv_mov_b32 v6, s32")
        e(f"s_mov_b32 s33, 0\ns_mov_b64 exec, {(1 << lanes) - 1}")
        e(f"{L('poll'+tag)}:")
        e(f"buffer_load_dword v7, v6, {s(CNT,4)}, 0 offen offset:{0 if 'direct' in OPT else 128} sc1\ns_waitcnt vmcnt(0)")
        e(f"v_cmp_gt_u32 vcc, {target}, v7\ns_cmp_eq_u64 vcc, 0\ns_cbranch_scc1 {L('pollx'+tag)}")
        e(f"s_add_u32 s33, s33, 1\ns_cmp_ge_u32 s33, {SPIN_MAX}\ns_cbranch_scc1 {L('pollx'+tag)}")
        e(f"s_sleep {SLEEP}\ns_branch {L('poll'+tag)}")
        e(f"{L('pollx'+tag)}:\ns_mov_b64 exec, -1")
    def dep_wait_loaders(self, tag, cnt_sreg, target, first_wave_cond):
        e = self.e; L = self.lab
        e(f"s_cmp_lg_u32 s24, 4\ns_cbranch_scc1 {L('dw'+tag)}")
        if "noflags" in OPT: self.poll(tag, cnt_sreg, target)
        else:
            if tag == "f2" and "nos2" not in OPT:
                e(f"s_lshl_b32 s34, s25, 1\ns_add_u32 s34, s34, s27\ns_lshl_b32 s34, s34, 7\ns_add_u32 s34, s34, {FL[tag]}")
            elif tag == "f2":
                e(f"s_lshl_b32 s34, s25, 4\ns_add_u32 s34, s34, s26\ns_lshl_b32 s34, s34, 7\ns_add_u32 s34, s34, {FL[tag]}")
            elif tag == "wo":
                e(f"s_lshr_b32 s34, s25, 1\ns_lshl_b32 s34, s34, 1\ns_lshr_b32 s33, s26, 3\ns_add_u32 s34, s34, s33\ns_lshl_b32 s34, s34, 7\ns_add_u32 s34, s34, {FL[tag]}")
            else:
                e(f"s_lshl_b32 s34, s25, 2\ns_lshr_b32 s33, s26, 2\ns_add_u32 s34, s34, s33\ns_lshl_b32 s34, s34, 7\ns_add_u32 s34, s34, {FL[tag]}")
            self.wait_flags(tag, target, 34)
        e(f"v_mov_b32 v6, {L_DEP[tag]}\nv_mov_b32 v7, 1\nds_write_b32 v6, v7\ns_waitcnt lgkmcnt(0)\ns_branch {L('dwx'+tag)}")
        e(f"{L('dw'+tag)}:")
        e(f"v_mov_b32 v6, {L_DEP[tag]}\ns_mov_b32 s33, 0")
        e(f"{L('dwl'+tag)}:")
        e(f"ds_read_b32 v7, v6\ns_waitcnt lgkmcnt(0)\nv_readfirstlane_b32 s34, v7")
        e(f"s_cmp_lg_u32 s34, 0\ns_cbranch_scc1 {L('dwx'+tag)}")
        e(f"s_add_u32 s33, s33, 1\ns_cmp_ge_u32 s33, {SPIN_MAX*4}\ns_cbranch_scc1 {L('dwx'+tag)}")
        e(f"s_sleep 1\ns_branch {L('dwl'+tag)}")
        e(f"{L('dwx'+tag)}:")
    def arrive(self, tag, cnt_sreg, target):
        e = self.e; L = self.lab
        e(f"s_lshl_b32 s33, s{cnt_sreg}, 8\nv_mov_b32 v6, s33\nv_mov_b32 v7, 1")
        if "direct" in OPT:
            e(f"buffer_atomic_add v7, v6, {s(CNT,4)}, 0 offen sc1")
            return
        e(f"buffer_atomic_add v7, v6, {s(CNT,4)}, 0 offen sc0 sc1\ns_waitcnt vmcnt(0)\nv_readfirstlane_b32 s33, v7")
        e(f"s_cmp_lg_u32 s33, {target-1}\ns_cbranch_scc1 {L('arr'+tag)}")
        e(f"v_mov_b32 v7, {target}\nbuffer_store_dword v7, v6, {s(CNT,4)}, 0 offen offset:128 sc1")
        e(f"{L('arr'+tag)}:")
    def signal(self, tag, nwaves, cnt_sreg, target, flags=None):
        e = self.e; L = self.lab
        e("s_waitcnt vmcnt(0)")
        e(f"v_mov_b32 v6, {L_SIG[tag]}\nv_mov_b32 v7, 1\ns_mov_b64 exec, 1")
        e("ds_add_rtn_u32 v7, v6, v7\ns_waitcnt lgkmcnt(0)\nv_readfirstlane_b32 s32, v7\ns_mov_b64 exec, -1")
        e(f"s_cmp_lg_u32 s32, {nwaves-1}\ns_cbranch_scc1 {L('sig'+tag)}")
        if flags is not None and "noflags" not in OPT:
            n, offs = flags
            offs()
            e("v_mov_b32 v7, 1\n" + exec_mask(n))
            e(f"buffer_store_dword v7, v6, {s(CNT,4)}, 0 offen sc1")
        else:
            e("s_mov_b64 exec, 1")
            self.arrive(tag, cnt_sreg, target)
        e(f"{L('sig'+tag)}:\ns_mov_b64 exec, -1")
    def wait_flags(self, tag, n, base_sreg):
        e = self.e; L = self.lab
        e(f"v_lshlrev_b32 v6, 2, v2\nv_add_u32 v6, s{base_sreg}, v6\ns_mov_b32 s33, 0")
        e(exec_mask(n))
        e(f"{L('poll'+tag)}:")
        e(f"buffer_load_dword v7, v6, {s(CNT,4)}, 0 offen sc1\ns_waitcnt vmcnt(0)")
        e(f"v_cmp_ne_u32 vcc, 1, v7\ns_cmp_eq_u64 vcc, 0\ns_cbranch_scc1 {L('pollx'+tag)}")
        e(f"s_add_u32 s33, s33, 1\ns_cmp_ge_u32 s33, {SPIN_MAX}\ns_cbranch_scc1 {L('pollx'+tag)}")
        e(f"s_sleep {SLEEP}\ns_branch {L('poll'+tag)}")
        e(f"{L('pollx'+tag)}:\ns_mov_b64 exec, -1")

def tile_map(e, xr, xc):
    nxc = 16 // xc
    e(f"s_and_b32 s36, s2, 7\ns_lshr_b32 s37, s2, 3")
    e(f"s_and_b32 s38, s36, {nxc-1}\ns_lshr_b32 s39, s36, {nxc.bit_length()-1}")
    e(f"s_and_b32 s40, s37, {xc-1}\ns_lshr_b32 s41, s37, {xc.bit_length()-1}")
    e(f"s_mul_i32 s38, s38, {xc}\ns_add_u32 s26, s38, s40")
    e(f"s_mul_i32 s39, s39, {xr}\ns_add_u32 s25, s39, s41")

def tile_map_s2(e):
    e("s_and_b32 s36, s2, 7\ns_lshr_b32 s37, s2, 3\ns_and_b32 s27, s36, 1\ns_lshr_b32 s36, s36, 1")
    e("s_and_b32 s26, s37, 7\ns_lshr_b32 s37, s37, 3\ns_lshl_b32 s36, s36, 2\ns_add_u32 s25, s36, s37")

def gemm_phase(k, tag, K, lda, ldb, BN, srcA, sizeA, pB, sizeB, epi, xr, xc, NS, nxt_c, nxt_l, dep=None, stamps=(None, None), hbar=False):
    e = k.e
    L = lambda n: k.lab(tag + "_" + n)
    BM, BK = 128, 64
    nA = BM * BK * 2 // 1024; nB = BN * BK * 2 // 1024
    nAw, nBw = nA // 4, nB // 4
    nld = nAw + nBw
    SB = (nA + nB) * 1024
    s2 = epi == "ffn2s"
    nk = K // BK // (2 if s2 else 1)
    TM, TN = 64, BN // 2
    mt, nt = TM // 16, TN // 16
    pitch = BN * 2; cpr = BN // 8
    hbits = {4: 2, 6: 1, 2: 1, 0: 3}[(pitch // 32) % 8]
    ACC = 8; NACC = 4 * mt * nt
    FA = ACC + NACC; NF = 4 * (mt + nt); FB = FA + NF
    AX = FB + NF; AW = AX + 2; EP = AW + nt
    XL = 135168
    assert SB * NS <= XL
    perm = epi == "qkv" and "perm" in OPT
    asc = SC if dep else ""
    e(f"{L('c')}:")
    if s2: tile_map_s2(e)
    else: tile_map(e, xr, xc)
    e("s_lshr_b32 s42, s24, 1\ns_and_b32 s43, s24, 1")
    e("v_and_b32 v3, 15, v2\nv_lshrrev_b32 v4, 4, v2")
    e(f"s_lshl_b32 s44, s25, 7\ns_lshl_b32 s45, s42, 6\ns_add_u32 s44, s44, s45")
    e(f"s_mul_i32 s46, s26, {BN}\ns_mul_i32 s45, s43, {TN}\ns_add_u32 s46, s46, s45")
    k.srd(20, P_WS, WS_MODF, 6144 * 4)
    if epi == "qkv": k.srd(12, P_WS, WS_QKV, 96 * S * 64)
    elif epi == "ffn1": k.srd(12, P_WS, WS_F1, S * DFF * 2)
    elif epi == "wo": k.srd(12, P_WS, WS_X1, S * D * 2); k.srd(16, P_X, 0, S * D * 2)
    elif epi in ("ffn2", "ffn2s"): k.srd(12, P_OUT, 0, S * D * 2); k.srd(16, P_WS, WS_X1, S * D * 2)
    G = EP + 2 * mt * nt; GG = G + 4 * nt; W1R = GG + 4 * nt
    if s2:
        G = EP + 16
        e("s_lshl_b32 s47, s27, 5\ns_add_u32 s46, s46, s47")
        e("s_lshl_b32 s47, s25, 4\ns_lshl_b32 s48, s26, 1\ns_add_u32 s47, s47, s48\ns_add_u32 s47, s47, s43\ns_lshl_b32 s47, s47, 2\ns_lshl_b32 s48, s42, 1\ns_add_u32 s47, s47, s48\ns_add_u32 s47, s47, s27\ns_lshl_b32 s47, s47, 12")
        e("v_lshlrev_b32 v5, 4, v2")
        for j in range(mt):
            e(f"buffer_load_dwordx4 {v(EP+4*j,4)}, v5, s[16:19], s47 offen offset:{j*1024}{SC}")
        e(f"v_lshlrev_b32 v6, 4, v4\ns_lshl_b32 s47, s46, 2\ns_add_u32 s47, s47, {5*1024*4}")
        for i in range(2):
            e(f"buffer_load_dwordx4 {v(G+4*i,4)}, v6, s[20:23], s47 offen offset:{i*64}{SC}")
    if epi in ("wo", "ffn2"):
        if epi == "wo":
            e(f"v_add_u32 v5, s44, v3\nv_lshlrev_b32 v5, 11, v5\nv_lshlrev_b32 v6, 3, v4\nv_add_u32 v5, v5, v6")
            e(f"s_lshl_b32 s47, s46, 1\nv_add_u32 v5, s47, v5")
            for j in range(mt):
                e(f"s_mov_b32 s48, {j*16*2048}")
                for i in range(nt):
                    e(f"buffer_load_dwordx2 {v(EP+2*(j*nt+i),2)}, v5, s[16:19], s48 offen offset:{i*32}")
        else:
            e("s_lshl_b32 s47, s25, 4\ns_add_u32 s47, s47, s26\ns_lshl_b32 s47, s47, 2\ns_add_u32 s47, s47, s24\ns_lshl_b32 s47, s47, 12\nv_lshlrev_b32 v5, 4, v2")
            for j in range(mt):
                e(f"buffer_load_dwordx4 {v(EP+4*j,4)}, v5, s[16:19], s47 offen offset:{j*1024}{SC}")
        gate = (5 if epi == "ffn2" else 2) * 1024
        e(f"v_lshlrev_b32 v6, 4, v4\ns_lshl_b32 s47, s46, 2\ns_add_u32 s47, s47, {gate*4}")
        for i in range(nt):
            e(f"buffer_load_dwordx4 {v(G+4*i,4)}, v6, s[20:23], s47 offen offset:{i*64}{SC}")
        if epi == "wo":
            e(f"s_lshl_b32 s47, s46, 2\ns_add_u32 s47, s47, {4096*4}")
            for i in range(nt):
                e(f"buffer_load_dwordx4 {v(GG+4*i,4)}, v6, s[20:23], s47 offen offset:{i*64}{SC}")
            e("s_lshr_b32 s58, s2, 4\ns_and_b32 s59, s2, 15")
            e(f"v_mul_u32_u24 v5, {(65536+27)//28}, v2\nv_lshrrev_b32 v5, 16, v5\nv_mul_u32_u24 v6, 28, v5\nv_sub_u32 v6, v2, v6")
            e("s_lshl_b32 s60, s58, 6\ns_lshl_b32 s61, s24, 4\ns_add_u32 s60, s60, s61\nv_add_u32 v5, s60, v5")
            e(f"v_mul_u32_u24 v7, {DFF*2}, v5\nv_lshlrev_b32 v6, 4, v6\nv_add_u32 v7, v7, v6\ns_mul_i32 s60, s59, 448\nv_add_u32 v7, s60, v7")
            k.srd(60, P_W1, 0, D * DFF * 2)
            e("v_cmp_gt_u32 vcc, 56, v2\ns_and_saveexec_b64 s[34:35], vcc")
            for i in range(8):
                e(f"s_mov_b32 s64, {i*2*DFF*2}")
                e(f"buffer_load_dwordx4 {v(W1R+4*i,4)}, v7, s[60:63], s64 offen")
            e("v_lshlrev_b32 v5, 2, v5")
            e(f"s_mov_b32 s64, {4096*4}\ns_mov_b32 s65, {3072*4}")
            for i in range(8):
                e(f"buffer_load_dword v{W1R+32+i}, v5, s[20:23], s64 offen offset:{i*8}{SC}")
                e(f"buffer_load_dword v{W1R+40+i}, v5, s[20:23], s65 offen offset:{i*8}{SC}")
            e("s_mov_b64 exec, s[34:35]")
    e(f"v_lshrrev_b32 v5, 1, v3\nv_xor_b32 v5, v5, v4\nv_and_b32 v5, 7, v5")
    e(f"v_lshlrev_b32 v5, 4, v5\ns_lshl_b32 s47, s42, 6\nv_add_u32 v6, s47, v3\nv_lshlrev_b32 v6, 7, v6")
    e(f"v_add_u32 v{AX}, v5, v6\nv_xor_b32 v{AX+1}, 64, v{AX}")
    e("v_lshrrev_b32 v5, 2, v3\nv_and_b32 v6, 3, v2")
    e("v_lshlrev_b32 v7, 3, v4\nv_add_u32 v7, v7, v5")
    e(f"v_mul_u32_u24 v7, {pitch}, v7\nv_lshlrev_b32 v6, 3, v6\nv_add_u32 v7, v7, v6\nv_add_u32 v7, {nA*1024}, v7")
    if hbits == 2: e("v_lshrrev_b32 v5, 1, v5\nv_and_b32 v6, 1, v4\nv_lshlrev_b32 v6, 1, v6\nv_or_b32 v5, v5, v6")
    elif hbits == 1: e("v_and_b32 v5, 1, v4")
    else: e("v_and_b32 v6, 1, v4\nv_lshlrev_b32 v6, 2, v6\nv_or_b32 v5, v5, v6")
    e(f"s_mul_i32 s47, s43, {nt}")
    for i in range(nt):
        e(f"s_add_u32 s48, s47, {i}\nv_xor_b32 v6, s48, v5\nv_lshlrev_b32 v6, 5, v6\nv_add_u32 v{AW+i}, v7, v6")
    for r in range(NACC): e(f"v_mov_b32 v{ACC+r}, 0")
    def reads(ss, F):
        xs = [f"ds_read_b128 {v(F+4*j,4)}, v{AX+ss} offset:{j*2048}" for j in range(mt)]
        ws = []
        for i in range(nt):
            for hh in range(2):
                ws.append(f"ds_read_b64_tr_b16 {v(F+4*mt+4*i+2*hh,2)}, v{AW+i} offset:{(ss*32+hh*4)*pitch}")
        return [xs[0]] + ws[:2] + xs[1:] + ws[2:]
    def mfmas(F):
        return [f"v_mfma_f32_16x16x32_bf16 {v(ACC+4*(j*nt+i),4)}, {v(F+4*mt+4*i,4)}, {v(F+4*j,4)}, {v(ACC+4*(j*nt+i),4)}"
                for j in range(mt) for i in range(nt)]
    def mix(mf, rd, extra=()):
        rd = list(rd)
        if len(rd) <= len(mf) - 4:
            return interleave(mf, rd + list(extra))
        out = []; oi = 0; ex = list(extra)
        for m_ in mf:
            out.append(m_)
            for _ in range(2):
                if oi < len(rd): out.append(rd[oi]); oi += 1
            if oi >= len(rd) and ex: out.append(ex.pop(0))
        out += rd[oi:] + ex
        return out
    if epi == "wo": k.code_touch("w", k.lab("f1_c"), k.lab("f2_c"), 24, 4, 1)
    if epi == "ffn1": k.code_touch("f", k.lab("f1_cloop"), k.lab("end"), 24, 4, 1)
    e(f"s_mov_b32 s49, 0\ns_mov_b32 s54, {SB}\ns_mov_b32 s55, {-(NS-1)*SB & 0xffffffff:#x}")
    e("s_barrier")
    if stamps[0] is not None: k.st(stamps[0])
    for l in reads(0, FA): e(l)
    l2pf = epi in ("qkv", "ffn1") and ("l2" + tag) in OPT
    if l2pf:
        k.srd(56, P_WS, srcA, sizeA); k.srd(60, pB, 0, sizeB)
        e(f"s_cmp_eq_u32 s24, 0\ns_cselect_b32 s65, {(nk-1) & 1}, 99")
        e("s_lshr_b32 s37, s2, 3")
        e(f"s_and_b32 s40, s37, {xc-1}\ns_lshr_b32 s41, s37, {xc.bit_length()-1}")
        e(f"v_lshrrev_b32 v5, 5, v2\nv_add_u32 v5, {L2D}, v5")
        e(f"v_and_b32 v6, 31, v2\ns_lshl_b32 s47, s40, 5\nv_add_u32 v6, s47, v6\ns_lshl_b32 s47, s25, 7\nv_add_u32 v6, s47, v6\nv_lshlrev_b32 v6, 11, v6\nv_lshlrev_b32 v7, 7, v5\nv_add_u32 v250, v6, v7")
        e(f"v_lshlrev_b32 v5, 6, v5\nv_lshrrev_b32 v6, 2, v2\nv_and_b32 v6, 7, v6\nv_add_u32 v5, v5, v6\ns_lshl_b32 s47, s41, 3\nv_add_u32 v5, s47, v5\ns_mov_b32 s47, {ldb*2}\nv_mul_lo_u32 v5, s47, v5")
        e(f"v_and_b32 v6, 3, v2\nv_lshlrev_b32 v6, 7, v6\nv_add_u32 v5, v5, v6\ns_mul_i32 s47, s26, {BN*2}\ns_and_b32 s47, s47, 0xffffff80\nv_add_u32 v249, s47, v5")
    e(f"s_mov_b32 s50, {nk-1}")
    adv_s = f"s_add_u32 s49, s49, 1\ns_cmp_eq_u32 s49, {NS}\ns_cselect_b32 s51, s55, s54\ns_cselect_b32 s49, 0, s49"
    adv_v = [f"v_add_u32 v{r}, s51, v{r}" for r in [AX, AX + 1] + [AW + i for i in range(nt)]]
    e(f"{L('cloop')}:")
    if l2pf:
        e(f"s_and_b32 s47, s50, 1\ns_cmp_lg_u32 s47, s65\ns_cbranch_scc1 {L('nopf')}")
        e(f"buffer_load_dword v248, v250, s[56:59], 0 offen{asc}\nbuffer_load_dword v248, v249, s[60:63], 0 offen")
        e(f"v_add_u32 v250, 256, v250\nv_add_u32 v249, {2*64*ldb*2}, v249")
        e(f"{L('nopf')}:")
    def sprinkle(seq, extra, start):
        out = []; n_ = 0; ex = list(extra)
        for x in seq:
            out.append(x)
            if x.startswith("v_mfma"):
                n_ += 1
                if n_ > start and ex: out.append(ex.pop(0))
        return out + ex
    tight = "loose" not in OPT
    if not tight: e(adv_s)
    e("s_waitcnt lgkmcnt(0)")
    seq = mix(mfmas(FA), reads(1, FB))
    if tight: seq = sprinkle(seq, adv_s.split("\n"), 0)
    last_rd = max(i for i, x in enumerate(seq) if x.startswith("ds_read"))
    tail = [x for x in seq[last_rd + 1:]]
    seq = seq[:last_rd + 1]
    av = list(adv_v)
    for x in tail:
        seq.append(x)
        if av and x.startswith("v_mfma"): seq.append(av.pop(0))
    seq += av
    for l in seq: e(l)
    e("s_waitcnt lgkmcnt(0)\ns_barrier")
    seqb = mix(mfmas(FB), reads(0, FA))
    if tight:
        seqb = sprinkle(seqb, ["s_sub_u32 s50, s50, 1", "s_cmp_lg_u32 s50, 0"], 1)
        for l in seqb: e(l)
        e(f"s_cbranch_scc1 {L('cloop')}")
    else:
        for l in seqb: e(l)
        e(f"s_sub_u32 s50, s50, 1\ns_cmp_lg_u32 s50, 0\ns_cbranch_scc1 {L('cloop')}")
    e("s_waitcnt lgkmcnt(0)")
    for l in mix(mfmas(FA), reads(1, FB)): e(l)
    e("s_waitcnt lgkmcnt(0)")
    if epi != "qkv": e("s_barrier")
    for l in mfmas(FB): e(l)
    if stamps[1] is not None: k.st(stamps[1])
    T = FA
    def acc(i, j): return ACC + 4 * (j * nt + i)
    def pack_pair(ta, tb, dst):
        e(f"v_cvt_pk_bf16_f32 v{dst}, v{ta}, v{ta+1}\nv_cvt_pk_bf16_f32 v{dst+1}, v{ta+2}, v{ta+3}")
        e(f"v_cvt_pk_bf16_f32 v{dst+2}, v{tb}, v{tb+1}\nv_cvt_pk_bf16_f32 v{dst+3}, v{tb+2}, v{tb+3}")
        e(f"v_permlane16_swap_b32 v{dst}, v{dst+2}\nv_permlane16_swap_b32 v{dst+1}, v{dst+3}")
    e("v_and_b32 v5, 1, v4\nv_lshlrev_b32 v5, 5, v5\nv_lshrrev_b32 v6, 1, v4\nv_lshlrev_b32 v6, 4, v6\nv_add_u32 v5, v5, v6")
    if epi == "qkv":
        e("v_lshlrev_b32 v6, 6, v3\nv_add_u32 v5, v5, v6")
        n = 0
        for p in range(nt // 2):
            if perm:
                e(f"s_mul_i32 s52, s43, 96\ns_add_u32 s52, s52, {32*p}\ns_cmp_lt_u32 s52, 64\ns_cselect_b32 s53, {f32(LOG2E * 32 ** -0.5)}, 1.0")
                e("s_lshr_b32 s54, s52, 6\ns_lshl_b32 s54, s54, 5\ns_bfe_u32 s52, s52, 0x10005\ns_add_u32 s52, s52, s54\ns_lshl_b32 s54, s26, 1\ns_add_u32 s52, s52, s54")
                e("s_lshl_b32 s52, s52, 17\ns_lshl_b32 s54, s44, 6\ns_add_u32 s52, s52, s54")
            else:
                e(f"s_add_u32 s52, s46, {32*p}\ns_cmp_lt_u32 s52, 1024\ns_cselect_b32 s53, {f32(LOG2E * 32 ** -0.5)}, 1.0")
                e(f"s_lshl_b32 s52, s52, 12\ns_lshl_b32 s54, s44, 6\ns_add_u32 s52, s52, s54")
            for j in range(mt):
                ta, tb = acc(2 * p, j), acc(2 * p + 1, j)
                for r in range(4):
                    e(f"v_mul_f32 v{ta+r}, s53, v{ta+r}\nv_mul_f32 v{tb+r}, s53, v{tb+r}")
                d = T + 4 * (n % 8); n += 1
                pack_pair(ta, tb, d)
                e(f"buffer_store_dwordx4 {v(d,4)}, v5, s[12:15], s52 offen offset:{j*1024}{SCS}")
        e(f"s_add_u32 s35, s26, {C_QKV}")
        k.signal("qkv", 4, 35, 16, (6, lambda: e(f"s_mul_i32 s33, s26, 6\nv_add_u32 v6, s33, v2\nv_lshrrev_b32 v7, 5, v6\nv_and_b32 v6, 31, v6\nv_lshlrev_b32 v6, 8, v6"
                                                        f"\nv_lshlrev_b32 v7, 6, v7\nv_add_u32 v6, v6, v7"
                                                        f"\ns_lshl_b32 s33, s25, 2\ns_add_u32 s33, s33, {FL['att']}\nv_add_u32 v6, s33, v6")))
    elif epi == "ffn1":
        ST = FA; UU = FA + 8; BB = FA + 36; TMP = FA + 64; T = FA + 72
        e(f"s_lshl_b32 s47, s42, 6\nv_add_u32 v6, s47, v3\nv_lshlrev_b32 v6, 3, v6\nv_add_u32 v6, {XL}, v6")
        for j in range(mt): e(f"ds_read_b64 {v(ST+2*j,2)}, v6 offset:{j*128}")
        e(f"s_mul_i32 s47, s43, {TN*4}\ns_add_u32 s47, s47, {XL+1024}\nv_lshlrev_b32 v7, 4, v4\nv_add_u32 v7, s47, v7")
        for i in range(nt):
            e(f"ds_read_b128 {v(UU+4*i,4)}, v7 offset:{i*64}\nds_read_b128 {v(BB+4*i,4)}, v7 offset:{896+i*64}")
        e("s_lshl_b32 s47, s42, 6\nv_add_u32 v6, s47, v3\nv_lshlrev_b32 v6, 6, v6\nv_lshrrev_b32 v7, 1, v4\nv_lshlrev_b32 v7, 4, v7\nv_add_u32 v6, v6, v7")
        e("v_and_b32 v7, 1, v4\nv_lshlrev_b32 v5, 5, v7\nv_add_u32 v5, v5, v6")
        e("v_lshlrev_b32 v7, 10, v7\nv_add_u32 v6, v6, v7\ns_lshl_b32 s47, s43, 5\nv_add_u32 v6, s47, v6")
        e(f"s_mul_i32 s48, s25, 112\ns_mul_i32 s47, s26, 7\ns_add_u32 s48, s48, s47\ns_lshl_b32 s48, s48, 13")
        e(f"s_add_u32 s53, s48, {3*8192}")
        e("s_waitcnt lgkmcnt(0)")
        def ln(i, j, t):
            a_ = acc(i, j)
            for h_ in range(2):
                e(f"v_pk_fma_f32 {v(t+2*h_,2)}, {v(ST+2*j,2)}, {v(UU+4*i+2*h_,2)}, {v(BB+4*i+2*h_,2)} op_sel_hi:[0,1,1] neg_lo:[1,0,0] neg_hi:[1,0,0]")
            for h_ in range(2):
                e(f"v_pk_fma_f32 {v(a_+2*h_,2)}, {v(a_+2*h_,2)}, {v(ST+2*j,2)}, {v(t+2*h_,2)} op_sel:[0,1,0]")
        cnt = [0]
        def put(ta, tb, addr, soff, off):
            d = T + 4 * (cnt[0] % 4); cnt[0] += 1
            e(f"v_cvt_pk_bf16_f32 v{d}, v{ta}, v{ta+1}\nv_cvt_pk_bf16_f32 v{d+1}, v{ta+2}, v{ta+3}")
            e(f"v_cvt_pk_bf16_f32 v{d+2}, v{tb}, v{tb+1}\nv_cvt_pk_bf16_f32 v{d+3}, v{tb+2}, v{tb+3}")
            for q in range(4): e(f"v_pk_max_i16 v{d+q}, v{d+q}, 0")
            e(f"v_permlane16_swap_b32 v{d}, v{d+2}\nv_permlane16_swap_b32 v{d+1}, v{d+3}")
            e(f"buffer_store_dwordx4 {v(d,4)}, {addr}, s[12:15], {soff} offen offset:{off}{SCS}")
        XA = 139264; XR = T + 16
        e(f"s_lshl_b32 s47, s24, 10\nv_lshlrev_b32 v7, 4, v2\nv_add_u32 v7, s47, v7\nv_add_u32 v7, {XA}, v7")
        e(f"s_cmp_eq_u32 s43, 1\ns_cbranch_scc1 {L('ep1')}")
        for wn_ in range(2):
            if wn_ == 1: e(f"{L('ep1')}:\ns_add_u32 s48, s48, {4*8192}")
            single = 6 if wn_ == 0 else 0
            pairs = [(0, 1), (2, 3), (4, 5)] if wn_ == 0 else [(1, 2), (3, 4), (5, 6)]
            mine = (0, 1) if wn_ == 0 else (2, 3); give = (2, 3) if wn_ == 0 else (0, 1)
            for jj in (0, 2):
                ln(single, jj, TMP); ln(single, jj + 1, TMP + 4)
            for j in range(4):
                a_ = acc(single, j)
                e(f"v_cvt_pk_bf16_f32 v{XR+2*j}, v{a_}, v{a_+1}\nv_cvt_pk_bf16_f32 v{XR+2*j+1}, v{a_+2}, v{a_+3}")
            for q in range(8): e(f"v_pk_max_i16 v{XR+q}, v{XR+q}, 0")
            e(f"ds_write_b128 v7, {v(XR+2*give[0],4)}\ns_waitcnt lgkmcnt(0)")
            e(f"s_lshl_b32 s47, s24, 2\ns_add_u32 s47, s47, {CTL+48}\nv_mov_b32 v{TMP}, s47\nv_mov_b32 v{TMP+1}, 1\nds_write_b32 v{TMP}, v{TMP+1}")
            for pi, (ia, ib) in enumerate(pairs):
                for j in range(mt):
                    ln(ia, j, TMP); ln(ib, j, TMP + 4)
                    put(acc(ia, j), acc(ib, j), "v5", "s48", j * 1024)
                if pi < 2: e("s_add_u32 s48, s48, 8192")
            tg = f"x{wn_}"
            e(f"s_xor_b32 s47, s24, 1\ns_lshl_b32 s47, s47, 2\ns_add_u32 s47, s47, {CTL+48}\nv_mov_b32 v{TMP}, s47\ns_mov_b32 s33, 0")
            e(f"{L('xw'+tg)}:\nds_read_b32 v{TMP+1}, v{TMP}\ns_waitcnt lgkmcnt(0)\nv_readfirstlane_b32 s34, v{TMP+1}")
            e(f"s_cmp_lg_u32 s34, 0\ns_cbranch_scc1 {L('xx'+tg)}\ns_add_u32 s33, s33, 1\ns_cmp_lt_u32 s33, {SPIN_MAX}\ns_cbranch_scc1 {L('xw'+tg)}")
            e(f"{L('xx'+tg)}:")
            e(f"v_xor_b32 v7, 1024, v7\nds_read_b128 {v(TMP,4)}, v7\ns_waitcnt lgkmcnt(0)")
            for n_, j in enumerate(mine):
                d = T + 4 * (cnt[0] % 4); cnt[0] += 1
                own = XR + 2 * j; oth = TMP + 2 * n_
                a0, b0 = (own, oth) if wn_ == 0 else (oth, own)
                e(f"v_mov_b32 v{d}, v{a0}\nv_mov_b32 v{d+1}, v{a0+1}\nv_mov_b32 v{d+2}, v{b0}\nv_mov_b32 v{d+3}, v{b0+1}")
                e(f"v_permlane16_swap_b32 v{d}, v{d+2}\nv_permlane16_swap_b32 v{d+1}, v{d+3}")
                e(f"buffer_store_dwordx4 {v(d,4)}, v5, s[12:15], s53 offen offset:{j*1024}{SCS}")
            if wn_ == 0: e(f"s_branch {L('ep2')}")
        e(f"{L('ep2')}:")
        if "stf1" in OPT: k.st(12)
        e(f"s_add_u32 s35, s25, {C_F1}")
        k.signal("f1", 4, 35, 16, (16, lambda: e(f"s_lshl_b32 s33, s25, 11\ns_lshl_b32 s34, s26, 2\ns_add_u32 s33, s33, s34\ns_add_u32 s33, s33, {FL['f2']}\nv_lshlrev_b32 v6, 7, v2\nv_add_u32 v6, s33, v6")) if "nos2" in OPT else
                 (1, lambda: e(f"s_lshl_b32 s33, s25, 1\ns_lshr_b32 s34, s26, 3\ns_add_u32 s33, s33, s34\ns_lshl_b32 s33, s33, 7\ns_and_b32 s34, s26, 7\ns_lshl_b32 s34, s34, 2\ns_add_u32 s33, s33, s34\ns_add_u32 s33, s33, {FL['f2']}\nv_mov_b32 v6, s33")))
        if "stf1" in OPT: k.st(13)
    elif s2:
        e(f"s_cmp_eq_u32 s27, 0\ns_cbranch_scc1 {L('noswap')}")
        for j in range(mt):
            for r in range(8): e(f"v_swap_b32 v{acc(0,j)+r}, v{acc(2,j)+r}")
        e(f"{L('noswap')}:")
        k.srd(56, P_WS, WS_XCH, 128 * 2 * 4 * 8192)
        e("s_lshl_b32 s47, s25, 3\ns_add_u32 s47, s47, s26\ns_lshl_b32 s47, s47, 1")
        e("s_xor_b32 s48, s27, 1\ns_add_u32 s48, s48, s47\ns_lshl_b32 s49, s48, 2\ns_add_u32 s49, s49, s24\ns_lshl_b32 s49, s49, 13")
        e("s_add_u32 s52, s47, s27\ns_lshl_b32 s53, s52, 2\ns_add_u32 s53, s53, s24\ns_lshl_b32 s53, s53, 13")
        e("v_lshlrev_b32 v7, 4, v2")
        for j in range(mt):
            if j == 2: e("s_add_u32 s49, s49, 4096")
            e(f"buffer_store_dwordx4 {v(acc(2,j),4)}, v7, s[56:59], s49 offen offset:{(j%2)*2048}{SCS}")
            e(f"buffer_store_dwordx4 {v(acc(3,j),4)}, v7, s[56:59], s49 offen offset:{(j%2)*2048+1024}{SCS}")
        e("s_waitcnt vmcnt(0)")
        e(f"s_lshl_b32 s48, s48, 7\ns_lshl_b32 s54, s24, 2\ns_add_u32 s48, s48, s54\ns_add_u32 s48, s48, {FL['xch']}\nv_mov_b32 v6, s48\nv_mov_b32 v249, 1")
        e(f"s_mov_b64 exec, 1\nbuffer_store_dword v249, v6, {s(CNT,4)}, 0 offen sc1\ns_mov_b64 exec, -1")
        e(f"s_lshl_b32 s52, s52, 7\ns_add_u32 s52, s52, s54\ns_add_u32 s52, s52, {FL['xch']}\nv_mov_b32 v6, s52\ns_mov_b32 s33, 0\ns_mov_b64 exec, 1")
        e(f"{L('xpoll')}:")
        e(f"buffer_load_dword v249, v6, {s(CNT,4)}, 0 offen sc1\ns_waitcnt vmcnt(0)\nv_readfirstlane_b32 s34, v249")
        e(f"s_cmp_eq_u32 s34, 1\ns_cbranch_scc1 {L('xdone')}\ns_add_u32 s33, s33, 1\ns_cmp_lt_u32 s33, {SPIN_MAX}\ns_cbranch_scc1 {L('xpoll')}")
        e(f"{L('xdone')}:\ns_mov_b64 exec, -1")
        for j in range(mt):
            if j == 2: e("s_add_u32 s53, s53, 4096")
            e(f"buffer_load_dwordx4 {v(acc(2,j),4)}, v7, s[56:59], s53 offen offset:{(j%2)*2048}{SC}")
            e(f"buffer_load_dwordx4 {v(acc(3,j),4)}, v7, s[56:59], s53 offen offset:{(j%2)*2048+1024}{SC}")
        XT = T + 32
        e(f"v_add_u32 v6, s44, v3\nv_lshlrev_b32 v6, 11, v6\ns_lshl_b32 s47, s46, 1\nv_add_u32 v6, s47, v6\nv_add_u32 v5, v5, v6")
        for j in range(mt):
            e(f"s_waitcnt vmcnt({2*(mt-1-j) + j})")
            for q in range(4): e(f"v_pk_add_f32 {v(acc(0,j)+2*q,2)}, {v(acc(0,j)+2*q,2)}, {v(acc(2,j)+2*q,2)}")
            e(f"s_mov_b32 s48, {j*16*2048}")
            d = T + 4 * (j % 2)
            for i in range(2):
                a0 = acc(i, j); x0 = EP + 4 * j + 2 * i
                for q in range(2):
                    e(f"v_lshlrev_b32 v{XT+2*q}, 16, v{x0+q}\nv_and_b32 v{XT+2*q+1}, 0xffff0000, v{x0+q}")
                for q in range(2):
                    e(f"v_pk_fma_f32 {v(a0+2*q,2)}, {v(a0+2*q,2)}, {v(G+4*i+2*q,2)}, {v(XT+2*q,2)}")
            pack_pair(acc(0, j), acc(1, j), d)
            e(f"buffer_store_dwordx4 {v(d,4)}, v5, s[12:15], s48 offen{' sc1' if 'outsc1' in OPT else (' nt' if 'outnt' in OPT else '')}")
    else:
        e("s_waitcnt vmcnt(0)")
        XT = T + 32
        e(f"v_add_u32 v6, s44, v3\nv_lshlrev_b32 v6, 11, v6\ns_lshl_b32 s47, s46, 1\nv_add_u32 v6, s47, v6\nv_add_u32 v5, v5, v6")
        if epi == "wo":
            k.srd(16, P_WS, WS_XG, S * D * 2); k.srd(60, P_WS, WS_STAT, 32 * S * 8)
            for r in range(4 * nt):
                e(f"v_add_f32 v{GG+r}, 1.0, v{GG+r}"); round_bf16(e, GG + r)
            e(f"s_lshl_b32 s49, s26, 1\ns_add_u32 s49, s49, s43\ns_lshl_b32 s49, s49, 14\ns_lshl_b32 s50, s44, 3\ns_add_u32 s49, s49, s50")
            e("v_lshlrev_b32 v1, 3, v3\nv_and_b32 v6, 1, v4\nv_lshlrev_b32 v6, 2, v6\nv_add_u32 v1, v1, v6")
            e("s_lshl_b32 s47, s25, 4\ns_add_u32 s47, s47, s26\ns_lshl_b32 s47, s47, 2\ns_add_u32 s47, s47, s24\ns_lshl_b32 s47, s47, 12\nv_lshlrev_b32 v7, 4, v2\nv_mov_b32 v253, v7")
        for j in range(mt):
            e(f"s_mov_b32 s48, {j*16*2048}")
            d = T + 4 * (j % 2); d2 = T + 8 + 4 * (j % 2); SM = T + 16 + 4 * (j % 2)
            for i in range(nt):
                a0 = acc(i, j); x0 = EP + 2 * (j * nt + i)
                for q in range(2):
                    e(f"v_lshlrev_b32 v{XT+2*q}, 16, v{x0+q}\nv_and_b32 v{XT+2*q+1}, 0xffff0000, v{x0+q}")
                for q in range(2):
                    e(f"v_pk_fma_f32 {v(a0+2*q,2)}, {v(a0+2*q,2)}, {v(G+4*i+2*q,2)}, {v(XT+2*q,2)}")
            ta, tb = acc(0, j), acc(1, j)
            e(f"v_cvt_pk_bf16_f32 v{d}, v{ta}, v{ta+1}\nv_cvt_pk_bf16_f32 v{d+1}, v{ta+2}, v{ta+3}")
            e(f"v_cvt_pk_bf16_f32 v{d+2}, v{tb}, v{tb+1}\nv_cvt_pk_bf16_f32 v{d+3}, v{tb+2}, v{tb+3}")
            if epi == "ffn2":
                e(f"v_permlane16_swap_b32 v{d}, v{d+2}\nv_permlane16_swap_b32 v{d+1}, v{d+3}")
                e(f"buffer_store_dwordx4 {v(d,4)}, v5, s[12:15], s48 offen")
                continue
            for q in range(2):
                e(f"v_pk_mul_f32 {v(XT+2*q,2)}, {v(ta+2*q,2)}, {v(GG+2*q,2)}\nv_pk_mul_f32 {v(XT+4+2*q,2)}, {v(tb+2*q,2)}, {v(GG+4+2*q,2)}")
            for q in range(4): e(f"v_cvt_pk_bf16_f32 v{d2+q}, v{XT+2*q}, v{XT+2*q+1}")
            e(f"v_permlane16_swap_b32 v{d2}, v{d2+2}\nv_permlane16_swap_b32 v{d2+1}, v{d2+3}")
            e(f"buffer_store_dwordx4 {v(d2,4)}, v5, s[16:19], s48 offen{SCS}")
            e(f"buffer_store_dwordx4 {v(d,4)}, v253, s[12:15], s47 offen offset:{j*1024}{SCS}")
            e(f"v_pk_add_f32 {v(SM,2)}, {v(ta,2)}, {v(ta+2,2)}\nv_pk_mul_f32 {v(SM+2,2)}, {v(ta,2)}, {v(ta,2)}")
            e(f"v_pk_add_f32 {v(SM,2)}, {v(SM,2)}, {v(tb,2)}\nv_pk_fma_f32 {v(SM+2,2)}, {v(ta+2,2)}, {v(ta+2,2)}, {v(SM+2,2)}")
            e(f"v_pk_add_f32 {v(SM,2)}, {v(SM,2)}, {v(tb+2,2)}\nv_pk_fma_f32 {v(SM+2,2)}, {v(tb,2)}, {v(tb,2)}, {v(SM+2,2)}")
            e(f"v_pk_fma_f32 {v(SM+2,2)}, {v(tb+2,2)}, {v(tb+2,2)}, {v(SM+2,2)}")
            e(f"v_add_f32 v{SM}, v{SM}, v{SM+1}\nv_add_f32 v{SM+2}, v{SM+2}, v{SM+3}")
            e(f"v_permlane16_swap_b32 v{SM}, v{SM+2}\nv_add_f32 v{SM}, v{SM}, v{SM+2}\nv_mov_b32 v{SM+1}, v{SM}")
            e(f"v_permlane32_swap_b32 v{SM}, v{SM+1}\nv_add_f32 v{SM}, v{SM}, v{SM+1}")
            e(f"s_mov_b32 exec_lo, -1\ns_mov_b32 exec_hi, 0\nbuffer_store_dword v{SM}, v1, s[60:63], s49 offen offset:{j*128}{SCS}\ns_mov_b64 exec, -1")
        if epi == "wo":
            if "stwo" in OPT: k.st(12)
            e(f"s_add_u32 s35, s25, {C_WO}")
            k.signal("wo", 4, 35, 16, (4, lambda: e(f"s_lshl_b32 s33, s25, 9\ns_lshl_b32 s34, s26, 2\ns_add_u32 s33, s33, s34\ns_add_u32 s33, s33, {FL['f1']}\nv_lshlrev_b32 v6, 7, v2\nv_add_u32 v6, s33, v6")))
            if "stwo" in OPT: k.st(13)
            UA = ACC
            for r in range(16): e(f"v_mov_b32 v{UA+r}, 0")
            for i in range(8):
                g_ = W1R + 32 + i; s_ = W1R + 40 + i
                e(f"v_add_f32 v{g_}, 1.0, v{g_}"); round_bf16(e, g_)
                for q in range(4):
                    w_ = W1R + 4 * i + q
                    e(f"v_lshlrev_b32 v6, 16, v{w_}\nv_and_b32 v7, 0xffff0000, v{w_}")
                    e(f"v_fmac_f32 v{UA+2*q}, v{g_}, v6\nv_fmac_f32 v{UA+2*q+1}, v{g_}, v7\nv_fmac_f32 v{UA+8+2*q}, v{s_}, v6\nv_fmac_f32 v{UA+8+2*q+1}, v{s_}, v7")
            UL = 139264
            e(f"v_mul_u32_u24 v5, {(65536+27)//28}, v2\nv_lshrrev_b32 v5, 16, v5\nv_mul_u32_u24 v6, 28, v5\nv_sub_u32 v6, v2, v6")
            e(f"s_lshl_b32 s32, s24, 1\nv_add_u32 v5, s32, v5\nv_mul_u32_u24 v5, 1792, v5\nv_lshlrev_b32 v6, 5, v6\nv_add_u32 v5, v5, v6\nv_add_u32 v5, {UL}, v5")
            e("v_cmp_gt_u32 vcc, 56, v2\ns_and_saveexec_b64 s[34:35], vcc")
            e(f"ds_write_b128 v5, {v(UA,4)}\nds_write_b128 v5, {v(UA+4,4)} offset:16\nds_write_b128 v5, {v(UA+8,4)} offset:896\nds_write_b128 v5, {v(UA+12,4)} offset:912")
            e("s_mov_b64 exec, s[34:35]\ns_waitcnt lgkmcnt(0)")
            e(f"v_mov_b32 v6, {L_SIG['ub']}\nv_mov_b32 v7, 1\ns_mov_b64 exec, 1")
            e("ds_add_rtn_u32 v7, v6, v7\ns_waitcnt lgkmcnt(0)\nv_readfirstlane_b32 s32, v7\ns_mov_b64 exec, -1")
            e(f"s_cmp_lg_u32 s32, 3\ns_cbranch_scc1 {L('ubx')}")
            e(f"v_lshlrev_b32 v5, 2, v2\nv_add_u32 v5, {UL}, v5")
            for m_ in range(7):
                for rr in range(8): e(f"ds_read_b32 v{UA+rr}, v5 offset:{rr*1792+m_*256}")
                e("s_waitcnt lgkmcnt(0)")
                for rr in range(1, 8): e(f"v_add_f32 v{UA}, v{UA}, v{UA+rr}")
                e(f"v_mov_b32 v{UA+16+m_}, v{UA}")
            k.srd(16, P_WS, WS_UB, 16 * 2 * DFF * 4)
            e(f"s_mul_i32 s49, s58, {2*DFF*4}\ns_mul_i32 s50, s59, 896\ns_add_u32 s49, s49, s50")
            for m_ in range(7):
                e(f"v_add_u32 v5, {64*m_}, v2\nv_cmp_le_u32 vcc, 224, v5\nv_mov_b32 v6, {DFF*4 - 896}\nv_cndmask_b32 v6, 0, v6, vcc\nv_lshl_add_u32 v5, v5, 2, v6")
                e(f"buffer_store_dword v{UA+16+m_}, v5, s[16:19], s49 offen{SCS}")
            e("s_waitcnt vmcnt(0)")
            e(f"s_add_u32 s35, s59, {C_UB}\ns_mov_b64 exec, 1")
            k.arrive("ub", 35, 16)
            e("s_mov_b64 exec, -1")
            e(f"{L('ubx')}:")
    e(f"s_branch {nxt_c}")
    e(f"{L('l')}:")
    if s2: tile_map_s2(e)
    else: tile_map(e, xr, xc)
    k.srd(4, P_WS, srcA, sizeA); k.srd(8, pB, 0, sizeB)
    e("s_sub_u32 s42, s24, 4")
    LA = 8
    lda2, ldb2 = lda * 2, ldb * 2
    blocked = epi in ("ffn2", "ffn2s")
    if blocked:
        e(f"s_mul_i32 s43, s25, {112*8192}\ns_mul_i32 s44, s42, {nAw*8*64}\ns_add_u32 s43, s43, s44")
        e("v_lshrrev_b32 v3, 3, v2\nv_lshlrev_b32 v3, 6, v3\nv_add_u32 v3, s43, v3")
        e("v_and_b32 v4, 7, v2\nv_lshrrev_b32 v5, 4, v2")
        for i in range(nAw):
            e(f"v_xor_b32 v6, {(i&1)*4}, v5\nv_xor_b32 v6, v6, v4\nv_lshrrev_b32 v7, 2, v6\nv_lshlrev_b32 v7, 13, v7\nv_and_b32 v6, 3, v6\nv_lshlrev_b32 v6, 4, v6")
            e(f"v_add3_u32 v6, v6, v7, v3\nv_add_u32 v{LA+i}, {i*8*64}, v6")
    else:
        e(f"s_lshl_b32 s43, s25, 7\ns_mul_i32 s44, s42, {nAw*8}\ns_add_u32 s43, s43, s44")
        e(f"v_lshrrev_b32 v3, 3, v2\nv_add_u32 v3, s43, v3\ns_mov_b32 s45, {lda2}\nv_mul_lo_u32 v3, s45, v3")
        e("v_and_b32 v4, 7, v2\nv_lshrrev_b32 v5, 4, v2")
        for i in range(nAw):
            e(f"v_xor_b32 v6, {(i&1)*4}, v5\nv_xor_b32 v6, v6, v4\nv_lshlrev_b32 v6, 4, v6\nv_add_u32 v6, v6, v3")
            e(f"v_add_u32 v{LA+i}, {i*8*lda2}, v6")
    ASTEP = 16384 if blocked else BK * 2
    magic = (65536 + cpr - 1) // cpr
    assert all((p * magic) >> 16 == p // cpr for p in range(nBw * 64)) and nBw * 64 == 16 * cpr
    e(f"s_mul_i32 s43, s42, {16*ldb2}\ns_mul_i32 s44, s26, {128 if perm else BN*2}\ns_add_u32 s43, s43, s44")
    for i in range(nBw):
        e(f"v_add_u32 v3, {i*64}, v2\nv_mul_u32_u24 v4, {magic}, v3\nv_lshrrev_b32 v4, 16, v4")
        e(f"v_mul_u32_u24 v5, {cpr}, v4\nv_sub_u32 v3, v3, v5")
        if hbits == 2: e("v_and_b32 v5, 2, v4\nv_lshrrev_b32 v6, 1, v4\nv_and_b32 v6, 4, v6\nv_or_b32 v5, v5, v6")
        elif hbits == 1: e("v_lshrrev_b32 v5, 2, v4\nv_and_b32 v5, 2, v5")
        else: e("v_and_b32 v5, 3, v4\nv_lshrrev_b32 v6, 1, v4\nv_and_b32 v6, 4, v6\nv_or_b32 v5, v5, v6\nv_lshlrev_b32 v5, 1, v5")
        e("v_xor_b32 v3, v3, v5")
        if perm: e("v_lshrrev_b32 v5, 3, v3\nv_and_b32 v3, 7, v3\nv_lshlrev_b32 v5, 7, v5\nv_add_u32 v3, v3, v5")
        e(f"v_lshlrev_b32 v3, 4, v3\ns_mov_b32 s45, {ldb2}\nv_mul_lo_u32 v4, s45, v4\nv_add_u32 v3, v3, v4")
        e(f"v_add_u32 v{LA+nAw+i}, s43, v3")
    e(f"s_mul_i32 s46, s42, {nAw*1024}")
    e(f"s_mul_i32 s47, s42, {nBw*1024}\ns_add_u32 s47, s47, {nA*1024}")
    def issue_x(lds_s, off_s):
        for i in range(nAw):
            e(f"s_add_u32 m0, {lds_s}, {i*1024}")
            e(f"buffer_load_dwordx4 v{LA+i}, s[4:7], {off_s} offen{asc} lds")
    def issue_w(lds_s, off_s):
        for i in range(nBw):
            e(f"s_add_u32 m0, {lds_s}, {i*1024}")
            e(f"buffer_load_dwordx4 v{LA+nAw+i}, s[8:11], {off_s} offen lds")
    if s2: e(f"s_mul_i32 s62, s27, {nk*ASTEP}\ns_mul_i32 s63, s27, {nk*BK*ldb2}")
    else: e("s_mov_b32 s62, 0\ns_mov_b32 s63, 0")
    def w_prologue():
        for st in range(NS - 1):
            e(f"s_add_u32 s52, s47, {st*SB}\ns_add_u32 s49, s63, {st*BK*ldb2}")
            issue_w("s52", "s49")
    if dep:
        base, target, kind = dep
        e(f"s_lshr_b32 s35, s25, 1\ns_add_u32 s35, s35, {base}" if kind == "rb2" else f"s_add_u32 s35, s25, {base}")
        if "wfirst" in OPT:
            w_prologue()
            k.dep_wait_loaders(tag, 35, target, None)
        else:
            e(f"s_cmp_eq_u32 s24, 4\ns_cbranch_scc1 {L('w4a')}")
            w_prologue()
            e(f"{L('w4a')}:")
            if hbar and "nowq" not in OPT:
                e(f"s_cmp_eq_u32 s24, 4\ns_cbranch_scc1 {L('nowqpf')}")
                e("s_mul_i32 s43, s2, 3\ns_add_u32 s43, s43, s24\ns_sub_u32 s43, s43, 5\ns_lshl_b32 s43, s43, 13\nv_lshlrev_b32 v3, 7, v2")
                e("buffer_load_dword v253, v3, s[8:11], s43 offen")
                e(f"{L('nowqpf')}:")
            if hbar: e("s_barrier")
            k.dep_wait_loaders(tag, 35, target, None)
            e(f"s_cmp_lg_u32 s24, 4\ns_cbranch_scc1 {L('w4b')}")
            w_prologue()
            e(f"{L('w4b')}:")
        if tag == "f1" and "stwo" in OPT: k.st(14, 4)
        if tag == "wo" and "statt" in OPT: k.st(15, 4)
        if tag == "f2" and "stf1" in OPT: k.st(14, 4)
    else:
        w_prologue()
    for st in range(NS - 1):
        e(f"s_add_u32 s51, s46, {st*SB}\ns_add_u32 s48, s62, {st*ASTEP}")
        issue_x("s51", "s48")
    e(f"s_add_u32 s48, s62, {(NS-1)*ASTEP}\ns_add_u32 s49, s63, {(NS-1)*BK*ldb2}\ns_mov_b32 s50, {(NS-1)*SB}")
    def issue():
        e("s_add_u32 s51, s50, s46\ns_add_u32 s52, s50, s47")
        issue_x("s51", "s48"); issue_w("s52", "s49")
        e(f"s_add_u32 s48, s48, {ASTEP}\ns_add_u32 s49, s49, {BK*ldb2}")
        e(f"s_add_u32 s50, s50, {SB}\ns_cmp_eq_u32 s50, {SB*NS}\ns_cselect_b32 s50, 0, s50")
    e(f"s_waitcnt vmcnt({nAw*(NS-2)})\ns_barrier")
    issue()
    e(f"s_waitcnt vmcnt({nAw*(NS-3) + nld})\ns_barrier" if NS >= 3 else "")
    issue()
    for t in range(2, NS - 1):
        e(f"s_waitcnt vmcnt({nAw*(NS-2-t) + nld*t})\ns_barrier")
        issue()
    done = max(2, NS - 1)
    e(f"s_mov_b32 s53, {nk-(NS-1)-done}")
    e(f"{L('lloop')}:")
    e(f"s_waitcnt vmcnt({nld*(NS-2)})\ns_barrier")
    issue()
    e(f"s_sub_u32 s53, s53, 1\ns_cmp_lg_u32 s53, 0\ns_cbranch_scc1 {L('lloop')}")
    nx = 0
    for t in range(NS - 1):
        e(f"s_waitcnt vmcnt({nld*(NS-2-t)+nx})\ns_barrier")
        if epi == "ffn1" and t == 0:
            nx = 32
            k.srd(56, P_WS, WS_STAT, 32 * S * 8); k.srd(60, P_WS, WS_UB, 16 * 2 * DFF * 4)
            e(f"s_cmp_ge_u32 s42, 2\ns_cbranch_scc1 {L('ubld')}")
            e(f"s_lshl_b32 s43, s42, 6\nv_add_u32 v3, s43, v2\ns_lshl_b32 s44, s25, 7\nv_add_u32 v4, s44, v3\nv_lshlrev_b32 v4, 3, v4")
            for sl in range(32):
                e(f"s_mov_b32 s45, {sl*S*8}\nbuffer_load_dwordx2 {v(32+2*sl,2)}, v4, s[56:59], s45 offen{SC}")
            e(f"s_branch {L('ldd')}")
            e(f"{L('ubld')}:")
            e(f"s_add_u32 s35, s26, {C_UB}")
            k.poll(tag + "u", 35, 16)
            e(f"s_sub_u32 s43, s42, 2\ns_lshl_b32 s43, s43, 6\nv_add_u32 v3, s43, v2")
            e(f"s_mul_i32 s44, s26, {BN*4}\nv_lshlrev_b32 v4, 3, v3\nv_add_u32 v4, s44, v4")
            for kg in range(16):
                for w_ in range(2):
                    e(f"s_mov_b32 s45, {(kg*2+w_)*DFF*4}\nbuffer_load_dwordx2 {v(32+4*kg+2*w_,2)}, v4, s[60:63], s45 offen{SC}")
            e(f"{L('ldd')}:")
    if epi == "ffn1":
        e("s_waitcnt vmcnt(0)")
        e(f"s_cmp_ge_u32 s42, 2\ns_cbranch_scc1 {L('ubred')}")
        for sl in range(1, 32): e(f"v_add_f32 v32, v32, v{32+2*sl}\nv_add_f32 v33, v33, v{33+2*sl}")
        e(f"v_mul_f32 v32, {f32(1/1024)}, v32\nv_mul_f32 v33, {f32(1/1024)}, v33")
        e(f"v_fma_f32 v33, -v32, v32, v33\nv_max_f32 v33, 0, v33\nv_add_f32 v33, {f32(1e-5)}, v33\nv_rsq_f32 v33, v33")
        e("v_mul_f32 v32, v32, v33")
        e(f"v_lshlrev_b32 v4, 3, v3\nv_add_u32 v4, {XL}, v4\nds_write_b64 v4, v[32:33]")
        e(f"s_branch {L('redd')}")
        e(f"{L('ubred')}:")
        for kg in range(1, 16):
            for q in range(4): e(f"v_add_f32 v{32+q}, v{32+q}, v{32+4*kg+q}")
        e(f"v_lshlrev_b32 v4, 3, v3\nv_add_u32 v4, {XL+1024}, v4\nv_cmp_gt_u32 vcc, 112, v3\ns_and_saveexec_b64 s[44:45], vcc")
        e(f"ds_write_b64 v4, v[32:33]\nds_write_b64 v4, v[34:35] offset:896\ns_mov_b64 exec, s[44:45]")
        e(f"{L('redd')}:")
        e("s_waitcnt lgkmcnt(0)")
    if epi != "qkv": e("s_barrier")
    e(f"s_branch {nxt_l}")

def attn_phase(k, nxt_c, nxt_l, pf):
    e = k.e
    L = lambda n: k.lab("att_" + n)
    NSL = 3; KPS = 128; SBK = KPS * 64
    HB = 2 * SBK; SB = 2 * HB
    FLAG = NSL * SB
    e(f"{L('c')}:\n{L('l')}:")
    e("s_and_b32 s36, s2, 7\ns_lshr_b32 s37, s2, 3\ns_lshl_b32 s36, s36, 2\ns_lshr_b32 s38, s37, 3\ns_add_u32 s25, s36, s38")
    e("s_and_b32 s26, s37, 7")
    e("s_and_b32 s34, s24, 3\ns_lshr_b32 s27, s24, 2")
    e("s_mov_b32 s57, s34")
    e("s_lshl_b32 s40, s25, 17")
    e(f"s_add_u32 s32, s{P_WS}, {WS_QKV:#x}\ns_addc_u32 s33, s{P_WS+1}, 0\ns_add_u32 s32, s32, s40\ns_addc_u32 s33, s33, 0")
    k.srd(4, 32, 0, S * 64); k.srd(8, 32, 32 * S * 64, S * 64); k.srd(12, 32, 64 * S * 64, S * 64)
    k.srd(16, P_WS, WS_O, S * D * 2)
    QG, KH = 57, 27
    Q = 4 + 4; KF = 24; VF = 32
    NEG = 40; O = 72; LS = 104; SEL = 112
    SS = [[116, 132], [148, 164]]
    PP = [[180, 188], [196, 204]]
    AK0, AK1, AV, AN0, AN1, DK, DV = 212, 213, 214, 215, 216, 217, 218
    HH, QL = 219, 220
    T = 221
    PFD = 230
    e(f"v_and_b32 v{QL}, 31, v2\nv_lshrrev_b32 v{HH}, 5, v2")
    e(f"s_lshl_b32 s39, s26, 8\ns_lshl_b32 s40, s{QG}, 6\ns_add_u32 s39, s39, s40")
    e(f"v_lshrrev_b32 v{T}, 2, v2\ns_lshl_b32 s40, s{QG}, 5\nv_add_u32 v{T}, s40, v{T}\nv_lshlrev_b32 v{T}, 6, v{T}")
    e(f"v_and_b32 v{T+1}, 3, v2\nv_lshrrev_b32 v{T+2}, 4, v2\nv_xor_b32 v{T+1}, v{T+1}, v{T+2}\nv_lshlrev_b32 v{T+1}, 4, v{T+1}")
    e(f"v_add_u32 v{DK}, v{T}, v{T+1}")
    e(f"v_lshlrev_b32 v{DV}, 4, v2\ns_lshl_b32 s40, s{QG}, 11\nv_add_u32 v{DV}, s40, v{DV}")
    e(f"s_lshl_b32 s41, s{QG}, 11\ns_mul_i32 s40, s{KH}, {HB}\ns_add_u32 s41, s41, s40")
    e(f"s_mul_i32 s45, s{KH}, {S*32}")
    def addr_setup():
        e(f"s_mul_i32 s40, s{KH}, {HB}")
        e(f"v_lshrrev_b32 v{T}, 2, v{QL}\nv_and_b32 v{T}, 3, v{T}\nv_xor_b32 v{T}, v{T}, v{HH}\nv_lshlrev_b32 v{T}, 4, v{T}")
        e(f"v_lshlrev_b32 v{T+1}, 6, v{QL}\nv_add_u32 v{T+3}, v{T}, v{T+1}")
        e(f"v_add_u32 v{AK0}, s40, v{T+3}\nv_xor_b32 v{AK1}, 32, v{AK0}")
        e(f"v_and_b32 v{T}, 15, v2\nv_lshrrev_b32 v{T}, 2, v{T}\nv_lshlrev_b32 v{T+1}, 2, v{HH}\nv_add_u32 v{T}, v{T}, v{T+1}\nv_lshlrev_b32 v{T}, 6, v{T}")
        e(f"v_lshrrev_b32 v{T+1}, 4, v2\nv_and_b32 v{T+1}, 1, v{T+1}\nv_lshlrev_b32 v{T+1}, 5, v{T+1}\nv_add_u32 v{T}, v{T}, v{T+1}")
        e(f"v_and_b32 v{T+1}, 3, v2\nv_lshlrev_b32 v{T+1}, 3, v{T+1}\nv_add_u32 v{T}, v{T}, v{T+1}\nv_add_u32 v{T}, {SBK}, v{T}\nv_add_u32 v{AV}, s40, v{T}")
    addr_setup()
    e(f"v_lshrrev_b32 v{T}, 4, v2\nv_lshrrev_b32 v{T+1}, 2, v2\nv_xor_b32 v{T}, v{T}, v{T+1}\nv_and_b32 v{T}, 1, v{T}")
    e(f"v_cmp_eq_u32 vcc, 0, v{T}\nv_mov_b32 v{T+1}, 0x3f803f80")
    e(f"v_cndmask_b32 v{SEL}, 0, v{T+1}, vcc")
    for r in range(1, 4): e(f"v_mov_b32 v{SEL+r}, v{SEL}")
    def zero_acc():
        for r in range(32): e(f"v_mov_b32 v{O+r}, 0")
        for r in range(8): e(f"v_mov_b32 v{LS+r}, 0")
    zero_acc()
    for r in range(8): e(f"v_mov_b32 v{VF+r}, 0")
    for qb in range(2):
        for r in range(8): e(f"v_mov_b32 v{PP[1][qb]+r}, 0")
    e(f"s_cmp_lg_u32 s24, 4\ns_cbranch_scc1 {L('nodep')}")
    if "noflags" in OPT:
        e(f"v_lshlrev_b32 v6, 10, v2\ns_lshl_b32 s35, s25, 5\nv_add_u32 v6, s35, v6\nv_mul_u32_u24 v6, {(65536 + 191) // 192}, v6\nv_lshrrev_b32 v6, 16, v6")
        e(f"v_add_u32 v6, {C_QKV}, v6\nv_lshlrev_b32 v6, 8, v6")
        k.poll("att", None, 16, lanes=3)
    else:
        e(f"s_lshl_b32 s35, s25, 8\ns_add_u32 s35, s35, {FL['att']}")
        k.wait_flags("att", 48, 35)
    e(f"{L('nodep')}:")
    e("s_barrier")
    k.st(3)
    e(f"v_mov_b32 v{T}, {FLAG}\nv_mov_b32 v{T+1}, 0\nds_write_b32 v{T}, v{T+1}")
    e(f"v_add_u32 v{T}, s39, v{QL}\nv_lshlrev_b32 v{T}, 6, v{T}\nv_lshlrev_b32 v{T+1}, 4, v{HH}\nv_add_u32 v{T}, v{T}, v{T+1}")
    for qb in range(2):
        e(f"buffer_load_dwordx4 {v(Q+8*qb,4)}, v{T}, s[4:7], 0 offen offset:{qb*2048}{SC}")
        e(f"buffer_load_dwordx4 {v(Q+8*qb+4,4)}, v{T}, s[4:7], 0 offen offset:{qb*2048+32}{SC}")
    def dma(slot_sreg):
        e(f"s_add_u32 s43, {slot_sreg}, s41\ns_add_u32 s46, s42, s45")
        e(f"s_mov_b32 m0, s43\nbuffer_load_dwordx4 v{DK}, s[8:11], s46 offen{SC} lds")
        e(f"s_add_u32 m0, s43, {SBK}\nbuffer_load_dwordx4 v{DV}, s[12:15], s46 offen{SC} lds")
        e(f"s_add_u32 s46, s46, 1024\ns_add_u32 m0, s43, 1024\nbuffer_load_dwordx4 v{DK}, s[8:11], s46 offen{SC} lds")
        e(f"s_add_u32 m0, s43, {SBK+1024}\nbuffer_load_dwordx4 v{DV}, s[12:15], s46 offen{SC} lds")
        e(f"s_add_u32 s42, s42, {SBK}")
    def kread(a0, a1, t):
        return [f"ds_read_b128 {v(KF,4)}, v{a0} offset:{t*2048}", f"ds_read_b128 {v(KF+4,4)}, v{a1} offset:{t*2048}"]
    def vread(t):
        return [f"ds_read_b64_tr_b16 {v(VF+4*m+2*hh,2)}, v{AV} offset:{t*2048+(16*m+8*hh)*64}" for m in range(2) for hh in range(2)]
    def qk(qb, dst, c):
        return [f"v_mfma_f32_32x32x16_bf16 {v(dst,16)}, {v(KF,4)}, {v(Q+8*qb,4)}, {c}",
                f"v_mfma_f32_32x32x16_bf16 {v(dst,16)}, {v(KF+4,4)}, {v(Q+8*qb+4,4)}, {v(dst,16)}"]
    def pv(qb, P):
        o, l = O + 16 * qb, LS + 4 * qb
        return [f"v_mfma_f32_32x32x16_bf16 {v(o,16)}, {v(VF,4)}, {v(P,4)}, {v(o,16)}",
                f"v_mfma_f32_16x16x32_bf16 {v(l,4)}, {v(SEL,4)}, {v(P,4)}, {v(l,4)}",
                f"v_mfma_f32_32x32x16_bf16 {v(o,16)}, {v(VF+4,4)}, {v(P+4,4)}, {v(o,16)}",
                f"v_mfma_f32_16x16x32_bf16 {v(l,4)}, {v(SEL,4)}, {v(P+4,4)}, {v(l,4)}"]
    def lane_max16(src, dst, tmp):
        e(f"v_max3_f32 v{dst}, v{src}, v{src+1}, v{src+2}")
        for r in range(3, 15, 2): e(f"v_max3_f32 v{dst}, v{dst}, v{src+r}, v{src+r+1}")
        e(f"v_max_f32 v{dst}, v{dst}, v{src+15}")
        e(f"v_mov_b32 v{tmp}, v{dst}\nv_permlane32_swap_b32 v{tmp}, v{dst}\nv_max_f32 v{dst}, v{dst}, v{tmp}")
    NST = S // 2 // KPS
    HALF = S * 32
    e("s_mov_b32 s42, 0")
    for st in range(NSL - 1):
        e(f"s_mov_b32 s44, {st*SB}")
        dma("s44")
    e(f"s_waitcnt vmcnt({4*(NSL-2)})\ns_barrier")
    e(f"v_xor_b32 v{T+4}, 32, v{T+3}")
    for l in kread(T + 3, T + 4, 0): e(l)
    e("s_waitcnt lgkmcnt(0)")
    for qb in range(2):
        for l in qk(qb, SS[1][qb], "0"): e(l)
    for l in kread(AK0, AK1, 0): e(l)
    for qb in range(2):
        lane_max16(SS[1][qb], T, T + 1)
        e(f"v_add_f32 v{T}, {f32(40.0)}, v{T}")
        for r in range(16): e(f"v_sub_f32 v{NEG+16*qb+r}, 0, v{T}")
    e("s_waitcnt lgkmcnt(0)")
    for qb in range(2):
        for l in qk(qb, SS[0][qb], v(NEG + 16 * qb, 16)): e(l)
    for l in kread(AK0, AK1, 1): e(l)
    e(f"v_add_u32 v{AN0}, {SB}, v{AK0}\nv_add_u32 v{AN1}, {SB}, v{AK1}")
    e(f"s_mov_b32 s47, 1\ns_mov_b32 s48, {SB}\ns_mov_b32 s49, {-(NSL-1)*SB & 0xffffffff:#x}")
    e(f"s_mov_b32 s50, {(NSL-1)*SB}")
    e("s_waitcnt lgkmcnt(0)")
    e(f"s_mov_b32 s44, {NST}")
    if "prio1" in OPT: e(f"s_cmp_lt_u32 s24, 4\ns_cbranch_scc1 {L('noprio')}\ns_setprio 1\n{L('noprio')}:")
    if "prio0" in OPT: e(f"s_cmp_ge_u32 s24, 4\ns_cbranch_scc1 {L('noprio')}\ns_setprio 1\n{L('noprio')}:")
    e(f"{L('floop')}:")
    for t in range(4):
        par = t & 1
        if t == 2:
            e(f"s_cmp_ge_u32 s42, {HALF}\ns_cbranch_scc1 {L('nodma')}")
            e(f"s_waitcnt vmcnt({4*(NSL-3)})\ns_barrier")
            dma("s50")
            e(f"s_add_u32 s50, s50, {SB}\ns_cmp_eq_u32 s50, {NSL*SB}\ns_cselect_b32 s50, 0, s50")
            if pf:
                e(f"s_cmp_lg_u32 s44, {PFSTAGE}\ns_cbranch_scc1 {L('cont')}")
                e("s_lshl_b32 s56, s2, 3\ns_add_u32 s56, s56, s24")
                e(f"s_mov_b32 s60, s{P_WO}\ns_mov_b32 s61, s{P_WO+1}\ns_mov_b32 s62, {D*D*2}\ns_mov_b32 s63, 0x20000\ns_mov_b32 s52, s56")
                e(f"s_cmp_lt_u32 s56, 256\ns_cbranch_scc1 {L('pfgo')}")
                e(f"s_mov_b32 s60, s{P_W1}\ns_mov_b32 s61, s{P_W1+1}\ns_mov_b32 s62, {D*DFF*2}\ns_mov_b32 s63, 0x20000\ns_sub_u32 s52, s56, 256")
                e(f"s_cmp_lt_u32 s56, 1152\ns_cbranch_scc1 {L('pfgo')}")
                e(f"s_mov_b32 s60, s{P_W2}\ns_mov_b32 s61, s{P_W2+1}\ns_mov_b32 s62, {D*DFF*2}\ns_mov_b32 s63, 0x20000\ns_sub_u32 s52, s56, 1152")
                e(f"{L('pfgo')}:")
                e(f"s_lshl_b32 s52, s52, 13\nv_lshlrev_b32 v{T}, 7, v2\nbuffer_load_dword v{PFD}, v{T}, s[60:63], s52 offen")
                k.code_touch("a", k.lab("att_cont"), k.lab("f1_l"), 24, 8, 1)
            e(f"s_branch {L('cont')}")
            e(f"{L('nodma')}:")
            e("s_waitcnt vmcnt(0)\ns_barrier")
            e(f"{L('cont')}:")
        kr = kread(AN0, AN1, (t + 2) % 4) if t >= 2 else kread(AK0, AK1, t + 2)
        vr = vread(t)
        m = []; p = []; E = []; C = []
        for qb in range(2):
            cur = SS[par][qb]; nxt = SS[1 - par][qb]; pc = PP[par][qb]; pp = PP[1 - par][qb]
            m.append(qk(qb, nxt, v(NEG + 16 * qb, 16))); p.append(pv(qb, pp))
            E.append([f"v_exp_f32 v{cur+r}, v{cur+r}" for r in range(16)])
            C.append([f"v_cvt_pk_bf16_f32 v{pc+r}, v{cur+2*r}, v{cur+2*r+1}" for r in range(8)])
        E0, E1 = E; C0, C1 = C
        seq = ["s_waitcnt lgkmcnt(4)",
               m[0][0], E0[0], E0[1], E0[2], E0[3],
               m[1][0], E0[4], E0[5], C0[0], C0[1], E0[6],
               m[0][1], E0[7], C0[2], E0[8], E0[9], C0[3],
               m[1][1], kr[0], kr[1], E0[10], E0[11], E0[12], E0[13], "s_waitcnt lgkmcnt(2)",
               p[0][0], C0[4], C0[5], E0[14], E0[15], C0[6], C0[7],
               p[0][1], E1[0], E1[1],
               p[1][0], E1[2], E1[3], C1[0], C1[1], E1[4],
               p[1][1], E1[5], E1[6],
               p[0][2], E1[7], C1[2], E1[8], E1[9], C1[3],
               p[0][3], E1[10], E1[11],
               p[1][2], vr[0], vr[1], vr[2], vr[3], E1[12], E1[13], C1[4], C1[5], E1[14],
               p[1][3], E1[15], C1[6], C1[7]]
        for l in seq: e(l)
        if t == 3:
            e(f"v_sub_u32 v{T}, v{AN0}, v{AK0}\nv_add_u32 v{AV}, v{AV}, v{T}\nv_mov_b32 v{AK0}, v{AN0}\nv_mov_b32 v{AK1}, v{AN1}")
            e(f"s_add_u32 s47, s47, 1\ns_cmp_eq_u32 s47, {NSL}\ns_cselect_b32 s51, s49, s48\ns_cselect_b32 s47, 0, s47")
            e(f"v_add_u32 v{AN0}, s51, v{AN0}\nv_add_u32 v{AN1}, s51, v{AN1}")
    e(f"s_sub_u32 s44, s44, 1\ns_cmp_lg_u32 s44, 0\ns_cbranch_scc1 {L('floop')}")
    e("s_waitcnt lgkmcnt(0)")
    for qb in range(2):
        for l in pv(qb, PP[1][qb]): e(l)
    if "prio1" in OPT or "prio0" in OPT: e("s_setprio 0")
    k.st(4)
    def merge(safe, M=None):
        e("s_barrier")
        e(f"s_cmp_eq_u32 s{KH}, 0\ns_cbranch_scc1 {L('keep0' + safe)}")
        for r in range(16): e(f"v_swap_b32 v{O+r}, v{O+16+r}")
        e(f"v_swap_b32 v{LS}, v{LS+4}")
        if M is not None: e(f"v_swap_b32 v{M}, v{M+1}")
        e(f"{L('keep0' + safe)}:")
        e(f"s_mul_i32 s52, s24, {5*1024+256}\nv_lshlrev_b32 v{T}, 4, v2\nv_add_u32 v{T}, s52, v{T}")
        for g in range(4): e(f"ds_write_b128 v{T}, {v(O+16+4*g,4)} offset:{g*1024}")
        e(f"v_lshlrev_b32 v{T+1}, 2, v2\nv_add_u32 v{T+1}, s52, v{T+1}")
        e(f"ds_write_b32 v{T+1}, v{LS+4} offset:4096")
        if M is not None: e(f"ds_write_b32 v{T+1}, v{M+1} offset:{4096+256}")
        e("s_waitcnt lgkmcnt(0)\ns_barrier")
        e(f"s_xor_b32 s52, s24, 4\ns_mul_i32 s52, s52, {5*1024+256}\nv_lshlrev_b32 v{T}, 4, v2\nv_add_u32 v{T}, s52, v{T}")
        for g in range(4): e(f"ds_read_b128 {v(O+16+4*g,4)}, v{T} offset:{g*1024}")
        e(f"v_lshlrev_b32 v{T+1}, 2, v2\nv_add_u32 v{T+1}, s52, v{T+1}")
        e(f"ds_read_b32 v{LS+4}, v{T+1} offset:4096")
        if M is not None: e(f"ds_read_b32 v{M+1}, v{T+1} offset:{4096+256}")
        e("s_waitcnt lgkmcnt(0)")
        if M is None:
            for r in range(16): e(f"v_add_f32 v{O+r}, v{O+r}, v{O+16+r}")
            e(f"v_add_f32 v{LS}, v{LS}, v{LS+4}")
        else:
            e(f"v_max_f32 v{T}, v{M}, v{M+1}\nv_sub_f32 v{T+1}, v{M}, v{T}\nv_sub_f32 v{T+2}, v{M+1}, v{T}\nv_exp_f32 v{T+1}, v{T+1}\nv_exp_f32 v{T+2}, v{T+2}")
            for r in range(16): e(f"v_mul_f32 v{O+r}, v{O+r}, v{T+1}\nv_fmac_f32 v{O+r}, v{O+16+r}, v{T+2}")
            e(f"v_mul_f32 v{LS}, v{LS}, v{T+1}\nv_fmac_f32 v{LS}, v{LS+4}, v{T+2}")
        e(f"v_rcp_f32 v{T}, v{LS}")
        for r in range(16): e(f"v_mul_f32 v{O+r}, v{O+r}, v{T}")
    merge("f")
    e(f"v_mov_b32 v{T+1}, {f32(2.0**120)}")
    e(f"v_cmp_nlt_f32 vcc, v{LS}, v{T+1}")
    e("s_mov_b64 s[46:47], vcc")
    e(f"v_add_f32 v{T+2}, abs(v{O}), abs(v{O+1})")
    for r in range(2, 16): e(f"v_add_f32 v{T+2}, v{T+2}, abs(v{O+r})")
    e(f"v_mov_b32 v{T+1}, 0x7f800000\nv_cmp_nlt_f32 vcc, v{T+2}, v{T+1}\ns_or_b64 s[46:47], s[46:47], vcc")
    e(f"s_cmp_eq_u64 s[46:47], 0\ns_cbranch_scc1 {L('okwave')}")
    e(f"v_mov_b32 v{T+1}, {FLAG}\nv_mov_b32 v{T+2}, 1\nds_write_b32 v{T+1}, v{T+2}")
    e(f"{L('okwave')}:")
    e("s_waitcnt lgkmcnt(0)\ns_barrier")
    e(f"v_mov_b32 v{T+1}, {FLAG}\nds_read_b32 v{T+2}, v{T+1}\ns_waitcnt lgkmcnt(0)\nv_readfirstlane_b32 s46, v{T+2}")
    e(f"s_cmp_lg_u32 s46, 0\ns_cbranch_scc1 {L('safe')}")
    e(f"{L('store')}:")
    if "statt" in OPT: k.st(12)
    P = PP[0][0]
    for r in range(8): e(f"v_cvt_pk_bf16_f32 v{P+r}, v{O+2*r}, v{O+2*r+1}")
    for b in (0, 4):
        e(f"v_permlane32_swap_b32 v{P+b}, v{P+b+2}\nv_permlane32_swap_b32 v{P+b+1}, v{P+b+3}")
    for r in range(4): e(f"v_permlane16_swap_b32 v{P+r}, v{P+4+r}")
    e(f"s_lshl_b32 s40, s{KH}, 5\ns_add_u32 s40, s40, s39")
    e(f"v_and_b32 v{T}, 15, v2\nv_add_u32 v{T}, s40, v{T}\nv_lshlrev_b32 v{T}, 11, v{T}")
    e(f"v_lshrrev_b32 v{T+1}, 4, v2\nv_and_b32 v{T+2}, 1, v{T+1}\nv_lshlrev_b32 v{T+2}, 5, v{T+2}\nv_lshrrev_b32 v{T+1}, 1, v{T+1}\nv_lshlrev_b32 v{T+1}, 4, v{T+1}")
    e(f"v_add_u32 v{T}, v{T}, v{T+1}\nv_add_u32 v{T}, v{T}, v{T+2}")
    e(f"s_lshl_b32 s40, s25, 6\ns_add_u32 s41, s40, {16*2048}")
    e(f"buffer_store_dwordx4 {v(P,4)}, v{T}, s[16:19], s40 offen{SCS}\nbuffer_store_dwordx4 {v(P+4,4)}, v{T}, s[16:19], s41 offen{SCS}")
    if "statt" in OPT: k.st(13)
    e(f"s_add_u32 s35, s26, {C_ATT}")
    k.signal("att", 8, 35, 32, (2, lambda: e(f"s_lshl_b32 s33, s26, 8\ns_lshl_b32 s34, s25, 2\ns_add_u32 s33, s33, s34\ns_add_u32 s33, s33, {FL['wo']}\nv_lshlrev_b32 v6, 7, v2\nv_add_u32 v6, s33, v6")))
    if "statt" in OPT: k.st(14, 7)
    e(f"s_cmp_ge_u32 s24, 4\ns_cbranch_scc1 {nxt_l}\ns_branch {nxt_c}")
    e(f"{L('safe')}:")
    e("s_waitcnt vmcnt(0)\ns_barrier")
    M = NEG; AL = NEG + 2
    SA = SS[0][0]; P0 = PP[0][0]
    zero_acc()
    e(f"v_mov_b32 v{M}, {f32(-3.0e38)}\nv_mov_b32 v{M+1}, {f32(-3.0e38)}")
    addr_setup()
    e("s_mov_b32 s42, 0")
    e(f"s_mov_b32 s44, {NST}")
    e(f"{L('sloop')}:")
    e("s_barrier")
    e("s_mov_b32 s53, 0")
    dma("s53")
    e("s_waitcnt vmcnt(0)\ns_barrier")
    for t in range(4):
        for l in kread(AK0, AK1, t) + vread(t): e(l)
        e("s_waitcnt lgkmcnt(0)")
        for qb in range(2):
            for l in qk(qb, SA, "0"): e(l)
            lane_max16(SA, T, T + 1)
            e(f"v_max_f32 v{T}, v{T}, v{M+qb}\nv_sub_f32 v{AL}, v{M+qb}, v{T}\nv_exp_f32 v{AL}, v{AL}\nv_mov_b32 v{M+qb}, v{T}")
            for r in range(16): e(f"v_sub_f32 v{SA+r}, v{SA+r}, v{T}\nv_exp_f32 v{SA+r}, v{SA+r}")
            for r in range(16): e(f"v_mul_f32 v{O+16*qb+r}, v{O+16*qb+r}, v{AL}")
            for r in range(4): e(f"v_mul_f32 v{LS+4*qb+r}, v{LS+4*qb+r}, v{AL}")
            for r in range(8): e(f"v_cvt_pk_bf16_f32 v{P0+r}, v{SA+2*r}, v{SA+2*r+1}")
            for l in pv(qb, P0): e(l)
    e(f"s_sub_u32 s44, s44, 1\ns_cmp_lg_u32 s44, 0\ns_cbranch_scc1 {L('sloop')}")
    merge("s", M)
    e("s_barrier")
    e(f"s_branch {L('store')}")


def h_phase(k):
    e = k.e; L = lambda n: k.lab("h_" + n)
    HL = 125952
    e("s_lshl_b32 s36, s2, 3\ns_lshl_b32 s37, s24, 1\ns_add_u32 s36, s36, s37")
    e("s_lshl_b32 s36, s36, 11\nv_lshlrev_b32 v3, 4, v2\nv_add_u32 v3, s36, v3")
    k.srd(12, P_X, 0, S * D * 2); k.srd(16, P_WS, WS_H, S * D * 2)
    k.srd(20, P_WS, WS_MODP, 4 * 6144 * 4); k.srd(56, P_WS, WS_MODF, 6144 * 4)
    e("v_lshlrev_b32 v5, 5, v0")
    for p in range(4):
        e(f"s_mov_b32 s37, {p*24576}")
        e(f"buffer_load_dwordx4 {v(64+8*p,4)}, v5, s[20:23], s37 offen\nbuffer_load_dwordx4 {v(68+8*p,4)}, v5, s[20:23], s37 offen offset:16")
    for r in range(2):
        for hf in range(2):
            e(f"buffer_load_dwordx4 {v(8+8*r+4*hf,4)}, v3, s[12:15], 0 offen offset:{r*2048+hf*1024}")
    e("s_lshl_b32 s38, s2, 10\nv_lshlrev_b32 v6, 2, v0\nv_add_u32 v4, s38, v6")
    for p in range(4):
        e(f"s_mov_b32 s37, {p*24576}\nbuffer_load_dword v{96+p}, v4, s[20:23], s37 offen")
    nt_ = k.code_touch("h", k.lab("qkv_c"), k.lab("wo_c"), 24, 4, 1)
    e(f"s_waitcnt vmcnt({8+nt_})")
    for j in range(8):
        e(f"v_add_f32 v{64+j}, v{64+j}, v{72+j}\nv_add_f32 v{80+j}, v{80+j}, v{88+j}\nv_add_f32 v{64+j}, v{64+j}, v{80+j}")
        round_bf16(e, 64 + j)
    e("v_cmp_le_u32 vcc, 128, v0")
    for j in range(8):
        e(f"v_add_f32 v72, 1.0, v{64+j}")
        round_bf16(e, 72)
        e(f"v_cndmask_b32 v{64+j}, v{64+j}, v72, vcc")
    e(f"v_add_u32 v5, {HL}, v5\nds_write_b128 v5, v[64:67]\nds_write_b128 v5, v[68:71] offset:16")
    e("s_waitcnt lgkmcnt(0)\ns_barrier")
    e(f"v_lshlrev_b32 v5, 5, v2\nv_add_u32 v5, {HL}, v5")
    for hf in range(2):
        for q in range(2):
            e(f"ds_read_b128 {v(32+8*hf+4*q,4)}, v5 offset:{hf*2048+q*16}")
            e(f"ds_read_b128 {v(48+8*hf+4*q,4)}, v5 offset:{4096+hf*2048+q*16}")
    e(f"s_waitcnt vmcnt({4+nt_})")
    X = 64
    for r in range(2):
        for j in range(8):
            src = 8 + 8 * r + j
            e(f"v_lshlrev_b32 v{X+16*r+2*j}, 16, v{src}\nv_and_b32 v{X+16*r+2*j+1}, 0xffff0000, v{src}")
    for r in range(2): e(f"v_add_f32 v{104+r}, v{X+16*r}, v{X+16*r+1}")
    for j in range(2, 16):
        for r in range(2): e(f"v_add_f32 v{104+r}, v{104+r}, v{X+16*r+j}")
    wave_sum(e, [104, 105], 106, [0, 1, 2, 3, 4, 5])
    for r in range(2): e(f"v_mul_f32 v{104+r}, {f32(1/1024)}, v{104+r}")
    for j in range(16):
        for r in range(2): e(f"v_sub_f32 v{X+16*r+j}, v{X+16*r+j}, v{104+r}")
    for r in range(2): e(f"v_mul_f32 v{107+r}, v{X+16*r}, v{X+16*r}")
    for j in range(1, 16):
        for r in range(2): e(f"v_fmac_f32 v{107+r}, v{X+16*r+j}, v{X+16*r+j}")
    wave_sum(e, [107, 108], 106, [0, 1, 2, 3, 4, 5])
    for r in range(2):
        e(f"v_mov_b32 v{109+r}, {f32(1e-5)}\nv_fmac_f32 v{109+r}, {f32(1/1024)}, v{107+r}\nv_rsq_f32 v{109+r}, v{109+r}")
    e("s_waitcnt lgkmcnt(0)")
    for r in range(2):
        for j in range(16):
            e(f"v_mul_f32 v{X+16*r+j}, v{X+16*r+j}, v{109+r}\nv_fma_f32 v{X+16*r+j}, v{X+16*r+j}, v{48+j}, v{32+j}")
        for j in range(8): e(f"v_cvt_pk_bf16_f32 v{112+8*r+j}, v{X+16*r+2*j}, v{X+16*r+2*j+1}")
        e(f"buffer_store_dwordx4 {v(112+8*r,4)}, v3, s[16:19], 0 offen offset:{r*2048}{SCS}")
        e(f"buffer_store_dwordx4 {v(116+8*r,4)}, v3, s[16:19], 0 offen offset:{r*2048+1024}{SCS}")
    e("s_waitcnt vmcnt(4)")
    e("v_add_f32 v96, v96, v97\nv_add_f32 v98, v98, v99\nv_add_f32 v96, v96, v98")
    round_bf16(e, 96)
    e(f"s_cmp_ge_u32 s2, 24\ns_cbranch_scc1 {L('nofin')}")
    e(f"buffer_store_dword v96, v4, s[56:59], 0 offen{SCS}")
    e(f"{L('nofin')}:")
    e(f"s_lshr_b32 s35, s2, 4\ns_add_u32 s35, s35, {C_H}")
    def offs():
        e(f"s_lshr_b32 s33, s2, 4\ns_lshl_b32 s33, s33, 9\ns_and_b32 s34, s2, 15\ns_lshl_b32 s34, s34, 2\ns_add_u32 s33, s33, s34\ns_add_u32 s33, s33, {FL['qkv']}")
        e("v_lshlrev_b32 v6, 7, v2\nv_add_u32 v6, s33, v6")
    k.signal("h", 4, 35, 16, (4, offs))

def k_main():
    k = PK("main_kernel", 256, 512, LDS_TOTAL + 16384, 256, 100); e = k.e
    L = k.lab
    e(f"s_cmp_ge_u32 s2, 256\ns_cbranch_scc1 {L('end')}")
    e(f"s_load_dwordx4 s[68:71], s[0:1], {KA_X}\ns_load_dwordx4 s[72:75], s[0:1], {KA_W1}\ns_load_dwordx2 s[76:77], s[0:1], {KA_WO}")
    e(f"s_load_dwordx2 s[78:79], s[0:1], {KA_OUT}\ns_load_dwordx2 s[66:67], s[0:1], {KA_WS}")
    e("v_lshrrev_b32 v1, 6, v0\nv_and_b32 v2, 63, v0\nv_readfirstlane_b32 s24, v1")
    e(f"s_cmp_lg_u32 s24, 0\ns_cbranch_scc1 {L('noinit')}")
    e(f"v_lshlrev_b32 v3, 2, v2\nv_add_u32 v3, {CTL}, v3\nv_mov_b32 v4, 0\nds_write_b32 v3, v4\ns_waitcnt lgkmcnt(0)")
    e(f"{L('noinit')}:")
    e("s_waitcnt lgkmcnt(0)")
    k.srd(CNT, P_WS, WS_CNT, CNT_BYTES)
    k.st(0)
    e(f"s_cmp_ge_u32 s24, 4\ns_cbranch_scc1 {L('qkv_l')}")
    hin = "hsep" not in OPT
    if hin: h_phase(k)
    gemm_phase(k, "qkv", 1024, 1024, 3072, 192, WS_H, S * D * 2, P_WQKV, D * 3 * D * 2, "qkv", 8, 4, 3, L("att_c"), L("att_l"), (C_H, 16, "rb") if hin else None, (1, 2), hbar=hin)
    pf = [(P_WO, D * D * 2), (P_W1, D * DFF * 2), (P_W2, D * DFF * 2)] if "nopf" not in OPT else []
    attn_phase(k, L("wo_c"), L("wo_l"), pf)
    gemm_phase(k, "wo", 1024, 1024, 1024, 64, WS_O, S * D * 2, P_WO, D * D * 2, "wo", 4, 8, 4, L("f1_c"), L("f1_l"), (C_ATT, 32, "rb2"), (5, 6))
    gemm_phase(k, "f1", 1024, 1024, DFF, 224, WS_XG, S * D * 2, P_W1, D * DFF * 2, "ffn1", 8, 4, 3, L("f2_c"), L("f2_l"), (C_WO, 16, "rb"), (7, 8))
    if "nos2" in OPT:
        gemm_phase(k, "f2", DFF, DFF, 1024, 64, WS_F1, S * DFF * 2, P_W2, DFF * D * 2, "ffn2", 4, 8, 4, L("fin"), L("end"), (C_F1, 16, "rb"), (9, 10))
    else:
        gemm_phase(k, "f2", DFF, DFF, 1024, 128, WS_F1, S * DFF * 2, P_W2, DFF * D * 2, "ffn2s", 4, 8, 4, L("fin"), L("end"), (C_F1, 8, "rb"), (9, 10))
    e(f"{L('fin')}:")
    if DIAG:
        e("s_waitcnt vmcnt(0)")
        k.st(11)
        e(f"s_cmp_lg_u32 s24, 0\ns_cbranch_scc1 {L('end')}")
        k.srd(12, P_WS, WS_STAMP + 8 * 512 * 16, 256 * 64)
        e(f"v_lshlrev_b32 v3, 2, v2\nv_add_u32 v4, {L_STAMP}, v3\nds_read_b32 v5, v4\ns_lshl_b32 s32, s2, 6\nv_add_u32 v3, s32, v3\ns_waitcnt lgkmcnt(0)")
        e("s_mov_b64 exec, 0xffff\nbuffer_store_dword v5, v3, s[12:15], 0 offen")
    k.finish()
    return k

def k_mod2():
    k = gen.k_mod()
    lines = k.a.lines
    i = next(n for n, l in enumerate(lines) if "buffer_load_ushort" in l)
    ins = Asm()
    ins.e(f"s_cmp_ge_u32 s2, {-(-CNT_BYTES // 4096)}\ns_cbranch_scc1 mod_kernel_nozero")
    ins.e(f"s_add_u32 s44, s8, {WS_CNT:#x}\ns_addc_u32 s45, s9, 0\ns_mov_b32 s46, {CNT_BYTES}\ns_mov_b32 s47, 0x20000")
    ins.e("s_lshl_b32 s48, s2, 12\nv_lshlrev_b32 v58, 4, v0\nv_mov_b32 v60, 0\nv_mov_b32 v61, 0\nv_mov_b32 v62, 0\nv_mov_b32 v63, 0\nbuffer_store_dwordx4 v[60:63], v58, s[44:47], s48 offen")
    ins.e("mod_kernel_nozero:")
    k.a.lines = lines[:i] + ins.lines + lines[i:]
    return k

def k_probe(idx, mult):
    k = Kern("probe_kernel", 1, 64, 0, 64); e = k.e
    e("s_cmp_ge_u32 s2, 1\ns_cbranch_scc1 probe_kernel_end")
    k.ptr(8, KA_WS); k.ptr(10, KA_DBG)
    e("s_waitcnt lgkmcnt(0)")
    k.srd(12, 8, WS_STAMP, 16 * 512 * 16); k.srd(20, 10, 0, 256)
    e("v_lshlrev_b32 v1, 4, v0\nv_lshlrev_b32 v2, 6, v0")
    for c in range(6): e(f"s_mov_b32 s24, {c*64*16}\nbuffer_load_dword v{8+c}, v1, s[12:15], s24 offen")
    for c in range(4): e(f"s_mov_b32 s24, {8*512*16 + c*64*64 + idx*4}\nbuffer_load_dword v{16+c}, v2, s[12:15], s24 offen")
    e("s_waitcnt vmcnt(0)")
    for c in range(1, 6): e(f"v_min_u32 v8, v8, v{8+c}")
    for c in range(1, 4): e(f"v_max_u32 v16, v16, v{16+c}")
    def red(r, op):
        for b in range(4): e(f"{op}_dpp v{r}, v{r}, v{r} row_ror:{1<<b} row_mask:0xf bank_mask:0xf")
        for w in (16, 32):
            e(f"v_mov_b32 v40, v{r}\nv_permlane{w}_swap_b32 v40, v{r}\n{op} v{r}, v{r}, v40")
    red(8, "v_min_u32"); red(16, "v_max_u32")
    e("v_sub_u32 v16, v16, v8\nv_mov_b32 v13, 0\nbuffer_store_dword v16, v13, s[20:23], 0 offen\nv_readfirstlane_b32 s30, v16")
    e(f"s_mul_i32 s30, s30, {mult}\ns_min_u32 s30, s30, 100000")
    e("s_memrealtime s[32:33]\ns_waitcnt lgkmcnt(0)")
    e("probe_spin:\ns_memrealtime s[34:35]\ns_waitcnt lgkmcnt(0)\ns_sub_u32 s36, s34, s32\ns_cmp_lt_u32 s36, s30\ns_cbranch_scc1 probe_spin")
    k.finish()
    return k

PROBE = None
def build():
    if PROBE is not None: return [k_mod2(), k_main(), k_probe(*PROBE)]
    if "hsep" in OPT: return [k_mod2(), gen.k_h(True), k_main()]
    return [k_mod2(), k_main()]

if __name__ == "__main__":
    for a_ in list(sys.argv):
        if a_.startswith("--opt="): OPT = set(a_[6:].split(",")); sys.argv.remove(a_)
        if a_.startswith("--pfstage="): PFSTAGE = int(a_[10:]); sys.argv.remove(a_)
        if a_.startswith("--scs="): SCS = " " + a_[6:].replace("+", " "); sys.argv.remove(a_)
        if a_.startswith("--l2d="): L2D = int(a_[6:]); sys.argv.remove(a_)
        if a_.startswith("--probe="): PROBE = tuple(int(x) for x in a_[8:].split(",")); sys.argv.remove(a_)
        if a_.startswith("--sleep="): SLEEP = int(a_[8:]); sys.argv.remove(a_)
    if "--diag" in sys.argv: DIAG = True; gen.DIAG = True; sys.argv.remove("--diag")
    txt = emit(build(), header())
    out = sys.argv[1]
    open(out, "w").write(txt)
    print("wrote", out, len(txt), "bytes")
```

```python
import sys
from asmlib import *
import gen
from gen import (NAME, S, D, DFF, H, KA_X, KA_WQKV, KA_WO, KA_BX, KA_W1, KA_W2, KA_C, KA_WMOD, KA_OUT, KA_DBG, KA_WS,
                 WS_MODP, WS_MODF, WS_H, WS_QKV, WS_O, WS_X1, WS_F1, WS_XG, WS_STAT, WS_UB, WS_STAMP, LOG2E, f32, Kern,
                 wave_sum, round_bf16, interleave, header, emit)

WS_CNT = 0x2f00000
C_QKV, C_ATT, C_WO, C_UB, C_F1, C_H = 0, 16, 24, 40, 56, 72
C_MR, C_MRALL = 88, 152
NCNT = 160
FL_BASE = NCNT * 256 + 1536
FL_BASE = (FL_BASE + 255) // 256 * 256
FL = {"qkv": FL_BASE, "att": FL_BASE + 256 * 128, "wo": FL_BASE + 256 * 128 + 256 * 256, "f1": FL_BASE + 256 * 256 + 2 * 256 * 128, "f2": FL_BASE + 256 * 256 + 3 * 256 * 128}
FL["xch"] = FL_BASE + 256 * 256 + 4 * 256 * 128
FL["mr"] = FL["xch"] + 256 * 128
CNT_BYTES = FL["mr"] + 8 * 128
WS_XCH = 0x3800000
OPT = set()
DIAG = False
SC = " sc1"
SCS = " sc1"
P_WS, P_X, P_WQKV, P_W1, P_W2, P_WO, P_OUT = 66, 68, 70, 72, 74, 76, 78
CNT = 28
CTL = 138240
L_SIG = {"qkv": CTL, "att": CTL + 4, "wo": CTL + 8, "ub": CTL + 12, "f1": CTL + 16, "h": CTL + 20, "mr": CTL + 24}
L_DEP = {"wo": CTL + 32, "f1": CTL + 36, "f2": CTL + 40, "qkv": CTL + 44}
L_STAMP = CTL + 64
LDS_TOTAL = CTL + 256
SPIN_MAX = 400000
SLEEP = 2
PFSTAGE = 7
L2D = 8

def exec_mask(n):
    if n < 32: return f"s_mov_b64 exec, {(1 << n) - 1:#x}"
    return f"s_mov_b32 exec_lo, -1\ns_mov_b32 exec_hi, {(1 << (n - 32)) - 1:#x}"

class PK(Kern):
    def st(self, i, wave=0):
        if not DIAG: return
        e = self.e; n = self.lab(f"st{i}")
        e(f"s_cmp_lg_u32 s24, {wave}\ns_cbranch_scc1 {n}\n{'s_memtime' if 'cyc' in OPT else 's_memrealtime'} s[98:99]\ns_waitcnt lgkmcnt(0)\nv_mov_b32 v254, s98\nv_mov_b32 v255, {L_STAMP+4*i}\nds_write_b32 v255, v254\ns_waitcnt lgkmcnt(0)\n{n}:")
    def code_touch(self, tag, frm, to, part_sreg, nparts, per):
        if "code" not in OPT: return 0
        e = self.e; here = self.lab("pc" + tag)
        e(f"s_getpc_b64 s[90:91]\n{here}:\ns_add_u32 s90, s90, {frm}-{here}\ns_addc_u32 s91, s91, 0")
        e(f"s_mul_i32 s92, s{part_sreg}, {per*8192}\nv_lshlrev_b32 v252, 7, v2\nv_add_u32 v252, s92, v252")
        for i in range(per):
            if i: e("v_add_u32 v252, 8192, v252")
            e(f"v_min_u32 v251, {to}-{frm}-4, v252\nglobal_load_dword v253, v251, s[90:91]")
        return per
    def poll(self, tag, cnt_sreg, target, lanes=1):
        e = self.e; L = self.lab
        if cnt_sreg is not None: e(f"s_lshl_b32 s32, s{cnt_sreg}, 8\nv_mov_b32 v6, s32")
        e(f"s_mov_b32 s33, 0\ns_mov_b64 exec, {(1 << lanes) - 1}")
        e(f"{L('poll'+tag)}:")
        e(f"buffer_load_dword v7, v6, {s(CNT,4)}, 0 offen offset:{0 if 'direct' in OPT else 128} sc1\ns_waitcnt vmcnt(0)")
        e(f"v_cmp_gt_u32 vcc, {target}, v7\ns_cmp_eq_u64 vcc, 0\ns_cbranch_scc1 {L('pollx'+tag)}")
        e(f"s_add_u32 s33, s33, 1\ns_cmp_ge_u32 s33, {SPIN_MAX}\ns_cbranch_scc1 {L('pollx'+tag)}")
        e(f"s_sleep {SLEEP}\ns_branch {L('poll'+tag)}")
        e(f"{L('pollx'+tag)}:\ns_mov_b64 exec, -1")
    def dep_wait_loaders(self, tag, cnt_sreg, target, first_wave_cond):
        e = self.e; L = self.lab
        e(f"s_cmp_lg_u32 s24, 4\ns_cbranch_scc1 {L('dw'+tag)}")
        if "noflags" in OPT: self.poll(tag, cnt_sreg, target)
        else:
            if tag == "f2" and "nos2" not in OPT:
                e(f"s_lshl_b32 s34, s25, 1\ns_add_u32 s34, s34, s27\ns_lshl_b32 s34, s34, 7\ns_add_u32 s34, s34, {FL[tag]}")
            elif tag == "f2":
                e(f"s_lshl_b32 s34, s25, 4\ns_add_u32 s34, s34, s26\ns_lshl_b32 s34, s34, 7\ns_add_u32 s34, s34, {FL[tag]}")
            elif tag == "wo":
                e(f"s_lshr_b32 s34, s25, 1\ns_lshl_b32 s34, s34, 1\ns_lshr_b32 s33, s26, 3\ns_add_u32 s34, s34, s33\ns_lshl_b32 s34, s34, 7\ns_add_u32 s34, s34, {FL[tag]}")
            else:
                e(f"s_lshl_b32 s34, s25, 2\ns_lshr_b32 s33, s26, 2\ns_add_u32 s34, s34, s33\ns_lshl_b32 s34, s34, 7\ns_add_u32 s34, s34, {FL[tag]}")
            self.wait_flags(tag, target, 34)
        e(f"v_mov_b32 v6, {L_DEP[tag]}\nv_mov_b32 v7, 1\nds_write_b32 v6, v7\ns_waitcnt lgkmcnt(0)\ns_branch {L('dwx'+tag)}")
        e(f"{L('dw'+tag)}:")
        e(f"v_mov_b32 v6, {L_DEP[tag]}\ns_mov_b32 s33, 0")
        e(f"{L('dwl'+tag)}:")
        e(f"ds_read_b32 v7, v6\ns_waitcnt lgkmcnt(0)\nv_readfirstlane_b32 s34, v7")
        e(f"s_cmp_lg_u32 s34, 0\ns_cbranch_scc1 {L('dwx'+tag)}")
        e(f"s_add_u32 s33, s33, 1\ns_cmp_ge_u32 s33, {SPIN_MAX*4}\ns_cbranch_scc1 {L('dwx'+tag)}")
        e(f"s_sleep 1\ns_branch {L('dwl'+tag)}")
        e(f"{L('dwx'+tag)}:")
    def arrive(self, tag, cnt_sreg, target):
        e = self.e; L = self.lab
        e(f"s_lshl_b32 s33, s{cnt_sreg}, 8\nv_mov_b32 v6, s33\nv_mov_b32 v7, 1")
        if "direct" in OPT:
            e(f"buffer_atomic_add v7, v6, {s(CNT,4)}, 0 offen sc1")
            return
        e(f"buffer_atomic_add v7, v6, {s(CNT,4)}, 0 offen sc0 sc1\ns_waitcnt vmcnt(0)\nv_readfirstlane_b32 s33, v7")
        e(f"s_cmp_lg_u32 s33, {target-1}\ns_cbranch_scc1 {L('arr'+tag)}")
        e(f"v_mov_b32 v7, {target}\nbuffer_store_dword v7, v6, {s(CNT,4)}, 0 offen offset:128 sc1")
        e(f"{L('arr'+tag)}:")
    def signal(self, tag, nwaves, cnt_sreg, target, flags=None):
        e = self.e; L = self.lab
        e("s_waitcnt vmcnt(0)")
        e(f"v_mov_b32 v6, {L_SIG[tag]}\nv_mov_b32 v7, 1\ns_mov_b64 exec, 1")
        e("ds_add_rtn_u32 v7, v6, v7\ns_waitcnt lgkmcnt(0)\nv_readfirstlane_b32 s32, v7\ns_mov_b64 exec, -1")
        e(f"s_cmp_lg_u32 s32, {nwaves-1}\ns_cbranch_scc1 {L('sig'+tag)}")
        if flags is not None and "noflags" not in OPT:
            n, offs = flags
            offs()
            e("v_mov_b32 v7, 1\n" + exec_mask(n))
            e(f"buffer_store_dword v7, v6, {s(CNT,4)}, 0 offen sc1")
        else:
            e("s_mov_b64 exec, 1")
            self.arrive(tag, cnt_sreg, target)
        e(f"{L('sig'+tag)}:\ns_mov_b64 exec, -1")
    def wait_flags(self, tag, n, base_sreg):
        e = self.e; L = self.lab
        e(f"v_lshlrev_b32 v6, 2, v2\nv_add_u32 v6, s{base_sreg}, v6\ns_mov_b32 s33, 0")
        e(exec_mask(n))
        e(f"{L('poll'+tag)}:")
        e(f"buffer_load_dword v7, v6, {s(CNT,4)}, 0 offen sc1\ns_waitcnt vmcnt(0)")
        e(f"v_cmp_ne_u32 vcc, 1, v7\ns_cmp_eq_u64 vcc, 0\ns_cbranch_scc1 {L('pollx'+tag)}")
        e(f"s_add_u32 s33, s33, 1\ns_cmp_ge_u32 s33, {SPIN_MAX}\ns_cbranch_scc1 {L('pollx'+tag)}")
        e(f"s_sleep {SLEEP}\ns_branch {L('poll'+tag)}")
        e(f"{L('pollx'+tag)}:\ns_mov_b64 exec, -1")

def tile_map(e, xr, xc):
    nxc = 16 // xc
    e(f"s_and_b32 s36, s2, 7\ns_lshr_b32 s37, s2, 3")
    e(f"s_and_b32 s38, s36, {nxc-1}\ns_lshr_b32 s39, s36, {nxc.bit_length()-1}")
    e(f"s_and_b32 s40, s37, {xc-1}\ns_lshr_b32 s41, s37, {xc.bit_length()-1}")
    e(f"s_mul_i32 s38, s38, {xc}\ns_add_u32 s26, s38, s40")
    e(f"s_mul_i32 s39, s39, {xr}\ns_add_u32 s25, s39, s41")

def tile_map_s2(e):
    e("s_and_b32 s36, s2, 7\ns_lshr_b32 s37, s2, 3\ns_and_b32 s27, s36, 1\ns_lshr_b32 s36, s36, 1")
    e("s_and_b32 s26, s37, 7\ns_lshr_b32 s37, s37, 3\ns_lshl_b32 s36, s36, 2\ns_add_u32 s25, s36, s37")

def gemm_phase(k, tag, K, lda, ldb, BN, srcA, sizeA, pB, sizeB, epi, xr, xc, NS, nxt_c, nxt_l, dep=None, stamps=(None, None), hbar=False):
    e = k.e
    L = lambda n: k.lab(tag + "_" + n)
    BM, BK = 128, 64
    nA = BM * BK * 2 // 1024; nB = BN * BK * 2 // 1024
    nAw, nBw = nA // 4, nB // 4
    nld = nAw + nBw
    SB = (nA + nB) * 1024
    s2 = epi == "ffn2s"
    nk = K // BK // (2 if s2 else 1)
    TM, TN = 64, BN // 2
    mt, nt = TM // 16, TN // 16
    pitch = BN * 2; cpr = BN // 8
    hbits = {4: 2, 6: 1, 2: 1, 0: 3}[(pitch // 32) % 8]
    ACC = 8; NACC = 4 * mt * nt
    FA = ACC + NACC; NF = 4 * (mt + nt); FB = FA + NF
    AX = FB + NF; AW = AX + 2; EP = AW + nt
    XL = 135168
    assert SB * NS <= XL
    perm = epi == "qkv" and "perm" in OPT
    asc = SC if dep else ""
    e(f"{L('c')}:")
    if s2: tile_map_s2(e)
    else: tile_map(e, xr, xc)
    e("s_lshr_b32 s42, s24, 1\ns_and_b32 s43, s24, 1")
    e("v_and_b32 v3, 15, v2\nv_lshrrev_b32 v4, 4, v2")
    e(f"s_lshl_b32 s44, s25, 7\ns_lshl_b32 s45, s42, 6\ns_add_u32 s44, s44, s45")
    e(f"s_mul_i32 s46, s26, {BN}\ns_mul_i32 s45, s43, {TN}\ns_add_u32 s46, s46, s45")
    k.srd(20, P_WS, WS_MODF, 6144 * 4)
    if epi == "qkv": k.srd(12, P_WS, WS_QKV, 96 * S * 64)
    elif epi == "ffn1": k.srd(12, P_WS, WS_F1, S * DFF * 2)
    elif epi == "wo": k.srd(12, P_WS, WS_X1, S * D * 2); k.srd(16, P_X, 0, S * D * 2)
    elif epi in ("ffn2", "ffn2s"): k.srd(12, P_OUT, 0, S * D * 2); k.srd(16, P_WS, WS_X1, S * D * 2)
    G = EP + 2 * mt * nt; GG = G + 4 * nt; W1R = GG + 4 * nt
    if s2:
        G = EP + 16
        e("s_lshl_b32 s47, s27, 5\ns_add_u32 s46, s46, s47")
        e("s_lshl_b32 s47, s25, 4\ns_lshl_b32 s48, s26, 1\ns_add_u32 s47, s47, s48\ns_add_u32 s47, s47, s43\ns_lshl_b32 s47, s47, 2\ns_lshl_b32 s48, s42, 1\ns_add_u32 s47, s47, s48\ns_add_u32 s47, s47, s27\ns_lshl_b32 s47, s47, 12")
        e("v_lshlrev_b32 v5, 4, v2")
        for j in range(mt):
            e(f"buffer_load_dwordx4 {v(EP+4*j,4)}, v5, s[16:19], s47 offen offset:{j*1024}{SC}")
        e(f"v_lshlrev_b32 v6, 4, v4\ns_lshl_b32 s47, s46, 2\ns_add_u32 s47, s47, {5*1024*4}")
        for i in range(2):
            e(f"buffer_load_dwordx4 {v(G+4*i,4)}, v6, s[20:23], s47 offen offset:{i*64}{SC}")
    if epi == "wo":
        e(f"s_and_b32 s35, s2, 7\ns_lshl_b32 s35, s35, 7\ns_add_u32 s35, s35, {FL['mr']}")
        k.wait_flags("mr", 1, 35)
    if epi in ("wo", "ffn2"):
        if epi == "wo":
            e(f"v_add_u32 v5, s44, v3\nv_lshlrev_b32 v5, 11, v5\nv_lshlrev_b32 v6, 3, v4\nv_add_u32 v5, v5, v6")
            e(f"s_lshl_b32 s47, s46, 1\nv_add_u32 v5, s47, v5")
            for j in range(mt):
                e(f"s_mov_b32 s48, {j*16*2048}")
                for i in range(nt):
                    e(f"buffer_load_dwordx2 {v(EP+2*(j*nt+i),2)}, v5, s[16:19], s48 offen offset:{i*32}")
        else:
            e("s_lshl_b32 s47, s25, 4\ns_add_u32 s47, s47, s26\ns_lshl_b32 s47, s47, 2\ns_add_u32 s47, s47, s24\ns_lshl_b32 s47, s47, 12\nv_lshlrev_b32 v5, 4, v2")
            for j in range(mt):
                e(f"buffer_load_dwordx4 {v(EP+4*j,4)}, v5, s[16:19], s47 offen offset:{j*1024}{SC}")
        gate = (5 if epi == "ffn2" else 2) * 1024
        e(f"v_lshlrev_b32 v6, 4, v4\ns_lshl_b32 s47, s46, 2\ns_add_u32 s47, s47, {gate*4}")
        for i in range(nt):
            e(f"buffer_load_dwordx4 {v(G+4*i,4)}, v6, s[20:23], s47 offen offset:{i*64}{SC}")
        if epi == "wo":
            e(f"s_lshl_b32 s47, s46, 2\ns_add_u32 s47, s47, {4096*4}")
            for i in range(nt):
                e(f"buffer_load_dwordx4 {v(GG+4*i,4)}, v6, s[20:23], s47 offen offset:{i*64}{SC}")
            e("s_lshr_b32 s58, s2, 4\ns_and_b32 s59, s2, 15")
            e(f"v_mul_u32_u24 v5, {(65536+27)//28}, v2\nv_lshrrev_b32 v5, 16, v5\nv_mul_u32_u24 v6, 28, v5\nv_sub_u32 v6, v2, v6")
            e("s_lshl_b32 s60, s58, 6\ns_lshl_b32 s61, s24, 4\ns_add_u32 s60, s60, s61\nv_add_u32 v5, s60, v5")
            e(f"v_mul_u32_u24 v7, {DFF*2}, v5\nv_lshlrev_b32 v6, 4, v6\nv_add_u32 v7, v7, v6\ns_mul_i32 s60, s59, 448\nv_add_u32 v7, s60, v7")
            k.srd(60, P_W1, 0, D * DFF * 2)
            e("v_cmp_gt_u32 vcc, 56, v2\ns_and_saveexec_b64 s[34:35], vcc")
            for i in range(8):
                e(f"s_mov_b32 s64, {i*2*DFF*2}")
                e(f"buffer_load_dwordx4 {v(W1R+4*i,4)}, v7, s[60:63], s64 offen")
            e("v_lshlrev_b32 v5, 2, v5")
            e(f"s_mov_b32 s64, {4096*4}\ns_mov_b32 s65, {3072*4}")
            for i in range(8):
                e(f"buffer_load_dword v{W1R+32+i}, v5, s[20:23], s64 offen offset:{i*8}{SC}")
                e(f"buffer_load_dword v{W1R+40+i}, v5, s[20:23], s65 offen offset:{i*8}{SC}")
            e("s_mov_b64 exec, s[34:35]")
    e(f"v_lshrrev_b32 v5, 1, v3\nv_xor_b32 v5, v5, v4\nv_and_b32 v5, 7, v5")
    e(f"v_lshlrev_b32 v5, 4, v5\ns_lshl_b32 s47, s42, 6\nv_add_u32 v6, s47, v3\nv_lshlrev_b32 v6, 7, v6")
    e(f"v_add_u32 v{AX}, v5, v6\nv_xor_b32 v{AX+1}, 64, v{AX}")
    e("v_lshrrev_b32 v5, 2, v3\nv_and_b32 v6, 3, v2")
    e("v_lshlrev_b32 v7, 3, v4\nv_add_u32 v7, v7, v5")
    e(f"v_mul_u32_u24 v7, {pitch}, v7\nv_lshlrev_b32 v6, 3, v6\nv_add_u32 v7, v7, v6\nv_add_u32 v7, {nA*1024}, v7")
    if hbits == 2: e("v_lshrrev_b32 v5, 1, v5\nv_and_b32 v6, 1, v4\nv_lshlrev_b32 v6, 1, v6\nv_or_b32 v5, v5, v6")
    elif hbits == 1: e("v_and_b32 v5, 1, v4")
    else: e("v_and_b32 v6, 1, v4\nv_lshlrev_b32 v6, 2, v6\nv_or_b32 v5, v5, v6")
    e(f"s_mul_i32 s47, s43, {nt}")
    for i in range(nt):
        e(f"s_add_u32 s48, s47, {i}\nv_xor_b32 v6, s48, v5\nv_lshlrev_b32 v6, 5, v6\nv_add_u32 v{AW+i}, v7, v6")
    for r in range(NACC): e(f"v_mov_b32 v{ACC+r}, 0")
    def reads(ss, F):
        xs = [f"ds_read_b128 {v(F+4*j,4)}, v{AX+ss} offset:{j*2048}" for j in range(mt)]
        ws = []
        for i in range(nt):
            for hh in range(2):
                ws.append(f"ds_read_b64_tr_b16 {v(F+4*mt+4*i+2*hh,2)}, v{AW+i} offset:{(ss*32+hh*4)*pitch}")
        return [xs[0]] + ws[:2] + xs[1:] + ws[2:]
    def mfmas(F):
        return [f"v_mfma_f32_16x16x32_bf16 {v(ACC+4*(j*nt+i),4)}, {v(F+4*mt+4*i,4)}, {v(F+4*j,4)}, {v(ACC+4*(j*nt+i),4)}"
                for j in range(mt) for i in range(nt)]
    def mix(mf, rd, extra=()):
        rd = list(rd)
        if len(rd) <= len(mf) - 4:
            return interleave(mf, rd + list(extra))
        out = []; oi = 0; ex = list(extra)
        for m_ in mf:
            out.append(m_)
            for _ in range(2):
                if oi < len(rd): out.append(rd[oi]); oi += 1
            if oi >= len(rd) and ex: out.append(ex.pop(0))
        out += rd[oi:] + ex
        return out
    if epi == "wo": k.code_touch("w", k.lab("f1_c"), k.lab("f2_c"), 24, 4, 1)
    if epi == "ffn1": k.code_touch("f", k.lab("f1_cloop"), k.lab("end"), 24, 4, 1)
    e(f"s_mov_b32 s49, 0\ns_mov_b32 s54, {SB}\ns_mov_b32 s55, {-(NS-1)*SB & 0xffffffff:#x}")
    e("s_barrier")
    if stamps[0] is not None: k.st(stamps[0])
    for l in reads(0, FA): e(l)
    l2pf = epi in ("qkv", "ffn1") and ("l2" + tag) in OPT
    if l2pf:
        k.srd(56, P_WS, srcA, sizeA); k.srd(60, pB, 0, sizeB)
        e(f"s_cmp_eq_u32 s24, 0\ns_cselect_b32 s65, {(nk-1) & 1}, 99")
        e("s_lshr_b32 s37, s2, 3")
        e(f"s_and_b32 s40, s37, {xc-1}\ns_lshr_b32 s41, s37, {xc.bit_length()-1}")
        e(f"v_lshrrev_b32 v5, 5, v2\nv_add_u32 v5, {L2D}, v5")
        e(f"v_and_b32 v6, 31, v2\ns_lshl_b32 s47, s40, 5\nv_add_u32 v6, s47, v6\ns_lshl_b32 s47, s25, 7\nv_add_u32 v6, s47, v6\nv_lshlrev_b32 v6, 11, v6\nv_lshlrev_b32 v7, 7, v5\nv_add_u32 v250, v6, v7")
        e(f"v_lshlrev_b32 v5, 6, v5\nv_lshrrev_b32 v6, 2, v2\nv_and_b32 v6, 7, v6\nv_add_u32 v5, v5, v6\ns_lshl_b32 s47, s41, 3\nv_add_u32 v5, s47, v5\ns_mov_b32 s47, {ldb*2}\nv_mul_lo_u32 v5, s47, v5")
        e(f"v_and_b32 v6, 3, v2\nv_lshlrev_b32 v6, 7, v6\nv_add_u32 v5, v5, v6\ns_mul_i32 s47, s26, {BN*2}\ns_and_b32 s47, s47, 0xffffff80\nv_add_u32 v249, s47, v5")
    e(f"s_mov_b32 s50, {nk-1}")
    adv_s = f"s_add_u32 s49, s49, 1\ns_cmp_eq_u32 s49, {NS}\ns_cselect_b32 s51, s55, s54\ns_cselect_b32 s49, 0, s49"
    adv_v = [f"v_add_u32 v{r}, s51, v{r}" for r in [AX, AX + 1] + [AW + i for i in range(nt)]]
    e(f"{L('cloop')}:")
    if l2pf:
        e(f"s_and_b32 s47, s50, 1\ns_cmp_lg_u32 s47, s65\ns_cbranch_scc1 {L('nopf')}")
        e(f"buffer_load_dword v248, v250, s[56:59], 0 offen{asc}\nbuffer_load_dword v248, v249, s[60:63], 0 offen")
        e(f"v_add_u32 v250, 256, v250\nv_add_u32 v249, {2*64*ldb*2}, v249")
        e(f"{L('nopf')}:")
    def sprinkle(seq, extra, start):
        out = []; n_ = 0; ex = list(extra)
        for x in seq:
            out.append(x)
            if x.startswith("v_mfma"):
                n_ += 1
                if n_ > start and ex: out.append(ex.pop(0))
        return out + ex
    tight = "loose" not in OPT
    if not tight: e(adv_s)
    e("s_waitcnt lgkmcnt(0)")
    seq = mix(mfmas(FA), reads(1, FB))
    if tight: seq = sprinkle(seq, adv_s.split("\n"), 0)
    last_rd = max(i for i, x in enumerate(seq) if x.startswith("ds_read"))
    tail = [x for x in seq[last_rd + 1:]]
    seq = seq[:last_rd + 1]
    av = list(adv_v)
    for x in tail:
        seq.append(x)
        if av and x.startswith("v_mfma"): seq.append(av.pop(0))
    seq += av
    for l in seq: e(l)
    e("s_waitcnt lgkmcnt(0)\ns_barrier")
    seqb = mix(mfmas(FB), reads(0, FA))
    if tight:
        seqb = sprinkle(seqb, ["s_sub_u32 s50, s50, 1", "s_cmp_lg_u32 s50, 0"], 1)
        for l in seqb: e(l)
        e(f"s_cbranch_scc1 {L('cloop')}")
    else:
        for l in seqb: e(l)
        e(f"s_sub_u32 s50, s50, 1\ns_cmp_lg_u32 s50, 0\ns_cbranch_scc1 {L('cloop')}")
    e("s_waitcnt lgkmcnt(0)")
    for l in mix(mfmas(FA), reads(1, FB)): e(l)
    e("s_waitcnt lgkmcnt(0)")
    if epi != "qkv": e("s_barrier")
    for l in mfmas(FB): e(l)
    if stamps[1] is not None: k.st(stamps[1])
    T = FA
    def acc(i, j): return ACC + 4 * (j * nt + i)
    def pack_pair(ta, tb, dst):
        e(f"v_cvt_pk_bf16_f32 v{dst}, v{ta}, v{ta+1}\nv_cvt_pk_bf16_f32 v{dst+1}, v{ta+2}, v{ta+3}")
        e(f"v_cvt_pk_bf16_f32 v{dst+2}, v{tb}, v{tb+1}\nv_cvt_pk_bf16_f32 v{dst+3}, v{tb+2}, v{tb+3}")
        e(f"v_permlane16_swap_b32 v{dst}, v{dst+2}\nv_permlane16_swap_b32 v{dst+1}, v{dst+3}")
    e("v_and_b32 v5, 1, v4\nv_lshlrev_b32 v5, 5, v5\nv_lshrrev_b32 v6, 1, v4\nv_lshlrev_b32 v6, 4, v6\nv_add_u32 v5, v5, v6")
    if epi == "qkv":
        e("v_lshlrev_b32 v6, 6, v3\nv_add_u32 v5, v5, v6")
        n = 0
        for p in range(nt // 2):
            if perm:
                e(f"s_mul_i32 s52, s43, 96\ns_add_u32 s52, s52, {32*p}\ns_cmp_lt_u32 s52, 64\ns_cselect_b32 s53, {f32(LOG2E * 32 ** -0.5)}, 1.0")
                e("s_lshr_b32 s54, s52, 6\ns_lshl_b32 s54, s54, 5\ns_bfe_u32 s52, s52, 0x10005\ns_add_u32 s52, s52, s54\ns_lshl_b32 s54, s26, 1\ns_add_u32 s52, s52, s54")
                e("s_lshl_b32 s52, s52, 17\ns_lshl_b32 s54, s44, 6\ns_add_u32 s52, s52, s54")
            else:
                e(f"s_add_u32 s52, s46, {32*p}\ns_cmp_lt_u32 s52, 1024\ns_cselect_b32 s53, {f32(LOG2E * 32 ** -0.5)}, 1.0")
                e(f"s_lshl_b32 s52, s52, 12\ns_lshl_b32 s54, s44, 6\ns_add_u32 s52, s52, s54")
            for j in range(mt):
                ta, tb = acc(2 * p, j), acc(2 * p + 1, j)
                for r in range(4):
                    e(f"v_mul_f32 v{ta+r}, s53, v{ta+r}\nv_mul_f32 v{tb+r}, s53, v{tb+r}")
                d = T + 4 * (n % 8); n += 1
                pack_pair(ta, tb, d)
                e(f"buffer_store_dwordx4 {v(d,4)}, v5, s[12:15], s52 offen offset:{j*1024}{SCS}")
        e(f"s_add_u32 s35, s26, {C_QKV}")
        k.signal("qkv", 4, 35, 16, (6, lambda: e(f"s_mul_i32 s33, s26, 6\nv_add_u32 v6, s33, v2\nv_lshrrev_b32 v7, 5, v6\nv_and_b32 v6, 31, v6\nv_lshlrev_b32 v6, 8, v6"
                                                        f"\nv_lshlrev_b32 v7, 6, v7\nv_add_u32 v6, v6, v7"
                                                        f"\ns_lshl_b32 s33, s25, 2\ns_add_u32 s33, s33, {FL['att']}\nv_add_u32 v6, s33, v6")))
    elif epi == "ffn1":
        ST = FA; UU = FA + 8; BB = FA + 36; TMP = FA + 64; T = FA + 72
        e(f"s_lshl_b32 s47, s42, 6\nv_add_u32 v6, s47, v3\nv_lshlrev_b32 v6, 3, v6\nv_add_u32 v6, {XL}, v6")
        for j in range(mt): e(f"ds_read_b64 {v(ST+2*j,2)}, v6 offset:{j*128}")
        e(f"s_mul_i32 s47, s43, {TN*4}\ns_add_u32 s47, s47, {XL+1024}\nv_lshlrev_b32 v7, 4, v4\nv_add_u32 v7, s47, v7")
        for i in range(nt):
            e(f"ds_read_b128 {v(UU+4*i,4)}, v7 offset:{i*64}\nds_read_b128 {v(BB+4*i,4)}, v7 offset:{896+i*64}")
        e("s_lshl_b32 s47, s42, 6\nv_add_u32 v6, s47, v3\nv_lshlrev_b32 v6, 6, v6\nv_lshrrev_b32 v7, 1, v4\nv_lshlrev_b32 v7, 4, v7\nv_add_u32 v6, v6, v7")
        e("v_and_b32 v7, 1, v4\nv_lshlrev_b32 v5, 5, v7\nv_add_u32 v5, v5, v6")
        e("v_lshlrev_b32 v7, 10, v7\nv_add_u32 v6, v6, v7\ns_lshl_b32 s47, s43, 5\nv_add_u32 v6, s47, v6")
        e(f"s_mul_i32 s48, s25, 112\ns_mul_i32 s47, s26, 7\ns_add_u32 s48, s48, s47\ns_lshl_b32 s48, s48, 13")
        e(f"s_add_u32 s53, s48, {3*8192}")
        e("s_waitcnt lgkmcnt(0)")
        def ln(i, j, t):
            a_ = acc(i, j)
            for h_ in range(2):
                e(f"v_pk_fma_f32 {v(t+2*h_,2)}, {v(ST+2*j,2)}, {v(UU+4*i+2*h_,2)}, {v(BB+4*i+2*h_,2)} op_sel_hi:[0,1,1] neg_lo:[1,0,0] neg_hi:[1,0,0]")
            for h_ in range(2):
                e(f"v_pk_fma_f32 {v(a_+2*h_,2)}, {v(a_+2*h_,2)}, {v(ST+2*j,2)}, {v(t+2*h_,2)} op_sel:[0,1,0]")
        cnt = [0]
        def put(ta, tb, addr, soff, off):
            d = T + 4 * (cnt[0] % 4); cnt[0] += 1
            e(f"v_cvt_pk_bf16_f32 v{d}, v{ta}, v{ta+1}\nv_cvt_pk_bf16_f32 v{d+1}, v{ta+2}, v{ta+3}")
            e(f"v_cvt_pk_bf16_f32 v{d+2}, v{tb}, v{tb+1}\nv_cvt_pk_bf16_f32 v{d+3}, v{tb+2}, v{tb+3}")
            for q in range(4): e(f"v_pk_max_i16 v{d+q}, v{d+q}, 0")
            e(f"v_permlane16_swap_b32 v{d}, v{d+2}\nv_permlane16_swap_b32 v{d+1}, v{d+3}")
            e(f"buffer_store_dwordx4 {v(d,4)}, {addr}, s[12:15], {soff} offen offset:{off}{SCS}")
        XA = 139264; XR = T + 16
        e(f"s_lshl_b32 s47, s24, 10\nv_lshlrev_b32 v7, 4, v2\nv_add_u32 v7, s47, v7\nv_add_u32 v7, {XA}, v7")
        e(f"s_cmp_eq_u32 s43, 1\ns_cbranch_scc1 {L('ep1')}")
        for wn_ in range(2):
            if wn_ == 1: e(f"{L('ep1')}:\ns_add_u32 s48, s48, {4*8192}")
            single = 6 if wn_ == 0 else 0
            pairs = [(0, 1), (2, 3), (4, 5)] if wn_ == 0 else [(1, 2), (3, 4), (5, 6)]
            mine = (0, 1) if wn_ == 0 else (2, 3); give = (2, 3) if wn_ == 0 else (0, 1)
            for jj in (0, 2):
                ln(single, jj, TMP); ln(single, jj + 1, TMP + 4)
            for j in range(4):
                a_ = acc(single, j)
                e(f"v_cvt_pk_bf16_f32 v{XR+2*j}, v{a_}, v{a_+1}\nv_cvt_pk_bf16_f32 v{XR+2*j+1}, v{a_+2}, v{a_+3}")
            for q in range(8): e(f"v_pk_max_i16 v{XR+q}, v{XR+q}, 0")
            e(f"ds_write_b128 v7, {v(XR+2*give[0],4)}\ns_waitcnt lgkmcnt(0)")
            e(f"s_lshl_b32 s47, s24, 2\ns_add_u32 s47, s47, {CTL+48}\nv_mov_b32 v{TMP}, s47\nv_mov_b32 v{TMP+1}, 1\nds_write_b32 v{TMP}, v{TMP+1}")
            for pi, (ia, ib) in enumerate(pairs):
                for j in range(mt):
                    ln(ia, j, TMP); ln(ib, j, TMP + 4)
                    put(acc(ia, j), acc(ib, j), "v5", "s48", j * 1024)
                if pi < 2: e("s_add_u32 s48, s48, 8192")
            tg = f"x{wn_}"
            e(f"s_xor_b32 s47, s24, 1\ns_lshl_b32 s47, s47, 2\ns_add_u32 s47, s47, {CTL+48}\nv_mov_b32 v{TMP}, s47\ns_mov_b32 s33, 0")
            e(f"{L('xw'+tg)}:\nds_read_b32 v{TMP+1}, v{TMP}\ns_waitcnt lgkmcnt(0)\nv_readfirstlane_b32 s34, v{TMP+1}")
            e(f"s_cmp_lg_u32 s34, 0\ns_cbranch_scc1 {L('xx'+tg)}\ns_add_u32 s33, s33, 1\ns_cmp_lt_u32 s33, {SPIN_MAX}\ns_cbranch_scc1 {L('xw'+tg)}")
            e(f"{L('xx'+tg)}:")
            e(f"v_xor_b32 v7, 1024, v7\nds_read_b128 {v(TMP,4)}, v7\ns_waitcnt lgkmcnt(0)")
            for n_, j in enumerate(mine):
                d = T + 4 * (cnt[0] % 4); cnt[0] += 1
                own = XR + 2 * j; oth = TMP + 2 * n_
                a0, b0 = (own, oth) if wn_ == 0 else (oth, own)
                e(f"v_mov_b32 v{d}, v{a0}\nv_mov_b32 v{d+1}, v{a0+1}\nv_mov_b32 v{d+2}, v{b0}\nv_mov_b32 v{d+3}, v{b0+1}")
                e(f"v_permlane16_swap_b32 v{d}, v{d+2}\nv_permlane16_swap_b32 v{d+1}, v{d+3}")
                e(f"buffer_store_dwordx4 {v(d,4)}, v5, s[12:15], s53 offen offset:{j*1024}{SCS}")
            if wn_ == 0: e(f"s_branch {L('ep2')}")
        e(f"{L('ep2')}:")
        if "stf1" in OPT: k.st(12)
        e(f"s_add_u32 s35, s25, {C_F1}")
        k.signal("f1", 4, 35, 16, (16, lambda: e(f"s_lshl_b32 s33, s25, 11\ns_lshl_b32 s34, s26, 2\ns_add_u32 s33, s33, s34\ns_add_u32 s33, s33, {FL['f2']}\nv_lshlrev_b32 v6, 7, v2\nv_add_u32 v6, s33, v6")) if "nos2" in OPT else
                 (1, lambda: e(f"s_lshl_b32 s33, s25, 1\ns_lshr_b32 s34, s26, 3\ns_add_u32 s33, s33, s34\ns_lshl_b32 s33, s33, 7\ns_and_b32 s34, s26, 7\ns_lshl_b32 s34, s34, 2\ns_add_u32 s33, s33, s34\ns_add_u32 s33, s33, {FL['f2']}\nv_mov_b32 v6, s33")))
        if "stf1" in OPT: k.st(13)
    elif s2:
        e(f"s_cmp_eq_u32 s27, 0\ns_cbranch_scc1 {L('noswap')}")
        for j in range(mt):
            for r in range(8): e(f"v_swap_b32 v{acc(0,j)+r}, v{acc(2,j)+r}")
        e(f"{L('noswap')}:")
        k.srd(56, P_WS, WS_XCH, 128 * 2 * 4 * 8192)
        e("s_lshl_b32 s47, s25, 3\ns_add_u32 s47, s47, s26\ns_lshl_b32 s47, s47, 1")
        e("s_xor_b32 s48, s27, 1\ns_add_u32 s48, s48, s47\ns_lshl_b32 s49, s48, 2\ns_add_u32 s49, s49, s24\ns_lshl_b32 s49, s49, 13")
        e("s_add_u32 s52, s47, s27\ns_lshl_b32 s53, s52, 2\ns_add_u32 s53, s53, s24\ns_lshl_b32 s53, s53, 13")
        e("v_lshlrev_b32 v7, 4, v2")
        for j in range(mt):
            if j == 2: e("s_add_u32 s49, s49, 4096")
            e(f"buffer_store_dwordx4 {v(acc(2,j),4)}, v7, s[56:59], s49 offen offset:{(j%2)*2048}{SCS}")
            e(f"buffer_store_dwordx4 {v(acc(3,j),4)}, v7, s[56:59], s49 offen offset:{(j%2)*2048+1024}{SCS}")
        e("s_waitcnt vmcnt(0)")
        e(f"s_lshl_b32 s48, s48, 7\ns_lshl_b32 s54, s24, 2\ns_add_u32 s48, s48, s54\ns_add_u32 s48, s48, {FL['xch']}\nv_mov_b32 v6, s48\nv_mov_b32 v249, 1")
        e(f"s_mov_b64 exec, 1\nbuffer_store_dword v249, v6, {s(CNT,4)}, 0 offen sc1\ns_mov_b64 exec, -1")
        e(f"s_lshl_b32 s52, s52, 7\ns_add_u32 s52, s52, s54\ns_add_u32 s52, s52, {FL['xch']}\nv_mov_b32 v6, s52\ns_mov_b32 s33, 0\ns_mov_b64 exec, 1")
        e(f"{L('xpoll')}:")
        e(f"buffer_load_dword v249, v6, {s(CNT,4)}, 0 offen sc1\ns_waitcnt vmcnt(0)\nv_readfirstlane_b32 s34, v249")
        e(f"s_cmp_eq_u32 s34, 1\ns_cbranch_scc1 {L('xdone')}\ns_add_u32 s33, s33, 1\ns_cmp_lt_u32 s33, {SPIN_MAX}\ns_cbranch_scc1 {L('xpoll')}")
        e(f"{L('xdone')}:\ns_mov_b64 exec, -1")
        for j in range(mt):
            if j == 2: e("s_add_u32 s53, s53, 4096")
            e(f"buffer_load_dwordx4 {v(acc(2,j),4)}, v7, s[56:59], s53 offen offset:{(j%2)*2048}{SC}")
            e(f"buffer_load_dwordx4 {v(acc(3,j),4)}, v7, s[56:59], s53 offen offset:{(j%2)*2048+1024}{SC}")
        XT = T + 32
        e(f"v_add_u32 v6, s44, v3\nv_lshlrev_b32 v6, 11, v6\ns_lshl_b32 s47, s46, 1\nv_add_u32 v6, s47, v6\nv_add_u32 v5, v5, v6")
        for j in range(mt):
            e(f"s_waitcnt vmcnt({2*(mt-1-j) + j})")
            for q in range(4): e(f"v_pk_add_f32 {v(acc(0,j)+2*q,2)}, {v(acc(0,j)+2*q,2)}, {v(acc(2,j)+2*q,2)}")
            e(f"s_mov_b32 s48, {j*16*2048}")
            d = T + 4 * (j % 2)
            for i in range(2):
                a0 = acc(i, j); x0 = EP + 4 * j + 2 * i
                for q in range(2):
                    e(f"v_lshlrev_b32 v{XT+2*q}, 16, v{x0+q}\nv_and_b32 v{XT+2*q+1}, 0xffff0000, v{x0+q}")
                for q in range(2):
                    e(f"v_pk_fma_f32 {v(a0+2*q,2)}, {v(a0+2*q,2)}, {v(G+4*i+2*q,2)}, {v(XT+2*q,2)}")
            pack_pair(acc(0, j), acc(1, j), d)
            e(f"buffer_store_dwordx4 {v(d,4)}, v5, s[12:15], s48 offen{' sc1' if 'outsc1' in OPT else ('' if 'outplain' in OPT else ' nt')}")
    else:
        e("s_waitcnt vmcnt(0)")
        XT = T + 32
        e(f"v_add_u32 v6, s44, v3\nv_lshlrev_b32 v6, 11, v6\ns_lshl_b32 s47, s46, 1\nv_add_u32 v6, s47, v6\nv_add_u32 v5, v5, v6")
        if epi == "wo":
            k.srd(16, P_WS, WS_XG, S * D * 2); k.srd(60, P_WS, WS_STAT, 32 * S * 8)
            for r in range(4 * nt):
                e(f"v_add_f32 v{GG+r}, 1.0, v{GG+r}"); round_bf16(e, GG + r)
            e(f"s_lshl_b32 s49, s26, 1\ns_add_u32 s49, s49, s43\ns_lshl_b32 s49, s49, 14\ns_lshl_b32 s50, s44, 3\ns_add_u32 s49, s49, s50")
            e("v_lshlrev_b32 v1, 3, v3\nv_and_b32 v6, 1, v4\nv_lshlrev_b32 v6, 2, v6\nv_add_u32 v1, v1, v6")
            e("s_lshl_b32 s47, s25, 4\ns_add_u32 s47, s47, s26\ns_lshl_b32 s47, s47, 2\ns_add_u32 s47, s47, s24\ns_lshl_b32 s47, s47, 12\nv_lshlrev_b32 v7, 4, v2\nv_mov_b32 v253, v7")
        for j in range(mt):
            e(f"s_mov_b32 s48, {j*16*2048}")
            d = T + 4 * (j % 2); d2 = T + 8 + 4 * (j % 2); SM = T + 16 + 4 * (j % 2)
            for i in range(nt):
                a0 = acc(i, j); x0 = EP + 2 * (j * nt + i)
                for q in range(2):
                    e(f"v_lshlrev_b32 v{XT+2*q}, 16, v{x0+q}\nv_and_b32 v{XT+2*q+1}, 0xffff0000, v{x0+q}")
                for q in range(2):
                    e(f"v_pk_fma_f32 {v(a0+2*q,2)}, {v(a0+2*q,2)}, {v(G+4*i+2*q,2)}, {v(XT+2*q,2)}")
            ta, tb = acc(0, j), acc(1, j)
            e(f"v_cvt_pk_bf16_f32 v{d}, v{ta}, v{ta+1}\nv_cvt_pk_bf16_f32 v{d+1}, v{ta+2}, v{ta+3}")
            e(f"v_cvt_pk_bf16_f32 v{d+2}, v{tb}, v{tb+1}\nv_cvt_pk_bf16_f32 v{d+3}, v{tb+2}, v{tb+3}")
            if epi == "ffn2":
                e(f"v_permlane16_swap_b32 v{d}, v{d+2}\nv_permlane16_swap_b32 v{d+1}, v{d+3}")
                e(f"buffer_store_dwordx4 {v(d,4)}, v5, s[12:15], s48 offen")
                continue
            for q in range(2):
                e(f"v_pk_mul_f32 {v(XT+2*q,2)}, {v(ta+2*q,2)}, {v(GG+2*q,2)}\nv_pk_mul_f32 {v(XT+4+2*q,2)}, {v(tb+2*q,2)}, {v(GG+4+2*q,2)}")
            for q in range(4): e(f"v_cvt_pk_bf16_f32 v{d2+q}, v{XT+2*q}, v{XT+2*q+1}")
            e(f"v_permlane16_swap_b32 v{d2}, v{d2+2}\nv_permlane16_swap_b32 v{d2+1}, v{d2+3}")
            e(f"buffer_store_dwordx4 {v(d2,4)}, v5, s[16:19], s48 offen{SCS}")
            e(f"buffer_store_dwordx4 {v(d,4)}, v253, s[12:15], s47 offen offset:{j*1024}{SCS}")
            e(f"v_pk_add_f32 {v(SM,2)}, {v(ta,2)}, {v(ta+2,2)}\nv_pk_mul_f32 {v(SM+2,2)}, {v(ta,2)}, {v(ta,2)}")
            e(f"v_pk_add_f32 {v(SM,2)}, {v(SM,2)}, {v(tb,2)}\nv_pk_fma_f32 {v(SM+2,2)}, {v(ta+2,2)}, {v(ta+2,2)}, {v(SM+2,2)}")
            e(f"v_pk_add_f32 {v(SM,2)}, {v(SM,2)}, {v(tb+2,2)}\nv_pk_fma_f32 {v(SM+2,2)}, {v(tb,2)}, {v(tb,2)}, {v(SM+2,2)}")
            e(f"v_pk_fma_f32 {v(SM+2,2)}, {v(tb+2,2)}, {v(tb+2,2)}, {v(SM+2,2)}")
            e(f"v_add_f32 v{SM}, v{SM}, v{SM+1}\nv_add_f32 v{SM+2}, v{SM+2}, v{SM+3}")
            e(f"v_permlane16_swap_b32 v{SM}, v{SM+2}\nv_add_f32 v{SM}, v{SM}, v{SM+2}\nv_mov_b32 v{SM+1}, v{SM}")
            e(f"v_permlane32_swap_b32 v{SM}, v{SM+1}\nv_add_f32 v{SM}, v{SM}, v{SM+1}")
            e(f"s_mov_b32 exec_lo, -1\ns_mov_b32 exec_hi, 0\nbuffer_store_dword v{SM}, v1, s[60:63], s49 offen offset:{j*128}{SCS}\ns_mov_b64 exec, -1")
        if epi == "wo":
            if "stwo" in OPT: k.st(12)
            e(f"s_add_u32 s35, s25, {C_WO}")
            k.signal("wo", 4, 35, 16, (4, lambda: e(f"s_lshl_b32 s33, s25, 9\ns_lshl_b32 s34, s26, 2\ns_add_u32 s33, s33, s34\ns_add_u32 s33, s33, {FL['f1']}\nv_lshlrev_b32 v6, 7, v2\nv_add_u32 v6, s33, v6")))
            if "stwo" in OPT: k.st(13)
            UA = ACC
            for r in range(16): e(f"v_mov_b32 v{UA+r}, 0")
            for i in range(8):
                g_ = W1R + 32 + i; s_ = W1R + 40 + i
                e(f"v_add_f32 v{g_}, 1.0, v{g_}"); round_bf16(e, g_)
                for q in range(4):
                    w_ = W1R + 4 * i + q
                    e(f"v_lshlrev_b32 v6, 16, v{w_}\nv_and_b32 v7, 0xffff0000, v{w_}")
                    e(f"v_fmac_f32 v{UA+2*q}, v{g_}, v6\nv_fmac_f32 v{UA+2*q+1}, v{g_}, v7\nv_fmac_f32 v{UA+8+2*q}, v{s_}, v6\nv_fmac_f32 v{UA+8+2*q+1}, v{s_}, v7")
            UL = 139264
            e(f"v_mul_u32_u24 v5, {(65536+27)//28}, v2\nv_lshrrev_b32 v5, 16, v5\nv_mul_u32_u24 v6, 28, v5\nv_sub_u32 v6, v2, v6")
            e(f"s_lshl_b32 s32, s24, 1\nv_add_u32 v5, s32, v5\nv_mul_u32_u24 v5, 1792, v5\nv_lshlrev_b32 v6, 5, v6\nv_add_u32 v5, v5, v6\nv_add_u32 v5, {UL}, v5")
            e("v_cmp_gt_u32 vcc, 56, v2\ns_and_saveexec_b64 s[34:35], vcc")
            e(f"ds_write_b128 v5, {v(UA,4)}\nds_write_b128 v5, {v(UA+4,4)} offset:16\nds_write_b128 v5, {v(UA+8,4)} offset:896\nds_write_b128 v5, {v(UA+12,4)} offset:912")
            e("s_mov_b64 exec, s[34:35]\ns_waitcnt lgkmcnt(0)")
            e(f"v_mov_b32 v6, {L_SIG['ub']}\nv_mov_b32 v7, 1\ns_mov_b64 exec, 1")
            e("ds_add_rtn_u32 v7, v6, v7\ns_waitcnt lgkmcnt(0)\nv_readfirstlane_b32 s32, v7\ns_mov_b64 exec, -1")
            e(f"s_cmp_lg_u32 s32, 3\ns_cbranch_scc1 {L('ubx')}")
            e(f"v_lshlrev_b32 v5, 2, v2\nv_add_u32 v5, {UL}, v5")
            for m_ in range(7):
                for rr in range(8): e(f"ds_read_b32 v{UA+rr}, v5 offset:{rr*1792+m_*256}")
                e("s_waitcnt lgkmcnt(0)")
                for rr in range(1, 8): e(f"v_add_f32 v{UA}, v{UA}, v{UA+rr}")
                e(f"v_mov_b32 v{UA+16+m_}, v{UA}")
            k.srd(16, P_WS, WS_UB, 16 * 2 * DFF * 4)
            e(f"s_mul_i32 s49, s58, {2*DFF*4}\ns_mul_i32 s50, s59, 896\ns_add_u32 s49, s49, s50")
            for m_ in range(7):
                e(f"v_add_u32 v5, {64*m_}, v2\nv_cmp_le_u32 vcc, 224, v5\nv_mov_b32 v6, {DFF*4 - 896}\nv_cndmask_b32 v6, 0, v6, vcc\nv_lshl_add_u32 v5, v5, 2, v6")
                e(f"buffer_store_dword v{UA+16+m_}, v5, s[16:19], s49 offen{SCS}")
            e("s_waitcnt vmcnt(0)")
            e(f"s_add_u32 s35, s59, {C_UB}\ns_mov_b64 exec, 1")
            k.arrive("ub", 35, 16)
            e("s_mov_b64 exec, -1")
            e(f"{L('ubx')}:")
    e(f"s_branch {nxt_c}")
    e(f"{L('l')}:")
    if s2: tile_map_s2(e)
    else: tile_map(e, xr, xc)
    k.srd(4, P_WS, srcA, sizeA); k.srd(8, pB, 0, sizeB)
    e("s_sub_u32 s42, s24, 4")
    LA = 8
    lda2, ldb2 = lda * 2, ldb * 2
    blocked = epi in ("ffn2", "ffn2s")
    if blocked:
        e(f"s_mul_i32 s43, s25, {112*8192}\ns_mul_i32 s44, s42, {nAw*8*64}\ns_add_u32 s43, s43, s44")
        e("v_lshrrev_b32 v3, 3, v2\nv_lshlrev_b32 v3, 6, v3\nv_add_u32 v3, s43, v3")
        e("v_and_b32 v4, 7, v2\nv_lshrrev_b32 v5, 4, v2")
        for i in range(nAw):
            e(f"v_xor_b32 v6, {(i&1)*4}, v5\nv_xor_b32 v6, v6, v4\nv_lshrrev_b32 v7, 2, v6\nv_lshlrev_b32 v7, 13, v7\nv_and_b32 v6, 3, v6\nv_lshlrev_b32 v6, 4, v6")
            e(f"v_add3_u32 v6, v6, v7, v3\nv_add_u32 v{LA+i}, {i*8*64}, v6")
    else:
        e(f"s_lshl_b32 s43, s25, 7\ns_mul_i32 s44, s42, {nAw*8}\ns_add_u32 s43, s43, s44")
        e(f"v_lshrrev_b32 v3, 3, v2\nv_add_u32 v3, s43, v3\ns_mov_b32 s45, {lda2}\nv_mul_lo_u32 v3, s45, v3")
        e("v_and_b32 v4, 7, v2\nv_lshrrev_b32 v5, 4, v2")
        for i in range(nAw):
            e(f"v_xor_b32 v6, {(i&1)*4}, v5\nv_xor_b32 v6, v6, v4\nv_lshlrev_b32 v6, 4, v6\nv_add_u32 v6, v6, v3")
            e(f"v_add_u32 v{LA+i}, {i*8*lda2}, v6")
    ASTEP = 16384 if blocked else BK * 2
    magic = (65536 + cpr - 1) // cpr
    assert all((p * magic) >> 16 == p // cpr for p in range(nBw * 64)) and nBw * 64 == 16 * cpr
    e(f"s_mul_i32 s43, s42, {16*ldb2}\ns_mul_i32 s44, s26, {128 if perm else BN*2}\ns_add_u32 s43, s43, s44")
    for i in range(nBw):
        e(f"v_add_u32 v3, {i*64}, v2\nv_mul_u32_u24 v4, {magic}, v3\nv_lshrrev_b32 v4, 16, v4")
        e(f"v_mul_u32_u24 v5, {cpr}, v4\nv_sub_u32 v3, v3, v5")
        if hbits == 2: e("v_and_b32 v5, 2, v4\nv_lshrrev_b32 v6, 1, v4\nv_and_b32 v6, 4, v6\nv_or_b32 v5, v5, v6")
        elif hbits == 1: e("v_lshrrev_b32 v5, 2, v4\nv_and_b32 v5, 2, v5")
        else: e("v_and_b32 v5, 3, v4\nv_lshrrev_b32 v6, 1, v4\nv_and_b32 v6, 4, v6\nv_or_b32 v5, v5, v6\nv_lshlrev_b32 v5, 1, v5")
        e("v_xor_b32 v3, v3, v5")
        if perm: e("v_lshrrev_b32 v5, 3, v3\nv_and_b32 v3, 7, v3\nv_lshlrev_b32 v5, 7, v5\nv_add_u32 v3, v3, v5")
        e(f"v_lshlrev_b32 v3, 4, v3\ns_mov_b32 s45, {ldb2}\nv_mul_lo_u32 v4, s45, v4\nv_add_u32 v3, v3, v4")
        e(f"v_add_u32 v{LA+nAw+i}, s43, v3")
    e(f"s_mul_i32 s46, s42, {nAw*1024}")
    e(f"s_mul_i32 s47, s42, {nBw*1024}\ns_add_u32 s47, s47, {nA*1024}")
    def issue_x(lds_s, off_s):
        for i in range(nAw):
            e(f"s_add_u32 m0, {lds_s}, {i*1024}")
            e(f"buffer_load_dwordx4 v{LA+i}, s[4:7], {off_s} offen{asc} lds")
    def issue_w(lds_s, off_s):
        for i in range(nBw):
            e(f"s_add_u32 m0, {lds_s}, {i*1024}")
            e(f"buffer_load_dwordx4 v{LA+nAw+i}, s[8:11], {off_s} offen lds")
    if s2: e(f"s_mul_i32 s62, s27, {nk*ASTEP}\ns_mul_i32 s63, s27, {nk*BK*ldb2}")
    else: e("s_mov_b32 s62, 0\ns_mov_b32 s63, 0")
    def w_prologue():
        for st in range(NS - 1):
            e(f"s_add_u32 s52, s47, {st*SB}\ns_add_u32 s49, s63, {st*BK*ldb2}")
            issue_w("s52", "s49")
    if dep:
        base, target, kind = dep
        e(f"s_lshr_b32 s35, s25, 1\ns_add_u32 s35, s35, {base}" if kind == "rb2" else f"s_add_u32 s35, s25, {base}")
        if "wfirst" in OPT:
            w_prologue()
            k.dep_wait_loaders(tag, 35, target, None)
        else:
            e(f"s_cmp_eq_u32 s24, 4\ns_cbranch_scc1 {L('w4a')}")
            w_prologue()
            e(f"{L('w4a')}:")
            if hbar and "nowq" not in OPT:
                e(f"s_cmp_eq_u32 s24, 4\ns_cbranch_scc1 {L('nowqpf')}")
                e("s_mul_i32 s43, s2, 3\ns_add_u32 s43, s43, s24\ns_sub_u32 s43, s43, 5\ns_lshl_b32 s43, s43, 13\nv_lshlrev_b32 v3, 7, v2")
                e("buffer_load_dword v253, v3, s[8:11], s43 offen")
                e(f"{L('nowqpf')}:")
            if hbar: e("s_barrier")
            k.dep_wait_loaders(tag, 35, target, None)
            e(f"s_cmp_lg_u32 s24, 4\ns_cbranch_scc1 {L('w4b')}")
            w_prologue()
            e(f"{L('w4b')}:")
        if tag == "f1" and "stwo" in OPT: k.st(14, 4)
        if tag == "wo" and "statt" in OPT: k.st(15, 4)
        if tag == "f2" and "stf1" in OPT: k.st(14, 4)
    else:
        w_prologue()
    for st in range(NS - 1):
        e(f"s_add_u32 s51, s46, {st*SB}\ns_add_u32 s48, s62, {st*ASTEP}")
        issue_x("s51", "s48")
    e(f"s_add_u32 s48, s62, {(NS-1)*ASTEP}\ns_add_u32 s49, s63, {(NS-1)*BK*ldb2}\ns_mov_b32 s50, {(NS-1)*SB}")
    def issue():
        e("s_add_u32 s51, s50, s46\ns_add_u32 s52, s50, s47")
        issue_x("s51", "s48"); issue_w("s52", "s49")
        e(f"s_add_u32 s48, s48, {ASTEP}\ns_add_u32 s49, s49, {BK*ldb2}")
        e(f"s_add_u32 s50, s50, {SB}\ns_cmp_eq_u32 s50, {SB*NS}\ns_cselect_b32 s50, 0, s50")
    e(f"s_waitcnt vmcnt({nAw*(NS-2)})\ns_barrier")
    issue()
    e(f"s_waitcnt vmcnt({nAw*(NS-3) + nld})\ns_barrier" if NS >= 3 else "")
    issue()
    for t in range(2, NS - 1):
        e(f"s_waitcnt vmcnt({nAw*(NS-2-t) + nld*t})\ns_barrier")
        issue()
    done = max(2, NS - 1)
    e(f"s_mov_b32 s53, {nk-(NS-1)-done}")
    e(f"{L('lloop')}:")
    e(f"s_waitcnt vmcnt({nld*(NS-2)})\ns_barrier")
    issue()
    e(f"s_sub_u32 s53, s53, 1\ns_cmp_lg_u32 s53, 0\ns_cbranch_scc1 {L('lloop')}")
    nx = 0
    for t in range(NS - 1):
        e(f"s_waitcnt vmcnt({nld*(NS-2-t)+nx})\ns_barrier")
        if epi == "qkv" and t == 0:
            nx = 16
            e(f"s_load_dwordx4 s[36:39], s[0:1], {KA_C}")
            e("s_and_b32 s58, s2, 3\ns_lshr_b32 s59, s2, 2\ns_add_u32 s59, s59, 32")
            e("v_subrev_u32 v3, 256, v0\nv_lshrrev_b32 v6, 3, v3\nv_and_b32 v7, 7, v3")
            e("s_lshl_b32 s43, s58, 8\nv_add_u32 v6, s43, v6\nv_lshlrev_b32 v4, 1, v6")
            e("v_mul_u32_u24 v5, 12288, v6\nv_lshlrev_b32 v6, 4, v7\nv_add_u32 v5, v5, v6\ns_lshl_b32 s43, s59, 7\nv_add_u32 v5, s43, v5")
            e("s_waitcnt lgkmcnt(0)")
            k.srd(56 - 4, 36, 0, 2048); k.srd(60, 38, 0, 1024 * 6144 * 2)
            for i in range(8): e(f"buffer_load_ushort v{24+i}, v4, s[52:55], 0 offen offset:{i*64}")
            for i in range(8):
                e(f"s_mov_b32 s43, {i*32*12288}\nbuffer_load_dwordx4 {v(32+4*i,4)}, v5, s[60:63], s43 offen")
        if epi == "ffn1" and t == 0:
            nx = 32
            k.srd(56, P_WS, WS_STAT, 32 * S * 8); k.srd(60, P_WS, WS_UB, 16 * 2 * DFF * 4)
            e(f"s_cmp_ge_u32 s42, 2\ns_cbranch_scc1 {L('ubld')}")
            e(f"s_lshl_b32 s43, s42, 6\nv_add_u32 v3, s43, v2\ns_lshl_b32 s44, s25, 7\nv_add_u32 v4, s44, v3\nv_lshlrev_b32 v4, 3, v4")
            for sl in range(32):
                e(f"s_mov_b32 s45, {sl*S*8}\nbuffer_load_dwordx2 {v(32+2*sl,2)}, v4, s[56:59], s45 offen{SC}")
            e(f"s_branch {L('ldd')}")
            e(f"{L('ubld')}:")
            e(f"s_add_u32 s35, s26, {C_UB}")
            k.poll(tag + "u", 35, 16)
            e(f"s_sub_u32 s43, s42, 2\ns_lshl_b32 s43, s43, 6\nv_add_u32 v3, s43, v2")
            e(f"s_mul_i32 s44, s26, {BN*4}\nv_lshlrev_b32 v4, 3, v3\nv_add_u32 v4, s44, v4")
            for kg in range(16):
                for w_ in range(2):
                    e(f"s_mov_b32 s45, {(kg*2+w_)*DFF*4}\nbuffer_load_dwordx2 {v(32+4*kg+2*w_,2)}, v4, s[60:63], s45 offen{SC}")
            e(f"{L('ldd')}:")
    if epi == "ffn1":
        e("s_waitcnt vmcnt(0)")
        e(f"s_cmp_ge_u32 s42, 2\ns_cbranch_scc1 {L('ubred')}")
        for sl in range(1, 32): e(f"v_add_f32 v32, v32, v{32+2*sl}\nv_add_f32 v33, v33, v{33+2*sl}")
        e(f"v_mul_f32 v32, {f32(1/1024)}, v32\nv_mul_f32 v33, {f32(1/1024)}, v33")
        e(f"v_fma_f32 v33, -v32, v32, v33\nv_max_f32 v33, 0, v33\nv_add_f32 v33, {f32(1e-5)}, v33\nv_rsq_f32 v33, v33")
        e("v_mul_f32 v32, v32, v33")
        e(f"v_lshlrev_b32 v4, 3, v3\nv_add_u32 v4, {XL}, v4\nds_write_b64 v4, v[32:33]")
        e(f"s_branch {L('redd')}")
        e(f"{L('ubred')}:")
        for kg in range(1, 16):
            for q in range(4): e(f"v_add_f32 v{32+q}, v{32+q}, v{32+4*kg+q}")
        e(f"v_lshlrev_b32 v4, 3, v3\nv_add_u32 v4, {XL+1024}, v4\nv_cmp_gt_u32 vcc, 112, v3\ns_and_saveexec_b64 s[44:45], vcc")
        e(f"ds_write_b64 v4, v[32:33]\nds_write_b64 v4, v[34:35] offset:896\ns_mov_b64 exec, s[44:45]")
        e(f"{L('redd')}:")
        e("s_waitcnt lgkmcnt(0)")
    if epi == "qkv":
        gemv_finish(k, 24, 32, 64, 72)
        MRL = 139264
        e(f"s_sub_u32 s43, s24, 4\ns_lshl_b32 s43, s43, 8\nv_lshlrev_b32 v9, 5, v7\nv_add_u32 v9, s43, v9\nv_add_u32 v9, {MRL}, v9")
        e("s_mov_b64 exec, 0xff\nds_write_b128 v9, v[64:67]\nds_write_b128 v9, v[68:71] offset:16\ns_mov_b64 exec, -1\ns_waitcnt lgkmcnt(0)")
        e(f"v_mov_b32 v6, {L_SIG['mr']}\nv_mov_b32 v8, 1\ns_mov_b64 exec, 1\nds_add_rtn_u32 v8, v6, v8\ns_waitcnt lgkmcnt(0)\nv_readfirstlane_b32 s43, v8\ns_mov_b64 exec, -1")
        e(f"s_cmp_lg_u32 s43, 3\ns_cbranch_scc1 {L('mrx')}")
        e(f"v_lshlrev_b32 v9, 2, v2\nv_add_u32 v10, {MRL}, v9")
        for w_ in range(4): e(f"ds_read_b32 v{12+w_}, v10 offset:{w_*256}")
        e("s_waitcnt lgkmcnt(0)\nv_add_f32 v12, v12, v13\nv_add_f32 v14, v14, v15\nv_add_f32 v12, v12, v14")
        k.srd(52, P_WS, WS_MODP, 4 * 6144 * 4); k.srd(60, P_WS, WS_MODF, 6144 * 4)
        e("s_mul_i32 s43, s58, 24576\ns_lshl_b32 s44, s59, 8\ns_add_u32 s43, s43, s44")
        e(f"buffer_store_dword v12, v9, s[52:55], s43 offen{SCS}\ns_waitcnt vmcnt(0)")
        e(f"s_sub_u32 s45, s59, 32\ns_add_u32 s45, s45, {C_MR}\ns_lshl_b32 s45, s45, 8\nv_mov_b32 v6, s45\nv_mov_b32 v8, 1\ns_mov_b64 exec, 1")
        e(f"buffer_atomic_add v8, v6, {s(CNT,4)}, 0 offen sc0 sc1\ns_waitcnt vmcnt(0)\nv_readfirstlane_b32 s45, v8\ns_mov_b64 exec, -1")
        e(f"s_cmp_lg_u32 s45, 3\ns_cbranch_scc1 {L('mrx')}")
        for p_ in range(4):
            e(f"s_add_u32 s45, s44, {p_*24576}\nbuffer_load_dword v{12+p_}, v9, s[52:55], s45 offen{SC}")
        e("s_waitcnt vmcnt(0)\nv_add_f32 v12, v12, v13\nv_add_f32 v14, v14, v15\nv_add_f32 v12, v12, v14")
        round_bf16(e, 12)
        e(f"buffer_store_dword v12, v9, s[60:63], s44 offen{SCS}\ns_waitcnt vmcnt(0)")
        e(f"v_mov_b32 v6, {C_MRALL*256}\nv_mov_b32 v8, 1\ns_mov_b64 exec, 1")
        e(f"buffer_atomic_add v8, v6, {s(CNT,4)}, 0 offen sc0 sc1\ns_waitcnt vmcnt(0)\nv_readfirstlane_b32 s45, v8\ns_mov_b64 exec, -1")
        e(f"s_cmp_lg_u32 s45, 63\ns_cbranch_scc1 {L('mrx')}")
        e(f"v_lshlrev_b32 v6, 7, v2\nv_add_u32 v6, {FL['mr']}, v6\nv_mov_b32 v8, 1\ns_mov_b64 exec, 0xff\nbuffer_store_dword v8, v6, {s(CNT,4)}, 0 offen sc1\ns_mov_b64 exec, -1")
        e(f"{L('mrx')}:")
    if epi != "qkv": e("s_barrier")
    e(f"s_branch {nxt_l}")

def attn_phase(k, nxt_c, nxt_l, pf):
    e = k.e
    L = lambda n: k.lab("att_" + n)
    NSL = 3; KPS = 128; SBK = KPS * 64
    HB = 2 * SBK; SB = 2 * HB
    FLAG = NSL * SB
    e(f"{L('c')}:\n{L('l')}:")
    e("s_and_b32 s36, s2, 7\ns_lshr_b32 s37, s2, 3\ns_lshl_b32 s36, s36, 2\ns_lshr_b32 s38, s37, 3\ns_add_u32 s25, s36, s38")
    e("s_and_b32 s26, s37, 7")
    e("s_and_b32 s34, s24, 3\ns_lshr_b32 s27, s24, 2")
    e("s_mov_b32 s57, s34")
    e("s_lshl_b32 s40, s25, 17")
    e(f"s_add_u32 s32, s{P_WS}, {WS_QKV:#x}\ns_addc_u32 s33, s{P_WS+1}, 0\ns_add_u32 s32, s32, s40\ns_addc_u32 s33, s33, 0")
    k.srd(4, 32, 0, S * 64); k.srd(8, 32, 32 * S * 64, S * 64); k.srd(12, 32, 64 * S * 64, S * 64)
    k.srd(16, P_WS, WS_O, S * D * 2)
    QG, KH = 57, 27
    Q = 4 + 4; KF = 24; VF = 32
    NEG = 40; O = 72; LS = 104; SEL = 112
    SS = [[116, 132], [148, 164]]
    PP = [[180, 188], [196, 204]]
    AK0, AK1, AV, AN0, AN1, DK, DV = 212, 213, 214, 215, 216, 217, 218
    HH, QL = 219, 220
    T = 221
    PFD = 230
    e(f"v_and_b32 v{QL}, 31, v2\nv_lshrrev_b32 v{HH}, 5, v2")
    e(f"s_lshl_b32 s39, s26, 8\ns_lshl_b32 s40, s{QG}, 6\ns_add_u32 s39, s39, s40")
    e(f"v_lshrrev_b32 v{T}, 2, v2\ns_lshl_b32 s40, s{QG}, 5\nv_add_u32 v{T}, s40, v{T}\nv_lshlrev_b32 v{T}, 6, v{T}")
    e(f"v_and_b32 v{T+1}, 3, v2\nv_lshrrev_b32 v{T+2}, 4, v2\nv_xor_b32 v{T+1}, v{T+1}, v{T+2}\nv_lshlrev_b32 v{T+1}, 4, v{T+1}")
    e(f"v_add_u32 v{DK}, v{T}, v{T+1}")
    e(f"v_lshlrev_b32 v{DV}, 4, v2\ns_lshl_b32 s40, s{QG}, 11\nv_add_u32 v{DV}, s40, v{DV}")
    e(f"s_lshl_b32 s41, s{QG}, 11\ns_mul_i32 s40, s{KH}, {HB}\ns_add_u32 s41, s41, s40")
    e(f"s_mul_i32 s45, s{KH}, {S*32}")
    def addr_setup():
        e(f"s_mul_i32 s40, s{KH}, {HB}")
        e(f"v_lshrrev_b32 v{T}, 2, v{QL}\nv_and_b32 v{T}, 3, v{T}\nv_xor_b32 v{T}, v{T}, v{HH}\nv_lshlrev_b32 v{T}, 4, v{T}")
        e(f"v_lshlrev_b32 v{T+1}, 6, v{QL}\nv_add_u32 v{T+3}, v{T}, v{T+1}")
        e(f"v_add_u32 v{AK0}, s40, v{T+3}\nv_xor_b32 v{AK1}, 32, v{AK0}")
        e(f"v_and_b32 v{T}, 15, v2\nv_lshrrev_b32 v{T}, 2, v{T}\nv_lshlrev_b32 v{T+1}, 2, v{HH}\nv_add_u32 v{T}, v{T}, v{T+1}\nv_lshlrev_b32 v{T}, 6, v{T}")
        e(f"v_lshrrev_b32 v{T+1}, 4, v2\nv_and_b32 v{T+1}, 1, v{T+1}\nv_lshlrev_b32 v{T+1}, 5, v{T+1}\nv_add_u32 v{T}, v{T}, v{T+1}")
        e(f"v_and_b32 v{T+1}, 3, v2\nv_lshlrev_b32 v{T+1}, 3, v{T+1}\nv_add_u32 v{T}, v{T}, v{T+1}\nv_add_u32 v{T}, {SBK}, v{T}\nv_add_u32 v{AV}, s40, v{T}")
    addr_setup()
    e(f"v_lshrrev_b32 v{T}, 4, v2\nv_lshrrev_b32 v{T+1}, 2, v2\nv_xor_b32 v{T}, v{T}, v{T+1}\nv_and_b32 v{T}, 1, v{T}")
    e(f"v_cmp_eq_u32 vcc, 0, v{T}\nv_mov_b32 v{T+1}, 0x3f803f80")
    e(f"v_cndmask_b32 v{SEL}, 0, v{T+1}, vcc")
    for r in range(1, 4): e(f"v_mov_b32 v{SEL+r}, v{SEL}")
    def zero_acc():
        for r in range(32): e(f"v_mov_b32 v{O+r}, 0")
        for r in range(8): e(f"v_mov_b32 v{LS+r}, 0")
    zero_acc()
    for r in range(8): e(f"v_mov_b32 v{VF+r}, 0")
    for qb in range(2):
        for r in range(8): e(f"v_mov_b32 v{PP[1][qb]+r}, 0")
    e(f"s_cmp_lg_u32 s24, 4\ns_cbranch_scc1 {L('nodep')}")
    if "noflags" in OPT:
        e(f"v_lshlrev_b32 v6, 10, v2\ns_lshl_b32 s35, s25, 5\nv_add_u32 v6, s35, v6\nv_mul_u32_u24 v6, {(65536 + 191) // 192}, v6\nv_lshrrev_b32 v6, 16, v6")
        e(f"v_add_u32 v6, {C_QKV}, v6\nv_lshlrev_b32 v6, 8, v6")
        k.poll("att", None, 16, lanes=3)
    else:
        e(f"s_lshl_b32 s35, s25, 8\ns_add_u32 s35, s35, {FL['att']}")
        k.wait_flags("att", 48, 35)
    e(f"{L('nodep')}:")
    e("s_barrier")
    k.st(3)
    e(f"v_mov_b32 v{T}, {FLAG}\nv_mov_b32 v{T+1}, 0\nds_write_b32 v{T}, v{T+1}")
    e(f"v_add_u32 v{T}, s39, v{QL}\nv_lshlrev_b32 v{T}, 6, v{T}\nv_lshlrev_b32 v{T+1}, 4, v{HH}\nv_add_u32 v{T}, v{T}, v{T+1}")
    for qb in range(2):
        e(f"buffer_load_dwordx4 {v(Q+8*qb,4)}, v{T}, s[4:7], 0 offen offset:{qb*2048}{SC}")
        e(f"buffer_load_dwordx4 {v(Q+8*qb+4,4)}, v{T}, s[4:7], 0 offen offset:{qb*2048+32}{SC}")
    def dma(slot_sreg):
        e(f"s_add_u32 s43, {slot_sreg}, s41\ns_add_u32 s46, s42, s45")
        e(f"s_mov_b32 m0, s43\nbuffer_load_dwordx4 v{DK}, s[8:11], s46 offen{SC} lds")
        e(f"s_add_u32 m0, s43, {SBK}\nbuffer_load_dwordx4 v{DV}, s[12:15], s46 offen{SC} lds")
        e(f"s_add_u32 s46, s46, 1024\ns_add_u32 m0, s43, 1024\nbuffer_load_dwordx4 v{DK}, s[8:11], s46 offen{SC} lds")
        e(f"s_add_u32 m0, s43, {SBK+1024}\nbuffer_load_dwordx4 v{DV}, s[12:15], s46 offen{SC} lds")
        e(f"s_add_u32 s42, s42, {SBK}")
    def kread(a0, a1, t):
        return [f"ds_read_b128 {v(KF,4)}, v{a0} offset:{t*2048}", f"ds_read_b128 {v(KF+4,4)}, v{a1} offset:{t*2048}"]
    def vread(t):
        return [f"ds_read_b64_tr_b16 {v(VF+4*m+2*hh,2)}, v{AV} offset:{t*2048+(16*m+8*hh)*64}" for m in range(2) for hh in range(2)]
    def qk(qb, dst, c):
        return [f"v_mfma_f32_32x32x16_bf16 {v(dst,16)}, {v(KF,4)}, {v(Q+8*qb,4)}, {c}",
                f"v_mfma_f32_32x32x16_bf16 {v(dst,16)}, {v(KF+4,4)}, {v(Q+8*qb+4,4)}, {v(dst,16)}"]
    def pv(qb, P):
        o, l = O + 16 * qb, LS + 4 * qb
        return [f"v_mfma_f32_32x32x16_bf16 {v(o,16)}, {v(VF,4)}, {v(P,4)}, {v(o,16)}",
                f"v_mfma_f32_16x16x32_bf16 {v(l,4)}, {v(SEL,4)}, {v(P,4)}, {v(l,4)}",
                f"v_mfma_f32_32x32x16_bf16 {v(o,16)}, {v(VF+4,4)}, {v(P+4,4)}, {v(o,16)}",
                f"v_mfma_f32_16x16x32_bf16 {v(l,4)}, {v(SEL,4)}, {v(P+4,4)}, {v(l,4)}"]
    def lane_max16(src, dst, tmp):
        e(f"v_max3_f32 v{dst}, v{src}, v{src+1}, v{src+2}")
        for r in range(3, 15, 2): e(f"v_max3_f32 v{dst}, v{dst}, v{src+r}, v{src+r+1}")
        e(f"v_max_f32 v{dst}, v{dst}, v{src+15}")
        e(f"v_mov_b32 v{tmp}, v{dst}\nv_permlane32_swap_b32 v{tmp}, v{dst}\nv_max_f32 v{dst}, v{dst}, v{tmp}")
    NST = S // 2 // KPS
    HALF = S * 32
    e("s_mov_b32 s42, 0")
    for st in range(NSL - 1):
        e(f"s_mov_b32 s44, {st*SB}")
        dma("s44")
    e(f"s_waitcnt vmcnt({4*(NSL-2)})\ns_barrier")
    e(f"v_xor_b32 v{T+4}, 32, v{T+3}")
    for l in kread(T + 3, T + 4, 0): e(l)
    e("s_waitcnt lgkmcnt(0)")
    for qb in range(2):
        for l in qk(qb, SS[1][qb], "0"): e(l)
    for l in kread(AK0, AK1, 0): e(l)
    for qb in range(2):
        lane_max16(SS[1][qb], T, T + 1)
        e(f"v_add_f32 v{T}, {f32(40.0)}, v{T}")
        for r in range(16): e(f"v_sub_f32 v{NEG+16*qb+r}, 0, v{T}")
    e("s_waitcnt lgkmcnt(0)")
    for qb in range(2):
        for l in qk(qb, SS[0][qb], v(NEG + 16 * qb, 16)): e(l)
    for l in kread(AK0, AK1, 1): e(l)
    e(f"v_add_u32 v{AN0}, {SB}, v{AK0}\nv_add_u32 v{AN1}, {SB}, v{AK1}")
    e(f"s_mov_b32 s47, 1\ns_mov_b32 s48, {SB}\ns_mov_b32 s49, {-(NSL-1)*SB & 0xffffffff:#x}")
    e(f"s_mov_b32 s50, {(NSL-1)*SB}")
    e("s_waitcnt lgkmcnt(0)")
    e("s_lshl_b32 s56, s2, 3\ns_add_u32 s56, s56, s24\ns_mul_i32 s58, s56, 52429\ns_lshr_b32 s58, s58, 18\ns_mul_i32 s58, s58, 5\ns_sub_u32 s58, s56, s58\ns_sub_u32 s58, 7, s58")
    if "pfall" in OPT: e(f"s_mov_b32 s58, {PFSTAGE}")
    e(f"s_mov_b32 s44, {NST}")
    if "prio1" in OPT: e(f"s_cmp_lt_u32 s24, 4\ns_cbranch_scc1 {L('noprio')}\ns_setprio 1\n{L('noprio')}:")
    if "prio0" in OPT: e(f"s_cmp_ge_u32 s24, 4\ns_cbranch_scc1 {L('noprio')}\ns_setprio 1\n{L('noprio')}:")
    e(f"{L('floop')}:")
    for t in range(4):
        par = t & 1
        if t == 2:
            e(f"s_cmp_ge_u32 s42, {HALF}\ns_cbranch_scc1 {L('nodma')}")
            e(f"s_waitcnt vmcnt({4*(NSL-3)})\ns_barrier")
            dma("s50")
            e(f"s_add_u32 s50, s50, {SB}\ns_cmp_eq_u32 s50, {NSL*SB}\ns_cselect_b32 s50, 0, s50")
            if pf:
                e(f"s_cmp_lg_u32 s44, s58\ns_cbranch_scc1 {L('cont')}")
                e(f"s_mov_b32 s60, s{P_WO}\ns_mov_b32 s61, s{P_WO+1}\ns_mov_b32 s62, {D*D*2}\ns_mov_b32 s63, 0x20000\ns_mov_b32 s52, s56")
                e(f"s_cmp_lt_u32 s56, 256\ns_cbranch_scc1 {L('pfgo')}")
                e(f"s_mov_b32 s60, s{P_W1}\ns_mov_b32 s61, s{P_W1+1}\ns_mov_b32 s62, {D*DFF*2}\ns_mov_b32 s63, 0x20000\ns_sub_u32 s52, s56, 256")
                e(f"s_cmp_lt_u32 s56, 1152\ns_cbranch_scc1 {L('pfgo')}")
                e(f"s_mov_b32 s60, s{P_W2}\ns_mov_b32 s61, s{P_W2+1}\ns_mov_b32 s62, {D*DFF*2}\ns_mov_b32 s63, 0x20000\ns_sub_u32 s52, s56, 1152")
                e(f"{L('pfgo')}:")
                e(f"s_lshl_b32 s52, s52, 13\nv_lshlrev_b32 v{T}, 7, v2\nbuffer_load_dword v{PFD}, v{T}, s[60:63], s52 offen")
                k.code_touch("a", k.lab("att_cont"), k.lab("f1_l"), 24, 8, 1)
            e(f"s_branch {L('cont')}")
            e(f"{L('nodma')}:")
            e("s_waitcnt vmcnt(0)\ns_barrier")
            e(f"{L('cont')}:")
        kr = kread(AN0, AN1, (t + 2) % 4) if t >= 2 else kread(AK0, AK1, t + 2)
        vr = vread(t)
        m = []; p = []; E = []; C = []
        for qb in range(2):
            cur = SS[par][qb]; nxt = SS[1 - par][qb]; pc = PP[par][qb]; pp = PP[1 - par][qb]
            m.append(qk(qb, nxt, v(NEG + 16 * qb, 16))); p.append(pv(qb, pp))
            E.append([f"v_exp_f32 v{cur+r}, v{cur+r}" for r in range(16)])
            C.append([f"v_cvt_pk_bf16_f32 v{pc+r}, v{cur+2*r}, v{cur+2*r+1}" for r in range(8)])
        E0, E1 = E; C0, C1 = C
        seq = ["s_waitcnt lgkmcnt(4)",
               m[0][0], E0[0], E0[1], E0[2], E0[3],
               m[1][0], E0[4], E0[5], C0[0], C0[1], E0[6],
               m[0][1], E0[7], C0[2], E0[8], E0[9], C0[3],
               m[1][1], kr[0], kr[1], E0[10], E0[11], E0[12], E0[13], "s_waitcnt lgkmcnt(2)",
               p[0][0], C0[4], C0[5], E0[14], E0[15], C0[6], C0[7],
               p[0][1], E1[0], E1[1],
               p[1][0], E1[2], E1[3], C1[0], C1[1], E1[4],
               p[1][1], E1[5], E1[6],
               p[0][2], E1[7], C1[2], E1[8], E1[9], C1[3],
               p[0][3], E1[10], E1[11],
               p[1][2], vr[0], vr[1], vr[2], vr[3], E1[12], E1[13], C1[4], C1[5], E1[14],
               p[1][3], E1[15], C1[6], C1[7]]
        for l in seq: e(l)
        if t == 3:
            e(f"v_sub_u32 v{T}, v{AN0}, v{AK0}\nv_add_u32 v{AV}, v{AV}, v{T}\nv_mov_b32 v{AK0}, v{AN0}\nv_mov_b32 v{AK1}, v{AN1}")
            e(f"s_add_u32 s47, s47, 1\ns_cmp_eq_u32 s47, {NSL}\ns_cselect_b32 s51, s49, s48\ns_cselect_b32 s47, 0, s47")
            e(f"v_add_u32 v{AN0}, s51, v{AN0}\nv_add_u32 v{AN1}, s51, v{AN1}")
    e(f"s_sub_u32 s44, s44, 1\ns_cmp_lg_u32 s44, 0\ns_cbranch_scc1 {L('floop')}")
    e("s_waitcnt lgkmcnt(0)")
    for qb in range(2):
        for l in pv(qb, PP[1][qb]): e(l)
    if "prio1" in OPT or "prio0" in OPT: e("s_setprio 0")
    k.st(4)
    def merge(safe, M=None):
        e("s_barrier")
        e(f"s_cmp_eq_u32 s{KH}, 0\ns_cbranch_scc1 {L('keep0' + safe)}")
        for r in range(16): e(f"v_swap_b32 v{O+r}, v{O+16+r}")
        e(f"v_swap_b32 v{LS}, v{LS+4}")
        if M is not None: e(f"v_swap_b32 v{M}, v{M+1}")
        e(f"{L('keep0' + safe)}:")
        e(f"s_mul_i32 s52, s24, {5*1024+256}\nv_lshlrev_b32 v{T}, 4, v2\nv_add_u32 v{T}, s52, v{T}")
        for g in range(4): e(f"ds_write_b128 v{T}, {v(O+16+4*g,4)} offset:{g*1024}")
        e(f"v_lshlrev_b32 v{T+1}, 2, v2\nv_add_u32 v{T+1}, s52, v{T+1}")
        e(f"ds_write_b32 v{T+1}, v{LS+4} offset:4096")
        if M is not None: e(f"ds_write_b32 v{T+1}, v{M+1} offset:{4096+256}")
        e("s_waitcnt lgkmcnt(0)\ns_barrier")
        e(f"s_xor_b32 s52, s24, 4\ns_mul_i32 s52, s52, {5*1024+256}\nv_lshlrev_b32 v{T}, 4, v2\nv_add_u32 v{T}, s52, v{T}")
        for g in range(4): e(f"ds_read_b128 {v(O+16+4*g,4)}, v{T} offset:{g*1024}")
        e(f"v_lshlrev_b32 v{T+1}, 2, v2\nv_add_u32 v{T+1}, s52, v{T+1}")
        e(f"ds_read_b32 v{LS+4}, v{T+1} offset:4096")
        if M is not None: e(f"ds_read_b32 v{M+1}, v{T+1} offset:{4096+256}")
        e("s_waitcnt lgkmcnt(0)")
        if M is None:
            for r in range(16): e(f"v_add_f32 v{O+r}, v{O+r}, v{O+16+r}")
            e(f"v_add_f32 v{LS}, v{LS}, v{LS+4}")
        else:
            e(f"v_max_f32 v{T}, v{M}, v{M+1}\nv_sub_f32 v{T+1}, v{M}, v{T}\nv_sub_f32 v{T+2}, v{M+1}, v{T}\nv_exp_f32 v{T+1}, v{T+1}\nv_exp_f32 v{T+2}, v{T+2}")
            for r in range(16): e(f"v_mul_f32 v{O+r}, v{O+r}, v{T+1}\nv_fmac_f32 v{O+r}, v{O+16+r}, v{T+2}")
            e(f"v_mul_f32 v{LS}, v{LS}, v{T+1}\nv_fmac_f32 v{LS}, v{LS+4}, v{T+2}")
        e(f"v_rcp_f32 v{T}, v{LS}")
        for r in range(16): e(f"v_mul_f32 v{O+r}, v{O+r}, v{T}")
    merge("f")
    e(f"v_mov_b32 v{T+1}, {f32(2.0**120)}")
    e(f"v_cmp_nlt_f32 vcc, v{LS}, v{T+1}")
    e("s_mov_b64 s[46:47], vcc")
    e(f"v_add_f32 v{T+2}, abs(v{O}), abs(v{O+1})")
    for r in range(2, 16): e(f"v_add_f32 v{T+2}, v{T+2}, abs(v{O+r})")
    e(f"v_mov_b32 v{T+1}, 0x7f800000\nv_cmp_nlt_f32 vcc, v{T+2}, v{T+1}\ns_or_b64 s[46:47], s[46:47], vcc")
    e(f"s_cmp_eq_u64 s[46:47], 0\ns_cbranch_scc1 {L('okwave')}")
    e(f"v_mov_b32 v{T+1}, {FLAG}\nv_mov_b32 v{T+2}, 1\nds_write_b32 v{T+1}, v{T+2}")
    e(f"{L('okwave')}:")
    e("s_waitcnt lgkmcnt(0)\ns_barrier")
    e(f"v_mov_b32 v{T+1}, {FLAG}\nds_read_b32 v{T+2}, v{T+1}\ns_waitcnt lgkmcnt(0)\nv_readfirstlane_b32 s46, v{T+2}")
    e(f"s_cmp_lg_u32 s46, 0\ns_cbranch_scc1 {L('safe')}")
    e(f"{L('store')}:")
    if "statt" in OPT: k.st(12)
    P = PP[0][0]
    for r in range(8): e(f"v_cvt_pk_bf16_f32 v{P+r}, v{O+2*r}, v{O+2*r+1}")
    for b in (0, 4):
        e(f"v_permlane32_swap_b32 v{P+b}, v{P+b+2}\nv_permlane32_swap_b32 v{P+b+1}, v{P+b+3}")
    for r in range(4): e(f"v_permlane16_swap_b32 v{P+r}, v{P+4+r}")
    e(f"s_lshl_b32 s40, s{KH}, 5\ns_add_u32 s40, s40, s39")
    e(f"v_and_b32 v{T}, 15, v2\nv_add_u32 v{T}, s40, v{T}\nv_lshlrev_b32 v{T}, 11, v{T}")
    e(f"v_lshrrev_b32 v{T+1}, 4, v2\nv_and_b32 v{T+2}, 1, v{T+1}\nv_lshlrev_b32 v{T+2}, 5, v{T+2}\nv_lshrrev_b32 v{T+1}, 1, v{T+1}\nv_lshlrev_b32 v{T+1}, 4, v{T+1}")
    e(f"v_add_u32 v{T}, v{T}, v{T+1}\nv_add_u32 v{T}, v{T}, v{T+2}")
    e(f"s_lshl_b32 s40, s25, 6\ns_add_u32 s41, s40, {16*2048}")
    e(f"buffer_store_dwordx4 {v(P,4)}, v{T}, s[16:19], s40 offen{SCS}\nbuffer_store_dwordx4 {v(P+4,4)}, v{T}, s[16:19], s41 offen{SCS}")
    if "statt" in OPT: k.st(13)
    e(f"s_add_u32 s35, s26, {C_ATT}")
    k.signal("att", 8, 35, 32, (2, lambda: e(f"s_lshl_b32 s33, s26, 8\ns_lshl_b32 s34, s25, 2\ns_add_u32 s33, s33, s34\ns_add_u32 s33, s33, {FL['wo']}\nv_lshlrev_b32 v6, 7, v2\nv_add_u32 v6, s33, v6")))
    if "statt" in OPT: k.st(14, 7)
    e(f"s_cmp_ge_u32 s24, 4\ns_cbranch_scc1 {nxt_l}\ns_branch {nxt_c}")
    e(f"{L('safe')}:")
    e("s_waitcnt vmcnt(0)\ns_barrier")
    M = NEG; AL = NEG + 2
    SA = SS[0][0]; P0 = PP[0][0]
    zero_acc()
    e(f"v_mov_b32 v{M}, {f32(-3.0e38)}\nv_mov_b32 v{M+1}, {f32(-3.0e38)}")
    addr_setup()
    e("s_mov_b32 s42, 0")
    e(f"s_mov_b32 s44, {NST}")
    e(f"{L('sloop')}:")
    e("s_barrier")
    e("s_mov_b32 s53, 0")
    dma("s53")
    e("s_waitcnt vmcnt(0)\ns_barrier")
    for t in range(4):
        for l in kread(AK0, AK1, t) + vread(t): e(l)
        e("s_waitcnt lgkmcnt(0)")
        for qb in range(2):
            for l in qk(qb, SA, "0"): e(l)
            lane_max16(SA, T, T + 1)
            e(f"v_max_f32 v{T}, v{T}, v{M+qb}\nv_sub_f32 v{AL}, v{M+qb}, v{T}\nv_exp_f32 v{AL}, v{AL}\nv_mov_b32 v{M+qb}, v{T}")
            for r in range(16): e(f"v_sub_f32 v{SA+r}, v{SA+r}, v{T}\nv_exp_f32 v{SA+r}, v{SA+r}")
            for r in range(16): e(f"v_mul_f32 v{O+16*qb+r}, v{O+16*qb+r}, v{AL}")
            for r in range(4): e(f"v_mul_f32 v{LS+4*qb+r}, v{LS+4*qb+r}, v{AL}")
            for r in range(8): e(f"v_cvt_pk_bf16_f32 v{P0+r}, v{SA+2*r}, v{SA+2*r+1}")
            for l in pv(qb, P0): e(l)
    e(f"s_sub_u32 s44, s44, 1\ns_cmp_lg_u32 s44, 0\ns_cbranch_scc1 {L('sloop')}")
    merge("s", M)
    e("s_barrier")
    e(f"s_branch {L('store')}")


def h_phase(k):
    e = k.e; L = lambda n: k.lab("h_" + n)
    HL = 125952
    e("s_lshl_b32 s36, s2, 3\ns_lshl_b32 s37, s24, 1\ns_add_u32 s36, s36, s37")
    e("s_lshl_b32 s36, s36, 11\nv_lshlrev_b32 v3, 4, v2\nv_add_u32 v3, s36, v3")
    k.srd(12, P_X, 0, S * D * 2); k.srd(16, P_WS, WS_H, S * D * 2)
    k.srd(20, P_WS, WS_MODP, 4 * 6144 * 4); k.srd(56, P_WS, WS_MODF, 6144 * 4)
    e("v_lshlrev_b32 v5, 5, v0")
    for p in range(4):
        e(f"s_mov_b32 s37, {p*24576}")
        e(f"buffer_load_dwordx4 {v(64+8*p,4)}, v5, s[20:23], s37 offen\nbuffer_load_dwordx4 {v(68+8*p,4)}, v5, s[20:23], s37 offen offset:16")
    for r in range(2):
        for hf in range(2):
            e(f"buffer_load_dwordx4 {v(8+8*r+4*hf,4)}, v3, s[12:15], 0 offen offset:{r*2048+hf*1024}")
    nt_ = k.code_touch("h", k.lab("qkv_c"), k.lab("wo_c"), 24, 4, 1)
    e(f"s_waitcnt vmcnt({4+nt_})")
    for j in range(8):
        e(f"v_add_f32 v{64+j}, v{64+j}, v{72+j}\nv_add_f32 v{80+j}, v{80+j}, v{88+j}\nv_add_f32 v{64+j}, v{64+j}, v{80+j}")
        round_bf16(e, 64 + j)
    e("v_cmp_le_u32 vcc, 128, v0")
    for j in range(8):
        e(f"v_add_f32 v72, 1.0, v{64+j}")
        round_bf16(e, 72)
        e(f"v_cndmask_b32 v{64+j}, v{64+j}, v72, vcc")
    e(f"v_add_u32 v5, {HL}, v5\nds_write_b128 v5, v[64:67]\nds_write_b128 v5, v[68:71] offset:16")
    e("s_waitcnt lgkmcnt(0)\ns_barrier")
    e(f"v_lshlrev_b32 v5, 5, v2\nv_add_u32 v5, {HL}, v5")
    for hf in range(2):
        for q in range(2):
            e(f"ds_read_b128 {v(32+8*hf+4*q,4)}, v5 offset:{hf*2048+q*16}")
            e(f"ds_read_b128 {v(48+8*hf+4*q,4)}, v5 offset:{4096+hf*2048+q*16}")
    e(f"s_waitcnt vmcnt({nt_})")
    X = 64
    for r in range(2):
        for j in range(8):
            src = 8 + 8 * r + j
            e(f"v_lshlrev_b32 v{X+16*r+2*j}, 16, v{src}\nv_and_b32 v{X+16*r+2*j+1}, 0xffff0000, v{src}")
    for r in range(2): e(f"v_add_f32 v{104+r}, v{X+16*r}, v{X+16*r+1}")
    for j in range(2, 16):
        for r in range(2): e(f"v_add_f32 v{104+r}, v{104+r}, v{X+16*r+j}")
    wave_sum(e, [104, 105], 106, [0, 1, 2, 3, 4, 5])
    for r in range(2): e(f"v_mul_f32 v{104+r}, {f32(1/1024)}, v{104+r}")
    for j in range(16):
        for r in range(2): e(f"v_sub_f32 v{X+16*r+j}, v{X+16*r+j}, v{104+r}")
    for r in range(2): e(f"v_mul_f32 v{107+r}, v{X+16*r}, v{X+16*r}")
    for j in range(1, 16):
        for r in range(2): e(f"v_fmac_f32 v{107+r}, v{X+16*r+j}, v{X+16*r+j}")
    wave_sum(e, [107, 108], 106, [0, 1, 2, 3, 4, 5])
    for r in range(2):
        e(f"v_mov_b32 v{109+r}, {f32(1e-5)}\nv_fmac_f32 v{109+r}, {f32(1/1024)}, v{107+r}\nv_rsq_f32 v{109+r}, v{109+r}")
    e("s_waitcnt lgkmcnt(0)")
    for r in range(2):
        for j in range(16):
            e(f"v_mul_f32 v{X+16*r+j}, v{X+16*r+j}, v{109+r}\nv_fma_f32 v{X+16*r+j}, v{X+16*r+j}, v{48+j}, v{32+j}")
        for j in range(8): e(f"v_cvt_pk_bf16_f32 v{112+8*r+j}, v{X+16*r+2*j}, v{X+16*r+2*j+1}")
        e(f"buffer_store_dwordx4 {v(112+8*r,4)}, v3, s[16:19], 0 offen offset:{r*2048}{SCS}")
        e(f"buffer_store_dwordx4 {v(116+8*r,4)}, v3, s[16:19], 0 offen offset:{r*2048+1024}{SCS}")
    e(f"s_lshr_b32 s35, s2, 4\ns_add_u32 s35, s35, {C_H}")
    def offs():
        e(f"s_lshr_b32 s33, s2, 4\ns_lshl_b32 s33, s33, 9\ns_and_b32 s34, s2, 15\ns_lshl_b32 s34, s34, 2\ns_add_u32 s33, s33, s34\ns_add_u32 s33, s33, {FL['qkv']}")
        e("v_lshlrev_b32 v6, 7, v2\nv_add_u32 v6, s33, v6")
    k.signal("h", 4, 35, 16, (4, offs))

def k_main():
    k = PK("main_kernel", 256, 512, LDS_TOTAL + 16384, 256, 100); e = k.e
    L = k.lab
    e(f"s_cmp_ge_u32 s2, 256\ns_cbranch_scc1 {L('end')}")
    e(f"s_load_dwordx4 s[68:71], s[0:1], {KA_X}\ns_load_dwordx4 s[72:75], s[0:1], {KA_W1}\ns_load_dwordx2 s[76:77], s[0:1], {KA_WO}")
    e(f"s_load_dwordx2 s[78:79], s[0:1], {KA_OUT}\ns_load_dwordx2 s[66:67], s[0:1], {KA_WS}")
    e("v_lshrrev_b32 v1, 6, v0\nv_and_b32 v2, 63, v0\nv_readfirstlane_b32 s24, v1")
    e(f"s_cmp_lg_u32 s24, 0\ns_cbranch_scc1 {L('noinit')}")
    e(f"v_lshlrev_b32 v3, 2, v2\nv_add_u32 v3, {CTL}, v3\nv_mov_b32 v4, 0\nds_write_b32 v3, v4\ns_waitcnt lgkmcnt(0)")
    e(f"{L('noinit')}:")
    e("s_waitcnt lgkmcnt(0)")
    k.srd(CNT, P_WS, WS_CNT, CNT_BYTES)
    k.st(0)
    e(f"s_cmp_ge_u32 s24, 4\ns_cbranch_scc1 {L('qkv_l')}")
    hin = "hsep" not in OPT
    if hin: h_phase(k)
    gemm_phase(k, "qkv", 1024, 1024, 3072, 192, WS_H, S * D * 2, P_WQKV, D * 3 * D * 2, "qkv", 8, 4, 3, L("att_c"), L("att_l"), (C_H, 16, "rb") if hin else None, (1, 2), hbar=hin)
    pf = [(P_WO, D * D * 2), (P_W1, D * DFF * 2), (P_W2, D * DFF * 2)] if "nopf" not in OPT else []
    attn_phase(k, L("wo_c"), L("wo_l"), pf)
    gemm_phase(k, "wo", 1024, 1024, 1024, 64, WS_O, S * D * 2, P_WO, D * D * 2, "wo", 4, 8, 4, L("f1_c"), L("f1_l"), (C_ATT, 32, "rb2"), (5, 6))
    gemm_phase(k, "f1", 1024, 1024, DFF, 224, WS_XG, S * D * 2, P_W1, D * DFF * 2, "ffn1", 8, 4, 3, L("f2_c"), L("f2_l"), (C_WO, 16, "rb"), (7, 8))
    if "nos2" in OPT:
        gemm_phase(k, "f2", DFF, DFF, 1024, 64, WS_F1, S * DFF * 2, P_W2, DFF * D * 2, "ffn2", 4, 8, 4, L("fin"), L("end"), (C_F1, 16, "rb"), (9, 10))
    else:
        gemm_phase(k, "f2", DFF, DFF, 1024, 128, WS_F1, S * DFF * 2, P_W2, DFF * D * 2, "ffn2s", 4, 8, 4, L("fin"), L("end"), (C_F1, 8, "rb"), (9, 10))
    e(f"{L('fin')}:")
    if DIAG:
        e("s_waitcnt vmcnt(0)")
        k.st(11)
        e(f"s_cmp_lg_u32 s24, 0\ns_cbranch_scc1 {L('end')}")
        k.srd(12, P_WS, WS_STAMP + 8 * 512 * 16, 256 * 64)
        e(f"v_lshlrev_b32 v3, 2, v2\nv_add_u32 v4, {L_STAMP}, v3\nds_read_b32 v5, v4\ns_lshl_b32 s32, s2, 6\nv_add_u32 v3, s32, v3\ns_waitcnt lgkmcnt(0)")
        e("s_mov_b64 exec, 0xffff\nbuffer_store_dword v5, v3, s[12:15], 0 offen")
    k.finish()
    return k

def k_mod2():
    k = Kern("mod_kernel", 256, 256, 1024, 64); e = k.e
    k.exit_extra()
    e("s_load_dwordx4 s[4:7], s[0:1], %d" % KA_C)
    k.ptr(8, KA_WS); k.ptr(10, KA_X)
    e(f"s_cmp_ge_u32 s2, 128\ns_cbranch_scc1 {k.lab('aux')}")
    e("s_and_b32 s24, s2, 3\ns_lshr_b32 s25, s2, 2")
    e("v_lshrrev_b32 v1, 3, v0\nv_and_b32 v2, 7, v0")
    e("s_lshl_b32 s26, s24, 8\nv_add_u32 v3, s26, v1")
    e("v_lshlrev_b32 v4, 1, v3")
    e("v_mul_u32_u24 v5, 12288, v3\nv_lshlrev_b32 v6, 4, v2\nv_add_u32 v5, v5, v6")
    e("s_lshl_b32 s27, s25, 7\nv_add_u32 v5, s27, v5")
    e("s_waitcnt lgkmcnt(0)")
    k.srd(12, 4, 0, 2048); k.srd(16, 6, 0, 1024 * 6144 * 2); k.srd(20, 8, WS_MODP, 4 * 6144 * 4)
    gemv_body(k, 8, 16, 48, 56, "s[12:15]", "s[16:19]", 32)
    k.stamp(2)
    e("v_lshrrev_b32 v9, 6, v0\nv_lshlrev_b32 v9, 8, v9\nv_lshlrev_b32 v10, 5, v2\nv_add_u32 v9, v9, v10")
    e("v_and_b32 v10, 63, v0\nv_cmp_gt_u32 vcc, 8, v10\ns_and_saveexec_b64 s[28:29], vcc")
    e("ds_write_b128 v9, v[48:51]\nds_write_b128 v9, v[52:55] offset:16")
    e("s_mov_b64 exec, s[28:29]")
    e("s_waitcnt lgkmcnt(0)\ns_barrier")
    e("v_cmp_gt_u32 vcc, 64, v0\ns_and_saveexec_b64 s[28:29], vcc")
    e(f"s_cbranch_execz {k.lab('end')}")
    e("v_lshlrev_b32 v9, 2, v0")
    for w in range(4): e(f"ds_read_b32 v{12+w}, v9 offset:{w*256}")
    e("s_waitcnt lgkmcnt(0)")
    e("v_add_f32 v12, v12, v13\nv_add_f32 v14, v14, v15\nv_add_f32 v12, v12, v14")
    e("s_mul_i32 s26, s24, 24576\ns_lshl_b32 s27, s25, 8\ns_add_u32 s26, s26, s27")
    e("buffer_store_dword v12, v9, s[20:23], s26 offen")
    k.stamp_flush(0, 56)
    e("s_endpgm")
    e(f"{k.lab('aux')}:")
    e("s_waitcnt lgkmcnt(0)\ns_sub_u32 s24, s2, 128")
    k.srd(12, 10, 0, S * D * 2)
    e("s_lshl_b32 s25, s24, 15\nv_lshlrev_b32 v1, 7, v0\nbuffer_load_dword v2, v1, s[12:15], s25 offen")
    e(f"s_add_u32 s16, s8, {WS_CNT:#x}\ns_addc_u32 s17, s9, 0\ns_mov_b32 s18, {CNT_BYTES}\ns_mov_b32 s19, 0x20000")
    e("s_lshl_b32 s25, s24, 12\nv_lshlrev_b32 v3, 4, v0\nv_mov_b32 v4, 0\nv_mov_b32 v5, 0\nv_mov_b32 v6, 0\nv_mov_b32 v7, 0\nbuffer_store_dwordx4 v[4:7], v3, s[16:19], s25 offen")
    assert CNT_BYTES <= 128 * 4096
    if gen.DIAG:
        k.stamp(1); k.stamp(2)
        k.a.lines.append("  s_nop 0")
    k.finish()
    return k

def gemv_body(k, CV, WV, AC, TMP, srd_c, srd_w, ssoff):
    e = k.e
    for i in range(8): e(f"buffer_load_ushort v{CV+i}, v4, {srd_c}, 0 offen offset:{i*64}")
    for i in range(8): e(f"s_mov_b32 s{ssoff+i}, {i*32*12288}")
    for i in range(8): e(f"buffer_load_dwordx4 {v(WV+4*i,4)}, v5, {srd_w}, s{ssoff+i} offen")
    gemv_finish(k, CV, WV, AC, TMP)

def gemv_finish(k, CV, WV, AC, TMP):
    e = k.e
    for j in range(8): e(f"v_mov_b32 v{AC+j}, 0")
    e("s_waitcnt vmcnt(8)")
    k.stamp(1) if not isinstance(k, PK) else None
    for i in range(8):
        x = CV + i
        e(f"v_lshlrev_b32 v{x}, 16, v{x}")
        e(f"v_mul_f32 v{TMP}, {f32(-LOG2E)}, v{x}\nv_exp_f32 v{TMP}, v{TMP}\nv_add_f32 v{TMP}, 1.0, v{TMP}\nv_rcp_f32 v{TMP}, v{TMP}\nv_mul_f32 v{x}, v{x}, v{TMP}")
        round_bf16(e, x)
    for i in range(8):
        e(f"s_waitcnt vmcnt({7-i})")
        for j in range(4):
            w = WV + 4 * i + j
            e(f"v_lshlrev_b32 v{TMP}, 16, v{w}\nv_and_b32 v{TMP+1}, 0xffff0000, v{w}")
            e(f"v_fmac_f32 v{AC+2*j}, v{CV+i}, v{TMP}\nv_fmac_f32 v{AC+2*j+1}, v{CV+i}, v{TMP+1}")
    wave_sum(e, list(range(AC, AC + 8)), TMP, [3, 4, 5])

def k_probe(idx, mult):
    k = Kern("probe_kernel", 1, 64, 0, 64); e = k.e
    e("s_cmp_ge_u32 s2, 1\ns_cbranch_scc1 probe_kernel_end")
    k.ptr(8, KA_WS); k.ptr(10, KA_DBG)
    e("s_waitcnt lgkmcnt(0)")
    k.srd(12, 8, WS_STAMP, 16 * 512 * 16); k.srd(20, 10, 0, 256)
    e("v_lshlrev_b32 v1, 4, v0\nv_lshlrev_b32 v2, 6, v0")
    for c in range(6): e(f"s_mov_b32 s24, {c*64*16}\nbuffer_load_dword v{8+c}, v1, s[12:15], s24 offen")
    for c in range(4): e(f"s_mov_b32 s24, {8*512*16 + c*64*64 + idx*4}\nbuffer_load_dword v{16+c}, v2, s[12:15], s24 offen")
    e("s_waitcnt vmcnt(0)")
    for c in range(1, 6): e(f"v_min_u32 v8, v8, v{8+c}")
    for c in range(1, 4): e(f"v_max_u32 v16, v16, v{16+c}")
    def red(r, op):
        for b in range(4): e(f"{op}_dpp v{r}, v{r}, v{r} row_ror:{1<<b} row_mask:0xf bank_mask:0xf")
        for w in (16, 32):
            e(f"v_mov_b32 v40, v{r}\nv_permlane{w}_swap_b32 v40, v{r}\n{op} v{r}, v{r}, v40")
    red(8, "v_min_u32"); red(16, "v_max_u32")
    e("v_sub_u32 v16, v16, v8\nv_mov_b32 v13, 0\nbuffer_store_dword v16, v13, s[20:23], 0 offen\nv_readfirstlane_b32 s30, v16")
    e(f"s_mul_i32 s30, s30, {mult}\ns_min_u32 s30, s30, 100000")
    e("s_memrealtime s[32:33]\ns_waitcnt lgkmcnt(0)")
    e("probe_spin:\ns_memrealtime s[34:35]\ns_waitcnt lgkmcnt(0)\ns_sub_u32 s36, s34, s32\ns_cmp_lt_u32 s36, s30\ns_cbranch_scc1 probe_spin")
    k.finish()
    return k

PROBE = None
def build():
    if PROBE is not None: return [k_mod2(), k_main(), k_probe(*PROBE)]
    if "hsep" in OPT: return [k_mod2(), gen.k_h(True), k_main()]
    return [k_mod2(), k_main()]

if __name__ == "__main__":
    for a_ in list(sys.argv):
        if a_.startswith("--opt="): OPT = set(a_[6:].split(",")); sys.argv.remove(a_)
        if a_.startswith("--pfstage="): PFSTAGE = int(a_[10:]); sys.argv.remove(a_)
        if a_.startswith("--scs="): SCS = " " + a_[6:].replace("+", " "); sys.argv.remove(a_)
        if a_.startswith("--l2d="): L2D = int(a_[6:]); sys.argv.remove(a_)
        if a_.startswith("--probe="): PROBE = tuple(int(x) for x in a_[8:].split(",")); sys.argv.remove(a_)
        if a_.startswith("--sleep="): SLEEP = int(a_[8:]); sys.argv.remove(a_)
    if "--diag" in sys.argv: DIAG = True; gen.DIAG = True; sys.argv.remove("--diag")
    txt = emit(build(), header())
    out = sys.argv[1]
    open(out, "w").write(txt)
    print("wrote", out, len(txt), "bytes")
```

```python
import sys
from asmlib import *
import gen
from gen import (NAME, S, D, DFF, H, KA_X, KA_WQKV, KA_WO, KA_BX, KA_W1, KA_W2, KA_C, KA_WMOD, KA_OUT, KA_DBG, KA_WS,
                 WS_MODP, WS_MODF, WS_H, WS_QKV, WS_O, WS_X1, WS_F1, WS_XG, WS_STAT, WS_UB, WS_STAMP, LOG2E, f32, Kern,
                 wave_sum, round_bf16, interleave, header, emit)

WS_F1A = WS_H
WS_CNT = 0x2f00000
C_QKV, C_ATT, C_WO, C_UB, C_F1, C_H = 0, 16, 24, 40, 56, 72
C_MR, C_MRALL, C_ATTALL = 88, 152, 153
NCNT = 160
FL_BASE = NCNT * 256 + 1536
FL_BASE = (FL_BASE + 255) // 256 * 256
FL = {"qkv": FL_BASE, "att": FL_BASE + 256 * 128, "wo": FL_BASE + 256 * 128 + 256 * 256, "f1": FL_BASE + 256 * 256 + 2 * 256 * 128, "f2": FL_BASE + 256 * 256 + 3 * 256 * 128}
FL["xch"] = FL_BASE + 256 * 256 + 4 * 256 * 128
FL["mr"] = FL["xch"] + 256 * 128
CNT_BYTES = FL["mr"] + 8 * 128
WS_XCH = 0x3800000
OPT = set()
DIAG = False
SC = " sc1"
SCS = " sc1"
P_WS, P_X, P_WQKV, P_W1, P_W2, P_WO, P_OUT = 66, 68, 70, 72, 74, 76, 78
CNT = 28
CTL = 138240
L_SIG = {"qkv": CTL, "att": CTL + 4, "wo": CTL + 8, "ub": CTL + 12, "f1": CTL + 16, "h": CTL + 20, "mr": CTL + 24}
L_DEP = {"wo": CTL + 32, "f1": CTL + 36, "f2": CTL + 40, "qkv": CTL + 44}
L_STAMP = CTL + 64
LDS_TOTAL = CTL + 256
SPIN_MAX = 400000
SLEEP = 2
PFSTAGE = 7
L2D = 8
MRSTEP = 9

def exec_mask(n):
    if n < 32: return f"s_mov_b64 exec, {(1 << n) - 1:#x}"
    return f"s_mov_b32 exec_lo, -1\ns_mov_b32 exec_hi, {(1 << (n - 32)) - 1:#x}"

class PK(Kern):
    def st(self, i, wave=0):
        if not DIAG: return
        e = self.e; n = self.lab(f"st{i}")
        e(f"s_cmp_lg_u32 s24, {wave}\ns_cbranch_scc1 {n}\n{'s_memtime' if 'cyc' in OPT else 's_memrealtime'} s[98:99]\ns_waitcnt lgkmcnt(0)\nv_mov_b32 v254, s98\nv_mov_b32 v255, {L_STAMP+4*i}\nds_write_b32 v255, v254\ns_waitcnt lgkmcnt(0)\n{n}:")
    def code_touch(self, tag, frm, to, part_sreg, nparts, per):
        if "code" not in OPT: return 0
        e = self.e; here = self.lab("pc" + tag)
        e(f"s_getpc_b64 s[90:91]\n{here}:\ns_add_u32 s90, s90, {frm}-{here}\ns_addc_u32 s91, s91, 0")
        e(f"s_mul_i32 s92, s{part_sreg}, {per*8192}\nv_lshlrev_b32 v252, 7, v2\nv_add_u32 v252, s92, v252")
        for i in range(per):
            if i: e("v_add_u32 v252, 8192, v252")
            e(f"v_min_u32 v251, {to}-{frm}-4, v252\nglobal_load_dword v253, v251, s[90:91]")
        return per
    def poll(self, tag, cnt_sreg, target, lanes=1):
        e = self.e; L = self.lab
        if cnt_sreg is not None: e(f"s_lshl_b32 s32, s{cnt_sreg}, 8\nv_mov_b32 v6, s32")
        e(f"s_mov_b32 s33, 0\ns_mov_b64 exec, {(1 << lanes) - 1}")
        e(f"{L('poll'+tag)}:")
        e(f"buffer_load_dword v7, v6, {s(CNT,4)}, 0 offen offset:{0 if 'direct' in OPT else 128} sc1\ns_waitcnt vmcnt(0)")
        e(f"v_cmp_gt_u32 vcc, {target}, v7\ns_cmp_eq_u64 vcc, 0\ns_cbranch_scc1 {L('pollx'+tag)}")
        e(f"s_add_u32 s33, s33, 1\ns_cmp_ge_u32 s33, {SPIN_MAX}\ns_cbranch_scc1 {L('pollx'+tag)}")
        e(f"s_sleep {SLEEP}\ns_branch {L('poll'+tag)}")
        e(f"{L('pollx'+tag)}:\ns_mov_b64 exec, -1")
    def dep_wait_loaders(self, tag, cnt_sreg, target, first_wave_cond):
        e = self.e; L = self.lab
        e(f"s_cmp_lg_u32 s24, 4\ns_cbranch_scc1 {L('dw'+tag)}")
        if "noflags" in OPT: self.poll(tag, cnt_sreg, target)
        else:
            if tag == "f2" and "nos2" not in OPT:
                e(f"s_lshl_b32 s34, s25, 1\ns_add_u32 s34, s34, s27\ns_lshl_b32 s34, s34, 7\ns_add_u32 s34, s34, {FL[tag]}")
            elif tag == "f2":
                e(f"s_lshl_b32 s34, s25, 4\ns_add_u32 s34, s34, s26\ns_lshl_b32 s34, s34, 7\ns_add_u32 s34, s34, {FL[tag]}")
            elif tag == "wo":
                e(f"s_lshr_b32 s34, s25, 1\ns_lshl_b32 s34, s34, 1\ns_lshr_b32 s33, s26, 3\ns_add_u32 s34, s34, s33\ns_lshl_b32 s34, s34, 7\ns_add_u32 s34, s34, {FL[tag]}")
            else:
                e(f"s_lshl_b32 s34, s25, 2\ns_lshr_b32 s33, s26, 2\ns_add_u32 s34, s34, s33\ns_lshl_b32 s34, s34, 7\ns_add_u32 s34, s34, {FL[tag]}")
            self.wait_flags(tag, target, 34)
        e(f"v_mov_b32 v6, {L_DEP[tag]}\nv_mov_b32 v7, 1\nds_write_b32 v6, v7\ns_waitcnt lgkmcnt(0)\ns_branch {L('dwx'+tag)}")
        e(f"{L('dw'+tag)}:")
        e(f"v_mov_b32 v6, {L_DEP[tag]}\ns_mov_b32 s33, 0")
        e(f"{L('dwl'+tag)}:")
        e(f"ds_read_b32 v7, v6\ns_waitcnt lgkmcnt(0)\nv_readfirstlane_b32 s34, v7")
        e(f"s_cmp_lg_u32 s34, 0\ns_cbranch_scc1 {L('dwx'+tag)}")
        e(f"s_add_u32 s33, s33, 1\ns_cmp_ge_u32 s33, {SPIN_MAX*4}\ns_cbranch_scc1 {L('dwx'+tag)}")
        e(f"s_sleep 1\ns_branch {L('dwl'+tag)}")
        e(f"{L('dwx'+tag)}:")
    def arrive(self, tag, cnt_sreg, target):
        e = self.e; L = self.lab
        e(f"s_lshl_b32 s33, s{cnt_sreg}, 8\nv_mov_b32 v6, s33\nv_mov_b32 v7, 1")
        if "direct" in OPT:
            e(f"buffer_atomic_add v7, v6, {s(CNT,4)}, 0 offen sc1")
            return
        e(f"buffer_atomic_add v7, v6, {s(CNT,4)}, 0 offen sc0 sc1\ns_waitcnt vmcnt(0)\nv_readfirstlane_b32 s33, v7")
        e(f"s_cmp_lg_u32 s33, {target-1}\ns_cbranch_scc1 {L('arr'+tag)}")
        e(f"v_mov_b32 v7, {target}\nbuffer_store_dword v7, v6, {s(CNT,4)}, 0 offen offset:128 sc1")
        e(f"{L('arr'+tag)}:")
    def signal(self, tag, nwaves, cnt_sreg, target, flags=None):
        e = self.e; L = self.lab
        e("s_waitcnt vmcnt(0)")
        e(f"v_mov_b32 v6, {L_SIG[tag]}\nv_mov_b32 v7, 1\ns_mov_b64 exec, 1")
        e("ds_add_rtn_u32 v7, v6, v7\ns_waitcnt lgkmcnt(0)\nv_readfirstlane_b32 s32, v7\ns_mov_b64 exec, -1")
        e(f"s_cmp_lg_u32 s32, {nwaves-1}\ns_cbranch_scc1 {L('sig'+tag)}")
        if flags is not None and "noflags" not in OPT:
            n, offs = flags
            offs()
            e("v_mov_b32 v7, 1\n" + exec_mask(n))
            e(f"buffer_store_dword v7, v6, {s(CNT,4)}, 0 offen sc1")
        else:
            e("s_mov_b64 exec, 1")
            self.arrive(tag, cnt_sreg, target)
        e(f"{L('sig'+tag)}:\ns_mov_b64 exec, -1")
    def wait_flags(self, tag, n, base_sreg):
        e = self.e; L = self.lab
        e(f"v_lshlrev_b32 v6, 2, v2\nv_add_u32 v6, s{base_sreg}, v6\ns_mov_b32 s33, 0")
        e(exec_mask(n))
        e(f"{L('poll'+tag)}:")
        e(f"buffer_load_dword v7, v6, {s(CNT,4)}, 0 offen sc1\ns_waitcnt vmcnt(0)")
        e(f"v_cmp_ne_u32 vcc, 1, v7\ns_cmp_eq_u64 vcc, 0\ns_cbranch_scc1 {L('pollx'+tag)}")
        e(f"s_add_u32 s33, s33, 1\ns_cmp_ge_u32 s33, {SPIN_MAX}\ns_cbranch_scc1 {L('pollx'+tag)}")
        e(f"s_sleep {SLEEP}\ns_branch {L('poll'+tag)}")
        e(f"{L('pollx'+tag)}:\ns_mov_b64 exec, -1")

def F1OFF(): return WS_F1 if 'noalias' in OPT else WS_F1A

def tile_map(e, xr, xc):
    nxc = 16 // xc
    e(f"s_and_b32 s36, s2, 7\ns_lshr_b32 s37, s2, 3")
    e(f"s_and_b32 s38, s36, {nxc-1}\ns_lshr_b32 s39, s36, {nxc.bit_length()-1}")
    e(f"s_and_b32 s40, s37, {xc-1}\ns_lshr_b32 s41, s37, {xc.bit_length()-1}")
    e(f"s_mul_i32 s38, s38, {xc}\ns_add_u32 s26, s38, s40")
    e(f"s_mul_i32 s39, s39, {xr}\ns_add_u32 s25, s39, s41")

def tile_map_s2(e):
    e("s_and_b32 s36, s2, 7\ns_lshr_b32 s37, s2, 3\ns_and_b32 s27, s36, 1\ns_lshr_b32 s36, s36, 1")
    e("s_and_b32 s26, s37, 7\ns_lshr_b32 s37, s37, 3\ns_lshl_b32 s36, s36, 2\ns_add_u32 s25, s36, s37")

def gemm_phase(k, tag, K, lda, ldb, BN, srcA, sizeA, pB, sizeB, epi, xr, xc, NS, nxt_c, nxt_l, dep=None, stamps=(None, None), hbar=False):
    e = k.e
    L = lambda n: k.lab(tag + "_" + n)
    BM, BK = 128, 64
    nA = BM * BK * 2 // 1024; nB = BN * BK * 2 // 1024
    nAw, nBw = nA // 4, nB // 4
    nld = nAw + nBw
    SB = (nA + nB) * 1024
    s2 = epi == "ffn2s"
    nk = K // BK // (2 if s2 else 1)
    TM, TN = 64, BN // 2
    mt, nt = TM // 16, TN // 16
    pitch = BN * 2; cpr = BN // 8
    hbits = {4: 2, 6: 1, 2: 1, 0: 3}[(pitch // 32) % 8]
    ACC = 8; NACC = 4 * mt * nt
    FA = ACC + NACC; NF = 4 * (mt + nt); FB = FA + NF
    AX = FB + NF; AW = AX + 2; EP = AW + nt
    XL = 135168
    assert SB * NS <= XL
    perm = epi == "qkv" and "perm" in OPT
    asc = SC if dep else ""
    e(f"{L('c')}:")
    if s2: tile_map_s2(e)
    else: tile_map(e, xr, xc)
    e("s_lshr_b32 s42, s24, 1\ns_and_b32 s43, s24, 1")
    e("v_and_b32 v3, 15, v2\nv_lshrrev_b32 v4, 4, v2")
    e(f"s_lshl_b32 s44, s25, 7\ns_lshl_b32 s45, s42, 6\ns_add_u32 s44, s44, s45")
    e(f"s_mul_i32 s46, s26, {BN}\ns_mul_i32 s45, s43, {TN}\ns_add_u32 s46, s46, s45")
    k.srd(20, P_WS, WS_MODF, 6144 * 4)
    if epi == "qkv": k.srd(12, P_WS, WS_QKV, 96 * S * 64)
    elif epi == "ffn1": k.srd(12, P_WS, F1OFF(), S * DFF * 2)
    elif epi == "wo": k.srd(12, P_WS, WS_X1, S * D * 2); k.srd(16, P_X, 0, S * D * 2)
    elif epi in ("ffn2", "ffn2s"): k.srd(12, P_OUT, 0, S * D * 2); k.srd(16, P_WS, WS_X1, S * D * 2)
    G = EP + 2 * mt * nt; GG = G + 4 * nt; W1R = GG + 4 * nt
    if s2:
        G = EP + 16
        e("s_lshl_b32 s47, s27, 5\ns_add_u32 s46, s46, s47")
        e("s_lshl_b32 s47, s25, 4\ns_lshl_b32 s48, s26, 1\ns_add_u32 s47, s47, s48\ns_add_u32 s47, s47, s43\ns_lshl_b32 s47, s47, 2\ns_lshl_b32 s48, s42, 1\ns_add_u32 s47, s47, s48\ns_add_u32 s47, s47, s27\ns_lshl_b32 s47, s47, 12")
        e("v_lshlrev_b32 v5, 4, v2")
        for j in range(mt):
            e(f"buffer_load_dwordx4 {v(EP+4*j,4)}, v5, s[16:19], s47 offen offset:{j*1024}{SC}")
        k.srd(20, P_WS, WS_MODP, 4 * 6144 * 4)
        e(f"v_lshlrev_b32 v6, 4, v4\ns_lshl_b32 s47, s46, 2\ns_add_u32 s47, s47, {5*1024*4}")
        for p_ in range(4):
            for i in range(2):
                e(f"buffer_load_dwordx4 {v(G+8*p_+4*i,4)}, v6, s[20:23], s47 offen offset:{i*64}{SC}")
            if p_ < 3: e("s_add_u32 s47, s47, 24576")
    if epi == "wo":
        e(f"s_load_dwordx4 s[36:39], s[0:1], {KA_C}")
        e("s_and_b32 s58, s2, 3\ns_lshr_b32 s59, s2, 2\ns_add_u32 s59, s59, 32")
        e("v_lshrrev_b32 v6, 3, v0\nv_and_b32 v7, 7, v0\nv_mov_b32 v247, v7")
        e("s_lshl_b32 s47, s58, 8\nv_add_u32 v6, s47, v6\nv_lshlrev_b32 v248, 1, v6")
        e("v_mul_u32_u24 v5, 12288, v6\nv_lshlrev_b32 v6, 4, v7\nv_add_u32 v5, v5, v6\ns_lshl_b32 s47, s59, 7\nv_add_u32 v5, s47, v5")
        e("s_waitcnt lgkmcnt(0)")
        k.srd(52, 36, 0, 2048); k.srd(60, 38, 0, 1024 * 6144 * 2)
        for i in range(8): e(f"buffer_load_ushort v{176+i}, v248, s[52:55], 0 offen offset:{i*64}")
        for i in range(8):
            e(f"s_mov_b32 s47, {i*32*12288}\nbuffer_load_dwordx4 {v(184+4*i,4)}, v5, s[60:63], s47 offen")
        gemv_finish(k, 176, 184, 216, 224)
        MRL = 139264
        e(f"s_lshl_b32 s47, s24, 8\nv_lshlrev_b32 v5, 5, v247\nv_add_u32 v5, s47, v5\nv_add_u32 v5, {MRL}, v5")
        e("s_mov_b64 exec, 0xff\nds_write_b128 v5, v[216:219]\nds_write_b128 v5, v[220:223] offset:16\ns_waitcnt lgkmcnt(0)")
        e(f"v_mov_b32 v6, {L_SIG['mr']}\nv_mov_b32 v7, 1\ns_mov_b64 exec, 1\nds_add_rtn_u32 v7, v6, v7\ns_waitcnt lgkmcnt(0)\nv_readfirstlane_b32 s47, v7\ns_mov_b64 exec, -1")
        e(f"s_cmp_lg_u32 s47, 3\ns_cbranch_scc1 {L('mrx')}")
        e(f"v_lshlrev_b32 v5, 2, v2\nv_add_u32 v6, {MRL}, v5")
        for w_ in range(4): e(f"ds_read_b32 v{216+w_}, v6 offset:{w_*256}")
        e("s_waitcnt lgkmcnt(0)\nv_add_f32 v216, v216, v217\nv_add_f32 v218, v218, v219\nv_add_f32 v216, v216, v218")
        k.srd(52, P_WS, WS_MODP, 4 * 6144 * 4)
        e("s_mul_i32 s47, s58, 24576\ns_lshl_b32 s48, s59, 8\ns_add_u32 s47, s47, s48")
        e(f"buffer_store_dword v216, v5, s[52:55], s47 offen{SCS}\ns_waitcnt vmcnt(0)")
        e(f"v_mov_b32 v6, {C_MRALL*256}\nv_mov_b32 v7, 1\ns_mov_b64 exec, 1\nbuffer_atomic_add v7, v6, {s(CNT,4)}, 0 offen sc1\ns_mov_b64 exec, -1")
        e(f"{L('mrx')}:")
    if epi in ("wo", "ffn2"):
        if epi == "wo":
            e(f"v_add_u32 v5, s44, v3\nv_lshlrev_b32 v5, 11, v5\nv_lshlrev_b32 v6, 3, v4\nv_add_u32 v5, v5, v6")
            e(f"s_lshl_b32 s47, s46, 1\nv_add_u32 v5, s47, v5")
            for j in range(mt):
                e(f"s_mov_b32 s48, {j*16*2048}")
                for i in range(nt):
                    e(f"buffer_load_dwordx2 {v(EP+2*(j*nt+i),2)}, v5, s[16:19], s48 offen offset:{i*32}")
        else:
            e("s_lshl_b32 s47, s25, 4\ns_add_u32 s47, s47, s26\ns_lshl_b32 s47, s47, 2\ns_add_u32 s47, s47, s24\ns_lshl_b32 s47, s47, 12\nv_lshlrev_b32 v5, 4, v2")
            for j in range(mt):
                e(f"buffer_load_dwordx4 {v(EP+4*j,4)}, v5, s[16:19], s47 offen offset:{j*1024}{SC}")
        if epi == "ffn2":
            raise NotImplementedError
        if epi == "wo":
            e("s_lshr_b32 s58, s2, 4\ns_and_b32 s59, s2, 15")
            e(f"v_mul_u32_u24 v5, {(65536+27)//28}, v2\nv_lshrrev_b32 v5, 16, v5\nv_mul_u32_u24 v6, 28, v5\nv_sub_u32 v6, v2, v6")
            e("s_lshl_b32 s60, s58, 6\ns_lshl_b32 s61, s24, 4\ns_add_u32 s60, s60, s61\nv_add_u32 v5, s60, v5")
            e(f"v_mul_u32_u24 v7, {DFF*2}, v5\nv_lshlrev_b32 v6, 4, v6\nv_add_u32 v7, v7, v6\ns_mul_i32 s60, s59, 448\nv_add_u32 v7, s60, v7")
            k.srd(60, P_W1, 0, D * DFF * 2)
            e("v_cmp_gt_u32 vcc, 56, v2\ns_and_saveexec_b64 s[34:35], vcc")
            for i in range(8):
                e(f"s_mov_b32 s64, {i*2*DFF*2}")
                e(f"buffer_load_dwordx4 {v(W1R+4*i,4)}, v7, s[60:63], s64 offen")
            e("s_mov_b64 exec, s[34:35]")
    e(f"v_lshrrev_b32 v5, 1, v3\nv_xor_b32 v5, v5, v4\nv_and_b32 v5, 7, v5")
    e(f"v_lshlrev_b32 v5, 4, v5\ns_lshl_b32 s47, s42, 6\nv_add_u32 v6, s47, v3\nv_lshlrev_b32 v6, 7, v6")
    e(f"v_add_u32 v{AX}, v5, v6\nv_xor_b32 v{AX+1}, 64, v{AX}")
    e("v_lshrrev_b32 v5, 2, v3\nv_and_b32 v6, 3, v2")
    e("v_lshlrev_b32 v7, 3, v4\nv_add_u32 v7, v7, v5")
    e(f"v_mul_u32_u24 v7, {pitch}, v7\nv_lshlrev_b32 v6, 3, v6\nv_add_u32 v7, v7, v6\nv_add_u32 v7, {nA*1024}, v7")
    if hbits == 2: e("v_lshrrev_b32 v5, 1, v5\nv_and_b32 v6, 1, v4\nv_lshlrev_b32 v6, 1, v6\nv_or_b32 v5, v5, v6")
    elif hbits == 1: e("v_and_b32 v5, 1, v4")
    else: e("v_and_b32 v6, 1, v4\nv_lshlrev_b32 v6, 2, v6\nv_or_b32 v5, v5, v6")
    e(f"s_mul_i32 s47, s43, {nt}")
    for i in range(nt):
        e(f"s_add_u32 s48, s47, {i}\nv_xor_b32 v6, s48, v5\nv_lshlrev_b32 v6, 5, v6\nv_add_u32 v{AW+i}, v7, v6")
    for r in range(NACC): e(f"v_mov_b32 v{ACC+r}, 0")
    def reads(ss, F):
        xs = [f"ds_read_b128 {v(F+4*j,4)}, v{AX+ss} offset:{j*2048}" for j in range(mt)]
        ws = []
        for i in range(nt):
            for hh in range(2):
                ws.append(f"ds_read_b64_tr_b16 {v(F+4*mt+4*i+2*hh,2)}, v{AW+i} offset:{(ss*32+hh*4)*pitch}")
        return [xs[0]] + ws[:2] + xs[1:] + ws[2:]
    def mfmas(F):
        return [f"v_mfma_f32_16x16x32_bf16 {v(ACC+4*(j*nt+i),4)}, {v(F+4*mt+4*i,4)}, {v(F+4*j,4)}, {v(ACC+4*(j*nt+i),4)}"
                for j in range(mt) for i in range(nt)]
    def mix(mf, rd, extra=()):
        rd = list(rd)
        if len(rd) <= len(mf) - 4:
            return interleave(mf, rd + list(extra))
        out = []; oi = 0; ex = list(extra)
        for m_ in mf:
            out.append(m_)
            for _ in range(2):
                if oi < len(rd): out.append(rd[oi]); oi += 1
            if oi >= len(rd) and ex: out.append(ex.pop(0))
        out += rd[oi:] + ex
        return out
    if epi == "wo": k.code_touch("w", k.lab("f1_c"), k.lab("f2_c"), 24, 4, 1)
    if epi == "ffn1": k.code_touch("f", k.lab("f1_cloop"), k.lab("end"), 24, 4, 1)
    e(f"s_mov_b32 s49, 0\ns_mov_b32 s54, {SB}\ns_mov_b32 s55, {-(NS-1)*SB & 0xffffffff:#x}")
    e("s_barrier")
    if stamps[0] is not None: k.st(stamps[0])
    for l in reads(0, FA): e(l)
    l2pf = epi in ("qkv", "ffn1") and ("l2" + tag) in OPT
    if l2pf:
        k.srd(56, P_WS, srcA, sizeA); k.srd(60, pB, 0, sizeB)
        e(f"s_cmp_eq_u32 s24, 0\ns_cselect_b32 s65, {(nk-1) & 1}, 99")
        e("s_lshr_b32 s37, s2, 3")
        e(f"s_and_b32 s40, s37, {xc-1}\ns_lshr_b32 s41, s37, {xc.bit_length()-1}")
        e(f"v_lshrrev_b32 v5, 5, v2\nv_add_u32 v5, {L2D}, v5")
        e(f"v_and_b32 v6, 31, v2\ns_lshl_b32 s47, s40, 5\nv_add_u32 v6, s47, v6\ns_lshl_b32 s47, s25, 7\nv_add_u32 v6, s47, v6\nv_lshlrev_b32 v6, 11, v6\nv_lshlrev_b32 v7, 7, v5\nv_add_u32 v250, v6, v7")
        e(f"v_lshlrev_b32 v5, 6, v5\nv_lshrrev_b32 v6, 2, v2\nv_and_b32 v6, 7, v6\nv_add_u32 v5, v5, v6\ns_lshl_b32 s47, s41, 3\nv_add_u32 v5, s47, v5\ns_mov_b32 s47, {ldb*2}\nv_mul_lo_u32 v5, s47, v5")
        e(f"v_and_b32 v6, 3, v2\nv_lshlrev_b32 v6, 7, v6\nv_add_u32 v5, v5, v6\ns_mul_i32 s47, s26, {BN*2}\ns_and_b32 s47, s47, 0xffffff80\nv_add_u32 v249, s47, v5")
    e(f"s_mov_b32 s50, {nk-1}")
    adv_s = f"s_add_u32 s49, s49, 1\ns_cmp_eq_u32 s49, {NS}\ns_cselect_b32 s51, s55, s54\ns_cselect_b32 s49, 0, s49"
    adv_v = [f"v_add_u32 v{r}, s51, v{r}" for r in [AX, AX + 1] + [AW + i for i in range(nt)]]
    e(f"{L('cloop')}:")
    if epi == "wo":
        e(f"s_cmp_eq_u32 s50, 11\ns_cbranch_scc0 {L('m1')}")
        e(f"v_mov_b32 v245, {C_MRALL*256}\nbuffer_load_dword v246, v245, {s(CNT,4)}, 0 offen sc1")
        e(f"{L('m1')}:\ns_cmp_eq_u32 s50, 8\ns_cbranch_scc0 {L('m2')}")
        e(f"s_waitcnt vmcnt(0)\nv_readfirstlane_b32 s47, v246\ns_cmp_ge_u32 s47, 256\ns_cbranch_scc1 {L('m1ok')}")
        e(f"v_mov_b32 v6, {C_MRALL*256 - 128}")
        k.poll("mr", None, 256)
        e(f"{L('m1ok')}:")
        k.srd(60, P_WS, WS_MODP, 4 * 6144 * 4)
        e("s_lshl_b32 s47, s26, 6\ns_lshr_b32 s48, s2, 4\ns_lshl_b32 s48, s48, 6\ns_cmp_ge_u32 s24, 2\ns_cselect_b32 s47, s48, s47")
        e("s_mov_b32 s48, 4096\ns_cmp_eq_u32 s24, 0\ns_cselect_b32 s48, 2048, s48\ns_cmp_eq_u32 s24, 3\ns_cselect_b32 s48, 3072, s48")
        e("s_add_u32 s47, s47, s48\ns_lshl_b32 s47, s47, 2\nv_lshlrev_b32 v245, 2, v2")
        for p_ in range(4):
            e(f"buffer_load_dword v{240+p_}, v245, s[60:63], s47 offen{SC}")
            if p_ < 3: e("s_add_u32 s47, s47, 24576")
        e(f"{L('m2')}:\ns_cmp_eq_u32 s50, 4\ns_cbranch_scc0 {L('m3')}")
        e("s_waitcnt vmcnt(0)\nv_add_f32 v240, v240, v241\nv_add_f32 v242, v242, v243\nv_add_f32 v240, v240, v242")
        round_bf16(e, 240)
        e("v_add_f32 v241, 1.0, v240")
        round_bf16(e, 241)
        e("s_sub_u32 s47, s24, 1\ns_cmp_lt_u32 s47, 2\ns_cselect_b64 vcc, -1, 0\nv_cndmask_b32 v240, v240, v241, vcc")
        e(f"s_lshl_b32 s47, s24, 8\ns_add_u32 s47, s47, 135168\nv_add_u32 v245, s47, v245\nds_write_b32 v245, v240")
        e(f"{L('m3')}:")
    if l2pf:
        e(f"s_and_b32 s47, s50, 1\ns_cmp_lg_u32 s47, s65\ns_cbranch_scc1 {L('nopf')}")
        e(f"buffer_load_dword v248, v250, s[56:59], 0 offen{asc}\nbuffer_load_dword v248, v249, s[60:63], 0 offen")
        e(f"v_add_u32 v250, 256, v250\nv_add_u32 v249, {2*64*ldb*2}, v249")
        e(f"{L('nopf')}:")
    def sprinkle(seq, extra, start):
        out = []; n_ = 0; ex = list(extra)
        for x in seq:
            out.append(x)
            if x.startswith("v_mfma"):
                n_ += 1
                if n_ > start and ex: out.append(ex.pop(0))
        return out + ex
    tight = "loose" not in OPT
    if not tight: e(adv_s)
    e("s_waitcnt lgkmcnt(0)")
    seq = mix(mfmas(FA), reads(1, FB))
    if tight: seq = sprinkle(seq, adv_s.split("\n"), 0)
    last_rd = max(i for i, x in enumerate(seq) if x.startswith("ds_read"))
    tail = [x for x in seq[last_rd + 1:]]
    seq = seq[:last_rd + 1]
    av = list(adv_v)
    for x in tail:
        seq.append(x)
        if av and x.startswith("v_mfma"): seq.append(av.pop(0))
    seq += av
    for l in seq: e(l)
    e("s_waitcnt lgkmcnt(0)\ns_barrier")
    seqb = mix(mfmas(FB), reads(0, FA))
    if tight:
        seqb = sprinkle(seqb, ["s_sub_u32 s50, s50, 1", "s_cmp_lg_u32 s50, 0"], 1)
        for l in seqb: e(l)
        e(f"s_cbranch_scc1 {L('cloop')}")
    else:
        for l in seqb: e(l)
        e(f"s_sub_u32 s50, s50, 1\ns_cmp_lg_u32 s50, 0\ns_cbranch_scc1 {L('cloop')}")
    e("s_waitcnt lgkmcnt(0)")
    for l in mix(mfmas(FA), reads(1, FB)): e(l)
    e("s_waitcnt lgkmcnt(0)")
    if epi != "qkv": e("s_barrier")
    for l in mfmas(FB): e(l)
    if stamps[1] is not None: k.st(stamps[1])
    T = FA
    def acc(i, j): return ACC + 4 * (j * nt + i)
    def pack_pair(ta, tb, dst):
        e(f"v_cvt_pk_bf16_f32 v{dst}, v{ta}, v{ta+1}\nv_cvt_pk_bf16_f32 v{dst+1}, v{ta+2}, v{ta+3}")
        e(f"v_cvt_pk_bf16_f32 v{dst+2}, v{tb}, v{tb+1}\nv_cvt_pk_bf16_f32 v{dst+3}, v{tb+2}, v{tb+3}")
        e(f"v_permlane16_swap_b32 v{dst}, v{dst+2}\nv_permlane16_swap_b32 v{dst+1}, v{dst+3}")
    e("v_and_b32 v5, 1, v4\nv_lshlrev_b32 v5, 5, v5\nv_lshrrev_b32 v6, 1, v4\nv_lshlrev_b32 v6, 4, v6\nv_add_u32 v5, v5, v6")
    if epi == "qkv":
        e("v_lshlrev_b32 v6, 6, v3\nv_add_u32 v5, v5, v6")
        n = 0
        for p in range(nt // 2):
            if perm:
                e(f"s_mul_i32 s52, s43, 96\ns_add_u32 s52, s52, {32*p}\ns_cmp_lt_u32 s52, 64\ns_cselect_b32 s53, {f32(LOG2E * 32 ** -0.5)}, 1.0")
                e("s_lshr_b32 s54, s52, 6\ns_lshl_b32 s54, s54, 5\ns_bfe_u32 s52, s52, 0x10005\ns_add_u32 s52, s52, s54\ns_lshl_b32 s54, s26, 1\ns_add_u32 s52, s52, s54")
                e("s_lshl_b32 s52, s52, 17\ns_lshl_b32 s54, s44, 6\ns_add_u32 s52, s52, s54")
            else:
                e(f"s_add_u32 s52, s46, {32*p}\ns_cmp_lt_u32 s52, 1024\ns_cselect_b32 s53, {f32(LOG2E * 32 ** -0.5)}, 1.0")
                e(f"s_lshl_b32 s52, s52, 12\ns_lshl_b32 s54, s44, 6\ns_add_u32 s52, s52, s54")
            for j in range(mt):
                ta, tb = acc(2 * p, j), acc(2 * p + 1, j)
                for r in range(4):
                    e(f"v_mul_f32 v{ta+r}, s53, v{ta+r}\nv_mul_f32 v{tb+r}, s53, v{tb+r}")
                d = T + 4 * (n % 8); n += 1
                pack_pair(ta, tb, d)
                e(f"buffer_store_dwordx4 {v(d,4)}, v5, s[12:15], s52 offen offset:{j*1024}{SCS}")
        e(f"s_add_u32 s35, s26, {C_QKV}")
        k.signal("qkv", 4, 35, 16, (6, lambda: e(f"s_mul_i32 s33, s26, 6\nv_add_u32 v6, s33, v2\nv_lshrrev_b32 v7, 5, v6\nv_and_b32 v6, 31, v6\nv_lshlrev_b32 v6, 8, v6"
                                                        f"\nv_lshlrev_b32 v7, 6, v7\nv_add_u32 v6, v6, v7"
                                                        f"\ns_lshl_b32 s33, s25, 2\ns_add_u32 s33, s33, {FL['att']}\nv_add_u32 v6, s33, v6")))

    elif epi == "ffn1":
        ST = FA; UU = FA + 8; BB = FA + 36; TMP = FA + 64; T = FA + 72
        e(f"s_lshl_b32 s47, s42, 6\nv_add_u32 v6, s47, v3\nv_lshlrev_b32 v6, 3, v6\nv_add_u32 v6, {XL}, v6")
        for j in range(mt): e(f"ds_read_b64 {v(ST+2*j,2)}, v6 offset:{j*128}")
        e(f"s_mul_i32 s47, s43, {TN*4}\ns_add_u32 s47, s47, {XL+1024}\nv_lshlrev_b32 v7, 4, v4\nv_add_u32 v7, s47, v7")
        for i in range(nt):
            e(f"ds_read_b128 {v(UU+4*i,4)}, v7 offset:{i*64}\nds_read_b128 {v(BB+4*i,4)}, v7 offset:{896+i*64}")
        e("s_lshl_b32 s47, s42, 6\nv_add_u32 v6, s47, v3\nv_lshlrev_b32 v6, 6, v6\nv_lshrrev_b32 v7, 1, v4\nv_lshlrev_b32 v7, 4, v7\nv_add_u32 v6, v6, v7")
        e("v_and_b32 v7, 1, v4\nv_lshlrev_b32 v5, 5, v7\nv_add_u32 v5, v5, v6")
        e("v_lshlrev_b32 v7, 10, v7\nv_add_u32 v6, v6, v7\ns_lshl_b32 s47, s43, 5\nv_add_u32 v6, s47, v6")
        e(f"s_mul_i32 s48, s25, 112\ns_mul_i32 s47, s26, 7\ns_add_u32 s48, s48, s47\ns_lshl_b32 s48, s48, 13")
        e(f"s_add_u32 s53, s48, {3*8192}")
        e("s_waitcnt lgkmcnt(0)")
        def ln(i, j, t):
            a_ = acc(i, j)
            for h_ in range(2):
                e(f"v_pk_fma_f32 {v(t+2*h_,2)}, {v(ST+2*j,2)}, {v(UU+4*i+2*h_,2)}, {v(BB+4*i+2*h_,2)} op_sel_hi:[0,1,1] neg_lo:[1,0,0] neg_hi:[1,0,0]")
            for h_ in range(2):
                e(f"v_pk_fma_f32 {v(a_+2*h_,2)}, {v(a_+2*h_,2)}, {v(ST+2*j,2)}, {v(t+2*h_,2)} op_sel:[0,1,0]")
        cnt = [0]
        def put(ta, tb, addr, soff, off):
            d = T + 4 * (cnt[0] % 4); cnt[0] += 1
            e(f"v_cvt_pk_bf16_f32 v{d}, v{ta}, v{ta+1}\nv_cvt_pk_bf16_f32 v{d+1}, v{ta+2}, v{ta+3}")
            e(f"v_cvt_pk_bf16_f32 v{d+2}, v{tb}, v{tb+1}\nv_cvt_pk_bf16_f32 v{d+3}, v{tb+2}, v{tb+3}")
            for q in range(4): e(f"v_pk_max_i16 v{d+q}, v{d+q}, 0")
            e(f"v_permlane16_swap_b32 v{d}, v{d+2}\nv_permlane16_swap_b32 v{d+1}, v{d+3}")
            e(f"buffer_store_dwordx4 {v(d,4)}, {addr}, s[12:15], {soff} offen offset:{off}{SCS}")
        XA = 139264; XR = T + 16
        e(f"s_lshl_b32 s47, s24, 10\nv_lshlrev_b32 v7, 4, v2\nv_add_u32 v7, s47, v7\nv_add_u32 v7, {XA}, v7")
        e(f"s_cmp_eq_u32 s43, 1\ns_cbranch_scc1 {L('ep1')}")
        for wn_ in range(2):
            if wn_ == 1: e(f"{L('ep1')}:\ns_add_u32 s48, s48, {4*8192}")
            single = 6 if wn_ == 0 else 0
            pairs = [(0, 1), (2, 3), (4, 5)] if wn_ == 0 else [(1, 2), (3, 4), (5, 6)]
            mine = (0, 1) if wn_ == 0 else (2, 3); give = (2, 3) if wn_ == 0 else (0, 1)
            for jj in (0, 2):
                ln(single, jj, TMP); ln(single, jj + 1, TMP + 4)
            for j in range(4):
                a_ = acc(single, j)
                e(f"v_cvt_pk_bf16_f32 v{XR+2*j}, v{a_}, v{a_+1}\nv_cvt_pk_bf16_f32 v{XR+2*j+1}, v{a_+2}, v{a_+3}")
            for q in range(8): e(f"v_pk_max_i16 v{XR+q}, v{XR+q}, 0")
            e(f"ds_write_b128 v7, {v(XR+2*give[0],4)}\ns_waitcnt lgkmcnt(0)")
            e(f"s_lshl_b32 s47, s24, 2\ns_add_u32 s47, s47, {CTL+48}\nv_mov_b32 v{TMP}, s47\nv_mov_b32 v{TMP+1}, 1\nds_write_b32 v{TMP}, v{TMP+1}")
            for pi, (ia, ib) in enumerate(pairs):
                for j in range(mt):
                    ln(ia, j, TMP); ln(ib, j, TMP + 4)
                    put(acc(ia, j), acc(ib, j), "v5", "s48", j * 1024)
                if pi < 2: e("s_add_u32 s48, s48, 8192")
            tg = f"x{wn_}"
            e(f"s_xor_b32 s47, s24, 1\ns_lshl_b32 s47, s47, 2\ns_add_u32 s47, s47, {CTL+48}\nv_mov_b32 v{TMP}, s47\ns_mov_b32 s33, 0")
            e(f"{L('xw'+tg)}:\nds_read_b32 v{TMP+1}, v{TMP}\ns_waitcnt lgkmcnt(0)\nv_readfirstlane_b32 s34, v{TMP+1}")
            e(f"s_cmp_lg_u32 s34, 0\ns_cbranch_scc1 {L('xx'+tg)}\ns_add_u32 s33, s33, 1\ns_cmp_lt_u32 s33, {SPIN_MAX}\ns_cbranch_scc1 {L('xw'+tg)}")
            e(f"{L('xx'+tg)}:")
            e(f"v_xor_b32 v7, 1024, v7\nds_read_b128 {v(TMP,4)}, v7\ns_waitcnt lgkmcnt(0)")
            for n_, j in enumerate(mine):
                d = T + 4 * (cnt[0] % 4); cnt[0] += 1
                own = XR + 2 * j; oth = TMP + 2 * n_
                a0, b0 = (own, oth) if wn_ == 0 else (oth, own)
                e(f"v_mov_b32 v{d}, v{a0}\nv_mov_b32 v{d+1}, v{a0+1}\nv_mov_b32 v{d+2}, v{b0}\nv_mov_b32 v{d+3}, v{b0+1}")
                e(f"v_permlane16_swap_b32 v{d}, v{d+2}\nv_permlane16_swap_b32 v{d+1}, v{d+3}")
                e(f"buffer_store_dwordx4 {v(d,4)}, v5, s[12:15], s53 offen offset:{j*1024}{SCS}")
            if wn_ == 0: e(f"s_branch {L('ep2')}")
        e(f"{L('ep2')}:")
        if "stf1" in OPT: k.st(12)
        e(f"s_add_u32 s35, s25, {C_F1}")
        k.signal("f1", 4, 35, 16, (16, lambda: e(f"s_lshl_b32 s33, s25, 11\ns_lshl_b32 s34, s26, 2\ns_add_u32 s33, s33, s34\ns_add_u32 s33, s33, {FL['f2']}\nv_lshlrev_b32 v6, 7, v2\nv_add_u32 v6, s33, v6")) if "nos2" in OPT else
                 (1, lambda: e(f"s_lshl_b32 s33, s25, 1\ns_lshr_b32 s34, s26, 3\ns_add_u32 s33, s33, s34\ns_lshl_b32 s33, s33, 7\ns_and_b32 s34, s26, 7\ns_lshl_b32 s34, s34, 2\ns_add_u32 s33, s33, s34\ns_add_u32 s33, s33, {FL['f2']}\nv_mov_b32 v6, s33")))
        if "stf1" in OPT: k.st(13)
    elif s2:
        e(f"s_cmp_eq_u32 s27, 0\ns_cbranch_scc1 {L('noswap')}")
        for j in range(mt):
            for r in range(8): e(f"v_swap_b32 v{acc(0,j)+r}, v{acc(2,j)+r}")
        e(f"{L('noswap')}:")
        k.srd(56, P_WS, WS_XCH, 128 * 2 * 4 * 8192)
        e("s_lshl_b32 s47, s25, 3\ns_add_u32 s47, s47, s26\ns_lshl_b32 s47, s47, 1")
        e("s_xor_b32 s48, s27, 1\ns_add_u32 s48, s48, s47\ns_lshl_b32 s49, s48, 2\ns_add_u32 s49, s49, s24\ns_lshl_b32 s49, s49, 13")
        e("s_add_u32 s52, s47, s27\ns_lshl_b32 s53, s52, 2\ns_add_u32 s53, s53, s24\ns_lshl_b32 s53, s53, 13")
        e("v_lshlrev_b32 v7, 4, v2")
        for j in range(mt):
            if j == 2: e("s_add_u32 s49, s49, 4096")
            e(f"buffer_store_dwordx4 {v(acc(2,j),4)}, v7, s[56:59], s49 offen offset:{(j%2)*2048}{SCS}")
            e(f"buffer_store_dwordx4 {v(acc(3,j),4)}, v7, s[56:59], s49 offen offset:{(j%2)*2048+1024}{SCS}")
        e("s_waitcnt vmcnt(0)")
        e(f"s_lshl_b32 s48, s48, 7\ns_lshl_b32 s54, s24, 2\ns_add_u32 s48, s48, s54\ns_add_u32 s48, s48, {FL['xch']}\nv_mov_b32 v6, s48\nv_mov_b32 v249, 1")
        e(f"s_mov_b64 exec, 1\nbuffer_store_dword v249, v6, {s(CNT,4)}, 0 offen sc1\ns_mov_b64 exec, -1")
        e(f"s_lshl_b32 s52, s52, 7\ns_add_u32 s52, s52, s54\ns_add_u32 s52, s52, {FL['xch']}\nv_mov_b32 v6, s52\ns_mov_b32 s33, 0\ns_mov_b64 exec, 1")
        e(f"{L('xpoll')}:")
        e(f"buffer_load_dword v249, v6, {s(CNT,4)}, 0 offen sc1\ns_waitcnt vmcnt(0)\nv_readfirstlane_b32 s34, v249")
        e(f"s_cmp_eq_u32 s34, 1\ns_cbranch_scc1 {L('xdone')}\ns_add_u32 s33, s33, 1\ns_cmp_lt_u32 s33, {SPIN_MAX}\ns_cbranch_scc1 {L('xpoll')}")
        e(f"{L('xdone')}:\ns_mov_b64 exec, -1")
        for j in range(mt):
            if j == 2: e("s_add_u32 s53, s53, 4096")
            e(f"buffer_load_dwordx4 {v(acc(2,j),4)}, v7, s[56:59], s53 offen offset:{(j%2)*2048}{SC}")
            e(f"buffer_load_dwordx4 {v(acc(3,j),4)}, v7, s[56:59], s53 offen offset:{(j%2)*2048+1024}{SC}")
        XT = T + 32
        for r in range(8):
            e(f"v_add_f32 v{G+r}, v{G+r}, v{G+8+r}\nv_add_f32 v{G+16+r}, v{G+16+r}, v{G+24+r}\nv_add_f32 v{G+r}, v{G+r}, v{G+16+r}")
            round_bf16(e, G + r)
        e(f"v_add_u32 v6, s44, v3\nv_lshlrev_b32 v6, 11, v6\ns_lshl_b32 s47, s46, 1\nv_add_u32 v6, s47, v6\nv_add_u32 v5, v5, v6")
        for j in range(mt):
            e(f"s_waitcnt vmcnt({2*(mt-1-j) + j})")
            for q in range(4): e(f"v_pk_add_f32 {v(acc(0,j)+2*q,2)}, {v(acc(0,j)+2*q,2)}, {v(acc(2,j)+2*q,2)}")
            e(f"s_mov_b32 s48, {j*16*2048}")
            d = T + 4 * (j % 2)
            for i in range(2):
                a0 = acc(i, j); x0 = EP + 4 * j + 2 * i
                for q in range(2):
                    e(f"v_lshlrev_b32 v{XT+2*q}, 16, v{x0+q}\nv_and_b32 v{XT+2*q+1}, 0xffff0000, v{x0+q}")
                for q in range(2):
                    e(f"v_pk_fma_f32 {v(a0+2*q,2)}, {v(a0+2*q,2)}, {v(G+4*i+2*q,2)}, {v(XT+2*q,2)}")
            pack_pair(acc(0, j), acc(1, j), d)
            e(f"buffer_store_dwordx4 {v(d,4)}, v5, s[12:15], s48 offen{' sc1' if 'outsc1' in OPT else ('' if 'outplain' in OPT else ' nt')}")
    else:
        ML = 135168
        e(f"s_lshl_b32 s47, s43, 7\nv_lshlrev_b32 v6, 4, v4\nv_add_u32 v6, s47, v6\nv_add_u32 v6, {ML}, v6")
        for i in range(nt):
            e(f"ds_read_b128 {v(G+4*i,4)}, v6 offset:{i*64}\nds_read_b128 {v(GG+4*i,4)}, v6 offset:{256+i*64}")
        e(f"v_mul_u32_u24 v6, {(65536+27)//28}, v2\nv_lshrrev_b32 v6, 16, v6\nv_min_u32 v6, 1, v6\ns_lshl_b32 s47, s24, 4\nv_add_u32 v6, s47, v6\nv_lshlrev_b32 v6, 2, v6\nv_add_u32 v6, {ML+512}, v6")
        for i in range(8):
            e(f"ds_read_b32 v{W1R+32+i}, v6 offset:{i*8}\nds_read_b32 v{W1R+40+i}, v6 offset:{256+i*8}")
        e("s_waitcnt lgkmcnt(0)")
        e("s_waitcnt vmcnt(0)")
        XT = T + 32
        e(f"v_add_u32 v6, s44, v3\nv_lshlrev_b32 v6, 11, v6\ns_lshl_b32 s47, s46, 1\nv_add_u32 v6, s47, v6\nv_add_u32 v5, v5, v6")
        if epi == "wo":
            k.srd(16, P_WS, WS_XG, S * D * 2); k.srd(60, P_WS, WS_STAT, 32 * S * 8)
            e(f"s_lshl_b32 s49, s26, 1\ns_add_u32 s49, s49, s43\ns_lshl_b32 s49, s49, 14\ns_lshl_b32 s50, s44, 3\ns_add_u32 s49, s49, s50")
            e("v_lshlrev_b32 v1, 3, v3\nv_and_b32 v6, 1, v4\nv_lshlrev_b32 v6, 2, v6\nv_add_u32 v1, v1, v6")
            e("s_lshl_b32 s47, s25, 4\ns_add_u32 s47, s47, s26\ns_lshl_b32 s47, s47, 2\ns_add_u32 s47, s47, s24\ns_lshl_b32 s47, s47, 12\nv_lshlrev_b32 v7, 4, v2\nv_mov_b32 v253, v7")
        for j in range(mt):
            e(f"s_mov_b32 s48, {j*16*2048}")
            d = T + 4 * (j % 2); d2 = T + 8 + 4 * (j % 2); SM = T + 16 + 4 * (j % 2)
            for i in range(nt):
                a0 = acc(i, j); x0 = EP + 2 * (j * nt + i)
                for q in range(2):
                    e(f"v_lshlrev_b32 v{XT+2*q}, 16, v{x0+q}\nv_and_b32 v{XT+2*q+1}, 0xffff0000, v{x0+q}")
                for q in range(2):
                    e(f"v_pk_fma_f32 {v(a0+2*q,2)}, {v(a0+2*q,2)}, {v(G+4*i+2*q,2)}, {v(XT+2*q,2)}")
            ta, tb = acc(0, j), acc(1, j)
            e(f"v_cvt_pk_bf16_f32 v{d}, v{ta}, v{ta+1}\nv_cvt_pk_bf16_f32 v{d+1}, v{ta+2}, v{ta+3}")
            e(f"v_cvt_pk_bf16_f32 v{d+2}, v{tb}, v{tb+1}\nv_cvt_pk_bf16_f32 v{d+3}, v{tb+2}, v{tb+3}")
            if epi == "ffn2":
                e(f"v_permlane16_swap_b32 v{d}, v{d+2}\nv_permlane16_swap_b32 v{d+1}, v{d+3}")
                e(f"buffer_store_dwordx4 {v(d,4)}, v5, s[12:15], s48 offen")
                continue
            for q in range(2):
                e(f"v_pk_mul_f32 {v(XT+2*q,2)}, {v(ta+2*q,2)}, {v(GG+2*q,2)}\nv_pk_mul_f32 {v(XT+4+2*q,2)}, {v(tb+2*q,2)}, {v(GG+4+2*q,2)}")
            for q in range(4): e(f"v_cvt_pk_bf16_f32 v{d2+q}, v{XT+2*q}, v{XT+2*q+1}")
            e(f"v_permlane16_swap_b32 v{d2}, v{d2+2}\nv_permlane16_swap_b32 v{d2+1}, v{d2+3}")
            e(f"buffer_store_dwordx4 {v(d2,4)}, v5, s[16:19], s48 offen{SCS}")
            e(f"buffer_store_dwordx4 {v(d,4)}, v253, s[12:15], s47 offen offset:{j*1024}{SCS}")
            e(f"v_pk_add_f32 {v(SM,2)}, {v(ta,2)}, {v(ta+2,2)}\nv_pk_mul_f32 {v(SM+2,2)}, {v(ta,2)}, {v(ta,2)}")
            e(f"v_pk_add_f32 {v(SM,2)}, {v(SM,2)}, {v(tb,2)}\nv_pk_fma_f32 {v(SM+2,2)}, {v(ta+2,2)}, {v(ta+2,2)}, {v(SM+2,2)}")
            e(f"v_pk_add_f32 {v(SM,2)}, {v(SM,2)}, {v(tb+2,2)}\nv_pk_fma_f32 {v(SM+2,2)}, {v(tb,2)}, {v(tb,2)}, {v(SM+2,2)}")
            e(f"v_pk_fma_f32 {v(SM+2,2)}, {v(tb+2,2)}, {v(tb+2,2)}, {v(SM+2,2)}")
            e(f"v_add_f32 v{SM}, v{SM}, v{SM+1}\nv_add_f32 v{SM+2}, v{SM+2}, v{SM+3}")
            e(f"v_permlane16_swap_b32 v{SM}, v{SM+2}\nv_add_f32 v{SM}, v{SM}, v{SM+2}\nv_mov_b32 v{SM+1}, v{SM}")
            e(f"v_permlane32_swap_b32 v{SM}, v{SM+1}\nv_add_f32 v{SM}, v{SM}, v{SM+1}")
            e(f"s_mov_b32 exec_lo, -1\ns_mov_b32 exec_hi, 0\nbuffer_store_dword v{SM}, v1, s[60:63], s49 offen offset:{j*128}{SCS}\ns_mov_b64 exec, -1")
        if epi == "wo":
            if "stwo" in OPT: k.st(12)
            e(f"s_add_u32 s35, s25, {C_WO}")
            k.signal("wo", 4, 35, 16, (4, lambda: e(f"s_lshl_b32 s33, s25, 9\ns_lshl_b32 s34, s26, 2\ns_add_u32 s33, s33, s34\ns_add_u32 s33, s33, {FL['f1']}\nv_lshlrev_b32 v6, 7, v2\nv_add_u32 v6, s33, v6")))
            if "stwo" in OPT: k.st(13)
            UA = ACC
            for r in range(16): e(f"v_mov_b32 v{UA+r}, 0")
            for i in range(8):
                g_ = W1R + 32 + i; s_ = W1R + 40 + i
                for q in range(4):
                    w_ = W1R + 4 * i + q
                    e(f"v_lshlrev_b32 v6, 16, v{w_}\nv_and_b32 v7, 0xffff0000, v{w_}")
                    e(f"v_fmac_f32 v{UA+2*q}, v{g_}, v6\nv_fmac_f32 v{UA+2*q+1}, v{g_}, v7\nv_fmac_f32 v{UA+8+2*q}, v{s_}, v6\nv_fmac_f32 v{UA+8+2*q+1}, v{s_}, v7")
            UL = 139264
            e(f"v_mul_u32_u24 v5, {(65536+27)//28}, v2\nv_lshrrev_b32 v5, 16, v5\nv_mul_u32_u24 v6, 28, v5\nv_sub_u32 v6, v2, v6")
            e(f"s_lshl_b32 s32, s24, 1\nv_add_u32 v5, s32, v5\nv_mul_u32_u24 v5, 1792, v5\nv_lshlrev_b32 v6, 5, v6\nv_add_u32 v5, v5, v6\nv_add_u32 v5, {UL}, v5")
            e("v_cmp_gt_u32 vcc, 56, v2\ns_and_saveexec_b64 s[34:35], vcc")
            e(f"ds_write_b128 v5, {v(UA,4)}\nds_write_b128 v5, {v(UA+4,4)} offset:16\nds_write_b128 v5, {v(UA+8,4)} offset:896\nds_write_b128 v5, {v(UA+12,4)} offset:912")
            e("s_mov_b64 exec, s[34:35]\ns_waitcnt lgkmcnt(0)")
            e(f"v_mov_b32 v6, {L_SIG['ub']}\nv_mov_b32 v7, 1\ns_mov_b64 exec, 1")
            e("ds_add_rtn_u32 v7, v6, v7\ns_waitcnt lgkmcnt(0)\nv_readfirstlane_b32 s32, v7\ns_mov_b64 exec, -1")
            e(f"s_cmp_lg_u32 s32, 3\ns_cbranch_scc1 {L('ubx')}")
            e(f"v_lshlrev_b32 v5, 2, v2\nv_add_u32 v5, {UL}, v5")
            for m_ in range(7):
                for rr in range(8): e(f"ds_read_b32 v{UA+rr}, v5 offset:{rr*1792+m_*256}")
                e("s_waitcnt lgkmcnt(0)")
                for rr in range(1, 8): e(f"v_add_f32 v{UA}, v{UA}, v{UA+rr}")
                e(f"v_mov_b32 v{UA+16+m_}, v{UA}")
            k.srd(16, P_WS, WS_UB, 16 * 2 * DFF * 4)
            e(f"s_mul_i32 s49, s58, {2*DFF*4}\ns_mul_i32 s50, s59, 896\ns_add_u32 s49, s49, s50")
            for m_ in range(7):
                e(f"v_add_u32 v5, {64*m_}, v2\nv_cmp_le_u32 vcc, 224, v5\nv_mov_b32 v6, {DFF*4 - 896}\nv_cndmask_b32 v6, 0, v6, vcc\nv_lshl_add_u32 v5, v5, 2, v6")
                e(f"buffer_store_dword v{UA+16+m_}, v5, s[16:19], s49 offen{SCS}")
            e("s_waitcnt vmcnt(0)")
            e(f"s_add_u32 s35, s59, {C_UB}\ns_mov_b64 exec, 1")
            k.arrive("ub", 35, 16)
            e("s_mov_b64 exec, -1")
            e(f"{L('ubx')}:")
    e(f"s_branch {nxt_c}")
    e(f"{L('l')}:")
    if s2: tile_map_s2(e)
    else: tile_map(e, xr, xc)
    k.srd(4, P_WS, srcA, sizeA); k.srd(8, pB, 0, sizeB)
    e("s_sub_u32 s42, s24, 4")
    LA = 8
    lda2, ldb2 = lda * 2, ldb * 2
    blocked = epi in ("ffn2", "ffn2s")
    if blocked:
        e(f"s_mul_i32 s43, s25, {112*8192}\ns_mul_i32 s44, s42, {nAw*8*64}\ns_add_u32 s43, s43, s44")
        e("v_lshrrev_b32 v3, 3, v2\nv_lshlrev_b32 v3, 6, v3\nv_add_u32 v3, s43, v3")
        e("v_and_b32 v4, 7, v2\nv_lshrrev_b32 v5, 4, v2")
        for i in range(nAw):
            e(f"v_xor_b32 v6, {(i&1)*4}, v5\nv_xor_b32 v6, v6, v4\nv_lshrrev_b32 v7, 2, v6\nv_lshlrev_b32 v7, 13, v7\nv_and_b32 v6, 3, v6\nv_lshlrev_b32 v6, 4, v6")
            e(f"v_add3_u32 v6, v6, v7, v3\nv_add_u32 v{LA+i}, {i*8*64}, v6")
    else:
        e(f"s_lshl_b32 s43, s25, 7\ns_mul_i32 s44, s42, {nAw*8}\ns_add_u32 s43, s43, s44")
        e(f"v_lshrrev_b32 v3, 3, v2\nv_add_u32 v3, s43, v3\ns_mov_b32 s45, {lda2}\nv_mul_lo_u32 v3, s45, v3")
        e("v_and_b32 v4, 7, v2\nv_lshrrev_b32 v5, 4, v2")
        for i in range(nAw):
            e(f"v_xor_b32 v6, {(i&1)*4}, v5\nv_xor_b32 v6, v6, v4\nv_lshlrev_b32 v6, 4, v6\nv_add_u32 v6, v6, v3")
            e(f"v_add_u32 v{LA+i}, {i*8*lda2}, v6")
    ASTEP = 16384 if blocked else BK * 2
    magic = (65536 + cpr - 1) // cpr
    assert all((p * magic) >> 16 == p // cpr for p in range(nBw * 64)) and nBw * 64 == 16 * cpr
    e(f"s_mul_i32 s43, s42, {16*ldb2}\ns_mul_i32 s44, s26, {128 if perm else BN*2}\ns_add_u32 s43, s43, s44")
    for i in range(nBw):
        e(f"v_add_u32 v3, {i*64}, v2\nv_mul_u32_u24 v4, {magic}, v3\nv_lshrrev_b32 v4, 16, v4")
        e(f"v_mul_u32_u24 v5, {cpr}, v4\nv_sub_u32 v3, v3, v5")
        if hbits == 2: e("v_and_b32 v5, 2, v4\nv_lshrrev_b32 v6, 1, v4\nv_and_b32 v6, 4, v6\nv_or_b32 v5, v5, v6")
        elif hbits == 1: e("v_lshrrev_b32 v5, 2, v4\nv_and_b32 v5, 2, v5")
        else: e("v_and_b32 v5, 3, v4\nv_lshrrev_b32 v6, 1, v4\nv_and_b32 v6, 4, v6\nv_or_b32 v5, v5, v6\nv_lshlrev_b32 v5, 1, v5")
        e("v_xor_b32 v3, v3, v5")
        if perm: e("v_lshrrev_b32 v5, 3, v3\nv_and_b32 v3, 7, v3\nv_lshlrev_b32 v5, 7, v5\nv_add_u32 v3, v3, v5")
        e(f"v_lshlrev_b32 v3, 4, v3\ns_mov_b32 s45, {ldb2}\nv_mul_lo_u32 v4, s45, v4\nv_add_u32 v3, v3, v4")
        e(f"v_add_u32 v{LA+nAw+i}, s43, v3")
    e(f"s_mul_i32 s46, s42, {nAw*1024}")
    e(f"s_mul_i32 s47, s42, {nBw*1024}\ns_add_u32 s47, s47, {nA*1024}")
    def issue_x(lds_s, off_s):
        for i in range(nAw):
            e(f"s_add_u32 m0, {lds_s}, {i*1024}")
            e(f"buffer_load_dwordx4 v{LA+i}, s[4:7], {off_s} offen{asc} lds")
    def issue_w(lds_s, off_s):
        for i in range(nBw):
            e(f"s_add_u32 m0, {lds_s}, {i*1024}")
            e(f"buffer_load_dwordx4 v{LA+nAw+i}, s[8:11], {off_s} offen lds")
    if s2: e(f"s_mul_i32 s62, s27, {nk*ASTEP}\ns_mul_i32 s63, s27, {nk*BK*ldb2}")
    else: e("s_mov_b32 s62, 0\ns_mov_b32 s63, 0")
    def w_prologue():
        for st in range(NS - 1):
            e(f"s_add_u32 s52, s47, {st*SB}\ns_add_u32 s49, s63, {st*BK*ldb2}")
            issue_w("s52", "s49")
    if dep:
        base, target, kind = dep
        e(f"s_lshr_b32 s35, s25, 1\ns_add_u32 s35, s35, {base}" if kind == "rb2" else f"s_add_u32 s35, s25, {base}")
        if "wfirst" in OPT:
            w_prologue()
            k.dep_wait_loaders(tag, 35, target, None)
        else:
            e(f"s_cmp_eq_u32 s24, 4\ns_cbranch_scc1 {L('w4a')}")
            w_prologue()
            e(f"{L('w4a')}:")
            if hbar and "nowq" not in OPT:
                e(f"s_cmp_eq_u32 s24, 4\ns_cbranch_scc1 {L('nowqpf')}")
                e("s_mul_i32 s43, s2, 3\ns_add_u32 s43, s43, s24\ns_sub_u32 s43, s43, 5\ns_lshl_b32 s43, s43, 13\nv_lshlrev_b32 v3, 7, v2")
                e("buffer_load_dword v253, v3, s[8:11], s43 offen")
                e(f"{L('nowqpf')}:")
            if hbar: e("s_barrier")
            k.dep_wait_loaders(tag, 35, target, None)
            e(f"s_cmp_lg_u32 s24, 4\ns_cbranch_scc1 {L('w4b')}")
            w_prologue()
            e(f"{L('w4b')}:")
        if tag == "f1" and "stwo" in OPT: k.st(14, 4)
        if tag == "wo" and "statt" in OPT: k.st(15, 4)
        if tag == "f2" and "stf1" in OPT: k.st(14, 4)
    else:
        w_prologue()
    for st in range(NS - 1):
        e(f"s_add_u32 s51, s46, {st*SB}\ns_add_u32 s48, s62, {st*ASTEP}")
        issue_x("s51", "s48")
    e(f"s_add_u32 s48, s62, {(NS-1)*ASTEP}\ns_add_u32 s49, s63, {(NS-1)*BK*ldb2}\ns_mov_b32 s50, {(NS-1)*SB}")
    def issue():
        e("s_add_u32 s51, s50, s46\ns_add_u32 s52, s50, s47")
        issue_x("s51", "s48"); issue_w("s52", "s49")
        e(f"s_add_u32 s48, s48, {ASTEP}\ns_add_u32 s49, s49, {BK*ldb2}")
        e(f"s_add_u32 s50, s50, {SB}\ns_cmp_eq_u32 s50, {SB*NS}\ns_cselect_b32 s50, 0, s50")
    e(f"s_waitcnt vmcnt({nAw*(NS-2)})\ns_barrier")
    issue()
    e(f"s_waitcnt vmcnt({nAw*(NS-3) + nld})\ns_barrier" if NS >= 3 else "")
    issue()
    for t in range(2, NS - 1):
        e(f"s_waitcnt vmcnt({nAw*(NS-2-t) + nld*t})\ns_barrier")
        issue()
    done = max(2, NS - 1)
    e(f"s_mov_b32 s53, {nk-(NS-1)-done}")
    e(f"{L('lloop')}:")
    e(f"s_waitcnt vmcnt({nld*(NS-2)})\ns_barrier")
    issue()
    e(f"s_sub_u32 s53, s53, 1\ns_cmp_lg_u32 s53, 0\ns_cbranch_scc1 {L('lloop')}")
    nx = 0
    for t in range(NS - 1):
        e(f"s_waitcnt vmcnt({nld*(NS-2-t)+nx})\ns_barrier")
        if epi == "ffn1" and t == 0:
            nx = 32
            k.srd(56, P_WS, WS_STAT, 32 * S * 8); k.srd(60, P_WS, WS_UB, 16 * 2 * DFF * 4)
            e(f"s_cmp_ge_u32 s42, 2\ns_cbranch_scc1 {L('ubld')}")
            e(f"s_lshl_b32 s43, s42, 6\nv_add_u32 v3, s43, v2\ns_lshl_b32 s44, s25, 7\nv_add_u32 v4, s44, v3\nv_lshlrev_b32 v4, 3, v4")
            for sl in range(32):
                e(f"s_mov_b32 s45, {sl*S*8}\nbuffer_load_dwordx2 {v(32+2*sl,2)}, v4, s[56:59], s45 offen{SC}")
            e(f"s_branch {L('ldd')}")
            e(f"{L('ubld')}:")
            e(f"s_add_u32 s35, s26, {C_UB}")
            k.poll(tag + "u", 35, 16)
            if "noalias" not in OPT:
                e(f"v_mov_b32 v6, {C_ATTALL*256 - 128}")
                k.poll(tag + "a", None, 256)
            e(f"s_sub_u32 s43, s42, 2\ns_lshl_b32 s43, s43, 6\nv_add_u32 v3, s43, v2")
            e(f"s_mul_i32 s44, s26, {BN*4}\nv_lshlrev_b32 v4, 3, v3\nv_add_u32 v4, s44, v4")
            for kg in range(16):
                for w_ in range(2):
                    e(f"s_mov_b32 s45, {(kg*2+w_)*DFF*4}\nbuffer_load_dwordx2 {v(32+4*kg+2*w_,2)}, v4, s[60:63], s45 offen{SC}")
            e(f"{L('ldd')}:")
    if epi == "ffn1":
        e("s_waitcnt vmcnt(0)")
        e(f"s_cmp_ge_u32 s42, 2\ns_cbranch_scc1 {L('ubred')}")
        for sl in range(1, 32): e(f"v_add_f32 v32, v32, v{32+2*sl}\nv_add_f32 v33, v33, v{33+2*sl}")
        e(f"v_mul_f32 v32, {f32(1/1024)}, v32\nv_mul_f32 v33, {f32(1/1024)}, v33")
        e(f"v_fma_f32 v33, -v32, v32, v33\nv_max_f32 v33, 0, v33\nv_add_f32 v33, {f32(1e-5)}, v33\nv_rsq_f32 v33, v33")
        e("v_mul_f32 v32, v32, v33")
        e(f"v_lshlrev_b32 v4, 3, v3\nv_add_u32 v4, {XL}, v4\nds_write_b64 v4, v[32:33]")
        e(f"s_branch {L('redd')}")
        e(f"{L('ubred')}:")
        for kg in range(1, 16):
            for q in range(4): e(f"v_add_f32 v{32+q}, v{32+q}, v{32+4*kg+q}")
        e(f"v_lshlrev_b32 v4, 3, v3\nv_add_u32 v4, {XL+1024}, v4\nv_cmp_gt_u32 vcc, 112, v3\ns_and_saveexec_b64 s[44:45], vcc")
        e(f"ds_write_b64 v4, v[32:33]\nds_write_b64 v4, v[34:35] offset:896\ns_mov_b64 exec, s[44:45]")
        e(f"{L('redd')}:")
        e("s_waitcnt lgkmcnt(0)")
    if epi != "qkv": e("s_barrier")
    e(f"s_branch {nxt_l}")

def attn_phase(k, nxt_c, nxt_l, pf):
    e = k.e
    L = lambda n: k.lab("att_" + n)
    NSL = 3; KPS = 128; SBK = KPS * 64
    HB = 2 * SBK; SB = 2 * HB
    FLAG = NSL * SB
    e(f"{L('c')}:\n{L('l')}:")
    e("s_and_b32 s36, s2, 7\ns_lshr_b32 s37, s2, 3\ns_lshl_b32 s36, s36, 2\ns_lshr_b32 s38, s37, 3\ns_add_u32 s25, s36, s38")
    e("s_and_b32 s26, s37, 7")
    e("s_and_b32 s34, s24, 3\ns_lshr_b32 s27, s24, 2")
    e("s_mov_b32 s57, s34")
    e("s_lshl_b32 s40, s25, 17")
    e(f"s_add_u32 s32, s{P_WS}, {WS_QKV:#x}\ns_addc_u32 s33, s{P_WS+1}, 0\ns_add_u32 s32, s32, s40\ns_addc_u32 s33, s33, 0")
    k.srd(4, 32, 0, S * 64); k.srd(8, 32, 32 * S * 64, S * 64); k.srd(12, 32, 64 * S * 64, S * 64)
    k.srd(16, P_WS, WS_O, S * D * 2)
    QG, KH = 57, 27
    Q = 4 + 4; KF = 24; VF = 32
    NEG = 40; O = 72; LS = 104; SEL = 112
    SS = [[116, 132], [148, 164]]
    PP = [[180, 188], [196, 204]]
    AK0, AK1, AV, AN0, AN1, DK, DV = 212, 213, 214, 215, 216, 217, 218
    HH, QL = 219, 220
    T = 221
    PFD = 230
    e(f"v_and_b32 v{QL}, 31, v2\nv_lshrrev_b32 v{HH}, 5, v2")
    e(f"s_lshl_b32 s39, s26, 8\ns_lshl_b32 s40, s{QG}, 6\ns_add_u32 s39, s39, s40")
    e(f"v_lshrrev_b32 v{T}, 2, v2\ns_lshl_b32 s40, s{QG}, 5\nv_add_u32 v{T}, s40, v{T}\nv_lshlrev_b32 v{T}, 6, v{T}")
    e(f"v_and_b32 v{T+1}, 3, v2\nv_lshrrev_b32 v{T+2}, 4, v2\nv_xor_b32 v{T+1}, v{T+1}, v{T+2}\nv_lshlrev_b32 v{T+1}, 4, v{T+1}")
    e(f"v_add_u32 v{DK}, v{T}, v{T+1}")
    e(f"v_lshlrev_b32 v{DV}, 4, v2\ns_lshl_b32 s40, s{QG}, 11\nv_add_u32 v{DV}, s40, v{DV}")
    e(f"s_lshl_b32 s41, s{QG}, 11\ns_mul_i32 s40, s{KH}, {HB}\ns_add_u32 s41, s41, s40")
    e(f"s_mul_i32 s45, s{KH}, {S*32}")
    def addr_setup():
        e(f"s_mul_i32 s40, s{KH}, {HB}")
        e(f"v_lshrrev_b32 v{T}, 2, v{QL}\nv_and_b32 v{T}, 3, v{T}\nv_xor_b32 v{T}, v{T}, v{HH}\nv_lshlrev_b32 v{T}, 4, v{T}")
        e(f"v_lshlrev_b32 v{T+1}, 6, v{QL}\nv_add_u32 v{T+3}, v{T}, v{T+1}")
        e(f"v_add_u32 v{AK0}, s40, v{T+3}\nv_xor_b32 v{AK1}, 32, v{AK0}")
        e(f"v_and_b32 v{T}, 15, v2\nv_lshrrev_b32 v{T}, 2, v{T}\nv_lshlrev_b32 v{T+1}, 2, v{HH}\nv_add_u32 v{T}, v{T}, v{T+1}\nv_lshlrev_b32 v{T}, 6, v{T}")
        e(f"v_lshrrev_b32 v{T+1}, 4, v2\nv_and_b32 v{T+1}, 1, v{T+1}\nv_lshlrev_b32 v{T+1}, 5, v{T+1}\nv_add_u32 v{T}, v{T}, v{T+1}")
        e(f"v_and_b32 v{T+1}, 3, v2\nv_lshlrev_b32 v{T+1}, 3, v{T+1}\nv_add_u32 v{T}, v{T}, v{T+1}\nv_add_u32 v{T}, {SBK}, v{T}\nv_add_u32 v{AV}, s40, v{T}")
    addr_setup()
    e(f"v_lshrrev_b32 v{T}, 4, v2\nv_lshrrev_b32 v{T+1}, 2, v2\nv_xor_b32 v{T}, v{T}, v{T+1}\nv_and_b32 v{T}, 1, v{T}")
    e(f"v_cmp_eq_u32 vcc, 0, v{T}\nv_mov_b32 v{T+1}, 0x3f803f80")
    e(f"v_cndmask_b32 v{SEL}, 0, v{T+1}, vcc")
    for r in range(1, 4): e(f"v_mov_b32 v{SEL+r}, v{SEL}")
    def zero_acc():
        for r in range(32): e(f"v_mov_b32 v{O+r}, 0")
        for r in range(8): e(f"v_mov_b32 v{LS+r}, 0")
    zero_acc()
    for r in range(8): e(f"v_mov_b32 v{VF+r}, 0")
    for qb in range(2):
        for r in range(8): e(f"v_mov_b32 v{PP[1][qb]+r}, 0")
    e(f"s_cmp_lg_u32 s24, 4\ns_cbranch_scc1 {L('nodep')}")
    if "noflags" in OPT:
        e(f"v_lshlrev_b32 v6, 10, v2\ns_lshl_b32 s35, s25, 5\nv_add_u32 v6, s35, v6\nv_mul_u32_u24 v6, {(65536 + 191) // 192}, v6\nv_lshrrev_b32 v6, 16, v6")
        e(f"v_add_u32 v6, {C_QKV}, v6\nv_lshlrev_b32 v6, 8, v6")
        k.poll("att", None, 16, lanes=3)
    else:
        e(f"s_lshl_b32 s35, s25, 8\ns_add_u32 s35, s35, {FL['att']}")
        k.wait_flags("att", 48, 35)
    e(f"{L('nodep')}:")
    e("s_barrier")
    k.st(3)
    e(f"v_mov_b32 v{T}, {FLAG}\nv_mov_b32 v{T+1}, 0\nds_write_b32 v{T}, v{T+1}")
    e(f"v_add_u32 v{T}, s39, v{QL}\nv_lshlrev_b32 v{T}, 6, v{T}\nv_lshlrev_b32 v{T+1}, 4, v{HH}\nv_add_u32 v{T}, v{T}, v{T+1}")
    for qb in range(2):
        e(f"buffer_load_dwordx4 {v(Q+8*qb,4)}, v{T}, s[4:7], 0 offen offset:{qb*2048}{SC}")
        e(f"buffer_load_dwordx4 {v(Q+8*qb+4,4)}, v{T}, s[4:7], 0 offen offset:{qb*2048+32}{SC}")
    def dma(slot_sreg):
        e(f"s_add_u32 s43, {slot_sreg}, s41\ns_add_u32 s46, s42, s45")
        e(f"s_mov_b32 m0, s43\nbuffer_load_dwordx4 v{DK}, s[8:11], s46 offen{SC} lds")
        e(f"s_add_u32 m0, s43, {SBK}\nbuffer_load_dwordx4 v{DV}, s[12:15], s46 offen{SC} lds")
        e(f"s_add_u32 s46, s46, 1024\ns_add_u32 m0, s43, 1024\nbuffer_load_dwordx4 v{DK}, s[8:11], s46 offen{SC} lds")
        e(f"s_add_u32 m0, s43, {SBK+1024}\nbuffer_load_dwordx4 v{DV}, s[12:15], s46 offen{SC} lds")
        e(f"s_add_u32 s42, s42, {SBK}")
    def kread(a0, a1, t):
        return [f"ds_read_b128 {v(KF,4)}, v{a0} offset:{t*2048}", f"ds_read_b128 {v(KF+4,4)}, v{a1} offset:{t*2048}"]
    def vread(t):
        return [f"ds_read_b64_tr_b16 {v(VF+4*m+2*hh,2)}, v{AV} offset:{t*2048+(16*m+8*hh)*64}" for m in range(2) for hh in range(2)]
    def qk(qb, dst, c):
        return [f"v_mfma_f32_32x32x16_bf16 {v(dst,16)}, {v(KF,4)}, {v(Q+8*qb,4)}, {c}",
                f"v_mfma_f32_32x32x16_bf16 {v(dst,16)}, {v(KF+4,4)}, {v(Q+8*qb+4,4)}, {v(dst,16)}"]
    def pv(qb, P):
        o, l = O + 16 * qb, LS + 4 * qb
        return [f"v_mfma_f32_32x32x16_bf16 {v(o,16)}, {v(VF,4)}, {v(P,4)}, {v(o,16)}",
                f"v_mfma_f32_16x16x32_bf16 {v(l,4)}, {v(SEL,4)}, {v(P,4)}, {v(l,4)}",
                f"v_mfma_f32_32x32x16_bf16 {v(o,16)}, {v(VF+4,4)}, {v(P+4,4)}, {v(o,16)}",
                f"v_mfma_f32_16x16x32_bf16 {v(l,4)}, {v(SEL,4)}, {v(P+4,4)}, {v(l,4)}"]
    def lane_max16(src, dst, tmp):
        e(f"v_max3_f32 v{dst}, v{src}, v{src+1}, v{src+2}")
        for r in range(3, 15, 2): e(f"v_max3_f32 v{dst}, v{dst}, v{src+r}, v{src+r+1}")
        e(f"v_max_f32 v{dst}, v{dst}, v{src+15}")
        e(f"v_mov_b32 v{tmp}, v{dst}\nv_permlane32_swap_b32 v{tmp}, v{dst}\nv_max_f32 v{dst}, v{dst}, v{tmp}")
    NST = S // 2 // KPS
    HALF = S * 32
    e("s_mov_b32 s42, 0")
    for st in range(NSL - 1):
        e(f"s_mov_b32 s44, {st*SB}")
        dma("s44")
    e(f"s_waitcnt vmcnt({4*(NSL-2)})\ns_barrier")
    e(f"v_xor_b32 v{T+4}, 32, v{T+3}")
    for l in kread(T + 3, T + 4, 0): e(l)
    e("s_waitcnt lgkmcnt(0)")
    for qb in range(2):
        for l in qk(qb, SS[1][qb], "0"): e(l)
    for l in kread(AK0, AK1, 0): e(l)
    for qb in range(2):
        lane_max16(SS[1][qb], T, T + 1)
        e(f"v_add_f32 v{T}, {f32(40.0)}, v{T}")
        for r in range(16): e(f"v_sub_f32 v{NEG+16*qb+r}, 0, v{T}")
    e("s_waitcnt lgkmcnt(0)")
    for qb in range(2):
        for l in qk(qb, SS[0][qb], v(NEG + 16 * qb, 16)): e(l)
    for l in kread(AK0, AK1, 1): e(l)
    e(f"v_add_u32 v{AN0}, {SB}, v{AK0}\nv_add_u32 v{AN1}, {SB}, v{AK1}")
    e(f"s_mov_b32 s47, 1\ns_mov_b32 s48, {SB}\ns_mov_b32 s49, {-(NSL-1)*SB & 0xffffffff:#x}")
    e(f"s_mov_b32 s50, {(NSL-1)*SB}")
    e("s_waitcnt lgkmcnt(0)")
    e("s_lshl_b32 s56, s2, 3\ns_add_u32 s56, s56, s24\ns_mul_i32 s58, s56, 52429\ns_lshr_b32 s58, s58, 18\ns_mul_i32 s58, s58, 5\ns_sub_u32 s58, s56, s58\ns_sub_u32 s58, 7, s58")
    if "pfall" in OPT: e(f"s_mov_b32 s58, {PFSTAGE}")
    e(f"s_mov_b32 s44, {NST}")
    if "prio1" in OPT: e(f"s_cmp_lt_u32 s24, 4\ns_cbranch_scc1 {L('noprio')}\ns_setprio 1\n{L('noprio')}:")
    if "prio0" in OPT: e(f"s_cmp_ge_u32 s24, 4\ns_cbranch_scc1 {L('noprio')}\ns_setprio 1\n{L('noprio')}:")
    e(f"{L('floop')}:")
    for t in range(4):
        par = t & 1
        if t == 2:
            e(f"s_cmp_ge_u32 s42, {HALF}\ns_cbranch_scc1 {L('nodma')}")
            e(f"s_waitcnt vmcnt({4*(NSL-3)})\ns_barrier")
            dma("s50")
            e(f"s_add_u32 s50, s50, {SB}\ns_cmp_eq_u32 s50, {NSL*SB}\ns_cselect_b32 s50, 0, s50")
            if pf:
                e(f"s_cmp_lg_u32 s44, s58\ns_cbranch_scc1 {L('cont')}")
                e(f"s_mov_b32 s60, s{P_WO}\ns_mov_b32 s61, s{P_WO+1}\ns_mov_b32 s62, {D*D*2}\ns_mov_b32 s63, 0x20000\ns_mov_b32 s52, s56")
                e(f"s_cmp_lt_u32 s56, 256\ns_cbranch_scc1 {L('pfgo')}")
                e(f"s_mov_b32 s60, s{P_W1}\ns_mov_b32 s61, s{P_W1+1}\ns_mov_b32 s62, {D*DFF*2}\ns_mov_b32 s63, 0x20000\ns_sub_u32 s52, s56, 256")
                e(f"s_cmp_lt_u32 s56, 1152\ns_cbranch_scc1 {L('pfgo')}")
                e(f"s_mov_b32 s60, s{P_W2}\ns_mov_b32 s61, s{P_W2+1}\ns_mov_b32 s62, {D*DFF*2}\ns_mov_b32 s63, 0x20000\ns_sub_u32 s52, s56, 1152")
                e(f"{L('pfgo')}:")
                e(f"s_lshl_b32 s52, s52, 13\nv_lshlrev_b32 v{T}, 7, v2\nbuffer_load_dword v{PFD}, v{T}, s[60:63], s52 offen")
                e(f"s_bitcmp1_b32 s56, 0\ns_cbranch_scc1 {L('nowm')}")
                e(f"s_load_dwordx2 s[60:61], s[0:1], {KA_WMOD}\ns_lshr_b32 s52, s56, 1\ns_mul_i32 s52, s52, 12288\ns_add_u32 s52, s52, 4096\ns_waitcnt lgkmcnt(0)")
                e(f"s_mov_b32 s62, {1024*6144*2}\ns_mov_b32 s63, 0x20000\nbuffer_load_dword v{PFD}, v{T}, s[60:63], s52 offen")
                e(f"{L('nowm')}:")
                k.code_touch("a", k.lab("att_cont"), k.lab("f1_l"), 24, 8, 1)
            e(f"s_branch {L('cont')}")
            e(f"{L('nodma')}:")
            e("s_waitcnt vmcnt(0)\ns_barrier")
            e(f"{L('cont')}:")
        kr = kread(AN0, AN1, (t + 2) % 4) if t >= 2 else kread(AK0, AK1, t + 2)
        vr = vread(t)
        m = []; p = []; E = []; C = []
        for qb in range(2):
            cur = SS[par][qb]; nxt = SS[1 - par][qb]; pc = PP[par][qb]; pp = PP[1 - par][qb]
            m.append(qk(qb, nxt, v(NEG + 16 * qb, 16))); p.append(pv(qb, pp))
            E.append([f"v_exp_f32 v{cur+r}, v{cur+r}" for r in range(16)])
            C.append([f"v_cvt_pk_bf16_f32 v{pc+r}, v{cur+2*r}, v{cur+2*r+1}" for r in range(8)])
        E0, E1 = E; C0, C1 = C
        seq = ["s_waitcnt lgkmcnt(4)",
               m[0][0], E0[0], E0[1], E0[2], E0[3],
               m[1][0], E0[4], E0[5], C0[0], C0[1], E0[6],
               m[0][1], E0[7], C0[2], E0[8], E0[9], C0[3],
               m[1][1], kr[0], kr[1], E0[10], E0[11], E0[12], E0[13], "s_waitcnt lgkmcnt(2)",
               p[0][0], C0[4], C0[5], E0[14], E0[15], C0[6], C0[7],
               p[0][1], E1[0], E1[1],
               p[1][0], E1[2], E1[3], C1[0], C1[1], E1[4],
               p[1][1], E1[5], E1[6],
               p[0][2], E1[7], C1[2], E1[8], E1[9], C1[3],
               p[0][3], E1[10], E1[11],
               p[1][2], vr[0], vr[1], vr[2], vr[3], E1[12], E1[13], C1[4], C1[5], E1[14],
               p[1][3], E1[15], C1[6], C1[7]]
        for l in seq: e(l)
        if t == 3:
            e(f"v_sub_u32 v{T}, v{AN0}, v{AK0}\nv_add_u32 v{AV}, v{AV}, v{T}\nv_mov_b32 v{AK0}, v{AN0}\nv_mov_b32 v{AK1}, v{AN1}")
            e(f"s_add_u32 s47, s47, 1\ns_cmp_eq_u32 s47, {NSL}\ns_cselect_b32 s51, s49, s48\ns_cselect_b32 s47, 0, s47")
            e(f"v_add_u32 v{AN0}, s51, v{AN0}\nv_add_u32 v{AN1}, s51, v{AN1}")
    e(f"s_sub_u32 s44, s44, 1\ns_cmp_lg_u32 s44, 0\ns_cbranch_scc1 {L('floop')}")
    e("s_waitcnt lgkmcnt(0)")
    for qb in range(2):
        for l in pv(qb, PP[1][qb]): e(l)
    if "prio1" in OPT or "prio0" in OPT: e("s_setprio 0")
    k.st(4)
    def merge(safe, M=None):
        e("s_barrier")
        e(f"s_cmp_eq_u32 s{KH}, 0\ns_cbranch_scc1 {L('keep0' + safe)}")
        for r in range(16): e(f"v_swap_b32 v{O+r}, v{O+16+r}")
        e(f"v_swap_b32 v{LS}, v{LS+4}")
        if M is not None: e(f"v_swap_b32 v{M}, v{M+1}")
        e(f"{L('keep0' + safe)}:")
        e(f"s_mul_i32 s52, s24, {5*1024+256}\nv_lshlrev_b32 v{T}, 4, v2\nv_add_u32 v{T}, s52, v{T}")
        for g in range(4): e(f"ds_write_b128 v{T}, {v(O+16+4*g,4)} offset:{g*1024}")
        e(f"v_lshlrev_b32 v{T+1}, 2, v2\nv_add_u32 v{T+1}, s52, v{T+1}")
        e(f"ds_write_b32 v{T+1}, v{LS+4} offset:4096")
        if M is not None: e(f"ds_write_b32 v{T+1}, v{M+1} offset:{4096+256}")
        e("s_waitcnt lgkmcnt(0)\ns_barrier")
        e(f"s_xor_b32 s52, s24, 4\ns_mul_i32 s52, s52, {5*1024+256}\nv_lshlrev_b32 v{T}, 4, v2\nv_add_u32 v{T}, s52, v{T}")
        for g in range(4): e(f"ds_read_b128 {v(O+16+4*g,4)}, v{T} offset:{g*1024}")
        e(f"v_lshlrev_b32 v{T+1}, 2, v2\nv_add_u32 v{T+1}, s52, v{T+1}")
        e(f"ds_read_b32 v{LS+4}, v{T+1} offset:4096")
        if M is not None: e(f"ds_read_b32 v{M+1}, v{T+1} offset:{4096+256}")
        e("s_waitcnt lgkmcnt(0)")
        if M is None:
            for r in range(16): e(f"v_add_f32 v{O+r}, v{O+r}, v{O+16+r}")
            e(f"v_add_f32 v{LS}, v{LS}, v{LS+4}")
        else:
            e(f"v_max_f32 v{T}, v{M}, v{M+1}\nv_sub_f32 v{T+1}, v{M}, v{T}\nv_sub_f32 v{T+2}, v{M+1}, v{T}\nv_exp_f32 v{T+1}, v{T+1}\nv_exp_f32 v{T+2}, v{T+2}")
            for r in range(16): e(f"v_mul_f32 v{O+r}, v{O+r}, v{T+1}\nv_fmac_f32 v{O+r}, v{O+16+r}, v{T+2}")
            e(f"v_mul_f32 v{LS}, v{LS}, v{T+1}\nv_fmac_f32 v{LS}, v{LS+4}, v{T+2}")
        e(f"v_rcp_f32 v{T}, v{LS}")
        for r in range(16): e(f"v_mul_f32 v{O+r}, v{O+r}, v{T}")
    merge("f")
    e(f"v_mov_b32 v{T+1}, {f32(2.0**120)}")
    e(f"v_cmp_nlt_f32 vcc, v{LS}, v{T+1}")
    e("s_mov_b64 s[46:47], vcc")
    e(f"v_add_f32 v{T+2}, abs(v{O}), abs(v{O+1})")
    for r in range(2, 16): e(f"v_add_f32 v{T+2}, v{T+2}, abs(v{O+r})")
    e(f"v_mov_b32 v{T+1}, 0x7f800000\nv_cmp_nlt_f32 vcc, v{T+2}, v{T+1}\ns_or_b64 s[46:47], s[46:47], vcc")
    e(f"s_cmp_eq_u64 s[46:47], 0\ns_cbranch_scc1 {L('okwave')}")
    e(f"v_mov_b32 v{T+1}, {FLAG}\nv_mov_b32 v{T+2}, 1\nds_write_b32 v{T+1}, v{T+2}")
    e(f"{L('okwave')}:")
    e("s_waitcnt lgkmcnt(0)\ns_barrier")
    e(f"v_mov_b32 v{T+1}, {FLAG}\nds_read_b32 v{T+2}, v{T+1}\ns_waitcnt lgkmcnt(0)\nv_readfirstlane_b32 s46, v{T+2}")
    e(f"s_cmp_lg_u32 s46, 0\ns_cbranch_scc1 {L('safe')}")
    e(f"{L('store')}:")
    if "statt" in OPT: k.st(12)
    P = PP[0][0]
    for r in range(8): e(f"v_cvt_pk_bf16_f32 v{P+r}, v{O+2*r}, v{O+2*r+1}")
    for b in (0, 4):
        e(f"v_permlane32_swap_b32 v{P+b}, v{P+b+2}\nv_permlane32_swap_b32 v{P+b+1}, v{P+b+3}")
    for r in range(4): e(f"v_permlane16_swap_b32 v{P+r}, v{P+4+r}")
    e(f"s_lshl_b32 s40, s{KH}, 5\ns_add_u32 s40, s40, s39")
    e(f"v_and_b32 v{T}, 15, v2\nv_add_u32 v{T}, s40, v{T}\nv_lshlrev_b32 v{T}, 11, v{T}")
    e(f"v_lshrrev_b32 v{T+1}, 4, v2\nv_and_b32 v{T+2}, 1, v{T+1}\nv_lshlrev_b32 v{T+2}, 5, v{T+2}\nv_lshrrev_b32 v{T+1}, 1, v{T+1}\nv_lshlrev_b32 v{T+1}, 4, v{T+1}")
    e(f"v_add_u32 v{T}, v{T}, v{T+1}\nv_add_u32 v{T}, v{T}, v{T+2}")
    e(f"s_lshl_b32 s40, s25, 6\ns_add_u32 s41, s40, {16*2048}")
    e(f"buffer_store_dwordx4 {v(P,4)}, v{T}, s[16:19], s40 offen{SCS}\nbuffer_store_dwordx4 {v(P+4,4)}, v{T}, s[16:19], s41 offen{SCS}")
    if "statt" in OPT: k.st(13)
    e(f"s_add_u32 s35, s26, {C_ATT}")
    k.signal("att", 8, 35, 32, (2, lambda: e(f"v_mov_b32 v6, {C_ATTALL*256}\nv_mov_b32 v7, 1\ns_mov_b64 exec, 1\nbuffer_atomic_add v7, v6, {s(CNT,4)}, 0 offen sc1\ns_mov_b64 exec, -1\ns_lshl_b32 s33, s26, 8\ns_lshl_b32 s34, s25, 2\ns_add_u32 s33, s33, s34\ns_add_u32 s33, s33, {FL['wo']}\nv_lshlrev_b32 v6, 7, v2\nv_add_u32 v6, s33, v6")))
    if "statt" in OPT: k.st(14, 7)
    e(f"s_cmp_ge_u32 s24, 4\ns_cbranch_scc1 {nxt_l}\ns_branch {nxt_c}")
    e(f"{L('safe')}:")
    e("s_waitcnt vmcnt(0)\ns_barrier")
    M = NEG; AL = NEG + 2
    SA = SS[0][0]; P0 = PP[0][0]
    zero_acc()
    e(f"v_mov_b32 v{M}, {f32(-3.0e38)}\nv_mov_b32 v{M+1}, {f32(-3.0e38)}")
    addr_setup()
    e("s_mov_b32 s42, 0")
    e(f"s_mov_b32 s44, {NST}")
    e(f"{L('sloop')}:")
    e("s_barrier")
    e("s_mov_b32 s53, 0")
    dma("s53")
    e("s_waitcnt vmcnt(0)\ns_barrier")
    for t in range(4):
        for l in kread(AK0, AK1, t) + vread(t): e(l)
        e("s_waitcnt lgkmcnt(0)")
        for qb in range(2):
            for l in qk(qb, SA, "0"): e(l)
            lane_max16(SA, T, T + 1)
            e(f"v_max_f32 v{T}, v{T}, v{M+qb}\nv_sub_f32 v{AL}, v{M+qb}, v{T}\nv_exp_f32 v{AL}, v{AL}\nv_mov_b32 v{M+qb}, v{T}")
            for r in range(16): e(f"v_sub_f32 v{SA+r}, v{SA+r}, v{T}\nv_exp_f32 v{SA+r}, v{SA+r}")
            for r in range(16): e(f"v_mul_f32 v{O+16*qb+r}, v{O+16*qb+r}, v{AL}")
            for r in range(4): e(f"v_mul_f32 v{LS+4*qb+r}, v{LS+4*qb+r}, v{AL}")
            for r in range(8): e(f"v_cvt_pk_bf16_f32 v{P0+r}, v{SA+2*r}, v{SA+2*r+1}")
            for l in pv(qb, P0): e(l)
    e(f"s_sub_u32 s44, s44, 1\ns_cmp_lg_u32 s44, 0\ns_cbranch_scc1 {L('sloop')}")
    merge("s", M)
    e("s_barrier")
    e(f"s_branch {L('store')}")


def h_phase(k):
    e = k.e; L = lambda n: k.lab("h_" + n)
    HL = 125952
    e("s_lshl_b32 s36, s2, 3\ns_lshl_b32 s37, s24, 1\ns_add_u32 s36, s36, s37")
    e("s_lshl_b32 s36, s36, 11\nv_lshlrev_b32 v3, 4, v2\nv_add_u32 v3, s36, v3")
    k.srd(12, P_X, 0, S * D * 2); k.srd(16, P_WS, WS_H, S * D * 2)
    k.srd(20, P_WS, WS_MODP, 4 * 6144 * 4); k.srd(56, P_WS, WS_MODF, 6144 * 4)
    e("v_lshlrev_b32 v5, 5, v0")
    for p in range(4):
        e(f"s_mov_b32 s37, {p*24576}")
        e(f"buffer_load_dwordx4 {v(64+8*p,4)}, v5, s[20:23], s37 offen\nbuffer_load_dwordx4 {v(68+8*p,4)}, v5, s[20:23], s37 offen offset:16")
    for r in range(2):
        for hf in range(2):
            e(f"buffer_load_dwordx4 {v(8+8*r+4*hf,4)}, v3, s[12:15], 0 offen offset:{r*2048+hf*1024}")
    nt_ = k.code_touch("h", k.lab("qkv_c"), k.lab("wo_c"), 24, 4, 1)
    e(f"s_waitcnt vmcnt({4+nt_})")
    for j in range(8):
        e(f"v_add_f32 v{64+j}, v{64+j}, v{72+j}\nv_add_f32 v{80+j}, v{80+j}, v{88+j}\nv_add_f32 v{64+j}, v{64+j}, v{80+j}")
        round_bf16(e, 64 + j)
    e("v_cmp_le_u32 vcc, 128, v0")
    for j in range(8):
        e(f"v_add_f32 v72, 1.0, v{64+j}")
        round_bf16(e, 72)
        e(f"v_cndmask_b32 v{64+j}, v{64+j}, v72, vcc")
    e(f"v_add_u32 v5, {HL}, v5\nds_write_b128 v5, v[64:67]\nds_write_b128 v5, v[68:71] offset:16")
    e("s_waitcnt lgkmcnt(0)\ns_barrier")
    e(f"v_lshlrev_b32 v5, 5, v2\nv_add_u32 v5, {HL}, v5")
    for hf in range(2):
        for q in range(2):
            e(f"ds_read_b128 {v(32+8*hf+4*q,4)}, v5 offset:{hf*2048+q*16}")
            e(f"ds_read_b128 {v(48+8*hf+4*q,4)}, v5 offset:{4096+hf*2048+q*16}")
    e(f"s_waitcnt vmcnt({nt_})")
    X = 64
    for r in range(2):
        for j in range(8):
            src = 8 + 8 * r + j
            e(f"v_lshlrev_b32 v{X+16*r+2*j}, 16, v{src}\nv_and_b32 v{X+16*r+2*j+1}, 0xffff0000, v{src}")
    for r in range(2): e(f"v_add_f32 v{104+r}, v{X+16*r}, v{X+16*r+1}")
    for j in range(2, 16):
        for r in range(2): e(f"v_add_f32 v{104+r}, v{104+r}, v{X+16*r+j}")
    wave_sum(e, [104, 105], 106, [0, 1, 2, 3, 4, 5])
    for r in range(2): e(f"v_mul_f32 v{104+r}, {f32(1/1024)}, v{104+r}")
    for j in range(16):
        for r in range(2): e(f"v_sub_f32 v{X+16*r+j}, v{X+16*r+j}, v{104+r}")
    for r in range(2): e(f"v_mul_f32 v{107+r}, v{X+16*r}, v{X+16*r}")
    for j in range(1, 16):
        for r in range(2): e(f"v_fmac_f32 v{107+r}, v{X+16*r+j}, v{X+16*r+j}")
    wave_sum(e, [107, 108], 106, [0, 1, 2, 3, 4, 5])
    for r in range(2):
        e(f"v_mov_b32 v{109+r}, {f32(1e-5)}\nv_fmac_f32 v{109+r}, {f32(1/1024)}, v{107+r}\nv_rsq_f32 v{109+r}, v{109+r}")
    e("s_waitcnt lgkmcnt(0)")
    for r in range(2):
        for j in range(16):
            e(f"v_mul_f32 v{X+16*r+j}, v{X+16*r+j}, v{109+r}\nv_fma_f32 v{X+16*r+j}, v{X+16*r+j}, v{48+j}, v{32+j}")
        for j in range(8): e(f"v_cvt_pk_bf16_f32 v{112+8*r+j}, v{X+16*r+2*j}, v{X+16*r+2*j+1}")
        e(f"buffer_store_dwordx4 {v(112+8*r,4)}, v3, s[16:19], 0 offen offset:{r*2048}{SCS}")
        e(f"buffer_store_dwordx4 {v(116+8*r,4)}, v3, s[16:19], 0 offen offset:{r*2048+1024}{SCS}")
    e(f"s_lshr_b32 s35, s2, 4\ns_add_u32 s35, s35, {C_H}")
    def offs():
        e(f"s_lshr_b32 s33, s2, 4\ns_lshl_b32 s33, s33, 9\ns_and_b32 s34, s2, 15\ns_lshl_b32 s34, s34, 2\ns_add_u32 s33, s33, s34\ns_add_u32 s33, s33, {FL['qkv']}")
        e("v_lshlrev_b32 v6, 7, v2\nv_add_u32 v6, s33, v6")
    k.signal("h", 4, 35, 16, (4, offs))

def k_main():
    k = PK("main_kernel", 256, 512, LDS_TOTAL + 16384, 256, 100); e = k.e
    L = k.lab
    e(f"s_cmp_ge_u32 s2, 256\ns_cbranch_scc1 {L('end')}")
    e(f"s_load_dwordx4 s[68:71], s[0:1], {KA_X}\ns_load_dwordx4 s[72:75], s[0:1], {KA_W1}\ns_load_dwordx2 s[76:77], s[0:1], {KA_WO}")
    e(f"s_load_dwordx2 s[78:79], s[0:1], {KA_OUT}\ns_load_dwordx2 s[66:67], s[0:1], {KA_WS}")
    e("v_lshrrev_b32 v1, 6, v0\nv_and_b32 v2, 63, v0\nv_readfirstlane_b32 s24, v1")
    e(f"s_cmp_lg_u32 s24, 0\ns_cbranch_scc1 {L('noinit')}")
    e(f"v_lshlrev_b32 v3, 2, v2\nv_add_u32 v3, {CTL}, v3\nv_mov_b32 v4, 0\nds_write_b32 v3, v4\ns_waitcnt lgkmcnt(0)")
    e(f"{L('noinit')}:")
    e("s_waitcnt lgkmcnt(0)")
    k.srd(CNT, P_WS, WS_CNT, CNT_BYTES)
    k.st(0)
    e(f"s_cmp_ge_u32 s24, 4\ns_cbranch_scc1 {L('qkv_l')}")
    hin = "hsep" not in OPT
    if hin: h_phase(k)
    gemm_phase(k, "qkv", 1024, 1024, 3072, 192, WS_H, S * D * 2, P_WQKV, D * 3 * D * 2, "qkv", 8, 4, 3, L("att_c"), L("att_l"), (C_H, 16, "rb") if hin else None, (1, 2), hbar=hin)
    pf = [(P_WO, D * D * 2), (P_W1, D * DFF * 2), (P_W2, D * DFF * 2)] if "nopf" not in OPT else []
    attn_phase(k, L("wo_c"), L("wo_l"), pf)
    gemm_phase(k, "wo", 1024, 1024, 1024, 64, WS_O, S * D * 2, P_WO, D * D * 2, "wo", 4, 8, 4, L("f1_c"), L("f1_l"), (C_ATT, 32, "rb2"), (5, 6))
    gemm_phase(k, "f1", 1024, 1024, DFF, 224, WS_XG, S * D * 2, P_W1, D * DFF * 2, "ffn1", 8, 4, 3, L("f2_c"), L("f2_l"), (C_WO, 16, "rb"), (7, 8))
    if "nos2" in OPT:
        gemm_phase(k, "f2", DFF, DFF, 1024, 64, WS_F1, S * DFF * 2, P_W2, DFF * D * 2, "ffn2", 4, 8, 4, L("fin"), L("end"), (C_F1, 16, "rb"), (9, 10))
    else:
        gemm_phase(k, "f2", DFF, DFF, 1024, 128, F1OFF(), S * DFF * 2, P_W2, DFF * D * 2, "ffn2s", 4, 8, 4, L("fin"), L("end"), (C_F1, 8, "rb"), (9, 10))
    e(f"{L('fin')}:")
    if DIAG:
        e("s_waitcnt vmcnt(0)")
        k.st(11)
        e(f"s_cmp_lg_u32 s24, 0\ns_cbranch_scc1 {L('end')}")
        k.srd(12, P_WS, WS_STAMP + 8 * 512 * 16, 256 * 64)
        e(f"v_lshlrev_b32 v3, 2, v2\nv_add_u32 v4, {L_STAMP}, v3\nds_read_b32 v5, v4\ns_lshl_b32 s32, s2, 6\nv_add_u32 v3, s32, v3\ns_waitcnt lgkmcnt(0)")
        e("s_mov_b64 exec, 0xffff\nbuffer_store_dword v5, v3, s[12:15], 0 offen")
    k.finish()
    return k

def k_mod2():
    k = Kern("mod_kernel", 256, 256, 1024, 64); e = k.e
    k.exit_extra()
    e("s_load_dwordx4 s[4:7], s[0:1], %d" % KA_C)
    k.ptr(8, KA_WS); k.ptr(10, KA_X)
    e(f"s_cmp_ge_u32 s2, 128\ns_cbranch_scc1 {k.lab('aux')}")
    e("s_and_b32 s24, s2, 3\ns_lshr_b32 s25, s2, 2")
    e("v_lshrrev_b32 v1, 3, v0\nv_and_b32 v2, 7, v0")
    e("s_lshl_b32 s26, s24, 8\nv_add_u32 v3, s26, v1")
    e("v_lshlrev_b32 v4, 1, v3")
    e("v_mul_u32_u24 v5, 12288, v3\nv_lshlrev_b32 v6, 4, v2\nv_add_u32 v5, v5, v6")
    e("s_lshl_b32 s27, s25, 7\nv_add_u32 v5, s27, v5")
    e("s_waitcnt lgkmcnt(0)")
    k.srd(12, 4, 0, 2048); k.srd(16, 6, 0, 1024 * 6144 * 2); k.srd(20, 8, WS_MODP, 4 * 6144 * 4)
    gemv_body(k, 8, 16, 48, 56, "s[12:15]", "s[16:19]", 32)
    k.stamp(2)
    e("v_lshrrev_b32 v9, 6, v0\nv_lshlrev_b32 v9, 8, v9\nv_lshlrev_b32 v10, 5, v2\nv_add_u32 v9, v9, v10")
    e("v_and_b32 v10, 63, v0\nv_cmp_gt_u32 vcc, 8, v10\ns_and_saveexec_b64 s[28:29], vcc")
    e("ds_write_b128 v9, v[48:51]\nds_write_b128 v9, v[52:55] offset:16")
    e("s_mov_b64 exec, s[28:29]")
    e("s_waitcnt lgkmcnt(0)\ns_barrier")
    e("v_cmp_gt_u32 vcc, 64, v0\ns_and_saveexec_b64 s[28:29], vcc")
    e(f"s_cbranch_execz {k.lab('end')}")
    e("v_lshlrev_b32 v9, 2, v0")
    for w in range(4): e(f"ds_read_b32 v{12+w}, v9 offset:{w*256}")
    e("s_waitcnt lgkmcnt(0)")
    e("v_add_f32 v12, v12, v13\nv_add_f32 v14, v14, v15\nv_add_f32 v12, v12, v14")
    e("s_mul_i32 s26, s24, 24576\ns_lshl_b32 s27, s25, 8\ns_add_u32 s26, s26, s27")
    e("buffer_store_dword v12, v9, s[20:23], s26 offen")
    k.stamp_flush(0, 56)
    e("s_endpgm")
    e(f"{k.lab('aux')}:")
    e("s_waitcnt lgkmcnt(0)\ns_sub_u32 s24, s2, 128")
    k.srd(12, 10, 0, S * D * 2)
    e("s_lshl_b32 s25, s24, 15\nv_lshlrev_b32 v1, 7, v0\nbuffer_load_dword v2, v1, s[12:15], s25 offen")
    e(f"s_add_u32 s16, s8, {WS_CNT:#x}\ns_addc_u32 s17, s9, 0\ns_mov_b32 s18, {CNT_BYTES}\ns_mov_b32 s19, 0x20000")
    e("s_lshl_b32 s25, s24, 12\nv_lshlrev_b32 v3, 4, v0\nv_mov_b32 v4, 0\nv_mov_b32 v5, 0\nv_mov_b32 v6, 0\nv_mov_b32 v7, 0\nbuffer_store_dwordx4 v[4:7], v3, s[16:19], s25 offen")
    assert CNT_BYTES <= 128 * 4096
    if gen.DIAG:
        k.stamp(1); k.stamp(2)
        k.a.lines.append("  s_nop 0")
    k.finish()
    return k

def gemv_body(k, CV, WV, AC, TMP, srd_c, srd_w, ssoff):
    e = k.e
    for i in range(8): e(f"buffer_load_ushort v{CV+i}, v4, {srd_c}, 0 offen offset:{i*64}")
    for i in range(8): e(f"s_mov_b32 s{ssoff+i}, {i*32*12288}")
    for i in range(8): e(f"buffer_load_dwordx4 {v(WV+4*i,4)}, v5, {srd_w}, s{ssoff+i} offen")
    gemv_finish(k, CV, WV, AC, TMP)

def gemv_finish(k, CV, WV, AC, TMP):
    e = k.e
    for j in range(8): e(f"v_mov_b32 v{AC+j}, 0")
    e("s_waitcnt vmcnt(8)")
    k.stamp(1) if not isinstance(k, PK) else None
    for i in range(8):
        x = CV + i
        e(f"v_lshlrev_b32 v{x}, 16, v{x}")
        e(f"v_mul_f32 v{TMP}, {f32(-LOG2E)}, v{x}\nv_exp_f32 v{TMP}, v{TMP}\nv_add_f32 v{TMP}, 1.0, v{TMP}\nv_rcp_f32 v{TMP}, v{TMP}\nv_mul_f32 v{x}, v{x}, v{TMP}")
        round_bf16(e, x)
    for i in range(8):
        e(f"s_waitcnt vmcnt({7-i})")
        for j in range(4):
            w = WV + 4 * i + j
            e(f"v_lshlrev_b32 v{TMP}, 16, v{w}\nv_and_b32 v{TMP+1}, 0xffff0000, v{w}")
            e(f"v_fmac_f32 v{AC+2*j}, v{CV+i}, v{TMP}\nv_fmac_f32 v{AC+2*j+1}, v{CV+i}, v{TMP+1}")
    wave_sum(e, list(range(AC, AC + 8)), TMP, [3, 4, 5])

def k_probe(idx, mult):
    k = Kern("probe_kernel", 1, 64, 0, 64); e = k.e
    e("s_cmp_ge_u32 s2, 1\ns_cbranch_scc1 probe_kernel_end")
    k.ptr(8, KA_WS); k.ptr(10, KA_DBG)
    e("s_waitcnt lgkmcnt(0)")
    k.srd(12, 8, WS_STAMP, 16 * 512 * 16); k.srd(20, 10, 0, 256)
    e("v_lshlrev_b32 v1, 4, v0\nv_lshlrev_b32 v2, 6, v0")
    for c in range(6): e(f"s_mov_b32 s24, {(c%2)*64*16}\nbuffer_load_dword v{8+c}, v1, s[12:15], s24 offen")
    for c in range(4): e(f"s_mov_b32 s24, {8*512*16 + c*64*64 + idx*4}\nbuffer_load_dword v{16+c}, v2, s[12:15], s24 offen")
    e("s_waitcnt vmcnt(0)")
    for c in range(1, 6): e(f"v_min_u32 v8, v8, v{8+c}")
    for c in range(1, 4): e(f"v_max_u32 v16, v16, v{16+c}")
    def red(r, op):
        for b in range(4): e(f"{op}_dpp v{r}, v{r}, v{r} row_ror:{1<<b} row_mask:0xf bank_mask:0xf")
        for w in (16, 32):
            e(f"v_mov_b32 v40, v{r}\nv_permlane{w}_swap_b32 v40, v{r}\n{op} v{r}, v{r}, v40")
    red(8, "v_min_u32"); red(16, "v_max_u32")
    e("v_sub_u32 v16, v16, v8\nv_mov_b32 v13, 0\nbuffer_store_dword v16, v13, s[20:23], 0 offen\nv_readfirstlane_b32 s30, v16")
    e(f"s_mul_i32 s30, s30, {mult}\ns_min_u32 s30, s30, 100000")
    e("s_memrealtime s[32:33]\ns_waitcnt lgkmcnt(0)")
    e("probe_spin:\ns_memrealtime s[34:35]\ns_waitcnt lgkmcnt(0)\ns_sub_u32 s36, s34, s32\ns_cmp_lt_u32 s36, s30\ns_cbranch_scc1 probe_spin")
    k.finish()
    return k

PROBE = None
def build():
    if PROBE is not None: return [k_mod2(), k_main(), k_probe(*PROBE)]
    if "hsep" in OPT: return [k_mod2(), gen.k_h(True), k_main()]
    return [k_mod2(), k_main()]

if __name__ == "__main__":
    for a_ in list(sys.argv):
        if a_.startswith("--opt="): OPT = set(a_[6:].split(",")); sys.argv.remove(a_)
        if a_.startswith("--pfstage="): PFSTAGE = int(a_[10:]); sys.argv.remove(a_)
        if a_.startswith("--scs="): SCS = " " + a_[6:].replace("+", " "); sys.argv.remove(a_)
        if a_.startswith("--l2d="): L2D = int(a_[6:]); sys.argv.remove(a_)
        if a_.startswith("--probe="): PROBE = tuple(int(x) for x in a_[8:].split(",")); sys.argv.remove(a_)
        if a_.startswith("--mrstep="): MRSTEP = int(a_[9:]); sys.argv.remove(a_)
        if a_.startswith("--sleep="): SLEEP = int(a_[8:]); sys.argv.remove(a_)
    if "--diag" in sys.argv: DIAG = True; gen.DIAG = True; sys.argv.remove("--diag")
    txt = emit(build(), header())
    out = sys.argv[1]
    open(out, "w").write(txt)
    print("wrote", out, len(txt), "bytes")
```

```python
import sys
from asmlib import *
import gen
from gen import (NAME, S, D, DFF, H, KA_X, KA_WQKV, KA_WO, KA_BX, KA_W1, KA_W2, KA_C, KA_WMOD, KA_OUT, KA_DBG, KA_WS,
                 WS_MODP, WS_MODF, WS_H, WS_QKV, WS_O, WS_X1, WS_F1, WS_XG, WS_STAT, WS_UB, WS_STAMP, LOG2E, f32, Kern,
                 wave_sum, round_bf16, interleave, header, emit)

WS_F1A = WS_H
WS_CNT = 0x2f00000
C_QKV, C_ATT, C_WO, C_UB, C_F1, C_H = 0, 16, 24, 40, 56, 72
C_MR, C_MRALL, C_ATTALL = 88, 152, 153
NCNT = 160
FL_BASE = NCNT * 256 + 1536
FL_BASE = (FL_BASE + 255) // 256 * 256
FL = {"qkv": FL_BASE, "att": FL_BASE + 256 * 128, "wo": FL_BASE + 256 * 128 + 256 * 256, "f1": FL_BASE + 256 * 256 + 2 * 256 * 128, "f2": FL_BASE + 256 * 256 + 3 * 256 * 128}
FL["xch"] = FL_BASE + 256 * 256 + 4 * 256 * 128
FL["mr"] = FL["xch"] + 256 * 128
CNT_BYTES = FL["mr"] + 8 * 128
WS_XCH = 0x3800000
OPT = set()
DIAG = False
SC = " sc1"
SCS = " sc1"
P_WS, P_X, P_WQKV, P_W1, P_W2, P_WO, P_OUT = 66, 68, 70, 72, 74, 76, 78
CNT = 28
CTL = 138240
L_SIG = {"qkv": CTL, "att": CTL + 4, "wo": CTL + 8, "ub": CTL + 12, "f1": CTL + 16, "h": CTL + 20, "mr": CTL + 24}
L_DEP = {"wo": CTL + 32, "f1": CTL + 36, "f2": CTL + 40, "qkv": CTL + 44}
L_STAMP = CTL + 64
LDS_TOTAL = CTL + 256
SPIN_MAX = 400000
SLEEP = 2
PFSTAGE = 7
L2D = 8
MRSTEP = 9

def exec_mask(n):
    if n < 32: return f"s_mov_b64 exec, {(1 << n) - 1:#x}"
    return f"s_mov_b32 exec_lo, -1\ns_mov_b32 exec_hi, {(1 << (n - 32)) - 1:#x}"

class PK(Kern):
    def st(self, i, wave=0):
        if not DIAG: return
        e = self.e; n = self.lab(f"st{i}")
        e(f"s_cmp_lg_u32 s24, {wave}\ns_cbranch_scc1 {n}\n{'s_memtime' if 'cyc' in OPT else 's_memrealtime'} s[98:99]\ns_waitcnt lgkmcnt(0)\nv_mov_b32 v254, s98\nv_mov_b32 v255, {L_STAMP+4*i}\nds_write_b32 v255, v254\ns_waitcnt lgkmcnt(0)\n{n}:")
    def code_touch(self, tag, frm, to, part_sreg, nparts, per):
        if "code" not in OPT: return 0
        e = self.e; here = self.lab("pc" + tag)
        e(f"s_getpc_b64 s[90:91]\n{here}:\ns_add_u32 s90, s90, {frm}-{here}\ns_addc_u32 s91, s91, 0")
        e(f"s_mul_i32 s92, s{part_sreg}, {per*8192}\nv_lshlrev_b32 v252, 7, v2\nv_add_u32 v252, s92, v252")
        for i in range(per):
            if i: e("v_add_u32 v252, 8192, v252")
            e(f"v_min_u32 v251, {to}-{frm}-4, v252\nglobal_load_dword v253, v251, s[90:91]")
        return per
    def poll(self, tag, cnt_sreg, target, lanes=1):
        e = self.e; L = self.lab
        if cnt_sreg is not None: e(f"s_lshl_b32 s32, s{cnt_sreg}, 8\nv_mov_b32 v6, s32")
        e(f"s_mov_b32 s33, 0\ns_mov_b64 exec, {(1 << lanes) - 1}")
        e(f"{L('poll'+tag)}:")
        e(f"buffer_load_dword v7, v6, {s(CNT,4)}, 0 offen offset:{0 if 'direct' in OPT else 128} sc1\ns_waitcnt vmcnt(0)")
        e(f"v_cmp_gt_u32 vcc, {target}, v7\ns_cmp_eq_u64 vcc, 0\ns_cbranch_scc1 {L('pollx'+tag)}")
        e(f"s_add_u32 s33, s33, 1\ns_cmp_ge_u32 s33, {SPIN_MAX}\ns_cbranch_scc1 {L('pollx'+tag)}")
        e(f"s_sleep {SLEEP}\ns_branch {L('poll'+tag)}")
        e(f"{L('pollx'+tag)}:\ns_mov_b64 exec, -1")
    def dep_wait_loaders(self, tag, cnt_sreg, target, first_wave_cond):
        e = self.e; L = self.lab
        e(f"s_cmp_lg_u32 s24, 4\ns_cbranch_scc1 {L('dw'+tag)}")
        if "noflags" in OPT: self.poll(tag, cnt_sreg, target)
        else:
            if tag == "f2" and "nos2" not in OPT:
                e(f"s_lshl_b32 s34, s25, 1\ns_add_u32 s34, s34, s27\ns_lshl_b32 s34, s34, 7\ns_add_u32 s34, s34, {FL[tag]}")
            elif tag == "f2":
                e(f"s_lshl_b32 s34, s25, 4\ns_add_u32 s34, s34, s26\ns_lshl_b32 s34, s34, 7\ns_add_u32 s34, s34, {FL[tag]}")
            elif tag == "wo":
                e(f"s_lshr_b32 s34, s25, 1\ns_lshl_b32 s34, s34, 1\ns_lshr_b32 s33, s26, 3\ns_add_u32 s34, s34, s33\ns_lshl_b32 s34, s34, 7\ns_add_u32 s34, s34, {FL[tag]}")
            else:
                e(f"s_lshl_b32 s34, s25, 2\ns_lshr_b32 s33, s26, 2\ns_add_u32 s34, s34, s33\ns_lshl_b32 s34, s34, 7\ns_add_u32 s34, s34, {FL[tag]}")
            self.wait_flags(tag, target, 34)
        e(f"v_mov_b32 v6, {L_DEP[tag]}\nv_mov_b32 v7, 1\nds_write_b32 v6, v7\ns_waitcnt lgkmcnt(0)\ns_branch {L('dwx'+tag)}")
        e(f"{L('dw'+tag)}:")
        e(f"v_mov_b32 v6, {L_DEP[tag]}\ns_mov_b32 s33, 0")
        e(f"{L('dwl'+tag)}:")
        e(f"ds_read_b32 v7, v6\ns_waitcnt lgkmcnt(0)\nv_readfirstlane_b32 s34, v7")
        e(f"s_cmp_lg_u32 s34, 0\ns_cbranch_scc1 {L('dwx'+tag)}")
        e(f"s_add_u32 s33, s33, 1\ns_cmp_ge_u32 s33, {SPIN_MAX*4}\ns_cbranch_scc1 {L('dwx'+tag)}")
        e(f"s_sleep 1\ns_branch {L('dwl'+tag)}")
        e(f"{L('dwx'+tag)}:")
    def arrive(self, tag, cnt_sreg, target):
        e = self.e; L = self.lab
        e(f"s_lshl_b32 s33, s{cnt_sreg}, 8\nv_mov_b32 v6, s33\nv_mov_b32 v7, 1")
        if "direct" in OPT:
            e(f"buffer_atomic_add v7, v6, {s(CNT,4)}, 0 offen sc1")
            return
        e(f"buffer_atomic_add v7, v6, {s(CNT,4)}, 0 offen sc0 sc1\ns_waitcnt vmcnt(0)\nv_readfirstlane_b32 s33, v7")
        e(f"s_cmp_lg_u32 s33, {target-1}\ns_cbranch_scc1 {L('arr'+tag)}")
        e(f"v_mov_b32 v7, {target}\nbuffer_store_dword v7, v6, {s(CNT,4)}, 0 offen offset:128 sc1")
        e(f"{L('arr'+tag)}:")
    def signal(self, tag, nwaves, cnt_sreg, target, flags=None):
        e = self.e; L = self.lab
        e("s_waitcnt vmcnt(0)")
        e(f"v_mov_b32 v6, {L_SIG[tag]}\nv_mov_b32 v7, 1\ns_mov_b64 exec, 1")
        e("ds_add_rtn_u32 v7, v6, v7\ns_waitcnt lgkmcnt(0)\nv_readfirstlane_b32 s32, v7\ns_mov_b64 exec, -1")
        e(f"s_cmp_lg_u32 s32, {nwaves-1}\ns_cbranch_scc1 {L('sig'+tag)}")
        if flags is not None and "noflags" not in OPT:
            n, offs = flags
            offs()
            e("v_mov_b32 v7, 1\n" + exec_mask(n))
            e(f"buffer_store_dword v7, v6, {s(CNT,4)}, 0 offen sc1")
        else:
            e("s_mov_b64 exec, 1")
            self.arrive(tag, cnt_sreg, target)
        e(f"{L('sig'+tag)}:\ns_mov_b64 exec, -1")
    def wait_flags(self, tag, n, base_sreg):
        e = self.e; L = self.lab
        e(f"v_lshlrev_b32 v6, 2, v2\nv_add_u32 v6, s{base_sreg}, v6\ns_mov_b32 s33, 0")
        e(exec_mask(n))
        e(f"{L('poll'+tag)}:")
        e(f"buffer_load_dword v7, v6, {s(CNT,4)}, 0 offen sc1\ns_waitcnt vmcnt(0)")
        e(f"v_cmp_ne_u32 vcc, 1, v7\ns_cmp_eq_u64 vcc, 0\ns_cbranch_scc1 {L('pollx'+tag)}")
        e(f"s_add_u32 s33, s33, 1\ns_cmp_ge_u32 s33, {SPIN_MAX}\ns_cbranch_scc1 {L('pollx'+tag)}")
        e(f"s_sleep {SLEEP}\ns_branch {L('poll'+tag)}")
        e(f"{L('pollx'+tag)}:\ns_mov_b64 exec, -1")

def CHAIN(): return 'nochain' not in OPT and 'modall' not in OPT and 'mrwo' not in OPT

def F1OFF(): return WS_F1A if 'alias' in OPT else WS_F1

def tile_map(e, xr, xc):
    nxc = 16 // xc
    e(f"s_and_b32 s36, s2, 7\ns_lshr_b32 s37, s2, 3")
    e(f"s_and_b32 s38, s36, {nxc-1}\ns_lshr_b32 s39, s36, {nxc.bit_length()-1}")
    e(f"s_and_b32 s40, s37, {xc-1}\ns_lshr_b32 s41, s37, {xc.bit_length()-1}")
    e(f"s_mul_i32 s38, s38, {xc}\ns_add_u32 s26, s38, s40")
    e(f"s_mul_i32 s39, s39, {xr}\ns_add_u32 s25, s39, s41")

def tile_map_s2(e):
    e("s_and_b32 s36, s2, 7\ns_lshr_b32 s37, s2, 3\ns_and_b32 s27, s36, 1\ns_lshr_b32 s36, s36, 1")
    e("s_and_b32 s26, s37, 7\ns_lshr_b32 s37, s37, 3\ns_lshl_b32 s36, s36, 2\ns_add_u32 s25, s36, s37")

def gemm_phase(k, tag, K, lda, ldb, BN, srcA, sizeA, pB, sizeB, epi, xr, xc, NS, nxt_c, nxt_l, dep=None, stamps=(None, None), hbar=False):
    e = k.e
    L = lambda n: k.lab(tag + "_" + n)
    BM, BK = 128, 64
    nA = BM * BK * 2 // 1024; nB = BN * BK * 2 // 1024
    nAw, nBw = nA // 4, nB // 4
    nld = nAw + nBw
    SB = (nA + nB) * 1024
    s2 = epi == "ffn2s"
    nk = K // BK // (2 if s2 else 1)
    TM, TN = 64, BN // 2
    mt, nt = TM // 16, TN // 16
    pitch = BN * 2; cpr = BN // 8
    hbits = {4: 2, 6: 1, 2: 1, 0: 3}[(pitch // 32) % 8]
    ACC = 8; NACC = 4 * mt * nt
    FA = ACC + NACC; NF = 4 * (mt + nt); FB = FA + NF
    AX = FB + NF; AW = AX + 2; EP = AW + nt
    XL = 135168
    assert SB * NS <= XL
    perm = epi == "qkv" and "perm" in OPT
    asc = SC if dep else ""
    e(f"{L('c')}:")
    if s2: tile_map_s2(e)
    else: tile_map(e, xr, xc)
    e("s_lshr_b32 s42, s24, 1\ns_and_b32 s43, s24, 1")
    e("v_and_b32 v3, 15, v2\nv_lshrrev_b32 v4, 4, v2")
    e(f"s_lshl_b32 s44, s25, 7\ns_lshl_b32 s45, s42, 6\ns_add_u32 s44, s44, s45")
    e(f"s_mul_i32 s46, s26, {BN}\ns_mul_i32 s45, s43, {TN}\ns_add_u32 s46, s46, s45")
    k.srd(20, P_WS, WS_MODF, 6144 * 4)
    if epi == "qkv": k.srd(12, P_WS, WS_QKV, 96 * S * 64)
    elif epi == "ffn1": k.srd(12, P_WS, F1OFF(), S * DFF * 2)
    elif epi == "wo": k.srd(12, P_WS, WS_X1, S * D * 2); k.srd(16, P_X, 0, S * D * 2)
    elif epi in ("ffn2", "ffn2s"): k.srd(12, P_OUT, 0, S * D * 2); k.srd(16, P_WS, WS_X1, S * D * 2)
    G = EP + 2 * mt * nt; GG = G + 4 * nt; W1R = GG + 4 * nt
    if s2:
        G = EP + 16
        e("s_lshl_b32 s47, s27, 5\ns_add_u32 s46, s46, s47")
        e("s_lshl_b32 s47, s25, 4\ns_lshl_b32 s48, s26, 1\ns_add_u32 s47, s47, s48\ns_add_u32 s47, s47, s43\ns_lshl_b32 s47, s47, 2\ns_lshl_b32 s48, s42, 1\ns_add_u32 s47, s47, s48\ns_add_u32 s47, s47, s27\ns_lshl_b32 s47, s47, 12")
        e("v_lshlrev_b32 v5, 4, v2")
        for j in range(mt):
            e(f"buffer_load_dwordx4 {v(EP+4*j,4)}, v5, s[16:19], s47 offen offset:{j*1024}{SC}")
        if not CHAIN(): k.srd(20, P_WS, WS_MODP, 4 * 6144 * 4)
        e(f"v_lshlrev_b32 v6, 4, v4\ns_lshl_b32 s47, s46, 2\ns_add_u32 s47, s47, {5*1024*4}")
        for p_ in range(1 if CHAIN() else 4):
            for i in range(2):
                e(f"buffer_load_dwordx4 {v(G+8*p_+4*i,4)}, v6, s[20:23], s47 offen offset:{i*64}{SC}")
            if p_ < 3 and not CHAIN(): e("s_add_u32 s47, s47, 24576")
    if epi == "wo" and "modall" not in OPT and "mrwo" in OPT:
        e(f"s_load_dwordx4 s[36:39], s[0:1], {KA_C}")
        e("s_and_b32 s58, s2, 3\ns_lshr_b32 s59, s2, 2\ns_add_u32 s59, s59, 32")
        e("v_lshrrev_b32 v6, 3, v0\nv_and_b32 v7, 7, v0\nv_mov_b32 v247, v7")
        e("s_lshl_b32 s47, s58, 8\nv_add_u32 v6, s47, v6\nv_lshlrev_b32 v248, 1, v6")
        e("v_mul_u32_u24 v5, 12288, v6\nv_lshlrev_b32 v6, 4, v7\nv_add_u32 v5, v5, v6\ns_lshl_b32 s47, s59, 7\nv_add_u32 v5, s47, v5")
        e("s_waitcnt lgkmcnt(0)")
        k.srd(52, 36, 0, 2048); k.srd(60, 38, 0, 1024 * 6144 * 2)
        for i in range(8): e(f"buffer_load_ushort v{176+i}, v248, s[52:55], 0 offen offset:{i*64}")
        for i in range(8):
            e(f"s_mov_b32 s47, {i*32*12288}\nbuffer_load_dwordx4 {v(184+4*i,4)}, v5, s[60:63], s47 offen")
        gemv_finish(k, 176, 184, 216, 224)
        MRL = 139264
        e(f"s_lshl_b32 s47, s24, 8\nv_lshlrev_b32 v5, 5, v247\nv_add_u32 v5, s47, v5\nv_add_u32 v5, {MRL}, v5")
        e("s_mov_b64 exec, 0xff\nds_write_b128 v5, v[216:219]\nds_write_b128 v5, v[220:223] offset:16\ns_waitcnt lgkmcnt(0)")
        e(f"v_mov_b32 v6, {L_SIG['mr']}\nv_mov_b32 v7, 1\ns_mov_b64 exec, 1\nds_add_rtn_u32 v7, v6, v7\ns_waitcnt lgkmcnt(0)\nv_readfirstlane_b32 s47, v7\ns_mov_b64 exec, -1")
        e(f"s_cmp_lg_u32 s47, 3\ns_cbranch_scc1 {L('mrx')}")
        e(f"v_lshlrev_b32 v5, 2, v2\nv_add_u32 v6, {MRL}, v5")
        for w_ in range(4): e(f"ds_read_b32 v{216+w_}, v6 offset:{w_*256}")
        e("s_waitcnt lgkmcnt(0)\nv_add_f32 v216, v216, v217\nv_add_f32 v218, v218, v219\nv_add_f32 v216, v216, v218")
        k.srd(52, P_WS, WS_MODP, 4 * 6144 * 4)
        e("s_mul_i32 s47, s58, 24576\ns_lshl_b32 s48, s59, 8\ns_add_u32 s47, s47, s48")
        e(f"buffer_store_dword v216, v5, s[52:55], s47 offen{SCS}\ns_waitcnt vmcnt(0)")
        e(f"v_mov_b32 v6, {C_MRALL*256}\nv_mov_b32 v7, 1\ns_mov_b64 exec, 1\nbuffer_atomic_add v7, v6, {s(CNT,4)}, 0 offen sc1\ns_mov_b64 exec, -1")
        e(f"{L('mrx')}:")
    if epi in ("wo", "ffn2"):
        if epi == "wo":
            e(f"v_add_u32 v5, s44, v3\nv_lshlrev_b32 v5, 11, v5\nv_lshlrev_b32 v6, 3, v4\nv_add_u32 v5, v5, v6")
            e(f"s_lshl_b32 s47, s46, 1\nv_add_u32 v5, s47, v5")
            for j in range(mt):
                e(f"s_mov_b32 s48, {j*16*2048}")
                for i in range(nt):
                    e(f"buffer_load_dwordx2 {v(EP+2*(j*nt+i),2)}, v5, s[16:19], s48 offen offset:{i*32}")
        else:
            e("s_lshl_b32 s47, s25, 4\ns_add_u32 s47, s47, s26\ns_lshl_b32 s47, s47, 2\ns_add_u32 s47, s47, s24\ns_lshl_b32 s47, s47, 12\nv_lshlrev_b32 v5, 4, v2")
            for j in range(mt):
                e(f"buffer_load_dwordx4 {v(EP+4*j,4)}, v5, s[16:19], s47 offen offset:{j*1024}{SC}")
        if epi == "ffn2":
            raise NotImplementedError
        if epi == "wo" and CHAIN():
            e(f"s_and_b32 s35, s2, 7\ns_lshl_b32 s35, s35, 7\ns_add_u32 s35, s35, {FL['mr']}")
            k.wait_flags("mr", 1, 35)
            e(f"v_lshlrev_b32 v6, 4, v4\ns_lshl_b32 s47, s46, 2\ns_add_u32 s47, s47, {2*1024*4}")
            for i in range(nt):
                e(f"buffer_load_dwordx4 {v(G+4*i,4)}, v6, s[20:23], s47 offen offset:{i*64}{SC}")
            e(f"s_lshl_b32 s47, s46, 2\ns_add_u32 s47, s47, {4096*4}")
            for i in range(nt):
                e(f"buffer_load_dwordx4 {v(GG+4*i,4)}, v6, s[20:23], s47 offen offset:{i*64}{SC}")
        if epi == "wo":
            e("s_lshr_b32 s58, s2, 4\ns_and_b32 s59, s2, 15")
            e(f"v_mul_u32_u24 v5, {(65536+27)//28}, v2\nv_lshrrev_b32 v5, 16, v5\nv_mul_u32_u24 v6, 28, v5\nv_sub_u32 v6, v2, v6")
            e("s_lshl_b32 s60, s58, 6\ns_lshl_b32 s61, s24, 4\ns_add_u32 s60, s60, s61\nv_add_u32 v5, s60, v5")
            e(f"v_mul_u32_u24 v7, {DFF*2}, v5\nv_lshlrev_b32 v6, 4, v6\nv_add_u32 v7, v7, v6\ns_mul_i32 s60, s59, 448\nv_add_u32 v7, s60, v7")
            k.srd(60, P_W1, 0, D * DFF * 2)
            e("v_cmp_gt_u32 vcc, 56, v2\ns_and_saveexec_b64 s[34:35], vcc")
            for i in range(8):
                e(f"s_mov_b32 s64, {i*2*DFF*2}")
                e(f"buffer_load_dwordx4 {v(W1R+4*i,4)}, v7, s[60:63], s64 offen")
            if CHAIN():
                e("v_lshlrev_b32 v5, 2, v5")
                e(f"s_mov_b32 s64, {4096*4}\ns_mov_b32 s65, {3072*4}")
                for i in range(8):
                    e(f"buffer_load_dword v{W1R+32+i}, v5, s[20:23], s64 offen offset:{i*8}{SC}")
                    e(f"buffer_load_dword v{W1R+40+i}, v5, s[20:23], s65 offen offset:{i*8}{SC}")
            e("s_mov_b64 exec, s[34:35]")
    e(f"v_lshrrev_b32 v5, 1, v3\nv_xor_b32 v5, v5, v4\nv_and_b32 v5, 7, v5")
    e(f"v_lshlrev_b32 v5, 4, v5\ns_lshl_b32 s47, s42, 6\nv_add_u32 v6, s47, v3\nv_lshlrev_b32 v6, 7, v6")
    e(f"v_add_u32 v{AX}, v5, v6\nv_xor_b32 v{AX+1}, 64, v{AX}")
    e("v_lshrrev_b32 v5, 2, v3\nv_and_b32 v6, 3, v2")
    e("v_lshlrev_b32 v7, 3, v4\nv_add_u32 v7, v7, v5")
    e(f"v_mul_u32_u24 v7, {pitch}, v7\nv_lshlrev_b32 v6, 3, v6\nv_add_u32 v7, v7, v6\nv_add_u32 v7, {nA*1024}, v7")
    if hbits == 2: e("v_lshrrev_b32 v5, 1, v5\nv_and_b32 v6, 1, v4\nv_lshlrev_b32 v6, 1, v6\nv_or_b32 v5, v5, v6")
    elif hbits == 1: e("v_and_b32 v5, 1, v4")
    else: e("v_and_b32 v6, 1, v4\nv_lshlrev_b32 v6, 2, v6\nv_or_b32 v5, v5, v6")
    e(f"s_mul_i32 s47, s43, {nt}")
    for i in range(nt):
        e(f"s_add_u32 s48, s47, {i}\nv_xor_b32 v6, s48, v5\nv_lshlrev_b32 v6, 5, v6\nv_add_u32 v{AW+i}, v7, v6")
    for r in range(NACC): e(f"v_mov_b32 v{ACC+r}, 0")
    def reads(ss, F):
        xs = [f"ds_read_b128 {v(F+4*j,4)}, v{AX+ss} offset:{j*2048}" for j in range(mt)]
        ws = []
        for i in range(nt):
            for hh in range(2):
                ws.append(f"ds_read_b64_tr_b16 {v(F+4*mt+4*i+2*hh,2)}, v{AW+i} offset:{(ss*32+hh*4)*pitch}")
        return [xs[0]] + ws[:2] + xs[1:] + ws[2:]
    def mfmas(F):
        return [f"v_mfma_f32_16x16x32_bf16 {v(ACC+4*(j*nt+i),4)}, {v(F+4*mt+4*i,4)}, {v(F+4*j,4)}, {v(ACC+4*(j*nt+i),4)}"
                for j in range(mt) for i in range(nt)]
    def mix(mf, rd, extra=()):
        rd = list(rd)
        if len(rd) <= len(mf) - 4:
            return interleave(mf, rd + list(extra))
        out = []; oi = 0; ex = list(extra)
        for m_ in mf:
            out.append(m_)
            for _ in range(2):
                if oi < len(rd): out.append(rd[oi]); oi += 1
            if oi >= len(rd) and ex: out.append(ex.pop(0))
        out += rd[oi:] + ex
        return out
    if epi == "wo": k.code_touch("w", k.lab("f1_c"), k.lab("f2_c"), 24, 4, 1)
    if epi == "ffn1": k.code_touch("f", k.lab("f1_cloop"), k.lab("end"), 24, 4, 1)
    e(f"s_mov_b32 s49, 0\ns_mov_b32 s54, {SB}\ns_mov_b32 s55, {-(NS-1)*SB & 0xffffffff:#x}")
    e("s_barrier")
    if stamps[0] is not None: k.st(stamps[0])
    for l in reads(0, FA): e(l)
    l2pf = epi in ("qkv", "ffn1") and ("l2" + tag) in OPT
    if l2pf:
        k.srd(56, P_WS, srcA, sizeA); k.srd(60, pB, 0, sizeB)
        e(f"s_cmp_eq_u32 s24, 0\ns_cselect_b32 s65, {(nk-1) & 1}, 99")
        e("s_lshr_b32 s37, s2, 3")
        e(f"s_and_b32 s40, s37, {xc-1}\ns_lshr_b32 s41, s37, {xc.bit_length()-1}")
        e(f"v_lshrrev_b32 v5, 5, v2\nv_add_u32 v5, {L2D}, v5")
        e(f"v_and_b32 v6, 31, v2\ns_lshl_b32 s47, s40, 5\nv_add_u32 v6, s47, v6\ns_lshl_b32 s47, s25, 7\nv_add_u32 v6, s47, v6\nv_lshlrev_b32 v6, 11, v6\nv_lshlrev_b32 v7, 7, v5\nv_add_u32 v250, v6, v7")
        e(f"v_lshlrev_b32 v5, 6, v5\nv_lshrrev_b32 v6, 2, v2\nv_and_b32 v6, 7, v6\nv_add_u32 v5, v5, v6\ns_lshl_b32 s47, s41, 3\nv_add_u32 v5, s47, v5\ns_mov_b32 s47, {ldb*2}\nv_mul_lo_u32 v5, s47, v5")
        e(f"v_and_b32 v6, 3, v2\nv_lshlrev_b32 v6, 7, v6\nv_add_u32 v5, v5, v6\ns_mul_i32 s47, s26, {BN*2}\ns_and_b32 s47, s47, 0xffffff80\nv_add_u32 v249, s47, v5")
    e(f"s_mov_b32 s50, {nk-1}")
    adv_s = f"s_add_u32 s49, s49, 1\ns_cmp_eq_u32 s49, {NS}\ns_cselect_b32 s51, s55, s54\ns_cselect_b32 s49, 0, s49"
    adv_v = [f"v_add_u32 v{r}, s51, v{r}" for r in [AX, AX + 1] + [AW + i for i in range(nt)]]
    e(f"{L('cloop')}:")
    if epi == "wo" and not CHAIN():
        if "modall" in OPT:
            e(f"s_cmp_eq_u32 s50, 12\ns_cbranch_scc0 {L('m2')}")
        else:
            e(f"s_cmp_eq_u32 s50, 11\ns_cbranch_scc0 {L('m1')}")
            e(f"v_mov_b32 v245, {C_MRALL*256}\nbuffer_load_dword v246, v245, {s(CNT,4)}, 0 offen sc1")
            e(f"{L('m1')}:\ns_cmp_eq_u32 s50, 8\ns_cbranch_scc0 {L('m2')}")
            e(f"s_waitcnt vmcnt(0)\nv_readfirstlane_b32 s47, v246\ns_cmp_ge_u32 s47, 256\ns_cbranch_scc1 {L('m1ok')}")
            e(f"v_mov_b32 v6, {C_MRALL*256 - 128}")
            k.poll("mr", None, 256)
            e(f"{L('m1ok')}:")
        k.srd(60, P_WS, WS_MODP, 4 * 6144 * 4)
        e("s_lshl_b32 s47, s26, 6\ns_lshr_b32 s48, s2, 4\ns_lshl_b32 s48, s48, 6\ns_cmp_ge_u32 s24, 2\ns_cselect_b32 s47, s48, s47")
        e("s_mov_b32 s48, 4096\ns_cmp_eq_u32 s24, 0\ns_cselect_b32 s48, 2048, s48\ns_cmp_eq_u32 s24, 3\ns_cselect_b32 s48, 3072, s48")
        e("s_add_u32 s47, s47, s48\ns_lshl_b32 s47, s47, 2\nv_lshlrev_b32 v245, 2, v2")
        for p_ in range(4):
            e(f"buffer_load_dword v{240+p_}, v245, s[60:63], s47 offen{SC}")
            if p_ < 3: e("s_add_u32 s47, s47, 24576")
        e(f"{L('m2')}:\ns_cmp_eq_u32 s50, 4\ns_cbranch_scc0 {L('m3')}")
        e("s_waitcnt vmcnt(0)\nv_add_f32 v240, v240, v241\nv_add_f32 v242, v242, v243\nv_add_f32 v240, v240, v242")
        round_bf16(e, 240)
        e("v_add_f32 v241, 1.0, v240")
        round_bf16(e, 241)
        e("s_sub_u32 s47, s24, 1\ns_cmp_lt_u32 s47, 2\ns_cselect_b64 vcc, -1, 0\nv_cndmask_b32 v240, v240, v241, vcc")
        e(f"s_lshl_b32 s47, s24, 8\ns_add_u32 s47, s47, 135168\nv_add_u32 v245, s47, v245\nds_write_b32 v245, v240")
        e(f"{L('m3')}:")
    if l2pf:
        e(f"s_and_b32 s47, s50, 1\ns_cmp_lg_u32 s47, s65\ns_cbranch_scc1 {L('nopf')}")
        e(f"buffer_load_dword v248, v250, s[56:59], 0 offen{asc}\nbuffer_load_dword v248, v249, s[60:63], 0 offen")
        e(f"v_add_u32 v250, 256, v250\nv_add_u32 v249, {2*64*ldb*2}, v249")
        e(f"{L('nopf')}:")
    def sprinkle(seq, extra, start):
        out = []; n_ = 0; ex = list(extra)
        for x in seq:
            out.append(x)
            if x.startswith("v_mfma"):
                n_ += 1
                if n_ > start and ex: out.append(ex.pop(0))
        return out + ex
    tight = "loose" not in OPT
    if not tight: e(adv_s)
    e("s_waitcnt lgkmcnt(0)")
    seq = mix(mfmas(FA), reads(1, FB))
    if tight: seq = sprinkle(seq, adv_s.split("\n"), 0)
    last_rd = max(i for i, x in enumerate(seq) if x.startswith("ds_read"))
    tail = [x for x in seq[last_rd + 1:]]
    seq = seq[:last_rd + 1]
    av = list(adv_v)
    for x in tail:
        seq.append(x)
        if av and x.startswith("v_mfma"): seq.append(av.pop(0))
    seq += av
    for l in seq: e(l)
    e("s_waitcnt lgkmcnt(0)\ns_barrier")
    seqb = mix(mfmas(FB), reads(0, FA))
    if tight:
        seqb = sprinkle(seqb, ["s_sub_u32 s50, s50, 1", "s_cmp_lg_u32 s50, 0"], 1)
        for l in seqb: e(l)
        e(f"s_cbranch_scc1 {L('cloop')}")
    else:
        for l in seqb: e(l)
        e(f"s_sub_u32 s50, s50, 1\ns_cmp_lg_u32 s50, 0\ns_cbranch_scc1 {L('cloop')}")
    e("s_waitcnt lgkmcnt(0)")
    for l in mix(mfmas(FA), reads(1, FB)): e(l)
    e("s_waitcnt lgkmcnt(0)")
    if epi != "qkv": e("s_barrier")
    for l in mfmas(FB): e(l)
    if stamps[1] is not None: k.st(stamps[1])
    T = FA
    def acc(i, j): return ACC + 4 * (j * nt + i)
    def pack_pair(ta, tb, dst):
        e(f"v_cvt_pk_bf16_f32 v{dst}, v{ta}, v{ta+1}\nv_cvt_pk_bf16_f32 v{dst+1}, v{ta+2}, v{ta+3}")
        e(f"v_cvt_pk_bf16_f32 v{dst+2}, v{tb}, v{tb+1}\nv_cvt_pk_bf16_f32 v{dst+3}, v{tb+2}, v{tb+3}")
        e(f"v_permlane16_swap_b32 v{dst}, v{dst+2}\nv_permlane16_swap_b32 v{dst+1}, v{dst+3}")
    e("v_and_b32 v5, 1, v4\nv_lshlrev_b32 v5, 5, v5\nv_lshrrev_b32 v6, 1, v4\nv_lshlrev_b32 v6, 4, v6\nv_add_u32 v5, v5, v6")
    if epi == "qkv":
        e("v_lshlrev_b32 v6, 6, v3\nv_add_u32 v5, v5, v6")
        n = 0
        for p in range(nt // 2):
            if perm:
                e(f"s_mul_i32 s52, s43, 96\ns_add_u32 s52, s52, {32*p}\ns_cmp_lt_u32 s52, 64\ns_cselect_b32 s53, {f32(LOG2E * 32 ** -0.5)}, 1.0")
                e("s_lshr_b32 s54, s52, 6\ns_lshl_b32 s54, s54, 5\ns_bfe_u32 s52, s52, 0x10005\ns_add_u32 s52, s52, s54\ns_lshl_b32 s54, s26, 1\ns_add_u32 s52, s52, s54")
                e("s_lshl_b32 s52, s52, 17\ns_lshl_b32 s54, s44, 6\ns_add_u32 s52, s52, s54")
            else:
                e(f"s_add_u32 s52, s46, {32*p}\ns_cmp_lt_u32 s52, 1024\ns_cselect_b32 s53, {f32(LOG2E * 32 ** -0.5)}, 1.0")
                e(f"s_lshl_b32 s52, s52, 12\ns_lshl_b32 s54, s44, 6\ns_add_u32 s52, s52, s54")
            for j in range(mt):
                ta, tb = acc(2 * p, j), acc(2 * p + 1, j)
                for r in range(4):
                    e(f"v_mul_f32 v{ta+r}, s53, v{ta+r}\nv_mul_f32 v{tb+r}, s53, v{tb+r}")
                d = T + 4 * (n % 8); n += 1
                pack_pair(ta, tb, d)
                e(f"buffer_store_dwordx4 {v(d,4)}, v5, s[12:15], s52 offen offset:{j*1024}{SCS}")
        e(f"s_add_u32 s35, s26, {C_QKV}")
        k.signal("qkv", 4, 35, 16, (6, lambda: e(f"s_mul_i32 s33, s26, 6\nv_add_u32 v6, s33, v2\nv_lshrrev_b32 v7, 5, v6\nv_and_b32 v6, 31, v6\nv_lshlrev_b32 v6, 8, v6"
                                                        f"\nv_lshlrev_b32 v7, 6, v7\nv_add_u32 v6, v6, v7"
                                                        f"\ns_lshl_b32 s33, s25, 2\ns_add_u32 s33, s33, {FL['att']}\nv_add_u32 v6, s33, v6")))

    elif epi == "ffn1":
        ST = FA; UU = FA + 8; BB = FA + 36; TMP = FA + 64; T = FA + 72
        e(f"s_lshl_b32 s47, s42, 6\nv_add_u32 v6, s47, v3\nv_lshlrev_b32 v6, 3, v6\nv_add_u32 v6, {XL}, v6")
        for j in range(mt): e(f"ds_read_b64 {v(ST+2*j,2)}, v6 offset:{j*128}")
        e(f"s_mul_i32 s47, s43, {TN*4}\ns_add_u32 s47, s47, {XL+1024}\nv_lshlrev_b32 v7, 4, v4\nv_add_u32 v7, s47, v7")
        for i in range(nt):
            e(f"ds_read_b128 {v(UU+4*i,4)}, v7 offset:{i*64}\nds_read_b128 {v(BB+4*i,4)}, v7 offset:{896+i*64}")
        e("s_lshl_b32 s47, s42, 6\nv_add_u32 v6, s47, v3\nv_lshlrev_b32 v6, 6, v6\nv_lshrrev_b32 v7, 1, v4\nv_lshlrev_b32 v7, 4, v7\nv_add_u32 v6, v6, v7")
        e("v_and_b32 v7, 1, v4\nv_lshlrev_b32 v5, 5, v7\nv_add_u32 v5, v5, v6")
        e("v_lshlrev_b32 v7, 10, v7\nv_add_u32 v6, v6, v7\ns_lshl_b32 s47, s43, 5\nv_add_u32 v6, s47, v6")
        e(f"s_mul_i32 s48, s25, 112\ns_mul_i32 s47, s26, 7\ns_add_u32 s48, s48, s47\ns_lshl_b32 s48, s48, 13")
        e(f"s_add_u32 s53, s48, {3*8192}")
        e("s_waitcnt lgkmcnt(0)")
        def ln(i, j, t):
            a_ = acc(i, j)
            for h_ in range(2):
                e(f"v_pk_fma_f32 {v(t+2*h_,2)}, {v(ST+2*j,2)}, {v(UU+4*i+2*h_,2)}, {v(BB+4*i+2*h_,2)} op_sel_hi:[0,1,1] neg_lo:[1,0,0] neg_hi:[1,0,0]")
            for h_ in range(2):
                e(f"v_pk_fma_f32 {v(a_+2*h_,2)}, {v(a_+2*h_,2)}, {v(ST+2*j,2)}, {v(t+2*h_,2)} op_sel:[0,1,0]")
        cnt = [0]
        def put(ta, tb, addr, soff, off):
            d = T + 4 * (cnt[0] % 4); cnt[0] += 1
            e(f"v_cvt_pk_bf16_f32 v{d}, v{ta}, v{ta+1}\nv_cvt_pk_bf16_f32 v{d+1}, v{ta+2}, v{ta+3}")
            e(f"v_cvt_pk_bf16_f32 v{d+2}, v{tb}, v{tb+1}\nv_cvt_pk_bf16_f32 v{d+3}, v{tb+2}, v{tb+3}")
            for q in range(4): e(f"v_pk_max_i16 v{d+q}, v{d+q}, 0")
            e(f"v_permlane16_swap_b32 v{d}, v{d+2}\nv_permlane16_swap_b32 v{d+1}, v{d+3}")
            e(f"buffer_store_dwordx4 {v(d,4)}, {addr}, s[12:15], {soff} offen offset:{off}{SCS}")
        XA = 139264; XR = T + 16
        e(f"s_lshl_b32 s47, s24, 10\nv_lshlrev_b32 v7, 4, v2\nv_add_u32 v7, s47, v7\nv_add_u32 v7, {XA}, v7")
        e(f"s_cmp_eq_u32 s43, 1\ns_cbranch_scc1 {L('ep1')}")
        for wn_ in range(2):
            if wn_ == 1: e(f"{L('ep1')}:\ns_add_u32 s48, s48, {4*8192}")
            single = 6 if wn_ == 0 else 0
            pairs = [(0, 1), (2, 3), (4, 5)] if wn_ == 0 else [(1, 2), (3, 4), (5, 6)]
            mine = (0, 1) if wn_ == 0 else (2, 3); give = (2, 3) if wn_ == 0 else (0, 1)
            for jj in (0, 2):
                ln(single, jj, TMP); ln(single, jj + 1, TMP + 4)
            for j in range(4):
                a_ = acc(single, j)
                e(f"v_cvt_pk_bf16_f32 v{XR+2*j}, v{a_}, v{a_+1}\nv_cvt_pk_bf16_f32 v{XR+2*j+1}, v{a_+2}, v{a_+3}")
            for q in range(8): e(f"v_pk_max_i16 v{XR+q}, v{XR+q}, 0")
            e(f"ds_write_b128 v7, {v(XR+2*give[0],4)}\ns_waitcnt lgkmcnt(0)")
            e(f"s_lshl_b32 s47, s24, 2\ns_add_u32 s47, s47, {CTL+48}\nv_mov_b32 v{TMP}, s47\nv_mov_b32 v{TMP+1}, 1\nds_write_b32 v{TMP}, v{TMP+1}")
            for pi, (ia, ib) in enumerate(pairs):
                for j in range(mt):
                    ln(ia, j, TMP); ln(ib, j, TMP + 4)
                    put(acc(ia, j), acc(ib, j), "v5", "s48", j * 1024)
                if pi < 2: e("s_add_u32 s48, s48, 8192")
            tg = f"x{wn_}"
            e(f"s_xor_b32 s47, s24, 1\ns_lshl_b32 s47, s47, 2\ns_add_u32 s47, s47, {CTL+48}\nv_mov_b32 v{TMP}, s47\ns_mov_b32 s33, 0")
            e(f"{L('xw'+tg)}:\nds_read_b32 v{TMP+1}, v{TMP}\ns_waitcnt lgkmcnt(0)\nv_readfirstlane_b32 s34, v{TMP+1}")
            e(f"s_cmp_lg_u32 s34, 0\ns_cbranch_scc1 {L('xx'+tg)}\ns_add_u32 s33, s33, 1\ns_cmp_lt_u32 s33, {SPIN_MAX}\ns_cbranch_scc1 {L('xw'+tg)}")
            e(f"{L('xx'+tg)}:")
            e(f"v_xor_b32 v7, 1024, v7\nds_read_b128 {v(TMP,4)}, v7\ns_waitcnt lgkmcnt(0)")
            for n_, j in enumerate(mine):
                d = T + 4 * (cnt[0] % 4); cnt[0] += 1
                own = XR + 2 * j; oth = TMP + 2 * n_
                a0, b0 = (own, oth) if wn_ == 0 else (oth, own)
                e(f"v_mov_b32 v{d}, v{a0}\nv_mov_b32 v{d+1}, v{a0+1}\nv_mov_b32 v{d+2}, v{b0}\nv_mov_b32 v{d+3}, v{b0+1}")
                e(f"v_permlane16_swap_b32 v{d}, v{d+2}\nv_permlane16_swap_b32 v{d+1}, v{d+3}")
                e(f"buffer_store_dwordx4 {v(d,4)}, v5, s[12:15], s53 offen offset:{j*1024}{SCS}")
            if wn_ == 0: e(f"s_branch {L('ep2')}")
        e(f"{L('ep2')}:")
        if "stf1" in OPT: k.st(12)
        e(f"s_add_u32 s35, s25, {C_F1}")
        k.signal("f1", 4, 35, 16, (16, lambda: e(f"s_lshl_b32 s33, s25, 11\ns_lshl_b32 s34, s26, 2\ns_add_u32 s33, s33, s34\ns_add_u32 s33, s33, {FL['f2']}\nv_lshlrev_b32 v6, 7, v2\nv_add_u32 v6, s33, v6")) if "nos2" in OPT else
                 (1, lambda: e(f"s_lshl_b32 s33, s25, 1\ns_lshr_b32 s34, s26, 3\ns_add_u32 s33, s33, s34\ns_lshl_b32 s33, s33, 7\ns_and_b32 s34, s26, 7\ns_lshl_b32 s34, s34, 2\ns_add_u32 s33, s33, s34\ns_add_u32 s33, s33, {FL['f2']}\nv_mov_b32 v6, s33")))
        if "stf1" in OPT: k.st(13)
    elif s2:
        e(f"s_cmp_eq_u32 s27, 0\ns_cbranch_scc1 {L('noswap')}")
        for j in range(mt):
            for r in range(8): e(f"v_swap_b32 v{acc(0,j)+r}, v{acc(2,j)+r}")
        e(f"{L('noswap')}:")
        k.srd(56, P_WS, WS_XCH, 128 * 2 * 4 * 8192)
        e("s_lshl_b32 s47, s25, 3\ns_add_u32 s47, s47, s26\ns_lshl_b32 s47, s47, 1")
        e("s_xor_b32 s48, s27, 1\ns_add_u32 s48, s48, s47\ns_lshl_b32 s49, s48, 2\ns_add_u32 s49, s49, s24\ns_lshl_b32 s49, s49, 13")
        e("s_add_u32 s52, s47, s27\ns_lshl_b32 s53, s52, 2\ns_add_u32 s53, s53, s24\ns_lshl_b32 s53, s53, 13")
        e("v_lshlrev_b32 v7, 4, v2")
        for j in range(mt):
            if j == 2: e("s_add_u32 s49, s49, 4096")
            e(f"buffer_store_dwordx4 {v(acc(2,j),4)}, v7, s[56:59], s49 offen offset:{(j%2)*2048}{SCS}")
            e(f"buffer_store_dwordx4 {v(acc(3,j),4)}, v7, s[56:59], s49 offen offset:{(j%2)*2048+1024}{SCS}")
        e("s_waitcnt vmcnt(0)")
        e(f"s_lshl_b32 s48, s48, 7\ns_lshl_b32 s54, s24, 2\ns_add_u32 s48, s48, s54\ns_add_u32 s48, s48, {FL['xch']}\nv_mov_b32 v6, s48\nv_mov_b32 v249, 1")
        e(f"s_mov_b64 exec, 1\nbuffer_store_dword v249, v6, {s(CNT,4)}, 0 offen sc1\ns_mov_b64 exec, -1")
        e(f"s_lshl_b32 s52, s52, 7\ns_add_u32 s52, s52, s54\ns_add_u32 s52, s52, {FL['xch']}\nv_mov_b32 v6, s52\ns_mov_b32 s33, 0\ns_mov_b64 exec, 1")
        e(f"{L('xpoll')}:")
        e(f"buffer_load_dword v249, v6, {s(CNT,4)}, 0 offen sc1\ns_waitcnt vmcnt(0)\nv_readfirstlane_b32 s34, v249")
        e(f"s_cmp_eq_u32 s34, 1\ns_cbranch_scc1 {L('xdone')}\ns_add_u32 s33, s33, 1\ns_cmp_lt_u32 s33, {SPIN_MAX}\ns_cbranch_scc1 {L('xpoll')}")
        e(f"{L('xdone')}:\ns_mov_b64 exec, -1")
        for j in range(mt):
            if j == 2: e("s_add_u32 s53, s53, 4096")
            e(f"buffer_load_dwordx4 {v(acc(2,j),4)}, v7, s[56:59], s53 offen offset:{(j%2)*2048}{SC}")
            e(f"buffer_load_dwordx4 {v(acc(3,j),4)}, v7, s[56:59], s53 offen offset:{(j%2)*2048+1024}{SC}")
        XT = T + 32
        for r in range(0 if CHAIN() else 8):
            e(f"v_add_f32 v{G+r}, v{G+r}, v{G+8+r}\nv_add_f32 v{G+16+r}, v{G+16+r}, v{G+24+r}\nv_add_f32 v{G+r}, v{G+r}, v{G+16+r}")
            round_bf16(e, G + r)
        e(f"v_add_u32 v6, s44, v3\nv_lshlrev_b32 v6, 11, v6\ns_lshl_b32 s47, s46, 1\nv_add_u32 v6, s47, v6\nv_add_u32 v5, v5, v6")
        for j in range(mt):
            e(f"s_waitcnt vmcnt({2*(mt-1-j) + j})")
            for q in range(4): e(f"v_pk_add_f32 {v(acc(0,j)+2*q,2)}, {v(acc(0,j)+2*q,2)}, {v(acc(2,j)+2*q,2)}")
            e(f"s_mov_b32 s48, {j*16*2048}")
            d = T + 4 * (j % 2)
            for i in range(2):
                a0 = acc(i, j); x0 = EP + 4 * j + 2 * i
                for q in range(2):
                    e(f"v_lshlrev_b32 v{XT+2*q}, 16, v{x0+q}\nv_and_b32 v{XT+2*q+1}, 0xffff0000, v{x0+q}")
                for q in range(2):
                    e(f"v_pk_fma_f32 {v(a0+2*q,2)}, {v(a0+2*q,2)}, {v(G+4*i+2*q,2)}, {v(XT+2*q,2)}")
            pack_pair(acc(0, j), acc(1, j), d)
            e(f"buffer_store_dwordx4 {v(d,4)}, v5, s[12:15], s48 offen{' sc1' if 'outsc1' in OPT else ('' if 'outplain' in OPT else ' nt')}")
    else:
        if not CHAIN():
            ML = 135168
            e(f"s_lshl_b32 s47, s43, 7\nv_lshlrev_b32 v6, 4, v4\nv_add_u32 v6, s47, v6\nv_add_u32 v6, {ML}, v6")
            for i in range(nt):
                e(f"ds_read_b128 {v(G+4*i,4)}, v6 offset:{i*64}\nds_read_b128 {v(GG+4*i,4)}, v6 offset:{256+i*64}")
            e(f"v_mul_u32_u24 v6, {(65536+27)//28}, v2\nv_lshrrev_b32 v6, 16, v6\nv_min_u32 v6, 1, v6\ns_lshl_b32 s47, s24, 4\nv_add_u32 v6, s47, v6\nv_lshlrev_b32 v6, 2, v6\nv_add_u32 v6, {ML+512}, v6")
            for i in range(8):
                e(f"ds_read_b32 v{W1R+32+i}, v6 offset:{i*8}\nds_read_b32 v{W1R+40+i}, v6 offset:{256+i*8}")
            e("s_waitcnt lgkmcnt(0)")
        e("s_waitcnt vmcnt(0)")
        XT = T + 32
        e(f"v_add_u32 v6, s44, v3\nv_lshlrev_b32 v6, 11, v6\ns_lshl_b32 s47, s46, 1\nv_add_u32 v6, s47, v6\nv_add_u32 v5, v5, v6")
        if epi == "wo":
            k.srd(16, P_WS, WS_XG, S * D * 2); k.srd(60, P_WS, WS_STAT, 32 * S * 8)
            if CHAIN():
                for r in range(4 * nt):
                    e(f"v_add_f32 v{GG+r}, 1.0, v{GG+r}"); round_bf16(e, GG + r)
            e(f"s_lshl_b32 s49, s26, 1\ns_add_u32 s49, s49, s43\ns_lshl_b32 s49, s49, 14\ns_lshl_b32 s50, s44, 3\ns_add_u32 s49, s49, s50")
            e("v_lshlrev_b32 v1, 3, v3\nv_and_b32 v6, 1, v4\nv_lshlrev_b32 v6, 2, v6\nv_add_u32 v1, v1, v6")
            e("s_lshl_b32 s47, s25, 4\ns_add_u32 s47, s47, s26\ns_lshl_b32 s47, s47, 2\ns_add_u32 s47, s47, s24\ns_lshl_b32 s47, s47, 12\nv_lshlrev_b32 v7, 4, v2\nv_mov_b32 v253, v7")
        for j in range(mt):
            e(f"s_mov_b32 s48, {j*16*2048}")
            d = T + 4 * (j % 2); d2 = T + 8 + 4 * (j % 2); SM = T + 16 + 4 * (j % 2)
            for i in range(nt):
                a0 = acc(i, j); x0 = EP + 2 * (j * nt + i)
                for q in range(2):
                    e(f"v_lshlrev_b32 v{XT+2*q}, 16, v{x0+q}\nv_and_b32 v{XT+2*q+1}, 0xffff0000, v{x0+q}")
                for q in range(2):
                    e(f"v_pk_fma_f32 {v(a0+2*q,2)}, {v(a0+2*q,2)}, {v(G+4*i+2*q,2)}, {v(XT+2*q,2)}")
            ta, tb = acc(0, j), acc(1, j)
            e(f"v_cvt_pk_bf16_f32 v{d}, v{ta}, v{ta+1}\nv_cvt_pk_bf16_f32 v{d+1}, v{ta+2}, v{ta+3}")
            e(f"v_cvt_pk_bf16_f32 v{d+2}, v{tb}, v{tb+1}\nv_cvt_pk_bf16_f32 v{d+3}, v{tb+2}, v{tb+3}")
            if epi == "ffn2":
                e(f"v_permlane16_swap_b32 v{d}, v{d+2}\nv_permlane16_swap_b32 v{d+1}, v{d+3}")
                e(f"buffer_store_dwordx4 {v(d,4)}, v5, s[12:15], s48 offen")
                continue
            for q in range(2):
                e(f"v_pk_mul_f32 {v(XT+2*q,2)}, {v(ta+2*q,2)}, {v(GG+2*q,2)}\nv_pk_mul_f32 {v(XT+4+2*q,2)}, {v(tb+2*q,2)}, {v(GG+4+2*q,2)}")
            for q in range(4): e(f"v_cvt_pk_bf16_f32 v{d2+q}, v{XT+2*q}, v{XT+2*q+1}")
            e(f"v_permlane16_swap_b32 v{d2}, v{d2+2}\nv_permlane16_swap_b32 v{d2+1}, v{d2+3}")
            e(f"buffer_store_dwordx4 {v(d2,4)}, v5, s[16:19], s48 offen{SCS}")
            e(f"buffer_store_dwordx4 {v(d,4)}, v253, s[12:15], s47 offen offset:{j*1024}{SCS}")
            e(f"v_pk_add_f32 {v(SM,2)}, {v(ta,2)}, {v(ta+2,2)}\nv_pk_mul_f32 {v(SM+2,2)}, {v(ta,2)}, {v(ta,2)}")
            e(f"v_pk_add_f32 {v(SM,2)}, {v(SM,2)}, {v(tb,2)}\nv_pk_fma_f32 {v(SM+2,2)}, {v(ta+2,2)}, {v(ta+2,2)}, {v(SM+2,2)}")
            e(f"v_pk_add_f32 {v(SM,2)}, {v(SM,2)}, {v(tb+2,2)}\nv_pk_fma_f32 {v(SM+2,2)}, {v(tb,2)}, {v(tb,2)}, {v(SM+2,2)}")
            e(f"v_pk_fma_f32 {v(SM+2,2)}, {v(tb+2,2)}, {v(tb+2,2)}, {v(SM+2,2)}")
            e(f"v_add_f32 v{SM}, v{SM}, v{SM+1}\nv_add_f32 v{SM+2}, v{SM+2}, v{SM+3}")
            e(f"v_permlane16_swap_b32 v{SM}, v{SM+2}\nv_add_f32 v{SM}, v{SM}, v{SM+2}\nv_mov_b32 v{SM+1}, v{SM}")
            e(f"v_permlane32_swap_b32 v{SM}, v{SM+1}\nv_add_f32 v{SM}, v{SM}, v{SM+1}")
            e(f"s_mov_b32 exec_lo, -1\ns_mov_b32 exec_hi, 0\nbuffer_store_dword v{SM}, v1, s[60:63], s49 offen offset:{j*128}{SCS}\ns_mov_b64 exec, -1")
        if epi == "wo":
            if "stwo" in OPT: k.st(12)
            e(f"s_add_u32 s35, s25, {C_WO}")
            k.signal("wo", 4, 35, 16, (4, lambda: e(f"s_lshl_b32 s33, s25, 9\ns_lshl_b32 s34, s26, 2\ns_add_u32 s33, s33, s34\ns_add_u32 s33, s33, {FL['f1']}\nv_lshlrev_b32 v6, 7, v2\nv_add_u32 v6, s33, v6")))
            if "stwo" in OPT: k.st(13)
            UA = ACC
            for r in range(16): e(f"v_mov_b32 v{UA+r}, 0")
            for i in range(8):
                g_ = W1R + 32 + i; s_ = W1R + 40 + i
                if CHAIN():
                    e(f"v_add_f32 v{g_}, 1.0, v{g_}"); round_bf16(e, g_)
                for q in range(4):
                    w_ = W1R + 4 * i + q
                    e(f"v_lshlrev_b32 v6, 16, v{w_}\nv_and_b32 v7, 0xffff0000, v{w_}")
                    e(f"v_fmac_f32 v{UA+2*q}, v{g_}, v6\nv_fmac_f32 v{UA+2*q+1}, v{g_}, v7\nv_fmac_f32 v{UA+8+2*q}, v{s_}, v6\nv_fmac_f32 v{UA+8+2*q+1}, v{s_}, v7")
            UL = 139264
            e(f"v_mul_u32_u24 v5, {(65536+27)//28}, v2\nv_lshrrev_b32 v5, 16, v5\nv_mul_u32_u24 v6, 28, v5\nv_sub_u32 v6, v2, v6")
            e(f"s_lshl_b32 s32, s24, 1\nv_add_u32 v5, s32, v5\nv_mul_u32_u24 v5, 1792, v5\nv_lshlrev_b32 v6, 5, v6\nv_add_u32 v5, v5, v6\nv_add_u32 v5, {UL}, v5")
            e("v_cmp_gt_u32 vcc, 56, v2\ns_and_saveexec_b64 s[34:35], vcc")
            e(f"ds_write_b128 v5, {v(UA,4)}\nds_write_b128 v5, {v(UA+4,4)} offset:16\nds_write_b128 v5, {v(UA+8,4)} offset:896\nds_write_b128 v5, {v(UA+12,4)} offset:912")
            e("s_mov_b64 exec, s[34:35]\ns_waitcnt lgkmcnt(0)")
            e(f"v_mov_b32 v6, {L_SIG['ub']}\nv_mov_b32 v7, 1\ns_mov_b64 exec, 1")
            e("ds_add_rtn_u32 v7, v6, v7\ns_waitcnt lgkmcnt(0)\nv_readfirstlane_b32 s32, v7\ns_mov_b64 exec, -1")
            e(f"s_cmp_lg_u32 s32, 3\ns_cbranch_scc1 {L('ubx')}")
            e(f"v_lshlrev_b32 v5, 2, v2\nv_add_u32 v5, {UL}, v5")
            for m_ in range(7):
                for rr in range(8): e(f"ds_read_b32 v{UA+rr}, v5 offset:{rr*1792+m_*256}")
                e("s_waitcnt lgkmcnt(0)")
                for rr in range(1, 8): e(f"v_add_f32 v{UA}, v{UA}, v{UA+rr}")
                e(f"v_mov_b32 v{UA+16+m_}, v{UA}")
            k.srd(16, P_WS, WS_UB, 16 * 2 * DFF * 4)
            e(f"s_mul_i32 s49, s58, {2*DFF*4}\ns_mul_i32 s50, s59, 896\ns_add_u32 s49, s49, s50")
            for m_ in range(7):
                e(f"v_add_u32 v5, {64*m_}, v2\nv_cmp_le_u32 vcc, 224, v5\nv_mov_b32 v6, {DFF*4 - 896}\nv_cndmask_b32 v6, 0, v6, vcc\nv_lshl_add_u32 v5, v5, 2, v6")
                e(f"buffer_store_dword v{UA+16+m_}, v5, s[16:19], s49 offen{SCS}")
            e("s_waitcnt vmcnt(0)")
            e(f"s_add_u32 s35, s59, {C_UB}\ns_mov_b64 exec, 1")
            k.arrive("ub", 35, 16)
            e("s_mov_b64 exec, -1")
            e(f"{L('ubx')}:")
    e(f"s_branch {nxt_c}")
    e(f"{L('l')}:")
    if s2: tile_map_s2(e)
    else: tile_map(e, xr, xc)
    k.srd(4, P_WS, srcA, sizeA); k.srd(8, pB, 0, sizeB)
    e("s_sub_u32 s42, s24, 4")
    LA = 8
    lda2, ldb2 = lda * 2, ldb * 2
    blocked = epi in ("ffn2", "ffn2s")
    if blocked:
        e(f"s_mul_i32 s43, s25, {112*8192}\ns_mul_i32 s44, s42, {nAw*8*64}\ns_add_u32 s43, s43, s44")
        e("v_lshrrev_b32 v3, 3, v2\nv_lshlrev_b32 v3, 6, v3\nv_add_u32 v3, s43, v3")
        e("v_and_b32 v4, 7, v2\nv_lshrrev_b32 v5, 4, v2")
        for i in range(nAw):
            e(f"v_xor_b32 v6, {(i&1)*4}, v5\nv_xor_b32 v6, v6, v4\nv_lshrrev_b32 v7, 2, v6\nv_lshlrev_b32 v7, 13, v7\nv_and_b32 v6, 3, v6\nv_lshlrev_b32 v6, 4, v6")
            e(f"v_add3_u32 v6, v6, v7, v3\nv_add_u32 v{LA+i}, {i*8*64}, v6")
    else:
        e(f"s_lshl_b32 s43, s25, 7\ns_mul_i32 s44, s42, {nAw*8}\ns_add_u32 s43, s43, s44")
        e(f"v_lshrrev_b32 v3, 3, v2\nv_add_u32 v3, s43, v3\ns_mov_b32 s45, {lda2}\nv_mul_lo_u32 v3, s45, v3")
        e("v_and_b32 v4, 7, v2\nv_lshrrev_b32 v5, 4, v2")
        for i in range(nAw):
            e(f"v_xor_b32 v6, {(i&1)*4}, v5\nv_xor_b32 v6, v6, v4\nv_lshlrev_b32 v6, 4, v6\nv_add_u32 v6, v6, v3")
            e(f"v_add_u32 v{LA+i}, {i*8*lda2}, v6")
    ASTEP = 16384 if blocked else BK * 2
    magic = (65536 + cpr - 1) // cpr
    assert all((p * magic) >> 16 == p // cpr for p in range(nBw * 64)) and nBw * 64 == 16 * cpr
    e(f"s_mul_i32 s43, s42, {16*ldb2}\ns_mul_i32 s44, s26, {128 if perm else BN*2}\ns_add_u32 s43, s43, s44")
    for i in range(nBw):
        e(f"v_add_u32 v3, {i*64}, v2\nv_mul_u32_u24 v4, {magic}, v3\nv_lshrrev_b32 v4, 16, v4")
        e(f"v_mul_u32_u24 v5, {cpr}, v4\nv_sub_u32 v3, v3, v5")
        if hbits == 2: e("v_and_b32 v5, 2, v4\nv_lshrrev_b32 v6, 1, v4\nv_and_b32 v6, 4, v6\nv_or_b32 v5, v5, v6")
        elif hbits == 1: e("v_lshrrev_b32 v5, 2, v4\nv_and_b32 v5, 2, v5")
        else: e("v_and_b32 v5, 3, v4\nv_lshrrev_b32 v6, 1, v4\nv_and_b32 v6, 4, v6\nv_or_b32 v5, v5, v6\nv_lshlrev_b32 v5, 1, v5")
        e("v_xor_b32 v3, v3, v5")
        if perm: e("v_lshrrev_b32 v5, 3, v3\nv_and_b32 v3, 7, v3\nv_lshlrev_b32 v5, 7, v5\nv_add_u32 v3, v3, v5")
        e(f"v_lshlrev_b32 v3, 4, v3\ns_mov_b32 s45, {ldb2}\nv_mul_lo_u32 v4, s45, v4\nv_add_u32 v3, v3, v4")
        e(f"v_add_u32 v{LA+nAw+i}, s43, v3")
    e(f"s_mul_i32 s46, s42, {nAw*1024}")
    e(f"s_mul_i32 s47, s42, {nBw*1024}\ns_add_u32 s47, s47, {nA*1024}")
    def issue_x(lds_s, off_s):
        for i in range(nAw):
            e(f"s_add_u32 m0, {lds_s}, {i*1024}")
            e(f"buffer_load_dwordx4 v{LA+i}, s[4:7], {off_s} offen{asc} lds")
    def issue_w(lds_s, off_s):
        for i in range(nBw):
            e(f"s_add_u32 m0, {lds_s}, {i*1024}")
            e(f"buffer_load_dwordx4 v{LA+nAw+i}, s[8:11], {off_s} offen lds")
    if s2: e(f"s_mul_i32 s62, s27, {nk*ASTEP}\ns_mul_i32 s63, s27, {nk*BK*ldb2}")
    else: e("s_mov_b32 s62, 0\ns_mov_b32 s63, 0")
    def w_prologue():
        for st in range(NS - 1):
            e(f"s_add_u32 s52, s47, {st*SB}\ns_add_u32 s49, s63, {st*BK*ldb2}")
            issue_w("s52", "s49")
    if dep:
        base, target, kind = dep
        e(f"s_lshr_b32 s35, s25, 1\ns_add_u32 s35, s35, {base}" if kind == "rb2" else f"s_add_u32 s35, s25, {base}")
        if "wfirst" in OPT:
            w_prologue()
            k.dep_wait_loaders(tag, 35, target, None)
        else:
            e(f"s_cmp_eq_u32 s24, 4\ns_cbranch_scc1 {L('w4a')}")
            w_prologue()
            e(f"{L('w4a')}:")
            if hbar and "nowq" not in OPT:
                e(f"s_cmp_eq_u32 s24, 4\ns_cbranch_scc1 {L('nowqpf')}")
                e("s_mul_i32 s43, s2, 3\ns_add_u32 s43, s43, s24\ns_sub_u32 s43, s43, 5\ns_lshl_b32 s43, s43, 13\nv_lshlrev_b32 v3, 7, v2")
                e("buffer_load_dword v253, v3, s[8:11], s43 offen")
                e(f"{L('nowqpf')}:")
            if hbar: e("s_barrier")
            k.dep_wait_loaders(tag, 35, target, None)
            e(f"s_cmp_lg_u32 s24, 4\ns_cbranch_scc1 {L('w4b')}")
            w_prologue()
            e(f"{L('w4b')}:")
        if tag == "f1" and "stwo" in OPT: k.st(14, 4)
        if tag == "wo" and "statt" in OPT: k.st(15, 4)
        if tag == "f2" and "stf1" in OPT: k.st(14, 4)
    else:
        w_prologue()
    for st in range(NS - 1):
        e(f"s_add_u32 s51, s46, {st*SB}\ns_add_u32 s48, s62, {st*ASTEP}")
        issue_x("s51", "s48")
    e(f"s_add_u32 s48, s62, {(NS-1)*ASTEP}\ns_add_u32 s49, s63, {(NS-1)*BK*ldb2}\ns_mov_b32 s50, {(NS-1)*SB}")
    def issue():
        e("s_add_u32 s51, s50, s46\ns_add_u32 s52, s50, s47")
        issue_x("s51", "s48"); issue_w("s52", "s49")
        e(f"s_add_u32 s48, s48, {ASTEP}\ns_add_u32 s49, s49, {BK*ldb2}")
        e(f"s_add_u32 s50, s50, {SB}\ns_cmp_eq_u32 s50, {SB*NS}\ns_cselect_b32 s50, 0, s50")
    e(f"s_waitcnt vmcnt({nAw*(NS-2)})\ns_barrier")
    issue()
    e(f"s_waitcnt vmcnt({nAw*(NS-3) + nld})\ns_barrier" if NS >= 3 else "")
    issue()
    for t in range(2, NS - 1):
        e(f"s_waitcnt vmcnt({nAw*(NS-2-t) + nld*t})\ns_barrier")
        issue()
    done = max(2, NS - 1)
    e(f"s_mov_b32 s53, {nk-(NS-1)-done}")
    e(f"{L('lloop')}:")
    e(f"s_waitcnt vmcnt({nld*(NS-2)})\ns_barrier")
    issue()
    e(f"s_sub_u32 s53, s53, 1\ns_cmp_lg_u32 s53, 0\ns_cbranch_scc1 {L('lloop')}")
    nx = 0
    for t in range(NS - 1):
        e(f"s_waitcnt vmcnt({nld*(NS-2-t)+nx})\ns_barrier")
        if epi == "qkv" and t == 0 and "modall" not in OPT and "mrwo" not in OPT:
            nx = 16
            e(f"s_load_dwordx4 s[36:39], s[0:1], {KA_C}")
            e("s_and_b32 s58, s2, 3\ns_lshr_b32 s59, s2, 2\ns_add_u32 s59, s59, 32\ns_mov_b32 s64, s58\ns_mov_b32 s65, s59")
            e("v_subrev_u32 v3, 256, v0\nv_lshrrev_b32 v6, 3, v3\nv_and_b32 v7, 7, v3\nv_mov_b32 v22, v7")
            e("s_lshl_b32 s43, s58, 8\nv_add_u32 v6, s43, v6\nv_lshlrev_b32 v4, 1, v6")
            e("v_mul_u32_u24 v5, 12288, v6\nv_lshlrev_b32 v6, 4, v7\nv_add_u32 v5, v5, v6\ns_lshl_b32 s43, s59, 7\nv_add_u32 v5, s43, v5")
            e("s_waitcnt lgkmcnt(0)")
            k.srd(52, 36, 0, 2048); k.srd(60, 38, 0, 1024 * 6144 * 2)
            for i in range(8): e(f"buffer_load_ushort v{24+i}, v4, s[52:55], 0 offen offset:{i*64}")
            for i in range(8):
                e(f"s_mov_b32 s43, {i*32*12288}\nbuffer_load_dwordx4 {v(32+4*i,4)}, v5, s[60:63], s43 offen")
        if epi == "ffn1" and t == 0:
            nx = 32
            k.srd(56, P_WS, WS_STAT, 32 * S * 8); k.srd(60, P_WS, WS_UB, 16 * 2 * DFF * 4)
            e(f"s_cmp_ge_u32 s42, 2\ns_cbranch_scc1 {L('ubld')}")
            e(f"s_lshl_b32 s43, s42, 6\nv_add_u32 v3, s43, v2\ns_lshl_b32 s44, s25, 7\nv_add_u32 v4, s44, v3\nv_lshlrev_b32 v4, 3, v4")
            for sl in range(32):
                e(f"s_mov_b32 s45, {sl*S*8}\nbuffer_load_dwordx2 {v(32+2*sl,2)}, v4, s[56:59], s45 offen{SC}")
            e(f"s_branch {L('ldd')}")
            e(f"{L('ubld')}:")
            e(f"s_add_u32 s35, s26, {C_UB}")
            k.poll(tag + "u", 35, 16)
            if "alias" in OPT:
                e(f"v_mov_b32 v6, {C_ATTALL*256 - 128}")
                k.poll(tag + "a", None, 256)
            e(f"s_sub_u32 s43, s42, 2\ns_lshl_b32 s43, s43, 6\nv_add_u32 v3, s43, v2")
            e(f"s_mul_i32 s44, s26, {BN*4}\nv_lshlrev_b32 v4, 3, v3\nv_add_u32 v4, s44, v4")
            for kg in range(16):
                for w_ in range(2):
                    e(f"s_mov_b32 s45, {(kg*2+w_)*DFF*4}\nbuffer_load_dwordx2 {v(32+4*kg+2*w_,2)}, v4, s[60:63], s45 offen{SC}")
            e(f"{L('ldd')}:")
    if epi == "ffn1":
        e("s_waitcnt vmcnt(0)")
        e(f"s_cmp_ge_u32 s42, 2\ns_cbranch_scc1 {L('ubred')}")
        for sl in range(1, 32): e(f"v_add_f32 v32, v32, v{32+2*sl}\nv_add_f32 v33, v33, v{33+2*sl}")
        e(f"v_mul_f32 v32, {f32(1/1024)}, v32\nv_mul_f32 v33, {f32(1/1024)}, v33")
        e(f"v_fma_f32 v33, -v32, v32, v33\nv_max_f32 v33, 0, v33\nv_add_f32 v33, {f32(1e-5)}, v33\nv_rsq_f32 v33, v33")
        e("v_mul_f32 v32, v32, v33")
        e(f"v_lshlrev_b32 v4, 3, v3\nv_add_u32 v4, {XL}, v4\nds_write_b64 v4, v[32:33]")
        e(f"s_branch {L('redd')}")
        e(f"{L('ubred')}:")
        for kg in range(1, 16):
            for q in range(4): e(f"v_add_f32 v{32+q}, v{32+q}, v{32+4*kg+q}")
        e(f"v_lshlrev_b32 v4, 3, v3\nv_add_u32 v4, {XL+1024}, v4\nv_cmp_gt_u32 vcc, 112, v3\ns_and_saveexec_b64 s[44:45], vcc")
        e(f"ds_write_b64 v4, v[32:33]\nds_write_b64 v4, v[34:35] offset:896\ns_mov_b64 exec, s[44:45]")
        e(f"{L('redd')}:")
        e("s_waitcnt lgkmcnt(0)")
    if epi == "qkv" and "modall" not in OPT and "mrwo" not in OPT:
        gemv_finish(k, 24, 32, 64, 72)
        MRL = 139264
        e(f"s_sub_u32 s43, s24, 4\ns_lshl_b32 s43, s43, 8\nv_lshlrev_b32 v9, 5, v22\nv_add_u32 v9, s43, v9\nv_add_u32 v9, {MRL}, v9")
        e("s_mov_b64 exec, 0xff\nds_write_b128 v9, v[64:67]\nds_write_b128 v9, v[68:71] offset:16\ns_waitcnt lgkmcnt(0)")
        e(f"v_mov_b32 v6, {L_SIG['mr']}\nv_mov_b32 v8, 1\ns_mov_b64 exec, 1\nds_add_rtn_u32 v8, v6, v8\ns_waitcnt lgkmcnt(0)\nv_readfirstlane_b32 s43, v8\ns_mov_b64 exec, -1")
        e(f"s_cmp_lg_u32 s43, 3\ns_cbranch_scc1 {L('mrx')}")
        e(f"v_lshlrev_b32 v9, 2, v2\nv_add_u32 v10, {MRL}, v9")
        for w_ in range(4): e(f"ds_read_b32 v{12+w_}, v10 offset:{w_*256}")
        e("s_waitcnt lgkmcnt(0)\nv_add_f32 v12, v12, v13\nv_add_f32 v14, v14, v15\nv_add_f32 v12, v12, v14")
        k.srd(52, P_WS, WS_MODP, 4 * 6144 * 4)
        e("s_mul_i32 s43, s64, 24576\ns_lshl_b32 s44, s65, 8\ns_add_u32 s43, s43, s44")
        e(f"buffer_store_dword v12, v9, s[52:55], s43 offen{SCS}\ns_waitcnt vmcnt(0)")
        if "nochain" in OPT:
            e(f"v_mov_b32 v6, {C_MRALL*256}\nv_mov_b32 v8, 1\ns_mov_b64 exec, 1\nbuffer_atomic_add v8, v6, {s(CNT,4)}, 0 offen sc1\ns_mov_b64 exec, -1")
        else:
            k.srd(60, P_WS, WS_MODF, 6144 * 4)
            e(f"s_sub_u32 s45, s65, 32\ns_add_u32 s45, s45, {C_MR}\ns_lshl_b32 s45, s45, 8\nv_mov_b32 v6, s45\nv_mov_b32 v8, 1\ns_mov_b64 exec, 1")
            e(f"buffer_atomic_add v8, v6, {s(CNT,4)}, 0 offen sc0 sc1\ns_waitcnt vmcnt(0)\nv_readfirstlane_b32 s45, v8\ns_mov_b64 exec, -1")
            e(f"s_cmp_lg_u32 s45, 3\ns_cbranch_scc1 {L('mrx')}")
            for p_ in range(4):
                e(f"s_add_u32 s45, s44, {p_*24576}\nbuffer_load_dword v{12+p_}, v9, s[52:55], s45 offen{SC}")
            e("s_waitcnt vmcnt(0)\nv_add_f32 v12, v12, v13\nv_add_f32 v14, v14, v15\nv_add_f32 v12, v12, v14")
            round_bf16(e, 12)
            e(f"buffer_store_dword v12, v9, s[60:63], s44 offen{SCS}\ns_waitcnt vmcnt(0)")
            e(f"v_mov_b32 v6, {C_MRALL*256}\nv_mov_b32 v8, 1\ns_mov_b64 exec, 1")
            e(f"buffer_atomic_add v8, v6, {s(CNT,4)}, 0 offen sc0 sc1\ns_waitcnt vmcnt(0)\nv_readfirstlane_b32 s45, v8\ns_mov_b64 exec, -1")
            e(f"s_cmp_lg_u32 s45, 63\ns_cbranch_scc1 {L('mrx')}")
            e(f"v_lshlrev_b32 v6, 7, v2\nv_add_u32 v6, {FL['mr']}, v6\nv_mov_b32 v8, 1\ns_mov_b64 exec, 0xff\nbuffer_store_dword v8, v6, {s(CNT,4)}, 0 offen sc1\ns_mov_b64 exec, -1")
        e(f"{L('mrx')}:")
    if epi != "qkv": e("s_barrier")
    e(f"s_branch {nxt_l}")

def attn_phase(k, nxt_c, nxt_l, pf):
    e = k.e
    L = lambda n: k.lab("att_" + n)
    NSL = 3; KPS = 128; SBK = KPS * 64
    HB = 2 * SBK; SB = 2 * HB
    FLAG = NSL * SB
    e(f"{L('c')}:\n{L('l')}:")
    e("s_and_b32 s36, s2, 7\ns_lshr_b32 s37, s2, 3\ns_lshl_b32 s36, s36, 2\ns_lshr_b32 s38, s37, 3\ns_add_u32 s25, s36, s38")
    e("s_and_b32 s26, s37, 7")
    e("s_and_b32 s34, s24, 3\ns_lshr_b32 s27, s24, 2")
    e("s_mov_b32 s57, s34")
    e("s_lshl_b32 s40, s25, 17")
    e(f"s_add_u32 s32, s{P_WS}, {WS_QKV:#x}\ns_addc_u32 s33, s{P_WS+1}, 0\ns_add_u32 s32, s32, s40\ns_addc_u32 s33, s33, 0")
    k.srd(4, 32, 0, S * 64); k.srd(8, 32, 32 * S * 64, S * 64); k.srd(12, 32, 64 * S * 64, S * 64)
    k.srd(16, P_WS, WS_O, S * D * 2)
    QG, KH = 57, 27
    Q = 4 + 4; KF = 24; VF = 32
    NEG = 40; O = 72; LS = 104; SEL = 112
    SS = [[116, 132], [148, 164]]
    PP = [[180, 188], [196, 204]]
    AK0, AK1, AV, AN0, AN1, DK, DV = 212, 213, 214, 215, 216, 217, 218
    HH, QL = 219, 220
    T = 221
    PFD = 230
    e(f"v_and_b32 v{QL}, 31, v2\nv_lshrrev_b32 v{HH}, 5, v2")
    e(f"s_lshl_b32 s39, s26, 8\ns_lshl_b32 s40, s{QG}, 6\ns_add_u32 s39, s39, s40")
    e(f"v_lshrrev_b32 v{T}, 2, v2\ns_lshl_b32 s40, s{QG}, 5\nv_add_u32 v{T}, s40, v{T}\nv_lshlrev_b32 v{T}, 6, v{T}")
    e(f"v_and_b32 v{T+1}, 3, v2\nv_lshrrev_b32 v{T+2}, 4, v2\nv_xor_b32 v{T+1}, v{T+1}, v{T+2}\nv_lshlrev_b32 v{T+1}, 4, v{T+1}")
    e(f"v_add_u32 v{DK}, v{T}, v{T+1}")
    e(f"v_lshlrev_b32 v{DV}, 4, v2\ns_lshl_b32 s40, s{QG}, 11\nv_add_u32 v{DV}, s40, v{DV}")
    e(f"s_lshl_b32 s41, s{QG}, 11\ns_mul_i32 s40, s{KH}, {HB}\ns_add_u32 s41, s41, s40")
    e(f"s_mul_i32 s45, s{KH}, {S*32}")
    def addr_setup():
        e(f"s_mul_i32 s40, s{KH}, {HB}")
        e(f"v_lshrrev_b32 v{T}, 2, v{QL}\nv_and_b32 v{T}, 3, v{T}\nv_xor_b32 v{T}, v{T}, v{HH}\nv_lshlrev_b32 v{T}, 4, v{T}")
        e(f"v_lshlrev_b32 v{T+1}, 6, v{QL}\nv_add_u32 v{T+3}, v{T}, v{T+1}")
        e(f"v_add_u32 v{AK0}, s40, v{T+3}\nv_xor_b32 v{AK1}, 32, v{AK0}")
        e(f"v_and_b32 v{T}, 15, v2\nv_lshrrev_b32 v{T}, 2, v{T}\nv_lshlrev_b32 v{T+1}, 2, v{HH}\nv_add_u32 v{T}, v{T}, v{T+1}\nv_lshlrev_b32 v{T}, 6, v{T}")
        e(f"v_lshrrev_b32 v{T+1}, 4, v2\nv_and_b32 v{T+1}, 1, v{T+1}\nv_lshlrev_b32 v{T+1}, 5, v{T+1}\nv_add_u32 v{T}, v{T}, v{T+1}")
        e(f"v_and_b32 v{T+1}, 3, v2\nv_lshlrev_b32 v{T+1}, 3, v{T+1}\nv_add_u32 v{T}, v{T}, v{T+1}\nv_add_u32 v{T}, {SBK}, v{T}\nv_add_u32 v{AV}, s40, v{T}")
    addr_setup()
    e(f"v_lshrrev_b32 v{T}, 4, v2\nv_lshrrev_b32 v{T+1}, 2, v2\nv_xor_b32 v{T}, v{T}, v{T+1}\nv_and_b32 v{T}, 1, v{T}")
    e(f"v_cmp_eq_u32 vcc, 0, v{T}\nv_mov_b32 v{T+1}, 0x3f803f80")
    e(f"v_cndmask_b32 v{SEL}, 0, v{T+1}, vcc")
    for r in range(1, 4): e(f"v_mov_b32 v{SEL+r}, v{SEL}")
    def zero_acc():
        for r in range(32): e(f"v_mov_b32 v{O+r}, 0")
        for r in range(8): e(f"v_mov_b32 v{LS+r}, 0")
    zero_acc()
    for r in range(8): e(f"v_mov_b32 v{VF+r}, 0")
    for qb in range(2):
        for r in range(8): e(f"v_mov_b32 v{PP[1][qb]+r}, 0")
    e(f"s_cmp_lg_u32 s24, 4\ns_cbranch_scc1 {L('nodep')}")
    if "noflags" in OPT:
        e(f"v_lshlrev_b32 v6, 10, v2\ns_lshl_b32 s35, s25, 5\nv_add_u32 v6, s35, v6\nv_mul_u32_u24 v6, {(65536 + 191) // 192}, v6\nv_lshrrev_b32 v6, 16, v6")
        e(f"v_add_u32 v6, {C_QKV}, v6\nv_lshlrev_b32 v6, 8, v6")
        k.poll("att", None, 16, lanes=3)
    else:
        e(f"s_lshl_b32 s35, s25, 8\ns_add_u32 s35, s35, {FL['att']}")
        k.wait_flags("att", 48, 35)
    e(f"{L('nodep')}:")
    e("s_barrier")
    k.st(3)
    e(f"v_mov_b32 v{T}, {FLAG}\nv_mov_b32 v{T+1}, 0\nds_write_b32 v{T}, v{T+1}")
    e(f"v_add_u32 v{T}, s39, v{QL}\nv_lshlrev_b32 v{T}, 6, v{T}\nv_lshlrev_b32 v{T+1}, 4, v{HH}\nv_add_u32 v{T}, v{T}, v{T+1}")
    for qb in range(2):
        e(f"buffer_load_dwordx4 {v(Q+8*qb,4)}, v{T}, s[4:7], 0 offen offset:{qb*2048}{SC}")
        e(f"buffer_load_dwordx4 {v(Q+8*qb+4,4)}, v{T}, s[4:7], 0 offen offset:{qb*2048+32}{SC}")
    def dma(slot_sreg):
        e(f"s_add_u32 s43, {slot_sreg}, s41\ns_add_u32 s46, s42, s45")
        e(f"s_mov_b32 m0, s43\nbuffer_load_dwordx4 v{DK}, s[8:11], s46 offen{SC} lds")
        e(f"s_add_u32 m0, s43, {SBK}\nbuffer_load_dwordx4 v{DV}, s[12:15], s46 offen{SC} lds")
        e(f"s_add_u32 s46, s46, 1024\ns_add_u32 m0, s43, 1024\nbuffer_load_dwordx4 v{DK}, s[8:11], s46 offen{SC} lds")
        e(f"s_add_u32 m0, s43, {SBK+1024}\nbuffer_load_dwordx4 v{DV}, s[12:15], s46 offen{SC} lds")
        e(f"s_add_u32 s42, s42, {SBK}")
    def kread(a0, a1, t):
        return [f"ds_read_b128 {v(KF,4)}, v{a0} offset:{t*2048}", f"ds_read_b128 {v(KF+4,4)}, v{a1} offset:{t*2048}"]
    def vread(t):
        return [f"ds_read_b64_tr_b16 {v(VF+4*m+2*hh,2)}, v{AV} offset:{t*2048+(16*m+8*hh)*64}" for m in range(2) for hh in range(2)]
    def qk(qb, dst, c):
        return [f"v_mfma_f32_32x32x16_bf16 {v(dst,16)}, {v(KF,4)}, {v(Q+8*qb,4)}, {c}",
                f"v_mfma_f32_32x32x16_bf16 {v(dst,16)}, {v(KF+4,4)}, {v(Q+8*qb+4,4)}, {v(dst,16)}"]
    def pv(qb, P):
        o, l = O + 16 * qb, LS + 4 * qb
        return [f"v_mfma_f32_32x32x16_bf16 {v(o,16)}, {v(VF,4)}, {v(P,4)}, {v(o,16)}",
                f"v_mfma_f32_16x16x32_bf16 {v(l,4)}, {v(SEL,4)}, {v(P,4)}, {v(l,4)}",
                f"v_mfma_f32_32x32x16_bf16 {v(o,16)}, {v(VF+4,4)}, {v(P+4,4)}, {v(o,16)}",
                f"v_mfma_f32_16x16x32_bf16 {v(l,4)}, {v(SEL,4)}, {v(P+4,4)}, {v(l,4)}"]
    def lane_max16(src, dst, tmp):
        e(f"v_max3_f32 v{dst}, v{src}, v{src+1}, v{src+2}")
        for r in range(3, 15, 2): e(f"v_max3_f32 v{dst}, v{dst}, v{src+r}, v{src+r+1}")
        e(f"v_max_f32 v{dst}, v{dst}, v{src+15}")
        e(f"v_mov_b32 v{tmp}, v{dst}\nv_permlane32_swap_b32 v{tmp}, v{dst}\nv_max_f32 v{dst}, v{dst}, v{tmp}")
    NST = S // 2 // KPS
    HALF = S * 32
    e("s_mov_b32 s42, 0")
    for st in range(NSL - 1):
        e(f"s_mov_b32 s44, {st*SB}")
        dma("s44")
    e(f"s_waitcnt vmcnt({4*(NSL-2)})\ns_barrier")
    e(f"v_xor_b32 v{T+4}, 32, v{T+3}")
    for l in kread(T + 3, T + 4, 0): e(l)
    e("s_waitcnt lgkmcnt(0)")
    for qb in range(2):
        for l in qk(qb, SS[1][qb], "0"): e(l)
    for l in kread(AK0, AK1, 0): e(l)
    for qb in range(2):
        lane_max16(SS[1][qb], T, T + 1)
        e(f"v_add_f32 v{T}, {f32(40.0)}, v{T}")
        for r in range(16): e(f"v_sub_f32 v{NEG+16*qb+r}, 0, v{T}")
    e("s_waitcnt lgkmcnt(0)")
    for qb in range(2):
        for l in qk(qb, SS[0][qb], v(NEG + 16 * qb, 16)): e(l)
    for l in kread(AK0, AK1, 1): e(l)
    e(f"v_add_u32 v{AN0}, {SB}, v{AK0}\nv_add_u32 v{AN1}, {SB}, v{AK1}")
    e(f"s_mov_b32 s47, 1\ns_mov_b32 s48, {SB}\ns_mov_b32 s49, {-(NSL-1)*SB & 0xffffffff:#x}")
    e(f"s_mov_b32 s50, {(NSL-1)*SB}")
    e("s_waitcnt lgkmcnt(0)")
    e("s_lshl_b32 s56, s2, 3\ns_add_u32 s56, s56, s24\ns_mul_i32 s58, s56, 52429\ns_lshr_b32 s58, s58, 18\ns_mul_i32 s58, s58, 5\ns_sub_u32 s58, s56, s58\ns_sub_u32 s58, 7, s58")
    if "pfall" in OPT: e(f"s_mov_b32 s58, {PFSTAGE}")
    e(f"s_mov_b32 s44, {NST}")
    if "prio1" in OPT: e(f"s_cmp_lt_u32 s24, 4\ns_cbranch_scc1 {L('noprio')}\ns_setprio 1\n{L('noprio')}:")
    if "prio0" in OPT: e(f"s_cmp_ge_u32 s24, 4\ns_cbranch_scc1 {L('noprio')}\ns_setprio 1\n{L('noprio')}:")
    e(f"{L('floop')}:")
    for t in range(4):
        par = t & 1
        if t == 2:
            e(f"s_cmp_ge_u32 s42, {HALF}\ns_cbranch_scc1 {L('nodma')}")
            e(f"s_waitcnt vmcnt({4*(NSL-3)})\ns_barrier")
            dma("s50")
            e(f"s_add_u32 s50, s50, {SB}\ns_cmp_eq_u32 s50, {NSL*SB}\ns_cselect_b32 s50, 0, s50")
            if pf:
                e(f"s_cmp_lg_u32 s44, s58\ns_cbranch_scc1 {L('cont')}")
                e(f"s_mov_b32 s60, s{P_WO}\ns_mov_b32 s61, s{P_WO+1}\ns_mov_b32 s62, {D*D*2}\ns_mov_b32 s63, 0x20000\ns_mov_b32 s52, s56")
                e(f"s_cmp_lt_u32 s56, 256\ns_cbranch_scc1 {L('pfgo')}")
                e(f"s_mov_b32 s60, s{P_W1}\ns_mov_b32 s61, s{P_W1+1}\ns_mov_b32 s62, {D*DFF*2}\ns_mov_b32 s63, 0x20000\ns_sub_u32 s52, s56, 256")
                e(f"s_cmp_lt_u32 s56, 1152\ns_cbranch_scc1 {L('pfgo')}")
                e(f"s_mov_b32 s60, s{P_W2}\ns_mov_b32 s61, s{P_W2+1}\ns_mov_b32 s62, {D*DFF*2}\ns_mov_b32 s63, 0x20000\ns_sub_u32 s52, s56, 1152")
                e(f"{L('pfgo')}:")
                e(f"s_lshl_b32 s52, s52, 13\nv_lshlrev_b32 v{T}, 7, v2\nbuffer_load_dword v{PFD}, v{T}, s[60:63], s52 offen")
                if "mrwo" in OPT:
                    e(f"s_bitcmp1_b32 s56, 0\ns_cbranch_scc1 {L('nowm')}")
                    e(f"s_load_dwordx2 s[60:61], s[0:1], {KA_WMOD}\ns_lshr_b32 s52, s56, 1\ns_mul_i32 s52, s52, 12288\ns_add_u32 s52, s52, 4096\ns_waitcnt lgkmcnt(0)")
                    e(f"s_mov_b32 s62, {1024*6144*2}\ns_mov_b32 s63, 0x20000\nbuffer_load_dword v{PFD}, v{T}, s[60:63], s52 offen")
                    e(f"{L('nowm')}:")
                k.code_touch("a", k.lab("att_cont"), k.lab("f1_l"), 24, 8, 1)
            e(f"s_branch {L('cont')}")
            e(f"{L('nodma')}:")
            e("s_waitcnt vmcnt(0)\ns_barrier")
            e(f"{L('cont')}:")
        kr = kread(AN0, AN1, (t + 2) % 4) if t >= 2 else kread(AK0, AK1, t + 2)
        vr = vread(t)
        m = []; p = []; E = []; C = []
        for qb in range(2):
            cur = SS[par][qb]; nxt = SS[1 - par][qb]; pc = PP[par][qb]; pp = PP[1 - par][qb]
            m.append(qk(qb, nxt, v(NEG + 16 * qb, 16))); p.append(pv(qb, pp))
            E.append([f"v_exp_f32 v{cur+r}, v{cur+r}" for r in range(16)])
            C.append([f"v_cvt_pk_bf16_f32 v{pc+r}, v{cur+2*r}, v{cur+2*r+1}" for r in range(8)])
        E0, E1 = E; C0, C1 = C
        seq = ["s_waitcnt lgkmcnt(4)",
               m[0][0], E0[0], E0[1], E0[2], E0[3],
               m[1][0], E0[4], E0[5], C0[0], C0[1], E0[6],
               m[0][1], E0[7], C0[2], E0[8], E0[9], C0[3],
               m[1][1], kr[0], kr[1], E0[10], E0[11], E0[12], E0[13], "s_waitcnt lgkmcnt(2)",
               p[0][0], C0[4], C0[5], E0[14], E0[15], C0[6], C0[7],
               p[0][1], E1[0], E1[1],
               p[1][0], E1[2], E1[3], C1[0], C1[1], E1[4],
               p[1][1], E1[5], E1[6],
               p[0][2], E1[7], C1[2], E1[8], E1[9], C1[3],
               p[0][3], E1[10], E1[11],
               p[1][2], vr[0], vr[1], vr[2], vr[3], E1[12], E1[13], C1[4], C1[5], E1[14],
               p[1][3], E1[15], C1[6], C1[7]]
        for l in seq: e(l)
        if t == 3:
            e(f"v_sub_u32 v{T}, v{AN0}, v{AK0}\nv_add_u32 v{AV}, v{AV}, v{T}\nv_mov_b32 v{AK0}, v{AN0}\nv_mov_b32 v{AK1}, v{AN1}")
            e(f"s_add_u32 s47, s47, 1\ns_cmp_eq_u32 s47, {NSL}\ns_cselect_b32 s51, s49, s48\ns_cselect_b32 s47, 0, s47")
            e(f"v_add_u32 v{AN0}, s51, v{AN0}\nv_add_u32 v{AN1}, s51, v{AN1}")
    e(f"s_sub_u32 s44, s44, 1\ns_cmp_lg_u32 s44, 0\ns_cbranch_scc1 {L('floop')}")
    e("s_waitcnt lgkmcnt(0)")
    for qb in range(2):
        for l in pv(qb, PP[1][qb]): e(l)
    if "prio1" in OPT or "prio0" in OPT: e("s_setprio 0")
    k.st(4)
    def merge(safe, M=None):
        e("s_barrier")
        e(f"s_cmp_eq_u32 s{KH}, 0\ns_cbranch_scc1 {L('keep0' + safe)}")
        for r in range(16): e(f"v_swap_b32 v{O+r}, v{O+16+r}")
        e(f"v_swap_b32 v{LS}, v{LS+4}")
        if M is not None: e(f"v_swap_b32 v{M}, v{M+1}")
        e(f"{L('keep0' + safe)}:")
        e(f"s_mul_i32 s52, s24, {5*1024+256}\nv_lshlrev_b32 v{T}, 4, v2\nv_add_u32 v{T}, s52, v{T}")
        for g in range(4): e(f"ds_write_b128 v{T}, {v(O+16+4*g,4)} offset:{g*1024}")
        e(f"v_lshlrev_b32 v{T+1}, 2, v2\nv_add_u32 v{T+1}, s52, v{T+1}")
        e(f"ds_write_b32 v{T+1}, v{LS+4} offset:4096")
        if M is not None: e(f"ds_write_b32 v{T+1}, v{M+1} offset:{4096+256}")
        e("s_waitcnt lgkmcnt(0)\ns_barrier")
        e(f"s_xor_b32 s52, s24, 4\ns_mul_i32 s52, s52, {5*1024+256}\nv_lshlrev_b32 v{T}, 4, v2\nv_add_u32 v{T}, s52, v{T}")
        for g in range(4): e(f"ds_read_b128 {v(O+16+4*g,4)}, v{T} offset:{g*1024}")
        e(f"v_lshlrev_b32 v{T+1}, 2, v2\nv_add_u32 v{T+1}, s52, v{T+1}")
        e(f"ds_read_b32 v{LS+4}, v{T+1} offset:4096")
        if M is not None: e(f"ds_read_b32 v{M+1}, v{T+1} offset:{4096+256}")
        e("s_waitcnt lgkmcnt(0)")
        if M is None:
            for r in range(16): e(f"v_add_f32 v{O+r}, v{O+r}, v{O+16+r}")
            e(f"v_add_f32 v{LS}, v{LS}, v{LS+4}")
        else:
            e(f"v_max_f32 v{T}, v{M}, v{M+1}\nv_sub_f32 v{T+1}, v{M}, v{T}\nv_sub_f32 v{T+2}, v{M+1}, v{T}\nv_exp_f32 v{T+1}, v{T+1}\nv_exp_f32 v{T+2}, v{T+2}")
            for r in range(16): e(f"v_mul_f32 v{O+r}, v{O+r}, v{T+1}\nv_fmac_f32 v{O+r}, v{O+16+r}, v{T+2}")
            e(f"v_mul_f32 v{LS}, v{LS}, v{T+1}\nv_fmac_f32 v{LS}, v{LS+4}, v{T+2}")
        e(f"v_rcp_f32 v{T}, v{LS}")
        for r in range(16): e(f"v_mul_f32 v{O+r}, v{O+r}, v{T}")
    merge("f")
    e(f"v_mov_b32 v{T+1}, {f32(2.0**120)}")
    e(f"v_cmp_nlt_f32 vcc, v{LS}, v{T+1}")
    e("s_mov_b64 s[46:47], vcc")
    e(f"v_add_f32 v{T+2}, abs(v{O}), abs(v{O+1})")
    for r in range(2, 16): e(f"v_add_f32 v{T+2}, v{T+2}, abs(v{O+r})")
    e(f"v_mov_b32 v{T+1}, 0x7f800000\nv_cmp_nlt_f32 vcc, v{T+2}, v{T+1}\ns_or_b64 s[46:47], s[46:47], vcc")
    e(f"s_cmp_eq_u64 s[46:47], 0\ns_cbranch_scc1 {L('okwave')}")
    e(f"v_mov_b32 v{T+1}, {FLAG}\nv_mov_b32 v{T+2}, 1\nds_write_b32 v{T+1}, v{T+2}")
    e(f"{L('okwave')}:")
    e("s_waitcnt lgkmcnt(0)\ns_barrier")
    e(f"v_mov_b32 v{T+1}, {FLAG}\nds_read_b32 v{T+2}, v{T+1}\ns_waitcnt lgkmcnt(0)\nv_readfirstlane_b32 s46, v{T+2}")
    e(f"s_cmp_lg_u32 s46, 0\ns_cbranch_scc1 {L('safe')}")
    e(f"{L('store')}:")
    if "statt" in OPT: k.st(12)
    P = PP[0][0]
    for r in range(8): e(f"v_cvt_pk_bf16_f32 v{P+r}, v{O+2*r}, v{O+2*r+1}")
    for b in (0, 4):
        e(f"v_permlane32_swap_b32 v{P+b}, v{P+b+2}\nv_permlane32_swap_b32 v{P+b+1}, v{P+b+3}")
    for r in range(4): e(f"v_permlane16_swap_b32 v{P+r}, v{P+4+r}")
    e(f"s_lshl_b32 s40, s{KH}, 5\ns_add_u32 s40, s40, s39")
    e(f"v_and_b32 v{T}, 15, v2\nv_add_u32 v{T}, s40, v{T}\nv_lshlrev_b32 v{T}, 11, v{T}")
    e(f"v_lshrrev_b32 v{T+1}, 4, v2\nv_and_b32 v{T+2}, 1, v{T+1}\nv_lshlrev_b32 v{T+2}, 5, v{T+2}\nv_lshrrev_b32 v{T+1}, 1, v{T+1}\nv_lshlrev_b32 v{T+1}, 4, v{T+1}")
    e(f"v_add_u32 v{T}, v{T}, v{T+1}\nv_add_u32 v{T}, v{T}, v{T+2}")
    e(f"s_lshl_b32 s40, s25, 6\ns_add_u32 s41, s40, {16*2048}")
    e(f"buffer_store_dwordx4 {v(P,4)}, v{T}, s[16:19], s40 offen{SCS}\nbuffer_store_dwordx4 {v(P+4,4)}, v{T}, s[16:19], s41 offen{SCS}")
    if "statt" in OPT: k.st(13)
    e(f"s_add_u32 s35, s26, {C_ATT}")
    k.signal("att", 8, 35, 32, (2, lambda: e((f"v_mov_b32 v6, {C_ATTALL*256}\nv_mov_b32 v7, 1\ns_mov_b64 exec, 1\nbuffer_atomic_add v7, v6, {s(CNT,4)}, 0 offen sc1\ns_mov_b64 exec, -1\n" if "alias" in OPT else "") + f"s_lshl_b32 s33, s26, 8\ns_lshl_b32 s34, s25, 2\ns_add_u32 s33, s33, s34\ns_add_u32 s33, s33, {FL['wo']}\nv_lshlrev_b32 v6, 7, v2\nv_add_u32 v6, s33, v6")))
    if "statt" in OPT: k.st(14, 7)
    e(f"s_cmp_ge_u32 s24, 4\ns_cbranch_scc1 {nxt_l}\ns_branch {nxt_c}")
    e(f"{L('safe')}:")
    e("s_waitcnt vmcnt(0)\ns_barrier")
    M = NEG; AL = NEG + 2
    SA = SS[0][0]; P0 = PP[0][0]
    zero_acc()
    e(f"v_mov_b32 v{M}, {f32(-3.0e38)}\nv_mov_b32 v{M+1}, {f32(-3.0e38)}")
    addr_setup()
    e("s_mov_b32 s42, 0")
    e(f"s_mov_b32 s44, {NST}")
    e(f"{L('sloop')}:")
    e("s_barrier")
    e("s_mov_b32 s53, 0")
    dma("s53")
    e("s_waitcnt vmcnt(0)\ns_barrier")
    for t in range(4):
        for l in kread(AK0, AK1, t) + vread(t): e(l)
        e("s_waitcnt lgkmcnt(0)")
        for qb in range(2):
            for l in qk(qb, SA, "0"): e(l)
            lane_max16(SA, T, T + 1)
            e(f"v_max_f32 v{T}, v{T}, v{M+qb}\nv_sub_f32 v{AL}, v{M+qb}, v{T}\nv_exp_f32 v{AL}, v{AL}\nv_mov_b32 v{M+qb}, v{T}")
            for r in range(16): e(f"v_sub_f32 v{SA+r}, v{SA+r}, v{T}\nv_exp_f32 v{SA+r}, v{SA+r}")
            for r in range(16): e(f"v_mul_f32 v{O+16*qb+r}, v{O+16*qb+r}, v{AL}")
            for r in range(4): e(f"v_mul_f32 v{LS+4*qb+r}, v{LS+4*qb+r}, v{AL}")
            for r in range(8): e(f"v_cvt_pk_bf16_f32 v{P0+r}, v{SA+2*r}, v{SA+2*r+1}")
            for l in pv(qb, P0): e(l)
    e(f"s_sub_u32 s44, s44, 1\ns_cmp_lg_u32 s44, 0\ns_cbranch_scc1 {L('sloop')}")
    merge("s", M)
    e("s_barrier")
    e(f"s_branch {L('store')}")


def h_phase(k):
    e = k.e; L = lambda n: k.lab("h_" + n)
    HL = 125952
    e("s_lshl_b32 s36, s2, 3\ns_lshl_b32 s37, s24, 1\ns_add_u32 s36, s36, s37")
    e("s_lshl_b32 s36, s36, 11\nv_lshlrev_b32 v3, 4, v2\nv_add_u32 v3, s36, v3")
    k.srd(12, P_X, 0, S * D * 2); k.srd(16, P_WS, WS_H, S * D * 2)
    k.srd(20, P_WS, WS_MODP, 4 * 6144 * 4); k.srd(56, P_WS, WS_MODF, 6144 * 4)
    e("v_lshlrev_b32 v5, 5, v0")
    for p in range(4):
        e(f"s_mov_b32 s37, {p*24576}")
        e(f"buffer_load_dwordx4 {v(64+8*p,4)}, v5, s[20:23], s37 offen\nbuffer_load_dwordx4 {v(68+8*p,4)}, v5, s[20:23], s37 offen offset:16")
    for r in range(2):
        for hf in range(2):
            e(f"buffer_load_dwordx4 {v(8+8*r+4*hf,4)}, v3, s[12:15], 0 offen offset:{r*2048+hf*1024}")
    nt_ = k.code_touch("h", k.lab("qkv_c"), k.lab("wo_c"), 24, 4, 1)
    e(f"s_waitcnt vmcnt({4+nt_})")
    for j in range(8):
        e(f"v_add_f32 v{64+j}, v{64+j}, v{72+j}\nv_add_f32 v{80+j}, v{80+j}, v{88+j}\nv_add_f32 v{64+j}, v{64+j}, v{80+j}")
        round_bf16(e, 64 + j)
    e("v_cmp_le_u32 vcc, 128, v0")
    for j in range(8):
        e(f"v_add_f32 v72, 1.0, v{64+j}")
        round_bf16(e, 72)
        e(f"v_cndmask_b32 v{64+j}, v{64+j}, v72, vcc")
    e(f"v_add_u32 v5, {HL}, v5\nds_write_b128 v5, v[64:67]\nds_write_b128 v5, v[68:71] offset:16")
    e("s_waitcnt lgkmcnt(0)\ns_barrier")
    e(f"v_lshlrev_b32 v5, 5, v2\nv_add_u32 v5, {HL}, v5")
    for hf in range(2):
        for q in range(2):
            e(f"ds_read_b128 {v(32+8*hf+4*q,4)}, v5 offset:{hf*2048+q*16}")
            e(f"ds_read_b128 {v(48+8*hf+4*q,4)}, v5 offset:{4096+hf*2048+q*16}")
    e(f"s_waitcnt vmcnt({nt_})")
    X = 64
    for r in range(2):
        for j in range(8):
            src = 8 + 8 * r + j
            e(f"v_lshlrev_b32 v{X+16*r+2*j}, 16, v{src}\nv_and_b32 v{X+16*r+2*j+1}, 0xffff0000, v{src}")
    for r in range(2): e(f"v_add_f32 v{104+r}, v{X+16*r}, v{X+16*r+1}")
    for j in range(2, 16):
        for r in range(2): e(f"v_add_f32 v{104+r}, v{104+r}, v{X+16*r+j}")
    wave_sum(e, [104, 105], 106, [0, 1, 2, 3, 4, 5])
    for r in range(2): e(f"v_mul_f32 v{104+r}, {f32(1/1024)}, v{104+r}")
    for j in range(16):
        for r in range(2): e(f"v_sub_f32 v{X+16*r+j}, v{X+16*r+j}, v{104+r}")
    for r in range(2): e(f"v_mul_f32 v{107+r}, v{X+16*r}, v{X+16*r}")
    for j in range(1, 16):
        for r in range(2): e(f"v_fmac_f32 v{107+r}, v{X+16*r+j}, v{X+16*r+j}")
    wave_sum(e, [107, 108], 106, [0, 1, 2, 3, 4, 5])
    for r in range(2):
        e(f"v_mov_b32 v{109+r}, {f32(1e-5)}\nv_fmac_f32 v{109+r}, {f32(1/1024)}, v{107+r}\nv_rsq_f32 v{109+r}, v{109+r}")
    e("s_waitcnt lgkmcnt(0)")
    for r in range(2):
        for j in range(16):
            e(f"v_mul_f32 v{X+16*r+j}, v{X+16*r+j}, v{109+r}\nv_fma_f32 v{X+16*r+j}, v{X+16*r+j}, v{48+j}, v{32+j}")
        for j in range(8): e(f"v_cvt_pk_bf16_f32 v{112+8*r+j}, v{X+16*r+2*j}, v{X+16*r+2*j+1}")
        e(f"buffer_store_dwordx4 {v(112+8*r,4)}, v3, s[16:19], 0 offen offset:{r*2048}{SCS}")
        e(f"buffer_store_dwordx4 {v(116+8*r,4)}, v3, s[16:19], 0 offen offset:{r*2048+1024}{SCS}")
    e(f"s_lshr_b32 s35, s2, 4\ns_add_u32 s35, s35, {C_H}")
    def offs():
        e(f"s_lshr_b32 s33, s2, 4\ns_lshl_b32 s33, s33, 9\ns_and_b32 s34, s2, 15\ns_lshl_b32 s34, s34, 2\ns_add_u32 s33, s33, s34\ns_add_u32 s33, s33, {FL['qkv']}")
        e("v_lshlrev_b32 v6, 7, v2\nv_add_u32 v6, s33, v6")
    k.signal("h", 4, 35, 16, (4, offs))

def k_main():
    k = PK("main_kernel", 256, 512, LDS_TOTAL + 16384, 256, 100); e = k.e
    L = k.lab
    e(f"s_cmp_ge_u32 s2, 256\ns_cbranch_scc1 {L('end')}")
    e(f"s_load_dwordx4 s[68:71], s[0:1], {KA_X}\ns_load_dwordx4 s[72:75], s[0:1], {KA_W1}\ns_load_dwordx2 s[76:77], s[0:1], {KA_WO}")
    e(f"s_load_dwordx2 s[78:79], s[0:1], {KA_OUT}\ns_load_dwordx2 s[66:67], s[0:1], {KA_WS}")
    e("v_lshrrev_b32 v1, 6, v0\nv_and_b32 v2, 63, v0\nv_readfirstlane_b32 s24, v1")
    e(f"s_cmp_lg_u32 s24, 0\ns_cbranch_scc1 {L('noinit')}")
    e(f"v_lshlrev_b32 v3, 2, v2\nv_add_u32 v3, {CTL}, v3\nv_mov_b32 v4, 0\nds_write_b32 v3, v4\ns_waitcnt lgkmcnt(0)")
    e(f"{L('noinit')}:")
    e("s_waitcnt lgkmcnt(0)")
    k.srd(CNT, P_WS, WS_CNT, CNT_BYTES)
    k.st(0)
    e(f"s_cmp_ge_u32 s24, 4\ns_cbranch_scc1 {L('qkv_l')}")
    hin = "hsep" not in OPT
    if hin: h_phase(k)
    gemm_phase(k, "qkv", 1024, 1024, 3072, 192, WS_H, S * D * 2, P_WQKV, D * 3 * D * 2, "qkv", 8, 4, 3, L("att_c"), L("att_l"), (C_H, 16, "rb") if hin else None, (1, 2), hbar=hin)
    pf = [(P_WO, D * D * 2), (P_W1, D * DFF * 2), (P_W2, D * DFF * 2)] if "nopf" not in OPT else []
    attn_phase(k, L("wo_c"), L("wo_l"), pf)
    gemm_phase(k, "wo", 1024, 1024, 1024, 64, WS_O, S * D * 2, P_WO, D * D * 2, "wo", 4, 8, 4, L("f1_c"), L("f1_l"), (C_ATT, 32, "rb2"), (5, 6))
    gemm_phase(k, "f1", 1024, 1024, DFF, 224, WS_XG, S * D * 2, P_W1, D * DFF * 2, "ffn1", 8, 4, 3, L("f2_c"), L("f2_l"), (C_WO, 16, "rb"), (7, 8))
    if "nos2" in OPT:
        gemm_phase(k, "f2", DFF, DFF, 1024, 64, WS_F1, S * DFF * 2, P_W2, DFF * D * 2, "ffn2", 4, 8, 4, L("fin"), L("end"), (C_F1, 16, "rb"), (9, 10))
    else:
        gemm_phase(k, "f2", DFF, DFF, 1024, 128, F1OFF(), S * DFF * 2, P_W2, DFF * D * 2, "ffn2s", 4, 8, 4, L("fin"), L("end"), (C_F1, 8, "rb"), (9, 10))
    e(f"{L('fin')}:")
    if DIAG:
        e("s_waitcnt vmcnt(0)")
        k.st(11)
        e(f"s_cmp_lg_u32 s24, 0\ns_cbranch_scc1 {L('end')}")
        k.srd(12, P_WS, WS_STAMP + 8 * 512 * 16, 256 * 64)
        e(f"v_lshlrev_b32 v3, 2, v2\nv_add_u32 v4, {L_STAMP}, v3\nds_read_b32 v5, v4\ns_lshl_b32 s32, s2, 6\nv_add_u32 v3, s32, v3\ns_waitcnt lgkmcnt(0)")
        e("s_mov_b64 exec, 0xffff\nbuffer_store_dword v5, v3, s[12:15], 0 offen")
    k.finish()
    return k

def k_mod2():
    NG = 384 if "modall" in OPT else 128
    k = Kern("mod_kernel", NG + 128, 256, 1024, 64); e = k.e
    k.exit_extra()
    e("s_load_dwordx4 s[4:7], s[0:1], %d" % KA_C)
    k.ptr(8, KA_WS); k.ptr(10, KA_X)
    e(f"s_cmp_ge_u32 s2, {NG}\ns_cbranch_scc1 {k.lab('aux')}")
    e("s_and_b32 s24, s2, 3\ns_lshr_b32 s25, s2, 2")
    e("v_lshrrev_b32 v1, 3, v0\nv_and_b32 v2, 7, v0")
    e("s_lshl_b32 s26, s24, 8\nv_add_u32 v3, s26, v1")
    e("v_lshlrev_b32 v4, 1, v3")
    e("v_mul_u32_u24 v5, 12288, v3\nv_lshlrev_b32 v6, 4, v2\nv_add_u32 v5, v5, v6")
    e("s_lshl_b32 s27, s25, 7\nv_add_u32 v5, s27, v5")
    e("s_waitcnt lgkmcnt(0)")
    k.srd(12, 4, 0, 2048); k.srd(16, 6, 0, 1024 * 6144 * 2); k.srd(20, 8, WS_MODP, 4 * 6144 * 4)
    gemv_body(k, 8, 16, 48, 56, "s[12:15]", "s[16:19]", 32)
    k.stamp(2)
    e("v_lshrrev_b32 v9, 6, v0\nv_lshlrev_b32 v9, 8, v9\nv_lshlrev_b32 v10, 5, v2\nv_add_u32 v9, v9, v10")
    e("v_and_b32 v10, 63, v0\nv_cmp_gt_u32 vcc, 8, v10\ns_and_saveexec_b64 s[28:29], vcc")
    e("ds_write_b128 v9, v[48:51]\nds_write_b128 v9, v[52:55] offset:16")
    e("s_mov_b64 exec, s[28:29]")
    e("s_waitcnt lgkmcnt(0)\ns_barrier")
    e("v_cmp_gt_u32 vcc, 64, v0\ns_and_saveexec_b64 s[28:29], vcc")
    e(f"s_cbranch_execz {k.lab('end')}")
    e("v_lshlrev_b32 v9, 2, v0")
    for w in range(4): e(f"ds_read_b32 v{12+w}, v9 offset:{w*256}")
    e("s_waitcnt lgkmcnt(0)")
    e("v_add_f32 v12, v12, v13\nv_add_f32 v14, v14, v15\nv_add_f32 v12, v12, v14")
    e("s_mul_i32 s26, s24, 24576\ns_lshl_b32 s27, s25, 8\ns_add_u32 s26, s26, s27")
    e("buffer_store_dword v12, v9, s[20:23], s26 offen")
    k.stamp_flush(0, 56)
    e("s_endpgm")
    e(f"{k.lab('aux')}:")
    e(f"s_waitcnt lgkmcnt(0)\ns_sub_u32 s24, s2, {NG}")
    k.srd(12, 10, 0, S * D * 2)
    e("s_lshl_b32 s25, s24, 15\nv_lshlrev_b32 v1, 7, v0\nbuffer_load_dword v2, v1, s[12:15], s25 offen")
    e(f"s_add_u32 s16, s8, {WS_CNT:#x}\ns_addc_u32 s17, s9, 0\ns_mov_b32 s18, {CNT_BYTES}\ns_mov_b32 s19, 0x20000")
    e("s_lshl_b32 s25, s24, 12\nv_lshlrev_b32 v3, 4, v0\nv_mov_b32 v4, 0\nv_mov_b32 v5, 0\nv_mov_b32 v6, 0\nv_mov_b32 v7, 0\nbuffer_store_dwordx4 v[4:7], v3, s[16:19], s25 offen")
    assert CNT_BYTES <= 128 * 4096
    if gen.DIAG:
        k.stamp(1); k.stamp(2)
        k.a.lines.append("  s_nop 0")
    k.finish()
    return k

def gemv_body(k, CV, WV, AC, TMP, srd_c, srd_w, ssoff):
    e = k.e
    for i in range(8): e(f"buffer_load_ushort v{CV+i}, v4, {srd_c}, 0 offen offset:{i*64}")
    for i in range(8): e(f"s_mov_b32 s{ssoff+i}, {i*32*12288}")
    for i in range(8): e(f"buffer_load_dwordx4 {v(WV+4*i,4)}, v5, {srd_w}, s{ssoff+i} offen")
    gemv_finish(k, CV, WV, AC, TMP)

def gemv_finish(k, CV, WV, AC, TMP):
    e = k.e
    for j in range(8): e(f"v_mov_b32 v{AC+j}, 0")
    e("s_waitcnt vmcnt(8)")
    k.stamp(1) if not isinstance(k, PK) else None
    for i in range(8):
        x = CV + i
        e(f"v_lshlrev_b32 v{x}, 16, v{x}")
        e(f"v_mul_f32 v{TMP}, {f32(-LOG2E)}, v{x}\nv_exp_f32 v{TMP}, v{TMP}\nv_add_f32 v{TMP}, 1.0, v{TMP}\nv_rcp_f32 v{TMP}, v{TMP}\nv_mul_f32 v{x}, v{x}, v{TMP}")
        round_bf16(e, x)
    for i in range(8):
        e(f"s_waitcnt vmcnt({7-i})")
        for j in range(4):
            w = WV + 4 * i + j
            e(f"v_lshlrev_b32 v{TMP}, 16, v{w}\nv_and_b32 v{TMP+1}, 0xffff0000, v{w}")
            e(f"v_fmac_f32 v{AC+2*j}, v{CV+i}, v{TMP}\nv_fmac_f32 v{AC+2*j+1}, v{CV+i}, v{TMP+1}")
    wave_sum(e, list(range(AC, AC + 8)), TMP, [3, 4, 5])

def k_probe(idx, mult):
    k = Kern("probe_kernel", 1, 64, 0, 64); e = k.e
    e("s_cmp_ge_u32 s2, 1\ns_cbranch_scc1 probe_kernel_end")
    k.ptr(8, KA_WS); k.ptr(10, KA_DBG)
    e("s_waitcnt lgkmcnt(0)")
    k.srd(12, 8, WS_STAMP, 16 * 512 * 16); k.srd(20, 10, 0, 256)
    e("v_lshlrev_b32 v1, 4, v0\nv_lshlrev_b32 v2, 6, v0")
    for c in range(6): e(f"s_mov_b32 s24, {(c%2)*64*16}\nbuffer_load_dword v{8+c}, v1, s[12:15], s24 offen")
    for c in range(4): e(f"s_mov_b32 s24, {8*512*16 + c*64*64 + idx*4}\nbuffer_load_dword v{16+c}, v2, s[12:15], s24 offen")
    e("s_waitcnt vmcnt(0)")
    for c in range(1, 6): e(f"v_min_u32 v8, v8, v{8+c}")
    for c in range(1, 4): e(f"v_max_u32 v16, v16, v{16+c}")
    def red(r, op):
        for b in range(4): e(f"{op}_dpp v{r}, v{r}, v{r} row_ror:{1<<b} row_mask:0xf bank_mask:0xf")
        for w in (16, 32):
            e(f"v_mov_b32 v40, v{r}\nv_permlane{w}_swap_b32 v40, v{r}\n{op} v{r}, v{r}, v40")
    red(8, "v_min_u32"); red(16, "v_max_u32")
    e("v_sub_u32 v16, v16, v8\nv_mov_b32 v13, 0\nbuffer_store_dword v16, v13, s[20:23], 0 offen\nv_readfirstlane_b32 s30, v16")
    e(f"s_mul_i32 s30, s30, {mult}\ns_min_u32 s30, s30, 100000")
    e("s_memrealtime s[32:33]\ns_waitcnt lgkmcnt(0)")
    e("probe_spin:\ns_memrealtime s[34:35]\ns_waitcnt lgkmcnt(0)\ns_sub_u32 s36, s34, s32\ns_cmp_lt_u32 s36, s30\ns_cbranch_scc1 probe_spin")
    k.finish()
    return k

PROBE = None
def build():
    if PROBE is not None: return [k_mod2(), k_main(), k_probe(*PROBE)]
    if "hsep" in OPT: return [k_mod2(), gen.k_h(True), k_main()]
    return [k_mod2(), k_main()]

if __name__ == "__main__":
    for a_ in list(sys.argv):
        if a_.startswith("--opt="): OPT = set(a_[6:].split(",")); sys.argv.remove(a_)
        if a_.startswith("--pfstage="): PFSTAGE = int(a_[10:]); sys.argv.remove(a_)
        if a_.startswith("--scs="): SCS = " " + a_[6:].replace("+", " "); sys.argv.remove(a_)
        if a_.startswith("--l2d="): L2D = int(a_[6:]); sys.argv.remove(a_)
        if a_.startswith("--probe="): PROBE = tuple(int(x) for x in a_[8:].split(",")); sys.argv.remove(a_)
        if a_.startswith("--mrstep="): MRSTEP = int(a_[9:]); sys.argv.remove(a_)
        if a_.startswith("--sleep="): SLEEP = int(a_[8:]); sys.argv.remove(a_)
    if "--diag" in sys.argv: DIAG = True; gen.DIAG = True; sys.argv.remove("--diag")
    txt = emit(build(), header())
    out = sys.argv[1]
    open(out, "w").write(txt)
    print("wrote", out, len(txt), "bytes")
```

```python
import sys
from asmlib import *
import gen
from gen import (NAME, S, D, DFF, H, KA_X, KA_WQKV, KA_WO, KA_BX, KA_W1, KA_W2, KA_C, KA_WMOD, KA_OUT, KA_DBG, KA_WS,
                 WS_MODP, WS_MODF, WS_H, WS_QKV, WS_O, WS_X1, WS_F1, WS_XG, WS_STAT, WS_UB, WS_STAMP, LOG2E, f32, Kern,
                 wave_sum, round_bf16, interleave, header, emit)

WS_F1A = WS_H
WS_CNT = 0x2f00000
C_QKV, C_ATT, C_WO, C_UB, C_F1, C_H = 0, 16, 24, 40, 56, 72
C_MR, C_MRALL, C_ATTALL = 88, 152, 153
NCNT = 160
FL_BASE = NCNT * 256 + 1536
FL_BASE = (FL_BASE + 255) // 256 * 256
FL = {"qkv": FL_BASE, "att": FL_BASE + 256 * 128, "wo": FL_BASE + 256 * 128 + 256 * 256, "f1": FL_BASE + 256 * 256 + 2 * 256 * 128, "f2": FL_BASE + 256 * 256 + 3 * 256 * 128}
FL["xch"] = FL_BASE + 256 * 256 + 4 * 256 * 128
FL["mr"] = FL["xch"] + 256 * 128
CNT_BYTES = FL["mr"] + 8 * 128
WS_XCH = 0x3800000
OPT = set()
DIAG = False
SC = " sc1"
SCS = " sc1"
P_WS, P_X, P_WQKV, P_W1, P_W2, P_WO, P_OUT = 66, 68, 70, 72, 74, 76, 78
CNT = 28
CTL = 138240
L_SIG = {"qkv": CTL, "att": CTL + 4, "wo": CTL + 8, "ub": CTL + 12, "f1": CTL + 16, "h": CTL + 20, "mr": CTL + 24}
L_DEP = {"wo": CTL + 32, "f1": CTL + 36, "f2": CTL + 40, "qkv": CTL + 44}
L_STAMP = CTL + 64
LDS_TOTAL = CTL + 256
SPIN_MAX = 400000
SLEEP = 2
ALIGN = {}
PFSTAGE = 7
L2D = 8
MRSTEP = 9

def exec_mask(n):
    if n < 32: return f"s_mov_b64 exec, {(1 << n) - 1:#x}"
    return f"s_mov_b32 exec_lo, -1\ns_mov_b32 exec_hi, {(1 << (n - 32)) - 1:#x}"

def align(k, name):
    a = ALIGN.get(name, ALIGN.get("all", 0))
    if a is None: return
    k.a.lines.append(".p2align 6")
    for _ in range(a): k.e("s_nop 0")

class PK(Kern):
    def st(self, i, wave=0):
        if not DIAG: return
        e = self.e; n = self.lab(f"st{i}")
        e(f"s_cmp_lg_u32 s24, {wave}\ns_cbranch_scc1 {n}\n{'s_memtime' if 'cyc' in OPT else 's_memrealtime'} s[98:99]\ns_waitcnt lgkmcnt(0)\nv_mov_b32 v254, s98\nv_mov_b32 v255, {L_STAMP+4*i}\nds_write_b32 v255, v254\ns_waitcnt lgkmcnt(0)\n{n}:")
    def code_touch(self, tag, frm, to, part_sreg, nparts, per):
        if "code" not in OPT: return 0
        e = self.e; here = self.lab("pc" + tag)
        e(f"s_getpc_b64 s[90:91]\n{here}:\ns_add_u32 s90, s90, {frm}-{here}\ns_addc_u32 s91, s91, 0")
        e(f"s_mul_i32 s92, s{part_sreg}, {per*8192}\nv_lshlrev_b32 v252, 7, v2\nv_add_u32 v252, s92, v252")
        for i in range(per):
            if i: e("v_add_u32 v252, 8192, v252")
            e(f"v_min_u32 v251, {to}-{frm}-4, v252\nglobal_load_dword v253, v251, s[90:91]")
        return per
    def poll(self, tag, cnt_sreg, target, lanes=1):
        e = self.e; L = self.lab
        if cnt_sreg is not None: e(f"s_lshl_b32 s32, s{cnt_sreg}, 8\nv_mov_b32 v6, s32")
        e(f"s_mov_b32 s33, 0\ns_mov_b64 exec, {(1 << lanes) - 1}")
        e(f"{L('poll'+tag)}:")
        e(f"buffer_load_dword v7, v6, {s(CNT,4)}, 0 offen offset:{0 if 'direct' in OPT else 128} sc1\ns_waitcnt vmcnt(0)")
        e(f"v_cmp_gt_u32 vcc, {target}, v7\ns_cmp_eq_u64 vcc, 0\ns_cbranch_scc1 {L('pollx'+tag)}")
        e(f"s_add_u32 s33, s33, 1\ns_cmp_ge_u32 s33, {SPIN_MAX}\ns_cbranch_scc1 {L('pollx'+tag)}")
        e(f"s_sleep {SLEEP}\ns_branch {L('poll'+tag)}")
        e(f"{L('pollx'+tag)}:\ns_mov_b64 exec, -1")
    def dep_wait_loaders(self, tag, cnt_sreg, target, first_wave_cond):
        e = self.e; L = self.lab
        e(f"s_cmp_lg_u32 s24, 4\ns_cbranch_scc1 {L('dw'+tag)}")
        if "noflags" in OPT: self.poll(tag, cnt_sreg, target)
        else:
            if tag == "f2" and "nos2" not in OPT:
                e(f"s_lshl_b32 s34, s25, 1\ns_add_u32 s34, s34, s27\ns_lshl_b32 s34, s34, 7\ns_add_u32 s34, s34, {FL[tag]}")
            elif tag == "f2":
                e(f"s_lshl_b32 s34, s25, 4\ns_add_u32 s34, s34, s26\ns_lshl_b32 s34, s34, 7\ns_add_u32 s34, s34, {FL[tag]}")
            elif tag == "wo":
                e(f"s_lshr_b32 s34, s25, 1\ns_lshl_b32 s34, s34, 1\ns_lshr_b32 s33, s26, 3\ns_add_u32 s34, s34, s33\ns_lshl_b32 s34, s34, 7\ns_add_u32 s34, s34, {FL[tag]}")
            else:
                e(f"s_lshl_b32 s34, s25, 2\ns_lshr_b32 s33, s26, 2\ns_add_u32 s34, s34, s33\ns_lshl_b32 s34, s34, 7\ns_add_u32 s34, s34, {FL[tag]}")
            self.wait_flags(tag, target, 34)
        e(f"v_mov_b32 v6, {L_DEP[tag]}\nv_mov_b32 v7, 1\nds_write_b32 v6, v7\ns_waitcnt lgkmcnt(0)\ns_branch {L('dwx'+tag)}")
        e(f"{L('dw'+tag)}:")
        e(f"v_mov_b32 v6, {L_DEP[tag]}\ns_mov_b32 s33, 0")
        e(f"{L('dwl'+tag)}:")
        e(f"ds_read_b32 v7, v6\ns_waitcnt lgkmcnt(0)\nv_readfirstlane_b32 s34, v7")
        e(f"s_cmp_lg_u32 s34, 0\ns_cbranch_scc1 {L('dwx'+tag)}")
        e(f"s_add_u32 s33, s33, 1\ns_cmp_ge_u32 s33, {SPIN_MAX*4}\ns_cbranch_scc1 {L('dwx'+tag)}")
        e(f"s_sleep 1\ns_branch {L('dwl'+tag)}")
        e(f"{L('dwx'+tag)}:")
    def arrive(self, tag, cnt_sreg, target):
        e = self.e; L = self.lab
        e(f"s_lshl_b32 s33, s{cnt_sreg}, 8\nv_mov_b32 v6, s33\nv_mov_b32 v7, 1")
        if "direct" in OPT:
            e(f"buffer_atomic_add v7, v6, {s(CNT,4)}, 0 offen sc1")
            return
        e(f"buffer_atomic_add v7, v6, {s(CNT,4)}, 0 offen sc0 sc1\ns_waitcnt vmcnt(0)\nv_readfirstlane_b32 s33, v7")
        e(f"s_cmp_lg_u32 s33, {target-1}\ns_cbranch_scc1 {L('arr'+tag)}")
        e(f"v_mov_b32 v7, {target}\nbuffer_store_dword v7, v6, {s(CNT,4)}, 0 offen offset:128 sc1")
        e(f"{L('arr'+tag)}:")
    def signal(self, tag, nwaves, cnt_sreg, target, flags=None):
        e = self.e; L = self.lab
        e("s_waitcnt vmcnt(0)")
        e(f"v_mov_b32 v6, {L_SIG[tag]}\nv_mov_b32 v7, 1\ns_mov_b64 exec, 1")
        e("ds_add_rtn_u32 v7, v6, v7\ns_waitcnt lgkmcnt(0)\nv_readfirstlane_b32 s32, v7\ns_mov_b64 exec, -1")
        e(f"s_cmp_lg_u32 s32, {nwaves-1}\ns_cbranch_scc1 {L('sig'+tag)}")
        if flags is not None and "noflags" not in OPT:
            n, offs = flags
            offs()
            e("v_mov_b32 v7, 1\n" + exec_mask(n))
            e(f"buffer_store_dword v7, v6, {s(CNT,4)}, 0 offen sc1")
        else:
            e("s_mov_b64 exec, 1")
            self.arrive(tag, cnt_sreg, target)
        e(f"{L('sig'+tag)}:\ns_mov_b64 exec, -1")
    def wait_flags(self, tag, n, base_sreg):
        e = self.e; L = self.lab
        e(f"v_lshlrev_b32 v6, 2, v2\nv_add_u32 v6, s{base_sreg}, v6\ns_mov_b32 s33, 0")
        e(exec_mask(n))
        e(f"{L('poll'+tag)}:")
        e(f"buffer_load_dword v7, v6, {s(CNT,4)}, 0 offen sc1\ns_waitcnt vmcnt(0)")
        e(f"v_cmp_ne_u32 vcc, 1, v7\ns_cmp_eq_u64 vcc, 0\ns_cbranch_scc1 {L('pollx'+tag)}")
        e(f"s_add_u32 s33, s33, 1\ns_cmp_ge_u32 s33, {SPIN_MAX}\ns_cbranch_scc1 {L('pollx'+tag)}")
        e(f"s_sleep {SLEEP}\ns_branch {L('poll'+tag)}")
        e(f"{L('pollx'+tag)}:\ns_mov_b64 exec, -1")

def CHAIN(): return 'nochain' not in OPT and 'modall' not in OPT and 'mrwo' not in OPT

def F1OFF(): return WS_F1A if 'alias' in OPT else WS_F1

def tile_map(e, xr, xc):
    nxc = 16 // xc
    e(f"s_and_b32 s36, s2, 7\ns_lshr_b32 s37, s2, 3")
    e(f"s_and_b32 s38, s36, {nxc-1}\ns_lshr_b32 s39, s36, {nxc.bit_length()-1}")
    e(f"s_and_b32 s40, s37, {xc-1}\ns_lshr_b32 s41, s37, {xc.bit_length()-1}")
    e(f"s_mul_i32 s38, s38, {xc}\ns_add_u32 s26, s38, s40")
    e(f"s_mul_i32 s39, s39, {xr}\ns_add_u32 s25, s39, s41")

def tile_map_s2(e):
    e("s_and_b32 s36, s2, 7\ns_lshr_b32 s37, s2, 3\ns_and_b32 s27, s36, 1\ns_lshr_b32 s36, s36, 1")
    e("s_and_b32 s26, s37, 7\ns_lshr_b32 s37, s37, 3\ns_lshl_b32 s36, s36, 2\ns_add_u32 s25, s36, s37")

def gemm_phase(k, tag, K, lda, ldb, BN, srcA, sizeA, pB, sizeB, epi, xr, xc, NS, nxt_c, nxt_l, dep=None, stamps=(None, None), hbar=False):
    e = k.e
    L = lambda n: k.lab(tag + "_" + n)
    BM, BK = 128, 64
    nA = BM * BK * 2 // 1024; nB = BN * BK * 2 // 1024
    nAw, nBw = nA // 4, nB // 4
    nld = nAw + nBw
    SB = (nA + nB) * 1024
    s2 = epi == "ffn2s"
    nk = K // BK // (2 if s2 else 1)
    TM, TN = 64, BN // 2
    mt, nt = TM // 16, TN // 16
    pitch = BN * 2; cpr = BN // 8
    hbits = {4: 2, 6: 1, 2: 1, 0: 3}[(pitch // 32) % 8]
    ACC = 8; NACC = 4 * mt * nt
    FA = ACC + NACC; NF = 4 * (mt + nt); FB = FA + NF
    AX = FB + NF; AW = AX + 2; EP = AW + nt
    XL = 135168
    assert SB * NS <= XL
    perm = epi == "qkv" and "perm" in OPT
    asc = SC if dep else ""
    e(f"{L('c')}:")
    if s2: tile_map_s2(e)
    else: tile_map(e, xr, xc)
    e("s_lshr_b32 s42, s24, 1\ns_and_b32 s43, s24, 1")
    e("v_and_b32 v3, 15, v2\nv_lshrrev_b32 v4, 4, v2")
    e(f"s_lshl_b32 s44, s25, 7\ns_lshl_b32 s45, s42, 6\ns_add_u32 s44, s44, s45")
    e(f"s_mul_i32 s46, s26, {BN}\ns_mul_i32 s45, s43, {TN}\ns_add_u32 s46, s46, s45")
    k.srd(20, P_WS, WS_MODF, 6144 * 4)
    if epi == "qkv": k.srd(12, P_WS, WS_QKV, 96 * S * 64)
    elif epi == "ffn1": k.srd(12, P_WS, F1OFF(), S * DFF * 2)
    elif epi == "wo": k.srd(12, P_WS, WS_X1, S * D * 2); k.srd(16, P_X, 0, S * D * 2)
    elif epi in ("ffn2", "ffn2s"): k.srd(12, P_OUT, 0, S * D * 2); k.srd(16, P_WS, WS_X1, S * D * 2)
    G = EP + 2 * mt * nt; GG = G + 4 * nt; W1R = GG + 4 * nt
    if s2:
        G = EP + 16
        e("s_lshl_b32 s47, s27, 5\ns_add_u32 s46, s46, s47")
        e("s_lshl_b32 s47, s25, 4\ns_lshl_b32 s48, s26, 1\ns_add_u32 s47, s47, s48\ns_add_u32 s47, s47, s43\ns_lshl_b32 s47, s47, 2\ns_lshl_b32 s48, s42, 1\ns_add_u32 s47, s47, s48\ns_add_u32 s47, s47, s27\ns_lshl_b32 s47, s47, 12")
        e("v_lshlrev_b32 v5, 4, v2")
        for j in range(mt):
            e(f"buffer_load_dwordx4 {v(EP+4*j,4)}, v5, s[16:19], s47 offen offset:{j*1024}{SC}")
        if not CHAIN(): k.srd(20, P_WS, WS_MODP, 4 * 6144 * 4)
        e(f"v_lshlrev_b32 v6, 4, v4\ns_lshl_b32 s47, s46, 2\ns_add_u32 s47, s47, {5*1024*4}")
        for p_ in range(1 if CHAIN() else 4):
            for i in range(2):
                e(f"buffer_load_dwordx4 {v(G+8*p_+4*i,4)}, v6, s[20:23], s47 offen offset:{i*64}{SC}")
            if p_ < 3 and not CHAIN(): e("s_add_u32 s47, s47, 24576")
    if epi == "wo" and "modall" not in OPT and "mrwo" in OPT:
        e(f"s_load_dwordx4 s[36:39], s[0:1], {KA_C}")
        e("s_and_b32 s58, s2, 3\ns_lshr_b32 s59, s2, 2\ns_add_u32 s59, s59, 32")
        e("v_lshrrev_b32 v6, 3, v0\nv_and_b32 v7, 7, v0\nv_mov_b32 v247, v7")
        e("s_lshl_b32 s47, s58, 8\nv_add_u32 v6, s47, v6\nv_lshlrev_b32 v248, 1, v6")
        e("v_mul_u32_u24 v5, 12288, v6\nv_lshlrev_b32 v6, 4, v7\nv_add_u32 v5, v5, v6\ns_lshl_b32 s47, s59, 7\nv_add_u32 v5, s47, v5")
        e("s_waitcnt lgkmcnt(0)")
        k.srd(52, 36, 0, 2048); k.srd(60, 38, 0, 1024 * 6144 * 2)
        for i in range(8): e(f"buffer_load_ushort v{176+i}, v248, s[52:55], 0 offen offset:{i*64}")
        for i in range(8):
            e(f"s_mov_b32 s47, {i*32*12288}\nbuffer_load_dwordx4 {v(184+4*i,4)}, v5, s[60:63], s47 offen")
        gemv_finish(k, 176, 184, 216, 224)
        MRL = 139264
        e(f"s_lshl_b32 s47, s24, 8\nv_lshlrev_b32 v5, 5, v247\nv_add_u32 v5, s47, v5\nv_add_u32 v5, {MRL}, v5")
        e("s_mov_b64 exec, 0xff\nds_write_b128 v5, v[216:219]\nds_write_b128 v5, v[220:223] offset:16\ns_waitcnt lgkmcnt(0)")
        e(f"v_mov_b32 v6, {L_SIG['mr']}\nv_mov_b32 v7, 1\ns_mov_b64 exec, 1\nds_add_rtn_u32 v7, v6, v7\ns_waitcnt lgkmcnt(0)\nv_readfirstlane_b32 s47, v7\ns_mov_b64 exec, -1")
        e(f"s_cmp_lg_u32 s47, 3\ns_cbranch_scc1 {L('mrx')}")
        e(f"v_lshlrev_b32 v5, 2, v2\nv_add_u32 v6, {MRL}, v5")
        for w_ in range(4): e(f"ds_read_b32 v{216+w_}, v6 offset:{w_*256}")
        e("s_waitcnt lgkmcnt(0)\nv_add_f32 v216, v216, v217\nv_add_f32 v218, v218, v219\nv_add_f32 v216, v216, v218")
        k.srd(52, P_WS, WS_MODP, 4 * 6144 * 4)
        e("s_mul_i32 s47, s58, 24576\ns_lshl_b32 s48, s59, 8\ns_add_u32 s47, s47, s48")
        e(f"buffer_store_dword v216, v5, s[52:55], s47 offen{SCS}\ns_waitcnt vmcnt(0)")
        e(f"v_mov_b32 v6, {C_MRALL*256}\nv_mov_b32 v7, 1\ns_mov_b64 exec, 1\nbuffer_atomic_add v7, v6, {s(CNT,4)}, 0 offen sc1\ns_mov_b64 exec, -1")
        e(f"{L('mrx')}:")
    if epi in ("wo", "ffn2"):
        if epi == "wo":
            e(f"v_add_u32 v5, s44, v3\nv_lshlrev_b32 v5, 11, v5\nv_lshlrev_b32 v6, 3, v4\nv_add_u32 v5, v5, v6")
            e(f"s_lshl_b32 s47, s46, 1\nv_add_u32 v5, s47, v5")
            for j in range(mt):
                e(f"s_mov_b32 s48, {j*16*2048}")
                for i in range(nt):
                    e(f"buffer_load_dwordx2 {v(EP+2*(j*nt+i),2)}, v5, s[16:19], s48 offen offset:{i*32}")
        else:
            e("s_lshl_b32 s47, s25, 4\ns_add_u32 s47, s47, s26\ns_lshl_b32 s47, s47, 2\ns_add_u32 s47, s47, s24\ns_lshl_b32 s47, s47, 12\nv_lshlrev_b32 v5, 4, v2")
            for j in range(mt):
                e(f"buffer_load_dwordx4 {v(EP+4*j,4)}, v5, s[16:19], s47 offen offset:{j*1024}{SC}")
        if epi == "ffn2":
            raise NotImplementedError
        if epi == "wo" and CHAIN():
            e(f"s_and_b32 s35, s2, 7\ns_lshl_b32 s35, s35, 7\ns_add_u32 s35, s35, {FL['mr']}")
            k.wait_flags("mr", 1, 35)
            e(f"v_lshlrev_b32 v6, 4, v4\ns_lshl_b32 s47, s46, 2\ns_add_u32 s47, s47, {2*1024*4}")
            for i in range(nt):
                e(f"buffer_load_dwordx4 {v(G+4*i,4)}, v6, s[20:23], s47 offen offset:{i*64}{SC}")
            e(f"s_lshl_b32 s47, s46, 2\ns_add_u32 s47, s47, {4096*4}")
            for i in range(nt):
                e(f"buffer_load_dwordx4 {v(GG+4*i,4)}, v6, s[20:23], s47 offen offset:{i*64}{SC}")
        if epi == "wo":
            e("s_lshr_b32 s58, s2, 4\ns_and_b32 s59, s2, 15")
            e(f"v_mul_u32_u24 v5, {(65536+27)//28}, v2\nv_lshrrev_b32 v5, 16, v5\nv_mul_u32_u24 v6, 28, v5\nv_sub_u32 v6, v2, v6")
            e("s_lshl_b32 s60, s58, 6\ns_lshl_b32 s61, s24, 4\ns_add_u32 s60, s60, s61\nv_add_u32 v5, s60, v5")
            e(f"v_mul_u32_u24 v7, {DFF*2}, v5\nv_lshlrev_b32 v6, 4, v6\nv_add_u32 v7, v7, v6\ns_mul_i32 s60, s59, 448\nv_add_u32 v7, s60, v7")
            k.srd(60, P_W1, 0, D * DFF * 2)
            e("v_cmp_gt_u32 vcc, 56, v2\ns_and_saveexec_b64 s[34:35], vcc")
            for i in range(8):
                e(f"s_mov_b32 s64, {i*2*DFF*2}")
                e(f"buffer_load_dwordx4 {v(W1R+4*i,4)}, v7, s[60:63], s64 offen")
            if CHAIN():
                e("v_lshlrev_b32 v5, 2, v5")
                e(f"s_mov_b32 s64, {4096*4}\ns_mov_b32 s65, {3072*4}")
                for i in range(8):
                    e(f"buffer_load_dword v{W1R+32+i}, v5, s[20:23], s64 offen offset:{i*8}{SC}")
                    e(f"buffer_load_dword v{W1R+40+i}, v5, s[20:23], s65 offen offset:{i*8}{SC}")
            e("s_mov_b64 exec, s[34:35]")
    e(f"v_lshrrev_b32 v5, 1, v3\nv_xor_b32 v5, v5, v4\nv_and_b32 v5, 7, v5")
    e(f"v_lshlrev_b32 v5, 4, v5\ns_lshl_b32 s47, s42, 6\nv_add_u32 v6, s47, v3\nv_lshlrev_b32 v6, 7, v6")
    e(f"v_add_u32 v{AX}, v5, v6\nv_xor_b32 v{AX+1}, 64, v{AX}")
    e("v_lshrrev_b32 v5, 2, v3\nv_and_b32 v6, 3, v2")
    e("v_lshlrev_b32 v7, 3, v4\nv_add_u32 v7, v7, v5")
    e(f"v_mul_u32_u24 v7, {pitch}, v7\nv_lshlrev_b32 v6, 3, v6\nv_add_u32 v7, v7, v6\nv_add_u32 v7, {nA*1024}, v7")
    if hbits == 2: e("v_lshrrev_b32 v5, 1, v5\nv_and_b32 v6, 1, v4\nv_lshlrev_b32 v6, 1, v6\nv_or_b32 v5, v5, v6")
    elif hbits == 1: e("v_and_b32 v5, 1, v4")
    else: e("v_and_b32 v6, 1, v4\nv_lshlrev_b32 v6, 2, v6\nv_or_b32 v5, v5, v6")
    e(f"s_mul_i32 s47, s43, {nt}")
    for i in range(nt):
        e(f"s_add_u32 s48, s47, {i}\nv_xor_b32 v6, s48, v5\nv_lshlrev_b32 v6, 5, v6\nv_add_u32 v{AW+i}, v7, v6")
    for r in range(NACC): e(f"v_mov_b32 v{ACC+r}, 0")
    def reads(ss, F):
        xs = [f"ds_read_b128 {v(F+4*j,4)}, v{AX+ss} offset:{j*2048}" for j in range(mt)]
        ws = []
        for i in range(nt):
            for hh in range(2):
                ws.append(f"ds_read_b64_tr_b16 {v(F+4*mt+4*i+2*hh,2)}, v{AW+i} offset:{(ss*32+hh*4)*pitch}")
        return [xs[0]] + ws[:2] + xs[1:] + ws[2:]
    def mfmas(F):
        return [f"v_mfma_f32_16x16x32_bf16 {v(ACC+4*(j*nt+i),4)}, {v(F+4*mt+4*i,4)}, {v(F+4*j,4)}, {v(ACC+4*(j*nt+i),4)}"
                for j in range(mt) for i in range(nt)]
    def mix(mf, rd, extra=()):
        rd = list(rd)
        if len(rd) <= len(mf) - 4:
            return interleave(mf, rd + list(extra))
        out = []; oi = 0; ex = list(extra)
        for m_ in mf:
            out.append(m_)
            for _ in range(2):
                if oi < len(rd): out.append(rd[oi]); oi += 1
            if oi >= len(rd) and ex: out.append(ex.pop(0))
        out += rd[oi:] + ex
        return out
    if epi == "wo": k.code_touch("w", k.lab("f1_c"), k.lab("f2_c"), 24, 4, 1)
    if epi == "ffn1": k.code_touch("f", k.lab("f1_cloop"), k.lab("end"), 24, 4, 1)
    e(f"s_mov_b32 s49, 0\ns_mov_b32 s54, {SB}\ns_mov_b32 s55, {-(NS-1)*SB & 0xffffffff:#x}")
    e("s_barrier")
    if stamps[0] is not None: k.st(stamps[0])
    for l in reads(0, FA): e(l)
    l2pf = epi in ("qkv", "ffn1") and ("l2" + tag) in OPT
    if l2pf:
        k.srd(56, P_WS, srcA, sizeA); k.srd(60, pB, 0, sizeB)
        e(f"s_cmp_eq_u32 s24, 0\ns_cselect_b32 s65, {(nk-1) & 1}, 99")
        e("s_lshr_b32 s37, s2, 3")
        e(f"s_and_b32 s40, s37, {xc-1}\ns_lshr_b32 s41, s37, {xc.bit_length()-1}")
        e(f"v_lshrrev_b32 v5, 5, v2\nv_add_u32 v5, {L2D}, v5")
        e(f"v_and_b32 v6, 31, v2\ns_lshl_b32 s47, s40, 5\nv_add_u32 v6, s47, v6\ns_lshl_b32 s47, s25, 7\nv_add_u32 v6, s47, v6\nv_lshlrev_b32 v6, 11, v6\nv_lshlrev_b32 v7, 7, v5\nv_add_u32 v250, v6, v7")
        e(f"v_lshlrev_b32 v5, 6, v5\nv_lshrrev_b32 v6, 2, v2\nv_and_b32 v6, 7, v6\nv_add_u32 v5, v5, v6\ns_lshl_b32 s47, s41, 3\nv_add_u32 v5, s47, v5\ns_mov_b32 s47, {ldb*2}\nv_mul_lo_u32 v5, s47, v5")
        e(f"v_and_b32 v6, 3, v2\nv_lshlrev_b32 v6, 7, v6\nv_add_u32 v5, v5, v6\ns_mul_i32 s47, s26, {BN*2}\ns_and_b32 s47, s47, 0xffffff80\nv_add_u32 v249, s47, v5")
    e(f"s_mov_b32 s50, {nk-1}")
    adv_s = f"s_add_u32 s49, s49, 1\ns_cmp_eq_u32 s49, {NS}\ns_cselect_b32 s51, s55, s54\ns_cselect_b32 s49, 0, s49"
    adv_v = [f"v_add_u32 v{r}, s51, v{r}" for r in [AX, AX + 1] + [AW + i for i in range(nt)]]
    align(k, tag)
    e(f"{L('cloop')}:")
    if epi == "wo" and not CHAIN():
        if "modall" in OPT:
            e(f"s_cmp_eq_u32 s50, 12\ns_cbranch_scc0 {L('m2')}")
        else:
            e(f"s_cmp_eq_u32 s50, 11\ns_cbranch_scc0 {L('m1')}")
            e(f"v_mov_b32 v245, {C_MRALL*256}\nbuffer_load_dword v246, v245, {s(CNT,4)}, 0 offen sc1")
            e(f"{L('m1')}:\ns_cmp_eq_u32 s50, 8\ns_cbranch_scc0 {L('m2')}")
            e(f"s_waitcnt vmcnt(0)\nv_readfirstlane_b32 s47, v246\ns_cmp_ge_u32 s47, 256\ns_cbranch_scc1 {L('m1ok')}")
            e(f"v_mov_b32 v6, {C_MRALL*256 - 128}")
            k.poll("mr", None, 256)
            e(f"{L('m1ok')}:")
        k.srd(60, P_WS, WS_MODP, 4 * 6144 * 4)
        e("s_lshl_b32 s47, s26, 6\ns_lshr_b32 s48, s2, 4\ns_lshl_b32 s48, s48, 6\ns_cmp_ge_u32 s24, 2\ns_cselect_b32 s47, s48, s47")
        e("s_mov_b32 s48, 4096\ns_cmp_eq_u32 s24, 0\ns_cselect_b32 s48, 2048, s48\ns_cmp_eq_u32 s24, 3\ns_cselect_b32 s48, 3072, s48")
        e("s_add_u32 s47, s47, s48\ns_lshl_b32 s47, s47, 2\nv_lshlrev_b32 v245, 2, v2")
        for p_ in range(4):
            e(f"buffer_load_dword v{240+p_}, v245, s[60:63], s47 offen{SC}")
            if p_ < 3: e("s_add_u32 s47, s47, 24576")
        e(f"{L('m2')}:\ns_cmp_eq_u32 s50, 4\ns_cbranch_scc0 {L('m3')}")
        e("s_waitcnt vmcnt(0)\nv_add_f32 v240, v240, v241\nv_add_f32 v242, v242, v243\nv_add_f32 v240, v240, v242")
        round_bf16(e, 240)
        e("v_add_f32 v241, 1.0, v240")
        round_bf16(e, 241)
        e("s_sub_u32 s47, s24, 1\ns_cmp_lt_u32 s47, 2\ns_cselect_b64 vcc, -1, 0\nv_cndmask_b32 v240, v240, v241, vcc")
        e(f"s_lshl_b32 s47, s24, 8\ns_add_u32 s47, s47, 135168\nv_add_u32 v245, s47, v245\nds_write_b32 v245, v240")
        e(f"{L('m3')}:")
    if l2pf:
        e(f"s_and_b32 s47, s50, 1\ns_cmp_lg_u32 s47, s65\ns_cbranch_scc1 {L('nopf')}")
        e(f"buffer_load_dword v248, v250, s[56:59], 0 offen{asc}\nbuffer_load_dword v248, v249, s[60:63], 0 offen")
        e(f"v_add_u32 v250, 256, v250\nv_add_u32 v249, {2*64*ldb*2}, v249")
        e(f"{L('nopf')}:")
    def sprinkle(seq, extra, start):
        out = []; n_ = 0; ex = list(extra)
        for x in seq:
            out.append(x)
            if x.startswith("v_mfma"):
                n_ += 1
                if n_ > start and ex: out.append(ex.pop(0))
        return out + ex
    tight = "loose" not in OPT
    if not tight: e(adv_s)
    e("s_waitcnt lgkmcnt(0)")
    seq = mix(mfmas(FA), reads(1, FB))
    if tight: seq = sprinkle(seq, adv_s.split("\n"), 0)
    last_rd = max(i for i, x in enumerate(seq) if x.startswith("ds_read"))
    tail = [x for x in seq[last_rd + 1:]]
    seq = seq[:last_rd + 1]
    av = list(adv_v)
    for x in tail:
        seq.append(x)
        if av and x.startswith("v_mfma"): seq.append(av.pop(0))
    seq += av
    for l in seq: e(l)
    e("s_waitcnt lgkmcnt(0)\ns_barrier")
    seqb = mix(mfmas(FB), reads(0, FA))
    if tight:
        seqb = sprinkle(seqb, ["s_sub_u32 s50, s50, 1", "s_cmp_lg_u32 s50, 0"], 1)
        for l in seqb: e(l)
        e(f"s_cbranch_scc1 {L('cloop')}")
    else:
        for l in seqb: e(l)
        e(f"s_sub_u32 s50, s50, 1\ns_cmp_lg_u32 s50, 0\ns_cbranch_scc1 {L('cloop')}")
    e("s_waitcnt lgkmcnt(0)")
    for l in mix(mfmas(FA), reads(1, FB)): e(l)
    e("s_waitcnt lgkmcnt(0)")
    if epi != "qkv": e("s_barrier")
    for l in mfmas(FB): e(l)
    if stamps[1] is not None: k.st(stamps[1])
    T = FA
    def acc(i, j): return ACC + 4 * (j * nt + i)
    def pack_pair(ta, tb, dst):
        e(f"v_cvt_pk_bf16_f32 v{dst}, v{ta}, v{ta+1}\nv_cvt_pk_bf16_f32 v{dst+1}, v{ta+2}, v{ta+3}")
        e(f"v_cvt_pk_bf16_f32 v{dst+2}, v{tb}, v{tb+1}\nv_cvt_pk_bf16_f32 v{dst+3}, v{tb+2}, v{tb+3}")
        e(f"v_permlane16_swap_b32 v{dst}, v{dst+2}\nv_permlane16_swap_b32 v{dst+1}, v{dst+3}")
    e("v_and_b32 v5, 1, v4\nv_lshlrev_b32 v5, 5, v5\nv_lshrrev_b32 v6, 1, v4\nv_lshlrev_b32 v6, 4, v6\nv_add_u32 v5, v5, v6")
    if epi == "qkv":
        e("v_lshlrev_b32 v6, 6, v3\nv_add_u32 v5, v5, v6")
        n = 0
        for p in range(nt // 2):
            if perm:
                e(f"s_mul_i32 s52, s43, 96\ns_add_u32 s52, s52, {32*p}\ns_cmp_lt_u32 s52, 64\ns_cselect_b32 s53, {f32(LOG2E * 32 ** -0.5)}, 1.0")
                e("s_lshr_b32 s54, s52, 6\ns_lshl_b32 s54, s54, 5\ns_bfe_u32 s52, s52, 0x10005\ns_add_u32 s52, s52, s54\ns_lshl_b32 s54, s26, 1\ns_add_u32 s52, s52, s54")
                e("s_lshl_b32 s52, s52, 17\ns_lshl_b32 s54, s44, 6\ns_add_u32 s52, s52, s54")
            else:
                e(f"s_add_u32 s52, s46, {32*p}\ns_cmp_lt_u32 s52, 1024\ns_cselect_b32 s53, {f32(LOG2E * 32 ** -0.5)}, 1.0")
                e(f"s_lshl_b32 s52, s52, 12\ns_lshl_b32 s54, s44, 6\ns_add_u32 s52, s52, s54")
            e(f"s_cmp_eq_u32 s53, 1.0\ns_cbranch_scc1 {L(f'nosc{p}')}\nv_mov_b32 v6, s53")
            for j in range(mt):
                for t_ in (acc(2 * p, j), acc(2 * p + 1, j)):
                    for r in (0, 2): e(f"v_pk_mul_f32 {v(t_+r,2)}, {v(t_+r,2)}, v[6:7] op_sel_hi:[1,0]")
            e(f"{L(f'nosc{p}')}:")
            for j in range(mt):
                ta, tb = acc(2 * p, j), acc(2 * p + 1, j)
                d = T + 4 * (n % 8); n += 1
                pack_pair(ta, tb, d)
                e(f"buffer_store_dwordx4 {v(d,4)}, v5, s[12:15], s52 offen offset:{j*1024}{SCS}")
        e(f"s_add_u32 s35, s26, {C_QKV}")
        k.signal("qkv", 4, 35, 16, (6, lambda: e(f"s_mul_i32 s33, s26, 6\nv_add_u32 v6, s33, v2\nv_lshrrev_b32 v7, 5, v6\nv_and_b32 v6, 31, v6\nv_lshlrev_b32 v6, 8, v6"
                                                        f"\nv_lshlrev_b32 v7, 6, v7\nv_add_u32 v6, v6, v7"
                                                        f"\ns_lshl_b32 s33, s25, 2\ns_add_u32 s33, s33, {FL['att']}\nv_add_u32 v6, s33, v6")))

    elif epi == "ffn1":
        ST = FA; UU = FA + 8; BB = FA + 36; TMP = FA + 64; T = FA + 72
        e(f"s_lshl_b32 s47, s42, 6\nv_add_u32 v6, s47, v3\nv_lshlrev_b32 v6, 3, v6\nv_add_u32 v6, {XL}, v6")
        for j in range(mt): e(f"ds_read_b64 {v(ST+2*j,2)}, v6 offset:{j*128}")
        e(f"s_mul_i32 s47, s43, {TN*4}\ns_add_u32 s47, s47, {XL+1024}\nv_lshlrev_b32 v7, 4, v4\nv_add_u32 v7, s47, v7")
        for i in range(nt):
            e(f"ds_read_b128 {v(UU+4*i,4)}, v7 offset:{i*64}\nds_read_b128 {v(BB+4*i,4)}, v7 offset:{896+i*64}")
        e("s_lshl_b32 s47, s42, 6\nv_add_u32 v6, s47, v3\nv_lshlrev_b32 v6, 6, v6\nv_lshrrev_b32 v7, 1, v4\nv_lshlrev_b32 v7, 4, v7\nv_add_u32 v6, v6, v7")
        e("v_and_b32 v7, 1, v4\nv_lshlrev_b32 v5, 5, v7\nv_add_u32 v5, v5, v6")
        e("v_lshlrev_b32 v7, 10, v7\nv_add_u32 v6, v6, v7\ns_lshl_b32 s47, s43, 5\nv_add_u32 v6, s47, v6")
        e(f"s_mul_i32 s48, s25, 112\ns_mul_i32 s47, s26, 7\ns_add_u32 s48, s48, s47\ns_lshl_b32 s48, s48, 13")
        e(f"s_add_u32 s53, s48, {3*8192}")
        e("s_waitcnt lgkmcnt(0)")
        def ln(i, j, t):
            a_ = acc(i, j)
            for h_ in range(2):
                e(f"v_pk_fma_f32 {v(t+2*h_,2)}, {v(ST+2*j,2)}, {v(UU+4*i+2*h_,2)}, {v(BB+4*i+2*h_,2)} op_sel_hi:[0,1,1] neg_lo:[1,0,0] neg_hi:[1,0,0]")
            for h_ in range(2):
                e(f"v_pk_fma_f32 {v(a_+2*h_,2)}, {v(a_+2*h_,2)}, {v(ST+2*j,2)}, {v(t+2*h_,2)} op_sel:[0,1,0]")
        cnt = [0]
        def put(ta, tb, addr, soff, off):
            d = T + 4 * (cnt[0] % 4); cnt[0] += 1
            e(f"v_cvt_pk_bf16_f32 v{d}, v{ta}, v{ta+1}\nv_cvt_pk_bf16_f32 v{d+1}, v{ta+2}, v{ta+3}")
            e(f"v_cvt_pk_bf16_f32 v{d+2}, v{tb}, v{tb+1}\nv_cvt_pk_bf16_f32 v{d+3}, v{tb+2}, v{tb+3}")
            for q in range(4): e(f"v_pk_max_i16 v{d+q}, v{d+q}, 0")
            e(f"v_permlane16_swap_b32 v{d}, v{d+2}\nv_permlane16_swap_b32 v{d+1}, v{d+3}")
            e(f"buffer_store_dwordx4 {v(d,4)}, {addr}, s[12:15], {soff} offen offset:{off}{SCS}")
        XA = 139264; XR = T + 16
        e(f"s_lshl_b32 s47, s24, 10\nv_lshlrev_b32 v7, 4, v2\nv_add_u32 v7, s47, v7\nv_add_u32 v7, {XA}, v7")
        e(f"s_cmp_eq_u32 s43, 1\ns_cbranch_scc1 {L('ep1')}")
        for wn_ in range(2):
            if wn_ == 1: e(f"{L('ep1')}:\ns_add_u32 s48, s48, {4*8192}")
            single = 6 if wn_ == 0 else 0
            pairs = [(0, 1), (2, 3), (4, 5)] if wn_ == 0 else [(1, 2), (3, 4), (5, 6)]
            mine = (0, 1) if wn_ == 0 else (2, 3); give = (2, 3) if wn_ == 0 else (0, 1)
            for jj in (0, 2):
                ln(single, jj, TMP); ln(single, jj + 1, TMP + 4)
            for j in range(4):
                a_ = acc(single, j)
                e(f"v_cvt_pk_bf16_f32 v{XR+2*j}, v{a_}, v{a_+1}\nv_cvt_pk_bf16_f32 v{XR+2*j+1}, v{a_+2}, v{a_+3}")
            for q in range(8): e(f"v_pk_max_i16 v{XR+q}, v{XR+q}, 0")
            e(f"ds_write_b128 v7, {v(XR+2*give[0],4)}\ns_waitcnt lgkmcnt(0)")
            e(f"s_lshl_b32 s47, s24, 2\ns_add_u32 s47, s47, {CTL+48}\nv_mov_b32 v{TMP}, s47\nv_mov_b32 v{TMP+1}, 1\nds_write_b32 v{TMP}, v{TMP+1}")
            for pi, (ia, ib) in enumerate(pairs):
                for j in range(mt):
                    ln(ia, j, TMP); ln(ib, j, TMP + 4)
                    put(acc(ia, j), acc(ib, j), "v5", "s48", j * 1024)
                if pi < 2: e("s_add_u32 s48, s48, 8192")
            tg = f"x{wn_}"
            e(f"s_xor_b32 s47, s24, 1\ns_lshl_b32 s47, s47, 2\ns_add_u32 s47, s47, {CTL+48}\nv_mov_b32 v{TMP}, s47\ns_mov_b32 s33, 0")
            e(f"{L('xw'+tg)}:\nds_read_b32 v{TMP+1}, v{TMP}\ns_waitcnt lgkmcnt(0)\nv_readfirstlane_b32 s34, v{TMP+1}")
            e(f"s_cmp_lg_u32 s34, 0\ns_cbranch_scc1 {L('xx'+tg)}\ns_add_u32 s33, s33, 1\ns_cmp_lt_u32 s33, {SPIN_MAX}\ns_cbranch_scc1 {L('xw'+tg)}")
            e(f"{L('xx'+tg)}:")
            e(f"v_xor_b32 v7, 1024, v7\nds_read_b128 {v(TMP,4)}, v7\ns_waitcnt lgkmcnt(0)")
            for n_, j in enumerate(mine):
                d = T + 4 * (cnt[0] % 4); cnt[0] += 1
                own = XR + 2 * j; oth = TMP + 2 * n_
                a0, b0 = (own, oth) if wn_ == 0 else (oth, own)
                e(f"v_mov_b32 v{d}, v{a0}\nv_mov_b32 v{d+1}, v{a0+1}\nv_mov_b32 v{d+2}, v{b0}\nv_mov_b32 v{d+3}, v{b0+1}")
                e(f"v_permlane16_swap_b32 v{d}, v{d+2}\nv_permlane16_swap_b32 v{d+1}, v{d+3}")
                e(f"buffer_store_dwordx4 {v(d,4)}, v5, s[12:15], s53 offen offset:{j*1024}{SCS}")
            if wn_ == 0: e(f"s_branch {L('ep2')}")
        e(f"{L('ep2')}:")
        if "stf1" in OPT: k.st(12)
        e(f"s_add_u32 s35, s25, {C_F1}")
        k.signal("f1", 4, 35, 16, (16, lambda: e(f"s_lshl_b32 s33, s25, 11\ns_lshl_b32 s34, s26, 2\ns_add_u32 s33, s33, s34\ns_add_u32 s33, s33, {FL['f2']}\nv_lshlrev_b32 v6, 7, v2\nv_add_u32 v6, s33, v6")) if "nos2" in OPT else
                 (1, lambda: e(f"s_lshl_b32 s33, s25, 1\ns_lshr_b32 s34, s26, 3\ns_add_u32 s33, s33, s34\ns_lshl_b32 s33, s33, 7\ns_and_b32 s34, s26, 7\ns_lshl_b32 s34, s34, 2\ns_add_u32 s33, s33, s34\ns_add_u32 s33, s33, {FL['f2']}\nv_mov_b32 v6, s33")))
        if "stf1" in OPT: k.st(13)
    elif s2:
        e(f"s_cmp_eq_u32 s27, 0\ns_cbranch_scc1 {L('noswap')}")
        for j in range(mt):
            for r in range(8): e(f"v_swap_b32 v{acc(0,j)+r}, v{acc(2,j)+r}")
        e(f"{L('noswap')}:")
        k.srd(56, P_WS, WS_XCH, 128 * 2 * 4 * 8192)
        e("s_lshl_b32 s47, s25, 3\ns_add_u32 s47, s47, s26\ns_lshl_b32 s47, s47, 1")
        e("s_xor_b32 s48, s27, 1\ns_add_u32 s48, s48, s47\ns_lshl_b32 s49, s48, 2\ns_add_u32 s49, s49, s24\ns_lshl_b32 s49, s49, 13")
        e("s_add_u32 s52, s47, s27\ns_lshl_b32 s53, s52, 2\ns_add_u32 s53, s53, s24\ns_lshl_b32 s53, s53, 13")
        e("v_lshlrev_b32 v7, 4, v2")
        for j in range(mt):
            if j == 2: e("s_add_u32 s49, s49, 4096")
            e(f"buffer_store_dwordx4 {v(acc(2,j),4)}, v7, s[56:59], s49 offen offset:{(j%2)*2048}{SCS}")
            e(f"buffer_store_dwordx4 {v(acc(3,j),4)}, v7, s[56:59], s49 offen offset:{(j%2)*2048+1024}{SCS}")
        e("s_waitcnt vmcnt(8)")
        XT = T + 32
        for r in range(0 if CHAIN() else 8):
            e(f"v_add_f32 v{G+r}, v{G+r}, v{G+8+r}\nv_add_f32 v{G+16+r}, v{G+16+r}, v{G+24+r}\nv_add_f32 v{G+r}, v{G+r}, v{G+16+r}")
            round_bf16(e, G + r)
        for j in range(mt):
            for i in range(2):
                a0 = acc(i, j); x0 = EP + 4 * j + 2 * i
                for q in range(2):
                    e(f"v_lshlrev_b32 v{XT+2*q}, 16, v{x0+q}\nv_and_b32 v{XT+2*q+1}, 0xffff0000, v{x0+q}")
                for q in range(2):
                    e(f"v_pk_fma_f32 {v(a0+2*q,2)}, {v(a0+2*q,2)}, {v(G+4*i+2*q,2)}, {v(XT+2*q,2)}")
        e(f"v_add_u32 v6, s44, v3\nv_lshlrev_b32 v6, 11, v6\ns_lshl_b32 s47, s46, 1\nv_add_u32 v6, s47, v6\nv_add_u32 v5, v5, v6")
        e("s_waitcnt vmcnt(0)")
        e(f"s_lshl_b32 s48, s48, 7\ns_lshl_b32 s54, s24, 2\ns_add_u32 s48, s48, s54\ns_add_u32 s48, s48, {FL['xch']}\nv_mov_b32 v6, s48\nv_mov_b32 v249, 1")
        e(f"s_mov_b64 exec, 1\nbuffer_store_dword v249, v6, {s(CNT,4)}, 0 offen sc1\ns_mov_b64 exec, -1")
        e(f"s_lshl_b32 s52, s52, 7\ns_add_u32 s52, s52, s54\ns_add_u32 s52, s52, {FL['xch']}\nv_mov_b32 v6, s52\ns_mov_b32 s33, 0\ns_mov_b64 exec, 1")
        e(f"{L('xpoll')}:")
        e(f"buffer_load_dword v249, v6, {s(CNT,4)}, 0 offen sc1\ns_waitcnt vmcnt(0)\nv_readfirstlane_b32 s34, v249")
        e(f"s_cmp_eq_u32 s34, 1\ns_cbranch_scc1 {L('xdone')}\ns_add_u32 s33, s33, 1\ns_cmp_lt_u32 s33, {SPIN_MAX}\ns_cbranch_scc1 {L('xpoll')}")
        e(f"{L('xdone')}:\ns_mov_b64 exec, -1")
        for j in range(mt):
            if j == 2: e("s_add_u32 s53, s53, 4096")
            e(f"buffer_load_dwordx4 {v(acc(2,j),4)}, v7, s[56:59], s53 offen offset:{(j%2)*2048}{SC}")
            e(f"buffer_load_dwordx4 {v(acc(3,j),4)}, v7, s[56:59], s53 offen offset:{(j%2)*2048+1024}{SC}")
        for j in range(mt):
            e(f"s_waitcnt vmcnt({2*(mt-1-j) + j})")
            e(f"s_mov_b32 s48, {j*16*2048}")
            d = T + 4 * (j % 2)
            for i in range(2):
                for q in range(2):
                    e(f"v_pk_fma_f32 {v(acc(i,j)+2*q,2)}, {v(acc(2+i,j)+2*q,2)}, {v(G+4*i+2*q,2)}, {v(acc(i,j)+2*q,2)}")
            pack_pair(acc(0, j), acc(1, j), d)
            e(f"buffer_store_dwordx4 {v(d,4)}, v5, s[12:15], s48 offen{' sc1' if 'outsc1' in OPT else ('' if 'outplain' in OPT else ' nt')}")
    else:
        if not CHAIN():
            ML = 135168
            e(f"s_lshl_b32 s47, s43, 7\nv_lshlrev_b32 v6, 4, v4\nv_add_u32 v6, s47, v6\nv_add_u32 v6, {ML}, v6")
            for i in range(nt):
                e(f"ds_read_b128 {v(G+4*i,4)}, v6 offset:{i*64}\nds_read_b128 {v(GG+4*i,4)}, v6 offset:{256+i*64}")
            e(f"v_mul_u32_u24 v6, {(65536+27)//28}, v2\nv_lshrrev_b32 v6, 16, v6\nv_min_u32 v6, 1, v6\ns_lshl_b32 s47, s24, 4\nv_add_u32 v6, s47, v6\nv_lshlrev_b32 v6, 2, v6\nv_add_u32 v6, {ML+512}, v6")
            for i in range(8):
                e(f"ds_read_b32 v{W1R+32+i}, v6 offset:{i*8}\nds_read_b32 v{W1R+40+i}, v6 offset:{256+i*8}")
            e("s_waitcnt lgkmcnt(0)")
        e("s_waitcnt vmcnt(0)")
        XT = T + 32
        e(f"v_add_u32 v6, s44, v3\nv_lshlrev_b32 v6, 11, v6\ns_lshl_b32 s47, s46, 1\nv_add_u32 v6, s47, v6\nv_add_u32 v5, v5, v6")
        if epi == "wo":
            k.srd(16, P_WS, WS_XG, S * D * 2); k.srd(60, P_WS, WS_STAT, 32 * S * 8)
            if CHAIN():
                for r in range(4 * nt):
                    e(f"v_add_f32 v{GG+r}, 1.0, v{GG+r}"); round_bf16(e, GG + r)
            e(f"s_lshl_b32 s49, s26, 1\ns_add_u32 s49, s49, s43\ns_lshl_b32 s49, s49, 14\ns_lshl_b32 s50, s44, 3\ns_add_u32 s49, s49, s50")
            e("v_lshlrev_b32 v1, 3, v3\nv_and_b32 v6, 1, v4\nv_lshlrev_b32 v6, 2, v6\nv_add_u32 v1, v1, v6")
            e("s_lshl_b32 s47, s25, 4\ns_add_u32 s47, s47, s26\ns_lshl_b32 s47, s47, 2\ns_add_u32 s47, s47, s24\ns_lshl_b32 s47, s47, 12\nv_lshlrev_b32 v7, 4, v2\nv_mov_b32 v253, v7")
        for j in range(mt):
            e(f"s_mov_b32 s48, {j*16*2048}")
            d = T + 4 * (j % 2); d2 = T + 8 + 4 * (j % 2); SM = T + 16 + 4 * (j % 2)
            for i in range(nt):
                a0 = acc(i, j); x0 = EP + 2 * (j * nt + i)
                for q in range(2):
                    e(f"v_lshlrev_b32 v{XT+2*q}, 16, v{x0+q}\nv_and_b32 v{XT+2*q+1}, 0xffff0000, v{x0+q}")
                for q in range(2):
                    e(f"v_pk_fma_f32 {v(a0+2*q,2)}, {v(a0+2*q,2)}, {v(G+4*i+2*q,2)}, {v(XT+2*q,2)}")
            ta, tb = acc(0, j), acc(1, j)
            e(f"v_cvt_pk_bf16_f32 v{d}, v{ta}, v{ta+1}\nv_cvt_pk_bf16_f32 v{d+1}, v{ta+2}, v{ta+3}")
            e(f"v_cvt_pk_bf16_f32 v{d+2}, v{tb}, v{tb+1}\nv_cvt_pk_bf16_f32 v{d+3}, v{tb+2}, v{tb+3}")
            if epi == "ffn2":
                e(f"v_permlane16_swap_b32 v{d}, v{d+2}\nv_permlane16_swap_b32 v{d+1}, v{d+3}")
                e(f"buffer_store_dwordx4 {v(d,4)}, v5, s[12:15], s48 offen")
                continue
            for q in range(2):
                e(f"v_pk_mul_f32 {v(XT+2*q,2)}, {v(ta+2*q,2)}, {v(GG+2*q,2)}\nv_pk_mul_f32 {v(XT+4+2*q,2)}, {v(tb+2*q,2)}, {v(GG+4+2*q,2)}")
            for q in range(4): e(f"v_cvt_pk_bf16_f32 v{d2+q}, v{XT+2*q}, v{XT+2*q+1}")
            e(f"v_permlane16_swap_b32 v{d2}, v{d2+2}\nv_permlane16_swap_b32 v{d2+1}, v{d2+3}")
            e(f"buffer_store_dwordx4 {v(d2,4)}, v5, s[16:19], s48 offen{SCS}")
            e(f"buffer_store_dwordx4 {v(d,4)}, v253, s[12:15], s47 offen offset:{j*1024}{SCS}")
            e(f"v_pk_add_f32 {v(SM,2)}, {v(ta,2)}, {v(ta+2,2)}\nv_pk_mul_f32 {v(SM+2,2)}, {v(ta,2)}, {v(ta,2)}")
            e(f"v_pk_add_f32 {v(SM,2)}, {v(SM,2)}, {v(tb,2)}\nv_pk_fma_f32 {v(SM+2,2)}, {v(ta+2,2)}, {v(ta+2,2)}, {v(SM+2,2)}")
            e(f"v_pk_add_f32 {v(SM,2)}, {v(SM,2)}, {v(tb+2,2)}\nv_pk_fma_f32 {v(SM+2,2)}, {v(tb,2)}, {v(tb,2)}, {v(SM+2,2)}")
            e(f"v_pk_fma_f32 {v(SM+2,2)}, {v(tb+2,2)}, {v(tb+2,2)}, {v(SM+2,2)}")
            e(f"v_add_f32 v{SM}, v{SM}, v{SM+1}\nv_add_f32 v{SM+2}, v{SM+2}, v{SM+3}")
            e(f"v_permlane16_swap_b32 v{SM}, v{SM+2}\nv_add_f32 v{SM}, v{SM}, v{SM+2}\nv_mov_b32 v{SM+1}, v{SM}")
            e(f"v_permlane32_swap_b32 v{SM}, v{SM+1}\nv_add_f32 v{SM}, v{SM}, v{SM+1}")
            e(f"s_mov_b32 exec_lo, -1\ns_mov_b32 exec_hi, 0\nbuffer_store_dword v{SM}, v1, s[60:63], s49 offen offset:{j*128}{SCS}\ns_mov_b64 exec, -1")
        if epi == "wo":
            if "stwo" in OPT: k.st(12)
            e(f"s_add_u32 s35, s25, {C_WO}")
            k.signal("wo", 4, 35, 16, (4, lambda: e(f"s_lshl_b32 s33, s25, 9\ns_lshl_b32 s34, s26, 2\ns_add_u32 s33, s33, s34\ns_add_u32 s33, s33, {FL['f1']}\nv_lshlrev_b32 v6, 7, v2\nv_add_u32 v6, s33, v6")))
            if "stwo" in OPT: k.st(13)
            UA = ACC
            for r in range(16): e(f"v_mov_b32 v{UA+r}, 0")
            for i in range(8):
                g_ = W1R + 32 + i; s_ = W1R + 40 + i
                if CHAIN():
                    e(f"v_add_f32 v{g_}, 1.0, v{g_}"); round_bf16(e, g_)
                for q in range(4):
                    w_ = W1R + 4 * i + q
                    e(f"v_lshlrev_b32 v6, 16, v{w_}\nv_and_b32 v7, 0xffff0000, v{w_}")
                    e(f"v_fmac_f32 v{UA+2*q}, v{g_}, v6\nv_fmac_f32 v{UA+2*q+1}, v{g_}, v7\nv_fmac_f32 v{UA+8+2*q}, v{s_}, v6\nv_fmac_f32 v{UA+8+2*q+1}, v{s_}, v7")
            UL = 139264
            e(f"v_mul_u32_u24 v5, {(65536+27)//28}, v2\nv_lshrrev_b32 v5, 16, v5\nv_mul_u32_u24 v6, 28, v5\nv_sub_u32 v6, v2, v6")
            e(f"s_lshl_b32 s32, s24, 1\nv_add_u32 v5, s32, v5\nv_mul_u32_u24 v5, 1792, v5\nv_lshlrev_b32 v6, 5, v6\nv_add_u32 v5, v5, v6\nv_add_u32 v5, {UL}, v5")
            e("v_cmp_gt_u32 vcc, 56, v2\ns_and_saveexec_b64 s[34:35], vcc")
            e(f"ds_write_b128 v5, {v(UA,4)}\nds_write_b128 v5, {v(UA+4,4)} offset:16\nds_write_b128 v5, {v(UA+8,4)} offset:896\nds_write_b128 v5, {v(UA+12,4)} offset:912")
            e("s_mov_b64 exec, s[34:35]\ns_waitcnt lgkmcnt(0)")
            e(f"v_mov_b32 v6, {L_SIG['ub']}\nv_mov_b32 v7, 1\ns_mov_b64 exec, 1")
            e("ds_add_rtn_u32 v7, v6, v7\ns_waitcnt lgkmcnt(0)\nv_readfirstlane_b32 s32, v7\ns_mov_b64 exec, -1")
            e(f"s_cmp_lg_u32 s32, 3\ns_cbranch_scc1 {L('ubx')}")
            e(f"v_lshlrev_b32 v5, 2, v2\nv_add_u32 v5, {UL}, v5")
            for m_ in range(7):
                for rr in range(8): e(f"ds_read_b32 v{UA+rr}, v5 offset:{rr*1792+m_*256}")
                e("s_waitcnt lgkmcnt(0)")
                for rr in range(1, 8): e(f"v_add_f32 v{UA}, v{UA}, v{UA+rr}")
                e(f"v_mov_b32 v{UA+16+m_}, v{UA}")
            k.srd(16, P_WS, WS_UB, 16 * 2 * DFF * 4)
            e(f"s_mul_i32 s49, s58, {2*DFF*4}\ns_mul_i32 s50, s59, 896\ns_add_u32 s49, s49, s50")
            for m_ in range(7):
                e(f"v_add_u32 v5, {64*m_}, v2\nv_cmp_le_u32 vcc, 224, v5\nv_mov_b32 v6, {DFF*4 - 896}\nv_cndmask_b32 v6, 0, v6, vcc\nv_lshl_add_u32 v5, v5, 2, v6")
                e(f"buffer_store_dword v{UA+16+m_}, v5, s[16:19], s49 offen{SCS}")
            e("s_waitcnt vmcnt(0)")
            e(f"s_add_u32 s35, s59, {C_UB}\ns_mov_b64 exec, 1")
            k.arrive("ub", 35, 16)
            e("s_mov_b64 exec, -1")
            e(f"{L('ubx')}:")
    e(f"s_branch {nxt_c}")
    e(f"{L('l')}:")
    if s2: tile_map_s2(e)
    else: tile_map(e, xr, xc)
    k.srd(4, P_WS, srcA, sizeA); k.srd(8, pB, 0, sizeB)
    e("s_sub_u32 s42, s24, 4")
    LA = 8
    lda2, ldb2 = lda * 2, ldb * 2
    blocked = epi in ("ffn2", "ffn2s")
    if blocked:
        e(f"s_mul_i32 s43, s25, {112*8192}\ns_mul_i32 s44, s42, {nAw*8*64}\ns_add_u32 s43, s43, s44")
        e("v_lshrrev_b32 v3, 3, v2\nv_lshlrev_b32 v3, 6, v3\nv_add_u32 v3, s43, v3")
        e("v_and_b32 v4, 7, v2\nv_lshrrev_b32 v5, 4, v2")
        for i in range(nAw):
            e(f"v_xor_b32 v6, {(i&1)*4}, v5\nv_xor_b32 v6, v6, v4\nv_lshrrev_b32 v7, 2, v6\nv_lshlrev_b32 v7, 13, v7\nv_and_b32 v6, 3, v6\nv_lshlrev_b32 v6, 4, v6")
            e(f"v_add3_u32 v6, v6, v7, v3\nv_add_u32 v{LA+i}, {i*8*64}, v6")
    else:
        e(f"s_lshl_b32 s43, s25, 7\ns_mul_i32 s44, s42, {nAw*8}\ns_add_u32 s43, s43, s44")
        e(f"v_lshrrev_b32 v3, 3, v2\nv_add_u32 v3, s43, v3\ns_mov_b32 s45, {lda2}\nv_mul_lo_u32 v3, s45, v3")
        e("v_and_b32 v4, 7, v2\nv_lshrrev_b32 v5, 4, v2")
        for i in range(nAw):
            e(f"v_xor_b32 v6, {(i&1)*4}, v5\nv_xor_b32 v6, v6, v4\nv_lshlrev_b32 v6, 4, v6\nv_add_u32 v6, v6, v3")
            e(f"v_add_u32 v{LA+i}, {i*8*lda2}, v6")
    ASTEP = 16384 if blocked else BK * 2
    magic = (65536 + cpr - 1) // cpr
    assert all((p * magic) >> 16 == p // cpr for p in range(nBw * 64)) and nBw * 64 == 16 * cpr
    e(f"s_mul_i32 s43, s42, {16*ldb2}\ns_mul_i32 s44, s26, {128 if perm else BN*2}\ns_add_u32 s43, s43, s44")
    for i in range(nBw):
        e(f"v_add_u32 v3, {i*64}, v2\nv_mul_u32_u24 v4, {magic}, v3\nv_lshrrev_b32 v4, 16, v4")
        e(f"v_mul_u32_u24 v5, {cpr}, v4\nv_sub_u32 v3, v3, v5")
        if hbits == 2: e("v_and_b32 v5, 2, v4\nv_lshrrev_b32 v6, 1, v4\nv_and_b32 v6, 4, v6\nv_or_b32 v5, v5, v6")
        elif hbits == 1: e("v_lshrrev_b32 v5, 2, v4\nv_and_b32 v5, 2, v5")
        else: e("v_and_b32 v5, 3, v4\nv_lshrrev_b32 v6, 1, v4\nv_and_b32 v6, 4, v6\nv_or_b32 v5, v5, v6\nv_lshlrev_b32 v5, 1, v5")
        e("v_xor_b32 v3, v3, v5")
        if perm: e("v_lshrrev_b32 v5, 3, v3\nv_and_b32 v3, 7, v3\nv_lshlrev_b32 v5, 7, v5\nv_add_u32 v3, v3, v5")
        e(f"v_lshlrev_b32 v3, 4, v3\ns_mov_b32 s45, {ldb2}\nv_mul_lo_u32 v4, s45, v4\nv_add_u32 v3, v3, v4")
        e(f"v_add_u32 v{LA+nAw+i}, s43, v3")
    e(f"s_mul_i32 s46, s42, {nAw*1024}")
    e(f"s_mul_i32 s47, s42, {nBw*1024}\ns_add_u32 s47, s47, {nA*1024}")
    def issue_x(lds_s, off_s):
        for i in range(nAw):
            e(f"s_add_u32 m0, {lds_s}, {i*1024}")
            e(f"buffer_load_dwordx4 v{LA+i}, s[4:7], {off_s} offen{asc} lds")
    def issue_w(lds_s, off_s):
        for i in range(nBw):
            e(f"s_add_u32 m0, {lds_s}, {i*1024}")
            e(f"buffer_load_dwordx4 v{LA+nAw+i}, s[8:11], {off_s} offen lds")
    if s2: e(f"s_mul_i32 s62, s27, {nk*ASTEP}\ns_mul_i32 s63, s27, {nk*BK*ldb2}")
    else: e("s_mov_b32 s62, 0\ns_mov_b32 s63, 0")
    def w_prologue():
        for st in range(NS - 1):
            e(f"s_add_u32 s52, s47, {st*SB}\ns_add_u32 s49, s63, {st*BK*ldb2}")
            issue_w("s52", "s49")
    if dep:
        base, target, kind = dep
        e(f"s_lshr_b32 s35, s25, 1\ns_add_u32 s35, s35, {base}" if kind == "rb2" else f"s_add_u32 s35, s25, {base}")
        if "wfirst" in OPT:
            w_prologue()
            k.dep_wait_loaders(tag, 35, target, None)
        else:
            e(f"s_cmp_eq_u32 s24, 4\ns_cbranch_scc1 {L('w4a')}")
            w_prologue()
            e(f"{L('w4a')}:")
            if hbar and "nowq" not in OPT:
                e(f"s_cmp_eq_u32 s24, 4\ns_cbranch_scc1 {L('nowqpf')}")
                e("s_mul_i32 s43, s2, 3\ns_add_u32 s43, s43, s24\ns_sub_u32 s43, s43, 5\ns_lshl_b32 s43, s43, 13\nv_lshlrev_b32 v3, 7, v2")
                e("buffer_load_dword v253, v3, s[8:11], s43 offen")
                e(f"{L('nowqpf')}:")
            if hbar: e("s_barrier")
            k.dep_wait_loaders(tag, 35, target, None)
            e(f"s_cmp_lg_u32 s24, 4\ns_cbranch_scc1 {L('w4b')}")
            w_prologue()
            e(f"{L('w4b')}:")
        if tag == "f1" and "stwo" in OPT: k.st(14, 4)
        if tag == "wo" and "statt" in OPT: k.st(15, 4)
        if tag == "f2" and "stf1" in OPT: k.st(14, 4)
    else:
        w_prologue()
    for st in range(NS - 1):
        e(f"s_add_u32 s51, s46, {st*SB}\ns_add_u32 s48, s62, {st*ASTEP}")
        issue_x("s51", "s48")
    e(f"s_add_u32 s48, s62, {(NS-1)*ASTEP}\ns_add_u32 s49, s63, {(NS-1)*BK*ldb2}\ns_mov_b32 s50, {(NS-1)*SB}")
    def issue():
        e("s_add_u32 s51, s50, s46\ns_add_u32 s52, s50, s47")
        issue_x("s51", "s48"); issue_w("s52", "s49")
        e(f"s_add_u32 s48, s48, {ASTEP}\ns_add_u32 s49, s49, {BK*ldb2}")
        e(f"s_add_u32 s50, s50, {SB}\ns_cmp_eq_u32 s50, {SB*NS}\ns_cselect_b32 s50, 0, s50")
    e(f"s_waitcnt vmcnt({nAw*(NS-2)})\ns_barrier")
    issue()
    e(f"s_waitcnt vmcnt({nAw*(NS-3) + nld})\ns_barrier" if NS >= 3 else "")
    issue()
    for t in range(2, NS - 1):
        e(f"s_waitcnt vmcnt({nAw*(NS-2-t) + nld*t})\ns_barrier")
        issue()
    done = max(2, NS - 1)
    e(f"s_mov_b32 s53, {nk-(NS-1)-done}")
    e(f"{L('lloop')}:")
    e(f"s_waitcnt vmcnt({nld*(NS-2)})\ns_barrier")
    issue()
    e(f"s_sub_u32 s53, s53, 1\ns_cmp_lg_u32 s53, 0\ns_cbranch_scc1 {L('lloop')}")
    nx = 0
    for t in range(NS - 1):
        e(f"s_waitcnt vmcnt({nld*(NS-2-t)+nx})\ns_barrier")
        if epi == "qkv" and t == 0 and "modall" not in OPT and "mrwo" not in OPT:
            nx = 16
            e(f"s_load_dwordx4 s[36:39], s[0:1], {KA_C}")
            e("s_and_b32 s58, s2, 3\ns_lshr_b32 s59, s2, 2\ns_add_u32 s59, s59, 32\ns_mov_b32 s64, s58\ns_mov_b32 s65, s59")
            e("v_subrev_u32 v3, 256, v0\nv_lshrrev_b32 v6, 3, v3\nv_and_b32 v7, 7, v3\nv_mov_b32 v22, v7")
            e("s_lshl_b32 s43, s58, 8\nv_add_u32 v6, s43, v6\nv_lshlrev_b32 v4, 1, v6")
            e("v_mul_u32_u24 v5, 12288, v6\nv_lshlrev_b32 v6, 4, v7\nv_add_u32 v5, v5, v6\ns_lshl_b32 s43, s59, 7\nv_add_u32 v5, s43, v5")
            e("s_waitcnt lgkmcnt(0)")
            k.srd(52, 36, 0, 2048); k.srd(60, 38, 0, 1024 * 6144 * 2)
            for i in range(8): e(f"buffer_load_ushort v{24+i}, v4, s[52:55], 0 offen offset:{i*64}")
            for i in range(8):
                e(f"s_mov_b32 s43, {i*32*12288}\nbuffer_load_dwordx4 {v(32+4*i,4)}, v5, s[60:63], s43 offen")
        if epi == "ffn1" and t == 0:
            nx = 32
            k.srd(56, P_WS, WS_STAT, 32 * S * 8); k.srd(60, P_WS, WS_UB, 16 * 2 * DFF * 4)
            e(f"s_cmp_ge_u32 s42, 2\ns_cbranch_scc1 {L('ubld')}")
            e(f"s_lshl_b32 s43, s42, 6\nv_add_u32 v3, s43, v2\ns_lshl_b32 s44, s25, 7\nv_add_u32 v4, s44, v3\nv_lshlrev_b32 v4, 3, v4")
            for sl in range(32):
                e(f"s_mov_b32 s45, {sl*S*8}\nbuffer_load_dwordx2 {v(32+2*sl,2)}, v4, s[56:59], s45 offen{SC}")
            e(f"s_branch {L('ldd')}")
            e(f"{L('ubld')}:")
            e(f"s_add_u32 s35, s26, {C_UB}")
            k.poll(tag + "u", 35, 16)
            if "alias" in OPT:
                e(f"v_mov_b32 v6, {C_ATTALL*256 - 128}")
                k.poll(tag + "a", None, 256)
            e(f"s_sub_u32 s43, s42, 2\ns_lshl_b32 s43, s43, 6\nv_add_u32 v3, s43, v2")
            e(f"s_mul_i32 s44, s26, {BN*4}\nv_lshlrev_b32 v4, 3, v3\nv_add_u32 v4, s44, v4")
            for kg in range(16):
                for w_ in range(2):
                    e(f"s_mov_b32 s45, {(kg*2+w_)*DFF*4}\nbuffer_load_dwordx2 {v(32+4*kg+2*w_,2)}, v4, s[60:63], s45 offen{SC}")
            e(f"{L('ldd')}:")
    if epi == "ffn1":
        e("s_waitcnt vmcnt(0)")
        e(f"s_cmp_ge_u32 s42, 2\ns_cbranch_scc1 {L('ubred')}")
        for sl in range(1, 32): e(f"v_add_f32 v32, v32, v{32+2*sl}\nv_add_f32 v33, v33, v{33+2*sl}")
        e(f"v_mul_f32 v32, {f32(1/1024)}, v32\nv_mul_f32 v33, {f32(1/1024)}, v33")
        e(f"v_fma_f32 v33, -v32, v32, v33\nv_max_f32 v33, 0, v33\nv_add_f32 v33, {f32(1e-5)}, v33\nv_rsq_f32 v33, v33")
        e("v_mul_f32 v32, v32, v33")
        e(f"v_lshlrev_b32 v4, 3, v3\nv_add_u32 v4, {XL}, v4\nds_write_b64 v4, v[32:33]")
        e(f"s_branch {L('redd')}")
        e(f"{L('ubred')}:")
        for kg in range(1, 16):
            for q in range(4): e(f"v_add_f32 v{32+q}, v{32+q}, v{32+4*kg+q}")
        e(f"v_lshlrev_b32 v4, 3, v3\nv_add_u32 v4, {XL+1024}, v4\nv_cmp_gt_u32 vcc, 112, v3\ns_and_saveexec_b64 s[44:45], vcc")
        e(f"ds_write_b64 v4, v[32:33]\nds_write_b64 v4, v[34:35] offset:896\ns_mov_b64 exec, s[44:45]")
        e(f"{L('redd')}:")
        e("s_waitcnt lgkmcnt(0)")
    if epi == "qkv" and "modall" not in OPT and "mrwo" not in OPT:
        gemv_finish(k, 24, 32, 64, 72)
        MRL = 139264
        e(f"s_sub_u32 s43, s24, 4\ns_lshl_b32 s43, s43, 8\nv_lshlrev_b32 v9, 5, v22\nv_add_u32 v9, s43, v9\nv_add_u32 v9, {MRL}, v9")
        e("s_mov_b64 exec, 0xff\nds_write_b128 v9, v[64:67]\nds_write_b128 v9, v[68:71] offset:16\ns_waitcnt lgkmcnt(0)")
        e(f"v_mov_b32 v6, {L_SIG['mr']}\nv_mov_b32 v8, 1\ns_mov_b64 exec, 1\nds_add_rtn_u32 v8, v6, v8\ns_waitcnt lgkmcnt(0)\nv_readfirstlane_b32 s43, v8\ns_mov_b64 exec, -1")
        e(f"s_cmp_lg_u32 s43, 3\ns_cbranch_scc1 {L('mrx')}")
        e(f"v_lshlrev_b32 v9, 2, v2\nv_add_u32 v10, {MRL}, v9")
        for w_ in range(4): e(f"ds_read_b32 v{12+w_}, v10 offset:{w_*256}")
        e("s_waitcnt lgkmcnt(0)\nv_add_f32 v12, v12, v13\nv_add_f32 v14, v14, v15\nv_add_f32 v12, v12, v14")
        k.srd(52, P_WS, WS_MODP, 4 * 6144 * 4)
        e("s_mul_i32 s43, s64, 24576\ns_lshl_b32 s44, s65, 8\ns_add_u32 s43, s43, s44")
        e(f"buffer_store_dword v12, v9, s[52:55], s43 offen{SCS}\ns_waitcnt vmcnt(0)")
        if "nochain" in OPT:
            e(f"v_mov_b32 v6, {C_MRALL*256}\nv_mov_b32 v8, 1\ns_mov_b64 exec, 1\nbuffer_atomic_add v8, v6, {s(CNT,4)}, 0 offen sc1\ns_mov_b64 exec, -1")
        else:
            k.srd(60, P_WS, WS_MODF, 6144 * 4)
            e(f"s_sub_u32 s45, s65, 32\ns_add_u32 s45, s45, {C_MR}\ns_lshl_b32 s45, s45, 8\nv_mov_b32 v6, s45\nv_mov_b32 v8, 1\ns_mov_b64 exec, 1")
            e(f"buffer_atomic_add v8, v6, {s(CNT,4)}, 0 offen sc0 sc1\ns_waitcnt vmcnt(0)\nv_readfirstlane_b32 s45, v8\ns_mov_b64 exec, -1")
            e(f"s_cmp_lg_u32 s45, 3\ns_cbranch_scc1 {L('mrx')}")
            for p_ in range(4):
                e(f"s_add_u32 s45, s44, {p_*24576}\nbuffer_load_dword v{12+p_}, v9, s[52:55], s45 offen{SC}")
            e("s_waitcnt vmcnt(0)\nv_add_f32 v12, v12, v13\nv_add_f32 v14, v14, v15\nv_add_f32 v12, v12, v14")
            round_bf16(e, 12)
            e(f"buffer_store_dword v12, v9, s[60:63], s44 offen{SCS}\ns_waitcnt vmcnt(0)")
            e(f"v_mov_b32 v6, {C_MRALL*256}\nv_mov_b32 v8, 1\ns_mov_b64 exec, 1")
            e(f"buffer_atomic_add v8, v6, {s(CNT,4)}, 0 offen sc0 sc1\ns_waitcnt vmcnt(0)\nv_readfirstlane_b32 s45, v8\ns_mov_b64 exec, -1")
            e(f"s_cmp_lg_u32 s45, 63\ns_cbranch_scc1 {L('mrx')}")
            e(f"v_lshlrev_b32 v6, 7, v2\nv_add_u32 v6, {FL['mr']}, v6\nv_mov_b32 v8, 1\ns_mov_b64 exec, 0xff\nbuffer_store_dword v8, v6, {s(CNT,4)}, 0 offen sc1\ns_mov_b64 exec, -1")
        e(f"{L('mrx')}:")
    if epi != "qkv": e("s_barrier")
    e(f"s_branch {nxt_l}")

def attn_phase(k, nxt_c, nxt_l, pf):
    e = k.e
    L = lambda n: k.lab("att_" + n)
    NSL = 3; KPS = 128; SBK = KPS * 64
    HB = 2 * SBK; SB = 2 * HB
    FLAG = NSL * SB
    e(f"{L('c')}:\n{L('l')}:")
    e("s_and_b32 s36, s2, 7\ns_lshr_b32 s37, s2, 3\ns_lshl_b32 s36, s36, 2\ns_lshr_b32 s38, s37, 3\ns_add_u32 s25, s36, s38")
    e("s_and_b32 s26, s37, 7")
    e("s_and_b32 s34, s24, 3\ns_lshr_b32 s27, s24, 2")
    e("s_mov_b32 s57, s34")
    e("s_lshl_b32 s40, s25, 17")
    e(f"s_add_u32 s32, s{P_WS}, {WS_QKV:#x}\ns_addc_u32 s33, s{P_WS+1}, 0\ns_add_u32 s32, s32, s40\ns_addc_u32 s33, s33, 0")
    k.srd(4, 32, 0, S * 64); k.srd(8, 32, 32 * S * 64, S * 64); k.srd(12, 32, 64 * S * 64, S * 64)
    k.srd(16, P_WS, WS_O, S * D * 2)
    QG, KH = 57, 27
    Q = 4 + 4; KF = 24; VF = 32
    NEG = 40; O = 72; LS = 104; SEL = 112
    SS = [[116, 132], [148, 164]]
    PP = [[180, 188], [196, 204]]
    AK0, AK1, AV, AN0, AN1, DK, DV = 212, 213, 214, 215, 216, 217, 218
    HH, QL = 219, 220
    T = 221
    PFD = 230
    e(f"v_and_b32 v{QL}, 31, v2\nv_lshrrev_b32 v{HH}, 5, v2")
    e(f"s_lshl_b32 s39, s26, 8\ns_lshl_b32 s40, s{QG}, 6\ns_add_u32 s39, s39, s40")
    e(f"v_lshrrev_b32 v{T}, 2, v2\ns_lshl_b32 s40, s{QG}, 5\nv_add_u32 v{T}, s40, v{T}\nv_lshlrev_b32 v{T}, 6, v{T}")
    e(f"v_and_b32 v{T+1}, 3, v2\nv_lshrrev_b32 v{T+2}, 4, v2\nv_xor_b32 v{T+1}, v{T+1}, v{T+2}\nv_lshlrev_b32 v{T+1}, 4, v{T+1}")
    e(f"v_add_u32 v{DK}, v{T}, v{T+1}")
    e(f"v_lshlrev_b32 v{DV}, 4, v2\ns_lshl_b32 s40, s{QG}, 11\nv_add_u32 v{DV}, s40, v{DV}")
    e(f"s_lshl_b32 s41, s{QG}, 11\ns_mul_i32 s40, s{KH}, {HB}\ns_add_u32 s41, s41, s40")
    e(f"s_mul_i32 s45, s{KH}, {S*32}")
    def addr_setup():
        e(f"s_mul_i32 s40, s{KH}, {HB}")
        e(f"v_lshrrev_b32 v{T}, 2, v{QL}\nv_and_b32 v{T}, 3, v{T}\nv_xor_b32 v{T}, v{T}, v{HH}\nv_lshlrev_b32 v{T}, 4, v{T}")
        e(f"v_lshlrev_b32 v{T+1}, 6, v{QL}\nv_add_u32 v{T+3}, v{T}, v{T+1}")
        e(f"v_add_u32 v{AK0}, s40, v{T+3}\nv_xor_b32 v{AK1}, 32, v{AK0}")
        e(f"v_and_b32 v{T}, 15, v2\nv_lshrrev_b32 v{T}, 2, v{T}\nv_lshlrev_b32 v{T+1}, 2, v{HH}\nv_add_u32 v{T}, v{T}, v{T+1}\nv_lshlrev_b32 v{T}, 6, v{T}")
        e(f"v_lshrrev_b32 v{T+1}, 4, v2\nv_and_b32 v{T+1}, 1, v{T+1}\nv_lshlrev_b32 v{T+1}, 5, v{T+1}\nv_add_u32 v{T}, v{T}, v{T+1}")
        e(f"v_and_b32 v{T+1}, 3, v2\nv_lshlrev_b32 v{T+1}, 3, v{T+1}\nv_add_u32 v{T}, v{T}, v{T+1}\nv_add_u32 v{T}, {SBK}, v{T}\nv_add_u32 v{AV}, s40, v{T}")
    addr_setup()
    e(f"v_lshrrev_b32 v{T}, 4, v2\nv_lshrrev_b32 v{T+1}, 2, v2\nv_xor_b32 v{T}, v{T}, v{T+1}\nv_and_b32 v{T}, 1, v{T}")
    e(f"v_cmp_eq_u32 vcc, 0, v{T}\nv_mov_b32 v{T+1}, 0x3f803f80")
    e(f"v_cndmask_b32 v{SEL}, 0, v{T+1}, vcc")
    for r in range(1, 4): e(f"v_mov_b32 v{SEL+r}, v{SEL}")
    def zero_acc():
        for r in range(32): e(f"v_mov_b32 v{O+r}, 0")
        for r in range(8): e(f"v_mov_b32 v{LS+r}, 0")
    zero_acc()
    for r in range(8): e(f"v_mov_b32 v{VF+r}, 0")
    for qb in range(2):
        for r in range(8): e(f"v_mov_b32 v{PP[1][qb]+r}, 0")
    e(f"s_cmp_lg_u32 s24, 4\ns_cbranch_scc1 {L('nodep')}")
    if "noflags" in OPT:
        e(f"v_lshlrev_b32 v6, 10, v2\ns_lshl_b32 s35, s25, 5\nv_add_u32 v6, s35, v6\nv_mul_u32_u24 v6, {(65536 + 191) // 192}, v6\nv_lshrrev_b32 v6, 16, v6")
        e(f"v_add_u32 v6, {C_QKV}, v6\nv_lshlrev_b32 v6, 8, v6")
        k.poll("att", None, 16, lanes=3)
    else:
        e(f"s_lshl_b32 s35, s25, 8\ns_add_u32 s35, s35, {FL['att']}")
        k.wait_flags("att", 48, 35)
    e(f"{L('nodep')}:")
    e("s_barrier")
    k.st(3)
    e(f"v_mov_b32 v{T}, {FLAG}\nv_mov_b32 v{T+1}, 0\nds_write_b32 v{T}, v{T+1}")
    e(f"v_add_u32 v{T}, s39, v{QL}\nv_lshlrev_b32 v{T}, 6, v{T}\nv_lshlrev_b32 v{T+1}, 4, v{HH}\nv_add_u32 v{T}, v{T}, v{T+1}")
    for qb in range(2):
        e(f"buffer_load_dwordx4 {v(Q+8*qb,4)}, v{T}, s[4:7], 0 offen offset:{qb*2048}{SC}")
        e(f"buffer_load_dwordx4 {v(Q+8*qb+4,4)}, v{T}, s[4:7], 0 offen offset:{qb*2048+32}{SC}")
    def dma(slot_sreg):
        e(f"s_add_u32 s43, {slot_sreg}, s41\ns_add_u32 s46, s42, s45")
        e(f"s_mov_b32 m0, s43\nbuffer_load_dwordx4 v{DK}, s[8:11], s46 offen{SC} lds")
        e(f"s_add_u32 m0, s43, {SBK}\nbuffer_load_dwordx4 v{DV}, s[12:15], s46 offen{SC} lds")
        e(f"s_add_u32 s46, s46, 1024\ns_add_u32 m0, s43, 1024\nbuffer_load_dwordx4 v{DK}, s[8:11], s46 offen{SC} lds")
        e(f"s_add_u32 m0, s43, {SBK+1024}\nbuffer_load_dwordx4 v{DV}, s[12:15], s46 offen{SC} lds")
        e(f"s_add_u32 s42, s42, {SBK}")
    def kread(a0, a1, t):
        return [f"ds_read_b128 {v(KF,4)}, v{a0} offset:{t*2048}", f"ds_read_b128 {v(KF+4,4)}, v{a1} offset:{t*2048}"]
    def vread(t):
        return [f"ds_read_b64_tr_b16 {v(VF+4*m+2*hh,2)}, v{AV} offset:{t*2048+(16*m+8*hh)*64}" for m in range(2) for hh in range(2)]
    def qk(qb, dst, c):
        return [f"v_mfma_f32_32x32x16_bf16 {v(dst,16)}, {v(KF,4)}, {v(Q+8*qb,4)}, {c}",
                f"v_mfma_f32_32x32x16_bf16 {v(dst,16)}, {v(KF+4,4)}, {v(Q+8*qb+4,4)}, {v(dst,16)}"]
    def pv(qb, P):
        o, l = O + 16 * qb, LS + 4 * qb
        return [f"v_mfma_f32_32x32x16_bf16 {v(o,16)}, {v(VF,4)}, {v(P,4)}, {v(o,16)}",
                f"v_mfma_f32_16x16x32_bf16 {v(l,4)}, {v(SEL,4)}, {v(P,4)}, {v(l,4)}",
                f"v_mfma_f32_32x32x16_bf16 {v(o,16)}, {v(VF+4,4)}, {v(P+4,4)}, {v(o,16)}",
                f"v_mfma_f32_16x16x32_bf16 {v(l,4)}, {v(SEL,4)}, {v(P+4,4)}, {v(l,4)}"]
    def lane_max16(src, dst, tmp):
        e(f"v_max3_f32 v{dst}, v{src}, v{src+1}, v{src+2}")
        for r in range(3, 15, 2): e(f"v_max3_f32 v{dst}, v{dst}, v{src+r}, v{src+r+1}")
        e(f"v_max_f32 v{dst}, v{dst}, v{src+15}")
        e(f"v_mov_b32 v{tmp}, v{dst}\nv_permlane32_swap_b32 v{tmp}, v{dst}\nv_max_f32 v{dst}, v{dst}, v{tmp}")
    NST = S // 2 // KPS
    HALF = S * 32
    e("s_mov_b32 s42, 0")
    for st in range(NSL - 1):
        e(f"s_mov_b32 s44, {st*SB}")
        dma("s44")
    e(f"s_waitcnt vmcnt({4*(NSL-2)})\ns_barrier")
    e(f"v_xor_b32 v{T+4}, 32, v{T+3}")
    for l in kread(T + 3, T + 4, 0): e(l)
    e("s_waitcnt lgkmcnt(0)")
    for qb in range(2):
        for l in qk(qb, SS[1][qb], "0"): e(l)
    for l in kread(AK0, AK1, 0): e(l)
    for qb in range(2):
        lane_max16(SS[1][qb], T, T + 1)
        e(f"v_add_f32 v{T}, {f32(40.0)}, v{T}")
        for r in range(16): e(f"v_sub_f32 v{NEG+16*qb+r}, 0, v{T}")
    e("s_waitcnt lgkmcnt(0)")
    for qb in range(2):
        for l in qk(qb, SS[0][qb], v(NEG + 16 * qb, 16)): e(l)
    for l in kread(AK0, AK1, 1): e(l)
    e(f"v_add_u32 v{AN0}, {SB}, v{AK0}\nv_add_u32 v{AN1}, {SB}, v{AK1}")
    e(f"s_mov_b32 s47, 1\ns_mov_b32 s48, {SB}\ns_mov_b32 s49, {-(NSL-1)*SB & 0xffffffff:#x}")
    e(f"s_mov_b32 s50, {(NSL-1)*SB}")
    e("s_waitcnt lgkmcnt(0)")
    e("s_lshl_b32 s56, s2, 3\ns_add_u32 s56, s56, s24\ns_mul_i32 s58, s56, 52429\ns_lshr_b32 s58, s58, 18\ns_mul_i32 s58, s58, 5\ns_sub_u32 s58, s56, s58\ns_sub_u32 s58, 7, s58")
    if "pfall" in OPT: e(f"s_mov_b32 s58, {PFSTAGE}")
    e(f"s_mov_b32 s44, {NST}")
    if "prio1" in OPT: e(f"s_cmp_lt_u32 s24, 4\ns_cbranch_scc1 {L('noprio')}\ns_setprio 1\n{L('noprio')}:")
    if "prio0" in OPT: e(f"s_cmp_ge_u32 s24, 4\ns_cbranch_scc1 {L('noprio')}\ns_setprio 1\n{L('noprio')}:")
    align(k, "att")
    e(f"{L('floop')}:")
    for t in range(4):
        par = t & 1
        if t == 2:
            e(f"s_cmp_ge_u32 s42, {HALF}\ns_cbranch_scc1 {L('nodma')}")
            e(f"s_waitcnt vmcnt({4*(NSL-3)})\ns_barrier")
            dma("s50")
            e(f"s_add_u32 s50, s50, {SB}\ns_cmp_eq_u32 s50, {NSL*SB}\ns_cselect_b32 s50, 0, s50")
            if pf:
                e(f"s_cmp_lg_u32 s44, s58\ns_cbranch_scc1 {L('cont')}")
                e(f"s_mov_b32 s60, s{P_WO}\ns_mov_b32 s61, s{P_WO+1}\ns_mov_b32 s62, {D*D*2}\ns_mov_b32 s63, 0x20000\ns_mov_b32 s52, s56")
                e(f"s_cmp_lt_u32 s56, 256\ns_cbranch_scc1 {L('pfgo')}")
                e(f"s_mov_b32 s60, s{P_W1}\ns_mov_b32 s61, s{P_W1+1}\ns_mov_b32 s62, {D*DFF*2}\ns_mov_b32 s63, 0x20000\ns_sub_u32 s52, s56, 256")
                e(f"s_cmp_lt_u32 s56, 1152\ns_cbranch_scc1 {L('pfgo')}")
                e(f"s_mov_b32 s60, s{P_W2}\ns_mov_b32 s61, s{P_W2+1}\ns_mov_b32 s62, {D*DFF*2}\ns_mov_b32 s63, 0x20000\ns_sub_u32 s52, s56, 1152")
                e(f"{L('pfgo')}:")
                e(f"s_lshl_b32 s52, s52, 13\nv_lshlrev_b32 v{T}, 7, v2\nbuffer_load_dword v{PFD}, v{T}, s[60:63], s52 offen")
                if "mrwo" in OPT:
                    e(f"s_bitcmp1_b32 s56, 0\ns_cbranch_scc1 {L('nowm')}")
                    e(f"s_load_dwordx2 s[60:61], s[0:1], {KA_WMOD}\ns_lshr_b32 s52, s56, 1\ns_mul_i32 s52, s52, 12288\ns_add_u32 s52, s52, 4096\ns_waitcnt lgkmcnt(0)")
                    e(f"s_mov_b32 s62, {1024*6144*2}\ns_mov_b32 s63, 0x20000\nbuffer_load_dword v{PFD}, v{T}, s[60:63], s52 offen")
                    e(f"{L('nowm')}:")
                k.code_touch("a", k.lab("att_cont"), k.lab("f1_l"), 24, 8, 1)
            e(f"s_branch {L('cont')}")
            e(f"{L('nodma')}:")
            e("s_waitcnt vmcnt(0)\ns_barrier")
            e(f"{L('cont')}:")
        kr = kread(AN0, AN1, (t + 2) % 4) if t >= 2 else kread(AK0, AK1, t + 2)
        vr = vread(t)
        m = []; p = []; E = []; C = []
        for qb in range(2):
            cur = SS[par][qb]; nxt = SS[1 - par][qb]; pc = PP[par][qb]; pp = PP[1 - par][qb]
            m.append(qk(qb, nxt, v(NEG + 16 * qb, 16))); p.append(pv(qb, pp))
            E.append([f"v_exp_f32 v{cur+r}, v{cur+r}" for r in range(16)])
            C.append([f"v_cvt_pk_bf16_f32 v{pc+r}, v{cur+2*r}, v{cur+2*r+1}" for r in range(8)])
        E0, E1 = E; C0, C1 = C
        seq = ["s_waitcnt lgkmcnt(4)",
               m[0][0], E0[0], E0[1], E0[2], E0[3],
               m[1][0], E0[4], E0[5], C0[0], C0[1], E0[6],
               m[0][1], E0[7], C0[2], E0[8], E0[9], C0[3],
               m[1][1], kr[0], kr[1], E0[10], E0[11], E0[12], E0[13], "s_waitcnt lgkmcnt(2)",
               p[0][0], C0[4], C0[5], E0[14], E0[15], C0[6], C0[7],
               p[0][1], E1[0], E1[1],
               p[1][0], E1[2], E1[3], C1[0], C1[1], E1[4],
               p[1][1], E1[5], E1[6],
               p[0][2], E1[7], C1[2], E1[8], E1[9], C1[3],
               p[0][3], E1[10], E1[11],
               p[1][2], vr[0], vr[1], vr[2], vr[3], E1[12], E1[13], C1[4], C1[5], E1[14],
               p[1][3], E1[15], C1[6], C1[7]]
        for l in seq: e(l)
        if t == 3:
            e(f"v_sub_u32 v{T}, v{AN0}, v{AK0}\nv_add_u32 v{AV}, v{AV}, v{T}\nv_mov_b32 v{AK0}, v{AN0}\nv_mov_b32 v{AK1}, v{AN1}")
            e(f"s_add_u32 s47, s47, 1\ns_cmp_eq_u32 s47, {NSL}\ns_cselect_b32 s51, s49, s48\ns_cselect_b32 s47, 0, s47")
            e(f"v_add_u32 v{AN0}, s51, v{AN0}\nv_add_u32 v{AN1}, s51, v{AN1}")
    e(f"s_sub_u32 s44, s44, 1\ns_cmp_lg_u32 s44, 0\ns_cbranch_scc1 {L('floop')}")
    e("s_waitcnt lgkmcnt(0)")
    for qb in range(2):
        for l in pv(qb, PP[1][qb]): e(l)
    if "prio1" in OPT or "prio0" in OPT: e("s_setprio 0")
    k.st(4)
    def merge(safe, M=None):
        e("s_barrier")
        e(f"s_cmp_eq_u32 s{KH}, 0\ns_cbranch_scc1 {L('keep0' + safe)}")
        for r in range(16): e(f"v_swap_b32 v{O+r}, v{O+16+r}")
        e(f"v_swap_b32 v{LS}, v{LS+4}")
        if M is not None: e(f"v_swap_b32 v{M}, v{M+1}")
        e(f"{L('keep0' + safe)}:")
        e(f"s_mul_i32 s52, s24, {5*1024+256}\nv_lshlrev_b32 v{T}, 4, v2\nv_add_u32 v{T}, s52, v{T}")
        for g in range(4): e(f"ds_write_b128 v{T}, {v(O+16+4*g,4)} offset:{g*1024}")
        e(f"v_lshlrev_b32 v{T+1}, 2, v2\nv_add_u32 v{T+1}, s52, v{T+1}")
        e(f"ds_write_b32 v{T+1}, v{LS+4} offset:4096")
        if M is not None: e(f"ds_write_b32 v{T+1}, v{M+1} offset:{4096+256}")
        e("s_waitcnt lgkmcnt(0)\ns_barrier")
        e(f"s_xor_b32 s52, s24, 4\ns_mul_i32 s52, s52, {5*1024+256}\nv_lshlrev_b32 v{T}, 4, v2\nv_add_u32 v{T}, s52, v{T}")
        for g in range(4): e(f"ds_read_b128 {v(O+16+4*g,4)}, v{T} offset:{g*1024}")
        e(f"v_lshlrev_b32 v{T+1}, 2, v2\nv_add_u32 v{T+1}, s52, v{T+1}")
        e(f"ds_read_b32 v{LS+4}, v{T+1} offset:4096")
        if M is not None: e(f"ds_read_b32 v{M+1}, v{T+1} offset:{4096+256}")
        e("s_waitcnt lgkmcnt(0)")
        if M is None:
            for r in range(16): e(f"v_add_f32 v{O+r}, v{O+r}, v{O+16+r}")
            e(f"v_add_f32 v{LS}, v{LS}, v{LS+4}")
        else:
            e(f"v_max_f32 v{T}, v{M}, v{M+1}\nv_sub_f32 v{T+1}, v{M}, v{T}\nv_sub_f32 v{T+2}, v{M+1}, v{T}\nv_exp_f32 v{T+1}, v{T+1}\nv_exp_f32 v{T+2}, v{T+2}")
            for r in range(16): e(f"v_mul_f32 v{O+r}, v{O+r}, v{T+1}\nv_fmac_f32 v{O+r}, v{O+16+r}, v{T+2}")
            e(f"v_mul_f32 v{LS}, v{LS}, v{T+1}\nv_fmac_f32 v{LS}, v{LS+4}, v{T+2}")
        e(f"v_rcp_f32 v{T}, v{LS}")
        for r in range(16): e(f"v_mul_f32 v{O+r}, v{O+r}, v{T}")
    XE = 98432
    e(f"v_add_f32 v{T+2}, abs(v{O}), abs(v{O+1})\nv_add_f32 v{T+3}, abs(v{O+16}), abs(v{O+17})")
    for r in range(2, 16): e(f"v_add_f32 v{T+2}, v{T+2}, abs(v{O+r})\nv_add_f32 v{T+3}, v{T+3}, abs(v{O+16+r})")
    e(f"v_add_f32 v{T+2}, v{T+2}, v{T+3}\nv_mov_b32 v{T+1}, {f32(2.0**126)}\nv_cmp_nlt_f32 vcc, v{T+2}, v{T+1}\ns_mov_b64 s[46:47], vcc")
    e(f"v_add_f32 v{T+2}, v{LS}, v{LS+4}\nv_mov_b32 v{T+1}, {f32(2.0**119)}\nv_cmp_nlt_f32 vcc, v{T+2}, v{T+1}\ns_or_b64 s[46:47], s[46:47], vcc")
    e(f"s_cmp_eq_u64 s[46:47], 0\ns_cbranch_scc1 {L('okwave')}")
    e(f"v_mov_b32 v{T+1}, {FLAG}\nv_mov_b32 v{T+2}, 1\nds_write_b32 v{T+1}, v{T+2}")
    e(f"{L('okwave')}:")
    e(f"s_mul_i32 s52, s24, 4352\ns_add_u32 s52, s52, {XE}\nv_lshlrev_b32 v{T}, 4, v2\nv_add_u32 v{T}, s52, v{T}\nv_lshlrev_b32 v{T+1}, 2, v2\nv_add_u32 v{T+1}, s52, v{T+1}")
    e(f"s_cmp_eq_u32 s{KH}, 0\ns_cbranch_scc1 {L('snd0')}")
    for g in range(4): e(f"ds_write_b128 v{T}, {v(O+4*g,4)} offset:{g*1024}")
    e(f"ds_write_b32 v{T+1}, v{LS} offset:4096\ns_branch {L('snd1')}")
    e(f"{L('snd0')}:")
    for g in range(4): e(f"ds_write_b128 v{T}, {v(O+16+4*g,4)} offset:{g*1024}")
    e(f"ds_write_b32 v{T+1}, v{LS+4} offset:4096")
    e(f"{L('snd1')}:")
    e(f"s_xor_b32 s52, s24, 4\ns_mul_i32 s52, s52, 4352\ns_add_u32 s52, s52, {XE}\nv_lshlrev_b32 v{T}, 4, v2\nv_add_u32 v{T}, s52, v{T}\nv_lshlrev_b32 v{T+1}, 2, v2\nv_add_u32 v{T+1}, s52, v{T+1}")
    e(f"v_mov_b32 v{T+3}, {FLAG}")
    e("s_waitcnt lgkmcnt(0)\ns_barrier")
    e(f"ds_read_b32 v{T+2}, v{T+3}")
    e(f"s_cmp_eq_u32 s{KH}, 0\ns_cbranch_scc1 {L('rcv0')}")
    for g in range(4): e(f"ds_read_b128 {v(O+4*g,4)}, v{T} offset:{g*1024}")
    e(f"ds_read_b32 v{LS}, v{T+1} offset:4096\ns_branch {L('rcv1')}")
    e(f"{L('rcv0')}:")
    for g in range(4): e(f"ds_read_b128 {v(O+16+4*g,4)}, v{T} offset:{g*1024}")
    e(f"ds_read_b32 v{LS+4}, v{T+1} offset:4096")
    e(f"{L('rcv1')}:")
    e(f"s_waitcnt lgkmcnt(5)\nv_readfirstlane_b32 s46, v{T+2}\ns_cmp_lg_u32 s46, 0\ns_cbranch_scc1 {L('safe')}")
    e("s_waitcnt lgkmcnt(0)")
    e(f"v_add_f32 v{LS}, v{LS}, v{LS+4}\nv_rcp_f32 v{T}, v{LS}")
    for r in range(0, 16, 2): e(f"v_pk_add_f32 {v(O+r,2)}, {v(O+r,2)}, {v(O+16+r,2)}")
    assert (T + 1) % 2 == 0
    e(f"v_mov_b32 v{T+1}, v{T}")
    for r in range(0, 16, 2): e(f"v_pk_mul_f32 {v(O+r,2)}, {v(O+r,2)}, {v(T+1,2)} op_sel_hi:[1,0]")
    e(f"{L('store')}:")
    if "statt" in OPT: k.st(12)
    P = PP[0][0]
    for r in range(8): e(f"v_cvt_pk_bf16_f32 v{P+r}, v{O+2*r}, v{O+2*r+1}")
    for b in (0, 4):
        e(f"v_permlane32_swap_b32 v{P+b}, v{P+b+2}\nv_permlane32_swap_b32 v{P+b+1}, v{P+b+3}")
    for r in range(4): e(f"v_permlane16_swap_b32 v{P+r}, v{P+4+r}")
    e(f"s_lshl_b32 s40, s{KH}, 5\ns_add_u32 s40, s40, s39")
    e(f"v_and_b32 v{T}, 15, v2\nv_add_u32 v{T}, s40, v{T}\nv_lshlrev_b32 v{T}, 11, v{T}")
    e(f"v_lshrrev_b32 v{T+1}, 4, v2\nv_and_b32 v{T+2}, 1, v{T+1}\nv_lshlrev_b32 v{T+2}, 5, v{T+2}\nv_lshrrev_b32 v{T+1}, 1, v{T+1}\nv_lshlrev_b32 v{T+1}, 4, v{T+1}")
    e(f"v_add_u32 v{T}, v{T}, v{T+1}\nv_add_u32 v{T}, v{T}, v{T+2}")
    e(f"s_lshl_b32 s40, s25, 6\ns_add_u32 s41, s40, {16*2048}")
    e(f"buffer_store_dwordx4 {v(P,4)}, v{T}, s[16:19], s40 offen{SCS}\nbuffer_store_dwordx4 {v(P+4,4)}, v{T}, s[16:19], s41 offen{SCS}")
    if "statt" in OPT: k.st(13)
    e(f"s_add_u32 s35, s26, {C_ATT}")
    k.signal("att", 8, 35, 32, (2, lambda: e((f"v_mov_b32 v6, {C_ATTALL*256}\nv_mov_b32 v7, 1\ns_mov_b64 exec, 1\nbuffer_atomic_add v7, v6, {s(CNT,4)}, 0 offen sc1\ns_mov_b64 exec, -1\n" if "alias" in OPT else "") + f"s_lshl_b32 s33, s26, 8\ns_lshl_b32 s34, s25, 2\ns_add_u32 s33, s33, s34\ns_add_u32 s33, s33, {FL['wo']}\nv_lshlrev_b32 v6, 7, v2\nv_add_u32 v6, s33, v6")))
    if "statt" in OPT: k.st(14, 7)
    e(f"s_cmp_ge_u32 s24, 4\ns_cbranch_scc1 {nxt_l}\ns_branch {nxt_c}")
    e(f"{L('safe')}:")
    e("s_waitcnt vmcnt(0) lgkmcnt(0)\ns_barrier")
    M = NEG; AL = NEG + 2
    SA = SS[0][0]; P0 = PP[0][0]
    zero_acc()
    e(f"v_mov_b32 v{M}, {f32(-3.0e38)}\nv_mov_b32 v{M+1}, {f32(-3.0e38)}")
    addr_setup()
    e("s_mov_b32 s42, 0")
    e(f"s_mov_b32 s44, {NST}")
    e(f"{L('sloop')}:")
    e("s_barrier")
    e("s_mov_b32 s53, 0")
    dma("s53")
    e("s_waitcnt vmcnt(0)\ns_barrier")
    for t in range(4):
        for l in kread(AK0, AK1, t) + vread(t): e(l)
        e("s_waitcnt lgkmcnt(0)")
        for qb in range(2):
            for l in qk(qb, SA, "0"): e(l)
            lane_max16(SA, T, T + 1)
            e(f"v_max_f32 v{T}, v{T}, v{M+qb}\nv_sub_f32 v{AL}, v{M+qb}, v{T}\nv_exp_f32 v{AL}, v{AL}\nv_mov_b32 v{M+qb}, v{T}")
            for r in range(16): e(f"v_sub_f32 v{SA+r}, v{SA+r}, v{T}\nv_exp_f32 v{SA+r}, v{SA+r}")
            for r in range(16): e(f"v_mul_f32 v{O+16*qb+r}, v{O+16*qb+r}, v{AL}")
            for r in range(4): e(f"v_mul_f32 v{LS+4*qb+r}, v{LS+4*qb+r}, v{AL}")
            for r in range(8): e(f"v_cvt_pk_bf16_f32 v{P0+r}, v{SA+2*r}, v{SA+2*r+1}")
            for l in pv(qb, P0): e(l)
    e(f"s_sub_u32 s44, s44, 1\ns_cmp_lg_u32 s44, 0\ns_cbranch_scc1 {L('sloop')}")
    merge("s", M)
    e("s_barrier")
    e(f"s_branch {L('store')}")


def h_phase(k):
    e = k.e; L = lambda n: k.lab("h_" + n)
    HL = 125952
    e("s_lshl_b32 s36, s2, 3\ns_lshl_b32 s37, s24, 1\ns_add_u32 s36, s36, s37")
    e("s_lshl_b32 s36, s36, 11\nv_lshlrev_b32 v3, 4, v2\nv_add_u32 v3, s36, v3")
    k.srd(12, P_X, 0, S * D * 2); k.srd(16, P_WS, WS_H, S * D * 2)
    k.srd(20, P_WS, WS_MODP, 4 * 6144 * 4); k.srd(56, P_WS, WS_MODF, 6144 * 4)
    e("v_lshlrev_b32 v5, 5, v0")
    for p in range(4):
        e(f"s_mov_b32 s37, {p*24576}")
        e(f"buffer_load_dwordx4 {v(64+8*p,4)}, v5, s[20:23], s37 offen\nbuffer_load_dwordx4 {v(68+8*p,4)}, v5, s[20:23], s37 offen offset:16")
    for r in range(2):
        for hf in range(2):
            e(f"buffer_load_dwordx4 {v(8+8*r+4*hf,4)}, v3, s[12:15], 0 offen offset:{r*2048+hf*1024}")
    nt_ = k.code_touch("h", k.lab("qkv_c"), k.lab("wo_c"), 24, 4, 1)
    e(f"s_waitcnt vmcnt({4+nt_})")
    for j in range(8):
        e(f"v_add_f32 v{64+j}, v{64+j}, v{72+j}\nv_add_f32 v{80+j}, v{80+j}, v{88+j}\nv_add_f32 v{64+j}, v{64+j}, v{80+j}")
        round_bf16(e, 64 + j)
    e("v_cmp_le_u32 vcc, 128, v0")
    for j in range(8):
        e(f"v_add_f32 v72, 1.0, v{64+j}")
        round_bf16(e, 72)
        e(f"v_cndmask_b32 v{64+j}, v{64+j}, v72, vcc")
    e(f"v_add_u32 v5, {HL}, v5\nds_write_b128 v5, v[64:67]\nds_write_b128 v5, v[68:71] offset:16")
    e("s_waitcnt lgkmcnt(0)\ns_barrier")
    e(f"v_lshlrev_b32 v5, 5, v2\nv_add_u32 v5, {HL}, v5")
    for hf in range(2):
        for q in range(2):
            e(f"ds_read_b128 {v(32+8*hf+4*q,4)}, v5 offset:{hf*2048+q*16}")
            e(f"ds_read_b128 {v(48+8*hf+4*q,4)}, v5 offset:{4096+hf*2048+q*16}")
    e(f"s_waitcnt vmcnt({nt_})")
    X = 64
    for r in range(2):
        for j in range(8):
            src = 8 + 8 * r + j
            e(f"v_lshlrev_b32 v{X+16*r+2*j}, 16, v{src}\nv_and_b32 v{X+16*r+2*j+1}, 0xffff0000, v{src}")
    for r in range(2): e(f"v_add_f32 v{104+r}, v{X+16*r}, v{X+16*r+1}")
    for j in range(2, 16):
        for r in range(2): e(f"v_add_f32 v{104+r}, v{104+r}, v{X+16*r+j}")
    wave_sum(e, [104, 105], 106, [0, 1, 2, 3, 4, 5])
    for r in range(2): e(f"v_mul_f32 v{104+r}, {f32(1/1024)}, v{104+r}")
    for j in range(16):
        for r in range(2): e(f"v_sub_f32 v{X+16*r+j}, v{X+16*r+j}, v{104+r}")
    for r in range(2): e(f"v_mul_f32 v{107+r}, v{X+16*r}, v{X+16*r}")
    for j in range(1, 16):
        for r in range(2): e(f"v_fmac_f32 v{107+r}, v{X+16*r+j}, v{X+16*r+j}")
    wave_sum(e, [107, 108], 106, [0, 1, 2, 3, 4, 5])
    for r in range(2):
        e(f"v_mov_b32 v{109+r}, {f32(1e-5)}\nv_fmac_f32 v{109+r}, {f32(1/1024)}, v{107+r}\nv_rsq_f32 v{109+r}, v{109+r}")
    e("s_waitcnt lgkmcnt(0)")
    for r in range(2):
        for j in range(16):
            e(f"v_mul_f32 v{X+16*r+j}, v{X+16*r+j}, v{109+r}\nv_fma_f32 v{X+16*r+j}, v{X+16*r+j}, v{48+j}, v{32+j}")
        for j in range(8): e(f"v_cvt_pk_bf16_f32 v{112+8*r+j}, v{X+16*r+2*j}, v{X+16*r+2*j+1}")
        e(f"buffer_store_dwordx4 {v(112+8*r,4)}, v3, s[16:19], 0 offen offset:{r*2048}{SCS}")
        e(f"buffer_store_dwordx4 {v(116+8*r,4)}, v3, s[16:19], 0 offen offset:{r*2048+1024}{SCS}")
    e(f"s_lshr_b32 s35, s2, 4\ns_add_u32 s35, s35, {C_H}")
    def offs():
        e(f"s_lshr_b32 s33, s2, 4\ns_lshl_b32 s33, s33, 9\ns_and_b32 s34, s2, 15\ns_lshl_b32 s34, s34, 2\ns_add_u32 s33, s33, s34\ns_add_u32 s33, s33, {FL['qkv']}")
        e("v_lshlrev_b32 v6, 7, v2\nv_add_u32 v6, s33, v6")
    k.signal("h", 4, 35, 16, (4, offs))

def k_main():
    k = PK("main_kernel", 256, 512, LDS_TOTAL + 16384, 256, 100); e = k.e
    L = k.lab
    e(f"s_cmp_ge_u32 s2, 256\ns_cbranch_scc1 {L('end')}")
    e(f"s_load_dwordx4 s[68:71], s[0:1], {KA_X}\ns_load_dwordx4 s[72:75], s[0:1], {KA_W1}\ns_load_dwordx2 s[76:77], s[0:1], {KA_WO}")
    e(f"s_load_dwordx2 s[78:79], s[0:1], {KA_OUT}\ns_load_dwordx2 s[66:67], s[0:1], {KA_WS}")
    e("v_lshrrev_b32 v1, 6, v0\nv_and_b32 v2, 63, v0\nv_readfirstlane_b32 s24, v1")
    e(f"s_cmp_lg_u32 s24, 0\ns_cbranch_scc1 {L('noinit')}")
    e(f"v_lshlrev_b32 v3, 2, v2\nv_add_u32 v3, {CTL}, v3\nv_mov_b32 v4, 0\nds_write_b32 v3, v4\ns_waitcnt lgkmcnt(0)")
    e(f"{L('noinit')}:")
    e("s_waitcnt lgkmcnt(0)")
    k.srd(CNT, P_WS, WS_CNT, CNT_BYTES)
    k.st(0)
    e(f"s_cmp_ge_u32 s24, 4\ns_cbranch_scc1 {L('qkv_l')}")
    hin = "hsep" not in OPT
    if hin: h_phase(k)
    gemm_phase(k, "qkv", 1024, 1024, 3072, 192, WS_H, S * D * 2, P_WQKV, D * 3 * D * 2, "qkv", 8, 4, 3, L("att_c"), L("att_l"), (C_H, 16, "rb") if hin else None, (1, 2), hbar=hin)
    pf = [(P_WO, D * D * 2), (P_W1, D * DFF * 2), (P_W2, D * DFF * 2)] if "nopf" not in OPT else []
    attn_phase(k, L("wo_c"), L("wo_l"), pf)
    gemm_phase(k, "wo", 1024, 1024, 1024, 64, WS_O, S * D * 2, P_WO, D * D * 2, "wo", 4, 8, 4, L("f1_c"), L("f1_l"), (C_ATT, 32, "rb2"), (5, 6))
    gemm_phase(k, "f1", 1024, 1024, DFF, 224, WS_XG, S * D * 2, P_W1, D * DFF * 2, "ffn1", 8, 4, 3, L("f2_c"), L("f2_l"), (C_WO, 16, "rb"), (7, 8))
    if "nos2" in OPT:
        gemm_phase(k, "f2", DFF, DFF, 1024, 64, WS_F1, S * DFF * 2, P_W2, DFF * D * 2, "ffn2", 4, 8, 4, L("fin"), L("end"), (C_F1, 16, "rb"), (9, 10))
    else:
        gemm_phase(k, "f2", DFF, DFF, 1024, 128, F1OFF(), S * DFF * 2, P_W2, DFF * D * 2, "ffn2s", 4, 8, 4, L("fin"), L("end"), (C_F1, 8, "rb"), (9, 10))
    e(f"{L('fin')}:")
    if DIAG:
        e("s_waitcnt vmcnt(0)")
        k.st(11)
        e(f"s_cmp_lg_u32 s24, 0\ns_cbranch_scc1 {L('end')}")
        k.srd(12, P_WS, WS_STAMP + 8 * 512 * 16, 256 * 64)
        e(f"v_lshlrev_b32 v3, 2, v2\nv_add_u32 v4, {L_STAMP}, v3\nds_read_b32 v5, v4\ns_lshl_b32 s32, s2, 6\nv_add_u32 v3, s32, v3\ns_waitcnt lgkmcnt(0)")
        e("s_mov_b64 exec, 0xffff\nbuffer_store_dword v5, v3, s[12:15], 0 offen")
    k.finish()
    return k

def k_mod2():
    NG = 384 if "modall" in OPT else 128
    k = Kern("mod_kernel", NG + 128, 256, 1024, 64); e = k.e
    k.exit_extra()
    e("s_load_dwordx4 s[4:7], s[0:1], %d" % KA_C)
    k.ptr(8, KA_WS); k.ptr(10, KA_X)
    e(f"s_cmp_ge_u32 s2, {NG}\ns_cbranch_scc1 {k.lab('aux')}")
    e("s_and_b32 s24, s2, 3\ns_lshr_b32 s25, s2, 2")
    e("v_lshrrev_b32 v1, 3, v0\nv_and_b32 v2, 7, v0")
    e("s_lshl_b32 s26, s24, 8\nv_add_u32 v3, s26, v1")
    e("v_lshlrev_b32 v4, 1, v3")
    e("v_mul_u32_u24 v5, 12288, v3\nv_lshlrev_b32 v6, 4, v2\nv_add_u32 v5, v5, v6")
    e("s_lshl_b32 s27, s25, 7\nv_add_u32 v5, s27, v5")
    e("s_waitcnt lgkmcnt(0)")
    k.srd(12, 4, 0, 2048); k.srd(16, 6, 0, 1024 * 6144 * 2); k.srd(20, 8, WS_MODP, 4 * 6144 * 4)
    gemv_body(k, 8, 16, 48, 56, "s[12:15]", "s[16:19]", 32)
    k.stamp(2)
    e("v_lshrrev_b32 v9, 6, v0\nv_lshlrev_b32 v9, 8, v9\nv_lshlrev_b32 v10, 5, v2\nv_add_u32 v9, v9, v10")
    e("v_and_b32 v10, 63, v0\nv_cmp_gt_u32 vcc, 8, v10\ns_and_saveexec_b64 s[28:29], vcc")
    e("ds_write_b128 v9, v[48:51]\nds_write_b128 v9, v[52:55] offset:16")
    e("s_mov_b64 exec, s[28:29]")
    e("s_waitcnt lgkmcnt(0)\ns_barrier")
    e("v_cmp_gt_u32 vcc, 64, v0\ns_and_saveexec_b64 s[28:29], vcc")
    e(f"s_cbranch_execz {k.lab('end')}")
    e("v_lshlrev_b32 v9, 2, v0")
    for w in range(4): e(f"ds_read_b32 v{12+w}, v9 offset:{w*256}")
    e("s_waitcnt lgkmcnt(0)")
    e("v_add_f32 v12, v12, v13\nv_add_f32 v14, v14, v15\nv_add_f32 v12, v12, v14")
    e("s_mul_i32 s26, s24, 24576\ns_lshl_b32 s27, s25, 8\ns_add_u32 s26, s26, s27")
    e("buffer_store_dword v12, v9, s[20:23], s26 offen")
    k.stamp_flush(0, 56)
    e("s_endpgm")
    e(f"{k.lab('aux')}:")
    e(f"s_waitcnt lgkmcnt(0)\ns_sub_u32 s24, s2, {NG}")
    k.srd(12, 10, 0, S * D * 2)
    e("s_lshl_b32 s25, s24, 15\nv_lshlrev_b32 v1, 7, v0\nbuffer_load_dword v2, v1, s[12:15], s25 offen")
    e(f"s_add_u32 s16, s8, {WS_CNT:#x}\ns_addc_u32 s17, s9, 0\ns_mov_b32 s18, {CNT_BYTES}\ns_mov_b32 s19, 0x20000")
    e("s_lshl_b32 s25, s24, 12\nv_lshlrev_b32 v3, 4, v0\nv_mov_b32 v4, 0\nv_mov_b32 v5, 0\nv_mov_b32 v6, 0\nv_mov_b32 v7, 0\nbuffer_store_dwordx4 v[4:7], v3, s[16:19], s25 offen")
    assert CNT_BYTES <= 128 * 4096
    if gen.DIAG:
        k.stamp(1); k.stamp(2)
        k.a.lines.append("  s_nop 0")
    k.finish()
    return k

def gemv_body(k, CV, WV, AC, TMP, srd_c, srd_w, ssoff):
    e = k.e
    for i in range(8): e(f"buffer_load_ushort v{CV+i}, v4, {srd_c}, 0 offen offset:{i*64}")
    for i in range(8): e(f"s_mov_b32 s{ssoff+i}, {i*32*12288}")
    for i in range(8): e(f"buffer_load_dwordx4 {v(WV+4*i,4)}, v5, {srd_w}, s{ssoff+i} offen")
    gemv_finish(k, CV, WV, AC, TMP)

def gemv_finish(k, CV, WV, AC, TMP):
    e = k.e
    for j in range(8): e(f"v_mov_b32 v{AC+j}, 0")
    e("s_waitcnt vmcnt(8)")
    k.stamp(1) if not isinstance(k, PK) else None
    for i in range(8):
        x = CV + i
        e(f"v_lshlrev_b32 v{x}, 16, v{x}")
        e(f"v_mul_f32 v{TMP}, {f32(-LOG2E)}, v{x}\nv_exp_f32 v{TMP}, v{TMP}\nv_add_f32 v{TMP}, 1.0, v{TMP}\nv_rcp_f32 v{TMP}, v{TMP}\nv_mul_f32 v{x}, v{x}, v{TMP}")
        round_bf16(e, x)
    for i in range(8):
        e(f"s_waitcnt vmcnt({7-i})")
        for j in range(4):
            w = WV + 4 * i + j
            e(f"v_lshlrev_b32 v{TMP}, 16, v{w}\nv_and_b32 v{TMP+1}, 0xffff0000, v{w}")
            e(f"v_fmac_f32 v{AC+2*j}, v{CV+i}, v{TMP}\nv_fmac_f32 v{AC+2*j+1}, v{CV+i}, v{TMP+1}")
    wave_sum(e, list(range(AC, AC + 8)), TMP, [3, 4, 5])

def k_probe(idx, mult):
    k = Kern("probe_kernel", 1, 64, 0, 64); e = k.e
    e("s_cmp_ge_u32 s2, 1\ns_cbranch_scc1 probe_kernel_end")
    k.ptr(8, KA_WS); k.ptr(10, KA_DBG)
    e("s_waitcnt lgkmcnt(0)")
    k.srd(12, 8, WS_STAMP, 16 * 512 * 16); k.srd(20, 10, 0, 256)
    e("v_lshlrev_b32 v1, 4, v0\nv_lshlrev_b32 v2, 6, v0")
    for c in range(6): e(f"s_mov_b32 s24, {(c%2)*64*16}\nbuffer_load_dword v{8+c}, v1, s[12:15], s24 offen")
    for c in range(4): e(f"s_mov_b32 s24, {8*512*16 + c*64*64 + idx*4}\nbuffer_load_dword v{16+c}, v2, s[12:15], s24 offen")
    e("s_waitcnt vmcnt(0)")
    for c in range(1, 6): e(f"v_min_u32 v8, v8, v{8+c}")
    for c in range(1, 4): e(f"v_max_u32 v16, v16, v{16+c}")
    def red(r, op):
        for b in range(4): e(f"{op}_dpp v{r}, v{r}, v{r} row_ror:{1<<b} row_mask:0xf bank_mask:0xf")
        for w in (16, 32):
            e(f"v_mov_b32 v40, v{r}\nv_permlane{w}_swap_b32 v40, v{r}\n{op} v{r}, v{r}, v40")
    red(8, "v_min_u32"); red(16, "v_max_u32")
    e("v_sub_u32 v16, v16, v8\nv_mov_b32 v13, 0\nbuffer_store_dword v16, v13, s[20:23], 0 offen\nv_readfirstlane_b32 s30, v16")
    e(f"s_mul_i32 s30, s30, {mult}\ns_min_u32 s30, s30, 100000")
    e("s_memrealtime s[32:33]\ns_waitcnt lgkmcnt(0)")
    e("probe_spin:\ns_memrealtime s[34:35]\ns_waitcnt lgkmcnt(0)\ns_sub_u32 s36, s34, s32\ns_cmp_lt_u32 s36, s30\ns_cbranch_scc1 probe_spin")
    k.finish()
    return k

PROBE = None
def build():
    if PROBE is not None: return [k_mod2(), k_main(), k_probe(*PROBE)]
    if "hsep" in OPT: return [k_mod2(), gen.k_h(True), k_main()]
    return [k_mod2(), k_main()]

if __name__ == "__main__":
    for a_ in list(sys.argv):
        if a_.startswith("--opt="): OPT = set(a_[6:].split(",")); sys.argv.remove(a_)
        if a_.startswith("--pfstage="): PFSTAGE = int(a_[10:]); sys.argv.remove(a_)
        if a_.startswith("--scs="): SCS = " " + a_[6:].replace("+", " "); sys.argv.remove(a_)
        if a_.startswith("--l2d="): L2D = int(a_[6:]); sys.argv.remove(a_)
        if a_.startswith("--probe="): PROBE = tuple(int(x) for x in a_[8:].split(",")); sys.argv.remove(a_)
        if a_.startswith("--mrstep="): MRSTEP = int(a_[9:]); sys.argv.remove(a_)
        if a_.startswith("--align="):
            for kv in a_[8:].split(","):
                k_, v_ = kv.split(":"); ALIGN[k_] = None if v_ == "n" else int(v_)
            sys.argv.remove(a_)
        if a_.startswith("--sleep="): SLEEP = int(a_[8:]); sys.argv.remove(a_)
    if "--diag" in sys.argv: DIAG = True; gen.DIAG = True; sys.argv.remove("--diag")
    txt = emit(build(), header())
    out = sys.argv[1]
    open(out, "w").write(txt)
    print("wrote", out, len(txt), "bytes")
```

```python
import sys
from asmlib import *
import gen
from gen import (NAME, S, D, DFF, H, KA_X, KA_WQKV, KA_WO, KA_BX, KA_W1, KA_W2, KA_C, KA_WMOD, KA_OUT, KA_DBG, KA_WS,
                 WS_MODP, WS_MODF, WS_H, WS_QKV, WS_O, WS_X1, WS_F1, WS_XG, WS_STAT, WS_UB, WS_STAMP, LOG2E, f32, Kern,
                 wave_sum, round_bf16, interleave, header, emit)

WS_F1A = WS_H
WS_CNT = 0x2f00000
C_QKV, C_ATT, C_WO, C_UB, C_F1, C_H = 0, 16, 24, 40, 56, 72
C_MR, C_MRALL, C_ATTALL = 88, 152, 153
NCNT = 160
FL_BASE = NCNT * 256 + 1536
FL_BASE = (FL_BASE + 255) // 256 * 256
FL = {"qkv": FL_BASE, "att": FL_BASE + 256 * 128, "wo": FL_BASE + 256 * 128 + 256 * 256, "f1": FL_BASE + 256 * 256 + 2 * 256 * 128, "f2": FL_BASE + 256 * 256 + 3 * 256 * 128}
FL["xch"] = FL_BASE + 256 * 256 + 4 * 256 * 128
FL["mr"] = FL["xch"] + 256 * 128
CNT_BYTES = FL["mr"] + 8 * 128
WS_XCH = 0x3800000
OPT = set()
DIAG = False
SC = " sc1"
SCS = " sc1"
P_WS, P_X, P_WQKV, P_W1, P_W2, P_WO, P_OUT = 66, 68, 70, 72, 74, 76, 78
CNT = 28
CTL = 138240
L_SIG = {"qkv": CTL, "att": CTL + 4, "wo": CTL + 8, "ub": CTL + 12, "f1": CTL + 16, "h": CTL + 20, "mr": CTL + 24}
L_DEP = {"wo": CTL + 32, "f1": CTL + 36, "f2": CTL + 40, "qkv": CTL + 44}
L_STAMP = CTL + 64
LDS_TOTAL = CTL + 256
SPIN_MAX = 400000
SLEEP = 2
ALIGN = {}
PFSTAGE = 7
L2D = 8
MRSTEP = 9

def exec_mask(n):
    if n < 32: return f"s_mov_b64 exec, {(1 << n) - 1:#x}"
    return f"s_mov_b32 exec_lo, -1\ns_mov_b32 exec_hi, {(1 << (n - 32)) - 1:#x}"

def align(k, name):
    a = ALIGN.get(name, ALIGN.get("all", 0))
    if a is None: return
    k.a.lines.append(".p2align 6")
    for _ in range(a): k.e("s_nop 0")

class PK(Kern):
    def st(self, i, wave=0):
        if not DIAG: return
        e = self.e; n = self.lab(f"st{i}")
        e(f"s_cmp_lg_u32 s24, {wave}\ns_cbranch_scc1 {n}\n{'s_memtime' if 'cyc' in OPT else 's_memrealtime'} s[98:99]\ns_waitcnt lgkmcnt(0)\nv_mov_b32 v254, s98\nv_mov_b32 v255, {L_STAMP+4*i}\nds_write_b32 v255, v254\ns_waitcnt lgkmcnt(0)\n{n}:")
    def code_touch(self, tag, frm, to, part_sreg, nparts, per):
        if "code" not in OPT: return 0
        e = self.e; here = self.lab("pc" + tag)
        e(f"s_getpc_b64 s[90:91]\n{here}:\ns_add_u32 s90, s90, {frm}-{here}\ns_addc_u32 s91, s91, 0")
        e(f"s_mul_i32 s92, s{part_sreg}, {per*8192}\nv_lshlrev_b32 v252, 7, v2\nv_add_u32 v252, s92, v252")
        for i in range(per):
            if i: e("v_add_u32 v252, 8192, v252")
            e(f"v_min_u32 v251, {to}-{frm}-4, v252\nglobal_load_dword v253, v251, s[90:91]")
        return per
    def poll(self, tag, cnt_sreg, target, lanes=1):
        e = self.e; L = self.lab
        if cnt_sreg is not None: e(f"s_lshl_b32 s32, s{cnt_sreg}, 8\nv_mov_b32 v6, s32")
        e(f"s_mov_b32 s33, 0\ns_mov_b64 exec, {(1 << lanes) - 1}")
        e(f"{L('poll'+tag)}:")
        e(f"buffer_load_dword v7, v6, {s(CNT,4)}, 0 offen offset:{0 if 'direct' in OPT else 128} sc1\ns_waitcnt vmcnt(0)")
        e(f"v_cmp_gt_u32 vcc, {target}, v7\ns_cmp_eq_u64 vcc, 0\ns_cbranch_scc1 {L('pollx'+tag)}")
        e(f"s_add_u32 s33, s33, 1\ns_cmp_ge_u32 s33, {SPIN_MAX}\ns_cbranch_scc1 {L('pollx'+tag)}")
        e(f"s_sleep {SLEEP}\ns_branch {L('poll'+tag)}")
        e(f"{L('pollx'+tag)}:\ns_mov_b64 exec, -1")
    def dep_wait_loaders(self, tag, cnt_sreg, target, first_wave_cond):
        e = self.e; L = self.lab
        e(f"s_cmp_lg_u32 s24, 4\ns_cbranch_scc1 {L('dw'+tag)}")
        if "noflags" in OPT: self.poll(tag, cnt_sreg, target)
        else:
            if tag == "f2" and "nos2" not in OPT:
                e(f"s_lshl_b32 s34, s25, 1\ns_add_u32 s34, s34, s27\ns_lshl_b32 s34, s34, 7\ns_add_u32 s34, s34, {FL[tag]}")
            elif tag == "f2":
                e(f"s_lshl_b32 s34, s25, 4\ns_add_u32 s34, s34, s26\ns_lshl_b32 s34, s34, 7\ns_add_u32 s34, s34, {FL[tag]}")
            elif tag == "wo":
                e(f"s_lshr_b32 s34, s25, 1\ns_lshl_b32 s34, s34, 1\ns_lshr_b32 s33, s26, 3\ns_add_u32 s34, s34, s33\ns_lshl_b32 s34, s34, 7\ns_add_u32 s34, s34, {FL[tag]}")
            else:
                e(f"s_lshl_b32 s34, s25, 2\ns_lshr_b32 s33, s26, 2\ns_add_u32 s34, s34, s33\ns_lshl_b32 s34, s34, 7\ns_add_u32 s34, s34, {FL[tag]}")
            self.wait_flags(tag, target, 34)
        e(f"v_mov_b32 v6, {L_DEP[tag]}\nv_mov_b32 v7, 1\nds_write_b32 v6, v7\ns_waitcnt lgkmcnt(0)\ns_branch {L('dwx'+tag)}")
        e(f"{L('dw'+tag)}:")
        e(f"v_mov_b32 v6, {L_DEP[tag]}\ns_mov_b32 s33, 0")
        e(f"{L('dwl'+tag)}:")
        e(f"ds_read_b32 v7, v6\ns_waitcnt lgkmcnt(0)\nv_readfirstlane_b32 s34, v7")
        e(f"s_cmp_lg_u32 s34, 0\ns_cbranch_scc1 {L('dwx'+tag)}")
        e(f"s_add_u32 s33, s33, 1\ns_cmp_ge_u32 s33, {SPIN_MAX*4}\ns_cbranch_scc1 {L('dwx'+tag)}")
        e(f"s_sleep 1\ns_branch {L('dwl'+tag)}")
        e(f"{L('dwx'+tag)}:")
    def arrive(self, tag, cnt_sreg, target):
        e = self.e; L = self.lab
        e(f"s_lshl_b32 s33, s{cnt_sreg}, 8\nv_mov_b32 v6, s33\nv_mov_b32 v7, 1")
        if "direct" in OPT:
            e(f"buffer_atomic_add v7, v6, {s(CNT,4)}, 0 offen sc1")
            return
        e(f"buffer_atomic_add v7, v6, {s(CNT,4)}, 0 offen sc0 sc1\ns_waitcnt vmcnt(0)\nv_readfirstlane_b32 s33, v7")
        e(f"s_cmp_lg_u32 s33, {target-1}\ns_cbranch_scc1 {L('arr'+tag)}")
        e(f"v_mov_b32 v7, {target}\nbuffer_store_dword v7, v6, {s(CNT,4)}, 0 offen offset:128 sc1")
        e(f"{L('arr'+tag)}:")
    def signal(self, tag, nwaves, cnt_sreg, target, flags=None):
        e = self.e; L = self.lab
        e("s_waitcnt vmcnt(0)")
        e(f"v_mov_b32 v6, {L_SIG[tag]}\nv_mov_b32 v7, 1\ns_mov_b64 exec, 1")
        e("ds_add_rtn_u32 v7, v6, v7\ns_waitcnt lgkmcnt(0)\nv_readfirstlane_b32 s32, v7\ns_mov_b64 exec, -1")
        e(f"s_cmp_lg_u32 s32, {nwaves-1}\ns_cbranch_scc1 {L('sig'+tag)}")
        if flags is not None and "noflags" not in OPT:
            n, offs = flags
            offs()
            e("v_mov_b32 v7, 1\n" + exec_mask(n))
            e(f"buffer_store_dword v7, v6, {s(CNT,4)}, 0 offen sc1")
        else:
            e("s_mov_b64 exec, 1")
            self.arrive(tag, cnt_sreg, target)
        e(f"{L('sig'+tag)}:\ns_mov_b64 exec, -1")
    def wait_flags(self, tag, n, base_sreg):
        e = self.e; L = self.lab
        e(f"v_lshlrev_b32 v6, 2, v2\nv_add_u32 v6, s{base_sreg}, v6\ns_mov_b32 s33, 0")
        e(exec_mask(n))
        e(f"{L('poll'+tag)}:")
        e(f"buffer_load_dword v7, v6, {s(CNT,4)}, 0 offen sc1\ns_waitcnt vmcnt(0)")
        e(f"v_cmp_ne_u32 vcc, 1, v7\ns_cmp_eq_u64 vcc, 0\ns_cbranch_scc1 {L('pollx'+tag)}")
        e(f"s_add_u32 s33, s33, 1\ns_cmp_ge_u32 s33, {SPIN_MAX}\ns_cbranch_scc1 {L('pollx'+tag)}")
        e(f"s_sleep {SLEEP}\ns_branch {L('poll'+tag)}")
        e(f"{L('pollx'+tag)}:\ns_mov_b64 exec, -1")

def CHAIN(): return 'nochain' not in OPT and 'modall' not in OPT and 'mrwo' not in OPT

def F1OFF(): return WS_F1A if 'alias' in OPT else WS_F1

def tile_map(e, xr, xc):
    nxc = 16 // xc
    e(f"s_and_b32 s36, s2, 7\ns_lshr_b32 s37, s2, 3")
    e(f"s_and_b32 s38, s36, {nxc-1}\ns_lshr_b32 s39, s36, {nxc.bit_length()-1}")
    e(f"s_and_b32 s40, s37, {xc-1}\ns_lshr_b32 s41, s37, {xc.bit_length()-1}")
    e(f"s_mul_i32 s38, s38, {xc}\ns_add_u32 s26, s38, s40")
    e(f"s_mul_i32 s39, s39, {xr}\ns_add_u32 s25, s39, s41")

def tile_map_s2(e):
    e("s_and_b32 s36, s2, 7\ns_lshr_b32 s37, s2, 3\ns_and_b32 s27, s36, 1\ns_lshr_b32 s36, s36, 1")
    e("s_and_b32 s26, s37, 7\ns_lshr_b32 s37, s37, 3\ns_lshl_b32 s36, s36, 2\ns_add_u32 s25, s36, s37")

def gemm_phase(k, tag, K, lda, ldb, BN, srcA, sizeA, pB, sizeB, epi, xr, xc, NS, nxt_c, nxt_l, dep=None, stamps=(None, None), hbar=False):
    e = k.e
    L = lambda n: k.lab(tag + "_" + n)
    BM, BK = 128, 64
    nA = BM * BK * 2 // 1024; nB = BN * BK * 2 // 1024
    nAw, nBw = nA // 4, nB // 4
    nld = nAw + nBw
    SB = (nA + nB) * 1024
    s2 = epi == "ffn2s"
    nk = K // BK // (2 if s2 else 1)
    TM, TN = 64, BN // 2
    mt, nt = TM // 16, TN // 16
    pitch = BN * 2; cpr = BN // 8
    hbits = {4: 2, 6: 1, 2: 1, 0: 3}[(pitch // 32) % 8]
    ACC = 8; NACC = 4 * mt * nt
    FA = ACC + NACC; NF = 4 * (mt + nt); FB = FA + NF
    AX = FB + NF; AW = AX + 2; EP = AW + nt
    XL = 135168
    assert SB * NS <= XL
    perm = epi == "qkv" and "perm" in OPT
    asc = SC if dep else ""
    e(f"{L('c')}:")
    if s2: tile_map_s2(e)
    else: tile_map(e, xr, xc)
    e("s_lshr_b32 s42, s24, 1\ns_and_b32 s43, s24, 1")
    e("v_and_b32 v3, 15, v2\nv_lshrrev_b32 v4, 4, v2")
    e(f"s_lshl_b32 s44, s25, 7\ns_lshl_b32 s45, s42, 6\ns_add_u32 s44, s44, s45")
    e(f"s_mul_i32 s46, s26, {BN}\ns_mul_i32 s45, s43, {TN}\ns_add_u32 s46, s46, s45")
    k.srd(20, P_WS, WS_MODF, 6144 * 4)
    if epi == "qkv": k.srd(12, P_WS, WS_QKV, 96 * S * 64)
    elif epi == "ffn1": k.srd(12, P_WS, F1OFF(), S * DFF * 2)
    elif epi == "wo": k.srd(12, P_WS, WS_X1, S * D * 2); k.srd(16, P_X, 0, S * D * 2)
    elif epi in ("ffn2", "ffn2s"): k.srd(12, P_OUT, 0, S * D * 2); k.srd(16, P_WS, WS_X1, S * D * 2)
    G = EP + 2 * mt * nt; GG = G + 4 * nt; W1R = GG + 4 * nt
    if s2:
        G = EP + 16
        e("s_lshl_b32 s47, s27, 5\ns_add_u32 s46, s46, s47")
        e("s_lshl_b32 s47, s25, 4\ns_lshl_b32 s48, s26, 1\ns_add_u32 s47, s47, s48\ns_add_u32 s47, s47, s43\ns_lshl_b32 s47, s47, 2\ns_lshl_b32 s48, s42, 1\ns_add_u32 s47, s47, s48\ns_add_u32 s47, s47, s27\ns_lshl_b32 s47, s47, 12")
        e("v_lshlrev_b32 v5, 4, v2")
        for j in range(mt):
            e(f"buffer_load_dwordx4 {v(EP+4*j,4)}, v5, s[16:19], s47 offen offset:{j*1024}{SC}")
        if not CHAIN(): k.srd(20, P_WS, WS_MODP, 4 * 6144 * 4)
        e(f"v_lshlrev_b32 v6, 4, v4\ns_lshl_b32 s47, s46, 2\ns_add_u32 s47, s47, {5*1024*4}")
        for p_ in range(1 if CHAIN() else 4):
            for i in range(2):
                e(f"buffer_load_dwordx4 {v(G+8*p_+4*i,4)}, v6, s[20:23], s47 offen offset:{i*64}{SC}")
            if p_ < 3 and not CHAIN(): e("s_add_u32 s47, s47, 24576")
    if epi == "wo" and "modall" not in OPT and "mrwo" in OPT:
        e(f"s_load_dwordx4 s[36:39], s[0:1], {KA_C}")
        e("s_and_b32 s58, s2, 3\ns_lshr_b32 s59, s2, 2\ns_add_u32 s59, s59, 32")
        e("v_lshrrev_b32 v6, 3, v0\nv_and_b32 v7, 7, v0\nv_mov_b32 v247, v7")
        e("s_lshl_b32 s47, s58, 8\nv_add_u32 v6, s47, v6\nv_lshlrev_b32 v248, 1, v6")
        e("v_mul_u32_u24 v5, 12288, v6\nv_lshlrev_b32 v6, 4, v7\nv_add_u32 v5, v5, v6\ns_lshl_b32 s47, s59, 7\nv_add_u32 v5, s47, v5")
        e("s_waitcnt lgkmcnt(0)")
        k.srd(52, 36, 0, 2048); k.srd(60, 38, 0, 1024 * 6144 * 2)
        for i in range(8): e(f"buffer_load_ushort v{176+i}, v248, s[52:55], 0 offen offset:{i*64}")
        for i in range(8):
            e(f"s_mov_b32 s47, {i*32*12288}\nbuffer_load_dwordx4 {v(184+4*i,4)}, v5, s[60:63], s47 offen")
        gemv_finish(k, 176, 184, 216, 224)
        MRL = 139264
        e(f"s_lshl_b32 s47, s24, 8\nv_lshlrev_b32 v5, 5, v247\nv_add_u32 v5, s47, v5\nv_add_u32 v5, {MRL}, v5")
        e("s_mov_b64 exec, 0xff\nds_write_b128 v5, v[216:219]\nds_write_b128 v5, v[220:223] offset:16\ns_waitcnt lgkmcnt(0)")
        e(f"v_mov_b32 v6, {L_SIG['mr']}\nv_mov_b32 v7, 1\ns_mov_b64 exec, 1\nds_add_rtn_u32 v7, v6, v7\ns_waitcnt lgkmcnt(0)\nv_readfirstlane_b32 s47, v7\ns_mov_b64 exec, -1")
        e(f"s_cmp_lg_u32 s47, 3\ns_cbranch_scc1 {L('mrx')}")
        e(f"v_lshlrev_b32 v5, 2, v2\nv_add_u32 v6, {MRL}, v5")
        for w_ in range(4): e(f"ds_read_b32 v{216+w_}, v6 offset:{w_*256}")
        e("s_waitcnt lgkmcnt(0)\nv_add_f32 v216, v216, v217\nv_add_f32 v218, v218, v219\nv_add_f32 v216, v216, v218")
        k.srd(52, P_WS, WS_MODP, 4 * 6144 * 4)
        e("s_mul_i32 s47, s58, 24576\ns_lshl_b32 s48, s59, 8\ns_add_u32 s47, s47, s48")
        e(f"buffer_store_dword v216, v5, s[52:55], s47 offen{SCS}\ns_waitcnt vmcnt(0)")
        e(f"v_mov_b32 v6, {C_MRALL*256}\nv_mov_b32 v7, 1\ns_mov_b64 exec, 1\nbuffer_atomic_add v7, v6, {s(CNT,4)}, 0 offen sc1\ns_mov_b64 exec, -1")
        e(f"{L('mrx')}:")
    if epi in ("wo", "ffn2"):
        if epi == "wo":
            e(f"v_add_u32 v5, s44, v3\nv_lshlrev_b32 v5, 11, v5\nv_lshlrev_b32 v6, 3, v4\nv_add_u32 v5, v5, v6")
            e(f"s_lshl_b32 s47, s46, 1\nv_add_u32 v5, s47, v5")
            for j in range(mt):
                e(f"s_mov_b32 s48, {j*16*2048}")
                for i in range(nt):
                    e(f"buffer_load_dwordx2 {v(EP+2*(j*nt+i),2)}, v5, s[16:19], s48 offen offset:{i*32}")
        else:
            e("s_lshl_b32 s47, s25, 4\ns_add_u32 s47, s47, s26\ns_lshl_b32 s47, s47, 2\ns_add_u32 s47, s47, s24\ns_lshl_b32 s47, s47, 12\nv_lshlrev_b32 v5, 4, v2")
            for j in range(mt):
                e(f"buffer_load_dwordx4 {v(EP+4*j,4)}, v5, s[16:19], s47 offen offset:{j*1024}{SC}")
        if epi == "ffn2":
            raise NotImplementedError
        if epi == "wo" and CHAIN():
            e(f"s_and_b32 s35, s2, 7\ns_lshl_b32 s35, s35, 7\ns_add_u32 s35, s35, {FL['mr']}")
            k.wait_flags("mr", 1, 35)
            e(f"v_lshlrev_b32 v6, 4, v4\ns_lshl_b32 s47, s46, 2\ns_add_u32 s47, s47, {2*1024*4}")
            for i in range(nt):
                e(f"buffer_load_dwordx4 {v(G+4*i,4)}, v6, s[20:23], s47 offen offset:{i*64}{SC}")
            e(f"s_lshl_b32 s47, s46, 2\ns_add_u32 s47, s47, {4096*4}")
            for i in range(nt):
                e(f"buffer_load_dwordx4 {v(GG+4*i,4)}, v6, s[20:23], s47 offen offset:{i*64}{SC}")
        if epi == "wo":
            e("s_lshr_b32 s58, s2, 4\ns_and_b32 s59, s2, 15")
            e(f"v_mul_u32_u24 v5, {(65536+27)//28}, v2\nv_lshrrev_b32 v5, 16, v5\nv_mul_u32_u24 v6, 28, v5\nv_sub_u32 v6, v2, v6")
            e("s_lshl_b32 s60, s58, 6\ns_lshl_b32 s61, s24, 4\ns_add_u32 s60, s60, s61\nv_add_u32 v5, s60, v5")
            e(f"v_mul_u32_u24 v7, {DFF*2}, v5\nv_lshlrev_b32 v6, 4, v6\nv_add_u32 v7, v7, v6\ns_mul_i32 s60, s59, 448\nv_add_u32 v7, s60, v7")
            k.srd(60, P_W1, 0, D * DFF * 2)
            e("v_cmp_gt_u32 vcc, 56, v2\ns_and_saveexec_b64 s[34:35], vcc")
            for i in range(8):
                e(f"s_mov_b32 s64, {i*2*DFF*2}")
                e(f"buffer_load_dwordx4 {v(W1R+4*i,4)}, v7, s[60:63], s64 offen")
            if CHAIN():
                e("v_lshlrev_b32 v5, 2, v5")
                e(f"s_mov_b32 s64, {4096*4}\ns_mov_b32 s65, {3072*4}")
                for i in range(8):
                    e(f"buffer_load_dword v{W1R+32+i}, v5, s[20:23], s64 offen offset:{i*8}{SC}")
                    e(f"buffer_load_dword v{W1R+40+i}, v5, s[20:23], s65 offen offset:{i*8}{SC}")
            e("s_mov_b64 exec, s[34:35]")
    e(f"v_lshrrev_b32 v5, 1, v3\nv_xor_b32 v5, v5, v4\nv_and_b32 v5, 7, v5")
    e(f"v_lshlrev_b32 v5, 4, v5\ns_lshl_b32 s47, s42, 6\nv_add_u32 v6, s47, v3\nv_lshlrev_b32 v6, 7, v6")
    e(f"v_add_u32 v{AX}, v5, v6\nv_xor_b32 v{AX+1}, 64, v{AX}")
    e("v_lshrrev_b32 v5, 2, v3\nv_and_b32 v6, 3, v2")
    e("v_lshlrev_b32 v7, 3, v4\nv_add_u32 v7, v7, v5")
    e(f"v_mul_u32_u24 v7, {pitch}, v7\nv_lshlrev_b32 v6, 3, v6\nv_add_u32 v7, v7, v6\nv_add_u32 v7, {nA*1024}, v7")
    if hbits == 2: e("v_lshrrev_b32 v5, 1, v5\nv_and_b32 v6, 1, v4\nv_lshlrev_b32 v6, 1, v6\nv_or_b32 v5, v5, v6")
    elif hbits == 1: e("v_and_b32 v5, 1, v4")
    else: e("v_and_b32 v6, 1, v4\nv_lshlrev_b32 v6, 2, v6\nv_or_b32 v5, v5, v6")
    e(f"s_mul_i32 s47, s43, {nt}")
    for i in range(nt):
        e(f"s_add_u32 s48, s47, {i}\nv_xor_b32 v6, s48, v5\nv_lshlrev_b32 v6, 5, v6\nv_add_u32 v{AW+i}, v7, v6")
    for r in range(NACC): e(f"v_mov_b32 v{ACC+r}, 0")
    def reads(ss, F):
        xs = [f"ds_read_b128 {v(F+4*j,4)}, v{AX+ss} offset:{j*2048}" for j in range(mt)]
        ws = []
        for i in range(nt):
            for hh in range(2):
                ws.append(f"ds_read_b64_tr_b16 {v(F+4*mt+4*i+2*hh,2)}, v{AW+i} offset:{(ss*32+hh*4)*pitch}")
        return [xs[0]] + ws[:2] + xs[1:] + ws[2:]
    def mfmas(F):
        return [f"v_mfma_f32_16x16x32_bf16 {v(ACC+4*(j*nt+i),4)}, {v(F+4*mt+4*i,4)}, {v(F+4*j,4)}, {v(ACC+4*(j*nt+i),4)}"
                for j in range(mt) for i in range(nt)]
    def mix(mf, rd, extra=()):
        rd = list(rd)
        if len(rd) <= len(mf) - 4:
            return interleave(mf, rd + list(extra))
        out = []; oi = 0; ex = list(extra)
        for m_ in mf:
            out.append(m_)
            for _ in range(2):
                if oi < len(rd): out.append(rd[oi]); oi += 1
            if oi >= len(rd) and ex: out.append(ex.pop(0))
        out += rd[oi:] + ex
        return out
    if epi == "wo": k.code_touch("w", k.lab("f1_c"), k.lab("f2_c"), 24, 4, 1)
    if epi == "ffn1": k.code_touch("f", k.lab("f1_cloop"), k.lab("end"), 24, 4, 1)
    e(f"s_mov_b32 s49, 0\ns_mov_b32 s54, {SB}\ns_mov_b32 s55, {-(NS-1)*SB & 0xffffffff:#x}")
    e("s_barrier")
    if stamps[0] is not None: k.st(stamps[0])
    for l in reads(0, FA): e(l)
    l2pf = epi in ("qkv", "ffn1") and ("l2" + tag) in OPT
    if l2pf:
        k.srd(56, P_WS, srcA, sizeA); k.srd(60, pB, 0, sizeB)
        e(f"s_cmp_eq_u32 s24, 0\ns_cselect_b32 s65, {(nk-1) & 1}, 99")
        e("s_lshr_b32 s37, s2, 3")
        e(f"s_and_b32 s40, s37, {xc-1}\ns_lshr_b32 s41, s37, {xc.bit_length()-1}")
        e(f"v_lshrrev_b32 v5, 5, v2\nv_add_u32 v5, {L2D}, v5")
        e(f"v_and_b32 v6, 31, v2\ns_lshl_b32 s47, s40, 5\nv_add_u32 v6, s47, v6\ns_lshl_b32 s47, s25, 7\nv_add_u32 v6, s47, v6\nv_lshlrev_b32 v6, 11, v6\nv_lshlrev_b32 v7, 7, v5\nv_add_u32 v250, v6, v7")
        e(f"v_lshlrev_b32 v5, 6, v5\nv_lshrrev_b32 v6, 2, v2\nv_and_b32 v6, 7, v6\nv_add_u32 v5, v5, v6\ns_lshl_b32 s47, s41, 3\nv_add_u32 v5, s47, v5\ns_mov_b32 s47, {ldb*2}\nv_mul_lo_u32 v5, s47, v5")
        e(f"v_and_b32 v6, 3, v2\nv_lshlrev_b32 v6, 7, v6\nv_add_u32 v5, v5, v6\ns_mul_i32 s47, s26, {BN*2}\ns_and_b32 s47, s47, 0xffffff80\nv_add_u32 v249, s47, v5")
    e(f"s_mov_b32 s50, {nk-1}")
    adv_s = f"s_add_u32 s49, s49, 1\ns_cmp_eq_u32 s49, {NS}\ns_cselect_b32 s51, s55, s54\ns_cselect_b32 s49, 0, s49"
    adv_v = [f"v_add_u32 v{r}, s51, v{r}" for r in [AX, AX + 1] + [AW + i for i in range(nt)]]
    align(k, tag)
    e(f"{L('cloop')}:")
    if epi == "wo" and not CHAIN():
        if "modall" in OPT:
            e(f"s_cmp_eq_u32 s50, 12\ns_cbranch_scc0 {L('m2')}")
        else:
            e(f"s_cmp_eq_u32 s50, 11\ns_cbranch_scc0 {L('m1')}")
            e(f"v_mov_b32 v245, {C_MRALL*256}\nbuffer_load_dword v246, v245, {s(CNT,4)}, 0 offen sc1")
            e(f"{L('m1')}:\ns_cmp_eq_u32 s50, 8\ns_cbranch_scc0 {L('m2')}")
            e(f"s_waitcnt vmcnt(0)\nv_readfirstlane_b32 s47, v246\ns_cmp_ge_u32 s47, 256\ns_cbranch_scc1 {L('m1ok')}")
            e(f"v_mov_b32 v6, {C_MRALL*256 - 128}")
            k.poll("mr", None, 256)
            e(f"{L('m1ok')}:")
        k.srd(60, P_WS, WS_MODP, 4 * 6144 * 4)
        e("s_lshl_b32 s47, s26, 6\ns_lshr_b32 s48, s2, 4\ns_lshl_b32 s48, s48, 6\ns_cmp_ge_u32 s24, 2\ns_cselect_b32 s47, s48, s47")
        e("s_mov_b32 s48, 4096\ns_cmp_eq_u32 s24, 0\ns_cselect_b32 s48, 2048, s48\ns_cmp_eq_u32 s24, 3\ns_cselect_b32 s48, 3072, s48")
        e("s_add_u32 s47, s47, s48\ns_lshl_b32 s47, s47, 2\nv_lshlrev_b32 v245, 2, v2")
        for p_ in range(4):
            e(f"buffer_load_dword v{240+p_}, v245, s[60:63], s47 offen{SC}")
            if p_ < 3: e("s_add_u32 s47, s47, 24576")
        e(f"{L('m2')}:\ns_cmp_eq_u32 s50, 4\ns_cbranch_scc0 {L('m3')}")
        e("s_waitcnt vmcnt(0)\nv_add_f32 v240, v240, v241\nv_add_f32 v242, v242, v243\nv_add_f32 v240, v240, v242")
        round_bf16(e, 240)
        e("v_add_f32 v241, 1.0, v240")
        round_bf16(e, 241)
        e("s_sub_u32 s47, s24, 1\ns_cmp_lt_u32 s47, 2\ns_cselect_b64 vcc, -1, 0\nv_cndmask_b32 v240, v240, v241, vcc")
        e(f"s_lshl_b32 s47, s24, 8\ns_add_u32 s47, s47, 135168\nv_add_u32 v245, s47, v245\nds_write_b32 v245, v240")
        e(f"{L('m3')}:")
    if l2pf:
        e(f"s_and_b32 s47, s50, 1\ns_cmp_lg_u32 s47, s65\ns_cbranch_scc1 {L('nopf')}")
        e(f"buffer_load_dword v248, v250, s[56:59], 0 offen{asc}\nbuffer_load_dword v248, v249, s[60:63], 0 offen")
        e(f"v_add_u32 v250, 256, v250\nv_add_u32 v249, {2*64*ldb*2}, v249")
        e(f"{L('nopf')}:")
    def sprinkle(seq, extra, start):
        out = []; n_ = 0; ex = list(extra)
        for x in seq:
            out.append(x)
            if x.startswith("v_mfma"):
                n_ += 1
                if n_ > start and ex: out.append(ex.pop(0))
        return out + ex
    tight = "loose" not in OPT
    if not tight: e(adv_s)
    e("s_waitcnt lgkmcnt(0)")
    seq = mix(mfmas(FA), reads(1, FB))
    if tight: seq = sprinkle(seq, adv_s.split("\n"), 0)
    last_rd = max(i for i, x in enumerate(seq) if x.startswith("ds_read"))
    tail = [x for x in seq[last_rd + 1:]]
    seq = seq[:last_rd + 1]
    av = list(adv_v)
    for x in tail:
        seq.append(x)
        if av and x.startswith("v_mfma"): seq.append(av.pop(0))
    seq += av
    for l in seq: e(l)
    e("s_waitcnt lgkmcnt(0)\ns_barrier")
    seqb = mix(mfmas(FB), reads(0, FA))
    if tight:
        seqb = sprinkle(seqb, ["s_sub_u32 s50, s50, 1", "s_cmp_lg_u32 s50, 0"], 1)
        for l in seqb: e(l)
        e(f"s_cbranch_scc1 {L('cloop')}")
    else:
        for l in seqb: e(l)
        e(f"s_sub_u32 s50, s50, 1\ns_cmp_lg_u32 s50, 0\ns_cbranch_scc1 {L('cloop')}")
    e("s_waitcnt lgkmcnt(0)")
    for l in mix(mfmas(FA), reads(1, FB)): e(l)
    e("s_waitcnt lgkmcnt(0)")
    if epi != "qkv": e("s_barrier")
    for l in mfmas(FB): e(l)
    if stamps[1] is not None: k.st(stamps[1])
    T = FA
    def acc(i, j): return ACC + 4 * (j * nt + i)
    def pack_pair(ta, tb, dst):
        e(f"v_cvt_pk_bf16_f32 v{dst}, v{ta}, v{ta+1}\nv_cvt_pk_bf16_f32 v{dst+1}, v{ta+2}, v{ta+3}")
        e(f"v_cvt_pk_bf16_f32 v{dst+2}, v{tb}, v{tb+1}\nv_cvt_pk_bf16_f32 v{dst+3}, v{tb+2}, v{tb+3}")
        e(f"v_permlane16_swap_b32 v{dst}, v{dst+2}\nv_permlane16_swap_b32 v{dst+1}, v{dst+3}")
    e("v_and_b32 v5, 1, v4\nv_lshlrev_b32 v5, 5, v5\nv_lshrrev_b32 v6, 1, v4\nv_lshlrev_b32 v6, 4, v6\nv_add_u32 v5, v5, v6")
    if epi == "qkv":
        e("v_lshlrev_b32 v6, 6, v3\nv_add_u32 v5, v5, v6")
        n = 0
        for p in range(nt // 2):
            if perm:
                e(f"s_mul_i32 s52, s43, 96\ns_add_u32 s52, s52, {32*p}\ns_cmp_lt_u32 s52, 64\ns_cselect_b32 s53, {f32(LOG2E * 32 ** -0.5)}, 1.0")
                e("s_lshr_b32 s54, s52, 6\ns_lshl_b32 s54, s54, 5\ns_bfe_u32 s52, s52, 0x10005\ns_add_u32 s52, s52, s54\ns_lshl_b32 s54, s26, 1\ns_add_u32 s52, s52, s54")
                e("s_lshl_b32 s52, s52, 17\ns_lshl_b32 s54, s44, 6\ns_add_u32 s52, s52, s54")
            else:
                e(f"s_add_u32 s52, s46, {32*p}\ns_cmp_lt_u32 s52, 1024\ns_cselect_b32 s53, {f32(LOG2E * 32 ** -0.5)}, 1.0")
                e(f"s_lshl_b32 s52, s52, 12\ns_lshl_b32 s54, s44, 6\ns_add_u32 s52, s52, s54")
            e(f"s_cmp_eq_u32 s53, 1.0\ns_cbranch_scc1 {L(f'nosc{p}')}\nv_mov_b32 v6, s53")
            for j in range(mt):
                for t_ in (acc(2 * p, j), acc(2 * p + 1, j)):
                    for r in (0, 2): e(f"v_pk_mul_f32 {v(t_+r,2)}, {v(t_+r,2)}, v[6:7] op_sel_hi:[1,0]")
            e(f"{L(f'nosc{p}')}:")
            for j in range(mt):
                ta, tb = acc(2 * p, j), acc(2 * p + 1, j)
                d = T + 4 * (n % 8); n += 1
                pack_pair(ta, tb, d)
                e(f"buffer_store_dwordx4 {v(d,4)}, v5, s[12:15], s52 offen offset:{j*1024}{SCS}")
        e(f"s_add_u32 s35, s26, {C_QKV}")
        k.signal("qkv", 4, 35, 16, (6, lambda: e(f"s_mul_i32 s33, s26, 6\nv_add_u32 v6, s33, v2\nv_lshrrev_b32 v7, 5, v6\nv_and_b32 v6, 31, v6\nv_lshlrev_b32 v6, 8, v6"
                                                        f"\nv_lshlrev_b32 v7, 6, v7\nv_add_u32 v6, v6, v7"
                                                        f"\ns_lshl_b32 s33, s25, 2\ns_add_u32 s33, s33, {FL['att']}\nv_add_u32 v6, s33, v6")))

    elif epi == "ffn1":
        ST = FA; UU = FA + 8; BB = FA + 36; TMP = FA + 64; T = FA + 72
        e(f"s_lshl_b32 s47, s42, 6\nv_add_u32 v6, s47, v3\nv_lshlrev_b32 v6, 3, v6\nv_add_u32 v6, {XL}, v6")
        for j in range(mt): e(f"ds_read_b64 {v(ST+2*j,2)}, v6 offset:{j*128}")
        e(f"s_mul_i32 s47, s43, {TN*4}\ns_add_u32 s47, s47, {XL+1024}\nv_lshlrev_b32 v7, 4, v4\nv_add_u32 v7, s47, v7")
        for i in range(nt):
            e(f"ds_read_b128 {v(UU+4*i,4)}, v7 offset:{i*64}\nds_read_b128 {v(BB+4*i,4)}, v7 offset:{896+i*64}")
        e("s_lshl_b32 s47, s42, 6\nv_add_u32 v6, s47, v3\nv_lshlrev_b32 v6, 6, v6\nv_lshrrev_b32 v7, 1, v4\nv_lshlrev_b32 v7, 4, v7\nv_add_u32 v6, v6, v7")
        e("v_and_b32 v7, 1, v4\nv_lshlrev_b32 v5, 5, v7\nv_add_u32 v5, v5, v6")
        e("v_lshlrev_b32 v7, 10, v7\nv_add_u32 v6, v6, v7\ns_lshl_b32 s47, s43, 5\nv_add_u32 v6, s47, v6")
        e(f"s_mul_i32 s48, s25, 112\ns_mul_i32 s47, s26, 7\ns_add_u32 s48, s48, s47\ns_lshl_b32 s48, s48, 13")
        e(f"s_add_u32 s53, s48, {3*8192}")
        e("s_waitcnt lgkmcnt(0)")
        def ln(i, j, t):
            a_ = acc(i, j)
            for h_ in range(2):
                e(f"v_pk_fma_f32 {v(t+2*h_,2)}, {v(ST+2*j,2)}, {v(UU+4*i+2*h_,2)}, {v(BB+4*i+2*h_,2)} op_sel_hi:[0,1,1] neg_lo:[1,0,0] neg_hi:[1,0,0]")
            for h_ in range(2):
                e(f"v_pk_fma_f32 {v(a_+2*h_,2)}, {v(a_+2*h_,2)}, {v(ST+2*j,2)}, {v(t+2*h_,2)} op_sel:[0,1,0]")
        cnt = [0]
        def put(ta, tb, addr, soff, off):
            d = T + 4 * (cnt[0] % 4); cnt[0] += 1
            e(f"v_cvt_pk_bf16_f32 v{d}, v{ta}, v{ta+1}\nv_cvt_pk_bf16_f32 v{d+1}, v{ta+2}, v{ta+3}")
            e(f"v_cvt_pk_bf16_f32 v{d+2}, v{tb}, v{tb+1}\nv_cvt_pk_bf16_f32 v{d+3}, v{tb+2}, v{tb+3}")
            for q in range(4): e(f"v_pk_max_i16 v{d+q}, v{d+q}, 0")
            e(f"v_permlane16_swap_b32 v{d}, v{d+2}\nv_permlane16_swap_b32 v{d+1}, v{d+3}")
            e(f"buffer_store_dwordx4 {v(d,4)}, {addr}, s[12:15], {soff} offen offset:{off}{SCS}")
        XA = 139264; XR = T + 16
        e(f"s_lshl_b32 s47, s24, 10\nv_lshlrev_b32 v7, 4, v2\nv_add_u32 v7, s47, v7\nv_add_u32 v7, {XA}, v7")
        e(f"s_cmp_eq_u32 s43, 1\ns_cbranch_scc1 {L('ep1')}")
        for wn_ in range(2):
            if wn_ == 1: e(f"{L('ep1')}:\ns_add_u32 s48, s48, {4*8192}")
            single = 6 if wn_ == 0 else 0
            pairs = [(0, 1), (2, 3), (4, 5)] if wn_ == 0 else [(1, 2), (3, 4), (5, 6)]
            mine = (0, 1) if wn_ == 0 else (2, 3); give = (2, 3) if wn_ == 0 else (0, 1)
            for jj in (0, 2):
                ln(single, jj, TMP); ln(single, jj + 1, TMP + 4)
            for j in range(4):
                a_ = acc(single, j)
                e(f"v_cvt_pk_bf16_f32 v{XR+2*j}, v{a_}, v{a_+1}\nv_cvt_pk_bf16_f32 v{XR+2*j+1}, v{a_+2}, v{a_+3}")
            for q in range(8): e(f"v_pk_max_i16 v{XR+q}, v{XR+q}, 0")
            e(f"ds_write_b128 v7, {v(XR+2*give[0],4)}\ns_waitcnt lgkmcnt(0)")
            e(f"s_lshl_b32 s47, s24, 2\ns_add_u32 s47, s47, {CTL+48}\nv_mov_b32 v{TMP}, s47\nv_mov_b32 v{TMP+1}, 1\nds_write_b32 v{TMP}, v{TMP+1}")
            for pi, (ia, ib) in enumerate(pairs):
                for j in range(mt):
                    ln(ia, j, TMP); ln(ib, j, TMP + 4)
                    put(acc(ia, j), acc(ib, j), "v5", "s48", j * 1024)
                if pi < 2: e("s_add_u32 s48, s48, 8192")
            tg = f"x{wn_}"
            e(f"s_xor_b32 s47, s24, 1\ns_lshl_b32 s47, s47, 2\ns_add_u32 s47, s47, {CTL+48}\nv_mov_b32 v{TMP}, s47\ns_mov_b32 s33, 0")
            e(f"{L('xw'+tg)}:\nds_read_b32 v{TMP+1}, v{TMP}\ns_waitcnt lgkmcnt(0)\nv_readfirstlane_b32 s34, v{TMP+1}")
            e(f"s_cmp_lg_u32 s34, 0\ns_cbranch_scc1 {L('xx'+tg)}\ns_add_u32 s33, s33, 1\ns_cmp_lt_u32 s33, {SPIN_MAX}\ns_cbranch_scc1 {L('xw'+tg)}")
            e(f"{L('xx'+tg)}:")
            e(f"v_xor_b32 v7, 1024, v7\nds_read_b128 {v(TMP,4)}, v7\ns_waitcnt lgkmcnt(0)")
            for n_, j in enumerate(mine):
                d = T + 4 * (cnt[0] % 4); cnt[0] += 1
                own = XR + 2 * j; oth = TMP + 2 * n_
                a0, b0 = (own, oth) if wn_ == 0 else (oth, own)
                e(f"v_mov_b32 v{d}, v{a0}\nv_mov_b32 v{d+1}, v{a0+1}\nv_mov_b32 v{d+2}, v{b0}\nv_mov_b32 v{d+3}, v{b0+1}")
                e(f"v_permlane16_swap_b32 v{d}, v{d+2}\nv_permlane16_swap_b32 v{d+1}, v{d+3}")
                e(f"buffer_store_dwordx4 {v(d,4)}, v5, s[12:15], s53 offen offset:{j*1024}{SCS}")
            if wn_ == 0: e(f"s_branch {L('ep2')}")
        e(f"{L('ep2')}:")
        if "stf1" in OPT: k.st(12)
        e(f"s_add_u32 s35, s25, {C_F1}")
        k.signal("f1", 4, 35, 16, (16, lambda: e(f"s_lshl_b32 s33, s25, 11\ns_lshl_b32 s34, s26, 2\ns_add_u32 s33, s33, s34\ns_add_u32 s33, s33, {FL['f2']}\nv_lshlrev_b32 v6, 7, v2\nv_add_u32 v6, s33, v6")) if "nos2" in OPT else
                 (1, lambda: e(f"s_lshl_b32 s33, s25, 1\ns_lshr_b32 s34, s26, 3\ns_add_u32 s33, s33, s34\ns_lshl_b32 s33, s33, 7\ns_and_b32 s34, s26, 7\ns_lshl_b32 s34, s34, 2\ns_add_u32 s33, s33, s34\ns_add_u32 s33, s33, {FL['f2']}\nv_mov_b32 v6, s33")))
        if "stf1" in OPT: k.st(13)
    elif s2:
        e(f"s_cmp_eq_u32 s27, 0\ns_cbranch_scc1 {L('noswap')}")
        for j in range(mt):
            for r in range(8): e(f"v_swap_b32 v{acc(0,j)+r}, v{acc(2,j)+r}")
        e(f"{L('noswap')}:")
        k.srd(56, P_WS, WS_XCH, 128 * 2 * 4 * 8192)
        e("s_lshl_b32 s47, s25, 3\ns_add_u32 s47, s47, s26\ns_lshl_b32 s47, s47, 1")
        e("s_xor_b32 s48, s27, 1\ns_add_u32 s48, s48, s47\ns_lshl_b32 s49, s48, 2\ns_add_u32 s49, s49, s24\ns_lshl_b32 s49, s49, 13")
        e("s_add_u32 s52, s47, s27\ns_lshl_b32 s53, s52, 2\ns_add_u32 s53, s53, s24\ns_lshl_b32 s53, s53, 13")
        e("v_lshlrev_b32 v7, 4, v2")
        for j in range(mt):
            if j == 2: e("s_add_u32 s49, s49, 4096")
            e(f"buffer_store_dwordx4 {v(acc(2,j),4)}, v7, s[56:59], s49 offen offset:{(j%2)*2048}{SCS}")
            e(f"buffer_store_dwordx4 {v(acc(3,j),4)}, v7, s[56:59], s49 offen offset:{(j%2)*2048+1024}{SCS}")
        e("s_waitcnt vmcnt(8)")
        XT = T + 32
        for r in range(0 if CHAIN() else 8):
            e(f"v_add_f32 v{G+r}, v{G+r}, v{G+8+r}\nv_add_f32 v{G+16+r}, v{G+16+r}, v{G+24+r}\nv_add_f32 v{G+r}, v{G+r}, v{G+16+r}")
            round_bf16(e, G + r)
        for j in range(mt):
            for i in range(2):
                a0 = acc(i, j); x0 = EP + 4 * j + 2 * i
                for q in range(2):
                    e(f"v_lshlrev_b32 v{XT+2*q}, 16, v{x0+q}\nv_and_b32 v{XT+2*q+1}, 0xffff0000, v{x0+q}")
                for q in range(2):
                    e(f"v_pk_fma_f32 {v(a0+2*q,2)}, {v(a0+2*q,2)}, {v(G+4*i+2*q,2)}, {v(XT+2*q,2)}")
        e(f"v_add_u32 v6, s44, v3\nv_lshlrev_b32 v6, 11, v6\ns_lshl_b32 s47, s46, 1\nv_add_u32 v6, s47, v6\nv_add_u32 v5, v5, v6")
        e("s_waitcnt vmcnt(0)")
        e(f"s_lshl_b32 s48, s48, 7\ns_lshl_b32 s54, s24, 2\ns_add_u32 s48, s48, s54\ns_add_u32 s48, s48, {FL['xch']}\nv_mov_b32 v6, s48\nv_mov_b32 v249, 1")
        e(f"s_mov_b64 exec, 1\nbuffer_store_dword v249, v6, {s(CNT,4)}, 0 offen sc1\ns_mov_b64 exec, -1")
        e(f"s_lshl_b32 s52, s52, 7\ns_add_u32 s52, s52, s54\ns_add_u32 s52, s52, {FL['xch']}\nv_mov_b32 v6, s52\ns_mov_b32 s33, 0\ns_mov_b64 exec, 1")
        e(f"{L('xpoll')}:")
        e(f"buffer_load_dword v249, v6, {s(CNT,4)}, 0 offen sc1\ns_waitcnt vmcnt(0)\nv_readfirstlane_b32 s34, v249")
        e(f"s_cmp_eq_u32 s34, 1\ns_cbranch_scc1 {L('xdone')}\ns_add_u32 s33, s33, 1\ns_cmp_lt_u32 s33, {SPIN_MAX}\ns_cbranch_scc1 {L('xpoll')}")
        e(f"{L('xdone')}:\ns_mov_b64 exec, -1")
        for j in range(mt):
            if j == 2: e("s_add_u32 s53, s53, 4096")
            e(f"buffer_load_dwordx4 {v(acc(2,j),4)}, v7, s[56:59], s53 offen offset:{(j%2)*2048}{SC}")
            e(f"buffer_load_dwordx4 {v(acc(3,j),4)}, v7, s[56:59], s53 offen offset:{(j%2)*2048+1024}{SC}")
        for j in range(mt):
            e(f"s_waitcnt vmcnt({2*(mt-1-j) + j})")
            e(f"s_mov_b32 s48, {j*16*2048}")
            d = T + 4 * (j % 2)
            for i in range(2):
                for q in range(2):
                    e(f"v_pk_fma_f32 {v(acc(i,j)+2*q,2)}, {v(acc(2+i,j)+2*q,2)}, {v(G+4*i+2*q,2)}, {v(acc(i,j)+2*q,2)}")
            pack_pair(acc(0, j), acc(1, j), d)
            e(f"buffer_store_dwordx4 {v(d,4)}, v5, s[12:15], s48 offen{' sc1' if 'outsc1' in OPT else ('' if 'outplain' in OPT else ' nt')}")
    else:
        if not CHAIN():
            ML = 135168
            e(f"s_lshl_b32 s47, s43, 7\nv_lshlrev_b32 v6, 4, v4\nv_add_u32 v6, s47, v6\nv_add_u32 v6, {ML}, v6")
            for i in range(nt):
                e(f"ds_read_b128 {v(G+4*i,4)}, v6 offset:{i*64}\nds_read_b128 {v(GG+4*i,4)}, v6 offset:{256+i*64}")
            e(f"v_mul_u32_u24 v6, {(65536+27)//28}, v2\nv_lshrrev_b32 v6, 16, v6\nv_min_u32 v6, 1, v6\ns_lshl_b32 s47, s24, 4\nv_add_u32 v6, s47, v6\nv_lshlrev_b32 v6, 2, v6\nv_add_u32 v6, {ML+512}, v6")
            for i in range(8):
                e(f"ds_read_b32 v{W1R+32+i}, v6 offset:{i*8}\nds_read_b32 v{W1R+40+i}, v6 offset:{256+i*8}")
            e("s_waitcnt lgkmcnt(0)")
        e("s_waitcnt vmcnt(0)")
        XT = T + 32
        e(f"v_add_u32 v6, s44, v3\nv_lshlrev_b32 v6, 11, v6\ns_lshl_b32 s47, s46, 1\nv_add_u32 v6, s47, v6\nv_add_u32 v5, v5, v6")
        if epi == "wo":
            k.srd(16, P_WS, WS_XG, S * D * 2); k.srd(60, P_WS, WS_STAT, 32 * S * 8)
            if CHAIN():
                for r in range(4 * nt):
                    e(f"v_add_f32 v{GG+r}, 1.0, v{GG+r}"); round_bf16(e, GG + r)
            e(f"s_lshl_b32 s49, s26, 1\ns_add_u32 s49, s49, s43\ns_lshl_b32 s49, s49, 14\ns_lshl_b32 s50, s44, 3\ns_add_u32 s49, s49, s50")
            e("v_lshlrev_b32 v1, 3, v3\nv_and_b32 v6, 1, v4\nv_lshlrev_b32 v6, 2, v6\nv_add_u32 v1, v1, v6")
            e("s_lshl_b32 s47, s25, 4\ns_add_u32 s47, s47, s26\ns_lshl_b32 s47, s47, 2\ns_add_u32 s47, s47, s24\ns_lshl_b32 s47, s47, 12\nv_lshlrev_b32 v7, 4, v2\nv_mov_b32 v253, v7")
        for j in range(mt):
            e(f"s_mov_b32 s48, {j*16*2048}")
            d = T + 4 * (j % 2); d2 = T + 8 + 4 * (j % 2); SM = T + 16 + 4 * (j % 2)
            for i in range(nt):
                a0 = acc(i, j); x0 = EP + 2 * (j * nt + i)
                for q in range(2):
                    e(f"v_lshlrev_b32 v{XT+2*q}, 16, v{x0+q}\nv_and_b32 v{XT+2*q+1}, 0xffff0000, v{x0+q}")
                for q in range(2):
                    e(f"v_pk_fma_f32 {v(a0+2*q,2)}, {v(a0+2*q,2)}, {v(G+4*i+2*q,2)}, {v(XT+2*q,2)}")
            ta, tb = acc(0, j), acc(1, j)
            e(f"v_cvt_pk_bf16_f32 v{d}, v{ta}, v{ta+1}\nv_cvt_pk_bf16_f32 v{d+1}, v{ta+2}, v{ta+3}")
            e(f"v_cvt_pk_bf16_f32 v{d+2}, v{tb}, v{tb+1}\nv_cvt_pk_bf16_f32 v{d+3}, v{tb+2}, v{tb+3}")
            if epi == "ffn2":
                e(f"v_permlane16_swap_b32 v{d}, v{d+2}\nv_permlane16_swap_b32 v{d+1}, v{d+3}")
                e(f"buffer_store_dwordx4 {v(d,4)}, v5, s[12:15], s48 offen")
                continue
            for q in range(2):
                e(f"v_pk_mul_f32 {v(XT+2*q,2)}, {v(ta+2*q,2)}, {v(GG+2*q,2)}\nv_pk_mul_f32 {v(XT+4+2*q,2)}, {v(tb+2*q,2)}, {v(GG+4+2*q,2)}")
            for q in range(4): e(f"v_cvt_pk_bf16_f32 v{d2+q}, v{XT+2*q}, v{XT+2*q+1}")
            e(f"v_permlane16_swap_b32 v{d2}, v{d2+2}\nv_permlane16_swap_b32 v{d2+1}, v{d2+3}")
            e(f"buffer_store_dwordx4 {v(d2,4)}, v5, s[16:19], s48 offen{SCS}")
            e(f"buffer_store_dwordx4 {v(d,4)}, v253, s[12:15], s47 offen offset:{j*1024}{SCS}")
            e(f"v_pk_add_f32 {v(SM,2)}, {v(ta,2)}, {v(ta+2,2)}\nv_pk_mul_f32 {v(SM+2,2)}, {v(ta,2)}, {v(ta,2)}")
            e(f"v_pk_add_f32 {v(SM,2)}, {v(SM,2)}, {v(tb,2)}\nv_pk_fma_f32 {v(SM+2,2)}, {v(ta+2,2)}, {v(ta+2,2)}, {v(SM+2,2)}")
            e(f"v_pk_add_f32 {v(SM,2)}, {v(SM,2)}, {v(tb+2,2)}\nv_pk_fma_f32 {v(SM+2,2)}, {v(tb,2)}, {v(tb,2)}, {v(SM+2,2)}")
            e(f"v_pk_fma_f32 {v(SM+2,2)}, {v(tb+2,2)}, {v(tb+2,2)}, {v(SM+2,2)}")
            e(f"v_add_f32 v{SM}, v{SM}, v{SM+1}\nv_add_f32 v{SM+2}, v{SM+2}, v{SM+3}")
            e(f"v_permlane16_swap_b32 v{SM}, v{SM+2}\nv_add_f32 v{SM}, v{SM}, v{SM+2}\nv_mov_b32 v{SM+1}, v{SM}")
            e(f"v_permlane32_swap_b32 v{SM}, v{SM+1}\nv_add_f32 v{SM}, v{SM}, v{SM+1}")
            e(f"s_mov_b32 exec_lo, -1\ns_mov_b32 exec_hi, 0\nbuffer_store_dword v{SM}, v1, s[60:63], s49 offen offset:{j*128}{SCS}\ns_mov_b64 exec, -1")
        if epi == "wo":
            if "stwo" in OPT: k.st(12)
            e(f"s_add_u32 s35, s25, {C_WO}")
            k.signal("wo", 4, 35, 16, (4, lambda: e(f"s_lshl_b32 s33, s25, 9\ns_lshl_b32 s34, s26, 2\ns_add_u32 s33, s33, s34\ns_add_u32 s33, s33, {FL['f1']}\nv_lshlrev_b32 v6, 7, v2\nv_add_u32 v6, s33, v6")))
            if "stwo" in OPT: k.st(13)
            UA = ACC
            for r in range(16): e(f"v_mov_b32 v{UA+r}, 0")
            for i in range(8):
                g_ = W1R + 32 + i; s_ = W1R + 40 + i
                if CHAIN():
                    e(f"v_add_f32 v{g_}, 1.0, v{g_}"); round_bf16(e, g_)
                for q in range(4):
                    w_ = W1R + 4 * i + q
                    e(f"v_lshlrev_b32 v6, 16, v{w_}\nv_and_b32 v7, 0xffff0000, v{w_}")
                    e(f"v_fmac_f32 v{UA+2*q}, v{g_}, v6\nv_fmac_f32 v{UA+2*q+1}, v{g_}, v7\nv_fmac_f32 v{UA+8+2*q}, v{s_}, v6\nv_fmac_f32 v{UA+8+2*q+1}, v{s_}, v7")
            UL = 139264
            e(f"v_mul_u32_u24 v5, {(65536+27)//28}, v2\nv_lshrrev_b32 v5, 16, v5\nv_mul_u32_u24 v6, 28, v5\nv_sub_u32 v6, v2, v6")
            e(f"s_lshl_b32 s32, s24, 1\nv_add_u32 v5, s32, v5\nv_mul_u32_u24 v5, 1792, v5\nv_lshlrev_b32 v6, 5, v6\nv_add_u32 v5, v5, v6\nv_add_u32 v5, {UL}, v5")
            e("v_cmp_gt_u32 vcc, 56, v2\ns_and_saveexec_b64 s[34:35], vcc")
            e(f"ds_write_b128 v5, {v(UA,4)}\nds_write_b128 v5, {v(UA+4,4)} offset:16\nds_write_b128 v5, {v(UA+8,4)} offset:896\nds_write_b128 v5, {v(UA+12,4)} offset:912")
            e("s_mov_b64 exec, s[34:35]\ns_waitcnt lgkmcnt(0)")
            e(f"v_mov_b32 v6, {L_SIG['ub']}\nv_mov_b32 v7, 1\ns_mov_b64 exec, 1")
            e("ds_add_rtn_u32 v7, v6, v7\ns_waitcnt lgkmcnt(0)\nv_readfirstlane_b32 s32, v7\ns_mov_b64 exec, -1")
            e(f"s_cmp_lg_u32 s32, 3\ns_cbranch_scc1 {L('ubx')}")
            e(f"v_lshlrev_b32 v5, 2, v2\nv_add_u32 v5, {UL}, v5")
            for m_ in range(7):
                for rr in range(8): e(f"ds_read_b32 v{UA+rr}, v5 offset:{rr*1792+m_*256}")
                e("s_waitcnt lgkmcnt(0)")
                for rr in range(1, 8): e(f"v_add_f32 v{UA}, v{UA}, v{UA+rr}")
                e(f"v_mov_b32 v{UA+16+m_}, v{UA}")
            k.srd(16, P_WS, WS_UB, 16 * 2 * DFF * 4)
            e(f"s_mul_i32 s49, s58, {2*DFF*4}\ns_mul_i32 s50, s59, 896\ns_add_u32 s49, s49, s50")
            for m_ in range(7):
                e(f"v_add_u32 v5, {64*m_}, v2\nv_cmp_le_u32 vcc, 224, v5\nv_mov_b32 v6, {DFF*4 - 896}\nv_cndmask_b32 v6, 0, v6, vcc\nv_lshl_add_u32 v5, v5, 2, v6")
                e(f"buffer_store_dword v{UA+16+m_}, v5, s[16:19], s49 offen{SCS}")
            e("s_waitcnt vmcnt(0)")
            e(f"s_add_u32 s35, s59, {C_UB}\ns_mov_b64 exec, 1")
            k.arrive("ub", 35, 16)
            e("s_mov_b64 exec, -1")
            e(f"{L('ubx')}:")
    e(f"s_branch {nxt_c}")
    e(f"{L('l')}:")
    if s2: tile_map_s2(e)
    else: tile_map(e, xr, xc)
    k.srd(4, P_WS, srcA, sizeA); k.srd(8, pB, 0, sizeB)
    e("s_sub_u32 s42, s24, 4")
    LA = 8
    lda2, ldb2 = lda * 2, ldb * 2
    blocked = epi in ("ffn2", "ffn2s")
    if blocked:
        e(f"s_mul_i32 s43, s25, {112*8192}\ns_mul_i32 s44, s42, {nAw*8*64}\ns_add_u32 s43, s43, s44")
        e("v_lshrrev_b32 v3, 3, v2\nv_lshlrev_b32 v3, 6, v3\nv_add_u32 v3, s43, v3")
        e("v_and_b32 v4, 7, v2\nv_lshrrev_b32 v5, 4, v2")
        for i in range(nAw):
            e(f"v_xor_b32 v6, {(i&1)*4}, v5\nv_xor_b32 v6, v6, v4\nv_lshrrev_b32 v7, 2, v6\nv_lshlrev_b32 v7, 13, v7\nv_and_b32 v6, 3, v6\nv_lshlrev_b32 v6, 4, v6")
            e(f"v_add3_u32 v6, v6, v7, v3\nv_add_u32 v{LA+i}, {i*8*64}, v6")
    else:
        e(f"s_lshl_b32 s43, s25, 7\ns_mul_i32 s44, s42, {nAw*8}\ns_add_u32 s43, s43, s44")
        e(f"v_lshrrev_b32 v3, 3, v2\nv_add_u32 v3, s43, v3\ns_mov_b32 s45, {lda2}\nv_mul_lo_u32 v3, s45, v3")
        e("v_and_b32 v4, 7, v2\nv_lshrrev_b32 v5, 4, v2")
        for i in range(nAw):
            e(f"v_xor_b32 v6, {(i&1)*4}, v5\nv_xor_b32 v6, v6, v4\nv_lshlrev_b32 v6, 4, v6\nv_add_u32 v6, v6, v3")
            e(f"v_add_u32 v{LA+i}, {i*8*lda2}, v6")
    ASTEP = 16384 if blocked else BK * 2
    magic = (65536 + cpr - 1) // cpr
    assert all((p * magic) >> 16 == p // cpr for p in range(nBw * 64)) and nBw * 64 == 16 * cpr
    e(f"s_mul_i32 s43, s42, {16*ldb2}\ns_mul_i32 s44, s26, {128 if perm else BN*2}\ns_add_u32 s43, s43, s44")
    for i in range(nBw):
        e(f"v_add_u32 v3, {i*64}, v2\nv_mul_u32_u24 v4, {magic}, v3\nv_lshrrev_b32 v4, 16, v4")
        e(f"v_mul_u32_u24 v5, {cpr}, v4\nv_sub_u32 v3, v3, v5")
        if hbits == 2: e("v_and_b32 v5, 2, v4\nv_lshrrev_b32 v6, 1, v4\nv_and_b32 v6, 4, v6\nv_or_b32 v5, v5, v6")
        elif hbits == 1: e("v_lshrrev_b32 v5, 2, v4\nv_and_b32 v5, 2, v5")
        else: e("v_and_b32 v5, 3, v4\nv_lshrrev_b32 v6, 1, v4\nv_and_b32 v6, 4, v6\nv_or_b32 v5, v5, v6\nv_lshlrev_b32 v5, 1, v5")
        e("v_xor_b32 v3, v3, v5")
        if perm: e("v_lshrrev_b32 v5, 3, v3\nv_and_b32 v3, 7, v3\nv_lshlrev_b32 v5, 7, v5\nv_add_u32 v3, v3, v5")
        e(f"v_lshlrev_b32 v3, 4, v3\ns_mov_b32 s45, {ldb2}\nv_mul_lo_u32 v4, s45, v4\nv_add_u32 v3, v3, v4")
        e(f"v_add_u32 v{LA+nAw+i}, s43, v3")
    e(f"s_mul_i32 s46, s42, {nAw*1024}")
    e(f"s_mul_i32 s47, s42, {nBw*1024}\ns_add_u32 s47, s47, {nA*1024}")
    def issue_x(lds_s, off_s):
        for i in range(nAw):
            e(f"s_add_u32 m0, {lds_s}, {i*1024}")
            e(f"buffer_load_dwordx4 v{LA+i}, s[4:7], {off_s} offen{asc} lds")
    def issue_w(lds_s, off_s):
        for i in range(nBw):
            e(f"s_add_u32 m0, {lds_s}, {i*1024}")
            e(f"buffer_load_dwordx4 v{LA+nAw+i}, s[8:11], {off_s} offen lds")
    if s2: e(f"s_mul_i32 s62, s27, {nk*ASTEP}\ns_mul_i32 s63, s27, {nk*BK*ldb2}")
    else: e("s_mov_b32 s62, 0\ns_mov_b32 s63, 0")
    def w_prologue():
        for st in range(NS - 1):
            e(f"s_add_u32 s52, s47, {st*SB}\ns_add_u32 s49, s63, {st*BK*ldb2}")
            issue_w("s52", "s49")
    if dep:
        base, target, kind = dep
        e(f"s_lshr_b32 s35, s25, 1\ns_add_u32 s35, s35, {base}" if kind == "rb2" else f"s_add_u32 s35, s25, {base}")
        if "wfirst" in OPT:
            w_prologue()
            k.dep_wait_loaders(tag, 35, target, None)
        else:
            e(f"s_cmp_eq_u32 s24, 4\ns_cbranch_scc1 {L('w4a')}")
            w_prologue()
            e(f"{L('w4a')}:")
            if hbar and "nowq" not in OPT:
                e(f"s_cmp_eq_u32 s24, 4\ns_cbranch_scc1 {L('nowqpf')}")
                e("s_mul_i32 s43, s2, 3\ns_add_u32 s43, s43, s24\ns_sub_u32 s43, s43, 5\ns_lshl_b32 s43, s43, 13\nv_lshlrev_b32 v3, 7, v2")
                e("buffer_load_dword v253, v3, s[8:11], s43 offen")
                e(f"{L('nowqpf')}:")
            if hbar: e("s_barrier")
            k.dep_wait_loaders(tag, 35, target, None)
            e(f"s_cmp_lg_u32 s24, 4\ns_cbranch_scc1 {L('w4b')}")
            w_prologue()
            e(f"{L('w4b')}:")
        if tag == "f1" and "stwo" in OPT: k.st(14, 4)
        if tag == "wo" and "statt" in OPT: k.st(15, 4)
        if tag == "f2" and "stf1" in OPT: k.st(14, 4)
    else:
        w_prologue()
    for st in range(NS - 1):
        e(f"s_add_u32 s51, s46, {st*SB}\ns_add_u32 s48, s62, {st*ASTEP}")
        issue_x("s51", "s48")
    e(f"s_add_u32 s48, s62, {(NS-1)*ASTEP}\ns_add_u32 s49, s63, {(NS-1)*BK*ldb2}\ns_mov_b32 s50, {(NS-1)*SB}")
    def issue():
        e("s_add_u32 s51, s50, s46\ns_add_u32 s52, s50, s47")
        issue_x("s51", "s48"); issue_w("s52", "s49")
        e(f"s_add_u32 s48, s48, {ASTEP}\ns_add_u32 s49, s49, {BK*ldb2}")
        e(f"s_add_u32 s50, s50, {SB}\ns_cmp_eq_u32 s50, {SB*NS}\ns_cselect_b32 s50, 0, s50")
    e(f"s_waitcnt vmcnt({nAw*(NS-2)})\ns_barrier")
    issue()
    e(f"s_waitcnt vmcnt({nAw*(NS-3) + nld})\ns_barrier" if NS >= 3 else "")
    issue()
    for t in range(2, NS - 1):
        e(f"s_waitcnt vmcnt({nAw*(NS-2-t) + nld*t})\ns_barrier")
        issue()
    done = max(2, NS - 1)
    e(f"s_mov_b32 s53, {nk-(NS-1)-done}")
    e(f"{L('lloop')}:")
    e(f"s_waitcnt vmcnt({nld*(NS-2)})\ns_barrier")
    issue()
    e(f"s_sub_u32 s53, s53, 1\ns_cmp_lg_u32 s53, 0\ns_cbranch_scc1 {L('lloop')}")
    nx = 0
    for t in range(NS - 1):
        e(f"s_waitcnt vmcnt({nld*(NS-2-t)+nx})\ns_barrier")
        if epi == "qkv" and t == 0 and "modall" not in OPT and "mrwo" not in OPT:
            nx = 16
            e(f"s_load_dwordx4 s[36:39], s[0:1], {KA_C}")
            e("s_and_b32 s58, s2, 3\ns_lshr_b32 s59, s2, 2\ns_add_u32 s59, s59, 32\ns_mov_b32 s64, s58\ns_mov_b32 s65, s59")
            e("v_subrev_u32 v3, 256, v0\nv_lshrrev_b32 v6, 3, v3\nv_and_b32 v7, 7, v3\nv_mov_b32 v22, v7")
            e("s_lshl_b32 s43, s58, 8\nv_add_u32 v6, s43, v6\nv_lshlrev_b32 v4, 1, v6")
            e("v_mul_u32_u24 v5, 12288, v6\nv_lshlrev_b32 v6, 4, v7\nv_add_u32 v5, v5, v6\ns_lshl_b32 s43, s59, 7\nv_add_u32 v5, s43, v5")
            e("s_waitcnt lgkmcnt(0)")
            k.srd(52, 36, 0, 2048); k.srd(60, 38, 0, 1024 * 6144 * 2)
            for i in range(8): e(f"buffer_load_ushort v{24+i}, v4, s[52:55], 0 offen offset:{i*64}")
            for i in range(8):
                e(f"s_mov_b32 s43, {i*32*12288}\nbuffer_load_dwordx4 {v(32+4*i,4)}, v5, s[60:63], s43 offen")
        if epi == "ffn1" and t == 0:
            nx = 32
            k.srd(56, P_WS, WS_STAT, 32 * S * 8); k.srd(60, P_WS, WS_UB, 16 * 2 * DFF * 4)
            e(f"s_cmp_ge_u32 s42, 2\ns_cbranch_scc1 {L('ubld')}")
            e(f"s_lshl_b32 s43, s42, 6\nv_add_u32 v3, s43, v2\ns_lshl_b32 s44, s25, 7\nv_add_u32 v4, s44, v3\nv_lshlrev_b32 v4, 3, v4")
            for sl in range(32):
                e(f"s_mov_b32 s45, {sl*S*8}\nbuffer_load_dwordx2 {v(32+2*sl,2)}, v4, s[56:59], s45 offen{SC}")
            e(f"s_branch {L('ldd')}")
            e(f"{L('ubld')}:")
            e(f"s_add_u32 s35, s26, {C_UB}")
            k.poll(tag + "u", 35, 16)
            if "alias" in OPT:
                e(f"v_mov_b32 v6, {C_ATTALL*256 - 128}")
                k.poll(tag + "a", None, 256)
            e(f"s_sub_u32 s43, s42, 2\ns_lshl_b32 s43, s43, 6\nv_add_u32 v3, s43, v2")
            e(f"s_mul_i32 s44, s26, {BN*4}\nv_lshlrev_b32 v4, 3, v3\nv_add_u32 v4, s44, v4")
            for kg in range(16):
                for w_ in range(2):
                    e(f"s_mov_b32 s45, {(kg*2+w_)*DFF*4}\nbuffer_load_dwordx2 {v(32+4*kg+2*w_,2)}, v4, s[60:63], s45 offen{SC}")
            e(f"{L('ldd')}:")
    if epi == "ffn1":
        e("s_waitcnt vmcnt(0)")
        e(f"s_cmp_ge_u32 s42, 2\ns_cbranch_scc1 {L('ubred')}")
        for sl in range(1, 32): e(f"v_add_f32 v32, v32, v{32+2*sl}\nv_add_f32 v33, v33, v{33+2*sl}")
        e(f"v_mul_f32 v32, {f32(1/1024)}, v32\nv_mul_f32 v33, {f32(1/1024)}, v33")
        e(f"v_fma_f32 v33, -v32, v32, v33\nv_max_f32 v33, 0, v33\nv_add_f32 v33, {f32(1e-5)}, v33\nv_rsq_f32 v33, v33")
        e("v_mul_f32 v32, v32, v33")
        e(f"v_lshlrev_b32 v4, 3, v3\nv_add_u32 v4, {XL}, v4\nds_write_b64 v4, v[32:33]")
        e(f"s_branch {L('redd')}")
        e(f"{L('ubred')}:")
        for kg in range(1, 16):
            for q in range(4): e(f"v_add_f32 v{32+q}, v{32+q}, v{32+4*kg+q}")
        e(f"v_lshlrev_b32 v4, 3, v3\nv_add_u32 v4, {XL+1024}, v4\nv_cmp_gt_u32 vcc, 112, v3\ns_and_saveexec_b64 s[44:45], vcc")
        e(f"ds_write_b64 v4, v[32:33]\nds_write_b64 v4, v[34:35] offset:896\ns_mov_b64 exec, s[44:45]")
        e(f"{L('redd')}:")
        e("s_waitcnt lgkmcnt(0)")
    if epi == "qkv" and "modall" not in OPT and "mrwo" not in OPT:
        gemv_finish(k, 24, 32, 64, 72)
        MRL = 139264
        e(f"s_sub_u32 s43, s24, 4\ns_lshl_b32 s43, s43, 8\nv_lshlrev_b32 v9, 5, v22\nv_add_u32 v9, s43, v9\nv_add_u32 v9, {MRL}, v9")
        e("s_mov_b64 exec, 0xff\nds_write_b128 v9, v[64:67]\nds_write_b128 v9, v[68:71] offset:16\ns_waitcnt lgkmcnt(0)")
        e(f"v_mov_b32 v6, {L_SIG['mr']}\nv_mov_b32 v8, 1\ns_mov_b64 exec, 1\nds_add_rtn_u32 v8, v6, v8\ns_waitcnt lgkmcnt(0)\nv_readfirstlane_b32 s43, v8\ns_mov_b64 exec, -1")
        e(f"s_cmp_lg_u32 s43, 3\ns_cbranch_scc1 {L('mrx')}")
        e(f"v_lshlrev_b32 v9, 2, v2\nv_add_u32 v10, {MRL}, v9")
        for w_ in range(4): e(f"ds_read_b32 v{12+w_}, v10 offset:{w_*256}")
        e("s_waitcnt lgkmcnt(0)\nv_add_f32 v12, v12, v13\nv_add_f32 v14, v14, v15\nv_add_f32 v12, v12, v14")
        k.srd(52, P_WS, WS_MODP, 4 * 6144 * 4)
        e("s_mul_i32 s43, s64, 24576\ns_lshl_b32 s44, s65, 8\ns_add_u32 s43, s43, s44")
        e(f"buffer_store_dword v12, v9, s[52:55], s43 offen{SCS}\ns_waitcnt vmcnt(0)")
        if "nochain" in OPT:
            e(f"v_mov_b32 v6, {C_MRALL*256}\nv_mov_b32 v8, 1\ns_mov_b64 exec, 1\nbuffer_atomic_add v8, v6, {s(CNT,4)}, 0 offen sc1\ns_mov_b64 exec, -1")
        else:
            k.srd(60, P_WS, WS_MODF, 6144 * 4)
            e(f"s_sub_u32 s45, s65, 32\ns_add_u32 s45, s45, {C_MR}\ns_lshl_b32 s45, s45, 8\nv_mov_b32 v6, s45\nv_mov_b32 v8, 1\ns_mov_b64 exec, 1")
            e(f"buffer_atomic_add v8, v6, {s(CNT,4)}, 0 offen sc0 sc1\ns_waitcnt vmcnt(0)\nv_readfirstlane_b32 s45, v8\ns_mov_b64 exec, -1")
            e(f"s_cmp_lg_u32 s45, 3\ns_cbranch_scc1 {L('mrx')}")
            for p_ in range(4):
                e(f"s_add_u32 s45, s44, {p_*24576}\nbuffer_load_dword v{12+p_}, v9, s[52:55], s45 offen{SC}")
            e("s_waitcnt vmcnt(0)\nv_add_f32 v12, v12, v13\nv_add_f32 v14, v14, v15\nv_add_f32 v12, v12, v14")
            round_bf16(e, 12)
            e(f"buffer_store_dword v12, v9, s[60:63], s44 offen{SCS}\ns_waitcnt vmcnt(0)")
            e(f"v_mov_b32 v6, {C_MRALL*256}\nv_mov_b32 v8, 1\ns_mov_b64 exec, 1")
            e(f"buffer_atomic_add v8, v6, {s(CNT,4)}, 0 offen sc0 sc1\ns_waitcnt vmcnt(0)\nv_readfirstlane_b32 s45, v8\ns_mov_b64 exec, -1")
            e(f"s_cmp_lg_u32 s45, 63\ns_cbranch_scc1 {L('mrx')}")
            e(f"v_lshlrev_b32 v6, 7, v2\nv_add_u32 v6, {FL['mr']}, v6\nv_mov_b32 v8, 1\ns_mov_b64 exec, 0xff\nbuffer_store_dword v8, v6, {s(CNT,4)}, 0 offen sc1\ns_mov_b64 exec, -1")
        e(f"{L('mrx')}:")
    if epi != "qkv": e("s_barrier")
    e(f"s_branch {nxt_l}")

def attn_phase(k, nxt_c, nxt_l, pf):
    e = k.e
    L = lambda n: k.lab("att_" + n)
    old4 = "nsl3" not in OPT
    NSL = 4 if old4 else 3; KPS = 128; SBK = KPS * 64
    HB = 2 * SBK; SB = 2 * HB
    FLAG = CTL + 160 if old4 else NSL * SB
    S0 = 1 if old4 else 0
    e(f"{L('c')}:\n{L('l')}:")
    e("s_and_b32 s36, s2, 7\ns_lshr_b32 s37, s2, 3\ns_lshl_b32 s36, s36, 2\ns_lshr_b32 s38, s37, 3\ns_add_u32 s25, s36, s38")
    e("s_and_b32 s26, s37, 7")
    e("s_and_b32 s34, s24, 3\ns_lshr_b32 s27, s24, 2")
    e("s_mov_b32 s57, s34")
    e("s_lshl_b32 s40, s25, 17")
    e(f"s_add_u32 s32, s{P_WS}, {WS_QKV:#x}\ns_addc_u32 s33, s{P_WS+1}, 0\ns_add_u32 s32, s32, s40\ns_addc_u32 s33, s33, 0")
    k.srd(4, 32, 0, S * 64); k.srd(8, 32, 32 * S * 64, S * 64); k.srd(12, 32, 64 * S * 64, S * 64)
    k.srd(16, P_WS, WS_O, S * D * 2)
    QG, KH = 57, 27
    Q = 4 + 4; KF = 24; VF = 32
    NEG = 40; O = 72; LS = 104; SEL = 112
    SS = [[116, 132], [148, 164]]
    PP = [[180, 188], [196, 204]]
    AK0, AK1, AV, AN0, AN1, DK, DV = 212, 213, 214, 215, 216, 217, 218
    HH, QL = 219, 220
    T = 221
    PFD = 230
    e(f"v_and_b32 v{QL}, 31, v2\nv_lshrrev_b32 v{HH}, 5, v2")
    e(f"s_lshl_b32 s39, s26, 8\ns_lshl_b32 s40, s{QG}, 6\ns_add_u32 s39, s39, s40")
    e(f"v_lshrrev_b32 v{T}, 2, v2\ns_lshl_b32 s40, s{QG}, 5\nv_add_u32 v{T}, s40, v{T}\nv_lshlrev_b32 v{T}, 6, v{T}")
    e(f"v_and_b32 v{T+1}, 3, v2\nv_lshrrev_b32 v{T+2}, 4, v2\nv_xor_b32 v{T+1}, v{T+1}, v{T+2}\nv_lshlrev_b32 v{T+1}, 4, v{T+1}")
    e(f"v_add_u32 v{DK}, v{T}, v{T+1}")
    e(f"v_lshlrev_b32 v{DV}, 4, v2\ns_lshl_b32 s40, s{QG}, 11\nv_add_u32 v{DV}, s40, v{DV}")
    e(f"s_lshl_b32 s41, s{QG}, 11\ns_mul_i32 s40, s{KH}, {HB}\ns_add_u32 s41, s41, s40")
    e(f"s_mul_i32 s45, s{KH}, {S*32}")
    def addr_setup():
        e(f"s_mul_i32 s40, s{KH}, {HB}")
        e(f"v_lshrrev_b32 v{T}, 2, v{QL}\nv_and_b32 v{T}, 3, v{T}\nv_xor_b32 v{T}, v{T}, v{HH}\nv_lshlrev_b32 v{T}, 4, v{T}")
        e(f"v_lshlrev_b32 v{T+1}, 6, v{QL}\nv_add_u32 v{T+3}, v{T}, v{T+1}")
        e(f"v_add_u32 v{AK0}, s40, v{T+3}\nv_xor_b32 v{AK1}, 32, v{AK0}")
        e(f"v_and_b32 v{T}, 15, v2\nv_lshrrev_b32 v{T}, 2, v{T}\nv_lshlrev_b32 v{T+1}, 2, v{HH}\nv_add_u32 v{T}, v{T}, v{T+1}\nv_lshlrev_b32 v{T}, 6, v{T}")
        e(f"v_lshrrev_b32 v{T+1}, 4, v2\nv_and_b32 v{T+1}, 1, v{T+1}\nv_lshlrev_b32 v{T+1}, 5, v{T+1}\nv_add_u32 v{T}, v{T}, v{T+1}")
        e(f"v_and_b32 v{T+1}, 3, v2\nv_lshlrev_b32 v{T+1}, 3, v{T+1}\nv_add_u32 v{T}, v{T}, v{T+1}\nv_add_u32 v{T}, {SBK}, v{T}\nv_add_u32 v{AV}, s40, v{T}")
    addr_setup()
    if S0: e(f"v_add_u32 v{AK0}, {S0*SB}, v{AK0}\nv_add_u32 v{AK1}, {S0*SB}, v{AK1}\nv_add_u32 v{AV}, {S0*SB}, v{AV}\nv_add_u32 v{T+3}, {S0*SB}, v{T+3}")
    smf = "nosmf" not in OPT
    SIX = 239
    def dense_selector():
        e(f"v_lshrrev_b32 v{T}, 4, v2\nv_lshrrev_b32 v{T+1}, 2, v2\nv_xor_b32 v{T}, v{T}, v{T+1}\nv_and_b32 v{T}, 1, v{T}")
        e(f"v_cmp_eq_u32 vcc, 0, v{T}\nv_mov_b32 v{T+1}, 0x3f803f80")
        e(f"v_cndmask_b32 v{SEL}, 0, v{T+1}, vcc")
        for r in range(1, 4): e(f"v_mov_b32 v{SEL+r}, v{SEL}")
    if smf:
        e(f"v_and_b32 v{T}, 4, v2\nv_cmp_eq_u32 vcc, 0, v{T}\nv_mov_b32 v{T+1}, 0x3f803f80")
        e(f"v_cndmask_b32 v{SEL}, 0, v{T+1}, vcc\nv_cndmask_b32 v{SEL+2}, v{T+1}, 0, vcc\nv_mov_b32 v{SEL+1}, v{SEL}\nv_mov_b32 v{SEL+3}, v{SEL+2}")
        e(f"v_and_b32 v{T}, 2, v2\nv_cmp_eq_u32 vcc, 0, v{T}\nv_mov_b32 v{T+1}, 0xeeeeeeee\nv_mov_b32 v{T+2}, 0x44444444\nv_cndmask_b32 v{SIX}, v{T+1}, v{T+2}, vcc")
    else:
        dense_selector()
    def zero_acc():
        for r in range(32): e(f"v_mov_b32 v{O+r}, 0")
        for r in range(8): e(f"v_mov_b32 v{LS+r}, 0")
    zero_acc()
    for r in range(8): e(f"v_mov_b32 v{VF+r}, 0")
    for qb in range(2):
        for r in range(8): e(f"v_mov_b32 v{PP[1][qb]+r}, 0")
    e(f"s_cmp_lg_u32 s24, 4\ns_cbranch_scc1 {L('nodep')}")
    if "noflags" in OPT:
        e(f"v_lshlrev_b32 v6, 10, v2\ns_lshl_b32 s35, s25, 5\nv_add_u32 v6, s35, v6\nv_mul_u32_u24 v6, {(65536 + 191) // 192}, v6\nv_lshrrev_b32 v6, 16, v6")
        e(f"v_add_u32 v6, {C_QKV}, v6\nv_lshlrev_b32 v6, 8, v6")
        k.poll("att", None, 16, lanes=3)
    else:
        e(f"s_lshl_b32 s35, s25, 8\ns_add_u32 s35, s35, {FL['att']}")
        k.wait_flags("att", 48, 35)
    e(f"{L('nodep')}:")
    e("s_barrier")
    k.st(3)
    e(f"v_mov_b32 v{T}, {FLAG}\nv_mov_b32 v{T+1}, 0\nds_write_b32 v{T}, v{T+1}")
    e(f"v_add_u32 v{T}, s39, v{QL}\nv_lshlrev_b32 v{T}, 6, v{T}\nv_lshlrev_b32 v{T+1}, 4, v{HH}\nv_add_u32 v{T}, v{T}, v{T+1}")
    for qb in range(2):
        e(f"buffer_load_dwordx4 {v(Q+8*qb,4)}, v{T}, s[4:7], 0 offen offset:{qb*2048}{SC}")
        e(f"buffer_load_dwordx4 {v(Q+8*qb+4,4)}, v{T}, s[4:7], 0 offen offset:{qb*2048+32}{SC}")
    def dma(slot_sreg):
        e(f"s_add_u32 s43, {slot_sreg}, s41\ns_add_u32 s46, s42, s45")
        e(f"s_mov_b32 m0, s43\nbuffer_load_dwordx4 v{DK}, s[8:11], s46 offen{SC} lds")
        e(f"s_add_u32 m0, s43, {SBK}\nbuffer_load_dwordx4 v{DV}, s[12:15], s46 offen{SC} lds")
        e(f"s_add_u32 s46, s46, 1024\ns_add_u32 m0, s43, 1024\nbuffer_load_dwordx4 v{DK}, s[8:11], s46 offen{SC} lds")
        e(f"s_add_u32 m0, s43, {SBK+1024}\nbuffer_load_dwordx4 v{DV}, s[12:15], s46 offen{SC} lds")
        e(f"s_add_u32 s42, s42, {SBK}")
    def dma_both(slot_sreg):
        e(f"s_lshl_b32 s43, s{QG}, 11\ns_add_u32 s43, s43, {slot_sreg}")
        for hf in range(2):
            e(f"s_add_u32 s46, s42, {hf*S*32}")
            e(f"s_add_u32 m0, s43, {hf*HB}\nbuffer_load_dwordx4 v{DK}, s[8:11], s46 offen{SC} lds")
            e(f"s_add_u32 m0, s43, {hf*HB+SBK}\nbuffer_load_dwordx4 v{DV}, s[12:15], s46 offen{SC} lds")
            e(f"s_add_u32 s46, s46, 1024\ns_add_u32 m0, s43, {hf*HB+1024}\nbuffer_load_dwordx4 v{DK}, s[8:11], s46 offen{SC} lds")
            e(f"s_add_u32 m0, s43, {hf*HB+SBK+1024}\nbuffer_load_dwordx4 v{DV}, s[12:15], s46 offen{SC} lds")
    def kread(a0, a1, t):
        return [f"ds_read_b128 {v(KF,4)}, v{a0} offset:{t*2048}", f"ds_read_b128 {v(KF+4,4)}, v{a1} offset:{t*2048}"]
    def vread(t):
        return [f"ds_read_b64_tr_b16 {v(VF+4*m+2*hh,2)}, v{AV} offset:{t*2048+(16*m+8*hh)*64}" for m in range(2) for hh in range(2)]
    def qk(qb, dst, c):
        return [f"v_mfma_f32_32x32x16_bf16 {v(dst,16)}, {v(KF,4)}, {v(Q+8*qb,4)}, {c}",
                f"v_mfma_f32_32x32x16_bf16 {v(dst,16)}, {v(KF+4,4)}, {v(Q+8*qb+4,4)}, {v(dst,16)}"]
    def pv(qb, P):
        o, l = O + 16 * qb, LS + 4 * qb
        return [f"v_mfma_f32_32x32x16_bf16 {v(o,16)}, {v(VF,4)}, {v(P,4)}, {v(o,16)}",
                f"v_mfma_f32_16x16x32_bf16 {v(l,4)}, {v(SEL,4)}, {v(P,4)}, {v(l,4)}",
                f"v_mfma_f32_32x32x16_bf16 {v(o,16)}, {v(VF+4,4)}, {v(P+4,4)}, {v(o,16)}",
                f"v_mfma_f32_16x16x32_bf16 {v(l,4)}, {v(SEL,4)}, {v(P+4,4)}, {v(l,4)}"]
    def lane_max16(src, dst, tmp):
        e(f"v_max3_f32 v{dst}, v{src}, v{src+1}, v{src+2}")
        for r in range(3, 15, 2): e(f"v_max3_f32 v{dst}, v{dst}, v{src+r}, v{src+r+1}")
        e(f"v_max_f32 v{dst}, v{dst}, v{src+15}")
        e(f"v_mov_b32 v{tmp}, v{dst}\nv_permlane32_swap_b32 v{tmp}, v{dst}\nv_max_f32 v{dst}, v{dst}, v{tmp}")
    NST = S // 2 // KPS
    HALF = S * 32
    e("s_mov_b32 s42, 0")
    for st in range(2):
        e(f"s_mov_b32 s44, {(st+S0)*SB}")
        dma("s44")
    e("s_waitcnt vmcnt(4)\ns_barrier")
    e(f"v_xor_b32 v{T+4}, 32, v{T+3}")
    for l in kread(T + 3, T + 4, 0): e(l)
    e("s_waitcnt lgkmcnt(0)")
    for qb in range(2):
        for l in qk(qb, SS[1][qb], "0"): e(l)
    for l in kread(AK0, AK1, 0): e(l)
    for qb in range(2):
        lane_max16(SS[1][qb], T, T + 1)
        e(f"v_add_f32 v{T}, {f32(40.0)}, v{T}")
        for r in range(16): e(f"v_sub_f32 v{NEG+16*qb+r}, 0, v{T}")
    e("s_waitcnt lgkmcnt(0)")
    for qb in range(2):
        for l in qk(qb, SS[0][qb], v(NEG + 16 * qb, 16)): e(l)
    for l in kread(AK0, AK1, 1): e(l)
    e(f"v_add_u32 v{AN0}, {SB}, v{AK0}\nv_add_u32 v{AN1}, {SB}, v{AK1}")
    e(f"s_mov_b32 s47, {1+S0}\ns_mov_b32 s48, {SB}\ns_mov_b32 s49, {-(NSL-1)*SB & 0xffffffff:#x}")
    e(f"s_mov_b32 s50, {(2+S0)*SB}")
    e("s_waitcnt lgkmcnt(0)")
    e("s_lshl_b32 s56, s2, 3\ns_add_u32 s56, s56, s24\ns_mul_i32 s58, s56, 52429\ns_lshr_b32 s58, s58, 18\ns_mul_i32 s58, s58, 5\ns_sub_u32 s58, s56, s58\ns_sub_u32 s58, 7, s58")
    if "pfall" in OPT: e(f"s_mov_b32 s58, {PFSTAGE}")
    flg = "flg" in OPT
    PG, PAO, PAG, PVV = 232, 236, 237, 238
    if flg:
        e(f"s_lshl_b32 s52, s{KH}, 4\ns_add_u32 s52, s52, {CTL+128}\nv_mov_b32 v{PAG}, s52\ns_lshl_b32 s53, s{QG}, 2\ns_add_u32 s52, s52, s53\nv_mov_b32 v{PAO}, s52\ns_mov_b32 s59, 1\ns_mov_b32 s53, 0")
        e("s_barrier")
    e(f"s_mov_b32 s44, {NST}")
    if "prio1" in OPT: e(f"s_cmp_lt_u32 s24, 4\ns_cbranch_scc1 {L('noprio')}\ns_setprio 1\n{L('noprio')}:")
    if "prio0" in OPT: e(f"s_cmp_ge_u32 s24, 4\ns_cbranch_scc1 {L('noprio')}\ns_setprio 1\n{L('noprio')}:")
    align(k, "att")
    e(f"{L('floop')}:")
    for t in range(4):
        par = t & 1
        if t == 2:
            if flg:
                e("s_waitcnt lgkmcnt(4)")
                e(f"{L('pchk')}:")
                e(f"v_min3_u32 v{PVV}, v{PG}, v{PG+1}, v{PG+2}\nv_min_u32 v{PVV}, v{PVV}, v{PG+3}\nv_readfirstlane_b32 s52, v{PVV}")
                e(f"s_cmp_ge_u32 s52, s59\ns_cbranch_scc1 {L('pok')}")
                e(f"ds_read_b128 {v(PG,4)}, v{PAG}\ns_waitcnt lgkmcnt(0)\ns_add_u32 s53, s53, 1\ns_cmp_lt_u32 s53, {SPIN_MAX*16}\ns_cbranch_scc1 {L('pchk')}")
                e(f"{L('pok')}:")
                e(f"s_cmp_ge_u32 s42, {HALF}\ns_cbranch_scc1 {L('cont')}")
            elif old4:
                e(f"s_cmp_ge_u32 s42, {HALF}\ns_cbranch_scc1 {L('nodma')}")
                e(f"s_cmp_lg_u32 s{KH}, 0\ns_cbranch_scc1 {L('yw')}")
                dma_both("s50")
                e(f"s_waitcnt vmcnt(8)\ns_branch {L('yb')}")
                e(f"{L('yw')}:\ns_cmp_lg_u32 s44, {NST}\ns_cbranch_scc1 {L('yb')}\ns_waitcnt vmcnt(0)")
                e(f"{L('yb')}:\ns_barrier\ns_add_u32 s42, s42, {SBK}")
            else:
                e(f"s_cmp_ge_u32 s42, {HALF}\ns_cbranch_scc1 {L('nodma')}")
                e(f"s_waitcnt vmcnt({4*(NSL-3)})\ns_barrier")
            if not old4 or flg: dma("s50")
            e(f"s_add_u32 s50, s50, {SB}\ns_cmp_eq_u32 s50, {NSL*SB}\ns_cselect_b32 s50, 0, s50")
            if pf:
                e(f"s_cmp_lg_u32 s44, s58\ns_cbranch_scc1 {L('cont')}")
                e(f"s_mov_b32 s60, s{P_WO}\ns_mov_b32 s61, s{P_WO+1}\ns_mov_b32 s62, {D*D*2}\ns_mov_b32 s63, 0x20000\ns_mov_b32 s52, s56")
                e(f"s_cmp_lt_u32 s56, 256\ns_cbranch_scc1 {L('pfgo')}")
                e(f"s_mov_b32 s60, s{P_W1}\ns_mov_b32 s61, s{P_W1+1}\ns_mov_b32 s62, {D*DFF*2}\ns_mov_b32 s63, 0x20000\ns_sub_u32 s52, s56, 256")
                e(f"s_cmp_lt_u32 s56, 1152\ns_cbranch_scc1 {L('pfgo')}")
                e(f"s_mov_b32 s60, s{P_W2}\ns_mov_b32 s61, s{P_W2+1}\ns_mov_b32 s62, {D*DFF*2}\ns_mov_b32 s63, 0x20000\ns_sub_u32 s52, s56, 1152")
                e(f"{L('pfgo')}:")
                e(f"s_lshl_b32 s52, s52, 13\nv_lshlrev_b32 v{T}, 7, v2\nbuffer_load_dword v{PFD}, v{T}, s[60:63], s52 offen")
                if "mrwo" in OPT:
                    e(f"s_bitcmp1_b32 s56, 0\ns_cbranch_scc1 {L('nowm')}")
                    e(f"s_load_dwordx2 s[60:61], s[0:1], {KA_WMOD}\ns_lshr_b32 s52, s56, 1\ns_mul_i32 s52, s52, 12288\ns_add_u32 s52, s52, 4096\ns_waitcnt lgkmcnt(0)")
                    e(f"s_mov_b32 s62, {1024*6144*2}\ns_mov_b32 s63, 0x20000\nbuffer_load_dword v{PFD}, v{T}, s[60:63], s52 offen")
                    e(f"{L('nowm')}:")
                k.code_touch("a", k.lab("att_cont"), k.lab("f1_l"), 24, 8, 1)
            if not flg:
                e(f"s_branch {L('cont')}")
                e(f"{L('nodma')}:")
                e("s_waitcnt vmcnt(0)\ns_barrier")
            e(f"{L('cont')}:")
        kr = kread(AN0, AN1, (t + 2) % 4) if t >= 2 else kread(AK0, AK1, t + 2)
        vr = vread(t)
        m = []; p = []; E = []; C = []
        for qb in range(2):
            cur = SS[par][qb]; nxt = SS[1 - par][qb]; pc = PP[par][qb]; pp = PP[1 - par][qb]
            m.append(qk(qb, nxt, v(NEG + 16 * qb, 16))); p.append(pv(qb, pp))
            E.append([f"v_exp_f32 v{cur+r}, v{cur+r}" for r in range(16)])
            C.append([f"v_cvt_pk_bf16_f32 v{pc+r}, v{cur+2*r}, v{cur+2*r+1}" for r in range(8)])
        E0, E1 = E; C0, C1 = C
        seq = ["s_waitcnt lgkmcnt(4)",
               m[0][0], E0[0], E0[1], E0[2], E0[3],
               m[1][0], E0[4], E0[5], C0[0], C0[1], E0[6],
               m[0][1], E0[7], C0[2], E0[8], E0[9], C0[3],
               m[1][1], kr[0], kr[1], E0[10], E0[11], E0[12], E0[13], "s_waitcnt lgkmcnt(2)",
               p[0][0], C0[4], C0[5], E0[14], E0[15], C0[6], C0[7],
               p[0][1], E1[0], E1[1],
               p[1][0], E1[2], E1[3], C1[0], C1[1], E1[4],
               p[1][1], E1[5], E1[6],
               p[0][2], E1[7], C1[2], E1[8], E1[9], C1[3],
               p[0][3], E1[10], E1[11],
               p[1][2], vr[0], vr[1], vr[2], vr[3], E1[12], E1[13], C1[4], C1[5], E1[14],
               p[1][3], E1[15], C1[6], C1[7]]
        if smf:
            out_ = []
            for x_ in seq:
                if "16x16x32" in x_:
                    qb_ = 0 if x_ in p[0] else 1
                    if x_ == p[qb_][1]: continue
                    out_.append(f"v_smfmac_f32_16x16x64_bf16 {v(LS+4*qb_,4)}, {v(SEL,4)}, {v(PP[1-par][qb_],8)}, v{SIX}")
                else: out_.append(x_)
            seq = out_
        if flg and t == 1:
            i_ = seq.index(m[0][0])
            seq = seq[:i_ + 1] + ["s_waitcnt vmcnt(0)", f"v_mov_b32 v{PVV}, s59", f"ds_write_b32 v{PAO}, v{PVV}"] + seq[i_ + 1:]
            seq[seq.index("s_waitcnt lgkmcnt(2)")] = "s_waitcnt lgkmcnt(3)"
            i_ = seq.index(vr[0])
            seq = seq[:i_] + [f"ds_read_b128 {v(PG,4)}, v{PAG}"] + seq[i_:]
        if flg and t == 2: seq = seq[1:]
        for l in seq: e(l)
        if t == 3 and flg: e("s_add_u32 s59, s59, 1")
        if t == 3:
            e(f"v_sub_u32 v{T}, v{AN0}, v{AK0}\nv_add_u32 v{AV}, v{AV}, v{T}\nv_mov_b32 v{AK0}, v{AN0}\nv_mov_b32 v{AK1}, v{AN1}")
            e(f"s_add_u32 s47, s47, 1\ns_cmp_eq_u32 s47, {NSL}\ns_cselect_b32 s51, s49, s48\ns_cselect_b32 s47, 0, s47")
            e(f"v_add_u32 v{AN0}, s51, v{AN0}\nv_add_u32 v{AN1}, s51, v{AN1}")
    e(f"s_sub_u32 s44, s44, 1\ns_cmp_lg_u32 s44, 0\ns_cbranch_scc1 {L('floop')}")
    e("s_waitcnt lgkmcnt(0)")
    for qb in range(2):
        if smf:
            pl = pv(qb, PP[1][qb])
            e(pl[0]); e(pl[2]); e(f"v_smfmac_f32_16x16x64_bf16 {v(LS+4*qb,4)}, {v(SEL,4)}, {v(PP[1][qb],8)}, v{SIX}")
        else:
            for l in pv(qb, PP[1][qb]): e(l)
    if smf: e(f"v_add_f32 v{LS}, v{LS}, v{LS+2}\nv_add_f32 v{LS+4}, v{LS+4}, v{LS+6}")
    if "prio1" in OPT or "prio0" in OPT: e("s_setprio 0")
    k.st(4)
    def merge(safe, M=None):
        e("s_barrier")
        e(f"s_cmp_eq_u32 s{KH}, 0\ns_cbranch_scc1 {L('keep0' + safe)}")
        for r in range(16): e(f"v_swap_b32 v{O+r}, v{O+16+r}")
        e(f"v_swap_b32 v{LS}, v{LS+4}")
        if M is not None: e(f"v_swap_b32 v{M}, v{M+1}")
        e(f"{L('keep0' + safe)}:")
        e(f"s_mul_i32 s52, s24, {5*1024+256}\nv_lshlrev_b32 v{T}, 4, v2\nv_add_u32 v{T}, s52, v{T}")
        for g in range(4): e(f"ds_write_b128 v{T}, {v(O+16+4*g,4)} offset:{g*1024}")
        e(f"v_lshlrev_b32 v{T+1}, 2, v2\nv_add_u32 v{T+1}, s52, v{T+1}")
        e(f"ds_write_b32 v{T+1}, v{LS+4} offset:4096")
        if M is not None: e(f"ds_write_b32 v{T+1}, v{M+1} offset:{4096+256}")
        e("s_waitcnt lgkmcnt(0)\ns_barrier")
        e(f"s_xor_b32 s52, s24, 4\ns_mul_i32 s52, s52, {5*1024+256}\nv_lshlrev_b32 v{T}, 4, v2\nv_add_u32 v{T}, s52, v{T}")
        for g in range(4): e(f"ds_read_b128 {v(O+16+4*g,4)}, v{T} offset:{g*1024}")
        e(f"v_lshlrev_b32 v{T+1}, 2, v2\nv_add_u32 v{T+1}, s52, v{T+1}")
        e(f"ds_read_b32 v{LS+4}, v{T+1} offset:4096")
        if M is not None: e(f"ds_read_b32 v{M+1}, v{T+1} offset:{4096+256}")
        e("s_waitcnt lgkmcnt(0)")
        if M is None:
            for r in range(16): e(f"v_add_f32 v{O+r}, v{O+r}, v{O+16+r}")
            e(f"v_add_f32 v{LS}, v{LS}, v{LS+4}")
        else:
            e(f"v_max_f32 v{T}, v{M}, v{M+1}\nv_sub_f32 v{T+1}, v{M}, v{T}\nv_sub_f32 v{T+2}, v{M+1}, v{T}\nv_exp_f32 v{T+1}, v{T+1}\nv_exp_f32 v{T+2}, v{T+2}")
            for r in range(16): e(f"v_mul_f32 v{O+r}, v{O+r}, v{T+1}\nv_fmac_f32 v{O+r}, v{O+16+r}, v{T+2}")
            e(f"v_mul_f32 v{LS}, v{LS}, v{T+1}\nv_fmac_f32 v{LS}, v{LS+4}, v{T+2}")
        e(f"v_rcp_f32 v{T}, v{LS}")
        for r in range(16): e(f"v_mul_f32 v{O+r}, v{O+r}, v{T}")
    XE = 98304 if old4 else 98432
    e(f"v_add_f32 v{T+2}, abs(v{O}), abs(v{O+1})\nv_add_f32 v{T+3}, abs(v{O+16}), abs(v{O+17})")
    for r in range(2, 16): e(f"v_add_f32 v{T+2}, v{T+2}, abs(v{O+r})\nv_add_f32 v{T+3}, v{T+3}, abs(v{O+16+r})")
    e(f"v_add_f32 v{T+2}, v{T+2}, v{T+3}\nv_mov_b32 v{T+1}, {f32(2.0**126)}\nv_cmp_nlt_f32 vcc, v{T+2}, v{T+1}\ns_mov_b64 s[46:47], vcc")
    e(f"v_add_f32 v{T+2}, v{LS}, v{LS+4}\nv_mov_b32 v{T+1}, {f32(2.0**119)}\nv_cmp_nlt_f32 vcc, v{T+2}, v{T+1}\ns_or_b64 s[46:47], s[46:47], vcc")
    e(f"s_cmp_eq_u64 s[46:47], 0\ns_cbranch_scc1 {L('okwave')}")
    e(f"v_mov_b32 v{T+1}, {FLAG}\nv_mov_b32 v{T+2}, 1\nds_write_b32 v{T+1}, v{T+2}")
    e(f"{L('okwave')}:")
    e(f"s_mul_i32 s52, s24, 4352\ns_add_u32 s52, s52, {XE}\nv_lshlrev_b32 v{T}, 4, v2\nv_add_u32 v{T}, s52, v{T}\nv_lshlrev_b32 v{T+1}, 2, v2\nv_add_u32 v{T+1}, s52, v{T+1}")
    e(f"s_cmp_eq_u32 s{KH}, 0\ns_cbranch_scc1 {L('snd0')}")
    for g in range(4): e(f"ds_write_b128 v{T}, {v(O+4*g,4)} offset:{g*1024}")
    e(f"ds_write_b32 v{T+1}, v{LS} offset:4096\ns_branch {L('snd1')}")
    e(f"{L('snd0')}:")
    for g in range(4): e(f"ds_write_b128 v{T}, {v(O+16+4*g,4)} offset:{g*1024}")
    e(f"ds_write_b32 v{T+1}, v{LS+4} offset:4096")
    e(f"{L('snd1')}:")
    e(f"s_xor_b32 s52, s24, 4\ns_mul_i32 s52, s52, 4352\ns_add_u32 s52, s52, {XE}\nv_lshlrev_b32 v{T}, 4, v2\nv_add_u32 v{T}, s52, v{T}\nv_lshlrev_b32 v{T+1}, 2, v2\nv_add_u32 v{T+1}, s52, v{T+1}")
    e(f"v_mov_b32 v{T+3}, {FLAG}")
    e("s_waitcnt lgkmcnt(0)\ns_barrier")
    e(f"ds_read_b32 v{T+2}, v{T+3}")
    e(f"s_cmp_eq_u32 s{KH}, 0\ns_cbranch_scc1 {L('rcv0')}")
    for g in range(4): e(f"ds_read_b128 {v(O+4*g,4)}, v{T} offset:{g*1024}")
    e(f"ds_read_b32 v{LS}, v{T+1} offset:4096\ns_branch {L('rcv1')}")
    e(f"{L('rcv0')}:")
    for g in range(4): e(f"ds_read_b128 {v(O+16+4*g,4)}, v{T} offset:{g*1024}")
    e(f"ds_read_b32 v{LS+4}, v{T+1} offset:4096")
    e(f"{L('rcv1')}:")
    e(f"s_waitcnt lgkmcnt(5)\nv_readfirstlane_b32 s46, v{T+2}\ns_cmp_lg_u32 s46, 0\ns_cbranch_scc1 {L('safe')}")
    e("s_waitcnt lgkmcnt(0)")
    e(f"v_add_f32 v{LS}, v{LS}, v{LS+4}\nv_rcp_f32 v{T}, v{LS}")
    for r in range(0, 16, 2): e(f"v_pk_add_f32 {v(O+r,2)}, {v(O+r,2)}, {v(O+16+r,2)}")
    assert (T + 1) % 2 == 0
    e(f"v_mov_b32 v{T+1}, v{T}")
    for r in range(0, 16, 2): e(f"v_pk_mul_f32 {v(O+r,2)}, {v(O+r,2)}, {v(T+1,2)} op_sel_hi:[1,0]")
    e(f"{L('store')}:")
    if "statt" in OPT: k.st(12)
    P = PP[0][0]
    for r in range(8): e(f"v_cvt_pk_bf16_f32 v{P+r}, v{O+2*r}, v{O+2*r+1}")
    for b in (0, 4):
        e(f"v_permlane32_swap_b32 v{P+b}, v{P+b+2}\nv_permlane32_swap_b32 v{P+b+1}, v{P+b+3}")
    for r in range(4): e(f"v_permlane16_swap_b32 v{P+r}, v{P+4+r}")
    e(f"s_lshl_b32 s40, s{KH}, 5\ns_add_u32 s40, s40, s39")
    e(f"v_and_b32 v{T}, 15, v2\nv_add_u32 v{T}, s40, v{T}\nv_lshlrev_b32 v{T}, 11, v{T}")
    e(f"v_lshrrev_b32 v{T+1}, 4, v2\nv_and_b32 v{T+2}, 1, v{T+1}\nv_lshlrev_b32 v{T+2}, 5, v{T+2}\nv_lshrrev_b32 v{T+1}, 1, v{T+1}\nv_lshlrev_b32 v{T+1}, 4, v{T+1}")
    e(f"v_add_u32 v{T}, v{T}, v{T+1}\nv_add_u32 v{T}, v{T}, v{T+2}")
    e(f"s_lshl_b32 s40, s25, 6\ns_add_u32 s41, s40, {16*2048}")
    e(f"buffer_store_dwordx4 {v(P,4)}, v{T}, s[16:19], s40 offen{SCS}\nbuffer_store_dwordx4 {v(P+4,4)}, v{T}, s[16:19], s41 offen{SCS}")
    if "statt" in OPT: k.st(13)
    e(f"s_add_u32 s35, s26, {C_ATT}")
    k.signal("att", 8, 35, 32, (2, lambda: e((f"v_mov_b32 v6, {C_ATTALL*256}\nv_mov_b32 v7, 1\ns_mov_b64 exec, 1\nbuffer_atomic_add v7, v6, {s(CNT,4)}, 0 offen sc1\ns_mov_b64 exec, -1\n" if "alias" in OPT else "") + f"s_lshl_b32 s33, s26, 8\ns_lshl_b32 s34, s25, 2\ns_add_u32 s33, s33, s34\ns_add_u32 s33, s33, {FL['wo']}\nv_lshlrev_b32 v6, 7, v2\nv_add_u32 v6, s33, v6")))
    if "statt" in OPT: k.st(14, 7)
    e(f"s_cmp_ge_u32 s24, 4\ns_cbranch_scc1 {nxt_l}\ns_branch {nxt_c}")
    e(f"{L('safe')}:")
    e("s_waitcnt vmcnt(0) lgkmcnt(0)\ns_barrier")
    M = NEG; AL = NEG + 2
    SA = SS[0][0]; P0 = PP[0][0]
    zero_acc()
    if smf: dense_selector()
    e(f"v_mov_b32 v{M}, {f32(-3.0e38)}\nv_mov_b32 v{M+1}, {f32(-3.0e38)}")
    addr_setup()
    e("s_mov_b32 s42, 0")
    e(f"s_mov_b32 s44, {NST}")
    e(f"{L('sloop')}:")
    e("s_barrier")
    e("s_mov_b32 s53, 0")
    dma("s53")
    e("s_waitcnt vmcnt(0)\ns_barrier")
    for t in range(4):
        for l in kread(AK0, AK1, t) + vread(t): e(l)
        e("s_waitcnt lgkmcnt(0)")
        for qb in range(2):
            for l in qk(qb, SA, "0"): e(l)
            lane_max16(SA, T, T + 1)
            e(f"v_max_f32 v{T}, v{T}, v{M+qb}\nv_sub_f32 v{AL}, v{M+qb}, v{T}\nv_exp_f32 v{AL}, v{AL}\nv_mov_b32 v{M+qb}, v{T}")
            for r in range(16): e(f"v_sub_f32 v{SA+r}, v{SA+r}, v{T}\nv_exp_f32 v{SA+r}, v{SA+r}")
            for r in range(16): e(f"v_mul_f32 v{O+16*qb+r}, v{O+16*qb+r}, v{AL}")
            for r in range(4): e(f"v_mul_f32 v{LS+4*qb+r}, v{LS+4*qb+r}, v{AL}")
            for r in range(8): e(f"v_cvt_pk_bf16_f32 v{P0+r}, v{SA+2*r}, v{SA+2*r+1}")
            for l in pv(qb, P0): e(l)
    e(f"s_sub_u32 s44, s44, 1\ns_cmp_lg_u32 s44, 0\ns_cbranch_scc1 {L('sloop')}")
    merge("s", M)
    e("s_barrier")
    e(f"s_branch {L('store')}")


def h_phase(k):
    e = k.e; L = lambda n: k.lab("h_" + n)
    HL = 125952
    e("s_lshl_b32 s36, s2, 3\ns_lshl_b32 s37, s24, 1\ns_add_u32 s36, s36, s37")
    e("s_lshl_b32 s36, s36, 11\nv_lshlrev_b32 v3, 4, v2\nv_add_u32 v3, s36, v3")
    k.srd(12, P_X, 0, S * D * 2); k.srd(16, P_WS, WS_H, S * D * 2)
    k.srd(20, P_WS, WS_MODP, 4 * 6144 * 4); k.srd(56, P_WS, WS_MODF, 6144 * 4)
    e("v_lshlrev_b32 v5, 5, v0")
    for p in range(4):
        e(f"s_mov_b32 s37, {p*24576}")
        e(f"buffer_load_dwordx4 {v(64+8*p,4)}, v5, s[20:23], s37 offen\nbuffer_load_dwordx4 {v(68+8*p,4)}, v5, s[20:23], s37 offen offset:16")
    for r in range(2):
        for hf in range(2):
            e(f"buffer_load_dwordx4 {v(8+8*r+4*hf,4)}, v3, s[12:15], 0 offen offset:{r*2048+hf*1024}")
    nt_ = k.code_touch("h", k.lab("qkv_c"), k.lab("wo_c"), 24, 4, 1)
    e(f"s_waitcnt vmcnt({4+nt_})")
    for j in range(8):
        e(f"v_add_f32 v{64+j}, v{64+j}, v{72+j}\nv_add_f32 v{80+j}, v{80+j}, v{88+j}\nv_add_f32 v{64+j}, v{64+j}, v{80+j}")
        round_bf16(e, 64 + j)
    e("v_cmp_le_u32 vcc, 128, v0")
    for j in range(8):
        e(f"v_add_f32 v72, 1.0, v{64+j}")
        round_bf16(e, 72)
        e(f"v_cndmask_b32 v{64+j}, v{64+j}, v72, vcc")
    e(f"v_add_u32 v5, {HL}, v5\nds_write_b128 v5, v[64:67]\nds_write_b128 v5, v[68:71] offset:16")
    e("s_waitcnt lgkmcnt(0)\ns_barrier")
    e(f"v_lshlrev_b32 v5, 5, v2\nv_add_u32 v5, {HL}, v5")
    for hf in range(2):
        for q in range(2):
            e(f"ds_read_b128 {v(32+8*hf+4*q,4)}, v5 offset:{hf*2048+q*16}")
            e(f"ds_read_b128 {v(48+8*hf+4*q,4)}, v5 offset:{4096+hf*2048+q*16}")
    e(f"s_waitcnt vmcnt({nt_})")
    X = 64
    for r in range(2):
        for j in range(8):
            src = 8 + 8 * r + j
            e(f"v_lshlrev_b32 v{X+16*r+2*j}, 16, v{src}\nv_and_b32 v{X+16*r+2*j+1}, 0xffff0000, v{src}")
    for r in range(2): e(f"v_add_f32 v{104+r}, v{X+16*r}, v{X+16*r+1}")
    for j in range(2, 16):
        for r in range(2): e(f"v_add_f32 v{104+r}, v{104+r}, v{X+16*r+j}")
    wave_sum(e, [104, 105], 106, [0, 1, 2, 3, 4, 5])
    for r in range(2): e(f"v_mul_f32 v{104+r}, {f32(1/1024)}, v{104+r}")
    for j in range(16):
        for r in range(2): e(f"v_sub_f32 v{X+16*r+j}, v{X+16*r+j}, v{104+r}")
    for r in range(2): e(f"v_mul_f32 v{107+r}, v{X+16*r}, v{X+16*r}")
    for j in range(1, 16):
        for r in range(2): e(f"v_fmac_f32 v{107+r}, v{X+16*r+j}, v{X+16*r+j}")
    wave_sum(e, [107, 108], 106, [0, 1, 2, 3, 4, 5])
    for r in range(2):
        e(f"v_mov_b32 v{109+r}, {f32(1e-5)}\nv_fmac_f32 v{109+r}, {f32(1/1024)}, v{107+r}\nv_rsq_f32 v{109+r}, v{109+r}")
    e("s_waitcnt lgkmcnt(0)")
    for r in range(2):
        for j in range(16):
            e(f"v_mul_f32 v{X+16*r+j}, v{X+16*r+j}, v{109+r}\nv_fma_f32 v{X+16*r+j}, v{X+16*r+j}, v{48+j}, v{32+j}")
        for j in range(8): e(f"v_cvt_pk_bf16_f32 v{112+8*r+j}, v{X+16*r+2*j}, v{X+16*r+2*j+1}")
        e(f"buffer_store_dwordx4 {v(112+8*r,4)}, v3, s[16:19], 0 offen offset:{r*2048}{SCS}")
        e(f"buffer_store_dwordx4 {v(116+8*r,4)}, v3, s[16:19], 0 offen offset:{r*2048+1024}{SCS}")
    e(f"s_lshr_b32 s35, s2, 4\ns_add_u32 s35, s35, {C_H}")
    def offs():
        e(f"s_lshr_b32 s33, s2, 4\ns_lshl_b32 s33, s33, 9\ns_and_b32 s34, s2, 15\ns_lshl_b32 s34, s34, 2\ns_add_u32 s33, s33, s34\ns_add_u32 s33, s33, {FL['qkv']}")
        e("v_lshlrev_b32 v6, 7, v2\nv_add_u32 v6, s33, v6")
    k.signal("h", 4, 35, 16, (4, offs))

def k_main():
    k = PK("main_kernel", 256, 512, LDS_TOTAL + 16384, 256, 100); e = k.e
    L = k.lab
    e(f"s_cmp_ge_u32 s2, 256\ns_cbranch_scc1 {L('end')}")
    e(f"s_load_dwordx4 s[68:71], s[0:1], {KA_X}\ns_load_dwordx4 s[72:75], s[0:1], {KA_W1}\ns_load_dwordx2 s[76:77], s[0:1], {KA_WO}")
    e(f"s_load_dwordx2 s[78:79], s[0:1], {KA_OUT}\ns_load_dwordx2 s[66:67], s[0:1], {KA_WS}")
    e("v_lshrrev_b32 v1, 6, v0\nv_and_b32 v2, 63, v0\nv_readfirstlane_b32 s24, v1")
    e(f"s_cmp_lg_u32 s24, 0\ns_cbranch_scc1 {L('noinit')}")
    e(f"v_lshlrev_b32 v3, 2, v2\nv_add_u32 v3, {CTL}, v3\nv_mov_b32 v4, 0\nds_write_b32 v3, v4\ns_waitcnt lgkmcnt(0)")
    e(f"{L('noinit')}:")
    e("s_waitcnt lgkmcnt(0)")
    k.srd(CNT, P_WS, WS_CNT, CNT_BYTES)
    k.st(0)
    e(f"s_cmp_ge_u32 s24, 4\ns_cbranch_scc1 {L('qkv_l')}")
    hin = "hsep" not in OPT
    if hin: h_phase(k)
    gemm_phase(k, "qkv", 1024, 1024, 3072, 192, WS_H, S * D * 2, P_WQKV, D * 3 * D * 2, "qkv", 8, 4, 3, L("att_c"), L("att_l"), (C_H, 16, "rb") if hin else None, (1, 2), hbar=hin)
    pf = [(P_WO, D * D * 2), (P_W1, D * DFF * 2), (P_W2, D * DFF * 2)] if "nopf" not in OPT else []
    attn_phase(k, L("wo_c"), L("wo_l"), pf)
    gemm_phase(k, "wo", 1024, 1024, 1024, 64, WS_O, S * D * 2, P_WO, D * D * 2, "wo", 4, 8, 4, L("f1_c"), L("f1_l"), (C_ATT, 32, "rb2"), (5, 6))
    gemm_phase(k, "f1", 1024, 1024, DFF, 224, WS_XG, S * D * 2, P_W1, D * DFF * 2, "ffn1", 8, 4, 3, L("f2_c"), L("f2_l"), (C_WO, 16, "rb"), (7, 8))
    if "nos2" in OPT:
        gemm_phase(k, "f2", DFF, DFF, 1024, 64, WS_F1, S * DFF * 2, P_W2, DFF * D * 2, "ffn2", 4, 8, 4, L("fin"), L("end"), (C_F1, 16, "rb"), (9, 10))
    else:
        gemm_phase(k, "f2", DFF, DFF, 1024, 128, F1OFF(), S * DFF * 2, P_W2, DFF * D * 2, "ffn2s", 4, 8, 4, L("fin"), L("end"), (C_F1, 8, "rb"), (9, 10))
    e(f"{L('fin')}:")
    if DIAG:
        e("s_waitcnt vmcnt(0)")
        k.st(11)
        e(f"s_cmp_lg_u32 s24, 0\ns_cbranch_scc1 {L('end')}")
        k.srd(12, P_WS, WS_STAMP + 8 * 512 * 16, 256 * 64)
        e(f"v_lshlrev_b32 v3, 2, v2\nv_add_u32 v4, {L_STAMP}, v3\nds_read_b32 v5, v4\ns_lshl_b32 s32, s2, 6\nv_add_u32 v3, s32, v3\ns_waitcnt lgkmcnt(0)")
        e("s_mov_b64 exec, 0xffff\nbuffer_store_dword v5, v3, s[12:15], 0 offen")
    k.finish()
    return k

def k_mod2():
    NG = 384 if "modall" in OPT else 128
    k = Kern("mod_kernel", NG + 128, 256, 1024, 64); e = k.e
    k.exit_extra()
    e("s_load_dwordx4 s[4:7], s[0:1], %d" % KA_C)
    k.ptr(8, KA_WS); k.ptr(10, KA_X)
    e(f"s_cmp_ge_u32 s2, {NG}\ns_cbranch_scc1 {k.lab('aux')}")
    e("s_and_b32 s24, s2, 3\ns_lshr_b32 s25, s2, 2")
    e("v_lshrrev_b32 v1, 3, v0\nv_and_b32 v2, 7, v0")
    e("s_lshl_b32 s26, s24, 8\nv_add_u32 v3, s26, v1")
    e("v_lshlrev_b32 v4, 1, v3")
    e("v_mul_u32_u24 v5, 12288, v3\nv_lshlrev_b32 v6, 4, v2\nv_add_u32 v5, v5, v6")
    e("s_lshl_b32 s27, s25, 7\nv_add_u32 v5, s27, v5")
    e("s_waitcnt lgkmcnt(0)")
    k.srd(12, 4, 0, 2048); k.srd(16, 6, 0, 1024 * 6144 * 2); k.srd(20, 8, WS_MODP, 4 * 6144 * 4)
    gemv_body(k, 8, 16, 48, 56, "s[12:15]", "s[16:19]", 32)
    k.stamp(2)
    e("v_lshrrev_b32 v9, 6, v0\nv_lshlrev_b32 v9, 8, v9\nv_lshlrev_b32 v10, 5, v2\nv_add_u32 v9, v9, v10")
    e("v_and_b32 v10, 63, v0\nv_cmp_gt_u32 vcc, 8, v10\ns_and_saveexec_b64 s[28:29], vcc")
    e("ds_write_b128 v9, v[48:51]\nds_write_b128 v9, v[52:55] offset:16")
    e("s_mov_b64 exec, s[28:29]")
    e("s_waitcnt lgkmcnt(0)\ns_barrier")
    e("v_cmp_gt_u32 vcc, 64, v0\ns_and_saveexec_b64 s[28:29], vcc")
    e(f"s_cbranch_execz {k.lab('end')}")
    e("v_lshlrev_b32 v9, 2, v0")
    for w in range(4): e(f"ds_read_b32 v{12+w}, v9 offset:{w*256}")
    e("s_waitcnt lgkmcnt(0)")
    e("v_add_f32 v12, v12, v13\nv_add_f32 v14, v14, v15\nv_add_f32 v12, v12, v14")
    e("s_mul_i32 s26, s24, 24576\ns_lshl_b32 s27, s25, 8\ns_add_u32 s26, s26, s27")
    e("buffer_store_dword v12, v9, s[20:23], s26 offen")
    k.stamp_flush(0, 56)
    e("s_endpgm")
    e(f"{k.lab('aux')}:")
    e(f"s_waitcnt lgkmcnt(0)\ns_sub_u32 s24, s2, {NG}")
    k.srd(12, 10, 0, S * D * 2)
    e("s_lshl_b32 s25, s24, 15\nv_lshlrev_b32 v1, 7, v0\nbuffer_load_dword v2, v1, s[12:15], s25 offen")
    e(f"s_add_u32 s16, s8, {WS_CNT:#x}\ns_addc_u32 s17, s9, 0\ns_mov_b32 s18, {CNT_BYTES}\ns_mov_b32 s19, 0x20000")
    e("s_lshl_b32 s25, s24, 12\nv_lshlrev_b32 v3, 4, v0\nv_mov_b32 v4, 0\nv_mov_b32 v5, 0\nv_mov_b32 v6, 0\nv_mov_b32 v7, 0\nbuffer_store_dwordx4 v[4:7], v3, s[16:19], s25 offen")
    assert CNT_BYTES <= 128 * 4096
    if gen.DIAG:
        k.stamp(1); k.stamp(2)
        k.a.lines.append("  s_nop 0")
    k.finish()
    return k

def gemv_body(k, CV, WV, AC, TMP, srd_c, srd_w, ssoff):
    e = k.e
    for i in range(8): e(f"buffer_load_ushort v{CV+i}, v4, {srd_c}, 0 offen offset:{i*64}")
    for i in range(8): e(f"s_mov_b32 s{ssoff+i}, {i*32*12288}")
    for i in range(8): e(f"buffer_load_dwordx4 {v(WV+4*i,4)}, v5, {srd_w}, s{ssoff+i} offen")
    gemv_finish(k, CV, WV, AC, TMP)

def gemv_finish(k, CV, WV, AC, TMP):
    e = k.e
    for j in range(8): e(f"v_mov_b32 v{AC+j}, 0")
    e("s_waitcnt vmcnt(8)")
    k.stamp(1) if not isinstance(k, PK) else None
    for i in range(8):
        x = CV + i
        e(f"v_lshlrev_b32 v{x}, 16, v{x}")
        e(f"v_mul_f32 v{TMP}, {f32(-LOG2E)}, v{x}\nv_exp_f32 v{TMP}, v{TMP}\nv_add_f32 v{TMP}, 1.0, v{TMP}\nv_rcp_f32 v{TMP}, v{TMP}\nv_mul_f32 v{x}, v{x}, v{TMP}")
        round_bf16(e, x)
    for i in range(8):
        e(f"s_waitcnt vmcnt({7-i})")
        for j in range(4):
            w = WV + 4 * i + j
            e(f"v_lshlrev_b32 v{TMP}, 16, v{w}\nv_and_b32 v{TMP+1}, 0xffff0000, v{w}")
            e(f"v_fmac_f32 v{AC+2*j}, v{CV+i}, v{TMP}\nv_fmac_f32 v{AC+2*j+1}, v{CV+i}, v{TMP+1}")
    wave_sum(e, list(range(AC, AC + 8)), TMP, [3, 4, 5])

def k_probe(idx, mult):
    k = Kern("probe_kernel", 1, 64, 0, 64); e = k.e
    e("s_cmp_ge_u32 s2, 1\ns_cbranch_scc1 probe_kernel_end")
    k.ptr(8, KA_WS); k.ptr(10, KA_DBG)
    e("s_waitcnt lgkmcnt(0)")
    k.srd(12, 8, WS_STAMP, 16 * 512 * 16); k.srd(20, 10, 0, 256)
    e("v_lshlrev_b32 v1, 4, v0\nv_lshlrev_b32 v2, 6, v0")
    for c in range(6): e(f"s_mov_b32 s24, {(c%2)*64*16}\nbuffer_load_dword v{8+c}, v1, s[12:15], s24 offen")
    for c in range(4): e(f"s_mov_b32 s24, {8*512*16 + c*64*64 + idx*4}\nbuffer_load_dword v{16+c}, v2, s[12:15], s24 offen")
    e("s_waitcnt vmcnt(0)")
    for c in range(1, 6): e(f"v_min_u32 v8, v8, v{8+c}")
    for c in range(1, 4): e(f"v_max_u32 v16, v16, v{16+c}")
    def red(r, op):
        for b in range(4): e(f"{op}_dpp v{r}, v{r}, v{r} row_ror:{1<<b} row_mask:0xf bank_mask:0xf")
        for w in (16, 32):
            e(f"v_mov_b32 v40, v{r}\nv_permlane{w}_swap_b32 v40, v{r}\n{op} v{r}, v{r}, v40")
    red(8, "v_min_u32"); red(16, "v_max_u32")
    e("v_sub_u32 v16, v16, v8\nv_mov_b32 v13, 0\nbuffer_store_dword v16, v13, s[20:23], 0 offen\nv_readfirstlane_b32 s30, v16")
    e(f"s_mul_i32 s30, s30, {mult}\ns_min_u32 s30, s30, 100000")
    e("s_memrealtime s[32:33]\ns_waitcnt lgkmcnt(0)")
    e("probe_spin:\ns_memrealtime s[34:35]\ns_waitcnt lgkmcnt(0)\ns_sub_u32 s36, s34, s32\ns_cmp_lt_u32 s36, s30\ns_cbranch_scc1 probe_spin")
    k.finish()
    return k

PROBE = None
def build():
    if PROBE is not None: return [k_mod2(), k_main(), k_probe(*PROBE)]
    if "hsep" in OPT: return [k_mod2(), gen.k_h(True), k_main()]
    return [k_mod2(), k_main()]

if __name__ == "__main__":
    for a_ in list(sys.argv):
        if a_.startswith("--opt="): OPT = set(a_[6:].split(",")); sys.argv.remove(a_)
        if a_.startswith("--pfstage="): PFSTAGE = int(a_[10:]); sys.argv.remove(a_)
        if a_.startswith("--scs="): SCS = " " + a_[6:].replace("+", " "); sys.argv.remove(a_)
        if a_.startswith("--l2d="): L2D = int(a_[6:]); sys.argv.remove(a_)
        if a_.startswith("--probe="): PROBE = tuple(int(x) for x in a_[8:].split(",")); sys.argv.remove(a_)
        if a_.startswith("--mrstep="): MRSTEP = int(a_[9:]); sys.argv.remove(a_)
        if a_.startswith("--align="):
            for kv in a_[8:].split(","):
                k_, v_ = kv.split(":"); ALIGN[k_] = None if v_ == "n" else int(v_)
            sys.argv.remove(a_)
        if a_.startswith("--sleep="): SLEEP = int(a_[8:]); sys.argv.remove(a_)
    if "--diag" in sys.argv: DIAG = True; gen.DIAG = True; sys.argv.remove("--diag")
    txt = emit(build(), header())
    out = sys.argv[1]
    open(out, "w").write(txt)
    print("wrote", out, len(txt), "bytes")
```

```python
import sys
from asmlib import *
import gen
from gen import (NAME, S, D, DFF, H, KA_X, KA_WQKV, KA_WO, KA_BX, KA_W1, KA_W2, KA_C, KA_WMOD, KA_OUT, KA_DBG, KA_WS,
                 WS_MODP, WS_MODF, WS_H, WS_QKV, WS_O, WS_X1, WS_F1, WS_XG, WS_STAT, WS_UB, WS_STAMP, LOG2E, f32, Kern,
                 wave_sum, round_bf16, interleave, header, emit)

WS_F1A = WS_H
WS_CNT = 0x2f00000
C_QKV, C_ATT, C_WO, C_UB, C_F1, C_H = 0, 16, 24, 40, 56, 72
C_MR, C_MRALL, C_ATTALL = 88, 152, 153
NCNT = 160
FL_BASE = NCNT * 256 + 1536
FL_BASE = (FL_BASE + 255) // 256 * 256
FL = {"qkv": FL_BASE, "att": FL_BASE + 256 * 128, "wo": FL_BASE + 256 * 128 + 256 * 256, "f1": FL_BASE + 256 * 256 + 2 * 256 * 128, "f2": FL_BASE + 256 * 256 + 3 * 256 * 128}
FL["xch"] = FL_BASE + 256 * 256 + 4 * 256 * 128
FL["mr"] = FL["xch"] + 256 * 128
FL["f1b"] = FL["mr"] + 8 * 128
CNT_BYTES = FL["f1b"] + 64 * 128
WS_XCH = 0x3800000
OPT = set()
DIAG = False
SC = " sc1"
SCS = " sc1"
P_WS, P_X, P_WQKV, P_W1, P_W2, P_WO, P_OUT = 66, 68, 70, 72, 74, 76, 78
CNT = 28
CTL = 138240
L_SIG = {"qkv": CTL, "att": CTL + 4, "wo": CTL + 8, "ub": CTL + 12, "f1": CTL + 16, "h": CTL + 20, "mr": CTL + 24, "g": CTL + 28, "wo2": CTL + 44 + 116}
L_DEP = {"wo": CTL + 32, "f1": CTL + 36, "f2": CTL + 40, "qkv": CTL + 44}
L_STAMP = CTL + 64
LDS_TOTAL = CTL + 256
SPIN_MAX = 400000
SLEEP = 2
PIPE = 1
PGAP = 2
ALIGN = {}
PFSTAGE = 7
L2D = 8
MRSTEP = 9

def exec_mask(n):
    if n < 32: return f"s_mov_b64 exec, {(1 << n) - 1:#x}"
    return f"s_mov_b32 exec_lo, -1\ns_mov_b32 exec_hi, {(1 << (n - 32)) - 1:#x}"

def align(k, name):
    a = ALIGN.get(name, ALIGN.get("all", 0))
    if a is None: return
    k.a.lines.append(".p2align 6")
    for _ in range(a): k.e("s_nop 0")

class PK(Kern):
    def st(self, i, wave=0):
        if not DIAG: return
        e = self.e; n = self.lab(f"st{i}")
        e(f"s_cmp_lg_u32 s24, {wave}\ns_cbranch_scc1 {n}\n{'s_memtime' if 'cyc' in OPT else 's_memrealtime'} s[98:99]\ns_waitcnt lgkmcnt(0)\nv_mov_b32 v254, s98\nv_mov_b32 v255, {L_STAMP+4*i}\nds_write_b32 v255, v254\ns_waitcnt lgkmcnt(0)\n{n}:")
    def code_touch(self, tag, frm, to, part_sreg, nparts, per):
        if "code" not in OPT: return 0
        e = self.e; here = self.lab("pc" + tag)
        e(f"s_getpc_b64 s[90:91]\n{here}:\ns_add_u32 s90, s90, {frm}-{here}\ns_addc_u32 s91, s91, 0")
        e(f"s_mul_i32 s92, s{part_sreg}, {per*8192}\nv_lshlrev_b32 v252, 7, v2\nv_add_u32 v252, s92, v252")
        for i in range(per):
            if i: e("v_add_u32 v252, 8192, v252")
            e(f"v_min_u32 v251, {to}-{frm}-4, v252\nglobal_load_dword v253, v251, s[90:91]")
        return per
    def poll(self, tag, cnt_sreg, target, lanes=1):
        e = self.e; L = self.lab
        if cnt_sreg is not None: e(f"s_lshl_b32 s32, s{cnt_sreg}, 8\nv_mov_b32 v6, s32")
        e(f"s_mov_b32 s33, 0\ns_mov_b64 exec, {(1 << lanes) - 1}")
        e(f"{L('poll'+tag)}:")
        e(f"buffer_load_dword v7, v6, {s(CNT,4)}, 0 offen offset:{0 if 'direct' in OPT else 128} sc1\ns_waitcnt vmcnt(0)")
        e(f"v_cmp_gt_u32 vcc, {target}, v7\ns_cmp_eq_u64 vcc, 0\ns_cbranch_scc1 {L('pollx'+tag)}")
        e(f"s_add_u32 s33, s33, 1\ns_cmp_ge_u32 s33, {SPIN_MAX}\ns_cbranch_scc1 {L('pollx'+tag)}")
        e(f"s_sleep {SLEEP}\ns_branch {L('poll'+tag)}")
        e(f"{L('pollx'+tag)}:\ns_mov_b64 exec, -1")
    def dep_wait_loaders(self, tag, cnt_sreg, target, first_wave_cond):
        e = self.e; L = self.lab
        e(f"s_cmp_lg_u32 s24, 4\ns_cbranch_scc1 {L('dw'+tag)}")
        if "noflags" in OPT: self.poll(tag, cnt_sreg, target)
        else:
            if tag == "f2" and "nos2" not in OPT:
                e(f"s_lshl_b32 s34, s25, 1\ns_add_u32 s34, s34, s27\ns_lshl_b32 s34, s34, 7\ns_add_u32 s34, s34, {FL[tag]}")
            elif tag == "f2":
                e(f"s_lshl_b32 s34, s25, 4\ns_add_u32 s34, s34, s26\ns_lshl_b32 s34, s34, 7\ns_add_u32 s34, s34, {FL[tag]}")
            elif tag == "wo":
                e(f"s_lshr_b32 s34, s25, 1\ns_lshl_b32 s34, s34, 1\ns_lshr_b32 s33, s26, 3\ns_add_u32 s34, s34, s33\ns_lshl_b32 s34, s34, 7\ns_add_u32 s34, s34, {FL[tag]}")
            else:
                e(f"s_lshl_b32 s34, s25, 2\ns_lshr_b32 s33, s26, 2\ns_add_u32 s34, s34, s33\ns_lshl_b32 s34, s34, 7\ns_add_u32 s34, s34, {FL[tag]}")
            self.wait_flags(tag, target, 34)
        e(f"v_mov_b32 v6, {L_DEP[tag]}\nv_mov_b32 v7, 1\nds_write_b32 v6, v7\ns_waitcnt lgkmcnt(0)\ns_branch {L('dwx'+tag)}")
        e(f"{L('dw'+tag)}:")
        e(f"v_mov_b32 v6, {L_DEP[tag]}\ns_mov_b32 s33, 0")
        e(f"{L('dwl'+tag)}:")
        e(f"ds_read_b32 v7, v6\ns_waitcnt lgkmcnt(0)\nv_readfirstlane_b32 s34, v7")
        e(f"s_cmp_lg_u32 s34, 0\ns_cbranch_scc1 {L('dwx'+tag)}")
        e(f"s_add_u32 s33, s33, 1\ns_cmp_ge_u32 s33, {SPIN_MAX*4}\ns_cbranch_scc1 {L('dwx'+tag)}")
        e(f"s_sleep 1\ns_branch {L('dwl'+tag)}")
        e(f"{L('dwx'+tag)}:")
    def arrive(self, tag, cnt_sreg, target):
        e = self.e; L = self.lab
        e(f"s_lshl_b32 s33, s{cnt_sreg}, 8\nv_mov_b32 v6, s33\nv_mov_b32 v7, 1")
        if "direct" in OPT:
            e(f"buffer_atomic_add v7, v6, {s(CNT,4)}, 0 offen sc1")
            return
        e(f"buffer_atomic_add v7, v6, {s(CNT,4)}, 0 offen sc0 sc1\ns_waitcnt vmcnt(0)\nv_readfirstlane_b32 s33, v7")
        e(f"s_cmp_lg_u32 s33, {target-1}\ns_cbranch_scc1 {L('arr'+tag)}")
        e(f"v_mov_b32 v7, {target}\nbuffer_store_dword v7, v6, {s(CNT,4)}, 0 offen offset:128 sc1")
        e(f"{L('arr'+tag)}:")
    def signal(self, tag, nwaves, cnt_sreg, target, flags=None, younger=0):
        e = self.e; L = self.lab
        e(f"s_waitcnt vmcnt({younger})")
        e(f"v_mov_b32 v6, {L_SIG[tag]}\nv_mov_b32 v7, 1\ns_mov_b64 exec, 1")
        e("ds_add_rtn_u32 v7, v6, v7\ns_waitcnt lgkmcnt(0)\nv_readfirstlane_b32 s32, v7\ns_mov_b64 exec, -1")
        e(f"s_cmp_lg_u32 s32, {nwaves-1}\ns_cbranch_scc1 {L('sig'+tag)}")
        if flags is not None and "noflags" not in OPT:
            n, offs = flags
            offs()
            e("v_mov_b32 v7, 1\n" + exec_mask(n))
            e(f"buffer_store_dword v7, v6, {s(CNT,4)}, 0 offen sc1")
        else:
            e("s_mov_b64 exec, 1")
            self.arrive(tag, cnt_sreg, target)
        e(f"{L('sig'+tag)}:\ns_mov_b64 exec, -1")
    def wait_flags(self, tag, n, base_sreg):
        e = self.e; L = self.lab
        e(f"v_lshlrev_b32 v6, 2, v2\nv_add_u32 v6, s{base_sreg}, v6\ns_mov_b32 s33, 0")
        e(exec_mask(n))
        if PIPE <= 1:
            e(f"{L('poll'+tag)}:")
            e(f"buffer_load_dword v7, v6, {s(CNT,4)}, 0 offen sc1\ns_waitcnt vmcnt(0)")
            e(f"v_cmp_ne_u32 vcc, 1, v7\ns_cmp_eq_u64 vcc, 0\ns_cbranch_scc1 {L('pollx'+tag)}")
            e(f"s_add_u32 s33, s33, 1\ns_cmp_ge_u32 s33, {SPIN_MAX}\ns_cbranch_scc1 {L('pollx'+tag)}")
            e(f"s_sleep {SLEEP}\ns_branch {L('poll'+tag)}")
        else:
            e("s_waitcnt vmcnt(0)")
            for i in range(PIPE):
                e(f"buffer_load_dword v{244+i}, v6, {s(CNT,4)}, 0 offen sc1")
                if i < PIPE - 1: e(f"s_sleep {PGAP}")
            e(f"{L('poll'+tag)}:")
            for i in range(PIPE):
                e(f"s_waitcnt vmcnt({PIPE-1})\nv_cmp_ne_u32 vcc, 1, v{244+i}\ns_cmp_eq_u64 vcc, 0\ns_cbranch_scc1 {L('pollx'+tag)}")
                e(f"buffer_load_dword v{244+i}, v6, {s(CNT,4)}, 0 offen sc1\ns_sleep {PGAP}")
            e(f"s_add_u32 s33, s33, 1\ns_cmp_lt_u32 s33, {SPIN_MAX}\ns_cbranch_scc1 {L('poll'+tag)}")
        e(f"{L('pollx'+tag)}:\ns_mov_b64 exec, -1")

def CHAIN(): return 'nochain' not in OPT and 'modall' not in OPT and 'mrwo' not in OPT

def F1OFF(): return WS_F1A if 'alias' in OPT else WS_F1

def tile_map(e, xr, xc):
    nxc = 16 // xc
    e(f"s_and_b32 s36, s2, 7\ns_lshr_b32 s37, s2, 3")
    e(f"s_and_b32 s38, s36, {nxc-1}\ns_lshr_b32 s39, s36, {nxc.bit_length()-1}")
    e(f"s_and_b32 s40, s37, {xc-1}\ns_lshr_b32 s41, s37, {xc.bit_length()-1}")
    e(f"s_mul_i32 s38, s38, {xc}\ns_add_u32 s26, s38, s40")
    e(f"s_mul_i32 s39, s39, {xr}\ns_add_u32 s25, s39, s41")

def tile_map_s2(e):
    e("s_and_b32 s36, s2, 7\ns_lshr_b32 s37, s2, 3\ns_and_b32 s27, s36, 1\ns_lshr_b32 s36, s36, 1")
    e("s_and_b32 s26, s37, 7\ns_lshr_b32 s37, s37, 3\ns_lshl_b32 s36, s36, 2\ns_add_u32 s25, s36, s37")

def gemm_phase(k, tag, K, lda, ldb, BN, srcA, sizeA, pB, sizeB, epi, xr, xc, NS, nxt_c, nxt_l, dep=None, stamps=(None, None), hbar=False):
    e = k.e
    L = lambda n: k.lab(tag + "_" + n)
    BM, BK = 128, 64
    nA = BM * BK * 2 // 1024; nB = BN * BK * 2 // 1024
    nAw, nBw = nA // 4, nB // 4
    nld = nAw + nBw
    SB = (nA + nB) * 1024
    s2 = epi == "ffn2s"
    nk = K // BK // (2 if s2 else 1)
    TM, TN = 64, BN // 2
    mt, nt = TM // 16, TN // 16
    pitch = BN * 2; cpr = BN // 8
    hbits = {4: 2, 6: 1, 2: 1, 0: 3}[(pitch // 32) % 8]
    ACC = 8; NACC = 4 * mt * nt
    FA = ACC + NACC; NF = 4 * (mt + nt); FB = FA + NF
    AX = FB + NF; AW = AX + 2; EP = AW + nt
    XL = 135168
    assert SB * NS <= XL
    perm = epi == "qkv" and "perm" in OPT
    asc = SC if dep else ""
    e(f"{L('c')}:")
    if s2: tile_map_s2(e)
    else: tile_map(e, xr, xc)
    e("s_lshr_b32 s42, s24, 1\ns_and_b32 s43, s24, 1")
    e("v_and_b32 v3, 15, v2\nv_lshrrev_b32 v4, 4, v2")
    e(f"s_lshl_b32 s44, s25, 7\ns_lshl_b32 s45, s42, 6\ns_add_u32 s44, s44, s45")
    e(f"s_mul_i32 s46, s26, {BN}\ns_mul_i32 s45, s43, {TN}\ns_add_u32 s46, s46, s45")
    k.srd(20, P_WS, WS_MODF, 6144 * 4)
    if epi == "qkv": k.srd(12, P_WS, WS_QKV, 96 * S * 64)
    elif epi == "ffn1": k.srd(12, P_WS, F1OFF(), S * DFF * 2)
    elif epi == "wo": k.srd(12, P_WS, WS_X1, S * D * 2); k.srd(16, P_X, 0, S * D * 2)
    elif epi in ("ffn2", "ffn2s"): k.srd(12, P_OUT, 0, S * D * 2); k.srd(16, P_WS, WS_X1, S * D * 2)
    G = EP + 2 * mt * nt; GG = G + 4 * nt; W1R = GG + 4 * nt
    if s2:
        G = EP + 16
        e("s_lshl_b32 s47, s27, 5\ns_add_u32 s46, s46, s47")
        e("s_lshl_b32 s47, s25, 4\ns_lshl_b32 s48, s26, 1\ns_add_u32 s47, s47, s48\ns_add_u32 s47, s47, s43\ns_lshl_b32 s47, s47, 2\ns_lshl_b32 s48, s42, 1\ns_add_u32 s47, s47, s48\ns_add_u32 s47, s47, s27\ns_lshl_b32 s47, s47, 12")
        e("v_lshlrev_b32 v5, 4, v2")
        for j in range(mt):
            e(f"buffer_load_dwordx4 {v(EP+4*j,4)}, v5, s[16:19], s47 offen offset:{j*1024}{SC}")
        if not CHAIN(): k.srd(20, P_WS, WS_MODP, 4 * 6144 * 4)
        e(f"v_lshlrev_b32 v6, 4, v4\ns_lshl_b32 s47, s46, 2\ns_add_u32 s47, s47, {5*1024*4}")
        for p_ in range(1 if CHAIN() else 4):
            for i in range(2):
                e(f"buffer_load_dwordx4 {v(G+8*p_+4*i,4)}, v6, s[20:23], s47 offen offset:{i*64}{SC}")
            if p_ < 3 and not CHAIN(): e("s_add_u32 s47, s47, 24576")
    if epi == "wo" and "modall" not in OPT and "mrwo" in OPT:
        e(f"s_load_dwordx4 s[36:39], s[0:1], {KA_C}")
        e("s_and_b32 s58, s2, 3\ns_lshr_b32 s59, s2, 2\ns_add_u32 s59, s59, 32")
        e("v_lshrrev_b32 v6, 3, v0\nv_and_b32 v7, 7, v0\nv_mov_b32 v247, v7")
        e("s_lshl_b32 s47, s58, 8\nv_add_u32 v6, s47, v6\nv_lshlrev_b32 v248, 1, v6")
        e("v_mul_u32_u24 v5, 12288, v6\nv_lshlrev_b32 v6, 4, v7\nv_add_u32 v5, v5, v6\ns_lshl_b32 s47, s59, 7\nv_add_u32 v5, s47, v5")
        e("s_waitcnt lgkmcnt(0)")
        k.srd(52, 36, 0, 2048); k.srd(60, 38, 0, 1024 * 6144 * 2)
        for i in range(8): e(f"buffer_load_ushort v{176+i}, v248, s[52:55], 0 offen offset:{i*64}")
        for i in range(8):
            e(f"s_mov_b32 s47, {i*32*12288}\nbuffer_load_dwordx4 {v(184+4*i,4)}, v5, s[60:63], s47 offen")
        gemv_finish(k, 176, 184, 216, 224)
        MRL = 139264
        e(f"s_lshl_b32 s47, s24, 8\nv_lshlrev_b32 v5, 5, v247\nv_add_u32 v5, s47, v5\nv_add_u32 v5, {MRL}, v5")
        e("s_mov_b64 exec, 0xff\nds_write_b128 v5, v[216:219]\nds_write_b128 v5, v[220:223] offset:16\ns_waitcnt lgkmcnt(0)")
        e(f"v_mov_b32 v6, {L_SIG['mr']}\nv_mov_b32 v7, 1\ns_mov_b64 exec, 1\nds_add_rtn_u32 v7, v6, v7\ns_waitcnt lgkmcnt(0)\nv_readfirstlane_b32 s47, v7\ns_mov_b64 exec, -1")
        e(f"s_cmp_lg_u32 s47, 3\ns_cbranch_scc1 {L('mrx')}")
        e(f"v_lshlrev_b32 v5, 2, v2\nv_add_u32 v6, {MRL}, v5")
        for w_ in range(4): e(f"ds_read_b32 v{216+w_}, v6 offset:{w_*256}")
        e("s_waitcnt lgkmcnt(0)\nv_add_f32 v216, v216, v217\nv_add_f32 v218, v218, v219\nv_add_f32 v216, v216, v218")
        k.srd(52, P_WS, WS_MODP, 4 * 6144 * 4)
        e("s_mul_i32 s47, s58, 24576\ns_lshl_b32 s48, s59, 8\ns_add_u32 s47, s47, s48")
        e(f"buffer_store_dword v216, v5, s[52:55], s47 offen{SCS}\ns_waitcnt vmcnt(0)")
        e(f"v_mov_b32 v6, {C_MRALL*256}\nv_mov_b32 v7, 1\ns_mov_b64 exec, 1\nbuffer_atomic_add v7, v6, {s(CNT,4)}, 0 offen sc1\ns_mov_b64 exec, -1")
        e(f"{L('mrx')}:")
    if epi in ("wo", "ffn2"):
        if epi == "wo":
            e(f"v_add_u32 v5, s44, v3\nv_lshlrev_b32 v5, 11, v5\nv_lshlrev_b32 v6, 3, v4\nv_add_u32 v5, v5, v6")
            e(f"s_lshl_b32 s47, s46, 1\nv_add_u32 v5, s47, v5")
            for j in range(mt):
                e(f"s_mov_b32 s48, {j*16*2048}")
                for i in range(nt):
                    e(f"buffer_load_dwordx2 {v(EP+2*(j*nt+i),2)}, v5, s[16:19], s48 offen offset:{i*32}")
        else:
            e("s_lshl_b32 s47, s25, 4\ns_add_u32 s47, s47, s26\ns_lshl_b32 s47, s47, 2\ns_add_u32 s47, s47, s24\ns_lshl_b32 s47, s47, 12\nv_lshlrev_b32 v5, 4, v2")
            for j in range(mt):
                e(f"buffer_load_dwordx4 {v(EP+4*j,4)}, v5, s[16:19], s47 offen offset:{j*1024}{SC}")
        if epi == "ffn2":
            raise NotImplementedError
        if epi == "wo" and CHAIN():
            e(f"s_and_b32 s35, s2, 7\ns_lshl_b32 s35, s35, 7\ns_add_u32 s35, s35, {FL['mr']}")
            k.wait_flags("mr", 1, 35)
            e(f"v_lshlrev_b32 v6, 4, v4\ns_lshl_b32 s47, s46, 2\ns_add_u32 s47, s47, {2*1024*4}")
            for i in range(nt):
                e(f"buffer_load_dwordx4 {v(G+4*i,4)}, v6, s[20:23], s47 offen offset:{i*64}{SC}")
            e(f"s_lshl_b32 s47, s46, 2\ns_add_u32 s47, s47, {4096*4}")
            for i in range(nt):
                e(f"buffer_load_dwordx4 {v(GG+4*i,4)}, v6, s[20:23], s47 offen offset:{i*64}{SC}")
        if epi == "wo":
            e("s_lshr_b32 s58, s2, 4\ns_and_b32 s59, s2, 15")
            e(f"v_mul_u32_u24 v5, {(65536+27)//28}, v2\nv_lshrrev_b32 v5, 16, v5\nv_mul_u32_u24 v6, 28, v5\nv_sub_u32 v6, v2, v6")
            e("s_lshl_b32 s60, s58, 6\ns_lshl_b32 s61, s24, 4\ns_add_u32 s60, s60, s61\nv_add_u32 v5, s60, v5")
            e(f"v_mul_u32_u24 v7, {DFF*2}, v5\nv_lshlrev_b32 v6, 4, v6\nv_add_u32 v7, v7, v6\ns_mul_i32 s60, s59, 448\nv_add_u32 v7, s60, v7")
            k.srd(60, P_W1, 0, D * DFF * 2)
            e("v_cmp_gt_u32 vcc, 56, v2\ns_and_saveexec_b64 s[34:35], vcc")
            for i in range(8):
                e(f"s_mov_b32 s64, {i*2*DFF*2}")
                e(f"buffer_load_dwordx4 {v(W1R+4*i,4)}, v7, s[60:63], s64 offen")
            if CHAIN():
                e("v_lshlrev_b32 v5, 2, v5")
                e(f"s_mov_b32 s64, {4096*4}\ns_mov_b32 s65, {3072*4}")
                for i in range(8):
                    e(f"buffer_load_dword v{W1R+32+i}, v5, s[20:23], s64 offen offset:{i*8}{SC}")
                    e(f"buffer_load_dword v{W1R+40+i}, v5, s[20:23], s65 offen offset:{i*8}{SC}")
            e("s_mov_b64 exec, s[34:35]")
    e(f"v_lshrrev_b32 v5, 1, v3\nv_xor_b32 v5, v5, v4\nv_and_b32 v5, 7, v5")
    e(f"v_lshlrev_b32 v5, 4, v5\ns_lshl_b32 s47, s42, 6\nv_add_u32 v6, s47, v3\nv_lshlrev_b32 v6, 7, v6")
    e(f"v_add_u32 v{AX}, v5, v6\nv_xor_b32 v{AX+1}, 64, v{AX}")
    e("v_lshrrev_b32 v5, 2, v3\nv_and_b32 v6, 3, v2")
    e("v_lshlrev_b32 v7, 3, v4\nv_add_u32 v7, v7, v5")
    e(f"v_mul_u32_u24 v7, {pitch}, v7\nv_lshlrev_b32 v6, 3, v6\nv_add_u32 v7, v7, v6\nv_add_u32 v7, {nA*1024}, v7")
    if hbits == 2: e("v_lshrrev_b32 v5, 1, v5\nv_and_b32 v6, 1, v4\nv_lshlrev_b32 v6, 1, v6\nv_or_b32 v5, v5, v6")
    elif hbits == 1: e("v_and_b32 v5, 1, v4")
    else: e("v_and_b32 v6, 1, v4\nv_lshlrev_b32 v6, 2, v6\nv_or_b32 v5, v5, v6")
    e(f"s_mul_i32 s47, s43, {nt}")
    for i in range(nt):
        e(f"s_add_u32 s48, s47, {i}\nv_xor_b32 v6, s48, v5\nv_lshlrev_b32 v6, 5, v6\nv_add_u32 v{AW+i}, v7, v6")
    for r in range(NACC): e(f"v_mov_b32 v{ACC+r}, 0")
    def reads(ss, F):
        xs = [f"ds_read_b128 {v(F+4*j,4)}, v{AX+ss} offset:{j*2048}" for j in range(mt)]
        ws = []
        for i in range(nt):
            for hh in range(2):
                ws.append(f"ds_read_b64_tr_b16 {v(F+4*mt+4*i+2*hh,2)}, v{AW+i} offset:{(ss*32+hh*4)*pitch}")
        return [xs[0]] + ws[:2] + xs[1:] + ws[2:]
    def mfmas(F):
        return [f"v_mfma_f32_16x16x32_bf16 {v(ACC+4*(j*nt+i),4)}, {v(F+4*mt+4*i,4)}, {v(F+4*j,4)}, {v(ACC+4*(j*nt+i),4)}"
                for j in range(mt) for i in range(nt)]
    def mix(mf, rd, extra=()):
        rd = list(rd)
        if len(rd) <= len(mf) - 4:
            return interleave(mf, rd + list(extra))
        out = []; oi = 0; ex = list(extra)
        for m_ in mf:
            out.append(m_)
            for _ in range(2):
                if oi < len(rd): out.append(rd[oi]); oi += 1
            if oi >= len(rd) and ex: out.append(ex.pop(0))
        out += rd[oi:] + ex
        return out
    if epi == "wo": k.code_touch("w", k.lab("f1_c"), k.lab("f2_c"), 24, 4, 1)
    if epi == "ffn1": k.code_touch("f", k.lab("f1_cloop"), k.lab("end"), 24, 4, 1)
    e(f"s_mov_b32 s49, 0\ns_mov_b32 s54, {SB}\ns_mov_b32 s55, {-(NS-1)*SB & 0xffffffff:#x}")
    e("s_barrier")
    if stamps[0] is not None: k.st(stamps[0])
    for l in reads(0, FA): e(l)
    l2pf = epi in ("qkv", "ffn1") and ("l2" + tag) in OPT
    if l2pf:
        k.srd(56, P_WS, srcA, sizeA); k.srd(60, pB, 0, sizeB)
        e(f"s_cmp_eq_u32 s24, 0\ns_cselect_b32 s65, {(nk-1) & 1}, 99")
        e("s_lshr_b32 s37, s2, 3")
        e(f"s_and_b32 s40, s37, {xc-1}\ns_lshr_b32 s41, s37, {xc.bit_length()-1}")
        e(f"v_lshrrev_b32 v5, 5, v2\nv_add_u32 v5, {L2D}, v5")
        e(f"v_and_b32 v6, 31, v2\ns_lshl_b32 s47, s40, 5\nv_add_u32 v6, s47, v6\ns_lshl_b32 s47, s25, 7\nv_add_u32 v6, s47, v6\nv_lshlrev_b32 v6, 11, v6\nv_lshlrev_b32 v7, 7, v5\nv_add_u32 v250, v6, v7")
        e(f"v_lshlrev_b32 v5, 6, v5\nv_lshrrev_b32 v6, 2, v2\nv_and_b32 v6, 7, v6\nv_add_u32 v5, v5, v6\ns_lshl_b32 s47, s41, 3\nv_add_u32 v5, s47, v5\ns_mov_b32 s47, {ldb*2}\nv_mul_lo_u32 v5, s47, v5")
        e(f"v_and_b32 v6, 3, v2\nv_lshlrev_b32 v6, 7, v6\nv_add_u32 v5, v5, v6\ns_mul_i32 s47, s26, {BN*2}\ns_and_b32 s47, s47, 0xffffff80\nv_add_u32 v249, s47, v5")
    e(f"s_mov_b32 s50, {nk-1}")
    adv_s = f"s_add_u32 s49, s49, 1\ns_cmp_eq_u32 s49, {NS}\ns_cselect_b32 s51, s55, s54\ns_cselect_b32 s49, 0, s49"
    adv_v = [f"v_add_u32 v{r}, s51, v{r}" for r in [AX, AX + 1] + [AW + i for i in range(nt)]]
    align(k, tag)
    e(f"{L('cloop')}:")
    if epi == "wo" and not CHAIN():
        if "modall" in OPT:
            e(f"s_cmp_eq_u32 s50, 12\ns_cbranch_scc0 {L('m2')}")
        else:
            e(f"s_cmp_eq_u32 s50, 11\ns_cbranch_scc0 {L('m1')}")
            e(f"v_mov_b32 v245, {C_MRALL*256}\nbuffer_load_dword v246, v245, {s(CNT,4)}, 0 offen sc1")
            e(f"{L('m1')}:\ns_cmp_eq_u32 s50, 8\ns_cbranch_scc0 {L('m2')}")
            e(f"s_waitcnt vmcnt(0)\nv_readfirstlane_b32 s47, v246\ns_cmp_ge_u32 s47, 256\ns_cbranch_scc1 {L('m1ok')}")
            e(f"v_mov_b32 v6, {C_MRALL*256 - 128}")
            k.poll("mr", None, 256)
            e(f"{L('m1ok')}:")
        k.srd(60, P_WS, WS_MODP, 4 * 6144 * 4)
        e("s_lshl_b32 s47, s26, 6\ns_lshr_b32 s48, s2, 4\ns_lshl_b32 s48, s48, 6\ns_cmp_ge_u32 s24, 2\ns_cselect_b32 s47, s48, s47")
        e("s_mov_b32 s48, 4096\ns_cmp_eq_u32 s24, 0\ns_cselect_b32 s48, 2048, s48\ns_cmp_eq_u32 s24, 3\ns_cselect_b32 s48, 3072, s48")
        e("s_add_u32 s47, s47, s48\ns_lshl_b32 s47, s47, 2\nv_lshlrev_b32 v245, 2, v2")
        for p_ in range(4):
            e(f"buffer_load_dword v{240+p_}, v245, s[60:63], s47 offen{SC}")
            if p_ < 3: e("s_add_u32 s47, s47, 24576")
        e(f"{L('m2')}:\ns_cmp_eq_u32 s50, 4\ns_cbranch_scc0 {L('m3')}")
        e("s_waitcnt vmcnt(0)\nv_add_f32 v240, v240, v241\nv_add_f32 v242, v242, v243\nv_add_f32 v240, v240, v242")
        round_bf16(e, 240)
        e("v_add_f32 v241, 1.0, v240")
        round_bf16(e, 241)
        e("s_sub_u32 s47, s24, 1\ns_cmp_lt_u32 s47, 2\ns_cselect_b64 vcc, -1, 0\nv_cndmask_b32 v240, v240, v241, vcc")
        e(f"s_lshl_b32 s47, s24, 8\ns_add_u32 s47, s47, 135168\nv_add_u32 v245, s47, v245\nds_write_b32 v245, v240")
        e(f"{L('m3')}:")
    if l2pf:
        e(f"s_and_b32 s47, s50, 1\ns_cmp_lg_u32 s47, s65\ns_cbranch_scc1 {L('nopf')}")
        e(f"buffer_load_dword v248, v250, s[56:59], 0 offen{asc}\nbuffer_load_dword v248, v249, s[60:63], 0 offen")
        e(f"v_add_u32 v250, 256, v250\nv_add_u32 v249, {2*64*ldb*2}, v249")
        e(f"{L('nopf')}:")
    def sprinkle(seq, extra, start):
        out = []; n_ = 0; ex = list(extra)
        for x in seq:
            out.append(x)
            if x.startswith("v_mfma"):
                n_ += 1
                if n_ > start and ex: out.append(ex.pop(0))
        return out + ex
    tight = "loose" not in OPT
    if not tight: e(adv_s)
    e("s_waitcnt lgkmcnt(0)")
    seq = mix(mfmas(FA), reads(1, FB))
    if tight: seq = sprinkle(seq, adv_s.split("\n"), 0)
    last_rd = max(i for i, x in enumerate(seq) if x.startswith("ds_read"))
    tail = [x for x in seq[last_rd + 1:]]
    seq = seq[:last_rd + 1]
    av = list(adv_v)
    for x in tail:
        seq.append(x)
        if av and x.startswith("v_mfma"): seq.append(av.pop(0))
    seq += av
    for l in seq: e(l)
    e("s_waitcnt lgkmcnt(0)\ns_barrier")
    seqb = mix(mfmas(FB), reads(0, FA))
    if tight:
        seqb = sprinkle(seqb, ["s_sub_u32 s50, s50, 1", "s_cmp_lg_u32 s50, 0"], 1)
        for l in seqb: e(l)
        e(f"s_cbranch_scc1 {L('cloop')}")
    else:
        for l in seqb: e(l)
        e(f"s_sub_u32 s50, s50, 1\ns_cmp_lg_u32 s50, 0\ns_cbranch_scc1 {L('cloop')}")
    e("s_waitcnt lgkmcnt(0)")
    for l in mix(mfmas(FA), reads(1, FB)): e(l)
    e("s_waitcnt lgkmcnt(0)")
    if epi != "qkv": e("s_barrier")
    for l in mfmas(FB): e(l)
    if stamps[1] is not None: k.st(stamps[1])
    T = FA
    def acc(i, j): return ACC + 4 * (j * nt + i)
    def pack_pair(ta, tb, dst):
        e(f"v_cvt_pk_bf16_f32 v{dst}, v{ta}, v{ta+1}\nv_cvt_pk_bf16_f32 v{dst+1}, v{ta+2}, v{ta+3}")
        e(f"v_cvt_pk_bf16_f32 v{dst+2}, v{tb}, v{tb+1}\nv_cvt_pk_bf16_f32 v{dst+3}, v{tb+2}, v{tb+3}")
        e(f"v_permlane16_swap_b32 v{dst}, v{dst+2}\nv_permlane16_swap_b32 v{dst+1}, v{dst+3}")
    e("v_and_b32 v5, 1, v4\nv_lshlrev_b32 v5, 5, v5\nv_lshrrev_b32 v6, 1, v4\nv_lshlrev_b32 v6, 4, v6\nv_add_u32 v5, v5, v6")
    if epi == "qkv":
        e("v_lshlrev_b32 v6, 6, v3\nv_add_u32 v5, v5, v6")
        n = 0
        for p in range(nt // 2):
            if perm:
                e(f"s_mul_i32 s52, s43, 96\ns_add_u32 s52, s52, {32*p}\ns_cmp_lt_u32 s52, 64\ns_cselect_b32 s53, {f32(LOG2E * 32 ** -0.5)}, 1.0")
                e("s_lshr_b32 s54, s52, 6\ns_lshl_b32 s54, s54, 5\ns_bfe_u32 s52, s52, 0x10005\ns_add_u32 s52, s52, s54\ns_lshl_b32 s54, s26, 1\ns_add_u32 s52, s52, s54")
                e("s_lshl_b32 s52, s52, 17\ns_lshl_b32 s54, s44, 6\ns_add_u32 s52, s52, s54")
            else:
                e(f"s_add_u32 s52, s46, {32*p}\ns_cmp_lt_u32 s52, 1024\ns_cselect_b32 s53, {f32(LOG2E * 32 ** -0.5)}, 1.0")
                e(f"s_lshl_b32 s52, s52, 12\ns_lshl_b32 s54, s44, 6\ns_add_u32 s52, s52, s54")
            e(f"s_cmp_eq_u32 s53, 1.0\ns_cbranch_scc1 {L(f'nosc{p}')}\nv_mov_b32 v6, s53")
            for j in range(mt):
                for t_ in (acc(2 * p, j), acc(2 * p + 1, j)):
                    for r in (0, 2): e(f"v_pk_mul_f32 {v(t_+r,2)}, {v(t_+r,2)}, v[6:7] op_sel_hi:[1,0]")
            e(f"{L(f'nosc{p}')}:")
            for j in range(mt):
                ta, tb = acc(2 * p, j), acc(2 * p + 1, j)
                d = T + 4 * (n % 8); n += 1
                pack_pair(ta, tb, d)
                e(f"buffer_store_dwordx4 {v(d,4)}, v5, s[12:15], s52 offen offset:{j*1024}{SCS}")
        e(f"s_add_u32 s35, s26, {C_QKV}")
        k.signal("qkv", 4, 35, 16, (6, lambda: e(f"s_mul_i32 s33, s26, 6\nv_add_u32 v6, s33, v2\nv_lshrrev_b32 v7, 5, v6\nv_and_b32 v6, 31, v6\nv_lshlrev_b32 v6, 8, v6"
                                                        f"\nv_lshlrev_b32 v7, 6, v7\nv_add_u32 v6, v6, v7"
                                                        f"\ns_lshl_b32 s33, s25, 2\ns_add_u32 s33, s33, {FL['att']}\nv_add_u32 v6, s33, v6")))

    elif epi == "ffn1":
        ST = FA; UU = FA + 8; BB = FA + 36; TMP = FA + 64; T = FA + 72
        e(f"s_lshl_b32 s47, s42, 6\nv_add_u32 v6, s47, v3\nv_lshlrev_b32 v6, 3, v6\nv_add_u32 v6, {XL}, v6")
        for j in range(mt): e(f"ds_read_b64 {v(ST+2*j,2)}, v6 offset:{j*128}")
        e(f"s_mul_i32 s47, s43, {TN*4}\ns_add_u32 s47, s47, {XL+1024}\nv_lshlrev_b32 v7, 4, v4\nv_add_u32 v7, s47, v7")
        for i in range(nt):
            e(f"ds_read_b128 {v(UU+4*i,4)}, v7 offset:{i*64}\nds_read_b128 {v(BB+4*i,4)}, v7 offset:{896+i*64}")
        e("s_lshl_b32 s47, s42, 6\nv_add_u32 v6, s47, v3\nv_lshlrev_b32 v6, 6, v6\nv_lshrrev_b32 v7, 1, v4\nv_lshlrev_b32 v7, 4, v7\nv_add_u32 v6, v6, v7")
        e("v_and_b32 v7, 1, v4\nv_lshlrev_b32 v5, 5, v7\nv_add_u32 v5, v5, v6")
        e("v_lshlrev_b32 v7, 10, v7\nv_add_u32 v6, v6, v7\ns_lshl_b32 s47, s43, 5\nv_add_u32 v6, s47, v6")
        e(f"s_mul_i32 s48, s25, 112\ns_mul_i32 s47, s26, 7\ns_add_u32 s48, s48, s47\ns_lshl_b32 s48, s48, 13")
        e(f"s_add_u32 s53, s48, {3*8192}")
        e("s_waitcnt lgkmcnt(0)")
        def ln(i, j, t):
            a_ = acc(i, j)
            for h_ in range(2):
                e(f"v_pk_fma_f32 {v(t+2*h_,2)}, {v(ST+2*j,2)}, {v(UU+4*i+2*h_,2)}, {v(BB+4*i+2*h_,2)} op_sel_hi:[0,1,1] neg_lo:[1,0,0] neg_hi:[1,0,0]")
            for h_ in range(2):
                e(f"v_pk_fma_f32 {v(a_+2*h_,2)}, {v(a_+2*h_,2)}, {v(ST+2*j,2)}, {v(t+2*h_,2)} op_sel:[0,1,0]")
        cnt = [0]
        def put(ta, tb, addr, soff, off):
            d = T + 4 * (cnt[0] % 4); cnt[0] += 1
            e(f"v_cvt_pk_bf16_f32 v{d}, v{ta}, v{ta+1}\nv_cvt_pk_bf16_f32 v{d+1}, v{ta+2}, v{ta+3}")
            e(f"v_cvt_pk_bf16_f32 v{d+2}, v{tb}, v{tb+1}\nv_cvt_pk_bf16_f32 v{d+3}, v{tb+2}, v{tb+3}")
            for q in range(4): e(f"v_pk_max_i16 v{d+q}, v{d+q}, 0")
            e(f"v_permlane16_swap_b32 v{d}, v{d+2}\nv_permlane16_swap_b32 v{d+1}, v{d+3}")
            e(f"buffer_store_dwordx4 {v(d,4)}, {addr}, s[12:15], {soff} offen offset:{off}{SCS}")
        XA = 139264; XR = T + 16
        e(f"s_lshl_b32 s47, s24, 10\nv_lshlrev_b32 v7, 4, v2\nv_add_u32 v7, s47, v7\nv_add_u32 v7, {XA}, v7")
        e(f"s_cmp_eq_u32 s43, 1\ns_cbranch_scc1 {L('ep1')}")
        for wn_ in range(2):
            if wn_ == 1: e(f"{L('ep1')}:\ns_add_u32 s48, s48, {4*8192}")
            single = 6 if wn_ == 0 else 0
            pairs = [(0, 1), (2, 3), (4, 5)] if wn_ == 0 else [(1, 2), (3, 4), (5, 6)]
            mine = (0, 1) if wn_ == 0 else (2, 3); give = (2, 3) if wn_ == 0 else (0, 1)
            for jj in (0, 2):
                ln(single, jj, TMP); ln(single, jj + 1, TMP + 4)
            for j in range(4):
                a_ = acc(single, j)
                e(f"v_cvt_pk_bf16_f32 v{XR+2*j}, v{a_}, v{a_+1}\nv_cvt_pk_bf16_f32 v{XR+2*j+1}, v{a_+2}, v{a_+3}")
            for q in range(8): e(f"v_pk_max_i16 v{XR+q}, v{XR+q}, 0")
            e(f"ds_write_b128 v7, {v(XR+2*give[0],4)}\ns_waitcnt lgkmcnt(0)")
            e(f"s_lshl_b32 s47, s24, 2\ns_add_u32 s47, s47, {CTL+48}\nv_mov_b32 v{TMP}, s47\nv_mov_b32 v{TMP+1}, 1\nds_write_b32 v{TMP}, v{TMP+1}")
            for pi, (ia, ib) in enumerate(pairs):
                for j in range(mt):
                    ln(ia, j, TMP); ln(ib, j, TMP + 4)
                    put(acc(ia, j), acc(ib, j), "v5", "s48", j * 1024)
                if pi < 2: e("s_add_u32 s48, s48, 8192")
            tg = f"x{wn_}"
            e(f"s_xor_b32 s47, s24, 1\ns_lshl_b32 s47, s47, 2\ns_add_u32 s47, s47, {CTL+48}\nv_mov_b32 v{TMP}, s47\ns_mov_b32 s33, 0")
            e(f"{L('xw'+tg)}:\nds_read_b32 v{TMP+1}, v{TMP}\ns_waitcnt lgkmcnt(0)\nv_readfirstlane_b32 s34, v{TMP+1}")
            e(f"s_cmp_lg_u32 s34, 0\ns_cbranch_scc1 {L('xx'+tg)}\ns_add_u32 s33, s33, 1\ns_cmp_lt_u32 s33, {SPIN_MAX}\ns_cbranch_scc1 {L('xw'+tg)}")
            e(f"{L('xx'+tg)}:")
            e(f"v_xor_b32 v7, 1024, v7\nds_read_b128 {v(TMP,4)}, v7\ns_waitcnt lgkmcnt(0)")
            for n_, j in enumerate(mine):
                d = T + 4 * (cnt[0] % 4); cnt[0] += 1
                own = XR + 2 * j; oth = TMP + 2 * n_
                a0, b0 = (own, oth) if wn_ == 0 else (oth, own)
                e(f"v_mov_b32 v{d}, v{a0}\nv_mov_b32 v{d+1}, v{a0+1}\nv_mov_b32 v{d+2}, v{b0}\nv_mov_b32 v{d+3}, v{b0+1}")
                e(f"v_permlane16_swap_b32 v{d}, v{d+2}\nv_permlane16_swap_b32 v{d+1}, v{d+3}")
                e(f"buffer_store_dwordx4 {v(d,4)}, v5, s[12:15], s53 offen offset:{j*1024}{SCS}")
            if wn_ == 0: e(f"s_branch {L('ep2')}")
        e(f"{L('ep2')}:")
        if "stf1" in OPT: k.st(12)
        e(f"s_add_u32 s35, s25, {C_F1}")
        k.signal("f1", 4, 35, 16, (16, lambda: e(f"s_lshl_b32 s33, s25, 11\ns_lshl_b32 s34, s26, 2\ns_add_u32 s33, s33, s34\ns_add_u32 s33, s33, {FL['f2']}\nv_lshlrev_b32 v6, 7, v2\nv_add_u32 v6, s33, v6")) if "nos2" in OPT else
                 (1, lambda: e(f"s_lshl_b32 s33, s25, 1\ns_lshr_b32 s34, s26, 3\ns_add_u32 s33, s33, s34\ns_lshl_b32 s33, s33, 7\ns_and_b32 s34, s26, 7\ns_lshl_b32 s34, s34, 2\ns_add_u32 s33, s33, s34\ns_add_u32 s33, s33, {FL['f2']}\nv_mov_b32 v6, s33")))
        if "stf1" in OPT: k.st(13)
    elif s2:
        e(f"s_cmp_eq_u32 s27, 0\ns_cbranch_scc1 {L('noswap')}")
        for j in range(mt):
            for r in range(8): e(f"v_swap_b32 v{acc(0,j)+r}, v{acc(2,j)+r}")
        e(f"{L('noswap')}:")
        k.srd(56, P_WS, WS_XCH, 128 * 2 * 4 * 8192)
        e("s_lshl_b32 s47, s25, 3\ns_add_u32 s47, s47, s26\ns_lshl_b32 s47, s47, 1")
        e("s_xor_b32 s48, s27, 1\ns_add_u32 s48, s48, s47\ns_lshl_b32 s49, s48, 2\ns_add_u32 s49, s49, s24\ns_lshl_b32 s49, s49, 13")
        e("s_add_u32 s52, s47, s27\ns_lshl_b32 s53, s52, 2\ns_add_u32 s53, s53, s24\ns_lshl_b32 s53, s53, 13")
        e("v_lshlrev_b32 v7, 4, v2")
        xb = "xchbf16" in OPT
        if xb:
            for j in range(mt):
                a2 = acc(2, j)
                for q in range(4): e(f"v_cvt_pk_bf16_f32 v{a2+q}, v{a2+2*q}, v{a2+2*q+1}")
                e(f"buffer_store_dwordx4 {v(a2,4)}, v7, s[56:59], s49 offen offset:{j*1024}{SCS}")
            e("s_waitcnt vmcnt(4)")
        else:
            for j in range(mt):
                if j == 2: e("s_add_u32 s49, s49, 4096")
                e(f"buffer_store_dwordx4 {v(acc(2,j),4)}, v7, s[56:59], s49 offen offset:{(j%2)*2048}{SCS}")
                e(f"buffer_store_dwordx4 {v(acc(3,j),4)}, v7, s[56:59], s49 offen offset:{(j%2)*2048+1024}{SCS}")
            e("s_waitcnt vmcnt(8)")
        XT = T + 32
        for r in range(0 if CHAIN() else 8):
            e(f"v_add_f32 v{G+r}, v{G+r}, v{G+8+r}\nv_add_f32 v{G+16+r}, v{G+16+r}, v{G+24+r}\nv_add_f32 v{G+r}, v{G+r}, v{G+16+r}")
            round_bf16(e, G + r)
        for j in range(mt):
            for i in range(2):
                a0 = acc(i, j); x0 = EP + 4 * j + 2 * i
                for q in range(2):
                    e(f"v_lshlrev_b32 v{XT+2*q}, 16, v{x0+q}\nv_and_b32 v{XT+2*q+1}, 0xffff0000, v{x0+q}")
                for q in range(2):
                    e(f"v_pk_fma_f32 {v(a0+2*q,2)}, {v(a0+2*q,2)}, {v(G+4*i+2*q,2)}, {v(XT+2*q,2)}")
        e(f"v_add_u32 v6, s44, v3\nv_lshlrev_b32 v6, 11, v6\ns_lshl_b32 s47, s46, 1\nv_add_u32 v6, s47, v6\nv_add_u32 v5, v5, v6")
        e("s_waitcnt vmcnt(0)")
        e(f"s_lshl_b32 s48, s48, 7\ns_lshl_b32 s54, s24, 2\ns_add_u32 s48, s48, s54\ns_add_u32 s48, s48, {FL['xch']}\nv_mov_b32 v6, s48\nv_mov_b32 v249, 1")
        e(f"s_mov_b64 exec, 1\nbuffer_store_dword v249, v6, {s(CNT,4)}, 0 offen sc1\ns_mov_b64 exec, -1")
        e(f"s_lshl_b32 s52, s52, 7\ns_add_u32 s52, s52, s54\ns_add_u32 s52, s52, {FL['xch']}\nv_mov_b32 v6, s52\ns_mov_b32 s33, 0\ns_mov_b64 exec, 1")
        e(f"{L('xpoll')}:")
        e(f"buffer_load_dword v249, v6, {s(CNT,4)}, 0 offen sc1\ns_waitcnt vmcnt(0)\nv_readfirstlane_b32 s34, v249")
        e(f"s_cmp_eq_u32 s34, 1\ns_cbranch_scc1 {L('xdone')}\ns_add_u32 s33, s33, 1\ns_cmp_lt_u32 s33, {SPIN_MAX}\ns_cbranch_scc1 {L('xpoll')}")
        e(f"{L('xdone')}:\ns_mov_b64 exec, -1")
        for j in range(mt):
            if xb:
                e(f"buffer_load_dwordx4 {v(acc(2,j)+4,4)}, v7, s[56:59], s53 offen offset:{j*1024}{SC}")
                continue
            if j == 2: e("s_add_u32 s53, s53, 4096")
            e(f"buffer_load_dwordx4 {v(acc(2,j),4)}, v7, s[56:59], s53 offen offset:{(j%2)*2048}{SC}")
            e(f"buffer_load_dwordx4 {v(acc(3,j),4)}, v7, s[56:59], s53 offen offset:{(j%2)*2048+1024}{SC}")
        for j in range(mt):
            e(f"s_waitcnt vmcnt({(1 if xb else 2)*(mt-1-j) + j})")
            e(f"s_mov_b32 s48, {j*16*2048}")
            d = T + 4 * (j % 2)
            if xb:
                src = acc(2, j) + 4
                for q in range(2): e(f"v_lshlrev_b32 v{acc(2,j)+2*q}, 16, v{src+q}\nv_and_b32 v{acc(2,j)+2*q+1}, 0xffff0000, v{src+q}")
                for q in range(2): e(f"v_lshlrev_b32 v{XT+2*q}, 16, v{src+2+q}\nv_and_b32 v{XT+2*q+1}, 0xffff0000, v{src+2+q}")
                for q in range(2):
                    e(f"v_pk_fma_f32 {v(acc(0,j)+2*q,2)}, {v(acc(2,j)+2*q,2)}, {v(G+2*q,2)}, {v(acc(0,j)+2*q,2)}")
                    e(f"v_pk_fma_f32 {v(acc(1,j)+2*q,2)}, {v(XT+2*q,2)}, {v(G+4+2*q,2)}, {v(acc(1,j)+2*q,2)}")
            else:
                for i in range(2):
                    for q in range(2):
                        e(f"v_pk_fma_f32 {v(acc(i,j)+2*q,2)}, {v(acc(2+i,j)+2*q,2)}, {v(G+4*i+2*q,2)}, {v(acc(i,j)+2*q,2)}")
            pack_pair(acc(0, j), acc(1, j), d)
            e(f"buffer_store_dwordx4 {v(d,4)}, v5, s[12:15], s48 offen{' sc1' if 'outsc1' in OPT else ('' if 'outplain' in OPT else ' nt')}")
    else:
        if not CHAIN():
            ML = 135168
            e(f"s_lshl_b32 s47, s43, 7\nv_lshlrev_b32 v6, 4, v4\nv_add_u32 v6, s47, v6\nv_add_u32 v6, {ML}, v6")
            for i in range(nt):
                e(f"ds_read_b128 {v(G+4*i,4)}, v6 offset:{i*64}\nds_read_b128 {v(GG+4*i,4)}, v6 offset:{256+i*64}")
            e(f"v_mul_u32_u24 v6, {(65536+27)//28}, v2\nv_lshrrev_b32 v6, 16, v6\nv_min_u32 v6, 1, v6\ns_lshl_b32 s47, s24, 4\nv_add_u32 v6, s47, v6\nv_lshlrev_b32 v6, 2, v6\nv_add_u32 v6, {ML+512}, v6")
            for i in range(8):
                e(f"ds_read_b32 v{W1R+32+i}, v6 offset:{i*8}\nds_read_b32 v{W1R+40+i}, v6 offset:{256+i*8}")
            e("s_waitcnt lgkmcnt(0)")
        e("s_waitcnt vmcnt(0)")
        XT = T + 32
        e(f"v_add_u32 v6, s44, v3\nv_lshlrev_b32 v6, 11, v6\ns_lshl_b32 s47, s46, 1\nv_add_u32 v6, s47, v6\nv_add_u32 v5, v5, v6")
        if epi == "wo":
            k.srd(16, P_WS, WS_XG, S * D * 2); k.srd(60, P_WS, WS_STAT, 32 * S * 8)
            if CHAIN():
                for r in range(4 * nt):
                    e(f"v_add_f32 v{GG+r}, 1.0, v{GG+r}"); round_bf16(e, GG + r)
            e(f"s_lshl_b32 s49, s26, 1\ns_add_u32 s49, s49, s43\ns_lshl_b32 s49, s49, 14\ns_lshl_b32 s50, s44, 3\ns_add_u32 s49, s49, s50")
            e("v_lshlrev_b32 v1, 3, v3\nv_and_b32 v6, 1, v4\nv_lshlrev_b32 v6, 2, v6\nv_add_u32 v1, v1, v6")
            e("s_lshl_b32 s47, s25, 4\ns_add_u32 s47, s47, s26\ns_lshl_b32 s47, s47, 2\ns_add_u32 s47, s47, s24\ns_lshl_b32 s47, s47, 12\nv_lshlrev_b32 v7, 4, v2\nv_mov_b32 v253, v7")
        for j in range(mt):
            e(f"s_mov_b32 s48, {j*16*2048}")
            d = T + 4 * (j % 2); d2 = T + 8 + 4 * (j % 2); SM = T + 16 + 4 * (j % 2)
            for i in range(nt):
                a0 = acc(i, j); x0 = EP + 2 * (j * nt + i)
                for q in range(2):
                    e(f"v_lshlrev_b32 v{XT+2*q}, 16, v{x0+q}\nv_and_b32 v{XT+2*q+1}, 0xffff0000, v{x0+q}")
                for q in range(2):
                    e(f"v_pk_fma_f32 {v(a0+2*q,2)}, {v(a0+2*q,2)}, {v(G+4*i+2*q,2)}, {v(XT+2*q,2)}")
            ta, tb = acc(0, j), acc(1, j)
            if epi == "ffn2":
                e(f"v_cvt_pk_bf16_f32 v{d}, v{ta}, v{ta+1}\nv_cvt_pk_bf16_f32 v{d+1}, v{ta+2}, v{ta+3}")
                e(f"v_cvt_pk_bf16_f32 v{d+2}, v{tb}, v{tb+1}\nv_cvt_pk_bf16_f32 v{d+3}, v{tb+2}, v{tb+3}")
                e(f"v_permlane16_swap_b32 v{d}, v{d+2}\nv_permlane16_swap_b32 v{d+1}, v{d+3}")
                e(f"buffer_store_dwordx4 {v(d,4)}, v5, s[12:15], s48 offen")
                continue
            for q in range(2):
                e(f"v_pk_mul_f32 {v(XT+2*q,2)}, {v(ta+2*q,2)}, {v(GG+2*q,2)}\nv_pk_mul_f32 {v(XT+4+2*q,2)}, {v(tb+2*q,2)}, {v(GG+4+2*q,2)}")
            for q in range(4): e(f"v_cvt_pk_bf16_f32 v{d2+q}, v{XT+2*q}, v{XT+2*q+1}")
            e(f"v_permlane16_swap_b32 v{d2}, v{d2+2}\nv_permlane16_swap_b32 v{d2+1}, v{d2+3}")
            e(f"buffer_store_dwordx4 {v(d2,4)}, v5, s[16:19], s48 offen{SCS}")
        for j in range(mt if epi == "wo" else 0):
            d = T + 4 * (j % 2); SM = T + 16 + 4 * (j % 2)
            ta, tb = acc(0, j), acc(1, j)
            e(f"v_cvt_pk_bf16_f32 v{d}, v{ta}, v{ta+1}\nv_cvt_pk_bf16_f32 v{d+1}, v{ta+2}, v{ta+3}")
            e(f"v_cvt_pk_bf16_f32 v{d+2}, v{tb}, v{tb+1}\nv_cvt_pk_bf16_f32 v{d+3}, v{tb+2}, v{tb+3}")
            e(f"buffer_store_dwordx4 {v(d,4)}, v253, s[12:15], s47 offen offset:{j*1024}{SCS}")
            e(f"v_pk_add_f32 {v(SM,2)}, {v(ta,2)}, {v(ta+2,2)}\nv_pk_mul_f32 {v(SM+2,2)}, {v(ta,2)}, {v(ta,2)}")
            e(f"v_pk_add_f32 {v(SM,2)}, {v(SM,2)}, {v(tb,2)}\nv_pk_fma_f32 {v(SM+2,2)}, {v(ta+2,2)}, {v(ta+2,2)}, {v(SM+2,2)}")
            e(f"v_pk_add_f32 {v(SM,2)}, {v(SM,2)}, {v(tb+2,2)}\nv_pk_fma_f32 {v(SM+2,2)}, {v(tb,2)}, {v(tb,2)}, {v(SM+2,2)}")
            e(f"v_pk_fma_f32 {v(SM+2,2)}, {v(tb+2,2)}, {v(tb+2,2)}, {v(SM+2,2)}")
            e(f"v_add_f32 v{SM}, v{SM}, v{SM+1}\nv_add_f32 v{SM+2}, v{SM+2}, v{SM+3}")
            e(f"v_permlane16_swap_b32 v{SM}, v{SM+2}\nv_add_f32 v{SM}, v{SM}, v{SM+2}\nv_mov_b32 v{SM+1}, v{SM}")
            e(f"v_permlane32_swap_b32 v{SM}, v{SM+1}\nv_add_f32 v{SM}, v{SM}, v{SM+1}")
            e(f"s_mov_b32 exec_lo, -1\ns_mov_b32 exec_hi, 0\nbuffer_store_dword v{SM}, v1, s[60:63], s49 offen offset:{j*128}{SCS}\ns_mov_b64 exec, -1")
        if epi == "wo":
            if "stwo" in OPT: k.st(12)
            e(f"s_add_u32 s35, s25, {C_WO}")
            k.signal("wo", 4, 35, 16, (4, lambda: e(f"s_lshl_b32 s33, s25, 9\ns_lshl_b32 s34, s26, 2\ns_add_u32 s33, s33, s34\ns_add_u32 s33, s33, {FL['f1']}\nv_lshlrev_b32 v6, 7, v2\nv_add_u32 v6, s33, v6")), younger=8)
            k.signal("wo2", 4, 35, 16, (4, lambda: e(f"s_lshl_b32 s33, s25, 9\ns_lshl_b32 s34, s26, 2\ns_add_u32 s33, s33, s34\ns_add_u32 s33, s33, {FL['f1b']}\nv_lshlrev_b32 v6, 7, v2\nv_add_u32 v6, s33, v6")))
            if "stwo" in OPT: k.st(13)
            UA = ACC
            for r in range(16): e(f"v_mov_b32 v{UA+r}, 0")
            for i in range(8):
                g_ = W1R + 32 + i; s_ = W1R + 40 + i
                if CHAIN():
                    e(f"v_add_f32 v{g_}, 1.0, v{g_}"); round_bf16(e, g_)
                for q in range(4):
                    w_ = W1R + 4 * i + q
                    e(f"v_lshlrev_b32 v6, 16, v{w_}\nv_and_b32 v7, 0xffff0000, v{w_}")
                    e(f"v_fmac_f32 v{UA+2*q}, v{g_}, v6\nv_fmac_f32 v{UA+2*q+1}, v{g_}, v7\nv_fmac_f32 v{UA+8+2*q}, v{s_}, v6\nv_fmac_f32 v{UA+8+2*q+1}, v{s_}, v7")
            UL = 139264
            e(f"v_mul_u32_u24 v5, {(65536+27)//28}, v2\nv_lshrrev_b32 v5, 16, v5\nv_mul_u32_u24 v6, 28, v5\nv_sub_u32 v6, v2, v6")
            e(f"s_lshl_b32 s32, s24, 1\nv_add_u32 v5, s32, v5\nv_mul_u32_u24 v5, 1792, v5\nv_lshlrev_b32 v6, 5, v6\nv_add_u32 v5, v5, v6\nv_add_u32 v5, {UL}, v5")
            e("v_cmp_gt_u32 vcc, 56, v2\ns_and_saveexec_b64 s[34:35], vcc")
            e(f"ds_write_b128 v5, {v(UA,4)}\nds_write_b128 v5, {v(UA+4,4)} offset:16\nds_write_b128 v5, {v(UA+8,4)} offset:896\nds_write_b128 v5, {v(UA+12,4)} offset:912")
            e("s_mov_b64 exec, s[34:35]\ns_waitcnt lgkmcnt(0)")
            e(f"v_mov_b32 v6, {L_SIG['ub']}\nv_mov_b32 v7, 1\ns_mov_b64 exec, 1")
            e("ds_add_rtn_u32 v7, v6, v7\ns_waitcnt lgkmcnt(0)\nv_readfirstlane_b32 s32, v7\ns_mov_b64 exec, -1")
            e(f"s_cmp_lg_u32 s32, 3\ns_cbranch_scc1 {L('ubx')}")
            e(f"v_lshlrev_b32 v5, 2, v2\nv_add_u32 v5, {UL}, v5")
            for m_ in range(7):
                for rr in range(8): e(f"ds_read_b32 v{UA+rr}, v5 offset:{rr*1792+m_*256}")
                e("s_waitcnt lgkmcnt(0)")
                for rr in range(1, 8): e(f"v_add_f32 v{UA}, v{UA}, v{UA+rr}")
                e(f"v_mov_b32 v{UA+16+m_}, v{UA}")
            k.srd(16, P_WS, WS_UB, 16 * 2 * DFF * 4)
            e(f"s_mul_i32 s49, s58, {2*DFF*4}\ns_mul_i32 s50, s59, 896\ns_add_u32 s49, s49, s50")
            for m_ in range(7):
                e(f"v_add_u32 v5, {64*m_}, v2\nv_cmp_le_u32 vcc, 224, v5\nv_mov_b32 v6, {DFF*4 - 896}\nv_cndmask_b32 v6, 0, v6, vcc\nv_lshl_add_u32 v5, v5, 2, v6")
                e(f"buffer_store_dword v{UA+16+m_}, v5, s[16:19], s49 offen{SCS}")
            e("s_waitcnt vmcnt(0)")
            e(f"s_add_u32 s35, s59, {C_UB}\ns_mov_b64 exec, 1")
            k.arrive("ub", 35, 16)
            e("s_mov_b64 exec, -1")
            e(f"{L('ubx')}:")
    e(f"s_branch {nxt_c}")
    e(f"{L('l')}:")
    if s2: tile_map_s2(e)
    else: tile_map(e, xr, xc)
    k.srd(4, P_WS, srcA, sizeA); k.srd(8, pB, 0, sizeB)
    e("s_sub_u32 s42, s24, 4")
    LA = 8
    lda2, ldb2 = lda * 2, ldb * 2
    blocked = epi in ("ffn2", "ffn2s")
    if blocked:
        e(f"s_mul_i32 s43, s25, {112*8192}\ns_mul_i32 s44, s42, {nAw*8*64}\ns_add_u32 s43, s43, s44")
        e("v_lshrrev_b32 v3, 3, v2\nv_lshlrev_b32 v3, 6, v3\nv_add_u32 v3, s43, v3")
        e("v_and_b32 v4, 7, v2\nv_lshrrev_b32 v5, 4, v2")
        for i in range(nAw):
            e(f"v_xor_b32 v6, {(i&1)*4}, v5\nv_xor_b32 v6, v6, v4\nv_lshrrev_b32 v7, 2, v6\nv_lshlrev_b32 v7, 13, v7\nv_and_b32 v6, 3, v6\nv_lshlrev_b32 v6, 4, v6")
            e(f"v_add3_u32 v6, v6, v7, v3\nv_add_u32 v{LA+i}, {i*8*64}, v6")
    else:
        e(f"s_lshl_b32 s43, s25, 7\ns_mul_i32 s44, s42, {nAw*8}\ns_add_u32 s43, s43, s44")
        e(f"v_lshrrev_b32 v3, 3, v2\nv_add_u32 v3, s43, v3\ns_mov_b32 s45, {lda2}\nv_mul_lo_u32 v3, s45, v3")
        e("v_and_b32 v4, 7, v2\nv_lshrrev_b32 v5, 4, v2")
        for i in range(nAw):
            e(f"v_xor_b32 v6, {(i&1)*4}, v5\nv_xor_b32 v6, v6, v4\nv_lshlrev_b32 v6, 4, v6\nv_add_u32 v6, v6, v3")
            e(f"v_add_u32 v{LA+i}, {i*8*lda2}, v6")
    ASTEP = 16384 if blocked else BK * 2
    magic = (65536 + cpr - 1) // cpr
    assert all((p * magic) >> 16 == p // cpr for p in range(nBw * 64)) and nBw * 64 == 16 * cpr
    e(f"s_mul_i32 s43, s42, {16*ldb2}\ns_mul_i32 s44, s26, {128 if perm else BN*2}\ns_add_u32 s43, s43, s44")
    for i in range(nBw):
        e(f"v_add_u32 v3, {i*64}, v2\nv_mul_u32_u24 v4, {magic}, v3\nv_lshrrev_b32 v4, 16, v4")
        e(f"v_mul_u32_u24 v5, {cpr}, v4\nv_sub_u32 v3, v3, v5")
        if hbits == 2: e("v_and_b32 v5, 2, v4\nv_lshrrev_b32 v6, 1, v4\nv_and_b32 v6, 4, v6\nv_or_b32 v5, v5, v6")
        elif hbits == 1: e("v_lshrrev_b32 v5, 2, v4\nv_and_b32 v5, 2, v5")
        else: e("v_and_b32 v5, 3, v4\nv_lshrrev_b32 v6, 1, v4\nv_and_b32 v6, 4, v6\nv_or_b32 v5, v5, v6\nv_lshlrev_b32 v5, 1, v5")
        e("v_xor_b32 v3, v3, v5")
        if perm: e("v_lshrrev_b32 v5, 3, v3\nv_and_b32 v3, 7, v3\nv_lshlrev_b32 v5, 7, v5\nv_add_u32 v3, v3, v5")
        e(f"v_lshlrev_b32 v3, 4, v3\ns_mov_b32 s45, {ldb2}\nv_mul_lo_u32 v4, s45, v4\nv_add_u32 v3, v3, v4")
        e(f"v_add_u32 v{LA+nAw+i}, s43, v3")
    e(f"s_mul_i32 s46, s42, {nAw*1024}")
    e(f"s_mul_i32 s47, s42, {nBw*1024}\ns_add_u32 s47, s47, {nA*1024}")
    def issue_x(lds_s, off_s):
        for i in range(nAw):
            e(f"s_add_u32 m0, {lds_s}, {i*1024}")
            e(f"buffer_load_dwordx4 v{LA+i}, s[4:7], {off_s} offen{asc} lds")
    def issue_w(lds_s, off_s):
        for i in range(nBw):
            e(f"s_add_u32 m0, {lds_s}, {i*1024}")
            e(f"buffer_load_dwordx4 v{LA+nAw+i}, s[8:11], {off_s} offen lds")
    if s2: e(f"s_mul_i32 s62, s27, {nk*ASTEP}\ns_mul_i32 s63, s27, {nk*BK*ldb2}")
    else: e("s_mov_b32 s62, 0\ns_mov_b32 s63, 0")
    def w_prologue():
        for st in range(NS - 1):
            e(f"s_add_u32 s52, s47, {st*SB}\ns_add_u32 s49, s63, {st*BK*ldb2}")
            issue_w("s52", "s49")
    if dep:
        base, target, kind = dep
        e(f"s_lshr_b32 s35, s25, 1\ns_add_u32 s35, s35, {base}" if kind == "rb2" else f"s_add_u32 s35, s25, {base}")
        if "wfirst" in OPT:
            w_prologue()
            k.dep_wait_loaders(tag, 35, target, None)
        else:
            if hbar and "single" in OPT: g_loader(k)
            e(f"s_cmp_eq_u32 s24, 4\ns_cbranch_scc1 {L('w4a')}")
            w_prologue()
            e(f"{L('w4a')}:")
            if hbar and "nowq" not in OPT:
                e(f"s_cmp_eq_u32 s24, 4\ns_cbranch_scc1 {L('nowqpf')}")
                e("s_mul_i32 s43, s2, 3\ns_add_u32 s43, s43, s24\ns_sub_u32 s43, s43, 5\ns_lshl_b32 s43, s43, 13\nv_lshlrev_b32 v3, 7, v2")
                e("buffer_load_dword v253, v3, s[8:11], s43 offen")
                e(f"{L('nowqpf')}:")
            if hbar and "single" in OPT: e("s_barrier")
            if hbar: e("s_barrier")
            k.dep_wait_loaders(tag, 35, target, None)
            e(f"s_cmp_lg_u32 s24, 4\ns_cbranch_scc1 {L('w4b')}")
            w_prologue()
            e(f"{L('w4b')}:")
        if tag == "f1" and "stwo" in OPT: k.st(14, 4)
        if tag == "wo" and "statt" in OPT: k.st(15, 4)
        if tag == "f2" and "stf1" in OPT: k.st(14, 4)
    else:
        w_prologue()
    for st in range(NS - 1):
        e(f"s_add_u32 s51, s46, {st*SB}\ns_add_u32 s48, s62, {st*ASTEP}")
        issue_x("s51", "s48")
    e(f"s_add_u32 s48, s62, {(NS-1)*ASTEP}\ns_add_u32 s49, s63, {(NS-1)*BK*ldb2}\ns_mov_b32 s50, {(NS-1)*SB}")
    def issue():
        e("s_add_u32 s51, s50, s46\ns_add_u32 s52, s50, s47")
        issue_x("s51", "s48"); issue_w("s52", "s49")
        e(f"s_add_u32 s48, s48, {ASTEP}\ns_add_u32 s49, s49, {BK*ldb2}")
        e(f"s_add_u32 s50, s50, {SB}\ns_cmp_eq_u32 s50, {SB*NS}\ns_cselect_b32 s50, 0, s50")
    e(f"s_waitcnt vmcnt({nAw*(NS-2)})\ns_barrier")
    issue()
    e(f"s_waitcnt vmcnt({nAw*(NS-3) + nld})\ns_barrier" if NS >= 3 else "")
    issue()
    for t in range(2, NS - 1):
        e(f"s_waitcnt vmcnt({nAw*(NS-2-t) + nld*t})\ns_barrier")
        issue()
    done = max(2, NS - 1)
    e(f"s_mov_b32 s53, {nk-(NS-1)-done}")
    e(f"{L('lloop')}:")
    e(f"s_waitcnt vmcnt({nld*(NS-2)})\ns_barrier")
    issue()
    e(f"s_sub_u32 s53, s53, 1\ns_cmp_lg_u32 s53, 0\ns_cbranch_scc1 {L('lloop')}")
    nx = 0
    for t in range(NS - 1):
        e(f"s_waitcnt vmcnt({nld*(NS-2-t)+nx})\ns_barrier")
        if epi == "qkv" and t == 0 and "modall" not in OPT and "mrwo" not in OPT:
            nx = 16
            e(f"s_load_dwordx4 s[36:39], s[0:1], {KA_C}")
            e("s_and_b32 s58, s2, 3\ns_lshr_b32 s59, s2, 2\ns_add_u32 s59, s59, 32\ns_mov_b32 s64, s58\ns_mov_b32 s65, s59")
            e("v_subrev_u32 v3, 256, v0\nv_lshrrev_b32 v6, 3, v3\nv_and_b32 v7, 7, v3\nv_mov_b32 v22, v7")
            e("s_lshl_b32 s43, s58, 8\nv_add_u32 v6, s43, v6\nv_lshlrev_b32 v4, 1, v6")
            e("v_mul_u32_u24 v5, 12288, v6\nv_lshlrev_b32 v6, 4, v7\nv_add_u32 v5, v5, v6\ns_lshl_b32 s43, s59, 7\nv_add_u32 v5, s43, v5")
            e("s_waitcnt lgkmcnt(0)")
            k.srd(52, 36, 0, 2048); k.srd(60, 38, 0, 1024 * 6144 * 2)
            for i in range(8): e(f"buffer_load_ushort v{24+i}, v4, s[52:55], 0 offen offset:{i*64}")
            for i in range(8):
                e(f"s_mov_b32 s43, {i*32*12288}\nbuffer_load_dwordx4 {v(32+4*i,4)}, v5, s[60:63], s43 offen")
        if epi == "ffn1" and t == 0:
            nx = 32
            k.srd(56, P_WS, WS_STAT, 32 * S * 8); k.srd(60, P_WS, WS_UB, 16 * 2 * DFF * 4)
            e(f"s_cmp_ge_u32 s42, 2\ns_cbranch_scc1 {L('ubld')}")
            e(f"s_lshl_b32 s34, s25, 2\ns_lshr_b32 s33, s26, 2\ns_add_u32 s34, s34, s33\ns_lshl_b32 s34, s34, 7\ns_add_u32 s34, s34, {FL['f1b']}")
            k.wait_flags("f1b", 16, 34)
            e(f"s_lshl_b32 s43, s42, 6\nv_add_u32 v3, s43, v2\ns_lshl_b32 s44, s25, 7\nv_add_u32 v4, s44, v3\nv_lshlrev_b32 v4, 3, v4")
            for sl in range(32):
                e(f"s_mov_b32 s45, {sl*S*8}\nbuffer_load_dwordx2 {v(32+2*sl,2)}, v4, s[56:59], s45 offen{SC}")
            e(f"s_branch {L('ldd')}")
            e(f"{L('ubld')}:")
            e(f"s_add_u32 s35, s26, {C_UB}")
            k.poll(tag + "u", 35, 16)
            if "alias" in OPT:
                e(f"v_mov_b32 v6, {C_ATTALL*256 - 128}")
                k.poll(tag + "a", None, 256)
            e(f"s_sub_u32 s43, s42, 2\ns_lshl_b32 s43, s43, 6\nv_add_u32 v3, s43, v2")
            e(f"s_mul_i32 s44, s26, {BN*4}\nv_lshlrev_b32 v4, 3, v3\nv_add_u32 v4, s44, v4")
            for kg in range(16):
                for w_ in range(2):
                    e(f"s_mov_b32 s45, {(kg*2+w_)*DFF*4}\nbuffer_load_dwordx2 {v(32+4*kg+2*w_,2)}, v4, s[60:63], s45 offen{SC}")
            e(f"{L('ldd')}:")
    if epi == "ffn1":
        e("s_waitcnt vmcnt(0)")
        e(f"s_cmp_ge_u32 s42, 2\ns_cbranch_scc1 {L('ubred')}")
        for sl in range(1, 32): e(f"v_add_f32 v32, v32, v{32+2*sl}\nv_add_f32 v33, v33, v{33+2*sl}")
        e(f"v_mul_f32 v32, {f32(1/1024)}, v32\nv_mul_f32 v33, {f32(1/1024)}, v33")
        e(f"v_fma_f32 v33, -v32, v32, v33\nv_max_f32 v33, 0, v33\nv_add_f32 v33, {f32(1e-5)}, v33\nv_rsq_f32 v33, v33")
        e("v_mul_f32 v32, v32, v33")
        e(f"v_lshlrev_b32 v4, 3, v3\nv_add_u32 v4, {XL}, v4\nds_write_b64 v4, v[32:33]")
        e(f"s_branch {L('redd')}")
        e(f"{L('ubred')}:")
        for kg in range(1, 16):
            for q in range(4): e(f"v_add_f32 v{32+q}, v{32+q}, v{32+4*kg+q}")
        e(f"v_lshlrev_b32 v4, 3, v3\nv_add_u32 v4, {XL+1024}, v4\nv_cmp_gt_u32 vcc, 112, v3\ns_and_saveexec_b64 s[44:45], vcc")
        e(f"ds_write_b64 v4, v[32:33]\nds_write_b64 v4, v[34:35] offset:896\ns_mov_b64 exec, s[44:45]")
        e(f"{L('redd')}:")
        e("s_waitcnt lgkmcnt(0)")
    if epi == "qkv" and "modall" not in OPT and "mrwo" not in OPT:
        gemv_finish(k, 24, 32, 64, 72)
        MRL = 139264
        e(f"s_sub_u32 s43, s24, 4\ns_lshl_b32 s43, s43, 8\nv_lshlrev_b32 v9, 5, v22\nv_add_u32 v9, s43, v9\nv_add_u32 v9, {MRL}, v9")
        e("s_mov_b64 exec, 0xff\nds_write_b128 v9, v[64:67]\nds_write_b128 v9, v[68:71] offset:16\ns_waitcnt lgkmcnt(0)")
        e(f"v_mov_b32 v6, {L_SIG['mr']}\nv_mov_b32 v8, 1\ns_mov_b64 exec, 1\nds_add_rtn_u32 v8, v6, v8\ns_waitcnt lgkmcnt(0)\nv_readfirstlane_b32 s43, v8\ns_mov_b64 exec, -1")
        e(f"s_cmp_lg_u32 s43, 3\ns_cbranch_scc1 {L('mrx')}")
        e(f"v_lshlrev_b32 v9, 2, v2\nv_add_u32 v10, {MRL}, v9")
        for w_ in range(4): e(f"ds_read_b32 v{12+w_}, v10 offset:{w_*256}")
        e("s_waitcnt lgkmcnt(0)\nv_add_f32 v12, v12, v13\nv_add_f32 v14, v14, v15\nv_add_f32 v12, v12, v14")
        k.srd(52, P_WS, WS_MODP, 4 * 6144 * 4)
        e("s_mul_i32 s43, s64, 24576\ns_lshl_b32 s44, s65, 8\ns_add_u32 s43, s43, s44")
        e(f"buffer_store_dword v12, v9, s[52:55], s43 offen{SCS}\ns_waitcnt vmcnt(0)")
        if "nochain" in OPT:
            e(f"v_mov_b32 v6, {C_MRALL*256}\nv_mov_b32 v8, 1\ns_mov_b64 exec, 1\nbuffer_atomic_add v8, v6, {s(CNT,4)}, 0 offen sc1\ns_mov_b64 exec, -1")
        else:
            k.srd(60, P_WS, WS_MODF, 6144 * 4)
            e(f"s_sub_u32 s45, s65, 32\ns_add_u32 s45, s45, {C_MR}\ns_lshl_b32 s45, s45, 8\nv_mov_b32 v6, s45\nv_mov_b32 v8, 1\ns_mov_b64 exec, 1")
            e(f"buffer_atomic_add v8, v6, {s(CNT,4)}, 0 offen sc0 sc1\ns_waitcnt vmcnt(0)\nv_readfirstlane_b32 s45, v8\ns_mov_b64 exec, -1")
            e(f"s_cmp_lg_u32 s45, 3\ns_cbranch_scc1 {L('mrx')}")
            for p_ in range(4):
                e(f"s_add_u32 s45, s44, {p_*24576}\nbuffer_load_dword v{12+p_}, v9, s[52:55], s45 offen{SC}")
            e("s_waitcnt vmcnt(0)\nv_add_f32 v12, v12, v13\nv_add_f32 v14, v14, v15\nv_add_f32 v12, v12, v14")
            round_bf16(e, 12)
            e(f"buffer_store_dword v12, v9, s[60:63], s44 offen{SCS}\ns_waitcnt vmcnt(0)")
            e(f"v_mov_b32 v6, {C_MRALL*256}\nv_mov_b32 v8, 1\ns_mov_b64 exec, 1")
            e(f"buffer_atomic_add v8, v6, {s(CNT,4)}, 0 offen sc0 sc1\ns_waitcnt vmcnt(0)\nv_readfirstlane_b32 s45, v8\ns_mov_b64 exec, -1")
            e(f"s_cmp_lg_u32 s45, 63\ns_cbranch_scc1 {L('mrx')}")
            e(f"v_lshlrev_b32 v6, 7, v2\nv_add_u32 v6, {FL['mr']}, v6\nv_mov_b32 v8, 1\ns_mov_b64 exec, 0xff\nbuffer_store_dword v8, v6, {s(CNT,4)}, 0 offen sc1\ns_mov_b64 exec, -1")
        e(f"{L('mrx')}:")
    if epi != "qkv": e("s_barrier")
    e(f"s_branch {nxt_l}")

def attn_phase(k, nxt_c, nxt_l, pf):
    e = k.e
    L = lambda n: k.lab("att_" + n)
    old4 = "nsl3" not in OPT
    NSL = 4 if old4 else 3; KPS = 128; SBK = KPS * 64
    HB = 2 * SBK; SB = 2 * HB
    FLAG = CTL + 164 if old4 else NSL * SB
    S0 = 1 if old4 else 0
    e(f"{L('c')}:\n{L('l')}:")
    e("s_and_b32 s36, s2, 7\ns_lshr_b32 s37, s2, 3\ns_lshl_b32 s36, s36, 2\ns_lshr_b32 s38, s37, 3\ns_add_u32 s25, s36, s38")
    e("s_and_b32 s26, s37, 7")
    e("s_and_b32 s34, s24, 3\ns_lshr_b32 s27, s24, 2")
    e("s_mov_b32 s57, s34")
    e("s_lshl_b32 s40, s25, 17")
    e(f"s_add_u32 s32, s{P_WS}, {WS_QKV:#x}\ns_addc_u32 s33, s{P_WS+1}, 0\ns_add_u32 s32, s32, s40\ns_addc_u32 s33, s33, 0")
    k.srd(4, 32, 0, S * 64); k.srd(8, 32, 32 * S * 64, S * 64); k.srd(12, 32, 64 * S * 64, S * 64)
    k.srd(16, P_WS, WS_O, S * D * 2)
    QG, KH = 57, 27
    Q = 4 + 4; KF = 24; VF = 32
    NEG = 40; O = 72; LS = 104; SEL = 112
    SS = [[116, 132], [148, 164]]
    PP = [[180, 188], [196, 204]]
    AK0, AK1, AV, AN0, AN1, DK, DV = 212, 213, 214, 215, 216, 217, 218
    HH, QL = 219, 220
    T = 221
    PFD = 230
    e(f"v_and_b32 v{QL}, 31, v2\nv_lshrrev_b32 v{HH}, 5, v2")
    e(f"s_lshl_b32 s39, s26, 8\ns_lshl_b32 s40, s{QG}, 6\ns_add_u32 s39, s39, s40")
    e(f"v_lshrrev_b32 v{T}, 2, v2\ns_lshl_b32 s40, s{QG}, 5\nv_add_u32 v{T}, s40, v{T}\nv_lshlrev_b32 v{T}, 6, v{T}")
    e(f"v_and_b32 v{T+1}, 3, v2\nv_lshrrev_b32 v{T+2}, 4, v2\nv_xor_b32 v{T+1}, v{T+1}, v{T+2}\nv_lshlrev_b32 v{T+1}, 4, v{T+1}")
    e(f"v_add_u32 v{DK}, v{T}, v{T+1}")
    e(f"v_lshlrev_b32 v{DV}, 4, v2\ns_lshl_b32 s40, s{QG}, 11\nv_add_u32 v{DV}, s40, v{DV}")
    e(f"s_lshl_b32 s41, s{QG}, 11\ns_mul_i32 s40, s{KH}, {HB}\ns_add_u32 s41, s41, s40")
    e(f"s_mul_i32 s45, s{KH}, {S*32}")
    def addr_setup():
        e(f"s_mul_i32 s40, s{KH}, {HB}")
        e(f"v_lshrrev_b32 v{T}, 2, v{QL}\nv_and_b32 v{T}, 3, v{T}\nv_xor_b32 v{T}, v{T}, v{HH}\nv_lshlrev_b32 v{T}, 4, v{T}")
        e(f"v_lshlrev_b32 v{T+1}, 6, v{QL}\nv_add_u32 v{T+3}, v{T}, v{T+1}")
        e(f"v_add_u32 v{AK0}, s40, v{T+3}\nv_xor_b32 v{AK1}, 32, v{AK0}")
        e(f"v_and_b32 v{T}, 15, v2\nv_lshrrev_b32 v{T}, 2, v{T}\nv_lshlrev_b32 v{T+1}, 2, v{HH}\nv_add_u32 v{T}, v{T}, v{T+1}\nv_lshlrev_b32 v{T}, 6, v{T}")
        e(f"v_lshrrev_b32 v{T+1}, 4, v2\nv_and_b32 v{T+1}, 1, v{T+1}\nv_lshlrev_b32 v{T+1}, 5, v{T+1}\nv_add_u32 v{T}, v{T}, v{T+1}")
        e(f"v_and_b32 v{T+1}, 3, v2\nv_lshlrev_b32 v{T+1}, 3, v{T+1}\nv_add_u32 v{T}, v{T}, v{T+1}\nv_add_u32 v{T}, {SBK}, v{T}\nv_add_u32 v{AV}, s40, v{T}")
    addr_setup()
    if S0: e(f"v_add_u32 v{AK0}, {S0*SB}, v{AK0}\nv_add_u32 v{AK1}, {S0*SB}, v{AK1}\nv_add_u32 v{AV}, {S0*SB}, v{AV}\nv_add_u32 v{T+3}, {S0*SB}, v{T+3}")
    smf = "nosmf" not in OPT
    SIX = 239
    def dense_selector():
        e(f"v_lshrrev_b32 v{T}, 4, v2\nv_lshrrev_b32 v{T+1}, 2, v2\nv_xor_b32 v{T}, v{T}, v{T+1}\nv_and_b32 v{T}, 1, v{T}")
        e(f"v_cmp_eq_u32 vcc, 0, v{T}\nv_mov_b32 v{T+1}, 0x3f803f80")
        e(f"v_cndmask_b32 v{SEL}, 0, v{T+1}, vcc")
        for r in range(1, 4): e(f"v_mov_b32 v{SEL+r}, v{SEL}")
    if smf:
        e(f"v_and_b32 v{T}, 4, v2\nv_cmp_eq_u32 vcc, 0, v{T}\nv_mov_b32 v{T+1}, 0x3f803f80")
        e(f"v_cndmask_b32 v{SEL}, 0, v{T+1}, vcc\nv_cndmask_b32 v{SEL+2}, v{T+1}, 0, vcc\nv_mov_b32 v{SEL+1}, v{SEL}\nv_mov_b32 v{SEL+3}, v{SEL+2}")
        e(f"v_and_b32 v{T}, 2, v2\nv_cmp_eq_u32 vcc, 0, v{T}\nv_mov_b32 v{T+1}, 0xeeeeeeee\nv_mov_b32 v{T+2}, 0x44444444\nv_cndmask_b32 v{SIX}, v{T+1}, v{T+2}, vcc")
    else:
        dense_selector()
    def zero_acc():
        for r in range(32): e(f"v_mov_b32 v{O+r}, 0")
        for r in range(8): e(f"v_mov_b32 v{LS+r}, 0")
    zero_acc()
    for r in range(8): e(f"v_mov_b32 v{VF+r}, 0")
    for qb in range(2):
        for r in range(8): e(f"v_mov_b32 v{PP[1][qb]+r}, 0")
    e(f"s_cmp_lg_u32 s24, 4\ns_cbranch_scc1 {L('nodep')}")
    if "noflags" in OPT:
        e(f"v_lshlrev_b32 v6, 10, v2\ns_lshl_b32 s35, s25, 5\nv_add_u32 v6, s35, v6\nv_mul_u32_u24 v6, {(65536 + 191) // 192}, v6\nv_lshrrev_b32 v6, 16, v6")
        e(f"v_add_u32 v6, {C_QKV}, v6\nv_lshlrev_b32 v6, 8, v6")
        k.poll("att", None, 16, lanes=3)
    else:
        e(f"s_lshl_b32 s35, s25, 8\ns_add_u32 s35, s35, {FL['att']}")
        k.wait_flags("att", 48, 35)
    e(f"{L('nodep')}:")
    e("s_barrier")
    k.st(3)
    e(f"v_mov_b32 v{T}, {FLAG}\nv_mov_b32 v{T+1}, 0\nds_write_b32 v{T}, v{T+1}")
    e(f"v_add_u32 v{T}, s39, v{QL}\nv_lshlrev_b32 v{T}, 6, v{T}\nv_lshlrev_b32 v{T+1}, 4, v{HH}\nv_add_u32 v{T}, v{T}, v{T+1}")
    for qb in range(2):
        e(f"buffer_load_dwordx4 {v(Q+8*qb,4)}, v{T}, s[4:7], 0 offen offset:{qb*2048}{SC}")
        e(f"buffer_load_dwordx4 {v(Q+8*qb+4,4)}, v{T}, s[4:7], 0 offen offset:{qb*2048+32}{SC}")
    def dma(slot_sreg):
        e(f"s_add_u32 s43, {slot_sreg}, s41\ns_add_u32 s46, s42, s45")
        e(f"s_mov_b32 m0, s43\nbuffer_load_dwordx4 v{DK}, s[8:11], s46 offen{SC} lds")
        e(f"s_add_u32 m0, s43, {SBK}\nbuffer_load_dwordx4 v{DV}, s[12:15], s46 offen{SC} lds")
        e(f"s_add_u32 s46, s46, 1024\ns_add_u32 m0, s43, 1024\nbuffer_load_dwordx4 v{DK}, s[8:11], s46 offen{SC} lds")
        e(f"s_add_u32 m0, s43, {SBK+1024}\nbuffer_load_dwordx4 v{DV}, s[12:15], s46 offen{SC} lds")
        e(f"s_add_u32 s42, s42, {SBK}")
    def dma_both(slot_sreg):
        e(f"s_lshl_b32 s43, s{QG}, 11\ns_add_u32 s43, s43, {slot_sreg}")
        for hf in range(2):
            e(f"s_add_u32 s46, s42, {hf*S*32}")
            e(f"s_add_u32 m0, s43, {hf*HB}\nbuffer_load_dwordx4 v{DK}, s[8:11], s46 offen{SC} lds")
            e(f"s_add_u32 m0, s43, {hf*HB+SBK}\nbuffer_load_dwordx4 v{DV}, s[12:15], s46 offen{SC} lds")
            e(f"s_add_u32 s46, s46, 1024\ns_add_u32 m0, s43, {hf*HB+1024}\nbuffer_load_dwordx4 v{DK}, s[8:11], s46 offen{SC} lds")
            e(f"s_add_u32 m0, s43, {hf*HB+SBK+1024}\nbuffer_load_dwordx4 v{DV}, s[12:15], s46 offen{SC} lds")
    def kread(a0, a1, t):
        return [f"ds_read_b128 {v(KF,4)}, v{a0} offset:{t*2048}", f"ds_read_b128 {v(KF+4,4)}, v{a1} offset:{t*2048}"]
    def vread(t):
        return [f"ds_read_b64_tr_b16 {v(VF+4*m+2*hh,2)}, v{AV} offset:{t*2048+(16*m+8*hh)*64}" for m in range(2) for hh in range(2)]
    def qk(qb, dst, c):
        return [f"v_mfma_f32_32x32x16_bf16 {v(dst,16)}, {v(KF,4)}, {v(Q+8*qb,4)}, {c}",
                f"v_mfma_f32_32x32x16_bf16 {v(dst,16)}, {v(KF+4,4)}, {v(Q+8*qb+4,4)}, {v(dst,16)}"]
    def pv(qb, P):
        o, l = O + 16 * qb, LS + 4 * qb
        return [f"v_mfma_f32_32x32x16_bf16 {v(o,16)}, {v(VF,4)}, {v(P,4)}, {v(o,16)}",
                f"v_mfma_f32_16x16x32_bf16 {v(l,4)}, {v(SEL,4)}, {v(P,4)}, {v(l,4)}",
                f"v_mfma_f32_32x32x16_bf16 {v(o,16)}, {v(VF+4,4)}, {v(P+4,4)}, {v(o,16)}",
                f"v_mfma_f32_16x16x32_bf16 {v(l,4)}, {v(SEL,4)}, {v(P+4,4)}, {v(l,4)}"]
    def lane_max16(src, dst, tmp):
        e(f"v_max3_f32 v{dst}, v{src}, v{src+1}, v{src+2}")
        for r in range(3, 15, 2): e(f"v_max3_f32 v{dst}, v{dst}, v{src+r}, v{src+r+1}")
        e(f"v_max_f32 v{dst}, v{dst}, v{src+15}")
        e(f"v_mov_b32 v{tmp}, v{dst}\nv_permlane32_swap_b32 v{tmp}, v{dst}\nv_max_f32 v{dst}, v{dst}, v{tmp}")
    NST = S // 2 // KPS
    HALF = S * 32
    e("s_mov_b32 s42, 0")
    for st in range(2):
        e(f"s_mov_b32 s44, {(st+S0)*SB}")
        dma("s44")
    e("s_waitcnt vmcnt(4)\ns_barrier")
    if "stloop" in OPT: k.st(13)
    e(f"v_xor_b32 v{T+4}, 32, v{T+3}")
    for l in kread(T + 3, T + 4, 0): e(l)
    e("s_waitcnt lgkmcnt(0)")
    for qb in range(2):
        for l in qk(qb, SS[1][qb], "0"): e(l)
    for l in kread(AK0, AK1, 0): e(l)
    for qb in range(2):
        lane_max16(SS[1][qb], T, T + 1)
        e(f"v_add_f32 v{T}, {f32(40.0)}, v{T}")
        for r in range(16): e(f"v_sub_f32 v{NEG+16*qb+r}, 0, v{T}")
    e("s_waitcnt lgkmcnt(0)")
    for qb in range(2):
        for l in qk(qb, SS[0][qb], v(NEG + 16 * qb, 16)): e(l)
    for l in kread(AK0, AK1, 1): e(l)
    e(f"v_add_u32 v{AN0}, {SB}, v{AK0}\nv_add_u32 v{AN1}, {SB}, v{AK1}")
    e(f"s_mov_b32 s47, {1+S0}\ns_mov_b32 s48, {SB}\ns_mov_b32 s49, {-(NSL-1)*SB & 0xffffffff:#x}")
    e(f"s_mov_b32 s50, {(2+S0)*SB}")
    e("s_waitcnt lgkmcnt(0)")
    e("s_lshl_b32 s56, s2, 3\ns_add_u32 s56, s56, s24\ns_mul_i32 s58, s56, 52429\ns_lshr_b32 s58, s58, 18\ns_mul_i32 s58, s58, 5\ns_sub_u32 s58, s56, s58\ns_sub_u32 s58, 7, s58")
    if "pfall" in OPT: e(f"s_mov_b32 s58, {PFSTAGE}")
    flg = "flg" in OPT
    PG, PAO, PAG, PVV = 232, 236, 237, 238
    if flg:
        e(f"s_lshl_b32 s52, s{KH}, 4\ns_add_u32 s52, s52, {CTL+128}\nv_mov_b32 v{PAG}, s52\ns_lshl_b32 s53, s{QG}, 2\ns_add_u32 s52, s52, s53\nv_mov_b32 v{PAO}, s52\ns_mov_b32 s59, 1\ns_mov_b32 s53, 0")
        e("s_barrier")
    e(f"s_mov_b32 s44, {NST}")
    if "prio1" in OPT: e(f"s_cmp_lt_u32 s24, 4\ns_cbranch_scc1 {L('noprio')}\ns_setprio 1\n{L('noprio')}:")
    if "prio0" in OPT: e(f"s_cmp_ge_u32 s24, 4\ns_cbranch_scc1 {L('noprio')}\ns_setprio 1\n{L('noprio')}:")
    if "stloop" in OPT: k.st(12)
    align(k, "att")
    e(f"{L('floop')}:")
    for t in range(4):
        par = t & 1
        if t == 2:
            if flg:
                e("s_waitcnt lgkmcnt(4)")
                e(f"{L('pchk')}:")
                e(f"v_min3_u32 v{PVV}, v{PG}, v{PG+1}, v{PG+2}\nv_min_u32 v{PVV}, v{PVV}, v{PG+3}\nv_readfirstlane_b32 s52, v{PVV}")
                e(f"s_cmp_ge_u32 s52, s59\ns_cbranch_scc1 {L('pok')}")
                e(f"ds_read_b128 {v(PG,4)}, v{PAG}\ns_waitcnt lgkmcnt(0)\ns_add_u32 s53, s53, 1\ns_cmp_lt_u32 s53, {SPIN_MAX*16}\ns_cbranch_scc1 {L('pchk')}")
                e(f"{L('pok')}:")
                e(f"s_cmp_ge_u32 s42, {HALF}\ns_cbranch_scc1 {L('cont')}")
            elif old4:
                e(f"s_cmp_ge_u32 s42, {HALF}\ns_cbranch_scc1 {L('nodma')}")
                e(f"s_cmp_lg_u32 s{KH}, 0\ns_cbranch_scc1 {L('yw')}")
                dma_both("s50")
                e(f"s_waitcnt vmcnt(8)\ns_branch {L('yb')}")
                e(f"{L('yw')}:\ns_cmp_lg_u32 s44, {NST}\ns_cbranch_scc1 {L('yb')}\ns_waitcnt vmcnt(0)")
                e(f"{L('yb')}:\ns_barrier\ns_add_u32 s42, s42, {SBK}")
            else:
                e(f"s_cmp_ge_u32 s42, {HALF}\ns_cbranch_scc1 {L('nodma')}")
                e(f"s_waitcnt vmcnt({4*(NSL-3)})\ns_barrier")
            if not old4 or flg: dma("s50")
            e(f"s_add_u32 s50, s50, {SB}\ns_cmp_eq_u32 s50, {NSL*SB}\ns_cselect_b32 s50, 0, s50")
            if pf:
                e(f"s_cmp_lg_u32 s44, s58\ns_cbranch_scc1 {L('cont')}")
                e(f"s_mov_b32 s60, s{P_WO}\ns_mov_b32 s61, s{P_WO+1}\ns_mov_b32 s62, {D*D*2}\ns_mov_b32 s63, 0x20000\ns_mov_b32 s52, s56")
                e(f"s_cmp_lt_u32 s56, 256\ns_cbranch_scc1 {L('pfgo')}")
                e(f"s_mov_b32 s60, s{P_W1}\ns_mov_b32 s61, s{P_W1+1}\ns_mov_b32 s62, {D*DFF*2}\ns_mov_b32 s63, 0x20000\ns_sub_u32 s52, s56, 256")
                e(f"s_cmp_lt_u32 s56, 1152\ns_cbranch_scc1 {L('pfgo')}")
                e(f"s_mov_b32 s60, s{P_W2}\ns_mov_b32 s61, s{P_W2+1}\ns_mov_b32 s62, {D*DFF*2}\ns_mov_b32 s63, 0x20000\ns_sub_u32 s52, s56, 1152")
                e(f"{L('pfgo')}:")
                e(f"s_lshl_b32 s52, s52, 13\nv_lshlrev_b32 v{T}, 7, v2\nbuffer_load_dword v{PFD}, v{T}, s[60:63], s52 offen")
                if "mrwo" in OPT:
                    e(f"s_bitcmp1_b32 s56, 0\ns_cbranch_scc1 {L('nowm')}")
                    e(f"s_load_dwordx2 s[60:61], s[0:1], {KA_WMOD}\ns_lshr_b32 s52, s56, 1\ns_mul_i32 s52, s52, 12288\ns_add_u32 s52, s52, 4096\ns_waitcnt lgkmcnt(0)")
                    e(f"s_mov_b32 s62, {1024*6144*2}\ns_mov_b32 s63, 0x20000\nbuffer_load_dword v{PFD}, v{T}, s[60:63], s52 offen")
                    e(f"{L('nowm')}:")
                k.code_touch("a", k.lab("att_cont"), k.lab("f1_l"), 24, 8, 1)
            if not flg:
                e(f"s_branch {L('cont')}")
                e(f"{L('nodma')}:")
                e("s_waitcnt vmcnt(0)\ns_barrier")
            e(f"{L('cont')}:")
        kr = kread(AN0, AN1, (t + 2) % 4) if t >= 2 else kread(AK0, AK1, t + 2)
        vr = vread(t)
        m = []; p = []; E = []; C = []
        for qb in range(2):
            cur = SS[par][qb]; nxt = SS[1 - par][qb]; pc = PP[par][qb]; pp = PP[1 - par][qb]
            m.append(qk(qb, nxt, v(NEG + 16 * qb, 16))); p.append(pv(qb, pp))
            E.append([f"v_exp_f32 v{cur+r}, v{cur+r}" for r in range(16)])
            C.append([f"v_cvt_pk_bf16_f32 v{pc+r}, v{cur+2*r}, v{cur+2*r+1}" for r in range(8)])
        E0, E1 = E; C0, C1 = C
        seq = ["s_waitcnt lgkmcnt(4)",
               m[0][0], E0[0], E0[1], E0[2], E0[3],
               m[1][0], E0[4], E0[5], C0[0], C0[1], E0[6],
               m[0][1], E0[7], C0[2], E0[8], E0[9], C0[3],
               m[1][1], kr[0], kr[1], E0[10], E0[11], E0[12], E0[13], "s_waitcnt lgkmcnt(2)",
               p[0][0], C0[4], C0[5], E0[14], E0[15], C0[6], C0[7],
               p[0][1], E1[0], E1[1],
               p[1][0], E1[2], E1[3], C1[0], C1[1], E1[4],
               p[1][1], E1[5], E1[6],
               p[0][2], E1[7], C1[2], E1[8], E1[9], C1[3],
               p[0][3], E1[10], E1[11],
               p[1][2], vr[0], vr[1], vr[2], vr[3], E1[12], E1[13], C1[4], C1[5], E1[14],
               p[1][3], E1[15], C1[6], C1[7]]
        if smf:
            out_ = []
            for x_ in seq:
                if "16x16x32" in x_:
                    qb_ = 0 if x_ in p[0] else 1
                    if x_ == p[qb_][1]: continue
                    out_.append(f"v_smfmac_f32_16x16x64_bf16 {v(LS+4*qb_,4)}, {v(SEL,4)}, {v(PP[1-par][qb_],8)}, v{SIX}")
                else: out_.append(x_)
            seq = out_
        if flg and t == 1:
            i_ = seq.index(m[0][0])
            seq = seq[:i_ + 1] + ["s_waitcnt vmcnt(0)", f"v_mov_b32 v{PVV}, s59", f"ds_write_b32 v{PAO}, v{PVV}"] + seq[i_ + 1:]
            seq[seq.index("s_waitcnt lgkmcnt(2)")] = "s_waitcnt lgkmcnt(3)"
            i_ = seq.index(vr[0])
            seq = seq[:i_] + [f"ds_read_b128 {v(PG,4)}, v{PAG}"] + seq[i_:]
        if flg and t == 2: seq = seq[1:]
        for l in seq: e(l)
        if t == 3 and flg: e("s_add_u32 s59, s59, 1")
        if t == 3:
            e(f"v_sub_u32 v{T}, v{AN0}, v{AK0}\nv_add_u32 v{AV}, v{AV}, v{T}\nv_mov_b32 v{AK0}, v{AN0}\nv_mov_b32 v{AK1}, v{AN1}")
            e(f"s_add_u32 s47, s47, 1\ns_cmp_eq_u32 s47, {NSL}\ns_cselect_b32 s51, s49, s48\ns_cselect_b32 s47, 0, s47")
            e(f"v_add_u32 v{AN0}, s51, v{AN0}\nv_add_u32 v{AN1}, s51, v{AN1}")
    e(f"s_sub_u32 s44, s44, 1\ns_cmp_lg_u32 s44, 0\ns_cbranch_scc1 {L('floop')}")
    e("s_waitcnt lgkmcnt(0)")
    for qb in range(2):
        if smf:
            pl = pv(qb, PP[1][qb])
            e(pl[0]); e(pl[2]); e(f"v_smfmac_f32_16x16x64_bf16 {v(LS+4*qb,4)}, {v(SEL,4)}, {v(PP[1][qb],8)}, v{SIX}")
        else:
            for l in pv(qb, PP[1][qb]): e(l)
    if smf: e(f"v_add_f32 v{LS}, v{LS}, v{LS+2}\nv_add_f32 v{LS+4}, v{LS+4}, v{LS+6}")
    if "prio1" in OPT or "prio0" in OPT: e("s_setprio 0")
    k.st(4)
    def merge(safe, M=None):
        e("s_barrier")
        e(f"s_cmp_eq_u32 s{KH}, 0\ns_cbranch_scc1 {L('keep0' + safe)}")
        for r in range(16): e(f"v_swap_b32 v{O+r}, v{O+16+r}")
        e(f"v_swap_b32 v{LS}, v{LS+4}")
        if M is not None: e(f"v_swap_b32 v{M}, v{M+1}")
        e(f"{L('keep0' + safe)}:")
        e(f"s_mul_i32 s52, s24, {5*1024+256}\nv_lshlrev_b32 v{T}, 4, v2\nv_add_u32 v{T}, s52, v{T}")
        for g in range(4): e(f"ds_write_b128 v{T}, {v(O+16+4*g,4)} offset:{g*1024}")
        e(f"v_lshlrev_b32 v{T+1}, 2, v2\nv_add_u32 v{T+1}, s52, v{T+1}")
        e(f"ds_write_b32 v{T+1}, v{LS+4} offset:4096")
        if M is not None: e(f"ds_write_b32 v{T+1}, v{M+1} offset:{4096+256}")
        e("s_waitcnt lgkmcnt(0)\ns_barrier")
        e(f"s_xor_b32 s52, s24, 4\ns_mul_i32 s52, s52, {5*1024+256}\nv_lshlrev_b32 v{T}, 4, v2\nv_add_u32 v{T}, s52, v{T}")
        for g in range(4): e(f"ds_read_b128 {v(O+16+4*g,4)}, v{T} offset:{g*1024}")
        e(f"v_lshlrev_b32 v{T+1}, 2, v2\nv_add_u32 v{T+1}, s52, v{T+1}")
        e(f"ds_read_b32 v{LS+4}, v{T+1} offset:4096")
        if M is not None: e(f"ds_read_b32 v{M+1}, v{T+1} offset:{4096+256}")
        e("s_waitcnt lgkmcnt(0)")
        if M is None:
            for r in range(16): e(f"v_add_f32 v{O+r}, v{O+r}, v{O+16+r}")
            e(f"v_add_f32 v{LS}, v{LS}, v{LS+4}")
        else:
            e(f"v_max_f32 v{T}, v{M}, v{M+1}\nv_sub_f32 v{T+1}, v{M}, v{T}\nv_sub_f32 v{T+2}, v{M+1}, v{T}\nv_exp_f32 v{T+1}, v{T+1}\nv_exp_f32 v{T+2}, v{T+2}")
            for r in range(16): e(f"v_mul_f32 v{O+r}, v{O+r}, v{T+1}\nv_fmac_f32 v{O+r}, v{O+16+r}, v{T+2}")
            e(f"v_mul_f32 v{LS}, v{LS}, v{T+1}\nv_fmac_f32 v{LS}, v{LS+4}, v{T+2}")
        e(f"v_rcp_f32 v{T}, v{LS}")
        for r in range(16): e(f"v_mul_f32 v{O+r}, v{O+r}, v{T}")
    XE = 98304 if old4 else 98432
    e(f"v_add_f32 v{T+2}, abs(v{O}), abs(v{O+1})\nv_add_f32 v{T+3}, abs(v{O+16}), abs(v{O+17})")
    for r in range(2, 16): e(f"v_add_f32 v{T+2}, v{T+2}, abs(v{O+r})\nv_add_f32 v{T+3}, v{T+3}, abs(v{O+16+r})")
    e(f"v_add_f32 v{T+2}, v{T+2}, v{T+3}\nv_mov_b32 v{T+1}, {f32(2.0**126)}\nv_cmp_nlt_f32 vcc, v{T+2}, v{T+1}\ns_mov_b64 s[46:47], vcc")
    e(f"v_add_f32 v{T+2}, v{LS}, v{LS+4}\nv_mov_b32 v{T+1}, {f32(2.0**119)}\nv_cmp_nlt_f32 vcc, v{T+2}, v{T+1}\ns_or_b64 s[46:47], s[46:47], vcc")
    e(f"s_cmp_eq_u64 s[46:47], 0\ns_cbranch_scc1 {L('okwave')}")
    e(f"v_mov_b32 v{T+1}, {FLAG}\nv_mov_b32 v{T+2}, 1\nds_write_b32 v{T+1}, v{T+2}")
    e(f"{L('okwave')}:")
    e(f"s_mul_i32 s52, s24, 4352\ns_add_u32 s52, s52, {XE}\nv_lshlrev_b32 v{T}, 4, v2\nv_add_u32 v{T}, s52, v{T}\nv_lshlrev_b32 v{T+1}, 2, v2\nv_add_u32 v{T+1}, s52, v{T+1}")
    e(f"s_cmp_eq_u32 s{KH}, 0\ns_cbranch_scc1 {L('snd0')}")
    for g in range(4): e(f"ds_write_b128 v{T}, {v(O+4*g,4)} offset:{g*1024}")
    e(f"ds_write_b32 v{T+1}, v{LS} offset:4096\ns_branch {L('snd1')}")
    e(f"{L('snd0')}:")
    for g in range(4): e(f"ds_write_b128 v{T}, {v(O+16+4*g,4)} offset:{g*1024}")
    e(f"ds_write_b32 v{T+1}, v{LS+4} offset:4096")
    e(f"{L('snd1')}:")
    e(f"s_xor_b32 s52, s24, 4\ns_mul_i32 s52, s52, 4352\ns_add_u32 s52, s52, {XE}\nv_lshlrev_b32 v{T}, 4, v2\nv_add_u32 v{T}, s52, v{T}\nv_lshlrev_b32 v{T+1}, 2, v2\nv_add_u32 v{T+1}, s52, v{T+1}")
    e(f"v_mov_b32 v{T+3}, {FLAG}")
    e("s_waitcnt lgkmcnt(0)\ns_barrier")
    e(f"ds_read_b32 v{T+2}, v{T+3}")
    e(f"s_cmp_eq_u32 s{KH}, 0\ns_cbranch_scc1 {L('rcv0')}")
    for g in range(4): e(f"ds_read_b128 {v(O+4*g,4)}, v{T} offset:{g*1024}")
    e(f"ds_read_b32 v{LS}, v{T+1} offset:4096\ns_branch {L('rcv1')}")
    e(f"{L('rcv0')}:")
    for g in range(4): e(f"ds_read_b128 {v(O+16+4*g,4)}, v{T} offset:{g*1024}")
    e(f"ds_read_b32 v{LS+4}, v{T+1} offset:4096")
    e(f"{L('rcv1')}:")
    e(f"s_waitcnt lgkmcnt(5)\nv_readfirstlane_b32 s46, v{T+2}\ns_cmp_lg_u32 s46, 0\ns_cbranch_scc1 {L('safe')}")
    e("s_waitcnt lgkmcnt(0)")
    e(f"v_add_f32 v{LS}, v{LS}, v{LS+4}\nv_rcp_f32 v{T}, v{LS}")
    for r in range(0, 16, 2): e(f"v_pk_add_f32 {v(O+r,2)}, {v(O+r,2)}, {v(O+16+r,2)}")
    assert (T + 1) % 2 == 0
    e(f"v_mov_b32 v{T+1}, v{T}")
    for r in range(0, 16, 2): e(f"v_pk_mul_f32 {v(O+r,2)}, {v(O+r,2)}, {v(T+1,2)} op_sel_hi:[1,0]")
    e(f"{L('store')}:")
    if "statt" in OPT: k.st(12)
    P = PP[0][0]
    for r in range(8): e(f"v_cvt_pk_bf16_f32 v{P+r}, v{O+2*r}, v{O+2*r+1}")
    for b in (0, 4):
        e(f"v_permlane32_swap_b32 v{P+b}, v{P+b+2}\nv_permlane32_swap_b32 v{P+b+1}, v{P+b+3}")
    for r in range(4): e(f"v_permlane16_swap_b32 v{P+r}, v{P+4+r}")
    e(f"s_lshl_b32 s40, s{KH}, 5\ns_add_u32 s40, s40, s39")
    e(f"v_and_b32 v{T}, 15, v2\nv_add_u32 v{T}, s40, v{T}\nv_lshlrev_b32 v{T}, 11, v{T}")
    e(f"v_lshrrev_b32 v{T+1}, 4, v2\nv_and_b32 v{T+2}, 1, v{T+1}\nv_lshlrev_b32 v{T+2}, 5, v{T+2}\nv_lshrrev_b32 v{T+1}, 1, v{T+1}\nv_lshlrev_b32 v{T+1}, 4, v{T+1}")
    e(f"v_add_u32 v{T}, v{T}, v{T+1}\nv_add_u32 v{T}, v{T}, v{T+2}")
    e(f"s_lshl_b32 s40, s25, 6\ns_add_u32 s41, s40, {16*2048}")
    e(f"buffer_store_dwordx4 {v(P,4)}, v{T}, s[16:19], s40 offen{SCS}\nbuffer_store_dwordx4 {v(P+4,4)}, v{T}, s[16:19], s41 offen{SCS}")
    if "statt" in OPT: k.st(13)
    e(f"s_add_u32 s35, s26, {C_ATT}")
    k.signal("att", 8, 35, 32, (2, lambda: e((f"v_mov_b32 v6, {C_ATTALL*256}\nv_mov_b32 v7, 1\ns_mov_b64 exec, 1\nbuffer_atomic_add v7, v6, {s(CNT,4)}, 0 offen sc1\ns_mov_b64 exec, -1\n" if "alias" in OPT else "") + f"s_lshl_b32 s33, s26, 8\ns_lshl_b32 s34, s25, 2\ns_add_u32 s33, s33, s34\ns_add_u32 s33, s33, {FL['wo']}\nv_lshlrev_b32 v6, 7, v2\nv_add_u32 v6, s33, v6")))
    if "statt" in OPT: k.st(14, 7)
    e(f"s_cmp_ge_u32 s24, 4\ns_cbranch_scc1 {nxt_l}\ns_branch {nxt_c}")
    e(f"{L('safe')}:")
    e("s_waitcnt vmcnt(0) lgkmcnt(0)\ns_barrier")
    M = NEG; AL = NEG + 2
    SA = SS[0][0]; P0 = PP[0][0]
    zero_acc()
    if smf: dense_selector()
    e(f"v_mov_b32 v{M}, {f32(-3.0e38)}\nv_mov_b32 v{M+1}, {f32(-3.0e38)}")
    addr_setup()
    e("s_mov_b32 s42, 0")
    e(f"s_mov_b32 s44, {NST}")
    e(f"{L('sloop')}:")
    e("s_barrier")
    e("s_mov_b32 s53, 0")
    dma("s53")
    e("s_waitcnt vmcnt(0)\ns_barrier")
    for t in range(4):
        for l in kread(AK0, AK1, t) + vread(t): e(l)
        e("s_waitcnt lgkmcnt(0)")
        for qb in range(2):
            for l in qk(qb, SA, "0"): e(l)
            lane_max16(SA, T, T + 1)
            e(f"v_max_f32 v{T}, v{T}, v{M+qb}\nv_sub_f32 v{AL}, v{M+qb}, v{T}\nv_exp_f32 v{AL}, v{AL}\nv_mov_b32 v{M+qb}, v{T}")
            for r in range(16): e(f"v_sub_f32 v{SA+r}, v{SA+r}, v{T}\nv_exp_f32 v{SA+r}, v{SA+r}")
            for r in range(16): e(f"v_mul_f32 v{O+16*qb+r}, v{O+16*qb+r}, v{AL}")
            for r in range(4): e(f"v_mul_f32 v{LS+4*qb+r}, v{LS+4*qb+r}, v{AL}")
            for r in range(8): e(f"v_cvt_pk_bf16_f32 v{P0+r}, v{SA+2*r}, v{SA+2*r+1}")
            for l in pv(qb, P0): e(l)
    e(f"s_sub_u32 s44, s44, 1\ns_cmp_lg_u32 s44, 0\ns_cbranch_scc1 {L('sloop')}")
    merge("s", M)
    e("s_barrier")
    e(f"s_branch {L('store')}")


GL = 134144
DBG = 84

def g_final(k, tag):
    e = k.e; L = lambda n: k.lab("g_" + tag + n)
    e(f"v_mov_b32 v6, {L_SIG['g']}\nv_mov_b32 v7, 1\ns_mov_b64 exec, 1\nds_add_rtn_u32 v7, v6, v7\ns_waitcnt lgkmcnt(0)\nv_readfirstlane_b32 s36, v7\ns_mov_b64 exec, -1")
    e(f"s_cmp_lg_u32 s36, 4\ns_cbranch_scc1 {L('x')}")
    e(f"v_lshlrev_b32 v6, 2, v2\nv_add_u32 v7, {GL}, v6")
    for w in range(4): e(f"ds_read_b32 v{180+w}, v7 offset:{w*256}")
    e("s_waitcnt lgkmcnt(0)\nv_add_f32 v180, v180, v181\nv_add_f32 v182, v182, v183\nv_add_f32 v180, v180, v182")
    k.srd(56, P_WS, WS_MODP, 4 * 6144 * 4)
    e("s_and_b32 s36, s2, 3\ns_mul_i32 s36, s36, 24576\ns_lshr_b32 s37, s2, 2\ns_lshl_b32 s37, s37, 8\ns_add_u32 s36, s36, s37")
    e(f"buffer_store_dword v180, v6, s[56:59], s36 offen{SCS}\ns_waitcnt vmcnt(0)")
    e(f"v_mov_b32 v6, 0\nv_mov_b32 v7, 1\ns_mov_b64 exec, 1\nbuffer_atomic_add v7, v6, {s(DBG,4)}, 0 offen sc0 sc1\ns_waitcnt vmcnt(0)\nv_readfirstlane_b32 s36, v7")
    e(f"s_cmp_lg_u32 s36, 127\ns_cbranch_scc1 {L('y')}")
    e(f"v_mov_b32 v7, 1\nbuffer_store_dword v7, v6, {s(DBG,4)}, 0 offen offset:128 sc1")
    e(f"{L('y')}:\ns_mov_b64 exec, -1\n{L('x')}:")

def g_compute(k):
    e = k.e; L = lambda n: k.lab("g_" + n)
    e(f"s_cmp_ge_u32 s2, 128\ns_cbranch_scc1 {L('wait')}")
    e(f"s_load_dwordx4 s[36:39], s[0:1], {KA_C}")
    e("s_and_b32 s40, s2, 3\ns_lshr_b32 s41, s2, 2")
    e("v_lshrrev_b32 v6, 3, v0\nv_and_b32 v7, 7, v0\nv_mov_b32 v178, v7")
    e("s_lshl_b32 s42, s40, 8\nv_add_u32 v6, s42, v6\nv_lshlrev_b32 v4, 1, v6")
    e("v_mul_u32_u24 v5, 12288, v6\nv_lshlrev_b32 v6, 4, v7\nv_add_u32 v5, v5, v6\ns_lshl_b32 s42, s41, 7\nv_add_u32 v5, s42, v5")
    e("s_waitcnt lgkmcnt(0)")
    k.srd(56, 36, 0, 2048); k.srd(60, 38, 0, 1024 * 6144 * 2)
    for i in range(8): e(f"buffer_load_ushort v{128+i}, v4, s[56:59], 0 offen offset:{i*64}")
    for i in range(8): e(f"s_mov_b32 s42, {i*32*12288}\nbuffer_load_dwordx4 {v(136+4*i,4)}, v5, s[60:63], s42 offen")
    gemv_finish(k, 128, 136, 168, 176)
    e(f"s_lshl_b32 s42, s24, 8\nv_lshlrev_b32 v5, 5, v178\nv_add_u32 v5, s42, v5\nv_add_u32 v5, {GL}, v5")
    e("s_mov_b64 exec, 0xff\nds_write_b128 v5, v[168:171]\nds_write_b128 v5, v[172:175] offset:16\ns_waitcnt lgkmcnt(0)\ns_mov_b64 exec, -1")
    g_final(k, "c")
    e(f"{L('wait')}:")
    e(f"s_cmp_lg_u32 s24, 0\ns_cbranch_scc1 {L('go')}")
    e(f"v_mov_b32 v6, 0\ns_mov_b32 s33, 0\ns_mov_b64 exec, 1")
    e(f"{L('poll')}:\nbuffer_load_dword v7, v6, {s(DBG,4)}, 0 offen offset:128 sc1\ns_waitcnt vmcnt(0)\nv_readfirstlane_b32 s34, v7")
    e(f"s_cmp_eq_u32 s34, 1\ns_cbranch_scc1 {L('pollx')}\ns_add_u32 s33, s33, 1\ns_cmp_ge_u32 s33, {SPIN_MAX}\ns_cbranch_scc1 {L('pollx')}\ns_sleep {SLEEP}\ns_branch {L('poll')}")
    e(f"{L('pollx')}:\ns_mov_b64 exec, -1")
    e(f"{L('go')}:\ns_barrier")

def g_loader(k):
    e = k.e; L = lambda n: k.lab("gl_" + n)
    share = (-(-CNT_BYTES // 128) + 1023) // 1024 * 1024
    e(f"s_cmp_ge_u32 s2, 128\ns_cbranch_scc1 {L('x')}\ns_cmp_lg_u32 s24, 5\ns_cbranch_scc1 {L('x')}")
    e(f"s_mul_i32 s36, s2, {share}\nv_lshlrev_b32 v3, 4, v2\nv_mov_b32 v200, 0\nv_mov_b32 v201, 0\nv_mov_b32 v202, 0\nv_mov_b32 v203, 0")
    for i in range(share // 1024):
        e(f"buffer_store_dwordx4 v[200:203], v3, {s(CNT,4)}, s36 offen offset:{i*1024}{SCS}")
    e("s_waitcnt vmcnt(0)")
    g_final(k, "l")
    e(f"{L('x')}:")

def h_phase(k):
    e = k.e; L = lambda n: k.lab("h_" + n)
    HL = 125952
    e("s_lshl_b32 s36, s2, 3\ns_lshl_b32 s37, s24, 1\ns_add_u32 s36, s36, s37")
    e("s_lshl_b32 s36, s36, 11\nv_lshlrev_b32 v3, 4, v2\nv_add_u32 v3, s36, v3")
    k.srd(12, P_X, 0, S * D * 2); k.srd(16, P_WS, WS_H, S * D * 2)
    k.srd(20, P_WS, WS_MODP, 4 * 6144 * 4); k.srd(56, P_WS, WS_MODF, 6144 * 4)
    single = "single" in OPT
    def xloads():
        for r in range(2):
            for hf in range(2):
                e(f"buffer_load_dwordx4 {v(8+8*r+4*hf,4)}, v3, s[12:15], 0 offen offset:{r*2048+hf*1024}")
    if single:
        xloads()
        e("v_mov_b32 v179, v3")
        g_compute(k)
        e("v_mov_b32 v3, v179")
    e("v_lshlrev_b32 v5, 5, v0")
    for p in range(4):
        e(f"s_mov_b32 s37, {p*24576}")
        e(f"buffer_load_dwordx4 {v(64+8*p,4)}, v5, s[20:23], s37 offen{SC if single else ''}\nbuffer_load_dwordx4 {v(68+8*p,4)}, v5, s[20:23], s37 offen offset:16{SC if single else ''}")
    if not single: xloads()
    nt_ = k.code_touch("h", k.lab("qkv_c"), k.lab("wo_c"), 24, 4, 1)
    e(f"s_waitcnt vmcnt({(0 if single else 4)+nt_})")
    for j in range(8):
        e(f"v_add_f32 v{64+j}, v{64+j}, v{72+j}\nv_add_f32 v{80+j}, v{80+j}, v{88+j}\nv_add_f32 v{64+j}, v{64+j}, v{80+j}")
        round_bf16(e, 64 + j)
    e("v_cmp_le_u32 vcc, 128, v0")
    for j in range(8):
        e(f"v_add_f32 v72, 1.0, v{64+j}")
        round_bf16(e, 72)
        e(f"v_cndmask_b32 v{64+j}, v{64+j}, v72, vcc")
    e(f"v_add_u32 v5, {HL}, v5\nds_write_b128 v5, v[64:67]\nds_write_b128 v5, v[68:71] offset:16")
    e("s_waitcnt lgkmcnt(0)\ns_barrier")
    e(f"v_lshlrev_b32 v5, 5, v2\nv_add_u32 v5, {HL}, v5")
    for hf in range(2):
        for q in range(2):
            e(f"ds_read_b128 {v(32+8*hf+4*q,4)}, v5 offset:{hf*2048+q*16}")
            e(f"ds_read_b128 {v(48+8*hf+4*q,4)}, v5 offset:{4096+hf*2048+q*16}")
    e(f"s_waitcnt vmcnt({nt_})")
    X = 64
    for r in range(2):
        for j in range(8):
            src = 8 + 8 * r + j
            e(f"v_lshlrev_b32 v{X+16*r+2*j}, 16, v{src}\nv_and_b32 v{X+16*r+2*j+1}, 0xffff0000, v{src}")
    for r in range(2): e(f"v_add_f32 v{104+r}, v{X+16*r}, v{X+16*r+1}")
    for j in range(2, 16):
        for r in range(2): e(f"v_add_f32 v{104+r}, v{104+r}, v{X+16*r+j}")
    wave_sum(e, [104, 105], 106, [0, 1, 2, 3, 4, 5])
    for r in range(2): e(f"v_mul_f32 v{104+r}, {f32(1/1024)}, v{104+r}")
    for j in range(16):
        for r in range(2): e(f"v_sub_f32 v{X+16*r+j}, v{X+16*r+j}, v{104+r}")
    for r in range(2): e(f"v_mul_f32 v{107+r}, v{X+16*r}, v{X+16*r}")
    for j in range(1, 16):
        for r in range(2): e(f"v_fmac_f32 v{107+r}, v{X+16*r+j}, v{X+16*r+j}")
    wave_sum(e, [107, 108], 106, [0, 1, 2, 3, 4, 5])
    for r in range(2):
        e(f"v_mov_b32 v{109+r}, {f32(1e-5)}\nv_fmac_f32 v{109+r}, {f32(1/1024)}, v{107+r}\nv_rsq_f32 v{109+r}, v{109+r}")
    e("s_waitcnt lgkmcnt(0)")
    for r in range(2):
        for j in range(16):
            e(f"v_mul_f32 v{X+16*r+j}, v{X+16*r+j}, v{109+r}\nv_fma_f32 v{X+16*r+j}, v{X+16*r+j}, v{48+j}, v{32+j}")
        for j in range(8): e(f"v_cvt_pk_bf16_f32 v{112+8*r+j}, v{X+16*r+2*j}, v{X+16*r+2*j+1}")
        e(f"buffer_store_dwordx4 {v(112+8*r,4)}, v3, s[16:19], 0 offen offset:{r*2048}{SCS}")
        e(f"buffer_store_dwordx4 {v(116+8*r,4)}, v3, s[16:19], 0 offen offset:{r*2048+1024}{SCS}")
    e(f"s_lshr_b32 s35, s2, 4\ns_add_u32 s35, s35, {C_H}")
    def offs():
        e(f"s_lshr_b32 s33, s2, 4\ns_lshl_b32 s33, s33, 9\ns_and_b32 s34, s2, 15\ns_lshl_b32 s34, s34, 2\ns_add_u32 s33, s33, s34\ns_add_u32 s33, s33, {FL['qkv']}")
        e("v_lshlrev_b32 v6, 7, v2\nv_add_u32 v6, s33, v6")
    k.signal("h", 4, 35, 16, (4, offs))

def k_main():
    single = "single" in OPT
    k = PK(NAME + "_kernel" if single else "main_kernel", 256, 512, LDS_TOTAL + 16384, 256, 100); e = k.e
    L = k.lab
    e(f"s_cmp_ge_u32 s2, 256\ns_cbranch_scc1 {L('end')}")
    e(f"s_load_dwordx4 s[68:71], s[0:1], {KA_X}\ns_load_dwordx4 s[72:75], s[0:1], {KA_W1}\ns_load_dwordx2 s[76:77], s[0:1], {KA_WO}")
    e(f"s_load_dwordx2 s[78:79], s[0:1], {KA_OUT}\ns_load_dwordx2 s[66:67], s[0:1], {KA_WS}")
    if single: e(f"s_load_dwordx2 s[82:83], s[0:1], {KA_DBG}")
    e("v_lshrrev_b32 v1, 6, v0\nv_and_b32 v2, 63, v0\nv_readfirstlane_b32 s24, v1")
    e(f"s_cmp_lg_u32 s24, 0\ns_cbranch_scc1 {L('noinit')}")
    e(f"v_lshlrev_b32 v3, 2, v2\nv_add_u32 v3, {CTL}, v3\nv_mov_b32 v4, 0\nds_write_b32 v3, v4\ns_waitcnt lgkmcnt(0)")
    e(f"{L('noinit')}:")
    e("s_waitcnt lgkmcnt(0)")
    k.srd(CNT, P_WS, WS_CNT, CNT_BYTES)
    if single:
        k.srd(DBG, 82, 0, 256)
        e("s_barrier")
    k.st(0)
    e(f"s_cmp_ge_u32 s24, 4\ns_cbranch_scc1 {L('qkv_l')}")
    hin = "hsep" not in OPT
    if hin: h_phase(k)
    gemm_phase(k, "qkv", 1024, 1024, 3072, 192, WS_H, S * D * 2, P_WQKV, D * 3 * D * 2, "qkv", 8, 4, 3, L("att_c"), L("att_l"), (C_H, 16, "rb") if hin else None, (1, 2), hbar=hin)
    pf = [(P_WO, D * D * 2), (P_W1, D * DFF * 2), (P_W2, D * DFF * 2)] if "nopf" not in OPT else []
    attn_phase(k, L("wo_c"), L("wo_l"), pf)
    gemm_phase(k, "wo", 1024, 1024, 1024, 64, WS_O, S * D * 2, P_WO, D * D * 2, "wo", 4, 8, 4, L("f1_c"), L("f1_l"), (C_ATT, 32, "rb2"), (5, 6))
    gemm_phase(k, "f1", 1024, 1024, DFF, 224, WS_XG, S * D * 2, P_W1, D * DFF * 2, "ffn1", 8, 4, 3, L("f2_c"), L("f2_l"), (C_WO, 16, "rb"), (7, 8))
    if "nos2" in OPT:
        gemm_phase(k, "f2", DFF, DFF, 1024, 64, WS_F1, S * DFF * 2, P_W2, DFF * D * 2, "ffn2", 4, 8, 4, L("fin"), L("end"), (C_F1, 16, "rb"), (9, 10))
    else:
        gemm_phase(k, "f2", DFF, DFF, 1024, 128, F1OFF(), S * DFF * 2, P_W2, DFF * D * 2, "ffn2s", 4, 8, 4, L("fin"), L("end"), (C_F1, 8, "rb"), (9, 10))
    e(f"{L('fin')}:")
    if DIAG:
        e("s_waitcnt vmcnt(0)")
        k.st(11)
        e(f"s_cmp_lg_u32 s24, 0\ns_cbranch_scc1 {L('end')}")
        k.srd(12, P_WS, WS_STAMP + 8 * 512 * 16, 256 * 64)
        e(f"v_lshlrev_b32 v3, 2, v2\nv_add_u32 v4, {L_STAMP}, v3\nds_read_b32 v5, v4\ns_lshl_b32 s32, s2, 6\nv_add_u32 v3, s32, v3\ns_waitcnt lgkmcnt(0)")
        e("s_mov_b64 exec, 0xffff\nbuffer_store_dword v5, v3, s[12:15], 0 offen")
    k.finish()
    return k

def k_mod2():
    NG = 384 if "modall" in OPT else 128
    k = Kern("mod_kernel", NG + 128, 256, 1024, 64); e = k.e
    k.exit_extra()
    e("s_load_dwordx4 s[4:7], s[0:1], %d" % KA_C)
    k.ptr(8, KA_WS); k.ptr(10, KA_X)
    e(f"s_cmp_ge_u32 s2, {NG}\ns_cbranch_scc1 {k.lab('aux')}")
    e("s_and_b32 s24, s2, 3\ns_lshr_b32 s25, s2, 2")
    e("v_lshrrev_b32 v1, 3, v0\nv_and_b32 v2, 7, v0")
    e("s_lshl_b32 s26, s24, 8\nv_add_u32 v3, s26, v1")
    e("v_lshlrev_b32 v4, 1, v3")
    e("v_mul_u32_u24 v5, 12288, v3\nv_lshlrev_b32 v6, 4, v2\nv_add_u32 v5, v5, v6")
    e("s_lshl_b32 s27, s25, 7\nv_add_u32 v5, s27, v5")
    e("s_waitcnt lgkmcnt(0)")
    k.srd(12, 4, 0, 2048); k.srd(16, 6, 0, 1024 * 6144 * 2); k.srd(20, 8, WS_MODP, 4 * 6144 * 4)
    gemv_body(k, 8, 16, 48, 56, "s[12:15]", "s[16:19]", 32)
    k.stamp(2)
    e("v_lshrrev_b32 v9, 6, v0\nv_lshlrev_b32 v9, 8, v9\nv_lshlrev_b32 v10, 5, v2\nv_add_u32 v9, v9, v10")
    e("v_and_b32 v10, 63, v0\nv_cmp_gt_u32 vcc, 8, v10\ns_and_saveexec_b64 s[28:29], vcc")
    e("ds_write_b128 v9, v[48:51]\nds_write_b128 v9, v[52:55] offset:16")
    e("s_mov_b64 exec, s[28:29]")
    e("s_waitcnt lgkmcnt(0)\ns_barrier")
    e("v_cmp_gt_u32 vcc, 64, v0\ns_and_saveexec_b64 s[28:29], vcc")
    e(f"s_cbranch_execz {k.lab('end')}")
    e("v_lshlrev_b32 v9, 2, v0")
    for w in range(4): e(f"ds_read_b32 v{12+w}, v9 offset:{w*256}")
    e("s_waitcnt lgkmcnt(0)")
    e("v_add_f32 v12, v12, v13\nv_add_f32 v14, v14, v15\nv_add_f32 v12, v12, v14")
    e("s_mul_i32 s26, s24, 24576\ns_lshl_b32 s27, s25, 8\ns_add_u32 s26, s26, s27")
    e("buffer_store_dword v12, v9, s[20:23], s26 offen")
    k.stamp_flush(0, 56)
    e("s_endpgm")
    e(f"{k.lab('aux')}:")
    e(f"s_waitcnt lgkmcnt(0)\ns_sub_u32 s24, s2, {NG}")
    k.srd(12, 10, 0, S * D * 2)
    e("s_lshl_b32 s25, s24, 15\nv_lshlrev_b32 v1, 7, v0\nbuffer_load_dword v2, v1, s[12:15], s25 offen")
    e(f"s_add_u32 s16, s8, {WS_CNT:#x}\ns_addc_u32 s17, s9, 0\ns_mov_b32 s18, {CNT_BYTES}\ns_mov_b32 s19, 0x20000")
    e("s_lshl_b32 s25, s24, 12\nv_lshlrev_b32 v3, 4, v0\nv_mov_b32 v4, 0\nv_mov_b32 v5, 0\nv_mov_b32 v6, 0\nv_mov_b32 v7, 0\nbuffer_store_dwordx4 v[4:7], v3, s[16:19], s25 offen")
    assert CNT_BYTES <= 128 * 4096
    if gen.DIAG:
        k.stamp(1); k.stamp(2)
        k.a.lines.append("  s_nop 0")
    k.finish()
    return k

def gemv_body(k, CV, WV, AC, TMP, srd_c, srd_w, ssoff):
    e = k.e
    for i in range(8): e(f"buffer_load_ushort v{CV+i}, v4, {srd_c}, 0 offen offset:{i*64}")
    for i in range(8): e(f"s_mov_b32 s{ssoff+i}, {i*32*12288}")
    for i in range(8): e(f"buffer_load_dwordx4 {v(WV+4*i,4)}, v5, {srd_w}, s{ssoff+i} offen")
    gemv_finish(k, CV, WV, AC, TMP)

def gemv_finish(k, CV, WV, AC, TMP):
    e = k.e
    for j in range(8): e(f"v_mov_b32 v{AC+j}, 0")
    e("s_waitcnt vmcnt(8)")
    k.stamp(1) if not isinstance(k, PK) else None
    for i in range(8):
        x = CV + i
        e(f"v_lshlrev_b32 v{x}, 16, v{x}")
        e(f"v_mul_f32 v{TMP}, {f32(-LOG2E)}, v{x}\nv_exp_f32 v{TMP}, v{TMP}\nv_add_f32 v{TMP}, 1.0, v{TMP}\nv_rcp_f32 v{TMP}, v{TMP}\nv_mul_f32 v{x}, v{x}, v{TMP}")
        round_bf16(e, x)
    for i in range(8):
        e(f"s_waitcnt vmcnt({7-i})")
        for j in range(4):
            w = WV + 4 * i + j
            e(f"v_lshlrev_b32 v{TMP}, 16, v{w}\nv_and_b32 v{TMP+1}, 0xffff0000, v{w}")
            e(f"v_fmac_f32 v{AC+2*j}, v{CV+i}, v{TMP}\nv_fmac_f32 v{AC+2*j+1}, v{CV+i}, v{TMP+1}")
    wave_sum(e, list(range(AC, AC + 8)), TMP, [3, 4, 5])

def k_probe(idx, mult):
    k = Kern("probe_kernel", 1, 64, 0, 64); e = k.e
    e("s_cmp_ge_u32 s2, 1\ns_cbranch_scc1 probe_kernel_end")
    k.ptr(8, KA_WS); k.ptr(10, KA_DBG)
    e("s_waitcnt lgkmcnt(0)")
    k.srd(12, 8, WS_STAMP, 16 * 512 * 16); k.srd(20, 10, 0, 256)
    e("v_lshlrev_b32 v1, 4, v0\nv_lshlrev_b32 v2, 6, v0")
    for c in range(6): e(f"s_mov_b32 s24, {(c%2)*64*16}\nbuffer_load_dword v{8+c}, v1, s[12:15], s24 offen")
    for c in range(4): e(f"s_mov_b32 s24, {8*512*16 + c*64*64 + idx*4}\nbuffer_load_dword v{16+c}, v2, s[12:15], s24 offen")
    e("s_waitcnt vmcnt(0)")
    for c in range(1, 6): e(f"v_min_u32 v8, v8, v{8+c}")
    for c in range(1, 4): e(f"v_max_u32 v16, v16, v{16+c}")
    def red(r, op):
        for b in range(4): e(f"{op}_dpp v{r}, v{r}, v{r} row_ror:{1<<b} row_mask:0xf bank_mask:0xf")
        for w in (16, 32):
            e(f"v_mov_b32 v40, v{r}\nv_permlane{w}_swap_b32 v40, v{r}\n{op} v{r}, v{r}, v40")
    red(8, "v_min_u32"); red(16, "v_max_u32")
    e("v_sub_u32 v16, v16, v8\nv_mov_b32 v13, 0\nbuffer_store_dword v16, v13, s[20:23], 0 offen\nv_readfirstlane_b32 s30, v16")
    e(f"s_mul_i32 s30, s30, {mult}\ns_min_u32 s30, s30, 100000")
    e("s_memrealtime s[32:33]\ns_waitcnt lgkmcnt(0)")
    e("probe_spin:\ns_memrealtime s[34:35]\ns_waitcnt lgkmcnt(0)\ns_sub_u32 s36, s34, s32\ns_cmp_lt_u32 s36, s30\ns_cbranch_scc1 probe_spin")
    k.finish()
    return k

PROBE = None
def build():
    if "single" in OPT: return [k_main()]
    if PROBE is not None: return [k_mod2(), k_main(), k_probe(*PROBE)]
    if "hsep" in OPT: return [k_mod2(), gen.k_h(True), k_main()]
    return [k_mod2(), k_main()]

if __name__ == "__main__":
    for a_ in list(sys.argv):
        if a_.startswith("--opt="): OPT = set(a_[6:].split(",")); sys.argv.remove(a_)
        if a_.startswith("--pfstage="): PFSTAGE = int(a_[10:]); sys.argv.remove(a_)
        if a_.startswith("--scs="): SCS = " " + a_[6:].replace("+", " "); sys.argv.remove(a_)
        if a_.startswith("--l2d="): L2D = int(a_[6:]); sys.argv.remove(a_)
        if a_.startswith("--probe="): PROBE = tuple(int(x) for x in a_[8:].split(",")); sys.argv.remove(a_)
        if a_.startswith("--mrstep="): MRSTEP = int(a_[9:]); sys.argv.remove(a_)
        if a_.startswith("--align="):
            for kv in a_[8:].split(","):
                k_, v_ = kv.split(":"); ALIGN[k_] = None if v_ == "n" else int(v_)
            sys.argv.remove(a_)
        if a_.startswith("--pipe="): PIPE, PGAP = [int(x) for x in a_[7:].split(",")]; sys.argv.remove(a_)
        if a_.startswith("--sleep="): SLEEP = int(a_[8:]); sys.argv.remove(a_)
    if "--diag" in sys.argv: DIAG = True; gen.DIAG = True; sys.argv.remove("--diag")
    txt = emit(build(), header())
    if "single" in OPT and "aslist" not in OPT:
        txt = txt.replace(f"; @launch kernel={NAME}_kernel grid=", "; @launch grid=")
    out = sys.argv[1]
    open(out, "w").write(txt)
    print("wrote", out, len(txt), "bytes")
```

```python
import sys
from asmlib import *
import gen
from gen import (NAME, S, D, DFF, H, KA_X, KA_WQKV, KA_WO, KA_BX, KA_W1, KA_W2, KA_C, KA_WMOD, KA_OUT, KA_DBG, KA_WS,
                 WS_MODP, WS_MODF, WS_H, WS_QKV, WS_O, WS_X1, WS_F1, WS_XG, WS_STAT, WS_UB, WS_STAMP, LOG2E, f32, Kern,
                 wave_sum, round_bf16, interleave, header, emit)

WS_F1A = WS_H
WS_CNT = 0x2f00000
C_QKV, C_ATT, C_WO, C_UB, C_F1, C_H = 0, 16, 24, 40, 56, 72
C_MR, C_MRALL, C_ATTALL = 88, 152, 153
NCNT = 160
FL_BASE = NCNT * 256 + 1536
FL_BASE = (FL_BASE + 255) // 256 * 256
FL = {"qkv": FL_BASE, "att": FL_BASE + 256 * 128, "wo": FL_BASE + 256 * 128 + 256 * 256, "f1": FL_BASE + 256 * 256 + 2 * 256 * 128, "f2": FL_BASE + 256 * 256 + 3 * 256 * 128}
FL["xch"] = FL_BASE + 256 * 256 + 4 * 256 * 128
FL["mr"] = FL["xch"] + 256 * 128
FL["f1b"] = FL["mr"] + 8 * 128
CNT_BYTES = FL["f1b"] + 64 * 128
WS_XCH = 0x3800000
OPT = set()
DIAG = False
SC = " sc1"
SCS = " sc1"
P_WS, P_X, P_WQKV, P_W1, P_W2, P_WO, P_OUT = 66, 68, 70, 72, 74, 76, 78
CNT = 28
CTL = 138240
L_SIG = {"qkv": CTL, "att": CTL + 4, "wo": CTL + 8, "ub": CTL + 12, "f1": CTL + 16, "h": CTL + 20, "mr": CTL + 24, "g": CTL + 28, "wo2": CTL + 44 + 116}
L_DEP = {"wo": CTL + 32, "f1": CTL + 36, "f2": CTL + 40, "qkv": CTL + 44}
L_STAMP = CTL + 64
LDS_TOTAL = CTL + 256
SPIN_MAX = 400000
SLEEP = 2
PIPE = 1
PGAP = 2
ALIGN = {}
PFSTAGE = 7
L2D = 8
MRSTEP = 9

def exec_mask(n):
    if n < 32: return f"s_mov_b64 exec, {(1 << n) - 1:#x}"
    return f"s_mov_b32 exec_lo, -1\ns_mov_b32 exec_hi, {(1 << (n - 32)) - 1:#x}"

def align(k, name):
    a = ALIGN.get(name, ALIGN.get("all", 0))
    if a is None: return
    k.a.lines.append(".p2align 6")
    for _ in range(a): k.e("s_nop 0")

class PK(Kern):
    def st(self, i, wave=0):
        if not DIAG: return
        e = self.e; n = self.lab(f"st{i}")
        e(f"s_cmp_lg_u32 s24, {wave}\ns_cbranch_scc1 {n}\n{'s_memtime' if 'cyc' in OPT else 's_memrealtime'} s[98:99]\ns_waitcnt lgkmcnt(0)\nv_mov_b32 v254, s98\nv_mov_b32 v255, {L_STAMP+4*i}\nds_write_b32 v255, v254\ns_waitcnt lgkmcnt(0)\n{n}:")
    def code_touch(self, tag, frm, to, part_sreg, nparts, per):
        if "code" not in OPT: return 0
        e = self.e; here = self.lab("pc" + tag)
        e(f"s_getpc_b64 s[90:91]\n{here}:\ns_add_u32 s90, s90, {frm}-{here}\ns_addc_u32 s91, s91, 0")
        e(f"s_mul_i32 s92, s{part_sreg}, {per*8192}\nv_lshlrev_b32 v252, 7, v2\nv_add_u32 v252, s92, v252")
        for i in range(per):
            if i: e("v_add_u32 v252, 8192, v252")
            e(f"v_min_u32 v251, {to}-{frm}-4, v252\nglobal_load_dword v253, v251, s[90:91]")
        return per
    def poll(self, tag, cnt_sreg, target, lanes=1):
        e = self.e; L = self.lab
        if cnt_sreg is not None: e(f"s_lshl_b32 s32, s{cnt_sreg}, 8\nv_mov_b32 v6, s32")
        e(f"s_mov_b32 s33, 0\ns_mov_b64 exec, {(1 << lanes) - 1}")
        e(f"{L('poll'+tag)}:")
        e(f"buffer_load_dword v7, v6, {s(CNT,4)}, 0 offen offset:{0 if 'direct' in OPT else 128} sc1\ns_waitcnt vmcnt(0)")
        e(f"v_cmp_gt_u32 vcc, {target}, v7\ns_cmp_eq_u64 vcc, 0\ns_cbranch_scc1 {L('pollx'+tag)}")
        e(f"s_add_u32 s33, s33, 1\ns_cmp_ge_u32 s33, {SPIN_MAX}\ns_cbranch_scc1 {L('pollx'+tag)}")
        e(f"s_sleep {SLEEP}\ns_branch {L('poll'+tag)}")
        e(f"{L('pollx'+tag)}:\ns_mov_b64 exec, -1")
    def dep_wait_loaders(self, tag, cnt_sreg, target, first_wave_cond):
        e = self.e; L = self.lab
        e(f"s_cmp_lg_u32 s24, 4\ns_cbranch_scc1 {L('dw'+tag)}")
        if "noflags" in OPT: self.poll(tag, cnt_sreg, target)
        else:
            if tag == "f2" and "nos2" not in OPT:
                e(f"s_lshl_b32 s34, s25, 1\ns_add_u32 s34, s34, s27\ns_lshl_b32 s34, s34, 7\ns_add_u32 s34, s34, {FL[tag]}")
            elif tag == "f2":
                e(f"s_lshl_b32 s34, s25, 4\ns_add_u32 s34, s34, s26\ns_lshl_b32 s34, s34, 7\ns_add_u32 s34, s34, {FL[tag]}")
            elif tag == "wo":
                e(f"s_lshr_b32 s34, s25, 1\ns_lshl_b32 s34, s34, 1\ns_lshr_b32 s33, s26, 3\ns_add_u32 s34, s34, s33\ns_lshl_b32 s34, s34, 7\ns_add_u32 s34, s34, {FL[tag]}")
            else:
                e(f"s_lshl_b32 s34, s25, 2\ns_lshr_b32 s33, s26, 2\ns_add_u32 s34, s34, s33\ns_lshl_b32 s34, s34, 7\ns_add_u32 s34, s34, {FL[tag]}")
            self.wait_flags(tag, target, 34)
        e(f"v_mov_b32 v6, {L_DEP[tag]}\nv_mov_b32 v7, 1\nds_write_b32 v6, v7\ns_waitcnt lgkmcnt(0)\ns_branch {L('dwx'+tag)}")
        e(f"{L('dw'+tag)}:")
        e(f"v_mov_b32 v6, {L_DEP[tag]}\ns_mov_b32 s33, 0")
        e(f"{L('dwl'+tag)}:")
        e(f"ds_read_b32 v7, v6\ns_waitcnt lgkmcnt(0)\nv_readfirstlane_b32 s34, v7")
        e(f"s_cmp_lg_u32 s34, 0\ns_cbranch_scc1 {L('dwx'+tag)}")
        e(f"s_add_u32 s33, s33, 1\ns_cmp_ge_u32 s33, {SPIN_MAX*4}\ns_cbranch_scc1 {L('dwx'+tag)}")
        e(f"s_sleep 1\ns_branch {L('dwl'+tag)}")
        e(f"{L('dwx'+tag)}:")
    def arrive(self, tag, cnt_sreg, target):
        e = self.e; L = self.lab
        e(f"s_lshl_b32 s33, s{cnt_sreg}, 8\nv_mov_b32 v6, s33\nv_mov_b32 v7, 1")
        if "direct" in OPT:
            e(f"buffer_atomic_add v7, v6, {s(CNT,4)}, 0 offen sc1")
            return
        e(f"buffer_atomic_add v7, v6, {s(CNT,4)}, 0 offen sc0 sc1\ns_waitcnt vmcnt(0)\nv_readfirstlane_b32 s33, v7")
        e(f"s_cmp_lg_u32 s33, {target-1}\ns_cbranch_scc1 {L('arr'+tag)}")
        e(f"v_mov_b32 v7, {target}\nbuffer_store_dword v7, v6, {s(CNT,4)}, 0 offen offset:128 sc1")
        e(f"{L('arr'+tag)}:")
    def signal(self, tag, nwaves, cnt_sreg, target, flags=None, younger=0):
        e = self.e; L = self.lab
        e(f"s_waitcnt vmcnt({younger})")
        e(f"v_mov_b32 v6, {L_SIG[tag]}\nv_mov_b32 v7, 1\ns_mov_b64 exec, 1")
        e("ds_add_rtn_u32 v7, v6, v7\ns_waitcnt lgkmcnt(0)\nv_readfirstlane_b32 s32, v7\ns_mov_b64 exec, -1")
        e(f"s_cmp_lg_u32 s32, {nwaves-1}\ns_cbranch_scc1 {L('sig'+tag)}")
        if flags is not None and "noflags" not in OPT:
            n, offs = flags
            offs()
            e("v_mov_b32 v7, 1\n" + exec_mask(n))
            e(f"buffer_store_dword v7, v6, {s(CNT,4)}, 0 offen sc1")
        else:
            e("s_mov_b64 exec, 1")
            self.arrive(tag, cnt_sreg, target)
        e(f"{L('sig'+tag)}:\ns_mov_b64 exec, -1")
    def wait_flags(self, tag, n, base_sreg):
        e = self.e; L = self.lab
        e(f"v_lshlrev_b32 v6, 2, v2\nv_add_u32 v6, s{base_sreg}, v6\ns_mov_b32 s33, 0")
        e(exec_mask(n))
        if PIPE <= 1:
            e(f"{L('poll'+tag)}:")
            e(f"buffer_load_dword v7, v6, {s(CNT,4)}, 0 offen sc1\ns_waitcnt vmcnt(0)")
            e(f"v_cmp_ne_u32 vcc, 1, v7\ns_cmp_eq_u64 vcc, 0\ns_cbranch_scc1 {L('pollx'+tag)}")
            e(f"s_add_u32 s33, s33, 1\ns_cmp_ge_u32 s33, {SPIN_MAX}\ns_cbranch_scc1 {L('pollx'+tag)}")
            e(f"s_sleep {SLEEP}\ns_branch {L('poll'+tag)}")
        else:
            e("s_waitcnt vmcnt(0)")
            for i in range(PIPE):
                e(f"buffer_load_dword v{244+i}, v6, {s(CNT,4)}, 0 offen sc1")
                if i < PIPE - 1: e(f"s_sleep {PGAP}")
            e(f"{L('poll'+tag)}:")
            for i in range(PIPE):
                e(f"s_waitcnt vmcnt({PIPE-1})\nv_cmp_ne_u32 vcc, 1, v{244+i}\ns_cmp_eq_u64 vcc, 0\ns_cbranch_scc1 {L('pollx'+tag)}")
                e(f"buffer_load_dword v{244+i}, v6, {s(CNT,4)}, 0 offen sc1\ns_sleep {PGAP}")
            e(f"s_add_u32 s33, s33, 1\ns_cmp_lt_u32 s33, {SPIN_MAX}\ns_cbranch_scc1 {L('poll'+tag)}")
        e(f"{L('pollx'+tag)}:\ns_mov_b64 exec, -1")

def CHAIN(): return 'nochain' not in OPT and 'modall' not in OPT and 'mrwo' not in OPT

def F1OFF(): return WS_F1A if 'alias' in OPT else WS_F1

def tile_map(e, xr, xc):
    nxc = 16 // xc
    e(f"s_and_b32 s36, s2, 7\ns_lshr_b32 s37, s2, 3")
    e(f"s_and_b32 s38, s36, {nxc-1}\ns_lshr_b32 s39, s36, {nxc.bit_length()-1}")
    e(f"s_and_b32 s40, s37, {xc-1}\ns_lshr_b32 s41, s37, {xc.bit_length()-1}")
    e(f"s_mul_i32 s38, s38, {xc}\ns_add_u32 s26, s38, s40")
    e(f"s_mul_i32 s39, s39, {xr}\ns_add_u32 s25, s39, s41")

def tile_map_s2(e):
    e("s_and_b32 s36, s2, 7\ns_lshr_b32 s37, s2, 3\ns_and_b32 s27, s36, 1\ns_lshr_b32 s36, s36, 1")
    if "rot2" in OPT: e("s_add_u32 s26, s37, 1\ns_and_b32 s26, s26, 7\ns_lshr_b32 s37, s37, 3\ns_lshl_b32 s36, s36, 2\ns_add_u32 s25, s36, s37")
    else: e("s_and_b32 s26, s37, 7\ns_lshr_b32 s37, s37, 3\ns_lshl_b32 s36, s36, 2\ns_add_u32 s25, s36, s37")

def gemm_phase(k, tag, K, lda, ldb, BN, srcA, sizeA, pB, sizeB, epi, xr, xc, NS, nxt_c, nxt_l, dep=None, stamps=(None, None), hbar=False):
    e = k.e
    L = lambda n: k.lab(tag + "_" + n)
    BM, BK = 128, 64
    nA = BM * BK * 2 // 1024; nB = BN * BK * 2 // 1024
    nAw, nBw = nA // 4, nB // 4
    nld = nAw + nBw
    SB = (nA + nB) * 1024
    s2 = epi == "ffn2s"
    nk = K // BK // (2 if s2 else 1)
    TM, TN = 64, BN // 2
    mt, nt = TM // 16, TN // 16
    pitch = BN * 2; cpr = BN // 8
    hbits = {4: 2, 6: 1, 2: 1, 0: 3}[(pitch // 32) % 8]
    ACC = 8; NACC = 4 * mt * nt
    FA = ACC + NACC; NF = 4 * (mt + nt); FB = FA + NF
    AX = FB + NF; AW = AX + 2; EP = AW + nt
    XL = 135168
    assert SB * NS <= XL
    perm = epi == "qkv" and "perm" in OPT
    asc = SC if dep else ""
    e(f"{L('c')}:")
    if s2: tile_map_s2(e)
    else: tile_map(e, xr, xc)
    e("s_lshr_b32 s42, s24, 1\ns_and_b32 s43, s24, 1")
    e("v_and_b32 v3, 15, v2\nv_lshrrev_b32 v4, 4, v2")
    e(f"s_lshl_b32 s44, s25, 7\ns_lshl_b32 s45, s42, 6\ns_add_u32 s44, s44, s45")
    e(f"s_mul_i32 s46, s26, {BN}\ns_mul_i32 s45, s43, {TN}\ns_add_u32 s46, s46, s45")
    k.srd(20, P_WS, WS_MODF, 6144 * 4)
    if epi == "qkv": k.srd(12, P_WS, WS_QKV, 96 * S * 64)
    elif epi == "ffn1": k.srd(12, P_WS, F1OFF(), S * DFF * 2)
    elif epi == "wo": k.srd(12, P_WS, WS_X1, S * D * 2); k.srd(16, P_X, 0, S * D * 2)
    elif epi in ("ffn2", "ffn2s"): k.srd(12, P_OUT, 0, S * D * 2); k.srd(16, P_WS, WS_X1, S * D * 2)
    G = EP + 2 * mt * nt; GG = G + 4 * nt; W1R = GG + 4 * nt
    if s2:
        G = EP + 16
        e("s_lshl_b32 s47, s27, 5\ns_add_u32 s46, s46, s47")
        e("s_lshl_b32 s47, s25, 4\ns_lshl_b32 s48, s26, 1\ns_add_u32 s47, s47, s48\ns_add_u32 s47, s47, s43\ns_lshl_b32 s47, s47, 2\ns_lshl_b32 s48, s42, 1\ns_add_u32 s47, s47, s48\ns_add_u32 s47, s47, s27\ns_lshl_b32 s47, s47, 12")
        e("v_lshlrev_b32 v5, 4, v2")
        for j in range(mt):
            e(f"buffer_load_dwordx4 {v(EP+4*j,4)}, v5, s[16:19], s47 offen offset:{j*1024}{SC}")
        if not CHAIN(): k.srd(20, P_WS, WS_MODP, 4 * 6144 * 4)
        e(f"v_lshlrev_b32 v6, 4, v4\ns_lshl_b32 s47, s46, 2\ns_add_u32 s47, s47, {5*1024*4}")
        for p_ in range(1 if CHAIN() else 4):
            for i in range(2):
                e(f"buffer_load_dwordx4 {v(G+8*p_+4*i,4)}, v6, s[20:23], s47 offen offset:{i*64}{SC}")
            if p_ < 3 and not CHAIN(): e("s_add_u32 s47, s47, 24576")
    if epi == "wo" and "modall" not in OPT and "mrwo" in OPT:
        e(f"s_load_dwordx4 s[36:39], s[0:1], {KA_C}")
        e("s_and_b32 s58, s2, 3\ns_lshr_b32 s59, s2, 2\ns_add_u32 s59, s59, 32")
        e("v_lshrrev_b32 v6, 3, v0\nv_and_b32 v7, 7, v0\nv_mov_b32 v247, v7")
        e("s_lshl_b32 s47, s58, 8\nv_add_u32 v6, s47, v6\nv_lshlrev_b32 v248, 1, v6")
        e("v_mul_u32_u24 v5, 12288, v6\nv_lshlrev_b32 v6, 4, v7\nv_add_u32 v5, v5, v6\ns_lshl_b32 s47, s59, 7\nv_add_u32 v5, s47, v5")
        e("s_waitcnt lgkmcnt(0)")
        k.srd(52, 36, 0, 2048); k.srd(60, 38, 0, 1024 * 6144 * 2)
        for i in range(8): e(f"buffer_load_ushort v{176+i}, v248, s[52:55], 0 offen offset:{i*64}")
        for i in range(8):
            e(f"s_mov_b32 s47, {i*32*12288}\nbuffer_load_dwordx4 {v(184+4*i,4)}, v5, s[60:63], s47 offen")
        gemv_finish(k, 176, 184, 216, 224)
        MRL = 139264
        e(f"s_lshl_b32 s47, s24, 8\nv_lshlrev_b32 v5, 5, v247\nv_add_u32 v5, s47, v5\nv_add_u32 v5, {MRL}, v5")
        e("s_mov_b64 exec, 0xff\nds_write_b128 v5, v[216:219]\nds_write_b128 v5, v[220:223] offset:16\ns_waitcnt lgkmcnt(0)")
        e(f"v_mov_b32 v6, {L_SIG['mr']}\nv_mov_b32 v7, 1\ns_mov_b64 exec, 1\nds_add_rtn_u32 v7, v6, v7\ns_waitcnt lgkmcnt(0)\nv_readfirstlane_b32 s47, v7\ns_mov_b64 exec, -1")
        e(f"s_cmp_lg_u32 s47, 3\ns_cbranch_scc1 {L('mrx')}")
        e(f"v_lshlrev_b32 v5, 2, v2\nv_add_u32 v6, {MRL}, v5")
        for w_ in range(4): e(f"ds_read_b32 v{216+w_}, v6 offset:{w_*256}")
        e("s_waitcnt lgkmcnt(0)\nv_add_f32 v216, v216, v217\nv_add_f32 v218, v218, v219\nv_add_f32 v216, v216, v218")
        k.srd(52, P_WS, WS_MODP, 4 * 6144 * 4)
        e("s_mul_i32 s47, s58, 24576\ns_lshl_b32 s48, s59, 8\ns_add_u32 s47, s47, s48")
        e(f"buffer_store_dword v216, v5, s[52:55], s47 offen{SCS}\ns_waitcnt vmcnt(0)")
        e(f"v_mov_b32 v6, {C_MRALL*256}\nv_mov_b32 v7, 1\ns_mov_b64 exec, 1\nbuffer_atomic_add v7, v6, {s(CNT,4)}, 0 offen sc1\ns_mov_b64 exec, -1")
        e(f"{L('mrx')}:")
    if epi in ("wo", "ffn2"):
        if epi == "wo":
            e(f"v_add_u32 v5, s44, v3\nv_lshlrev_b32 v5, 11, v5\nv_lshlrev_b32 v6, 3, v4\nv_add_u32 v5, v5, v6")
            e(f"s_lshl_b32 s47, s46, 1\nv_add_u32 v5, s47, v5")
            for j in range(mt):
                e(f"s_mov_b32 s48, {j*16*2048}")
                for i in range(nt):
                    e(f"buffer_load_dwordx2 {v(EP+2*(j*nt+i),2)}, v5, s[16:19], s48 offen offset:{i*32}")
        else:
            e("s_lshl_b32 s47, s25, 4\ns_add_u32 s47, s47, s26\ns_lshl_b32 s47, s47, 2\ns_add_u32 s47, s47, s24\ns_lshl_b32 s47, s47, 12\nv_lshlrev_b32 v5, 4, v2")
            for j in range(mt):
                e(f"buffer_load_dwordx4 {v(EP+4*j,4)}, v5, s[16:19], s47 offen offset:{j*1024}{SC}")
        if epi == "ffn2":
            raise NotImplementedError
        if epi == "wo" and CHAIN():
            e(f"s_and_b32 s35, s2, 7\ns_lshl_b32 s35, s35, 7\ns_add_u32 s35, s35, {FL['mr']}")
            k.wait_flags("mr", 1, 35)
            e(f"v_lshlrev_b32 v6, 4, v4\ns_lshl_b32 s47, s46, 2\ns_add_u32 s47, s47, {2*1024*4}")
            for i in range(nt):
                e(f"buffer_load_dwordx4 {v(G+4*i,4)}, v6, s[20:23], s47 offen offset:{i*64}{SC}")
            e(f"s_lshl_b32 s47, s46, 2\ns_add_u32 s47, s47, {4096*4}")
            for i in range(nt):
                e(f"buffer_load_dwordx4 {v(GG+4*i,4)}, v6, s[20:23], s47 offen offset:{i*64}{SC}")
        if epi == "wo":
            if "ubold" in OPT:
                e("s_lshr_b32 s58, s2, 4\ns_and_b32 s59, s2, 15")
            else:
                e("s_lshr_b32 s60, s2, 3\ns_and_b32 s59, s2, 3\ns_lshl_b32 s59, s59, 2\ns_and_b32 s61, s60, 3\ns_add_u32 s59, s59, s61")
                e("s_bfe_u32 s58, s2, 0x10002\ns_lshl_b32 s58, s58, 3\ns_lshr_b32 s61, s60, 2\ns_add_u32 s58, s58, s61")
            e(f"v_mul_u32_u24 v5, {(65536+27)//28}, v2\nv_lshrrev_b32 v5, 16, v5\nv_mul_u32_u24 v6, 28, v5\nv_sub_u32 v6, v2, v6")
            e("s_lshl_b32 s60, s58, 6\ns_lshl_b32 s61, s24, 4\ns_add_u32 s60, s60, s61\nv_add_u32 v5, s60, v5")
            e(f"v_mul_u32_u24 v7, {DFF*2}, v5\nv_lshlrev_b32 v6, 4, v6\nv_add_u32 v7, v7, v6\ns_mul_i32 s60, s59, 448\nv_add_u32 v7, s60, v7")
            k.srd(60, P_W1, 0, D * DFF * 2)
            e("v_cmp_gt_u32 vcc, 56, v2\ns_and_saveexec_b64 s[34:35], vcc")
            for i in range(8):
                e(f"s_mov_b32 s64, {i*2*DFF*2}")
                e(f"buffer_load_dwordx4 {v(W1R+4*i,4)}, v7, s[60:63], s64 offen")
            if CHAIN():
                e("v_lshlrev_b32 v5, 2, v5")
                e(f"s_mov_b32 s64, {4096*4}\ns_mov_b32 s65, {3072*4}")
                for i in range(8):
                    e(f"buffer_load_dword v{W1R+32+i}, v5, s[20:23], s64 offen offset:{i*8}{SC}")
                    e(f"buffer_load_dword v{W1R+40+i}, v5, s[20:23], s65 offen offset:{i*8}{SC}")
            e("s_mov_b64 exec, s[34:35]")
    e(f"v_lshrrev_b32 v5, 1, v3\nv_xor_b32 v5, v5, v4\nv_and_b32 v5, 7, v5")
    e(f"v_lshlrev_b32 v5, 4, v5\ns_lshl_b32 s47, s42, 6\nv_add_u32 v6, s47, v3\nv_lshlrev_b32 v6, 7, v6")
    e(f"v_add_u32 v{AX}, v5, v6\nv_xor_b32 v{AX+1}, 64, v{AX}")
    e("v_lshrrev_b32 v5, 2, v3\nv_and_b32 v6, 3, v2")
    e("v_lshlrev_b32 v7, 3, v4\nv_add_u32 v7, v7, v5")
    e(f"v_mul_u32_u24 v7, {pitch}, v7\nv_lshlrev_b32 v6, 3, v6\nv_add_u32 v7, v7, v6\nv_add_u32 v7, {nA*1024}, v7")
    if hbits == 2: e("v_lshrrev_b32 v5, 1, v5\nv_and_b32 v6, 1, v4\nv_lshlrev_b32 v6, 1, v6\nv_or_b32 v5, v5, v6")
    elif hbits == 1: e("v_and_b32 v5, 1, v4")
    else: e("v_and_b32 v6, 1, v4\nv_lshlrev_b32 v6, 2, v6\nv_or_b32 v5, v5, v6")
    e(f"s_mul_i32 s47, s43, {nt}")
    for i in range(nt):
        e(f"s_add_u32 s48, s47, {i}\nv_xor_b32 v6, s48, v5\nv_lshlrev_b32 v6, 5, v6\nv_add_u32 v{AW+i}, v7, v6")
    for r in range(NACC): e(f"v_mov_b32 v{ACC+r}, 0")
    def reads(ss, F):
        xs = [f"ds_read_b128 {v(F+4*j,4)}, v{AX+ss} offset:{j*2048}" for j in range(mt)]
        ws = []
        for i in range(nt):
            for hh in range(2):
                ws.append(f"ds_read_b64_tr_b16 {v(F+4*mt+4*i+2*hh,2)}, v{AW+i} offset:{(ss*32+hh*4)*pitch}")
        return [xs[0]] + ws[:2] + xs[1:] + ws[2:]
    def mfmas(F):
        return [f"v_mfma_f32_16x16x32_bf16 {v(ACC+4*(j*nt+i),4)}, {v(F+4*mt+4*i,4)}, {v(F+4*j,4)}, {v(ACC+4*(j*nt+i),4)}"
                for j in range(mt) for i in range(nt)]
    def mix(mf, rd, extra=()):
        rd = list(rd)
        if len(rd) <= len(mf) - 4:
            return interleave(mf, rd + list(extra))
        out = []; oi = 0; ex = list(extra)
        for m_ in mf:
            out.append(m_)
            for _ in range(2):
                if oi < len(rd): out.append(rd[oi]); oi += 1
            if oi >= len(rd) and ex: out.append(ex.pop(0))
        out += rd[oi:] + ex
        return out
    if epi == "wo": k.code_touch("w", k.lab("f1_c"), k.lab("f2_c"), 24, 4, 1)
    if epi == "ffn1": k.code_touch("f", k.lab("f1_cloop"), k.lab("end"), 24, 4, 1)
    e(f"s_mov_b32 s49, 0\ns_mov_b32 s54, {SB}\ns_mov_b32 s55, {-(NS-1)*SB & 0xffffffff:#x}")
    e("s_barrier")
    if stamps[0] is not None: k.st(stamps[0])
    for l in reads(0, FA): e(l)
    l2pf = epi in ("qkv", "ffn1") and ("l2" + tag) in OPT
    if l2pf:
        k.srd(56, P_WS, srcA, sizeA); k.srd(60, pB, 0, sizeB)
        e(f"s_cmp_eq_u32 s24, 0\ns_cselect_b32 s65, {(nk-1) & 1}, 99")
        e("s_lshr_b32 s37, s2, 3")
        e(f"s_and_b32 s40, s37, {xc-1}\ns_lshr_b32 s41, s37, {xc.bit_length()-1}")
        e(f"v_lshrrev_b32 v5, 5, v2\nv_add_u32 v5, {L2D}, v5")
        e(f"v_and_b32 v6, 31, v2\ns_lshl_b32 s47, s40, 5\nv_add_u32 v6, s47, v6\ns_lshl_b32 s47, s25, 7\nv_add_u32 v6, s47, v6\nv_lshlrev_b32 v6, 11, v6\nv_lshlrev_b32 v7, 7, v5\nv_add_u32 v250, v6, v7")
        e(f"v_lshlrev_b32 v5, 6, v5\nv_lshrrev_b32 v6, 2, v2\nv_and_b32 v6, 7, v6\nv_add_u32 v5, v5, v6\ns_lshl_b32 s47, s41, 3\nv_add_u32 v5, s47, v5\ns_mov_b32 s47, {ldb*2}\nv_mul_lo_u32 v5, s47, v5")
        e(f"v_and_b32 v6, 3, v2\nv_lshlrev_b32 v6, 7, v6\nv_add_u32 v5, v5, v6\ns_mul_i32 s47, s26, {BN*2}\ns_and_b32 s47, s47, 0xffffff80\nv_add_u32 v249, s47, v5")
    e(f"s_mov_b32 s50, {nk-1}")
    adv_s = f"s_add_u32 s49, s49, 1\ns_cmp_eq_u32 s49, {NS}\ns_cselect_b32 s51, s55, s54\ns_cselect_b32 s49, 0, s49"
    adv_v = [f"v_add_u32 v{r}, s51, v{r}" for r in [AX, AX + 1] + [AW + i for i in range(nt)]]
    align(k, tag)
    e(f"{L('cloop')}:")
    if epi == "wo" and not CHAIN():
        if "modall" in OPT:
            e(f"s_cmp_eq_u32 s50, 12\ns_cbranch_scc0 {L('m2')}")
        else:
            e(f"s_cmp_eq_u32 s50, 11\ns_cbranch_scc0 {L('m1')}")
            e(f"v_mov_b32 v245, {C_MRALL*256}\nbuffer_load_dword v246, v245, {s(CNT,4)}, 0 offen sc1")
            e(f"{L('m1')}:\ns_cmp_eq_u32 s50, 8\ns_cbranch_scc0 {L('m2')}")
            e(f"s_waitcnt vmcnt(0)\nv_readfirstlane_b32 s47, v246\ns_cmp_ge_u32 s47, 256\ns_cbranch_scc1 {L('m1ok')}")
            e(f"v_mov_b32 v6, {C_MRALL*256 - 128}")
            k.poll("mr", None, 256)
            e(f"{L('m1ok')}:")
        k.srd(60, P_WS, WS_MODP, 4 * 6144 * 4)
        e("s_lshl_b32 s47, s26, 6\ns_lshr_b32 s48, s2, 4\ns_lshl_b32 s48, s48, 6\ns_cmp_ge_u32 s24, 2\ns_cselect_b32 s47, s48, s47")
        e("s_mov_b32 s48, 4096\ns_cmp_eq_u32 s24, 0\ns_cselect_b32 s48, 2048, s48\ns_cmp_eq_u32 s24, 3\ns_cselect_b32 s48, 3072, s48")
        e("s_add_u32 s47, s47, s48\ns_lshl_b32 s47, s47, 2\nv_lshlrev_b32 v245, 2, v2")
        for p_ in range(4):
            e(f"buffer_load_dword v{240+p_}, v245, s[60:63], s47 offen{SC}")
            if p_ < 3: e("s_add_u32 s47, s47, 24576")
        e(f"{L('m2')}:\ns_cmp_eq_u32 s50, 4\ns_cbranch_scc0 {L('m3')}")
        e("s_waitcnt vmcnt(0)\nv_add_f32 v240, v240, v241\nv_add_f32 v242, v242, v243\nv_add_f32 v240, v240, v242")
        round_bf16(e, 240)
        e("v_add_f32 v241, 1.0, v240")
        round_bf16(e, 241)
        e("s_sub_u32 s47, s24, 1\ns_cmp_lt_u32 s47, 2\ns_cselect_b64 vcc, -1, 0\nv_cndmask_b32 v240, v240, v241, vcc")
        e(f"s_lshl_b32 s47, s24, 8\ns_add_u32 s47, s47, 135168\nv_add_u32 v245, s47, v245\nds_write_b32 v245, v240")
        e(f"{L('m3')}:")
    if l2pf:
        e(f"s_and_b32 s47, s50, 1\ns_cmp_lg_u32 s47, s65\ns_cbranch_scc1 {L('nopf')}")
        e(f"buffer_load_dword v248, v250, s[56:59], 0 offen{asc}\nbuffer_load_dword v248, v249, s[60:63], 0 offen")
        e(f"v_add_u32 v250, 256, v250\nv_add_u32 v249, {2*64*ldb*2}, v249")
        e(f"{L('nopf')}:")
    def sprinkle(seq, extra, start):
        out = []; n_ = 0; ex = list(extra)
        for x in seq:
            out.append(x)
            if x.startswith("v_mfma"):
                n_ += 1
                if n_ > start and ex: out.append(ex.pop(0))
        return out + ex
    tight = "loose" not in OPT
    if not tight: e(adv_s)
    e("s_waitcnt lgkmcnt(0)")
    seq = mix(mfmas(FA), reads(1, FB))
    if tight: seq = sprinkle(seq, adv_s.split("\n"), 0)
    last_rd = max(i for i, x in enumerate(seq) if x.startswith("ds_read"))
    tail = [x for x in seq[last_rd + 1:]]
    seq = seq[:last_rd + 1]
    av = list(adv_v)
    for x in tail:
        seq.append(x)
        if av and x.startswith("v_mfma"): seq.append(av.pop(0))
    seq += av
    for l in seq: e(l)
    e("s_waitcnt lgkmcnt(0)\ns_barrier")
    seqb = mix(mfmas(FB), reads(0, FA))
    if tight:
        seqb = sprinkle(seqb, ["s_sub_u32 s50, s50, 1", "s_cmp_lg_u32 s50, 0"], 1)
        for l in seqb: e(l)
        e(f"s_cbranch_scc1 {L('cloop')}")
    else:
        for l in seqb: e(l)
        e(f"s_sub_u32 s50, s50, 1\ns_cmp_lg_u32 s50, 0\ns_cbranch_scc1 {L('cloop')}")
    e("s_waitcnt lgkmcnt(0)")
    for l in mix(mfmas(FA), reads(1, FB)): e(l)
    e("s_waitcnt lgkmcnt(0)")
    if epi != "qkv": e("s_barrier")
    for l in mfmas(FB): e(l)
    if stamps[1] is not None: k.st(stamps[1])
    T = FA
    def acc(i, j): return ACC + 4 * (j * nt + i)
    def pack_pair(ta, tb, dst):
        e(f"v_cvt_pk_bf16_f32 v{dst}, v{ta}, v{ta+1}\nv_cvt_pk_bf16_f32 v{dst+1}, v{ta+2}, v{ta+3}")
        e(f"v_cvt_pk_bf16_f32 v{dst+2}, v{tb}, v{tb+1}\nv_cvt_pk_bf16_f32 v{dst+3}, v{tb+2}, v{tb+3}")
        e(f"v_permlane16_swap_b32 v{dst}, v{dst+2}\nv_permlane16_swap_b32 v{dst+1}, v{dst+3}")
    e("v_and_b32 v5, 1, v4\nv_lshlrev_b32 v5, 5, v5\nv_lshrrev_b32 v6, 1, v4\nv_lshlrev_b32 v6, 4, v6\nv_add_u32 v5, v5, v6")
    if epi == "qkv":
        e("v_lshlrev_b32 v6, 6, v3\nv_add_u32 v5, v5, v6")
        n = 0
        for p in range(nt // 2):
            if perm:
                e(f"s_mul_i32 s52, s43, 96\ns_add_u32 s52, s52, {32*p}\ns_cmp_lt_u32 s52, 64\ns_cselect_b32 s53, {f32(LOG2E * 32 ** -0.5)}, 1.0")
                e("s_lshr_b32 s54, s52, 6\ns_lshl_b32 s54, s54, 5\ns_bfe_u32 s52, s52, 0x10005\ns_add_u32 s52, s52, s54\ns_lshl_b32 s54, s26, 1\ns_add_u32 s52, s52, s54")
                e("s_lshl_b32 s52, s52, 17\ns_lshl_b32 s54, s44, 6\ns_add_u32 s52, s52, s54")
            else:
                e(f"s_add_u32 s52, s46, {32*p}\ns_cmp_lt_u32 s52, 1024\ns_cselect_b32 s53, {f32(LOG2E * 32 ** -0.5)}, 1.0")
                e(f"s_lshl_b32 s52, s52, 12\ns_lshl_b32 s54, s44, 6\ns_add_u32 s52, s52, s54")
            e(f"s_cmp_eq_u32 s53, 1.0\ns_cbranch_scc1 {L(f'nosc{p}')}\nv_mov_b32 v6, s53")
            for j in range(mt):
                for t_ in (acc(2 * p, j), acc(2 * p + 1, j)):
                    for r in (0, 2): e(f"v_pk_mul_f32 {v(t_+r,2)}, {v(t_+r,2)}, v[6:7] op_sel_hi:[1,0]")
            e(f"{L(f'nosc{p}')}:")
            for j in range(mt):
                ta, tb = acc(2 * p, j), acc(2 * p + 1, j)
                d = T + 4 * (n % 8); n += 1
                pack_pair(ta, tb, d)
                e(f"buffer_store_dwordx4 {v(d,4)}, v5, s[12:15], s52 offen offset:{j*1024}{SCS}")
        e(f"s_add_u32 s35, s26, {C_QKV}")
        k.signal("qkv", 4, 35, 16, (6, lambda: e(f"s_mul_i32 s33, s26, 6\nv_add_u32 v6, s33, v2\nv_lshrrev_b32 v7, 5, v6\nv_and_b32 v6, 31, v6\nv_lshlrev_b32 v6, 8, v6"
                                                        f"\nv_lshlrev_b32 v7, 6, v7\nv_add_u32 v6, v6, v7"
                                                        f"\ns_lshl_b32 s33, s25, 2\ns_add_u32 s33, s33, {FL['att']}\nv_add_u32 v6, s33, v6")))

    elif epi == "ffn1":
        ST = FA; UU = FA + 8; BB = FA + 36; TMP = FA + 64; T = FA + 72
        e(f"s_lshl_b32 s47, s42, 6\nv_add_u32 v6, s47, v3\nv_lshlrev_b32 v6, 3, v6\nv_add_u32 v6, {XL}, v6")
        for j in range(mt): e(f"ds_read_b64 {v(ST+2*j,2)}, v6 offset:{j*128}")
        e(f"s_mul_i32 s47, s43, {TN*4}\ns_add_u32 s47, s47, {XL+1024}\nv_lshlrev_b32 v7, 4, v4\nv_add_u32 v7, s47, v7")
        for i in range(nt):
            e(f"ds_read_b128 {v(UU+4*i,4)}, v7 offset:{i*64}\nds_read_b128 {v(BB+4*i,4)}, v7 offset:{896+i*64}")
        e("s_lshl_b32 s47, s42, 6\nv_add_u32 v6, s47, v3\nv_lshlrev_b32 v6, 6, v6\nv_lshrrev_b32 v7, 1, v4\nv_lshlrev_b32 v7, 4, v7\nv_add_u32 v6, v6, v7")
        e("v_and_b32 v7, 1, v4\nv_lshlrev_b32 v5, 5, v7\nv_add_u32 v5, v5, v6")
        e("v_lshlrev_b32 v7, 10, v7\nv_add_u32 v6, v6, v7\ns_lshl_b32 s47, s43, 5\nv_add_u32 v6, s47, v6")
        e(f"s_mul_i32 s48, s25, 112\ns_mul_i32 s47, s26, 7\ns_add_u32 s48, s48, s47\ns_lshl_b32 s48, s48, 13")
        e(f"s_add_u32 s53, s48, {3*8192}")
        e("s_waitcnt lgkmcnt(0)")
        def ln(i, j, t):
            a_ = acc(i, j)
            for h_ in range(2):
                e(f"v_pk_fma_f32 {v(t+2*h_,2)}, {v(ST+2*j,2)}, {v(UU+4*i+2*h_,2)}, {v(BB+4*i+2*h_,2)} op_sel_hi:[0,1,1] neg_lo:[1,0,0] neg_hi:[1,0,0]")
            for h_ in range(2):
                e(f"v_pk_fma_f32 {v(a_+2*h_,2)}, {v(a_+2*h_,2)}, {v(ST+2*j,2)}, {v(t+2*h_,2)} op_sel:[0,1,0]")
        cnt = [0]
        def put(ta, tb, addr, soff, off):
            d = T + 4 * (cnt[0] % 4); cnt[0] += 1
            e(f"v_cvt_pk_bf16_f32 v{d}, v{ta}, v{ta+1}\nv_cvt_pk_bf16_f32 v{d+1}, v{ta+2}, v{ta+3}")
            e(f"v_cvt_pk_bf16_f32 v{d+2}, v{tb}, v{tb+1}\nv_cvt_pk_bf16_f32 v{d+3}, v{tb+2}, v{tb+3}")
            for q in range(4): e(f"v_pk_max_i16 v{d+q}, v{d+q}, 0")
            e(f"v_permlane16_swap_b32 v{d}, v{d+2}\nv_permlane16_swap_b32 v{d+1}, v{d+3}")
            e(f"buffer_store_dwordx4 {v(d,4)}, {addr}, s[12:15], {soff} offen offset:{off}{SCS}")
        XA = 139264; XR = T + 16
        e(f"s_lshl_b32 s47, s24, 10\nv_lshlrev_b32 v7, 4, v2\nv_add_u32 v7, s47, v7\nv_add_u32 v7, {XA}, v7")
        e(f"s_cmp_eq_u32 s43, 1\ns_cbranch_scc1 {L('ep1')}")
        for wn_ in range(2):
            if wn_ == 1: e(f"{L('ep1')}:\ns_add_u32 s48, s48, {4*8192}")
            single = 6 if wn_ == 0 else 0
            pairs = [(0, 1), (2, 3), (4, 5)] if wn_ == 0 else [(1, 2), (3, 4), (5, 6)]
            mine = (0, 1) if wn_ == 0 else (2, 3); give = (2, 3) if wn_ == 0 else (0, 1)
            for jj in (0, 2):
                ln(single, jj, TMP); ln(single, jj + 1, TMP + 4)
            for j in range(4):
                a_ = acc(single, j)
                e(f"v_cvt_pk_bf16_f32 v{XR+2*j}, v{a_}, v{a_+1}\nv_cvt_pk_bf16_f32 v{XR+2*j+1}, v{a_+2}, v{a_+3}")
            for q in range(8): e(f"v_pk_max_i16 v{XR+q}, v{XR+q}, 0")
            e(f"ds_write_b128 v7, {v(XR+2*give[0],4)}\ns_waitcnt lgkmcnt(0)")
            e(f"s_lshl_b32 s47, s24, 2\ns_add_u32 s47, s47, {CTL+48}\nv_mov_b32 v{TMP}, s47\nv_mov_b32 v{TMP+1}, 1\nds_write_b32 v{TMP}, v{TMP+1}")
            for pi, (ia, ib) in enumerate(pairs):
                for j in range(mt):
                    ln(ia, j, TMP); ln(ib, j, TMP + 4)
                    put(acc(ia, j), acc(ib, j), "v5", "s48", j * 1024)
                if pi < 2: e("s_add_u32 s48, s48, 8192")
            tg = f"x{wn_}"
            e(f"s_xor_b32 s47, s24, 1\ns_lshl_b32 s47, s47, 2\ns_add_u32 s47, s47, {CTL+48}\nv_mov_b32 v{TMP}, s47\ns_mov_b32 s33, 0")
            e(f"{L('xw'+tg)}:\nds_read_b32 v{TMP+1}, v{TMP}\ns_waitcnt lgkmcnt(0)\nv_readfirstlane_b32 s34, v{TMP+1}")
            e(f"s_cmp_lg_u32 s34, 0\ns_cbranch_scc1 {L('xx'+tg)}\ns_add_u32 s33, s33, 1\ns_cmp_lt_u32 s33, {SPIN_MAX}\ns_cbranch_scc1 {L('xw'+tg)}")
            e(f"{L('xx'+tg)}:")
            e(f"v_xor_b32 v7, 1024, v7\nds_read_b128 {v(TMP,4)}, v7\ns_waitcnt lgkmcnt(0)")
            for n_, j in enumerate(mine):
                d = T + 4 * (cnt[0] % 4); cnt[0] += 1
                own = XR + 2 * j; oth = TMP + 2 * n_
                a0, b0 = (own, oth) if wn_ == 0 else (oth, own)
                e(f"v_mov_b32 v{d}, v{a0}\nv_mov_b32 v{d+1}, v{a0+1}\nv_mov_b32 v{d+2}, v{b0}\nv_mov_b32 v{d+3}, v{b0+1}")
                e(f"v_permlane16_swap_b32 v{d}, v{d+2}\nv_permlane16_swap_b32 v{d+1}, v{d+3}")
                e(f"buffer_store_dwordx4 {v(d,4)}, v5, s[12:15], s53 offen offset:{j*1024}{SCS}")
            if wn_ == 0: e(f"s_branch {L('ep2')}")
        e(f"{L('ep2')}:")
        if "stf1" in OPT: k.st(12)
        e(f"s_add_u32 s35, s25, {C_F1}")
        k.signal("f1", 4, 35, 16, (16, lambda: e(f"s_lshl_b32 s33, s25, 11\ns_lshl_b32 s34, s26, 2\ns_add_u32 s33, s33, s34\ns_add_u32 s33, s33, {FL['f2']}\nv_lshlrev_b32 v6, 7, v2\nv_add_u32 v6, s33, v6")) if "nos2" in OPT else
                 (1, lambda: e(f"s_lshl_b32 s33, s25, 1\ns_lshr_b32 s34, s26, 3\ns_add_u32 s33, s33, s34\ns_lshl_b32 s33, s33, 7\ns_and_b32 s34, s26, 7\ns_lshl_b32 s34, s34, 2\ns_add_u32 s33, s33, s34\ns_add_u32 s33, s33, {FL['f2']}\nv_mov_b32 v6, s33")))
        if "stf1" in OPT: k.st(13)
    elif s2:
        e(f"s_cmp_eq_u32 s27, 0\ns_cbranch_scc1 {L('noswap')}")
        for j in range(mt):
            for r in range(8): e(f"v_swap_b32 v{acc(0,j)+r}, v{acc(2,j)+r}")
        e(f"{L('noswap')}:")
        k.srd(56, P_WS, WS_XCH, 128 * 2 * 4 * 8192)
        e("s_lshl_b32 s47, s25, 3\ns_add_u32 s47, s47, s26\ns_lshl_b32 s47, s47, 1")
        e("s_xor_b32 s48, s27, 1\ns_add_u32 s48, s48, s47\ns_lshl_b32 s49, s48, 2\ns_add_u32 s49, s49, s24\ns_lshl_b32 s49, s49, 13")
        e("s_add_u32 s52, s47, s27\ns_lshl_b32 s53, s52, 2\ns_add_u32 s53, s53, s24\ns_lshl_b32 s53, s53, 13")
        e("v_lshlrev_b32 v7, 4, v2")
        xb = "xchbf16" in OPT
        if xb:
            for j in range(mt):
                a2 = acc(2, j)
                for q in range(4): e(f"v_cvt_pk_bf16_f32 v{a2+q}, v{a2+2*q}, v{a2+2*q+1}")
                e(f"buffer_store_dwordx4 {v(a2,4)}, v7, s[56:59], s49 offen offset:{j*1024}{SCS}")
            e("s_waitcnt vmcnt(4)")
        else:
            for j in range(mt):
                if j == 2: e("s_add_u32 s49, s49, 4096")
                e(f"buffer_store_dwordx4 {v(acc(2,j),4)}, v7, s[56:59], s49 offen offset:{(j%2)*2048}{SCS}")
                e(f"buffer_store_dwordx4 {v(acc(3,j),4)}, v7, s[56:59], s49 offen offset:{(j%2)*2048+1024}{SCS}")
            e("s_waitcnt vmcnt(8)")
        XT = T + 32
        for r in range(0 if CHAIN() else 8):
            e(f"v_add_f32 v{G+r}, v{G+r}, v{G+8+r}\nv_add_f32 v{G+16+r}, v{G+16+r}, v{G+24+r}\nv_add_f32 v{G+r}, v{G+r}, v{G+16+r}")
            round_bf16(e, G + r)
        for j in range(mt):
            for i in range(2):
                a0 = acc(i, j); x0 = EP + 4 * j + 2 * i
                for q in range(2):
                    e(f"v_lshlrev_b32 v{XT+2*q}, 16, v{x0+q}\nv_and_b32 v{XT+2*q+1}, 0xffff0000, v{x0+q}")
                for q in range(2):
                    e(f"v_pk_fma_f32 {v(a0+2*q,2)}, {v(a0+2*q,2)}, {v(G+4*i+2*q,2)}, {v(XT+2*q,2)}")
        e(f"v_add_u32 v6, s44, v3\nv_lshlrev_b32 v6, 11, v6\ns_lshl_b32 s47, s46, 1\nv_add_u32 v6, s47, v6\nv_add_u32 v5, v5, v6")
        e("s_waitcnt vmcnt(0)")
        e(f"s_lshl_b32 s48, s48, 7\ns_lshl_b32 s54, s24, 2\ns_add_u32 s48, s48, s54\ns_add_u32 s48, s48, {FL['xch']}\nv_mov_b32 v6, s48\nv_mov_b32 v249, 1")
        e(f"s_mov_b64 exec, 1\nbuffer_store_dword v249, v6, {s(CNT,4)}, 0 offen sc1\ns_mov_b64 exec, -1")
        e(f"s_lshl_b32 s52, s52, 7\ns_add_u32 s52, s52, s54\ns_add_u32 s52, s52, {FL['xch']}\nv_mov_b32 v6, s52\ns_mov_b32 s33, 0\ns_mov_b64 exec, 1")
        e(f"{L('xpoll')}:")
        e(f"buffer_load_dword v249, v6, {s(CNT,4)}, 0 offen sc1\ns_waitcnt vmcnt(0)\nv_readfirstlane_b32 s34, v249")
        e(f"s_cmp_eq_u32 s34, 1\ns_cbranch_scc1 {L('xdone')}\ns_add_u32 s33, s33, 1\ns_cmp_lt_u32 s33, {SPIN_MAX}\ns_cbranch_scc1 {L('xpoll')}")
        e(f"{L('xdone')}:\ns_mov_b64 exec, -1")
        for j in range(mt):
            if xb:
                e(f"buffer_load_dwordx4 {v(acc(2,j)+4,4)}, v7, s[56:59], s53 offen offset:{j*1024}{SC}")
                continue
            if j == 2: e("s_add_u32 s53, s53, 4096")
            e(f"buffer_load_dwordx4 {v(acc(2,j),4)}, v7, s[56:59], s53 offen offset:{(j%2)*2048}{SC}")
            e(f"buffer_load_dwordx4 {v(acc(3,j),4)}, v7, s[56:59], s53 offen offset:{(j%2)*2048+1024}{SC}")
        for j in range(mt):
            e(f"s_waitcnt vmcnt({(1 if xb else 2)*(mt-1-j) + j})")
            e(f"s_mov_b32 s48, {j*16*2048}")
            d = T + 4 * (j % 2)
            if xb:
                src = acc(2, j) + 4
                for q in range(2): e(f"v_lshlrev_b32 v{acc(2,j)+2*q}, 16, v{src+q}\nv_and_b32 v{acc(2,j)+2*q+1}, 0xffff0000, v{src+q}")
                for q in range(2): e(f"v_lshlrev_b32 v{XT+2*q}, 16, v{src+2+q}\nv_and_b32 v{XT+2*q+1}, 0xffff0000, v{src+2+q}")
                for q in range(2):
                    e(f"v_pk_fma_f32 {v(acc(0,j)+2*q,2)}, {v(acc(2,j)+2*q,2)}, {v(G+2*q,2)}, {v(acc(0,j)+2*q,2)}")
                    e(f"v_pk_fma_f32 {v(acc(1,j)+2*q,2)}, {v(XT+2*q,2)}, {v(G+4+2*q,2)}, {v(acc(1,j)+2*q,2)}")
            else:
                for i in range(2):
                    for q in range(2):
                        e(f"v_pk_fma_f32 {v(acc(i,j)+2*q,2)}, {v(acc(2+i,j)+2*q,2)}, {v(G+4*i+2*q,2)}, {v(acc(i,j)+2*q,2)}")
            pack_pair(acc(0, j), acc(1, j), d)
            e(f"buffer_store_dwordx4 {v(d,4)}, v5, s[12:15], s48 offen{' sc1' if 'outsc1' in OPT else ('' if 'outplain' in OPT else ' nt')}")
    else:
        if not CHAIN():
            ML = 135168
            e(f"s_lshl_b32 s47, s43, 7\nv_lshlrev_b32 v6, 4, v4\nv_add_u32 v6, s47, v6\nv_add_u32 v6, {ML}, v6")
            for i in range(nt):
                e(f"ds_read_b128 {v(G+4*i,4)}, v6 offset:{i*64}\nds_read_b128 {v(GG+4*i,4)}, v6 offset:{256+i*64}")
            e(f"v_mul_u32_u24 v6, {(65536+27)//28}, v2\nv_lshrrev_b32 v6, 16, v6\nv_min_u32 v6, 1, v6\ns_lshl_b32 s47, s24, 4\nv_add_u32 v6, s47, v6\nv_lshlrev_b32 v6, 2, v6\nv_add_u32 v6, {ML+512}, v6")
            for i in range(8):
                e(f"ds_read_b32 v{W1R+32+i}, v6 offset:{i*8}\nds_read_b32 v{W1R+40+i}, v6 offset:{256+i*8}")
            e("s_waitcnt lgkmcnt(0)")
        e("s_waitcnt vmcnt(0)")
        XT = T + 32
        e(f"v_add_u32 v6, s44, v3\nv_lshlrev_b32 v6, 11, v6\ns_lshl_b32 s47, s46, 1\nv_add_u32 v6, s47, v6\nv_add_u32 v5, v5, v6")
        if epi == "wo":
            k.srd(16, P_WS, WS_XG, S * D * 2); k.srd(60, P_WS, WS_STAT, 32 * S * 8)
            if CHAIN():
                for r in range(4 * nt):
                    e(f"v_add_f32 v{GG+r}, 1.0, v{GG+r}"); round_bf16(e, GG + r)
            e(f"s_lshl_b32 s49, s26, 1\ns_add_u32 s49, s49, s43\ns_lshl_b32 s49, s49, 14\ns_lshl_b32 s50, s44, 3\ns_add_u32 s49, s49, s50")
            e("v_lshlrev_b32 v1, 3, v3\nv_and_b32 v6, 1, v4\nv_lshlrev_b32 v6, 2, v6\nv_add_u32 v1, v1, v6")
            e("s_lshl_b32 s47, s25, 4\ns_add_u32 s47, s47, s26\ns_lshl_b32 s47, s47, 2\ns_add_u32 s47, s47, s24\ns_lshl_b32 s47, s47, 12\nv_lshlrev_b32 v7, 4, v2\nv_mov_b32 v253, v7")
        for j in range(mt):
            e(f"s_mov_b32 s48, {j*16*2048}")
            d = T + 4 * (j % 2); d2 = T + 8 + 4 * (j % 2); SM = T + 16 + 4 * (j % 2)
            for i in range(nt):
                a0 = acc(i, j); x0 = EP + 2 * (j * nt + i)
                for q in range(2):
                    e(f"v_lshlrev_b32 v{XT+2*q}, 16, v{x0+q}\nv_and_b32 v{XT+2*q+1}, 0xffff0000, v{x0+q}")
                for q in range(2):
                    e(f"v_pk_fma_f32 {v(a0+2*q,2)}, {v(a0+2*q,2)}, {v(G+4*i+2*q,2)}, {v(XT+2*q,2)}")
            ta, tb = acc(0, j), acc(1, j)
            if epi == "ffn2":
                e(f"v_cvt_pk_bf16_f32 v{d}, v{ta}, v{ta+1}\nv_cvt_pk_bf16_f32 v{d+1}, v{ta+2}, v{ta+3}")
                e(f"v_cvt_pk_bf16_f32 v{d+2}, v{tb}, v{tb+1}\nv_cvt_pk_bf16_f32 v{d+3}, v{tb+2}, v{tb+3}")
                e(f"v_permlane16_swap_b32 v{d}, v{d+2}\nv_permlane16_swap_b32 v{d+1}, v{d+3}")
                e(f"buffer_store_dwordx4 {v(d,4)}, v5, s[12:15], s48 offen")
                continue
            for q in range(2):
                e(f"v_pk_mul_f32 {v(XT+2*q,2)}, {v(ta+2*q,2)}, {v(GG+2*q,2)}\nv_pk_mul_f32 {v(XT+4+2*q,2)}, {v(tb+2*q,2)}, {v(GG+4+2*q,2)}")
            for q in range(4): e(f"v_cvt_pk_bf16_f32 v{d2+q}, v{XT+2*q}, v{XT+2*q+1}")
            e(f"v_permlane16_swap_b32 v{d2}, v{d2+2}\nv_permlane16_swap_b32 v{d2+1}, v{d2+3}")
            e(f"buffer_store_dwordx4 {v(d2,4)}, v5, s[16:19], s48 offen{SCS}")
        for j in range(mt if epi == "wo" else 0):
            d = T + 4 * (j % 2); SM = T + 16 + 4 * (j % 2)
            ta, tb = acc(0, j), acc(1, j)
            e(f"v_cvt_pk_bf16_f32 v{d}, v{ta}, v{ta+1}\nv_cvt_pk_bf16_f32 v{d+1}, v{ta+2}, v{ta+3}")
            e(f"v_cvt_pk_bf16_f32 v{d+2}, v{tb}, v{tb+1}\nv_cvt_pk_bf16_f32 v{d+3}, v{tb+2}, v{tb+3}")
            e(f"buffer_store_dwordx4 {v(d,4)}, v253, s[12:15], s47 offen offset:{j*1024}{SCS}")
            e(f"v_pk_add_f32 {v(SM,2)}, {v(ta,2)}, {v(ta+2,2)}\nv_pk_mul_f32 {v(SM+2,2)}, {v(ta,2)}, {v(ta,2)}")
            e(f"v_pk_add_f32 {v(SM,2)}, {v(SM,2)}, {v(tb,2)}\nv_pk_fma_f32 {v(SM+2,2)}, {v(ta+2,2)}, {v(ta+2,2)}, {v(SM+2,2)}")
            e(f"v_pk_add_f32 {v(SM,2)}, {v(SM,2)}, {v(tb+2,2)}\nv_pk_fma_f32 {v(SM+2,2)}, {v(tb,2)}, {v(tb,2)}, {v(SM+2,2)}")
            e(f"v_pk_fma_f32 {v(SM+2,2)}, {v(tb+2,2)}, {v(tb+2,2)}, {v(SM+2,2)}")
            e(f"v_add_f32 v{SM}, v{SM}, v{SM+1}\nv_add_f32 v{SM+2}, v{SM+2}, v{SM+3}")
            e(f"v_permlane16_swap_b32 v{SM}, v{SM+2}\nv_add_f32 v{SM}, v{SM}, v{SM+2}\nv_mov_b32 v{SM+1}, v{SM}")
            e(f"v_permlane32_swap_b32 v{SM}, v{SM+1}\nv_add_f32 v{SM}, v{SM}, v{SM+1}")
            e(f"s_mov_b32 exec_lo, -1\ns_mov_b32 exec_hi, 0\nbuffer_store_dword v{SM}, v1, s[60:63], s49 offen offset:{j*128}{SCS}\ns_mov_b64 exec, -1")
        if epi == "wo":
            if "stwo" in OPT: k.st(12)
            e(f"s_add_u32 s35, s25, {C_WO}")
            k.signal("wo", 4, 35, 16, (4, lambda: e(f"s_lshl_b32 s33, s25, 9\ns_lshl_b32 s34, s26, 2\ns_add_u32 s33, s33, s34\ns_add_u32 s33, s33, {FL['f1']}\nv_lshlrev_b32 v6, 7, v2\nv_add_u32 v6, s33, v6")), younger=8)
            k.signal("wo2", 4, 35, 16, (4, lambda: e(f"s_lshl_b32 s33, s25, 9\ns_lshl_b32 s34, s26, 2\ns_add_u32 s33, s33, s34\ns_add_u32 s33, s33, {FL['f1b']}\nv_lshlrev_b32 v6, 7, v2\nv_add_u32 v6, s33, v6")))
            if "stwo" in OPT: k.st(13)
            UA = ACC
            for r in range(16): e(f"v_mov_b32 v{UA+r}, 0")
            for i in range(8):
                g_ = W1R + 32 + i; s_ = W1R + 40 + i
                if CHAIN():
                    e(f"v_add_f32 v{g_}, 1.0, v{g_}"); round_bf16(e, g_)
                for q in range(4):
                    w_ = W1R + 4 * i + q
                    e(f"v_lshlrev_b32 v6, 16, v{w_}\nv_and_b32 v7, 0xffff0000, v{w_}")
                    e(f"v_fmac_f32 v{UA+2*q}, v{g_}, v6\nv_fmac_f32 v{UA+2*q+1}, v{g_}, v7\nv_fmac_f32 v{UA+8+2*q}, v{s_}, v6\nv_fmac_f32 v{UA+8+2*q+1}, v{s_}, v7")
            UL = 139264
            e(f"v_mul_u32_u24 v5, {(65536+27)//28}, v2\nv_lshrrev_b32 v5, 16, v5\nv_mul_u32_u24 v6, 28, v5\nv_sub_u32 v6, v2, v6")
            e(f"s_lshl_b32 s32, s24, 1\nv_add_u32 v5, s32, v5\nv_mul_u32_u24 v5, 1792, v5\nv_lshlrev_b32 v6, 5, v6\nv_add_u32 v5, v5, v6\nv_add_u32 v5, {UL}, v5")
            e("v_cmp_gt_u32 vcc, 56, v2\ns_and_saveexec_b64 s[34:35], vcc")
            e(f"ds_write_b128 v5, {v(UA,4)}\nds_write_b128 v5, {v(UA+4,4)} offset:16\nds_write_b128 v5, {v(UA+8,4)} offset:896\nds_write_b128 v5, {v(UA+12,4)} offset:912")
            e("s_mov_b64 exec, s[34:35]\ns_waitcnt lgkmcnt(0)")
            e(f"v_mov_b32 v6, {L_SIG['ub']}\nv_mov_b32 v7, 1\ns_mov_b64 exec, 1")
            e("ds_add_rtn_u32 v7, v6, v7\ns_waitcnt lgkmcnt(0)\nv_readfirstlane_b32 s32, v7\ns_mov_b64 exec, -1")
            e(f"s_cmp_lg_u32 s32, 3\ns_cbranch_scc1 {L('ubx')}")
            e(f"v_lshlrev_b32 v5, 2, v2\nv_add_u32 v5, {UL}, v5")
            for m_ in range(7):
                for rr in range(8): e(f"ds_read_b32 v{UA+rr}, v5 offset:{rr*1792+m_*256}")
                e("s_waitcnt lgkmcnt(0)")
                for rr in range(1, 8): e(f"v_add_f32 v{UA}, v{UA}, v{UA+rr}")
                e(f"v_mov_b32 v{UA+16+m_}, v{UA}")
            k.srd(16, P_WS, WS_UB, 16 * 2 * DFF * 4)
            e(f"s_mul_i32 s49, s58, {2*DFF*4}\ns_mul_i32 s50, s59, 896\ns_add_u32 s49, s49, s50")
            for m_ in range(7):
                e(f"v_add_u32 v5, {64*m_}, v2\nv_cmp_le_u32 vcc, 224, v5\nv_mov_b32 v6, {DFF*4 - 896}\nv_cndmask_b32 v6, 0, v6, vcc\nv_lshl_add_u32 v5, v5, 2, v6")
                e(f"buffer_store_dword v{UA+16+m_}, v5, s[16:19], s49 offen{SCS}")
            e("s_waitcnt vmcnt(0)")
            e(f"s_add_u32 s35, s59, {C_UB}\ns_mov_b64 exec, 1")
            k.arrive("ub", 35, 16)
            e("s_mov_b64 exec, -1")
            e(f"{L('ubx')}:")
    e(f"s_branch {nxt_c}")
    e(f"{L('l')}:")
    if s2: tile_map_s2(e)
    else: tile_map(e, xr, xc)
    k.srd(4, P_WS, srcA, sizeA); k.srd(8, pB, 0, sizeB)
    e("s_sub_u32 s42, s24, 4")
    LA = 8
    wblk = s2 and "w2blk" in OPT
    if wblk: ldb = 128
    lda2, ldb2 = lda * 2, ldb * 2
    blocked = epi in ("ffn2", "ffn2s")
    if blocked:
        e(f"s_mul_i32 s43, s25, {112*8192}\ns_mul_i32 s44, s42, {nAw*8*64}\ns_add_u32 s43, s43, s44")
        e("v_lshrrev_b32 v3, 3, v2\nv_lshlrev_b32 v3, 6, v3\nv_add_u32 v3, s43, v3")
        e("v_and_b32 v4, 7, v2\nv_lshrrev_b32 v5, 4, v2")
        for i in range(nAw):
            e(f"v_xor_b32 v6, {(i&1)*4}, v5\nv_xor_b32 v6, v6, v4\nv_lshrrev_b32 v7, 2, v6\nv_lshlrev_b32 v7, 13, v7\nv_and_b32 v6, 3, v6\nv_lshlrev_b32 v6, 4, v6")
            e(f"v_add3_u32 v6, v6, v7, v3\nv_add_u32 v{LA+i}, {i*8*64}, v6")
    else:
        e(f"s_lshl_b32 s43, s25, 7\ns_mul_i32 s44, s42, {nAw*8}\ns_add_u32 s43, s43, s44")
        e(f"v_lshrrev_b32 v3, 3, v2\nv_add_u32 v3, s43, v3\ns_mov_b32 s45, {lda2}\nv_mul_lo_u32 v3, s45, v3")
        e("v_and_b32 v4, 7, v2\nv_lshrrev_b32 v5, 4, v2")
        for i in range(nAw):
            e(f"v_xor_b32 v6, {(i&1)*4}, v5\nv_xor_b32 v6, v6, v4\nv_lshlrev_b32 v6, 4, v6\nv_add_u32 v6, v6, v3")
            e(f"v_add_u32 v{LA+i}, {i*8*lda2}, v6")
    ASTEP = 16384 if blocked else BK * 2
    magic = (65536 + cpr - 1) // cpr
    assert all((p * magic) >> 16 == p // cpr for p in range(nBw * 64)) and nBw * 64 == 16 * cpr
    e(f"s_mul_i32 s43, s42, {16*ldb2}\ns_mul_i32 s44, s26, {K*256 if wblk else (128 if perm else BN*2)}\ns_add_u32 s43, s43, s44")
    for i in range(nBw):
        e(f"v_add_u32 v3, {i*64}, v2\nv_mul_u32_u24 v4, {magic}, v3\nv_lshrrev_b32 v4, 16, v4")
        e(f"v_mul_u32_u24 v5, {cpr}, v4\nv_sub_u32 v3, v3, v5")
        if hbits == 2: e("v_and_b32 v5, 2, v4\nv_lshrrev_b32 v6, 1, v4\nv_and_b32 v6, 4, v6\nv_or_b32 v5, v5, v6")
        elif hbits == 1: e("v_lshrrev_b32 v5, 2, v4\nv_and_b32 v5, 2, v5")
        else: e("v_and_b32 v5, 3, v4\nv_lshrrev_b32 v6, 1, v4\nv_and_b32 v6, 4, v6\nv_or_b32 v5, v5, v6\nv_lshlrev_b32 v5, 1, v5")
        e("v_xor_b32 v3, v3, v5")
        if perm: e("v_lshrrev_b32 v5, 3, v3\nv_and_b32 v3, 7, v3\nv_lshlrev_b32 v5, 7, v5\nv_add_u32 v3, v3, v5")
        e(f"v_lshlrev_b32 v3, 4, v3\ns_mov_b32 s45, {ldb2}\nv_mul_lo_u32 v4, s45, v4\nv_add_u32 v3, v3, v4")
        e(f"v_add_u32 v{LA+nAw+i}, s43, v3")
    e(f"s_mul_i32 s46, s42, {nAw*1024}")
    e(f"s_mul_i32 s47, s42, {nBw*1024}\ns_add_u32 s47, s47, {nA*1024}")
    def issue_x(lds_s, off_s):
        for i in range(nAw):
            e(f"s_add_u32 m0, {lds_s}, {i*1024}")
            e(f"buffer_load_dwordx4 v{LA+i}, s[4:7], {off_s} offen{asc} lds")
    def issue_w(lds_s, off_s):
        for i in range(nBw):
            e(f"s_add_u32 m0, {lds_s}, {i*1024}")
            e(f"buffer_load_dwordx4 v{LA+nAw+i}, s[8:11], {off_s} offen lds")
    if s2: e(f"s_mul_i32 s62, s27, {nk*ASTEP}\ns_mul_i32 s63, s27, {nk*BK*ldb2}")
    else: e("s_mov_b32 s62, 0\ns_mov_b32 s63, 0")
    def w_prologue():
        for st in range(NS - 1):
            e(f"s_add_u32 s52, s47, {st*SB}\ns_add_u32 s49, s63, {st*BK*ldb2}")
            issue_w("s52", "s49")
    if dep:
        base, target, kind = dep
        e(f"s_lshr_b32 s35, s25, 1\ns_add_u32 s35, s35, {base}" if kind == "rb2" else f"s_add_u32 s35, s25, {base}")
        if "wfirst" in OPT:
            w_prologue()
            k.dep_wait_loaders(tag, 35, target, None)
        else:
            if hbar and "single" in OPT: g_loader(k)
            e(f"s_cmp_eq_u32 s24, 4\ns_cbranch_scc1 {L('w4a')}")
            w_prologue()
            e(f"{L('w4a')}:")
            if hbar and "nowq" not in OPT:
                e(f"s_cmp_eq_u32 s24, 4\ns_cbranch_scc1 {L('nowqpf')}")
                e("s_mul_i32 s43, s2, 3\ns_add_u32 s43, s43, s24\ns_sub_u32 s43, s43, 5\ns_lshl_b32 s43, s43, 13\nv_lshlrev_b32 v3, 7, v2")
                e("buffer_load_dword v253, v3, s[8:11], s43 offen")
                e(f"{L('nowqpf')}:")
            if hbar and "single" in OPT: e("s_barrier")
            if hbar: e("s_barrier")
            k.dep_wait_loaders(tag, 35, target, None)
            e(f"s_cmp_lg_u32 s24, 4\ns_cbranch_scc1 {L('w4b')}")
            w_prologue()
            e(f"{L('w4b')}:")
        if tag == "f1" and "stwo" in OPT: k.st(14, 4)
        if tag == "wo" and "statt" in OPT: k.st(15, 4)
        if tag == "f2" and "stf1" in OPT: k.st(14, 4)
    else:
        w_prologue()
    for st in range(NS - 1):
        e(f"s_add_u32 s51, s46, {st*SB}\ns_add_u32 s48, s62, {st*ASTEP}")
        issue_x("s51", "s48")
    e(f"s_add_u32 s48, s62, {(NS-1)*ASTEP}\ns_add_u32 s49, s63, {(NS-1)*BK*ldb2}\ns_mov_b32 s50, {(NS-1)*SB}")
    def issue():
        e("s_add_u32 s51, s50, s46\ns_add_u32 s52, s50, s47")
        issue_x("s51", "s48"); issue_w("s52", "s49")
        e(f"s_add_u32 s48, s48, {ASTEP}\ns_add_u32 s49, s49, {BK*ldb2}")
        e(f"s_add_u32 s50, s50, {SB}\ns_cmp_eq_u32 s50, {SB*NS}\ns_cselect_b32 s50, 0, s50")
    if ("lprio" in OPT): e("s_setprio 2")
    e(f"s_waitcnt vmcnt({nAw*(NS-2)})\ns_barrier")
    issue()
    e(f"s_waitcnt vmcnt({nAw*(NS-3) + nld})\ns_barrier" if NS >= 3 else "")
    issue()
    for t in range(2, NS - 1):
        e(f"s_waitcnt vmcnt({nAw*(NS-2-t) + nld*t})\ns_barrier")
        issue()
    done = max(2, NS - 1)
    e(f"s_mov_b32 s53, {nk-(NS-1)-done}")
    e(f"{L('lloop')}:")
    e(f"s_waitcnt vmcnt({nld*(NS-2)})\ns_barrier")
    issue()
    e(f"s_sub_u32 s53, s53, 1\ns_cmp_lg_u32 s53, 0\ns_cbranch_scc1 {L('lloop')}")
    if ("lprio" in OPT): e("s_setprio 0")
    nx = 0
    for t in range(NS - 1):
        e(f"s_waitcnt vmcnt({nld*(NS-2-t)+nx})\ns_barrier")
        if epi == "qkv" and t == 0 and "modall" not in OPT and "mrwo" not in OPT:
            nx = 16
            e(f"s_load_dwordx4 s[36:39], s[0:1], {KA_C}")
            e("s_and_b32 s58, s2, 3\ns_lshr_b32 s59, s2, 2\ns_add_u32 s59, s59, 32\ns_mov_b32 s64, s58\ns_mov_b32 s65, s59")
            e("v_subrev_u32 v3, 256, v0\nv_lshrrev_b32 v6, 3, v3\nv_and_b32 v7, 7, v3\nv_mov_b32 v22, v7")
            e("s_lshl_b32 s43, s58, 8\nv_add_u32 v6, s43, v6\nv_lshlrev_b32 v4, 1, v6")
            e("v_mul_u32_u24 v5, 12288, v6\nv_lshlrev_b32 v6, 4, v7\nv_add_u32 v5, v5, v6\ns_lshl_b32 s43, s59, 7\nv_add_u32 v5, s43, v5")
            e("s_waitcnt lgkmcnt(0)")
            k.srd(52, 36, 0, 2048); k.srd(60, 38, 0, 1024 * 6144 * 2)
            for i in range(8): e(f"buffer_load_ushort v{24+i}, v4, s[52:55], 0 offen offset:{i*64}")
            for i in range(8):
                e(f"s_mov_b32 s43, {i*32*12288}\nbuffer_load_dwordx4 {v(32+4*i,4)}, v5, s[60:63], s43 offen")
        if epi == "ffn1" and t == 0:
            nx = 32
            k.srd(56, P_WS, WS_STAT, 32 * S * 8); k.srd(60, P_WS, WS_UB, 16 * 2 * DFF * 4)
            e(f"s_cmp_ge_u32 s42, 2\ns_cbranch_scc1 {L('ubld')}")
            e(f"s_lshl_b32 s34, s25, 2\ns_lshr_b32 s33, s26, 2\ns_add_u32 s34, s34, s33\ns_lshl_b32 s34, s34, 7\ns_add_u32 s34, s34, {FL['f1b']}")
            k.wait_flags("f1b", 16, 34)
            e(f"s_lshl_b32 s43, s42, 6\nv_add_u32 v3, s43, v2\ns_lshl_b32 s44, s25, 7\nv_add_u32 v4, s44, v3\nv_lshlrev_b32 v4, 3, v4")
            for sl in range(32):
                e(f"s_mov_b32 s45, {sl*S*8}\nbuffer_load_dwordx2 {v(32+2*sl,2)}, v4, s[56:59], s45 offen{SC}")
            e(f"s_branch {L('ldd')}")
            e(f"{L('ubld')}:")
            e(f"s_add_u32 s35, s26, {C_UB}")
            k.poll(tag + "u", 35, 16)
            if "alias" in OPT:
                e(f"v_mov_b32 v6, {C_ATTALL*256 - 128}")
                k.poll(tag + "a", None, 256)
            e(f"s_sub_u32 s43, s42, 2\ns_lshl_b32 s43, s43, 6\nv_add_u32 v3, s43, v2")
            e(f"s_mul_i32 s44, s26, {BN*4}\nv_lshlrev_b32 v4, 3, v3\nv_add_u32 v4, s44, v4")
            for kg in range(16):
                for w_ in range(2):
                    e(f"s_mov_b32 s45, {(kg*2+w_)*DFF*4}\nbuffer_load_dwordx2 {v(32+4*kg+2*w_,2)}, v4, s[60:63], s45 offen{SC}")
            e(f"{L('ldd')}:")
    if epi == "ffn1":
        e("s_waitcnt vmcnt(0)")
        e(f"s_cmp_ge_u32 s42, 2\ns_cbranch_scc1 {L('ubred')}")
        for sl in range(1, 32): e(f"v_add_f32 v32, v32, v{32+2*sl}\nv_add_f32 v33, v33, v{33+2*sl}")
        e(f"v_mul_f32 v32, {f32(1/1024)}, v32\nv_mul_f32 v33, {f32(1/1024)}, v33")
        e(f"v_fma_f32 v33, -v32, v32, v33\nv_max_f32 v33, 0, v33\nv_add_f32 v33, {f32(1e-5)}, v33\nv_rsq_f32 v33, v33")
        e("v_mul_f32 v32, v32, v33")
        e(f"v_lshlrev_b32 v4, 3, v3\nv_add_u32 v4, {XL}, v4\nds_write_b64 v4, v[32:33]")
        e(f"s_branch {L('redd')}")
        e(f"{L('ubred')}:")
        for kg in range(1, 16):
            for q in range(4): e(f"v_add_f32 v{32+q}, v{32+q}, v{32+4*kg+q}")
        e(f"v_lshlrev_b32 v4, 3, v3\nv_add_u32 v4, {XL+1024}, v4\nv_cmp_gt_u32 vcc, 112, v3\ns_and_saveexec_b64 s[44:45], vcc")
        e(f"ds_write_b64 v4, v[32:33]\nds_write_b64 v4, v[34:35] offset:896\ns_mov_b64 exec, s[44:45]")
        e(f"{L('redd')}:")
        e("s_waitcnt lgkmcnt(0)")
    if epi == "qkv" and "modall" not in OPT and "mrwo" not in OPT:
        gemv_finish(k, 24, 32, 64, 72)
        MRL = 139264
        e(f"s_sub_u32 s43, s24, 4\ns_lshl_b32 s43, s43, 8\nv_lshlrev_b32 v9, 5, v22\nv_add_u32 v9, s43, v9\nv_add_u32 v9, {MRL}, v9")
        e("s_mov_b64 exec, 0xff\nds_write_b128 v9, v[64:67]\nds_write_b128 v9, v[68:71] offset:16\ns_waitcnt lgkmcnt(0)")
        e(f"v_mov_b32 v6, {L_SIG['mr']}\nv_mov_b32 v8, 1\ns_mov_b64 exec, 1\nds_add_rtn_u32 v8, v6, v8\ns_waitcnt lgkmcnt(0)\nv_readfirstlane_b32 s43, v8\ns_mov_b64 exec, -1")
        e(f"s_cmp_lg_u32 s43, 3\ns_cbranch_scc1 {L('mrx')}")
        e(f"v_lshlrev_b32 v9, 2, v2\nv_add_u32 v10, {MRL}, v9")
        for w_ in range(4): e(f"ds_read_b32 v{12+w_}, v10 offset:{w_*256}")
        e("s_waitcnt lgkmcnt(0)\nv_add_f32 v12, v12, v13\nv_add_f32 v14, v14, v15\nv_add_f32 v12, v12, v14")
        k.srd(52, P_WS, WS_MODP, 4 * 6144 * 4)
        e("s_mul_i32 s43, s64, 24576\ns_lshl_b32 s44, s65, 8\ns_add_u32 s43, s43, s44")
        e(f"buffer_store_dword v12, v9, s[52:55], s43 offen{SCS}\ns_waitcnt vmcnt(0)")
        if "nochain" in OPT:
            e(f"v_mov_b32 v6, {C_MRALL*256}\nv_mov_b32 v8, 1\ns_mov_b64 exec, 1\nbuffer_atomic_add v8, v6, {s(CNT,4)}, 0 offen sc1\ns_mov_b64 exec, -1")
        else:
            k.srd(60, P_WS, WS_MODF, 6144 * 4)
            e(f"s_sub_u32 s45, s65, 32\ns_add_u32 s45, s45, {C_MR}\ns_lshl_b32 s45, s45, 8\nv_mov_b32 v6, s45\nv_mov_b32 v8, 1\ns_mov_b64 exec, 1")
            e(f"buffer_atomic_add v8, v6, {s(CNT,4)}, 0 offen sc0 sc1\ns_waitcnt vmcnt(0)\nv_readfirstlane_b32 s45, v8\ns_mov_b64 exec, -1")
            e(f"s_cmp_lg_u32 s45, 3\ns_cbranch_scc1 {L('mrx')}")
            for p_ in range(4):
                e(f"s_add_u32 s45, s44, {p_*24576}\nbuffer_load_dword v{12+p_}, v9, s[52:55], s45 offen{SC}")
            e("s_waitcnt vmcnt(0)\nv_add_f32 v12, v12, v13\nv_add_f32 v14, v14, v15\nv_add_f32 v12, v12, v14")
            round_bf16(e, 12)
            e(f"buffer_store_dword v12, v9, s[60:63], s44 offen{SCS}\ns_waitcnt vmcnt(0)")
            e(f"v_mov_b32 v6, {C_MRALL*256}\nv_mov_b32 v8, 1\ns_mov_b64 exec, 1")
            e(f"buffer_atomic_add v8, v6, {s(CNT,4)}, 0 offen sc0 sc1\ns_waitcnt vmcnt(0)\nv_readfirstlane_b32 s45, v8\ns_mov_b64 exec, -1")
            e(f"s_cmp_lg_u32 s45, 63\ns_cbranch_scc1 {L('mrx')}")
            e(f"v_lshlrev_b32 v6, 7, v2\nv_add_u32 v6, {FL['mr']}, v6\nv_mov_b32 v8, 1\ns_mov_b64 exec, 0xff\nbuffer_store_dword v8, v6, {s(CNT,4)}, 0 offen sc1\ns_mov_b64 exec, -1")
        e(f"{L('mrx')}:")
    if epi != "qkv": e("s_barrier")
    e(f"s_branch {nxt_l}")

def attn_phase(k, nxt_c, nxt_l, pf):
    e = k.e
    L = lambda n: k.lab("att_" + n)
    old4 = "nsl3" not in OPT
    NSL = 4 if old4 else 3; KPS = 128; SBK = KPS * 64
    HB = 2 * SBK; SB = 2 * HB
    FLAG = CTL + 164 if old4 else NSL * SB
    S0 = 1 if old4 else 0
    e(f"{L('c')}:\n{L('l')}:")
    e("s_and_b32 s36, s2, 7\ns_lshr_b32 s37, s2, 3\ns_lshl_b32 s36, s36, 2\ns_lshr_b32 s38, s37, 3\ns_add_u32 s25, s36, s38")
    e("s_and_b32 s26, s37, 7")
    e("s_and_b32 s34, s24, 3\ns_lshr_b32 s27, s24, 2")
    e("s_mov_b32 s57, s34")
    e("s_lshl_b32 s40, s25, 17")
    e(f"s_add_u32 s32, s{P_WS}, {WS_QKV:#x}\ns_addc_u32 s33, s{P_WS+1}, 0\ns_add_u32 s32, s32, s40\ns_addc_u32 s33, s33, 0")
    k.srd(4, 32, 0, S * 64); k.srd(8, 32, 32 * S * 64, S * 64); k.srd(12, 32, 64 * S * 64, S * 64)
    k.srd(16, P_WS, WS_O, S * D * 2)
    QG, KH = 57, 27
    Q = 4 + 4; KF = 24; VF = 32
    NEG = 40; O = 72; LS = 104; SEL = 112
    SS = [[116, 132], [148, 164]]
    PP = [[180, 188], [196, 204]]
    AK0, AK1, AV, AN0, AN1, DK, DV = 212, 213, 214, 215, 216, 217, 218
    HH, QL = 219, 220
    T = 221
    PFD = 230
    e(f"v_and_b32 v{QL}, 31, v2\nv_lshrrev_b32 v{HH}, 5, v2")
    e(f"s_lshl_b32 s39, s26, 8\ns_lshl_b32 s40, s{QG}, 6\ns_add_u32 s39, s39, s40")
    e(f"v_lshrrev_b32 v{T}, 2, v2\ns_lshl_b32 s40, s{QG}, 5\nv_add_u32 v{T}, s40, v{T}\nv_lshlrev_b32 v{T}, 6, v{T}")
    e(f"v_and_b32 v{T+1}, 3, v2\nv_lshrrev_b32 v{T+2}, 4, v2\nv_xor_b32 v{T+1}, v{T+1}, v{T+2}\nv_lshlrev_b32 v{T+1}, 4, v{T+1}")
    e(f"v_add_u32 v{DK}, v{T}, v{T+1}")
    e(f"v_lshlrev_b32 v{DV}, 4, v2\ns_lshl_b32 s40, s{QG}, 11\nv_add_u32 v{DV}, s40, v{DV}")
    e(f"s_lshl_b32 s41, s{QG}, 11\ns_mul_i32 s40, s{KH}, {HB}\ns_add_u32 s41, s41, s40")
    e(f"s_mul_i32 s45, s{KH}, {S*32}")
    def addr_setup():
        e(f"s_mul_i32 s40, s{KH}, {HB}")
        e(f"v_lshrrev_b32 v{T}, 2, v{QL}\nv_and_b32 v{T}, 3, v{T}\nv_xor_b32 v{T}, v{T}, v{HH}\nv_lshlrev_b32 v{T}, 4, v{T}")
        e(f"v_lshlrev_b32 v{T+1}, 6, v{QL}\nv_add_u32 v{T+3}, v{T}, v{T+1}")
        e(f"v_add_u32 v{AK0}, s40, v{T+3}\nv_xor_b32 v{AK1}, 32, v{AK0}")
        e(f"v_and_b32 v{T}, 15, v2\nv_lshrrev_b32 v{T}, 2, v{T}\nv_lshlrev_b32 v{T+1}, 2, v{HH}\nv_add_u32 v{T}, v{T}, v{T+1}\nv_lshlrev_b32 v{T}, 6, v{T}")
        e(f"v_lshrrev_b32 v{T+1}, 4, v2\nv_and_b32 v{T+1}, 1, v{T+1}\nv_lshlrev_b32 v{T+1}, 5, v{T+1}\nv_add_u32 v{T}, v{T}, v{T+1}")
        e(f"v_and_b32 v{T+1}, 3, v2\nv_lshlrev_b32 v{T+1}, 3, v{T+1}\nv_add_u32 v{T}, v{T}, v{T+1}\nv_add_u32 v{T}, {SBK}, v{T}\nv_add_u32 v{AV}, s40, v{T}")
    addr_setup()
    if S0: e(f"v_add_u32 v{AK0}, {S0*SB}, v{AK0}\nv_add_u32 v{AK1}, {S0*SB}, v{AK1}\nv_add_u32 v{AV}, {S0*SB}, v{AV}\nv_add_u32 v{T+3}, {S0*SB}, v{T+3}")
    smf = "nosmf" not in OPT
    SIX = 239
    def dense_selector():
        e(f"v_lshrrev_b32 v{T}, 4, v2\nv_lshrrev_b32 v{T+1}, 2, v2\nv_xor_b32 v{T}, v{T}, v{T+1}\nv_and_b32 v{T}, 1, v{T}")
        e(f"v_cmp_eq_u32 vcc, 0, v{T}\nv_mov_b32 v{T+1}, 0x3f803f80")
        e(f"v_cndmask_b32 v{SEL}, 0, v{T+1}, vcc")
        for r in range(1, 4): e(f"v_mov_b32 v{SEL+r}, v{SEL}")
    if smf:
        e(f"v_and_b32 v{T}, 4, v2\nv_cmp_eq_u32 vcc, 0, v{T}\nv_mov_b32 v{T+1}, 0x3f803f80")
        e(f"v_cndmask_b32 v{SEL}, 0, v{T+1}, vcc\nv_cndmask_b32 v{SEL+2}, v{T+1}, 0, vcc\nv_mov_b32 v{SEL+1}, v{SEL}\nv_mov_b32 v{SEL+3}, v{SEL+2}")
        e(f"v_and_b32 v{T}, 2, v2\nv_cmp_eq_u32 vcc, 0, v{T}\nv_mov_b32 v{T+1}, 0xeeeeeeee\nv_mov_b32 v{T+2}, 0x44444444\nv_cndmask_b32 v{SIX}, v{T+1}, v{T+2}, vcc")
    else:
        dense_selector()
    def zero_acc():
        for r in range(32): e(f"v_mov_b32 v{O+r}, 0")
        for r in range(8): e(f"v_mov_b32 v{LS+r}, 0")
    zero_acc()
    for r in range(8): e(f"v_mov_b32 v{VF+r}, 0")
    for qb in range(2):
        for r in range(8): e(f"v_mov_b32 v{PP[1][qb]+r}, 0")
    e(f"s_cmp_lg_u32 s24, 4\ns_cbranch_scc1 {L('nodep')}")
    if "noflags" in OPT:
        e(f"v_lshlrev_b32 v6, 10, v2\ns_lshl_b32 s35, s25, 5\nv_add_u32 v6, s35, v6\nv_mul_u32_u24 v6, {(65536 + 191) // 192}, v6\nv_lshrrev_b32 v6, 16, v6")
        e(f"v_add_u32 v6, {C_QKV}, v6\nv_lshlrev_b32 v6, 8, v6")
        k.poll("att", None, 16, lanes=3)
    else:
        e(f"s_lshl_b32 s35, s25, 8\ns_add_u32 s35, s35, {FL['att']}")
        k.wait_flags("att", 48, 35)
    e(f"{L('nodep')}:")
    e("s_barrier")
    k.st(3)
    e(f"v_mov_b32 v{T}, {FLAG}\nv_mov_b32 v{T+1}, 0\nds_write_b32 v{T}, v{T+1}")
    e(f"v_add_u32 v{T}, s39, v{QL}\nv_lshlrev_b32 v{T}, 6, v{T}\nv_lshlrev_b32 v{T+1}, 4, v{HH}\nv_add_u32 v{T}, v{T}, v{T+1}")
    for qb in range(2):
        e(f"buffer_load_dwordx4 {v(Q+8*qb,4)}, v{T}, s[4:7], 0 offen offset:{qb*2048}{SC}")
        e(f"buffer_load_dwordx4 {v(Q+8*qb+4,4)}, v{T}, s[4:7], 0 offen offset:{qb*2048+32}{SC}")
    def dma(slot_sreg):
        e(f"s_add_u32 s43, {slot_sreg}, s41\ns_add_u32 s46, s42, s45")
        e(f"s_mov_b32 m0, s43\nbuffer_load_dwordx4 v{DK}, s[8:11], s46 offen{SC} lds")
        e(f"s_add_u32 m0, s43, {SBK}\nbuffer_load_dwordx4 v{DV}, s[12:15], s46 offen{SC} lds")
        e(f"s_add_u32 s46, s46, 1024\ns_add_u32 m0, s43, 1024\nbuffer_load_dwordx4 v{DK}, s[8:11], s46 offen{SC} lds")
        e(f"s_add_u32 m0, s43, {SBK+1024}\nbuffer_load_dwordx4 v{DV}, s[12:15], s46 offen{SC} lds")
        e(f"s_add_u32 s42, s42, {SBK}")
    def dma_both(slot_sreg):
        e(f"s_lshl_b32 s43, s{QG}, 11\ns_add_u32 s43, s43, {slot_sreg}")
        for hf in range(2):
            e(f"s_add_u32 s46, s42, {hf*S*32}")
            e(f"s_add_u32 m0, s43, {hf*HB}\nbuffer_load_dwordx4 v{DK}, s[8:11], s46 offen{SC} lds")
            e(f"s_add_u32 m0, s43, {hf*HB+SBK}\nbuffer_load_dwordx4 v{DV}, s[12:15], s46 offen{SC} lds")
            e(f"s_add_u32 s46, s46, 1024\ns_add_u32 m0, s43, {hf*HB+1024}\nbuffer_load_dwordx4 v{DK}, s[8:11], s46 offen{SC} lds")
            e(f"s_add_u32 m0, s43, {hf*HB+SBK+1024}\nbuffer_load_dwordx4 v{DV}, s[12:15], s46 offen{SC} lds")
    def kread(a0, a1, t):
        return [f"ds_read_b128 {v(KF,4)}, v{a0} offset:{t*2048}", f"ds_read_b128 {v(KF+4,4)}, v{a1} offset:{t*2048}"]
    def vread(t):
        return [f"ds_read_b64_tr_b16 {v(VF+4*m+2*hh,2)}, v{AV} offset:{t*2048+(16*m+8*hh)*64}" for m in range(2) for hh in range(2)]
    def qk(qb, dst, c):
        return [f"v_mfma_f32_32x32x16_bf16 {v(dst,16)}, {v(KF,4)}, {v(Q+8*qb,4)}, {c}",
                f"v_mfma_f32_32x32x16_bf16 {v(dst,16)}, {v(KF+4,4)}, {v(Q+8*qb+4,4)}, {v(dst,16)}"]
    def pv(qb, P):
        o, l = O + 16 * qb, LS + 4 * qb
        return [f"v_mfma_f32_32x32x16_bf16 {v(o,16)}, {v(VF,4)}, {v(P,4)}, {v(o,16)}",
                f"v_mfma_f32_16x16x32_bf16 {v(l,4)}, {v(SEL,4)}, {v(P,4)}, {v(l,4)}",
                f"v_mfma_f32_32x32x16_bf16 {v(o,16)}, {v(VF+4,4)}, {v(P+4,4)}, {v(o,16)}",
                f"v_mfma_f32_16x16x32_bf16 {v(l,4)}, {v(SEL,4)}, {v(P+4,4)}, {v(l,4)}"]
    def lane_max16(src, dst, tmp):
        e(f"v_max3_f32 v{dst}, v{src}, v{src+1}, v{src+2}")
        for r in range(3, 15, 2): e(f"v_max3_f32 v{dst}, v{dst}, v{src+r}, v{src+r+1}")
        e(f"v_max_f32 v{dst}, v{dst}, v{src+15}")
        e(f"v_mov_b32 v{tmp}, v{dst}\nv_permlane32_swap_b32 v{tmp}, v{dst}\nv_max_f32 v{dst}, v{dst}, v{tmp}")
    NST = S // 2 // KPS
    HALF = S * 32
    e("s_mov_b32 s42, 0")
    for st in range(2):
        e(f"s_mov_b32 s44, {(st+S0)*SB}")
        dma("s44")
    e("s_waitcnt vmcnt(4)\ns_barrier")
    if "stloop" in OPT: k.st(13)
    e(f"v_xor_b32 v{T+4}, 32, v{T+3}")
    for l in kread(T + 3, T + 4, 0): e(l)
    e("s_waitcnt lgkmcnt(0)")
    for qb in range(2):
        for l in qk(qb, SS[1][qb], "0"): e(l)
    for l in kread(AK0, AK1, 0): e(l)
    for qb in range(2):
        lane_max16(SS[1][qb], T, T + 1)
        e(f"v_add_f32 v{T}, {f32(40.0)}, v{T}")
        for r in range(16): e(f"v_sub_f32 v{NEG+16*qb+r}, 0, v{T}")
    e("s_waitcnt lgkmcnt(0)")
    for qb in range(2):
        for l in qk(qb, SS[0][qb], v(NEG + 16 * qb, 16)): e(l)
    for l in kread(AK0, AK1, 1): e(l)
    e(f"v_add_u32 v{AN0}, {SB}, v{AK0}\nv_add_u32 v{AN1}, {SB}, v{AK1}")
    e(f"s_mov_b32 s47, {1+S0}\ns_mov_b32 s48, {SB}\ns_mov_b32 s49, {-(NSL-1)*SB & 0xffffffff:#x}")
    e(f"s_mov_b32 s50, {(2+S0)*SB}")
    e("s_waitcnt lgkmcnt(0)")
    e("s_lshl_b32 s56, s2, 3\ns_add_u32 s56, s56, s24\ns_mul_i32 s58, s56, 52429\ns_lshr_b32 s58, s58, 18\ns_mul_i32 s58, s58, 5\ns_sub_u32 s58, s56, s58\ns_sub_u32 s58, 7, s58")
    if "pfall" in OPT: e(f"s_mov_b32 s58, {PFSTAGE}")
    flg = "flg" in OPT
    PG, PAO, PAG, PVV = 232, 236, 237, 238
    if flg:
        e(f"s_lshl_b32 s52, s{KH}, 4\ns_add_u32 s52, s52, {CTL+128}\nv_mov_b32 v{PAG}, s52\ns_lshl_b32 s53, s{QG}, 2\ns_add_u32 s52, s52, s53\nv_mov_b32 v{PAO}, s52\ns_mov_b32 s59, 1\ns_mov_b32 s53, 0")
        e("s_barrier")
    e(f"s_mov_b32 s44, {NST}")
    if "prio1" in OPT: e(f"s_cmp_lt_u32 s24, 4\ns_cbranch_scc1 {L('noprio')}\ns_setprio 1\n{L('noprio')}:")
    if "prio0" in OPT: e(f"s_cmp_ge_u32 s24, 4\ns_cbranch_scc1 {L('noprio')}\ns_setprio 1\n{L('noprio')}:")
    if "stloop" in OPT: k.st(12)
    align(k, "att")
    e(f"{L('floop')}:")
    for t in range(4):
        par = t & 1
        if t == 2:
            if flg:
                e("s_waitcnt lgkmcnt(4)")
                e(f"{L('pchk')}:")
                e(f"v_min3_u32 v{PVV}, v{PG}, v{PG+1}, v{PG+2}\nv_min_u32 v{PVV}, v{PVV}, v{PG+3}\nv_readfirstlane_b32 s52, v{PVV}")
                e(f"s_cmp_ge_u32 s52, s59\ns_cbranch_scc1 {L('pok')}")
                e(f"ds_read_b128 {v(PG,4)}, v{PAG}\ns_waitcnt lgkmcnt(0)\ns_add_u32 s53, s53, 1\ns_cmp_lt_u32 s53, {SPIN_MAX*16}\ns_cbranch_scc1 {L('pchk')}")
                e(f"{L('pok')}:")
                e(f"s_cmp_ge_u32 s42, {HALF}\ns_cbranch_scc1 {L('cont')}")
            elif old4:
                e(f"s_cmp_ge_u32 s42, {HALF}\ns_cbranch_scc1 {L('nodma')}")
                e(f"s_cmp_lg_u32 s{KH}, 0\ns_cbranch_scc1 {L('yw')}")
                dma_both("s50")
                e(f"s_waitcnt vmcnt(8)\ns_branch {L('yb')}")
                e(f"{L('yw')}:\ns_cmp_lg_u32 s44, {NST}\ns_cbranch_scc1 {L('yb')}\ns_waitcnt vmcnt(0)")
                e(f"{L('yb')}:\ns_barrier\ns_add_u32 s42, s42, {SBK}")
            else:
                e(f"s_cmp_ge_u32 s42, {HALF}\ns_cbranch_scc1 {L('nodma')}")
                e(f"s_waitcnt vmcnt({4*(NSL-3)})\ns_barrier")
            if not old4 or flg: dma("s50")
            e(f"s_add_u32 s50, s50, {SB}\ns_cmp_eq_u32 s50, {NSL*SB}\ns_cselect_b32 s50, 0, s50")
            if pf:
                e(f"s_cmp_lg_u32 s44, s58\ns_cbranch_scc1 {L('cont')}")
                e(f"s_mov_b32 s60, s{P_WO}\ns_mov_b32 s61, s{P_WO+1}\ns_mov_b32 s62, {D*D*2}\ns_mov_b32 s63, 0x20000\ns_mov_b32 s52, s56")
                e(f"s_cmp_lt_u32 s56, 256\ns_cbranch_scc1 {L('pfgo')}")
                e(f"s_mov_b32 s60, s{P_W1}\ns_mov_b32 s61, s{P_W1+1}\ns_mov_b32 s62, {D*DFF*2}\ns_mov_b32 s63, 0x20000\ns_sub_u32 s52, s56, 256")
                e(f"s_cmp_lt_u32 s56, 1152\ns_cbranch_scc1 {L('pfgo')}")
                e(f"s_mov_b32 s60, s{P_W2}\ns_mov_b32 s61, s{P_W2+1}\ns_mov_b32 s62, {D*DFF*2}\ns_mov_b32 s63, 0x20000\ns_sub_u32 s52, s56, 1152")
                e(f"{L('pfgo')}:")
                e(f"s_lshl_b32 s52, s52, 13\nv_lshlrev_b32 v{T}, 7, v2\nbuffer_load_dword v{PFD}, v{T}, s[60:63], s52 offen")
                if "mrwo" in OPT:
                    e(f"s_bitcmp1_b32 s56, 0\ns_cbranch_scc1 {L('nowm')}")
                    e(f"s_load_dwordx2 s[60:61], s[0:1], {KA_WMOD}\ns_lshr_b32 s52, s56, 1\ns_mul_i32 s52, s52, 12288\ns_add_u32 s52, s52, 4096\ns_waitcnt lgkmcnt(0)")
                    e(f"s_mov_b32 s62, {1024*6144*2}\ns_mov_b32 s63, 0x20000\nbuffer_load_dword v{PFD}, v{T}, s[60:63], s52 offen")
                    e(f"{L('nowm')}:")
                k.code_touch("a", k.lab("att_cont"), k.lab("f1_l"), 24, 8, 1)
            if not flg:
                e(f"s_branch {L('cont')}")
                e(f"{L('nodma')}:")
                e("s_waitcnt vmcnt(0)\ns_barrier")
            e(f"{L('cont')}:")
        kr = kread(AN0, AN1, (t + 2) % 4) if t >= 2 else kread(AK0, AK1, t + 2)
        vr = vread(t)
        m = []; p = []; E = []; C = []
        for qb in range(2):
            cur = SS[par][qb]; nxt = SS[1 - par][qb]; pc = PP[par][qb]; pp = PP[1 - par][qb]
            m.append(qk(qb, nxt, v(NEG + 16 * qb, 16))); p.append(pv(qb, pp))
            E.append([f"v_exp_f32 v{cur+r}, v{cur+r}" for r in range(16)])
            C.append([f"v_cvt_pk_bf16_f32 v{pc+r}, v{cur+2*r}, v{cur+2*r+1}" for r in range(8)])
        E0, E1 = E; C0, C1 = C
        seq = ["s_waitcnt lgkmcnt(4)",
               m[0][0], E0[0], E0[1], E0[2], E0[3],
               m[1][0], E0[4], E0[5], C0[0], C0[1], E0[6],
               m[0][1], E0[7], C0[2], E0[8], E0[9], C0[3],
               m[1][1], kr[0], kr[1], E0[10], E0[11], E0[12], E0[13], "s_waitcnt lgkmcnt(2)",
               p[0][0], C0[4], C0[5], E0[14], E0[15], C0[6], C0[7],
               p[0][1], E1[0], E1[1],
               p[1][0], E1[2], E1[3], C1[0], C1[1], E1[4],
               p[1][1], E1[5], E1[6],
               p[0][2], E1[7], C1[2], E1[8], E1[9], C1[3],
               p[0][3], E1[10], E1[11],
               p[1][2], vr[0], vr[1], vr[2], vr[3], E1[12], E1[13], C1[4], C1[5], E1[14],
               p[1][3], E1[15], C1[6], C1[7]]
        if smf:
            out_ = []
            for x_ in seq:
                if "16x16x32" in x_:
                    qb_ = 0 if x_ in p[0] else 1
                    if x_ == p[qb_][1]: continue
                    out_.append(f"v_smfmac_f32_16x16x64_bf16 {v(LS+4*qb_,4)}, {v(SEL,4)}, {v(PP[1-par][qb_],8)}, v{SIX}")
                else: out_.append(x_)
            seq = out_
        if flg and t == 1:
            i_ = seq.index(m[0][0])
            seq = seq[:i_ + 1] + ["s_waitcnt vmcnt(0)", f"v_mov_b32 v{PVV}, s59", f"ds_write_b32 v{PAO}, v{PVV}"] + seq[i_ + 1:]
            seq[seq.index("s_waitcnt lgkmcnt(2)")] = "s_waitcnt lgkmcnt(3)"
            i_ = seq.index(vr[0])
            seq = seq[:i_] + [f"ds_read_b128 {v(PG,4)}, v{PAG}"] + seq[i_:]
        if flg and t == 2: seq = seq[1:]
        for l in seq: e(l)
        if t == 3 and flg: e("s_add_u32 s59, s59, 1")
        if t == 3:
            e(f"v_sub_u32 v{T}, v{AN0}, v{AK0}\nv_add_u32 v{AV}, v{AV}, v{T}\nv_mov_b32 v{AK0}, v{AN0}\nv_mov_b32 v{AK1}, v{AN1}")
            e(f"s_add_u32 s47, s47, 1\ns_cmp_eq_u32 s47, {NSL}\ns_cselect_b32 s51, s49, s48\ns_cselect_b32 s47, 0, s47")
            e(f"v_add_u32 v{AN0}, s51, v{AN0}\nv_add_u32 v{AN1}, s51, v{AN1}")
    e(f"s_sub_u32 s44, s44, 1\ns_cmp_lg_u32 s44, 0\ns_cbranch_scc1 {L('floop')}")
    e("s_waitcnt lgkmcnt(0)")
    for qb in range(2):
        if smf:
            pl = pv(qb, PP[1][qb])
            e(pl[0]); e(pl[2]); e(f"v_smfmac_f32_16x16x64_bf16 {v(LS+4*qb,4)}, {v(SEL,4)}, {v(PP[1][qb],8)}, v{SIX}")
        else:
            for l in pv(qb, PP[1][qb]): e(l)
    if smf: e(f"v_add_f32 v{LS}, v{LS}, v{LS+2}\nv_add_f32 v{LS+4}, v{LS+4}, v{LS+6}")
    if "prio1" in OPT or "prio0" in OPT: e("s_setprio 0")
    k.st(4)
    def merge(safe, M=None):
        e("s_barrier")
        e(f"s_cmp_eq_u32 s{KH}, 0\ns_cbranch_scc1 {L('keep0' + safe)}")
        for r in range(16): e(f"v_swap_b32 v{O+r}, v{O+16+r}")
        e(f"v_swap_b32 v{LS}, v{LS+4}")
        if M is not None: e(f"v_swap_b32 v{M}, v{M+1}")
        e(f"{L('keep0' + safe)}:")
        e(f"s_mul_i32 s52, s24, {5*1024+256}\nv_lshlrev_b32 v{T}, 4, v2\nv_add_u32 v{T}, s52, v{T}")
        for g in range(4): e(f"ds_write_b128 v{T}, {v(O+16+4*g,4)} offset:{g*1024}")
        e(f"v_lshlrev_b32 v{T+1}, 2, v2\nv_add_u32 v{T+1}, s52, v{T+1}")
        e(f"ds_write_b32 v{T+1}, v{LS+4} offset:4096")
        if M is not None: e(f"ds_write_b32 v{T+1}, v{M+1} offset:{4096+256}")
        e("s_waitcnt lgkmcnt(0)\ns_barrier")
        e(f"s_xor_b32 s52, s24, 4\ns_mul_i32 s52, s52, {5*1024+256}\nv_lshlrev_b32 v{T}, 4, v2\nv_add_u32 v{T}, s52, v{T}")
        for g in range(4): e(f"ds_read_b128 {v(O+16+4*g,4)}, v{T} offset:{g*1024}")
        e(f"v_lshlrev_b32 v{T+1}, 2, v2\nv_add_u32 v{T+1}, s52, v{T+1}")
        e(f"ds_read_b32 v{LS+4}, v{T+1} offset:4096")
        if M is not None: e(f"ds_read_b32 v{M+1}, v{T+1} offset:{4096+256}")
        e("s_waitcnt lgkmcnt(0)")
        if M is None:
            for r in range(16): e(f"v_add_f32 v{O+r}, v{O+r}, v{O+16+r}")
            e(f"v_add_f32 v{LS}, v{LS}, v{LS+4}")
        else:
            e(f"v_max_f32 v{T}, v{M}, v{M+1}\nv_sub_f32 v{T+1}, v{M}, v{T}\nv_sub_f32 v{T+2}, v{M+1}, v{T}\nv_exp_f32 v{T+1}, v{T+1}\nv_exp_f32 v{T+2}, v{T+2}")
            for r in range(16): e(f"v_mul_f32 v{O+r}, v{O+r}, v{T+1}\nv_fmac_f32 v{O+r}, v{O+16+r}, v{T+2}")
            e(f"v_mul_f32 v{LS}, v{LS}, v{T+1}\nv_fmac_f32 v{LS}, v{LS+4}, v{T+2}")
        e(f"v_rcp_f32 v{T}, v{LS}")
        for r in range(16): e(f"v_mul_f32 v{O+r}, v{O+r}, v{T}")
    XE = 98304 if old4 else 98432
    e(f"v_add_f32 v{T+2}, abs(v{O}), abs(v{O+1})\nv_add_f32 v{T+3}, abs(v{O+16}), abs(v{O+17})")
    for r in range(2, 16): e(f"v_add_f32 v{T+2}, v{T+2}, abs(v{O+r})\nv_add_f32 v{T+3}, v{T+3}, abs(v{O+16+r})")
    e(f"v_add_f32 v{T+2}, v{T+2}, v{T+3}\nv_mov_b32 v{T+1}, {f32(2.0**126)}\nv_cmp_nlt_f32 vcc, v{T+2}, v{T+1}\ns_mov_b64 s[46:47], vcc")
    e(f"v_add_f32 v{T+2}, v{LS}, v{LS+4}\nv_mov_b32 v{T+1}, {f32(2.0**119)}\nv_cmp_nlt_f32 vcc, v{T+2}, v{T+1}\ns_or_b64 s[46:47], s[46:47], vcc")
    e(f"s_cmp_eq_u64 s[46:47], 0\ns_cbranch_scc1 {L('okwave')}")
    e(f"v_mov_b32 v{T+1}, {FLAG}\nv_mov_b32 v{T+2}, 1\nds_write_b32 v{T+1}, v{T+2}")
    e(f"{L('okwave')}:")
    e(f"s_mul_i32 s52, s24, 4352\ns_add_u32 s52, s52, {XE}\nv_lshlrev_b32 v{T}, 4, v2\nv_add_u32 v{T}, s52, v{T}\nv_lshlrev_b32 v{T+1}, 2, v2\nv_add_u32 v{T+1}, s52, v{T+1}")
    e(f"s_cmp_eq_u32 s{KH}, 0\ns_cbranch_scc1 {L('snd0')}")
    for g in range(4): e(f"ds_write_b128 v{T}, {v(O+4*g,4)} offset:{g*1024}")
    e(f"ds_write_b32 v{T+1}, v{LS} offset:4096\ns_branch {L('snd1')}")
    e(f"{L('snd0')}:")
    for g in range(4): e(f"ds_write_b128 v{T}, {v(O+16+4*g,4)} offset:{g*1024}")
    e(f"ds_write_b32 v{T+1}, v{LS+4} offset:4096")
    e(f"{L('snd1')}:")
    e(f"s_xor_b32 s52, s24, 4\ns_mul_i32 s52, s52, 4352\ns_add_u32 s52, s52, {XE}\nv_lshlrev_b32 v{T}, 4, v2\nv_add_u32 v{T}, s52, v{T}\nv_lshlrev_b32 v{T+1}, 2, v2\nv_add_u32 v{T+1}, s52, v{T+1}")
    e(f"v_mov_b32 v{T+3}, {FLAG}")
    e("s_waitcnt lgkmcnt(0)\ns_barrier")
    e(f"ds_read_b32 v{T+2}, v{T+3}")
    e(f"s_cmp_eq_u32 s{KH}, 0\ns_cbranch_scc1 {L('rcv0')}")
    for g in range(4): e(f"ds_read_b128 {v(O+4*g,4)}, v{T} offset:{g*1024}")
    e(f"ds_read_b32 v{LS}, v{T+1} offset:4096\ns_branch {L('rcv1')}")
    e(f"{L('rcv0')}:")
    for g in range(4): e(f"ds_read_b128 {v(O+16+4*g,4)}, v{T} offset:{g*1024}")
    e(f"ds_read_b32 v{LS+4}, v{T+1} offset:4096")
    e(f"{L('rcv1')}:")
    e(f"s_waitcnt lgkmcnt(5)\nv_readfirstlane_b32 s46, v{T+2}\ns_cmp_lg_u32 s46, 0\ns_cbranch_scc1 {L('safe')}")
    e("s_waitcnt lgkmcnt(0)")
    e(f"v_add_f32 v{LS}, v{LS}, v{LS+4}\nv_rcp_f32 v{T}, v{LS}")
    for r in range(0, 16, 2): e(f"v_pk_add_f32 {v(O+r,2)}, {v(O+r,2)}, {v(O+16+r,2)}")
    assert (T + 1) % 2 == 0
    e(f"v_mov_b32 v{T+1}, v{T}")
    for r in range(0, 16, 2): e(f"v_pk_mul_f32 {v(O+r,2)}, {v(O+r,2)}, {v(T+1,2)} op_sel_hi:[1,0]")
    e(f"{L('store')}:")
    if "statt" in OPT: k.st(12)
    P = PP[0][0]
    for r in range(8): e(f"v_cvt_pk_bf16_f32 v{P+r}, v{O+2*r}, v{O+2*r+1}")
    for b in (0, 4):
        e(f"v_permlane32_swap_b32 v{P+b}, v{P+b+2}\nv_permlane32_swap_b32 v{P+b+1}, v{P+b+3}")
    for r in range(4): e(f"v_permlane16_swap_b32 v{P+r}, v{P+4+r}")
    e(f"s_lshl_b32 s40, s{KH}, 5\ns_add_u32 s40, s40, s39")
    e(f"v_and_b32 v{T}, 15, v2\nv_add_u32 v{T}, s40, v{T}\nv_lshlrev_b32 v{T}, 11, v{T}")
    e(f"v_lshrrev_b32 v{T+1}, 4, v2\nv_and_b32 v{T+2}, 1, v{T+1}\nv_lshlrev_b32 v{T+2}, 5, v{T+2}\nv_lshrrev_b32 v{T+1}, 1, v{T+1}\nv_lshlrev_b32 v{T+1}, 4, v{T+1}")
    e(f"v_add_u32 v{T}, v{T}, v{T+1}\nv_add_u32 v{T}, v{T}, v{T+2}")
    e(f"s_lshl_b32 s40, s25, 6\ns_add_u32 s41, s40, {16*2048}")
    e(f"buffer_store_dwordx4 {v(P,4)}, v{T}, s[16:19], s40 offen{SCS}\nbuffer_store_dwordx4 {v(P+4,4)}, v{T}, s[16:19], s41 offen{SCS}")
    if "statt" in OPT: k.st(13)
    e(f"s_add_u32 s35, s26, {C_ATT}")
    k.signal("att", 8, 35, 32, (2, lambda: e((f"v_mov_b32 v6, {C_ATTALL*256}\nv_mov_b32 v7, 1\ns_mov_b64 exec, 1\nbuffer_atomic_add v7, v6, {s(CNT,4)}, 0 offen sc1\ns_mov_b64 exec, -1\n" if "alias" in OPT else "") + f"s_lshl_b32 s33, s26, 8\ns_lshl_b32 s34, s25, 2\ns_add_u32 s33, s33, s34\ns_add_u32 s33, s33, {FL['wo']}\nv_lshlrev_b32 v6, 7, v2\nv_add_u32 v6, s33, v6")))
    if "statt" in OPT: k.st(14, 7)
    e(f"s_cmp_ge_u32 s24, 4\ns_cbranch_scc1 {nxt_l}\ns_branch {nxt_c}")
    e(f"{L('safe')}:")
    e("s_waitcnt vmcnt(0) lgkmcnt(0)\ns_barrier")
    M = NEG; AL = NEG + 2
    SA = SS[0][0]; P0 = PP[0][0]
    zero_acc()
    if smf: dense_selector()
    e(f"v_mov_b32 v{M}, {f32(-3.0e38)}\nv_mov_b32 v{M+1}, {f32(-3.0e38)}")
    addr_setup()
    e("s_mov_b32 s42, 0")
    e(f"s_mov_b32 s44, {NST}")
    e(f"{L('sloop')}:")
    e("s_barrier")
    e("s_mov_b32 s53, 0")
    dma("s53")
    e("s_waitcnt vmcnt(0)\ns_barrier")
    for t in range(4):
        for l in kread(AK0, AK1, t) + vread(t): e(l)
        e("s_waitcnt lgkmcnt(0)")
        for qb in range(2):
            for l in qk(qb, SA, "0"): e(l)
            lane_max16(SA, T, T + 1)
            e(f"v_max_f32 v{T}, v{T}, v{M+qb}\nv_sub_f32 v{AL}, v{M+qb}, v{T}\nv_exp_f32 v{AL}, v{AL}\nv_mov_b32 v{M+qb}, v{T}")
            for r in range(16): e(f"v_sub_f32 v{SA+r}, v{SA+r}, v{T}\nv_exp_f32 v{SA+r}, v{SA+r}")
            for r in range(16): e(f"v_mul_f32 v{O+16*qb+r}, v{O+16*qb+r}, v{AL}")
            for r in range(4): e(f"v_mul_f32 v{LS+4*qb+r}, v{LS+4*qb+r}, v{AL}")
            for r in range(8): e(f"v_cvt_pk_bf16_f32 v{P0+r}, v{SA+2*r}, v{SA+2*r+1}")
            for l in pv(qb, P0): e(l)
    e(f"s_sub_u32 s44, s44, 1\ns_cmp_lg_u32 s44, 0\ns_cbranch_scc1 {L('sloop')}")
    merge("s", M)
    e("s_barrier")
    e(f"s_branch {L('store')}")


GL = 134144
DBG = 84

def g_final(k, tag):
    e = k.e; L = lambda n: k.lab("g_" + tag + n)
    e(f"v_mov_b32 v6, {L_SIG['g']}\nv_mov_b32 v7, 1\ns_mov_b64 exec, 1\nds_add_rtn_u32 v7, v6, v7\ns_waitcnt lgkmcnt(0)\nv_readfirstlane_b32 s36, v7\ns_mov_b64 exec, -1")
    e(f"s_cmp_lg_u32 s36, 4\ns_cbranch_scc1 {L('x')}")
    e(f"v_lshlrev_b32 v6, 2, v2\nv_add_u32 v7, {GL}, v6")
    for w in range(4): e(f"ds_read_b32 v{180+w}, v7 offset:{w*256}")
    e("s_waitcnt lgkmcnt(0)\nv_add_f32 v180, v180, v181\nv_add_f32 v182, v182, v183\nv_add_f32 v180, v180, v182")
    k.srd(56, P_WS, WS_MODP, 4 * 6144 * 4)
    e("s_and_b32 s36, s2, 3\ns_mul_i32 s36, s36, 24576\ns_lshr_b32 s37, s2, 2\ns_lshl_b32 s37, s37, 8\ns_add_u32 s36, s36, s37")
    e(f"buffer_store_dword v180, v6, s[56:59], s36 offen{SCS}\ns_waitcnt vmcnt(0)")
    e(f"v_mov_b32 v6, 0\nv_mov_b32 v7, 1\ns_mov_b64 exec, 1\nbuffer_atomic_add v7, v6, {s(DBG,4)}, 0 offen sc0 sc1\ns_waitcnt vmcnt(0)\nv_readfirstlane_b32 s36, v7")
    e(f"s_cmp_lg_u32 s36, 127\ns_cbranch_scc1 {L('y')}")
    e(f"v_mov_b32 v7, 1\nbuffer_store_dword v7, v6, {s(DBG,4)}, 0 offen offset:128 sc1")
    e(f"{L('y')}:\ns_mov_b64 exec, -1\n{L('x')}:")

def g_compute(k):
    e = k.e; L = lambda n: k.lab("g_" + n)
    e(f"s_cmp_ge_u32 s2, 128\ns_cbranch_scc1 {L('wait')}")
    e(f"s_load_dwordx4 s[36:39], s[0:1], {KA_C}")
    e("s_and_b32 s40, s2, 3\ns_lshr_b32 s41, s2, 2")
    e("v_lshrrev_b32 v6, 3, v0\nv_and_b32 v7, 7, v0\nv_mov_b32 v178, v7")
    e("s_lshl_b32 s42, s40, 8\nv_add_u32 v6, s42, v6\nv_lshlrev_b32 v4, 1, v6")
    e("v_mul_u32_u24 v5, 12288, v6\nv_lshlrev_b32 v6, 4, v7\nv_add_u32 v5, v5, v6\ns_lshl_b32 s42, s41, 7\nv_add_u32 v5, s42, v5")
    e("s_waitcnt lgkmcnt(0)")
    k.srd(56, 36, 0, 2048); k.srd(60, 38, 0, 1024 * 6144 * 2)
    for i in range(8): e(f"buffer_load_ushort v{128+i}, v4, s[56:59], 0 offen offset:{i*64}")
    for i in range(8): e(f"s_mov_b32 s42, {i*32*12288}\nbuffer_load_dwordx4 {v(136+4*i,4)}, v5, s[60:63], s42 offen")
    gemv_finish(k, 128, 136, 168, 176)
    e(f"s_lshl_b32 s42, s24, 8\nv_lshlrev_b32 v5, 5, v178\nv_add_u32 v5, s42, v5\nv_add_u32 v5, {GL}, v5")
    e("s_mov_b64 exec, 0xff\nds_write_b128 v5, v[168:171]\nds_write_b128 v5, v[172:175] offset:16\ns_waitcnt lgkmcnt(0)\ns_mov_b64 exec, -1")
    g_final(k, "c")
    e(f"{L('wait')}:")
    e(f"s_cmp_lg_u32 s24, 0\ns_cbranch_scc1 {L('go')}")
    e(f"v_mov_b32 v6, 0\ns_mov_b32 s33, 0\ns_mov_b64 exec, 1")
    e(f"{L('poll')}:\nbuffer_load_dword v7, v6, {s(DBG,4)}, 0 offen offset:128 sc1\ns_waitcnt vmcnt(0)\nv_readfirstlane_b32 s34, v7")
    e(f"s_cmp_eq_u32 s34, 1\ns_cbranch_scc1 {L('pollx')}\ns_add_u32 s33, s33, 1\ns_cmp_ge_u32 s33, {SPIN_MAX}\ns_cbranch_scc1 {L('pollx')}\ns_sleep {SLEEP}\ns_branch {L('poll')}")
    e(f"{L('pollx')}:\ns_mov_b64 exec, -1")
    e(f"{L('go')}:\ns_barrier")

def g_loader(k):
    e = k.e; L = lambda n: k.lab("gl_" + n)
    share = (-(-CNT_BYTES // 128) + 1023) // 1024 * 1024
    e(f"s_cmp_ge_u32 s2, 128\ns_cbranch_scc1 {L('x')}\ns_cmp_lg_u32 s24, 5\ns_cbranch_scc1 {L('x')}")
    e(f"s_mul_i32 s36, s2, {share}\nv_lshlrev_b32 v3, 4, v2\nv_mov_b32 v200, 0\nv_mov_b32 v201, 0\nv_mov_b32 v202, 0\nv_mov_b32 v203, 0")
    for i in range(share // 1024):
        e(f"buffer_store_dwordx4 v[200:203], v3, {s(CNT,4)}, s36 offen offset:{i*1024}{SCS}")
    e("s_waitcnt vmcnt(0)")
    g_final(k, "l")
    e(f"{L('x')}:")

def h_phase(k):
    e = k.e; L = lambda n: k.lab("h_" + n)
    HL = 125952
    e("s_lshl_b32 s36, s2, 3\ns_lshl_b32 s37, s24, 1\ns_add_u32 s36, s36, s37")
    e("s_lshl_b32 s36, s36, 11\nv_lshlrev_b32 v3, 4, v2\nv_add_u32 v3, s36, v3")
    k.srd(12, P_X, 0, S * D * 2); k.srd(16, P_WS, WS_H, S * D * 2)
    k.srd(20, P_WS, WS_MODP, 4 * 6144 * 4); k.srd(56, P_WS, WS_MODF, 6144 * 4)
    single = "single" in OPT
    def xloads():
        for r in range(2):
            for hf in range(2):
                e(f"buffer_load_dwordx4 {v(8+8*r+4*hf,4)}, v3, s[12:15], 0 offen offset:{r*2048+hf*1024}")
    if single:
        xloads()
        e("v_mov_b32 v179, v3")
        g_compute(k)
        e("v_mov_b32 v3, v179")
    e("v_lshlrev_b32 v5, 5, v0")
    for p in range(4):
        e(f"s_mov_b32 s37, {p*24576}")
        e(f"buffer_load_dwordx4 {v(64+8*p,4)}, v5, s[20:23], s37 offen{SC if single else ''}\nbuffer_load_dwordx4 {v(68+8*p,4)}, v5, s[20:23], s37 offen offset:16{SC if single else ''}")
    if not single: xloads()
    nt_ = k.code_touch("h", k.lab("qkv_c"), k.lab("wo_c"), 24, 4, 1)
    e(f"s_waitcnt vmcnt({(0 if single else 4)+nt_})")
    for j in range(8):
        e(f"v_add_f32 v{64+j}, v{64+j}, v{72+j}\nv_add_f32 v{80+j}, v{80+j}, v{88+j}\nv_add_f32 v{64+j}, v{64+j}, v{80+j}")
        round_bf16(e, 64 + j)
    e("v_cmp_le_u32 vcc, 128, v0")
    for j in range(8):
        e(f"v_add_f32 v72, 1.0, v{64+j}")
        round_bf16(e, 72)
        e(f"v_cndmask_b32 v{64+j}, v{64+j}, v72, vcc")
    e(f"v_add_u32 v5, {HL}, v5\nds_write_b128 v5, v[64:67]\nds_write_b128 v5, v[68:71] offset:16")
    e("s_waitcnt lgkmcnt(0)\ns_barrier")
    e(f"v_lshlrev_b32 v5, 5, v2\nv_add_u32 v5, {HL}, v5")
    for hf in range(2):
        for q in range(2):
            e(f"ds_read_b128 {v(32+8*hf+4*q,4)}, v5 offset:{hf*2048+q*16}")
            e(f"ds_read_b128 {v(48+8*hf+4*q,4)}, v5 offset:{4096+hf*2048+q*16}")
    e(f"s_waitcnt vmcnt({nt_})")
    X = 64
    for r in range(2):
        for j in range(8):
            src = 8 + 8 * r + j
            e(f"v_lshlrev_b32 v{X+16*r+2*j}, 16, v{src}\nv_and_b32 v{X+16*r+2*j+1}, 0xffff0000, v{src}")
    for r in range(2): e(f"v_add_f32 v{104+r}, v{X+16*r}, v{X+16*r+1}")
    for j in range(2, 16):
        for r in range(2): e(f"v_add_f32 v{104+r}, v{104+r}, v{X+16*r+j}")
    wave_sum(e, [104, 105], 106, [0, 1, 2, 3, 4, 5])
    for r in range(2): e(f"v_mul_f32 v{104+r}, {f32(1/1024)}, v{104+r}")
    for j in range(16):
        for r in range(2): e(f"v_sub_f32 v{X+16*r+j}, v{X+16*r+j}, v{104+r}")
    for r in range(2): e(f"v_mul_f32 v{107+r}, v{X+16*r}, v{X+16*r}")
    for j in range(1, 16):
        for r in range(2): e(f"v_fmac_f32 v{107+r}, v{X+16*r+j}, v{X+16*r+j}")
    wave_sum(e, [107, 108], 106, [0, 1, 2, 3, 4, 5])
    for r in range(2):
        e(f"v_mov_b32 v{109+r}, {f32(1e-5)}\nv_fmac_f32 v{109+r}, {f32(1/1024)}, v{107+r}\nv_rsq_f32 v{109+r}, v{109+r}")
    e("s_waitcnt lgkmcnt(0)")
    for r in range(2):
        for j in range(16):
            e(f"v_mul_f32 v{X+16*r+j}, v{X+16*r+j}, v{109+r}\nv_fma_f32 v{X+16*r+j}, v{X+16*r+j}, v{48+j}, v{32+j}")
        for j in range(8): e(f"v_cvt_pk_bf16_f32 v{112+8*r+j}, v{X+16*r+2*j}, v{X+16*r+2*j+1}")
        e(f"buffer_store_dwordx4 {v(112+8*r,4)}, v3, s[16:19], 0 offen offset:{r*2048}{SCS}")
        e(f"buffer_store_dwordx4 {v(116+8*r,4)}, v3, s[16:19], 0 offen offset:{r*2048+1024}{SCS}")
    e(f"s_lshr_b32 s35, s2, 4\ns_add_u32 s35, s35, {C_H}")
    def offs():
        e(f"s_lshr_b32 s33, s2, 4\ns_lshl_b32 s33, s33, 9\ns_and_b32 s34, s2, 15\ns_lshl_b32 s34, s34, 2\ns_add_u32 s33, s33, s34\ns_add_u32 s33, s33, {FL['qkv']}")
        e("v_lshlrev_b32 v6, 7, v2\nv_add_u32 v6, s33, v6")
    k.signal("h", 4, 35, 16, (4, offs))

def k_main():
    single = "single" in OPT
    k = PK(NAME + "_kernel" if single else "main_kernel", 256, 512, LDS_TOTAL + 16384, 256, 100); e = k.e
    L = k.lab
    e(f"s_cmp_ge_u32 s2, 256\ns_cbranch_scc1 {L('end')}")
    e(f"s_load_dwordx4 s[68:71], s[0:1], {KA_X}\ns_load_dwordx4 s[72:75], s[0:1], {KA_W1}\ns_load_dwordx2 s[76:77], s[0:1], {KA_WO}")
    e(f"s_load_dwordx2 s[78:79], s[0:1], {KA_OUT}\ns_load_dwordx2 s[66:67], s[0:1], {KA_WS}")
    if single: e(f"s_load_dwordx2 s[82:83], s[0:1], {KA_DBG}")
    e("v_lshrrev_b32 v1, 6, v0\nv_and_b32 v2, 63, v0\nv_readfirstlane_b32 s24, v1")
    e(f"s_cmp_lg_u32 s24, 0\ns_cbranch_scc1 {L('noinit')}")
    e(f"v_lshlrev_b32 v3, 2, v2\nv_add_u32 v3, {CTL}, v3\nv_mov_b32 v4, 0\nds_write_b32 v3, v4\ns_waitcnt lgkmcnt(0)")
    e(f"{L('noinit')}:")
    e("s_waitcnt lgkmcnt(0)")
    k.srd(CNT, P_WS, WS_CNT, CNT_BYTES)
    if single:
        k.srd(DBG, 82, 0, 256)
        e("s_barrier")
    k.st(0)
    e(f"s_cmp_ge_u32 s24, 4\ns_cbranch_scc1 {L('qkv_l')}")
    hin = "hsep" not in OPT
    if hin: h_phase(k)
    gemm_phase(k, "qkv", 1024, 1024, 3072, 192, WS_H, S * D * 2, P_WQKV, D * 3 * D * 2, "qkv", 8, 4, 3, L("att_c"), L("att_l"), (C_H, 16, "rb") if hin else None, (1, 2), hbar=hin)
    pf = [(P_WO, D * D * 2), (P_W1, D * DFF * 2), (P_W2, D * DFF * 2)] if "nopf" not in OPT else []
    attn_phase(k, L("wo_c"), L("wo_l"), pf)
    gemm_phase(k, "wo", 1024, 1024, 1024, 64, WS_O, S * D * 2, P_WO, D * D * 2, "wo", 4, 8, 4, L("f1_c"), L("f1_l"), (C_ATT, 32, "rb2"), (5, 6))
    gemm_phase(k, "f1", 1024, 1024, DFF, 224, WS_XG, S * D * 2, P_W1, D * DFF * 2, "ffn1", 8, 4, 3, L("f2_c"), L("f2_l"), (C_WO, 16, "rb"), (7, 8))
    if "nos2" in OPT:
        gemm_phase(k, "f2", DFF, DFF, 1024, 64, WS_F1, S * DFF * 2, P_W2, DFF * D * 2, "ffn2", 4, 8, 4, L("fin"), L("end"), (C_F1, 16, "rb"), (9, 10))
    else:
        gemm_phase(k, "f2", DFF, DFF, 1024, 128, F1OFF(), S * DFF * 2, P_W2, DFF * D * 2, "ffn2s", 4, 8, 4, L("fin"), L("end"), (C_F1, 8, "rb"), (9, 10))
    e(f"{L('fin')}:")
    if DIAG:
        e("s_waitcnt vmcnt(0)")
        k.st(11)
        e(f"s_cmp_lg_u32 s24, 0\ns_cbranch_scc1 {L('end')}")
        k.srd(12, P_WS, WS_STAMP + 8 * 512 * 16, 256 * 64)
        e(f"v_lshlrev_b32 v3, 2, v2\nv_add_u32 v4, {L_STAMP}, v3\nds_read_b32 v5, v4\ns_lshl_b32 s32, s2, 6\nv_add_u32 v3, s32, v3\ns_waitcnt lgkmcnt(0)")
        e("s_mov_b64 exec, 0xffff\nbuffer_store_dword v5, v3, s[12:15], 0 offen")
    k.finish()
    return k

def k_mod2():
    NG = 384 if "modall" in OPT else 128
    k = Kern("mod_kernel", NG + 128, 256, 1024, 64); e = k.e
    k.exit_extra()
    e("s_load_dwordx4 s[4:7], s[0:1], %d" % KA_C)
    k.ptr(8, KA_WS); k.ptr(10, KA_X)
    e(f"s_cmp_ge_u32 s2, {NG}\ns_cbranch_scc1 {k.lab('aux')}")
    e("s_and_b32 s24, s2, 3\ns_lshr_b32 s25, s2, 2")
    e("v_lshrrev_b32 v1, 3, v0\nv_and_b32 v2, 7, v0")
    e("s_lshl_b32 s26, s24, 8\nv_add_u32 v3, s26, v1")
    e("v_lshlrev_b32 v4, 1, v3")
    e("v_mul_u32_u24 v5, 12288, v3\nv_lshlrev_b32 v6, 4, v2\nv_add_u32 v5, v5, v6")
    e("s_lshl_b32 s27, s25, 7\nv_add_u32 v5, s27, v5")
    e("s_waitcnt lgkmcnt(0)")
    k.srd(12, 4, 0, 2048); k.srd(16, 6, 0, 1024 * 6144 * 2); k.srd(20, 8, WS_MODP, 4 * 6144 * 4)
    gemv_body(k, 8, 16, 48, 56, "s[12:15]", "s[16:19]", 32)
    k.stamp(2)
    e("v_lshrrev_b32 v9, 6, v0\nv_lshlrev_b32 v9, 8, v9\nv_lshlrev_b32 v10, 5, v2\nv_add_u32 v9, v9, v10")
    e("v_and_b32 v10, 63, v0\nv_cmp_gt_u32 vcc, 8, v10\ns_and_saveexec_b64 s[28:29], vcc")
    e("ds_write_b128 v9, v[48:51]\nds_write_b128 v9, v[52:55] offset:16")
    e("s_mov_b64 exec, s[28:29]")
    e("s_waitcnt lgkmcnt(0)\ns_barrier")
    e("v_cmp_gt_u32 vcc, 64, v0\ns_and_saveexec_b64 s[28:29], vcc")
    e(f"s_cbranch_execz {k.lab('end')}")
    e("v_lshlrev_b32 v9, 2, v0")
    for w in range(4): e(f"ds_read_b32 v{12+w}, v9 offset:{w*256}")
    e("s_waitcnt lgkmcnt(0)")
    e("v_add_f32 v12, v12, v13\nv_add_f32 v14, v14, v15\nv_add_f32 v12, v12, v14")
    e("s_mul_i32 s26, s24, 24576\ns_lshl_b32 s27, s25, 8\ns_add_u32 s26, s26, s27")
    e("buffer_store_dword v12, v9, s[20:23], s26 offen")
    k.stamp_flush(0, 56)
    e("s_endpgm")
    e(f"{k.lab('aux')}:")
    e(f"s_waitcnt lgkmcnt(0)\ns_sub_u32 s24, s2, {NG}")
    k.srd(12, 10, 0, S * D * 2)
    e("s_lshl_b32 s25, s24, 15\nv_lshlrev_b32 v1, 7, v0\nbuffer_load_dword v2, v1, s[12:15], s25 offen")
    e(f"s_add_u32 s16, s8, {WS_CNT:#x}\ns_addc_u32 s17, s9, 0\ns_mov_b32 s18, {CNT_BYTES}\ns_mov_b32 s19, 0x20000")
    e("s_lshl_b32 s25, s24, 12\nv_lshlrev_b32 v3, 4, v0\nv_mov_b32 v4, 0\nv_mov_b32 v5, 0\nv_mov_b32 v6, 0\nv_mov_b32 v7, 0\nbuffer_store_dwordx4 v[4:7], v3, s[16:19], s25 offen")
    assert CNT_BYTES <= 128 * 4096
    if gen.DIAG:
        k.stamp(1); k.stamp(2)
        k.a.lines.append("  s_nop 0")
    k.finish()
    return k

def gemv_body(k, CV, WV, AC, TMP, srd_c, srd_w, ssoff):
    e = k.e
    for i in range(8): e(f"buffer_load_ushort v{CV+i}, v4, {srd_c}, 0 offen offset:{i*64}")
    for i in range(8): e(f"s_mov_b32 s{ssoff+i}, {i*32*12288}")
    for i in range(8): e(f"buffer_load_dwordx4 {v(WV+4*i,4)}, v5, {srd_w}, s{ssoff+i} offen")
    gemv_finish(k, CV, WV, AC, TMP)

def gemv_finish(k, CV, WV, AC, TMP):
    e = k.e
    for j in range(8): e(f"v_mov_b32 v{AC+j}, 0")
    e("s_waitcnt vmcnt(8)")
    k.stamp(1) if not isinstance(k, PK) else None
    for i in range(8):
        x = CV + i
        e(f"v_lshlrev_b32 v{x}, 16, v{x}")
        e(f"v_mul_f32 v{TMP}, {f32(-LOG2E)}, v{x}\nv_exp_f32 v{TMP}, v{TMP}\nv_add_f32 v{TMP}, 1.0, v{TMP}\nv_rcp_f32 v{TMP}, v{TMP}\nv_mul_f32 v{x}, v{x}, v{TMP}")
        round_bf16(e, x)
    for i in range(8):
        e(f"s_waitcnt vmcnt({7-i})")
        for j in range(4):
            w = WV + 4 * i + j
            e(f"v_lshlrev_b32 v{TMP}, 16, v{w}\nv_and_b32 v{TMP+1}, 0xffff0000, v{w}")
            e(f"v_fmac_f32 v{AC+2*j}, v{CV+i}, v{TMP}\nv_fmac_f32 v{AC+2*j+1}, v{CV+i}, v{TMP+1}")
    wave_sum(e, list(range(AC, AC + 8)), TMP, [3, 4, 5])

def k_probe(idx, mult):
    k = Kern("probe_kernel", 1, 64, 0, 64); e = k.e
    e("s_cmp_ge_u32 s2, 1\ns_cbranch_scc1 probe_kernel_end")
    k.ptr(8, KA_WS); k.ptr(10, KA_DBG)
    e("s_waitcnt lgkmcnt(0)")
    k.srd(12, 8, WS_STAMP, 16 * 512 * 16); k.srd(20, 10, 0, 256)
    e("v_lshlrev_b32 v1, 4, v0\nv_lshlrev_b32 v2, 6, v0")
    for c in range(6): e(f"s_mov_b32 s24, {(c%2)*64*16}\nbuffer_load_dword v{8+c}, v1, s[12:15], s24 offen")
    for c in range(4): e(f"s_mov_b32 s24, {8*512*16 + c*64*64 + idx*4}\nbuffer_load_dword v{16+c}, v2, s[12:15], s24 offen")
    e("s_waitcnt vmcnt(0)")
    for c in range(1, 6): e(f"v_min_u32 v8, v8, v{8+c}")
    for c in range(1, 4): e(f"v_max_u32 v16, v16, v{16+c}")
    def red(r, op):
        for b in range(4): e(f"{op}_dpp v{r}, v{r}, v{r} row_ror:{1<<b} row_mask:0xf bank_mask:0xf")
        for w in (16, 32):
            e(f"v_mov_b32 v40, v{r}\nv_permlane{w}_swap_b32 v40, v{r}\n{op} v{r}, v{r}, v40")
    red(8, "v_min_u32"); red(16, "v_max_u32")
    e("v_sub_u32 v16, v16, v8\nv_mov_b32 v13, 0\nbuffer_store_dword v16, v13, s[20:23], 0 offen\nv_readfirstlane_b32 s30, v16")
    e(f"s_mul_i32 s30, s30, {mult}\ns_min_u32 s30, s30, 100000")
    e("s_memrealtime s[32:33]\ns_waitcnt lgkmcnt(0)")
    e("probe_spin:\ns_memrealtime s[34:35]\ns_waitcnt lgkmcnt(0)\ns_sub_u32 s36, s34, s32\ns_cmp_lt_u32 s36, s30\ns_cbranch_scc1 probe_spin")
    k.finish()
    return k

PROBE = None
def build():
    if "single" in OPT: return [k_main()]
    if PROBE is not None: return [k_mod2(), k_main(), k_probe(*PROBE)]
    if "hsep" in OPT: return [k_mod2(), gen.k_h(True), k_main()]
    return [k_mod2(), k_main()]

if __name__ == "__main__":
    for a_ in list(sys.argv):
        if a_.startswith("--opt="): OPT = set(a_[6:].split(",")); sys.argv.remove(a_)
        if a_.startswith("--pfstage="): PFSTAGE = int(a_[10:]); sys.argv.remove(a_)
        if a_.startswith("--scs="): SCS = " " + a_[6:].replace("+", " "); sys.argv.remove(a_)
        if a_.startswith("--l2d="): L2D = int(a_[6:]); sys.argv.remove(a_)
        if a_.startswith("--probe="): PROBE = tuple(int(x) for x in a_[8:].split(",")); sys.argv.remove(a_)
        if a_.startswith("--mrstep="): MRSTEP = int(a_[9:]); sys.argv.remove(a_)
        if a_.startswith("--align="):
            for kv in a_[8:].split(","):
                k_, v_ = kv.split(":"); ALIGN[k_] = None if v_ == "n" else int(v_)
            sys.argv.remove(a_)
        if a_.startswith("--pipe="): PIPE, PGAP = [int(x) for x in a_[7:].split(",")]; sys.argv.remove(a_)
        if a_.startswith("--sleep="): SLEEP = int(a_[8:]); sys.argv.remove(a_)
    if "--diag" in sys.argv: DIAG = True; gen.DIAG = True; sys.argv.remove("--diag")
    txt = emit(build(), header())
    if "single" in OPT and "aslist" not in OPT:
        txt = txt.replace(f"; @launch kernel={NAME}_kernel grid=", "; @launch grid=")
    out = sys.argv[1]
    open(out, "w").write(txt)
    print("wrote", out, len(txt), "bytes")
```

```python
import sys
from asmlib import *
import gen
from gen import (NAME, S, D, DFF, H, KA_X, KA_WQKV, KA_WO, KA_BX, KA_W1, KA_W2, KA_C, KA_WMOD, KA_OUT, KA_DBG, KA_WS,
                 WS_MODP, WS_MODF, WS_H, WS_QKV, WS_O, WS_X1, WS_F1, WS_XG, WS_STAT, WS_UB, WS_STAMP, LOG2E, f32, Kern,
                 wave_sum, round_bf16, interleave, header, emit)

WS_F1A = WS_H
WS_CNT = 0x2f00000
C_QKV, C_ATT, C_WO, C_UB, C_F1, C_H = 0, 16, 24, 40, 56, 72
C_MR, C_MRALL, C_ATTALL = 88, 152, 153
NCNT = 160
FL_BASE = NCNT * 256 + 1536
FL_BASE = (FL_BASE + 255) // 256 * 256
FL = {"qkv": FL_BASE, "att": FL_BASE + 256 * 128, "wo": FL_BASE + 256 * 128 + 256 * 256, "f1": FL_BASE + 256 * 256 + 2 * 256 * 128, "f2": FL_BASE + 256 * 256 + 3 * 256 * 128}
FL["xch"] = FL_BASE + 256 * 256 + 4 * 256 * 128
FL["mr"] = FL["xch"] + 256 * 128
FL["f1b"] = FL["mr"] + 8 * 128
CNT_BYTES = FL["f1b"] + 64 * 128
WS_XCH = 0x3800000
OPT = set()
DIAG = False
SC = " sc1"
SCS = " sc1"
P_WS, P_X, P_WQKV, P_W1, P_W2, P_WO, P_OUT = 66, 68, 70, 72, 74, 76, 78
CNT = 28
CTL = 138240
L_SIG = {"qkv": CTL, "att": CTL + 4, "wo": CTL + 8, "ub": CTL + 12, "f1": CTL + 16, "h": CTL + 20, "mr": CTL + 24, "g": CTL + 28, "wo2": CTL + 44 + 116}
L_DEP = {"wo": CTL + 32, "f1": CTL + 36, "f2": CTL + 40, "qkv": CTL + 44}
L_STAMP = CTL + 64
LDS_TOTAL = CTL + 256
SPIN_MAX = 400000
SLEEP = 2
PIPE = 1
PGAP = 2
ALIGN = {}
PFSTAGE = 7
L2D = 8
WO_NS = 5
LTD = 2
MRSTEP = 9

def exec_mask(n):
    if n < 32: return f"s_mov_b64 exec, {(1 << n) - 1:#x}"
    return f"s_mov_b32 exec_lo, -1\ns_mov_b32 exec_hi, {(1 << (n - 32)) - 1:#x}"

def align(k, name):
    a = ALIGN.get(name, ALIGN.get("all", 0))
    if a is None: return
    k.a.lines.append(".p2align 6")
    for _ in range(a): k.e("s_nop 0")

class PK(Kern):
    def st(self, i, wave=0):
        if not DIAG: return
        e = self.e; n = self.lab(f"st{i}")
        e(f"s_cmp_lg_u32 s24, {wave}\ns_cbranch_scc1 {n}\n{'s_memtime' if 'cyc' in OPT else 's_memrealtime'} s[98:99]\ns_waitcnt lgkmcnt(0)\nv_mov_b32 v254, s98\nv_mov_b32 v255, {L_STAMP+4*i}\nds_write_b32 v255, v254\ns_waitcnt lgkmcnt(0)\n{n}:")
    def code_touch(self, tag, frm, to, part_sreg, nparts, per):
        if "code" not in OPT: return 0
        e = self.e; here = self.lab("pc" + tag)
        e(f"s_getpc_b64 s[90:91]\n{here}:\ns_add_u32 s90, s90, {frm}-{here}\ns_addc_u32 s91, s91, 0")
        e(f"s_mul_i32 s92, s{part_sreg}, {per*8192}\nv_lshlrev_b32 v252, 7, v2\nv_add_u32 v252, s92, v252")
        for i in range(per):
            if i: e("v_add_u32 v252, 8192, v252")
            e(f"v_min_u32 v251, {to}-{frm}-4, v252\nglobal_load_dword v253, v251, s[90:91]")
        return per
    def poll(self, tag, cnt_sreg, target, lanes=1):
        e = self.e; L = self.lab
        if cnt_sreg is not None: e(f"s_lshl_b32 s32, s{cnt_sreg}, 8\nv_mov_b32 v6, s32")
        e(f"s_mov_b32 s33, 0\ns_mov_b64 exec, {(1 << lanes) - 1}")
        e(f"{L('poll'+tag)}:")
        e(f"buffer_load_dword v7, v6, {s(CNT,4)}, 0 offen offset:{0 if 'direct' in OPT else 128} sc1\ns_waitcnt vmcnt(0)")
        e(f"v_cmp_gt_u32 vcc, {target}, v7\ns_cmp_eq_u64 vcc, 0\ns_cbranch_scc1 {L('pollx'+tag)}")
        e(f"s_add_u32 s33, s33, 1\ns_cmp_ge_u32 s33, {SPIN_MAX}\ns_cbranch_scc1 {L('pollx'+tag)}")
        e(f"s_sleep {SLEEP}\ns_branch {L('poll'+tag)}")
        e(f"{L('pollx'+tag)}:\ns_mov_b64 exec, -1")
    def dep_wait_loaders(self, tag, cnt_sreg, target, first_wave_cond):
        e = self.e; L = self.lab
        e(f"s_cmp_lg_u32 s24, 4\ns_cbranch_scc1 {L('dw'+tag)}")
        if "noflags" in OPT: self.poll(tag, cnt_sreg, target)
        else:
            if tag == "f2" and "nos2" not in OPT:
                e(f"s_lshl_b32 s34, s25, 1\ns_add_u32 s34, s34, s27\ns_lshl_b32 s34, s34, 7\ns_add_u32 s34, s34, {FL[tag]}")
            elif tag == "f2":
                e(f"s_lshl_b32 s34, s25, 4\ns_add_u32 s34, s34, s26\ns_lshl_b32 s34, s34, 7\ns_add_u32 s34, s34, {FL[tag]}")
            elif tag == "wo":
                e(f"s_lshr_b32 s34, s25, 1\ns_lshl_b32 s34, s34, 1\ns_lshr_b32 s33, s26, 3\ns_add_u32 s34, s34, s33\ns_lshl_b32 s34, s34, 7\ns_add_u32 s34, s34, {FL[tag]}")
            else:
                e(f"s_lshl_b32 s34, s25, 2\ns_lshr_b32 s33, s26, 2\ns_add_u32 s34, s34, s33\ns_lshl_b32 s34, s34, 7\ns_add_u32 s34, s34, {FL[tag]}")
            self.wait_flags(tag, target, 34)
        e(f"v_mov_b32 v6, {L_DEP[tag]}\nv_mov_b32 v7, 1\nds_write_b32 v6, v7\ns_waitcnt lgkmcnt(0)\ns_branch {L('dwx'+tag)}")
        e(f"{L('dw'+tag)}:")
        e(f"v_mov_b32 v6, {L_DEP[tag]}\ns_mov_b32 s33, 0")
        e(f"{L('dwl'+tag)}:")
        e(f"ds_read_b32 v7, v6\ns_waitcnt lgkmcnt(0)\nv_readfirstlane_b32 s34, v7")
        e(f"s_cmp_lg_u32 s34, 0\ns_cbranch_scc1 {L('dwx'+tag)}")
        e(f"s_add_u32 s33, s33, 1\ns_cmp_ge_u32 s33, {SPIN_MAX*4}\ns_cbranch_scc1 {L('dwx'+tag)}")
        e(f"s_sleep 1\ns_branch {L('dwl'+tag)}")
        e(f"{L('dwx'+tag)}:")
    def arrive(self, tag, cnt_sreg, target):
        e = self.e; L = self.lab
        e(f"s_lshl_b32 s33, s{cnt_sreg}, 8\nv_mov_b32 v6, s33\nv_mov_b32 v7, 1")
        if "direct" in OPT:
            e(f"buffer_atomic_add v7, v6, {s(CNT,4)}, 0 offen sc1")
            return
        e(f"buffer_atomic_add v7, v6, {s(CNT,4)}, 0 offen sc0 sc1\ns_waitcnt vmcnt(0)\nv_readfirstlane_b32 s33, v7")
        e(f"s_cmp_lg_u32 s33, {target-1}\ns_cbranch_scc1 {L('arr'+tag)}")
        e(f"v_mov_b32 v7, {target}\nbuffer_store_dword v7, v6, {s(CNT,4)}, 0 offen offset:128 sc1")
        e(f"{L('arr'+tag)}:")
    def signal(self, tag, nwaves, cnt_sreg, target, flags=None, younger=0):
        e = self.e; L = self.lab
        e(f"s_waitcnt vmcnt({younger})")
        e(f"v_mov_b32 v6, {L_SIG[tag]}\nv_mov_b32 v7, 1\ns_mov_b64 exec, 1")
        e("ds_add_rtn_u32 v7, v6, v7\ns_waitcnt lgkmcnt(0)\nv_readfirstlane_b32 s32, v7\ns_mov_b64 exec, -1")
        e(f"s_cmp_lg_u32 s32, {nwaves-1}\ns_cbranch_scc1 {L('sig'+tag)}")
        if flags is not None and "noflags" not in OPT:
            n, offs = flags
            offs()
            e("v_mov_b32 v7, 1\n" + exec_mask(n))
            e(f"buffer_store_dword v7, v6, {s(CNT,4)}, 0 offen sc1")
        else:
            e("s_mov_b64 exec, 1")
            self.arrive(tag, cnt_sreg, target)
        e(f"{L('sig'+tag)}:\ns_mov_b64 exec, -1")
    def wait_flags(self, tag, n, base_sreg):
        e = self.e; L = self.lab
        e(f"v_lshlrev_b32 v6, 2, v2\nv_add_u32 v6, s{base_sreg}, v6\ns_mov_b32 s33, 0")
        e(exec_mask(n))
        if PIPE <= 1:
            e(f"{L('poll'+tag)}:")
            e(f"buffer_load_dword v7, v6, {s(CNT,4)}, 0 offen sc1\ns_waitcnt vmcnt(0)")
            e(f"v_cmp_ne_u32 vcc, 1, v7\ns_cmp_eq_u64 vcc, 0\ns_cbranch_scc1 {L('pollx'+tag)}")
            e(f"s_add_u32 s33, s33, 1\ns_cmp_ge_u32 s33, {SPIN_MAX}\ns_cbranch_scc1 {L('pollx'+tag)}")
            e(f"s_sleep {SLEEP}\ns_branch {L('poll'+tag)}")
        else:
            e("s_waitcnt vmcnt(0)")
            for i in range(PIPE):
                e(f"buffer_load_dword v{244+i}, v6, {s(CNT,4)}, 0 offen sc1")
                if i < PIPE - 1: e(f"s_sleep {PGAP}")
            e(f"{L('poll'+tag)}:")
            for i in range(PIPE):
                e(f"s_waitcnt vmcnt({PIPE-1})\nv_cmp_ne_u32 vcc, 1, v{244+i}\ns_cmp_eq_u64 vcc, 0\ns_cbranch_scc1 {L('pollx'+tag)}")
                e(f"buffer_load_dword v{244+i}, v6, {s(CNT,4)}, 0 offen sc1\ns_sleep {PGAP}")
            e(f"s_add_u32 s33, s33, 1\ns_cmp_lt_u32 s33, {SPIN_MAX}\ns_cbranch_scc1 {L('poll'+tag)}")
        e(f"{L('pollx'+tag)}:\ns_mov_b64 exec, -1")

def CHAIN(): return 'nochain' not in OPT and 'modall' not in OPT and 'mrwo' not in OPT

def F1OFF(): return WS_F1A if 'alias' in OPT else WS_F1

def tile_map(e, xr, xc):
    nxc = 16 // xc
    e(f"s_and_b32 s36, s2, 7\ns_lshr_b32 s37, s2, 3")
    e(f"s_and_b32 s38, s36, {nxc-1}\ns_lshr_b32 s39, s36, {nxc.bit_length()-1}")
    e(f"s_and_b32 s40, s37, {xc-1}\ns_lshr_b32 s41, s37, {xc.bit_length()-1}")
    e(f"s_mul_i32 s38, s38, {xc}\ns_add_u32 s26, s38, s40")
    e(f"s_mul_i32 s39, s39, {xr}\ns_add_u32 s25, s39, s41")

def tile_map_s2(e):
    e("s_and_b32 s36, s2, 7\ns_lshr_b32 s37, s2, 3\ns_and_b32 s27, s36, 1\ns_lshr_b32 s36, s36, 1")
    if "rot2" in OPT: e("s_add_u32 s26, s37, 1\ns_and_b32 s26, s26, 7\ns_lshr_b32 s37, s37, 3\ns_lshl_b32 s36, s36, 2\ns_add_u32 s25, s36, s37")
    else: e("s_and_b32 s26, s37, 7\ns_lshr_b32 s37, s37, 3\ns_lshl_b32 s36, s36, 2\ns_add_u32 s25, s36, s37")

def gemm_phase(k, tag, K, lda, ldb, BN, srcA, sizeA, pB, sizeB, epi, xr, xc, NS, nxt_c, nxt_l, dep=None, stamps=(None, None), hbar=False):
    e = k.e
    L = lambda n: k.lab(tag + "_" + n)
    BM, BK = 128, 64
    nA = BM * BK * 2 // 1024; nB = BN * BK * 2 // 1024
    nAw, nBw = nA // 4, nB // 4
    nld = nAw + nBw
    SB = (nA + nB) * 1024
    s2 = epi == "ffn2s"
    nk = K // BK // (2 if s2 else 1)
    TM, TN = 64, BN // 2
    mt, nt = TM // 16, TN // 16
    pitch = BN * 2; cpr = BN // 8
    hbits = {4: 2, 6: 1, 2: 1, 0: 3}[(pitch // 32) % 8]
    ACC = 8; NACC = 4 * mt * nt
    FA = ACC + NACC; NF = 4 * (mt + nt); FB = FA + NF
    AX = FB + NF; AW = AX + 2; EP = AW + nt
    XL = 135168
    assert SB * NS <= XL
    perm = epi == "qkv" and "perm" in OPT
    asc = SC if dep else ""
    e(f"{L('c')}:")
    if s2: tile_map_s2(e)
    else: tile_map(e, xr, xc)
    e("s_lshr_b32 s42, s24, 1\ns_and_b32 s43, s24, 1")
    e("v_and_b32 v3, 15, v2\nv_lshrrev_b32 v4, 4, v2")
    e(f"s_lshl_b32 s44, s25, 7\ns_lshl_b32 s45, s42, 6\ns_add_u32 s44, s44, s45")
    e(f"s_mul_i32 s46, s26, {BN}\ns_mul_i32 s45, s43, {TN}\ns_add_u32 s46, s46, s45")
    k.srd(20, P_WS, WS_MODF, 6144 * 4)
    if epi == "qkv": k.srd(12, P_WS, WS_QKV, 96 * S * 64)
    elif epi == "ffn1": k.srd(12, P_WS, F1OFF(), S * DFF * 2)
    elif epi == "wo": k.srd(12, P_WS, WS_X1, S * D * 2); k.srd(16, P_X, 0, S * D * 2)
    elif epi in ("ffn2", "ffn2s"): k.srd(12, P_OUT, 0, S * D * 2); k.srd(16, P_WS, WS_X1, S * D * 2)
    G = EP + 2 * mt * nt; GG = G + 4 * nt; W1R = GG + 4 * nt
    if s2:
        G = EP + 16
        e("s_lshl_b32 s47, s27, 5\ns_add_u32 s46, s46, s47")
        e("s_lshl_b32 s47, s25, 4\ns_lshl_b32 s48, s26, 1\ns_add_u32 s47, s47, s48\ns_add_u32 s47, s47, s43\ns_lshl_b32 s47, s47, 2\ns_lshl_b32 s48, s42, 1\ns_add_u32 s47, s47, s48\ns_add_u32 s47, s47, s27\ns_lshl_b32 s47, s47, 12")
        e("v_lshlrev_b32 v5, 4, v2")
        for j in range(mt):
            e(f"buffer_load_dwordx4 {v(EP+4*j,4)}, v5, s[16:19], s47 offen offset:{j*1024}{SC}")
        if not CHAIN(): k.srd(20, P_WS, WS_MODP, 4 * 6144 * 4)
        e(f"v_lshlrev_b32 v6, 4, v4\ns_lshl_b32 s47, s46, 2\ns_add_u32 s47, s47, {5*1024*4}")
        for p_ in range(1 if CHAIN() else 4):
            for i in range(2):
                e(f"buffer_load_dwordx4 {v(G+8*p_+4*i,4)}, v6, s[20:23], s47 offen offset:{i*64}{SC}")
            if p_ < 3 and not CHAIN(): e("s_add_u32 s47, s47, 24576")
    if epi == "wo" and "modall" not in OPT and "mrwo" in OPT:
        e(f"s_load_dwordx4 s[36:39], s[0:1], {KA_C}")
        e("s_and_b32 s58, s2, 3\ns_lshr_b32 s59, s2, 2\ns_add_u32 s59, s59, 32")
        e("v_lshrrev_b32 v6, 3, v0\nv_and_b32 v7, 7, v0\nv_mov_b32 v247, v7")
        e("s_lshl_b32 s47, s58, 8\nv_add_u32 v6, s47, v6\nv_lshlrev_b32 v248, 1, v6")
        e("v_mul_u32_u24 v5, 12288, v6\nv_lshlrev_b32 v6, 4, v7\nv_add_u32 v5, v5, v6\ns_lshl_b32 s47, s59, 7\nv_add_u32 v5, s47, v5")
        e("s_waitcnt lgkmcnt(0)")
        k.srd(52, 36, 0, 2048); k.srd(60, 38, 0, 1024 * 6144 * 2)
        for i in range(8): e(f"buffer_load_ushort v{176+i}, v248, s[52:55], 0 offen offset:{i*64}")
        for i in range(8):
            e(f"s_mov_b32 s47, {i*32*12288}\nbuffer_load_dwordx4 {v(184+4*i,4)}, v5, s[60:63], s47 offen")
        gemv_finish(k, 176, 184, 216, 224)
        MRL = 139264
        e(f"s_lshl_b32 s47, s24, 8\nv_lshlrev_b32 v5, 5, v247\nv_add_u32 v5, s47, v5\nv_add_u32 v5, {MRL}, v5")
        e("s_mov_b64 exec, 0xff\nds_write_b128 v5, v[216:219]\nds_write_b128 v5, v[220:223] offset:16\ns_waitcnt lgkmcnt(0)")
        e(f"v_mov_b32 v6, {L_SIG['mr']}\nv_mov_b32 v7, 1\ns_mov_b64 exec, 1\nds_add_rtn_u32 v7, v6, v7\ns_waitcnt lgkmcnt(0)\nv_readfirstlane_b32 s47, v7\ns_mov_b64 exec, -1")
        e(f"s_cmp_lg_u32 s47, 3\ns_cbranch_scc1 {L('mrx')}")
        e(f"v_lshlrev_b32 v5, 2, v2\nv_add_u32 v6, {MRL}, v5")
        for w_ in range(4): e(f"ds_read_b32 v{216+w_}, v6 offset:{w_*256}")
        e("s_waitcnt lgkmcnt(0)\nv_add_f32 v216, v216, v217\nv_add_f32 v218, v218, v219\nv_add_f32 v216, v216, v218")
        k.srd(52, P_WS, WS_MODP, 4 * 6144 * 4)
        e("s_mul_i32 s47, s58, 24576\ns_lshl_b32 s48, s59, 8\ns_add_u32 s47, s47, s48")
        e(f"buffer_store_dword v216, v5, s[52:55], s47 offen{SCS}\ns_waitcnt vmcnt(0)")
        e(f"v_mov_b32 v6, {C_MRALL*256}\nv_mov_b32 v7, 1\ns_mov_b64 exec, 1\nbuffer_atomic_add v7, v6, {s(CNT,4)}, 0 offen sc1\ns_mov_b64 exec, -1")
        e(f"{L('mrx')}:")
    if epi in ("wo", "ffn2"):
        if epi == "wo":
            e(f"v_add_u32 v5, s44, v3\nv_lshlrev_b32 v5, 11, v5\nv_lshlrev_b32 v6, 3, v4\nv_add_u32 v5, v5, v6")
            e(f"s_lshl_b32 s47, s46, 1\nv_add_u32 v5, s47, v5")
            for j in range(mt):
                e(f"s_mov_b32 s48, {j*16*2048}")
                for i in range(nt):
                    e(f"buffer_load_dwordx2 {v(EP+2*(j*nt+i),2)}, v5, s[16:19], s48 offen offset:{i*32}")
        else:
            e("s_lshl_b32 s47, s25, 4\ns_add_u32 s47, s47, s26\ns_lshl_b32 s47, s47, 2\ns_add_u32 s47, s47, s24\ns_lshl_b32 s47, s47, 12\nv_lshlrev_b32 v5, 4, v2")
            for j in range(mt):
                e(f"buffer_load_dwordx4 {v(EP+4*j,4)}, v5, s[16:19], s47 offen offset:{j*1024}{SC}")
        if epi == "ffn2":
            raise NotImplementedError
        if epi == "wo" and CHAIN():
            e(f"s_and_b32 s35, s2, 7\ns_lshl_b32 s35, s35, 7\ns_add_u32 s35, s35, {FL['mr']}")
            k.wait_flags("mr", 1, 35)
            e(f"v_lshlrev_b32 v6, 4, v4\ns_lshl_b32 s47, s46, 2\ns_add_u32 s47, s47, {2*1024*4}")
            for i in range(nt):
                e(f"buffer_load_dwordx4 {v(G+4*i,4)}, v6, s[20:23], s47 offen offset:{i*64}{SC}")
            e(f"s_lshl_b32 s47, s46, 2\ns_add_u32 s47, s47, {4096*4}")
            for i in range(nt):
                e(f"buffer_load_dwordx4 {v(GG+4*i,4)}, v6, s[20:23], s47 offen offset:{i*64}{SC}")
        if epi == "wo":
            if "ubold" in OPT:
                e("s_lshr_b32 s58, s2, 4\ns_and_b32 s59, s2, 15")
            else:
                e("s_lshr_b32 s60, s2, 3\ns_and_b32 s59, s2, 3\ns_lshl_b32 s59, s59, 2\ns_and_b32 s61, s60, 3\ns_add_u32 s59, s59, s61")
                e("s_bfe_u32 s58, s2, 0x10002\ns_lshl_b32 s58, s58, 3\ns_lshr_b32 s61, s60, 2\ns_add_u32 s58, s58, s61")
            e(f"v_mul_u32_u24 v5, {(65536+27)//28}, v2\nv_lshrrev_b32 v5, 16, v5\nv_mul_u32_u24 v6, 28, v5\nv_sub_u32 v6, v2, v6")
            e("s_lshl_b32 s60, s58, 6\ns_lshl_b32 s61, s24, 4\ns_add_u32 s60, s60, s61\nv_add_u32 v5, s60, v5")
            e(f"v_mul_u32_u24 v7, {DFF*2}, v5\nv_lshlrev_b32 v6, 4, v6\nv_add_u32 v7, v7, v6\ns_mul_i32 s60, s59, 448\nv_add_u32 v7, s60, v7")
            k.srd(60, P_W1, 0, D * DFF * 2)
            e("v_cmp_gt_u32 vcc, 56, v2\ns_and_saveexec_b64 s[34:35], vcc")
            for i in range(8):
                e(f"s_mov_b32 s64, {i*2*DFF*2}")
                e(f"buffer_load_dwordx4 {v(W1R+4*i,4)}, v7, s[60:63], s64 offen")
            if CHAIN():
                e("v_lshlrev_b32 v5, 2, v5")
                e(f"s_mov_b32 s64, {4096*4}\ns_mov_b32 s65, {3072*4}")
                for i in range(8):
                    e(f"buffer_load_dword v{W1R+32+i}, v5, s[20:23], s64 offen offset:{i*8}{SC}")
                    e(f"buffer_load_dword v{W1R+40+i}, v5, s[20:23], s65 offen offset:{i*8}{SC}")
            e("s_mov_b64 exec, s[34:35]")
    e(f"v_lshrrev_b32 v5, 1, v3\nv_xor_b32 v5, v5, v4\nv_and_b32 v5, 7, v5")
    e(f"v_lshlrev_b32 v5, 4, v5\ns_lshl_b32 s47, s42, 6\nv_add_u32 v6, s47, v3\nv_lshlrev_b32 v6, 7, v6")
    e(f"v_add_u32 v{AX}, v5, v6\nv_xor_b32 v{AX+1}, 64, v{AX}")
    e("v_lshrrev_b32 v5, 2, v3\nv_and_b32 v6, 3, v2")
    e("v_lshlrev_b32 v7, 3, v4\nv_add_u32 v7, v7, v5")
    e(f"v_mul_u32_u24 v7, {pitch}, v7\nv_lshlrev_b32 v6, 3, v6\nv_add_u32 v7, v7, v6\nv_add_u32 v7, {nA*1024}, v7")
    if hbits == 2: e("v_lshrrev_b32 v5, 1, v5\nv_and_b32 v6, 1, v4\nv_lshlrev_b32 v6, 1, v6\nv_or_b32 v5, v5, v6")
    elif hbits == 1: e("v_and_b32 v5, 1, v4")
    else: e("v_and_b32 v6, 1, v4\nv_lshlrev_b32 v6, 2, v6\nv_or_b32 v5, v5, v6")
    e(f"s_mul_i32 s47, s43, {nt}")
    for i in range(nt):
        e(f"s_add_u32 s48, s47, {i}\nv_xor_b32 v6, s48, v5\nv_lshlrev_b32 v6, 5, v6\nv_add_u32 v{AW+i}, v7, v6")
    for r in range(NACC): e(f"v_mov_b32 v{ACC+r}, 0")
    def reads(ss, F):
        xs = [f"ds_read_b128 {v(F+4*j,4)}, v{AX+ss} offset:{j*2048}" for j in range(mt)]
        ws = []
        for i in range(nt):
            for hh in range(2):
                ws.append(f"ds_read_b64_tr_b16 {v(F+4*mt+4*i+2*hh,2)}, v{AW+i} offset:{(ss*32+hh*4)*pitch}")
        return [xs[0]] + ws[:2] + xs[1:] + ws[2:]
    def mfmas(F):
        return [f"v_mfma_f32_16x16x32_bf16 {v(ACC+4*(j*nt+i),4)}, {v(F+4*mt+4*i,4)}, {v(F+4*j,4)}, {v(ACC+4*(j*nt+i),4)}"
                for j in range(mt) for i in range(nt)]
    def mix(mf, rd, extra=()):
        rd = list(rd)
        if len(rd) <= len(mf) - 4:
            return interleave(mf, rd + list(extra))
        out = []; oi = 0; ex = list(extra)
        for m_ in mf:
            out.append(m_)
            for _ in range(2):
                if oi < len(rd): out.append(rd[oi]); oi += 1
            if oi >= len(rd) and ex: out.append(ex.pop(0))
        out += rd[oi:] + ex
        return out
    if epi == "wo": k.code_touch("w", k.lab("f1_c"), k.lab("f2_c"), 24, 4, 1)
    if epi == "ffn1": k.code_touch("f", k.lab("f1_cloop"), k.lab("end"), 24, 4, 1)
    e(f"s_mov_b32 s49, 0\ns_mov_b32 s54, {SB}\ns_mov_b32 s55, {-(NS-1)*SB & 0xffffffff:#x}")
    e("s_barrier")
    if stamps[0] is not None: k.st(stamps[0])
    for l in reads(0, FA): e(l)
    l2pf = epi in ("qkv", "ffn1") and ("l2" + tag) in OPT
    if l2pf:
        k.srd(56, P_WS, srcA, sizeA); k.srd(60, pB, 0, sizeB)
        e(f"s_cmp_eq_u32 s24, 0\ns_cselect_b32 s65, {(nk-1) & 1}, 99")
        e("s_lshr_b32 s37, s2, 3")
        e(f"s_and_b32 s40, s37, {xc-1}\ns_lshr_b32 s41, s37, {xc.bit_length()-1}")
        e(f"v_lshrrev_b32 v5, 5, v2\nv_add_u32 v5, {L2D}, v5")
        e(f"v_and_b32 v6, 31, v2\ns_lshl_b32 s47, s40, 5\nv_add_u32 v6, s47, v6\ns_lshl_b32 s47, s25, 7\nv_add_u32 v6, s47, v6\nv_lshlrev_b32 v6, 11, v6\nv_lshlrev_b32 v7, 7, v5\nv_add_u32 v250, v6, v7")
        e(f"v_lshlrev_b32 v5, 6, v5\nv_lshrrev_b32 v6, 2, v2\nv_and_b32 v6, 7, v6\nv_add_u32 v5, v5, v6\ns_lshl_b32 s47, s41, 3\nv_add_u32 v5, s47, v5\ns_mov_b32 s47, {ldb*2}\nv_mul_lo_u32 v5, s47, v5")
        e(f"v_and_b32 v6, 3, v2\nv_lshlrev_b32 v6, 7, v6\nv_add_u32 v5, v5, v6\ns_mul_i32 s47, s26, {BN*2}\ns_and_b32 s47, s47, 0xffffff80\nv_add_u32 v249, s47, v5")
    e(f"s_mov_b32 s50, {nk-1}")
    adv_s = f"s_add_u32 s49, s49, 1\ns_cmp_eq_u32 s49, {NS}\ns_cselect_b32 s51, s55, s54\ns_cselect_b32 s49, 0, s49"
    adv_v = [f"v_add_u32 v{r}, s51, v{r}" for r in [AX, AX + 1] + [AW + i for i in range(nt)]]
    align(k, tag)
    e(f"{L('cloop')}:")
    if epi == "wo" and not CHAIN():
        if "modall" in OPT:
            e(f"s_cmp_eq_u32 s50, 12\ns_cbranch_scc0 {L('m2')}")
        else:
            e(f"s_cmp_eq_u32 s50, 11\ns_cbranch_scc0 {L('m1')}")
            e(f"v_mov_b32 v245, {C_MRALL*256}\nbuffer_load_dword v246, v245, {s(CNT,4)}, 0 offen sc1")
            e(f"{L('m1')}:\ns_cmp_eq_u32 s50, 8\ns_cbranch_scc0 {L('m2')}")
            e(f"s_waitcnt vmcnt(0)\nv_readfirstlane_b32 s47, v246\ns_cmp_ge_u32 s47, 256\ns_cbranch_scc1 {L('m1ok')}")
            e(f"v_mov_b32 v6, {C_MRALL*256 - 128}")
            k.poll("mr", None, 256)
            e(f"{L('m1ok')}:")
        k.srd(60, P_WS, WS_MODP, 4 * 6144 * 4)
        e("s_lshl_b32 s47, s26, 6\ns_lshr_b32 s48, s2, 4\ns_lshl_b32 s48, s48, 6\ns_cmp_ge_u32 s24, 2\ns_cselect_b32 s47, s48, s47")
        e("s_mov_b32 s48, 4096\ns_cmp_eq_u32 s24, 0\ns_cselect_b32 s48, 2048, s48\ns_cmp_eq_u32 s24, 3\ns_cselect_b32 s48, 3072, s48")
        e("s_add_u32 s47, s47, s48\ns_lshl_b32 s47, s47, 2\nv_lshlrev_b32 v245, 2, v2")
        for p_ in range(4):
            e(f"buffer_load_dword v{240+p_}, v245, s[60:63], s47 offen{SC}")
            if p_ < 3: e("s_add_u32 s47, s47, 24576")
        e(f"{L('m2')}:\ns_cmp_eq_u32 s50, 4\ns_cbranch_scc0 {L('m3')}")
        e("s_waitcnt vmcnt(0)\nv_add_f32 v240, v240, v241\nv_add_f32 v242, v242, v243\nv_add_f32 v240, v240, v242")
        round_bf16(e, 240)
        e("v_add_f32 v241, 1.0, v240")
        round_bf16(e, 241)
        e("s_sub_u32 s47, s24, 1\ns_cmp_lt_u32 s47, 2\ns_cselect_b64 vcc, -1, 0\nv_cndmask_b32 v240, v240, v241, vcc")
        e(f"s_lshl_b32 s47, s24, 8\ns_add_u32 s47, s47, 135168\nv_add_u32 v245, s47, v245\nds_write_b32 v245, v240")
        e(f"{L('m3')}:")
    if l2pf:
        e(f"s_and_b32 s47, s50, 1\ns_cmp_lg_u32 s47, s65\ns_cbranch_scc1 {L('nopf')}")
        e(f"buffer_load_dword v248, v250, s[56:59], 0 offen{asc}\nbuffer_load_dword v248, v249, s[60:63], 0 offen")
        e(f"v_add_u32 v250, 256, v250\nv_add_u32 v249, {2*64*ldb*2}, v249")
        e(f"{L('nopf')}:")
    def sprinkle(seq, extra, start):
        out = []; n_ = 0; ex = list(extra)
        for x in seq:
            out.append(x)
            if x.startswith("v_mfma"):
                n_ += 1
                if n_ > start and ex: out.append(ex.pop(0))
        return out + ex
    tight = "loose" not in OPT
    if not tight: e(adv_s)
    e("s_waitcnt lgkmcnt(0)")
    seq = mix(mfmas(FA), reads(1, FB))
    if tight: seq = sprinkle(seq, adv_s.split("\n"), 0)
    last_rd = max(i for i, x in enumerate(seq) if x.startswith("ds_read"))
    tail = [x for x in seq[last_rd + 1:]]
    seq = seq[:last_rd + 1]
    av = list(adv_v)
    for x in tail:
        seq.append(x)
        if av and x.startswith("v_mfma"): seq.append(av.pop(0))
    seq += av
    for l in seq: e(l)
    e("s_waitcnt lgkmcnt(0)\ns_barrier")
    seqb = mix(mfmas(FB), reads(0, FA))
    if tight:
        seqb = sprinkle(seqb, ["s_sub_u32 s50, s50, 1", "s_cmp_lg_u32 s50, 0"], 1)
        for l in seqb: e(l)
        e(f"s_cbranch_scc1 {L('cloop')}")
    else:
        for l in seqb: e(l)
        e(f"s_sub_u32 s50, s50, 1\ns_cmp_lg_u32 s50, 0\ns_cbranch_scc1 {L('cloop')}")
    e("s_waitcnt lgkmcnt(0)")
    for l in mix(mfmas(FA), reads(1, FB)): e(l)
    e("s_waitcnt lgkmcnt(0)")
    if epi != "qkv": e("s_barrier")
    for l in mfmas(FB): e(l)
    if stamps[1] is not None: k.st(stamps[1])
    T = FA
    def acc(i, j): return ACC + 4 * (j * nt + i)
    def pack_pair(ta, tb, dst):
        e(f"v_cvt_pk_bf16_f32 v{dst}, v{ta}, v{ta+1}\nv_cvt_pk_bf16_f32 v{dst+1}, v{ta+2}, v{ta+3}")
        e(f"v_cvt_pk_bf16_f32 v{dst+2}, v{tb}, v{tb+1}\nv_cvt_pk_bf16_f32 v{dst+3}, v{tb+2}, v{tb+3}")
        e(f"v_permlane16_swap_b32 v{dst}, v{dst+2}\nv_permlane16_swap_b32 v{dst+1}, v{dst+3}")
    e("v_and_b32 v5, 1, v4\nv_lshlrev_b32 v5, 5, v5\nv_lshrrev_b32 v6, 1, v4\nv_lshlrev_b32 v6, 4, v6\nv_add_u32 v5, v5, v6")
    if epi == "qkv":
        e("v_lshlrev_b32 v6, 6, v3\nv_add_u32 v5, v5, v6")
        n = 0
        for p in range(nt // 2):
            if perm:
                e(f"s_mul_i32 s52, s43, 96\ns_add_u32 s52, s52, {32*p}\ns_cmp_lt_u32 s52, 64\ns_cselect_b32 s53, {f32(LOG2E * 32 ** -0.5)}, 1.0")
                e("s_lshr_b32 s54, s52, 6\ns_lshl_b32 s54, s54, 5\ns_bfe_u32 s52, s52, 0x10005\ns_add_u32 s52, s52, s54\ns_lshl_b32 s54, s26, 1\ns_add_u32 s52, s52, s54")
                e("s_lshl_b32 s52, s52, 17\ns_lshl_b32 s54, s44, 6\ns_add_u32 s52, s52, s54")
            else:
                e(f"s_add_u32 s52, s46, {32*p}\ns_cmp_lt_u32 s52, 1024\ns_cselect_b32 s53, {f32(LOG2E * 32 ** -0.5)}, 1.0")
                e(f"s_lshl_b32 s52, s52, 12\ns_lshl_b32 s54, s44, 6\ns_add_u32 s52, s52, s54")
            e(f"s_cmp_eq_u32 s53, 1.0\ns_cbranch_scc1 {L(f'nosc{p}')}\nv_mov_b32 v6, s53")
            for j in range(mt):
                for t_ in (acc(2 * p, j), acc(2 * p + 1, j)):
                    for r in (0, 2): e(f"v_pk_mul_f32 {v(t_+r,2)}, {v(t_+r,2)}, v[6:7] op_sel_hi:[1,0]")
            e(f"{L(f'nosc{p}')}:")
            for j in range(mt):
                ta, tb = acc(2 * p, j), acc(2 * p + 1, j)
                d = T + 4 * (n % 8); n += 1
                pack_pair(ta, tb, d)
                e(f"buffer_store_dwordx4 {v(d,4)}, v5, s[12:15], s52 offen offset:{j*1024}{SCS}")
        e(f"s_add_u32 s35, s26, {C_QKV}")
        k.signal("qkv", 4, 35, 16, (6, lambda: e(f"s_mul_i32 s33, s26, 6\nv_add_u32 v6, s33, v2\nv_lshrrev_b32 v7, 5, v6\nv_and_b32 v6, 31, v6\nv_lshlrev_b32 v6, 8, v6"
                                                        f"\nv_lshlrev_b32 v7, 6, v7\nv_add_u32 v6, v6, v7"
                                                        f"\ns_lshl_b32 s33, s25, 2\ns_add_u32 s33, s33, {FL['att']}\nv_add_u32 v6, s33, v6")))

    elif epi == "ffn1":
        ST = FA; UU = FA + 8; BB = FA + 36; TMP = FA + 64; T = FA + 72
        e(f"s_lshl_b32 s47, s42, 6\nv_add_u32 v6, s47, v3\nv_lshlrev_b32 v6, 3, v6\nv_add_u32 v6, {XL}, v6")
        for j in range(mt): e(f"ds_read_b64 {v(ST+2*j,2)}, v6 offset:{j*128}")
        e(f"s_mul_i32 s47, s43, {TN*4}\ns_add_u32 s47, s47, {XL+1024}\nv_lshlrev_b32 v7, 4, v4\nv_add_u32 v7, s47, v7")
        for i in range(nt):
            e(f"ds_read_b128 {v(UU+4*i,4)}, v7 offset:{i*64}\nds_read_b128 {v(BB+4*i,4)}, v7 offset:{896+i*64}")
        e("s_lshl_b32 s47, s42, 6\nv_add_u32 v6, s47, v3\nv_lshlrev_b32 v6, 6, v6\nv_lshrrev_b32 v7, 1, v4\nv_lshlrev_b32 v7, 4, v7\nv_add_u32 v6, v6, v7")
        e("v_and_b32 v7, 1, v4\nv_lshlrev_b32 v5, 5, v7\nv_add_u32 v5, v5, v6")
        e("v_lshlrev_b32 v7, 10, v7\nv_add_u32 v6, v6, v7\ns_lshl_b32 s47, s43, 5\nv_add_u32 v6, s47, v6")
        e(f"s_mul_i32 s48, s25, 112\ns_mul_i32 s47, s26, 7\ns_add_u32 s48, s48, s47\ns_lshl_b32 s48, s48, 13")
        e(f"s_add_u32 s53, s48, {3*8192}")
        e("s_waitcnt lgkmcnt(0)")
        def ln(i, j, t):
            a_ = acc(i, j)
            for h_ in range(2):
                e(f"v_pk_fma_f32 {v(t+2*h_,2)}, {v(ST+2*j,2)}, {v(UU+4*i+2*h_,2)}, {v(BB+4*i+2*h_,2)} op_sel_hi:[0,1,1] neg_lo:[1,0,0] neg_hi:[1,0,0]")
            for h_ in range(2):
                e(f"v_pk_fma_f32 {v(a_+2*h_,2)}, {v(a_+2*h_,2)}, {v(ST+2*j,2)}, {v(t+2*h_,2)} op_sel:[0,1,0]")
        cnt = [0]
        def put(ta, tb, addr, soff, off):
            d = T + 4 * (cnt[0] % 4); cnt[0] += 1
            e(f"v_cvt_pk_bf16_f32 v{d}, v{ta}, v{ta+1}\nv_cvt_pk_bf16_f32 v{d+1}, v{ta+2}, v{ta+3}")
            e(f"v_cvt_pk_bf16_f32 v{d+2}, v{tb}, v{tb+1}\nv_cvt_pk_bf16_f32 v{d+3}, v{tb+2}, v{tb+3}")
            for q in range(4): e(f"v_pk_max_i16 v{d+q}, v{d+q}, 0")
            e(f"v_permlane16_swap_b32 v{d}, v{d+2}\nv_permlane16_swap_b32 v{d+1}, v{d+3}")
            e(f"buffer_store_dwordx4 {v(d,4)}, {addr}, s[12:15], {soff} offen offset:{off}{SCS}")
        XA = 139264; XR = T + 16
        e(f"s_lshl_b32 s47, s24, 10\nv_lshlrev_b32 v7, 4, v2\nv_add_u32 v7, s47, v7\nv_add_u32 v7, {XA}, v7")
        e(f"s_cmp_eq_u32 s43, 1\ns_cbranch_scc1 {L('ep1')}")
        for wn_ in range(2):
            if wn_ == 1: e(f"{L('ep1')}:\ns_add_u32 s48, s48, {4*8192}")
            single = 6 if wn_ == 0 else 0
            pairs = [(0, 1), (2, 3), (4, 5)] if wn_ == 0 else [(1, 2), (3, 4), (5, 6)]
            mine = (0, 1) if wn_ == 0 else (2, 3); give = (2, 3) if wn_ == 0 else (0, 1)
            for jj in (0, 2):
                ln(single, jj, TMP); ln(single, jj + 1, TMP + 4)
            for j in range(4):
                a_ = acc(single, j)
                e(f"v_cvt_pk_bf16_f32 v{XR+2*j}, v{a_}, v{a_+1}\nv_cvt_pk_bf16_f32 v{XR+2*j+1}, v{a_+2}, v{a_+3}")
            for q in range(8): e(f"v_pk_max_i16 v{XR+q}, v{XR+q}, 0")
            e(f"ds_write_b128 v7, {v(XR+2*give[0],4)}\ns_waitcnt lgkmcnt(0)")
            e(f"s_lshl_b32 s47, s24, 2\ns_add_u32 s47, s47, {CTL+48}\nv_mov_b32 v{TMP}, s47\nv_mov_b32 v{TMP+1}, 1\nds_write_b32 v{TMP}, v{TMP+1}")
            for pi, (ia, ib) in enumerate(pairs):
                for j in range(mt):
                    ln(ia, j, TMP); ln(ib, j, TMP + 4)
                    put(acc(ia, j), acc(ib, j), "v5", "s48", j * 1024)
                if pi < 2: e("s_add_u32 s48, s48, 8192")
            tg = f"x{wn_}"
            e(f"s_xor_b32 s47, s24, 1\ns_lshl_b32 s47, s47, 2\ns_add_u32 s47, s47, {CTL+48}\nv_mov_b32 v{TMP}, s47\ns_mov_b32 s33, 0")
            e(f"{L('xw'+tg)}:\nds_read_b32 v{TMP+1}, v{TMP}\ns_waitcnt lgkmcnt(0)\nv_readfirstlane_b32 s34, v{TMP+1}")
            e(f"s_cmp_lg_u32 s34, 0\ns_cbranch_scc1 {L('xx'+tg)}\ns_add_u32 s33, s33, 1\ns_cmp_lt_u32 s33, {SPIN_MAX}\ns_cbranch_scc1 {L('xw'+tg)}")
            e(f"{L('xx'+tg)}:")
            e(f"v_xor_b32 v7, 1024, v7\nds_read_b128 {v(TMP,4)}, v7\ns_waitcnt lgkmcnt(0)")
            for n_, j in enumerate(mine):
                d = T + 4 * (cnt[0] % 4); cnt[0] += 1
                own = XR + 2 * j; oth = TMP + 2 * n_
                a0, b0 = (own, oth) if wn_ == 0 else (oth, own)
                e(f"v_mov_b32 v{d}, v{a0}\nv_mov_b32 v{d+1}, v{a0+1}\nv_mov_b32 v{d+2}, v{b0}\nv_mov_b32 v{d+3}, v{b0+1}")
                e(f"v_permlane16_swap_b32 v{d}, v{d+2}\nv_permlane16_swap_b32 v{d+1}, v{d+3}")
                e(f"buffer_store_dwordx4 {v(d,4)}, v5, s[12:15], s53 offen offset:{j*1024}{SCS}")
            if wn_ == 0: e(f"s_branch {L('ep2')}")
        e(f"{L('ep2')}:")
        if "stf1" in OPT: k.st(12)
        e(f"s_add_u32 s35, s25, {C_F1}")
        k.signal("f1", 4, 35, 16, (16, lambda: e(f"s_lshl_b32 s33, s25, 11\ns_lshl_b32 s34, s26, 2\ns_add_u32 s33, s33, s34\ns_add_u32 s33, s33, {FL['f2']}\nv_lshlrev_b32 v6, 7, v2\nv_add_u32 v6, s33, v6")) if "nos2" in OPT else
                 (1, lambda: e(f"s_lshl_b32 s33, s25, 1\ns_lshr_b32 s34, s26, 3\ns_add_u32 s33, s33, s34\ns_lshl_b32 s33, s33, 7\ns_and_b32 s34, s26, 7\ns_lshl_b32 s34, s34, 2\ns_add_u32 s33, s33, s34\ns_add_u32 s33, s33, {FL['f2']}\nv_mov_b32 v6, s33")))
        if "stf1" in OPT: k.st(13)
    elif s2:
        e(f"s_cmp_eq_u32 s27, 0\ns_cbranch_scc1 {L('noswap')}")
        for j in range(mt):
            for r in range(8): e(f"v_swap_b32 v{acc(0,j)+r}, v{acc(2,j)+r}")
        e(f"{L('noswap')}:")
        k.srd(56, P_WS, WS_XCH, 128 * 2 * 4 * 8192)
        e("s_lshl_b32 s47, s25, 3\ns_add_u32 s47, s47, s26\ns_lshl_b32 s47, s47, 1")
        e("s_xor_b32 s48, s27, 1\ns_add_u32 s48, s48, s47\ns_lshl_b32 s49, s48, 2\ns_add_u32 s49, s49, s24\ns_lshl_b32 s49, s49, 13")
        e("s_add_u32 s52, s47, s27\ns_lshl_b32 s53, s52, 2\ns_add_u32 s53, s53, s24\ns_lshl_b32 s53, s53, 13")
        e("v_lshlrev_b32 v7, 4, v2")
        xb = "xchbf16" in OPT
        if xb:
            for j in range(mt):
                a2 = acc(2, j)
                for q in range(4): e(f"v_cvt_pk_bf16_f32 v{a2+q}, v{a2+2*q}, v{a2+2*q+1}")
                e(f"buffer_store_dwordx4 {v(a2,4)}, v7, s[56:59], s49 offen offset:{j*1024}{SCS}")
            e("s_waitcnt vmcnt(4)")
        else:
            for j in range(mt):
                if j == 2: e("s_add_u32 s49, s49, 4096")
                e(f"buffer_store_dwordx4 {v(acc(2,j),4)}, v7, s[56:59], s49 offen offset:{(j%2)*2048}{SCS}")
                e(f"buffer_store_dwordx4 {v(acc(3,j),4)}, v7, s[56:59], s49 offen offset:{(j%2)*2048+1024}{SCS}")
            e("s_waitcnt vmcnt(8)")
        XT = T + 32
        for r in range(0 if CHAIN() else 8):
            e(f"v_add_f32 v{G+r}, v{G+r}, v{G+8+r}\nv_add_f32 v{G+16+r}, v{G+16+r}, v{G+24+r}\nv_add_f32 v{G+r}, v{G+r}, v{G+16+r}")
            round_bf16(e, G + r)
        for j in range(mt):
            for i in range(2):
                a0 = acc(i, j); x0 = EP + 4 * j + 2 * i
                for q in range(2):
                    e(f"v_lshlrev_b32 v{XT+2*q}, 16, v{x0+q}\nv_and_b32 v{XT+2*q+1}, 0xffff0000, v{x0+q}")
                for q in range(2):
                    e(f"v_pk_fma_f32 {v(a0+2*q,2)}, {v(a0+2*q,2)}, {v(G+4*i+2*q,2)}, {v(XT+2*q,2)}")
        e(f"v_add_u32 v6, s44, v3\nv_lshlrev_b32 v6, 11, v6\ns_lshl_b32 s47, s46, 1\nv_add_u32 v6, s47, v6\nv_add_u32 v5, v5, v6")
        e("s_waitcnt vmcnt(0)")
        e(f"s_lshl_b32 s48, s48, 7\ns_lshl_b32 s54, s24, 2\ns_add_u32 s48, s48, s54\ns_add_u32 s48, s48, {FL['xch']}\nv_mov_b32 v6, s48\nv_mov_b32 v249, 1")
        e(f"s_mov_b64 exec, 1\nbuffer_store_dword v249, v6, {s(CNT,4)}, 0 offen sc1\ns_mov_b64 exec, -1")
        e(f"s_lshl_b32 s52, s52, 7\ns_add_u32 s52, s52, s54\ns_add_u32 s52, s52, {FL['xch']}\nv_mov_b32 v6, s52\ns_mov_b32 s33, 0\ns_mov_b64 exec, 1")
        e(f"{L('xpoll')}:")
        e(f"buffer_load_dword v249, v6, {s(CNT,4)}, 0 offen sc1\ns_waitcnt vmcnt(0)\nv_readfirstlane_b32 s34, v249")
        e(f"s_cmp_eq_u32 s34, 1\ns_cbranch_scc1 {L('xdone')}\ns_add_u32 s33, s33, 1\ns_cmp_lt_u32 s33, {SPIN_MAX}\ns_cbranch_scc1 {L('xpoll')}")
        e(f"{L('xdone')}:\ns_mov_b64 exec, -1")
        for j in range(mt):
            if xb:
                e(f"buffer_load_dwordx4 {v(acc(2,j)+4,4)}, v7, s[56:59], s53 offen offset:{j*1024}{SC}")
                continue
            if j == 2: e("s_add_u32 s53, s53, 4096")
            e(f"buffer_load_dwordx4 {v(acc(2,j),4)}, v7, s[56:59], s53 offen offset:{(j%2)*2048}{SC}")
            e(f"buffer_load_dwordx4 {v(acc(3,j),4)}, v7, s[56:59], s53 offen offset:{(j%2)*2048+1024}{SC}")
        for j in range(mt):
            e(f"s_waitcnt vmcnt({(1 if xb else 2)*(mt-1-j) + j})")
            e(f"s_mov_b32 s48, {j*16*2048}")
            d = T + 4 * (j % 2)
            if xb:
                src = acc(2, j) + 4
                for q in range(2): e(f"v_lshlrev_b32 v{acc(2,j)+2*q}, 16, v{src+q}\nv_and_b32 v{acc(2,j)+2*q+1}, 0xffff0000, v{src+q}")
                for q in range(2): e(f"v_lshlrev_b32 v{XT+2*q}, 16, v{src+2+q}\nv_and_b32 v{XT+2*q+1}, 0xffff0000, v{src+2+q}")
                for q in range(2):
                    e(f"v_pk_fma_f32 {v(acc(0,j)+2*q,2)}, {v(acc(2,j)+2*q,2)}, {v(G+2*q,2)}, {v(acc(0,j)+2*q,2)}")
                    e(f"v_pk_fma_f32 {v(acc(1,j)+2*q,2)}, {v(XT+2*q,2)}, {v(G+4+2*q,2)}, {v(acc(1,j)+2*q,2)}")
            else:
                for i in range(2):
                    for q in range(2):
                        e(f"v_pk_fma_f32 {v(acc(i,j)+2*q,2)}, {v(acc(2+i,j)+2*q,2)}, {v(G+4*i+2*q,2)}, {v(acc(i,j)+2*q,2)}")
            pack_pair(acc(0, j), acc(1, j), d)
            e(f"buffer_store_dwordx4 {v(d,4)}, v5, s[12:15], s48 offen{' sc1' if 'outsc1' in OPT else ('' if 'outplain' in OPT else ' nt')}")
    else:
        if not CHAIN():
            ML = 135168
            e(f"s_lshl_b32 s47, s43, 7\nv_lshlrev_b32 v6, 4, v4\nv_add_u32 v6, s47, v6\nv_add_u32 v6, {ML}, v6")
            for i in range(nt):
                e(f"ds_read_b128 {v(G+4*i,4)}, v6 offset:{i*64}\nds_read_b128 {v(GG+4*i,4)}, v6 offset:{256+i*64}")
            e(f"v_mul_u32_u24 v6, {(65536+27)//28}, v2\nv_lshrrev_b32 v6, 16, v6\nv_min_u32 v6, 1, v6\ns_lshl_b32 s47, s24, 4\nv_add_u32 v6, s47, v6\nv_lshlrev_b32 v6, 2, v6\nv_add_u32 v6, {ML+512}, v6")
            for i in range(8):
                e(f"ds_read_b32 v{W1R+32+i}, v6 offset:{i*8}\nds_read_b32 v{W1R+40+i}, v6 offset:{256+i*8}")
            e("s_waitcnt lgkmcnt(0)")
        e("s_waitcnt vmcnt(0)")
        XT = T + 32
        e(f"v_add_u32 v6, s44, v3\nv_lshlrev_b32 v6, 11, v6\ns_lshl_b32 s47, s46, 1\nv_add_u32 v6, s47, v6\nv_add_u32 v5, v5, v6")
        if epi == "wo":
            k.srd(16, P_WS, WS_XG, S * D * 2); k.srd(60, P_WS, WS_STAT, 32 * S * 8)
            if CHAIN():
                for r in range(4 * nt):
                    e(f"v_add_f32 v{GG+r}, 1.0, v{GG+r}"); round_bf16(e, GG + r)
            e(f"s_lshl_b32 s49, s26, 1\ns_add_u32 s49, s49, s43\ns_lshl_b32 s49, s49, 14\ns_lshl_b32 s50, s44, 3\ns_add_u32 s49, s49, s50")
            e("v_lshlrev_b32 v1, 3, v3\nv_and_b32 v6, 1, v4\nv_lshlrev_b32 v6, 2, v6\nv_add_u32 v1, v1, v6")
            e("s_lshl_b32 s47, s25, 4\ns_add_u32 s47, s47, s26\ns_lshl_b32 s47, s47, 2\ns_add_u32 s47, s47, s24\ns_lshl_b32 s47, s47, 12\nv_lshlrev_b32 v7, 4, v2\nv_mov_b32 v253, v7")
        for j in range(mt):
            e(f"s_mov_b32 s48, {j*16*2048}")
            d = T + 4 * (j % 2); d2 = T + 8 + 4 * (j % 2); SM = T + 16 + 4 * (j % 2)
            for i in range(nt):
                a0 = acc(i, j); x0 = EP + 2 * (j * nt + i)
                for q in range(2):
                    e(f"v_lshlrev_b32 v{XT+2*q}, 16, v{x0+q}\nv_and_b32 v{XT+2*q+1}, 0xffff0000, v{x0+q}")
                for q in range(2):
                    e(f"v_pk_fma_f32 {v(a0+2*q,2)}, {v(a0+2*q,2)}, {v(G+4*i+2*q,2)}, {v(XT+2*q,2)}")
            ta, tb = acc(0, j), acc(1, j)
            if epi == "ffn2":
                e(f"v_cvt_pk_bf16_f32 v{d}, v{ta}, v{ta+1}\nv_cvt_pk_bf16_f32 v{d+1}, v{ta+2}, v{ta+3}")
                e(f"v_cvt_pk_bf16_f32 v{d+2}, v{tb}, v{tb+1}\nv_cvt_pk_bf16_f32 v{d+3}, v{tb+2}, v{tb+3}")
                e(f"v_permlane16_swap_b32 v{d}, v{d+2}\nv_permlane16_swap_b32 v{d+1}, v{d+3}")
                e(f"buffer_store_dwordx4 {v(d,4)}, v5, s[12:15], s48 offen")
                continue
            for q in range(2):
                e(f"v_pk_mul_f32 {v(XT+2*q,2)}, {v(ta+2*q,2)}, {v(GG+2*q,2)}\nv_pk_mul_f32 {v(XT+4+2*q,2)}, {v(tb+2*q,2)}, {v(GG+4+2*q,2)}")
            for q in range(4): e(f"v_cvt_pk_bf16_f32 v{d2+q}, v{XT+2*q}, v{XT+2*q+1}")
            e(f"v_permlane16_swap_b32 v{d2}, v{d2+2}\nv_permlane16_swap_b32 v{d2+1}, v{d2+3}")
            e(f"buffer_store_dwordx4 {v(d2,4)}, v5, s[16:19], s48 offen{SCS}")
        for j in range(mt if epi == "wo" else 0):
            d = T + 4 * (j % 2); SM = T + 16 + 4 * (j % 2)
            ta, tb = acc(0, j), acc(1, j)
            e(f"v_cvt_pk_bf16_f32 v{d}, v{ta}, v{ta+1}\nv_cvt_pk_bf16_f32 v{d+1}, v{ta+2}, v{ta+3}")
            e(f"v_cvt_pk_bf16_f32 v{d+2}, v{tb}, v{tb+1}\nv_cvt_pk_bf16_f32 v{d+3}, v{tb+2}, v{tb+3}")
            e(f"buffer_store_dwordx4 {v(d,4)}, v253, s[12:15], s47 offen offset:{j*1024}{SCS}")
            e(f"v_pk_add_f32 {v(SM,2)}, {v(ta,2)}, {v(ta+2,2)}\nv_pk_mul_f32 {v(SM+2,2)}, {v(ta,2)}, {v(ta,2)}")
            e(f"v_pk_add_f32 {v(SM,2)}, {v(SM,2)}, {v(tb,2)}\nv_pk_fma_f32 {v(SM+2,2)}, {v(ta+2,2)}, {v(ta+2,2)}, {v(SM+2,2)}")
            e(f"v_pk_add_f32 {v(SM,2)}, {v(SM,2)}, {v(tb+2,2)}\nv_pk_fma_f32 {v(SM+2,2)}, {v(tb,2)}, {v(tb,2)}, {v(SM+2,2)}")
            e(f"v_pk_fma_f32 {v(SM+2,2)}, {v(tb+2,2)}, {v(tb+2,2)}, {v(SM+2,2)}")
            e(f"v_add_f32 v{SM}, v{SM}, v{SM+1}\nv_add_f32 v{SM+2}, v{SM+2}, v{SM+3}")
            e(f"v_permlane16_swap_b32 v{SM}, v{SM+2}\nv_add_f32 v{SM}, v{SM}, v{SM+2}\nv_mov_b32 v{SM+1}, v{SM}")
            e(f"v_permlane32_swap_b32 v{SM}, v{SM+1}\nv_add_f32 v{SM}, v{SM}, v{SM+1}")
            e(f"s_mov_b32 exec_lo, -1\ns_mov_b32 exec_hi, 0\nbuffer_store_dword v{SM}, v1, s[60:63], s49 offen offset:{j*128}{SCS}\ns_mov_b64 exec, -1")
        if epi == "wo":
            if "stwo" in OPT: k.st(12)
            e(f"s_add_u32 s35, s25, {C_WO}")
            k.signal("wo", 4, 35, 16, (4, lambda: e(f"s_lshl_b32 s33, s25, 9\ns_lshl_b32 s34, s26, 2\ns_add_u32 s33, s33, s34\ns_add_u32 s33, s33, {FL['f1']}\nv_lshlrev_b32 v6, 7, v2\nv_add_u32 v6, s33, v6")), younger=8)
            k.signal("wo2", 4, 35, 16, (4, lambda: e(f"s_lshl_b32 s33, s25, 9\ns_lshl_b32 s34, s26, 2\ns_add_u32 s33, s33, s34\ns_add_u32 s33, s33, {FL['f1b']}\nv_lshlrev_b32 v6, 7, v2\nv_add_u32 v6, s33, v6")))
            if "stwo" in OPT: k.st(13)
            UA = ACC
            for r in range(16): e(f"v_mov_b32 v{UA+r}, 0")
            for i in range(8):
                g_ = W1R + 32 + i; s_ = W1R + 40 + i
                if CHAIN():
                    e(f"v_add_f32 v{g_}, 1.0, v{g_}"); round_bf16(e, g_)
                for q in range(4):
                    w_ = W1R + 4 * i + q
                    e(f"v_lshlrev_b32 v6, 16, v{w_}\nv_and_b32 v7, 0xffff0000, v{w_}")
                    e(f"v_fmac_f32 v{UA+2*q}, v{g_}, v6\nv_fmac_f32 v{UA+2*q+1}, v{g_}, v7\nv_fmac_f32 v{UA+8+2*q}, v{s_}, v6\nv_fmac_f32 v{UA+8+2*q+1}, v{s_}, v7")
            UL = 139264
            e(f"v_mul_u32_u24 v5, {(65536+27)//28}, v2\nv_lshrrev_b32 v5, 16, v5\nv_mul_u32_u24 v6, 28, v5\nv_sub_u32 v6, v2, v6")
            e(f"s_lshl_b32 s32, s24, 1\nv_add_u32 v5, s32, v5\nv_mul_u32_u24 v5, 1792, v5\nv_lshlrev_b32 v6, 5, v6\nv_add_u32 v5, v5, v6\nv_add_u32 v5, {UL}, v5")
            e("v_cmp_gt_u32 vcc, 56, v2\ns_and_saveexec_b64 s[34:35], vcc")
            e(f"ds_write_b128 v5, {v(UA,4)}\nds_write_b128 v5, {v(UA+4,4)} offset:16\nds_write_b128 v5, {v(UA+8,4)} offset:896\nds_write_b128 v5, {v(UA+12,4)} offset:912")
            e("s_mov_b64 exec, s[34:35]\ns_waitcnt lgkmcnt(0)")
            e(f"v_mov_b32 v6, {L_SIG['ub']}\nv_mov_b32 v7, 1\ns_mov_b64 exec, 1")
            e("ds_add_rtn_u32 v7, v6, v7\ns_waitcnt lgkmcnt(0)\nv_readfirstlane_b32 s32, v7\ns_mov_b64 exec, -1")
            e(f"s_cmp_lg_u32 s32, 3\ns_cbranch_scc1 {L('ubx')}")
            e(f"v_lshlrev_b32 v5, 2, v2\nv_add_u32 v5, {UL}, v5")
            for m_ in range(7):
                for rr in range(8): e(f"ds_read_b32 v{UA+rr}, v5 offset:{rr*1792+m_*256}")
                e("s_waitcnt lgkmcnt(0)")
                for rr in range(1, 8): e(f"v_add_f32 v{UA}, v{UA}, v{UA+rr}")
                e(f"v_mov_b32 v{UA+16+m_}, v{UA}")
            k.srd(16, P_WS, WS_UB, 16 * 2 * DFF * 4)
            e(f"s_mul_i32 s49, s58, {2*DFF*4}\ns_mul_i32 s50, s59, 896\ns_add_u32 s49, s49, s50")
            for m_ in range(7):
                e(f"v_add_u32 v5, {64*m_}, v2\nv_cmp_le_u32 vcc, 224, v5\nv_mov_b32 v6, {DFF*4 - 896}\nv_cndmask_b32 v6, 0, v6, vcc\nv_lshl_add_u32 v5, v5, 2, v6")
                e(f"buffer_store_dword v{UA+16+m_}, v5, s[16:19], s49 offen{SCS}")
            e("s_waitcnt vmcnt(0)")
            e(f"s_add_u32 s35, s59, {C_UB}\ns_mov_b64 exec, 1")
            k.arrive("ub", 35, 16)
            e("s_mov_b64 exec, -1")
            e(f"{L('ubx')}:")
    e(f"s_branch {nxt_c}")
    e(f"{L('l')}:")
    if s2: tile_map_s2(e)
    else: tile_map(e, xr, xc)
    k.srd(4, P_WS, srcA, sizeA); k.srd(8, pB, 0, sizeB)
    e("s_sub_u32 s42, s24, 4")
    LA = 8
    wblk = s2 and "w2blk" in OPT
    if wblk: ldb = 128
    lda2, ldb2 = lda * 2, ldb * 2
    blocked = epi in ("ffn2", "ffn2s")
    if blocked:
        e(f"s_mul_i32 s43, s25, {112*8192}\ns_mul_i32 s44, s42, {nAw*8*64}\ns_add_u32 s43, s43, s44")
        e("v_lshrrev_b32 v3, 3, v2\nv_lshlrev_b32 v3, 6, v3\nv_add_u32 v3, s43, v3")
        e("v_and_b32 v4, 7, v2\nv_lshrrev_b32 v5, 4, v2")
        for i in range(nAw):
            e(f"v_xor_b32 v6, {(i&1)*4}, v5\nv_xor_b32 v6, v6, v4\nv_lshrrev_b32 v7, 2, v6\nv_lshlrev_b32 v7, 13, v7\nv_and_b32 v6, 3, v6\nv_lshlrev_b32 v6, 4, v6")
            e(f"v_add3_u32 v6, v6, v7, v3\nv_add_u32 v{LA+i}, {i*8*64}, v6")
    else:
        e(f"s_lshl_b32 s43, s25, 7\ns_mul_i32 s44, s42, {nAw*8}\ns_add_u32 s43, s43, s44")
        e(f"v_lshrrev_b32 v3, 3, v2\nv_add_u32 v3, s43, v3\ns_mov_b32 s45, {lda2}\nv_mul_lo_u32 v3, s45, v3")
        e("v_and_b32 v4, 7, v2\nv_lshrrev_b32 v5, 4, v2")
        for i in range(nAw):
            e(f"v_xor_b32 v6, {(i&1)*4}, v5\nv_xor_b32 v6, v6, v4\nv_lshlrev_b32 v6, 4, v6\nv_add_u32 v6, v6, v3")
            e(f"v_add_u32 v{LA+i}, {i*8*lda2}, v6")
    ASTEP = 16384 if blocked else BK * 2
    magic = (65536 + cpr - 1) // cpr
    assert all((p * magic) >> 16 == p // cpr for p in range(nBw * 64)) and nBw * 64 == 16 * cpr
    e(f"s_mul_i32 s43, s42, {16*ldb2}\ns_mul_i32 s44, s26, {K*256 if wblk else (128 if perm else BN*2)}\ns_add_u32 s43, s43, s44")
    for i in range(nBw):
        e(f"v_add_u32 v3, {i*64}, v2\nv_mul_u32_u24 v4, {magic}, v3\nv_lshrrev_b32 v4, 16, v4")
        e(f"v_mul_u32_u24 v5, {cpr}, v4\nv_sub_u32 v3, v3, v5")
        if hbits == 2: e("v_and_b32 v5, 2, v4\nv_lshrrev_b32 v6, 1, v4\nv_and_b32 v6, 4, v6\nv_or_b32 v5, v5, v6")
        elif hbits == 1: e("v_lshrrev_b32 v5, 2, v4\nv_and_b32 v5, 2, v5")
        else: e("v_and_b32 v5, 3, v4\nv_lshrrev_b32 v6, 1, v4\nv_and_b32 v6, 4, v6\nv_or_b32 v5, v5, v6\nv_lshlrev_b32 v5, 1, v5")
        e("v_xor_b32 v3, v3, v5")
        if perm: e("v_lshrrev_b32 v5, 3, v3\nv_and_b32 v3, 7, v3\nv_lshlrev_b32 v5, 7, v5\nv_add_u32 v3, v3, v5")
        e(f"v_lshlrev_b32 v3, 4, v3\ns_mov_b32 s45, {ldb2}\nv_mul_lo_u32 v4, s45, v4\nv_add_u32 v3, v3, v4")
        e(f"v_add_u32 v{LA+nAw+i}, s43, v3")
    e(f"s_mul_i32 s46, s42, {nAw*1024}")
    e(f"s_mul_i32 s47, s42, {nBw*1024}\ns_add_u32 s47, s47, {nA*1024}")
    def issue_x(lds_s, off_s):
        for i in range(nAw):
            e(f"s_add_u32 m0, {lds_s}, {i*1024}")
            e(f"buffer_load_dwordx4 v{LA+i}, s[4:7], {off_s} offen{asc} lds")
    def issue_w(lds_s, off_s):
        for i in range(nBw):
            e(f"s_add_u32 m0, {lds_s}, {i*1024}")
            e(f"buffer_load_dwordx4 v{LA+nAw+i}, s[8:11], {off_s} offen lds")
    if s2: e(f"s_mul_i32 s62, s27, {nk*ASTEP}\ns_mul_i32 s63, s27, {nk*BK*ldb2}")
    else: e("s_mov_b32 s62, 0\ns_mov_b32 s63, 0")
    def w_prologue():
        for st in range(NS - 1):
            e(f"s_add_u32 s52, s47, {st*SB}\ns_add_u32 s49, s63, {st*BK*ldb2}")
            issue_w("s52", "s49")
    if dep:
        base, target, kind = dep
        e(f"s_lshr_b32 s35, s25, 1\ns_add_u32 s35, s35, {base}" if kind == "rb2" else f"s_add_u32 s35, s25, {base}")
        if "wfirst" in OPT:
            w_prologue()
            k.dep_wait_loaders(tag, 35, target, None)
        else:
            if hbar and "single" in OPT: g_loader(k)
            e(f"s_cmp_eq_u32 s24, 4\ns_cbranch_scc1 {L('w4a')}")
            w_prologue()
            e(f"{L('w4a')}:")
            if hbar and "nowq" not in OPT:
                e(f"s_cmp_eq_u32 s24, 4\ns_cbranch_scc1 {L('nowqpf')}")
                e("s_mul_i32 s43, s2, 3\ns_add_u32 s43, s43, s24\ns_sub_u32 s43, s43, 5\ns_lshl_b32 s43, s43, 13\nv_lshlrev_b32 v3, 7, v2")
                e("buffer_load_dword v253, v3, s[8:11], s43 offen")
                e(f"{L('nowqpf')}:")
            if hbar and "single" in OPT: e("s_barrier")
            if hbar: e("s_barrier")
            k.dep_wait_loaders(tag, 35, target, None)
            e(f"s_cmp_lg_u32 s24, 4\ns_cbranch_scc1 {L('w4b')}")
            w_prologue()
            e(f"{L('w4b')}:")
        if tag == "f1" and "stwo" in OPT: k.st(14, 4)
        if tag == "wo" and "statt" in OPT: k.st(15, 4)
        if tag == "f2" and "stf1" in OPT: k.st(14, 4)
    else:
        w_prologue()
    for st in range(NS - 1):
        e(f"s_add_u32 s51, s46, {st*SB}\ns_add_u32 s48, s62, {st*ASTEP}")
        issue_x("s51", "s48")
    e(f"s_add_u32 s48, s62, {(NS-1)*ASTEP}\ns_add_u32 s49, s63, {(NS-1)*BK*ldb2}\ns_mov_b32 s50, {(NS-1)*SB}")
    lt = ("lt" + tag) in OPT and epi in ("qkv", "ffn1")
    TV = 252
    if lt:
        e("s_lshr_b32 s37, s2, 3")
        e(f"s_and_b32 s40, s37, {xc-1}\ns_lshr_b32 s41, s37, {xc.bit_length()-1}")
        e(f"s_cmp_ge_u32 s42, 2\ns_cbranch_scc1 {L('ltb')}")
        e(f"v_and_b32 v3, 15, v2\ns_lshl_b32 s43, s40, 5\ns_lshl_b32 s44, s42, 4\ns_add_u32 s43, s43, s44\ns_lshl_b32 s44, s25, 7\ns_add_u32 s43, s43, s44\nv_add_u32 v3, s43, v3")
        e(f"v_lshlrev_b32 v{TV}, 11, v3\nv_add_u32 v{TV}, {(NS-1+LTD)*128}, v{TV}\ns_mov_b32 s57, 128")
        e(f"s_mov_b32 s72x, 0".replace("s_mov_b32 s72x, 0", "s_nop 0"))
        e(f"s_branch {L('ltc')}")
        e(f"{L('ltb')}:")
        e(f"v_lshrrev_b32 v3, 2, v2\nv_and_b32 v3, 3, v3\ns_lshl_b32 s43, s41, 3\ns_sub_u32 s44, s42, 2\ns_lshl_b32 s44, s44, 2\ns_add_u32 s43, s43, s44\ns_add_u32 s43, s43, {(NS-1+LTD)*64}\nv_add_u32 v3, s43, v3")
        e(f"s_mov_b32 s43, {ldb2}\nv_mul_lo_u32 v{TV}, s43, v3\nv_and_b32 v3, 3, v2\nv_lshlrev_b32 v3, 7, v3\nv_add_u32 v{TV}, v{TV}, v3\ns_mul_i32 s43, s26, {BN*2}\ns_and_b32 s43, s43, 0xffffff80\nv_add_u32 v{TV}, s43, v{TV}\ns_mov_b32 s57, {BK*ldb2}")
        e(f"{L('ltc')}:")
    tcnt = [0]
    def touch():
        if not lt: return
        n_ = tcnt[0]; tcnt[0] += 1
        e(f"s_mov_b64 exec, 0xffff\ns_cmp_ge_u32 s42, 2\ns_cbranch_scc1 {L(f'tb{n_}')}")
        e(f"buffer_load_dword v253, v{TV}, s[4:7], 0 offen{asc}\ns_branch {L(f'tc{n_}')}")
        e(f"{L(f'tb{n_}')}:\nbuffer_load_dword v253, v{TV}, s[8:11], 0 offen")
        e(f"{L(f'tc{n_}')}:\ns_mov_b64 exec, -1\nv_add_u32 v{TV}, s57, v{TV}")
    nt1 = 1 if lt else 0
    def issue():
        e("s_add_u32 s51, s50, s46\ns_add_u32 s52, s50, s47")
        issue_x("s51", "s48"); issue_w("s52", "s49")
        e(f"s_add_u32 s48, s48, {ASTEP}\ns_add_u32 s49, s49, {BK*ldb2}")
        e(f"s_add_u32 s50, s50, {SB}\ns_cmp_eq_u32 s50, {SB*NS}\ns_cselect_b32 s50, 0, s50")
        touch()
    if ("lprio" in OPT): e("s_setprio 2")
    e(f"s_waitcnt vmcnt({nAw*(NS-2)})\ns_barrier")
    issue()
    e(f"s_waitcnt vmcnt({nAw*(NS-3) + nld + nt1})\ns_barrier" if NS >= 3 else "")
    issue()
    for t in range(2, NS - 1):
        e(f"s_waitcnt vmcnt({nAw*(NS-2-t) + (nld+nt1)*t})\ns_barrier")
        issue()
    done = max(2, NS - 1)
    e(f"s_mov_b32 s53, {nk-(NS-1)-done}")
    e(f"{L('lloop')}:")
    e(f"s_waitcnt vmcnt({nld*(NS-2) + nt1*(NS-1)})\ns_barrier")
    issue()
    e(f"s_sub_u32 s53, s53, 1\ns_cmp_lg_u32 s53, 0\ns_cbranch_scc1 {L('lloop')}")
    if ("lprio" in OPT): e("s_setprio 0")
    nx = 0
    for t in range(NS - 1):
        e(f"s_waitcnt vmcnt({nld*(NS-2-t)+nx+nt1*(NS-1-t)})\ns_barrier")
        if epi == "qkv" and t == 0 and "modall" not in OPT and "mrwo" not in OPT:
            nx = 16
            e(f"s_load_dwordx4 s[36:39], s[0:1], {KA_C}")
            e("s_and_b32 s58, s2, 3\ns_lshr_b32 s59, s2, 2\ns_add_u32 s59, s59, 32\ns_mov_b32 s64, s58\ns_mov_b32 s65, s59")
            e("v_subrev_u32 v3, 256, v0\nv_lshrrev_b32 v6, 3, v3\nv_and_b32 v7, 7, v3\nv_mov_b32 v22, v7")
            e("s_lshl_b32 s43, s58, 8\nv_add_u32 v6, s43, v6\nv_lshlrev_b32 v4, 1, v6")
            e("v_mul_u32_u24 v5, 12288, v6\nv_lshlrev_b32 v6, 4, v7\nv_add_u32 v5, v5, v6\ns_lshl_b32 s43, s59, 7\nv_add_u32 v5, s43, v5")
            e("s_waitcnt lgkmcnt(0)")
            k.srd(52, 36, 0, 2048); k.srd(60, 38, 0, 1024 * 6144 * 2)
            for i in range(8): e(f"buffer_load_ushort v{24+i}, v4, s[52:55], 0 offen offset:{i*64}")
            for i in range(8):
                e(f"s_mov_b32 s43, {i*32*12288}\nbuffer_load_dwordx4 {v(32+4*i,4)}, v5, s[60:63], s43 offen")
        if epi == "ffn1" and t == 0:
            nx = 32
            k.srd(56, P_WS, WS_STAT, 32 * S * 8); k.srd(60, P_WS, WS_UB, 16 * 2 * DFF * 4)
            e(f"s_cmp_ge_u32 s42, 2\ns_cbranch_scc1 {L('ubld')}")
            e(f"s_lshl_b32 s34, s25, 2\ns_lshr_b32 s33, s26, 2\ns_add_u32 s34, s34, s33\ns_lshl_b32 s34, s34, 7\ns_add_u32 s34, s34, {FL['f1b']}")
            k.wait_flags("f1b", 16, 34)
            e(f"s_lshl_b32 s43, s42, 6\nv_add_u32 v3, s43, v2\ns_lshl_b32 s44, s25, 7\nv_add_u32 v4, s44, v3\nv_lshlrev_b32 v4, 3, v4")
            for sl in range(32):
                e(f"s_mov_b32 s45, {sl*S*8}\nbuffer_load_dwordx2 {v(32+2*sl,2)}, v4, s[56:59], s45 offen{SC}")
            e(f"s_branch {L('ldd')}")
            e(f"{L('ubld')}:")
            e(f"s_add_u32 s35, s26, {C_UB}")
            k.poll(tag + "u", 35, 16)
            if "alias" in OPT:
                e(f"v_mov_b32 v6, {C_ATTALL*256 - 128}")
                k.poll(tag + "a", None, 256)
            e(f"s_sub_u32 s43, s42, 2\ns_lshl_b32 s43, s43, 6\nv_add_u32 v3, s43, v2")
            e(f"s_mul_i32 s44, s26, {BN*4}\nv_lshlrev_b32 v4, 3, v3\nv_add_u32 v4, s44, v4")
            for kg in range(16):
                for w_ in range(2):
                    e(f"s_mov_b32 s45, {(kg*2+w_)*DFF*4}\nbuffer_load_dwordx2 {v(32+4*kg+2*w_,2)}, v4, s[60:63], s45 offen{SC}")
            e(f"{L('ldd')}:")
    if epi == "ffn1":
        e("s_waitcnt vmcnt(0)")
        e(f"s_cmp_ge_u32 s42, 2\ns_cbranch_scc1 {L('ubred')}")
        for sl in range(1, 32): e(f"v_add_f32 v32, v32, v{32+2*sl}\nv_add_f32 v33, v33, v{33+2*sl}")
        e(f"v_mul_f32 v32, {f32(1/1024)}, v32\nv_mul_f32 v33, {f32(1/1024)}, v33")
        e(f"v_fma_f32 v33, -v32, v32, v33\nv_max_f32 v33, 0, v33\nv_add_f32 v33, {f32(1e-5)}, v33\nv_rsq_f32 v33, v33")
        e("v_mul_f32 v32, v32, v33")
        e(f"v_lshlrev_b32 v4, 3, v3\nv_add_u32 v4, {XL}, v4\nds_write_b64 v4, v[32:33]")
        e(f"s_branch {L('redd')}")
        e(f"{L('ubred')}:")
        for kg in range(1, 16):
            for q in range(4): e(f"v_add_f32 v{32+q}, v{32+q}, v{32+4*kg+q}")
        e(f"v_lshlrev_b32 v4, 3, v3\nv_add_u32 v4, {XL+1024}, v4\nv_cmp_gt_u32 vcc, 112, v3\ns_and_saveexec_b64 s[44:45], vcc")
        e(f"ds_write_b64 v4, v[32:33]\nds_write_b64 v4, v[34:35] offset:896\ns_mov_b64 exec, s[44:45]")
        e(f"{L('redd')}:")
        e("s_waitcnt lgkmcnt(0)")
    if epi == "qkv" and "modall" not in OPT and "mrwo" not in OPT:
        gemv_finish(k, 24, 32, 64, 72)
        MRL = 139264
        e(f"s_sub_u32 s43, s24, 4\ns_lshl_b32 s43, s43, 8\nv_lshlrev_b32 v9, 5, v22\nv_add_u32 v9, s43, v9\nv_add_u32 v9, {MRL}, v9")
        e("s_mov_b64 exec, 0xff\nds_write_b128 v9, v[64:67]\nds_write_b128 v9, v[68:71] offset:16\ns_waitcnt lgkmcnt(0)")
        e(f"v_mov_b32 v6, {L_SIG['mr']}\nv_mov_b32 v8, 1\ns_mov_b64 exec, 1\nds_add_rtn_u32 v8, v6, v8\ns_waitcnt lgkmcnt(0)\nv_readfirstlane_b32 s43, v8\ns_mov_b64 exec, -1")
        e(f"s_cmp_lg_u32 s43, 3\ns_cbranch_scc1 {L('mrx')}")
        e(f"v_lshlrev_b32 v9, 2, v2\nv_add_u32 v10, {MRL}, v9")
        for w_ in range(4): e(f"ds_read_b32 v{12+w_}, v10 offset:{w_*256}")
        e("s_waitcnt lgkmcnt(0)\nv_add_f32 v12, v12, v13\nv_add_f32 v14, v14, v15\nv_add_f32 v12, v12, v14")
        k.srd(52, P_WS, WS_MODP, 4 * 6144 * 4)
        e("s_mul_i32 s43, s64, 24576\ns_lshl_b32 s44, s65, 8\ns_add_u32 s43, s43, s44")
        e(f"buffer_store_dword v12, v9, s[52:55], s43 offen{SCS}\ns_waitcnt vmcnt(0)")
        if "nochain" in OPT:
            e(f"v_mov_b32 v6, {C_MRALL*256}\nv_mov_b32 v8, 1\ns_mov_b64 exec, 1\nbuffer_atomic_add v8, v6, {s(CNT,4)}, 0 offen sc1\ns_mov_b64 exec, -1")
        else:
            k.srd(60, P_WS, WS_MODF, 6144 * 4)
            e(f"s_sub_u32 s45, s65, 32\ns_add_u32 s45, s45, {C_MR}\ns_lshl_b32 s45, s45, 8\nv_mov_b32 v6, s45\nv_mov_b32 v8, 1\ns_mov_b64 exec, 1")
            e(f"buffer_atomic_add v8, v6, {s(CNT,4)}, 0 offen sc0 sc1\ns_waitcnt vmcnt(0)\nv_readfirstlane_b32 s45, v8\ns_mov_b64 exec, -1")
            e(f"s_cmp_lg_u32 s45, 3\ns_cbranch_scc1 {L('mrx')}")
            for p_ in range(4):
                e(f"s_add_u32 s45, s44, {p_*24576}\nbuffer_load_dword v{12+p_}, v9, s[52:55], s45 offen{SC}")
            e("s_waitcnt vmcnt(0)\nv_add_f32 v12, v12, v13\nv_add_f32 v14, v14, v15\nv_add_f32 v12, v12, v14")
            round_bf16(e, 12)
            e(f"buffer_store_dword v12, v9, s[60:63], s44 offen{SCS}\ns_waitcnt vmcnt(0)")
            e(f"v_mov_b32 v6, {C_MRALL*256}\nv_mov_b32 v8, 1\ns_mov_b64 exec, 1")
            e(f"buffer_atomic_add v8, v6, {s(CNT,4)}, 0 offen sc0 sc1\ns_waitcnt vmcnt(0)\nv_readfirstlane_b32 s45, v8\ns_mov_b64 exec, -1")
            e(f"s_cmp_lg_u32 s45, 63\ns_cbranch_scc1 {L('mrx')}")
            e(f"v_lshlrev_b32 v6, 7, v2\nv_add_u32 v6, {FL['mr']}, v6\nv_mov_b32 v8, 1\ns_mov_b64 exec, 0xff\nbuffer_store_dword v8, v6, {s(CNT,4)}, 0 offen sc1\ns_mov_b64 exec, -1")
        e(f"{L('mrx')}:")
    if epi != "qkv": e("s_barrier")
    e(f"s_branch {nxt_l}")

def attn_phase(k, nxt_c, nxt_l, pf):
    e = k.e
    L = lambda n: k.lab("att_" + n)
    old4 = "nsl3" not in OPT
    NSL = 4 if old4 else 3; KPS = 128; SBK = KPS * 64
    HB = 2 * SBK; SB = 2 * HB
    FLAG = CTL + 164 if old4 else NSL * SB
    S0 = 1 if old4 else 0
    e(f"{L('c')}:\n{L('l')}:")
    e("s_and_b32 s36, s2, 7\ns_lshr_b32 s37, s2, 3\ns_lshl_b32 s36, s36, 2\ns_lshr_b32 s38, s37, 3\ns_add_u32 s25, s36, s38")
    e("s_and_b32 s26, s37, 7")
    e("s_and_b32 s34, s24, 3\ns_lshr_b32 s27, s24, 2")
    e("s_mov_b32 s57, s34")
    e("s_lshl_b32 s40, s25, 17")
    e(f"s_add_u32 s32, s{P_WS}, {WS_QKV:#x}\ns_addc_u32 s33, s{P_WS+1}, 0\ns_add_u32 s32, s32, s40\ns_addc_u32 s33, s33, 0")
    k.srd(4, 32, 0, S * 64); k.srd(8, 32, 32 * S * 64, S * 64); k.srd(12, 32, 64 * S * 64, S * 64)
    k.srd(16, P_WS, WS_O, S * D * 2)
    QG, KH = 57, 27
    Q = 4 + 4; KF = 24; VF = 32
    NEG = 40; O = 72; LS = 104; SEL = 112
    SS = [[116, 132], [148, 164]]
    PP = [[180, 188], [196, 204]]
    AK0, AK1, AV, AN0, AN1, DK, DV = 212, 213, 214, 215, 216, 217, 218
    HH, QL = 219, 220
    T = 221
    PFD = 230
    e(f"v_and_b32 v{QL}, 31, v2\nv_lshrrev_b32 v{HH}, 5, v2")
    e(f"s_lshl_b32 s39, s26, 8\ns_lshl_b32 s40, s{QG}, 6\ns_add_u32 s39, s39, s40")
    e(f"v_lshrrev_b32 v{T}, 2, v2\ns_lshl_b32 s40, s{QG}, 5\nv_add_u32 v{T}, s40, v{T}\nv_lshlrev_b32 v{T}, 6, v{T}")
    e(f"v_and_b32 v{T+1}, 3, v2\nv_lshrrev_b32 v{T+2}, 4, v2\nv_xor_b32 v{T+1}, v{T+1}, v{T+2}\nv_lshlrev_b32 v{T+1}, 4, v{T+1}")
    e(f"v_add_u32 v{DK}, v{T}, v{T+1}")
    e(f"v_lshlrev_b32 v{DV}, 4, v2\ns_lshl_b32 s40, s{QG}, 11\nv_add_u32 v{DV}, s40, v{DV}")
    e(f"s_lshl_b32 s41, s{QG}, 11\ns_mul_i32 s40, s{KH}, {HB}\ns_add_u32 s41, s41, s40")
    e(f"s_mul_i32 s45, s{KH}, {S*32}")
    def addr_setup():
        e(f"s_mul_i32 s40, s{KH}, {HB}")
        e(f"v_lshrrev_b32 v{T}, 2, v{QL}\nv_and_b32 v{T}, 3, v{T}\nv_xor_b32 v{T}, v{T}, v{HH}\nv_lshlrev_b32 v{T}, 4, v{T}")
        e(f"v_lshlrev_b32 v{T+1}, 6, v{QL}\nv_add_u32 v{T+3}, v{T}, v{T+1}")
        e(f"v_add_u32 v{AK0}, s40, v{T+3}\nv_xor_b32 v{AK1}, 32, v{AK0}")
        e(f"v_and_b32 v{T}, 15, v2\nv_lshrrev_b32 v{T}, 2, v{T}\nv_lshlrev_b32 v{T+1}, 2, v{HH}\nv_add_u32 v{T}, v{T}, v{T+1}\nv_lshlrev_b32 v{T}, 6, v{T}")
        e(f"v_lshrrev_b32 v{T+1}, 4, v2\nv_and_b32 v{T+1}, 1, v{T+1}\nv_lshlrev_b32 v{T+1}, 5, v{T+1}\nv_add_u32 v{T}, v{T}, v{T+1}")
        e(f"v_and_b32 v{T+1}, 3, v2\nv_lshlrev_b32 v{T+1}, 3, v{T+1}\nv_add_u32 v{T}, v{T}, v{T+1}\nv_add_u32 v{T}, {SBK}, v{T}\nv_add_u32 v{AV}, s40, v{T}")
    addr_setup()
    if S0: e(f"v_add_u32 v{AK0}, {S0*SB}, v{AK0}\nv_add_u32 v{AK1}, {S0*SB}, v{AK1}\nv_add_u32 v{AV}, {S0*SB}, v{AV}\nv_add_u32 v{T+3}, {S0*SB}, v{T+3}")
    smf = "nosmf" not in OPT
    SIX = 239
    def dense_selector():
        e(f"v_lshrrev_b32 v{T}, 4, v2\nv_lshrrev_b32 v{T+1}, 2, v2\nv_xor_b32 v{T}, v{T}, v{T+1}\nv_and_b32 v{T}, 1, v{T}")
        e(f"v_cmp_eq_u32 vcc, 0, v{T}\nv_mov_b32 v{T+1}, 0x3f803f80")
        e(f"v_cndmask_b32 v{SEL}, 0, v{T+1}, vcc")
        for r in range(1, 4): e(f"v_mov_b32 v{SEL+r}, v{SEL}")
    if smf:
        e(f"v_and_b32 v{T}, 4, v2\nv_cmp_eq_u32 vcc, 0, v{T}\nv_mov_b32 v{T+1}, 0x3f803f80")
        e(f"v_cndmask_b32 v{SEL}, 0, v{T+1}, vcc\nv_cndmask_b32 v{SEL+2}, v{T+1}, 0, vcc\nv_mov_b32 v{SEL+1}, v{SEL}\nv_mov_b32 v{SEL+3}, v{SEL+2}")
        e(f"v_and_b32 v{T}, 2, v2\nv_cmp_eq_u32 vcc, 0, v{T}\nv_mov_b32 v{T+1}, 0xeeeeeeee\nv_mov_b32 v{T+2}, 0x44444444\nv_cndmask_b32 v{SIX}, v{T+1}, v{T+2}, vcc")
    else:
        dense_selector()
    def zero_acc():
        for r in range(32): e(f"v_mov_b32 v{O+r}, 0")
        for r in range(8): e(f"v_mov_b32 v{LS+r}, 0")
    zero_acc()
    for r in range(8): e(f"v_mov_b32 v{VF+r}, 0")
    for qb in range(2):
        for r in range(8): e(f"v_mov_b32 v{PP[1][qb]+r}, 0")
    e(f"s_cmp_lg_u32 s24, 4\ns_cbranch_scc1 {L('nodep')}")
    if "noflags" in OPT:
        e(f"v_lshlrev_b32 v6, 10, v2\ns_lshl_b32 s35, s25, 5\nv_add_u32 v6, s35, v6\nv_mul_u32_u24 v6, {(65536 + 191) // 192}, v6\nv_lshrrev_b32 v6, 16, v6")
        e(f"v_add_u32 v6, {C_QKV}, v6\nv_lshlrev_b32 v6, 8, v6")
        k.poll("att", None, 16, lanes=3)
    else:
        e(f"s_lshl_b32 s35, s25, 8\ns_add_u32 s35, s35, {FL['att']}")
        k.wait_flags("att", 48, 35)
    e(f"{L('nodep')}:")
    e("s_barrier")
    k.st(3)
    e(f"v_mov_b32 v{T}, {FLAG}\nv_mov_b32 v{T+1}, 0\nds_write_b32 v{T}, v{T+1}")
    e(f"v_add_u32 v{T}, s39, v{QL}\nv_lshlrev_b32 v{T}, 6, v{T}\nv_lshlrev_b32 v{T+1}, 4, v{HH}\nv_add_u32 v{T}, v{T}, v{T+1}")
    for qb in range(2):
        e(f"buffer_load_dwordx4 {v(Q+8*qb,4)}, v{T}, s[4:7], 0 offen offset:{qb*2048}{SC}")
        e(f"buffer_load_dwordx4 {v(Q+8*qb+4,4)}, v{T}, s[4:7], 0 offen offset:{qb*2048+32}{SC}")
    def dma(slot_sreg):
        e(f"s_add_u32 s43, {slot_sreg}, s41\ns_add_u32 s46, s42, s45")
        e(f"s_mov_b32 m0, s43\nbuffer_load_dwordx4 v{DK}, s[8:11], s46 offen{SC} lds")
        e(f"s_add_u32 m0, s43, {SBK}\nbuffer_load_dwordx4 v{DV}, s[12:15], s46 offen{SC} lds")
        e(f"s_add_u32 s46, s46, 1024\ns_add_u32 m0, s43, 1024\nbuffer_load_dwordx4 v{DK}, s[8:11], s46 offen{SC} lds")
        e(f"s_add_u32 m0, s43, {SBK+1024}\nbuffer_load_dwordx4 v{DV}, s[12:15], s46 offen{SC} lds")
        e(f"s_add_u32 s42, s42, {SBK}")
    def dma_both(slot_sreg):
        e(f"s_lshl_b32 s43, s{QG}, 11\ns_add_u32 s43, s43, {slot_sreg}")
        for hf in range(2):
            e(f"s_add_u32 s46, s42, {hf*S*32}")
            e(f"s_add_u32 m0, s43, {hf*HB}\nbuffer_load_dwordx4 v{DK}, s[8:11], s46 offen{SC} lds")
            e(f"s_add_u32 m0, s43, {hf*HB+SBK}\nbuffer_load_dwordx4 v{DV}, s[12:15], s46 offen{SC} lds")
            e(f"s_add_u32 s46, s46, 1024\ns_add_u32 m0, s43, {hf*HB+1024}\nbuffer_load_dwordx4 v{DK}, s[8:11], s46 offen{SC} lds")
            e(f"s_add_u32 m0, s43, {hf*HB+SBK+1024}\nbuffer_load_dwordx4 v{DV}, s[12:15], s46 offen{SC} lds")
    def kread(a0, a1, t):
        return [f"ds_read_b128 {v(KF,4)}, v{a0} offset:{t*2048}", f"ds_read_b128 {v(KF+4,4)}, v{a1} offset:{t*2048}"]
    def vread(t):
        return [f"ds_read_b64_tr_b16 {v(VF+4*m+2*hh,2)}, v{AV} offset:{t*2048+(16*m+8*hh)*64}" for m in range(2) for hh in range(2)]
    def qk(qb, dst, c):
        return [f"v_mfma_f32_32x32x16_bf16 {v(dst,16)}, {v(KF,4)}, {v(Q+8*qb,4)}, {c}",
                f"v_mfma_f32_32x32x16_bf16 {v(dst,16)}, {v(KF+4,4)}, {v(Q+8*qb+4,4)}, {v(dst,16)}"]
    def pv(qb, P):
        o, l = O + 16 * qb, LS + 4 * qb
        return [f"v_mfma_f32_32x32x16_bf16 {v(o,16)}, {v(VF,4)}, {v(P,4)}, {v(o,16)}",
                f"v_mfma_f32_16x16x32_bf16 {v(l,4)}, {v(SEL,4)}, {v(P,4)}, {v(l,4)}",
                f"v_mfma_f32_32x32x16_bf16 {v(o,16)}, {v(VF+4,4)}, {v(P+4,4)}, {v(o,16)}",
                f"v_mfma_f32_16x16x32_bf16 {v(l,4)}, {v(SEL,4)}, {v(P+4,4)}, {v(l,4)}"]
    def lane_max16(src, dst, tmp):
        e(f"v_max3_f32 v{dst}, v{src}, v{src+1}, v{src+2}")
        for r in range(3, 15, 2): e(f"v_max3_f32 v{dst}, v{dst}, v{src+r}, v{src+r+1}")
        e(f"v_max_f32 v{dst}, v{dst}, v{src+15}")
        e(f"v_mov_b32 v{tmp}, v{dst}\nv_permlane32_swap_b32 v{tmp}, v{dst}\nv_max_f32 v{dst}, v{dst}, v{tmp}")
    NST = S // 2 // KPS
    HALF = S * 32
    e("s_mov_b32 s42, 0")
    for st in range(2):
        e(f"s_mov_b32 s44, {(st+S0)*SB}")
        dma("s44")
    e("s_waitcnt vmcnt(4)\ns_barrier")
    if "stloop" in OPT: k.st(13)
    e(f"v_xor_b32 v{T+4}, 32, v{T+3}")
    for l in kread(T + 3, T + 4, 0): e(l)
    e("s_waitcnt lgkmcnt(0)")
    for qb in range(2):
        for l in qk(qb, SS[1][qb], "0"): e(l)
    for l in kread(AK0, AK1, 0): e(l)
    for qb in range(2):
        lane_max16(SS[1][qb], T, T + 1)
        e(f"v_add_f32 v{T}, {f32(40.0)}, v{T}")
        for r in range(16): e(f"v_sub_f32 v{NEG+16*qb+r}, 0, v{T}")
    e("s_waitcnt lgkmcnt(0)")
    for qb in range(2):
        for l in qk(qb, SS[0][qb], v(NEG + 16 * qb, 16)): e(l)
    for l in kread(AK0, AK1, 1): e(l)
    e(f"v_add_u32 v{AN0}, {SB}, v{AK0}\nv_add_u32 v{AN1}, {SB}, v{AK1}")
    e(f"s_mov_b32 s47, {1+S0}\ns_mov_b32 s48, {SB}\ns_mov_b32 s49, {-(NSL-1)*SB & 0xffffffff:#x}")
    e(f"s_mov_b32 s50, {(2+S0)*SB}")
    e("s_waitcnt lgkmcnt(0)")
    e("s_lshl_b32 s56, s2, 3\ns_add_u32 s56, s56, s24\ns_mul_i32 s58, s56, 52429\ns_lshr_b32 s58, s58, 18\ns_mul_i32 s58, s58, 5\ns_sub_u32 s58, s56, s58\ns_sub_u32 s58, 7, s58")
    if "pfall" in OPT: e(f"s_mov_b32 s58, {PFSTAGE}")
    flg = "flg" in OPT
    PG, PAO, PAG, PVV = 232, 236, 237, 238
    if flg:
        e(f"s_lshl_b32 s52, s{KH}, 4\ns_add_u32 s52, s52, {CTL+128}\nv_mov_b32 v{PAG}, s52\ns_lshl_b32 s53, s{QG}, 2\ns_add_u32 s52, s52, s53\nv_mov_b32 v{PAO}, s52\ns_mov_b32 s59, 1\ns_mov_b32 s53, 0")
        e("s_barrier")
    e(f"s_mov_b32 s44, {NST}")
    if "prio1" in OPT: e(f"s_cmp_lt_u32 s24, 4\ns_cbranch_scc1 {L('noprio')}\ns_setprio 1\n{L('noprio')}:")
    if "prio0" in OPT: e(f"s_cmp_ge_u32 s24, 4\ns_cbranch_scc1 {L('noprio')}\ns_setprio 1\n{L('noprio')}:")
    if "stloop" in OPT: k.st(12)
    align(k, "att")
    e(f"{L('floop')}:")
    for t in range(4):
        par = t & 1
        if t == 2:
            if flg:
                e("s_waitcnt lgkmcnt(4)")
                e(f"{L('pchk')}:")
                e(f"v_min3_u32 v{PVV}, v{PG}, v{PG+1}, v{PG+2}\nv_min_u32 v{PVV}, v{PVV}, v{PG+3}\nv_readfirstlane_b32 s52, v{PVV}")
                e(f"s_cmp_ge_u32 s52, s59\ns_cbranch_scc1 {L('pok')}")
                e(f"ds_read_b128 {v(PG,4)}, v{PAG}\ns_waitcnt lgkmcnt(0)\ns_add_u32 s53, s53, 1\ns_cmp_lt_u32 s53, {SPIN_MAX*16}\ns_cbranch_scc1 {L('pchk')}")
                e(f"{L('pok')}:")
                e(f"s_cmp_ge_u32 s42, {HALF}\ns_cbranch_scc1 {L('cont')}")
            elif old4:
                e(f"s_cmp_ge_u32 s42, {HALF}\ns_cbranch_scc1 {L('nodma')}")
                e(f"s_cmp_lg_u32 s{KH}, 0\ns_cbranch_scc1 {L('yw')}")
                dma_both("s50")
                e(f"s_waitcnt vmcnt(8)\ns_branch {L('yb')}")
                e(f"{L('yw')}:\ns_cmp_lg_u32 s44, {NST}\ns_cbranch_scc1 {L('yb')}\ns_waitcnt vmcnt(0)")
                e(f"{L('yb')}:\ns_barrier\ns_add_u32 s42, s42, {SBK}")
            else:
                e(f"s_cmp_ge_u32 s42, {HALF}\ns_cbranch_scc1 {L('nodma')}")
                e(f"s_waitcnt vmcnt({4*(NSL-3)})\ns_barrier")
            if not old4 or flg: dma("s50")
            e(f"s_add_u32 s50, s50, {SB}\ns_cmp_eq_u32 s50, {NSL*SB}\ns_cselect_b32 s50, 0, s50")
            if pf:
                e(f"s_cmp_lg_u32 s44, s58\ns_cbranch_scc1 {L('cont')}")
                e(f"s_mov_b32 s60, s{P_WO}\ns_mov_b32 s61, s{P_WO+1}\ns_mov_b32 s62, {D*D*2}\ns_mov_b32 s63, 0x20000\ns_mov_b32 s52, s56")
                e(f"s_cmp_lt_u32 s56, 256\ns_cbranch_scc1 {L('pfgo')}")
                e(f"s_mov_b32 s60, s{P_W1}\ns_mov_b32 s61, s{P_W1+1}\ns_mov_b32 s62, {D*DFF*2}\ns_mov_b32 s63, 0x20000\ns_sub_u32 s52, s56, 256")
                e(f"s_cmp_lt_u32 s56, 1152\ns_cbranch_scc1 {L('pfgo')}")
                e(f"s_mov_b32 s60, s{P_W2}\ns_mov_b32 s61, s{P_W2+1}\ns_mov_b32 s62, {D*DFF*2}\ns_mov_b32 s63, 0x20000\ns_sub_u32 s52, s56, 1152")
                e(f"{L('pfgo')}:")
                e(f"s_lshl_b32 s52, s52, 13\nv_lshlrev_b32 v{T}, 7, v2\nbuffer_load_dword v{PFD}, v{T}, s[60:63], s52 offen")
                if "mrwo" in OPT:
                    e(f"s_bitcmp1_b32 s56, 0\ns_cbranch_scc1 {L('nowm')}")
                    e(f"s_load_dwordx2 s[60:61], s[0:1], {KA_WMOD}\ns_lshr_b32 s52, s56, 1\ns_mul_i32 s52, s52, 12288\ns_add_u32 s52, s52, 4096\ns_waitcnt lgkmcnt(0)")
                    e(f"s_mov_b32 s62, {1024*6144*2}\ns_mov_b32 s63, 0x20000\nbuffer_load_dword v{PFD}, v{T}, s[60:63], s52 offen")
                    e(f"{L('nowm')}:")
                k.code_touch("a", k.lab("att_cont"), k.lab("f1_l"), 24, 8, 1)
            if not flg:
                e(f"s_branch {L('cont')}")
                e(f"{L('nodma')}:")
                e("s_waitcnt vmcnt(0)\ns_barrier")
            e(f"{L('cont')}:")
        kr = kread(AN0, AN1, (t + 2) % 4) if t >= 2 else kread(AK0, AK1, t + 2)
        vr = vread(t)
        m = []; p = []; E = []; C = []
        for qb in range(2):
            cur = SS[par][qb]; nxt = SS[1 - par][qb]; pc = PP[par][qb]; pp = PP[1 - par][qb]
            m.append(qk(qb, nxt, v(NEG + 16 * qb, 16))); p.append(pv(qb, pp))
            E.append([f"v_exp_f32 v{cur+r}, v{cur+r}" for r in range(16)])
            C.append([f"v_cvt_pk_bf16_f32 v{pc+r}, v{cur+2*r}, v{cur+2*r+1}" for r in range(8)])
        E0, E1 = E; C0, C1 = C
        seq = ["s_waitcnt lgkmcnt(4)",
               m[0][0], E0[0], E0[1], E0[2], E0[3],
               m[1][0], E0[4], E0[5], C0[0], C0[1], E0[6],
               m[0][1], E0[7], C0[2], E0[8], E0[9], C0[3],
               m[1][1], kr[0], kr[1], E0[10], E0[11], E0[12], E0[13], "s_waitcnt lgkmcnt(2)",
               p[0][0], C0[4], C0[5], E0[14], E0[15], C0[6], C0[7],
               p[0][1], E1[0], E1[1],
               p[1][0], E1[2], E1[3], C1[0], C1[1], E1[4],
               p[1][1], E1[5], E1[6],
               p[0][2], E1[7], C1[2], E1[8], E1[9], C1[3],
               p[0][3], E1[10], E1[11],
               p[1][2], vr[0], vr[1], vr[2], vr[3], E1[12], E1[13], C1[4], C1[5], E1[14],
               p[1][3], E1[15], C1[6], C1[7]]
        if smf:
            out_ = []
            for x_ in seq:
                if "16x16x32" in x_:
                    qb_ = 0 if x_ in p[0] else 1
                    if x_ == p[qb_][1]: continue
                    out_.append(f"v_smfmac_f32_16x16x64_bf16 {v(LS+4*qb_,4)}, {v(SEL,4)}, {v(PP[1-par][qb_],8)}, v{SIX}")
                else: out_.append(x_)
            seq = out_
        if flg and t == 1:
            i_ = seq.index(m[0][0])
            seq = seq[:i_ + 1] + ["s_waitcnt vmcnt(0)", f"v_mov_b32 v{PVV}, s59", f"ds_write_b32 v{PAO}, v{PVV}"] + seq[i_ + 1:]
            seq[seq.index("s_waitcnt lgkmcnt(2)")] = "s_waitcnt lgkmcnt(3)"
            i_ = seq.index(vr[0])
            seq = seq[:i_] + [f"ds_read_b128 {v(PG,4)}, v{PAG}"] + seq[i_:]
        if flg and t == 2: seq = seq[1:]
        for l in seq: e(l)
        if t == 3 and flg: e("s_add_u32 s59, s59, 1")
        if t == 3:
            e(f"v_sub_u32 v{T}, v{AN0}, v{AK0}\nv_add_u32 v{AV}, v{AV}, v{T}\nv_mov_b32 v{AK0}, v{AN0}\nv_mov_b32 v{AK1}, v{AN1}")
            e(f"s_add_u32 s47, s47, 1\ns_cmp_eq_u32 s47, {NSL}\ns_cselect_b32 s51, s49, s48\ns_cselect_b32 s47, 0, s47")
            e(f"v_add_u32 v{AN0}, s51, v{AN0}\nv_add_u32 v{AN1}, s51, v{AN1}")
    e(f"s_sub_u32 s44, s44, 1\ns_cmp_lg_u32 s44, 0\ns_cbranch_scc1 {L('floop')}")
    e("s_waitcnt lgkmcnt(0)")
    for qb in range(2):
        if smf:
            pl = pv(qb, PP[1][qb])
            e(pl[0]); e(pl[2]); e(f"v_smfmac_f32_16x16x64_bf16 {v(LS+4*qb,4)}, {v(SEL,4)}, {v(PP[1][qb],8)}, v{SIX}")
        else:
            for l in pv(qb, PP[1][qb]): e(l)
    if smf: e(f"v_add_f32 v{LS}, v{LS}, v{LS+2}\nv_add_f32 v{LS+4}, v{LS+4}, v{LS+6}")
    if "prio1" in OPT or "prio0" in OPT: e("s_setprio 0")
    k.st(4)
    def merge(safe, M=None):
        e("s_barrier")
        e(f"s_cmp_eq_u32 s{KH}, 0\ns_cbranch_scc1 {L('keep0' + safe)}")
        for r in range(16): e(f"v_swap_b32 v{O+r}, v{O+16+r}")
        e(f"v_swap_b32 v{LS}, v{LS+4}")
        if M is not None: e(f"v_swap_b32 v{M}, v{M+1}")
        e(f"{L('keep0' + safe)}:")
        e(f"s_mul_i32 s52, s24, {5*1024+256}\nv_lshlrev_b32 v{T}, 4, v2\nv_add_u32 v{T}, s52, v{T}")
        for g in range(4): e(f"ds_write_b128 v{T}, {v(O+16+4*g,4)} offset:{g*1024}")
        e(f"v_lshlrev_b32 v{T+1}, 2, v2\nv_add_u32 v{T+1}, s52, v{T+1}")
        e(f"ds_write_b32 v{T+1}, v{LS+4} offset:4096")
        if M is not None: e(f"ds_write_b32 v{T+1}, v{M+1} offset:{4096+256}")
        e("s_waitcnt lgkmcnt(0)\ns_barrier")
        e(f"s_xor_b32 s52, s24, 4\ns_mul_i32 s52, s52, {5*1024+256}\nv_lshlrev_b32 v{T}, 4, v2\nv_add_u32 v{T}, s52, v{T}")
        for g in range(4): e(f"ds_read_b128 {v(O+16+4*g,4)}, v{T} offset:{g*1024}")
        e(f"v_lshlrev_b32 v{T+1}, 2, v2\nv_add_u32 v{T+1}, s52, v{T+1}")
        e(f"ds_read_b32 v{LS+4}, v{T+1} offset:4096")
        if M is not None: e(f"ds_read_b32 v{M+1}, v{T+1} offset:{4096+256}")
        e("s_waitcnt lgkmcnt(0)")
        if M is None:
            for r in range(16): e(f"v_add_f32 v{O+r}, v{O+r}, v{O+16+r}")
            e(f"v_add_f32 v{LS}, v{LS}, v{LS+4}")
        else:
            e(f"v_max_f32 v{T}, v{M}, v{M+1}\nv_sub_f32 v{T+1}, v{M}, v{T}\nv_sub_f32 v{T+2}, v{M+1}, v{T}\nv_exp_f32 v{T+1}, v{T+1}\nv_exp_f32 v{T+2}, v{T+2}")
            for r in range(16): e(f"v_mul_f32 v{O+r}, v{O+r}, v{T+1}\nv_fmac_f32 v{O+r}, v{O+16+r}, v{T+2}")
            e(f"v_mul_f32 v{LS}, v{LS}, v{T+1}\nv_fmac_f32 v{LS}, v{LS+4}, v{T+2}")
        e(f"v_rcp_f32 v{T}, v{LS}")
        for r in range(16): e(f"v_mul_f32 v{O+r}, v{O+r}, v{T}")
    XE = 98304 if old4 else 98432
    e(f"v_add_f32 v{T+2}, abs(v{O}), abs(v{O+1})\nv_add_f32 v{T+3}, abs(v{O+16}), abs(v{O+17})")
    for r in range(2, 16): e(f"v_add_f32 v{T+2}, v{T+2}, abs(v{O+r})\nv_add_f32 v{T+3}, v{T+3}, abs(v{O+16+r})")
    e(f"v_add_f32 v{T+2}, v{T+2}, v{T+3}\nv_mov_b32 v{T+1}, {f32(2.0**126)}\nv_cmp_nlt_f32 vcc, v{T+2}, v{T+1}\ns_mov_b64 s[46:47], vcc")
    e(f"v_add_f32 v{T+2}, v{LS}, v{LS+4}\nv_mov_b32 v{T+1}, {f32(2.0**119)}\nv_cmp_nlt_f32 vcc, v{T+2}, v{T+1}\ns_or_b64 s[46:47], s[46:47], vcc")
    e(f"s_cmp_eq_u64 s[46:47], 0\ns_cbranch_scc1 {L('okwave')}")
    e(f"v_mov_b32 v{T+1}, {FLAG}\nv_mov_b32 v{T+2}, 1\nds_write_b32 v{T+1}, v{T+2}")
    e(f"{L('okwave')}:")
    e(f"s_mul_i32 s52, s24, 4352\ns_add_u32 s52, s52, {XE}\nv_lshlrev_b32 v{T}, 4, v2\nv_add_u32 v{T}, s52, v{T}\nv_lshlrev_b32 v{T+1}, 2, v2\nv_add_u32 v{T+1}, s52, v{T+1}")
    e(f"s_cmp_eq_u32 s{KH}, 0\ns_cbranch_scc1 {L('snd0')}")
    for g in range(4): e(f"ds_write_b128 v{T}, {v(O+4*g,4)} offset:{g*1024}")
    e(f"ds_write_b32 v{T+1}, v{LS} offset:4096\ns_branch {L('snd1')}")
    e(f"{L('snd0')}:")
    for g in range(4): e(f"ds_write_b128 v{T}, {v(O+16+4*g,4)} offset:{g*1024}")
    e(f"ds_write_b32 v{T+1}, v{LS+4} offset:4096")
    e(f"{L('snd1')}:")
    e(f"s_xor_b32 s52, s24, 4\ns_mul_i32 s52, s52, 4352\ns_add_u32 s52, s52, {XE}\nv_lshlrev_b32 v{T}, 4, v2\nv_add_u32 v{T}, s52, v{T}\nv_lshlrev_b32 v{T+1}, 2, v2\nv_add_u32 v{T+1}, s52, v{T+1}")
    e(f"v_mov_b32 v{T+3}, {FLAG}")
    e("s_waitcnt lgkmcnt(0)\ns_barrier")
    e(f"ds_read_b32 v{T+2}, v{T+3}")
    e(f"s_cmp_eq_u32 s{KH}, 0\ns_cbranch_scc1 {L('rcv0')}")
    for g in range(4): e(f"ds_read_b128 {v(O+4*g,4)}, v{T} offset:{g*1024}")
    e(f"ds_read_b32 v{LS}, v{T+1} offset:4096\ns_branch {L('rcv1')}")
    e(f"{L('rcv0')}:")
    for g in range(4): e(f"ds_read_b128 {v(O+16+4*g,4)}, v{T} offset:{g*1024}")
    e(f"ds_read_b32 v{LS+4}, v{T+1} offset:4096")
    e(f"{L('rcv1')}:")
    e(f"s_waitcnt lgkmcnt(5)\nv_readfirstlane_b32 s46, v{T+2}\ns_cmp_lg_u32 s46, 0\ns_cbranch_scc1 {L('safe')}")
    e("s_waitcnt lgkmcnt(0)")
    e(f"v_add_f32 v{LS}, v{LS}, v{LS+4}\nv_rcp_f32 v{T}, v{LS}")
    for r in range(0, 16, 2): e(f"v_pk_add_f32 {v(O+r,2)}, {v(O+r,2)}, {v(O+16+r,2)}")
    assert (T + 1) % 2 == 0
    e(f"v_mov_b32 v{T+1}, v{T}")
    for r in range(0, 16, 2): e(f"v_pk_mul_f32 {v(O+r,2)}, {v(O+r,2)}, {v(T+1,2)} op_sel_hi:[1,0]")
    e(f"{L('store')}:")
    if "statt" in OPT: k.st(12)
    P = PP[0][0]
    for r in range(8): e(f"v_cvt_pk_bf16_f32 v{P+r}, v{O+2*r}, v{O+2*r+1}")
    for b in (0, 4):
        e(f"v_permlane32_swap_b32 v{P+b}, v{P+b+2}\nv_permlane32_swap_b32 v{P+b+1}, v{P+b+3}")
    for r in range(4): e(f"v_permlane16_swap_b32 v{P+r}, v{P+4+r}")
    e(f"s_lshl_b32 s40, s{KH}, 5\ns_add_u32 s40, s40, s39")
    e(f"v_and_b32 v{T}, 15, v2\nv_add_u32 v{T}, s40, v{T}\nv_lshlrev_b32 v{T}, 11, v{T}")
    e(f"v_lshrrev_b32 v{T+1}, 4, v2\nv_and_b32 v{T+2}, 1, v{T+1}\nv_lshlrev_b32 v{T+2}, 5, v{T+2}\nv_lshrrev_b32 v{T+1}, 1, v{T+1}\nv_lshlrev_b32 v{T+1}, 4, v{T+1}")
    e(f"v_add_u32 v{T}, v{T}, v{T+1}\nv_add_u32 v{T}, v{T}, v{T+2}")
    e(f"s_lshl_b32 s40, s25, 6\ns_add_u32 s41, s40, {16*2048}")
    e(f"buffer_store_dwordx4 {v(P,4)}, v{T}, s[16:19], s40 offen{SCS}\nbuffer_store_dwordx4 {v(P+4,4)}, v{T}, s[16:19], s41 offen{SCS}")
    if "statt" in OPT: k.st(13)
    e(f"s_add_u32 s35, s26, {C_ATT}")
    k.signal("att", 8, 35, 32, (2, lambda: e((f"v_mov_b32 v6, {C_ATTALL*256}\nv_mov_b32 v7, 1\ns_mov_b64 exec, 1\nbuffer_atomic_add v7, v6, {s(CNT,4)}, 0 offen sc1\ns_mov_b64 exec, -1\n" if "alias" in OPT else "") + f"s_lshl_b32 s33, s26, 8\ns_lshl_b32 s34, s25, 2\ns_add_u32 s33, s33, s34\ns_add_u32 s33, s33, {FL['wo']}\nv_lshlrev_b32 v6, 7, v2\nv_add_u32 v6, s33, v6")))
    if "statt" in OPT: k.st(14, 7)
    e(f"s_cmp_ge_u32 s24, 4\ns_cbranch_scc1 {nxt_l}\ns_branch {nxt_c}")
    e(f"{L('safe')}:")
    e("s_waitcnt vmcnt(0) lgkmcnt(0)\ns_barrier")
    M = NEG; AL = NEG + 2
    SA = SS[0][0]; P0 = PP[0][0]
    zero_acc()
    if smf: dense_selector()
    e(f"v_mov_b32 v{M}, {f32(-3.0e38)}\nv_mov_b32 v{M+1}, {f32(-3.0e38)}")
    addr_setup()
    e("s_mov_b32 s42, 0")
    e(f"s_mov_b32 s44, {NST}")
    e(f"{L('sloop')}:")
    e("s_barrier")
    e("s_mov_b32 s53, 0")
    dma("s53")
    e("s_waitcnt vmcnt(0)\ns_barrier")
    for t in range(4):
        for l in kread(AK0, AK1, t) + vread(t): e(l)
        e("s_waitcnt lgkmcnt(0)")
        for qb in range(2):
            for l in qk(qb, SA, "0"): e(l)
            lane_max16(SA, T, T + 1)
            e(f"v_max_f32 v{T}, v{T}, v{M+qb}\nv_sub_f32 v{AL}, v{M+qb}, v{T}\nv_exp_f32 v{AL}, v{AL}\nv_mov_b32 v{M+qb}, v{T}")
            for r in range(16): e(f"v_sub_f32 v{SA+r}, v{SA+r}, v{T}\nv_exp_f32 v{SA+r}, v{SA+r}")
            for r in range(16): e(f"v_mul_f32 v{O+16*qb+r}, v{O+16*qb+r}, v{AL}")
            for r in range(4): e(f"v_mul_f32 v{LS+4*qb+r}, v{LS+4*qb+r}, v{AL}")
            for r in range(8): e(f"v_cvt_pk_bf16_f32 v{P0+r}, v{SA+2*r}, v{SA+2*r+1}")
            for l in pv(qb, P0): e(l)
    e(f"s_sub_u32 s44, s44, 1\ns_cmp_lg_u32 s44, 0\ns_cbranch_scc1 {L('sloop')}")
    merge("s", M)
    e("s_barrier")
    e(f"s_branch {L('store')}")


GL = 134144
DBG = 84

def g_final(k, tag):
    e = k.e; L = lambda n: k.lab("g_" + tag + n)
    e(f"v_mov_b32 v6, {L_SIG['g']}\nv_mov_b32 v7, 1\ns_mov_b64 exec, 1\nds_add_rtn_u32 v7, v6, v7\ns_waitcnt lgkmcnt(0)\nv_readfirstlane_b32 s36, v7\ns_mov_b64 exec, -1")
    e(f"s_cmp_lg_u32 s36, 4\ns_cbranch_scc1 {L('x')}")
    e(f"v_lshlrev_b32 v6, 2, v2\nv_add_u32 v7, {GL}, v6")
    for w in range(4): e(f"ds_read_b32 v{180+w}, v7 offset:{w*256}")
    e("s_waitcnt lgkmcnt(0)\nv_add_f32 v180, v180, v181\nv_add_f32 v182, v182, v183\nv_add_f32 v180, v180, v182")
    k.srd(56, P_WS, WS_MODP, 4 * 6144 * 4)
    e("s_and_b32 s36, s2, 3\ns_mul_i32 s36, s36, 24576\ns_lshr_b32 s37, s2, 2\ns_lshl_b32 s37, s37, 8\ns_add_u32 s36, s36, s37")
    e(f"buffer_store_dword v180, v6, s[56:59], s36 offen{SCS}\ns_waitcnt vmcnt(0)")
    e(f"v_mov_b32 v6, 0\nv_mov_b32 v7, 1\ns_mov_b64 exec, 1\nbuffer_atomic_add v7, v6, {s(DBG,4)}, 0 offen sc0 sc1\ns_waitcnt vmcnt(0)\nv_readfirstlane_b32 s36, v7")
    e(f"s_cmp_lg_u32 s36, 127\ns_cbranch_scc1 {L('y')}")
    e(f"v_mov_b32 v7, 1\nbuffer_store_dword v7, v6, {s(DBG,4)}, 0 offen offset:128 sc1")
    e(f"{L('y')}:\ns_mov_b64 exec, -1\n{L('x')}:")

def g_compute(k):
    e = k.e; L = lambda n: k.lab("g_" + n)
    e(f"s_cmp_ge_u32 s2, 128\ns_cbranch_scc1 {L('wait')}")
    e(f"s_load_dwordx4 s[36:39], s[0:1], {KA_C}")
    e("s_and_b32 s40, s2, 3\ns_lshr_b32 s41, s2, 2")
    e("v_lshrrev_b32 v6, 3, v0\nv_and_b32 v7, 7, v0\nv_mov_b32 v178, v7")
    e("s_lshl_b32 s42, s40, 8\nv_add_u32 v6, s42, v6\nv_lshlrev_b32 v4, 1, v6")
    e("v_mul_u32_u24 v5, 12288, v6\nv_lshlrev_b32 v6, 4, v7\nv_add_u32 v5, v5, v6\ns_lshl_b32 s42, s41, 7\nv_add_u32 v5, s42, v5")
    e("s_waitcnt lgkmcnt(0)")
    k.srd(56, 36, 0, 2048); k.srd(60, 38, 0, 1024 * 6144 * 2)
    for i in range(8): e(f"buffer_load_ushort v{128+i}, v4, s[56:59], 0 offen offset:{i*64}")
    for i in range(8): e(f"s_mov_b32 s42, {i*32*12288}\nbuffer_load_dwordx4 {v(136+4*i,4)}, v5, s[60:63], s42 offen")
    gemv_finish(k, 128, 136, 168, 176)
    e(f"s_lshl_b32 s42, s24, 8\nv_lshlrev_b32 v5, 5, v178\nv_add_u32 v5, s42, v5\nv_add_u32 v5, {GL}, v5")
    e("s_mov_b64 exec, 0xff\nds_write_b128 v5, v[168:171]\nds_write_b128 v5, v[172:175] offset:16\ns_waitcnt lgkmcnt(0)\ns_mov_b64 exec, -1")
    g_final(k, "c")
    e(f"{L('wait')}:")
    e(f"s_cmp_lg_u32 s24, 0\ns_cbranch_scc1 {L('go')}")
    e(f"v_mov_b32 v6, 0\ns_mov_b32 s33, 0\ns_mov_b64 exec, 1")
    e(f"{L('poll')}:\nbuffer_load_dword v7, v6, {s(DBG,4)}, 0 offen offset:128 sc1\ns_waitcnt vmcnt(0)\nv_readfirstlane_b32 s34, v7")
    e(f"s_cmp_eq_u32 s34, 1\ns_cbranch_scc1 {L('pollx')}\ns_add_u32 s33, s33, 1\ns_cmp_ge_u32 s33, {SPIN_MAX}\ns_cbranch_scc1 {L('pollx')}\ns_sleep {SLEEP}\ns_branch {L('poll')}")
    e(f"{L('pollx')}:\ns_mov_b64 exec, -1")
    e(f"{L('go')}:\ns_barrier")

def g_loader(k):
    e = k.e; L = lambda n: k.lab("gl_" + n)
    share = (-(-CNT_BYTES // 128) + 1023) // 1024 * 1024
    e(f"s_cmp_ge_u32 s2, 128\ns_cbranch_scc1 {L('x')}\ns_cmp_lg_u32 s24, 5\ns_cbranch_scc1 {L('x')}")
    e(f"s_mul_i32 s36, s2, {share}\nv_lshlrev_b32 v3, 4, v2\nv_mov_b32 v200, 0\nv_mov_b32 v201, 0\nv_mov_b32 v202, 0\nv_mov_b32 v203, 0")
    for i in range(share // 1024):
        e(f"buffer_store_dwordx4 v[200:203], v3, {s(CNT,4)}, s36 offen offset:{i*1024}{SCS}")
    e("s_waitcnt vmcnt(0)")
    g_final(k, "l")
    e(f"{L('x')}:")

def h_phase(k):
    e = k.e; L = lambda n: k.lab("h_" + n)
    HL = 125952
    e("s_lshl_b32 s36, s2, 3\ns_lshl_b32 s37, s24, 1\ns_add_u32 s36, s36, s37")
    e("s_lshl_b32 s36, s36, 11\nv_lshlrev_b32 v3, 4, v2\nv_add_u32 v3, s36, v3")
    k.srd(12, P_X, 0, S * D * 2); k.srd(16, P_WS, WS_H, S * D * 2)
    k.srd(20, P_WS, WS_MODP, 4 * 6144 * 4); k.srd(56, P_WS, WS_MODF, 6144 * 4)
    single = "single" in OPT
    def xloads():
        for r in range(2):
            for hf in range(2):
                e(f"buffer_load_dwordx4 {v(8+8*r+4*hf,4)}, v3, s[12:15], 0 offen offset:{r*2048+hf*1024}")
    if single:
        xloads()
        e("v_mov_b32 v179, v3")
        g_compute(k)
        e("v_mov_b32 v3, v179")
    e("v_lshlrev_b32 v5, 5, v0")
    for p in range(4):
        e(f"s_mov_b32 s37, {p*24576}")
        e(f"buffer_load_dwordx4 {v(64+8*p,4)}, v5, s[20:23], s37 offen{SC if single else ''}\nbuffer_load_dwordx4 {v(68+8*p,4)}, v5, s[20:23], s37 offen offset:16{SC if single else ''}")
    if not single: xloads()
    nt_ = k.code_touch("h", k.lab("qkv_c"), k.lab("wo_c"), 24, 4, 1)
    e(f"s_waitcnt vmcnt({(0 if single else 4)+nt_})")
    for j in range(8):
        e(f"v_add_f32 v{64+j}, v{64+j}, v{72+j}\nv_add_f32 v{80+j}, v{80+j}, v{88+j}\nv_add_f32 v{64+j}, v{64+j}, v{80+j}")
        round_bf16(e, 64 + j)
    e("v_cmp_le_u32 vcc, 128, v0")
    for j in range(8):
        e(f"v_add_f32 v72, 1.0, v{64+j}")
        round_bf16(e, 72)
        e(f"v_cndmask_b32 v{64+j}, v{64+j}, v72, vcc")
    e(f"v_add_u32 v5, {HL}, v5\nds_write_b128 v5, v[64:67]\nds_write_b128 v5, v[68:71] offset:16")
    e("s_waitcnt lgkmcnt(0)\ns_barrier")
    e(f"v_lshlrev_b32 v5, 5, v2\nv_add_u32 v5, {HL}, v5")
    for hf in range(2):
        for q in range(2):
            e(f"ds_read_b128 {v(32+8*hf+4*q,4)}, v5 offset:{hf*2048+q*16}")
            e(f"ds_read_b128 {v(48+8*hf+4*q,4)}, v5 offset:{4096+hf*2048+q*16}")
    e(f"s_waitcnt vmcnt({nt_})")
    X = 64
    for r in range(2):
        for j in range(8):
            src = 8 + 8 * r + j
            e(f"v_lshlrev_b32 v{X+16*r+2*j}, 16, v{src}\nv_and_b32 v{X+16*r+2*j+1}, 0xffff0000, v{src}")
    for r in range(2): e(f"v_add_f32 v{104+r}, v{X+16*r}, v{X+16*r+1}")
    for j in range(2, 16):
        for r in range(2): e(f"v_add_f32 v{104+r}, v{104+r}, v{X+16*r+j}")
    wave_sum(e, [104, 105], 106, [0, 1, 2, 3, 4, 5])
    for r in range(2): e(f"v_mul_f32 v{104+r}, {f32(1/1024)}, v{104+r}")
    for j in range(16):
        for r in range(2): e(f"v_sub_f32 v{X+16*r+j}, v{X+16*r+j}, v{104+r}")
    for r in range(2): e(f"v_mul_f32 v{107+r}, v{X+16*r}, v{X+16*r}")
    for j in range(1, 16):
        for r in range(2): e(f"v_fmac_f32 v{107+r}, v{X+16*r+j}, v{X+16*r+j}")
    wave_sum(e, [107, 108], 106, [0, 1, 2, 3, 4, 5])
    for r in range(2):
        e(f"v_mov_b32 v{109+r}, {f32(1e-5)}\nv_fmac_f32 v{109+r}, {f32(1/1024)}, v{107+r}\nv_rsq_f32 v{109+r}, v{109+r}")
    e("s_waitcnt lgkmcnt(0)")
    for r in range(2):
        for j in range(16):
            e(f"v_mul_f32 v{X+16*r+j}, v{X+16*r+j}, v{109+r}\nv_fma_f32 v{X+16*r+j}, v{X+16*r+j}, v{48+j}, v{32+j}")
        for j in range(8): e(f"v_cvt_pk_bf16_f32 v{112+8*r+j}, v{X+16*r+2*j}, v{X+16*r+2*j+1}")
        e(f"buffer_store_dwordx4 {v(112+8*r,4)}, v3, s[16:19], 0 offen offset:{r*2048}{SCS}")
        e(f"buffer_store_dwordx4 {v(116+8*r,4)}, v3, s[16:19], 0 offen offset:{r*2048+1024}{SCS}")
    e(f"s_lshr_b32 s35, s2, 4\ns_add_u32 s35, s35, {C_H}")
    def offs():
        e(f"s_lshr_b32 s33, s2, 4\ns_lshl_b32 s33, s33, 9\ns_and_b32 s34, s2, 15\ns_lshl_b32 s34, s34, 2\ns_add_u32 s33, s33, s34\ns_add_u32 s33, s33, {FL['qkv']}")
        e("v_lshlrev_b32 v6, 7, v2\nv_add_u32 v6, s33, v6")
    k.signal("h", 4, 35, 16, (4, offs))

def k_main():
    single = "single" in OPT
    k = PK(NAME + "_kernel" if single else "main_kernel", 256, 512, LDS_TOTAL + 16384, 256, 100); e = k.e
    L = k.lab
    e(f"s_cmp_ge_u32 s2, 256\ns_cbranch_scc1 {L('end')}")
    e(f"s_load_dwordx4 s[68:71], s[0:1], {KA_X}\ns_load_dwordx4 s[72:75], s[0:1], {KA_W1}\ns_load_dwordx2 s[76:77], s[0:1], {KA_WO}")
    e(f"s_load_dwordx2 s[78:79], s[0:1], {KA_OUT}\ns_load_dwordx2 s[66:67], s[0:1], {KA_WS}")
    if single: e(f"s_load_dwordx2 s[82:83], s[0:1], {KA_DBG}")
    e("v_lshrrev_b32 v1, 6, v0\nv_and_b32 v2, 63, v0\nv_readfirstlane_b32 s24, v1")
    e(f"s_cmp_lg_u32 s24, 0\ns_cbranch_scc1 {L('noinit')}")
    e(f"v_lshlrev_b32 v3, 2, v2\nv_add_u32 v3, {CTL}, v3\nv_mov_b32 v4, 0\nds_write_b32 v3, v4\ns_waitcnt lgkmcnt(0)")
    e(f"{L('noinit')}:")
    e("s_waitcnt lgkmcnt(0)")
    k.srd(CNT, P_WS, WS_CNT, CNT_BYTES)
    if single:
        k.srd(DBG, 82, 0, 256)
        e("s_barrier")
    k.st(0)
    e(f"s_cmp_ge_u32 s24, 4\ns_cbranch_scc1 {L('qkv_l')}")
    hin = "hsep" not in OPT
    if hin: h_phase(k)
    gemm_phase(k, "qkv", 1024, 1024, 3072, 192, WS_H, S * D * 2, P_WQKV, D * 3 * D * 2, "qkv", 8, 4, 3, L("att_c"), L("att_l"), (C_H, 16, "rb") if hin else None, (1, 2), hbar=hin)
    pf = [(P_WO, D * D * 2), (P_W1, D * DFF * 2), (P_W2, D * DFF * 2)] if "nopf" not in OPT else []
    attn_phase(k, L("wo_c"), L("wo_l"), pf)
    gemm_phase(k, "wo", 1024, 1024, 1024, 64, WS_O, S * D * 2, P_WO, D * D * 2, "wo", 4, 8, WO_NS, L("f1_c"), L("f1_l"), (C_ATT, 32, "rb2"), (5, 6))
    gemm_phase(k, "f1", 1024, 1024, DFF, 224, WS_XG, S * D * 2, P_W1, D * DFF * 2, "ffn1", 8, 4, 3, L("f2_c"), L("f2_l"), (C_WO, 16, "rb"), (7, 8))
    if "nos2" in OPT:
        gemm_phase(k, "f2", DFF, DFF, 1024, 64, WS_F1, S * DFF * 2, P_W2, DFF * D * 2, "ffn2", 4, 8, 4, L("fin"), L("end"), (C_F1, 16, "rb"), (9, 10))
    else:
        gemm_phase(k, "f2", DFF, DFF, 1024, 128, F1OFF(), S * DFF * 2, P_W2, DFF * D * 2, "ffn2s", 4, 8, 4, L("fin"), L("end"), (C_F1, 8, "rb"), (9, 10))
    e(f"{L('fin')}:")
    if DIAG:
        e("s_waitcnt vmcnt(0)")
        k.st(11)
        e(f"s_cmp_lg_u32 s24, 0\ns_cbranch_scc1 {L('end')}")
        k.srd(12, P_WS, WS_STAMP + 8 * 512 * 16, 256 * 64)
        e(f"v_lshlrev_b32 v3, 2, v2\nv_add_u32 v4, {L_STAMP}, v3\nds_read_b32 v5, v4\ns_lshl_b32 s32, s2, 6\nv_add_u32 v3, s32, v3\ns_waitcnt lgkmcnt(0)")
        e("s_mov_b64 exec, 0xffff\nbuffer_store_dword v5, v3, s[12:15], 0 offen")
    k.finish()
    return k

def k_mod2():
    NG = 384 if "modall" in OPT else 128
    k = Kern("mod_kernel", NG + 128, 256, 1024, 64); e = k.e
    k.exit_extra()
    e("s_load_dwordx4 s[4:7], s[0:1], %d" % KA_C)
    k.ptr(8, KA_WS); k.ptr(10, KA_X)
    e(f"s_cmp_ge_u32 s2, {NG}\ns_cbranch_scc1 {k.lab('aux')}")
    e("s_and_b32 s24, s2, 3\ns_lshr_b32 s25, s2, 2")
    e("v_lshrrev_b32 v1, 3, v0\nv_and_b32 v2, 7, v0")
    e("s_lshl_b32 s26, s24, 8\nv_add_u32 v3, s26, v1")
    e("v_lshlrev_b32 v4, 1, v3")
    e("v_mul_u32_u24 v5, 12288, v3\nv_lshlrev_b32 v6, 4, v2\nv_add_u32 v5, v5, v6")
    e("s_lshl_b32 s27, s25, 7\nv_add_u32 v5, s27, v5")
    e("s_waitcnt lgkmcnt(0)")
    k.srd(12, 4, 0, 2048); k.srd(16, 6, 0, 1024 * 6144 * 2); k.srd(20, 8, WS_MODP, 4 * 6144 * 4)
    gemv_body(k, 8, 16, 48, 56, "s[12:15]", "s[16:19]", 32)
    k.stamp(2)
    e("v_lshrrev_b32 v9, 6, v0\nv_lshlrev_b32 v9, 8, v9\nv_lshlrev_b32 v10, 5, v2\nv_add_u32 v9, v9, v10")
    e("v_and_b32 v10, 63, v0\nv_cmp_gt_u32 vcc, 8, v10\ns_and_saveexec_b64 s[28:29], vcc")
    e("ds_write_b128 v9, v[48:51]\nds_write_b128 v9, v[52:55] offset:16")
    e("s_mov_b64 exec, s[28:29]")
    e("s_waitcnt lgkmcnt(0)\ns_barrier")
    e("v_cmp_gt_u32 vcc, 64, v0\ns_and_saveexec_b64 s[28:29], vcc")
    e(f"s_cbranch_execz {k.lab('end')}")
    e("v_lshlrev_b32 v9, 2, v0")
    for w in range(4): e(f"ds_read_b32 v{12+w}, v9 offset:{w*256}")
    e("s_waitcnt lgkmcnt(0)")
    e("v_add_f32 v12, v12, v13\nv_add_f32 v14, v14, v15\nv_add_f32 v12, v12, v14")
    e("s_mul_i32 s26, s24, 24576\ns_lshl_b32 s27, s25, 8\ns_add_u32 s26, s26, s27")
    e("buffer_store_dword v12, v9, s[20:23], s26 offen")
    k.stamp_flush(0, 56)
    e("s_endpgm")
    e(f"{k.lab('aux')}:")
    e(f"s_waitcnt lgkmcnt(0)\ns_sub_u32 s24, s2, {NG}")
    k.srd(12, 10, 0, S * D * 2)
    e("s_lshl_b32 s25, s24, 15\nv_lshlrev_b32 v1, 7, v0\nbuffer_load_dword v2, v1, s[12:15], s25 offen")
    e(f"s_add_u32 s16, s8, {WS_CNT:#x}\ns_addc_u32 s17, s9, 0\ns_mov_b32 s18, {CNT_BYTES}\ns_mov_b32 s19, 0x20000")
    e("s_lshl_b32 s25, s24, 12\nv_lshlrev_b32 v3, 4, v0\nv_mov_b32 v4, 0\nv_mov_b32 v5, 0\nv_mov_b32 v6, 0\nv_mov_b32 v7, 0\nbuffer_store_dwordx4 v[4:7], v3, s[16:19], s25 offen")
    assert CNT_BYTES <= 128 * 4096
    if gen.DIAG:
        k.stamp(1); k.stamp(2)
        k.a.lines.append("  s_nop 0")
    k.finish()
    return k

def gemv_body(k, CV, WV, AC, TMP, srd_c, srd_w, ssoff):
    e = k.e
    for i in range(8): e(f"buffer_load_ushort v{CV+i}, v4, {srd_c}, 0 offen offset:{i*64}")
    for i in range(8): e(f"s_mov_b32 s{ssoff+i}, {i*32*12288}")
    for i in range(8): e(f"buffer_load_dwordx4 {v(WV+4*i,4)}, v5, {srd_w}, s{ssoff+i} offen")
    gemv_finish(k, CV, WV, AC, TMP)

def gemv_finish(k, CV, WV, AC, TMP):
    e = k.e
    for j in range(8): e(f"v_mov_b32 v{AC+j}, 0")
    e("s_waitcnt vmcnt(8)")
    k.stamp(1) if not isinstance(k, PK) else None
    for i in range(8):
        x = CV + i
        e(f"v_lshlrev_b32 v{x}, 16, v{x}")
        e(f"v_mul_f32 v{TMP}, {f32(-LOG2E)}, v{x}\nv_exp_f32 v{TMP}, v{TMP}\nv_add_f32 v{TMP}, 1.0, v{TMP}\nv_rcp_f32 v{TMP}, v{TMP}\nv_mul_f32 v{x}, v{x}, v{TMP}")
        round_bf16(e, x)
    for i in range(8):
        e(f"s_waitcnt vmcnt({7-i})")
        for j in range(4):
            w = WV + 4 * i + j
            e(f"v_lshlrev_b32 v{TMP}, 16, v{w}\nv_and_b32 v{TMP+1}, 0xffff0000, v{w}")
            e(f"v_fmac_f32 v{AC+2*j}, v{CV+i}, v{TMP}\nv_fmac_f32 v{AC+2*j+1}, v{CV+i}, v{TMP+1}")
    wave_sum(e, list(range(AC, AC + 8)), TMP, [3, 4, 5])

def k_probe(idx, mult):
    k = Kern("probe_kernel", 1, 64, 0, 64); e = k.e
    e("s_cmp_ge_u32 s2, 1\ns_cbranch_scc1 probe_kernel_end")
    k.ptr(8, KA_WS); k.ptr(10, KA_DBG)
    e("s_waitcnt lgkmcnt(0)")
    k.srd(12, 8, WS_STAMP, 16 * 512 * 16); k.srd(20, 10, 0, 256)
    e("v_lshlrev_b32 v1, 4, v0\nv_lshlrev_b32 v2, 6, v0")
    for c in range(6): e(f"s_mov_b32 s24, {(c%2)*64*16}\nbuffer_load_dword v{8+c}, v1, s[12:15], s24 offen")
    for c in range(4): e(f"s_mov_b32 s24, {8*512*16 + c*64*64 + idx*4}\nbuffer_load_dword v{16+c}, v2, s[12:15], s24 offen")
    e("s_waitcnt vmcnt(0)")
    for c in range(1, 6): e(f"v_min_u32 v8, v8, v{8+c}")
    for c in range(1, 4): e(f"v_max_u32 v16, v16, v{16+c}")
    def red(r, op):
        for b in range(4): e(f"{op}_dpp v{r}, v{r}, v{r} row_ror:{1<<b} row_mask:0xf bank_mask:0xf")
        for w in (16, 32):
            e(f"v_mov_b32 v40, v{r}\nv_permlane{w}_swap_b32 v40, v{r}\n{op} v{r}, v{r}, v40")
    red(8, "v_min_u32"); red(16, "v_max_u32")
    e("v_sub_u32 v16, v16, v8\nv_mov_b32 v13, 0\nbuffer_store_dword v16, v13, s[20:23], 0 offen\nv_readfirstlane_b32 s30, v16")
    e(f"s_mul_i32 s30, s30, {mult}\ns_min_u32 s30, s30, 100000")
    e("s_memrealtime s[32:33]\ns_waitcnt lgkmcnt(0)")
    e("probe_spin:\ns_memrealtime s[34:35]\ns_waitcnt lgkmcnt(0)\ns_sub_u32 s36, s34, s32\ns_cmp_lt_u32 s36, s30\ns_cbranch_scc1 probe_spin")
    k.finish()
    return k

PROBE = None
def build():
    if "single" in OPT: return [k_main()]
    if PROBE is not None: return [k_mod2(), k_main(), k_probe(*PROBE)]
    if "hsep" in OPT: return [k_mod2(), gen.k_h(True), k_main()]
    return [k_mod2(), k_main()]

if __name__ == "__main__":
    for a_ in list(sys.argv):
        if a_.startswith("--opt="): OPT = set(a_[6:].split(",")); sys.argv.remove(a_)
        if a_.startswith("--pfstage="): PFSTAGE = int(a_[10:]); sys.argv.remove(a_)
        if a_.startswith("--scs="): SCS = " " + a_[6:].replace("+", " "); sys.argv.remove(a_)
        if a_.startswith("--l2d="): L2D = int(a_[6:]); sys.argv.remove(a_)
        if a_.startswith("--probe="): PROBE = tuple(int(x) for x in a_[8:].split(",")); sys.argv.remove(a_)
        if a_.startswith("--mrstep="): MRSTEP = int(a_[9:]); sys.argv.remove(a_)
        if a_.startswith("--align="):
            for kv in a_[8:].split(","):
                k_, v_ = kv.split(":"); ALIGN[k_] = None if v_ == "n" else int(v_)
            sys.argv.remove(a_)
        if a_.startswith("--pipe="): PIPE, PGAP = [int(x) for x in a_[7:].split(",")]; sys.argv.remove(a_)
        if a_.startswith("--wons="): WO_NS = int(a_[7:]); sys.argv.remove(a_)
        if a_.startswith("--ltd="): LTD = int(a_[6:]); sys.argv.remove(a_)
        if a_.startswith("--sleep="): SLEEP = int(a_[8:]); sys.argv.remove(a_)
    if "--diag" in sys.argv: DIAG = True; gen.DIAG = True; sys.argv.remove("--diag")
    txt = emit(build(), header())
    if "single" in OPT and "aslist" not in OPT:
        txt = txt.replace(f"; @launch kernel={NAME}_kernel grid=", "; @launch grid=")
    out = sys.argv[1]
    open(out, "w").write(txt)
    print("wrote", out, len(txt), "bytes")
```

```python
import sys
from asmlib import *
import gen
from gen import (NAME, S, D, DFF, H, KA_X, KA_WQKV, KA_WO, KA_BX, KA_W1, KA_W2, KA_C, KA_WMOD, KA_OUT, KA_DBG, KA_WS,
                 WS_MODP, WS_MODF, WS_H, WS_QKV, WS_O, WS_X1, WS_F1, WS_XG, WS_STAT, WS_UB, WS_STAMP, LOG2E, f32, Kern,
                 wave_sum, round_bf16, interleave, header, emit)

WS_F1A = WS_H
WS_CNT = 0x2f00000
C_QKV, C_ATT, C_WO, C_UB, C_F1, C_H = 0, 16, 24, 40, 56, 72
C_MR, C_MRALL, C_ATTALL = 88, 152, 153
NCNT = 160
FL_BASE = NCNT * 256 + 1536
FL_BASE = (FL_BASE + 255) // 256 * 256
FL = {"qkv": FL_BASE, "att": FL_BASE + 256 * 128, "wo": FL_BASE + 256 * 128 + 256 * 256, "f1": FL_BASE + 256 * 256 + 2 * 256 * 128, "f2": FL_BASE + 256 * 256 + 3 * 256 * 128}
FL["xch"] = FL_BASE + 256 * 256 + 4 * 256 * 128
FL["mr"] = FL["xch"] + 256 * 128
FL["f1b"] = FL["mr"] + 8 * 128
CNT_BYTES = FL["f1b"] + 64 * 128
WS_XCH = 0x3800000
OPT = set()
DIAG = False
SC = " sc1"
SCS = " sc1"
P_WS, P_X, P_WQKV, P_W1, P_W2, P_WO, P_OUT = 66, 68, 70, 72, 74, 76, 78
CNT = 28
CTL = 138240
L_SIG = {"qkv": CTL, "att": CTL + 4, "wo": CTL + 8, "ub": CTL + 12, "f1": CTL + 16, "h": CTL + 20, "mr": CTL + 24, "g": CTL + 28, "wo2": CTL + 44 + 116}
L_DEP = {"wo": CTL + 32, "f1": CTL + 36, "f2": CTL + 40, "qkv": CTL + 44}
L_STAMP = CTL + 64
LDS_TOTAL = CTL + 256
SPIN_MAX = 400000
SLEEP = 2
PIPE = 1
PGAP = 2
ALIGN = {}
PFSTAGE = 7
L2D = 8
WO_NS = 5
MRSTEP = 9

def exec_mask(n):
    if n < 32: return f"s_mov_b64 exec, {(1 << n) - 1:#x}"
    return f"s_mov_b32 exec_lo, -1\ns_mov_b32 exec_hi, {(1 << (n - 32)) - 1:#x}"

def align(k, name):
    a = ALIGN.get(name, ALIGN.get("all", 0))
    if a is None: return
    k.a.lines.append(".p2align 6")
    for _ in range(a): k.e("s_nop 0")

class PK(Kern):
    def st(self, i, wave=0):
        if not DIAG: return
        e = self.e; n = self.lab(f"st{i}")
        e(f"s_cmp_lg_u32 s24, {wave}\ns_cbranch_scc1 {n}\n{'s_memtime' if 'cyc' in OPT else 's_memrealtime'} s[98:99]\ns_waitcnt lgkmcnt(0)\nv_mov_b32 v254, s98\nv_mov_b32 v255, {L_STAMP+4*i}\nds_write_b32 v255, v254\ns_waitcnt lgkmcnt(0)\n{n}:")
    def code_touch(self, tag, frm, to, part_sreg, nparts, per):
        if "code" not in OPT: return 0
        e = self.e; here = self.lab("pc" + tag)
        e(f"s_getpc_b64 s[90:91]\n{here}:\ns_add_u32 s90, s90, {frm}-{here}\ns_addc_u32 s91, s91, 0")
        e(f"s_mul_i32 s92, s{part_sreg}, {per*8192}\nv_lshlrev_b32 v252, 7, v2\nv_add_u32 v252, s92, v252")
        for i in range(per):
            if i: e("v_add_u32 v252, 8192, v252")
            e(f"v_min_u32 v251, {to}-{frm}-4, v252\nglobal_load_dword v253, v251, s[90:91]")
        return per
    def poll(self, tag, cnt_sreg, target, lanes=1):
        e = self.e; L = self.lab
        if cnt_sreg is not None: e(f"s_lshl_b32 s32, s{cnt_sreg}, 8\nv_mov_b32 v6, s32")
        e(f"s_mov_b32 s33, 0\ns_mov_b64 exec, {(1 << lanes) - 1}")
        e(f"{L('poll'+tag)}:")
        e(f"buffer_load_dword v7, v6, {s(CNT,4)}, 0 offen offset:{0 if 'direct' in OPT else 128} sc1\ns_waitcnt vmcnt(0)")
        e(f"v_cmp_gt_u32 vcc, {target}, v7\ns_cmp_eq_u64 vcc, 0\ns_cbranch_scc1 {L('pollx'+tag)}")
        e(f"s_add_u32 s33, s33, 1\ns_cmp_ge_u32 s33, {SPIN_MAX}\ns_cbranch_scc1 {L('pollx'+tag)}")
        e(f"s_sleep {SLEEP}\ns_branch {L('poll'+tag)}")
        e(f"{L('pollx'+tag)}:\ns_mov_b64 exec, -1")
    def dep_wait_loaders(self, tag, cnt_sreg, target, first_wave_cond):
        e = self.e; L = self.lab
        e(f"s_cmp_lg_u32 s24, 4\ns_cbranch_scc1 {L('dw'+tag)}")
        if "noflags" in OPT: self.poll(tag, cnt_sreg, target)
        else:
            if tag == "f2" and "nos2" not in OPT:
                e(f"s_lshl_b32 s34, s25, 1\ns_add_u32 s34, s34, s27\ns_lshl_b32 s34, s34, 7\ns_add_u32 s34, s34, {FL[tag]}")
            elif tag == "f2":
                e(f"s_lshl_b32 s34, s25, 4\ns_add_u32 s34, s34, s26\ns_lshl_b32 s34, s34, 7\ns_add_u32 s34, s34, {FL[tag]}")
            elif tag == "wo":
                e(f"s_lshr_b32 s34, s25, 1\ns_lshl_b32 s34, s34, 1\ns_lshr_b32 s33, s26, 3\ns_add_u32 s34, s34, s33\ns_lshl_b32 s34, s34, 7\ns_add_u32 s34, s34, {FL[tag]}")
            else:
                e(f"s_lshl_b32 s34, s25, 2\ns_lshr_b32 s33, s26, 2\ns_add_u32 s34, s34, s33\ns_lshl_b32 s34, s34, 7\ns_add_u32 s34, s34, {FL[tag]}")
            self.wait_flags(tag, target, 34)
        e(f"v_mov_b32 v6, {L_DEP[tag]}\nv_mov_b32 v7, 1\nds_write_b32 v6, v7\ns_waitcnt lgkmcnt(0)\ns_branch {L('dwx'+tag)}")
        e(f"{L('dw'+tag)}:")
        e(f"v_mov_b32 v6, {L_DEP[tag]}\ns_mov_b32 s33, 0")
        e(f"{L('dwl'+tag)}:")
        e(f"ds_read_b32 v7, v6\ns_waitcnt lgkmcnt(0)\nv_readfirstlane_b32 s34, v7")
        e(f"s_cmp_lg_u32 s34, 0\ns_cbranch_scc1 {L('dwx'+tag)}")
        e(f"s_add_u32 s33, s33, 1\ns_cmp_ge_u32 s33, {SPIN_MAX*4}\ns_cbranch_scc1 {L('dwx'+tag)}")
        e(f"s_sleep 1\ns_branch {L('dwl'+tag)}")
        e(f"{L('dwx'+tag)}:")
    def arrive(self, tag, cnt_sreg, target):
        e = self.e; L = self.lab
        e(f"s_lshl_b32 s33, s{cnt_sreg}, 8\nv_mov_b32 v6, s33\nv_mov_b32 v7, 1")
        if "direct" in OPT:
            e(f"buffer_atomic_add v7, v6, {s(CNT,4)}, 0 offen sc1")
            return
        e(f"buffer_atomic_add v7, v6, {s(CNT,4)}, 0 offen sc0 sc1\ns_waitcnt vmcnt(0)\nv_readfirstlane_b32 s33, v7")
        e(f"s_cmp_lg_u32 s33, {target-1}\ns_cbranch_scc1 {L('arr'+tag)}")
        e(f"v_mov_b32 v7, {target}\nbuffer_store_dword v7, v6, {s(CNT,4)}, 0 offen offset:128 sc1")
        e(f"{L('arr'+tag)}:")
    def signal(self, tag, nwaves, cnt_sreg, target, flags=None, younger=0):
        e = self.e; L = self.lab
        e(f"s_waitcnt vmcnt({younger})")
        e(f"v_mov_b32 v6, {L_SIG[tag]}\nv_mov_b32 v7, 1\ns_mov_b64 exec, 1")
        e("ds_add_rtn_u32 v7, v6, v7\ns_waitcnt lgkmcnt(0)\nv_readfirstlane_b32 s32, v7\ns_mov_b64 exec, -1")
        e(f"s_cmp_lg_u32 s32, {nwaves-1}\ns_cbranch_scc1 {L('sig'+tag)}")
        if flags is not None and "noflags" not in OPT:
            n, offs = flags
            offs()
            e("v_mov_b32 v7, 1\n" + exec_mask(n))
            e(f"buffer_store_dword v7, v6, {s(CNT,4)}, 0 offen sc1")
        else:
            e("s_mov_b64 exec, 1")
            self.arrive(tag, cnt_sreg, target)
        e(f"{L('sig'+tag)}:\ns_mov_b64 exec, -1")
    def wait_flags(self, tag, n, base_sreg):
        e = self.e; L = self.lab
        e(f"v_lshlrev_b32 v6, 2, v2\nv_add_u32 v6, s{base_sreg}, v6\ns_mov_b32 s33, 0")
        e(exec_mask(n))
        if PIPE <= 1:
            e(f"{L('poll'+tag)}:")
            e(f"buffer_load_dword v7, v6, {s(CNT,4)}, 0 offen sc1\ns_waitcnt vmcnt(0)")
            e(f"v_cmp_ne_u32 vcc, 1, v7\ns_cmp_eq_u64 vcc, 0\ns_cbranch_scc1 {L('pollx'+tag)}")
            e(f"s_add_u32 s33, s33, 1\ns_cmp_ge_u32 s33, {SPIN_MAX}\ns_cbranch_scc1 {L('pollx'+tag)}")
            e(f"s_sleep {SLEEP}\ns_branch {L('poll'+tag)}")
        else:
            e("s_waitcnt vmcnt(0)")
            for i in range(PIPE):
                e(f"buffer_load_dword v{244+i}, v6, {s(CNT,4)}, 0 offen sc1")
                if i < PIPE - 1: e(f"s_sleep {PGAP}")
            e(f"{L('poll'+tag)}:")
            for i in range(PIPE):
                e(f"s_waitcnt vmcnt({PIPE-1})\nv_cmp_ne_u32 vcc, 1, v{244+i}\ns_cmp_eq_u64 vcc, 0\ns_cbranch_scc1 {L('pollx'+tag)}")
                e(f"buffer_load_dword v{244+i}, v6, {s(CNT,4)}, 0 offen sc1\ns_sleep {PGAP}")
            e(f"s_add_u32 s33, s33, 1\ns_cmp_lt_u32 s33, {SPIN_MAX}\ns_cbranch_scc1 {L('poll'+tag)}")
        e(f"{L('pollx'+tag)}:\ns_mov_b64 exec, -1")

def CHAIN(): return 'nochain' not in OPT and 'modall' not in OPT and 'mrwo' not in OPT

def F1OFF(): return WS_F1A if 'alias' in OPT else WS_F1

def tile_map(e, xr, xc):
    nxc = 16 // xc
    e(f"s_and_b32 s36, s2, 7\ns_lshr_b32 s37, s2, 3")
    e(f"s_and_b32 s38, s36, {nxc-1}\ns_lshr_b32 s39, s36, {nxc.bit_length()-1}")
    e(f"s_and_b32 s40, s37, {xc-1}\ns_lshr_b32 s41, s37, {xc.bit_length()-1}")
    e(f"s_mul_i32 s38, s38, {xc}\ns_add_u32 s26, s38, s40")
    e(f"s_mul_i32 s39, s39, {xr}\ns_add_u32 s25, s39, s41")

def tile_map_s2(e):
    e("s_and_b32 s36, s2, 7\ns_lshr_b32 s37, s2, 3\ns_and_b32 s27, s36, 1\ns_lshr_b32 s36, s36, 1")
    if "rot2" in OPT: e("s_add_u32 s26, s37, 1\ns_and_b32 s26, s26, 7\ns_lshr_b32 s37, s37, 3\ns_lshl_b32 s36, s36, 2\ns_add_u32 s25, s36, s37")
    else: e("s_and_b32 s26, s37, 7\ns_lshr_b32 s37, s37, 3\ns_lshl_b32 s36, s36, 2\ns_add_u32 s25, s36, s37")

def gemm_phase(k, tag, K, lda, ldb, BN, srcA, sizeA, pB, sizeB, epi, xr, xc, NS, nxt_c, nxt_l, dep=None, stamps=(None, None), hbar=False):
    e = k.e
    L = lambda n: k.lab(tag + "_" + n)
    BM, BK = 128, 64
    nA = BM * BK * 2 // 1024; nB = BN * BK * 2 // 1024
    nAw, nBw = nA // 4, nB // 4
    nld = nAw + nBw
    SB = (nA + nB) * 1024
    s2 = epi == "ffn2s"
    nk = K // BK // (2 if s2 else 1)
    TM, TN = 64, BN // 2
    mt, nt = TM // 16, TN // 16
    pitch = BN * 2; cpr = BN // 8
    hbits = {4: 2, 6: 1, 2: 1, 0: 3}[(pitch // 32) % 8]
    ACC = 8; NACC = 4 * mt * nt
    FA = ACC + NACC; NF = 4 * (mt + nt); FB = FA + NF
    AX = FB + NF; AW = AX + 2; EP = AW + nt
    XL = 135168
    assert SB * NS <= XL
    perm = epi == "qkv" and "perm" in OPT
    asc = SC if dep else ""
    e(f"{L('c')}:")
    if s2: tile_map_s2(e)
    else: tile_map(e, xr, xc)
    e("s_lshr_b32 s42, s24, 1\ns_and_b32 s43, s24, 1")
    e("v_and_b32 v3, 15, v2\nv_lshrrev_b32 v4, 4, v2")
    e(f"s_lshl_b32 s44, s25, 7\ns_lshl_b32 s45, s42, 6\ns_add_u32 s44, s44, s45")
    e(f"s_mul_i32 s46, s26, {BN}\ns_mul_i32 s45, s43, {TN}\ns_add_u32 s46, s46, s45")
    k.srd(20, P_WS, WS_MODF, 6144 * 4)
    if epi == "qkv": k.srd(12, P_WS, WS_QKV, 96 * S * 64)
    elif epi == "ffn1": k.srd(12, P_WS, F1OFF(), S * DFF * 2)
    elif epi == "wo": k.srd(12, P_WS, WS_X1, S * D * 2); k.srd(16, P_X, 0, S * D * 2)
    elif epi in ("ffn2", "ffn2s"): k.srd(12, P_OUT, 0, S * D * 2); k.srd(16, P_WS, WS_X1, S * D * 2)
    G = EP + 2 * mt * nt; GG = G + 4 * nt; W1R = GG + 4 * nt
    if s2:
        G = EP + 16
        e("s_lshl_b32 s47, s27, 5\ns_add_u32 s46, s46, s47")
        e("s_lshl_b32 s47, s25, 4\ns_lshl_b32 s48, s26, 1\ns_add_u32 s47, s47, s48\ns_add_u32 s47, s47, s43\ns_lshl_b32 s47, s47, 2\ns_lshl_b32 s48, s42, 1\ns_add_u32 s47, s47, s48\ns_add_u32 s47, s47, s27\ns_lshl_b32 s47, s47, 12")
        e("v_lshlrev_b32 v5, 4, v2")
        for j in range(mt):
            e(f"buffer_load_dwordx4 {v(EP+4*j,4)}, v5, s[16:19], s47 offen offset:{j*1024}{SC}")
        if not CHAIN(): k.srd(20, P_WS, WS_MODP, 4 * 6144 * 4)
        e(f"v_lshlrev_b32 v6, 4, v4\ns_lshl_b32 s47, s46, 2\ns_add_u32 s47, s47, {5*1024*4}")
        for p_ in range(1 if CHAIN() else 4):
            for i in range(2):
                e(f"buffer_load_dwordx4 {v(G+8*p_+4*i,4)}, v6, s[20:23], s47 offen offset:{i*64}{SC}")
            if p_ < 3 and not CHAIN(): e("s_add_u32 s47, s47, 24576")
    if epi == "wo" and "modall" not in OPT and "mrwo" in OPT:
        e(f"s_load_dwordx4 s[36:39], s[0:1], {KA_C}")
        e("s_and_b32 s58, s2, 3\ns_lshr_b32 s59, s2, 2\ns_add_u32 s59, s59, 32")
        e("v_lshrrev_b32 v6, 3, v0\nv_and_b32 v7, 7, v0\nv_mov_b32 v247, v7")
        e("s_lshl_b32 s47, s58, 8\nv_add_u32 v6, s47, v6\nv_lshlrev_b32 v248, 1, v6")
        e("v_mul_u32_u24 v5, 12288, v6\nv_lshlrev_b32 v6, 4, v7\nv_add_u32 v5, v5, v6\ns_lshl_b32 s47, s59, 7\nv_add_u32 v5, s47, v5")
        e("s_waitcnt lgkmcnt(0)")
        k.srd(52, 36, 0, 2048); k.srd(60, 38, 0, 1024 * 6144 * 2)
        for i in range(8): e(f"buffer_load_ushort v{176+i}, v248, s[52:55], 0 offen offset:{i*64}")
        for i in range(8):
            e(f"s_mov_b32 s47, {i*32*12288}\nbuffer_load_dwordx4 {v(184+4*i,4)}, v5, s[60:63], s47 offen")
        gemv_finish(k, 176, 184, 216, 224)
        MRL = 139264
        e(f"s_lshl_b32 s47, s24, 8\nv_lshlrev_b32 v5, 5, v247\nv_add_u32 v5, s47, v5\nv_add_u32 v5, {MRL}, v5")
        e("s_mov_b64 exec, 0xff\nds_write_b128 v5, v[216:219]\nds_write_b128 v5, v[220:223] offset:16\ns_waitcnt lgkmcnt(0)")
        e(f"v_mov_b32 v6, {L_SIG['mr']}\nv_mov_b32 v7, 1\ns_mov_b64 exec, 1\nds_add_rtn_u32 v7, v6, v7\ns_waitcnt lgkmcnt(0)\nv_readfirstlane_b32 s47, v7\ns_mov_b64 exec, -1")
        e(f"s_cmp_lg_u32 s47, 3\ns_cbranch_scc1 {L('mrx')}")
        e(f"v_lshlrev_b32 v5, 2, v2\nv_add_u32 v6, {MRL}, v5")
        for w_ in range(4): e(f"ds_read_b32 v{216+w_}, v6 offset:{w_*256}")
        e("s_waitcnt lgkmcnt(0)\nv_add_f32 v216, v216, v217\nv_add_f32 v218, v218, v219\nv_add_f32 v216, v216, v218")
        k.srd(52, P_WS, WS_MODP, 4 * 6144 * 4)
        e("s_mul_i32 s47, s58, 24576\ns_lshl_b32 s48, s59, 8\ns_add_u32 s47, s47, s48")
        e(f"buffer_store_dword v216, v5, s[52:55], s47 offen{SCS}\ns_waitcnt vmcnt(0)")
        e(f"v_mov_b32 v6, {C_MRALL*256}\nv_mov_b32 v7, 1\ns_mov_b64 exec, 1\nbuffer_atomic_add v7, v6, {s(CNT,4)}, 0 offen sc1\ns_mov_b64 exec, -1")
        e(f"{L('mrx')}:")
    if epi in ("wo", "ffn2"):
        if epi == "wo":
            e(f"v_add_u32 v5, s44, v3\nv_lshlrev_b32 v5, 11, v5\nv_lshlrev_b32 v6, 3, v4\nv_add_u32 v5, v5, v6")
            e(f"s_lshl_b32 s47, s46, 1\nv_add_u32 v5, s47, v5")
            for j in range(mt):
                e(f"s_mov_b32 s48, {j*16*2048}")
                for i in range(nt):
                    e(f"buffer_load_dwordx2 {v(EP+2*(j*nt+i),2)}, v5, s[16:19], s48 offen offset:{i*32}")
        else:
            e("s_lshl_b32 s47, s25, 4\ns_add_u32 s47, s47, s26\ns_lshl_b32 s47, s47, 2\ns_add_u32 s47, s47, s24\ns_lshl_b32 s47, s47, 12\nv_lshlrev_b32 v5, 4, v2")
            for j in range(mt):
                e(f"buffer_load_dwordx4 {v(EP+4*j,4)}, v5, s[16:19], s47 offen offset:{j*1024}{SC}")
        if epi == "ffn2":
            raise NotImplementedError
        if epi == "wo" and CHAIN():
            e(f"s_and_b32 s35, s2, 7\ns_lshl_b32 s35, s35, 7\ns_add_u32 s35, s35, {FL['mr']}")
            k.wait_flags("mr", 1, 35)
            e(f"v_lshlrev_b32 v6, 4, v4\ns_lshl_b32 s47, s46, 2\ns_add_u32 s47, s47, {2*1024*4}")
            for i in range(nt):
                e(f"buffer_load_dwordx4 {v(G+4*i,4)}, v6, s[20:23], s47 offen offset:{i*64}{SC}")
            e(f"s_lshl_b32 s47, s46, 2\ns_add_u32 s47, s47, {4096*4}")
            for i in range(nt):
                e(f"buffer_load_dwordx4 {v(GG+4*i,4)}, v6, s[20:23], s47 offen offset:{i*64}{SC}")
        if epi == "wo":
            if "ubold" in OPT:
                e("s_lshr_b32 s58, s2, 4\ns_and_b32 s59, s2, 15")
            else:
                e("s_lshr_b32 s60, s2, 3\ns_and_b32 s59, s2, 3\ns_lshl_b32 s59, s59, 2\ns_and_b32 s61, s60, 3\ns_add_u32 s59, s59, s61")
                e("s_bfe_u32 s58, s2, 0x10002\ns_lshl_b32 s58, s58, 3\ns_lshr_b32 s61, s60, 2\ns_add_u32 s58, s58, s61")
            e(f"v_mul_u32_u24 v5, {(65536+27)//28}, v2\nv_lshrrev_b32 v5, 16, v5\nv_mul_u32_u24 v6, 28, v5\nv_sub_u32 v6, v2, v6")
            e("s_lshl_b32 s60, s58, 6\ns_lshl_b32 s61, s24, 4\ns_add_u32 s60, s60, s61\nv_add_u32 v5, s60, v5")
            e(f"v_mul_u32_u24 v7, {DFF*2}, v5\nv_lshlrev_b32 v6, 4, v6\nv_add_u32 v7, v7, v6\ns_mul_i32 s60, s59, 448\nv_add_u32 v7, s60, v7")
            k.srd(60, P_W1, 0, D * DFF * 2)
            e("v_cmp_gt_u32 vcc, 56, v2\ns_and_saveexec_b64 s[34:35], vcc")
            for i in range(8):
                e(f"s_mov_b32 s64, {i*2*DFF*2}")
                e(f"buffer_load_dwordx4 {v(W1R+4*i,4)}, v7, s[60:63], s64 offen")
            if CHAIN():
                e("v_lshlrev_b32 v5, 2, v5")
                e(f"s_mov_b32 s64, {4096*4}\ns_mov_b32 s65, {3072*4}")
                for i in range(8):
                    e(f"buffer_load_dword v{W1R+32+i}, v5, s[20:23], s64 offen offset:{i*8}{SC}")
                    e(f"buffer_load_dword v{W1R+40+i}, v5, s[20:23], s65 offen offset:{i*8}{SC}")
            e("s_mov_b64 exec, s[34:35]")
    e(f"v_lshrrev_b32 v5, 1, v3\nv_xor_b32 v5, v5, v4\nv_and_b32 v5, 7, v5")
    e(f"v_lshlrev_b32 v5, 4, v5\ns_lshl_b32 s47, s42, 6\nv_add_u32 v6, s47, v3\nv_lshlrev_b32 v6, 7, v6")
    e(f"v_add_u32 v{AX}, v5, v6\nv_xor_b32 v{AX+1}, 64, v{AX}")
    e("v_lshrrev_b32 v5, 2, v3\nv_and_b32 v6, 3, v2")
    e("v_lshlrev_b32 v7, 3, v4\nv_add_u32 v7, v7, v5")
    e(f"v_mul_u32_u24 v7, {pitch}, v7\nv_lshlrev_b32 v6, 3, v6\nv_add_u32 v7, v7, v6\nv_add_u32 v7, {nA*1024}, v7")
    if hbits == 2: e("v_lshrrev_b32 v5, 1, v5\nv_and_b32 v6, 1, v4\nv_lshlrev_b32 v6, 1, v6\nv_or_b32 v5, v5, v6")
    elif hbits == 1: e("v_and_b32 v5, 1, v4")
    else: e("v_and_b32 v6, 1, v4\nv_lshlrev_b32 v6, 2, v6\nv_or_b32 v5, v5, v6")
    e(f"s_mul_i32 s47, s43, {nt}")
    for i in range(nt):
        e(f"s_add_u32 s48, s47, {i}\nv_xor_b32 v6, s48, v5\nv_lshlrev_b32 v6, 5, v6\nv_add_u32 v{AW+i}, v7, v6")
    for r in range(NACC): e(f"v_mov_b32 v{ACC+r}, 0")
    def reads(ss, F):
        xs = [f"ds_read_b128 {v(F+4*j,4)}, v{AX+ss} offset:{j*2048}" for j in range(mt)]
        ws = []
        for i in range(nt):
            for hh in range(2):
                ws.append(f"ds_read_b64_tr_b16 {v(F+4*mt+4*i+2*hh,2)}, v{AW+i} offset:{(ss*32+hh*4)*pitch}")
        return [xs[0]] + ws[:2] + xs[1:] + ws[2:]
    def mfmas(F):
        return [f"v_mfma_f32_16x16x32_bf16 {v(ACC+4*(j*nt+i),4)}, {v(F+4*mt+4*i,4)}, {v(F+4*j,4)}, {v(ACC+4*(j*nt+i),4)}"
                for j in range(mt) for i in range(nt)]
    def mix(mf, rd, extra=()):
        rd = list(rd)
        if len(rd) <= len(mf) - 4:
            return interleave(mf, rd + list(extra))
        out = []; oi = 0; ex = list(extra)
        for m_ in mf:
            out.append(m_)
            for _ in range(2):
                if oi < len(rd): out.append(rd[oi]); oi += 1
            if oi >= len(rd) and ex: out.append(ex.pop(0))
        out += rd[oi:] + ex
        return out
    if epi == "wo": k.code_touch("w", k.lab("f1_c"), k.lab("f2_c"), 24, 4, 1)
    if epi == "ffn1": k.code_touch("f", k.lab("f1_cloop"), k.lab("end"), 24, 4, 1)
    e(f"s_mov_b32 s49, 0\ns_mov_b32 s54, {SB}\ns_mov_b32 s55, {-(NS-1)*SB & 0xffffffff:#x}")
    e("s_barrier")
    if stamps[0] is not None: k.st(stamps[0])
    for l in reads(0, FA): e(l)
    l2pf = epi in ("qkv", "ffn1") and ("l2" + tag) in OPT
    if l2pf:
        k.srd(56, P_WS, srcA, sizeA); k.srd(60, pB, 0, sizeB)
        e(f"s_cmp_eq_u32 s24, 0\ns_cselect_b32 s65, {(nk-1) & 1}, 99")
        e("s_lshr_b32 s37, s2, 3")
        e(f"s_and_b32 s40, s37, {xc-1}\ns_lshr_b32 s41, s37, {xc.bit_length()-1}")
        e(f"v_lshrrev_b32 v5, 5, v2\nv_add_u32 v5, {L2D}, v5")
        e(f"v_and_b32 v6, 31, v2\ns_lshl_b32 s47, s40, 5\nv_add_u32 v6, s47, v6\ns_lshl_b32 s47, s25, 7\nv_add_u32 v6, s47, v6\nv_lshlrev_b32 v6, 11, v6\nv_lshlrev_b32 v7, 7, v5\nv_add_u32 v250, v6, v7")
        e(f"v_lshlrev_b32 v5, 6, v5\nv_lshrrev_b32 v6, 2, v2\nv_and_b32 v6, 7, v6\nv_add_u32 v5, v5, v6\ns_lshl_b32 s47, s41, 3\nv_add_u32 v5, s47, v5\ns_mov_b32 s47, {ldb*2}\nv_mul_lo_u32 v5, s47, v5")
        e(f"v_and_b32 v6, 3, v2\nv_lshlrev_b32 v6, 7, v6\nv_add_u32 v5, v5, v6\ns_mul_i32 s47, s26, {BN*2}\ns_and_b32 s47, s47, 0xffffff80\nv_add_u32 v249, s47, v5")
    e(f"s_mov_b32 s50, {nk-1}")
    adv_s = f"s_add_u32 s49, s49, 1\ns_cmp_eq_u32 s49, {NS}\ns_cselect_b32 s51, s55, s54\ns_cselect_b32 s49, 0, s49"
    adv_v = [f"v_add_u32 v{r}, s51, v{r}" for r in [AX, AX + 1] + [AW + i for i in range(nt)]]
    align(k, tag)
    e(f"{L('cloop')}:")
    if epi == "wo" and not CHAIN():
        if "modall" in OPT:
            e(f"s_cmp_eq_u32 s50, 12\ns_cbranch_scc0 {L('m2')}")
        else:
            e(f"s_cmp_eq_u32 s50, 11\ns_cbranch_scc0 {L('m1')}")
            e(f"v_mov_b32 v245, {C_MRALL*256}\nbuffer_load_dword v246, v245, {s(CNT,4)}, 0 offen sc1")
            e(f"{L('m1')}:\ns_cmp_eq_u32 s50, 8\ns_cbranch_scc0 {L('m2')}")
            e(f"s_waitcnt vmcnt(0)\nv_readfirstlane_b32 s47, v246\ns_cmp_ge_u32 s47, 256\ns_cbranch_scc1 {L('m1ok')}")
            e(f"v_mov_b32 v6, {C_MRALL*256 - 128}")
            k.poll("mr", None, 256)
            e(f"{L('m1ok')}:")
        k.srd(60, P_WS, WS_MODP, 4 * 6144 * 4)
        e("s_lshl_b32 s47, s26, 6\ns_lshr_b32 s48, s2, 4\ns_lshl_b32 s48, s48, 6\ns_cmp_ge_u32 s24, 2\ns_cselect_b32 s47, s48, s47")
        e("s_mov_b32 s48, 4096\ns_cmp_eq_u32 s24, 0\ns_cselect_b32 s48, 2048, s48\ns_cmp_eq_u32 s24, 3\ns_cselect_b32 s48, 3072, s48")
        e("s_add_u32 s47, s47, s48\ns_lshl_b32 s47, s47, 2\nv_lshlrev_b32 v245, 2, v2")
        for p_ in range(4):
            e(f"buffer_load_dword v{240+p_}, v245, s[60:63], s47 offen{SC}")
            if p_ < 3: e("s_add_u32 s47, s47, 24576")
        e(f"{L('m2')}:\ns_cmp_eq_u32 s50, 4\ns_cbranch_scc0 {L('m3')}")
        e("s_waitcnt vmcnt(0)\nv_add_f32 v240, v240, v241\nv_add_f32 v242, v242, v243\nv_add_f32 v240, v240, v242")
        round_bf16(e, 240)
        e("v_add_f32 v241, 1.0, v240")
        round_bf16(e, 241)
        e("s_sub_u32 s47, s24, 1\ns_cmp_lt_u32 s47, 2\ns_cselect_b64 vcc, -1, 0\nv_cndmask_b32 v240, v240, v241, vcc")
        e(f"s_lshl_b32 s47, s24, 8\ns_add_u32 s47, s47, 135168\nv_add_u32 v245, s47, v245\nds_write_b32 v245, v240")
        e(f"{L('m3')}:")
    if l2pf:
        e(f"s_and_b32 s47, s50, 1\ns_cmp_lg_u32 s47, s65\ns_cbranch_scc1 {L('nopf')}")
        e(f"buffer_load_dword v248, v250, s[56:59], 0 offen{asc}\nbuffer_load_dword v248, v249, s[60:63], 0 offen")
        e(f"v_add_u32 v250, 256, v250\nv_add_u32 v249, {2*64*ldb*2}, v249")
        e(f"{L('nopf')}:")
    def sprinkle(seq, extra, start):
        out = []; n_ = 0; ex = list(extra)
        for x in seq:
            out.append(x)
            if x.startswith("v_mfma"):
                n_ += 1
                if n_ > start and ex: out.append(ex.pop(0))
        return out + ex
    tight = "loose" not in OPT
    if not tight: e(adv_s)
    e("s_waitcnt lgkmcnt(0)")
    seq = mix(mfmas(FA), reads(1, FB))
    if tight: seq = sprinkle(seq, adv_s.split("\n"), 0)
    last_rd = max(i for i, x in enumerate(seq) if x.startswith("ds_read"))
    tail = [x for x in seq[last_rd + 1:]]
    seq = seq[:last_rd + 1]
    av = list(adv_v)
    for x in tail:
        seq.append(x)
        if av and x.startswith("v_mfma"): seq.append(av.pop(0))
    seq += av
    for l in seq: e(l)
    e("s_waitcnt lgkmcnt(0)\ns_barrier")
    seqb = mix(mfmas(FB), reads(0, FA))
    if tight:
        seqb = sprinkle(seqb, ["s_sub_u32 s50, s50, 1", "s_cmp_lg_u32 s50, 0"], 1)
        for l in seqb: e(l)
        e(f"s_cbranch_scc1 {L('cloop')}")
    else:
        for l in seqb: e(l)
        e(f"s_sub_u32 s50, s50, 1\ns_cmp_lg_u32 s50, 0\ns_cbranch_scc1 {L('cloop')}")
    e("s_waitcnt lgkmcnt(0)")
    for l in mix(mfmas(FA), reads(1, FB)): e(l)
    e("s_waitcnt lgkmcnt(0)")
    if epi != "qkv": e("s_barrier")
    for l in mfmas(FB): e(l)
    if stamps[1] is not None: k.st(stamps[1])
    T = FA
    def acc(i, j): return ACC + 4 * (j * nt + i)
    def pack_pair(ta, tb, dst):
        e(f"v_cvt_pk_bf16_f32 v{dst}, v{ta}, v{ta+1}\nv_cvt_pk_bf16_f32 v{dst+1}, v{ta+2}, v{ta+3}")
        e(f"v_cvt_pk_bf16_f32 v{dst+2}, v{tb}, v{tb+1}\nv_cvt_pk_bf16_f32 v{dst+3}, v{tb+2}, v{tb+3}")
        e(f"v_permlane16_swap_b32 v{dst}, v{dst+2}\nv_permlane16_swap_b32 v{dst+1}, v{dst+3}")
    e("v_and_b32 v5, 1, v4\nv_lshlrev_b32 v5, 5, v5\nv_lshrrev_b32 v6, 1, v4\nv_lshlrev_b32 v6, 4, v6\nv_add_u32 v5, v5, v6")
    if epi == "qkv":
        e("v_lshlrev_b32 v6, 6, v3\nv_add_u32 v5, v5, v6")
        n = 0
        for p in range(nt // 2):
            if perm:
                e(f"s_mul_i32 s52, s43, 96\ns_add_u32 s52, s52, {32*p}\ns_cmp_lt_u32 s52, 64\ns_cselect_b32 s53, {f32(LOG2E * 32 ** -0.5)}, 1.0")
                e("s_lshr_b32 s54, s52, 6\ns_lshl_b32 s54, s54, 5\ns_bfe_u32 s52, s52, 0x10005\ns_add_u32 s52, s52, s54\ns_lshl_b32 s54, s26, 1\ns_add_u32 s52, s52, s54")
                e("s_lshl_b32 s52, s52, 17\ns_lshl_b32 s54, s44, 6\ns_add_u32 s52, s52, s54")
            else:
                e(f"s_add_u32 s52, s46, {32*p}\ns_cmp_lt_u32 s52, 1024\ns_cselect_b32 s53, {f32(LOG2E * 32 ** -0.5)}, 1.0")
                e(f"s_lshl_b32 s52, s52, 12\ns_lshl_b32 s54, s44, 6\ns_add_u32 s52, s52, s54")
            e(f"s_cmp_eq_u32 s53, 1.0\ns_cbranch_scc1 {L(f'nosc{p}')}\nv_mov_b32 v6, s53")
            for j in range(mt):
                for t_ in (acc(2 * p, j), acc(2 * p + 1, j)):
                    for r in (0, 2): e(f"v_pk_mul_f32 {v(t_+r,2)}, {v(t_+r,2)}, v[6:7] op_sel_hi:[1,0]")
            e(f"{L(f'nosc{p}')}:")
            for j in range(mt):
                ta, tb = acc(2 * p, j), acc(2 * p + 1, j)
                d = T + 4 * (n % 8); n += 1
                pack_pair(ta, tb, d)
                e(f"buffer_store_dwordx4 {v(d,4)}, v5, s[12:15], s52 offen offset:{j*1024}{SCS}")
        e(f"s_add_u32 s35, s26, {C_QKV}")
        k.signal("qkv", 4, 35, 16, (6, lambda: e(f"s_mul_i32 s33, s26, 6\nv_add_u32 v6, s33, v2\nv_lshrrev_b32 v7, 5, v6\nv_and_b32 v6, 31, v6\nv_lshlrev_b32 v6, 8, v6"
                                                        f"\nv_lshlrev_b32 v7, 6, v7\nv_add_u32 v6, v6, v7"
                                                        f"\ns_lshl_b32 s33, s25, 2\ns_add_u32 s33, s33, {FL['att']}\nv_add_u32 v6, s33, v6")))

    elif epi == "ffn1":
        ST = FA; UU = FA + 8; BB = FA + 36; TMP = FA + 64; T = FA + 72
        e(f"s_lshl_b32 s47, s42, 6\nv_add_u32 v6, s47, v3\nv_lshlrev_b32 v6, 3, v6\nv_add_u32 v6, {XL}, v6")
        for j in range(mt): e(f"ds_read_b64 {v(ST+2*j,2)}, v6 offset:{j*128}")
        e(f"s_mul_i32 s47, s43, {TN*4}\ns_add_u32 s47, s47, {XL+1024}\nv_lshlrev_b32 v7, 4, v4\nv_add_u32 v7, s47, v7")
        for i in range(nt):
            e(f"ds_read_b128 {v(UU+4*i,4)}, v7 offset:{i*64}\nds_read_b128 {v(BB+4*i,4)}, v7 offset:{896+i*64}")
        e("s_lshl_b32 s47, s42, 6\nv_add_u32 v6, s47, v3\nv_lshlrev_b32 v6, 6, v6\nv_lshrrev_b32 v7, 1, v4\nv_lshlrev_b32 v7, 4, v7\nv_add_u32 v6, v6, v7")
        e("v_and_b32 v7, 1, v4\nv_lshlrev_b32 v5, 5, v7\nv_add_u32 v5, v5, v6")
        e("v_lshlrev_b32 v7, 10, v7\nv_add_u32 v6, v6, v7\ns_lshl_b32 s47, s43, 5\nv_add_u32 v6, s47, v6")
        e(f"s_mul_i32 s48, s25, 112\ns_mul_i32 s47, s26, 7\ns_add_u32 s48, s48, s47\ns_lshl_b32 s48, s48, 13")
        e(f"s_add_u32 s53, s48, {3*8192}")
        e("s_waitcnt lgkmcnt(0)")
        def ln(i, j, t):
            a_ = acc(i, j)
            for h_ in range(2):
                e(f"v_pk_fma_f32 {v(t+2*h_,2)}, {v(ST+2*j,2)}, {v(UU+4*i+2*h_,2)}, {v(BB+4*i+2*h_,2)} op_sel_hi:[0,1,1] neg_lo:[1,0,0] neg_hi:[1,0,0]")
            for h_ in range(2):
                e(f"v_pk_fma_f32 {v(a_+2*h_,2)}, {v(a_+2*h_,2)}, {v(ST+2*j,2)}, {v(t+2*h_,2)} op_sel:[0,1,0]")
        cnt = [0]
        def put(ta, tb, addr, soff, off):
            d = T + 4 * (cnt[0] % 4); cnt[0] += 1
            e(f"v_cvt_pk_bf16_f32 v{d}, v{ta}, v{ta+1}\nv_cvt_pk_bf16_f32 v{d+1}, v{ta+2}, v{ta+3}")
            e(f"v_cvt_pk_bf16_f32 v{d+2}, v{tb}, v{tb+1}\nv_cvt_pk_bf16_f32 v{d+3}, v{tb+2}, v{tb+3}")
            for q in range(4): e(f"v_pk_max_i16 v{d+q}, v{d+q}, 0")
            e(f"v_permlane16_swap_b32 v{d}, v{d+2}\nv_permlane16_swap_b32 v{d+1}, v{d+3}")
            e(f"buffer_store_dwordx4 {v(d,4)}, {addr}, s[12:15], {soff} offen offset:{off}{SCS}")
        XA = 139264; XR = T + 16
        e(f"s_lshl_b32 s47, s24, 10\nv_lshlrev_b32 v7, 4, v2\nv_add_u32 v7, s47, v7\nv_add_u32 v7, {XA}, v7")
        e(f"s_cmp_eq_u32 s43, 1\ns_cbranch_scc1 {L('ep1')}")
        for wn_ in range(2):
            if wn_ == 1: e(f"{L('ep1')}:\ns_add_u32 s48, s48, {4*8192}")
            single = 6 if wn_ == 0 else 0
            pairs = [(0, 1), (2, 3), (4, 5)] if wn_ == 0 else [(1, 2), (3, 4), (5, 6)]
            mine = (0, 1) if wn_ == 0 else (2, 3); give = (2, 3) if wn_ == 0 else (0, 1)
            for jj in (0, 2):
                ln(single, jj, TMP); ln(single, jj + 1, TMP + 4)
            for j in range(4):
                a_ = acc(single, j)
                e(f"v_cvt_pk_bf16_f32 v{XR+2*j}, v{a_}, v{a_+1}\nv_cvt_pk_bf16_f32 v{XR+2*j+1}, v{a_+2}, v{a_+3}")
            for q in range(8): e(f"v_pk_max_i16 v{XR+q}, v{XR+q}, 0")
            e(f"ds_write_b128 v7, {v(XR+2*give[0],4)}\ns_waitcnt lgkmcnt(0)")
            e(f"s_lshl_b32 s47, s24, 2\ns_add_u32 s47, s47, {CTL+48}\nv_mov_b32 v{TMP}, s47\nv_mov_b32 v{TMP+1}, 1\nds_write_b32 v{TMP}, v{TMP+1}")
            for pi, (ia, ib) in enumerate(pairs):
                for j in range(mt):
                    ln(ia, j, TMP); ln(ib, j, TMP + 4)
                    put(acc(ia, j), acc(ib, j), "v5", "s48", j * 1024)
                if pi < 2: e("s_add_u32 s48, s48, 8192")
            tg = f"x{wn_}"
            e(f"s_xor_b32 s47, s24, 1\ns_lshl_b32 s47, s47, 2\ns_add_u32 s47, s47, {CTL+48}\nv_mov_b32 v{TMP}, s47\ns_mov_b32 s33, 0")
            e(f"{L('xw'+tg)}:\nds_read_b32 v{TMP+1}, v{TMP}\ns_waitcnt lgkmcnt(0)\nv_readfirstlane_b32 s34, v{TMP+1}")
            e(f"s_cmp_lg_u32 s34, 0\ns_cbranch_scc1 {L('xx'+tg)}\ns_add_u32 s33, s33, 1\ns_cmp_lt_u32 s33, {SPIN_MAX}\ns_cbranch_scc1 {L('xw'+tg)}")
            e(f"{L('xx'+tg)}:")
            e(f"v_xor_b32 v7, 1024, v7\nds_read_b128 {v(TMP,4)}, v7\ns_waitcnt lgkmcnt(0)")
            for n_, j in enumerate(mine):
                d = T + 4 * (cnt[0] % 4); cnt[0] += 1
                own = XR + 2 * j; oth = TMP + 2 * n_
                a0, b0 = (own, oth) if wn_ == 0 else (oth, own)
                e(f"v_mov_b32 v{d}, v{a0}\nv_mov_b32 v{d+1}, v{a0+1}\nv_mov_b32 v{d+2}, v{b0}\nv_mov_b32 v{d+3}, v{b0+1}")
                e(f"v_permlane16_swap_b32 v{d}, v{d+2}\nv_permlane16_swap_b32 v{d+1}, v{d+3}")
                e(f"buffer_store_dwordx4 {v(d,4)}, v5, s[12:15], s53 offen offset:{j*1024}{SCS}")
            if wn_ == 0: e(f"s_branch {L('ep2')}")
        e(f"{L('ep2')}:")
        if "stf1" in OPT: k.st(12)
        e(f"s_add_u32 s35, s25, {C_F1}")
        k.signal("f1", 4, 35, 16, (16, lambda: e(f"s_lshl_b32 s33, s25, 11\ns_lshl_b32 s34, s26, 2\ns_add_u32 s33, s33, s34\ns_add_u32 s33, s33, {FL['f2']}\nv_lshlrev_b32 v6, 7, v2\nv_add_u32 v6, s33, v6")) if "nos2" in OPT else
                 (1, lambda: e(f"s_lshl_b32 s33, s25, 1\ns_lshr_b32 s34, s26, 3\ns_add_u32 s33, s33, s34\ns_lshl_b32 s33, s33, 7\ns_and_b32 s34, s26, 7\ns_lshl_b32 s34, s34, 2\ns_add_u32 s33, s33, s34\ns_add_u32 s33, s33, {FL['f2']}\nv_mov_b32 v6, s33")))
        if "stf1" in OPT: k.st(13)
    elif s2:
        e(f"s_cmp_eq_u32 s27, 0\ns_cbranch_scc1 {L('noswap')}")
        for j in range(mt):
            for r in range(8): e(f"v_swap_b32 v{acc(0,j)+r}, v{acc(2,j)+r}")
        e(f"{L('noswap')}:")
        k.srd(56, P_WS, WS_XCH, 128 * 2 * 4 * 8192)
        e("s_lshl_b32 s47, s25, 3\ns_add_u32 s47, s47, s26\ns_lshl_b32 s47, s47, 1")
        e("s_xor_b32 s48, s27, 1\ns_add_u32 s48, s48, s47\ns_lshl_b32 s49, s48, 2\ns_add_u32 s49, s49, s24\ns_lshl_b32 s49, s49, 13")
        e("s_add_u32 s52, s47, s27\ns_lshl_b32 s53, s52, 2\ns_add_u32 s53, s53, s24\ns_lshl_b32 s53, s53, 13")
        e("v_lshlrev_b32 v7, 4, v2")
        xb = "xchbf16" in OPT
        if xb:
            for j in range(mt):
                a2 = acc(2, j)
                for q in range(4): e(f"v_cvt_pk_bf16_f32 v{a2+q}, v{a2+2*q}, v{a2+2*q+1}")
                e(f"buffer_store_dwordx4 {v(a2,4)}, v7, s[56:59], s49 offen offset:{j*1024}{SCS}")
            e("s_waitcnt vmcnt(4)")
        else:
            for j in range(mt):
                if j == 2: e("s_add_u32 s49, s49, 4096")
                e(f"buffer_store_dwordx4 {v(acc(2,j),4)}, v7, s[56:59], s49 offen offset:{(j%2)*2048}{SCS}")
                e(f"buffer_store_dwordx4 {v(acc(3,j),4)}, v7, s[56:59], s49 offen offset:{(j%2)*2048+1024}{SCS}")
            e("s_waitcnt vmcnt(8)")
        XT = T + 32
        for r in range(0 if CHAIN() else 8):
            e(f"v_add_f32 v{G+r}, v{G+r}, v{G+8+r}\nv_add_f32 v{G+16+r}, v{G+16+r}, v{G+24+r}\nv_add_f32 v{G+r}, v{G+r}, v{G+16+r}")
            round_bf16(e, G + r)
        for j in range(mt):
            for i in range(2):
                a0 = acc(i, j); x0 = EP + 4 * j + 2 * i
                for q in range(2):
                    e(f"v_lshlrev_b32 v{XT+2*q}, 16, v{x0+q}\nv_and_b32 v{XT+2*q+1}, 0xffff0000, v{x0+q}")
                for q in range(2):
                    e(f"v_pk_fma_f32 {v(a0+2*q,2)}, {v(a0+2*q,2)}, {v(G+4*i+2*q,2)}, {v(XT+2*q,2)}")
        e(f"v_add_u32 v6, s44, v3\nv_lshlrev_b32 v6, 11, v6\ns_lshl_b32 s47, s46, 1\nv_add_u32 v6, s47, v6\nv_add_u32 v5, v5, v6")
        e("s_waitcnt vmcnt(0)")
        e(f"s_lshl_b32 s48, s48, 7\ns_lshl_b32 s54, s24, 2\ns_add_u32 s48, s48, s54\ns_add_u32 s48, s48, {FL['xch']}\nv_mov_b32 v6, s48\nv_mov_b32 v249, 1")
        e(f"s_mov_b64 exec, 1\nbuffer_store_dword v249, v6, {s(CNT,4)}, 0 offen sc1\ns_mov_b64 exec, -1")
        e(f"s_lshl_b32 s52, s52, 7\ns_add_u32 s52, s52, s54\ns_add_u32 s52, s52, {FL['xch']}\nv_mov_b32 v6, s52\ns_mov_b32 s33, 0\ns_mov_b64 exec, 1")
        e(f"{L('xpoll')}:")
        e(f"buffer_load_dword v249, v6, {s(CNT,4)}, 0 offen sc1\ns_waitcnt vmcnt(0)\nv_readfirstlane_b32 s34, v249")
        e(f"s_cmp_eq_u32 s34, 1\ns_cbranch_scc1 {L('xdone')}\ns_add_u32 s33, s33, 1\ns_cmp_lt_u32 s33, {SPIN_MAX}\ns_cbranch_scc1 {L('xpoll')}")
        e(f"{L('xdone')}:\ns_mov_b64 exec, -1")
        for j in range(mt):
            if xb:
                e(f"buffer_load_dwordx4 {v(acc(2,j)+4,4)}, v7, s[56:59], s53 offen offset:{j*1024}{SC}")
                continue
            if j == 2: e("s_add_u32 s53, s53, 4096")
            e(f"buffer_load_dwordx4 {v(acc(2,j),4)}, v7, s[56:59], s53 offen offset:{(j%2)*2048}{SC}")
            e(f"buffer_load_dwordx4 {v(acc(3,j),4)}, v7, s[56:59], s53 offen offset:{(j%2)*2048+1024}{SC}")
        for j in range(mt):
            e(f"s_waitcnt vmcnt({(1 if xb else 2)*(mt-1-j) + j})")
            e(f"s_mov_b32 s48, {j*16*2048}")
            d = T + 4 * (j % 2)
            if xb:
                src = acc(2, j) + 4
                for q in range(2): e(f"v_lshlrev_b32 v{acc(2,j)+2*q}, 16, v{src+q}\nv_and_b32 v{acc(2,j)+2*q+1}, 0xffff0000, v{src+q}")
                for q in range(2): e(f"v_lshlrev_b32 v{XT+2*q}, 16, v{src+2+q}\nv_and_b32 v{XT+2*q+1}, 0xffff0000, v{src+2+q}")
                for q in range(2):
                    e(f"v_pk_fma_f32 {v(acc(0,j)+2*q,2)}, {v(acc(2,j)+2*q,2)}, {v(G+2*q,2)}, {v(acc(0,j)+2*q,2)}")
                    e(f"v_pk_fma_f32 {v(acc(1,j)+2*q,2)}, {v(XT+2*q,2)}, {v(G+4+2*q,2)}, {v(acc(1,j)+2*q,2)}")
            else:
                for i in range(2):
                    for q in range(2):
                        e(f"v_pk_fma_f32 {v(acc(i,j)+2*q,2)}, {v(acc(2+i,j)+2*q,2)}, {v(G+4*i+2*q,2)}, {v(acc(i,j)+2*q,2)}")
            pack_pair(acc(0, j), acc(1, j), d)
            e(f"buffer_store_dwordx4 {v(d,4)}, v5, s[12:15], s48 offen{' sc1' if 'outsc1' in OPT else ('' if 'outplain' in OPT else ' nt')}")
    else:
        if not CHAIN():
            ML = 135168
            e(f"s_lshl_b32 s47, s43, 7\nv_lshlrev_b32 v6, 4, v4\nv_add_u32 v6, s47, v6\nv_add_u32 v6, {ML}, v6")
            for i in range(nt):
                e(f"ds_read_b128 {v(G+4*i,4)}, v6 offset:{i*64}\nds_read_b128 {v(GG+4*i,4)}, v6 offset:{256+i*64}")
            e(f"v_mul_u32_u24 v6, {(65536+27)//28}, v2\nv_lshrrev_b32 v6, 16, v6\nv_min_u32 v6, 1, v6\ns_lshl_b32 s47, s24, 4\nv_add_u32 v6, s47, v6\nv_lshlrev_b32 v6, 2, v6\nv_add_u32 v6, {ML+512}, v6")
            for i in range(8):
                e(f"ds_read_b32 v{W1R+32+i}, v6 offset:{i*8}\nds_read_b32 v{W1R+40+i}, v6 offset:{256+i*8}")
            e("s_waitcnt lgkmcnt(0)")
        e("s_waitcnt vmcnt(0)")
        XT = T + 32
        e(f"v_add_u32 v6, s44, v3\nv_lshlrev_b32 v6, 11, v6\ns_lshl_b32 s47, s46, 1\nv_add_u32 v6, s47, v6\nv_add_u32 v5, v5, v6")
        if epi == "wo":
            k.srd(16, P_WS, WS_XG, S * D * 2); k.srd(60, P_WS, WS_STAT, 32 * S * 8)
            if CHAIN():
                for r in range(4 * nt):
                    e(f"v_add_f32 v{GG+r}, 1.0, v{GG+r}"); round_bf16(e, GG + r)
            e(f"s_lshl_b32 s49, s26, 1\ns_add_u32 s49, s49, s43\ns_lshl_b32 s49, s49, 14\ns_lshl_b32 s50, s44, 3\ns_add_u32 s49, s49, s50")
            e("v_lshlrev_b32 v1, 3, v3\nv_and_b32 v6, 1, v4\nv_lshlrev_b32 v6, 2, v6\nv_add_u32 v1, v1, v6")
            e("s_lshl_b32 s47, s25, 4\ns_add_u32 s47, s47, s26\ns_lshl_b32 s47, s47, 2\ns_add_u32 s47, s47, s24\ns_lshl_b32 s47, s47, 12\nv_lshlrev_b32 v7, 4, v2\nv_mov_b32 v253, v7")
        for j in range(mt):
            e(f"s_mov_b32 s48, {j*16*2048}")
            d = T + 4 * (j % 2); d2 = T + 8 + 4 * (j % 2); SM = T + 16 + 4 * (j % 2)
            for i in range(nt):
                a0 = acc(i, j); x0 = EP + 2 * (j * nt + i)
                for q in range(2):
                    e(f"v_lshlrev_b32 v{XT+2*q}, 16, v{x0+q}\nv_and_b32 v{XT+2*q+1}, 0xffff0000, v{x0+q}")
                for q in range(2):
                    e(f"v_pk_fma_f32 {v(a0+2*q,2)}, {v(a0+2*q,2)}, {v(G+4*i+2*q,2)}, {v(XT+2*q,2)}")
            ta, tb = acc(0, j), acc(1, j)
            if epi == "ffn2":
                e(f"v_cvt_pk_bf16_f32 v{d}, v{ta}, v{ta+1}\nv_cvt_pk_bf16_f32 v{d+1}, v{ta+2}, v{ta+3}")
                e(f"v_cvt_pk_bf16_f32 v{d+2}, v{tb}, v{tb+1}\nv_cvt_pk_bf16_f32 v{d+3}, v{tb+2}, v{tb+3}")
                e(f"v_permlane16_swap_b32 v{d}, v{d+2}\nv_permlane16_swap_b32 v{d+1}, v{d+3}")
                e(f"buffer_store_dwordx4 {v(d,4)}, v5, s[12:15], s48 offen")
                continue
            for q in range(2):
                e(f"v_pk_mul_f32 {v(XT+2*q,2)}, {v(ta+2*q,2)}, {v(GG+2*q,2)}\nv_pk_mul_f32 {v(XT+4+2*q,2)}, {v(tb+2*q,2)}, {v(GG+4+2*q,2)}")
            for q in range(4): e(f"v_cvt_pk_bf16_f32 v{d2+q}, v{XT+2*q}, v{XT+2*q+1}")
            e(f"v_permlane16_swap_b32 v{d2}, v{d2+2}\nv_permlane16_swap_b32 v{d2+1}, v{d2+3}")
            e(f"buffer_store_dwordx4 {v(d2,4)}, v5, s[16:19], s48 offen{SCS}")
        for j in range(mt if epi == "wo" else 0):
            d = T + 4 * (j % 2); SM = T + 16 + 4 * (j % 2)
            ta, tb = acc(0, j), acc(1, j)
            e(f"v_cvt_pk_bf16_f32 v{d}, v{ta}, v{ta+1}\nv_cvt_pk_bf16_f32 v{d+1}, v{ta+2}, v{ta+3}")
            e(f"v_cvt_pk_bf16_f32 v{d+2}, v{tb}, v{tb+1}\nv_cvt_pk_bf16_f32 v{d+3}, v{tb+2}, v{tb+3}")
            e(f"buffer_store_dwordx4 {v(d,4)}, v253, s[12:15], s47 offen offset:{j*1024}{SCS}")
            e(f"v_pk_add_f32 {v(SM,2)}, {v(ta,2)}, {v(ta+2,2)}\nv_pk_mul_f32 {v(SM+2,2)}, {v(ta,2)}, {v(ta,2)}")
            e(f"v_pk_add_f32 {v(SM,2)}, {v(SM,2)}, {v(tb,2)}\nv_pk_fma_f32 {v(SM+2,2)}, {v(ta+2,2)}, {v(ta+2,2)}, {v(SM+2,2)}")
            e(f"v_pk_add_f32 {v(SM,2)}, {v(SM,2)}, {v(tb+2,2)}\nv_pk_fma_f32 {v(SM+2,2)}, {v(tb,2)}, {v(tb,2)}, {v(SM+2,2)}")
            e(f"v_pk_fma_f32 {v(SM+2,2)}, {v(tb+2,2)}, {v(tb+2,2)}, {v(SM+2,2)}")
            e(f"v_add_f32 v{SM}, v{SM}, v{SM+1}\nv_add_f32 v{SM+2}, v{SM+2}, v{SM+3}")
            e(f"v_permlane16_swap_b32 v{SM}, v{SM+2}\nv_add_f32 v{SM}, v{SM}, v{SM+2}\nv_mov_b32 v{SM+1}, v{SM}")
            e(f"v_permlane32_swap_b32 v{SM}, v{SM+1}\nv_add_f32 v{SM}, v{SM}, v{SM+1}")
            e(f"s_mov_b32 exec_lo, -1\ns_mov_b32 exec_hi, 0\nbuffer_store_dword v{SM}, v1, s[60:63], s49 offen offset:{j*128}{SCS}\ns_mov_b64 exec, -1")
        if epi == "wo":
            if "stwo" in OPT: k.st(12)
            e(f"s_add_u32 s35, s25, {C_WO}")
            k.signal("wo", 4, 35, 16, (4, lambda: e(f"s_lshl_b32 s33, s25, 9\ns_lshl_b32 s34, s26, 2\ns_add_u32 s33, s33, s34\ns_add_u32 s33, s33, {FL['f1']}\nv_lshlrev_b32 v6, 7, v2\nv_add_u32 v6, s33, v6")), younger=8)
            k.signal("wo2", 4, 35, 16, (4, lambda: e(f"s_lshl_b32 s33, s25, 9\ns_lshl_b32 s34, s26, 2\ns_add_u32 s33, s33, s34\ns_add_u32 s33, s33, {FL['f1b']}\nv_lshlrev_b32 v6, 7, v2\nv_add_u32 v6, s33, v6")))
            if "stwo" in OPT: k.st(13)
            UA = ACC
            for r in range(16): e(f"v_mov_b32 v{UA+r}, 0")
            for i in range(8):
                g_ = W1R + 32 + i; s_ = W1R + 40 + i
                if CHAIN():
                    e(f"v_add_f32 v{g_}, 1.0, v{g_}"); round_bf16(e, g_)
                for q in range(4):
                    w_ = W1R + 4 * i + q
                    e(f"v_lshlrev_b32 v6, 16, v{w_}\nv_and_b32 v7, 0xffff0000, v{w_}")
                    e(f"v_fmac_f32 v{UA+2*q}, v{g_}, v6\nv_fmac_f32 v{UA+2*q+1}, v{g_}, v7\nv_fmac_f32 v{UA+8+2*q}, v{s_}, v6\nv_fmac_f32 v{UA+8+2*q+1}, v{s_}, v7")
            UL = 139264
            e(f"v_mul_u32_u24 v5, {(65536+27)//28}, v2\nv_lshrrev_b32 v5, 16, v5\nv_mul_u32_u24 v6, 28, v5\nv_sub_u32 v6, v2, v6")
            e(f"s_lshl_b32 s32, s24, 1\nv_add_u32 v5, s32, v5\nv_mul_u32_u24 v5, 1792, v5\nv_lshlrev_b32 v6, 5, v6\nv_add_u32 v5, v5, v6\nv_add_u32 v5, {UL}, v5")
            e("v_cmp_gt_u32 vcc, 56, v2\ns_and_saveexec_b64 s[34:35], vcc")
            e(f"ds_write_b128 v5, {v(UA,4)}\nds_write_b128 v5, {v(UA+4,4)} offset:16\nds_write_b128 v5, {v(UA+8,4)} offset:896\nds_write_b128 v5, {v(UA+12,4)} offset:912")
            e("s_mov_b64 exec, s[34:35]\ns_waitcnt lgkmcnt(0)")
            e(f"v_mov_b32 v6, {L_SIG['ub']}\nv_mov_b32 v7, 1\ns_mov_b64 exec, 1")
            e("ds_add_rtn_u32 v7, v6, v7\ns_waitcnt lgkmcnt(0)\nv_readfirstlane_b32 s32, v7\ns_mov_b64 exec, -1")
            e(f"s_cmp_lg_u32 s32, 3\ns_cbranch_scc1 {L('ubx')}")
            e(f"v_lshlrev_b32 v5, 2, v2\nv_add_u32 v5, {UL}, v5")
            for m_ in range(7):
                for rr in range(8): e(f"ds_read_b32 v{UA+rr}, v5 offset:{rr*1792+m_*256}")
                e("s_waitcnt lgkmcnt(0)")
                for rr in range(1, 8): e(f"v_add_f32 v{UA}, v{UA}, v{UA+rr}")
                e(f"v_mov_b32 v{UA+16+m_}, v{UA}")
            k.srd(16, P_WS, WS_UB, 16 * 2 * DFF * 4)
            e(f"s_mul_i32 s49, s58, {2*DFF*4}\ns_mul_i32 s50, s59, 896\ns_add_u32 s49, s49, s50")
            for m_ in range(7):
                e(f"v_add_u32 v5, {64*m_}, v2\nv_cmp_le_u32 vcc, 224, v5\nv_mov_b32 v6, {DFF*4 - 896}\nv_cndmask_b32 v6, 0, v6, vcc\nv_lshl_add_u32 v5, v5, 2, v6")
                e(f"buffer_store_dword v{UA+16+m_}, v5, s[16:19], s49 offen{SCS}")
            e("s_waitcnt vmcnt(0)")
            e(f"s_add_u32 s35, s59, {C_UB}\ns_mov_b64 exec, 1")
            k.arrive("ub", 35, 16)
            e("s_mov_b64 exec, -1")
            e(f"{L('ubx')}:")
    e(f"s_branch {nxt_c}")
    e(f"{L('l')}:")
    if s2: tile_map_s2(e)
    else: tile_map(e, xr, xc)
    k.srd(4, P_WS, srcA, sizeA); k.srd(8, pB, 0, sizeB)
    e("s_sub_u32 s42, s24, 4")
    LA = 8
    wblk = s2 and "w2blk" in OPT
    if wblk: ldb = 128
    lda2, ldb2 = lda * 2, ldb * 2
    blocked = epi in ("ffn2", "ffn2s")
    if blocked:
        e(f"s_mul_i32 s43, s25, {112*8192}\ns_mul_i32 s44, s42, {nAw*8*64}\ns_add_u32 s43, s43, s44")
        e("v_lshrrev_b32 v3, 3, v2\nv_lshlrev_b32 v3, 6, v3\nv_add_u32 v3, s43, v3")
        e("v_and_b32 v4, 7, v2\nv_lshrrev_b32 v5, 4, v2")
        for i in range(nAw):
            e(f"v_xor_b32 v6, {(i&1)*4}, v5\nv_xor_b32 v6, v6, v4\nv_lshrrev_b32 v7, 2, v6\nv_lshlrev_b32 v7, 13, v7\nv_and_b32 v6, 3, v6\nv_lshlrev_b32 v6, 4, v6")
            e(f"v_add3_u32 v6, v6, v7, v3\nv_add_u32 v{LA+i}, {i*8*64}, v6")
    else:
        e(f"s_lshl_b32 s43, s25, 7\ns_mul_i32 s44, s42, {nAw*8}\ns_add_u32 s43, s43, s44")
        e(f"v_lshrrev_b32 v3, 3, v2\nv_add_u32 v3, s43, v3\ns_mov_b32 s45, {lda2}\nv_mul_lo_u32 v3, s45, v3")
        e("v_and_b32 v4, 7, v2\nv_lshrrev_b32 v5, 4, v2")
        for i in range(nAw):
            e(f"v_xor_b32 v6, {(i&1)*4}, v5\nv_xor_b32 v6, v6, v4\nv_lshlrev_b32 v6, 4, v6\nv_add_u32 v6, v6, v3")
            e(f"v_add_u32 v{LA+i}, {i*8*lda2}, v6")
    ASTEP = 16384 if blocked else BK * 2
    magic = (65536 + cpr - 1) // cpr
    assert all((p * magic) >> 16 == p // cpr for p in range(nBw * 64)) and nBw * 64 == 16 * cpr
    e(f"s_mul_i32 s43, s42, {16*ldb2}\ns_mul_i32 s44, s26, {K*256 if wblk else (128 if perm else BN*2)}\ns_add_u32 s43, s43, s44")
    for i in range(nBw):
        e(f"v_add_u32 v3, {i*64}, v2\nv_mul_u32_u24 v4, {magic}, v3\nv_lshrrev_b32 v4, 16, v4")
        e(f"v_mul_u32_u24 v5, {cpr}, v4\nv_sub_u32 v3, v3, v5")
        if hbits == 2: e("v_and_b32 v5, 2, v4\nv_lshrrev_b32 v6, 1, v4\nv_and_b32 v6, 4, v6\nv_or_b32 v5, v5, v6")
        elif hbits == 1: e("v_lshrrev_b32 v5, 2, v4\nv_and_b32 v5, 2, v5")
        else: e("v_and_b32 v5, 3, v4\nv_lshrrev_b32 v6, 1, v4\nv_and_b32 v6, 4, v6\nv_or_b32 v5, v5, v6\nv_lshlrev_b32 v5, 1, v5")
        e("v_xor_b32 v3, v3, v5")
        if perm: e("v_lshrrev_b32 v5, 3, v3\nv_and_b32 v3, 7, v3\nv_lshlrev_b32 v5, 7, v5\nv_add_u32 v3, v3, v5")
        e(f"v_lshlrev_b32 v3, 4, v3\ns_mov_b32 s45, {ldb2}\nv_mul_lo_u32 v4, s45, v4\nv_add_u32 v3, v3, v4")
        e(f"v_add_u32 v{LA+nAw+i}, s43, v3")
    e(f"s_mul_i32 s46, s42, {nAw*1024}")
    e(f"s_mul_i32 s47, s42, {nBw*1024}\ns_add_u32 s47, s47, {nA*1024}")
    def issue_x(lds_s, off_s):
        for i in range(nAw):
            e(f"s_add_u32 m0, {lds_s}, {i*1024}")
            e(f"buffer_load_dwordx4 v{LA+i}, s[4:7], {off_s} offen{asc} lds")
    def issue_w(lds_s, off_s):
        for i in range(nBw):
            e(f"s_add_u32 m0, {lds_s}, {i*1024}")
            e(f"buffer_load_dwordx4 v{LA+nAw+i}, s[8:11], {off_s} offen lds")
    if s2: e(f"s_mul_i32 s62, s27, {nk*ASTEP}\ns_mul_i32 s63, s27, {nk*BK*ldb2}")
    else: e("s_mov_b32 s62, 0\ns_mov_b32 s63, 0")
    def w_prologue():
        for st in range(NS - 1):
            e(f"s_add_u32 s52, s47, {st*SB}\ns_add_u32 s49, s63, {st*BK*ldb2}")
            issue_w("s52", "s49")
    if dep:
        base, target, kind = dep
        e(f"s_lshr_b32 s35, s25, 1\ns_add_u32 s35, s35, {base}" if kind == "rb2" else f"s_add_u32 s35, s25, {base}")
        if "wfirst" in OPT:
            w_prologue()
            k.dep_wait_loaders(tag, 35, target, None)
        else:
            if hbar and "single" in OPT: g_loader(k)
            e(f"s_cmp_eq_u32 s24, 4\ns_cbranch_scc1 {L('w4a')}")
            w_prologue()
            e(f"{L('w4a')}:")
            if hbar and "nowq" not in OPT:
                e(f"s_cmp_eq_u32 s24, 4\ns_cbranch_scc1 {L('nowqpf')}")
                e("s_mul_i32 s43, s2, 3\ns_add_u32 s43, s43, s24\ns_sub_u32 s43, s43, 5\ns_lshl_b32 s43, s43, 13\nv_lshlrev_b32 v3, 7, v2")
                e("buffer_load_dword v253, v3, s[8:11], s43 offen")
                e(f"{L('nowqpf')}:")
            if hbar and "single" in OPT: e("s_barrier")
            if hbar: e("s_barrier")
            k.dep_wait_loaders(tag, 35, target, None)
            e(f"s_cmp_lg_u32 s24, 4\ns_cbranch_scc1 {L('w4b')}")
            w_prologue()
            e(f"{L('w4b')}:")
        if tag == "f1" and "stwo" in OPT: k.st(14, 4)
        if tag == "wo" and "statt" in OPT: k.st(15, 4)
        if tag == "f2" and "stf1" in OPT: k.st(14, 4)
    else:
        w_prologue()
    for st in range(NS - 1):
        e(f"s_add_u32 s51, s46, {st*SB}\ns_add_u32 s48, s62, {st*ASTEP}")
        issue_x("s51", "s48")
    e(f"s_add_u32 s48, s62, {(NS-1)*ASTEP}\ns_add_u32 s49, s63, {(NS-1)*BK*ldb2}\ns_mov_b32 s50, {(NS-1)*SB}")
    def issue():
        e("s_add_u32 s51, s50, s46\ns_add_u32 s52, s50, s47")
        issue_x("s51", "s48"); issue_w("s52", "s49")
        e(f"s_add_u32 s48, s48, {ASTEP}\ns_add_u32 s49, s49, {BK*ldb2}")
        e(f"s_add_u32 s50, s50, {SB}\ns_cmp_eq_u32 s50, {SB*NS}\ns_cselect_b32 s50, 0, s50")
    if ("lprio" in OPT): e("s_setprio 2")
    e(f"s_waitcnt vmcnt({nAw*(NS-2)})\ns_barrier")
    issue()
    e(f"s_waitcnt vmcnt({nAw*(NS-3) + nld})\ns_barrier" if NS >= 3 else "")
    issue()
    for t in range(2, NS - 1):
        e(f"s_waitcnt vmcnt({nAw*(NS-2-t) + nld*t})\ns_barrier")
        issue()
    done = max(2, NS - 1)
    e(f"s_mov_b32 s53, {nk-(NS-1)-done}")
    e(f"{L('lloop')}:")
    e(f"s_waitcnt vmcnt({nld*(NS-2)})\ns_barrier")
    issue()
    e(f"s_sub_u32 s53, s53, 1\ns_cmp_lg_u32 s53, 0\ns_cbranch_scc1 {L('lloop')}")
    if ("lprio" in OPT): e("s_setprio 0")
    nx = 0
    for t in range(NS - 1):
        e(f"s_waitcnt vmcnt({nld*(NS-2-t)+nx})\ns_barrier")
        if epi == "qkv" and t == 0 and "modall" not in OPT and "mrwo" not in OPT:
            nx = 16
            e(f"s_load_dwordx4 s[36:39], s[0:1], {KA_C}")
            e("s_and_b32 s58, s2, 3\ns_lshr_b32 s59, s2, 2\ns_add_u32 s59, s59, 32\ns_mov_b32 s64, s58\ns_mov_b32 s65, s59")
            e("v_subrev_u32 v3, 256, v0\nv_lshrrev_b32 v6, 3, v3\nv_and_b32 v7, 7, v3\nv_mov_b32 v22, v7")
            e("s_lshl_b32 s43, s58, 8\nv_add_u32 v6, s43, v6\nv_lshlrev_b32 v4, 1, v6")
            e("v_mul_u32_u24 v5, 12288, v6\nv_lshlrev_b32 v6, 4, v7\nv_add_u32 v5, v5, v6\ns_lshl_b32 s43, s59, 7\nv_add_u32 v5, s43, v5")
            e("s_waitcnt lgkmcnt(0)")
            k.srd(52, 36, 0, 2048); k.srd(60, 38, 0, 1024 * 6144 * 2)
            for i in range(8): e(f"buffer_load_ushort v{24+i}, v4, s[52:55], 0 offen offset:{i*64}")
            for i in range(8):
                e(f"s_mov_b32 s43, {i*32*12288}\nbuffer_load_dwordx4 {v(32+4*i,4)}, v5, s[60:63], s43 offen")
        if epi == "ffn1" and t == 0:
            nx = 32
            k.srd(56, P_WS, WS_STAT, 32 * S * 8); k.srd(60, P_WS, WS_UB, 16 * 2 * DFF * 4)
            e(f"s_cmp_ge_u32 s42, 2\ns_cbranch_scc1 {L('ubld')}")
            e(f"s_lshl_b32 s34, s25, 2\ns_lshr_b32 s33, s26, 2\ns_add_u32 s34, s34, s33\ns_lshl_b32 s34, s34, 7\ns_add_u32 s34, s34, {FL['f1b']}")
            k.wait_flags("f1b", 16, 34)
            e(f"s_lshl_b32 s43, s42, 6\nv_add_u32 v3, s43, v2\ns_lshl_b32 s44, s25, 7\nv_add_u32 v4, s44, v3\nv_lshlrev_b32 v4, 3, v4")
            for sl in range(32):
                e(f"s_mov_b32 s45, {sl*S*8}\nbuffer_load_dwordx2 {v(32+2*sl,2)}, v4, s[56:59], s45 offen{SC}")
            e(f"s_branch {L('ldd')}")
            e(f"{L('ubld')}:")
            e(f"s_add_u32 s35, s26, {C_UB}")
            k.poll(tag + "u", 35, 16)
            if "alias" in OPT:
                e(f"v_mov_b32 v6, {C_ATTALL*256 - 128}")
                k.poll(tag + "a", None, 256)
            e(f"s_sub_u32 s43, s42, 2\ns_lshl_b32 s43, s43, 6\nv_add_u32 v3, s43, v2")
            e(f"s_mul_i32 s44, s26, {BN*4}\nv_lshlrev_b32 v4, 3, v3\nv_add_u32 v4, s44, v4")
            for kg in range(16):
                for w_ in range(2):
                    e(f"s_mov_b32 s45, {(kg*2+w_)*DFF*4}\nbuffer_load_dwordx2 {v(32+4*kg+2*w_,2)}, v4, s[60:63], s45 offen{SC}")
            e(f"{L('ldd')}:")
    if epi == "ffn1":
        e("s_waitcnt vmcnt(0)")
        e(f"s_cmp_ge_u32 s42, 2\ns_cbranch_scc1 {L('ubred')}")
        for sl in range(1, 32): e(f"v_add_f32 v32, v32, v{32+2*sl}\nv_add_f32 v33, v33, v{33+2*sl}")
        e(f"v_mul_f32 v32, {f32(1/1024)}, v32\nv_mul_f32 v33, {f32(1/1024)}, v33")
        e(f"v_fma_f32 v33, -v32, v32, v33\nv_max_f32 v33, 0, v33\nv_add_f32 v33, {f32(1e-5)}, v33\nv_rsq_f32 v33, v33")
        e("v_mul_f32 v32, v32, v33")
        e(f"v_lshlrev_b32 v4, 3, v3\nv_add_u32 v4, {XL}, v4\nds_write_b64 v4, v[32:33]")
        e(f"s_branch {L('redd')}")
        e(f"{L('ubred')}:")
        for kg in range(1, 16):
            for q in range(4): e(f"v_add_f32 v{32+q}, v{32+q}, v{32+4*kg+q}")
        e(f"v_lshlrev_b32 v4, 3, v3\nv_add_u32 v4, {XL+1024}, v4\nv_cmp_gt_u32 vcc, 112, v3\ns_and_saveexec_b64 s[44:45], vcc")
        e(f"ds_write_b64 v4, v[32:33]\nds_write_b64 v4, v[34:35] offset:896\ns_mov_b64 exec, s[44:45]")
        e(f"{L('redd')}:")
        e("s_waitcnt lgkmcnt(0)")
    if epi == "qkv" and "modall" not in OPT and "mrwo" not in OPT:
        gemv_finish(k, 24, 32, 64, 72)
        MRL = 139264
        e(f"s_sub_u32 s43, s24, 4\ns_lshl_b32 s43, s43, 8\nv_lshlrev_b32 v9, 5, v22\nv_add_u32 v9, s43, v9\nv_add_u32 v9, {MRL}, v9")
        e("s_mov_b64 exec, 0xff\nds_write_b128 v9, v[64:67]\nds_write_b128 v9, v[68:71] offset:16\ns_waitcnt lgkmcnt(0)")
        e(f"v_mov_b32 v6, {L_SIG['mr']}\nv_mov_b32 v8, 1\ns_mov_b64 exec, 1\nds_add_rtn_u32 v8, v6, v8\ns_waitcnt lgkmcnt(0)\nv_readfirstlane_b32 s43, v8\ns_mov_b64 exec, -1")
        e(f"s_cmp_lg_u32 s43, 3\ns_cbranch_scc1 {L('mrx')}")
        e(f"v_lshlrev_b32 v9, 2, v2\nv_add_u32 v10, {MRL}, v9")
        for w_ in range(4): e(f"ds_read_b32 v{12+w_}, v10 offset:{w_*256}")
        e("s_waitcnt lgkmcnt(0)\nv_add_f32 v12, v12, v13\nv_add_f32 v14, v14, v15\nv_add_f32 v12, v12, v14")
        k.srd(52, P_WS, WS_MODP, 4 * 6144 * 4)
        e("s_mul_i32 s43, s64, 24576\ns_lshl_b32 s44, s65, 8\ns_add_u32 s43, s43, s44")
        e(f"buffer_store_dword v12, v9, s[52:55], s43 offen{SCS}\ns_waitcnt vmcnt(0)")
        if "nochain" in OPT:
            e(f"v_mov_b32 v6, {C_MRALL*256}\nv_mov_b32 v8, 1\ns_mov_b64 exec, 1\nbuffer_atomic_add v8, v6, {s(CNT,4)}, 0 offen sc1\ns_mov_b64 exec, -1")
        else:
            k.srd(60, P_WS, WS_MODF, 6144 * 4)
            e(f"s_sub_u32 s45, s65, 32\ns_add_u32 s45, s45, {C_MR}\ns_lshl_b32 s45, s45, 8\nv_mov_b32 v6, s45\nv_mov_b32 v8, 1\ns_mov_b64 exec, 1")
            e(f"buffer_atomic_add v8, v6, {s(CNT,4)}, 0 offen sc0 sc1\ns_waitcnt vmcnt(0)\nv_readfirstlane_b32 s45, v8\ns_mov_b64 exec, -1")
            e(f"s_cmp_lg_u32 s45, 3\ns_cbranch_scc1 {L('mrx')}")
            for p_ in range(4):
                e(f"s_add_u32 s45, s44, {p_*24576}\nbuffer_load_dword v{12+p_}, v9, s[52:55], s45 offen{SC}")
            e("s_waitcnt vmcnt(0)\nv_add_f32 v12, v12, v13\nv_add_f32 v14, v14, v15\nv_add_f32 v12, v12, v14")
            round_bf16(e, 12)
            e(f"buffer_store_dword v12, v9, s[60:63], s44 offen{SCS}\ns_waitcnt vmcnt(0)")
            e(f"v_mov_b32 v6, {C_MRALL*256}\nv_mov_b32 v8, 1\ns_mov_b64 exec, 1")
            e(f"buffer_atomic_add v8, v6, {s(CNT,4)}, 0 offen sc0 sc1\ns_waitcnt vmcnt(0)\nv_readfirstlane_b32 s45, v8\ns_mov_b64 exec, -1")
            e(f"s_cmp_lg_u32 s45, 63\ns_cbranch_scc1 {L('mrx')}")
            e(f"v_lshlrev_b32 v6, 7, v2\nv_add_u32 v6, {FL['mr']}, v6\nv_mov_b32 v8, 1\ns_mov_b64 exec, 0xff\nbuffer_store_dword v8, v6, {s(CNT,4)}, 0 offen sc1\ns_mov_b64 exec, -1")
        e(f"{L('mrx')}:")
    if epi != "qkv": e("s_barrier")
    e(f"s_branch {nxt_l}")

def attn_phase(k, nxt_c, nxt_l, pf):
    e = k.e
    L = lambda n: k.lab("att_" + n)
    old4 = "nsl3" not in OPT
    NSL = 4 if old4 else 3; KPS = 128; SBK = KPS * 64
    HB = 2 * SBK; SB = 2 * HB
    FLAG = CTL + 164 if old4 else NSL * SB
    S0 = 1 if old4 else 0
    e(f"{L('c')}:\n{L('l')}:")
    e("s_and_b32 s36, s2, 7\ns_lshr_b32 s37, s2, 3\ns_lshl_b32 s36, s36, 2\ns_lshr_b32 s38, s37, 3\ns_add_u32 s25, s36, s38")
    e("s_and_b32 s26, s37, 7")
    e("s_and_b32 s34, s24, 3\ns_lshr_b32 s27, s24, 2")
    e("s_mov_b32 s57, s34")
    e("s_lshl_b32 s40, s25, 17")
    e(f"s_add_u32 s32, s{P_WS}, {WS_QKV:#x}\ns_addc_u32 s33, s{P_WS+1}, 0\ns_add_u32 s32, s32, s40\ns_addc_u32 s33, s33, 0")
    k.srd(4, 32, 0, S * 64); k.srd(8, 32, 32 * S * 64, S * 64); k.srd(12, 32, 64 * S * 64, S * 64)
    k.srd(16, P_WS, WS_O, S * D * 2)
    QG, KH = 57, 27
    Q = 4 + 4; KF = 24; VF = 32
    NEG = 40; O = 72; LS = 104; SEL = 112
    SS = [[116, 132], [148, 164]]
    PP = [[180, 188], [196, 204]]
    AK0, AK1, AV, AN0, AN1, DK, DV = 212, 213, 214, 215, 216, 217, 218
    HH, QL = 219, 220
    T = 221
    PFD = 230
    e(f"v_and_b32 v{QL}, 31, v2\nv_lshrrev_b32 v{HH}, 5, v2")
    e(f"s_lshl_b32 s39, s26, 8\ns_lshl_b32 s40, s{QG}, 6\ns_add_u32 s39, s39, s40")
    e(f"v_lshrrev_b32 v{T}, 2, v2\ns_lshl_b32 s40, s{QG}, 5\nv_add_u32 v{T}, s40, v{T}\nv_lshlrev_b32 v{T}, 6, v{T}")
    e(f"v_and_b32 v{T+1}, 3, v2\nv_lshrrev_b32 v{T+2}, 4, v2\nv_xor_b32 v{T+1}, v{T+1}, v{T+2}\nv_lshlrev_b32 v{T+1}, 4, v{T+1}")
    e(f"v_add_u32 v{DK}, v{T}, v{T+1}")
    e(f"v_lshlrev_b32 v{DV}, 4, v2\ns_lshl_b32 s40, s{QG}, 11\nv_add_u32 v{DV}, s40, v{DV}")
    e(f"s_lshl_b32 s41, s{QG}, 11\ns_mul_i32 s40, s{KH}, {HB}\ns_add_u32 s41, s41, s40")
    e(f"s_mul_i32 s45, s{KH}, {S*32}")
    def addr_setup():
        e(f"s_mul_i32 s40, s{KH}, {HB}")
        e(f"v_lshrrev_b32 v{T}, 2, v{QL}\nv_and_b32 v{T}, 3, v{T}\nv_xor_b32 v{T}, v{T}, v{HH}\nv_lshlrev_b32 v{T}, 4, v{T}")
        e(f"v_lshlrev_b32 v{T+1}, 6, v{QL}\nv_add_u32 v{T+3}, v{T}, v{T+1}")
        e(f"v_add_u32 v{AK0}, s40, v{T+3}\nv_xor_b32 v{AK1}, 32, v{AK0}")
        e(f"v_and_b32 v{T}, 15, v2\nv_lshrrev_b32 v{T}, 2, v{T}\nv_lshlrev_b32 v{T+1}, 2, v{HH}\nv_add_u32 v{T}, v{T}, v{T+1}\nv_lshlrev_b32 v{T}, 6, v{T}")
        e(f"v_lshrrev_b32 v{T+1}, 4, v2\nv_and_b32 v{T+1}, 1, v{T+1}\nv_lshlrev_b32 v{T+1}, 5, v{T+1}\nv_add_u32 v{T}, v{T}, v{T+1}")
        e(f"v_and_b32 v{T+1}, 3, v2\nv_lshlrev_b32 v{T+1}, 3, v{T+1}\nv_add_u32 v{T}, v{T}, v{T+1}\nv_add_u32 v{T}, {SBK}, v{T}\nv_add_u32 v{AV}, s40, v{T}")
    addr_setup()
    if S0: e(f"v_add_u32 v{AK0}, {S0*SB}, v{AK0}\nv_add_u32 v{AK1}, {S0*SB}, v{AK1}\nv_add_u32 v{AV}, {S0*SB}, v{AV}\nv_add_u32 v{T+3}, {S0*SB}, v{T+3}")
    smf = "nosmf" not in OPT
    SIX = 239
    def dense_selector():
        e(f"v_lshrrev_b32 v{T}, 4, v2\nv_lshrrev_b32 v{T+1}, 2, v2\nv_xor_b32 v{T}, v{T}, v{T+1}\nv_and_b32 v{T}, 1, v{T}")
        e(f"v_cmp_eq_u32 vcc, 0, v{T}\nv_mov_b32 v{T+1}, 0x3f803f80")
        e(f"v_cndmask_b32 v{SEL}, 0, v{T+1}, vcc")
        for r in range(1, 4): e(f"v_mov_b32 v{SEL+r}, v{SEL}")
    if smf:
        e(f"v_and_b32 v{T}, 4, v2\nv_cmp_eq_u32 vcc, 0, v{T}\nv_mov_b32 v{T+1}, 0x3f803f80")
        e(f"v_cndmask_b32 v{SEL}, 0, v{T+1}, vcc\nv_cndmask_b32 v{SEL+2}, v{T+1}, 0, vcc\nv_mov_b32 v{SEL+1}, v{SEL}\nv_mov_b32 v{SEL+3}, v{SEL+2}")
        e(f"v_and_b32 v{T}, 2, v2\nv_cmp_eq_u32 vcc, 0, v{T}\nv_mov_b32 v{T+1}, 0xeeeeeeee\nv_mov_b32 v{T+2}, 0x44444444\nv_cndmask_b32 v{SIX}, v{T+1}, v{T+2}, vcc")
    else:
        dense_selector()
    def zero_acc():
        for r in range(32): e(f"v_mov_b32 v{O+r}, 0")
        for r in range(8): e(f"v_mov_b32 v{LS+r}, 0")
    zero_acc()
    for r in range(8): e(f"v_mov_b32 v{VF+r}, 0")
    for qb in range(2):
        for r in range(8): e(f"v_mov_b32 v{PP[1][qb]+r}, 0")
    e(f"s_cmp_lg_u32 s24, 4\ns_cbranch_scc1 {L('nodep')}")
    if "noflags" in OPT:
        e(f"v_lshlrev_b32 v6, 10, v2\ns_lshl_b32 s35, s25, 5\nv_add_u32 v6, s35, v6\nv_mul_u32_u24 v6, {(65536 + 191) // 192}, v6\nv_lshrrev_b32 v6, 16, v6")
        e(f"v_add_u32 v6, {C_QKV}, v6\nv_lshlrev_b32 v6, 8, v6")
        k.poll("att", None, 16, lanes=3)
    else:
        e(f"s_lshl_b32 s35, s25, 8\ns_add_u32 s35, s35, {FL['att']}")
        k.wait_flags("att", 48, 35)
    e(f"{L('nodep')}:")
    e("s_barrier")
    k.st(3)
    e(f"v_mov_b32 v{T}, {FLAG}\nv_mov_b32 v{T+1}, 0\nds_write_b32 v{T}, v{T+1}")
    e(f"v_add_u32 v{T}, s39, v{QL}\nv_lshlrev_b32 v{T}, 6, v{T}\nv_lshlrev_b32 v{T+1}, 4, v{HH}\nv_add_u32 v{T}, v{T}, v{T+1}")
    for qb in range(2):
        e(f"buffer_load_dwordx4 {v(Q+8*qb,4)}, v{T}, s[4:7], 0 offen offset:{qb*2048}{SC}")
        e(f"buffer_load_dwordx4 {v(Q+8*qb+4,4)}, v{T}, s[4:7], 0 offen offset:{qb*2048+32}{SC}")
    def dma(slot_sreg):
        e(f"s_add_u32 s43, {slot_sreg}, s41\ns_add_u32 s46, s42, s45")
        e(f"s_mov_b32 m0, s43\nbuffer_load_dwordx4 v{DK}, s[8:11], s46 offen{SC} lds")
        e(f"s_add_u32 m0, s43, {SBK}\nbuffer_load_dwordx4 v{DV}, s[12:15], s46 offen{SC} lds")
        e(f"s_add_u32 s46, s46, 1024\ns_add_u32 m0, s43, 1024\nbuffer_load_dwordx4 v{DK}, s[8:11], s46 offen{SC} lds")
        e(f"s_add_u32 m0, s43, {SBK+1024}\nbuffer_load_dwordx4 v{DV}, s[12:15], s46 offen{SC} lds")
        e(f"s_add_u32 s42, s42, {SBK}")
    def dma_both(slot_sreg):
        e(f"s_lshl_b32 s43, s{QG}, 11\ns_add_u32 s43, s43, {slot_sreg}")
        for hf in range(2):
            e(f"s_add_u32 s46, s42, {hf*S*32}")
            e(f"s_add_u32 m0, s43, {hf*HB}\nbuffer_load_dwordx4 v{DK}, s[8:11], s46 offen{SC} lds")
            e(f"s_add_u32 m0, s43, {hf*HB+SBK}\nbuffer_load_dwordx4 v{DV}, s[12:15], s46 offen{SC} lds")
            e(f"s_add_u32 s46, s46, 1024\ns_add_u32 m0, s43, {hf*HB+1024}\nbuffer_load_dwordx4 v{DK}, s[8:11], s46 offen{SC} lds")
            e(f"s_add_u32 m0, s43, {hf*HB+SBK+1024}\nbuffer_load_dwordx4 v{DV}, s[12:15], s46 offen{SC} lds")
    def kread(a0, a1, t):
        return [f"ds_read_b128 {v(KF,4)}, v{a0} offset:{t*2048}", f"ds_read_b128 {v(KF+4,4)}, v{a1} offset:{t*2048}"]
    def vread(t):
        return [f"ds_read_b64_tr_b16 {v(VF+4*m+2*hh,2)}, v{AV} offset:{t*2048+(16*m+8*hh)*64}" for m in range(2) for hh in range(2)]
    def qk(qb, dst, c):
        return [f"v_mfma_f32_32x32x16_bf16 {v(dst,16)}, {v(KF,4)}, {v(Q+8*qb,4)}, {c}",
                f"v_mfma_f32_32x32x16_bf16 {v(dst,16)}, {v(KF+4,4)}, {v(Q+8*qb+4,4)}, {v(dst,16)}"]
    def pv(qb, P):
        o, l = O + 16 * qb, LS + 4 * qb
        return [f"v_mfma_f32_32x32x16_bf16 {v(o,16)}, {v(VF,4)}, {v(P,4)}, {v(o,16)}",
                f"v_mfma_f32_16x16x32_bf16 {v(l,4)}, {v(SEL,4)}, {v(P,4)}, {v(l,4)}",
                f"v_mfma_f32_32x32x16_bf16 {v(o,16)}, {v(VF+4,4)}, {v(P+4,4)}, {v(o,16)}",
                f"v_mfma_f32_16x16x32_bf16 {v(l,4)}, {v(SEL,4)}, {v(P+4,4)}, {v(l,4)}"]
    def lane_max16(src, dst, tmp):
        e(f"v_max3_f32 v{dst}, v{src}, v{src+1}, v{src+2}")
        for r in range(3, 15, 2): e(f"v_max3_f32 v{dst}, v{dst}, v{src+r}, v{src+r+1}")
        e(f"v_max_f32 v{dst}, v{dst}, v{src+15}")
        e(f"v_mov_b32 v{tmp}, v{dst}\nv_permlane32_swap_b32 v{tmp}, v{dst}\nv_max_f32 v{dst}, v{dst}, v{tmp}")
    NST = S // 2 // KPS
    HALF = S * 32
    e("s_mov_b32 s42, 0")
    for st in range(2):
        e(f"s_mov_b32 s44, {(st+S0)*SB}")
        dma("s44")
    e("s_waitcnt vmcnt(4)\ns_barrier")
    if "stloop" in OPT: k.st(13)
    e(f"v_xor_b32 v{T+4}, 32, v{T+3}")
    for l in kread(T + 3, T + 4, 0): e(l)
    e("s_waitcnt lgkmcnt(0)")
    for qb in range(2):
        for l in qk(qb, SS[1][qb], "0"): e(l)
    for l in kread(AK0, AK1, 0): e(l)
    for qb in range(2):
        lane_max16(SS[1][qb], T, T + 1)
        e(f"v_add_f32 v{T}, {f32(40.0)}, v{T}")
        for r in range(16): e(f"v_sub_f32 v{NEG+16*qb+r}, 0, v{T}")
    e("s_waitcnt lgkmcnt(0)")
    for qb in range(2):
        for l in qk(qb, SS[0][qb], v(NEG + 16 * qb, 16)): e(l)
    for l in kread(AK0, AK1, 1): e(l)
    e(f"v_add_u32 v{AN0}, {SB}, v{AK0}\nv_add_u32 v{AN1}, {SB}, v{AK1}")
    e(f"s_mov_b32 s47, {1+S0}\ns_mov_b32 s48, {SB}\ns_mov_b32 s49, {-(NSL-1)*SB & 0xffffffff:#x}")
    e(f"s_mov_b32 s50, {(2+S0)*SB}")
    e("s_waitcnt lgkmcnt(0)")
    e("s_lshl_b32 s56, s2, 3\ns_add_u32 s56, s56, s24\ns_mul_i32 s58, s56, 52429\ns_lshr_b32 s58, s58, 18\ns_mul_i32 s58, s58, 5\ns_sub_u32 s58, s56, s58\ns_sub_u32 s58, 7, s58")
    if "pfall" in OPT: e(f"s_mov_b32 s58, {PFSTAGE}")
    flg = "flg" in OPT
    PG, PAO, PAG, PVV = 232, 236, 237, 238
    if flg:
        e(f"s_lshl_b32 s52, s{KH}, 4\ns_add_u32 s52, s52, {CTL+128}\nv_mov_b32 v{PAG}, s52\ns_lshl_b32 s53, s{QG}, 2\ns_add_u32 s52, s52, s53\nv_mov_b32 v{PAO}, s52\ns_mov_b32 s59, 1\ns_mov_b32 s53, 0")
        e("s_barrier")
    e(f"s_mov_b32 s44, {NST}")
    if "prio1" in OPT: e(f"s_cmp_lt_u32 s24, 4\ns_cbranch_scc1 {L('noprio')}\ns_setprio 1\n{L('noprio')}:")
    if "prio0" in OPT: e(f"s_cmp_ge_u32 s24, 4\ns_cbranch_scc1 {L('noprio')}\ns_setprio 1\n{L('noprio')}:")
    if "stloop" in OPT: k.st(12)
    align(k, "att")
    e(f"{L('floop')}:")
    for t in range(4):
        par = t & 1
        if t == 2:
            if flg:
                e("s_waitcnt lgkmcnt(4)")
                e(f"{L('pchk')}:")
                e(f"v_min3_u32 v{PVV}, v{PG}, v{PG+1}, v{PG+2}\nv_min_u32 v{PVV}, v{PVV}, v{PG+3}\nv_readfirstlane_b32 s52, v{PVV}")
                e(f"s_cmp_ge_u32 s52, s59\ns_cbranch_scc1 {L('pok')}")
                e(f"ds_read_b128 {v(PG,4)}, v{PAG}\ns_waitcnt lgkmcnt(0)\ns_add_u32 s53, s53, 1\ns_cmp_lt_u32 s53, {SPIN_MAX*16}\ns_cbranch_scc1 {L('pchk')}")
                e(f"{L('pok')}:")
                e(f"s_cmp_ge_u32 s42, {HALF}\ns_cbranch_scc1 {L('cont')}")
            elif old4:
                e(f"s_cmp_ge_u32 s42, {HALF}\ns_cbranch_scc1 {L('nodma')}")
                e(f"s_cmp_lg_u32 s{KH}, 0\ns_cbranch_scc1 {L('yw')}")
                dma_both("s50")
                e(f"s_waitcnt vmcnt(8)\ns_branch {L('yb')}")
                e(f"{L('yw')}:\ns_cmp_lg_u32 s44, {NST}\ns_cbranch_scc1 {L('yb')}\ns_waitcnt vmcnt(0)")
                e(f"{L('yb')}:\ns_barrier\ns_add_u32 s42, s42, {SBK}")
            else:
                e(f"s_cmp_ge_u32 s42, {HALF}\ns_cbranch_scc1 {L('nodma')}")
                e(f"s_waitcnt vmcnt({4*(NSL-3)})\ns_barrier")
            if not old4 or flg: dma("s50")
            e(f"s_add_u32 s50, s50, {SB}\ns_cmp_eq_u32 s50, {NSL*SB}\ns_cselect_b32 s50, 0, s50")
            if pf:
                e(f"s_cmp_lg_u32 s44, s58\ns_cbranch_scc1 {L('cont')}")
                e(f"s_mov_b32 s60, s{P_WO}\ns_mov_b32 s61, s{P_WO+1}\ns_mov_b32 s62, {D*D*2}\ns_mov_b32 s63, 0x20000\ns_mov_b32 s52, s56")
                e(f"s_cmp_lt_u32 s56, 256\ns_cbranch_scc1 {L('pfgo')}")
                e(f"s_mov_b32 s60, s{P_W1}\ns_mov_b32 s61, s{P_W1+1}\ns_mov_b32 s62, {D*DFF*2}\ns_mov_b32 s63, 0x20000\ns_sub_u32 s52, s56, 256")
                e(f"s_cmp_lt_u32 s56, 1152\ns_cbranch_scc1 {L('pfgo')}")
                e(f"s_mov_b32 s60, s{P_W2}\ns_mov_b32 s61, s{P_W2+1}\ns_mov_b32 s62, {D*DFF*2}\ns_mov_b32 s63, 0x20000\ns_sub_u32 s52, s56, 1152")
                e(f"{L('pfgo')}:")
                e(f"s_lshl_b32 s52, s52, 13\nv_lshlrev_b32 v{T}, 7, v2\nbuffer_load_dword v{PFD}, v{T}, s[60:63], s52 offen")
                if "mrwo" in OPT:
                    e(f"s_bitcmp1_b32 s56, 0\ns_cbranch_scc1 {L('nowm')}")
                    e(f"s_load_dwordx2 s[60:61], s[0:1], {KA_WMOD}\ns_lshr_b32 s52, s56, 1\ns_mul_i32 s52, s52, 12288\ns_add_u32 s52, s52, 4096\ns_waitcnt lgkmcnt(0)")
                    e(f"s_mov_b32 s62, {1024*6144*2}\ns_mov_b32 s63, 0x20000\nbuffer_load_dword v{PFD}, v{T}, s[60:63], s52 offen")
                    e(f"{L('nowm')}:")
                k.code_touch("a", k.lab("att_cont"), k.lab("f1_l"), 24, 8, 1)
            if not flg:
                e(f"s_branch {L('cont')}")
                e(f"{L('nodma')}:")
                e("s_waitcnt vmcnt(0)\ns_barrier")
            e(f"{L('cont')}:")
        kr = kread(AN0, AN1, (t + 2) % 4) if t >= 2 else kread(AK0, AK1, t + 2)
        vr = vread(t)
        m = []; p = []; E = []; C = []
        for qb in range(2):
            cur = SS[par][qb]; nxt = SS[1 - par][qb]; pc = PP[par][qb]; pp = PP[1 - par][qb]
            m.append(qk(qb, nxt, v(NEG + 16 * qb, 16))); p.append(pv(qb, pp))
            E.append([f"v_exp_f32 v{cur+r}, v{cur+r}" for r in range(16)])
            C.append([f"v_cvt_pk_bf16_f32 v{pc+r}, v{cur+2*r}, v{cur+2*r+1}" for r in range(8)])
        E0, E1 = E; C0, C1 = C
        seq = ["s_waitcnt lgkmcnt(4)",
               m[0][0], E0[0], E0[1], E0[2], E0[3],
               m[1][0], E0[4], E0[5], C0[0], C0[1], E0[6],
               m[0][1], E0[7], C0[2], E0[8], E0[9], C0[3],
               m[1][1], kr[0], kr[1], E0[10], E0[11], E0[12], E0[13], "s_waitcnt lgkmcnt(2)",
               p[0][0], C0[4], C0[5], E0[14], E0[15], C0[6], C0[7],
               p[0][1], E1[0], E1[1],
               p[1][0], E1[2], E1[3], C1[0], C1[1], E1[4],
               p[1][1], E1[5], E1[6],
               p[0][2], E1[7], C1[2], E1[8], E1[9], C1[3],
               p[0][3], E1[10], E1[11],
               p[1][2], vr[0], vr[1], vr[2], vr[3], E1[12], E1[13], C1[4], C1[5], E1[14],
               p[1][3], E1[15], C1[6], C1[7]]
        if smf:
            out_ = []
            for x_ in seq:
                if "16x16x32" in x_:
                    qb_ = 0 if x_ in p[0] else 1
                    if x_ == p[qb_][1]: continue
                    out_.append(f"v_smfmac_f32_16x16x64_bf16 {v(LS+4*qb_,4)}, {v(SEL,4)}, {v(PP[1-par][qb_],8)}, v{SIX}")
                else: out_.append(x_)
            seq = out_
        if flg and t == 1:
            i_ = seq.index(m[0][0])
            seq = seq[:i_ + 1] + ["s_waitcnt vmcnt(0)", f"v_mov_b32 v{PVV}, s59", f"ds_write_b32 v{PAO}, v{PVV}"] + seq[i_ + 1:]
            seq[seq.index("s_waitcnt lgkmcnt(2)")] = "s_waitcnt lgkmcnt(3)"
            i_ = seq.index(vr[0])
            seq = seq[:i_] + [f"ds_read_b128 {v(PG,4)}, v{PAG}"] + seq[i_:]
        if flg and t == 2: seq = seq[1:]
        for l in seq: e(l)
        if t == 3 and flg: e("s_add_u32 s59, s59, 1")
        if t == 3:
            e(f"v_sub_u32 v{T}, v{AN0}, v{AK0}\nv_add_u32 v{AV}, v{AV}, v{T}\nv_mov_b32 v{AK0}, v{AN0}\nv_mov_b32 v{AK1}, v{AN1}")
            e(f"s_add_u32 s47, s47, 1\ns_cmp_eq_u32 s47, {NSL}\ns_cselect_b32 s51, s49, s48\ns_cselect_b32 s47, 0, s47")
            e(f"v_add_u32 v{AN0}, s51, v{AN0}\nv_add_u32 v{AN1}, s51, v{AN1}")
    e(f"s_sub_u32 s44, s44, 1\ns_cmp_lg_u32 s44, 0\ns_cbranch_scc1 {L('floop')}")
    e("s_waitcnt lgkmcnt(0)")
    for qb in range(2):
        if smf:
            pl = pv(qb, PP[1][qb])
            e(pl[0]); e(pl[2]); e(f"v_smfmac_f32_16x16x64_bf16 {v(LS+4*qb,4)}, {v(SEL,4)}, {v(PP[1][qb],8)}, v{SIX}")
        else:
            for l in pv(qb, PP[1][qb]): e(l)
    if smf: e(f"v_add_f32 v{LS}, v{LS}, v{LS+2}\nv_add_f32 v{LS+4}, v{LS+4}, v{LS+6}")
    if "prio1" in OPT or "prio0" in OPT: e("s_setprio 0")
    k.st(4)
    def merge(safe, M=None):
        e("s_barrier")
        e(f"s_cmp_eq_u32 s{KH}, 0\ns_cbranch_scc1 {L('keep0' + safe)}")
        for r in range(16): e(f"v_swap_b32 v{O+r}, v{O+16+r}")
        e(f"v_swap_b32 v{LS}, v{LS+4}")
        if M is not None: e(f"v_swap_b32 v{M}, v{M+1}")
        e(f"{L('keep0' + safe)}:")
        e(f"s_mul_i32 s52, s24, {5*1024+256}\nv_lshlrev_b32 v{T}, 4, v2\nv_add_u32 v{T}, s52, v{T}")
        for g in range(4): e(f"ds_write_b128 v{T}, {v(O+16+4*g,4)} offset:{g*1024}")
        e(f"v_lshlrev_b32 v{T+1}, 2, v2\nv_add_u32 v{T+1}, s52, v{T+1}")
        e(f"ds_write_b32 v{T+1}, v{LS+4} offset:4096")
        if M is not None: e(f"ds_write_b32 v{T+1}, v{M+1} offset:{4096+256}")
        e("s_waitcnt lgkmcnt(0)\ns_barrier")
        e(f"s_xor_b32 s52, s24, 4\ns_mul_i32 s52, s52, {5*1024+256}\nv_lshlrev_b32 v{T}, 4, v2\nv_add_u32 v{T}, s52, v{T}")
        for g in range(4): e(f"ds_read_b128 {v(O+16+4*g,4)}, v{T} offset:{g*1024}")
        e(f"v_lshlrev_b32 v{T+1}, 2, v2\nv_add_u32 v{T+1}, s52, v{T+1}")
        e(f"ds_read_b32 v{LS+4}, v{T+1} offset:4096")
        if M is not None: e(f"ds_read_b32 v{M+1}, v{T+1} offset:{4096+256}")
        e("s_waitcnt lgkmcnt(0)")
        if M is None:
            for r in range(16): e(f"v_add_f32 v{O+r}, v{O+r}, v{O+16+r}")
            e(f"v_add_f32 v{LS}, v{LS}, v{LS+4}")
        else:
            e(f"v_max_f32 v{T}, v{M}, v{M+1}\nv_sub_f32 v{T+1}, v{M}, v{T}\nv_sub_f32 v{T+2}, v{M+1}, v{T}\nv_exp_f32 v{T+1}, v{T+1}\nv_exp_f32 v{T+2}, v{T+2}")
            for r in range(16): e(f"v_mul_f32 v{O+r}, v{O+r}, v{T+1}\nv_fmac_f32 v{O+r}, v{O+16+r}, v{T+2}")
            e(f"v_mul_f32 v{LS}, v{LS}, v{T+1}\nv_fmac_f32 v{LS}, v{LS+4}, v{T+2}")
        e(f"v_rcp_f32 v{T}, v{LS}")
        for r in range(16): e(f"v_mul_f32 v{O+r}, v{O+r}, v{T}")
    XE = 98304 if old4 else 98432
    e(f"v_add_f32 v{T+2}, abs(v{O}), abs(v{O+1})\nv_add_f32 v{T+3}, abs(v{O+16}), abs(v{O+17})")
    for r in range(2, 16): e(f"v_add_f32 v{T+2}, v{T+2}, abs(v{O+r})\nv_add_f32 v{T+3}, v{T+3}, abs(v{O+16+r})")
    e(f"v_add_f32 v{T+2}, v{T+2}, v{T+3}\nv_mov_b32 v{T+1}, {f32(2.0**126)}\nv_cmp_nlt_f32 vcc, v{T+2}, v{T+1}\ns_mov_b64 s[46:47], vcc")
    e(f"v_add_f32 v{T+2}, v{LS}, v{LS+4}\nv_mov_b32 v{T+1}, {f32(2.0**119)}\nv_cmp_nlt_f32 vcc, v{T+2}, v{T+1}\ns_or_b64 s[46:47], s[46:47], vcc")
    e(f"s_cmp_eq_u64 s[46:47], 0\ns_cbranch_scc1 {L('okwave')}")
    e(f"v_mov_b32 v{T+1}, {FLAG}\nv_mov_b32 v{T+2}, 1\nds_write_b32 v{T+1}, v{T+2}")
    e(f"{L('okwave')}:")
    e(f"s_mul_i32 s52, s24, 4352\ns_add_u32 s52, s52, {XE}\nv_lshlrev_b32 v{T}, 4, v2\nv_add_u32 v{T}, s52, v{T}\nv_lshlrev_b32 v{T+1}, 2, v2\nv_add_u32 v{T+1}, s52, v{T+1}")
    e(f"s_cmp_eq_u32 s{KH}, 0\ns_cbranch_scc1 {L('snd0')}")
    for g in range(4): e(f"ds_write_b128 v{T}, {v(O+4*g,4)} offset:{g*1024}")
    e(f"ds_write_b32 v{T+1}, v{LS} offset:4096\ns_branch {L('snd1')}")
    e(f"{L('snd0')}:")
    for g in range(4): e(f"ds_write_b128 v{T}, {v(O+16+4*g,4)} offset:{g*1024}")
    e(f"ds_write_b32 v{T+1}, v{LS+4} offset:4096")
    e(f"{L('snd1')}:")
    e(f"s_xor_b32 s52, s24, 4\ns_mul_i32 s52, s52, 4352\ns_add_u32 s52, s52, {XE}\nv_lshlrev_b32 v{T}, 4, v2\nv_add_u32 v{T}, s52, v{T}\nv_lshlrev_b32 v{T+1}, 2, v2\nv_add_u32 v{T+1}, s52, v{T+1}")
    e(f"v_mov_b32 v{T+3}, {FLAG}")
    e("s_waitcnt lgkmcnt(0)\ns_barrier")
    e(f"ds_read_b32 v{T+2}, v{T+3}")
    e(f"s_cmp_eq_u32 s{KH}, 0\ns_cbranch_scc1 {L('rcv0')}")
    for g in range(4): e(f"ds_read_b128 {v(O+4*g,4)}, v{T} offset:{g*1024}")
    e(f"ds_read_b32 v{LS}, v{T+1} offset:4096\ns_branch {L('rcv1')}")
    e(f"{L('rcv0')}:")
    for g in range(4): e(f"ds_read_b128 {v(O+16+4*g,4)}, v{T} offset:{g*1024}")
    e(f"ds_read_b32 v{LS+4}, v{T+1} offset:4096")
    e(f"{L('rcv1')}:")
    e(f"s_waitcnt lgkmcnt(5)\nv_readfirstlane_b32 s46, v{T+2}\ns_cmp_lg_u32 s46, 0\ns_cbranch_scc1 {L('safe')}")
    e("s_waitcnt lgkmcnt(0)")
    e(f"v_add_f32 v{LS}, v{LS}, v{LS+4}\nv_rcp_f32 v{T}, v{LS}")
    for r in range(0, 16, 2): e(f"v_pk_add_f32 {v(O+r,2)}, {v(O+r,2)}, {v(O+16+r,2)}")
    assert (T + 1) % 2 == 0
    e(f"v_mov_b32 v{T+1}, v{T}")
    for r in range(0, 16, 2): e(f"v_pk_mul_f32 {v(O+r,2)}, {v(O+r,2)}, {v(T+1,2)} op_sel_hi:[1,0]")
    e(f"{L('store')}:")
    if "statt" in OPT: k.st(12)
    P = PP[0][0]
    for r in range(8): e(f"v_cvt_pk_bf16_f32 v{P+r}, v{O+2*r}, v{O+2*r+1}")
    for b in (0, 4):
        e(f"v_permlane32_swap_b32 v{P+b}, v{P+b+2}\nv_permlane32_swap_b32 v{P+b+1}, v{P+b+3}")
    for r in range(4): e(f"v_permlane16_swap_b32 v{P+r}, v{P+4+r}")
    e(f"s_lshl_b32 s40, s{KH}, 5\ns_add_u32 s40, s40, s39")
    e(f"v_and_b32 v{T}, 15, v2\nv_add_u32 v{T}, s40, v{T}\nv_lshlrev_b32 v{T}, 11, v{T}")
    e(f"v_lshrrev_b32 v{T+1}, 4, v2\nv_and_b32 v{T+2}, 1, v{T+1}\nv_lshlrev_b32 v{T+2}, 5, v{T+2}\nv_lshrrev_b32 v{T+1}, 1, v{T+1}\nv_lshlrev_b32 v{T+1}, 4, v{T+1}")
    e(f"v_add_u32 v{T}, v{T}, v{T+1}\nv_add_u32 v{T}, v{T}, v{T+2}")
    e(f"s_lshl_b32 s40, s25, 6\ns_add_u32 s41, s40, {16*2048}")
    e(f"buffer_store_dwordx4 {v(P,4)}, v{T}, s[16:19], s40 offen{SCS}\nbuffer_store_dwordx4 {v(P+4,4)}, v{T}, s[16:19], s41 offen{SCS}")
    if "statt" in OPT: k.st(13)
    e(f"s_add_u32 s35, s26, {C_ATT}")
    k.signal("att", 8, 35, 32, (2, lambda: e((f"v_mov_b32 v6, {C_ATTALL*256}\nv_mov_b32 v7, 1\ns_mov_b64 exec, 1\nbuffer_atomic_add v7, v6, {s(CNT,4)}, 0 offen sc1\ns_mov_b64 exec, -1\n" if "alias" in OPT else "") + f"s_lshl_b32 s33, s26, 8\ns_lshl_b32 s34, s25, 2\ns_add_u32 s33, s33, s34\ns_add_u32 s33, s33, {FL['wo']}\nv_lshlrev_b32 v6, 7, v2\nv_add_u32 v6, s33, v6")))
    if "statt" in OPT: k.st(14, 7)
    e(f"s_cmp_ge_u32 s24, 4\ns_cbranch_scc1 {nxt_l}\ns_branch {nxt_c}")
    e(f"{L('safe')}:")
    e("s_waitcnt vmcnt(0) lgkmcnt(0)\ns_barrier")
    M = NEG; AL = NEG + 2
    SA = SS[0][0]; P0 = PP[0][0]
    zero_acc()
    if smf: dense_selector()
    e(f"v_mov_b32 v{M}, {f32(-3.0e38)}\nv_mov_b32 v{M+1}, {f32(-3.0e38)}")
    addr_setup()
    e("s_mov_b32 s42, 0")
    e(f"s_mov_b32 s44, {NST}")
    e(f"{L('sloop')}:")
    e("s_barrier")
    e("s_mov_b32 s53, 0")
    dma("s53")
    e("s_waitcnt vmcnt(0)\ns_barrier")
    for t in range(4):
        for l in kread(AK0, AK1, t) + vread(t): e(l)
        e("s_waitcnt lgkmcnt(0)")
        for qb in range(2):
            for l in qk(qb, SA, "0"): e(l)
            lane_max16(SA, T, T + 1)
            e(f"v_max_f32 v{T}, v{T}, v{M+qb}\nv_sub_f32 v{AL}, v{M+qb}, v{T}\nv_exp_f32 v{AL}, v{AL}\nv_mov_b32 v{M+qb}, v{T}")
            for r in range(16): e(f"v_sub_f32 v{SA+r}, v{SA+r}, v{T}\nv_exp_f32 v{SA+r}, v{SA+r}")
            for r in range(16): e(f"v_mul_f32 v{O+16*qb+r}, v{O+16*qb+r}, v{AL}")
            for r in range(4): e(f"v_mul_f32 v{LS+4*qb+r}, v{LS+4*qb+r}, v{AL}")
            for r in range(8): e(f"v_cvt_pk_bf16_f32 v{P0+r}, v{SA+2*r}, v{SA+2*r+1}")
            for l in pv(qb, P0): e(l)
    e(f"s_sub_u32 s44, s44, 1\ns_cmp_lg_u32 s44, 0\ns_cbranch_scc1 {L('sloop')}")
    merge("s", M)
    e("s_barrier")
    e(f"s_branch {L('store')}")


GL = 134144
DBG = 84

def g_final(k, tag):
    e = k.e; L = lambda n: k.lab("g_" + tag + n)
    e(f"v_mov_b32 v6, {L_SIG['g']}\nv_mov_b32 v7, 1\ns_mov_b64 exec, 1\nds_add_rtn_u32 v7, v6, v7\ns_waitcnt lgkmcnt(0)\nv_readfirstlane_b32 s36, v7\ns_mov_b64 exec, -1")
    e(f"s_cmp_lg_u32 s36, 4\ns_cbranch_scc1 {L('x')}")
    e(f"v_lshlrev_b32 v6, 2, v2\nv_add_u32 v7, {GL}, v6")
    for w in range(4): e(f"ds_read_b32 v{180+w}, v7 offset:{w*256}")
    e("s_waitcnt lgkmcnt(0)\nv_add_f32 v180, v180, v181\nv_add_f32 v182, v182, v183\nv_add_f32 v180, v180, v182")
    k.srd(56, P_WS, WS_MODP, 4 * 6144 * 4)
    e("s_and_b32 s36, s2, 3\ns_mul_i32 s36, s36, 24576\ns_lshr_b32 s37, s2, 2\ns_lshl_b32 s37, s37, 8\ns_add_u32 s36, s36, s37")
    e(f"buffer_store_dword v180, v6, s[56:59], s36 offen{SCS}\ns_waitcnt vmcnt(0)")
    e(f"v_mov_b32 v6, 0\nv_mov_b32 v7, 1\ns_mov_b64 exec, 1\nbuffer_atomic_add v7, v6, {s(DBG,4)}, 0 offen sc0 sc1\ns_waitcnt vmcnt(0)\nv_readfirstlane_b32 s36, v7")
    e(f"s_cmp_lg_u32 s36, 127\ns_cbranch_scc1 {L('y')}")
    e(f"v_mov_b32 v7, 1\nbuffer_store_dword v7, v6, {s(DBG,4)}, 0 offen offset:128 sc1")
    e(f"{L('y')}:\ns_mov_b64 exec, -1\n{L('x')}:")

def g_compute(k):
    e = k.e; L = lambda n: k.lab("g_" + n)
    e(f"s_cmp_ge_u32 s2, 128\ns_cbranch_scc1 {L('wait')}")
    e(f"s_load_dwordx4 s[36:39], s[0:1], {KA_C}")
    e("s_and_b32 s40, s2, 3\ns_lshr_b32 s41, s2, 2")
    e("v_lshrrev_b32 v6, 3, v0\nv_and_b32 v7, 7, v0\nv_mov_b32 v178, v7")
    e("s_lshl_b32 s42, s40, 8\nv_add_u32 v6, s42, v6\nv_lshlrev_b32 v4, 1, v6")
    e("v_mul_u32_u24 v5, 12288, v6\nv_lshlrev_b32 v6, 4, v7\nv_add_u32 v5, v5, v6\ns_lshl_b32 s42, s41, 7\nv_add_u32 v5, s42, v5")
    e("s_waitcnt lgkmcnt(0)")
    k.srd(56, 36, 0, 2048); k.srd(60, 38, 0, 1024 * 6144 * 2)
    for i in range(8): e(f"buffer_load_ushort v{128+i}, v4, s[56:59], 0 offen offset:{i*64}")
    for i in range(8): e(f"s_mov_b32 s42, {i*32*12288}\nbuffer_load_dwordx4 {v(136+4*i,4)}, v5, s[60:63], s42 offen")
    gemv_finish(k, 128, 136, 168, 176)
    e(f"s_lshl_b32 s42, s24, 8\nv_lshlrev_b32 v5, 5, v178\nv_add_u32 v5, s42, v5\nv_add_u32 v5, {GL}, v5")
    e("s_mov_b64 exec, 0xff\nds_write_b128 v5, v[168:171]\nds_write_b128 v5, v[172:175] offset:16\ns_waitcnt lgkmcnt(0)\ns_mov_b64 exec, -1")
    g_final(k, "c")
    e(f"{L('wait')}:")
    e(f"s_cmp_lg_u32 s24, 0\ns_cbranch_scc1 {L('go')}")
    e(f"v_mov_b32 v6, 0\ns_mov_b32 s33, 0\ns_mov_b64 exec, 1")
    e(f"{L('poll')}:\nbuffer_load_dword v7, v6, {s(DBG,4)}, 0 offen offset:128 sc1\ns_waitcnt vmcnt(0)\nv_readfirstlane_b32 s34, v7")
    e(f"s_cmp_eq_u32 s34, 1\ns_cbranch_scc1 {L('pollx')}\ns_add_u32 s33, s33, 1\ns_cmp_ge_u32 s33, {SPIN_MAX}\ns_cbranch_scc1 {L('pollx')}\ns_sleep {SLEEP}\ns_branch {L('poll')}")
    e(f"{L('pollx')}:\ns_mov_b64 exec, -1")
    e(f"{L('go')}:\ns_barrier")

def g_loader(k):
    e = k.e; L = lambda n: k.lab("gl_" + n)
    share = (-(-CNT_BYTES // 128) + 1023) // 1024 * 1024
    e(f"s_cmp_ge_u32 s2, 128\ns_cbranch_scc1 {L('x')}\ns_cmp_lg_u32 s24, 5\ns_cbranch_scc1 {L('x')}")
    e(f"s_mul_i32 s36, s2, {share}\nv_lshlrev_b32 v3, 4, v2\nv_mov_b32 v200, 0\nv_mov_b32 v201, 0\nv_mov_b32 v202, 0\nv_mov_b32 v203, 0")
    for i in range(share // 1024):
        e(f"buffer_store_dwordx4 v[200:203], v3, {s(CNT,4)}, s36 offen offset:{i*1024}{SCS}")
    e("s_waitcnt vmcnt(0)")
    g_final(k, "l")
    e(f"{L('x')}:")

def h_phase(k):
    e = k.e; L = lambda n: k.lab("h_" + n)
    HL = 125952
    e("s_lshl_b32 s36, s2, 3\ns_lshl_b32 s37, s24, 1\ns_add_u32 s36, s36, s37")
    e("s_lshl_b32 s36, s36, 11\nv_lshlrev_b32 v3, 4, v2\nv_add_u32 v3, s36, v3")
    k.srd(12, P_X, 0, S * D * 2); k.srd(16, P_WS, WS_H, S * D * 2)
    k.srd(20, P_WS, WS_MODP, 4 * 6144 * 4); k.srd(56, P_WS, WS_MODF, 6144 * 4)
    single = "single" in OPT
    def xloads():
        for r in range(2):
            for hf in range(2):
                e(f"buffer_load_dwordx4 {v(8+8*r+4*hf,4)}, v3, s[12:15], 0 offen offset:{r*2048+hf*1024}")
    if single:
        xloads()
        e("v_mov_b32 v179, v3")
        g_compute(k)
        e("v_mov_b32 v3, v179")
    e("v_lshlrev_b32 v5, 5, v0")
    for p in range(4):
        e(f"s_mov_b32 s37, {p*24576}")
        e(f"buffer_load_dwordx4 {v(64+8*p,4)}, v5, s[20:23], s37 offen{SC if single else ''}\nbuffer_load_dwordx4 {v(68+8*p,4)}, v5, s[20:23], s37 offen offset:16{SC if single else ''}")
    if not single: xloads()
    nt_ = k.code_touch("h", k.lab("qkv_c"), k.lab("wo_c"), 24, 4, 1)
    e(f"s_waitcnt vmcnt({(0 if single else 4)+nt_})")
    for j in range(8):
        e(f"v_add_f32 v{64+j}, v{64+j}, v{72+j}\nv_add_f32 v{80+j}, v{80+j}, v{88+j}\nv_add_f32 v{64+j}, v{64+j}, v{80+j}")
        round_bf16(e, 64 + j)
    e("v_cmp_le_u32 vcc, 128, v0")
    for j in range(8):
        e(f"v_add_f32 v72, 1.0, v{64+j}")
        round_bf16(e, 72)
        e(f"v_cndmask_b32 v{64+j}, v{64+j}, v72, vcc")
    e(f"v_add_u32 v5, {HL}, v5\nds_write_b128 v5, v[64:67]\nds_write_b128 v5, v[68:71] offset:16")
    e("s_waitcnt lgkmcnt(0)\ns_barrier")
    e(f"v_lshlrev_b32 v5, 5, v2\nv_add_u32 v5, {HL}, v5")
    for hf in range(2):
        for q in range(2):
            e(f"ds_read_b128 {v(32+8*hf+4*q,4)}, v5 offset:{hf*2048+q*16}")
            e(f"ds_read_b128 {v(48+8*hf+4*q,4)}, v5 offset:{4096+hf*2048+q*16}")
    e(f"s_waitcnt vmcnt({nt_})")
    X = 64
    for r in range(2):
        for j in range(8):
            src = 8 + 8 * r + j
            e(f"v_lshlrev_b32 v{X+16*r+2*j}, 16, v{src}\nv_and_b32 v{X+16*r+2*j+1}, 0xffff0000, v{src}")
    for r in range(2): e(f"v_add_f32 v{104+r}, v{X+16*r}, v{X+16*r+1}")
    for j in range(2, 16):
        for r in range(2): e(f"v_add_f32 v{104+r}, v{104+r}, v{X+16*r+j}")
    wave_sum(e, [104, 105], 106, [0, 1, 2, 3, 4, 5])
    for r in range(2): e(f"v_mul_f32 v{104+r}, {f32(1/1024)}, v{104+r}")
    for j in range(16):
        for r in range(2): e(f"v_sub_f32 v{X+16*r+j}, v{X+16*r+j}, v{104+r}")
    for r in range(2): e(f"v_mul_f32 v{107+r}, v{X+16*r}, v{X+16*r}")
    for j in range(1, 16):
        for r in range(2): e(f"v_fmac_f32 v{107+r}, v{X+16*r+j}, v{X+16*r+j}")
    wave_sum(e, [107, 108], 106, [0, 1, 2, 3, 4, 5])
    for r in range(2):
        e(f"v_mov_b32 v{109+r}, {f32(1e-5)}\nv_fmac_f32 v{109+r}, {f32(1/1024)}, v{107+r}\nv_rsq_f32 v{109+r}, v{109+r}")
    e("s_waitcnt lgkmcnt(0)")
    for r in range(2):
        for j in range(16):
            e(f"v_mul_f32 v{X+16*r+j}, v{X+16*r+j}, v{109+r}\nv_fma_f32 v{X+16*r+j}, v{X+16*r+j}, v{48+j}, v{32+j}")
        for j in range(8): e(f"v_cvt_pk_bf16_f32 v{112+8*r+j}, v{X+16*r+2*j}, v{X+16*r+2*j+1}")
        e(f"buffer_store_dwordx4 {v(112+8*r,4)}, v3, s[16:19], 0 offen offset:{r*2048}{SCS}")
        e(f"buffer_store_dwordx4 {v(116+8*r,4)}, v3, s[16:19], 0 offen offset:{r*2048+1024}{SCS}")
    e(f"s_lshr_b32 s35, s2, 4\ns_add_u32 s35, s35, {C_H}")
    def offs():
        e(f"s_lshr_b32 s33, s2, 4\ns_lshl_b32 s33, s33, 9\ns_and_b32 s34, s2, 15\ns_lshl_b32 s34, s34, 2\ns_add_u32 s33, s33, s34\ns_add_u32 s33, s33, {FL['qkv']}")
        e("v_lshlrev_b32 v6, 7, v2\nv_add_u32 v6, s33, v6")
    k.signal("h", 4, 35, 16, (4, offs))

def k_main():
    single = "single" in OPT
    k = PK(NAME + "_kernel" if single else "main_kernel", 256, 512, LDS_TOTAL + 16384, 256, 100); e = k.e
    L = k.lab
    e(f"s_cmp_ge_u32 s2, 256\ns_cbranch_scc1 {L('end')}")
    e(f"s_load_dwordx4 s[68:71], s[0:1], {KA_X}\ns_load_dwordx4 s[72:75], s[0:1], {KA_W1}\ns_load_dwordx2 s[76:77], s[0:1], {KA_WO}")
    e(f"s_load_dwordx2 s[78:79], s[0:1], {KA_OUT}\ns_load_dwordx2 s[66:67], s[0:1], {KA_WS}")
    if single: e(f"s_load_dwordx2 s[82:83], s[0:1], {KA_DBG}")
    e("v_lshrrev_b32 v1, 6, v0\nv_and_b32 v2, 63, v0\nv_readfirstlane_b32 s24, v1")
    e(f"s_cmp_lg_u32 s24, 0\ns_cbranch_scc1 {L('noinit')}")
    e(f"v_lshlrev_b32 v3, 2, v2\nv_add_u32 v3, {CTL}, v3\nv_mov_b32 v4, 0\nds_write_b32 v3, v4\ns_waitcnt lgkmcnt(0)")
    e(f"{L('noinit')}:")
    e("s_waitcnt lgkmcnt(0)")
    k.srd(CNT, P_WS, WS_CNT, CNT_BYTES)
    if single:
        k.srd(DBG, 82, 0, 256)
        e("s_barrier")
    k.st(0)
    e(f"s_cmp_ge_u32 s24, 4\ns_cbranch_scc1 {L('qkv_l')}")
    hin = "hsep" not in OPT
    if hin: h_phase(k)
    gemm_phase(k, "qkv", 1024, 1024, 3072, 192, WS_H, S * D * 2, P_WQKV, D * 3 * D * 2, "qkv", 8, 4, 3, L("att_c"), L("att_l"), (C_H, 16, "rb") if hin else None, (1, 2), hbar=hin)
    pf = [(P_WO, D * D * 2), (P_W1, D * DFF * 2), (P_W2, D * DFF * 2)] if "nopf" not in OPT else []
    attn_phase(k, L("wo_c"), L("wo_l"), pf)
    gemm_phase(k, "wo", 1024, 1024, 1024, 64, WS_O, S * D * 2, P_WO, D * D * 2, "wo", 4, 8, WO_NS, L("f1_c"), L("f1_l"), (C_ATT, 32, "rb2"), (5, 6))
    gemm_phase(k, "f1", 1024, 1024, DFF, 224, WS_XG, S * D * 2, P_W1, D * DFF * 2, "ffn1", 8, 4, 3, L("f2_c"), L("f2_l"), (C_WO, 16, "rb"), (7, 8))
    if "nos2" in OPT:
        gemm_phase(k, "f2", DFF, DFF, 1024, 64, WS_F1, S * DFF * 2, P_W2, DFF * D * 2, "ffn2", 4, 8, 4, L("fin"), L("end"), (C_F1, 16, "rb"), (9, 10))
    else:
        gemm_phase(k, "f2", DFF, DFF, 1024, 128, F1OFF(), S * DFF * 2, P_W2, DFF * D * 2, "ffn2s", 4, 8, 4, L("fin"), L("end"), (C_F1, 8, "rb"), (9, 10))
    e(f"{L('fin')}:")
    if DIAG:
        e("s_waitcnt vmcnt(0)")
        k.st(11)
        e(f"s_cmp_lg_u32 s24, 0\ns_cbranch_scc1 {L('end')}")
        k.srd(12, P_WS, WS_STAMP + 8 * 512 * 16, 256 * 64)
        e(f"v_lshlrev_b32 v3, 2, v2\nv_add_u32 v4, {L_STAMP}, v3\nds_read_b32 v5, v4\ns_lshl_b32 s32, s2, 6\nv_add_u32 v3, s32, v3\ns_waitcnt lgkmcnt(0)")
        e("s_mov_b64 exec, 0xffff\nbuffer_store_dword v5, v3, s[12:15], 0 offen")
    k.finish()
    return k

def k_mod2():
    NG = 384 if "modall" in OPT else 128
    k = Kern("mod_kernel", NG + 128, 256, 1024, 64); e = k.e
    k.exit_extra()
    e("s_load_dwordx4 s[4:7], s[0:1], %d" % KA_C)
    k.ptr(8, KA_WS); k.ptr(10, KA_X)
    e(f"s_cmp_ge_u32 s2, {NG}\ns_cbranch_scc1 {k.lab('aux')}")
    e("s_and_b32 s24, s2, 3\ns_lshr_b32 s25, s2, 2")
    e("v_lshrrev_b32 v1, 3, v0\nv_and_b32 v2, 7, v0")
    e("s_lshl_b32 s26, s24, 8\nv_add_u32 v3, s26, v1")
    e("v_lshlrev_b32 v4, 1, v3")
    e("v_mul_u32_u24 v5, 12288, v3\nv_lshlrev_b32 v6, 4, v2\nv_add_u32 v5, v5, v6")
    e("s_lshl_b32 s27, s25, 7\nv_add_u32 v5, s27, v5")
    e("s_waitcnt lgkmcnt(0)")
    k.srd(12, 4, 0, 2048); k.srd(16, 6, 0, 1024 * 6144 * 2); k.srd(20, 8, WS_MODP, 4 * 6144 * 4)
    gemv_body(k, 8, 16, 48, 56, "s[12:15]", "s[16:19]", 32)
    k.stamp(2)
    e("v_lshrrev_b32 v9, 6, v0\nv_lshlrev_b32 v9, 8, v9\nv_lshlrev_b32 v10, 5, v2\nv_add_u32 v9, v9, v10")
    e("v_and_b32 v10, 63, v0\nv_cmp_gt_u32 vcc, 8, v10\ns_and_saveexec_b64 s[28:29], vcc")
    e("ds_write_b128 v9, v[48:51]\nds_write_b128 v9, v[52:55] offset:16")
    e("s_mov_b64 exec, s[28:29]")
    e("s_waitcnt lgkmcnt(0)\ns_barrier")
    e("v_cmp_gt_u32 vcc, 64, v0\ns_and_saveexec_b64 s[28:29], vcc")
    e(f"s_cbranch_execz {k.lab('end')}")
    e("v_lshlrev_b32 v9, 2, v0")
    for w in range(4): e(f"ds_read_b32 v{12+w}, v9 offset:{w*256}")
    e("s_waitcnt lgkmcnt(0)")
    e("v_add_f32 v12, v12, v13\nv_add_f32 v14, v14, v15\nv_add_f32 v12, v12, v14")
    e("s_mul_i32 s26, s24, 24576\ns_lshl_b32 s27, s25, 8\ns_add_u32 s26, s26, s27")
    e("buffer_store_dword v12, v9, s[20:23], s26 offen")
    k.stamp_flush(0, 56)
    e("s_endpgm")
    e(f"{k.lab('aux')}:")
    e(f"s_waitcnt lgkmcnt(0)\ns_sub_u32 s24, s2, {NG}")
    k.srd(12, 10, 0, S * D * 2)
    e("s_lshl_b32 s25, s24, 15\nv_lshlrev_b32 v1, 7, v0\nbuffer_load_dword v2, v1, s[12:15], s25 offen")
    e(f"s_add_u32 s16, s8, {WS_CNT:#x}\ns_addc_u32 s17, s9, 0\ns_mov_b32 s18, {CNT_BYTES}\ns_mov_b32 s19, 0x20000")
    e("s_lshl_b32 s25, s24, 12\nv_lshlrev_b32 v3, 4, v0\nv_mov_b32 v4, 0\nv_mov_b32 v5, 0\nv_mov_b32 v6, 0\nv_mov_b32 v7, 0\nbuffer_store_dwordx4 v[4:7], v3, s[16:19], s25 offen")
    assert CNT_BYTES <= 128 * 4096
    if gen.DIAG:
        k.stamp(1); k.stamp(2)
        k.a.lines.append("  s_nop 0")
    k.finish()
    return k

def gemv_body(k, CV, WV, AC, TMP, srd_c, srd_w, ssoff):
    e = k.e
    for i in range(8): e(f"buffer_load_ushort v{CV+i}, v4, {srd_c}, 0 offen offset:{i*64}")
    for i in range(8): e(f"s_mov_b32 s{ssoff+i}, {i*32*12288}")
    for i in range(8): e(f"buffer_load_dwordx4 {v(WV+4*i,4)}, v5, {srd_w}, s{ssoff+i} offen")
    gemv_finish(k, CV, WV, AC, TMP)

def gemv_finish(k, CV, WV, AC, TMP):
    e = k.e
    for j in range(8): e(f"v_mov_b32 v{AC+j}, 0")
    e("s_waitcnt vmcnt(8)")
    k.stamp(1) if not isinstance(k, PK) else None
    for i in range(8):
        x = CV + i
        e(f"v_lshlrev_b32 v{x}, 16, v{x}")
        e(f"v_mul_f32 v{TMP}, {f32(-LOG2E)}, v{x}\nv_exp_f32 v{TMP}, v{TMP}\nv_add_f32 v{TMP}, 1.0, v{TMP}\nv_rcp_f32 v{TMP}, v{TMP}\nv_mul_f32 v{x}, v{x}, v{TMP}")
        round_bf16(e, x)
    for i in range(8):
        e(f"s_waitcnt vmcnt({7-i})")
        for j in range(4):
            w = WV + 4 * i + j
            e(f"v_lshlrev_b32 v{TMP}, 16, v{w}\nv_and_b32 v{TMP+1}, 0xffff0000, v{w}")
            e(f"v_fmac_f32 v{AC+2*j}, v{CV+i}, v{TMP}\nv_fmac_f32 v{AC+2*j+1}, v{CV+i}, v{TMP+1}")
    wave_sum(e, list(range(AC, AC + 8)), TMP, [3, 4, 5])

def k_probe(idx, mult):
    k = Kern("probe_kernel", 1, 64, 0, 64); e = k.e
    e("s_cmp_ge_u32 s2, 1\ns_cbranch_scc1 probe_kernel_end")
    k.ptr(8, KA_WS); k.ptr(10, KA_DBG)
    e("s_waitcnt lgkmcnt(0)")
    k.srd(12, 8, WS_STAMP, 16 * 512 * 16); k.srd(20, 10, 0, 256)
    e("v_lshlrev_b32 v1, 4, v0\nv_lshlrev_b32 v2, 6, v0")
    for c in range(6): e(f"s_mov_b32 s24, {(c%2)*64*16}\nbuffer_load_dword v{8+c}, v1, s[12:15], s24 offen")
    for c in range(4): e(f"s_mov_b32 s24, {8*512*16 + c*64*64 + idx*4}\nbuffer_load_dword v{16+c}, v2, s[12:15], s24 offen")
    e("s_waitcnt vmcnt(0)")
    for c in range(1, 6): e(f"v_min_u32 v8, v8, v{8+c}")
    for c in range(1, 4): e(f"v_max_u32 v16, v16, v{16+c}")
    def red(r, op):
        for b in range(4): e(f"{op}_dpp v{r}, v{r}, v{r} row_ror:{1<<b} row_mask:0xf bank_mask:0xf")
        for w in (16, 32):
            e(f"v_mov_b32 v40, v{r}\nv_permlane{w}_swap_b32 v40, v{r}\n{op} v{r}, v{r}, v40")
    red(8, "v_min_u32"); red(16, "v_max_u32")
    e("v_sub_u32 v16, v16, v8\nv_mov_b32 v13, 0\nbuffer_store_dword v16, v13, s[20:23], 0 offen\nv_readfirstlane_b32 s30, v16")
    e(f"s_mul_i32 s30, s30, {mult}\ns_min_u32 s30, s30, 100000")
    e("s_memrealtime s[32:33]\ns_waitcnt lgkmcnt(0)")
    e("probe_spin:\ns_memrealtime s[34:35]\ns_waitcnt lgkmcnt(0)\ns_sub_u32 s36, s34, s32\ns_cmp_lt_u32 s36, s30\ns_cbranch_scc1 probe_spin")
    k.finish()
    return k

PROBE = None
def build():
    if "single" in OPT: return [k_main()]
    if PROBE is not None: return [k_mod2(), k_main(), k_probe(*PROBE)]
    if "hsep" in OPT: return [k_mod2(), gen.k_h(True), k_main()]
    return [k_mod2(), k_main()]

if __name__ == "__main__":
    for a_ in list(sys.argv):
        if a_.startswith("--opt="): OPT = set(a_[6:].split(",")); sys.argv.remove(a_)
        if a_.startswith("--pfstage="): PFSTAGE = int(a_[10:]); sys.argv.remove(a_)
        if a_.startswith("--scs="): SCS = " " + a_[6:].replace("+", " "); sys.argv.remove(a_)
        if a_.startswith("--l2d="): L2D = int(a_[6:]); sys.argv.remove(a_)
        if a_.startswith("--probe="): PROBE = tuple(int(x) for x in a_[8:].split(",")); sys.argv.remove(a_)
        if a_.startswith("--mrstep="): MRSTEP = int(a_[9:]); sys.argv.remove(a_)
        if a_.startswith("--align="):
            for kv in a_[8:].split(","):
                k_, v_ = kv.split(":"); ALIGN[k_] = None if v_ == "n" else int(v_)
            sys.argv.remove(a_)
        if a_.startswith("--pipe="): PIPE, PGAP = [int(x) for x in a_[7:].split(",")]; sys.argv.remove(a_)
        if a_.startswith("--wons="): WO_NS = int(a_[7:]); sys.argv.remove(a_)
        if a_.startswith("--sleep="): SLEEP = int(a_[8:]); sys.argv.remove(a_)
    if "--diag" in sys.argv: DIAG = True; gen.DIAG = True; sys.argv.remove("--diag")
    txt = emit(build(), header())
    if "single" in OPT and "aslist" not in OPT:
        txt = txt.replace(f"; @launch kernel={NAME}_kernel grid=", "; @launch grid=")
    out = sys.argv[1]
    open(out, "w").write(txt)
    print("wrote", out, len(txt), "bytes")
```

```python
import sys
from asmlib import *
import gen
from gen import (NAME, S, D, DFF, H, KA_X, KA_WQKV, KA_WO, KA_BX, KA_W1, KA_W2, KA_C, KA_WMOD, KA_OUT, KA_DBG, KA_WS,
                 WS_MODP, WS_MODF, WS_H, WS_QKV, WS_O, WS_X1, WS_F1, WS_XG, WS_STAT, WS_UB, WS_STAMP, LOG2E, f32, Kern,
                 wave_sum, round_bf16, interleave, header, emit)

WS_F1A = WS_H
WS_CNT = 0x2f00000
C_QKV, C_ATT, C_WO, C_UB, C_F1, C_H = 0, 16, 24, 40, 56, 72
C_MR, C_MRALL, C_ATTALL = 88, 152, 153
NCNT = 160
FL_BASE = NCNT * 256 + 1536
FL_BASE = (FL_BASE + 255) // 256 * 256
FL = {"qkv": FL_BASE, "att": FL_BASE + 256 * 128, "wo": FL_BASE + 256 * 128 + 256 * 256, "f1": FL_BASE + 256 * 256 + 2 * 256 * 128, "f2": FL_BASE + 256 * 256 + 3 * 256 * 128}
FL["xch"] = FL_BASE + 256 * 256 + 4 * 256 * 128
FL["mr"] = FL["xch"] + 256 * 128
FL["f1b"] = FL["mr"] + 8 * 128
CNT_BYTES = FL["f1b"] + 64 * 128
WS_XCH = 0x3800000
OPT = set()
DIAG = False
SC = " sc1"
SCS = " sc1"
P_WS, P_X, P_WQKV, P_W1, P_W2, P_WO, P_OUT = 66, 68, 70, 72, 74, 76, 78
CNT = 28
CTL = 138240
L_SIG = {"qkv": CTL, "att": CTL + 4, "wo": CTL + 8, "ub": CTL + 12, "f1": CTL + 16, "h": CTL + 20, "mr": CTL + 24, "g": CTL + 28, "wo2": CTL + 44 + 116}
L_DEP = {"wo": CTL + 32, "f1": CTL + 36, "f2": CTL + 40, "qkv": CTL + 44}
L_STAMP = CTL + 64
LDS_TOTAL = CTL + 256
SPIN_MAX = 400000
SLEEP = 2
PIPE = 1
PGAP = 2
ALIGN = {}
PFSTAGE = 7
L2D = 8
WO_NS = 5
LTD = 2
MRSTEP = 9

def exec_mask(n):
    if n < 32: return f"s_mov_b64 exec, {(1 << n) - 1:#x}"
    return f"s_mov_b32 exec_lo, -1\ns_mov_b32 exec_hi, {(1 << (n - 32)) - 1:#x}"

def align(k, name):
    a = ALIGN.get(name, ALIGN.get("all", 0))
    if a is None: return
    k.a.lines.append(".p2align 6")
    for _ in range(a): k.e("s_nop 0")

class PK(Kern):
    def st(self, i, wave=0):
        if not DIAG: return
        e = self.e; n = self.lab(f"st{i}")
        e(f"s_cmp_lg_u32 s24, {wave}\ns_cbranch_scc1 {n}\n{'s_memtime' if 'cyc' in OPT else 's_memrealtime'} s[98:99]\ns_waitcnt lgkmcnt(0)\nv_mov_b32 v254, s98\nv_mov_b32 v255, {L_STAMP+4*i}\nds_write_b32 v255, v254\ns_waitcnt lgkmcnt(0)\n{n}:")
    def code_touch(self, tag, frm, to, part_sreg, nparts, per):
        if "code" not in OPT: return 0
        e = self.e; here = self.lab("pc" + tag)
        e(f"s_getpc_b64 s[90:91]\n{here}:\ns_add_u32 s90, s90, {frm}-{here}\ns_addc_u32 s91, s91, 0")
        e(f"s_mul_i32 s92, s{part_sreg}, {per*8192}\nv_lshlrev_b32 v252, 7, v2\nv_add_u32 v252, s92, v252")
        for i in range(per):
            if i: e("v_add_u32 v252, 8192, v252")
            e(f"v_min_u32 v251, {to}-{frm}-4, v252\nglobal_load_dword v253, v251, s[90:91]")
        return per
    def poll(self, tag, cnt_sreg, target, lanes=1):
        e = self.e; L = self.lab
        if cnt_sreg is not None: e(f"s_lshl_b32 s32, s{cnt_sreg}, 8\nv_mov_b32 v6, s32")
        e(f"s_mov_b32 s33, 0\ns_mov_b64 exec, {(1 << lanes) - 1}")
        e(f"{L('poll'+tag)}:")
        e(f"buffer_load_dword v7, v6, {s(CNT,4)}, 0 offen offset:{0 if 'direct' in OPT else 128} sc1\ns_waitcnt vmcnt(0)")
        e(f"v_cmp_gt_u32 vcc, {target}, v7\ns_cmp_eq_u64 vcc, 0\ns_cbranch_scc1 {L('pollx'+tag)}")
        e(f"s_add_u32 s33, s33, 1\ns_cmp_ge_u32 s33, {SPIN_MAX}\ns_cbranch_scc1 {L('pollx'+tag)}")
        e(f"s_sleep {SLEEP}\ns_branch {L('poll'+tag)}")
        e(f"{L('pollx'+tag)}:\ns_mov_b64 exec, -1")
    def dep_wait_loaders(self, tag, cnt_sreg, target, first_wave_cond):
        e = self.e; L = self.lab
        e(f"s_cmp_lg_u32 s24, 4\ns_cbranch_scc1 {L('dw'+tag)}")
        if "noflags" in OPT: self.poll(tag, cnt_sreg, target)
        else:
            if tag == "f2" and "nos2" not in OPT:
                e(f"s_lshl_b32 s34, s25, 1\ns_add_u32 s34, s34, s27\ns_lshl_b32 s34, s34, 7\ns_add_u32 s34, s34, {FL[tag]}")
            elif tag == "f2":
                e(f"s_lshl_b32 s34, s25, 4\ns_add_u32 s34, s34, s26\ns_lshl_b32 s34, s34, 7\ns_add_u32 s34, s34, {FL[tag]}")
            elif tag == "wo":
                e(f"s_lshr_b32 s34, s25, 1\ns_lshl_b32 s34, s34, 1\ns_lshr_b32 s33, s26, 3\ns_add_u32 s34, s34, s33\ns_lshl_b32 s34, s34, 7\ns_add_u32 s34, s34, {FL[tag]}")
            else:
                e(f"s_lshl_b32 s34, s25, 2\ns_lshr_b32 s33, s26, 2\ns_add_u32 s34, s34, s33\ns_lshl_b32 s34, s34, 7\ns_add_u32 s34, s34, {FL[tag]}")
            self.wait_flags(tag, target, 34)
        e(f"v_mov_b32 v6, {L_DEP[tag]}\nv_mov_b32 v7, 1\nds_write_b32 v6, v7\ns_waitcnt lgkmcnt(0)\ns_branch {L('dwx'+tag)}")
        e(f"{L('dw'+tag)}:")
        e(f"v_mov_b32 v6, {L_DEP[tag]}\ns_mov_b32 s33, 0")
        e(f"{L('dwl'+tag)}:")
        e(f"ds_read_b32 v7, v6\ns_waitcnt lgkmcnt(0)\nv_readfirstlane_b32 s34, v7")
        e(f"s_cmp_lg_u32 s34, 0\ns_cbranch_scc1 {L('dwx'+tag)}")
        e(f"s_add_u32 s33, s33, 1\ns_cmp_ge_u32 s33, {SPIN_MAX*4}\ns_cbranch_scc1 {L('dwx'+tag)}")
        e(f"s_sleep 1\ns_branch {L('dwl'+tag)}")
        e(f"{L('dwx'+tag)}:")
    def arrive(self, tag, cnt_sreg, target):
        e = self.e; L = self.lab
        e(f"s_lshl_b32 s33, s{cnt_sreg}, 8\nv_mov_b32 v6, s33\nv_mov_b32 v7, 1")
        if "direct" in OPT:
            e(f"buffer_atomic_add v7, v6, {s(CNT,4)}, 0 offen sc1")
            return
        e(f"buffer_atomic_add v7, v6, {s(CNT,4)}, 0 offen sc0 sc1\ns_waitcnt vmcnt(0)\nv_readfirstlane_b32 s33, v7")
        e(f"s_cmp_lg_u32 s33, {target-1}\ns_cbranch_scc1 {L('arr'+tag)}")
        e(f"v_mov_b32 v7, {target}\nbuffer_store_dword v7, v6, {s(CNT,4)}, 0 offen offset:128 sc1")
        e(f"{L('arr'+tag)}:")
    def signal(self, tag, nwaves, cnt_sreg, target, flags=None, younger=0):
        e = self.e; L = self.lab
        e(f"s_waitcnt vmcnt({younger})")
        e(f"v_mov_b32 v6, {L_SIG[tag]}\nv_mov_b32 v7, 1\ns_mov_b64 exec, 1")
        e("ds_add_rtn_u32 v7, v6, v7\ns_waitcnt lgkmcnt(0)\nv_readfirstlane_b32 s32, v7\ns_mov_b64 exec, -1")
        e(f"s_cmp_lg_u32 s32, {nwaves-1}\ns_cbranch_scc1 {L('sig'+tag)}")
        if flags is not None and "noflags" not in OPT:
            n, offs = flags
            offs()
            e("v_mov_b32 v7, 1\n" + exec_mask(n))
            e(f"buffer_store_dword v7, v6, {s(CNT,4)}, 0 offen sc1")
        else:
            e("s_mov_b64 exec, 1")
            self.arrive(tag, cnt_sreg, target)
        e(f"{L('sig'+tag)}:\ns_mov_b64 exec, -1")
    def wait_flags(self, tag, n, base_sreg):
        e = self.e; L = self.lab
        e(f"v_lshlrev_b32 v6, 2, v2\nv_add_u32 v6, s{base_sreg}, v6\ns_mov_b32 s33, 0")
        e(exec_mask(n))
        if PIPE <= 1:
            e(f"{L('poll'+tag)}:")
            e(f"buffer_load_dword v7, v6, {s(CNT,4)}, 0 offen sc1\ns_waitcnt vmcnt(0)")
            e(f"v_cmp_ne_u32 vcc, 1, v7\ns_cmp_eq_u64 vcc, 0\ns_cbranch_scc1 {L('pollx'+tag)}")
            e(f"s_add_u32 s33, s33, 1\ns_cmp_ge_u32 s33, {SPIN_MAX}\ns_cbranch_scc1 {L('pollx'+tag)}")
            e(f"s_sleep {SLEEP}\ns_branch {L('poll'+tag)}")
        else:
            e("s_waitcnt vmcnt(0)")
            for i in range(PIPE):
                e(f"buffer_load_dword v{244+i}, v6, {s(CNT,4)}, 0 offen sc1")
                if i < PIPE - 1: e(f"s_sleep {PGAP}")
            e(f"{L('poll'+tag)}:")
            for i in range(PIPE):
                e(f"s_waitcnt vmcnt({PIPE-1})\nv_cmp_ne_u32 vcc, 1, v{244+i}\ns_cmp_eq_u64 vcc, 0\ns_cbranch_scc1 {L('pollx'+tag)}")
                e(f"buffer_load_dword v{244+i}, v6, {s(CNT,4)}, 0 offen sc1\ns_sleep {PGAP}")
            e(f"s_add_u32 s33, s33, 1\ns_cmp_lt_u32 s33, {SPIN_MAX}\ns_cbranch_scc1 {L('poll'+tag)}")
        e(f"{L('pollx'+tag)}:\ns_mov_b64 exec, -1")

def CHAIN(): return 'nochain' not in OPT and 'modall' not in OPT and 'mrwo' not in OPT

def F1OFF(): return WS_F1A if 'alias' in OPT else WS_F1

def tile_map(e, xr, xc):
    nxc = 16 // xc
    e(f"s_and_b32 s36, s2, 7\ns_lshr_b32 s37, s2, 3")
    e(f"s_and_b32 s38, s36, {nxc-1}\ns_lshr_b32 s39, s36, {nxc.bit_length()-1}")
    e(f"s_and_b32 s40, s37, {xc-1}\ns_lshr_b32 s41, s37, {xc.bit_length()-1}")
    e(f"s_mul_i32 s38, s38, {xc}\ns_add_u32 s26, s38, s40")
    e(f"s_mul_i32 s39, s39, {xr}\ns_add_u32 s25, s39, s41")

def tile_map_s2(e):
    e("s_and_b32 s36, s2, 7\ns_lshr_b32 s37, s2, 3\ns_and_b32 s27, s36, 1\ns_lshr_b32 s36, s36, 1")
    if "rot2" in OPT: e("s_add_u32 s26, s37, 1\ns_and_b32 s26, s26, 7\ns_lshr_b32 s37, s37, 3\ns_lshl_b32 s36, s36, 2\ns_add_u32 s25, s36, s37")
    else: e("s_and_b32 s26, s37, 7\ns_lshr_b32 s37, s37, 3\ns_lshl_b32 s36, s36, 2\ns_add_u32 s25, s36, s37")

def gemm_phase(k, tag, K, lda, ldb, BN, srcA, sizeA, pB, sizeB, epi, xr, xc, NS, nxt_c, nxt_l, dep=None, stamps=(None, None), hbar=False):
    e = k.e
    L = lambda n: k.lab(tag + "_" + n)
    BM, BK = 128, 64
    nA = BM * BK * 2 // 1024; nB = BN * BK * 2 // 1024
    nAw, nBw = nA // 4, nB // 4
    nld = nAw + nBw
    SB = (nA + nB) * 1024
    s2 = epi == "ffn2s"
    nk = K // BK // (2 if s2 else 1)
    TM, TN = 64, BN // 2
    mt, nt = TM // 16, TN // 16
    pitch = BN * 2; cpr = BN // 8
    hbits = {4: 2, 6: 1, 2: 1, 0: 3}[(pitch // 32) % 8]
    ACC = 8; NACC = 4 * mt * nt
    FA = ACC + NACC; NF = 4 * (mt + nt); FB = FA + NF
    AX = FB + NF; AW = AX + 2; EP = AW + nt
    XL = 135168
    assert SB * NS <= XL
    perm = epi == "qkv" and "perm" in OPT
    asc = SC if dep else ""
    e(f"{L('c')}:")
    if s2: tile_map_s2(e)
    else: tile_map(e, xr, xc)
    e("s_lshr_b32 s42, s24, 1\ns_and_b32 s43, s24, 1")
    e("v_and_b32 v3, 15, v2\nv_lshrrev_b32 v4, 4, v2")
    e(f"s_lshl_b32 s44, s25, 7\ns_lshl_b32 s45, s42, 6\ns_add_u32 s44, s44, s45")
    e(f"s_mul_i32 s46, s26, {BN}\ns_mul_i32 s45, s43, {TN}\ns_add_u32 s46, s46, s45")
    k.srd(20, P_WS, WS_MODF, 6144 * 4)
    if epi == "qkv": k.srd(12, P_WS, WS_QKV, 96 * S * 64)
    elif epi == "ffn1": k.srd(12, P_WS, F1OFF(), S * DFF * 2)
    elif epi == "wo": k.srd(12, P_WS, WS_X1, S * D * 2); k.srd(16, P_X, 0, S * D * 2)
    elif epi in ("ffn2", "ffn2s"): k.srd(12, P_OUT, 0, S * D * 2); k.srd(16, P_WS, WS_X1, S * D * 2)
    G = EP + 2 * mt * nt; GG = G + 4 * nt; W1R = GG + 4 * nt
    if s2:
        G = EP + 16
        e("s_lshl_b32 s47, s27, 5\ns_add_u32 s46, s46, s47")
        e("s_lshl_b32 s47, s25, 4\ns_lshl_b32 s48, s26, 1\ns_add_u32 s47, s47, s48\ns_add_u32 s47, s47, s43\ns_lshl_b32 s47, s47, 2\ns_lshl_b32 s48, s42, 1\ns_add_u32 s47, s47, s48\ns_add_u32 s47, s47, s27\ns_lshl_b32 s47, s47, 12")
        e("v_lshlrev_b32 v5, 4, v2")
        for j in range(mt):
            e(f"buffer_load_dwordx4 {v(EP+4*j,4)}, v5, s[16:19], s47 offen offset:{j*1024}{SC}")
        if not CHAIN(): k.srd(20, P_WS, WS_MODP, 4 * 6144 * 4)
        e(f"v_lshlrev_b32 v6, 4, v4\ns_lshl_b32 s47, s46, 2\ns_add_u32 s47, s47, {5*1024*4}")
        for p_ in range(1 if CHAIN() else 4):
            for i in range(2):
                e(f"buffer_load_dwordx4 {v(G+8*p_+4*i,4)}, v6, s[20:23], s47 offen offset:{i*64}{SC}")
            if p_ < 3 and not CHAIN(): e("s_add_u32 s47, s47, 24576")
    if epi == "wo" and "modall" not in OPT and "mrwo" in OPT:
        e(f"s_load_dwordx4 s[36:39], s[0:1], {KA_C}")
        e("s_and_b32 s58, s2, 3\ns_lshr_b32 s59, s2, 2\ns_add_u32 s59, s59, 32")
        e("v_lshrrev_b32 v6, 3, v0\nv_and_b32 v7, 7, v0\nv_mov_b32 v247, v7")
        e("s_lshl_b32 s47, s58, 8\nv_add_u32 v6, s47, v6\nv_lshlrev_b32 v248, 1, v6")
        e("v_mul_u32_u24 v5, 12288, v6\nv_lshlrev_b32 v6, 4, v7\nv_add_u32 v5, v5, v6\ns_lshl_b32 s47, s59, 7\nv_add_u32 v5, s47, v5")
        e("s_waitcnt lgkmcnt(0)")
        k.srd(52, 36, 0, 2048); k.srd(60, 38, 0, 1024 * 6144 * 2)
        for i in range(8): e(f"buffer_load_ushort v{176+i}, v248, s[52:55], 0 offen offset:{i*64}")
        for i in range(8):
            e(f"s_mov_b32 s47, {i*32*12288}\nbuffer_load_dwordx4 {v(184+4*i,4)}, v5, s[60:63], s47 offen")
        gemv_finish(k, 176, 184, 216, 224)
        MRL = 139264
        e(f"s_lshl_b32 s47, s24, 8\nv_lshlrev_b32 v5, 5, v247\nv_add_u32 v5, s47, v5\nv_add_u32 v5, {MRL}, v5")
        e("s_mov_b64 exec, 0xff\nds_write_b128 v5, v[216:219]\nds_write_b128 v5, v[220:223] offset:16\ns_waitcnt lgkmcnt(0)")
        e(f"v_mov_b32 v6, {L_SIG['mr']}\nv_mov_b32 v7, 1\ns_mov_b64 exec, 1\nds_add_rtn_u32 v7, v6, v7\ns_waitcnt lgkmcnt(0)\nv_readfirstlane_b32 s47, v7\ns_mov_b64 exec, -1")
        e(f"s_cmp_lg_u32 s47, 3\ns_cbranch_scc1 {L('mrx')}")
        e(f"v_lshlrev_b32 v5, 2, v2\nv_add_u32 v6, {MRL}, v5")
        for w_ in range(4): e(f"ds_read_b32 v{216+w_}, v6 offset:{w_*256}")
        e("s_waitcnt lgkmcnt(0)\nv_add_f32 v216, v216, v217\nv_add_f32 v218, v218, v219\nv_add_f32 v216, v216, v218")
        k.srd(52, P_WS, WS_MODP, 4 * 6144 * 4)
        e("s_mul_i32 s47, s58, 24576\ns_lshl_b32 s48, s59, 8\ns_add_u32 s47, s47, s48")
        e(f"buffer_store_dword v216, v5, s[52:55], s47 offen{SCS}\ns_waitcnt vmcnt(0)")
        e(f"v_mov_b32 v6, {C_MRALL*256}\nv_mov_b32 v7, 1\ns_mov_b64 exec, 1\nbuffer_atomic_add v7, v6, {s(CNT,4)}, 0 offen sc1\ns_mov_b64 exec, -1")
        e(f"{L('mrx')}:")
    if epi in ("wo", "ffn2"):
        if epi == "wo":
            e(f"v_add_u32 v5, s44, v3\nv_lshlrev_b32 v5, 11, v5\nv_lshlrev_b32 v6, 3, v4\nv_add_u32 v5, v5, v6")
            e(f"s_lshl_b32 s47, s46, 1\nv_add_u32 v5, s47, v5")
            for j in range(mt):
                e(f"s_mov_b32 s48, {j*16*2048}")
                for i in range(nt):
                    e(f"buffer_load_dwordx2 {v(EP+2*(j*nt+i),2)}, v5, s[16:19], s48 offen offset:{i*32}")
        else:
            e("s_lshl_b32 s47, s25, 4\ns_add_u32 s47, s47, s26\ns_lshl_b32 s47, s47, 2\ns_add_u32 s47, s47, s24\ns_lshl_b32 s47, s47, 12\nv_lshlrev_b32 v5, 4, v2")
            for j in range(mt):
                e(f"buffer_load_dwordx4 {v(EP+4*j,4)}, v5, s[16:19], s47 offen offset:{j*1024}{SC}")
        if epi == "ffn2":
            raise NotImplementedError
        if epi == "wo" and CHAIN():
            e(f"s_and_b32 s35, s2, 7\ns_lshl_b32 s35, s35, 7\ns_add_u32 s35, s35, {FL['mr']}")
            k.wait_flags("mr", 1, 35)
            e(f"v_lshlrev_b32 v6, 4, v4\ns_lshl_b32 s47, s46, 2\ns_add_u32 s47, s47, {2*1024*4}")
            for i in range(nt):
                e(f"buffer_load_dwordx4 {v(G+4*i,4)}, v6, s[20:23], s47 offen offset:{i*64}{SC}")
            e(f"s_lshl_b32 s47, s46, 2\ns_add_u32 s47, s47, {4096*4}")
            for i in range(nt):
                e(f"buffer_load_dwordx4 {v(GG+4*i,4)}, v6, s[20:23], s47 offen offset:{i*64}{SC}")
        if epi == "wo":
            if "ubold" in OPT:
                e("s_lshr_b32 s58, s2, 4\ns_and_b32 s59, s2, 15")
            else:
                e("s_lshr_b32 s60, s2, 3\ns_and_b32 s59, s2, 3\ns_lshl_b32 s59, s59, 2\ns_and_b32 s61, s60, 3\ns_add_u32 s59, s59, s61")
                e("s_bfe_u32 s58, s2, 0x10002\ns_lshl_b32 s58, s58, 3\ns_lshr_b32 s61, s60, 2\ns_add_u32 s58, s58, s61")
            e(f"v_mul_u32_u24 v5, {(65536+27)//28}, v2\nv_lshrrev_b32 v5, 16, v5\nv_mul_u32_u24 v6, 28, v5\nv_sub_u32 v6, v2, v6")
            e("s_lshl_b32 s60, s58, 6\ns_lshl_b32 s61, s24, 4\ns_add_u32 s60, s60, s61\nv_add_u32 v5, s60, v5")
            e(f"v_mul_u32_u24 v7, {DFF*2}, v5\nv_lshlrev_b32 v6, 4, v6\nv_add_u32 v7, v7, v6\ns_mul_i32 s60, s59, 448\nv_add_u32 v7, s60, v7")
            k.srd(60, P_W1, 0, D * DFF * 2)
            e("v_cmp_gt_u32 vcc, 56, v2\ns_and_saveexec_b64 s[34:35], vcc")
            for i in range(8):
                e(f"s_mov_b32 s64, {i*2*DFF*2}")
                e(f"buffer_load_dwordx4 {v(W1R+4*i,4)}, v7, s[60:63], s64 offen")
            if CHAIN():
                e("v_lshlrev_b32 v5, 2, v5")
                e(f"s_mov_b32 s64, {4096*4}\ns_mov_b32 s65, {3072*4}")
                for i in range(8):
                    e(f"buffer_load_dword v{W1R+32+i}, v5, s[20:23], s64 offen offset:{i*8}{SC}")
                    e(f"buffer_load_dword v{W1R+40+i}, v5, s[20:23], s65 offen offset:{i*8}{SC}")
            e("s_mov_b64 exec, s[34:35]")
    e(f"v_lshrrev_b32 v5, 1, v3\nv_xor_b32 v5, v5, v4\nv_and_b32 v5, 7, v5")
    e(f"v_lshlrev_b32 v5, 4, v5\ns_lshl_b32 s47, s42, 6\nv_add_u32 v6, s47, v3\nv_lshlrev_b32 v6, 7, v6")
    e(f"v_add_u32 v{AX}, v5, v6\nv_xor_b32 v{AX+1}, 64, v{AX}")
    e("v_lshrrev_b32 v5, 2, v3\nv_and_b32 v6, 3, v2")
    e("v_lshlrev_b32 v7, 3, v4\nv_add_u32 v7, v7, v5")
    e(f"v_mul_u32_u24 v7, {pitch}, v7\nv_lshlrev_b32 v6, 3, v6\nv_add_u32 v7, v7, v6\nv_add_u32 v7, {nA*1024}, v7")
    if hbits == 2: e("v_lshrrev_b32 v5, 1, v5\nv_and_b32 v6, 1, v4\nv_lshlrev_b32 v6, 1, v6\nv_or_b32 v5, v5, v6")
    elif hbits == 1: e("v_and_b32 v5, 1, v4")
    else: e("v_and_b32 v6, 1, v4\nv_lshlrev_b32 v6, 2, v6\nv_or_b32 v5, v5, v6")
    e(f"s_mul_i32 s47, s43, {nt}")
    for i in range(nt):
        e(f"s_add_u32 s48, s47, {i}\nv_xor_b32 v6, s48, v5\nv_lshlrev_b32 v6, 5, v6\nv_add_u32 v{AW+i}, v7, v6")
    for r in range(NACC): e(f"v_mov_b32 v{ACC+r}, 0")
    def reads(ss, F):
        xs = [f"ds_read_b128 {v(F+4*j,4)}, v{AX+ss} offset:{j*2048}" for j in range(mt)]
        ws = []
        for i in range(nt):
            for hh in range(2):
                ws.append(f"ds_read_b64_tr_b16 {v(F+4*mt+4*i+2*hh,2)}, v{AW+i} offset:{(ss*32+hh*4)*pitch}")
        return [xs[0]] + ws[:2] + xs[1:] + ws[2:]
    def mfmas(F):
        return [f"v_mfma_f32_16x16x32_bf16 {v(ACC+4*(j*nt+i),4)}, {v(F+4*mt+4*i,4)}, {v(F+4*j,4)}, {v(ACC+4*(j*nt+i),4)}"
                for j in range(mt) for i in range(nt)]
    def mix(mf, rd, extra=()):
        rd = list(rd)
        if len(rd) <= len(mf) - 4:
            return interleave(mf, rd + list(extra))
        out = []; oi = 0; ex = list(extra)
        for m_ in mf:
            out.append(m_)
            for _ in range(2):
                if oi < len(rd): out.append(rd[oi]); oi += 1
            if oi >= len(rd) and ex: out.append(ex.pop(0))
        out += rd[oi:] + ex
        return out
    if epi == "wo": k.code_touch("w", k.lab("f1_c"), k.lab("f2_c"), 24, 4, 1)
    if epi == "ffn1": k.code_touch("f", k.lab("f1_cloop"), k.lab("end"), 24, 4, 1)
    e(f"s_mov_b32 s49, 0\ns_mov_b32 s54, {SB}\ns_mov_b32 s55, {-(NS-1)*SB & 0xffffffff:#x}")
    e("s_barrier")
    if stamps[0] is not None: k.st(stamps[0])
    for l in reads(0, FA): e(l)
    l2pf = epi in ("qkv", "ffn1") and ("l2" + tag) in OPT
    if l2pf:
        k.srd(56, P_WS, srcA, sizeA); k.srd(60, pB, 0, sizeB)
        e(f"s_cmp_eq_u32 s24, 0\ns_cselect_b32 s65, {(nk-1) & 1}, 99")
        e("s_lshr_b32 s37, s2, 3")
        e(f"s_and_b32 s40, s37, {xc-1}\ns_lshr_b32 s41, s37, {xc.bit_length()-1}")
        e(f"v_lshrrev_b32 v5, 5, v2\nv_add_u32 v5, {L2D}, v5")
        e(f"v_and_b32 v6, 31, v2\ns_lshl_b32 s47, s40, 5\nv_add_u32 v6, s47, v6\ns_lshl_b32 s47, s25, 7\nv_add_u32 v6, s47, v6\nv_lshlrev_b32 v6, 11, v6\nv_lshlrev_b32 v7, 7, v5\nv_add_u32 v250, v6, v7")
        e(f"v_lshlrev_b32 v5, 6, v5\nv_lshrrev_b32 v6, 2, v2\nv_and_b32 v6, 7, v6\nv_add_u32 v5, v5, v6\ns_lshl_b32 s47, s41, 3\nv_add_u32 v5, s47, v5\ns_mov_b32 s47, {ldb*2}\nv_mul_lo_u32 v5, s47, v5")
        e(f"v_and_b32 v6, 3, v2\nv_lshlrev_b32 v6, 7, v6\nv_add_u32 v5, v5, v6\ns_mul_i32 s47, s26, {BN*2}\ns_and_b32 s47, s47, 0xffffff80\nv_add_u32 v249, s47, v5")
    e(f"s_mov_b32 s50, {nk-1}")
    adv_s = f"s_add_u32 s49, s49, 1\ns_cmp_eq_u32 s49, {NS}\ns_cselect_b32 s51, s55, s54\ns_cselect_b32 s49, 0, s49"
    adv_v = [f"v_add_u32 v{r}, s51, v{r}" for r in [AX, AX + 1] + [AW + i for i in range(nt)]]
    align(k, tag)
    e(f"{L('cloop')}:")
    if epi == "wo" and not CHAIN():
        if "modall" in OPT:
            e(f"s_cmp_eq_u32 s50, 12\ns_cbranch_scc0 {L('m2')}")
        else:
            e(f"s_cmp_eq_u32 s50, 11\ns_cbranch_scc0 {L('m1')}")
            e(f"v_mov_b32 v245, {C_MRALL*256}\nbuffer_load_dword v246, v245, {s(CNT,4)}, 0 offen sc1")
            e(f"{L('m1')}:\ns_cmp_eq_u32 s50, 8\ns_cbranch_scc0 {L('m2')}")
            e(f"s_waitcnt vmcnt(0)\nv_readfirstlane_b32 s47, v246\ns_cmp_ge_u32 s47, 256\ns_cbranch_scc1 {L('m1ok')}")
            e(f"v_mov_b32 v6, {C_MRALL*256 - 128}")
            k.poll("mr", None, 256)
            e(f"{L('m1ok')}:")
        k.srd(60, P_WS, WS_MODP, 4 * 6144 * 4)
        e("s_lshl_b32 s47, s26, 6\ns_lshr_b32 s48, s2, 4\ns_lshl_b32 s48, s48, 6\ns_cmp_ge_u32 s24, 2\ns_cselect_b32 s47, s48, s47")
        e("s_mov_b32 s48, 4096\ns_cmp_eq_u32 s24, 0\ns_cselect_b32 s48, 2048, s48\ns_cmp_eq_u32 s24, 3\ns_cselect_b32 s48, 3072, s48")
        e("s_add_u32 s47, s47, s48\ns_lshl_b32 s47, s47, 2\nv_lshlrev_b32 v245, 2, v2")
        for p_ in range(4):
            e(f"buffer_load_dword v{240+p_}, v245, s[60:63], s47 offen{SC}")
            if p_ < 3: e("s_add_u32 s47, s47, 24576")
        e(f"{L('m2')}:\ns_cmp_eq_u32 s50, 4\ns_cbranch_scc0 {L('m3')}")
        e("s_waitcnt vmcnt(0)\nv_add_f32 v240, v240, v241\nv_add_f32 v242, v242, v243\nv_add_f32 v240, v240, v242")
        round_bf16(e, 240)
        e("v_add_f32 v241, 1.0, v240")
        round_bf16(e, 241)
        e("s_sub_u32 s47, s24, 1\ns_cmp_lt_u32 s47, 2\ns_cselect_b64 vcc, -1, 0\nv_cndmask_b32 v240, v240, v241, vcc")
        e(f"s_lshl_b32 s47, s24, 8\ns_add_u32 s47, s47, 135168\nv_add_u32 v245, s47, v245\nds_write_b32 v245, v240")
        e(f"{L('m3')}:")
    if l2pf:
        e(f"s_and_b32 s47, s50, 1\ns_cmp_lg_u32 s47, s65\ns_cbranch_scc1 {L('nopf')}")
        e(f"buffer_load_dword v248, v250, s[56:59], 0 offen{asc}\nbuffer_load_dword v248, v249, s[60:63], 0 offen")
        e(f"v_add_u32 v250, 256, v250\nv_add_u32 v249, {2*64*ldb*2}, v249")
        e(f"{L('nopf')}:")
    def sprinkle(seq, extra, start):
        out = []; n_ = 0; ex = list(extra)
        for x in seq:
            out.append(x)
            if x.startswith("v_mfma"):
                n_ += 1
                if n_ > start and ex: out.append(ex.pop(0))
        return out + ex
    tight = "loose" not in OPT
    if not tight: e(adv_s)
    e("s_waitcnt lgkmcnt(0)")
    seq = mix(mfmas(FA), reads(1, FB))
    if tight: seq = sprinkle(seq, adv_s.split("\n"), 0)
    last_rd = max(i for i, x in enumerate(seq) if x.startswith("ds_read"))
    tail = [x for x in seq[last_rd + 1:]]
    seq = seq[:last_rd + 1]
    av = list(adv_v)
    for x in tail:
        seq.append(x)
        if av and x.startswith("v_mfma"): seq.append(av.pop(0))
    seq += av
    for l in seq: e(l)
    e("s_waitcnt lgkmcnt(0)\ns_barrier")
    seqb = mix(mfmas(FB), reads(0, FA))
    if tight:
        seqb = sprinkle(seqb, ["s_sub_u32 s50, s50, 1", "s_cmp_lg_u32 s50, 0"], 1)
        for l in seqb: e(l)
        e(f"s_cbranch_scc1 {L('cloop')}")
    else:
        for l in seqb: e(l)
        e(f"s_sub_u32 s50, s50, 1\ns_cmp_lg_u32 s50, 0\ns_cbranch_scc1 {L('cloop')}")
    e("s_waitcnt lgkmcnt(0)")
    for l in mix(mfmas(FA), reads(1, FB)): e(l)
    e("s_waitcnt lgkmcnt(0)")
    if epi != "qkv": e("s_barrier")
    for l in mfmas(FB): e(l)
    if stamps[1] is not None: k.st(stamps[1])
    T = FA
    def acc(i, j): return ACC + 4 * (j * nt + i)
    def pack_pair(ta, tb, dst):
        e(f"v_cvt_pk_bf16_f32 v{dst}, v{ta}, v{ta+1}\nv_cvt_pk_bf16_f32 v{dst+1}, v{ta+2}, v{ta+3}")
        e(f"v_cvt_pk_bf16_f32 v{dst+2}, v{tb}, v{tb+1}\nv_cvt_pk_bf16_f32 v{dst+3}, v{tb+2}, v{tb+3}")
        e(f"v_permlane16_swap_b32 v{dst}, v{dst+2}\nv_permlane16_swap_b32 v{dst+1}, v{dst+3}")
    e("v_and_b32 v5, 1, v4\nv_lshlrev_b32 v5, 5, v5\nv_lshrrev_b32 v6, 1, v4\nv_lshlrev_b32 v6, 4, v6\nv_add_u32 v5, v5, v6")
    if epi == "qkv":
        e("v_lshlrev_b32 v6, 6, v3\nv_add_u32 v5, v5, v6")
        n = 0
        for p in range(nt // 2):
            if perm:
                e(f"s_mul_i32 s52, s43, 96\ns_add_u32 s52, s52, {32*p}\ns_cmp_lt_u32 s52, 64\ns_cselect_b32 s53, {f32(LOG2E * 32 ** -0.5)}, 1.0")
                e("s_lshr_b32 s54, s52, 6\ns_lshl_b32 s54, s54, 5\ns_bfe_u32 s52, s52, 0x10005\ns_add_u32 s52, s52, s54\ns_lshl_b32 s54, s26, 1\ns_add_u32 s52, s52, s54")
                e("s_lshl_b32 s52, s52, 17\ns_lshl_b32 s54, s44, 6\ns_add_u32 s52, s52, s54")
            else:
                e(f"s_add_u32 s52, s46, {32*p}\ns_cmp_lt_u32 s52, 1024\ns_cselect_b32 s53, {f32(LOG2E * 32 ** -0.5)}, 1.0")
                e(f"s_lshl_b32 s52, s52, 12\ns_lshl_b32 s54, s44, 6\ns_add_u32 s52, s52, s54")
            e(f"s_cmp_eq_u32 s53, 1.0\ns_cbranch_scc1 {L(f'nosc{p}')}\nv_mov_b32 v6, s53")
            for j in range(mt):
                for t_ in (acc(2 * p, j), acc(2 * p + 1, j)):
                    for r in (0, 2): e(f"v_pk_mul_f32 {v(t_+r,2)}, {v(t_+r,2)}, v[6:7] op_sel_hi:[1,0]")
            e(f"{L(f'nosc{p}')}:")
            for j in range(mt):
                ta, tb = acc(2 * p, j), acc(2 * p + 1, j)
                d = T + 4 * (n % 8); n += 1
                pack_pair(ta, tb, d)
                e(f"buffer_store_dwordx4 {v(d,4)}, v5, s[12:15], s52 offen offset:{j*1024}{SCS}")
        e(f"s_add_u32 s35, s26, {C_QKV}")
        k.signal("qkv", 4, 35, 16, (6, lambda: e(f"s_mul_i32 s33, s26, 6\nv_add_u32 v6, s33, v2\nv_lshrrev_b32 v7, 5, v6\nv_and_b32 v6, 31, v6\nv_lshlrev_b32 v6, 8, v6"
                                                        f"\nv_lshlrev_b32 v7, 6, v7\nv_add_u32 v6, v6, v7"
                                                        f"\ns_lshl_b32 s33, s25, 2\ns_add_u32 s33, s33, {FL['att']}\nv_add_u32 v6, s33, v6")))

    elif epi == "ffn1":
        ST = FA; UU = FA + 8; BB = FA + 36; TMP = FA + 64; T = FA + 72
        e(f"s_lshl_b32 s47, s42, 6\nv_add_u32 v6, s47, v3\nv_lshlrev_b32 v6, 3, v6\nv_add_u32 v6, {XL}, v6")
        for j in range(mt): e(f"ds_read_b64 {v(ST+2*j,2)}, v6 offset:{j*128}")
        e(f"s_mul_i32 s47, s43, {TN*4}\ns_add_u32 s47, s47, {XL+1024}\nv_lshlrev_b32 v7, 4, v4\nv_add_u32 v7, s47, v7")
        for i in range(nt):
            e(f"ds_read_b128 {v(UU+4*i,4)}, v7 offset:{i*64}\nds_read_b128 {v(BB+4*i,4)}, v7 offset:{896+i*64}")
        e("s_lshl_b32 s47, s42, 6\nv_add_u32 v6, s47, v3\nv_lshlrev_b32 v6, 6, v6\nv_lshrrev_b32 v7, 1, v4\nv_lshlrev_b32 v7, 4, v7\nv_add_u32 v6, v6, v7")
        e("v_and_b32 v7, 1, v4\nv_lshlrev_b32 v5, 5, v7\nv_add_u32 v5, v5, v6")
        e("v_lshlrev_b32 v7, 10, v7\nv_add_u32 v6, v6, v7\ns_lshl_b32 s47, s43, 5\nv_add_u32 v6, s47, v6")
        e(f"s_mul_i32 s48, s25, 112\ns_mul_i32 s47, s26, 7\ns_add_u32 s48, s48, s47\ns_lshl_b32 s48, s48, 13")
        e(f"s_add_u32 s53, s48, {3*8192}")
        e("s_waitcnt lgkmcnt(0)")
        def ln(i, j, t):
            a_ = acc(i, j)
            for h_ in range(2):
                e(f"v_pk_fma_f32 {v(t+2*h_,2)}, {v(ST+2*j,2)}, {v(UU+4*i+2*h_,2)}, {v(BB+4*i+2*h_,2)} op_sel_hi:[0,1,1] neg_lo:[1,0,0] neg_hi:[1,0,0]")
            for h_ in range(2):
                e(f"v_pk_fma_f32 {v(a_+2*h_,2)}, {v(a_+2*h_,2)}, {v(ST+2*j,2)}, {v(t+2*h_,2)} op_sel:[0,1,0]")
        cnt = [0]
        def put(ta, tb, addr, soff, off):
            d = T + 4 * (cnt[0] % 4); cnt[0] += 1
            e(f"v_cvt_pk_bf16_f32 v{d}, v{ta}, v{ta+1}\nv_cvt_pk_bf16_f32 v{d+1}, v{ta+2}, v{ta+3}")
            e(f"v_cvt_pk_bf16_f32 v{d+2}, v{tb}, v{tb+1}\nv_cvt_pk_bf16_f32 v{d+3}, v{tb+2}, v{tb+3}")
            for q in range(4): e(f"v_pk_max_i16 v{d+q}, v{d+q}, 0")
            e(f"v_permlane16_swap_b32 v{d}, v{d+2}\nv_permlane16_swap_b32 v{d+1}, v{d+3}")
            e(f"buffer_store_dwordx4 {v(d,4)}, {addr}, s[12:15], {soff} offen offset:{off}{SCS}")
        XA = 139264; XR = T + 16
        e(f"s_lshl_b32 s47, s24, 10\nv_lshlrev_b32 v7, 4, v2\nv_add_u32 v7, s47, v7\nv_add_u32 v7, {XA}, v7")
        e(f"s_cmp_eq_u32 s43, 1\ns_cbranch_scc1 {L('ep1')}")
        for wn_ in range(2):
            if wn_ == 1: e(f"{L('ep1')}:\ns_add_u32 s48, s48, {4*8192}")
            single = 6 if wn_ == 0 else 0
            pairs = [(0, 1), (2, 3), (4, 5)] if wn_ == 0 else [(1, 2), (3, 4), (5, 6)]
            mine = (0, 1) if wn_ == 0 else (2, 3); give = (2, 3) if wn_ == 0 else (0, 1)
            for jj in (0, 2):
                ln(single, jj, TMP); ln(single, jj + 1, TMP + 4)
            for j in range(4):
                a_ = acc(single, j)
                e(f"v_cvt_pk_bf16_f32 v{XR+2*j}, v{a_}, v{a_+1}\nv_cvt_pk_bf16_f32 v{XR+2*j+1}, v{a_+2}, v{a_+3}")
            for q in range(8): e(f"v_pk_max_i16 v{XR+q}, v{XR+q}, 0")
            e(f"ds_write_b128 v7, {v(XR+2*give[0],4)}\ns_waitcnt lgkmcnt(0)")
            e(f"s_lshl_b32 s47, s24, 2\ns_add_u32 s47, s47, {CTL+48}\nv_mov_b32 v{TMP}, s47\nv_mov_b32 v{TMP+1}, 1\nds_write_b32 v{TMP}, v{TMP+1}")
            for pi, (ia, ib) in enumerate(pairs):
                for j in range(mt):
                    ln(ia, j, TMP); ln(ib, j, TMP + 4)
                    put(acc(ia, j), acc(ib, j), "v5", "s48", j * 1024)
                if pi < 2: e("s_add_u32 s48, s48, 8192")
            tg = f"x{wn_}"
            e(f"s_xor_b32 s47, s24, 1\ns_lshl_b32 s47, s47, 2\ns_add_u32 s47, s47, {CTL+48}\nv_mov_b32 v{TMP}, s47\ns_mov_b32 s33, 0")
            e(f"{L('xw'+tg)}:\nds_read_b32 v{TMP+1}, v{TMP}\ns_waitcnt lgkmcnt(0)\nv_readfirstlane_b32 s34, v{TMP+1}")
            e(f"s_cmp_lg_u32 s34, 0\ns_cbranch_scc1 {L('xx'+tg)}\ns_add_u32 s33, s33, 1\ns_cmp_lt_u32 s33, {SPIN_MAX}\ns_cbranch_scc1 {L('xw'+tg)}")
            e(f"{L('xx'+tg)}:")
            e(f"v_xor_b32 v7, 1024, v7\nds_read_b128 {v(TMP,4)}, v7\ns_waitcnt lgkmcnt(0)")
            for n_, j in enumerate(mine):
                d = T + 4 * (cnt[0] % 4); cnt[0] += 1
                own = XR + 2 * j; oth = TMP + 2 * n_
                a0, b0 = (own, oth) if wn_ == 0 else (oth, own)
                e(f"v_mov_b32 v{d}, v{a0}\nv_mov_b32 v{d+1}, v{a0+1}\nv_mov_b32 v{d+2}, v{b0}\nv_mov_b32 v{d+3}, v{b0+1}")
                e(f"v_permlane16_swap_b32 v{d}, v{d+2}\nv_permlane16_swap_b32 v{d+1}, v{d+3}")
                e(f"buffer_store_dwordx4 {v(d,4)}, v5, s[12:15], s53 offen offset:{j*1024}{SCS}")
            if wn_ == 0: e(f"s_branch {L('ep2')}")
        e(f"{L('ep2')}:")
        if "stf1" in OPT: k.st(12)
        e(f"s_add_u32 s35, s25, {C_F1}")
        k.signal("f1", 4, 35, 16, (16, lambda: e(f"s_lshl_b32 s33, s25, 11\ns_lshl_b32 s34, s26, 2\ns_add_u32 s33, s33, s34\ns_add_u32 s33, s33, {FL['f2']}\nv_lshlrev_b32 v6, 7, v2\nv_add_u32 v6, s33, v6")) if "nos2" in OPT else
                 (1, lambda: e(f"s_lshl_b32 s33, s25, 1\ns_lshr_b32 s34, s26, 3\ns_add_u32 s33, s33, s34\ns_lshl_b32 s33, s33, 7\ns_and_b32 s34, s26, 7\ns_lshl_b32 s34, s34, 2\ns_add_u32 s33, s33, s34\ns_add_u32 s33, s33, {FL['f2']}\nv_mov_b32 v6, s33")))
        if "stf1" in OPT: k.st(13)
    elif s2:
        e(f"s_cmp_eq_u32 s27, 0\ns_cbranch_scc1 {L('noswap')}")
        for j in range(mt):
            for r in range(8): e(f"v_swap_b32 v{acc(0,j)+r}, v{acc(2,j)+r}")
        e(f"{L('noswap')}:")
        k.srd(56, P_WS, WS_XCH, 128 * 2 * 4 * 8192)
        e("s_lshl_b32 s47, s25, 3\ns_add_u32 s47, s47, s26\ns_lshl_b32 s47, s47, 1")
        e("s_xor_b32 s48, s27, 1\ns_add_u32 s48, s48, s47\ns_lshl_b32 s49, s48, 2\ns_add_u32 s49, s49, s24\ns_lshl_b32 s49, s49, 13")
        e("s_add_u32 s52, s47, s27\ns_lshl_b32 s53, s52, 2\ns_add_u32 s53, s53, s24\ns_lshl_b32 s53, s53, 13")
        e("v_lshlrev_b32 v7, 4, v2")
        xb = "xchbf16" in OPT
        if xb:
            for j in range(mt):
                a2 = acc(2, j)
                for q in range(4): e(f"v_cvt_pk_bf16_f32 v{a2+q}, v{a2+2*q}, v{a2+2*q+1}")
                e(f"buffer_store_dwordx4 {v(a2,4)}, v7, s[56:59], s49 offen offset:{j*1024}{SCS}")
            e("s_waitcnt vmcnt(4)")
        else:
            for j in range(mt):
                if j == 2: e("s_add_u32 s49, s49, 4096")
                e(f"buffer_store_dwordx4 {v(acc(2,j),4)}, v7, s[56:59], s49 offen offset:{(j%2)*2048}{SCS}")
                e(f"buffer_store_dwordx4 {v(acc(3,j),4)}, v7, s[56:59], s49 offen offset:{(j%2)*2048+1024}{SCS}")
            e("s_waitcnt vmcnt(8)")
        XT = T + 32
        for r in range(0 if CHAIN() else 8):
            e(f"v_add_f32 v{G+r}, v{G+r}, v{G+8+r}\nv_add_f32 v{G+16+r}, v{G+16+r}, v{G+24+r}\nv_add_f32 v{G+r}, v{G+r}, v{G+16+r}")
            round_bf16(e, G + r)
        for j in range(mt):
            for i in range(2):
                a0 = acc(i, j); x0 = EP + 4 * j + 2 * i
                for q in range(2):
                    e(f"v_lshlrev_b32 v{XT+2*q}, 16, v{x0+q}\nv_and_b32 v{XT+2*q+1}, 0xffff0000, v{x0+q}")
                for q in range(2):
                    e(f"v_pk_fma_f32 {v(a0+2*q,2)}, {v(a0+2*q,2)}, {v(G+4*i+2*q,2)}, {v(XT+2*q,2)}")
        e(f"v_add_u32 v6, s44, v3\nv_lshlrev_b32 v6, 11, v6\ns_lshl_b32 s47, s46, 1\nv_add_u32 v6, s47, v6\nv_add_u32 v5, v5, v6")
        e("s_waitcnt vmcnt(0)")
        e(f"s_lshl_b32 s48, s48, 7\ns_lshl_b32 s54, s24, 2\ns_add_u32 s48, s48, s54\ns_add_u32 s48, s48, {FL['xch']}\nv_mov_b32 v6, s48\nv_mov_b32 v249, 1")
        e(f"s_mov_b64 exec, 1\nbuffer_store_dword v249, v6, {s(CNT,4)}, 0 offen sc1\ns_mov_b64 exec, -1")
        e(f"s_lshl_b32 s52, s52, 7\ns_add_u32 s52, s52, s54\ns_add_u32 s52, s52, {FL['xch']}\nv_mov_b32 v6, s52\ns_mov_b32 s33, 0\ns_mov_b64 exec, 1")
        e(f"{L('xpoll')}:")
        e(f"buffer_load_dword v249, v6, {s(CNT,4)}, 0 offen sc1\ns_waitcnt vmcnt(0)\nv_readfirstlane_b32 s34, v249")
        e(f"s_cmp_eq_u32 s34, 1\ns_cbranch_scc1 {L('xdone')}\ns_add_u32 s33, s33, 1\ns_cmp_lt_u32 s33, {SPIN_MAX}\ns_cbranch_scc1 {L('xpoll')}")
        e(f"{L('xdone')}:\ns_mov_b64 exec, -1")
        for j in range(mt):
            if xb:
                e(f"buffer_load_dwordx4 {v(acc(2,j)+4,4)}, v7, s[56:59], s53 offen offset:{j*1024}{SC}")
                continue
            if j == 2: e("s_add_u32 s53, s53, 4096")
            e(f"buffer_load_dwordx4 {v(acc(2,j),4)}, v7, s[56:59], s53 offen offset:{(j%2)*2048}{SC}")
            e(f"buffer_load_dwordx4 {v(acc(3,j),4)}, v7, s[56:59], s53 offen offset:{(j%2)*2048+1024}{SC}")
        for j in range(mt):
            e(f"s_waitcnt vmcnt({(1 if xb else 2)*(mt-1-j) + j})")
            e(f"s_mov_b32 s48, {j*16*2048}")
            d = T + 4 * (j % 2)
            if xb:
                src = acc(2, j) + 4
                for q in range(2): e(f"v_lshlrev_b32 v{acc(2,j)+2*q}, 16, v{src+q}\nv_and_b32 v{acc(2,j)+2*q+1}, 0xffff0000, v{src+q}")
                for q in range(2): e(f"v_lshlrev_b32 v{XT+2*q}, 16, v{src+2+q}\nv_and_b32 v{XT+2*q+1}, 0xffff0000, v{src+2+q}")
                for q in range(2):
                    e(f"v_pk_fma_f32 {v(acc(0,j)+2*q,2)}, {v(acc(2,j)+2*q,2)}, {v(G+2*q,2)}, {v(acc(0,j)+2*q,2)}")
                    e(f"v_pk_fma_f32 {v(acc(1,j)+2*q,2)}, {v(XT+2*q,2)}, {v(G+4+2*q,2)}, {v(acc(1,j)+2*q,2)}")
            else:
                for i in range(2):
                    for q in range(2):
                        e(f"v_pk_fma_f32 {v(acc(i,j)+2*q,2)}, {v(acc(2+i,j)+2*q,2)}, {v(G+4*i+2*q,2)}, {v(acc(i,j)+2*q,2)}")
            pack_pair(acc(0, j), acc(1, j), d)
            e(f"buffer_store_dwordx4 {v(d,4)}, v5, s[12:15], s48 offen{' sc1' if 'outsc1' in OPT else ('' if 'outplain' in OPT else ' nt')}")
    else:
        if not CHAIN():
            ML = 135168
            e(f"s_lshl_b32 s47, s43, 7\nv_lshlrev_b32 v6, 4, v4\nv_add_u32 v6, s47, v6\nv_add_u32 v6, {ML}, v6")
            for i in range(nt):
                e(f"ds_read_b128 {v(G+4*i,4)}, v6 offset:{i*64}\nds_read_b128 {v(GG+4*i,4)}, v6 offset:{256+i*64}")
            e(f"v_mul_u32_u24 v6, {(65536+27)//28}, v2\nv_lshrrev_b32 v6, 16, v6\nv_min_u32 v6, 1, v6\ns_lshl_b32 s47, s24, 4\nv_add_u32 v6, s47, v6\nv_lshlrev_b32 v6, 2, v6\nv_add_u32 v6, {ML+512}, v6")
            for i in range(8):
                e(f"ds_read_b32 v{W1R+32+i}, v6 offset:{i*8}\nds_read_b32 v{W1R+40+i}, v6 offset:{256+i*8}")
            e("s_waitcnt lgkmcnt(0)")
        e("s_waitcnt vmcnt(0)")
        XT = T + 32
        e(f"v_add_u32 v6, s44, v3\nv_lshlrev_b32 v6, 11, v6\ns_lshl_b32 s47, s46, 1\nv_add_u32 v6, s47, v6\nv_add_u32 v5, v5, v6")
        if epi == "wo":
            k.srd(16, P_WS, WS_XG, S * D * 2); k.srd(60, P_WS, WS_STAT, 32 * S * 8)
            if CHAIN():
                for r in range(4 * nt):
                    e(f"v_add_f32 v{GG+r}, 1.0, v{GG+r}"); round_bf16(e, GG + r)
            e(f"s_lshl_b32 s49, s26, 1\ns_add_u32 s49, s49, s43\ns_lshl_b32 s49, s49, 14\ns_lshl_b32 s50, s44, 3\ns_add_u32 s49, s49, s50")
            e("v_lshlrev_b32 v1, 3, v3\nv_and_b32 v6, 1, v4\nv_lshlrev_b32 v6, 2, v6\nv_add_u32 v1, v1, v6")
            e("s_lshl_b32 s47, s25, 4\ns_add_u32 s47, s47, s26\ns_lshl_b32 s47, s47, 2\ns_add_u32 s47, s47, s24\ns_lshl_b32 s47, s47, 12\nv_lshlrev_b32 v7, 4, v2\nv_mov_b32 v253, v7")
        for j in range(mt):
            e(f"s_mov_b32 s48, {j*16*2048}")
            d = T + 4 * (j % 2); d2 = T + 8 + 4 * (j % 2); SM = T + 16 + 4 * (j % 2)
            for i in range(nt):
                a0 = acc(i, j); x0 = EP + 2 * (j * nt + i)
                for q in range(2):
                    e(f"v_lshlrev_b32 v{XT+2*q}, 16, v{x0+q}\nv_and_b32 v{XT+2*q+1}, 0xffff0000, v{x0+q}")
                for q in range(2):
                    e(f"v_pk_fma_f32 {v(a0+2*q,2)}, {v(a0+2*q,2)}, {v(G+4*i+2*q,2)}, {v(XT+2*q,2)}")
            ta, tb = acc(0, j), acc(1, j)
            if epi == "ffn2":
                e(f"v_cvt_pk_bf16_f32 v{d}, v{ta}, v{ta+1}\nv_cvt_pk_bf16_f32 v{d+1}, v{ta+2}, v{ta+3}")
                e(f"v_cvt_pk_bf16_f32 v{d+2}, v{tb}, v{tb+1}\nv_cvt_pk_bf16_f32 v{d+3}, v{tb+2}, v{tb+3}")
                e(f"v_permlane16_swap_b32 v{d}, v{d+2}\nv_permlane16_swap_b32 v{d+1}, v{d+3}")
                e(f"buffer_store_dwordx4 {v(d,4)}, v5, s[12:15], s48 offen")
                continue
            for q in range(2):
                e(f"v_pk_mul_f32 {v(XT+2*q,2)}, {v(ta+2*q,2)}, {v(GG+2*q,2)}\nv_pk_mul_f32 {v(XT+4+2*q,2)}, {v(tb+2*q,2)}, {v(GG+4+2*q,2)}")
            for q in range(4): e(f"v_cvt_pk_bf16_f32 v{d2+q}, v{XT+2*q}, v{XT+2*q+1}")
            e(f"v_permlane16_swap_b32 v{d2}, v{d2+2}\nv_permlane16_swap_b32 v{d2+1}, v{d2+3}")
            e(f"buffer_store_dwordx4 {v(d2,4)}, v5, s[16:19], s48 offen{SCS}")
        for j in range(mt if epi == "wo" else 0):
            d = T + 4 * (j % 2); SM = T + 16 + 4 * (j % 2)
            ta, tb = acc(0, j), acc(1, j)
            e(f"v_cvt_pk_bf16_f32 v{d}, v{ta}, v{ta+1}\nv_cvt_pk_bf16_f32 v{d+1}, v{ta+2}, v{ta+3}")
            e(f"v_cvt_pk_bf16_f32 v{d+2}, v{tb}, v{tb+1}\nv_cvt_pk_bf16_f32 v{d+3}, v{tb+2}, v{tb+3}")
            e(f"buffer_store_dwordx4 {v(d,4)}, v253, s[12:15], s47 offen offset:{j*1024}{SCS}")
            e(f"v_pk_add_f32 {v(SM,2)}, {v(ta,2)}, {v(ta+2,2)}\nv_pk_mul_f32 {v(SM+2,2)}, {v(ta,2)}, {v(ta,2)}")
            e(f"v_pk_add_f32 {v(SM,2)}, {v(SM,2)}, {v(tb,2)}\nv_pk_fma_f32 {v(SM+2,2)}, {v(ta+2,2)}, {v(ta+2,2)}, {v(SM+2,2)}")
            e(f"v_pk_add_f32 {v(SM,2)}, {v(SM,2)}, {v(tb+2,2)}\nv_pk_fma_f32 {v(SM+2,2)}, {v(tb,2)}, {v(tb,2)}, {v(SM+2,2)}")
            e(f"v_pk_fma_f32 {v(SM+2,2)}, {v(tb+2,2)}, {v(tb+2,2)}, {v(SM+2,2)}")
            e(f"v_add_f32 v{SM}, v{SM}, v{SM+1}\nv_add_f32 v{SM+2}, v{SM+2}, v{SM+3}")
            e(f"v_permlane16_swap_b32 v{SM}, v{SM+2}\nv_add_f32 v{SM}, v{SM}, v{SM+2}\nv_mov_b32 v{SM+1}, v{SM}")
            e(f"v_permlane32_swap_b32 v{SM}, v{SM+1}\nv_add_f32 v{SM}, v{SM}, v{SM+1}")
            e(f"s_mov_b32 exec_lo, -1\ns_mov_b32 exec_hi, 0\nbuffer_store_dword v{SM}, v1, s[60:63], s49 offen offset:{j*128}{SCS}\ns_mov_b64 exec, -1")
        if epi == "wo":
            if "stwo" in OPT: k.st(12)
            e(f"s_add_u32 s35, s25, {C_WO}")
            k.signal("wo", 4, 35, 16, (4, lambda: e(f"s_lshl_b32 s33, s25, 9\ns_lshl_b32 s34, s26, 2\ns_add_u32 s33, s33, s34\ns_add_u32 s33, s33, {FL['f1']}\nv_lshlrev_b32 v6, 7, v2\nv_add_u32 v6, s33, v6")), younger=8)
            k.signal("wo2", 4, 35, 16, (4, lambda: e(f"s_lshl_b32 s33, s25, 9\ns_lshl_b32 s34, s26, 2\ns_add_u32 s33, s33, s34\ns_add_u32 s33, s33, {FL['f1b']}\nv_lshlrev_b32 v6, 7, v2\nv_add_u32 v6, s33, v6")))
            if "stwo" in OPT: k.st(13)
            UA = ACC
            for r in range(16): e(f"v_mov_b32 v{UA+r}, 0")
            for i in range(8):
                g_ = W1R + 32 + i; s_ = W1R + 40 + i
                if CHAIN():
                    e(f"v_add_f32 v{g_}, 1.0, v{g_}"); round_bf16(e, g_)
                for q in range(4):
                    w_ = W1R + 4 * i + q
                    e(f"v_lshlrev_b32 v6, 16, v{w_}\nv_and_b32 v7, 0xffff0000, v{w_}")
                    e(f"v_fmac_f32 v{UA+2*q}, v{g_}, v6\nv_fmac_f32 v{UA+2*q+1}, v{g_}, v7\nv_fmac_f32 v{UA+8+2*q}, v{s_}, v6\nv_fmac_f32 v{UA+8+2*q+1}, v{s_}, v7")
            UL = 139264
            e(f"v_mul_u32_u24 v5, {(65536+27)//28}, v2\nv_lshrrev_b32 v5, 16, v5\nv_mul_u32_u24 v6, 28, v5\nv_sub_u32 v6, v2, v6")
            e(f"s_lshl_b32 s32, s24, 1\nv_add_u32 v5, s32, v5\nv_mul_u32_u24 v5, 1792, v5\nv_lshlrev_b32 v6, 5, v6\nv_add_u32 v5, v5, v6\nv_add_u32 v5, {UL}, v5")
            e("v_cmp_gt_u32 vcc, 56, v2\ns_and_saveexec_b64 s[34:35], vcc")
            e(f"ds_write_b128 v5, {v(UA,4)}\nds_write_b128 v5, {v(UA+4,4)} offset:16\nds_write_b128 v5, {v(UA+8,4)} offset:896\nds_write_b128 v5, {v(UA+12,4)} offset:912")
            e("s_mov_b64 exec, s[34:35]\ns_waitcnt lgkmcnt(0)")
            e(f"v_mov_b32 v6, {L_SIG['ub']}\nv_mov_b32 v7, 1\ns_mov_b64 exec, 1")
            e("ds_add_rtn_u32 v7, v6, v7\ns_waitcnt lgkmcnt(0)\nv_readfirstlane_b32 s32, v7\ns_mov_b64 exec, -1")
            e(f"s_cmp_lg_u32 s32, 3\ns_cbranch_scc1 {L('ubx')}")
            e(f"v_lshlrev_b32 v5, 2, v2\nv_add_u32 v5, {UL}, v5")
            for m_ in range(7):
                for rr in range(8): e(f"ds_read_b32 v{UA+rr}, v5 offset:{rr*1792+m_*256}")
                e("s_waitcnt lgkmcnt(0)")
                for rr in range(1, 8): e(f"v_add_f32 v{UA}, v{UA}, v{UA+rr}")
                e(f"v_mov_b32 v{UA+16+m_}, v{UA}")
            k.srd(16, P_WS, WS_UB, 16 * 2 * DFF * 4)
            e(f"s_mul_i32 s49, s58, {2*DFF*4}\ns_mul_i32 s50, s59, 896\ns_add_u32 s49, s49, s50")
            for m_ in range(7):
                e(f"v_add_u32 v5, {64*m_}, v2\nv_cmp_le_u32 vcc, 224, v5\nv_mov_b32 v6, {DFF*4 - 896}\nv_cndmask_b32 v6, 0, v6, vcc\nv_lshl_add_u32 v5, v5, 2, v6")
                e(f"buffer_store_dword v{UA+16+m_}, v5, s[16:19], s49 offen{SCS}")
            e("s_waitcnt vmcnt(0)")
            e(f"s_add_u32 s35, s59, {C_UB}\ns_mov_b64 exec, 1")
            k.arrive("ub", 35, 16)
            e("s_mov_b64 exec, -1")
            e(f"{L('ubx')}:")
    e(f"s_branch {nxt_c}")
    e(f"{L('l')}:")
    if s2: tile_map_s2(e)
    else: tile_map(e, xr, xc)
    k.srd(4, P_WS, srcA, sizeA); k.srd(8, pB, 0, sizeB)
    e("s_sub_u32 s42, s24, 4")
    LA = 8
    wblk = s2 and "w2blk" in OPT
    if wblk: ldb = 128
    lda2, ldb2 = lda * 2, ldb * 2
    blocked = epi in ("ffn2", "ffn2s")
    if blocked:
        e(f"s_mul_i32 s43, s25, {112*8192}\ns_mul_i32 s44, s42, {nAw*8*64}\ns_add_u32 s43, s43, s44")
        e("v_lshrrev_b32 v3, 3, v2\nv_lshlrev_b32 v3, 6, v3\nv_add_u32 v3, s43, v3")
        e("v_and_b32 v4, 7, v2\nv_lshrrev_b32 v5, 4, v2")
        for i in range(nAw):
            e(f"v_xor_b32 v6, {(i&1)*4}, v5\nv_xor_b32 v6, v6, v4\nv_lshrrev_b32 v7, 2, v6\nv_lshlrev_b32 v7, 13, v7\nv_and_b32 v6, 3, v6\nv_lshlrev_b32 v6, 4, v6")
            e(f"v_add3_u32 v6, v6, v7, v3\nv_add_u32 v{LA+i}, {i*8*64}, v6")
    else:
        e(f"s_lshl_b32 s43, s25, 7\ns_mul_i32 s44, s42, {nAw*8}\ns_add_u32 s43, s43, s44")
        e(f"v_lshrrev_b32 v3, 3, v2\nv_add_u32 v3, s43, v3\ns_mov_b32 s45, {lda2}\nv_mul_lo_u32 v3, s45, v3")
        e("v_and_b32 v4, 7, v2\nv_lshrrev_b32 v5, 4, v2")
        for i in range(nAw):
            e(f"v_xor_b32 v6, {(i&1)*4}, v5\nv_xor_b32 v6, v6, v4\nv_lshlrev_b32 v6, 4, v6\nv_add_u32 v6, v6, v3")
            e(f"v_add_u32 v{LA+i}, {i*8*lda2}, v6")
    ASTEP = 16384 if blocked else BK * 2
    magic = (65536 + cpr - 1) // cpr
    assert all((p * magic) >> 16 == p // cpr for p in range(nBw * 64)) and nBw * 64 == 16 * cpr
    e(f"s_mul_i32 s43, s42, {16*ldb2}\ns_mul_i32 s44, s26, {K*256 if wblk else (128 if perm else BN*2)}\ns_add_u32 s43, s43, s44")
    for i in range(nBw):
        e(f"v_add_u32 v3, {i*64}, v2\nv_mul_u32_u24 v4, {magic}, v3\nv_lshrrev_b32 v4, 16, v4")
        e(f"v_mul_u32_u24 v5, {cpr}, v4\nv_sub_u32 v3, v3, v5")
        if hbits == 2: e("v_and_b32 v5, 2, v4\nv_lshrrev_b32 v6, 1, v4\nv_and_b32 v6, 4, v6\nv_or_b32 v5, v5, v6")
        elif hbits == 1: e("v_lshrrev_b32 v5, 2, v4\nv_and_b32 v5, 2, v5")
        else: e("v_and_b32 v5, 3, v4\nv_lshrrev_b32 v6, 1, v4\nv_and_b32 v6, 4, v6\nv_or_b32 v5, v5, v6\nv_lshlrev_b32 v5, 1, v5")
        e("v_xor_b32 v3, v3, v5")
        if perm: e("v_lshrrev_b32 v5, 3, v3\nv_and_b32 v3, 7, v3\nv_lshlrev_b32 v5, 7, v5\nv_add_u32 v3, v3, v5")
        e(f"v_lshlrev_b32 v3, 4, v3\ns_mov_b32 s45, {ldb2}\nv_mul_lo_u32 v4, s45, v4\nv_add_u32 v3, v3, v4")
        e(f"v_add_u32 v{LA+nAw+i}, s43, v3")
    e(f"s_mul_i32 s46, s42, {nAw*1024}")
    e(f"s_mul_i32 s47, s42, {nBw*1024}\ns_add_u32 s47, s47, {nA*1024}")
    def issue_x(lds_s, off_s):
        for i in range(nAw):
            e(f"s_add_u32 m0, {lds_s}, {i*1024}")
            e(f"buffer_load_dwordx4 v{LA+i}, s[4:7], {off_s} offen{asc} lds")
    def issue_w(lds_s, off_s):
        for i in range(nBw):
            e(f"s_add_u32 m0, {lds_s}, {i*1024}")
            e(f"buffer_load_dwordx4 v{LA+nAw+i}, s[8:11], {off_s} offen lds")
    if s2: e(f"s_mul_i32 s62, s27, {nk*ASTEP}\ns_mul_i32 s63, s27, {nk*BK*ldb2}")
    else: e("s_mov_b32 s62, 0\ns_mov_b32 s63, 0")
    def w_prologue():
        for st in range(NS - 1):
            e(f"s_add_u32 s52, s47, {st*SB}\ns_add_u32 s49, s63, {st*BK*ldb2}")
            issue_w("s52", "s49")
    if dep:
        base, target, kind = dep
        e(f"s_lshr_b32 s35, s25, 1\ns_add_u32 s35, s35, {base}" if kind == "rb2" else f"s_add_u32 s35, s25, {base}")
        if "wfirst" in OPT:
            w_prologue()
            k.dep_wait_loaders(tag, 35, target, None)
        else:
            if hbar and "single" in OPT: g_loader(k)
            e(f"s_cmp_eq_u32 s24, 4\ns_cbranch_scc1 {L('w4a')}")
            w_prologue()
            e(f"{L('w4a')}:")
            if hbar and "nowq" not in OPT:
                e(f"s_cmp_eq_u32 s24, 4\ns_cbranch_scc1 {L('nowqpf')}")
                e("s_mul_i32 s43, s2, 3\ns_add_u32 s43, s43, s24\ns_sub_u32 s43, s43, 5\ns_lshl_b32 s43, s43, 13\nv_lshlrev_b32 v3, 7, v2")
                e("buffer_load_dword v253, v3, s[8:11], s43 offen")
                e(f"{L('nowqpf')}:")
            if hbar and "single" in OPT: e("s_barrier")
            if hbar: e("s_barrier")
            k.dep_wait_loaders(tag, 35, target, None)
            e(f"s_cmp_lg_u32 s24, 4\ns_cbranch_scc1 {L('w4b')}")
            w_prologue()
            e(f"{L('w4b')}:")
        if tag == "f1" and "stwo" in OPT: k.st(14, 4)
        if tag == "wo" and "statt" in OPT: k.st(15, 4)
        if tag == "f2" and "stf1" in OPT: k.st(14, 4)
    else:
        w_prologue()
    for st in range(NS - 1):
        e(f"s_add_u32 s51, s46, {st*SB}\ns_add_u32 s48, s62, {st*ASTEP}")
        issue_x("s51", "s48")
    e(f"s_add_u32 s48, s62, {(NS-1)*ASTEP}\ns_add_u32 s49, s63, {(NS-1)*BK*ldb2}\ns_mov_b32 s50, {(NS-1)*SB}")
    lt = ("lt" + tag) in OPT and epi in ("qkv", "ffn1")
    TV = 252
    if lt:
        e("s_lshr_b32 s37, s2, 3")
        e(f"s_and_b32 s40, s37, {xc-1}\ns_lshr_b32 s41, s37, {xc.bit_length()-1}")
        e(f"s_cmp_ge_u32 s42, 2\ns_cbranch_scc1 {L('ltb')}")
        e(f"v_and_b32 v3, 15, v2\ns_lshl_b32 s43, s40, 5\ns_lshl_b32 s44, s42, 4\ns_add_u32 s43, s43, s44\ns_lshl_b32 s44, s25, 7\ns_add_u32 s43, s43, s44\nv_add_u32 v3, s43, v3")
        e(f"v_lshlrev_b32 v{TV}, 11, v3\nv_add_u32 v{TV}, {(NS-1+LTD)*128}, v{TV}\ns_mov_b32 s57, 128")
        e(f"s_mov_b32 s72x, 0".replace("s_mov_b32 s72x, 0", "s_nop 0"))
        e(f"s_branch {L('ltc')}")
        e(f"{L('ltb')}:")
        e(f"v_lshrrev_b32 v3, 2, v2\nv_and_b32 v3, 3, v3\ns_lshl_b32 s43, s41, 3\ns_sub_u32 s44, s42, 2\ns_lshl_b32 s44, s44, 2\ns_add_u32 s43, s43, s44\ns_add_u32 s43, s43, {(NS-1+LTD)*64}\nv_add_u32 v3, s43, v3")
        e(f"s_mov_b32 s43, {ldb2}\nv_mul_lo_u32 v{TV}, s43, v3\nv_and_b32 v3, 3, v2\nv_lshlrev_b32 v3, 7, v3\nv_add_u32 v{TV}, v{TV}, v3\ns_mul_i32 s43, s26, {BN*2}\ns_and_b32 s43, s43, 0xffffff80\nv_add_u32 v{TV}, s43, v{TV}\ns_mov_b32 s57, {BK*ldb2}")
        e(f"{L('ltc')}:")
    tcnt = [0]
    def touch():
        if not lt: return
        n_ = tcnt[0]; tcnt[0] += 1
        e(f"s_mov_b64 exec, 0xffff\ns_cmp_ge_u32 s42, 2\ns_cbranch_scc1 {L(f'tb{n_}')}")
        e(f"buffer_load_dword v253, v{TV}, s[4:7], 0 offen{asc}\ns_branch {L(f'tc{n_}')}")
        e(f"{L(f'tb{n_}')}:\nbuffer_load_dword v253, v{TV}, s[8:11], 0 offen")
        e(f"{L(f'tc{n_}')}:\ns_mov_b64 exec, -1\nv_add_u32 v{TV}, s57, v{TV}")
    nt1 = 1 if lt else 0
    def issue():
        e("s_add_u32 s51, s50, s46\ns_add_u32 s52, s50, s47")
        issue_x("s51", "s48"); issue_w("s52", "s49")
        e(f"s_add_u32 s48, s48, {ASTEP}\ns_add_u32 s49, s49, {BK*ldb2}")
        e(f"s_add_u32 s50, s50, {SB}\ns_cmp_eq_u32 s50, {SB*NS}\ns_cselect_b32 s50, 0, s50")
        touch()
    if ("lprio" in OPT): e("s_setprio 2")
    e(f"s_waitcnt vmcnt({nAw*(NS-2)})\ns_barrier")
    issue()
    e(f"s_waitcnt vmcnt({nAw*(NS-3) + nld + nt1})\ns_barrier" if NS >= 3 else "")
    issue()
    for t in range(2, NS - 1):
        e(f"s_waitcnt vmcnt({nAw*(NS-2-t) + (nld+nt1)*t})\ns_barrier")
        issue()
    done = max(2, NS - 1)
    e(f"s_mov_b32 s53, {nk-(NS-1)-done}")
    e(f"{L('lloop')}:")
    e(f"s_waitcnt vmcnt({nld*(NS-2) + nt1*(NS-1)})\ns_barrier")
    issue()
    e(f"s_sub_u32 s53, s53, 1\ns_cmp_lg_u32 s53, 0\ns_cbranch_scc1 {L('lloop')}")
    if ("lprio" in OPT): e("s_setprio 0")
    nx = 0
    for t in range(NS - 1):
        e(f"s_waitcnt vmcnt({nld*(NS-2-t)+nx+nt1*(NS-1-t)})\ns_barrier")
        if epi == "qkv" and t == 0 and "modall" not in OPT and "mrwo" not in OPT:
            nx = 16
            e(f"s_load_dwordx4 s[36:39], s[0:1], {KA_C}")
            e("s_and_b32 s58, s2, 3\ns_lshr_b32 s59, s2, 2\ns_add_u32 s59, s59, 32\ns_mov_b32 s64, s58\ns_mov_b32 s65, s59")
            e("v_subrev_u32 v3, 256, v0\nv_lshrrev_b32 v6, 3, v3\nv_and_b32 v7, 7, v3\nv_mov_b32 v22, v7")
            e("s_lshl_b32 s43, s58, 8\nv_add_u32 v6, s43, v6\nv_lshlrev_b32 v4, 1, v6")
            e("v_mul_u32_u24 v5, 12288, v6\nv_lshlrev_b32 v6, 4, v7\nv_add_u32 v5, v5, v6\ns_lshl_b32 s43, s59, 7\nv_add_u32 v5, s43, v5")
            e("s_waitcnt lgkmcnt(0)")
            k.srd(52, 36, 0, 2048); k.srd(60, 38, 0, 1024 * 6144 * 2)
            for i in range(8): e(f"buffer_load_ushort v{24+i}, v4, s[52:55], 0 offen offset:{i*64}")
            for i in range(8):
                e(f"s_mov_b32 s43, {i*32*12288}\nbuffer_load_dwordx4 {v(32+4*i,4)}, v5, s[60:63], s43 offen")
        if epi == "ffn1" and t == 0:
            nx = 32
            k.srd(56, P_WS, WS_STAT, 32 * S * 8); k.srd(60, P_WS, WS_UB, 16 * 2 * DFF * 4)
            e(f"s_cmp_ge_u32 s42, 2\ns_cbranch_scc1 {L('ubld')}")
            e(f"s_lshl_b32 s34, s25, 2\ns_lshr_b32 s33, s26, 2\ns_add_u32 s34, s34, s33\ns_lshl_b32 s34, s34, 7\ns_add_u32 s34, s34, {FL['f1b']}")
            k.wait_flags("f1b", 16, 34)
            e(f"s_lshl_b32 s43, s42, 6\nv_add_u32 v3, s43, v2\ns_lshl_b32 s44, s25, 7\nv_add_u32 v4, s44, v3\nv_lshlrev_b32 v4, 3, v4")
            for sl in range(32):
                e(f"s_mov_b32 s45, {sl*S*8}\nbuffer_load_dwordx2 {v(32+2*sl,2)}, v4, s[56:59], s45 offen{SC}")
            e(f"s_branch {L('ldd')}")
            e(f"{L('ubld')}:")
            e(f"s_add_u32 s35, s26, {C_UB}")
            k.poll(tag + "u", 35, 16)
            if "alias" in OPT:
                e(f"v_mov_b32 v6, {C_ATTALL*256 - 128}")
                k.poll(tag + "a", None, 256)
            e(f"s_sub_u32 s43, s42, 2\ns_lshl_b32 s43, s43, 6\nv_add_u32 v3, s43, v2")
            e(f"s_mul_i32 s44, s26, {BN*4}\nv_lshlrev_b32 v4, 3, v3\nv_add_u32 v4, s44, v4")
            for kg in range(16):
                for w_ in range(2):
                    e(f"s_mov_b32 s45, {(kg*2+w_)*DFF*4}\nbuffer_load_dwordx2 {v(32+4*kg+2*w_,2)}, v4, s[60:63], s45 offen{SC}")
            e(f"{L('ldd')}:")
    if epi == "ffn1":
        e("s_waitcnt vmcnt(0)")
        e(f"s_cmp_ge_u32 s42, 2\ns_cbranch_scc1 {L('ubred')}")
        for sl in range(1, 32): e(f"v_add_f32 v32, v32, v{32+2*sl}\nv_add_f32 v33, v33, v{33+2*sl}")
        e(f"v_mul_f32 v32, {f32(1/1024)}, v32\nv_mul_f32 v33, {f32(1/1024)}, v33")
        e(f"v_fma_f32 v33, -v32, v32, v33\nv_max_f32 v33, 0, v33\nv_add_f32 v33, {f32(1e-5)}, v33\nv_rsq_f32 v33, v33")
        e("v_mul_f32 v32, v32, v33")
        e(f"v_lshlrev_b32 v4, 3, v3\nv_add_u32 v4, {XL}, v4\nds_write_b64 v4, v[32:33]")
        e(f"s_branch {L('redd')}")
        e(f"{L('ubred')}:")
        for kg in range(1, 16):
            for q in range(4): e(f"v_add_f32 v{32+q}, v{32+q}, v{32+4*kg+q}")
        e(f"v_lshlrev_b32 v4, 3, v3\nv_add_u32 v4, {XL+1024}, v4\nv_cmp_gt_u32 vcc, 112, v3\ns_and_saveexec_b64 s[44:45], vcc")
        e(f"ds_write_b64 v4, v[32:33]\nds_write_b64 v4, v[34:35] offset:896\ns_mov_b64 exec, s[44:45]")
        e(f"{L('redd')}:")
        e("s_waitcnt lgkmcnt(0)")
    if epi == "qkv" and "modall" not in OPT and "mrwo" not in OPT:
        gemv_finish(k, 24, 32, 64, 72)
        MRL = 139264
        e(f"s_sub_u32 s43, s24, 4\ns_lshl_b32 s43, s43, 8\nv_lshlrev_b32 v9, 5, v22\nv_add_u32 v9, s43, v9\nv_add_u32 v9, {MRL}, v9")
        e("s_mov_b64 exec, 0xff\nds_write_b128 v9, v[64:67]\nds_write_b128 v9, v[68:71] offset:16\ns_waitcnt lgkmcnt(0)")
        e(f"v_mov_b32 v6, {L_SIG['mr']}\nv_mov_b32 v8, 1\ns_mov_b64 exec, 1\nds_add_rtn_u32 v8, v6, v8\ns_waitcnt lgkmcnt(0)\nv_readfirstlane_b32 s43, v8\ns_mov_b64 exec, -1")
        e(f"s_cmp_lg_u32 s43, 3\ns_cbranch_scc1 {L('mrx')}")
        e(f"v_lshlrev_b32 v9, 2, v2\nv_add_u32 v10, {MRL}, v9")
        for w_ in range(4): e(f"ds_read_b32 v{12+w_}, v10 offset:{w_*256}")
        e("s_waitcnt lgkmcnt(0)\nv_add_f32 v12, v12, v13\nv_add_f32 v14, v14, v15\nv_add_f32 v12, v12, v14")
        k.srd(52, P_WS, WS_MODP, 4 * 6144 * 4)
        e("s_mul_i32 s43, s64, 24576\ns_lshl_b32 s44, s65, 8\ns_add_u32 s43, s43, s44")
        e(f"buffer_store_dword v12, v9, s[52:55], s43 offen{SCS}\ns_waitcnt vmcnt(0)")
        if "nochain" in OPT:
            e(f"v_mov_b32 v6, {C_MRALL*256}\nv_mov_b32 v8, 1\ns_mov_b64 exec, 1\nbuffer_atomic_add v8, v6, {s(CNT,4)}, 0 offen sc1\ns_mov_b64 exec, -1")
        else:
            k.srd(60, P_WS, WS_MODF, 6144 * 4)
            e(f"s_sub_u32 s45, s65, 32\ns_add_u32 s45, s45, {C_MR}\ns_lshl_b32 s45, s45, 8\nv_mov_b32 v6, s45\nv_mov_b32 v8, 1\ns_mov_b64 exec, 1")
            e(f"buffer_atomic_add v8, v6, {s(CNT,4)}, 0 offen sc0 sc1\ns_waitcnt vmcnt(0)\nv_readfirstlane_b32 s45, v8\ns_mov_b64 exec, -1")
            e(f"s_cmp_lg_u32 s45, 3\ns_cbranch_scc1 {L('mrx')}")
            for p_ in range(4):
                e(f"s_add_u32 s45, s44, {p_*24576}\nbuffer_load_dword v{12+p_}, v9, s[52:55], s45 offen{SC}")
            e("s_waitcnt vmcnt(0)\nv_add_f32 v12, v12, v13\nv_add_f32 v14, v14, v15\nv_add_f32 v12, v12, v14")
            round_bf16(e, 12)
            e(f"buffer_store_dword v12, v9, s[60:63], s44 offen{SCS}\ns_waitcnt vmcnt(0)")
            e(f"v_mov_b32 v6, {C_MRALL*256}\nv_mov_b32 v8, 1\ns_mov_b64 exec, 1")
            e(f"buffer_atomic_add v8, v6, {s(CNT,4)}, 0 offen sc0 sc1\ns_waitcnt vmcnt(0)\nv_readfirstlane_b32 s45, v8\ns_mov_b64 exec, -1")
            e(f"s_cmp_lg_u32 s45, 63\ns_cbranch_scc1 {L('mrx')}")
            e(f"v_lshlrev_b32 v6, 7, v2\nv_add_u32 v6, {FL['mr']}, v6\nv_mov_b32 v8, 1\ns_mov_b64 exec, 0xff\nbuffer_store_dword v8, v6, {s(CNT,4)}, 0 offen sc1\ns_mov_b64 exec, -1")
        e(f"{L('mrx')}:")
    if epi != "qkv": e("s_barrier")
    e(f"s_branch {nxt_l}")

def attn_phase(k, nxt_c, nxt_l, pf):
    e = k.e
    L = lambda n: k.lab("att_" + n)
    old4 = "nsl3" not in OPT
    NSL = 4 if old4 else 3; KPS = 128; SBK = KPS * 64
    HB = 2 * SBK; SB = 2 * HB
    FLAG = CTL + 164 if old4 else NSL * SB
    S0 = 1 if old4 else 0
    e(f"{L('c')}:\n{L('l')}:")
    e("s_and_b32 s36, s2, 7\ns_lshr_b32 s37, s2, 3\ns_lshl_b32 s36, s36, 2\ns_lshr_b32 s38, s37, 3\ns_add_u32 s25, s36, s38")
    e("s_and_b32 s26, s37, 7")
    e("s_and_b32 s34, s24, 3\ns_lshr_b32 s27, s24, 2")
    e("s_mov_b32 s57, s34")
    e("s_lshl_b32 s40, s25, 17")
    e(f"s_add_u32 s32, s{P_WS}, {WS_QKV:#x}\ns_addc_u32 s33, s{P_WS+1}, 0\ns_add_u32 s32, s32, s40\ns_addc_u32 s33, s33, 0")
    k.srd(4, 32, 0, S * 64); k.srd(8, 32, 32 * S * 64, S * 64); k.srd(12, 32, 64 * S * 64, S * 64)
    k.srd(16, P_WS, WS_O, S * D * 2)
    QG, KH = 57, 27
    Q = 4 + 4; KF = 24; VF = 32
    NEG = 40; O = 72; LS = 104; SEL = 112
    SS = [[116, 132], [148, 164]]
    PP = [[180, 188], [196, 204]]
    AK0, AK1, AV, AN0, AN1, DK, DV = 212, 213, 214, 215, 216, 217, 218
    HH, QL = 219, 220
    T = 221
    PFD = 230
    e(f"v_and_b32 v{QL}, 31, v2\nv_lshrrev_b32 v{HH}, 5, v2")
    e(f"s_lshl_b32 s39, s26, 8\ns_lshl_b32 s40, s{QG}, 6\ns_add_u32 s39, s39, s40")
    e(f"v_lshrrev_b32 v{T}, 2, v2\ns_lshl_b32 s40, s{QG}, 5\nv_add_u32 v{T}, s40, v{T}\nv_lshlrev_b32 v{T}, 6, v{T}")
    e(f"v_and_b32 v{T+1}, 3, v2\nv_lshrrev_b32 v{T+2}, 4, v2\nv_xor_b32 v{T+1}, v{T+1}, v{T+2}\nv_lshlrev_b32 v{T+1}, 4, v{T+1}")
    e(f"v_add_u32 v{DK}, v{T}, v{T+1}")
    e(f"v_lshlrev_b32 v{DV}, 4, v2\ns_lshl_b32 s40, s{QG}, 11\nv_add_u32 v{DV}, s40, v{DV}")
    e(f"s_lshl_b32 s41, s{QG}, 11\ns_mul_i32 s40, s{KH}, {HB}\ns_add_u32 s41, s41, s40")
    e(f"s_mul_i32 s45, s{KH}, {S*32}")
    def addr_setup():
        e(f"s_mul_i32 s40, s{KH}, {HB}")
        e(f"v_lshrrev_b32 v{T}, 2, v{QL}\nv_and_b32 v{T}, 3, v{T}\nv_xor_b32 v{T}, v{T}, v{HH}\nv_lshlrev_b32 v{T}, 4, v{T}")
        e(f"v_lshlrev_b32 v{T+1}, 6, v{QL}\nv_add_u32 v{T+3}, v{T}, v{T+1}")
        e(f"v_add_u32 v{AK0}, s40, v{T+3}\nv_xor_b32 v{AK1}, 32, v{AK0}")
        e(f"v_and_b32 v{T}, 15, v2\nv_lshrrev_b32 v{T}, 2, v{T}\nv_lshlrev_b32 v{T+1}, 2, v{HH}\nv_add_u32 v{T}, v{T}, v{T+1}\nv_lshlrev_b32 v{T}, 6, v{T}")
        e(f"v_lshrrev_b32 v{T+1}, 4, v2\nv_and_b32 v{T+1}, 1, v{T+1}\nv_lshlrev_b32 v{T+1}, 5, v{T+1}\nv_add_u32 v{T}, v{T}, v{T+1}")
        e(f"v_and_b32 v{T+1}, 3, v2\nv_lshlrev_b32 v{T+1}, 3, v{T+1}\nv_add_u32 v{T}, v{T}, v{T+1}\nv_add_u32 v{T}, {SBK}, v{T}\nv_add_u32 v{AV}, s40, v{T}")
    addr_setup()
    if S0: e(f"v_add_u32 v{AK0}, {S0*SB}, v{AK0}\nv_add_u32 v{AK1}, {S0*SB}, v{AK1}\nv_add_u32 v{AV}, {S0*SB}, v{AV}\nv_add_u32 v{T+3}, {S0*SB}, v{T+3}")
    smf = "nosmf" not in OPT
    SIX = 239
    def dense_selector():
        e(f"v_lshrrev_b32 v{T}, 4, v2\nv_lshrrev_b32 v{T+1}, 2, v2\nv_xor_b32 v{T}, v{T}, v{T+1}\nv_and_b32 v{T}, 1, v{T}")
        e(f"v_cmp_eq_u32 vcc, 0, v{T}\nv_mov_b32 v{T+1}, 0x3f803f80")
        e(f"v_cndmask_b32 v{SEL}, 0, v{T+1}, vcc")
        for r in range(1, 4): e(f"v_mov_b32 v{SEL+r}, v{SEL}")
    if smf:
        e(f"v_and_b32 v{T}, 4, v2\nv_cmp_eq_u32 vcc, 0, v{T}\nv_mov_b32 v{T+1}, 0x3f803f80")
        e(f"v_cndmask_b32 v{SEL}, 0, v{T+1}, vcc\nv_cndmask_b32 v{SEL+2}, v{T+1}, 0, vcc\nv_mov_b32 v{SEL+1}, v{SEL}\nv_mov_b32 v{SEL+3}, v{SEL+2}")
        e(f"v_and_b32 v{T}, 2, v2\nv_cmp_eq_u32 vcc, 0, v{T}\nv_mov_b32 v{T+1}, 0xeeeeeeee\nv_mov_b32 v{T+2}, 0x44444444\nv_cndmask_b32 v{SIX}, v{T+1}, v{T+2}, vcc")
    else:
        dense_selector()
    def zero_acc():
        for r in range(32): e(f"v_mov_b32 v{O+r}, 0")
        for r in range(8): e(f"v_mov_b32 v{LS+r}, 0")
    zero_acc()
    for r in range(8): e(f"v_mov_b32 v{VF+r}, 0")
    for qb in range(2):
        for r in range(8): e(f"v_mov_b32 v{PP[1][qb]+r}, 0")
    e(f"s_cmp_lg_u32 s24, 4\ns_cbranch_scc1 {L('nodep')}")
    if "noflags" in OPT:
        e(f"v_lshlrev_b32 v6, 10, v2\ns_lshl_b32 s35, s25, 5\nv_add_u32 v6, s35, v6\nv_mul_u32_u24 v6, {(65536 + 191) // 192}, v6\nv_lshrrev_b32 v6, 16, v6")
        e(f"v_add_u32 v6, {C_QKV}, v6\nv_lshlrev_b32 v6, 8, v6")
        k.poll("att", None, 16, lanes=3)
    else:
        e(f"s_lshl_b32 s35, s25, 8\ns_add_u32 s35, s35, {FL['att']}")
        k.wait_flags("att", 48, 35)
    e(f"{L('nodep')}:")
    e("s_barrier")
    k.st(3)
    e(f"v_mov_b32 v{T}, {FLAG}\nv_mov_b32 v{T+1}, 0\nds_write_b32 v{T}, v{T+1}")
    e(f"v_add_u32 v{T}, s39, v{QL}\nv_lshlrev_b32 v{T}, 6, v{T}\nv_lshlrev_b32 v{T+1}, 4, v{HH}\nv_add_u32 v{T}, v{T}, v{T+1}")
    for qb in range(2):
        e(f"buffer_load_dwordx4 {v(Q+8*qb,4)}, v{T}, s[4:7], 0 offen offset:{qb*2048}{SC}")
        e(f"buffer_load_dwordx4 {v(Q+8*qb+4,4)}, v{T}, s[4:7], 0 offen offset:{qb*2048+32}{SC}")
    def dma(slot_sreg):
        e(f"s_add_u32 s43, {slot_sreg}, s41\ns_add_u32 s46, s42, s45")
        e(f"s_mov_b32 m0, s43\nbuffer_load_dwordx4 v{DK}, s[8:11], s46 offen{SC} lds")
        e(f"s_add_u32 m0, s43, {SBK}\nbuffer_load_dwordx4 v{DV}, s[12:15], s46 offen{SC} lds")
        e(f"s_add_u32 s46, s46, 1024\ns_add_u32 m0, s43, 1024\nbuffer_load_dwordx4 v{DK}, s[8:11], s46 offen{SC} lds")
        e(f"s_add_u32 m0, s43, {SBK+1024}\nbuffer_load_dwordx4 v{DV}, s[12:15], s46 offen{SC} lds")
        e(f"s_add_u32 s42, s42, {SBK}")
    def dma_both(slot_sreg):
        e(f"s_lshl_b32 s43, s{QG}, 11\ns_add_u32 s43, s43, {slot_sreg}")
        for hf in range(2):
            e(f"s_add_u32 s46, s42, {hf*S*32}")
            e(f"s_add_u32 m0, s43, {hf*HB}\nbuffer_load_dwordx4 v{DK}, s[8:11], s46 offen{SC} lds")
            e(f"s_add_u32 m0, s43, {hf*HB+SBK}\nbuffer_load_dwordx4 v{DV}, s[12:15], s46 offen{SC} lds")
            e(f"s_add_u32 s46, s46, 1024\ns_add_u32 m0, s43, {hf*HB+1024}\nbuffer_load_dwordx4 v{DK}, s[8:11], s46 offen{SC} lds")
            e(f"s_add_u32 m0, s43, {hf*HB+SBK+1024}\nbuffer_load_dwordx4 v{DV}, s[12:15], s46 offen{SC} lds")
    def kread(a0, a1, t):
        return [f"ds_read_b128 {v(KF,4)}, v{a0} offset:{t*2048}", f"ds_read_b128 {v(KF+4,4)}, v{a1} offset:{t*2048}"]
    def vread(t):
        return [f"ds_read_b64_tr_b16 {v(VF+4*m+2*hh,2)}, v{AV} offset:{t*2048+(16*m+8*hh)*64}" for m in range(2) for hh in range(2)]
    def qk(qb, dst, c):
        return [f"v_mfma_f32_32x32x16_bf16 {v(dst,16)}, {v(KF,4)}, {v(Q+8*qb,4)}, {c}",
                f"v_mfma_f32_32x32x16_bf16 {v(dst,16)}, {v(KF+4,4)}, {v(Q+8*qb+4,4)}, {v(dst,16)}"]
    def pv(qb, P):
        o, l = O + 16 * qb, LS + 4 * qb
        return [f"v_mfma_f32_32x32x16_bf16 {v(o,16)}, {v(VF,4)}, {v(P,4)}, {v(o,16)}",
                f"v_mfma_f32_16x16x32_bf16 {v(l,4)}, {v(SEL,4)}, {v(P,4)}, {v(l,4)}",
                f"v_mfma_f32_32x32x16_bf16 {v(o,16)}, {v(VF+4,4)}, {v(P+4,4)}, {v(o,16)}",
                f"v_mfma_f32_16x16x32_bf16 {v(l,4)}, {v(SEL,4)}, {v(P+4,4)}, {v(l,4)}"]
    def lane_max16(src, dst, tmp):
        e(f"v_max3_f32 v{dst}, v{src}, v{src+1}, v{src+2}")
        for r in range(3, 15, 2): e(f"v_max3_f32 v{dst}, v{dst}, v{src+r}, v{src+r+1}")
        e(f"v_max_f32 v{dst}, v{dst}, v{src+15}")
        e(f"v_mov_b32 v{tmp}, v{dst}\nv_permlane32_swap_b32 v{tmp}, v{dst}\nv_max_f32 v{dst}, v{dst}, v{tmp}")
    NST = S // 2 // KPS
    HALF = S * 32
    e("s_mov_b32 s42, 0")
    for st in range(2):
        e(f"s_mov_b32 s44, {(st+S0)*SB}")
        dma("s44")
    e("s_waitcnt vmcnt(4)\ns_barrier")
    if "stloop" in OPT: k.st(13)
    e(f"v_xor_b32 v{T+4}, 32, v{T+3}")
    for l in kread(T + 3, T + 4, 0): e(l)
    e("s_waitcnt lgkmcnt(0)")
    for qb in range(2):
        for l in qk(qb, SS[1][qb], "0"): e(l)
    for l in kread(AK0, AK1, 0): e(l)
    for qb in range(2):
        lane_max16(SS[1][qb], T, T + 1)
        e(f"v_add_f32 v{T}, {f32(40.0)}, v{T}")
        for r in range(16): e(f"v_sub_f32 v{NEG+16*qb+r}, 0, v{T}")
    e("s_waitcnt lgkmcnt(0)")
    for qb in range(2):
        for l in qk(qb, SS[0][qb], v(NEG + 16 * qb, 16)): e(l)
    for l in kread(AK0, AK1, 1): e(l)
    e(f"v_add_u32 v{AN0}, {SB}, v{AK0}\nv_add_u32 v{AN1}, {SB}, v{AK1}")
    e(f"s_mov_b32 s47, {1+S0}\ns_mov_b32 s48, {SB}\ns_mov_b32 s49, {-(NSL-1)*SB & 0xffffffff:#x}")
    e(f"s_mov_b32 s50, {(2+S0)*SB}")
    e("s_waitcnt lgkmcnt(0)")
    e("s_lshl_b32 s56, s2, 3\ns_add_u32 s56, s56, s24\ns_mul_i32 s58, s56, 52429\ns_lshr_b32 s58, s58, 18\ns_mul_i32 s58, s58, 5\ns_sub_u32 s58, s56, s58\ns_sub_u32 s58, 7, s58")
    if "pfall" in OPT: e(f"s_mov_b32 s58, {PFSTAGE}")
    flg = "flg" in OPT
    PG, PAO, PAG, PVV = 232, 236, 237, 238
    if flg:
        e(f"s_lshl_b32 s52, s{KH}, 4\ns_add_u32 s52, s52, {CTL+128}\nv_mov_b32 v{PAG}, s52\ns_lshl_b32 s53, s{QG}, 2\ns_add_u32 s52, s52, s53\nv_mov_b32 v{PAO}, s52\ns_mov_b32 s59, 1\ns_mov_b32 s53, 0")
        e("s_barrier")
    e(f"s_mov_b32 s44, {NST}")
    if "prio1" in OPT: e(f"s_cmp_lt_u32 s24, 4\ns_cbranch_scc1 {L('noprio')}\ns_setprio 1\n{L('noprio')}:")
    if "prio0" in OPT: e(f"s_cmp_ge_u32 s24, 4\ns_cbranch_scc1 {L('noprio')}\ns_setprio 1\n{L('noprio')}:")
    if "stloop" in OPT: k.st(12)
    align(k, "att")
    e(f"{L('floop')}:")
    for t in range(4):
        par = t & 1
        if t == 2:
            if flg:
                e("s_waitcnt lgkmcnt(4)")
                e(f"{L('pchk')}:")
                e(f"v_min3_u32 v{PVV}, v{PG}, v{PG+1}, v{PG+2}\nv_min_u32 v{PVV}, v{PVV}, v{PG+3}\nv_readfirstlane_b32 s52, v{PVV}")
                e(f"s_cmp_ge_u32 s52, s59\ns_cbranch_scc1 {L('pok')}")
                e(f"ds_read_b128 {v(PG,4)}, v{PAG}\ns_waitcnt lgkmcnt(0)\ns_add_u32 s53, s53, 1\ns_cmp_lt_u32 s53, {SPIN_MAX*16}\ns_cbranch_scc1 {L('pchk')}")
                e(f"{L('pok')}:")
                e(f"s_cmp_ge_u32 s42, {HALF}\ns_cbranch_scc1 {L('cont')}")
            elif old4:
                e(f"s_cmp_ge_u32 s42, {HALF}\ns_cbranch_scc1 {L('nodma')}")
                e(f"s_cmp_lg_u32 s{KH}, 0\ns_cbranch_scc1 {L('yw')}")
                dma_both("s50")
                e(f"s_waitcnt vmcnt(8)\ns_branch {L('yb')}")
                e(f"{L('yw')}:\ns_cmp_lg_u32 s44, {NST}\ns_cbranch_scc1 {L('yb')}\ns_waitcnt vmcnt(0)")
                e(f"{L('yb')}:\ns_barrier\ns_add_u32 s42, s42, {SBK}")
            else:
                e(f"s_cmp_ge_u32 s42, {HALF}\ns_cbranch_scc1 {L('nodma')}")
                e(f"s_waitcnt vmcnt({4*(NSL-3)})\ns_barrier")
            if not old4 or flg: dma("s50")
            e(f"s_add_u32 s50, s50, {SB}\ns_cmp_eq_u32 s50, {NSL*SB}\ns_cselect_b32 s50, 0, s50")
            if pf:
                e(f"s_cmp_lg_u32 s44, s58\ns_cbranch_scc1 {L('cont')}")
                e(f"s_mov_b32 s60, s{P_WO}\ns_mov_b32 s61, s{P_WO+1}\ns_mov_b32 s62, {D*D*2}\ns_mov_b32 s63, 0x20000\ns_mov_b32 s52, s56")
                e(f"s_cmp_lt_u32 s56, 256\ns_cbranch_scc1 {L('pfgo')}")
                e(f"s_mov_b32 s60, s{P_W1}\ns_mov_b32 s61, s{P_W1+1}\ns_mov_b32 s62, {D*DFF*2}\ns_mov_b32 s63, 0x20000\ns_sub_u32 s52, s56, 256")
                e(f"s_cmp_lt_u32 s56, 1152\ns_cbranch_scc1 {L('pfgo')}")
                e(f"s_mov_b32 s60, s{P_W2}\ns_mov_b32 s61, s{P_W2+1}\ns_mov_b32 s62, {D*DFF*2}\ns_mov_b32 s63, 0x20000\ns_sub_u32 s52, s56, 1152")
                e(f"{L('pfgo')}:")
                e(f"s_lshl_b32 s52, s52, 13\nv_lshlrev_b32 v{T}, 7, v2\nbuffer_load_dword v{PFD}, v{T}, s[60:63], s52 offen")
                if "mrwo" in OPT:
                    e(f"s_bitcmp1_b32 s56, 0\ns_cbranch_scc1 {L('nowm')}")
                    e(f"s_load_dwordx2 s[60:61], s[0:1], {KA_WMOD}\ns_lshr_b32 s52, s56, 1\ns_mul_i32 s52, s52, 12288\ns_add_u32 s52, s52, 4096\ns_waitcnt lgkmcnt(0)")
                    e(f"s_mov_b32 s62, {1024*6144*2}\ns_mov_b32 s63, 0x20000\nbuffer_load_dword v{PFD}, v{T}, s[60:63], s52 offen")
                    e(f"{L('nowm')}:")
                k.code_touch("a", k.lab("att_cont"), k.lab("f1_l"), 24, 8, 1)
            if not flg:
                e(f"s_branch {L('cont')}")
                e(f"{L('nodma')}:")
                e("s_waitcnt vmcnt(0)\ns_barrier")
            e(f"{L('cont')}:")
        kr = kread(AN0, AN1, (t + 2) % 4) if t >= 2 else kread(AK0, AK1, t + 2)
        vr = vread(t)
        m = []; p = []; E = []; C = []
        for qb in range(2):
            cur = SS[par][qb]; nxt = SS[1 - par][qb]; pc = PP[par][qb]; pp = PP[1 - par][qb]
            m.append(qk(qb, nxt, v(NEG + 16 * qb, 16))); p.append(pv(qb, pp))
            E.append([f"v_exp_f32 v{cur+r}, v{cur+r}" for r in range(16)])
            C.append([f"v_cvt_pk_bf16_f32 v{pc+r}, v{cur+2*r}, v{cur+2*r+1}" for r in range(8)])
        E0, E1 = E; C0, C1 = C
        seq = ["s_waitcnt lgkmcnt(4)",
               m[0][0], E0[0], E0[1], E0[2], E0[3],
               m[1][0], E0[4], E0[5], C0[0], C0[1], E0[6],
               m[0][1], E0[7], C0[2], E0[8], E0[9], C0[3],
               m[1][1], kr[0], kr[1], E0[10], E0[11], E0[12], E0[13], "s_waitcnt lgkmcnt(2)",
               p[0][0], C0[4], C0[5], E0[14], E0[15], C0[6], C0[7],
               p[0][1], E1[0], E1[1],
               p[1][0], E1[2], E1[3], C1[0], C1[1], E1[4],
               p[1][1], E1[5], E1[6],
               p[0][2], E1[7], C1[2], E1[8], E1[9], C1[3],
               p[0][3], E1[10], E1[11],
               p[1][2], vr[0], vr[1], vr[2], vr[3], E1[12], E1[13], C1[4], C1[5], E1[14],
               p[1][3], E1[15], C1[6], C1[7]]
        if smf:
            out_ = []
            for x_ in seq:
                if "16x16x32" in x_:
                    qb_ = 0 if x_ in p[0] else 1
                    if x_ == p[qb_][1]: continue
                    out_.append(f"v_smfmac_f32_16x16x64_bf16 {v(LS+4*qb_,4)}, {v(SEL,4)}, {v(PP[1-par][qb_],8)}, v{SIX}")
                else: out_.append(x_)
            seq = out_
        if flg and t == 1:
            i_ = seq.index(m[0][0])
            seq = seq[:i_ + 1] + ["s_waitcnt vmcnt(0)", f"v_mov_b32 v{PVV}, s59", f"ds_write_b32 v{PAO}, v{PVV}"] + seq[i_ + 1:]
            seq[seq.index("s_waitcnt lgkmcnt(2)")] = "s_waitcnt lgkmcnt(3)"
            i_ = seq.index(vr[0])
            seq = seq[:i_] + [f"ds_read_b128 {v(PG,4)}, v{PAG}"] + seq[i_:]
        if flg and t == 2: seq = seq[1:]
        for l in seq: e(l)
        if t == 3 and flg: e("s_add_u32 s59, s59, 1")
        if t == 3:
            e(f"v_sub_u32 v{T}, v{AN0}, v{AK0}\nv_add_u32 v{AV}, v{AV}, v{T}\nv_mov_b32 v{AK0}, v{AN0}\nv_mov_b32 v{AK1}, v{AN1}")
            e(f"s_add_u32 s47, s47, 1\ns_cmp_eq_u32 s47, {NSL}\ns_cselect_b32 s51, s49, s48\ns_cselect_b32 s47, 0, s47")
            e(f"v_add_u32 v{AN0}, s51, v{AN0}\nv_add_u32 v{AN1}, s51, v{AN1}")
    e(f"s_sub_u32 s44, s44, 1\ns_cmp_lg_u32 s44, 0\ns_cbranch_scc1 {L('floop')}")
    e("s_waitcnt lgkmcnt(0)")
    for qb in range(2):
        if smf:
            pl = pv(qb, PP[1][qb])
            e(pl[0]); e(pl[2]); e(f"v_smfmac_f32_16x16x64_bf16 {v(LS+4*qb,4)}, {v(SEL,4)}, {v(PP[1][qb],8)}, v{SIX}")
        else:
            for l in pv(qb, PP[1][qb]): e(l)
    if smf: e(f"v_add_f32 v{LS}, v{LS}, v{LS+2}\nv_add_f32 v{LS+4}, v{LS+4}, v{LS+6}")
    if "prio1" in OPT or "prio0" in OPT: e("s_setprio 0")
    k.st(4)
    def merge(safe, M=None):
        e("s_barrier")
        e(f"s_cmp_eq_u32 s{KH}, 0\ns_cbranch_scc1 {L('keep0' + safe)}")
        for r in range(16): e(f"v_swap_b32 v{O+r}, v{O+16+r}")
        e(f"v_swap_b32 v{LS}, v{LS+4}")
        if M is not None: e(f"v_swap_b32 v{M}, v{M+1}")
        e(f"{L('keep0' + safe)}:")
        e(f"s_mul_i32 s52, s24, {5*1024+256}\nv_lshlrev_b32 v{T}, 4, v2\nv_add_u32 v{T}, s52, v{T}")
        for g in range(4): e(f"ds_write_b128 v{T}, {v(O+16+4*g,4)} offset:{g*1024}")
        e(f"v_lshlrev_b32 v{T+1}, 2, v2\nv_add_u32 v{T+1}, s52, v{T+1}")
        e(f"ds_write_b32 v{T+1}, v{LS+4} offset:4096")
        if M is not None: e(f"ds_write_b32 v{T+1}, v{M+1} offset:{4096+256}")
        e("s_waitcnt lgkmcnt(0)\ns_barrier")
        e(f"s_xor_b32 s52, s24, 4\ns_mul_i32 s52, s52, {5*1024+256}\nv_lshlrev_b32 v{T}, 4, v2\nv_add_u32 v{T}, s52, v{T}")
        for g in range(4): e(f"ds_read_b128 {v(O+16+4*g,4)}, v{T} offset:{g*1024}")
        e(f"v_lshlrev_b32 v{T+1}, 2, v2\nv_add_u32 v{T+1}, s52, v{T+1}")
        e(f"ds_read_b32 v{LS+4}, v{T+1} offset:4096")
        if M is not None: e(f"ds_read_b32 v{M+1}, v{T+1} offset:{4096+256}")
        e("s_waitcnt lgkmcnt(0)")
        if M is None:
            for r in range(16): e(f"v_add_f32 v{O+r}, v{O+r}, v{O+16+r}")
            e(f"v_add_f32 v{LS}, v{LS}, v{LS+4}")
        else:
            e(f"v_max_f32 v{T}, v{M}, v{M+1}\nv_sub_f32 v{T+1}, v{M}, v{T}\nv_sub_f32 v{T+2}, v{M+1}, v{T}\nv_exp_f32 v{T+1}, v{T+1}\nv_exp_f32 v{T+2}, v{T+2}")
            for r in range(16): e(f"v_mul_f32 v{O+r}, v{O+r}, v{T+1}\nv_fmac_f32 v{O+r}, v{O+16+r}, v{T+2}")
            e(f"v_mul_f32 v{LS}, v{LS}, v{T+1}\nv_fmac_f32 v{LS}, v{LS+4}, v{T+2}")
        e(f"v_rcp_f32 v{T}, v{LS}")
        for r in range(16): e(f"v_mul_f32 v{O+r}, v{O+r}, v{T}")
    XE = 98304 if old4 else 98432
    e(f"v_add_f32 v{T+2}, abs(v{O}), abs(v{O+1})\nv_add_f32 v{T+3}, abs(v{O+16}), abs(v{O+17})")
    for r in range(2, 16): e(f"v_add_f32 v{T+2}, v{T+2}, abs(v{O+r})\nv_add_f32 v{T+3}, v{T+3}, abs(v{O+16+r})")
    e(f"v_add_f32 v{T+2}, v{T+2}, v{T+3}\nv_mov_b32 v{T+1}, {f32(2.0**126)}\nv_cmp_nlt_f32 vcc, v{T+2}, v{T+1}\ns_mov_b64 s[46:47], vcc")
    e(f"v_add_f32 v{T+2}, v{LS}, v{LS+4}\nv_mov_b32 v{T+1}, {f32(2.0**119)}\nv_cmp_nlt_f32 vcc, v{T+2}, v{T+1}\ns_or_b64 s[46:47], s[46:47], vcc")
    e(f"s_cmp_eq_u64 s[46:47], 0\ns_cbranch_scc1 {L('okwave')}")
    e(f"v_mov_b32 v{T+1}, {FLAG}\nv_mov_b32 v{T+2}, 1\nds_write_b32 v{T+1}, v{T+2}")
    e(f"{L('okwave')}:")
    e(f"s_mul_i32 s52, s24, 4352\ns_add_u32 s52, s52, {XE}\nv_lshlrev_b32 v{T}, 4, v2\nv_add_u32 v{T}, s52, v{T}\nv_lshlrev_b32 v{T+1}, 2, v2\nv_add_u32 v{T+1}, s52, v{T+1}")
    e(f"s_cmp_eq_u32 s{KH}, 0\ns_cbranch_scc1 {L('snd0')}")
    for g in range(4): e(f"ds_write_b128 v{T}, {v(O+4*g,4)} offset:{g*1024}")
    e(f"ds_write_b32 v{T+1}, v{LS} offset:4096\ns_branch {L('snd1')}")
    e(f"{L('snd0')}:")
    for g in range(4): e(f"ds_write_b128 v{T}, {v(O+16+4*g,4)} offset:{g*1024}")
    e(f"ds_write_b32 v{T+1}, v{LS+4} offset:4096")
    e(f"{L('snd1')}:")
    e(f"s_xor_b32 s52, s24, 4\ns_mul_i32 s52, s52, 4352\ns_add_u32 s52, s52, {XE}\nv_lshlrev_b32 v{T}, 4, v2\nv_add_u32 v{T}, s52, v{T}\nv_lshlrev_b32 v{T+1}, 2, v2\nv_add_u32 v{T+1}, s52, v{T+1}")
    e(f"v_mov_b32 v{T+3}, {FLAG}")
    e("s_waitcnt lgkmcnt(0)\ns_barrier")
    e(f"ds_read_b32 v{T+2}, v{T+3}")
    e(f"s_cmp_eq_u32 s{KH}, 0\ns_cbranch_scc1 {L('rcv0')}")
    for g in range(4): e(f"ds_read_b128 {v(O+4*g,4)}, v{T} offset:{g*1024}")
    e(f"ds_read_b32 v{LS}, v{T+1} offset:4096\ns_branch {L('rcv1')}")
    e(f"{L('rcv0')}:")
    for g in range(4): e(f"ds_read_b128 {v(O+16+4*g,4)}, v{T} offset:{g*1024}")
    e(f"ds_read_b32 v{LS+4}, v{T+1} offset:4096")
    e(f"{L('rcv1')}:")
    e(f"s_waitcnt lgkmcnt(5)\nv_readfirstlane_b32 s46, v{T+2}\ns_cmp_lg_u32 s46, 0\ns_cbranch_scc1 {L('safe')}")
    e("s_waitcnt lgkmcnt(0)")
    e(f"v_add_f32 v{LS}, v{LS}, v{LS+4}\nv_rcp_f32 v{T}, v{LS}")
    for r in range(0, 16, 2): e(f"v_pk_add_f32 {v(O+r,2)}, {v(O+r,2)}, {v(O+16+r,2)}")
    assert (T + 1) % 2 == 0
    e(f"v_mov_b32 v{T+1}, v{T}")
    for r in range(0, 16, 2): e(f"v_pk_mul_f32 {v(O+r,2)}, {v(O+r,2)}, {v(T+1,2)} op_sel_hi:[1,0]")
    e(f"{L('store')}:")
    if "statt" in OPT: k.st(12)
    P = PP[0][0]
    for r in range(8): e(f"v_cvt_pk_bf16_f32 v{P+r}, v{O+2*r}, v{O+2*r+1}")
    for b in (0, 4):
        e(f"v_permlane32_swap_b32 v{P+b}, v{P+b+2}\nv_permlane32_swap_b32 v{P+b+1}, v{P+b+3}")
    for r in range(4): e(f"v_permlane16_swap_b32 v{P+r}, v{P+4+r}")
    e(f"s_lshl_b32 s40, s{KH}, 5\ns_add_u32 s40, s40, s39")
    e(f"v_and_b32 v{T}, 15, v2\nv_add_u32 v{T}, s40, v{T}\nv_lshlrev_b32 v{T}, 11, v{T}")
    e(f"v_lshrrev_b32 v{T+1}, 4, v2\nv_and_b32 v{T+2}, 1, v{T+1}\nv_lshlrev_b32 v{T+2}, 5, v{T+2}\nv_lshrrev_b32 v{T+1}, 1, v{T+1}\nv_lshlrev_b32 v{T+1}, 4, v{T+1}")
    e(f"v_add_u32 v{T}, v{T}, v{T+1}\nv_add_u32 v{T}, v{T}, v{T+2}")
    e(f"s_lshl_b32 s40, s25, 6\ns_add_u32 s41, s40, {16*2048}")
    e(f"buffer_store_dwordx4 {v(P,4)}, v{T}, s[16:19], s40 offen{SCS}\nbuffer_store_dwordx4 {v(P+4,4)}, v{T}, s[16:19], s41 offen{SCS}")
    if "statt" in OPT: k.st(13)
    e(f"s_add_u32 s35, s26, {C_ATT}")
    k.signal("att", 8, 35, 32, (2, lambda: e((f"v_mov_b32 v6, {C_ATTALL*256}\nv_mov_b32 v7, 1\ns_mov_b64 exec, 1\nbuffer_atomic_add v7, v6, {s(CNT,4)}, 0 offen sc1\ns_mov_b64 exec, -1\n" if "alias" in OPT else "") + f"s_lshl_b32 s33, s26, 8\ns_lshl_b32 s34, s25, 2\ns_add_u32 s33, s33, s34\ns_add_u32 s33, s33, {FL['wo']}\nv_lshlrev_b32 v6, 7, v2\nv_add_u32 v6, s33, v6")))
    if "statt" in OPT: k.st(14, 7)
    e(f"s_cmp_ge_u32 s24, 4\ns_cbranch_scc1 {nxt_l}\ns_branch {nxt_c}")
    e(f"{L('safe')}:")
    e("s_waitcnt vmcnt(0) lgkmcnt(0)\ns_barrier")
    M = NEG; AL = NEG + 2
    SA = SS[0][0]; P0 = PP[0][0]
    zero_acc()
    if smf: dense_selector()
    e(f"v_mov_b32 v{M}, {f32(-3.0e38)}\nv_mov_b32 v{M+1}, {f32(-3.0e38)}")
    addr_setup()
    e("s_mov_b32 s42, 0")
    e(f"s_mov_b32 s44, {NST}")
    e(f"{L('sloop')}:")
    e("s_barrier")
    e("s_mov_b32 s53, 0")
    dma("s53")
    e("s_waitcnt vmcnt(0)\ns_barrier")
    for t in range(4):
        for l in kread(AK0, AK1, t) + vread(t): e(l)
        e("s_waitcnt lgkmcnt(0)")
        for qb in range(2):
            for l in qk(qb, SA, "0"): e(l)
            lane_max16(SA, T, T + 1)
            e(f"v_max_f32 v{T}, v{T}, v{M+qb}\nv_sub_f32 v{AL}, v{M+qb}, v{T}\nv_exp_f32 v{AL}, v{AL}\nv_mov_b32 v{M+qb}, v{T}")
            for r in range(16): e(f"v_sub_f32 v{SA+r}, v{SA+r}, v{T}\nv_exp_f32 v{SA+r}, v{SA+r}")
            for r in range(16): e(f"v_mul_f32 v{O+16*qb+r}, v{O+16*qb+r}, v{AL}")
            for r in range(4): e(f"v_mul_f32 v{LS+4*qb+r}, v{LS+4*qb+r}, v{AL}")
            for r in range(8): e(f"v_cvt_pk_bf16_f32 v{P0+r}, v{SA+2*r}, v{SA+2*r+1}")
            for l in pv(qb, P0): e(l)
    e(f"s_sub_u32 s44, s44, 1\ns_cmp_lg_u32 s44, 0\ns_cbranch_scc1 {L('sloop')}")
    merge("s", M)
    e("s_barrier")
    e(f"s_branch {L('store')}")


GL = 134144
DBG = 84

def g_final(k, tag):
    e = k.e; L = lambda n: k.lab("g_" + tag + n)
    e(f"v_mov_b32 v6, {L_SIG['g']}\nv_mov_b32 v7, 1\ns_mov_b64 exec, 1\nds_add_rtn_u32 v7, v6, v7\ns_waitcnt lgkmcnt(0)\nv_readfirstlane_b32 s36, v7\ns_mov_b64 exec, -1")
    e(f"s_cmp_lg_u32 s36, 4\ns_cbranch_scc1 {L('x')}")
    e(f"v_lshlrev_b32 v6, 2, v2\nv_add_u32 v7, {GL}, v6")
    for w in range(4): e(f"ds_read_b32 v{180+w}, v7 offset:{w*256}")
    e("s_waitcnt lgkmcnt(0)\nv_add_f32 v180, v180, v181\nv_add_f32 v182, v182, v183\nv_add_f32 v180, v180, v182")
    k.srd(56, P_WS, WS_MODP, 4 * 6144 * 4)
    e("s_and_b32 s36, s2, 3\ns_mul_i32 s36, s36, 24576\ns_lshr_b32 s37, s2, 2\ns_lshl_b32 s37, s37, 8\ns_add_u32 s36, s36, s37")
    e(f"buffer_store_dword v180, v6, s[56:59], s36 offen{SCS}\ns_waitcnt vmcnt(0)")
    e(f"v_mov_b32 v6, 0\nv_mov_b32 v7, 1\ns_mov_b64 exec, 1\nbuffer_atomic_add v7, v6, {s(DBG,4)}, 0 offen sc0 sc1\ns_waitcnt vmcnt(0)\nv_readfirstlane_b32 s36, v7")
    e(f"s_cmp_lg_u32 s36, 127\ns_cbranch_scc1 {L('y')}")
    e(f"v_mov_b32 v7, 1\nbuffer_store_dword v7, v6, {s(DBG,4)}, 0 offen offset:128 sc1")
    e(f"{L('y')}:\ns_mov_b64 exec, -1\n{L('x')}:")

def g_compute(k):
    e = k.e; L = lambda n: k.lab("g_" + n)
    e(f"s_cmp_ge_u32 s2, 128\ns_cbranch_scc1 {L('wait')}")
    e(f"s_load_dwordx4 s[36:39], s[0:1], {KA_C}")
    e("s_and_b32 s40, s2, 3\ns_lshr_b32 s41, s2, 2")
    e("v_lshrrev_b32 v6, 3, v0\nv_and_b32 v7, 7, v0\nv_mov_b32 v178, v7")
    e("s_lshl_b32 s42, s40, 8\nv_add_u32 v6, s42, v6\nv_lshlrev_b32 v4, 1, v6")
    e("v_mul_u32_u24 v5, 12288, v6\nv_lshlrev_b32 v6, 4, v7\nv_add_u32 v5, v5, v6\ns_lshl_b32 s42, s41, 7\nv_add_u32 v5, s42, v5")
    e("s_waitcnt lgkmcnt(0)")
    k.srd(56, 36, 0, 2048); k.srd(60, 38, 0, 1024 * 6144 * 2)
    for i in range(8): e(f"buffer_load_ushort v{128+i}, v4, s[56:59], 0 offen offset:{i*64}")
    for i in range(8): e(f"s_mov_b32 s42, {i*32*12288}\nbuffer_load_dwordx4 {v(136+4*i,4)}, v5, s[60:63], s42 offen")
    gemv_finish(k, 128, 136, 168, 176)
    e(f"s_lshl_b32 s42, s24, 8\nv_lshlrev_b32 v5, 5, v178\nv_add_u32 v5, s42, v5\nv_add_u32 v5, {GL}, v5")
    e("s_mov_b64 exec, 0xff\nds_write_b128 v5, v[168:171]\nds_write_b128 v5, v[172:175] offset:16\ns_waitcnt lgkmcnt(0)\ns_mov_b64 exec, -1")
    g_final(k, "c")
    e(f"{L('wait')}:")
    e(f"s_cmp_lg_u32 s24, 0\ns_cbranch_scc1 {L('go')}")
    e(f"v_mov_b32 v6, 0\ns_mov_b32 s33, 0\ns_mov_b64 exec, 1")
    e(f"{L('poll')}:\nbuffer_load_dword v7, v6, {s(DBG,4)}, 0 offen offset:128 sc1\ns_waitcnt vmcnt(0)\nv_readfirstlane_b32 s34, v7")
    e(f"s_cmp_eq_u32 s34, 1\ns_cbranch_scc1 {L('pollx')}\ns_add_u32 s33, s33, 1\ns_cmp_ge_u32 s33, {SPIN_MAX}\ns_cbranch_scc1 {L('pollx')}\ns_sleep {SLEEP}\ns_branch {L('poll')}")
    e(f"{L('pollx')}:\ns_mov_b64 exec, -1")
    e(f"{L('go')}:\ns_barrier")

def g_loader(k):
    e = k.e; L = lambda n: k.lab("gl_" + n)
    share = (-(-CNT_BYTES // 128) + 1023) // 1024 * 1024
    e(f"s_cmp_ge_u32 s2, 128\ns_cbranch_scc1 {L('x')}\ns_cmp_lg_u32 s24, 5\ns_cbranch_scc1 {L('x')}")
    e(f"s_mul_i32 s36, s2, {share}\nv_lshlrev_b32 v3, 4, v2\nv_mov_b32 v200, 0\nv_mov_b32 v201, 0\nv_mov_b32 v202, 0\nv_mov_b32 v203, 0")
    for i in range(share // 1024):
        e(f"buffer_store_dwordx4 v[200:203], v3, {s(CNT,4)}, s36 offen offset:{i*1024}{SCS}")
    e("s_waitcnt vmcnt(0)")
    g_final(k, "l")
    e(f"{L('x')}:")

def h_phase(k):
    e = k.e; L = lambda n: k.lab("h_" + n)
    HL = 125952
    e("s_lshl_b32 s36, s2, 3\ns_lshl_b32 s37, s24, 1\ns_add_u32 s36, s36, s37")
    e("s_lshl_b32 s36, s36, 11\nv_lshlrev_b32 v3, 4, v2\nv_add_u32 v3, s36, v3")
    k.srd(12, P_X, 0, S * D * 2); k.srd(16, P_WS, WS_H, S * D * 2)
    k.srd(20, P_WS, WS_MODP, 4 * 6144 * 4); k.srd(56, P_WS, WS_MODF, 6144 * 4)
    single = "single" in OPT
    def xloads():
        for r in range(2):
            for hf in range(2):
                e(f"buffer_load_dwordx4 {v(8+8*r+4*hf,4)}, v3, s[12:15], 0 offen offset:{r*2048+hf*1024}")
    if single:
        xloads()
        e("v_mov_b32 v179, v3")
        g_compute(k)
        e("v_mov_b32 v3, v179")
    e("v_lshlrev_b32 v5, 5, v0")
    for p in range(4):
        e(f"s_mov_b32 s37, {p*24576}")
        e(f"buffer_load_dwordx4 {v(64+8*p,4)}, v5, s[20:23], s37 offen{SC if single else ''}\nbuffer_load_dwordx4 {v(68+8*p,4)}, v5, s[20:23], s37 offen offset:16{SC if single else ''}")
    if not single: xloads()
    nt_ = k.code_touch("h", k.lab("qkv_c"), k.lab("wo_c"), 24, 4, 1)
    e(f"s_waitcnt vmcnt({(0 if single else 4)+nt_})")
    for j in range(8):
        e(f"v_add_f32 v{64+j}, v{64+j}, v{72+j}\nv_add_f32 v{80+j}, v{80+j}, v{88+j}\nv_add_f32 v{64+j}, v{64+j}, v{80+j}")
        round_bf16(e, 64 + j)
    e("v_cmp_le_u32 vcc, 128, v0")
    for j in range(8):
        e(f"v_add_f32 v72, 1.0, v{64+j}")
        round_bf16(e, 72)
        e(f"v_cndmask_b32 v{64+j}, v{64+j}, v72, vcc")
    e(f"v_add_u32 v5, {HL}, v5\nds_write_b128 v5, v[64:67]\nds_write_b128 v5, v[68:71] offset:16")
    e("s_waitcnt lgkmcnt(0)\ns_barrier")
    e(f"v_lshlrev_b32 v5, 5, v2\nv_add_u32 v5, {HL}, v5")
    for hf in range(2):
        for q in range(2):
            e(f"ds_read_b128 {v(32+8*hf+4*q,4)}, v5 offset:{hf*2048+q*16}")
            e(f"ds_read_b128 {v(48+8*hf+4*q,4)}, v5 offset:{4096+hf*2048+q*16}")
    e(f"s_waitcnt vmcnt({nt_})")
    X = 64
    for r in range(2):
        for j in range(8):
            src = 8 + 8 * r + j
            e(f"v_lshlrev_b32 v{X+16*r+2*j}, 16, v{src}\nv_and_b32 v{X+16*r+2*j+1}, 0xffff0000, v{src}")
    for r in range(2): e(f"v_add_f32 v{104+r}, v{X+16*r}, v{X+16*r+1}")
    for j in range(2, 16):
        for r in range(2): e(f"v_add_f32 v{104+r}, v{104+r}, v{X+16*r+j}")
    wave_sum(e, [104, 105], 106, [0, 1, 2, 3, 4, 5])
    for r in range(2): e(f"v_mul_f32 v{104+r}, {f32(1/1024)}, v{104+r}")
    for j in range(16):
        for r in range(2): e(f"v_sub_f32 v{X+16*r+j}, v{X+16*r+j}, v{104+r}")
    for r in range(2): e(f"v_mul_f32 v{107+r}, v{X+16*r}, v{X+16*r}")
    for j in range(1, 16):
        for r in range(2): e(f"v_fmac_f32 v{107+r}, v{X+16*r+j}, v{X+16*r+j}")
    wave_sum(e, [107, 108], 106, [0, 1, 2, 3, 4, 5])
    for r in range(2):
        e(f"v_mov_b32 v{109+r}, {f32(1e-5)}\nv_fmac_f32 v{109+r}, {f32(1/1024)}, v{107+r}\nv_rsq_f32 v{109+r}, v{109+r}")
    e("s_waitcnt lgkmcnt(0)")
    for r in range(2):
        for j in range(16):
            e(f"v_mul_f32 v{X+16*r+j}, v{X+16*r+j}, v{109+r}\nv_fma_f32 v{X+16*r+j}, v{X+16*r+j}, v{48+j}, v{32+j}")
        for j in range(8): e(f"v_cvt_pk_bf16_f32 v{112+8*r+j}, v{X+16*r+2*j}, v{X+16*r+2*j+1}")
        e(f"buffer_store_dwordx4 {v(112+8*r,4)}, v3, s[16:19], 0 offen offset:{r*2048}{SCS}")
        e(f"buffer_store_dwordx4 {v(116+8*r,4)}, v3, s[16:19], 0 offen offset:{r*2048+1024}{SCS}")
    e(f"s_lshr_b32 s35, s2, 4\ns_add_u32 s35, s35, {C_H}")
    def offs():
        e(f"s_lshr_b32 s33, s2, 4\ns_lshl_b32 s33, s33, 9\ns_and_b32 s34, s2, 15\ns_lshl_b32 s34, s34, 2\ns_add_u32 s33, s33, s34\ns_add_u32 s33, s33, {FL['qkv']}")
        e("v_lshlrev_b32 v6, 7, v2\nv_add_u32 v6, s33, v6")
    k.signal("h", 4, 35, 16, (4, offs))

def k_main():
    single = "single" in OPT
    k = PK(NAME + "_kernel" if single else "main_kernel", 256, 512, LDS_TOTAL + 16384, 256, 100); e = k.e
    L = k.lab
    e(f"s_cmp_ge_u32 s2, 256\ns_cbranch_scc1 {L('end')}")
    if "scramble" in OPT: e("s_and_b32 s3, s2, 7\ns_lshl_b32 s3, s3, 5\ns_lshr_b32 s2, s2, 3\ns_or_b32 s2, s2, s3")
    e(f"s_load_dwordx4 s[68:71], s[0:1], {KA_X}\ns_load_dwordx4 s[72:75], s[0:1], {KA_W1}\ns_load_dwordx2 s[76:77], s[0:1], {KA_WO}")
    e(f"s_load_dwordx2 s[78:79], s[0:1], {KA_OUT}\ns_load_dwordx2 s[66:67], s[0:1], {KA_WS}")
    if single: e(f"s_load_dwordx2 s[82:83], s[0:1], {KA_DBG}")
    e("v_lshrrev_b32 v1, 6, v0\nv_and_b32 v2, 63, v0\nv_readfirstlane_b32 s24, v1")
    e(f"s_cmp_lg_u32 s24, 0\ns_cbranch_scc1 {L('noinit')}")
    e(f"v_lshlrev_b32 v3, 2, v2\nv_add_u32 v3, {CTL}, v3\nv_mov_b32 v4, 0\nds_write_b32 v3, v4\ns_waitcnt lgkmcnt(0)")
    e(f"{L('noinit')}:")
    e("s_waitcnt lgkmcnt(0)")
    k.srd(CNT, P_WS, WS_CNT, CNT_BYTES)
    if single:
        k.srd(DBG, 82, 0, 256)
        e("s_barrier")
    k.st(0)
    e(f"s_cmp_ge_u32 s24, 4\ns_cbranch_scc1 {L('qkv_l')}")
    hin = "hsep" not in OPT
    if hin: h_phase(k)
    gemm_phase(k, "qkv", 1024, 1024, 3072, 192, WS_H, S * D * 2, P_WQKV, D * 3 * D * 2, "qkv", 8, 4, 3, L("att_c"), L("att_l"), (C_H, 16, "rb") if hin else None, (1, 2), hbar=hin)
    pf = [(P_WO, D * D * 2), (P_W1, D * DFF * 2), (P_W2, D * DFF * 2)] if "nopf" not in OPT else []
    attn_phase(k, L("wo_c"), L("wo_l"), pf)
    gemm_phase(k, "wo", 1024, 1024, 1024, 64, WS_O, S * D * 2, P_WO, D * D * 2, "wo", 4, 8, WO_NS, L("f1_c"), L("f1_l"), (C_ATT, 32, "rb2"), (5, 6))
    gemm_phase(k, "f1", 1024, 1024, DFF, 224, WS_XG, S * D * 2, P_W1, D * DFF * 2, "ffn1", 8, 4, 3, L("f2_c"), L("f2_l"), (C_WO, 16, "rb"), (7, 8))
    if "nos2" in OPT:
        gemm_phase(k, "f2", DFF, DFF, 1024, 64, WS_F1, S * DFF * 2, P_W2, DFF * D * 2, "ffn2", 4, 8, 4, L("fin"), L("end"), (C_F1, 16, "rb"), (9, 10))
    else:
        gemm_phase(k, "f2", DFF, DFF, 1024, 128, F1OFF(), S * DFF * 2, P_W2, DFF * D * 2, "ffn2s", 4, 8, 4, L("fin"), L("end"), (C_F1, 8, "rb"), (9, 10))
    e(f"{L('fin')}:")
    if DIAG:
        e("s_waitcnt vmcnt(0)")
        k.st(11)
        e(f"s_cmp_lg_u32 s24, 0\ns_cbranch_scc1 {L('end')}")
        k.srd(12, P_WS, WS_STAMP + 8 * 512 * 16, 256 * 64)
        e(f"v_lshlrev_b32 v3, 2, v2\nv_add_u32 v4, {L_STAMP}, v3\nds_read_b32 v5, v4\ns_lshl_b32 s32, s2, 6\nv_add_u32 v3, s32, v3\ns_waitcnt lgkmcnt(0)")
        e("s_mov_b64 exec, 0xffff\nbuffer_store_dword v5, v3, s[12:15], 0 offen")
    k.finish()
    return k

def k_mod2():
    NG = 384 if "modall" in OPT else 128
    k = Kern("mod_kernel", NG + 128, 256, 1024, 64); e = k.e
    k.exit_extra()
    e("s_load_dwordx4 s[4:7], s[0:1], %d" % KA_C)
    k.ptr(8, KA_WS); k.ptr(10, KA_X)
    e(f"s_cmp_ge_u32 s2, {NG}\ns_cbranch_scc1 {k.lab('aux')}")
    e("s_and_b32 s24, s2, 3\ns_lshr_b32 s25, s2, 2")
    e("v_lshrrev_b32 v1, 3, v0\nv_and_b32 v2, 7, v0")
    e("s_lshl_b32 s26, s24, 8\nv_add_u32 v3, s26, v1")
    e("v_lshlrev_b32 v4, 1, v3")
    e("v_mul_u32_u24 v5, 12288, v3\nv_lshlrev_b32 v6, 4, v2\nv_add_u32 v5, v5, v6")
    e("s_lshl_b32 s27, s25, 7\nv_add_u32 v5, s27, v5")
    e("s_waitcnt lgkmcnt(0)")
    k.srd(12, 4, 0, 2048); k.srd(16, 6, 0, 1024 * 6144 * 2); k.srd(20, 8, WS_MODP, 4 * 6144 * 4)
    gemv_body(k, 8, 16, 48, 56, "s[12:15]", "s[16:19]", 32)
    k.stamp(2)
    e("v_lshrrev_b32 v9, 6, v0\nv_lshlrev_b32 v9, 8, v9\nv_lshlrev_b32 v10, 5, v2\nv_add_u32 v9, v9, v10")
    e("v_and_b32 v10, 63, v0\nv_cmp_gt_u32 vcc, 8, v10\ns_and_saveexec_b64 s[28:29], vcc")
    e("ds_write_b128 v9, v[48:51]\nds_write_b128 v9, v[52:55] offset:16")
    e("s_mov_b64 exec, s[28:29]")
    e("s_waitcnt lgkmcnt(0)\ns_barrier")
    e("v_cmp_gt_u32 vcc, 64, v0\ns_and_saveexec_b64 s[28:29], vcc")
    e(f"s_cbranch_execz {k.lab('end')}")
    e("v_lshlrev_b32 v9, 2, v0")
    for w in range(4): e(f"ds_read_b32 v{12+w}, v9 offset:{w*256}")
    e("s_waitcnt lgkmcnt(0)")
    e("v_add_f32 v12, v12, v13\nv_add_f32 v14, v14, v15\nv_add_f32 v12, v12, v14")
    e("s_mul_i32 s26, s24, 24576\ns_lshl_b32 s27, s25, 8\ns_add_u32 s26, s26, s27")
    e("buffer_store_dword v12, v9, s[20:23], s26 offen")
    k.stamp_flush(0, 56)
    e("s_endpgm")
    e(f"{k.lab('aux')}:")
    e(f"s_waitcnt lgkmcnt(0)\ns_sub_u32 s24, s2, {NG}")
    k.srd(12, 10, 0, S * D * 2)
    e("s_lshl_b32 s25, s24, 15\nv_lshlrev_b32 v1, 7, v0\nbuffer_load_dword v2, v1, s[12:15], s25 offen")
    e(f"s_add_u32 s16, s8, {WS_CNT:#x}\ns_addc_u32 s17, s9, 0\ns_mov_b32 s18, {CNT_BYTES}\ns_mov_b32 s19, 0x20000")
    e("s_lshl_b32 s25, s24, 12\nv_lshlrev_b32 v3, 4, v0\nv_mov_b32 v4, 0\nv_mov_b32 v5, 0\nv_mov_b32 v6, 0\nv_mov_b32 v7, 0\nbuffer_store_dwordx4 v[4:7], v3, s[16:19], s25 offen")
    assert CNT_BYTES <= 128 * 4096
    if gen.DIAG:
        k.stamp(1); k.stamp(2)
        k.a.lines.append("  s_nop 0")
    k.finish()
    return k

def gemv_body(k, CV, WV, AC, TMP, srd_c, srd_w, ssoff):
    e = k.e
    for i in range(8): e(f"buffer_load_ushort v{CV+i}, v4, {srd_c}, 0 offen offset:{i*64}")
    for i in range(8): e(f"s_mov_b32 s{ssoff+i}, {i*32*12288}")
    for i in range(8): e(f"buffer_load_dwordx4 {v(WV+4*i,4)}, v5, {srd_w}, s{ssoff+i} offen")
    gemv_finish(k, CV, WV, AC, TMP)

def gemv_finish(k, CV, WV, AC, TMP):
    e = k.e
    for j in range(8): e(f"v_mov_b32 v{AC+j}, 0")
    e("s_waitcnt vmcnt(8)")
    k.stamp(1) if not isinstance(k, PK) else None
    for i in range(8):
        x = CV + i
        e(f"v_lshlrev_b32 v{x}, 16, v{x}")
        e(f"v_mul_f32 v{TMP}, {f32(-LOG2E)}, v{x}\nv_exp_f32 v{TMP}, v{TMP}\nv_add_f32 v{TMP}, 1.0, v{TMP}\nv_rcp_f32 v{TMP}, v{TMP}\nv_mul_f32 v{x}, v{x}, v{TMP}")
        round_bf16(e, x)
    for i in range(8):
        e(f"s_waitcnt vmcnt({7-i})")
        for j in range(4):
            w = WV + 4 * i + j
            e(f"v_lshlrev_b32 v{TMP}, 16, v{w}\nv_and_b32 v{TMP+1}, 0xffff0000, v{w}")
            e(f"v_fmac_f32 v{AC+2*j}, v{CV+i}, v{TMP}\nv_fmac_f32 v{AC+2*j+1}, v{CV+i}, v{TMP+1}")
    wave_sum(e, list(range(AC, AC + 8)), TMP, [3, 4, 5])

def k_probe(idx, mult):
    k = Kern("probe_kernel", 1, 64, 0, 64); e = k.e
    e("s_cmp_ge_u32 s2, 1\ns_cbranch_scc1 probe_kernel_end")
    k.ptr(8, KA_WS); k.ptr(10, KA_DBG)
    e("s_waitcnt lgkmcnt(0)")
    k.srd(12, 8, WS_STAMP, 16 * 512 * 16); k.srd(20, 10, 0, 256)
    e("v_lshlrev_b32 v1, 4, v0\nv_lshlrev_b32 v2, 6, v0")
    for c in range(6): e(f"s_mov_b32 s24, {(c%2)*64*16}\nbuffer_load_dword v{8+c}, v1, s[12:15], s24 offen")
    for c in range(4): e(f"s_mov_b32 s24, {8*512*16 + c*64*64 + idx*4}\nbuffer_load_dword v{16+c}, v2, s[12:15], s24 offen")
    e("s_waitcnt vmcnt(0)")
    for c in range(1, 6): e(f"v_min_u32 v8, v8, v{8+c}")
    for c in range(1, 4): e(f"v_max_u32 v16, v16, v{16+c}")
    def red(r, op):
        for b in range(4): e(f"{op}_dpp v{r}, v{r}, v{r} row_ror:{1<<b} row_mask:0xf bank_mask:0xf")
        for w in (16, 32):
            e(f"v_mov_b32 v40, v{r}\nv_permlane{w}_swap_b32 v40, v{r}\n{op} v{r}, v{r}, v40")
    red(8, "v_min_u32"); red(16, "v_max_u32")
    e("v_sub_u32 v16, v16, v8\nv_mov_b32 v13, 0\nbuffer_store_dword v16, v13, s[20:23], 0 offen\nv_readfirstlane_b32 s30, v16")
    e(f"s_mul_i32 s30, s30, {mult}\ns_min_u32 s30, s30, 100000")
    e("s_memrealtime s[32:33]\ns_waitcnt lgkmcnt(0)")
    e("probe_spin:\ns_memrealtime s[34:35]\ns_waitcnt lgkmcnt(0)\ns_sub_u32 s36, s34, s32\ns_cmp_lt_u32 s36, s30\ns_cbranch_scc1 probe_spin")
    k.finish()
    return k

PROBE = None
def build():
    if "single" in OPT: return [k_main()]
    if PROBE is not None: return [k_mod2(), k_main(), k_probe(*PROBE)]
    if "hsep" in OPT: return [k_mod2(), gen.k_h(True), k_main()]
    return [k_mod2(), k_main()]

if __name__ == "__main__":
    for a_ in list(sys.argv):
        if a_.startswith("--opt="): OPT = set(a_[6:].split(",")); sys.argv.remove(a_)
        if a_.startswith("--pfstage="): PFSTAGE = int(a_[10:]); sys.argv.remove(a_)
        if a_.startswith("--scs="): SCS = " " + a_[6:].replace("+", " "); sys.argv.remove(a_)
        if a_.startswith("--l2d="): L2D = int(a_[6:]); sys.argv.remove(a_)
        if a_.startswith("--probe="): PROBE = tuple(int(x) for x in a_[8:].split(",")); sys.argv.remove(a_)
        if a_.startswith("--mrstep="): MRSTEP = int(a_[9:]); sys.argv.remove(a_)
        if a_.startswith("--align="):
            for kv in a_[8:].split(","):
                k_, v_ = kv.split(":"); ALIGN[k_] = None if v_ == "n" else int(v_)
            sys.argv.remove(a_)
        if a_.startswith("--pipe="): PIPE, PGAP = [int(x) for x in a_[7:].split(",")]; sys.argv.remove(a_)
        if a_.startswith("--wons="): WO_NS = int(a_[7:]); sys.argv.remove(a_)
        if a_.startswith("--ltd="): LTD = int(a_[6:]); sys.argv.remove(a_)
        if a_.startswith("--sleep="): SLEEP = int(a_[8:]); sys.argv.remove(a_)
    if "--diag" in sys.argv: DIAG = True; gen.DIAG = True; sys.argv.remove("--diag")
    txt = emit(build(), header())
    if "single" in OPT and "aslist" not in OPT:
        txt = txt.replace(f"; @launch kernel={NAME}_kernel grid=", "; @launch grid=")
    out = sys.argv[1]
    open(out, "w").write(txt)
    print("wrote", out, len(txt), "bytes")
```
